```python
import torch

def _softmax(x, axis=-1):
    return torch.softmax(x, dim=axis)
def _gelu(x):
    return torch.nn.functional.gelu(x, approximate="tanh")
def _silu(x):
    return torch.nn.functional.silu(x)
def _sigmoid(x):
    return torch.sigmoid(x)
def _layernorm(x, axis=-1, eps=1e-5):
    m = x.mean(dim=axis, keepdim=True)
    v = x.var(dim=axis, keepdim=True, unbiased=False)
    return (x - m) / torch.sqrt(v + eps)
def _scatter_add(tgt, idx, src, axis=0):
    return tgt.clone().index_add_(axis, idx, src)
def _segment_sum(src, seg, n):
    out = torch.zeros((n,) + src.shape[1:], dtype=src.dtype)
    return out.index_add_(0, seg, src)
def _pad(x, pw):
    flat = tuple(v for pair in reversed(pw) for v in pair)
    return torch.nn.functional.pad(x, flat)

kernel_name = 'gated_mix__ssm_conv_s4__swiglu_ffn__prompt'

def setup_inputs():

    _w = (lambda a: (lambda t: t.to(torch.bfloat16) if t.is_floating_point() else t)(torch.as_tensor(a)))
    def _A_setup():
        B, L, D, N = 1, 2048, 512, 128
        A_re = -(lambda _x: torch.exp(torch.as_tensor(_x)))((lambda *s: torch.randn(*s, dtype=torch.bfloat16) * 3.2)(D, N))
        A_im = torch.pi * (lambda *s: torch.randn(*s, dtype=torch.bfloat16) * 0.05)(D, N)
        B_re = (lambda *s: torch.randn(*s, dtype=torch.bfloat16) * 0.1)(D, N)
        B_im = (lambda *s: torch.randn(*s, dtype=torch.bfloat16) * 0.1)(D, N)
        C_re = (lambda *s: torch.randn(*s, dtype=torch.bfloat16) * 0.1)(D, N)
        C_im = (lambda *s: torch.randn(*s, dtype=torch.bfloat16) * 0.1)(D, N)
        log_dt = (lambda *s: torch.randn(*s, dtype=torch.bfloat16) * 0.05)(D) * 0.5 - 4.0
        Dskip = (lambda *s: torch.randn(*s, dtype=torch.bfloat16) * 0.05)(D)
        return {
            "u": _w((lambda *s: torch.randn(*s, dtype=torch.bfloat16) * 0.05)(B, L, D)),
            "A_re": _w(A_re),
            "A_im": _w(A_im),
            "B_re": _w(B_re),
            "B_im": _w(B_im),
            "C_re": _w(C_re),
            "C_im": _w(C_im),
            "log_dt": _w(log_dt),
            "Dskip": _w(Dskip),
        }
    _A_in = _A_setup()

    def _B_setup():
        B, S, D, F = 1, 2048, 512, 1792
        return {
            "x": _w((lambda *s: torch.randn(*s, dtype=torch.bfloat16) * 0.05)(B, S, D)),
            "w_gate": _w((lambda *s: torch.randn(*s, dtype=torch.bfloat16) * 0.05)(D, F)),
            "w_up": _w((lambda *s: torch.randn(*s, dtype=torch.bfloat16) * 0.05)(D, F)),
            "w_down": _w((lambda *s: torch.randn(*s, dtype=torch.bfloat16) * 0.05)(F, D)),
        }
    _B_in = _B_setup()

    return {
        "A_u": _A_in["u"],
        "A_A_re": _A_in["A_re"],
        "A_A_im": _A_in["A_im"],
        "A_B_re": _A_in["B_re"],
        "A_B_im": _A_in["B_im"],
        "A_C_re": _A_in["C_re"],
        "A_C_im": _A_in["C_im"],
        "A_log_dt": _A_in["log_dt"],
        "A_Dskip": _A_in["Dskip"],
        "B_x": _B_in["x"],
        "B_w_gate": _B_in["w_gate"],
        "B_w_up": _B_in["w_up"],
        "B_w_down": _B_in["w_down"],
        "gate_w": _w((lambda *s: torch.randn(*s, dtype=torch.bfloat16) * 0.05)(512) * 16.0),
    }

def reference(A_u, A_A_re, A_A_im, A_B_re, A_B_im, A_C_re, A_C_im, A_log_dt, A_Dskip, B_x, B_w_gate, B_w_up, B_w_down, gate_w):
    def _A_ref(u, A_re, A_im, B_re, B_im, C_re, C_im, log_dt, Dskip):
        Bsz, L, D = u.shape
        dt = torch.exp(log_dt)[:, None]
        A = A_re + 1j * A_im
        Bc = B_re + 1j * B_im
        Cc = C_re + 1j * C_im
        logdA = dt * A
        dB = dt * Bc
        l = (lambda x, dt: x.to(dt))(torch.arange(L), A_re.dtype)
        P = torch.exp(logdA[:, :, None] * l[None, None, :])
        K = torch.einsum("dn,dnl,dn->dl", Cc, P, dB).real
        L2 = 2 * L
        Kp = _pad(K, ((0, 0), (0, L)))
        up = (lambda x, *d: x.permute(*d))(u, 0, 2, 1)
        up = _pad(up, ((0, 0), (0, 0), (0, L)))
        Kf = (lambda x, axes=(-2,-1): torch.fft.rfft2(x.float(), dim=axes))(Kp[:, None, :], axes=(-2, -1))
        Uf = (lambda x, axes=(-2,-1): torch.fft.rfft2(x.float(), dim=axes))(up[:, :, None, :], axes=(-2, -1))
        Yf = Uf * Kf[None, :, :, :]
        y = (lambda x, s, axes=(-2,-1): torch.fft.irfft2(x, s=s, dim=axes).to(torch.bfloat16))(Yf, (1, L2), axes=(-2, -1))[:, :, 0, :L]
        y = (lambda x, *d: x.permute(*d))(y, 0, 2, 1) + u * Dskip[None, None, :]
        return y

    def _B_ref(x, w_gate, w_up, w_down):
        g = _silu(x @ w_gate)
        u = x @ w_up
        return (g * u) @ w_down

    x = A_u
    g = _sigmoid((x * gate_w).sum(-1, keepdims=True))
    a = _A_ref(x, A_A_re, A_A_im, A_B_re, A_B_im, A_C_re, A_C_im, A_log_dt, A_Dskip)
    b = _B_ref(x, B_w_gate, B_w_up, B_w_down)
    return g * a + (1 - g) * b
```

```python
import sys, struct

NAME = "gated_mix__ssm_conv_s4__swiglu_ffn__prompt"

H_OFF = 0x000000
UT_OFF = 0x800000
KX_OFF = 0xA00000
Y_OFF = 0xC00000
GL_OFF = 0xE00000
FL_OFF = 0xE10000
WS_BYTES = 0x1000000


def f32(x):
    return "0x%08x" % struct.unpack("<I", struct.pack("<f", x))[0]


LOG2E = 1.4426950408889634
LOG2E_HI = struct.unpack("<f", struct.pack("<f", LOG2E))[0]
LOG2E_LO = LOG2E - LOG2E_HI
LN2 = 0.6931471805599453
INV2PI = 0.15915494309189535


class Asm:
    def __init__(self):
        self.L = []

    def __call__(self, s):
        for line in s.strip().split("\n"):
            line = line.strip()
            if line:
                self.L.append(line)

    def ext(self, lines):
        self.L.extend(lines)


def v(b, n=1):
    return f"v{b}" if n == 1 else f"v[{b}:{b+n-1}]"


def s(b, n=1):
    return f"s{b}" if n == 1 else f"s[{b}:{b+n-1}]"


class RA:
    def __init__(self, start, end):
        self.p = start
        self.end = end

    def __call__(self, n=1, align=1):
        self.p = (self.p + align - 1) // align * align
        r = self.p
        self.p += n
        assert self.p <= self.end, "out of registers"
        return r


def is_vmem(line):
    return line.startswith("buffer_") or line.startswith("global_")


def resolve_vm(lines):
    out = []
    count = 0
    tags = {}
    for ln in lines:
        if isinstance(ln, tuple):
            if ln[0] == "VMTAG":
                tags[ln[1]] = count
            elif ln[0] == "VMWAIT":
                n = count - tags[ln[1]]
                assert 0 <= n <= 63, n
                out.append(f"s_waitcnt vmcnt({n})")
            else:
                raise ValueError(ln)
        else:
            if is_vmem(ln):
                count += 1
            out.append(ln)
    return out


def interleave(main, groups):
    if not groups:
        return list(main)
    out = []
    n = len(main)
    g = len(groups)
    gi = 0
    for i, ln in enumerate(main):
        while gi < g and gi * n <= i * g:
            out.extend(groups[gi])
            gi += 1
        out.append(ln)
    while gi < g:
        out.extend(groups[gi])
        gi += 1
    return out


SLOT = 49152
KG_BASE = 3 * SLOT

S_U, S_ARE, S_AIM, S_BRE, S_BIM, S_CRE, S_CIM, S_LDT = 4, 6, 8, 10, 12, 14, 16, 18
S_WG, S_WU, S_WD, S_GW = 20, 22, 24, 26
S_WIDX = 30
S_XCD, S_IDX, S_RB, S_CB, S_PHI = 31, 32, 33, 34, 35
SRD_X, SRD_WG, SRD_WU, SRD_WS, SRD_WD = 36, 40, 44, 48, 52


def srd(a, d, base, nbytes):
    a(f"""
    s_mov_b32 s{d}, s{base}
    s_and_b32 s{d+1}, s{base+1}, 0xffff
    s_mov_b32 s{d+2}, {nbytes}
    s_mov_b32 s{d+3}, 0x00020000
    """)


def k0_prologue(a):
    a(f"""
    s_cmp_ge_u32 s2, 256
    s_cbranch_scc1 K0_END
    s_load_dwordx16 s[4:19], s[0:1], 0
    s_load_dwordx8 s[20:27], s[0:1], 80
    s_load_dwordx2 s[28:29], s[0:1], 128
    v_lshrrev_b32 v1, 6, v0
    v_and_b32 v0, 63, v0
    s_and_b32 s{S_XCD}, s2, 7
    v_readfirstlane_b32 s{S_WIDX}, v1
    s_lshr_b32 s{S_IDX}, s2, 3
    s_and_b32 s56, s{S_IDX}, 3
    s_lshr_b32 s57, s{S_IDX}, 2
    s_lshr_b32 s{S_RB}, s{S_XCD}, 1
    s_lshl_b32 s{S_RB}, s{S_RB}, 2
    s_add_u32 s{S_RB}, s{S_RB}, s56
    s_and_b32 s{S_CB}, s{S_XCD}, 1
    s_mul_i32 s{S_CB}, s{S_CB}, 7
    s_add_u32 s{S_CB}, s{S_CB}, s57
    s_lshl_b32 s{S_PHI}, s56, 1
    s_add_u32 s{S_PHI}, s{S_PHI}, s57
    s_and_b32 s{S_PHI}, s{S_PHI}, 7
    s_waitcnt lgkmcnt(0)
    """)
    srd(a, SRD_X, S_U, 2048 * 512 * 2)
    srd(a, SRD_WG, S_WG, 512 * 1792 * 2)
    srd(a, SRD_WU, S_WU, 512 * 1792 * 2)
    srd(a, SRD_WS, 28, WS_BYTES)
    srd(a, SRD_WD, S_WD, 1792 * 512 * 2)
    a(f"""
    s_cmp_ge_u32 s{S_WIDX}, 4
    s_cbranch_scc1 K0_HELPER
    s_cmp_ge_u32 s{S_IDX}, 28
    s_cbranch_scc1 K0_SPARE
    """)


def k0_gemm(a):
    XA = 8
    WA = 20
    BUF = 64
    ACC = 128

    def acc(mat, t, tt):
        return ACC + 16 * (mat * 4 + t * 2 + tt)

    def wf(b, mat, t):
        return BUF + 24 * b + 4 * (mat * 2 + t)

    def xf(b, tt):
        return BUF + 24 * b + 16 + 4 * tt

    a(f"""
    s_lshr_b32 s56, s{S_WIDX}, 1
    s_and_b32 s57, s{S_WIDX}, 1
    v_and_b32 v1, 31, v0
    v_lshrrev_b32 v2, 5, v0
    v_lshrrev_b32 v3, 1, v0
    v_and_b32 v3, 7, v3
    s_lshl_b32 s58, s56, 13
    v_lshlrev_b32 v4, 7, v1
    v_add_u32 v4, s58, v4
    """)
    for ks in range(4):
        a(f"""
        v_add_u32 v5, {2*ks}, v2
        v_xor_b32 v5, v5, v3
        v_lshl_add_u32 v{XA+ks}, v5, 4, v4
        """)
    a(f"""
    v_lshrrev_b32 v1, 2, v0
    v_and_b32 v1, 3, v1
    v_and_b32 v3, 3, v0
    v_lshrrev_b32 v4, 4, v0
    v_and_b32 v4, 1, v4
    v_lshl_add_u32 v5, v2, 3, v1
    v_lshlrev_b32 v5, 8, v5
    v_lshl_add_u32 v5, v4, 5, v5
    v_lshl_add_u32 v5, v3, 3, v5
    s_lshl_b32 s58, s57, 1
    """)
    for t in range(2):
        a(f"""
        s_add_u32 s59, s58, {t}
        v_xor_b32 v6, s59, v1
        v_lshl_add_u32 v{WA+t}, v6, 6, v5
        """)
    for sl in (1, 2):
        for ks in range(4):
            a(f"v_add_u32 v{XA+4*sl+ks}, {sl*SLOT}, v{XA+ks}")
        for t in range(2):
            a(f"v_add_u32 v{WA+2*sl+t}, {sl*SLOT}, v{WA+t}")

    def reads(n):
        st, ks = n >> 2, n & 3
        sl = st % 3
        b = n & 1
        r = []
        r.append(f"ds_read_b128 {v(xf(b,0),4)}, v{XA+4*sl+ks}")
        for mat in range(2):
            for t in range(2):
                for h2 in range(2):
                    off = 16384 * (1 + mat) + ks * 4096 + h2 * 1024
                    r.append(f"ds_read_b64_tr_b16 {v(wf(b,mat,t)+2*h2,2)}, v{WA+2*sl+t} offset:{off}")
                if mat == 0 and t == 0:
                    r.append(f"ds_read_b128 {v(xf(b,1),4)}, v{XA+4*sl+ks} offset:4096")
        return r

    a("s_barrier")
    a.ext(reads(0))
    for n in range(32):
        b = n & 1
        a("s_waitcnt lgkmcnt(0)")
        if (n & 3) == 3 and n < 31:
            a("s_barrier")
        rd = reads(n + 1) if n < 31 else []
        mf = []
        for t in range(2):
            for tt in range(2):
                for mat in range(2):
                    c = "0" if n == 0 else v(acc(mat, t, tt), 16)
                    mf.append(f"v_mfma_f32_32x32x16_bf16 {v(acc(mat,t,tt),16)}, {v(wf(b,mat,t),4)}, {v(xf(b,tt),4)}, {c}")
        for i, m in enumerate(mf):
            a(m)
            a.ext(rd[2 * i:2 * i + 2])
    a(f"""
    s_lshl_b32 s58, s{S_RB}, 2
    s_lshl_b32 s59, s56, 1
    s_add_u32 s58, s58, s59
    s_mul_i32 s58, s58, 112
    s_lshl_b32 s59, s{S_CB}, 3
    s_add_u32 s58, s58, s59
    s_lshl_b32 s59, s57, 2
    s_add_u32 s58, s58, s59
    s_lshl_b32 s58, s58, 10
    s_add_u32 s59, s58, {112*1024}
    v_lshlrev_b32 v1, 4, v0
    s_mov_b32 s60, {f32(-LOG2E)}
    s_nop 4
    """)
    T = 8
    O = 32
    k = 0
    for t in range(2):
        for tt in range(2):
            G, U = acc(0, t, tt), acc(1, t, tt)
            o = O + 8 * k
            k += 1
            for i in range(16):
                a(f"v_mul_f32 v{T+i}, s60, v{G+i}")
            for i in range(16):
                a(f"v_exp_f32 v{T+i}, v{T+i}")
                a(f"v_mul_f32 v{U+i}, v{G+i}, v{U+i}")
            for i in range(16):
                a(f"v_add_f32 v{T+i}, 1.0, v{T+i}")
            for i in range(16):
                a(f"v_rcp_f32 v{T+i}, v{T+i}")
            for i in range(16):
                a(f"v_mul_f32 v{U+i}, v{U+i}, v{T+i}")
            for i in range(8):
                a(f"v_cvt_pk_bf16_f32 v{o+i}, v{U+2*i}, v{U+2*i+1}")
            sb = 58 + tt
            a(f"buffer_store_dwordx4 {v(o,4)}, v1, s[{SRD_WS}:{SRD_WS+3}], s{sb} offen offset:{t*2048}")
            a(f"buffer_store_dwordx4 {v(o+4,4)}, v1, s[{SRD_WS}:{SRD_WS+3}], s{sb} offen offset:{t*2048+1024}")
    a("s_endpgm")


def kgen_code(with_dma):
    ra = RA(2, 256)
    pre = Asm()
    main = Asm()
    post = Asm()
    a = pre
    a(f"""
    s_sub_u32 s56, s{S_WIDX}, 4
    s_lshr_b32 s57, s56, 1
    s_lshl_b32 s58, s2, 1
    s_add_u32 s57, s57, s58
    s_and_b32 s58, s56, 1
    s_lshl_b32 s59, s56, 12
    s_add_u32 s59, s59, {KG_BASE}
    s_lshr_b32 s60, s56, 1
    s_lshl_b32 s60, s60, 13
    s_add_u32 s60, s60, {KG_BASE}
    s_lshl_b32 s61, s57, 8
    s_lshl_b32 s62, s58, 7
    s_add_u32 s61, s61, s62
    """)
    t0 = ra(); t1 = ra(); t2 = ra(); t3 = ra()
    PR = ra(7)
    a(f"""
    v_lshlrev_b32 v{t0}, 1, v0
    v_add_u32 v{t0}, s61, v{t0}
    s_lshl_b32 s62, s57, 1
    v_mov_b32 v{t1}, s62
    """)
    for i, sb in enumerate((S_ARE, S_AIM, S_BRE, S_BIM, S_CRE, S_CIM)):
        a(f"global_load_ushort v{PR+i}, v{t0}, s[{sb}:{sb+1}]")
    a(f"global_load_ushort v{PR+6}, v{t1}, s[{S_LDT}:{S_LDT+1}]")
    a.L.append(("VMTAG", "par"))

    XV = ra(4)
    WV = ra(4)
    dma_stage = None
    if with_dma:
        a(f"""
        v_lshrrev_b32 v{t0}, 3, v0
        v_and_b32 v{t1}, 7, v0
        v_lshrrev_b32 v{t2}, 1, v{t0}
        v_xor_b32 v{t1}, v{t1}, v{t2}
        v_lshlrev_b32 v{t0}, 10, v{t0}
        """)
        for i in range(4):
            a(f"""
            v_xor_b32 v{t2}, {4*(i&1)}, v{t1}
            v_lshl_add_u32 v{XV+i}, v{t2}, 4, v{t0}
            v_add_u32 v{XV+i}, {7168*i}, v{XV+i}
            """)
        a(f"""
        v_lshrrev_b32 v{t0}, 4, v0
        v_and_b32 v{t1}, 15, v0
        v_lshlrev_b32 v{t2}, 2, v{t0}
        v_xor_b32 v{t1}, v{t1}, v{t2}
        v_mul_u32_u24 v{t0}, 3584, v{t0}
        v_lshl_add_u32 v{WV}, v{t1}, 4, v{t0}
        """)
        for i in range(1, 4):
            a(f"v_add_u32 v{WV+i}, {(4*3584-1024)*i}, v{WV}")
        a(f"""
        s_lshl_b32 s64, s{S_RB}, 17
        s_lshl_b32 s63, s56, 15
        s_add_u32 s64, s64, s63
        s_mul_i32 s65, s56, {16*3584}
        s_lshl_b32 s63, s{S_CB}, 8
        s_add_u32 s65, s65, s63
        s_lshl_b32 s66, s56, 12
        """)

        def dma_stage(st):
            sl = st % 3
            g = []
            hdr = [f"s_add_u32 s67, s{S_PHI}, {st}", "s_and_b32 s67, s67, 7",
                   "s_lshl_b32 s68, s67, 7", "s_add_u32 s68, s68, s64",
                   f"s_mul_i32 s69, s67, {64*3584}", "s_add_u32 s69, s69, s65"]
            for part, (sr, so, va) in enumerate(((SRD_X, 68, XV), (SRD_WG, 69, WV), (SRD_WU, 69, WV))):
                for i in range(4):
                    grp = []
                    if part == 0 and i == 0:
                        grp += hdr
                    if i == 0:
                        grp += [f"s_add_u32 m0, s66, {sl*SLOT + part*16384}", "s_nop 0"]
                    grp.append(f"buffer_load_dwordx4 v{va+i}, s[{sr}:{sr+3}], s{so} offen offset:{1024*i} lds")
                    g.append(grp)
            g[-1].append(("VMTAG", f"st{st}"))
            return g

        for st in range(3):
            for grp in dma_stage(st):
                a.ext(grp)

    WR = ra(8)
    RD = ra(2)
    a(f"""
    v_lshrrev_b32 v{t0}, 2, v0
    v_and_b32 v{t1}, 7, v{t0}
    v_lshlrev_b32 v{t0}, 8, v{t0}
    v_and_b32 v{t2}, 3, v0
    v_lshl_add_u32 v{t0}, v{t2}, 2, v{t0}
    v_add_u32 v{t0}, s59, v{t0}
    """)
    for b in range(8):
        a(f"""
        v_xor_b32 v{t2}, {b}, v{t1}
        v_lshl_add_u32 v{WR+b}, v{t2}, 4, v{t0}
        """)
    a(f"""
    v_and_b32 v{t0}, 15, v0
    v_lshrrev_b32 v{t1}, 4, v0
    """)
    for p in range(2):
        a(f"""
        v_add_u32 v{t2}, {4*p}, v{t1}
        v_xor_b32 v{t3}, v{t2}, v{t0}
        v_lshlrev_b32 v{t3}, 4, v{t3}
        v_lshl_add_u32 v{t3}, v{t2}, 8, v{t3}
        v_add_u32 v{RD+p}, s59, v{t3}
        """)
    TA0 = ra(); TA1 = ra(); TA2 = ra(); TA3 = ra()
    a(f"""
    v_and_b32 v{t2}, 1, v{t1}
    v_lshrrev_b32 v{t3}, 1, v{t1}
    v_lshlrev_b32 v{TA0}, 5, v{t0}
    v_lshl_add_u32 v{TA0}, v{t2}, 4, v{TA0}
    v_lshl_add_u32 v{TA0}, v{t3}, 9, v{TA0}
    v_add_u32 v{TA0}, s59, v{TA0}
    v_cmp_gt_u32 vcc, 2, v{t1}
    v_lshlrev_b32 v{TA1}, 4, v{t0}
    v_lshlrev_b32 v{TA2}, 3, v{t0}
    v_cndmask_b32 v{TA1}, v{TA2}, v{TA1}, vcc
    v_lshl_add_u32 v{TA1}, v{t1}, 8, v{TA1}
    v_add_u32 v{TA1}, s59, v{TA1}
    v_add_u32 v{TA1}, 1024, v{TA1}
    v_mov_b32 v{TA2}, 128
    v_cndmask_b32 v{TA2}, v{TA2}, 8, vcc
    v_add_u32 v{TA2}, v{TA2}, v{TA1}
    v_lshlrev_b32 v{TA3}, 2, v{t0}
    v_lshl_add_u32 v{TA3}, v{t1}, 8, v{TA3}
    v_add_u32 v{TA3}, s59, v{TA3}
    """)
    EX = ra(16)
    a(f"s_sub_u32 s70, s60, {4*17024}")
    a(f"s_lshl_b32 s71, s58, 7")
    for it in range(2):
        a(f"""
        v_add_u32 v{t0}, s71, v0
        v_add_u32 v{t0}, {64*it}, v{t0}
        v_cmp_gt_u32 vcc, 16, v{t0}
        v_lshlrev_b32 v{t0}, 3, v{t0}
        v_cvt_f32_u32 v{t1}, v{t0}
        v_lshlrev_b32 v{t0}, 2, v{t0}
        v_add_u32 v{t0}, s60, v{t0}
        """)
        for kk in range(4):
            e0, e1 = EX + 8 * it + 2 * kk, EX + 8 * it + 2 * kk + 1
            a(f"""
            v_add_f32 v{t2}, 1.0, v{t1}
            v_cvt_pk_bf16_f32 v{t3}, v{t1}, v{t2}
            v_add_f32 v{t1}, 2.0, v{t1}
            v_and_b32 v{e0}, 0xffff, v{t3}
            v_lshrrev_b32 v{e1}, 16, v{t3}
            v_lshl_add_u32 v{e0}, v{e0}, 2, s70
            v_lshl_add_u32 v{e1}, v{e1}, 2, s70
            v_add_u32 v{t2}, {8*kk}, v{t0}
            v_add_u32 v{t3}, {8*kk+4}, v{t0}
            v_cndmask_b32 v{e0}, v{e0}, v{t2}, vcc
            v_cndmask_b32 v{e1}, v{e1}, v{t3}, vcc
            """)

    a = main
    DT = ra(); A2 = ra(); TH = ra()
    MASK = ra()
    a(f"v_mov_b32 v{MASK}, 0xffff0000")
    for i in range(7):
        a(f"v_lshlrev_b32 v{PR+i}, 16, v{PR+i}")
    x = PR + 6
    a(f"""
    v_mul_f32 v{t0}, {f32(LOG2E_HI)}, v{x}
    s_mov_b32 s72, {f32(LOG2E_HI)}
    v_fma_f32 v{t1}, v{x}, s72, -v{t0}
    v_fmac_f32 v{t1}, {f32(LOG2E_LO)}, v{x}
    v_exp_f32 v{t0}, v{t0}
    v_mul_f32 v{t1}, {f32(LN2)}, v{t1}
    v_fmac_f32 v{t0}, v{t0}, v{t1}
    v_cvt_pk_bf16_f32 v{t0}, v{t0}, v{t0}
    v_lshlrev_b32 v{DT}, 16, v{t0}
    v_mul_f32 v{A2}, v{DT}, v{PR+0}
    v_mul_f32 v{TH}, v{DT}, v{PR+1}
    v_mul_f32 v{A2}, {f32(LOG2E)}, v{A2}
    v_mul_f32 v{TH}, {f32(INV2PI)}, v{TH}
    v_mul_f32 v{PR+2}, v{DT}, v{PR+2}
    v_mul_f32 v{PR+3}, v{DT}, v{PR+3}
    """)

    def cexp(l):
        r = ra(3)
        a(f"""
        v_mul_f32 v{t0}, {f32(float(l))}, v{A2}
        v_mul_f32 v{t1}, {f32(float(l))}, v{TH}
        v_exp_f32 v{t0}, v{t0}
        v_fract_f32 v{t1}, v{t1}
        v_cos_f32 v{t2}, v{t1}
        v_sin_f32 v{t3}, v{t1}
        s_nop 0
        v_mul_f32 v{r}, v{t0}, v{t2}
        v_mul_f32 v{r+1}, v{t0}, v{t3}
        v_sub_f32 v{r+2}, 0, v{r+1}
        """)
        return r

    def cmul(d, x_, br, bi, nbi):
        a(f"""
        v_mul_f32 v{d}, v{x_}, v{br}
        v_mul_f32 v{d+1}, v{x_}, v{bi}
        v_fmac_f32 v{d}, v{x_+1}, v{nbi}
        v_fmac_f32 v{d+1}, v{x_+1}, v{br}
        """)

    LO = ra(16)
    HI = ra(2)
    hic = [0]

    def put(row, r):
        h = HI + (hic[0] & 1)
        hic[0] += 1
        if r is None:
            a(f"v_mov_b32 v{h}, 0x3f80\nv_mov_b32 v{LO+row}, 0")
        else:
            a(f"""
            v_cvt_pk_bf16_f32 v{h}, v{r}, v{r+1}
            v_lshlrev_b32 v{t0}, 16, v{h}
            v_and_b32 v{t1}, v{MASK}, v{h}
            v_sub_f32 v{t0}, v{r}, v{t0}
            v_sub_f32 v{t1}, v{r+1}, v{t1}
            v_cvt_pk_bf16_f32 v{LO+row}, v{t0}, v{t1}
            """)
        a(f"ds_write_b32 v{WR+(row&7)}, v{h} offset:{(row>>3)*128}")

    def finish(rows, FH, FL_):
        for ks in range(4):
            a(f"ds_read_b128 {v(FH+4*ks,4)}, v{RD+(ks&1)} offset:{(ks>>1)*2048}")
        for row in rows:
            a(f"ds_write_b32 v{WR+(row&7)}, v{LO+row} offset:{(row>>3)*128}")
        for ks in range(4):
            a(f"ds_read_b128 {v(FL_+4*ks,4)}, v{RD+(ks&1)} offset:{(ks>>1)*2048}")

    YH = ra(16, 4); YL = ra(16, 4); XH = ra(16, 4); XL = ra(16, 4)
    AC = ra(12, 4)
    E8 = cexp(8)
    E1 = cexp(1)
    Q1 = cexp(128)
    Q8 = cexp(1024)
    W0 = ra(2); W1 = ra(2)
    Br, Bi, Cr, Ci = PR + 2, PR + 3, PR + 4, PR + 5
    a(f"""
    v_mul_f32 v{W0}, v{Cr}, v{Br}
    v_mul_f32 v{W0+1}, v{Cr}, v{Bi}
    v_fma_f32 v{W0}, -v{Ci}, v{Bi}, v{W0}
    v_fmac_f32 v{W0+1}, v{Ci}, v{Br}
    v_sub_f32 v{W0+1}, 0, v{W0+1}
    """)
    cur, nxt = W0, W1
    for c in range(16):
        if c < 15:
            cmul(nxt, cur, E8, E8 + 2, E8 + 1)
        put(c, cur)
        cur, nxt = nxt, cur
    finish(range(16), YH, YL)

    def mfmas(tile):
        a("s_waitcnt lgkmcnt(0)")
        first = True
        for (xa, yb) in ((XH, YH), (XH, YL), (XL, YH)):
            for ks in range(4):
                c = "0" if first else v(AC + 4 * tile, 4)
                first = False
                a(f"v_mfma_f32_16x16x32_bf16 {v(AC+4*tile,4)}, {v(xa+4*ks,4)}, {v(yb+4*ks,4)}, {c}")

    P = {1: E1}
    for j in range(2, 8):
        P[j] = ra(2)
        cmul(P[j], P[j - 1], E1, E1 + 1, E1 + 2)
    put(0, None)
    for j in range(1, 8):
        put(j, P[j])
    put(8, Q1)
    for j in range(1, 8):
        cmul(W0, P[j], Q1, Q1 + 1, Q1 + 2)
        put(8 + j, W0)
    finish(range(16), XH, XL)
    Q = {1: Q1, 8: Q8}
    for j in range(2, 8):
        Q[j] = ra(3)
        cmul(Q[j], Q[j - 1], Q1, Q1 + 1, Q1 + 2)
    NP4 = ra()
    a(f"v_sub_f32 v{NP4}, 0, v{P[4]+1}")
    for j in (2, 3):
        a(f"v_sub_f32 v{Q[j]+2}, 0, v{Q[j]+1}")
    mfmas(0)
    for qi, j in enumerate((2, 3)):
        put(4 * qi, Q[j])
        for r in range(1, 4):
            cmul(W0, P[2 * r], Q[j], Q[j] + 1, Q[j] + 2)
            put(4 * qi + r, W0)
    for aa in range(4):
        put(8 + 2 * aa, Q[4 + aa])
        cmul(W0, Q[4 + aa], P[4], P[4] + 1, NP4)
        put(8 + 2 * aa + 1, W0)
    finish(range(16), XH, XL)
    mfmas(1)
    put(0, Q8)
    for j in range(1, 8):
        cmul(W0, Q[j], Q8, Q8 + 1, Q8 + 2)
        put(j, W0)
    cmul(W0, Q8, Q8, Q8 + 1, Q8 + 2)
    put(8, W0)
    finish(range(9), XH, XL)
    mfmas(2)
    a("s_nop 7")
    a(f"ds_write_b128 v{TA0}, {v(AC,4)}")
    a(f"ds_write_b64 v{TA1}, {v(AC+4,2)}")
    a(f"ds_write_b64 v{TA2}, {v(AC+6,2)}")
    for r in range(4):
        a(f"ds_write_b32 v{TA3}, v{AC+8+r} offset:{2048+64*r}")
    a("s_waitcnt lgkmcnt(0)")

    a = post
    G0, G1 = XH, XL
    OUT = YH
    a(f"""
    s_lshl_b32 s72, s57, 12
    s_lshl_b32 s73, s58, 11
    s_add_u32 s72, s72, s73
    s_add_u32 s72, s72, {KX_OFF}
    v_lshlrev_b32 v{t0}, 4, v0
    """)
    for it in range(2):
        for k in range(8):
            a(f"ds_read_b32 v{G0+8*it+k}, v{EX+8*it+k}")
            a(f"ds_read_b32 v{G1+8*it+k}, v{EX+8*it+k} offset:4096")
    a("s_waitcnt lgkmcnt(0)")
    for it in range(2):
        for k in range(8):
            a(f"v_add_f32 v{G0+8*it+k}, v{G0+8*it+k}, v{G1+8*it+k}")
        for k in range(4):
            a(f"v_cvt_pk_bf16_f32 v{OUT+4*it+k}, v{G0+8*it+2*k}, v{G0+8*it+2*k+1}")
        a(f"buffer_store_dwordx4 {v(OUT+4*it,4)}, v{t0}, s[{SRD_WS}:{SRD_WS+3}], s72 offen offset:{1024*it}")

    pf = Asm()
    pf(f"""
    s_lshl_b32 s72, s{S_IDX}, 2
    s_add_u32 s72, s72, s56
    s_mul_i32 s72, s72, {14*1024}
    v_lshlrev_b32 v{t0}, 4, v0
    """)
    for i in range(14):
        if i % 4 == 0 and i:
            pf("s_add_u32 s72, s72, 4096")
        pf(f"buffer_load_dwordx4 {v(XH+4*(i%4),4)}, v{t0}, s[{SRD_WD}:{SRD_WD+3}], s72 offen offset:{1024*(i%4)}")

    out = list(pre.L)
    if with_dma:
        NI = 6
        weights = [1.3, 1.2, 1.0, 1.0, 1.0, 1.0]
        tot = sum(weights)
        n = len(main.L)
        cuts = [0]
        accw = 0
        for w_ in weights:
            accw += w_
            cuts.append(int(round(n * accw / tot)))
        for sidx in range(8):
            out.append(("VMWAIT", f"st{sidx}"))
            out.append("s_barrier")
            body = main.L[cuts[sidx]:cuts[sidx + 1]] if sidx < NI else []
            if sidx == 6:
                body = post.L
            groups = dma_stage(sidx + 2) if 1 <= sidx <= 5 else []
            out.extend(interleave(body, groups))
        out.extend(pf.L)
    else:
        out.append(("VMWAIT", "par"))
        out.extend(main.L)
        out.append("s_barrier")
        out.extend(post.L)
        out.extend(pf.L)
    out.append("s_endpgm")
    return resolve_vm(out)


def k0_spare(a):
    R = 16
    O = 80
    GWv = 112
    SUM = 120
    a(f"""
    s_lshl_b32 s56, s{S_XCD}, 2
    s_add_u32 s56, s56, s{S_IDX}
    s_sub_u32 s56, s56, 28
    s_lshl_b32 s56, s56, 2
    s_add_u32 s56, s56, s{S_WIDX}
    v_and_b32 v1, 7, v0
    v_lshrrev_b32 v2, 3, v0
    v_lshlrev_b32 v3, 15, v2
    v_lshl_add_u32 v3, v1, 4, v3
    v_lshlrev_b32 v4, 15, v1
    v_lshl_add_u32 v4, v2, 4, v4
    v_lshlrev_b32 v5, 4, v1
    v_lshlrev_b32 v6, 3, v2
    v_add_u32 v6, v6, v1
    v_lshlrev_b32 v6, 7, v6
    s_mov_b32 s70, 0x05040100
    s_mov_b32 s71, 0x07060302
    """)
    a(f"""
    s_cmp_lg_u32 s56, 0
    s_cbranch_scc1 K0_SP_NOCLR
    v_lshlrev_b32 v7, 4, v0
    v_mov_b32 v8, 0
    v_mov_b32 v9, 0
    v_mov_b32 v10, 0
    v_mov_b32 v11, 0
    s_mov_b32 s57, {FL_OFF}
    """)
    for i in range(4):
        a(f"buffer_store_dwordx4 v[8:11], v7, s[{SRD_WS}:{SRD_WS+3}], s57 offen offset:{1024*i}")
    a("K0_SP_NOCLR:")
    for i in range(2):
        b = 58 + 4 * i
        a(f"""
        s_lshl_b32 s57, s56, 1
        s_add_u32 s57, s57, {i}
        s_and_b32 s72, s57, 7
        s_lshr_b32 s73, s57, 3
        s_and_b32 s73, s73, 3
        s_lshr_b32 s74, s57, 5
        s_lshl_b32 s{b}, s74, 18
        s_lshl_b32 s75, s73, 10
        s_add_u32 s{b}, s{b}, s75
        s_lshl_b32 s{b+2}, s72, 7
        s_add_u32 s{b}, s{b}, s{b+2}
        s_lshl_b32 s{b+1}, s72, 18
        s_add_u32 s{b+1}, s{b+1}, s75
        s_lshl_b32 s75, s74, 7
        s_add_u32 s{b+1}, s{b+1}, s75
        s_add_u32 s{b+1}, s{b+1}, {UT_OFF}
        s_lshl_b32 s{b+3}, s74, 13
        s_lshl_b32 s75, s73, 5
        s_add_u32 s{b+3}, s{b+3}, s75
        s_lshl_b32 s75, s72, 2
        s_add_u32 s{b+3}, s{b+3}, s75
        s_add_u32 s{b+3}, s{b+3}, {GL_OFF}
        v_add_u32 v7, s{b+2}, v5
        global_load_dwordx4 {v(GWv+4*i,4)}, v7, s[{S_GW}:{S_GW+1}]
        """)
        for j in range(8):
            a(f"buffer_load_dwordx4 {v(R+32*i+4*j,4)}, v3, s[{SRD_X}:{SRD_X+3}], s{b} offen")
            if j < 7:
                a(f"s_add_u32 s{b}, s{b}, 4096")
    for i in range(2):
        b = 58 + 4 * i
        a(f"s_waitcnt vmcnt({9 if i == 0 else 9})")
        Ri = R + 32 * i
        for e in range(8):
            for jj in range(4):
                sel = 71 if (e & 1) else 70
                a(f"v_perm_b32 v{O+4*e+jj}, v{Ri+4*(2*jj+1)+(e>>1)}, v{Ri+4*(2*jj)+(e>>1)}, s{sel}")
            a(f"buffer_store_dwordx4 {v(O+4*e,4)}, v4, s[{SRD_WS}:{SRD_WS+3}], s{b+1} offen")
            if e < 7:
                a(f"s_add_u32 s{b+1}, s{b+1}, 4096")
        for j in range(8):
            a(f"v_mov_b32 v{SUM+j}, 0")
        for q in range(4):
            for j in range(8):
                a(f"v_dot2c_f32_bf16 v{SUM+j}, v{Ri+4*j+q}, v{GWv+4*i+q}")
        a("s_nop 3")
        for ctl in ("quad_perm:[1,0,3,2]", "quad_perm:[2,3,0,1]", "row_half_mirror"):
            for j in range(8):
                a(f"v_add_f32_dpp v{SUM+j}, v{SUM+j}, v{SUM+j} {ctl} row_mask:0xf bank_mask:0xf")
        for j in range(1, 8):
            a(f"""
            v_cmp_eq_u32 vcc, {j}, v1
            s_nop 1
            v_cndmask_b32 v{SUM}, v{SUM}, v{SUM+j}, vcc
            """)
        a(f"buffer_store_dword v{SUM}, v6, s[{SRD_WS}:{SRD_WS+3}], s{b+3} offen")
        a("s_nop 1")
    a("s_endpgm")


def gen_k0(a):
    a(".p2align 8\nk0_kernel:")
    k0_prologue(a)
    k0_gemm(a)
    a("K0_SPARE:")
    k0_spare(a)
    a("K0_HELPER:")
    a(f"s_cmp_ge_u32 s{S_IDX}, 28\ns_cbranch_scc1 K0_HELPER_SP")
    a.ext(kgen_code(True))
    a("K0_HELPER_SP:")
    a.ext(kgen_code(False))
    a("K0_END:\ns_endpgm")


K1_RING = 16384
K1_CONV = 65536
K1_CSZ = 10240
K1_LDS = K1_CONV + 4 * K1_CSZ
UPITCH = 1344

T_U, T_DS, T_WD, T_OUT, T_WS = 4, 6, 8, 10, 12
T_WIDX, T_RB, T_CB = 14, 15, 16
R_X, R_WD, R_WS, R_OUT = 20, 24, 28, 32


def k1_prologue(a):
    a(f"""
    s_cmp_ge_u32 s2, 256
    s_cbranch_scc1 K1_END
    s_load_dwordx2 s[{T_U}:{T_U+1}], s[0:1], 0
    s_load_dwordx2 s[{T_DS}:{T_DS+1}], s[0:1], 64
    s_load_dwordx2 s[{T_WD}:{T_WD+1}], s[0:1], 96
    s_load_dwordx2 s[{T_OUT}:{T_OUT+1}], s[0:1], 112
    s_load_dwordx2 s[{T_WS}:{T_WS+1}], s[0:1], 128
    v_lshrrev_b32 v1, 6, v0
    v_and_b32 v0, 63, v0
    s_and_b32 s{T_RB}, s2, 7
    v_readfirstlane_b32 s{T_WIDX}, v1
    s_lshl_b32 s{T_RB}, s{T_RB}, 2
    s_lshr_b32 s17, s2, 6
    s_add_u32 s{T_RB}, s{T_RB}, s17
    s_lshr_b32 s{T_CB}, s2, 3
    s_and_b32 s{T_CB}, s{T_CB}, 7
    s_waitcnt lgkmcnt(0)
    """)
    srd(a, R_X, T_U, 2048 * 512 * 2)
    srd(a, R_WD, T_WD, 1792 * 512 * 2)
    srd(a, R_WS, T_WS, WS_BYTES)
    srd(a, R_OUT, T_OUT, 2048 * 512 * 2)
    a(f"""
    s_cmp_ge_u32 s{T_WIDX}, 4
    s_cbranch_scc1 K1_CONVW
    """)


def k1_gemm(a0):
    a = Asm()
    D = 8
    NS = 28
    ACC = 192
    HB = 128
    WFR = 112
    EX_, ED, EG = 88, 96, 104
    VL16, VD0, VD1, DA = 2, 3, 4, 5
    VEP = 7

    def acc(t, tt):
        return ACC + 16 * (2 * t + tt)

    a(f"""
    s_lshl_b32 s40, s{T_WIDX}, 14
    s_lshl_b32 s41, s{T_RB}, 1
    s_mul_i32 s41, s41, 112
    s_mul_i32 s44, s{T_WIDX}, 28
    s_add_u32 s41, s41, s44
    s_lshl_b32 s41, s41, 10
    s_lshl_b32 s42, s44, 14
    s_lshl_b32 s45, s{T_CB}, 7
    s_add_u32 s42, s42, s45
    s_mul_i32 s43, s{T_CB}, 7
    s_lshr_b32 s43, s43, 1
    s_and_b32 s46, s{T_WIDX}, 1
    s_lshr_b32 s47, s{T_WIDX}, 1
    v_lshlrev_b32 v{VL16}, 4, v0
    v_lshrrev_b32 v8, 3, v0
    v_and_b32 v9, 7, v0
    v_lshrrev_b32 v10, 1, v8
    v_and_b32 v10, 1, v10
    v_lshlrev_b32 v10, 2, v10
    v_xor_b32 v9, v9, v10
    v_lshlrev_b32 v{VD0}, 10, v8
    v_lshl_add_u32 v{VD0}, v9, 4, v{VD0}
    v_add_u32 v{VD1}, {8192-1024}, v{VD0}
    """)

    def loads(i):
        sl = i % D
        return [
            "s_lshl_b32 s44, s43, 10", "s_add_u32 s44, s44, s41",
            "s_lshl_b32 s45, s43, 14", "s_add_u32 s45, s45, s42",
            f"s_add_u32 m0, s40, {sl*2048}",
            f"buffer_load_dwordx4 {v(HB+8*sl,4)}, v{VL16}, s[{R_WS}:{R_WS+3}], s44 offen",
            f"buffer_load_dwordx4 v{VD0}, s[{R_WD}:{R_WD+3}], s45 offen lds",
            f"s_add_u32 s44, s44, {112*1024}",
            f"buffer_load_dwordx4 v{VD1}, s[{R_WD}:{R_WD+3}], s45 offen offset:1024 lds",
            f"buffer_load_dwordx4 {v(HB+8*sl+4,4)}, v{VL16}, s[{R_WS}:{R_WS+3}], s44 offen",
            ("VMTAG", f"L{i}"),
            "s_add_u32 s43, s43, 1", "s_cmp_ge_u32 s43, 28", "s_cselect_b32 s43, 0, s43",
        ]

    for i in range(D):
        a.ext(loads(i))
    a(f"""
    v_lshrrev_b32 v8, 2, v0
    v_and_b32 v8, 3, v8
    v_and_b32 v9, 3, v0
    v_lshrrev_b32 v10, 4, v0
    v_and_b32 v10, 1, v10
    v_lshrrev_b32 v11, 5, v0
    v_lshl_add_u32 v12, v11, 2, v8
    v_lshlrev_b32 v12, 7, v12
    v_and_b32 v13, 1, v9
    v_lshl_add_u32 v12, v13, 5, v12
    v_lshl_add_u32 v12, v10, 4, v12
    v_lshrrev_b32 v13, 1, v9
    v_lshl_add_u32 v12, v13, 3, v12
    v_add_u32 v12, s40, v12
    v_lshrrev_b32 v13, 1, v8
    v_lshl_add_u32 v{DA}, v13, 6, v12
    v_xor_b32 v13, 1, v13
    v_lshl_add_u32 v{DA+1}, v13, 6, v12
    """)
    a(f"""
    s_lshl_b32 s48, s{T_RB}, 6
    s_lshl_b32 s49, s47, 5
    s_add_u32 s48, s48, s49
    s_lshl_b32 s49, s{T_CB}, 6
    s_lshl_b32 s50, s46, 5
    s_add_u32 s49, s49, s50
    v_and_b32 v8, 31, v0
    v_add_u32 v8, s48, v8
    v_lshlrev_b32 v9, 4, v11
    v_add_u32 v9, s49, v9
    v_lshlrev_b32 v9, 1, v9
    v_lshl_add_u32 v{VEP}, v8, 10, v9
    v_lshlrev_b32 v8, 5, v8
    s_mov_b32 s50, {GL_OFF}
    buffer_load_dwordx4 {v(EX_,4)}, v{VEP}, s[{R_X}:{R_X+3}], 0 offen
    buffer_load_dwordx4 {v(EX_+4,4)}, v{VEP}, s[{R_X}:{R_X+3}], 0 offen offset:16
    global_load_dwordx4 {v(ED,4)}, v9, s[{T_DS}:{T_DS+1}]
    global_load_dwordx4 {v(ED+4,4)}, v9, s[{T_DS}:{T_DS+1}] offset:16
    buffer_load_dwordx4 {v(EG,4)}, v8, s[{R_WS}:{R_WS+3}], s50 offen
    buffer_load_dwordx4 {v(EG+4,4)}, v8, s[{R_WS}:{R_WS+3}], s50 offen offset:16
    """)

    def rd(i):
        sl = i % D
        b = i & 1
        r = [("VMWAIT", f"L{i}")]
        for t in range(2):
            for h2 in range(2):
                r.append(f"ds_read_b64_tr_b16 {v(WFR+8*b+4*t+2*h2,2)}, v{DA+t} offset:{sl*2048+h2*1024}")
        return r

    a.ext(rd(0))
    for i in range(NS):
        sl = i % D
        b = i & 1
        if i + 1 < NS:
            a.ext(rd(i + 1))
            a("s_waitcnt lgkmcnt(4)")
        else:
            a("s_waitcnt lgkmcnt(0)")
        for t in range(2):
            for tt in range(2):
                c = "0" if i == 0 else v(acc(t, tt), 16)
                a(f"v_mfma_f32_32x32x16_bf16 {v(acc(t,tt),16)}, {v(WFR+8*b+4*t,4)}, {v(HB+8*sl+4*tt,4)}, {c}")
        if i + D < NS:
            a.ext(loads(i + D))

    a(f"""
    v_add_u32 v8, s40, v{VL16}
    s_nop 7
    s_nop 3
    """)
    for t in range(2):
        for tt in range(2):
            own = t + 2 * tt
            for g in range(4):
                a(f"ds_write_b128 v8, {v(acc(t,tt)+4*g,4)} offset:{own*4096+g*1024}")
    YR = HB
    a(f"""
    s_lshl_b32 s50, s49, 3
    s_add_u32 s50, s50, {FL_OFF}
    v_lshlrev_b32 v9, 2, v0
    s_mov_b32 s51, 0x40000
    K1_POLL:
    buffer_load_dword v10, v9, s[{R_WS}:{R_WS+3}], s50 offen sc1
    s_waitcnt vmcnt(0)
    v_cmp_ne_u32 vcc, 0, v10
    s_sub_u32 s51, s51, 1
    s_cmp_eq_u32 s51, 0
    s_cbranch_scc1 K1_POLLED
    s_cmp_eq_u64 vcc, exec
    s_cbranch_scc1 K1_POLLED
    s_sleep 2
    s_branch K1_POLL
    K1_POLLED:
    """)
    a(f"""
    v_lshrrev_b32 v9, 2, v0
    v_and_b32 v10, 3, v0
    v_lshlrev_b32 v9, 12, v9
    v_lshl_add_u32 v9, v10, 4, v9
    s_lshl_b32 s50, s49, 12
    s_lshl_b32 s51, s48, 1
    s_add_u32 s50, s50, s51
    s_add_u32 s50, s50, {Y_OFF}
    s_add_u32 s51, s50, 0x10000
    buffer_load_dwordx4 {v(YR,4)}, v9, s[{R_WS}:{R_WS+3}], s50 offen sc1
    buffer_load_dwordx4 {v(YR+4,4)}, v9, s[{R_WS}:{R_WS+3}], s51 offen sc1
    s_waitcnt lgkmcnt(0)
    s_barrier
    """)
    PB = 16
    a(f"""
    s_lshl_b32 s50, s{T_WIDX}, 12
    v_add_u32 v8, s50, v{VL16}
    """)
    for w in range(4):
        for g in range(4):
            a(f"ds_read_b128 {v(PB+16*w+4*g,4)}, v8 offset:{w*16384+g*1024}")
    a(f"""
    v_add_f32 v{EG}, v{EG}, v{EG+1}
    v_add_f32 v{EG+2}, v{EG+2}, v{EG+3}
    v_add_f32 v{EG+4}, v{EG+4}, v{EG+5}
    v_add_f32 v{EG+6}, v{EG+6}, v{EG+7}
    v_add_f32 v{EG}, v{EG}, v{EG+2}
    v_add_f32 v{EG+4}, v{EG+4}, v{EG+6}
    v_add_f32 v{EG}, v{EG}, v{EG+4}
    v_cvt_pk_bf16_f32 v{EG}, v{EG}, v{EG}
    v_lshlrev_b32 v{EG}, 16, v{EG}
    v_mul_f32 v{EG}, {f32(-LOG2E)}, v{EG}
    v_exp_f32 v{EG}, v{EG}
    s_nop 0
    v_add_f32 v{EG}, 1.0, v{EG}
    v_rcp_f32 v{EG}, v{EG}
    s_nop 0
    v_cvt_pk_bf16_f32 v{EG}, v{EG}, v{EG}
    v_lshlrev_b32 v{EG}, 16, v{EG}
    s_waitcnt lgkmcnt(0)
    s_barrier
    """)
    a(f"""
    v_add_u32 v8, s40, v{VL16}
    s_waitcnt vmcnt(0)
    ds_write_b128 v8, {v(YR,4)}
    ds_write_b128 v8, {v(YR+4,4)} offset:1024
    v_lshrrev_b32 v9, 2, v0
    v_and_b32 v9, 3, v9
    v_lshl_add_u32 v9, v11, 4, v9
    v_lshlrev_b32 v9, 6, v9
    v_lshrrev_b32 v10, 4, v0
    v_and_b32 v10, 1, v10
    v_lshl_add_u32 v9, v10, 5, v9
    v_and_b32 v10, 3, v0
    v_lshl_add_u32 v9, v10, 3, v9
    v_add_u32 v9, s40, v9
    """)
    YT = HB + 8
    for q in range(4):
        a(f"ds_read_b64_tr_b16 {v(YT+2*q,2)}, v9 offset:{q*256}")
    for i in range(16):
        a(f"v_add_f32 v{PB+i}, v{PB+i}, v{PB+16+i}")
        a(f"v_add_f32 v{PB+32+i}, v{PB+32+i}, v{PB+48+i}")
    for i in range(16):
        a(f"v_add_f32 v{PB+i}, v{PB+i}, v{PB+32+i}")
    a("v_mov_b32 v12, 0xffff0000")
    a("s_waitcnt lgkmcnt(0)")
    X1, D1, Y1 = PB + 16, PB + 32, PB + 48
    for i in range(8):
        a(f"""
        v_lshlrev_b32 v{X1+2*i}, 16, v{EX_+i}
        v_and_b32 v{X1+2*i+1}, v12, v{EX_+i}
        v_lshlrev_b32 v{D1+2*i}, 16, v{ED+i}
        v_and_b32 v{D1+2*i+1}, v12, v{ED+i}
        v_lshlrev_b32 v{Y1+2*i}, 16, v{YT+i}
        v_and_b32 v{Y1+2*i+1}, v12, v{YT+i}
        """)
    for i in range(16):
        a(f"v_fmac_f32 v{Y1+i}, v{X1+i}, v{D1+i}")
    for i in range(16):
        a(f"v_sub_f32 v{Y1+i}, v{Y1+i}, v{PB+i}")
    for i in range(16):
        a(f"v_fmac_f32 v{PB+i}, v{EG}, v{Y1+i}")
    for i in range(8):
        a(f"v_cvt_pk_bf16_f32 v{X1+i}, v{PB+2*i}, v{PB+2*i+1}")
    a(f"""
    buffer_store_dwordx4 {v(X1,4)}, v{VEP}, s[{R_OUT}:{R_OUT+3}], 0 offen
    buffer_store_dwordx4 {v(X1+4,4)}, v{VEP}, s[{R_OUT}:{R_OUT+3}], 0 offen offset:16
    s_endpgm
    """)
    a0.ext(resolve_vm(a.L))


def k1_conv(a):
    KA, UA, VL16, YA = 2, 3, 4, 5
    a(f"""
    s_setprio 3
    s_sub_u32 s40, s{T_WIDX}, 4
    s_lshr_b32 s41, s40, 1
    s_lshl_b32 s44, s2, 1
    s_add_u32 s41, s41, s44
    s_and_b32 s42, s40, 1
    s_mul_i32 s43, s40, {K1_CSZ}
    s_add_u32 s43, s43, {K1_CONV}
    v_lshlrev_b32 v{VL16}, 4, v0
    s_lshl_b32 s44, s41, 12
    s_add_u32 s45, s44, {KX_OFF}
    s_add_u32 s46, s44, {UT_OFF}
    s_add_u32 m0, s43, 64
    s_nop 0
    """)
    for i in range(4):
        a(f"buffer_load_dwordx4 v{VL16}, s[{R_WS}:{R_WS+3}], s45 offen offset:{1024*i} lds")
    UB = 4224
    for r in range(4):
        a(f"""
        s_add_u32 m0, s43, {UB + r*UPITCH + 112}
        s_nop 0
        buffer_load_dwordx4 v{VL16}, s[{R_WS}:{R_WS+3}], s46 offen lds
        s_add_u32 s46, s46, 1024
        """)
    a(f"""
    v_mov_b32 v8, 0
    v_mov_b32 v9, 0
    v_mov_b32 v10, 0
    v_mov_b32 v11, 0
    v_and_b32 v6, 7, v0
    v_lshrrev_b32 v7, 3, v0
    v_and_b32 v7, 3, v7
    v_min_u32 v6, 6, v6
    v_mul_u32_u24 v7, {UPITCH}, v7
    v_lshl_add_u32 v6, v6, 4, v7
    v_add_u32 v6, s43, v6
    v_and_b32 v7, 3, v0
    v_lshlrev_b32 v7, 4, v7
    v_add_u32 v7, s43, v7
    ds_write_b128 v6, v[8:11] offset:{UB}
    ds_write_b128 v7, v[8:11]
    """)
    a(f"""
    v_lshrrev_b32 v6, 2, v0
    v_and_b32 v6, 3, v6
    v_and_b32 v7, 3, v0
    v_lshrrev_b32 v8, 4, v0
    v_and_b32 v8, 1, v8
    v_lshrrev_b32 v9, 5, v0
    v_lshlrev_b32 v{KA}, 5, v8
    v_lshl_add_u32 v{KA}, v7, 3, v{KA}
    v_lshl_add_u32 v{KA}, v9, 6, v{KA}
    v_lshlrev_b32 v10, 3, v6
    v_sub_u32 v{KA}, v{KA}, v10
    v_add_u32 v{KA}, s43, v{KA}
    v_add_u32 v{KA}, 32, v{KA}
    v_mul_u32_u24 v{UA}, {UPITCH}, v7
    v_lshrrev_b32 v10, 2, v0
    v_and_b32 v10, 7, v10
    v_sub_u32 v10, v10, v9
    v_lshlrev_b32 v10, 4, v10
    v_add_u32 v{UA}, v{UA}, v10
    v_add_u32 v{UA}, s43, v{UA}
    v_add_u32 v{UA}, {UB+16}, v{UA}
    v_lshlrev_b32 v{YA}, 1, v0
    v_add_u32 v{YA}, s43, v{YA}
    s_mov_b32 s48, 0
    s_mov_b32 s49, 0x80000000
    s_mov_b32 s50, 0
    s_mov_b32 s51, 0xc0000000
    s_mov_b32 s52, 0
    s_mov_b32 s53, 0xe0000000
    s_add_u32 s54, s44, {Y_OFF}
    s_lshl_b32 s55, s2, 2
    s_add_u32 s55, s55, s40
    s_lshl_b32 s55, s55, 2
    s_add_u32 s55, s55, {FL_OFF}
    s_waitcnt vmcnt(0)
    s_cmp_eq_u32 s42, 1
    s_cbranch_scc1 K1_CONVB
    """)

    def part(qs, outq):
        qmax = max(qs)
        nst = 4 * qmax + 4
        NU = 4
        UBUF = 8
        KT = 24
        ACC = KT + 4 * nst
        assert ACC + 16 * len(qs) <= 256

        def acc(q):
            return ACC + 16 * qs.index(q)

        def rd(i):
            tau = 4 * qmax - i
            return [f"ds_read_b128 {v(UBUF+4*(i%NU),4)}, v{UA} offset:{32*(tau+3)}",
                    f"ds_read_b64_tr_b16 {v(KT+4*i,2)}, v{KA} offset:{128*i+32}",
                    f"ds_read_b64_tr_b16 {v(KT+4*i+2,2)}, v{KA} offset:{128*i}"]
        PF = NU - 1
        for i in range(PF):
            a.ext(rd(i))
        for i in range(nst):
            if i + PF < nst:
                a.ext(rd(i + PF))
            left = min(PF, nst - 1 - i)
            a(f"s_waitcnt lgkmcnt({3*left})")
            for q in sorted(qs, reverse=True):
                s_ = i - 4 * (qmax - q)
                if s_ < 0:
                    continue
                c = "0" if s_ == 0 else v(acc(q), 16)
                a(f"v_mfma_f32_32x32x16_bf16 {v(acc(q),16)}, {v(UBUF+4*(i%NU),4)}, {v(KT+4*s_,4)}, {c}")
        a("s_nop 7\ns_nop 3")
        groups = [(q, g) for q in outq for g in range(4)]
        Z = KT
        a(f"v_mov_b32 v6, 0")

        def Y(q, g, rho):
            return acc(q) + 4 * g + rho
        for gi, (q, g) in enumerate(groups):
            for rho in (1, 2, 3):
                if g > 0:
                    prev = f"v{Y(q,g-1,rho)}"
                elif q > 0:
                    prev = f"v{Y(q-1,3,rho)}"
                else:
                    prev = "v6"
                a(f"v_cndmask_b32 v{Z+3*gi+rho-1}, v{Y(q,g,rho)}, {prev}, s[{46+2*rho}:{47+2*rho}]")
        dpp = "wave_ror:1 row_mask:0xf bank_mask:0xf"
        for gi in range(len(groups)):
            a(f"v_add_f32_dpp v{Z+3*gi+1}, v{Z+3*gi+2}, v{Z+3*gi+1} {dpp}")
        for gi in range(len(groups)):
            a(f"v_add_f32_dpp v{Z+3*gi}, v{Z+3*gi+1}, v{Z+3*gi} {dpp}")
        for gi, (q, g) in enumerate(groups):
            a(f"v_add_f32_dpp v{Z+3*gi+2}, v{Z+3*gi}, v{Y(q,g,0)} {dpp}")
        for gi in range(0, len(groups), 2):
            a(f"v_cvt_pk_bf16_f32 v{Z+3*gi}, v{Z+3*gi+2}, v{Z+3*gi+5}")
        for gi in range(0, len(groups), 2):
            a(f"ds_write_b16 v{YA}, v{Z+3*gi} offset:{128*gi}")
            a(f"ds_write_b16_d16_hi v{YA}, v{Z+3*gi} offset:{128*gi+128}")
        nk = len(groups) // 8
        a(f"v_add_u32 v6, s43, v{VL16}")
        for k in range(nk):
            a(f"ds_read_b128 {v(UBUF+4*k,4)}, v6 offset:{1024*k}")
        a("s_waitcnt lgkmcnt(0)")
        base = outq[0] * 512
        for k in range(nk):
            off = base + 1024 * k
            a(f"buffer_store_dwordx4 {v(UBUF+4*k,4)}, v{VL16}, s[{R_WS}:{R_WS+3}], s54 offen offset:{off} sc1")
        a(f"""
        v_mov_b32 v6, 0
        v_mov_b32 v7, 1
        s_waitcnt vmcnt(0)
        s_mov_b64 exec, 1
        buffer_store_dword v7, v6, s[{R_WS}:{R_WS+3}], s55 offen sc1
        s_endpgm
        """)

    part([0, 1, 2, 3, 4, 5], [0, 1, 2, 3, 4, 5])
    a("K1_CONVB:")
    part([5, 6, 7], [6, 7])


def gen_k1(a):
    a(".p2align 8\nk1_kernel:")
    k1_prologue(a)
    k1_gemm(a)
    a("K1_CONVW:")
    k1_conv(a)
    a("K1_END:\ns_endpgm")


HEADER = open("cdna_kernels/" + NAME + ".s.ref").read().split("; Override launch")[0]


def kd(name, vgpr, sgpr):
    return f"""
.amdhsa_kernel {name}
  .amdhsa_next_free_vgpr {vgpr}
  .amdhsa_next_free_sgpr {sgpr}
  .amdhsa_accum_offset {vgpr}
  .amdhsa_group_segment_fixed_size 0
  .amdhsa_kernarg_size 136
  .amdhsa_user_sgpr_count 2
  .amdhsa_user_sgpr_kernarg_segment_ptr 1
  .amdhsa_system_sgpr_workgroup_id_x 1
.end_amdhsa_kernel
"""


def main(path):
    a = Asm()
    gen_k0(a)
    gen_k1(a)
    body = "\n".join(("" if ln.endswith(":") or ln.startswith(".") else "    ") + ln for ln in a.L)
    txt = HEADER
    txt += "; @launch kernel=k0_kernel grid=(256,1,1) block=(512,1,1) lds=163840\n"
    txt += f"; @launch kernel=k1_kernel grid=(256,1,1) block=(512,1,1) lds={K1_LDS}\n"
    txt += '.amdgcn_target "amdgcn-amd-amdhsa--gfx950"\n.text\n'
    txt += ".globl k0_kernel\n.type k0_kernel,@function\n.globl k1_kernel\n.type k1_kernel,@function\n"
    txt += body + "\n"
    txt += '.section .rodata,"a"\n.p2align 6' + kd("k0_kernel", 256, 96) + ".p2align 6" + kd("k1_kernel", 256, 96)
    open(path, "w").write(txt)


if __name__ == "__main__":
    main(sys.argv[1] if len(sys.argv) > 1 else "cdna_kernels/" + NAME + ".s")
```

```python
import sys, struct

NAME = "gated_mix__ssm_conv_s4__swiglu_ffn__prompt"

H_OFF = 0x000000
UT_OFF = 0x800000
KX_OFF = 0xA00000
Y_OFF = 0xC00000
GL_OFF = 0xE00000
FL_OFF = 0xE10000
WS_BYTES = 0x1000000


def f32(x):
    return "0x%08x" % struct.unpack("<I", struct.pack("<f", x))[0]


LOG2E = 1.4426950408889634
LOG2E_HI = struct.unpack("<f", struct.pack("<f", LOG2E))[0]
LOG2E_LO = LOG2E - LOG2E_HI
LN2 = 0.6931471805599453
INV2PI = 0.15915494309189535


class Asm:
    def __init__(self):
        self.L = []

    def __call__(self, s):
        for line in s.strip().split("\n"):
            line = line.strip()
            if line:
                self.L.append(line)

    def ext(self, lines):
        self.L.extend(lines)


def v(b, n=1):
    return f"v{b}" if n == 1 else f"v[{b}:{b+n-1}]"


def s(b, n=1):
    return f"s{b}" if n == 1 else f"s[{b}:{b+n-1}]"


class RA:
    def __init__(self, start, end):
        self.p = start
        self.end = end

    def __call__(self, n=1, align=1):
        self.p = (self.p + align - 1) // align * align
        r = self.p
        self.p += n
        assert self.p <= self.end, "out of registers"
        return r


STAMPS = False
OPT = {}
ST_OFF = 0xE20000
ST_BASE = 76


def stamp(k):
    if not STAMPS:
        return []
    assert k < 12
    op = "s_memtime" if OPT.get("cyc") else "s_memrealtime"
    return [f"{op} s[{ST_BASE+2*k}:{ST_BASE+2*k+1}]"]


def stamp_flush(srd_ws, widx, kern, nst=12):
    if not STAMPS:
        return []
    L = ["s_waitcnt lgkmcnt(0)", "s_mov_b64 exec, 1", "s_lshl_b32 s74, s2, 3", f"s_add_u32 s74, s74, s{widx}",
         "s_lshl_b32 s74, s74, 6", f"s_add_u32 s74, s74, {ST_OFF + kern*0x40000}", "v_mov_b32 v1, 0"]
    for k in range(nst):
        L.append(f"v_mov_b32 v{4+k}, s{ST_BASE+2*k}")
    for k in range(0, nst, 4):
        L.append(f"buffer_store_dwordx4 v[{4+k}:{7+k}], v1, s[{srd_ws}:{srd_ws+3}], s74 offen offset:{4*k}")
    return L


def stamp_init():
    if not STAMPS:
        return []
    return [f"s_mov_b32 s{ST_BASE+2*k}, 0" for k in range(12)]


def is_vmem(line):
    return line.startswith("buffer_") or line.startswith("global_")


def resolve_vm(lines):
    out = []
    count = 0
    tags = {}
    for ln in lines:
        if isinstance(ln, tuple):
            if ln[0] == "VMTAG":
                tags[ln[1]] = count
            elif ln[0] == "VMWAIT":
                n = count - tags[ln[1]]
                assert 0 <= n <= 63, n
                out.append(f"s_waitcnt vmcnt({n})")
            else:
                raise ValueError(ln)
        else:
            if is_vmem(ln):
                count += 1
            out.append(ln)
    return out


def interleave(main, groups):
    if not groups:
        return list(main)
    out = []
    n = len(main)
    g = len(groups)
    gi = 0
    for i, ln in enumerate(main):
        while gi < g and gi * n <= i * g:
            out.extend(groups[gi])
            gi += 1
        out.append(ln)
    while gi < g:
        out.extend(groups[gi])
        gi += 1
    return out


SLOT = 49152
KG_BASE = 3 * SLOT

S_U, S_ARE, S_AIM, S_BRE, S_BIM, S_CRE, S_CIM, S_LDT = 4, 6, 8, 10, 12, 14, 16, 18
S_WG, S_WU, S_WD, S_GW = 20, 22, 24, 26
S_WIDX = 30
S_XCD, S_IDX, S_RB, S_CB, S_PHI = 31, 32, 33, 34, 35
SRD_X, SRD_WG, SRD_WU, SRD_WS, SRD_WD = 36, 40, 44, 48, 52


def srd(a, d, base, nbytes):
    a(f"""
    s_mov_b32 s{d}, s{base}
    s_and_b32 s{d+1}, s{base+1}, 0xffff
    s_mov_b32 s{d+2}, {nbytes}
    s_mov_b32 s{d+3}, 0x00020000
    """)


def k0_prologue(a):
    a(f"""
    s_cmp_ge_u32 s2, 256
    s_cbranch_scc1 K0_END
    """)
    a.ext(stamp_init())
    a.ext(stamp(0))
    a(f"""
    s_load_dwordx16 s[4:19], s[0:1], 0
    s_load_dwordx8 s[20:27], s[0:1], 80
    s_load_dwordx2 s[28:29], s[0:1], 128
    v_lshrrev_b32 v1, 6, v0
    v_and_b32 v0, 63, v0
    s_and_b32 s{S_XCD}, s2, 7
    v_readfirstlane_b32 s{S_WIDX}, v1
    s_lshr_b32 s{S_IDX}, s2, 3
    s_and_b32 s56, s{S_IDX}, 3
    s_lshr_b32 s57, s{S_IDX}, 2
    s_lshr_b32 s{S_RB}, s{S_XCD}, 1
    s_lshl_b32 s{S_RB}, s{S_RB}, 2
    s_add_u32 s{S_RB}, s{S_RB}, s56
    s_and_b32 s{S_CB}, s{S_XCD}, 1
    s_mul_i32 s{S_CB}, s{S_CB}, 7
    s_add_u32 s{S_CB}, s{S_CB}, s57
    s_lshl_b32 s{S_PHI}, s56, 1
    s_add_u32 s{S_PHI}, s{S_PHI}, s57
    s_and_b32 s{S_PHI}, s{S_PHI}, 7
    s_waitcnt lgkmcnt(0)
    """)
    srd(a, SRD_X, S_U, 2048 * 512 * 2)
    srd(a, SRD_WG, S_WG, 512 * 1792 * 2)
    srd(a, SRD_WU, S_WU, 512 * 1792 * 2)
    srd(a, SRD_WS, 28, WS_BYTES)
    srd(a, SRD_WD, S_WD, 1792 * 512 * 2)
    a(f"""
    s_cmp_ge_u32 s{S_WIDX}, 4
    s_cbranch_scc1 K0_HELPER
    s_cmp_ge_u32 s{S_IDX}, 28
    s_cbranch_scc1 K0_SPARE
    """)


def k0_gemm(a):
    XA = 8
    WA = 20
    BUF = 64
    ACC = 128

    def acc(mat, t, tt):
        return ACC + 16 * (mat * 4 + t * 2 + tt)

    def wf(b, mat, t):
        return BUF + 24 * b + 4 * (mat * 2 + t)

    def xf(b, tt):
        return BUF + 24 * b + 16 + 4 * tt

    a(f"""
    s_lshr_b32 s56, s{S_WIDX}, 1
    s_and_b32 s57, s{S_WIDX}, 1
    v_and_b32 v1, 31, v0
    v_lshrrev_b32 v2, 5, v0
    v_lshrrev_b32 v3, 1, v0
    v_and_b32 v3, 7, v3
    s_lshl_b32 s58, s56, 13
    v_lshlrev_b32 v4, 7, v1
    v_add_u32 v4, s58, v4
    """)
    for ks in range(4):
        a(f"""
        v_add_u32 v5, {2*ks}, v2
        v_xor_b32 v5, v5, v3
        v_lshl_add_u32 v{XA+ks}, v5, 4, v4
        """)
    a(f"""
    v_lshrrev_b32 v1, 2, v0
    v_and_b32 v1, 3, v1
    v_and_b32 v3, 3, v0
    v_lshrrev_b32 v4, 4, v0
    v_and_b32 v4, 1, v4
    v_lshl_add_u32 v5, v2, 3, v1
    v_lshlrev_b32 v5, 8, v5
    v_lshl_add_u32 v5, v4, 5, v5
    v_lshl_add_u32 v5, v3, 3, v5
    s_lshl_b32 s58, s57, 1
    """)
    for t in range(2):
        a(f"""
        s_add_u32 s59, s58, {t}
        v_xor_b32 v6, s59, v1
        v_lshl_add_u32 v{WA+t}, v6, 6, v5
        """)
    for sl in (1, 2):
        for ks in range(4):
            a(f"v_add_u32 v{XA+4*sl+ks}, {sl*SLOT}, v{XA+ks}")
        for t in range(2):
            a(f"v_add_u32 v{WA+2*sl+t}, {sl*SLOT}, v{WA+t}")

    def reads(n):
        st, ks = n >> 2, n & 3
        sl = st % 3
        b = n & 1
        r = []
        r.append(f"ds_read_b128 {v(xf(b,0),4)}, v{XA+4*sl+ks}")
        for mat in range(2):
            for t in range(2):
                for h2 in range(2):
                    off = 16384 * (1 + mat) + ks * 4096 + h2 * 1024
                    r.append(f"ds_read_b64_tr_b16 {v(wf(b,mat,t)+2*h2,2)}, v{WA+2*sl+t} offset:{off}")
                if mat == 0 and t == 0:
                    r.append(f"ds_read_b128 {v(xf(b,1),4)}, v{XA+4*sl+ks} offset:4096")
        return r

    a("s_barrier")
    a.ext(stamp(1))
    a.ext(reads(0))
    for n in range(32):
        b = n & 1
        a("s_waitcnt lgkmcnt(0)")
        if (n & 3) == 3 and n < 31:
            a("s_barrier")
            a.ext(stamp(2 + (n >> 2)))
        rd = reads(n + 1) if n < 31 else []
        mf = []
        for t in range(2):
            for tt in range(2):
                for mat in range(2):
                    c = "0" if n == 0 else v(acc(mat, t, tt), 16)
                    mf.append(f"v_mfma_f32_32x32x16_bf16 {v(acc(mat,t,tt),16)}, {v(wf(b,mat,t),4)}, {v(xf(b,tt),4)}, {c}")
        for i, m in enumerate(mf):
            a(m)
            a.ext(rd[2 * i:2 * i + 2])
    a.ext(stamp(9))
    a(f"""
    s_lshl_b32 s58, s{S_RB}, 2
    s_lshl_b32 s59, s56, 1
    s_add_u32 s58, s58, s59
    s_mul_i32 s58, s58, 112
    s_lshl_b32 s59, s{S_CB}, 3
    s_add_u32 s58, s58, s59
    s_lshl_b32 s59, s57, 2
    s_add_u32 s58, s58, s59
    s_lshl_b32 s58, s58, 10
    s_add_u32 s59, s58, {112*1024}
    v_lshlrev_b32 v1, 4, v0
    s_mov_b32 s60, {f32(-LOG2E)}
    s_nop 4
    """)
    T = 8
    O = 32
    k = 0
    for t in range(2):
        for tt in range(2):
            G, U = acc(0, t, tt), acc(1, t, tt)
            o = O + 8 * k
            k += 1
            for i in range(16):
                a(f"v_mul_f32 v{T+i}, s60, v{G+i}")
            for i in range(16):
                a(f"v_exp_f32 v{T+i}, v{T+i}")
                a(f"v_mul_f32 v{U+i}, v{G+i}, v{U+i}")
            for i in range(16):
                a(f"v_add_f32 v{T+i}, 1.0, v{T+i}")
            for i in range(16):
                a(f"v_rcp_f32 v{T+i}, v{T+i}")
            for i in range(16):
                a(f"v_mul_f32 v{U+i}, v{U+i}, v{T+i}")
            for i in range(8):
                a(f"v_cvt_pk_bf16_f32 v{o+i}, v{U+2*i}, v{U+2*i+1}")
            sb = 58 + tt
            a(f"buffer_store_dwordx4 {v(o,4)}, v1, s[{SRD_WS}:{SRD_WS+3}], s{sb} offen offset:{t*2048}")
            a(f"buffer_store_dwordx4 {v(o+4,4)}, v1, s[{SRD_WS}:{SRD_WS+3}], s{sb} offen offset:{t*2048+1024}")
    a.ext(stamp(10))
    if STAMPS:
        a("s_waitcnt vmcnt(0)")
    a.ext(stamp(11))
    a.ext(stamp_flush(SRD_WS, S_WIDX, 0))
    a("s_endpgm")


def kgen_code(with_dma):
    ra = RA(2, 256)
    pre = Asm()
    main = Asm()
    post = Asm()
    a = pre
    a(f"""
    s_sub_u32 s56, s{S_WIDX}, 4
    s_lshr_b32 s57, s56, 1
    s_lshl_b32 s58, s2, 1
    s_add_u32 s57, s57, s58
    s_and_b32 s58, s56, 1
    s_lshl_b32 s59, s56, 12
    s_add_u32 s59, s59, {KG_BASE}
    s_lshr_b32 s60, s56, 1
    s_lshl_b32 s60, s60, 13
    s_add_u32 s60, s60, {KG_BASE}
    s_lshl_b32 s61, s57, 8
    s_lshl_b32 s62, s58, 7
    s_add_u32 s61, s61, s62
    """)
    t0 = ra(); t1 = ra(); t2 = ra(); t3 = ra()
    PR = ra(7)
    a(f"""
    v_lshlrev_b32 v{t0}, 1, v0
    v_add_u32 v{t0}, s61, v{t0}
    s_lshl_b32 s62, s57, 1
    v_mov_b32 v{t1}, s62
    """)
    for i, sb in enumerate((S_ARE, S_AIM, S_BRE, S_BIM, S_CRE, S_CIM)):
        a(f"global_load_ushort v{PR+i}, v{t0}, s[{sb}:{sb+1}]")
    a(f"global_load_ushort v{PR+6}, v{t1}, s[{S_LDT}:{S_LDT+1}]")
    a.L.append(("VMTAG", "par"))

    XV = ra(4)
    WV = ra(4)
    dma_stage = None
    if with_dma:
        a(f"""
        v_lshrrev_b32 v{t0}, 3, v0
        v_and_b32 v{t1}, 7, v0
        v_lshrrev_b32 v{t2}, 1, v{t0}
        v_xor_b32 v{t1}, v{t1}, v{t2}
        v_lshlrev_b32 v{t0}, 10, v{t0}
        """)
        for i in range(4):
            a(f"""
            v_xor_b32 v{t2}, {4*(i&1)}, v{t1}
            v_lshl_add_u32 v{XV+i}, v{t2}, 4, v{t0}
            v_add_u32 v{XV+i}, {7168*i}, v{XV+i}
            """)
        a(f"""
        v_lshrrev_b32 v{t0}, 4, v0
        v_and_b32 v{t1}, 15, v0
        v_lshlrev_b32 v{t2}, 2, v{t0}
        v_xor_b32 v{t1}, v{t1}, v{t2}
        v_mul_u32_u24 v{t0}, 3584, v{t0}
        v_lshl_add_u32 v{WV}, v{t1}, 4, v{t0}
        """)
        for i in range(1, 4):
            a(f"v_add_u32 v{WV+i}, {(4*3584-1024)*i}, v{WV}")
        a(f"""
        s_lshl_b32 s64, s{S_RB}, 17
        s_lshl_b32 s63, s56, 15
        s_add_u32 s64, s64, s63
        s_mul_i32 s65, s56, {16*3584}
        s_lshl_b32 s63, s{S_CB}, 8
        s_add_u32 s65, s65, s63
        s_lshl_b32 s66, s56, 12
        """)

        def dma_stage(st):
            sl = st % 3
            g = []
            hdr = [f"s_add_u32 s67, s{S_PHI}, {st}", "s_and_b32 s67, s67, 7",
                   "s_lshl_b32 s68, s67, 7", "s_add_u32 s68, s68, s64",
                   f"s_mul_i32 s69, s67, {64*3584}", "s_add_u32 s69, s69, s65"]
            for part, (sr, so, va) in enumerate(((SRD_X, 68, XV), (SRD_WG, 69, WV), (SRD_WU, 69, WV))):
                for i in range(4):
                    grp = []
                    if part == 0 and i == 0:
                        grp += hdr
                    if i == 0:
                        grp += [f"s_add_u32 m0, s66, {sl*SLOT + part*16384}", "s_nop 0"]
                    grp.append(f"buffer_load_dwordx4 v{va+i}, s[{sr}:{sr+3}], s{so} offen offset:{1024*i} lds")
                    g.append(grp)
            g[-1].append(("VMTAG", f"st{st}"))
            return g

        for st in range(1 if OPT.get("earlyb0") else 3):
            for grp in dma_stage(st):
                a.ext(grp)

    WR = ra(8)
    RD = ra(2)
    a(f"""
    v_lshrrev_b32 v{t0}, 2, v0
    v_and_b32 v{t1}, 7, v{t0}
    v_lshlrev_b32 v{t0}, 8, v{t0}
    v_and_b32 v{t2}, 3, v0
    v_lshl_add_u32 v{t0}, v{t2}, 2, v{t0}
    v_add_u32 v{t0}, s59, v{t0}
    """)
    for b in range(8):
        a(f"""
        v_xor_b32 v{t2}, {b}, v{t1}
        v_lshl_add_u32 v{WR+b}, v{t2}, 4, v{t0}
        """)
    a(f"""
    v_and_b32 v{t0}, 15, v0
    v_lshrrev_b32 v{t1}, 4, v0
    """)
    for p in range(2):
        a(f"""
        v_add_u32 v{t2}, {4*p}, v{t1}
        v_xor_b32 v{t3}, v{t2}, v{t0}
        v_lshlrev_b32 v{t3}, 4, v{t3}
        v_lshl_add_u32 v{t3}, v{t2}, 8, v{t3}
        v_add_u32 v{RD+p}, s59, v{t3}
        """)
    TA0 = ra(); TA1 = ra(); TA2 = ra(); TA3 = ra()
    a(f"""
    v_and_b32 v{t2}, 1, v{t1}
    v_lshrrev_b32 v{t3}, 1, v{t1}
    v_lshlrev_b32 v{TA0}, 5, v{t0}
    v_lshl_add_u32 v{TA0}, v{t2}, 4, v{TA0}
    v_lshl_add_u32 v{TA0}, v{t3}, 9, v{TA0}
    v_add_u32 v{TA0}, s59, v{TA0}
    v_cmp_gt_u32 vcc, 2, v{t1}
    v_lshlrev_b32 v{TA1}, 4, v{t0}
    v_lshlrev_b32 v{TA2}, 3, v{t0}
    v_cndmask_b32 v{TA1}, v{TA2}, v{TA1}, vcc
    v_lshl_add_u32 v{TA1}, v{t1}, 8, v{TA1}
    v_add_u32 v{TA1}, s59, v{TA1}
    v_add_u32 v{TA1}, 1024, v{TA1}
    v_mov_b32 v{TA2}, 128
    v_cndmask_b32 v{TA2}, v{TA2}, 8, vcc
    v_add_u32 v{TA2}, v{TA2}, v{TA1}
    v_lshlrev_b32 v{TA3}, 2, v{t0}
    v_lshl_add_u32 v{TA3}, v{t1}, 8, v{TA3}
    v_add_u32 v{TA3}, s59, v{TA3}
    """)
    EX = ra(16)
    a(f"s_sub_u32 s70, s60, {4*17024}")
    a(f"s_lshl_b32 s71, s58, 7")
    for it in range(2):
        a(f"""
        v_add_u32 v{t0}, s71, v0
        v_add_u32 v{t0}, {64*it}, v{t0}
        v_cmp_gt_u32 vcc, 16, v{t0}
        v_lshlrev_b32 v{t0}, 3, v{t0}
        v_cvt_f32_u32 v{t1}, v{t0}
        v_lshlrev_b32 v{t0}, 2, v{t0}
        v_add_u32 v{t0}, s60, v{t0}
        """)
        for kk in range(4):
            e0, e1 = EX + 8 * it + 2 * kk, EX + 8 * it + 2 * kk + 1
            a(f"""
            v_add_f32 v{t2}, 1.0, v{t1}
            v_cvt_pk_bf16_f32 v{t3}, v{t1}, v{t2}
            v_add_f32 v{t1}, 2.0, v{t1}
            v_and_b32 v{e0}, 0xffff, v{t3}
            v_lshrrev_b32 v{e1}, 16, v{t3}
            v_lshl_add_u32 v{e0}, v{e0}, 2, s70
            v_lshl_add_u32 v{e1}, v{e1}, 2, s70
            v_add_u32 v{t2}, {8*kk}, v{t0}
            v_add_u32 v{t3}, {8*kk+4}, v{t0}
            v_cndmask_b32 v{e0}, v{e0}, v{t2}, vcc
            v_cndmask_b32 v{e1}, v{e1}, v{t3}, vcc
            """)

    a = main
    DT = ra(); A2 = ra(); TH = ra()
    MASK = ra()
    a(f"v_mov_b32 v{MASK}, 0xffff0000")
    for i in range(7):
        a(f"v_lshlrev_b32 v{PR+i}, 16, v{PR+i}")
    x = PR + 6
    a(f"""
    v_mul_f32 v{t0}, {f32(LOG2E_HI)}, v{x}
    s_mov_b32 s72, {f32(LOG2E_HI)}
    v_fma_f32 v{t1}, v{x}, s72, -v{t0}
    v_fmac_f32 v{t1}, {f32(LOG2E_LO)}, v{x}
    v_exp_f32 v{t0}, v{t0}
    v_mul_f32 v{t1}, {f32(LN2)}, v{t1}
    v_fmac_f32 v{t0}, v{t0}, v{t1}
    v_cvt_pk_bf16_f32 v{t0}, v{t0}, v{t0}
    v_lshlrev_b32 v{DT}, 16, v{t0}
    v_mul_f32 v{A2}, v{DT}, v{PR+0}
    v_mul_f32 v{TH}, v{DT}, v{PR+1}
    v_mul_f32 v{A2}, {f32(LOG2E)}, v{A2}
    v_mul_f32 v{TH}, {f32(INV2PI)}, v{TH}
    v_mul_f32 v{PR+2}, v{DT}, v{PR+2}
    v_mul_f32 v{PR+3}, v{DT}, v{PR+3}
    """)

    def cexp(l):
        r = ra(3)
        a(f"""
        v_mul_f32 v{t0}, {f32(float(l))}, v{A2}
        v_mul_f32 v{t1}, {f32(float(l))}, v{TH}
        v_exp_f32 v{t0}, v{t0}
        v_fract_f32 v{t1}, v{t1}
        v_cos_f32 v{t2}, v{t1}
        v_sin_f32 v{t3}, v{t1}
        s_nop 0
        v_mul_f32 v{r}, v{t0}, v{t2}
        v_mul_f32 v{r+1}, v{t0}, v{t3}
        v_sub_f32 v{r+2}, 0, v{r+1}
        """)
        return r

    def cmul(d, x_, br, bi, nbi):
        a(f"""
        v_mul_f32 v{d}, v{x_}, v{br}
        v_mul_f32 v{d+1}, v{x_}, v{bi}
        v_fmac_f32 v{d}, v{x_+1}, v{nbi}
        v_fmac_f32 v{d+1}, v{x_+1}, v{br}
        """)

    LO = ra(16)
    HI = ra(2)
    hic = [0]

    def put(row, r):
        h = HI + (hic[0] & 1)
        hic[0] += 1
        if r is None:
            a(f"v_mov_b32 v{h}, 0x3f80\nv_mov_b32 v{LO+row}, 0")
        else:
            a(f"""
            v_cvt_pk_bf16_f32 v{h}, v{r}, v{r+1}
            v_lshlrev_b32 v{t0}, 16, v{h}
            v_and_b32 v{t1}, v{MASK}, v{h}
            v_sub_f32 v{t0}, v{r}, v{t0}
            v_sub_f32 v{t1}, v{r+1}, v{t1}
            v_cvt_pk_bf16_f32 v{LO+row}, v{t0}, v{t1}
            """)
        a(f"ds_write_b32 v{WR+(row&7)}, v{h} offset:{(row>>3)*128}")

    def finish(rows, FH, FL_):
        for ks in range(4):
            a(f"ds_read_b128 {v(FH+4*ks,4)}, v{RD+(ks&1)} offset:{(ks>>1)*2048}")
        for row in rows:
            a(f"ds_write_b32 v{WR+(row&7)}, v{LO+row} offset:{(row>>3)*128}")
        for ks in range(4):
            a(f"ds_read_b128 {v(FL_+4*ks,4)}, v{RD+(ks&1)} offset:{(ks>>1)*2048}")

    YH = ra(16, 4); YL = ra(16, 4); XH = ra(16, 4); XL = ra(16, 4)
    AC = ra(12, 4)
    E8 = cexp(8)
    E1 = cexp(1)
    Q1 = cexp(128)
    Q8 = cexp(1024)
    W0 = ra(2); W1 = ra(2)
    Br, Bi, Cr, Ci = PR + 2, PR + 3, PR + 4, PR + 5
    a(f"""
    v_mul_f32 v{W0}, v{Cr}, v{Br}
    v_mul_f32 v{W0+1}, v{Cr}, v{Bi}
    v_fma_f32 v{W0}, -v{Ci}, v{Bi}, v{W0}
    v_fmac_f32 v{W0+1}, v{Ci}, v{Br}
    v_sub_f32 v{W0+1}, 0, v{W0+1}
    """)
    cur, nxt = W0, W1
    for c in range(16):
        if c < 15:
            cmul(nxt, cur, E8, E8 + 2, E8 + 1)
        put(c, cur)
        cur, nxt = nxt, cur
    finish(range(16), YH, YL)

    def mfmas(tile):
        a("s_waitcnt lgkmcnt(0)")
        first = True
        for (xa, yb) in ((XH, YH), (XH, YL), (XL, YH)):
            for ks in range(4):
                c = "0" if first else v(AC + 4 * tile, 4)
                first = False
                a(f"v_mfma_f32_16x16x32_bf16 {v(AC+4*tile,4)}, {v(xa+4*ks,4)}, {v(yb+4*ks,4)}, {c}")

    P = {1: E1}
    for j in range(2, 8):
        P[j] = ra(2)
        cmul(P[j], P[j - 1], E1, E1 + 1, E1 + 2)
    put(0, None)
    for j in range(1, 8):
        put(j, P[j])
    put(8, Q1)
    for j in range(1, 8):
        cmul(W0, P[j], Q1, Q1 + 1, Q1 + 2)
        put(8 + j, W0)
    finish(range(16), XH, XL)
    Q = {1: Q1, 8: Q8}
    for j in range(2, 8):
        Q[j] = ra(3)
        cmul(Q[j], Q[j - 1], Q1, Q1 + 1, Q1 + 2)
    NP4 = ra()
    a(f"v_sub_f32 v{NP4}, 0, v{P[4]+1}")
    for j in (2, 3):
        a(f"v_sub_f32 v{Q[j]+2}, 0, v{Q[j]+1}")
    mfmas(0)
    for qi, j in enumerate((2, 3)):
        put(4 * qi, Q[j])
        for r in range(1, 4):
            cmul(W0, P[2 * r], Q[j], Q[j] + 1, Q[j] + 2)
            put(4 * qi + r, W0)
    for aa in range(4):
        put(8 + 2 * aa, Q[4 + aa])
        cmul(W0, Q[4 + aa], P[4], P[4] + 1, NP4)
        put(8 + 2 * aa + 1, W0)
    finish(range(16), XH, XL)
    mfmas(1)
    put(0, Q8)
    for j in range(1, 8):
        cmul(W0, Q[j], Q8, Q8 + 1, Q8 + 2)
        put(j, W0)
    cmul(W0, Q8, Q8, Q8 + 1, Q8 + 2)
    put(8, W0)
    finish(range(9), XH, XL)
    mfmas(2)
    a("s_nop 7")
    a(f"ds_write_b128 v{TA0}, {v(AC,4)}")
    a(f"ds_write_b64 v{TA1}, {v(AC+4,2)}")
    a(f"ds_write_b64 v{TA2}, {v(AC+6,2)}")
    for r in range(4):
        a(f"ds_write_b32 v{TA3}, v{AC+8+r} offset:{2048+64*r}")
    a("s_waitcnt lgkmcnt(0)")

    a = post
    G0, G1 = XH, XL
    OUT = YH
    a(f"""
    s_lshl_b32 s72, s57, 12
    s_lshl_b32 s73, s58, 11
    s_add_u32 s72, s72, s73
    s_add_u32 s72, s72, {KX_OFF}
    v_lshlrev_b32 v{t0}, 4, v0
    """)
    for it in range(2):
        for k in range(8):
            a(f"ds_read_b32 v{G0+8*it+k}, v{EX+8*it+k}")
            a(f"ds_read_b32 v{G1+8*it+k}, v{EX+8*it+k} offset:4096")
    a("s_waitcnt lgkmcnt(0)")
    for it in range(2):
        for k in range(8):
            a(f"v_add_f32 v{G0+8*it+k}, v{G0+8*it+k}, v{G1+8*it+k}")
        for k in range(4):
            a(f"v_cvt_pk_bf16_f32 v{OUT+4*it+k}, v{G0+8*it+2*k}, v{G0+8*it+2*k+1}")
        a(f"buffer_store_dwordx4 {v(OUT+4*it,4)}, v{t0}, s[{SRD_WS}:{SRD_WS+3}], s72 offen offset:{1024*it}")

    pf = Asm()
    pf(f"""
    s_lshl_b32 s72, s{S_IDX}, 2
    s_add_u32 s72, s72, s56
    s_mul_i32 s72, s72, {14*1024}
    v_lshlrev_b32 v{t0}, 4, v0
    """)
    for i in range(14):
        if i % 4 == 0 and i:
            pf("s_add_u32 s72, s72, 4096")
        pf(f"buffer_load_dwordx4 {v(XH+4*(i%4),4)}, v{t0}, s[{SRD_WD}:{SRD_WD+3}], s72 offen offset:{1024*(i%4)}")

    out = list(pre.L)
    if with_dma:
        NI = 6
        weights = [1.3, 1.2, 1.0, 1.0, 1.0, 1.0]
        tot = sum(weights)
        n = len(main.L)
        cuts = [0]
        accw = 0
        for w_ in weights:
            accw += w_
            cuts.append(int(round(n * accw / tot)))
        if OPT.get("earlyb0"):
            for grp in dma_stage(1):
                out.extend(grp)
        for sidx in range(8):
            out.extend(stamp(1 + sidx))
            out.append(("VMWAIT", f"st{sidx}"))
            out.append("s_barrier")
            body = main.L[cuts[sidx]:cuts[sidx + 1]] if sidx < NI else []
            if sidx == 6:
                body = post.L
            groups = dma_stage(sidx + 2) if 1 <= sidx <= 5 else []
            if OPT.get("earlyb0") and sidx == 0:
                groups = dma_stage(2)
            if OPT.get("nokgen"):
                body = []
            out.extend(interleave(body, groups))
        out.extend(pf.L)
    else:
        out.append(("VMWAIT", "par"))
        out.extend(main.L)
        out.append("s_barrier")
        out.extend(post.L)
        out.extend(pf.L)
    out.extend(stamp(10))
    if STAMPS:
        out.append("s_waitcnt vmcnt(0)")
    out.extend(stamp(11))
    out.extend(stamp_flush(SRD_WS, S_WIDX, 0))
    out.append("s_endpgm")
    return resolve_vm(out)


def k0_spare(a):
    R = 16
    O = 80
    GWv = 112
    SUM = 120
    a(f"""
    s_lshl_b32 s56, s{S_XCD}, 2
    s_add_u32 s56, s56, s{S_IDX}
    s_sub_u32 s56, s56, 28
    s_lshl_b32 s56, s56, 2
    s_add_u32 s56, s56, s{S_WIDX}
    v_and_b32 v1, 7, v0
    v_lshrrev_b32 v2, 3, v0
    v_lshlrev_b32 v3, 15, v2
    v_lshl_add_u32 v3, v1, 4, v3
    v_lshlrev_b32 v4, 15, v1
    v_lshl_add_u32 v4, v2, 4, v4
    v_lshlrev_b32 v5, 4, v1
    v_lshlrev_b32 v6, 3, v2
    v_add_u32 v6, v6, v1
    v_lshlrev_b32 v6, 7, v6
    s_mov_b32 s70, 0x05040100
    s_mov_b32 s71, 0x07060302
    """)
    a(f"""
    s_cmp_lg_u32 s56, 0
    s_cbranch_scc1 K0_SP_NOCLR
    v_lshlrev_b32 v7, 4, v0
    v_mov_b32 v8, 0
    v_mov_b32 v9, 0
    v_mov_b32 v10, 0
    v_mov_b32 v11, 0
    s_mov_b32 s57, {FL_OFF}
    """)
    for i in range(4):
        a(f"buffer_store_dwordx4 v[8:11], v7, s[{SRD_WS}:{SRD_WS+3}], s57 offen offset:{1024*i}")
    a("K0_SP_NOCLR:")
    for i in range(2):
        b = 58 + 4 * i
        a(f"""
        s_lshl_b32 s57, s56, 1
        s_add_u32 s57, s57, {i}
        s_and_b32 s72, s57, 7
        s_lshr_b32 s73, s57, 3
        s_and_b32 s73, s73, 3
        s_lshr_b32 s74, s57, 5
        s_lshl_b32 s{b}, s74, 18
        s_lshl_b32 s75, s73, 10
        s_add_u32 s{b}, s{b}, s75
        s_lshl_b32 s{b+2}, s72, 7
        s_add_u32 s{b}, s{b}, s{b+2}
        s_lshl_b32 s{b+1}, s72, 18
        s_add_u32 s{b+1}, s{b+1}, s75
        s_lshl_b32 s75, s74, 7
        s_add_u32 s{b+1}, s{b+1}, s75
        s_add_u32 s{b+1}, s{b+1}, {UT_OFF}
        s_lshl_b32 s{b+3}, s74, 13
        s_lshl_b32 s75, s73, 5
        s_add_u32 s{b+3}, s{b+3}, s75
        s_lshl_b32 s75, s72, 2
        s_add_u32 s{b+3}, s{b+3}, s75
        s_add_u32 s{b+3}, s{b+3}, {GL_OFF}
        v_add_u32 v7, s{b+2}, v5
        global_load_dwordx4 {v(GWv+4*i,4)}, v7, s[{S_GW}:{S_GW+1}]
        """)
        for j in range(8):
            a(f"buffer_load_dwordx4 {v(R+32*i+4*j,4)}, v3, s[{SRD_X}:{SRD_X+3}], s{b} offen")
            if j < 7:
                a(f"s_add_u32 s{b}, s{b}, 4096")
    for i in range(2):
        b = 58 + 4 * i
        a(f"s_waitcnt vmcnt({9 if i == 0 else 9})")
        Ri = R + 32 * i
        for e in range(8):
            for jj in range(4):
                sel = 71 if (e & 1) else 70
                a(f"v_perm_b32 v{O+4*e+jj}, v{Ri+4*(2*jj+1)+(e>>1)}, v{Ri+4*(2*jj)+(e>>1)}, s{sel}")
            a(f"buffer_store_dwordx4 {v(O+4*e,4)}, v4, s[{SRD_WS}:{SRD_WS+3}], s{b+1} offen")
            if e < 7:
                a(f"s_add_u32 s{b+1}, s{b+1}, 4096")
        for j in range(8):
            a(f"v_mov_b32 v{SUM+j}, 0")
        for q in range(4):
            for j in range(8):
                a(f"v_dot2c_f32_bf16 v{SUM+j}, v{Ri+4*j+q}, v{GWv+4*i+q}")
        a("s_nop 3")
        for ctl in ("quad_perm:[1,0,3,2]", "quad_perm:[2,3,0,1]", "row_half_mirror"):
            for j in range(8):
                a(f"v_add_f32_dpp v{SUM+j}, v{SUM+j}, v{SUM+j} {ctl} row_mask:0xf bank_mask:0xf")
        for j in range(1, 8):
            a(f"""
            v_cmp_eq_u32 vcc, {j}, v1
            s_nop 1
            v_cndmask_b32 v{SUM}, v{SUM}, v{SUM+j}, vcc
            """)
        a(f"buffer_store_dword v{SUM}, v6, s[{SRD_WS}:{SRD_WS+3}], s{b+3} offen")
        a("s_nop 1")
    a.ext(stamp(10))
    if STAMPS:
        a("s_waitcnt vmcnt(0)")
    a.ext(stamp(11))
    a.ext(stamp_flush(SRD_WS, S_WIDX, 0))
    a("s_endpgm")


def gen_k0(a):
    a(".p2align 8\nk0_kernel:")
    k0_prologue(a)
    k0_gemm(a)
    a("K0_SPARE:")
    k0_spare(a)
    a("K0_HELPER:")
    a(f"s_cmp_ge_u32 s{S_IDX}, 28\ns_cbranch_scc1 K0_HELPER_SP")
    a.ext(kgen_code(True))
    a("K0_HELPER_SP:")
    a.ext(kgen_code(False))
    a("K0_END:\ns_endpgm")


K1_RING = 16384
K1_CONV = 65536
K1_CSZ = 10240
K1_LDS = K1_CONV + 4 * K1_CSZ
UPITCH = 1344

T_U, T_DS, T_WD, T_OUT, T_WS = 4, 6, 8, 10, 12
T_WIDX, T_RB, T_CB = 14, 15, 16
R_X, R_WD, R_WS, R_OUT = 20, 24, 28, 32


def k1_prologue(a):
    a(f"""
    s_cmp_ge_u32 s2, 256
    s_cbranch_scc1 K1_END
    """)
    a.ext(stamp_init())
    a.ext(stamp(0))
    a(f"""
    s_load_dwordx2 s[{T_U}:{T_U+1}], s[0:1], 0
    s_load_dwordx2 s[{T_DS}:{T_DS+1}], s[0:1], 64
    s_load_dwordx2 s[{T_WD}:{T_WD+1}], s[0:1], 96
    s_load_dwordx2 s[{T_OUT}:{T_OUT+1}], s[0:1], 112
    s_load_dwordx2 s[{T_WS}:{T_WS+1}], s[0:1], 128
    v_lshrrev_b32 v1, 6, v0
    v_and_b32 v0, 63, v0
    s_and_b32 s{T_RB}, s2, 7
    v_readfirstlane_b32 s{T_WIDX}, v1
    s_lshl_b32 s{T_RB}, s{T_RB}, 2
    s_lshr_b32 s17, s2, 6
    s_add_u32 s{T_RB}, s{T_RB}, s17
    s_lshr_b32 s{T_CB}, s2, 3
    s_and_b32 s{T_CB}, s{T_CB}, 7
    s_waitcnt lgkmcnt(0)
    """)
    srd(a, R_X, T_U, 2048 * 512 * 2)
    srd(a, R_WD, T_WD, 1792 * 512 * 2)
    srd(a, R_WS, T_WS, WS_BYTES)
    srd(a, R_OUT, T_OUT, 2048 * 512 * 2)
    a(f"""
    s_cmp_ge_u32 s{T_WIDX}, 4
    s_cbranch_scc1 K1_CONVW
    """)


def k1_gemm(a0):
    a = Asm()
    D = 8
    NS = 28
    ACC = 192
    HB = 128
    WFR = 112
    EX_, ED, EG = 88, 96, 104
    VL16, VD0, VD1, DA = 2, 3, 4, 5
    VEP = 7

    def acc(t, tt):
        return ACC + 16 * (2 * t + tt)

    a(f"""
    s_lshl_b32 s40, s{T_WIDX}, 14
    s_lshl_b32 s41, s{T_RB}, 1
    s_mul_i32 s41, s41, 112
    s_mul_i32 s44, s{T_WIDX}, 28
    s_add_u32 s41, s41, s44
    s_lshl_b32 s41, s41, 10
    s_lshl_b32 s42, s44, 14
    s_lshl_b32 s45, s{T_CB}, 7
    s_add_u32 s42, s42, s45
    s_mul_i32 s43, s{T_CB}, 7
    s_lshr_b32 s43, s43, 1
    s_and_b32 s46, s{T_WIDX}, 1
    s_lshr_b32 s47, s{T_WIDX}, 1
    v_lshlrev_b32 v{VL16}, 4, v0
    v_lshrrev_b32 v8, 3, v0
    v_and_b32 v9, 7, v0
    v_lshrrev_b32 v10, 1, v8
    v_and_b32 v10, 1, v10
    v_lshlrev_b32 v10, 2, v10
    v_xor_b32 v9, v9, v10
    v_lshlrev_b32 v{VD0}, 10, v8
    v_lshl_add_u32 v{VD0}, v9, 4, v{VD0}
    v_add_u32 v{VD1}, {8192-1024}, v{VD0}
    """)

    def loads(i):
        sl = i % D
        return [
            "s_lshl_b32 s44, s43, 10", "s_add_u32 s44, s44, s41",
            "s_lshl_b32 s45, s43, 14", "s_add_u32 s45, s45, s42",
            f"s_add_u32 m0, s40, {sl*2048}",
            f"buffer_load_dwordx4 {v(HB+8*sl,4)}, v{VL16}, s[{R_WS}:{R_WS+3}], s44 offen",
            f"buffer_load_dwordx4 v{VD0}, s[{R_WD}:{R_WD+3}], s45 offen lds",
            f"s_add_u32 s44, s44, {112*1024}",
            f"buffer_load_dwordx4 v{VD1}, s[{R_WD}:{R_WD+3}], s45 offen offset:1024 lds",
            f"buffer_load_dwordx4 {v(HB+8*sl+4,4)}, v{VL16}, s[{R_WS}:{R_WS+3}], s44 offen",
            ("VMTAG", f"L{i}"),
            "s_add_u32 s43, s43, 1", "s_cmp_ge_u32 s43, 28", "s_cselect_b32 s43, 0, s43",
        ]

    for i in range(D):
        a.ext(loads(i))
    a(f"""
    v_lshrrev_b32 v8, 2, v0
    v_and_b32 v8, 3, v8
    v_and_b32 v9, 3, v0
    v_lshrrev_b32 v10, 4, v0
    v_and_b32 v10, 1, v10
    v_lshrrev_b32 v11, 5, v0
    v_lshl_add_u32 v12, v11, 2, v8
    v_lshlrev_b32 v12, 7, v12
    v_and_b32 v13, 1, v9
    v_lshl_add_u32 v12, v13, 5, v12
    v_lshl_add_u32 v12, v10, 4, v12
    v_lshrrev_b32 v13, 1, v9
    v_lshl_add_u32 v12, v13, 3, v12
    v_add_u32 v12, s40, v12
    v_lshrrev_b32 v13, 1, v8
    v_lshl_add_u32 v{DA}, v13, 6, v12
    v_xor_b32 v13, 1, v13
    v_lshl_add_u32 v{DA+1}, v13, 6, v12
    """)
    a(f"""
    s_lshl_b32 s48, s{T_RB}, 6
    s_lshl_b32 s49, s47, 5
    s_add_u32 s48, s48, s49
    s_lshl_b32 s49, s{T_CB}, 6
    s_lshl_b32 s50, s46, 5
    s_add_u32 s49, s49, s50
    v_and_b32 v8, 31, v0
    v_add_u32 v8, s48, v8
    v_lshlrev_b32 v9, 4, v11
    v_add_u32 v9, s49, v9
    v_lshlrev_b32 v9, 1, v9
    v_lshl_add_u32 v{VEP}, v8, 10, v9
    v_lshlrev_b32 v8, 5, v8
    s_mov_b32 s50, {GL_OFF}
    buffer_load_dwordx4 {v(EX_,4)}, v{VEP}, s[{R_X}:{R_X+3}], 0 offen
    buffer_load_dwordx4 {v(EX_+4,4)}, v{VEP}, s[{R_X}:{R_X+3}], 0 offen offset:16
    global_load_dwordx4 {v(ED,4)}, v9, s[{T_DS}:{T_DS+1}]
    global_load_dwordx4 {v(ED+4,4)}, v9, s[{T_DS}:{T_DS+1}] offset:16
    buffer_load_dwordx4 {v(EG,4)}, v8, s[{R_WS}:{R_WS+3}], s50 offen
    buffer_load_dwordx4 {v(EG+4,4)}, v8, s[{R_WS}:{R_WS+3}], s50 offen offset:16
    """)

    def rd(i):
        sl = i % D
        b = i & 1
        r = [("VMWAIT", f"L{i}")]
        for t in range(2):
            for h2 in range(2):
                r.append(f"ds_read_b64_tr_b16 {v(WFR+8*b+4*t+2*h2,2)}, v{DA+t} offset:{sl*2048+h2*1024}")
        return r

    a.ext(rd(0))
    for i in range(NS):
        sl = i % D
        b = i & 1
        if i + 1 < NS:
            a.ext(rd(i + 1))
            a("s_waitcnt lgkmcnt(4)")
        else:
            a("s_waitcnt lgkmcnt(0)")
        for t in range(2):
            for tt in range(2):
                c = "0" if i == 0 else v(acc(t, tt), 16)
                a(f"v_mfma_f32_32x32x16_bf16 {v(acc(t,tt),16)}, {v(WFR+8*b+4*t,4)}, {v(HB+8*sl+4*tt,4)}, {c}")
        if i + D < NS:
            a.ext(loads(i + D))
        if i in (0, 7, 14, 21, 27):
            a.ext(stamp(1 + (0, 7, 14, 21, 27).index(i)))

    a(f"""
    v_add_u32 v8, s40, v{VL16}
    s_nop 7
    s_nop 3
    """)
    for t in range(2):
        for tt in range(2):
            own = t + 2 * tt
            for g in range(4):
                a(f"ds_write_b128 v8, {v(acc(t,tt)+4*g,4)} offset:{own*4096+g*1024}")
    YR = HB
    a(f"""
    s_lshl_b32 s50, s49, 3
    s_add_u32 s50, s50, {FL_OFF}
    v_lshlrev_b32 v9, 2, v0
    s_mov_b32 s51, 0x40000
    K1_POLL:
    buffer_load_dword v10, v9, s[{R_WS}:{R_WS+3}], s50 offen sc1
    s_waitcnt vmcnt(0)
    v_cmp_ne_u32 vcc, 0, v10
    s_sub_u32 s51, s51, 1
    s_cmp_eq_u32 s51, 0
    s_cbranch_scc1 K1_POLLED
    s_cmp_eq_u64 vcc, exec
    s_cbranch_scc1 K1_POLLED
    s_sleep 2
    s_branch K1_POLL
    K1_POLLED:
    """)
    a.ext(stamp(6))
    a(f"""
    v_lshrrev_b32 v9, 2, v0
    v_and_b32 v10, 3, v0
    v_lshlrev_b32 v9, 12, v9
    v_lshl_add_u32 v9, v10, 4, v9
    s_lshl_b32 s50, s49, 12
    s_lshl_b32 s51, s48, 1
    s_add_u32 s50, s50, s51
    s_add_u32 s50, s50, {Y_OFF}
    s_add_u32 s51, s50, 0x10000
    buffer_load_dwordx4 {v(YR,4)}, v9, s[{R_WS}:{R_WS+3}], s50 offen sc1
    buffer_load_dwordx4 {v(YR+4,4)}, v9, s[{R_WS}:{R_WS+3}], s51 offen sc1
    s_waitcnt lgkmcnt(0)
    s_barrier
    """)
    a.ext(stamp(7))
    PB = 16
    a(f"""
    s_lshl_b32 s50, s{T_WIDX}, 12
    v_add_u32 v8, s50, v{VL16}
    """)
    for w in range(4):
        for g in range(4):
            a(f"ds_read_b128 {v(PB+16*w+4*g,4)}, v8 offset:{w*16384+g*1024}")
    a(f"""
    v_add_f32 v{EG}, v{EG}, v{EG+1}
    v_add_f32 v{EG+2}, v{EG+2}, v{EG+3}
    v_add_f32 v{EG+4}, v{EG+4}, v{EG+5}
    v_add_f32 v{EG+6}, v{EG+6}, v{EG+7}
    v_add_f32 v{EG}, v{EG}, v{EG+2}
    v_add_f32 v{EG+4}, v{EG+4}, v{EG+6}
    v_add_f32 v{EG}, v{EG}, v{EG+4}
    v_cvt_pk_bf16_f32 v{EG}, v{EG}, v{EG}
    v_lshlrev_b32 v{EG}, 16, v{EG}
    v_mul_f32 v{EG}, {f32(-LOG2E)}, v{EG}
    v_exp_f32 v{EG}, v{EG}
    s_nop 0
    v_add_f32 v{EG}, 1.0, v{EG}
    v_rcp_f32 v{EG}, v{EG}
    s_nop 0
    v_cvt_pk_bf16_f32 v{EG}, v{EG}, v{EG}
    v_lshlrev_b32 v{EG}, 16, v{EG}
    s_waitcnt lgkmcnt(0)
    s_barrier
    """)
    a.ext(stamp(8))
    a(f"""
    v_add_u32 v8, s40, v{VL16}
    s_waitcnt vmcnt(0)
    ds_write_b128 v8, {v(YR,4)}
    ds_write_b128 v8, {v(YR+4,4)} offset:1024
    v_lshrrev_b32 v9, 2, v0
    v_and_b32 v9, 3, v9
    v_lshl_add_u32 v9, v11, 4, v9
    v_lshlrev_b32 v9, 6, v9
    v_lshrrev_b32 v10, 4, v0
    v_and_b32 v10, 1, v10
    v_lshl_add_u32 v9, v10, 5, v9
    v_and_b32 v10, 3, v0
    v_lshl_add_u32 v9, v10, 3, v9
    v_add_u32 v9, s40, v9
    """)
    YT = HB + 8
    for q in range(4):
        a(f"ds_read_b64_tr_b16 {v(YT+2*q,2)}, v9 offset:{q*256}")
    for i in range(16):
        a(f"v_add_f32 v{PB+i}, v{PB+i}, v{PB+16+i}")
        a(f"v_add_f32 v{PB+32+i}, v{PB+32+i}, v{PB+48+i}")
    for i in range(16):
        a(f"v_add_f32 v{PB+i}, v{PB+i}, v{PB+32+i}")
    a("v_mov_b32 v12, 0xffff0000")
    a("s_waitcnt lgkmcnt(0)")
    X1, D1, Y1 = PB + 16, PB + 32, PB + 48
    for i in range(8):
        a(f"""
        v_lshlrev_b32 v{X1+2*i}, 16, v{EX_+i}
        v_and_b32 v{X1+2*i+1}, v12, v{EX_+i}
        v_lshlrev_b32 v{D1+2*i}, 16, v{ED+i}
        v_and_b32 v{D1+2*i+1}, v12, v{ED+i}
        v_lshlrev_b32 v{Y1+2*i}, 16, v{YT+i}
        v_and_b32 v{Y1+2*i+1}, v12, v{YT+i}
        """)
    for i in range(16):
        a(f"v_fmac_f32 v{Y1+i}, v{X1+i}, v{D1+i}")
    for i in range(16):
        a(f"v_sub_f32 v{Y1+i}, v{Y1+i}, v{PB+i}")
    for i in range(16):
        a(f"v_fmac_f32 v{PB+i}, v{EG}, v{Y1+i}")
    for i in range(8):
        a(f"v_cvt_pk_bf16_f32 v{X1+i}, v{PB+2*i}, v{PB+2*i+1}")
    a(f"""
    buffer_store_dwordx4 {v(X1,4)}, v{VEP}, s[{R_OUT}:{R_OUT+3}], 0 offen
    buffer_store_dwordx4 {v(X1+4,4)}, v{VEP}, s[{R_OUT}:{R_OUT+3}], 0 offen offset:16
    """)
    a.ext(stamp(10))
    if STAMPS:
        a("s_waitcnt vmcnt(0)")
    a.ext(stamp(11))
    a.ext(stamp_flush(R_WS, T_WIDX, 1))
    a("s_endpgm")
    a0.ext(resolve_vm(a.L))


def k1_conv(a):
    KA, UA, VL16, YA = 2, 3, 4, 5
    a(f"""
    s_setprio 3
    s_sub_u32 s40, s{T_WIDX}, 4
    s_lshr_b32 s41, s40, 1
    s_lshl_b32 s44, s2, 1
    s_add_u32 s41, s41, s44
    s_and_b32 s42, s40, 1
    s_mul_i32 s43, s40, {K1_CSZ}
    s_add_u32 s43, s43, {K1_CONV}
    v_lshlrev_b32 v{VL16}, 4, v0
    s_lshl_b32 s44, s41, 12
    s_add_u32 s45, s44, {KX_OFF}
    s_add_u32 s46, s44, {UT_OFF}
    s_add_u32 m0, s43, 64
    s_nop 0
    """)
    for i in range(4):
        a(f"buffer_load_dwordx4 v{VL16}, s[{R_WS}:{R_WS+3}], s45 offen offset:{1024*i} lds")
    UB = 4224
    for r in range(4):
        a(f"""
        s_add_u32 m0, s43, {UB + r*UPITCH + 112}
        s_nop 0
        buffer_load_dwordx4 v{VL16}, s[{R_WS}:{R_WS+3}], s46 offen lds
        s_add_u32 s46, s46, 1024
        """)
    a(f"""
    v_mov_b32 v8, 0
    v_mov_b32 v9, 0
    v_mov_b32 v10, 0
    v_mov_b32 v11, 0
    v_and_b32 v6, 7, v0
    v_lshrrev_b32 v7, 3, v0
    v_and_b32 v7, 3, v7
    v_min_u32 v6, 6, v6
    v_mul_u32_u24 v7, {UPITCH}, v7
    v_lshl_add_u32 v6, v6, 4, v7
    v_add_u32 v6, s43, v6
    v_and_b32 v7, 3, v0
    v_lshlrev_b32 v7, 4, v7
    v_add_u32 v7, s43, v7
    ds_write_b128 v6, v[8:11] offset:{UB}
    ds_write_b128 v7, v[8:11]
    """)
    a(f"""
    v_lshrrev_b32 v6, 2, v0
    v_and_b32 v6, 3, v6
    v_and_b32 v7, 3, v0
    v_lshrrev_b32 v8, 4, v0
    v_and_b32 v8, 1, v8
    v_lshrrev_b32 v9, 5, v0
    v_lshlrev_b32 v{KA}, 5, v8
    v_lshl_add_u32 v{KA}, v7, 3, v{KA}
    v_lshl_add_u32 v{KA}, v9, 6, v{KA}
    v_lshlrev_b32 v10, 3, v6
    v_sub_u32 v{KA}, v{KA}, v10
    v_add_u32 v{KA}, s43, v{KA}
    v_add_u32 v{KA}, 32, v{KA}
    v_mul_u32_u24 v{UA}, {UPITCH}, v7
    v_lshrrev_b32 v10, 2, v0
    v_and_b32 v10, 7, v10
    v_sub_u32 v10, v10, v9
    v_lshlrev_b32 v10, 4, v10
    v_add_u32 v{UA}, v{UA}, v10
    v_add_u32 v{UA}, s43, v{UA}
    v_add_u32 v{UA}, {UB+16}, v{UA}
    v_lshlrev_b32 v{YA}, 1, v0
    v_add_u32 v{YA}, s43, v{YA}
    s_mov_b32 s48, 0
    s_mov_b32 s49, 0x80000000
    s_mov_b32 s50, 0
    s_mov_b32 s51, 0xc0000000
    s_mov_b32 s52, 0
    s_mov_b32 s53, 0xe0000000
    s_add_u32 s54, s44, {Y_OFF}
    s_lshl_b32 s55, s2, 2
    s_add_u32 s55, s55, s40
    s_lshl_b32 s55, s55, 2
    s_add_u32 s55, s55, {FL_OFF}
    s_waitcnt vmcnt(0)
    """)
    a.ext(stamp(1))
    a(f"""
    s_cmp_eq_u32 s42, 1
    s_cbranch_scc1 K1_CONVB
    """)

    def part(qs, outq):
        qmax = max(qs)
        nst = 4 * qmax + 4
        NU = 4
        UBUF = 8
        KT = 24
        ACC = KT + 4 * nst
        assert ACC + 16 * len(qs) <= 256

        def acc(q):
            return ACC + 16 * qs.index(q)

        def rd(i):
            tau = 4 * qmax - i
            return [f"ds_read_b128 {v(UBUF+4*(i%NU),4)}, v{UA} offset:{32*(tau+3)}",
                    f"ds_read_b64_tr_b16 {v(KT+4*i,2)}, v{KA} offset:{128*i+32}",
                    f"ds_read_b64_tr_b16 {v(KT+4*i+2,2)}, v{KA} offset:{128*i}"]
        PF = NU - 1
        for i in range(PF):
            a.ext(rd(i))
        for i in range(nst):
            if i + PF < nst:
                a.ext(rd(i + PF))
            left = min(PF, nst - 1 - i)
            a(f"s_waitcnt lgkmcnt({3*left})")
            for q in sorted(qs, reverse=True):
                s_ = i - 4 * (qmax - q)
                if s_ < 0:
                    continue
                c = "0" if s_ == 0 else v(acc(q), 16)
                a(f"v_mfma_f32_32x32x16_bf16 {v(acc(q),16)}, {v(UBUF+4*(i%NU),4)}, {v(KT+4*s_,4)}, {c}")
        a.ext(stamp(2))
        a("s_nop 7\ns_nop 3")
        groups = [(q, g) for q in outq for g in range(4)]
        Z = KT
        a(f"v_mov_b32 v6, 0")

        def Y(q, g, rho):
            return acc(q) + 4 * g + rho
        for gi, (q, g) in enumerate(groups):
            for rho in (1, 2, 3):
                if g > 0:
                    prev = f"v{Y(q,g-1,rho)}"
                elif q > 0:
                    prev = f"v{Y(q-1,3,rho)}"
                else:
                    prev = "v6"
                a(f"v_cndmask_b32 v{Z+3*gi+rho-1}, v{Y(q,g,rho)}, {prev}, s[{46+2*rho}:{47+2*rho}]")
        dpp = "wave_ror:1 row_mask:0xf bank_mask:0xf"
        for gi in range(len(groups)):
            a(f"v_add_f32_dpp v{Z+3*gi+1}, v{Z+3*gi+2}, v{Z+3*gi+1} {dpp}")
        for gi in range(len(groups)):
            a(f"v_add_f32_dpp v{Z+3*gi}, v{Z+3*gi+1}, v{Z+3*gi} {dpp}")
        for gi, (q, g) in enumerate(groups):
            a(f"v_add_f32_dpp v{Z+3*gi+2}, v{Z+3*gi}, v{Y(q,g,0)} {dpp}")
        for gi in range(0, len(groups), 2):
            a(f"v_cvt_pk_bf16_f32 v{Z+3*gi}, v{Z+3*gi+2}, v{Z+3*gi+5}")
        for gi in range(0, len(groups), 2):
            a(f"ds_write_b16 v{YA}, v{Z+3*gi} offset:{128*gi}")
            a(f"ds_write_b16_d16_hi v{YA}, v{Z+3*gi} offset:{128*gi+128}")
        nk = len(groups) // 8
        a(f"v_add_u32 v6, s43, v{VL16}")
        for k in range(nk):
            a(f"ds_read_b128 {v(UBUF+4*k,4)}, v6 offset:{1024*k}")
        a("s_waitcnt lgkmcnt(0)")
        base = outq[0] * 512
        for k in range(nk):
            off = base + 1024 * k
            a(f"buffer_store_dwordx4 {v(UBUF+4*k,4)}, v{VL16}, s[{R_WS}:{R_WS+3}], s54 offen offset:{off} sc1")
        a.ext(stamp(3))
        a(f"""
        v_mov_b32 v6, 0
        v_mov_b32 v7, 1
        s_waitcnt vmcnt(0)
        s_mov_b64 exec, 1
        buffer_store_dword v7, v6, s[{R_WS}:{R_WS+3}], s55 offen sc1
        """)
        a.ext(stamp(10))
        if STAMPS:
            a("s_waitcnt vmcnt(0)")
        a.ext(stamp(11))
        a.ext(stamp_flush(R_WS, T_WIDX, 1))
        a("s_endpgm")

    part([0, 1, 2, 3, 4, 5], [0, 1, 2, 3, 4, 5])
    a("K1_CONVB:")
    part([5, 6, 7], [6, 7])


def gen_k1(a):
    a(".p2align 8\nk1_kernel:")
    k1_prologue(a)
    k1_gemm(a)
    a("K1_CONVW:")
    k1_conv(a)
    a("K1_END:\ns_endpgm")


HEADER = open("cdna_kernels/" + NAME + ".s.ref").read().split("; Override launch")[0]


def kd(name, vgpr, sgpr):
    return f"""
.amdhsa_kernel {name}
  .amdhsa_next_free_vgpr {vgpr}
  .amdhsa_next_free_sgpr {sgpr}
  .amdhsa_accum_offset {vgpr}
  .amdhsa_group_segment_fixed_size 0
  .amdhsa_kernarg_size 136
  .amdhsa_user_sgpr_count 2
  .amdhsa_user_sgpr_kernarg_segment_ptr 1
  .amdhsa_system_sgpr_workgroup_id_x 1
.end_amdhsa_kernel
"""


def main(path):
    a = Asm()
    gen_k0(a)
    gen_k1(a)
    body = "\n".join(("" if ln.endswith(":") or ln.startswith(".") else "    ") + ln for ln in a.L)
    txt = HEADER
    txt += "; @launch kernel=k0_kernel grid=(256,1,1) block=(512,1,1) lds=163840\n"
    txt += f"; @launch kernel=k1_kernel grid=(256,1,1) block=(512,1,1) lds={K1_LDS}\n"
    for i in range(OPT.get("extra", 0)):
        txt += "; @launch kernel=k2_kernel grid=(256,1,1) block=(64,1,1) lds=0\n"
    txt += '.amdgcn_target "amdgcn-amd-amdhsa--gfx950"\n.text\n'
    txt += ".globl k0_kernel\n.type k0_kernel,@function\n.globl k1_kernel\n.type k1_kernel,@function\n"
    txt += body + "\n"
    if OPT.get("extra"):
        txt += ".globl k2_kernel\n.type k2_kernel,@function\n.p2align 8\nk2_kernel:\n    s_endpgm\n"
    txt += '.section .rodata,"a"\n.p2align 6' + kd("k0_kernel", 256, 102) + ".p2align 6" + kd("k1_kernel", 256, 102)
    if OPT.get("extra"):
        txt += ".p2align 6" + kd("k2_kernel", 8, 16)
    open(path, "w").write(txt)


if __name__ == "__main__":
    for o in list(sys.argv):
        if o.startswith("--opt="):
            k, _, val = o[6:].partition(":")
            OPT[k] = int(val) if val else 1
            sys.argv.remove(o)
    if "--stamps" in sys.argv:
        STAMPS = True
        sys.argv.remove("--stamps")
    main(sys.argv[1] if len(sys.argv) > 1 else "cdna_kernels/" + NAME + ".s")
```

```python
import sys, struct

NAME = "gated_mix__ssm_conv_s4__swiglu_ffn__prompt"

H_OFF = 0x000000
UT_OFF = 0x800000
KX_OFF = 0xA00000
Y_OFF = 0xC00000
GL_OFF = 0xE00000
FH_OFF = 0xE40000
FY_OFF = 0xE60000
FU_OFF = 0xE68000
ST_OFF = 0xE20000
WS_BYTES = 0x1000000

STAMPS = False
OPT = {}
ST_BASE = 78
NST = 12


def f32(x):
    return "0x%08x" % struct.unpack("<I", struct.pack("<f", x))[0]


LOG2E = 1.4426950408889634
LOG2E_HI = struct.unpack("<f", struct.pack("<f", LOG2E))[0]
LOG2E_LO = LOG2E - LOG2E_HI
LN2 = 0.6931471805599453
INV2PI = 0.15915494309189535


class Asm:
    def __init__(self):
        self.L = []

    def __call__(self, s):
        for line in s.strip().split("\n"):
            line = line.strip()
            if line:
                self.L.append(line)

    def ext(self, lines):
        self.L.extend(lines)

    def tag(self, n):
        self.L.append(("VMTAG", n))

    def wait(self, n):
        self.L.append(("VMWAIT", n))


def v(b, n=1):
    return f"v{b}" if n == 1 else f"v[{b}:{b+n-1}]"


def sr(b):
    return f"s[{b}:{b+3}]"


class RA:
    def __init__(self, start, end):
        self.p = start
        self.end = end

    def __call__(self, n=1, align=1):
        self.p = (self.p + align - 1) // align * align
        r = self.p
        self.p += n
        assert self.p <= self.end, "out of registers"
        return r


def stamp(k, force=False):
    if not STAMPS:
        return []
    assert k < NST
    if OPT.get("dbgbar") and 1 <= k <= 9 and not force:
        return []
    op = "s_memtime" if OPT.get("cyc") else "s_memrealtime"
    return [f"{op} s[{ST_BASE+2*k}:{ST_BASE+2*k+1}]"]


def bstamp(k):
    return stamp(k, True) if OPT.get("dbgbar") else []


def stamp_end():
    if not STAMPS:
        return ["s_endpgm"]
    L = stamp(10) + ["s_waitcnt vmcnt(0)"] + stamp(11)
    L += ["s_waitcnt lgkmcnt(0)", "s_mov_b64 exec, 1", "s_lshl_b32 s74, s2, 3", f"s_add_u32 s74, s74, s{S_WIDX}",
          "s_lshl_b32 s74, s74, 6", f"s_add_u32 s74, s74, {ST_OFF}", "v_mov_b32 v1, 0"]
    for k in range(NST):
        L.append(f"v_mov_b32 v{4+k}, s{ST_BASE+2*k}")
    for k in range(0, NST, 4):
        L.append(f"buffer_store_dwordx4 v[{4+k}:{7+k}], v1, {sr(SRD_WS)}, s74 offen offset:{4*k}")
    L.append("s_endpgm")
    return L


def is_vmem(line):
    return line.startswith("buffer_") or line.startswith("global_")


def resolve_vm(lines):
    out = []
    count = 0
    tags = {}
    done = -1
    for ln in lines:
        if isinstance(ln, tuple):
            if ln[0] == "VMTAG":
                tags[ln[1]] = count
            elif ln[0] == "VMWAIT":
                if tags[ln[1]] <= done:
                    continue
                n = count - tags[ln[1]]
                assert 0 <= n <= 63, n
                out.append(f"s_waitcnt vmcnt({n})")
                done = tags[ln[1]]
            elif ln[0] == "VMRESET":
                done = count
            elif ln[0] == "NOCOUNT":
                out.append(ln[1])
            else:
                raise ValueError(ln)
        else:
            if is_vmem(ln):
                count += 1
            out.append(ln)
    return out


SLOT = 49152
KG_BASE = 147456
KARR = 3584
U_BASE = 131072
UPITCH = 1344
USZ = 4 * UPITCH
YB_BASE = U_BASE + 2 * USZ
RING2 = 32768

S_U, S_ARE, S_AIM, S_BRE, S_BIM, S_CRE, S_CIM, S_LDT = 4, 6, 8, 10, 12, 14, 16, 18
S_DS = 20
S_WG, S_WU, S_WD, S_GW = 24, 26, 28, 30
S_OUT, S_DBG, S_WS = 32, 34, 36
S_WIDX, S_XCD, S_IDX, S_RB, S_CB, S_PHI = 38, 39, 40, 41, 42, 43
SRD_X, SRD_WG, SRD_WU, SRD_WS, SRD_WD, SRD_OUT = 44, 48, 52, 56, 60, 64


def srd(a, d, base, nbytes):
    a(f"""
    s_mov_b32 s{d}, s{base}
    s_and_b32 s{d+1}, s{base+1}, 0xffff
    s_mov_b32 s{d+2}, {nbytes}
    s_mov_b32 s{d+3}, 0x00020000
    """)


def prologue(a):
    a("""
    s_cmp_ge_u32 s2, 256
    s_cbranch_scc1 L_END
    """)
    if STAMPS:
        a.ext([f"s_mov_b32 s{ST_BASE+2*k}, 0" for k in range(NST)])
    a.ext(stamp(0))
    a(f"""
    s_load_dwordx16 s[4:19], s[0:1], 0
    s_load_dwordx8 s[24:31], s[0:1], 80
    s_load_dwordx2 s[36:37], s[0:1], 128
    s_load_dwordx4 s[32:35], s[0:1], 112
    s_load_dwordx2 s[20:21], s[0:1], 64
    v_lshrrev_b32 v1, 6, v0
    v_and_b32 v0, 63, v0
    s_and_b32 s{S_XCD}, s2, 7
    v_readfirstlane_b32 s{S_WIDX}, v1
    s_lshr_b32 s{S_IDX}, s2, 3
    s_and_b32 s68, s{S_IDX}, 3
    s_lshr_b32 s69, s{S_IDX}, 2
    s_lshr_b32 s{S_RB}, s{S_XCD}, 1
    s_lshl_b32 s{S_RB}, s{S_RB}, 2
    s_add_u32 s{S_RB}, s{S_RB}, s68
    s_and_b32 s{S_CB}, s{S_XCD}, 1
    s_mul_i32 s{S_CB}, s{S_CB}, 7
    s_add_u32 s{S_CB}, s{S_CB}, s69
    s_lshl_b32 s{S_PHI}, s68, 1
    s_add_u32 s{S_PHI}, s{S_PHI}, s69
    s_and_b32 s{S_PHI}, s{S_PHI}, 7
    s_waitcnt lgkmcnt(0)
    """)
    srd(a, SRD_X, S_U, 2048 * 512 * 2)
    srd(a, SRD_WG, S_WG, 512 * 1792 * 2)
    srd(a, SRD_WU, S_WU, 512 * 1792 * 2)
    srd(a, SRD_WS, S_WS, WS_BYTES)
    srd(a, SRD_WD, S_WD, 1792 * 512 * 2)
    srd(a, SRD_OUT, S_OUT, 2048 * 512 * 2)
    a(f"""
    s_cmp_ge_u32 s{S_WIDX}, 6
    s_cbranch_scc1 L_KWAVE
    s_cmp_ge_u32 s{S_WIDX}, 4
    s_cbranch_scc1 L_LWAVE
    s_cmp_ge_u32 s{S_IDX}, 28
    s_cbranch_scc1 L_SPARE
    """)


def gemm1(a):
    XA = 8
    WA = 20
    BUF = 64
    ACC = 128

    def acc(mat, t, tt):
        return ACC + 16 * (mat * 4 + t * 2 + tt)

    def wf(b, mat, t):
        return BUF + 24 * b + 4 * (mat * 2 + t)

    def xf(b, tt):
        return BUF + 24 * b + 16 + 4 * tt

    a(f"""
    s_lshr_b32 s68, s{S_WIDX}, 1
    s_and_b32 s69, s{S_WIDX}, 1
    v_and_b32 v1, 31, v0
    v_lshrrev_b32 v2, 5, v0
    v_lshrrev_b32 v3, 1, v0
    v_and_b32 v3, 7, v3
    s_lshl_b32 s70, s68, 13
    v_lshlrev_b32 v4, 7, v1
    v_add_u32 v4, s70, v4
    """)
    for ks in range(4):
        a(f"""
        v_add_u32 v5, {2*ks}, v2
        v_xor_b32 v5, v5, v3
        v_lshl_add_u32 v{XA+ks}, v5, 4, v4
        """)
    a(f"""
    v_lshrrev_b32 v1, 2, v0
    v_and_b32 v1, 3, v1
    v_and_b32 v3, 3, v0
    v_lshrrev_b32 v4, 4, v0
    v_and_b32 v4, 1, v4
    v_lshl_add_u32 v5, v2, 3, v1
    v_lshlrev_b32 v5, 8, v5
    v_lshl_add_u32 v5, v4, 5, v5
    v_lshl_add_u32 v5, v3, 3, v5
    s_lshl_b32 s70, s69, 1
    """)
    for t in range(2):
        a(f"""
        s_add_u32 s71, s70, {t}
        v_xor_b32 v6, s71, v1
        v_lshl_add_u32 v{WA+t}, v6, 6, v5
        """)
    for sl in (1, 2):
        for ks in range(4):
            a(f"v_add_u32 v{XA+4*sl+ks}, {sl*SLOT}, v{XA+ks}")
        for t in range(2):
            a(f"v_add_u32 v{WA+2*sl+t}, {sl*SLOT}, v{WA+t}")
    a(f"""
    s_lshl_b32 s70, s{S_RB}, 2
    s_lshl_b32 s71, s68, 1
    s_add_u32 s70, s70, s71
    s_mul_i32 s70, s70, 112
    s_lshl_b32 s71, s{S_CB}, 3
    s_add_u32 s70, s70, s71
    s_lshl_b32 s71, s69, 2
    s_add_u32 s70, s70, s71
    s_lshl_b32 s70, s70, 10
    s_add_u32 s71, s70, {112*1024}
    s_lshl_b32 s3, s{S_RB}, 1
    s_add_u32 s3, s3, s68
    s_lshl_b32 s3, s3, 5
    s_lshl_b32 s72, s{S_CB}, 1
    s_add_u32 s3, s3, s72
    s_add_u32 s3, s3, s69
    s_lshl_b32 s3, s3, 7
    s_add_u32 s3, s3, {FH_OFF}
    v_lshlrev_b32 v1, 4, v0
    s_mov_b32 s72, {f32(-LOG2E)}
    s_mov_b32 s73, {f32(-LOG2E)}
    """)

    def reads(n):
        st, ks = n >> 2, n & 3
        sl = st % 3
        b = n & 1
        r = []
        r.append(f"ds_read_b128 {v(xf(b,0),4)}, v{XA+4*sl+ks}")
        for mat in range(2):
            for t in range(2):
                for h2 in range(2):
                    off = 16384 * (1 + mat) + ks * 4096 + h2 * 1024
                    r.append(f"ds_read_b64_tr_b16 {v(wf(b,mat,t)+2*h2,2)}, v{WA+2*sl+t} offset:{off}")
                if mat == 0 and t == 0:
                    r.append(f"ds_read_b128 {v(xf(b,1),4)}, v{XA+4*sl+ks} offset:4096")
        return r

    TS = [64, 76, 112, 88]
    order = [(p, kk) for p in range(4) for kk in range(8)]
    if OPT.get("tord") == 1:
        order = [(0, k) for k in range(4)] + [(1, k) for k in range(4)] + [(0, k) for k in range(4, 8)] + \
                [(1, k) for k in range(4, 8)] + [(p, kk) for p in (2, 3) for kk in range(8)]

    def treads(j):
        p, kk = order[j]
        t, tt = p >> 1, p & 1
        st, ks = 6 + (kk >> 2), kk & 3
        sl = st % 3
        F = TS[j & 3]
        r = [f"ds_read_b128 {v(F+8,4)}, v{XA+4*sl+ks} offset:{4096*tt}"]
        for mat in range(2):
            for h2 in range(2):
                off = 16384 * (1 + mat) + ks * 4096 + h2 * 1024
                r.append(f"ds_read_b64_tr_b16 {v(F+4*mat+2*h2,2)}, v{WA+2*sl+t} offset:{off}")
        return r

    T = 26
    O = 42

    def epi(p, pk):
        t, tt = p >> 1, p & 1
        G, U = acc(0, t, tt), acc(1, t, tt)
        o = O + 8 * (p & 1)
        L = []
        for h in range(2):
            R = range(8 * h, 8 * h + 8)
            if pk:
                L += [f"v_pk_mul_f32 {v(T+i,2)}, {v(G+i,2)}, s[72:73]" for i in R[::2]]
                for i in R[::2]:
                    L += [f"v_exp_f32 v{T+i}, v{T+i}", f"v_exp_f32 v{T+i+1}, v{T+i+1}",
                          f"v_pk_mul_f32 {v(U+i,2)}, {v(G+i,2)}, {v(U+i,2)}"]
                L += [f"v_pk_add_f32 {v(T+i,2)}, {v(T+i,2)}, 1.0 op_sel_hi:[1,0]" for i in R[::2]]
                L += [f"v_rcp_f32 v{T+i}, v{T+i}" for i in R]
                L += [f"v_pk_mul_f32 {v(U+i,2)}, {v(U+i,2)}, {v(T+i,2)}" for i in R[::2]]
            else:
                L += [f"v_mul_f32 v{T+i}, s72, v{G+i}" for i in R[:2]]
                for i in R:
                    L += [f"v_exp_f32 v{T+i}, v{T+i}", f"v_mul_f32 v{U+i}, v{G+i}, v{U+i}"]
                    if i + 2 in R:
                        L.append(f"v_mul_f32 v{T+i+2}, s72, v{G+i+2}")
                L += [f"v_add_f32 v{T+i}, 1.0, v{T+i}" for i in R[:2]]
                for i in R:
                    L.append(f"v_rcp_f32 v{T+i}, v{T+i}")
                    if i + 2 in R:
                        L.append(f"v_add_f32 v{T+i+2}, 1.0, v{T+i+2}")
                    if i - 1 in R:
                        L.append(f"v_mul_f32 v{U+i-1}, v{U+i-1}, v{T+i-1}")
                L.append(f"v_cvt_pk_bf16_f32 v{o+4*h}, v{U+8*h}, v{U+8*h+1}")
                L.append(f"v_mul_f32 v{U+8*h+7}, v{U+8*h+7}, v{T+8*h+7}")
            for i in range(0 if pk else 1, 4):
                L.append(f"v_cvt_pk_bf16_f32 v{o+4*h+i}, v{U+8*h+2*i}, v{U+8*h+2*i+1}")
            L.append(f"buffer_store_dwordx4 {v(o+4*h,4)}, v1, {sr(SRD_WS)}, s{70+tt} offen offset:{t*2048+1024*h} sc1")
        return L

    a("s_barrier")
    a.ext(stamp(1))
    if OPT.get("dbgbar") == 2:
        a.ext(bstamp(1))
    a.ext(reads(0))
    for n in range(24):
        b = n & 1
        a("s_waitcnt lgkmcnt(0)")
        if (n & 3) == 3:
            if OPT.get("dbgbar") == 2:
                a.ext(bstamp(2 + (n >> 2)))
            a("s_barrier")
            if n == 23:
                a.ext(stamp(2))
        rd = reads(n + 1) if n < 23 else treads(0) + treads(1) + treads(2)
        mf = []
        for t in range(2):
            for tt in range(2):
                for mat in range(2):
                    c = "0" if n == 0 else v(acc(mat, t, tt), 16)
                    mf.append(f"v_mfma_f32_32x32x16_bf16 {v(acc(mat,t,tt),16)}, {v(wf(b,mat,t),4)}, {v(xf(b,tt),4)}, {c}")
        for i, m in enumerate(mf):
            a(m)
            a.ext(rd[2 * i:2 * i + 2])
    first7 = min(j for j in range(32) if order[j][1] >= 4)
    last = {p: max(j for j in range(32) if order[j][0] == p) for p in range(4)}
    pend = []
    for j in range(32):
        p, kk = order[j]
        t, tt = p >> 1, p & 1
        F = TS[j & 3]
        a(f"s_waitcnt lgkmcnt({5*min(2, 31-j)})")
        if j + 3 == first7:
            if OPT.get("dbgbar") == 2:
                a.ext(bstamp(8))
            a("s_barrier")
        rd = treads(j + 3) if j + 3 < 32 else []
        for pp in range(4):
            if last[pp] + 2 == j:
                pend += epi(pp, False)
        nxt = min([l + 2 for l in last.values() if l + 2 > j] + [32])
        take = -(-len(pend) // max(1, min(nxt, 32) - j))
        cur, pend = pend[:take], pend[take:]
        h1 = len(cur) // 2
        for mat in range(2):
            a(f"v_mfma_f32_32x32x16_bf16 {v(acc(mat,t,tt),16)}, {v(F+4*mat,4)}, {v(F+8,4)}, {v(acc(mat,t,tt),16)}")
            a.ext(rd[:3] if mat == 0 else rd[3:])
            a.ext(cur[:h1] if mat == 0 else cur[h1:])
    a.ext(pend)
    a.ext(stamp(3))
    a("s_nop 7\ns_nop 3")
    a.ext(epi(3, True))
    a.ext(stamp(4))
    a("s_branch L_GEMM2")


def spare(a):
    R = 16
    O = 80
    GWv = 112
    SUM = 120
    a(f"""
    s_lshl_b32 s68, s{S_XCD}, 2
    s_add_u32 s68, s68, s{S_IDX}
    s_sub_u32 s68, s68, 28
    s_lshr_b32 s69, s68, 2
    s_lshl_b32 s3, s68, 5
    s_add_u32 s3, s3, s{S_WIDX}
    s_lshl_b32 s3, s3, 2
    s_add_u32 s3, s3, {FU_OFF}
    s_lshl_b32 s68, s68, 2
    s_add_u32 s68, s68, s{S_WIDX}
    s_and_b32 s68, s68, 15
    v_and_b32 v1, 7, v0
    v_lshrrev_b32 v2, 3, v0
    v_lshlrev_b32 v3, 15, v2
    v_lshl_add_u32 v3, v1, 4, v3
    v_lshlrev_b32 v4, 15, v1
    v_lshl_add_u32 v4, v2, 4, v4
    v_lshlrev_b32 v5, 4, v1
    v_lshlrev_b32 v6, 2, v0
    s_mov_b32 s70, 0x05040100
    s_mov_b32 s71, 0x07060302
    s_lshl_b32 s72, s69, 7
    v_add_u32 v7, s72, v5
    global_load_dwordx4 {v(GWv,4)}, v7, s[{S_GW}:{S_GW+1}]
    """)
    for i in range(2):
        b = 6 + 4 * i
        a(f"""
        s_lshl_b32 s73, s68, 1
        s_add_u32 s73, s73, {i}
        s_lshr_b32 s74, s73, 2
        s_and_b32 s73, s73, 3
        s_lshl_b32 s{b}, s74, 18
        s_lshl_b32 s75, s73, 10
        s_add_u32 s{b}, s{b}, s75
        s_add_u32 s{b}, s{b}, s72
        s_lshl_b32 s{b+1}, s69, 18
        s_add_u32 s{b+1}, s{b+1}, s75
        s_lshl_b32 s75, s74, 7
        s_add_u32 s{b+1}, s{b+1}, s75
        s_add_u32 s{b+1}, s{b+1}, {UT_OFF}
        s_lshl_b32 s{b+2}, s74, 8
        s_lshl_b32 s75, s73, 11
        s_add_u32 s{b+2}, s{b+2}, s75
        s_lshl_b32 s75, s69, 13
        s_add_u32 s{b+2}, s{b+2}, s75
        s_add_u32 s{b+2}, s{b+2}, {GL_OFF}
        """)
        for j in range(8):
            a(f"buffer_load_dwordx4 {v(R+32*i+4*j,4)}, v3, {sr(SRD_X)}, s{b} offen")
            if j < 7:
                a(f"s_add_u32 s{b}, s{b}, 4096")
    for i in range(2):
        b = 6 + 4 * i
        a(f"s_waitcnt vmcnt({8 if i == 0 else 9})")
        Ri = R + 32 * i
        for e in range(8):
            for jj in range(4):
                sel = 71 if (e & 1) else 70
                a(f"v_perm_b32 v{O+4*e+jj}, v{Ri+4*(2*jj+1)+(e>>1)}, v{Ri+4*(2*jj)+(e>>1)}, s{sel}")
            a(f"buffer_store_dwordx4 {v(O+4*e,4)}, v4, {sr(SRD_WS)}, s{b+1} offen sc1")
            if e < 7:
                a(f"s_add_u32 s{b+1}, s{b+1}, 4096")
        for j in range(8):
            a(f"v_mov_b32 v{SUM+j}, 0")
        for q in range(4):
            for j in range(8):
                a(f"v_dot2c_f32_bf16 v{SUM+j}, v{Ri+4*j+q}, v{GWv+q}")
        a("s_nop 3")
        for ctl in ("quad_perm:[1,0,3,2]", "quad_perm:[2,3,0,1]", "row_half_mirror"):
            for j in range(8):
                a(f"v_add_f32_dpp v{SUM+j}, v{SUM+j}, v{SUM+j} {ctl} row_mask:0xf bank_mask:0xf")
        for j in range(1, 8):
            a(f"""
            v_cmp_eq_u32 vcc, {j}, v1
            s_nop 1
            v_cndmask_b32 v{SUM}, v{SUM}, v{SUM+j}, vcc
            """)
        a(f"buffer_store_dword v{SUM}, v6, {sr(SRD_WS)}, s{b+2} offen sc1")
        a("s_nop 1")
    a.ext(stamp(1))
    a(f"""
    v_mov_b32 v2, 0
    v_mov_b32 v3, 1
    s_waitcnt vmcnt(0)
    s_barrier
    s_mov_b64 exec, 1
    buffer_store_dword v3, v2, {sr(SRD_WS)}, s3 offen sc1
    s_mov_b64 exec, -1
    """)
    a.ext(stamp(2))


def spin(label, loads, checks):
    L = [f"{label}_SPIN:", "s_sleep 1"]
    L += [("NOCOUNT", x) for x in loads]
    L += ["s_waitcnt vmcnt(0)"]
    L += ["s_sub_u32 s77, s77, 1", "s_cmp_eq_u32 s77, 0", f"s_cbranch_scc1 {label}_OK"]
    L += [f"{label}_CHK:"] + checks
    L += [f"s_cbranch_scc0 {label}_SPIN", f"{label}_OK:"]
    return L


def gemm2(a0):
    a = Asm()
    NS = 28
    NP = 12
    NR = 16
    N1 = 0
    NF = OPT.get("nf", 2)
    N2 = OPT.get("n2", 20)
    DH = 7
    ACC = 192
    WF = 96
    WFR = 80
    HB = 24
    VL16, VD0, VD1, DA, VEP, VKB = 1, 2, 3, 4, 6, 7

    def acc(t, tt):
        return ACC + 16 * (2 * t + tt)

    a(f"""
    s_setprio 2
    s_lshl_b32 s6, s{S_XCD}, 2
    s_lshr_b32 s13, s{S_IDX}, 3
    s_add_u32 s6, s6, s13
    s_and_b32 s7, s{S_IDX}, 7
    s_lshl_b32 s8, s{S_WIDX}, 15
    s_lshl_b32 s9, s6, 1
    s_mul_i32 s9, s9, 112
    s_mul_i32 s13, s{S_WIDX}, 28
    s_add_u32 s9, s9, s13
    s_lshl_b32 s9, s9, 10
    s_lshl_b32 s10, s13, 14
    s_lshl_b32 s14, s7, 7
    s_add_u32 s10, s10, s14
    s_and_b32 s12, s7, {OPT.get("nrot", 2) - 1}
    s_mul_i32 s12, s12, {28 // OPT.get("nrot", 2)}
    s_mov_b32 s11, s12
    s_and_b32 s15, s{S_WIDX}, 1
    s_lshr_b32 s16, s{S_WIDX}, 1
    v_lshlrev_b32 v{VL16}, 4, v0
    v_lshrrev_b32 v8, 3, v0
    v_and_b32 v9, 7, v0
    v_lshrrev_b32 v10, 1, v8
    v_and_b32 v10, 1, v10
    v_lshlrev_b32 v10, 2, v10
    v_xor_b32 v9, v9, v10
    v_lshlrev_b32 v{VD0}, 10, v8
    v_lshl_add_u32 v{VD0}, v9, 4, v{VD0}
    v_add_u32 v{VD1}, {8192-1024}, v{VD0}
    """)

    def wload(i):
        sl = i % NR
        return [
            "s_lshl_b32 s14, s11, 14", f"s_add_u32 m0, s8, {sl*2048}", "s_add_u32 s14, s14, s10",
            f"buffer_load_dwordx4 v{VD0}, {sr(SRD_WD)}, s14 offen lds",
            "s_add_u32 s11, s11, 1", "s_cmp_ge_u32 s11, 28", "s_cselect_b32 s11, 0, s11",
            f"buffer_load_dwordx4 v{VD1}, {sr(SRD_WD)}, s14 offen offset:1024 lds",
            ("VMTAG", f"W{i}"),
        ]

    HL = {0: " sc1", 1: "", 2: "", 3: " sc0", 4: " nt"}[OPT.get("hl", 0)]

    def hload(i):
        sl = i % DH
        return [
            "s_lshl_b32 s13, s12, 10", "s_add_u32 s13, s13, s9",
            f"buffer_load_dwordx4 {v(HB+8*sl,4)}, v{VL16}, {sr(SRD_WS)}, s13 offen{HL}",
            f"s_add_u32 s13, s13, {112*1024}",
            "s_add_u32 s12, s12, 1", "s_cmp_ge_u32 s12, 28", "s_cselect_b32 s12, 0, s12",
            f"buffer_load_dwordx4 {v(HB+8*sl+4,4)}, v{VL16}, {sr(SRD_WS)}, s13 offen{HL}",
            ("VMTAG", f"H{i}"),
        ]

    def wfrag(i):
        return WF + 8 * i if i < NP else WFR + 8 * (i & 1)

    def trd(i):
        sl = i % NR
        r = [("VMWAIT", f"W{i}")] if i >= N1 else []
        for t in range(2):
            for h2 in range(2):
                r.append(f"ds_read_b64_tr_b16 {v(wfrag(i)+4*t+2*h2,2)}, v{DA+t} offset:{sl*2048+h2*1024}")
        return r

    a(f"""
    v_lshrrev_b32 v8, 2, v0
    v_and_b32 v8, 3, v8
    v_and_b32 v9, 3, v0
    v_lshrrev_b32 v10, 4, v0
    v_and_b32 v10, 1, v10
    v_lshrrev_b32 v{VKB}, 5, v0
    v_lshl_add_u32 v12, v{VKB}, 2, v8
    v_lshlrev_b32 v12, 7, v12
    v_and_b32 v13, 1, v9
    v_lshl_add_u32 v12, v13, 5, v12
    v_lshl_add_u32 v12, v10, 4, v12
    v_lshrrev_b32 v13, 1, v9
    v_lshl_add_u32 v12, v13, 3, v12
    v_add_u32 v12, s8, v12
    v_lshrrev_b32 v13, 1, v8
    v_lshl_add_u32 v{DA}, v13, 6, v12
    v_xor_b32 v13, 1, v13
    v_lshl_add_u32 v{DA+1}, v13, 6, v12
    s_lshl_b32 s17, s6, 6
    s_lshl_b32 s13, s16, 5
    s_add_u32 s17, s17, s13
    s_lshl_b32 s18, s7, 6
    s_lshl_b32 s13, s15, 5
    s_add_u32 s18, s18, s13
    """)
    a.tag("hst")
    if OPT.get("dbgbar") == 2:
        a.ext(bstamp(9))
    a("s_barrier")
    a.ext(stamp(5))
    if OPT.get("dbgbar") == 4:
        a.ext(bstamp(1))
    for i in range(NF):
        a.ext(wload(i))
    a(f"""
    v_mov_b32 v8, 0
    v_mov_b32 v9, 1
    """)
    a.wait("hst")
    a(f"""
    s_mov_b64 exec, 1
    buffer_store_dword v9, v8, {sr(SRD_WS)}, s3 offen sc1
    s_mov_b64 exec, -1
    """)
    a.ext(stamp(6))
    if OPT.get("dbgbar") == 4:
        a.ext(bstamp(2))
    for i in range(NF, NR):
        a.ext(wload(i))
        if OPT.get("dbgbar") == 4 and i in (5, 9, 15):
            a.ext(bstamp(3 + (5, 9, 15).index(i)))
    for i in range(NP + 1):
        if i < NP:
            a.ext(trd(i))
        if OPT.get("dbgbar") == 4 and i in (2, 6, 11):
            a.ext(bstamp(6 + (2, 6, 11).index(i)))
        if i >= 1 and NR + i - 1 < N2:
            a(f"s_waitcnt lgkmcnt({4 if i < NP else 0})")
            a.ext(wload(NR + i - 1))
    a("s_waitcnt lgkmcnt(0)")
    a.ext(stamp(7))
    a(f"""
    s_lshl_b32 s13, s6, 5
    s_mul_i32 s14, s{S_WIDX}, 7
    s_add_u32 s13, s13, s14
    s_lshl_b32 s13, s13, 7
    s_add_u32 s19, s13, {FH_OFF}
    v_min_u32 v8, 6, v0
    v_lshlrev_b32 v8, 7, v8
    s_mov_b32 s77, 0x100000
    """)
    a.ext(spin("PH", [f"buffer_load_dword v9, v8, {sr(SRD_WS)}, s19 offen sc1"],
               ["v_cmp_ne_u32 vcc, 0, v9", "s_nop 3", "s_cmp_eq_u64 vcc, exec"]))
    a.L.append(("VMRESET",))
    if OPT.get("hl") == 2:
        a("buffer_inv sc1")
    a.ext(stamp(8))
    if OPT.get("dbgbar") == 3:
        a.ext(bstamp(1))
    if OPT.get("dbgbar") == 4:
        a.ext(bstamp(9))
    for i in range(DH):
        a.ext(hload(i))

    EX_, ED, EG, YR, FL = WF, WF + 8, WF + 16, WF + 24, WF + 32
    for i in range(NS):
        sl = i % DH
        if NP <= i + 1 < NS:
            a.ext(trd(i + 1))
        a.wait(f"H{i}")
        if i >= NP:
            a(f"s_waitcnt lgkmcnt({4 if i + 1 < NS else 0})")
        for t in range(2):
            for tt in range(2):
                c = "0" if i == 0 else v(acc(t, tt), 16)
                a(f"v_mfma_f32_32x32x16_bf16 {v(acc(t,tt),16)}, {v(wfrag(i)+4*t,4)}, {v(HB+8*sl+4*tt,4)}, {c}")
        if OPT.get("dbgbar") == 3 and i in (0, 3, 7, 11, 15, 19, 23, 27):
            a.ext(bstamp(2 + (0, 3, 7, 11, 15, 19, 23, 27).index(i)))
        if i + DH < NS:
            a.ext(hload(i + DH))
        if N2 + i < NS:
            a.ext(wload(N2 + i))
        if i == 20:
            a(f"""
            s_lshl_b32 s19, s18, 6
            s_add_u32 s19, s19, {FY_OFF}
            s_mov_b32 s22, {FU_OFF}
            v_lshrrev_b32 v8, 2, v0
            v_and_b32 v9, 3, v0
            v_lshlrev_b32 v8, 7, v8
            v_lshl_add_u32 v8, v9, 2, v8
            buffer_load_dword v{FL}, v8, {sr(SRD_WS)}, s19 offen sc1
            buffer_load_dword v{FL+1}, v8, {sr(SRD_WS)}, s22 offen sc1
            buffer_load_dword v{FL+2}, v8, {sr(SRD_WS)}, s22 offen offset:2048 sc1
            """)
            a.tag("F")
            a(f"""
            v_and_b32 v9, 31, v0
            v_add_u32 v9, s17, v9
            v_lshlrev_b32 v10, 4, v{VKB}
            v_add_u32 v10, s18, v10
            v_lshlrev_b32 v10, 1, v10
            v_lshl_add_u32 v{VEP}, v9, 10, v10
            v_and_b32 v12, 3, v9
            v_lshrrev_b32 v9, 2, v9
            v_lshlrev_b32 v9, 2, v9
            v_lshl_add_u32 v9, v12, 11, v9
            buffer_load_dwordx4 {v(EX_,4)}, v{VEP}, {sr(SRD_X)}, 0 offen
            buffer_load_dwordx4 {v(EX_+4,4)}, v{VEP}, {sr(SRD_X)}, 0 offen offset:16
            global_load_dwordx4 {v(ED,4)}, v10, s[{S_DS}:{S_DS+1}]
            global_load_dwordx4 {v(ED+4,4)}, v10, s[{S_DS}:{S_DS+1}] offset:16
            v_lshrrev_b32 v11, 2, v0
            v_and_b32 v12, 3, v0
            v_lshlrev_b32 v11, 12, v11
            v_lshl_add_u32 v11, v12, 4, v11
            s_lshl_b32 s13, s18, 12
            s_lshl_b32 s14, s17, 1
            s_add_u32 s13, s13, s14
            s_add_u32 s68, s13, {Y_OFF}
            s_add_u32 s69, s68, 0x10000
            s_mov_b32 s23, {GL_OFF}
            """)
    a.ext(stamp(9))
    chk = [f"v_min_u32 v12, v{FL}, v{FL+1}", f"v_min_u32 v12, v12, v{FL+2}", "v_cmp_ne_u32 vcc, 0, v12", "s_nop 3",
           "s_cmp_eq_u64 vcc, exec"]
    a.wait("F")
    a("s_mov_b32 s77, 0x100000")
    a("s_branch PY_CHK")
    a.ext(spin("PY", [f"buffer_load_dword v{FL}, v8, {sr(SRD_WS)}, s19 offen sc1",
                      f"buffer_load_dword v{FL+1}, v8, {sr(SRD_WS)}, s22 offen sc1",
                      f"buffer_load_dword v{FL+2}, v8, {sr(SRD_WS)}, s22 offen offset:2048 sc1"], chk))
    a(f"""
    buffer_load_dwordx4 {v(YR,4)}, v11, {sr(SRD_WS)}, s68 offen sc1
    buffer_load_dwordx4 {v(YR+4,4)}, v11, {sr(SRD_WS)}, s69 offen sc1
    """)
    for g in range(8):
        a(f"buffer_load_dword v{EG+g}, v9, {sr(SRD_WS)}, s23 offen sc1")
        if g < 7:
            a("s_add_u32 s23, s23, 8192")
    a(f"v_add_u32 v8, s8, v{VL16}")
    for t in range(2):
        for tt in range(2):
            own = t + 2 * tt
            for g in range(4):
                a(f"ds_write_b128 v8, {v(acc(t,tt)+4*g,4)} offset:{own*4096+g*1024}")
    a(f"""
    s_lshl_b32 s13, s{S_WIDX}, 12
    v_add_u32 v10, s13, v{VL16}
    v_add_u32 v12, 0x10000, v10
    v_lshrrev_b32 v9, 2, v0
    v_and_b32 v9, 3, v9
    v_lshl_add_u32 v9, v{VKB}, 4, v9
    v_lshlrev_b32 v9, 6, v9
    v_lshrrev_b32 v13, 4, v0
    v_and_b32 v13, 1, v13
    v_lshl_add_u32 v9, v13, 5, v9
    v_and_b32 v13, 3, v0
    v_lshl_add_u32 v9, v13, 3, v9
    v_add_u32 v9, s8, v9
    s_waitcnt lgkmcnt(0)
    s_barrier
    """)
    PB = 16
    for w in range(4):
        for g in range(4):
            base = "v10" if w < 2 else "v12"
            a(f"ds_read_b128 {v(PB+16*w+4*g,4)}, {base} offset:{(w&1)*RING2+g*1024}")
    YT = WF + 40
    a(f"""
    s_waitcnt vmcnt(8)
    ds_write_b128 v8, {v(YR,4)} offset:16384
    ds_write_b128 v8, {v(YR+4,4)} offset:17408
    """)
    for q in range(4):
        a(f"ds_read_b64_tr_b16 {v(YT+2*q,2)}, v9 offset:{16384+q*256}")
    X1, D1, Y1 = ACC, ACC + 16, ACC + 32
    a("v_mov_b32 v12, 0xffff0000")
    for i in range(8):
        a(f"""
        v_lshlrev_b32 v{X1+2*i}, 16, v{EX_+i}
        v_and_b32 v{X1+2*i+1}, v12, v{EX_+i}
        v_lshlrev_b32 v{D1+2*i}, 16, v{ED+i}
        v_and_b32 v{D1+2*i+1}, v12, v{ED+i}
        """)
    a(f"""
    s_waitcnt vmcnt(0)
    v_add_f32 v{EG}, v{EG}, v{EG+1}
    v_add_f32 v{EG+2}, v{EG+2}, v{EG+3}
    v_add_f32 v{EG+4}, v{EG+4}, v{EG+5}
    v_add_f32 v{EG+6}, v{EG+6}, v{EG+7}
    v_add_f32 v{EG}, v{EG}, v{EG+2}
    v_add_f32 v{EG+4}, v{EG+4}, v{EG+6}
    v_add_f32 v{EG}, v{EG}, v{EG+4}
    v_cvt_pk_bf16_f32 v{EG}, v{EG}, v{EG}
    v_lshlrev_b32 v{EG}, 16, v{EG}
    v_mul_f32 v{EG}, {f32(-LOG2E)}, v{EG}
    v_exp_f32 v{EG}, v{EG}
    s_nop 0
    v_add_f32 v{EG}, 1.0, v{EG}
    v_rcp_f32 v{EG}, v{EG}
    s_nop 0
    v_cvt_pk_bf16_f32 v{EG}, v{EG}, v{EG}
    v_lshlrev_b32 v{EG}, 16, v{EG}
    s_waitcnt lgkmcnt(6)
    """)
    for i in range(0, 16, 2):
        a(f"v_pk_add_f32 {v(PB+i,2)}, {v(PB+i,2)}, {v(PB+16+i,2)}")
        a(f"v_pk_add_f32 {v(PB+32+i,2)}, {v(PB+32+i,2)}, {v(PB+48+i,2)}")
    for i in range(0, 16, 2):
        a(f"v_pk_add_f32 {v(PB+i,2)}, {v(PB+i,2)}, {v(PB+32+i,2)}")
    a("s_waitcnt lgkmcnt(0)")
    for i in range(8):
        a(f"""
        v_lshlrev_b32 v{Y1+2*i}, 16, v{YT+i}
        v_and_b32 v{Y1+2*i+1}, v12, v{YT+i}
        """)
    for i in range(0, 16, 2):
        a(f"v_pk_fma_f32 {v(Y1+i,2)}, {v(X1+i,2)}, {v(D1+i,2)}, {v(Y1+i,2)}")
    for i in range(0, 16, 2):
        a(f"v_pk_add_f32 {v(Y1+i,2)}, {v(Y1+i,2)}, {v(PB+i,2)} neg_lo:[0,1] neg_hi:[0,1]")
    for i in range(0, 16, 2):
        a(f"v_pk_fma_f32 {v(PB+i,2)}, {v(Y1+i,2)}, {v(EG,2)}, {v(PB+i,2)} op_sel_hi:[1,0,1]")
    for i in range(8):
        a(f"v_cvt_pk_bf16_f32 v{X1+i}, v{PB+2*i}, v{PB+2*i+1}")
    a(f"""
    buffer_store_dwordx4 {v(X1,4)}, v{VEP}, {sr(SRD_OUT)}, 0 offen
    buffer_store_dwordx4 {v(X1+4,4)}, v{VEP}, {sr(SRD_OUT)}, 0 offen offset:16
    """)
    a.ext(stamp_end())
    a0.ext(resolve_vm(a.L))


def kwave(gemm_wg):
    sfx = "G" if gemm_wg else "S"
    ra = RA(2, 256)
    pre = Asm()
    main = Asm()
    ph2 = Asm()
    a = pre
    a(f"""
    s_setprio {OPT.get("kprio", 1)}
    s_sub_u32 s68, s{S_WIDX}, 6
    s_lshl_b32 s69, s2, 1
    s_add_u32 s69, s69, s68
    s_lshl_b32 s70, s68, 13
    s_add_u32 s70, s70, {KG_BASE}
    s_lshl_b32 s71, s69, 8
    """)
    t0 = ra(); t1 = ra(); t2 = ra(); t3 = ra()
    PR = ra(7)
    a(f"""
    v_lshlrev_b32 v{t0}, 2, v0
    v_add_u32 v{t0}, s71, v{t0}
    s_lshl_b32 s72, s69, 1
    v_mov_b32 v{t1}, s72
    """)
    for i, sb in enumerate((S_ARE, S_AIM, S_BRE, S_BIM, S_CRE, S_CIM)):
        a(f"global_load_dword v{PR+i}, v{t0}, s[{sb}:{sb+1}]")
    a(f"global_load_ushort v{PR+6}, v{t1}, s[{S_LDT}:{S_LDT+1}]")
    a(f"""
    s_cmp_lg_u32 s68, 0
    s_cbranch_scc1 K{sfx}_NOCLR
    """)
    if gemm_wg:
        a(f"""
        s_lshl_b32 s72, s{S_RB}, 6
        s_lshl_b32 s73, s{S_CB}, 1
        s_add_u32 s72, s72, s73
        s_lshl_b32 s72, s72, 7
        s_add_u32 s72, s72, {FH_OFF}
        v_lshrrev_b32 v{t0}, 1, v0
        v_and_b32 v{t1}, 1, v0
        v_lshlrev_b32 v{t0}, 12, v{t0}
        v_lshl_add_u32 v{t0}, v{t1}, 7, v{t0}
        v_add_u32 v{t0}, s72, v{t0}
        """)
    else:
        a(f"""
        s_lshl_b32 s72, s{S_XCD}, 2
        s_add_u32 s72, s72, s{S_IDX}
        s_sub_u32 s72, s72, 28
        s_lshl_b32 s72, s72, 7
        s_add_u32 s72, s72, {FU_OFF}
        v_lshlrev_b32 v{t0}, 2, v0
        v_add_u32 v{t0}, s72, v{t0}
        """)
    a(f"""
    s_lshl_b32 s72, s2, 7
    s_add_u32 s72, s72, {FY_OFF - 16}
    v_cmp_gt_u32 vcc, 4, v0
    v_lshlrev_b32 v{t1}, 2, v0
    v_add_u32 v{t1}, s72, v{t1}
    v_cndmask_b32 v{t0}, v{t1}, v{t0}, vcc
    v_mov_b32 v{t1}, 0
    s_mov_b64 exec, 0xff
    buffer_store_dword v{t1}, v{t0}, {sr(SRD_WS)}, 0 offen sc1
    s_mov_b64 exec, -1
    K{sfx}_NOCLR:
    """)

    WR = ra(8)
    RD = ra(2)
    a(f"""
    v_lshrrev_b32 v{t0}, 1, v0
    v_and_b32 v{t1}, 7, v{t0}
    v_lshlrev_b32 v{t0}, 8, v{t0}
    v_and_b32 v{t2}, 1, v0
    v_lshl_add_u32 v{t0}, v{t2}, 3, v{t0}
    v_add_u32 v{t0}, s70, v{t0}
    """)
    for b in range(8):
        a(f"""
        v_xor_b32 v{t2}, {b}, v{t1}
        v_lshl_add_u32 v{WR+b}, v{t2}, 4, v{t0}
        """)
    a(f"""
    v_and_b32 v{t0}, 15, v0
    v_lshrrev_b32 v{t1}, 4, v0
    """)
    for p in range(2):
        a(f"""
        v_add_u32 v{t2}, {4*p}, v{t1}
        v_xor_b32 v{t3}, v{t2}, v{t0}
        v_lshlrev_b32 v{t3}, 4, v{t3}
        v_lshl_add_u32 v{t3}, v{t2}, 8, v{t3}
        v_add_u32 v{RD+p}, s70, v{t3}
        """)
    TA0 = ra(); TA1 = ra(); TA2 = ra(); TA3 = ra()
    LP = ra(12)
    a(f"""
    v_and_b32 v{t2}, 1, v{t1}
    v_lshrrev_b32 v{t3}, 1, v{t1}
    v_lshlrev_b32 v{TA0}, 5, v{t0}
    v_lshl_add_u32 v{TA0}, v{t2}, 4, v{TA0}
    v_lshl_add_u32 v{TA0}, v{t3}, 9, v{TA0}
    v_lshrrev_b32 v{LP}, 2, v{TA0}
    v_cvt_f32_u32 v{LP}, v{LP}
    v_add_u32 v{TA0}, s70, v{TA0}
    v_add_f32 v{LP+1}, 1.0, v{LP}
    v_add_f32 v{LP+2}, 2.0, v{LP}
    v_add_f32 v{LP+3}, 2.0, v{LP+1}
    v_cmp_gt_u32 vcc, 2, v{t1}
    v_lshlrev_b32 v{TA1}, 4, v{t0}
    v_lshlrev_b32 v{TA2}, 3, v{t0}
    v_cndmask_b32 v{TA1}, v{TA2}, v{TA1}, vcc
    v_lshl_add_u32 v{TA1}, v{t1}, 8, v{TA1}
    v_add_u32 v{TA1}, s70, v{TA1}
    v_add_u32 v{TA1}, 1024, v{TA1}
    v_mov_b32 v{TA2}, 128
    v_cndmask_b32 v{TA2}, v{TA2}, 8, vcc
    v_add_u32 v{TA2}, v{TA2}, v{TA1}
    v_lshlrev_b32 v{TA3}, 2, v{t0}
    v_lshl_add_u32 v{TA3}, v{t1}, 8, v{TA3}
    v_add_u32 v{TA3}, s70, v{TA3}
    """)
    a(f"""
    v_lshlrev_b32 v{t2}, 7, v{t1}
    v_add_u32 v{t2}, 256, v{t2}
    v_lshlrev_b32 v{t3}, 8, v{t1}
    v_cndmask_b32 v{t2}, v{t3}, v{t2}, vcc
    v_lshl_add_u32 v{t2}, v{t0}, 3, v{t2}
    v_cvt_f32_u32 v{LP+4}, v{t2}
    v_mov_b32 v{t2}, 4.0
    v_cndmask_b32 v{t2}, v{t2}, 2.0, vcc
    v_mov_b32 v{t3}, {f32(128.0)}
    v_cndmask_b32 v{t3}, v{t3}, 4.0, vcc
    v_add_f32 v{LP+5}, v{LP+4}, v{t2}
    v_add_f32 v{LP+6}, v{LP+4}, v{t3}
    v_add_f32 v{LP+7}, v{LP+6}, v{t2}
    v_lshlrev_b32 v{t2}, 9, v{t1}
    v_lshl_add_u32 v{t2}, v{t0}, 3, v{t2}
    v_add_u32 v{t2}, 1024, v{t2}
    v_cvt_f32_u32 v{LP+8}, v{t2}
    v_add_f32 v{LP+9}, {f32(128.0)}, v{LP+8}
    v_add_f32 v{LP+10}, {f32(256.0)}, v{LP+8}
    v_add_f32 v{LP+11}, {f32(384.0)}, v{LP+8}
    """)
    EX = ra(10)
    a(f"""
    s_sub_u32 s72, s70, {4*17024}
    v_lshlrev_b32 v{t0}, 3, v0
    v_cvt_f32_u32 v{t1}, v{t0}
    v_cmp_gt_u32 vcc, 16, v0
    v_add_u32 v{EX+8}, s70, v{t0}
    v_lshlrev_b32 v{t0}, 2, v{t0}
    v_add_u32 v{t0}, s70, v{t0}
    v_lshlrev_b32 v{EX+9}, 2, v0
    v_add_u32 v{EX+9}, s70, v{EX+9}
    v_add_u32 v{EX+9}, 2048, v{EX+9}
    """)
    for kk in range(4):
        e0, e1 = EX + 2 * kk, EX + 2 * kk + 1
        a(f"""
        v_add_f32 v{t2}, 1.0, v{t1}
        v_cvt_pk_bf16_f32 v{t3}, v{t1}, v{t2}
        v_add_f32 v{t1}, 2.0, v{t1}
        v_and_b32 v{e0}, 0xffff, v{t3}
        v_lshrrev_b32 v{e1}, 16, v{t3}
        v_lshl_add_u32 v{e0}, v{e0}, 2, s72
        v_lshl_add_u32 v{e1}, v{e1}, 2, s72
        v_add_u32 v{t2}, {8*kk}, v{t0}
        v_add_u32 v{t3}, {8*kk+4}, v{t0}
        v_cndmask_b32 v{e0}, v{e0}, v{t2}, vcc
        v_cndmask_b32 v{e1}, v{e1}, v{t3}, vcc
        """)
    a(f"""
    s_waitcnt vmcnt(0)
    s_cmp_lg_u32 s68, 0
    s_cbranch_scc1 K{sfx}_NOADD
    s_and_b32 s72, s2, 7
    s_lshl_b32 s72, s72, 5
    v_mov_b32 v{t0}, s72
    v_mov_b32 v{t1}, 1
    s_mov_b64 exec, 1
    global_atomic_add v{t0}, v{t1}, s[{S_DBG}:{S_DBG+1}] sc1
    s_mov_b64 exec, -1
    K{sfx}_NOADD:
    """)

    a = main
    MASK = ra()
    DT = ra()
    PP = ra(12)
    a(f"v_mov_b32 v{MASK}, 0xffff0000")
    for i in range(6):
        a(f"v_lshlrev_b32 v{PP+2*i}, 16, v{PR+i}")
        a(f"v_and_b32 v{PP+2*i+1}, v{MASK}, v{PR+i}")
    x = PR + 6
    a(f"""
    v_lshlrev_b32 v{x}, 16, v{x}
    v_mul_f32 v{t0}, {f32(LOG2E_HI)}, v{x}
    s_mov_b32 s72, {f32(LOG2E_HI)}
    v_fma_f32 v{t1}, v{x}, s72, -v{t0}
    v_fmac_f32 v{t1}, {f32(LOG2E_LO)}, v{x}
    v_exp_f32 v{t0}, v{t0}
    v_mul_f32 v{t1}, {f32(LN2)}, v{t1}
    v_fmac_f32 v{t0}, v{t0}, v{t1}
    v_cvt_pk_bf16_f32 v{t0}, v{t0}, v{t0}
    v_lshlrev_b32 v{DT}, 16, v{t0}
    """)
    A2, TH, Br, Bi, Cr, Ci = (PP + 2 * i for i in range(6))
    for m in range(2):
        a(f"""
        v_mul_f32 v{A2+m}, v{DT}, v{A2+m}
        v_mul_f32 v{TH+m}, v{DT}, v{TH+m}
        v_mul_f32 v{Br+m}, v{DT}, v{Br+m}
        v_mul_f32 v{Bi+m}, v{DT}, v{Bi+m}
        v_mul_f32 v{A2+m}, {f32(LOG2E)}, v{A2+m}
        v_mul_f32 v{TH+m}, {f32(INV2PI)}, v{TH+m}
        """)
    W0 = ra(4); W1 = ra(4)
    for m in range(2):
        a(f"""
        v_mul_f32 v{W0+2*m}, v{Cr+m}, v{Br+m}
        v_mul_f32 v{W0+2*m+1}, v{Cr+m}, v{Bi+m}
        v_fma_f32 v{W0+2*m}, -v{Ci+m}, v{Bi+m}, v{W0+2*m}
        v_fmac_f32 v{W0+2*m+1}, v{Ci+m}, v{Br+m}
        v_sub_f32 v{W0+2*m+1}, 0, v{W0+2*m+1}
        """)
    SIG = ra(); WM = ra(); CE = ra()
    a(f"""
    v_max_f32 v{SIG}, v{A2}, v{A2+1}
    v_max3_f32 v{WM}, |v{W0}|, |v{W0+1}|, |v{W0+2}|
    v_max_f32 v{WM}, |v{W0+3}|, v{WM}
    s_nop 1
    """)
    for ctl in ("quad_perm:[1,0,3,2]", "quad_perm:[2,3,0,1]", "row_half_mirror", "row_mirror"):
        a(f"""
        v_max_f32_dpp v{SIG}, v{SIG}, v{SIG} {ctl} row_mask:0xf bank_mask:0xf
        v_max_f32_dpp v{WM}, v{WM}, v{WM} {ctl} row_mask:0xf bank_mask:0xf
        s_nop 0
        """)
    a(f"""
    v_readlane_b32 s72, v{SIG}, 0
    v_readlane_b32 s73, v{SIG}, 16
    v_readlane_b32 s74, v{SIG}, 32
    v_readlane_b32 s75, v{SIG}, 48
    v_readlane_b32 s6, v{WM}, 0
    v_readlane_b32 s7, v{WM}, 16
    v_readlane_b32 s8, v{WM}, 32
    v_readlane_b32 s9, v{WM}, 48
    v_max_f32 v{SIG}, s72, v{SIG}
    v_max_f32 v{SIG}, s73, v{SIG}
    v_max_f32 v{SIG}, s74, v{SIG}
    v_max_f32 v{SIG}, s75, v{SIG}
    v_max_f32 v{WM}, s6, v{WM}
    v_max_f32 v{WM}, s7, v{WM}
    v_max_f32 v{WM}, s8, v{WM}
    v_max_f32 v{WM}, s9, v{WM}
    v_sub_f32 v{A2}, v{A2}, v{SIG}
    v_sub_f32 v{A2+1}, v{A2+1}, v{SIG}
    v_frexp_exp_i32_f32 v{CE}, v{WM}
    v_sub_u32 v{t0}, 14, v{CE}
    v_subrev_u32 v{CE}, 29, v{CE}
    """)
    for i in range(4):
        a(f"v_ldexp_f32 v{W0+i}, v{W0+i}, v{t0}")

    def cexp(l):
        r = ra(6)
        for m in range(2):
            a(f"""
            v_mul_f32 v{t0}, {f32(float(l))}, v{A2+m}
            v_mul_f32 v{t1}, {f32(float(l))}, v{TH+m}
            v_exp_f32 v{t0}, v{t0}
            v_fract_f32 v{t1}, v{t1}
            v_cos_f32 v{t2}, v{t1}
            v_sin_f32 v{t3}, v{t1}
            s_nop 0
            v_mul_f32 v{r+2*m}, v{t0}, v{t2}
            v_mul_f32 v{r+2*m+1}, v{t0}, v{t3}
            v_sub_f32 v{r+4+m}, 0, v{r+2*m+1}
            """)
        return r

    def cmul(d, x_, b, conj=False):
        for m in range(2):
            br, bi, nbi = b + 2 * m, b + 2 * m + 1, b + 4 + m
            if conj:
                bi, nbi = nbi, bi
            a(f"""
            v_mul_f32 v{d+2*m}, v{x_+2*m}, v{br}
            v_mul_f32 v{d+2*m+1}, v{x_+2*m}, v{bi}
            v_fmac_f32 v{d+2*m}, v{x_+2*m+1}, v{nbi}
            v_fmac_f32 v{d+2*m+1}, v{x_+2*m+1}, v{br}
            """)

    def neg(b):
        for m in range(2):
            a(f"v_sub_f32 v{b+4+m}, 0, v{b+2*m+1}")

    def scale(d, x_):
        for i in range(4):
            a(f"v_mul_f32 v{d+i}, {f32(32768.0)}, v{x_+i}")

    VB = [ra(32, 4), ra(32, 4), ra(32, 4), ra(18, 4)]
    CH0 = ra(0, 4)

    def put(batch, row, r):
        h = VB[batch] + 2 * row
        if r is None:
            a(f"v_mov_b32 v{h}, 0x7800\nv_mov_b32 v{h+1}, 0x7800")
        else:
            a(f"""
            v_cvt_pk_f16_f32 v{h}, v{r}, v{r+1}
            v_cvt_pk_f16_f32 v{h+1}, v{r+2}, v{r+3}
            """)

    E8 = cexp(8)
    cur, nxt = W0, W1
    for c in range(16):
        if c < 15:
            cmul(nxt, cur, E8, conj=True)
        put(0, c, cur)
        cur, nxt = nxt, cur
    E1 = cexp(1)
    Q1 = cexp(128)
    Q8 = cexp(1024)
    P = {}
    P[1] = ra(4)
    scale(P[1], E1)
    for j in range(2, 8):
        P[j] = ra(6 if j == 4 else 4)
        cmul(P[j], P[j - 1], E1)
    put(1, 0, None)
    for j in range(1, 8):
        put(1, j, P[j])
    scale(W0, Q1)
    put(1, 8, W0)
    for j in range(1, 8):
        cmul(W0, P[j], Q1)
        put(1, 8 + j, W0)
    Q = {1: Q1, 8: Q8}
    for j in range(2, 8):
        Q[j] = {2: E1, 3: PP + 4}[j] if j < 4 else P[2 * (j - 4) + 1]
        cmul(Q[j], Q[j - 1], Q1)
    neg(P[4]); neg(Q[2]); neg(Q[3])
    for qi, j in enumerate((2, 3)):
        scale(W0, Q[j])
        put(2, 4 * qi, W0)
        for r in range(1, 4):
            cmul(W0, P[2 * r], Q[j])
            put(2, 4 * qi + r, W0)
    for aa in range(4):
        scale(W0, Q[4 + aa])
        put(2, 8 + 2 * aa, W0)
        cmul(W0, Q[4 + aa], P[4])
        put(2, 8 + 2 * aa + 1, W0)
    QS = E8
    scale(QS, Q8)
    neg(QS)
    put(3, 0, QS)
    for j in range(1, 8):
        cmul(W0, Q[j], QS)
        put(3, j, W0)
    cmul(W0, Q8, QS)
    put(3, 8, W0)
    for i in range(12):
        a(f"v_mul_f32 v{LP+i}, v{SIG}, v{LP+i}")
    for i in range(12):
        a(f"v_exp_f32 v{LP+i}, v{LP+i}")

    a = ph2
    YF = CH0
    AC = CH0 + 32
    assert AC + 12 <= ra.p

    def wr(batch, nrows):
        for row in range(nrows):
            a(f"ds_write_b64 v{WR+(row&7)}, {v(VB[batch]+2*row,2)} offset:{(row>>3)*128}")

    def fetch(F):
        for ks in range(8):
            a(f"ds_read_b128 {v(F+4*ks,4)}, v{RD+(ks&1)} offset:{(ks>>1)*2048}")

    def mfmas(tile, XF):
        for ks in range(8):
            c = "0" if ks == 0 else v(AC + 4 * tile, 4)
            a(f"v_mfma_f32_16x16x32_f16 {v(AC+4*tile,4)}, {v(XF+4*ks,4)}, {v(YF+4*ks,4)}, {c}")

    wr(0, 16); fetch(YF)
    wr(1, 16); fetch(VB[0])
    wr(2, 16); fetch(VB[1])
    a("s_waitcnt lgkmcnt(15)")
    mf0 = len(a.L)
    wr(3, 9); fetch(VB[2])
    tail = a.L[mf0:]
    del a.L[mf0:]
    m = Asm()
    sv, a = a, m
    mfmas(0, VB[0])
    a = sv
    for i in range(8):
        a.ext(tail[2 * i:2 * i + 2])
        a(m.L[i])
    a.ext(tail[16:])
    a("s_waitcnt lgkmcnt(15)")
    mfmas(1, VB[1])
    a("s_waitcnt lgkmcnt(0)")
    mfmas(2, VB[2])
    a("s_nop 3")
    for i in range(12):
        a(f"v_mul_f32 v{AC+i}, v{AC+i}, v{LP+i}")
    for i in range(12):
        a(f"v_ldexp_f32 v{AC+i}, v{AC+i}, v{CE}")
    a(f"ds_write_b128 v{TA0}, {v(AC,4)}")
    a(f"ds_write_b64 v{TA1}, {v(AC+4,2)}")
    a(f"ds_write_b64 v{TA2}, {v(AC+6,2)}")
    for r in range(4):
        a(f"ds_write_b32 v{TA3}, v{AC+8+r} offset:{2048+64*r}")
    G0 = VB[0]
    OUT = VB[1]
    for i in range(8):
        a(f"ds_read_b32 v{G0+i}, v{EX+i}")
    a(f"""
    ds_read_b64 {v(G0+8,2)}, v{EX+8} offset:1536
    ds_read_b32 v{G0+10}, v{EX+8} offset:1544
    ds_read2_b32 {v(G0+12,2)}, v{EX+9} offset0:0 offset1:1
    ds_read2_b32 {v(G0+14,2)}, v{EX+9} offset0:64 offset1:65
    v_lshlrev_b32 v{t0}, 4, v0
    v_add_u32 v{t0}, s70, v{t0}
    v_and_b32 v{t1}, 3, v0
    v_lshlrev_b32 v{t1}, 4, v{t1}
    v_add_u32 v{t1}, s70, v{t1}
    v_mov_b32 v{OUT+16}, 0
    v_mov_b32 v{OUT+17}, 0
    v_mov_b32 v{OUT+18}, 0
    v_mov_b32 v{OUT+19}, 0
    s_mov_b32 s72, 0xaaaaaaaa
    s_mov_b32 s73, 0xaaaaaaaa
    ds_write_b128 v{t1}, {v(OUT+16,4)} offset:{KARR}
    s_waitcnt lgkmcnt(0)
    """)
    for k in range(4):
        a(f"v_cvt_pk_bf16_f32 v{OUT+k}, v{G0+2*k}, v{G0+2*k+1}")
    a(f"""
    v_cvt_pk_bf16_f32 v{OUT+4}, v{G0+8}, v{G0+8}
    v_cvt_pk_bf16_f32 v{OUT+5}, v{G0+8}, v{G0+9}
    v_cvt_pk_bf16_f32 v{OUT+6}, v{G0+9}, v{G0+9}
    v_cvt_pk_bf16_f32 v{OUT+7}, v{G0+10}, v{G0+10}
    """)
    for it in (2, 3):
        T0, T1 = G0 + 8 + 2 * it, G0 + 9 + 2 * it
        o = OUT + 4 * it
        a(f"""
        v_cndmask_b32 v{t2}, v{T0}, v{T1}, s[72:73]
        v_cvt_pk_bf16_f32 v{o}, v{T0}, v{T0}
        v_cvt_pk_bf16_f32 v{o+1}, v{T0}, v{T0}
        v_cvt_pk_bf16_f32 v{o+2}, v{t2}, v{T1}
        v_cvt_pk_bf16_f32 v{o+3}, v{T1}, v{T1}
        """)
    for it in range(4):
        a(f"ds_write_b128 v{t0}, {v(OUT+4*it,4)} offset:{KARR+64+1024*it}")
    if OPT.get("dbgk"):
        a(f"""
        s_lshl_b32 s72, s69, 12
        s_add_u32 s72, s72, {KX_OFF}
        v_lshlrev_b32 v{t0}, 4, v0
        """)
        for it in range(4):
            a(f"buffer_store_dwordx4 {v(OUT+4*it,4)}, v{t0}, {sr(SRD_WS)}, s72 offen offset:{1024*it}")
    a("s_waitcnt lgkmcnt(0)")

    out = list(pre.L)
    out.extend(stamp(1))
    if gemm_wg:
        per = OPT.get("kper", 125)
        first = OPT.get("kfirst", 100)
        p2a = OPT.get("kp2a", 0)
        p2b = OPT.get("kp2b", 90)
        pos = min(first, len(main.L))
        out.extend(main.L[:pos])
        for sidx in range(8):
            out.extend(bstamp(1 + sidx))
            out.append("s_barrier")
            if sidx < 6:
                end = len(main.L) if sidx == 5 else min(pos + per, len(main.L))
                out.extend(main.L[pos:end])
                pos = end
            elif sidx == 6:
                out.extend(ph2.L[:p2a])
            else:
                out.extend(ph2.L[p2a:])
        out.extend(stamp(2))
        out.extend(bstamp(9))
        out.append("s_barrier")
    else:
        out.extend(main.L)
        out.extend(ph2.L)
        out.append("s_barrier")
        out.extend(stamp(2))
        out.append("s_barrier")
    out.append("s_mov_b32 s6, s68")
    out.append("s_branch L_CONVB")
    return out


def lwave(gemm_wg):
    sfx = "G" if gemm_wg else "S"
    a = Asm()
    XV, WV, VL16, VC = 8, 12, 2, 16
    t0, t1, t2 = 3, 4, 5
    DUM = 224
    a(f"""
    s_setprio 3
    s_sub_u32 s6, s{S_WIDX}, 4
    s_lshl_b32 s7, s2, 1
    s_add_u32 s7, s7, s6
    v_lshlrev_b32 v{VL16}, 4, v0
    """)

    SW = 12

    def grp(st, g):
        sl = st % 3
        if g in (1, 5):
            j = 0 if g == 1 else 1
            L = [f"s_add_u32 m0, s{10+j}, {sl*SLOT}", f"s_add_u32 s22, s{8+j}, {st*128}"]
            L += [f"buffer_load_dwordx4 v{XV+i}, {sr(SRD_X)}, s22 offen offset:{1024*i} lds" for i in range(4)]
        else:
            j = 0 if g == 0 else g - 1
            L = [f"s_add_u32 m0, s{72+j}, {sl*SLOT}", f"s_add_u32 s22, s{68+j}, {st*64*3584}"]
            L += [f"buffer_load_dwordx4 v{WV+i}, {sr(SW)}, s22 offen offset:{1024*i} lds" for i in range(4)]
        return L

    def pref(st):
        L = [f"s_add_u32 s22, s68, {st*64*3584}"]
        L += [f"buffer_load_dwordx4 {v(DUM+4*i,4)}, v{WV+i}, {sr(SW)}, s22 offen offset:{1024*i}" for i in range(4)]
        L += [f"s_add_u32 s22, s23, {st*128}"]
        L += [f"buffer_load_dwordx4 {v(DUM+16+4*i,4)}, v{XV+i}, {sr(SRD_X)}, s22 offen offset:{1024*i}" for i in range(2)]
        return L

    wdpf_pos = [0]

    def wd_pf(n):
        L = []
        if wdpf_pos[0] == 0:
            L += [f"s_lshl_b32 s17, s{S_IDX}, 1", "s_add_u32 s17, s17, s6", f"s_mul_i32 s17, s17, {28*1024}"]
        for _ in range(n):
            i = wdpf_pos[0]
            if i >= 28:
                break
            if i % 4 == 0 and i:
                L.append("s_add_u32 s17, s17, 4096")
            L.append(f"buffer_load_dwordx4 {v(DUM+4*(i%4),4)}, v{VL16}, {sr(SRD_WD)}, s17 offen offset:{1024*(i%4)}")
            wdpf_pos[0] += 1
        return L

    cnt_ld = f"global_load_dword v{VC}, v{t0}, s[{S_DBG}:{S_DBG+1}] sc1"
    cnt_chk = [f"v_cmp_le_u32 vcc, 32, v{VC}", "s_nop 3", "s_cmp_eq_u64 vcc, exec"]
    fu_ld = f"buffer_load_dword v{VC+1}, v{t1}, {sr(SRD_WS)}, s16 offen sc1"
    fu_chk = [f"v_cmp_ne_u32 vcc, 0, v{VC+1}", "s_nop 3", "s_cmp_eq_u64 vcc, exec"]

    def poll_setup():
        a(f"""
        v_and_b32 v{t0}, 7, v0
        v_lshlrev_b32 v{t0}, 5, v{t0}
        v_lshrrev_b32 v{t1}, 2, v0
        v_and_b32 v{t1}, 3, v{t1}
        v_lshlrev_b32 v{t1}, 7, v{t1}
        v_and_b32 v{t2}, 3, v0
        v_lshl_add_u32 v{t1}, v{t2}, 2, v{t1}
        s_lshr_b32 s16, s7, 6
        s_lshl_b32 s16, s16, 9
        s_add_u32 s16, s16, {FU_OFF}
        s_mov_b32 s77, 0x100000
        """)

    def wd_load():
        VD0, VD1 = 8, 9
        a(f"""
        v_lshrrev_b32 v10, 3, v0
        v_and_b32 v11, 7, v0
        v_lshrrev_b32 v12, 1, v10
        v_and_b32 v12, 1, v12
        v_lshlrev_b32 v12, 2, v12
        v_xor_b32 v11, v11, v12
        v_lshlrev_b32 v{VD0}, 10, v10
        v_lshl_add_u32 v{VD0}, v11, 4, v{VD0}
        v_add_u32 v{VD1}, {8192-1024}, v{VD0}
        s_and_b32 s8, s{S_IDX}, 7
        s_lshr_b32 s13, s{S_IDX}, 3
        s_lshl_b32 s13, s13, 1
        s_add_u32 s11, s8, s13
        s_mul_i32 s11, s11, 7
        s_lshr_b32 s11, s11, 1
        s_cmp_ge_u32 s11, 28
        s_cselect_b32 s13, 28, 0
        s_sub_u32 s11, s11, s13
        s_lshl_b32 s8, s8, 7
        s_mul_i32 s9, s6, {56*16384}
        s_add_u32 s9, s9, s8
        s_lshl_b32 s10, s6, 16
        """)
        for i in range(OPT.get("n1", 12)):
            a(f"""
            s_waitcnt vmcnt({OPT.get("thr", 8)})
            s_lshl_b32 s12, s11, 14
            s_add_u32 m0, s10, {i*2048}
            s_add_u32 s12, s12, s9
            buffer_load_dwordx4 v{VD0}, {sr(SRD_WD)}, s12 offen lds
            s_add_u32 s13, s12, {28*16384}
            buffer_load_dwordx4 v{VD1}, {sr(SRD_WD)}, s12 offen offset:1024 lds
            s_add_u32 m0, s10, {RING2 + i*2048}
            s_add_u32 s11, s11, 1
            buffer_load_dwordx4 v{VD0}, {sr(SRD_WD)}, s13 offen lds
            s_cmp_ge_u32 s11, 28
            s_cselect_b32 s11, 0, s11
            buffer_load_dwordx4 v{VD1}, {sr(SRD_WD)}, s13 offen offset:1024 lds
            """)

    def u_load():
        a(f"""
        s_mul_i32 s18, s6, {USZ}
        s_add_u32 s18, s18, {U_BASE}
        s_lshl_b32 s17, s7, 12
        s_add_u32 s17, s17, {UT_OFF}
        """)
        for r in range(4):
            a(f"""
            s_add_u32 m0, s18, {r*UPITCH + 112}
            s_nop 0
            buffer_load_dwordx4 v{VL16}, {sr(SRD_WS)}, s17 offen sc1 lds
            s_add_u32 s17, s17, 1024
            """)
        a(f"""
        v_mov_b32 v20, 0
        v_mov_b32 v21, 0
        v_mov_b32 v22, 0
        v_mov_b32 v23, 0
        v_and_b32 v{t2}, 7, v0
        v_lshrrev_b32 v6, 3, v0
        v_and_b32 v6, 3, v6
        v_min_u32 v{t2}, 6, v{t2}
        v_mul_u32_u24 v6, {UPITCH}, v6
        v_lshl_add_u32 v{t2}, v{t2}, 4, v6
        v_add_u32 v{t2}, s18, v{t2}
        ds_write_b128 v{t2}, v[20:23]
        """)

    if gemm_wg:
        a(f"""
        v_lshrrev_b32 v{t0}, 3, v0
        v_and_b32 v{t1}, 7, v0
        v_lshrrev_b32 v{t2}, 1, v{t0}
        v_xor_b32 v{t1}, v{t1}, v{t2}
        v_lshlrev_b32 v{t0}, 10, v{t0}
        """)
        for i in range(4):
            a(f"""
            v_xor_b32 v{t2}, {4*(i&1)}, v{t1}
            v_lshl_add_u32 v{XV+i}, v{t2}, 4, v{t0}
            v_add_u32 v{XV+i}, {7168*i}, v{XV+i}
            """)
        a(f"""
        v_lshrrev_b32 v{t0}, 4, v0
        v_and_b32 v{t1}, 15, v0
        v_lshlrev_b32 v{t2}, 2, v{t0}
        v_xor_b32 v{t1}, v{t1}, v{t2}
        v_mul_u32_u24 v{t0}, 3584, v{t0}
        v_lshl_add_u32 v{WV}, v{t1}, 4, v{t0}
        """)
        for i in range(1, 4):
            a(f"v_add_u32 v{WV+i}, {(4*3584-1024)*i}, v{WV}")
        a(f"""
        s_cmp_eq_u32 s6, 0
        s_cselect_b32 s{SW}, s{SRD_WG}, s{SRD_WU}
        s_cselect_b32 s{SW+1}, s{SRD_WG+1}, s{SRD_WU+1}
        s_mov_b32 s{SW+2}, {512*1792*2}
        s_mov_b32 s{SW+3}, 0x00020000
        s_and_b32 s22, s{S_IDX}, 3
        s_lshl_b32 s23, s{S_CB}, 8
        s_lshl_b32 s16, s6, 14
        s_add_u32 s16, s16, 16384
        """)
        for j in range(4):
            a(f"""
            s_add_u32 s17, s22, {j}
            s_and_b32 s17, s17, 3
            s_mul_i32 s{68+j}, s17, {16*3584}
            s_add_u32 s{68+j}, s{68+j}, s23
            s_lshl_b32 s{72+j}, s17, 12
            s_add_u32 s{72+j}, s{72+j}, s16
            """)
        a(f"""
        s_lshr_b32 s22, s{S_IDX}, 2
        s_and_b32 s17, s22, 1
        s_lshl_b32 s17, s17, 1
        s_add_u32 s17, s17, s6
        s_lshl_b32 s16, s{S_RB}, 17
        s_lshl_b32 s8, s17, 15
        s_add_u32 s8, s8, s16
        s_lshl_b32 s10, s17, 12
        s_xor_b32 s17, s17, 2
        s_lshl_b32 s9, s17, 15
        s_add_u32 s9, s9, s16
        s_lshl_b32 s11, s17, 12
        s_lshl_b32 s22, s22, 1
        s_add_u32 s22, s22, s6
        s_and_b32 s22, s22, 7
        s_lshl_b32 s23, s22, 14
        s_add_u32 s23, s23, s16
        """)
        scheds = [
            {-1: "S0 S1 S2 R0 P3 P4", 0: "R1 P5 P6", 1: "R2 P7 S3", 2: "R3 S4 R4", 3: "S5 R5", 4: "S6 R6", 5: "S7 R7", 7: "W28"},
            {-1: "S0 S1 S2 R0 R1", 0: "P3 P4 R2", 1: "P5 P6 P7 S3 R3", 2: "S4 R4", 3: "S5 R5", 4: "S6 R6", 5: "S7 R7", 7: "W28"},
            {-1: "S0 S1 R0 S2 P3 R1", 0: "P4 P5 R2", 1: "P6 P7 S3 R3", 2: "S4 R4", 3: "S5 R5", 4: "S6 R6", 5: "S7 R7", 7: "W28"},
            {-1: "S0 S1 S2 P3 P4 P5 R0", 0: "P6 P7 R1 R2", 1: "S3 R3", 2: "S4 R4", 3: "S5 R5", 4: "S6 R6", 5: "S7 R7", 7: "W28"},
            {-1: "S0 R0 S1 S2 P3", 0: "R1 P4 P5", 1: "R2 P6 P7 S3", 2: "R3 S4 R4", 3: "S5 R5", 4: "S6 R6", 5: "S7 R7", 7: "W28"},
        ]
        sched = dict(scheds[OPT.get("lsched", 0)])
        wp = OPT.get("wp", 0)
        if wp == 1:
            sched[7] = ""
            for k in (3, 4, 5):
                sched[k] += " W10"
        elif wp == 2:
            sched[7] = ""
        elif wp == 3:
            sched[7] = ""
            sched[5] += " W28"

        def issue(k):
            for tok in sched.get(k, "").split():
                st = int(tok[1:])
                if tok[0] == "S":
                    a.ext(grp(st, 0) + grp(st, 1))
                elif tok[0] == "R":
                    for g in (2, 5, 3, 4):
                        a.ext(grp(st, g))
                    a.tag(f"st{st}")
                elif tok[0] == "P":
                    a.ext(pref(st))
                elif tok[0] == "W":
                    a.ext(wd_pf(st))
        issue(-1)
        a.ext(stamp(1))
        poll_setup()
        for sidx in range(8):
            a.wait(f"st{sidx}")
            a.ext(bstamp(1 + sidx))
            a("s_barrier")
            if sidx in (0, 3):
                a.ext(stamp(2 + (0, 3).index(sidx)))
            if sidx == 7:
                a.wait("cnt")
                a(f"s_branch PC{sfx}_CHK")
                a.ext(spin(f"PC{sfx}", [cnt_ld], cnt_chk))
                a.ext(spin(f"PU{sfx}", [fu_ld], fu_chk))
                a.ext(stamp(4))
                u_load()
                a.tag("u")
            issue(sidx)
            if sidx == 4:
                a(cnt_ld)
                a.tag("cnt")
        a.wait("u")
        a("s_waitcnt lgkmcnt(0)")
        a.ext(stamp(5))
        a.ext(bstamp(9))
        a("s_barrier")
    else:
        poll_setup()
        a("s_barrier")
        a.ext(spin(f"PC{sfx}", [cnt_ld], cnt_chk))
        a.ext(spin(f"PU{sfx}", [fu_ld], fu_chk))
        u_load()
        a.tag("u")
        a.ext(wd_pf(28))
        a.wait("u")
        a("s_waitcnt lgkmcnt(0)")
        a.ext(stamp(5))
        a("s_barrier")
    a("s_branch L_CONVA")
    return resolve_vm(a.L)


def conv(a, partB):
    KA, UA, VL16, YA = 2, 3, 4, 5
    qs, outq = ([5, 6, 7], [6, 7]) if partB else ([0, 1, 2, 3, 4, 5], [0, 1, 2, 3, 4, 5])
    a.ext(stamp(6))
    a(f"""
    s_setprio 0
    s_lshl_b32 s7, s2, 1
    s_add_u32 s7, s7, s6
    s_lshl_b32 s8, s6, 13
    s_add_u32 s10, s8, {KG_BASE}
    s_add_u32 s8, s8, {KG_BASE + KARR}
    s_mul_i32 s9, s6, {USZ}
    s_add_u32 s9, s9, {U_BASE}
    """)
    if partB:
        a(f"""
        s_lshl_b32 s10, s6, 10
        s_add_u32 s10, s10, {YB_BASE}
        """)
    a(f"""
    v_lshrrev_b32 v6, 2, v0
    v_and_b32 v6, 3, v6
    v_and_b32 v7, 3, v0
    v_lshrrev_b32 v8, 4, v0
    v_and_b32 v8, 1, v8
    v_lshrrev_b32 v9, 5, v0
    v_lshlrev_b32 v{KA}, 5, v8
    v_lshl_add_u32 v{KA}, v7, 3, v{KA}
    v_lshl_add_u32 v{KA}, v9, 6, v{KA}
    v_lshlrev_b32 v10, 3, v6
    v_sub_u32 v{KA}, v{KA}, v10
    v_add_u32 v{KA}, s8, v{KA}
    v_add_u32 v{KA}, 32, v{KA}
    v_mul_u32_u24 v{UA}, {UPITCH}, v7
    v_lshrrev_b32 v10, 2, v0
    v_and_b32 v10, 7, v10
    v_sub_u32 v10, v10, v9
    v_lshlrev_b32 v10, 4, v10
    v_add_u32 v{UA}, v{UA}, v10
    v_add_u32 v{UA}, s9, v{UA}
    v_add_u32 v{UA}, 16, v{UA}
    """)
    qmax = max(qs)
    nst = 4 * qmax + 4
    NU = 4
    UBUF = 8
    KT = 24
    ACC = KT + 4 * nst
    assert ACC + 16 * len(qs) <= 256

    def acc(q):
        return ACC + 16 * qs.index(q)

    def rd(i):
        tau = 4 * qmax - i
        return [f"ds_read_b128 {v(UBUF+4*(i%NU),4)}, v{UA} offset:{32*(tau+3)}",
                f"ds_read_b64_tr_b16 {v(KT+4*i,2)}, v{KA} offset:{128*i+32}",
                f"ds_read_b64_tr_b16 {v(KT+4*i+2,2)}, v{KA} offset:{128*i}"]
    PF = NU - 1
    for i in range(PF):
        a.ext(rd(i))
    a(f"""
    v_and_b32 v{VL16}, 7, v0
    v_lshrrev_b32 v{YA}, 3, v0
    v_lshlrev_b32 v{YA}, 4, v{YA}
    v_lshl_add_u32 v{YA}, v{VL16}, 7, v{YA}
    s_mov_b32 s12, 0
    s_mov_b32 s13, 0x80000000
    s_mov_b32 s14, 0
    s_mov_b32 s15, 0xc0000000
    s_mov_b32 s16, 0
    s_mov_b32 s17, 0xe0000000
    s_lshl_b32 s18, s7, 12
    s_add_u32 s18, s18, {Y_OFF}
    s_lshl_b32 s19, s2, 4
    s_add_u32 s19, s19, s6
    s_lshl_b32 s19, s19, 3
    s_add_u32 s19, s19, {FY_OFF + (4 if partB else 0)}
    """)
    for i in range(nst):
        if i + PF < nst:
            a.ext(rd(i + PF))
        left = min(PF, nst - 1 - i)
        a(f"s_waitcnt lgkmcnt({3*left})")
        for q in sorted(qs, reverse=True):
            s_ = i - 4 * (qmax - q)
            if s_ < 0:
                continue
            c = "0" if s_ == 0 else v(acc(q), 16)
            if OPT.get("noconv") and s_ > 0:
                continue
            a(f"v_mfma_f32_32x32x16_bf16 {v(acc(q),16)}, {v(UBUF+4*(i%NU),4)}, {v(KT+4*s_,4)}, {c}")
    a.ext(stamp(7))
    a("s_nop 7\ns_nop 3")
    groups = [(q, g) for q in outq for g in range(4)]
    Z = KT
    a("v_mov_b32 v6, 0")

    def Y(q, g, rho):
        return acc(q) + 4 * g + rho
    for gi, (q, g) in enumerate(groups):
        for rho in (1, 2, 3):
            if g > 0:
                prev = f"v{Y(q,g-1,rho)}"
            elif q > 0:
                prev = f"v{Y(q-1,3,rho)}"
            else:
                prev = "v6"
            a(f"v_cndmask_b32 v{Z+3*gi+rho-1}, v{Y(q,g,rho)}, {prev}, s[{10+2*rho}:{11+2*rho}]")
    dpp = "wave_ror:1 row_mask:0xf bank_mask:0xf"
    for gi in range(len(groups)):
        a(f"v_add_f32_dpp v{Z+3*gi+1}, v{Z+3*gi+2}, v{Z+3*gi+1} {dpp}")
    for gi in range(len(groups)):
        a(f"v_add_f32_dpp v{Z+3*gi}, v{Z+3*gi+1}, v{Z+3*gi} {dpp}")
    for gi, (q, g) in enumerate(groups):
        a(f"v_add_f32_dpp v{Z+3*gi+2}, v{Z+3*gi}, v{Y(q,g,0)} {dpp}")
    nk = len(groups) // 8
    A1 = acc(qs[0])
    ctl = "row_mask:0xf bank_mask:0xf"

    def stage(srcs, dsts, bit, stride):
        m = {0: 0xaaaaaaaa, 1: 0xcccccccc, 2: 0xf0f0f0f0}[bit]
        up = {0: "quad_perm:[1,0,3,2]", 1: "quad_perm:[2,3,0,1]", 2: "row_ror:12"}[bit]
        dn = {0: "quad_perm:[1,0,3,2]", 1: "quad_perm:[2,3,0,1]", 2: "row_ror:4"}[bit]
        a(f"s_mov_b32 vcc_lo, {m:#x}\ns_mov_b32 vcc_hi, {m:#x}\ns_nop 1")
        for S_, D_ in zip(srcs, dsts):
            for i in range(len(S_)):
                if not (i // stride) & 1:
                    a(f"v_cndmask_b32_dpp v{D_[i+stride]}, v{S_[i]}, v{S_[i+stride]}, vcc {up} {ctl}")
        a(f"s_not_b64 vcc, vcc\ns_nop 1")
        for S_, D_ in zip(srcs, dsts):
            for i in range(len(S_)):
                if not (i // stride) & 1:
                    a(f"v_cndmask_b32_dpp v{D_[i]}, v{S_[i+stride]}, v{S_[i]}, vcc {dn} {ctl}")
    S0 = [[Z + 3 * (8 * k + g) + 2 for g in range(8)] for k in range(nk)]
    D0 = [[A1 + 8 * k + g for g in range(8)] for k in range(nk)]
    a("s_nop 1")
    stage(S0, D0, 0, 1)
    S1 = [[Z + 4 * k + g for g in range(4)] for k in range(nk)]
    for k in range(nk):
        for g in range(4):
            a(f"v_cvt_pk_bf16_f32 v{S1[k][g]}, v{D0[k][2*g]}, v{D0[k][2*g+1]}")
    D1 = [[A1 + 24 + 4 * k + g for g in range(4)] for k in range(nk)]
    stage(S1, D1, 1, 1)
    D2 = [[UBUF + 4 * k + g for g in range(4)] for k in range(nk)]
    stage(D1, D2, 2, 2)
    base = outq[0] * 512
    for k in range(nk):
        a(f"buffer_store_dwordx4 {v(UBUF+4*k,4)}, v{YA}, {sr(SRD_WS)}, s18 offen offset:{base+1024*k} sc1")
    a.ext(stamp(8))
    a(f"""
    v_mov_b32 v6, 0
    v_mov_b32 v7, 1
    s_waitcnt vmcnt(0)
    s_mov_b64 exec, 1
    buffer_store_dword v7, v6, {sr(SRD_WS)}, s19 offen sc1
    """)
    a.ext(stamp_end())


HEADER = open("cdna_kernels/" + NAME + ".s.ref").read().split("; Override launch")[0]


def main(path):
    a = Asm()
    prologue(a)
    gemm1(a)
    a("L_SPARE:")
    spare(a)
    a("L_GEMM2:")
    gemm2(a)
    a("L_LWAVE:")
    a(f"s_cmp_ge_u32 s{S_IDX}, 28\ns_cbranch_scc1 L_LWAVE_S")
    a.ext(lwave(True))
    a("L_LWAVE_S:")
    a.ext(lwave(False))
    a("L_KWAVE:")
    a(f"s_cmp_ge_u32 s{S_IDX}, 28\ns_cbranch_scc1 L_KWAVE_S")
    a.ext(kwave(True))
    a("L_KWAVE_S:")
    a.ext(kwave(False))
    a("L_CONVA:")
    conv(a, False)
    a("L_CONVB:")
    conv(a, True)
    a("L_END:\ns_endpgm")
    body = "\n".join(("" if ln.endswith(":") or ln.startswith(".") else "    ") + ln for ln in a.L)
    kn = NAME + "_kernel"
    txt = HEADER
    if OPT.get("list"):
        txt += f"; @launch kernel={kn} grid=(256,1,1) block=(512,1,1) lds=163840\n"
    else:
        txt += "; @launch grid=(256,1,1) block=(512,1,1) lds=163840\n"
    txt += '.amdgcn_target "amdgcn-amd-amdhsa--gfx950"\n.text\n'
    txt += f".globl {kn}\n.p2align 8\n.type {kn},@function\n{kn}:\n"
    txt += body + "\n"
    txt += f"""
.section .rodata,"a"
.p2align 6
.amdhsa_kernel {kn}
  .amdhsa_next_free_vgpr 256
  .amdhsa_next_free_sgpr 102
  .amdhsa_accum_offset 256
  .amdhsa_group_segment_fixed_size 0
  .amdhsa_kernarg_size 136
  .amdhsa_user_sgpr_count 2
  .amdhsa_user_sgpr_kernarg_segment_ptr 1
  .amdhsa_system_sgpr_workgroup_id_x 1
.end_amdhsa_kernel
"""
    open(path, "w").write(txt)


if __name__ == "__main__":
    for o in list(sys.argv):
        if o.startswith("--opt="):
            k, _, val = o[6:].partition(":")
            OPT[k] = int(val) if val else 1
            sys.argv.remove(o)
    if "--stamps" in sys.argv:
        STAMPS = True
        sys.argv.remove("--stamps")
    main(sys.argv[1] if len(sys.argv) > 1 else "cdna_kernels/" + NAME + ".s")
```

```python
import sys, struct

NAME = "gated_mix__ssm_conv_s4__swiglu_ffn__prompt"

H_OFF = 0x000000
UT_OFF = 0x800000
KX_OFF = 0xA00000
Y_OFF = 0xC00000
GL_OFF = 0xE00000
FH_OFF = 0xE40000
FY_OFF = 0xE60000
FU_OFF = 0xE68000
ST_OFF = 0xE20000
WS_BYTES = 0x1000000

STAMPS = False
OPT = {}
ST_BASE = 78
NST = 12


def f32(x):
    return "0x%08x" % struct.unpack("<I", struct.pack("<f", x))[0]


LOG2E = 1.4426950408889634
LOG2E_HI = struct.unpack("<f", struct.pack("<f", LOG2E))[0]
LOG2E_LO = LOG2E - LOG2E_HI
LN2 = 0.6931471805599453
INV2PI = 0.15915494309189535


class Asm:
    def __init__(self):
        self.L = []

    def __call__(self, s):
        for line in s.strip().split("\n"):
            line = line.strip()
            if line:
                self.L.append(line)

    def ext(self, lines):
        self.L.extend(lines)

    def tag(self, n):
        self.L.append(("VMTAG", n))

    def wait(self, n):
        self.L.append(("VMWAIT", n))


def v(b, n=1):
    return f"v{b}" if n == 1 else f"v[{b}:{b+n-1}]"


def sr(b):
    return f"s[{b}:{b+3}]"


class RA:
    def __init__(self, start, end):
        self.p = start
        self.end = end

    def __call__(self, n=1, align=1):
        self.p = (self.p + align - 1) // align * align
        r = self.p
        self.p += n
        assert self.p <= self.end, "out of registers"
        return r


def stamp(k, force=False):
    if not STAMPS:
        return []
    assert k < NST
    if OPT.get("dbgbar") and 1 <= k <= 9 and not force:
        return []
    op = "s_memtime" if OPT.get("cyc") else "s_memrealtime"
    return [f"{op} s[{ST_BASE+2*k}:{ST_BASE+2*k+1}]"]


def bstamp(mode, k):
    return stamp(k, True) if OPT.get("dbgbar") == mode else []


def stamp_end():
    if not STAMPS:
        return ["s_endpgm"]
    L = stamp(10) + ["s_waitcnt vmcnt(0)"] + stamp(11)
    L += ["s_waitcnt lgkmcnt(0)", "s_mov_b64 exec, 1", "s_lshl_b32 s74, s2, 3", f"s_add_u32 s74, s74, s{S_WIDX}",
          "s_lshl_b32 s74, s74, 6", f"s_add_u32 s74, s74, {ST_OFF}", "v_mov_b32 v1, 0"]
    for k in range(NST):
        L.append(f"v_mov_b32 v{4+k}, s{ST_BASE+2*k}")
    for k in range(0, NST, 4):
        L.append(f"buffer_store_dwordx4 v[{4+k}:{7+k}], v1, {sr(SRD_WS)}, s74 offen offset:{4*k}")
    L.append("s_endpgm")
    return L


def is_vmem(line):
    return line.startswith("buffer_") or line.startswith("global_")


def resolve_vm(lines):
    out = []
    count = 0
    tags = {}
    done = -1
    for ln in lines:
        if isinstance(ln, tuple):
            if ln[0] == "VMTAG":
                tags[ln[1]] = count
            elif ln[0] == "VMWAIT":
                if tags[ln[1]] <= done:
                    continue
                n = count - tags[ln[1]]
                assert 0 <= n <= 63, n
                out.append(f"s_waitcnt vmcnt({n})")
                done = tags[ln[1]]
            elif ln[0] == "VMRESET":
                done = count
            elif ln[0] == "NOCOUNT":
                out.append(ln[1])
            else:
                raise ValueError(ln)
        else:
            if is_vmem(ln):
                count += 1
            out.append(ln)
    return out


def resolve_lds(lines):
    out = []
    count = 0
    tags = {}
    for ln in lines:
        if isinstance(ln, tuple):
            if ln[0] == "LTAG":
                tags[ln[1]] = count
            elif ln[0] == "LWAIT":
                out.append(f"s_waitcnt lgkmcnt({min(15, count - tags[ln[1]])})")
            else:
                raise ValueError(ln)
        else:
            if ln.startswith("ds_"):
                count += 1
            out.append(ln)
    return out


SLOT = 49152
KG_BASE = 147456
KARR = 3584
U_BASE = 131072
UPITCH = 1344
USZ = 4 * UPITCH
YB_BASE = U_BASE + 2 * USZ
RING2 = 32768

S_U, S_ARE, S_AIM, S_BRE, S_BIM, S_CRE, S_CIM, S_LDT = 4, 6, 8, 10, 12, 14, 16, 18
S_DS = 20
S_WG, S_WU, S_WD, S_GW = 24, 26, 28, 30
S_OUT, S_DBG, S_WS = 32, 34, 36
S_WIDX, S_XCD, S_IDX, S_RB, S_CB, S_PHI = 38, 39, 40, 41, 42, 43
SRD_X, SRD_WG, SRD_WU, SRD_WS, SRD_WD, SRD_OUT = 44, 48, 52, 56, 60, 64


def srd(a, d, base, nbytes):
    a(f"""
    s_mov_b32 s{d}, s{base}
    s_and_b32 s{d+1}, s{base+1}, 0xffff
    s_mov_b32 s{d+2}, {nbytes}
    s_mov_b32 s{d+3}, 0x00020000
    """)


def prologue(a):
    a("""
    s_cmp_ge_u32 s2, 256
    s_cbranch_scc1 L_END
    """)
    if STAMPS:
        a.ext([f"s_mov_b32 s{ST_BASE+2*k}, 0" for k in range(NST)])
    a.ext(stamp(0))
    a(f"""
    s_load_dwordx16 s[4:19], s[0:1], 0
    s_load_dwordx8 s[24:31], s[0:1], 80
    s_load_dwordx2 s[36:37], s[0:1], 128
    s_load_dwordx4 s[32:35], s[0:1], 112
    s_load_dwordx2 s[20:21], s[0:1], 64
    v_lshrrev_b32 v1, 6, v0
    v_and_b32 v0, 63, v0
    s_and_b32 s{S_XCD}, s2, 7
    v_readfirstlane_b32 s{S_WIDX}, v1
    s_lshr_b32 s{S_IDX}, s2, 3
    s_and_b32 s68, s{S_IDX}, 3
    s_lshr_b32 s69, s{S_IDX}, 2
    s_lshr_b32 s{S_RB}, s{S_XCD}, 1
    s_lshl_b32 s{S_RB}, s{S_RB}, 2
    s_add_u32 s{S_RB}, s{S_RB}, s68
    s_and_b32 s{S_CB}, s{S_XCD}, 1
    s_mul_i32 s{S_CB}, s{S_CB}, 7
    s_add_u32 s{S_CB}, s{S_CB}, s69
    s_lshl_b32 s{S_PHI}, s68, 1
    s_add_u32 s{S_PHI}, s{S_PHI}, s69
    s_and_b32 s{S_PHI}, s{S_PHI}, 7
    s_waitcnt lgkmcnt(0)
    """)
    srd(a, SRD_X, S_U, 2048 * 512 * 2)
    srd(a, SRD_WG, S_WG, 512 * 1792 * 2)
    srd(a, SRD_WU, S_WU, 512 * 1792 * 2)
    srd(a, SRD_WS, S_WS, WS_BYTES)
    srd(a, SRD_WD, S_WD, 1792 * 512 * 2)
    srd(a, SRD_OUT, S_OUT, 2048 * 512 * 2)
    a(f"""
    s_cmp_ge_u32 s{S_WIDX}, 6
    s_cbranch_scc1 L_KWAVE
    s_cmp_ge_u32 s{S_WIDX}, 4
    s_cbranch_scc1 L_LWAVE
    s_cmp_ge_u32 s{S_IDX}, 28
    s_cbranch_scc1 L_SPARE
    """)


VL16 = 1
XD = 8
(VD0, VD1, DA0, DA1, VEP, VPH, VFL, VG, VY, VYW, VYT, VW1, VW2, VW3, VR1, VR23) = range(112, 128)
YT_BASE = YB_BASE
G_LDS = YB_BASE
def n1():
    return OPT.get("n1", 14)


def rot_scalar(dst, tmp):
    return f"""
    s_and_b32 s{dst}, s{S_IDX}, 1
    s_lshl_b32 s{dst}, s{dst}, 1
    s_lshr_b32 s{tmp}, s{S_IDX}, 3
    s_add_u32 s{dst}, s{dst}, s{tmp}
    s_and_b32 s{dst}, s{dst}, 3
    s_mul_i32 s{dst}, s{dst}, 7
    """


def gemm2_setup(a):
    a(f"""
    s_lshl_b32 s6, s{S_XCD}, 2
    s_lshr_b32 s13, s{S_IDX}, 3
    s_add_u32 s6, s6, s13
    s_and_b32 s7, s{S_IDX}, 7
    s_lshl_b32 s17, s6, 6
    s_lshr_b32 s23, s{S_WIDX}, 1
    s_lshl_b32 s13, s23, 5
    s_add_u32 s17, s17, s13
    s_lshl_b32 s18, s7, 6
    s_and_b32 s14, s{S_WIDX}, 1
    s_lshl_b32 s13, s14, 5
    s_add_u32 s18, s18, s13
    v_lshrrev_b32 v5, 5, v0
    v_and_b32 v6, 31, v0
    v_add_u32 v6, s17, v6
    v_lshlrev_b32 v7, 4, v5
    v_add_u32 v7, s18, v7
    v_lshlrev_b32 v7, 1, v7
    v_lshl_add_u32 v{VEP}, v6, 10, v7
    v_mov_b32 v{VR23}, v7
    s_lshl_b32 s8, s{S_WIDX}, 15
    s_lshl_b32 s9, s6, 1
    s_add_u32 s9, s9, s23
    s_mul_i32 s9, s9, 112
    s_mul_i32 s13, s{S_WIDX}, 28
    s_add_u32 s9, s9, s13
    s_lshl_b32 s9, s9, 10
    s_mul_i32 s22, s23, {224*1024}
    s_sub_u32 s22, {112*1024}, s22
    s_lshl_b32 s10, s13, 14
    s_lshl_b32 s13, s7, 7
    s_add_u32 s10, s10, s13
    """)
    a(rot_scalar(12, 13))
    a(f"""
    s_add_u32 s11, s12, {n1()}
    s_cmp_ge_u32 s11, 28
    s_cselect_b32 s13, 28, 0
    s_sub_u32 s11, s11, s13
    s_lshl_b32 s15, s6, 5
    s_mul_i32 s13, s{S_WIDX}, 7
    s_add_u32 s15, s15, s13
    s_lshl_b32 s15, s15, 7
    s_add_u32 s15, s15, {FH_OFF}
    s_lshl_b32 s13, s7, 2
    s_add_u32 s13, s13, s{S_WIDX}
    s_lshl_b32 s16, s13, 10
    s_add_u32 s16, s16, {FY_OFF}
    s_lshl_b32 s19, s13, 16
    s_lshl_b32 s13, s6, 7
    s_add_u32 s19, s19, s13
    s_add_u32 s19, s19, {Y_OFF}
    v_lshlrev_b32 v{VL16}, 4, v0
    v_lshrrev_b32 v2, 3, v0
    v_and_b32 v3, 7, v0
    v_lshlrev_b32 v{VY}, 12, v2
    v_lshl_add_u32 v{VY}, v3, 4, v{VY}
    v_lshrrev_b32 v4, 1, v2
    v_and_b32 v4, 1, v4
    v_lshlrev_b32 v4, 2, v4
    v_xor_b32 v3, v3, v4
    v_lshlrev_b32 v{VD0}, 10, v2
    v_lshl_add_u32 v{VD0}, v3, 4, v{VD0}
    v_add_u32 v{VD1}, {8192-1024}, v{VD0}
    v_lshlrev_b32 v{VYW}, 7, v2
    v_lshl_add_u32 v{VYW}, v3, 4, v{VYW}
    v_add_u32 v{VYW}, s8, v{VYW}
    v_lshrrev_b32 v2, 2, v0
    v_and_b32 v2, 3, v2
    v_and_b32 v3, 3, v0
    v_lshrrev_b32 v4, 4, v0
    v_and_b32 v4, 1, v4
    v_lshl_add_u32 v6, v5, 2, v2
    v_lshlrev_b32 v6, 7, v6
    v_and_b32 v7, 1, v3
    v_lshl_add_u32 v6, v7, 5, v6
    v_lshl_add_u32 v6, v4, 4, v6
    v_lshrrev_b32 v7, 1, v3
    v_lshl_add_u32 v6, v7, 3, v6
    v_add_u32 v6, s8, v6
    v_lshrrev_b32 v7, 1, v2
    v_xor_b32 v7, s14, v7
    v_lshl_add_u32 v{DA0}, v7, 6, v6
    v_xor_b32 v7, 1, v7
    v_lshl_add_u32 v{DA1}, v7, 6, v6
    s_lshl_b32 s13, s14, 1
    v_add_u32 v6, s13, v5
    v_lshlrev_b32 v{VYT}, 15, v6
    v_lshl_add_u32 v{VYT}, v2, 7, v{VYT}
    v_lshrrev_b32 v7, 1, v2
    v_xor_b32 v7, s23, v7
    v_lshl_add_u32 v{VYT}, v7, 6, v{VYT}
    v_lshl_add_u32 v{VYT}, v4, 5, v{VYT}
    v_lshl_add_u32 v{VYT}, v3, 3, v{VYT}
    v_min_u32 v{VPH}, 6, v0
    v_lshlrev_b32 v{VPH}, 7, v{VPH}
    v_lshrrev_b32 v2, 2, v0
    v_and_b32 v2, 7, v2
    v_lshlrev_b32 v{VFL}, 7, v2
    v_lshl_add_u32 v{VFL}, v3, 2, v{VFL}
    v_and_b32 v{VG}, 31, v0
    s_lshl_b32 s13, s23, 5
    v_add_u32 v{VG}, s13, v{VG}
    v_lshlrev_b32 v{VG}, 2, v{VG}
    v_add_u32 v{VG}, {G_LDS}, v{VG}
    v_add_u32 v{VW1}, s8, v{VL16}
    s_xor_b32 s13, s{S_WIDX}, 1
    s_lshl_b32 s13, s13, 15
    v_add_u32 v{VR1}, s13, v{VL16}
    s_xor_b32 s13, s{S_WIDX}, 2
    s_lshl_b32 s13, s13, 15
    v_add_u32 v{VW2}, s13, v{VL16}
    s_xor_b32 s13, s{S_WIDX}, 3
    s_lshl_b32 s13, s13, 15
    v_add_u32 v{VW3}, s13, v{VL16}
    """)


def xd_loads():
    return [f"buffer_load_dwordx4 {v(XD,4)}, v{VEP}, {sr(SRD_X)}, 0 offen",
            f"buffer_load_dwordx4 {v(XD+4,4)}, v{VEP}, {sr(SRD_X)}, 0 offen offset:16",
            f"global_load_dwordx4 v[4:7], v{VR23}, s[{S_DS}:{S_DS+1}]",
            f"global_load_dwordx4 v[36:39], v{VR23}, s[{S_DS}:{S_DS+1}] offset:16"]


def xd_finish():
    L = ["s_mov_b32 s74, 0xffff0000", "s_waitcnt vmcnt(0)"]
    for i in range(8):
        d = 4 + i if i < 4 else 32 + i
        L += [f"v_lshlrev_b32 v2, 16, v{XD+i}", f"v_and_b32 v3, s74, v{XD+i}",
              f"v_lshlrev_b32 v34, 16, v{d}", f"v_and_b32 v35, s74, v{d}",
              "v_mul_f32 v2, v2, v34", "v_mul_f32 v3, v3, v35", f"v_cvt_pk_bf16_f32 v{XD+i}, v2, v3"]
    return L


def gemm1(a):
    XA = 16
    WA = 28
    BUFS = [64, 88, 40]
    ACC = 128

    def acc(mat, t, tt):
        return ACC + 16 * (mat * 4 + t * 2 + tt)

    def wf(b, mat, t):
        return BUFS[b] + 4 * (mat * 2 + t)

    def xf(b, tt):
        return BUFS[b] + 16 + 4 * tt

    gemm2_setup(a)
    a(f"""
    s_lshr_b32 s68, s{S_WIDX}, 1
    s_and_b32 s69, s{S_WIDX}, 1
    v_and_b32 v7, 31, v0
    v_lshrrev_b32 v2, 5, v0
    v_lshrrev_b32 v3, 1, v0
    v_and_b32 v3, 7, v3
    s_lshl_b32 s70, s68, 13
    v_lshlrev_b32 v4, 7, v7
    v_add_u32 v4, s70, v4
    """)
    for ks in range(4):
        a(f"""
        v_add_u32 v5, {2*ks}, v2
        v_xor_b32 v5, v5, v3
        v_lshl_add_u32 v{XA+ks}, v5, 4, v4
        """)
    a(f"""
    v_lshrrev_b32 v7, 2, v0
    v_and_b32 v7, 3, v7
    v_and_b32 v3, 3, v0
    v_lshrrev_b32 v4, 4, v0
    v_and_b32 v4, 1, v4
    v_lshl_add_u32 v5, v2, 3, v7
    v_lshlrev_b32 v5, 8, v5
    v_lshl_add_u32 v5, v4, 5, v5
    v_lshl_add_u32 v5, v3, 3, v5
    s_lshl_b32 s70, s69, 1
    """)
    for t in range(2):
        a(f"""
        s_add_u32 s71, s70, {t}
        v_xor_b32 v6, s71, v7
        v_lshl_add_u32 v{WA+t}, v6, 6, v5
        """)
    for sl in (1, 2):
        for ks in range(4):
            a(f"v_add_u32 v{XA+4*sl+ks}, {sl*SLOT}, v{XA+ks}")
        for t in range(2):
            a(f"v_add_u32 v{WA+2*sl+t}, {sl*SLOT}, v{WA+t}")
    a(f"""
    s_lshl_b32 s70, s{S_RB}, 2
    s_lshl_b32 s71, s68, 1
    s_add_u32 s70, s70, s71
    s_mul_i32 s70, s70, 112
    s_lshl_b32 s71, s{S_CB}, 3
    s_add_u32 s70, s70, s71
    s_lshl_b32 s71, s69, 2
    s_add_u32 s70, s70, s71
    s_lshl_b32 s70, s70, 10
    s_add_u32 s71, s70, {112*1024}
    s_lshl_b32 s3, s{S_RB}, 1
    s_add_u32 s3, s3, s68
    s_lshl_b32 s3, s3, 5
    s_lshl_b32 s72, s{S_CB}, 1
    s_add_u32 s3, s3, s72
    s_add_u32 s3, s3, s69
    s_lshl_b32 s3, s3, 7
    s_add_u32 s3, s3, {FH_OFF}
    s_mov_b32 s72, {f32(-LOG2E)}
    s_mov_b32 s73, {f32(-LOG2E)}
    """)

    def reads(n):
        st, ks = n >> 2, n & 3
        sl = st % 3
        b = n % 3
        r = []
        r.append(f"ds_read_b128 {v(xf(b,0),4)}, v{XA+4*sl+ks}")
        for mat in range(2):
            for t in range(2):
                for h2 in range(2):
                    off = 16384 * (1 + mat) + ks * 4096 + h2 * 1024
                    r.append(f"ds_read_b64_tr_b16 {v(wf(b,mat,t)+2*h2,2)}, v{WA+2*sl+t} offset:{off}")
                if mat == 0 and t == 0:
                    r.append(f"ds_read_b128 {v(xf(b,1),4)}, v{XA+4*sl+ks} offset:4096")
        return r

    T = 16

    def epi(p):
        t, tt = p >> 1, p & 1
        G, U = acc(0, t, tt), acc(1, t, tt)
        o = 32 + 8 * p
        L = []
        for h in range(2):
            R = range(8 * h, 8 * h + 8)
            L += [f"v_pk_mul_f32 {v(T+i,2)}, {v(G+i,2)}, s[72:73]" for i in R[::2]]
            for i in R[::2]:
                L += [f"v_exp_f32 v{T+i}, v{T+i}", f"v_exp_f32 v{T+i+1}, v{T+i+1}",
                      f"v_pk_mul_f32 {v(U+i,2)}, {v(G+i,2)}, {v(U+i,2)}"]
            L += [f"v_pk_add_f32 {v(T+i,2)}, {v(T+i,2)}, 1.0 op_sel_hi:[1,0]" for i in R[::2]]
            L += [f"v_rcp_f32 v{T+i}, v{T+i}" for i in R]
            L += [f"v_pk_mul_f32 {v(U+i,2)}, {v(U+i,2)}, {v(T+i,2)}" for i in R[::2]]
            for i in range(4):
                L.append(f"v_cvt_pk_bf16_f32 v{o+4*h+i}, v{U+8*h+2*i}, v{U+8*h+2*i+1}")
            L.append(f"buffer_store_dwordx4 {v(o+4*h,4)}, v{VL16}, {sr(SRD_WS)}, s{70+tt} offen offset:{t*2048+1024*h} sc1")
        return L

    a("s_barrier")
    a.ext(stamp(1))
    a.ext(bstamp(2, 1))
    a.ext(reads(0))
    a.ext(reads(1))
    extra = []
    XL = OPT.get("xl", 13)
    for n in range(32):
        b = n % 3
        if (n & 3) == 2:
            a("s_waitcnt lgkmcnt(0)")
            a.ext(bstamp(2, 2 + (n >> 2)))
            a("s_barrier")
            if n == 22:
                a.ext(stamp(2))
        elif (n & 3) != 3:
            a("s_waitcnt lgkmcnt(10)")
        rd = reads(n + 2) if n + 2 < 32 else []
        mf = []
        for t in range(2):
            for tt in range(2):
                for mat in range(2):
                    c = "0" if n == 0 else v(acc(mat, t, tt), 16)
                    mf.append(f"v_mfma_f32_32x32x16_bf16 {v(acc(mat,t,tt),16)}, {v(wf(b,mat,t),4)}, {v(xf(b,tt),4)}, {c}")
        if n == XL:
            extra = xd_loads()
        if n == XL + 6:
            extra = xd_finish()
        for i, m in enumerate(mf):
            a(m)
            a.ext(rd[2 * i:2 * i + 2])
            if i >= 4:
                a.ext(extra[:3])
                extra = extra[3:]
    assert not extra
    a.ext(stamp(3))
    a("s_nop 7")
    for p in range(4):
        a.ext(epi(p))
    a.ext(stamp(4))
    a("s_branch L_GEMM2")


def spare(a):
    R = 16
    O = 80
    GWv = 112
    SUM = 120
    a(f"""
    s_lshl_b32 s68, s{S_XCD}, 2
    s_add_u32 s68, s68, s{S_IDX}
    s_sub_u32 s68, s68, 28
    s_lshr_b32 s69, s68, 2
    s_lshl_b32 s3, s68, 5
    s_add_u32 s3, s3, s{S_WIDX}
    s_lshl_b32 s3, s3, 2
    s_add_u32 s3, s3, {FU_OFF}
    s_lshl_b32 s68, s68, 2
    s_add_u32 s68, s68, s{S_WIDX}
    s_and_b32 s68, s68, 15
    v_and_b32 v1, 7, v0
    v_lshrrev_b32 v2, 3, v0
    v_lshlrev_b32 v3, 15, v2
    v_lshl_add_u32 v3, v1, 4, v3
    v_lshlrev_b32 v4, 15, v1
    v_lshl_add_u32 v4, v2, 4, v4
    v_lshlrev_b32 v5, 4, v1
    v_lshlrev_b32 v6, 2, v0
    s_mov_b32 s70, 0x05040100
    s_mov_b32 s71, 0x07060302
    s_lshl_b32 s72, s69, 7
    v_add_u32 v7, s72, v5
    global_load_dwordx4 {v(GWv,4)}, v7, s[{S_GW}:{S_GW+1}]
    """)
    for i in range(2):
        b = 6 + 4 * i
        a(f"""
        s_lshl_b32 s73, s68, 1
        s_add_u32 s73, s73, {i}
        s_lshr_b32 s74, s73, 2
        s_and_b32 s73, s73, 3
        s_lshl_b32 s{b}, s74, 18
        s_lshl_b32 s75, s73, 10
        s_add_u32 s{b}, s{b}, s75
        s_add_u32 s{b}, s{b}, s72
        s_lshl_b32 s{b+1}, s69, 18
        s_add_u32 s{b+1}, s{b+1}, s75
        s_lshl_b32 s75, s74, 7
        s_add_u32 s{b+1}, s{b+1}, s75
        s_add_u32 s{b+1}, s{b+1}, {UT_OFF}
        s_lshl_b32 s{b+2}, s74, 8
        s_lshl_b32 s75, s73, 11
        s_add_u32 s{b+2}, s{b+2}, s75
        s_lshl_b32 s75, s69, 13
        s_add_u32 s{b+2}, s{b+2}, s75
        s_add_u32 s{b+2}, s{b+2}, {GL_OFF}
        """)
        for j in range(8):
            a(f"buffer_load_dwordx4 {v(R+32*i+4*j,4)}, v3, {sr(SRD_X)}, s{b} offen")
            if j < 7:
                a(f"s_add_u32 s{b}, s{b}, 4096")
    for i in range(2):
        b = 6 + 4 * i
        a(f"s_waitcnt vmcnt({8 if i == 0 else 9})")
        Ri = R + 32 * i
        for e in range(8):
            for jj in range(4):
                sel = 71 if (e & 1) else 70
                a(f"v_perm_b32 v{O+4*e+jj}, v{Ri+4*(2*jj+1)+(e>>1)}, v{Ri+4*(2*jj)+(e>>1)}, s{sel}")
            a(f"buffer_store_dwordx4 {v(O+4*e,4)}, v4, {sr(SRD_WS)}, s{b+1} offen sc1")
            if e < 7:
                a(f"s_add_u32 s{b+1}, s{b+1}, 4096")
        for j in range(8):
            a(f"v_mov_b32 v{SUM+j}, 0")
        for q in range(4):
            for j in range(8):
                a(f"v_dot2c_f32_bf16 v{SUM+j}, v{Ri+4*j+q}, v{GWv+q}")
        a("s_nop 3")
        for ctl in ("quad_perm:[1,0,3,2]", "quad_perm:[2,3,0,1]", "row_half_mirror"):
            for j in range(8):
                a(f"v_add_f32_dpp v{SUM+j}, v{SUM+j}, v{SUM+j} {ctl} row_mask:0xf bank_mask:0xf")
        for j in range(1, 8):
            a(f"""
            v_cmp_eq_u32 vcc, {j}, v1
            s_nop 1
            v_cndmask_b32 v{SUM}, v{SUM}, v{SUM+j}, vcc
            """)
        a(f"buffer_store_dword v{SUM}, v6, {sr(SRD_WS)}, s{b+2} offen sc1")
        a("s_nop 1")
    a.ext(stamp(1))
    a(f"""
    v_mov_b32 v2, 0
    v_mov_b32 v3, 1
    s_waitcnt vmcnt(0)
    s_barrier
    s_mov_b64 exec, 1
    buffer_store_dword v3, v2, {sr(SRD_WS)}, s3 offen sc1
    s_mov_b64 exec, -1
    """)
    a.ext(stamp(2))
    gemm2_setup(a)
    a.ext(xd_loads())
    a(f"""
    s_lshl_b32 s13, s{S_XCD}, 2
    s_add_u32 s13, s13, s{S_IDX}
    s_sub_u32 s13, s13, 28
    s_lshl_b32 s13, s13, 2
    s_add_u32 s13, s13, s{S_WIDX}
    s_mul_i32 s13, s13, {14*1024}
    """)
    for i in range(14):
        if i % 4 == 0 and i:
            a("s_add_u32 s13, s13, 4096")
        a(f"buffer_load_dwordx4 {v(64+4*(i%4),4)}, v{VL16}, {sr(SRD_WD)}, s13 offen offset:{1024*(i%4)}")
    a.ext(xd_finish())


def spin(label, loads, checks):
    L = [f"{label}_SPIN:", "s_sleep 1"]
    L += [("NOCOUNT", x) for x in loads]
    L += ["s_waitcnt vmcnt(0)"]
    L += ["s_sub_u32 s77, s77, 1", "s_cmp_eq_u32 s77, 0", f"s_cbranch_scc1 {label}_OK"]
    L += [f"{label}_CHK:"] + checks
    L += [f"s_cbranch_scc0 {label}_SPIN", f"{label}_OK:"]
    return L


def gemm2(a0):
    a = Asm()
    NS = 28
    NP = 12
    NR = 16
    DH = 6
    ACC = 192
    WF = 16
    WFR = 128
    HB = 144
    N1 = n1()
    NF = OPT.get("nf", 2)
    PP1 = OPT.get("pp1", 21)
    N2 = OPT.get("n2", 28)

    def acc(t, tt):
        return ACC + 16 * (t + 2 * tt)

    def wload(i):
        sl = i % NR
        return [
            "s_lshl_b32 s14, s11, 14", f"s_add_u32 m0, s8, {sl*2048}", "s_add_u32 s14, s14, s10",
            f"buffer_load_dwordx4 v{VD0}, {sr(SRD_WD)}, s14 offen lds",
            "s_add_u32 s11, s11, 1", "s_cmp_ge_u32 s11, 28", "s_cselect_b32 s11, 0, s11",
            f"buffer_load_dwordx4 v{VD1}, {sr(SRD_WD)}, s14 offen offset:1024 lds",
            ("VMTAG", f"W{i}"),
        ]

    def hload(i):
        sl = i % DH
        return [
            "s_lshl_b32 s13, s12, 10", "s_add_u32 s13, s13, s9",
            f"buffer_load_dwordx4 {v(HB+8*sl,4)}, v{VL16}, {sr(SRD_WS)}, s13 offen sc1",
            "s_add_u32 s13, s13, s22",
            "s_add_u32 s12, s12, 1", "s_cmp_ge_u32 s12, 28", "s_cselect_b32 s12, 0, s12",
            f"buffer_load_dwordx4 {v(HB+8*sl+4,4)}, v{VL16}, {sr(SRD_WS)}, s13 offen sc1",
            ("VMTAG", f"H{i}"),
        ]

    def wfrag(i):
        return WF + 8 * i if i < NP else WFR + 8 * (i & 1)

    def trd(i):
        sl = i % NR
        r = [("VMWAIT", f"W{i}")] if i >= N1 else []
        for t in range(2):
            for h2 in range(2):
                r.append(f"ds_read_b64_tr_b16 {v(wfrag(i)+4*t+2*h2,2)}, v{DA0+t} offset:{sl*2048+h2*1024}")
        return r

    a.tag("hst")
    a("s_barrier")
    a.ext(stamp(5))
    a(f"""
    s_setprio 2
    v_mov_b32 v2, 0
    v_mov_b32 v3, 1
    s_mov_b32 s77, 0x100000
    """)
    ph_ld = f"buffer_load_dword v4, v{VPH}, {sr(SRD_WS)}, s15 offen sc1"

    def wl(i):
        a.ext(wload(i))
        if i == N1 + NF - 1:
            a.wait("hst")
            a(f"""
            s_mov_b64 exec, 1
            buffer_store_dword v3, v2, {sr(SRD_WS)}, s3 offen sc1
            s_mov_b64 exec, -1
            """)
            a.ext(stamp(6))
        if i == PP1:
            a(ph_ld)
            a.tag("P1")
    assert N1 + NF <= NR
    for i in range(N1, NR):
        wl(i)
    for i in range(NP + 1):
        if i < NP:
            a.ext(trd(i))
        if i >= 1 and NR + i - 1 < N2:
            a(f"s_waitcnt lgkmcnt({4 if i < NP else 0})")
            wl(NR + i - 1)
    a.ext(stamp(7))
    a.wait("P1")
    a("s_branch PH_CHK")
    a.ext(spin("PH", [ph_ld], ["v_cmp_ne_u32 vcc, 0, v4", "s_nop 3", "s_cmp_eq_u64 vcc, exec"]))
    a.ext(stamp(8))
    a.ext(bstamp(3, 1))
    for i in range(DH):
        a.ext(hload(i))
    a("s_waitcnt lgkmcnt(0)")

    YR, FL, YT, EG = 80, 2, WFR, 6
    fl_ld = [f"buffer_load_dword v{FL}, v{VFL}, {sr(SRD_WS)}, s16 offen sc1"]
    chk = [f"v_cmp_ne_u32 vcc, 0, v{FL}", "s_nop 3", "s_cmp_eq_u64 vcc, exec"]

    def yloads():
        return [f"buffer_load_dwordx4 {v(YR,4)}, v{VY}, {sr(SRD_WS)}, s19 offen sc1",
                "s_add_u32 s13, s19, 0x8000",
                f"buffer_load_dwordx4 {v(YR+4,4)}, v{VY}, {sr(SRD_WS)}, s13 offen sc1"]

    IF = OPT.get("if", 22)
    IY = OPT.get("iy", 25)
    for i in range(NS):
        sl = i % DH
        a.wait(f"H{i}")
        if i >= NP:
            a("s_waitcnt lgkmcnt(0)")
        hl = hload(i - 1 + DH) if 1 <= i and i - 1 + DH < NS else []
        fill = [(trd(i + 1) if NP <= i + 1 < NS else []) + hl[:3], hl[3:], wload(N2 + i) if N2 + i < NS else [], []]
        k = 0
        for t in range(2):
            for tt in range(2):
                c = "0" if i == 0 else v(acc(t, tt), 16)
                a(f"v_mfma_f32_32x32x16_bf16 {v(acc(t,tt),16)}, {v(wfrag(i)+4*t,4)}, {v(HB+8*sl+4*tt,4)}, {c}")
                a.ext(fill[k])
                k += 1
        if i in (0, 3, 7, 11, 15, 19, 23, 27):
            a.ext(bstamp(3, 2 + (0, 3, 7, 11, 15, 19, 23, 27).index(i)))
        if i == IF:
            a.ext(fl_ld)
            a.tag("F")
        if i == IY:
            a.wait("F")
            a.ext(yloads())
    a.ext(stamp(9))
    a.ext(chk)
    a("s_cbranch_scc1 PY_DONE")
    a.ext(spin("PY", fl_ld, chk))
    a.ext([("NOCOUNT", x) if is_vmem(x) else x for x in yloads()])
    a("PY_DONE:")
    a("s_nop 5")
    for k in range(1, 4):
        for g in range(4):
            a(f"ds_write_b128 v{VW1}, {v(ACC+16*k+4*g,4)} offset:{k*4096+g*1024}")
    X1, Y1 = HB, HB + 16
    a(f"""
    v_mov_b32 v5, 0xffff0000
    ds_read_b32 v{EG}, v{VG}
    s_waitcnt vmcnt(0)
    ds_write_b128 v{VYW}, {v(YR,4)} offset:16384
    ds_write_b128 v{VYW}, {v(YR+4,4)} offset:17408
    """)
    for i in range(8):
        a(f"""
        v_lshlrev_b32 v{X1+2*i}, 16, v{XD+i}
        v_and_b32 v{X1+2*i+1}, v5, v{XD+i}
        """)
    a("s_waitcnt lgkmcnt(0)")
    a("s_barrier")
    PB = 16
    for q in range(4):
        a(f"ds_read_b64_tr_b16 {v(YT+2*q,2)}, v{VYT} offset:{16384+q*512}")
    for k, base in ((1, VR1), (2, VW2), (3, VW3)):
        for g in range(4):
            a(f"ds_read_b128 {v(PB+16*(k-1)+4*g,4)}, v{base} offset:{k*4096+g*1024}")
    a("s_waitcnt lgkmcnt(12)")
    for i in range(8):
        a(f"""
        v_lshlrev_b32 v{Y1+2*i}, 16, v{YT+i}
        v_and_b32 v{Y1+2*i+1}, v5, v{YT+i}
        """)
    for i in range(0, 16, 2):
        a(f"v_pk_add_f32 {v(Y1+i,2)}, {v(Y1+i,2)}, {v(X1+i,2)}")
    a("s_waitcnt lgkmcnt(8)")
    for i in range(0, 16, 2):
        a(f"v_pk_add_f32 {v(ACC+i,2)}, {v(ACC+i,2)}, {v(PB+i,2)}")
    a("s_waitcnt lgkmcnt(0)")
    for i in range(0, 16, 2):
        a(f"v_pk_add_f32 {v(PB+16+i,2)}, {v(PB+16+i,2)}, {v(PB+32+i,2)}")
    for i in range(0, 16, 2):
        a(f"v_pk_add_f32 {v(ACC+i,2)}, {v(ACC+i,2)}, {v(PB+16+i,2)}")
    for i in range(0, 16, 2):
        a(f"v_pk_add_f32 {v(Y1+i,2)}, {v(Y1+i,2)}, {v(ACC+i,2)} neg_lo:[0,1] neg_hi:[0,1]")
    for i in range(0, 16, 2):
        a(f"v_pk_fma_f32 {v(ACC+i,2)}, {v(Y1+i,2)}, {v(EG,2)}, {v(ACC+i,2)} op_sel_hi:[1,0,1]")
    for i in range(8):
        a(f"v_cvt_pk_bf16_f32 v{X1+i}, v{ACC+2*i}, v{ACC+2*i+1}")
    a(f"""
    buffer_store_dwordx4 {v(X1,4)}, v{VEP}, {sr(SRD_OUT)}, 0 offen
    buffer_store_dwordx4 {v(X1+4,4)}, v{VEP}, {sr(SRD_OUT)}, 0 offen offset:16
    """)
    a.ext(stamp_end())
    a0.ext(resolve_vm(a.L))


def kwave(gemm_wg):
    sfx = "G" if gemm_wg else "S"
    ra = RA(2, 256)
    pre = Asm()
    main = Asm()
    ph2 = Asm()
    a = pre
    a(f"""
    s_setprio {OPT.get("kprio", 0)}
    s_sub_u32 s68, s{S_WIDX}, 6
    s_lshl_b32 s69, s2, 1
    s_add_u32 s69, s69, s68
    s_lshl_b32 s70, s68, 13
    s_add_u32 s70, s70, {KG_BASE}
    s_lshl_b32 s71, s69, 8
    """)
    t0 = ra(); t1 = ra(); t2 = ra(); t3 = ra()
    PR = ra(7)
    a(f"""
    v_lshlrev_b32 v{t0}, 2, v0
    v_add_u32 v{t0}, s71, v{t0}
    s_lshl_b32 s72, s69, 1
    v_mov_b32 v{t1}, s72
    """)
    for i, sb in enumerate((S_ARE, S_AIM, S_BRE, S_BIM, S_CRE, S_CIM)):
        a(f"global_load_dword v{PR+i}, v{t0}, s[{sb}:{sb+1}]")
    a(f"global_load_ushort v{PR+6}, v{t1}, s[{S_LDT}:{S_LDT+1}]")
    a(f"""
    s_cmp_lg_u32 s68, 0
    s_cbranch_scc1 K{sfx}_NOCLR
    """)
    if gemm_wg:
        a(f"""
        s_lshl_b32 s72, s{S_RB}, 6
        s_lshl_b32 s73, s{S_CB}, 1
        s_add_u32 s72, s72, s73
        s_lshl_b32 s72, s72, 7
        s_add_u32 s72, s72, {FH_OFF}
        v_lshrrev_b32 v{t0}, 1, v0
        v_and_b32 v{t1}, 1, v0
        v_lshlrev_b32 v{t0}, 12, v{t0}
        v_lshl_add_u32 v{t0}, v{t1}, 7, v{t0}
        v_add_u32 v{t0}, s72, v{t0}
        """)
    else:
        a(f"""
        s_lshl_b32 s72, s{S_XCD}, 2
        s_add_u32 s72, s72, s{S_IDX}
        s_sub_u32 s72, s72, 28
        s_lshl_b32 s72, s72, 7
        s_add_u32 s72, s72, {FU_OFF}
        v_lshlrev_b32 v{t0}, 2, v0
        v_add_u32 v{t0}, s72, v{t0}
        """)
    a(f"""
    s_lshl_b32 s72, s2, 7
    s_add_u32 s72, s72, {FY_OFF - 16}
    v_cmp_gt_u32 vcc, 4, v0
    v_lshlrev_b32 v{t1}, 2, v0
    v_add_u32 v{t1}, s72, v{t1}
    v_cndmask_b32 v{t0}, v{t1}, v{t0}, vcc
    v_mov_b32 v{t1}, 0
    s_mov_b64 exec, 0xff
    buffer_store_dword v{t1}, v{t0}, {sr(SRD_WS)}, 0 offen sc1
    s_mov_b64 exec, -1
    K{sfx}_NOCLR:
    """)

    WR = ra(8)
    RD = ra(2)
    a(f"""
    v_lshrrev_b32 v{t0}, 1, v0
    v_and_b32 v{t1}, 7, v{t0}
    v_lshlrev_b32 v{t0}, 8, v{t0}
    v_and_b32 v{t2}, 1, v0
    v_lshl_add_u32 v{t0}, v{t2}, 3, v{t0}
    v_add_u32 v{t0}, s70, v{t0}
    """)
    for b in range(8):
        a(f"""
        v_xor_b32 v{t2}, {b}, v{t1}
        v_lshl_add_u32 v{WR+b}, v{t2}, 4, v{t0}
        """)
    a(f"""
    v_and_b32 v{t0}, 15, v0
    v_lshrrev_b32 v{t1}, 4, v0
    """)
    for p in range(2):
        a(f"""
        v_add_u32 v{t2}, {4*p}, v{t1}
        v_xor_b32 v{t3}, v{t2}, v{t0}
        v_lshlrev_b32 v{t3}, 4, v{t3}
        v_lshl_add_u32 v{t3}, v{t2}, 8, v{t3}
        v_add_u32 v{RD+p}, s70, v{t3}
        """)
    TA0 = ra(); TA1 = ra(); TA2 = ra(); TA3 = ra()
    LP = ra(12)
    a(f"""
    v_and_b32 v{t2}, 1, v{t1}
    v_lshrrev_b32 v{t3}, 1, v{t1}
    v_lshlrev_b32 v{TA0}, 5, v{t0}
    v_lshl_add_u32 v{TA0}, v{t2}, 4, v{TA0}
    v_lshl_add_u32 v{TA0}, v{t3}, 9, v{TA0}
    v_lshrrev_b32 v{LP}, 2, v{TA0}
    v_cvt_f32_u32 v{LP}, v{LP}
    v_add_u32 v{TA0}, s70, v{TA0}
    v_add_f32 v{LP+1}, 1.0, v{LP}
    v_add_f32 v{LP+2}, 2.0, v{LP}
    v_add_f32 v{LP+3}, 2.0, v{LP+1}
    v_cmp_gt_u32 vcc, 2, v{t1}
    v_lshlrev_b32 v{TA1}, 4, v{t0}
    v_lshlrev_b32 v{TA2}, 3, v{t0}
    v_cndmask_b32 v{TA1}, v{TA2}, v{TA1}, vcc
    v_lshl_add_u32 v{TA1}, v{t1}, 8, v{TA1}
    v_add_u32 v{TA1}, s70, v{TA1}
    v_add_u32 v{TA1}, 1024, v{TA1}
    v_mov_b32 v{TA2}, 128
    v_cndmask_b32 v{TA2}, v{TA2}, 8, vcc
    v_add_u32 v{TA2}, v{TA2}, v{TA1}
    v_lshlrev_b32 v{TA3}, 2, v{t0}
    v_lshl_add_u32 v{TA3}, v{t1}, 8, v{TA3}
    v_add_u32 v{TA3}, s70, v{TA3}
    """)
    a(f"""
    v_lshlrev_b32 v{t2}, 7, v{t1}
    v_add_u32 v{t2}, 256, v{t2}
    v_lshlrev_b32 v{t3}, 8, v{t1}
    v_cndmask_b32 v{t2}, v{t3}, v{t2}, vcc
    v_lshl_add_u32 v{t2}, v{t0}, 3, v{t2}
    v_cvt_f32_u32 v{LP+4}, v{t2}
    v_mov_b32 v{t2}, 4.0
    v_cndmask_b32 v{t2}, v{t2}, 2.0, vcc
    v_mov_b32 v{t3}, {f32(128.0)}
    v_cndmask_b32 v{t3}, v{t3}, 4.0, vcc
    v_add_f32 v{LP+5}, v{LP+4}, v{t2}
    v_add_f32 v{LP+6}, v{LP+4}, v{t3}
    v_add_f32 v{LP+7}, v{LP+6}, v{t2}
    v_lshlrev_b32 v{t2}, 9, v{t1}
    v_lshl_add_u32 v{t2}, v{t0}, 3, v{t2}
    v_add_u32 v{t2}, 1024, v{t2}
    v_cvt_f32_u32 v{LP+8}, v{t2}
    v_add_f32 v{LP+9}, {f32(128.0)}, v{LP+8}
    v_add_f32 v{LP+10}, {f32(256.0)}, v{LP+8}
    v_add_f32 v{LP+11}, {f32(384.0)}, v{LP+8}
    """)
    EX = ra(10)
    a(f"""
    s_sub_u32 s72, s70, {4*17024}
    v_lshlrev_b32 v{t0}, 3, v0
    v_cvt_f32_u32 v{t1}, v{t0}
    v_cmp_gt_u32 vcc, 16, v0
    v_add_u32 v{EX+8}, s70, v{t0}
    v_lshlrev_b32 v{t0}, 2, v{t0}
    v_add_u32 v{t0}, s70, v{t0}
    v_lshlrev_b32 v{EX+9}, 2, v0
    v_add_u32 v{EX+9}, s70, v{EX+9}
    v_add_u32 v{EX+9}, 2048, v{EX+9}
    """)
    for kk in range(4):
        e0, e1 = EX + 2 * kk, EX + 2 * kk + 1
        a(f"""
        v_add_f32 v{t2}, 1.0, v{t1}
        v_cvt_pk_bf16_f32 v{t3}, v{t1}, v{t2}
        v_add_f32 v{t1}, 2.0, v{t1}
        v_and_b32 v{e0}, 0xffff, v{t3}
        v_lshrrev_b32 v{e1}, 16, v{t3}
        v_lshl_add_u32 v{e0}, v{e0}, 2, s72
        v_lshl_add_u32 v{e1}, v{e1}, 2, s72
        v_add_u32 v{t2}, {8*kk}, v{t0}
        v_add_u32 v{t3}, {8*kk+4}, v{t0}
        v_cndmask_b32 v{e0}, v{e0}, v{t2}, vcc
        v_cndmask_b32 v{e1}, v{e1}, v{t3}, vcc
        """)
    a(f"""
    s_waitcnt vmcnt(0)
    s_cmp_lg_u32 s68, 0
    s_cbranch_scc1 K{sfx}_NOADD
    s_and_b32 s72, s2, 7
    s_lshl_b32 s72, s72, 5
    v_mov_b32 v{t0}, s72
    v_mov_b32 v{t1}, 1
    s_mov_b64 exec, 1
    global_atomic_add v{t0}, v{t1}, s[{S_DBG}:{S_DBG+1}] sc1
    s_mov_b64 exec, -1
    K{sfx}_NOADD:
    """)

    a = main
    MASK = ra()
    DT = ra()
    PP = ra(12)
    a(f"v_mov_b32 v{MASK}, 0xffff0000")
    for i in range(6):
        a(f"v_lshlrev_b32 v{PP+2*i}, 16, v{PR+i}")
        a(f"v_and_b32 v{PP+2*i+1}, v{MASK}, v{PR+i}")
    x = PR + 6
    a(f"""
    v_lshlrev_b32 v{x}, 16, v{x}
    v_mul_f32 v{t0}, {f32(LOG2E_HI)}, v{x}
    s_mov_b32 s72, {f32(LOG2E_HI)}
    v_fma_f32 v{t1}, v{x}, s72, -v{t0}
    v_fmac_f32 v{t1}, {f32(LOG2E_LO)}, v{x}
    v_exp_f32 v{t0}, v{t0}
    v_mul_f32 v{t1}, {f32(LN2)}, v{t1}
    v_fmac_f32 v{t0}, v{t0}, v{t1}
    v_cvt_pk_bf16_f32 v{t0}, v{t0}, v{t0}
    v_lshlrev_b32 v{DT}, 16, v{t0}
    """)
    A2, TH, Br, Bi, Cr, Ci = (PP + 2 * i for i in range(6))
    for m in range(2):
        a(f"""
        v_mul_f32 v{A2+m}, v{DT}, v{A2+m}
        v_mul_f32 v{TH+m}, v{DT}, v{TH+m}
        v_mul_f32 v{Br+m}, v{DT}, v{Br+m}
        v_mul_f32 v{Bi+m}, v{DT}, v{Bi+m}
        v_mul_f32 v{A2+m}, {f32(LOG2E)}, v{A2+m}
        v_mul_f32 v{TH+m}, {f32(INV2PI)}, v{TH+m}
        """)
    W0 = ra(4); W1 = ra(4)
    for m in range(2):
        a(f"""
        v_mul_f32 v{W0+2*m}, v{Cr+m}, v{Br+m}
        v_mul_f32 v{W0+2*m+1}, v{Cr+m}, v{Bi+m}
        v_fma_f32 v{W0+2*m}, -v{Ci+m}, v{Bi+m}, v{W0+2*m}
        v_fmac_f32 v{W0+2*m+1}, v{Ci+m}, v{Br+m}
        v_sub_f32 v{W0+2*m+1}, 0, v{W0+2*m+1}
        """)
    SIG = ra(); WM = ra(); CE = ra()
    a(f"""
    v_max_f32 v{SIG}, v{A2}, v{A2+1}
    v_max3_f32 v{WM}, |v{W0}|, |v{W0+1}|, |v{W0+2}|
    v_max_f32 v{WM}, |v{W0+3}|, v{WM}
    s_nop 1
    """)
    for ctl in ("quad_perm:[1,0,3,2]", "quad_perm:[2,3,0,1]", "row_half_mirror", "row_mirror"):
        a(f"""
        v_max_f32_dpp v{SIG}, v{SIG}, v{SIG} {ctl} row_mask:0xf bank_mask:0xf
        v_max_f32_dpp v{WM}, v{WM}, v{WM} {ctl} row_mask:0xf bank_mask:0xf
        s_nop 0
        """)
    a(f"""
    v_readlane_b32 s72, v{SIG}, 0
    v_readlane_b32 s73, v{SIG}, 16
    v_readlane_b32 s74, v{SIG}, 32
    v_readlane_b32 s75, v{SIG}, 48
    v_readlane_b32 s6, v{WM}, 0
    v_readlane_b32 s7, v{WM}, 16
    v_readlane_b32 s8, v{WM}, 32
    v_readlane_b32 s9, v{WM}, 48
    v_max_f32 v{SIG}, s72, v{SIG}
    v_max_f32 v{SIG}, s73, v{SIG}
    v_max_f32 v{SIG}, s74, v{SIG}
    v_max_f32 v{SIG}, s75, v{SIG}
    v_max_f32 v{WM}, s6, v{WM}
    v_max_f32 v{WM}, s7, v{WM}
    v_max_f32 v{WM}, s8, v{WM}
    v_max_f32 v{WM}, s9, v{WM}
    v_sub_f32 v{A2}, v{A2}, v{SIG}
    v_sub_f32 v{A2+1}, v{A2+1}, v{SIG}
    v_frexp_exp_i32_f32 v{CE}, v{WM}
    v_sub_u32 v{t0}, 14, v{CE}
    v_subrev_u32 v{CE}, 29, v{CE}
    """)
    for i in range(4):
        a(f"v_ldexp_f32 v{W0+i}, v{W0+i}, v{t0}")

    def cexp(l):
        r = ra(6)
        for m in range(2):
            a(f"""
            v_mul_f32 v{t0}, {f32(float(l))}, v{A2+m}
            v_mul_f32 v{t1}, {f32(float(l))}, v{TH+m}
            v_exp_f32 v{t0}, v{t0}
            v_fract_f32 v{t1}, v{t1}
            v_cos_f32 v{t2}, v{t1}
            v_sin_f32 v{t3}, v{t1}
            s_nop 0
            v_mul_f32 v{r+2*m}, v{t0}, v{t2}
            v_mul_f32 v{r+2*m+1}, v{t0}, v{t3}
            v_sub_f32 v{r+4+m}, 0, v{r+2*m+1}
            """)
        return r

    def cmul(d, x_, b, conj=False):
        for m in range(2):
            br, bi, nbi = b + 2 * m, b + 2 * m + 1, b + 4 + m
            if conj:
                bi, nbi = nbi, bi
            a(f"""
            v_mul_f32 v{d+2*m}, v{x_+2*m}, v{br}
            v_mul_f32 v{d+2*m+1}, v{x_+2*m}, v{bi}
            v_fmac_f32 v{d+2*m}, v{x_+2*m+1}, v{nbi}
            v_fmac_f32 v{d+2*m+1}, v{x_+2*m+1}, v{br}
            """)

    def neg(b):
        for m in range(2):
            a(f"v_sub_f32 v{b+4+m}, 0, v{b+2*m+1}")

    def scale(d, x_):
        for i in range(4):
            a(f"v_mul_f32 v{d+i}, {f32(32768.0)}, v{x_+i}")

    VB = [ra(32, 4), ra(32, 4), ra(32, 4), ra(18, 4)]
    CH0 = ra(0, 4)

    def put(batch, row, r):
        h = VB[batch] + 2 * row
        if r is None:
            a(f"v_mov_b32 v{h}, 0x7800\nv_mov_b32 v{h+1}, 0x7800")
        else:
            a(f"""
            v_cvt_pk_f16_f32 v{h}, v{r}, v{r+1}
            v_cvt_pk_f16_f32 v{h+1}, v{r+2}, v{r+3}
            """)

    E8 = cexp(8)
    cur, nxt = W0, W1
    for c in range(16):
        if c < 15:
            cmul(nxt, cur, E8, conj=True)
        put(0, c, cur)
        cur, nxt = nxt, cur
    E1 = cexp(1)
    Q1 = cexp(128)
    Q8 = cexp(1024)
    P = {}
    P[1] = ra(4)
    scale(P[1], E1)
    for j in range(2, 8):
        P[j] = ra(6 if j == 4 else 4)
        cmul(P[j], P[j - 1], E1)
    put(1, 0, None)
    for j in range(1, 8):
        put(1, j, P[j])
    scale(W0, Q1)
    put(1, 8, W0)
    for j in range(1, 8):
        cmul(W0, P[j], Q1)
        put(1, 8 + j, W0)
    Q = {1: Q1, 8: Q8}
    for j in range(2, 8):
        Q[j] = {2: E1, 3: PP + 4}[j] if j < 4 else P[2 * (j - 4) + 1]
        cmul(Q[j], Q[j - 1], Q1)
    neg(P[4]); neg(Q[2]); neg(Q[3])
    for qi, j in enumerate((2, 3)):
        scale(W0, Q[j])
        put(2, 4 * qi, W0)
        for r in range(1, 4):
            cmul(W0, P[2 * r], Q[j])
            put(2, 4 * qi + r, W0)
    for aa in range(4):
        scale(W0, Q[4 + aa])
        put(2, 8 + 2 * aa, W0)
        cmul(W0, Q[4 + aa], P[4])
        put(2, 8 + 2 * aa + 1, W0)
    QS = E8
    scale(QS, Q8)
    neg(QS)
    put(3, 0, QS)
    for j in range(1, 8):
        cmul(W0, Q[j], QS)
        put(3, j, W0)
    cmul(W0, Q8, QS)
    put(3, 8, W0)
    for i in range(12):
        a(f"v_mul_f32 v{LP+i}, v{SIG}, v{LP+i}")
    for i in range(12):
        a(f"v_exp_f32 v{LP+i}, v{LP+i}")

    a = ph2
    YF = CH0
    AC = CH0 + 32
    assert AC + 12 <= ra.p

    def wr(batch, nrows):
        for row in range(nrows):
            a(f"ds_write_b64 v{WR+(row&7)}, {v(VB[batch]+2*row,2)} offset:{(row>>3)*128}")

    def fetch(F):
        for ks in range(8):
            a(f"ds_read_b128 {v(F+4*ks,4)}, v{RD+(ks&1)} offset:{(ks>>1)*2048}")

    def mfmas(tile, XF):
        for ks in range(8):
            c = "0" if ks == 0 else v(AC + 4 * tile, 4)
            a(f"v_mfma_f32_16x16x32_f16 {v(AC+4*tile,4)}, {v(XF+4*ks,4)}, {v(YF+4*ks,4)}, {c}")

    wr(0, 16); fetch(YF)
    wr(1, 16); fetch(VB[0])
    wr(2, 16); fetch(VB[1])
    a("s_waitcnt lgkmcnt(15)")
    mf0 = len(a.L)
    wr(3, 9); fetch(VB[2])
    tail = a.L[mf0:]
    del a.L[mf0:]
    m = Asm()
    sv, a = a, m
    mfmas(0, VB[0])
    a = sv
    for i in range(8):
        a.ext(tail[2 * i:2 * i + 2])
        a(m.L[i])
    a.ext(tail[16:])
    a("s_waitcnt lgkmcnt(15)")
    mfmas(1, VB[1])
    a("s_waitcnt lgkmcnt(0)")
    mfmas(2, VB[2])
    a("s_nop 3")
    for i in range(12):
        a(f"v_mul_f32 v{AC+i}, v{AC+i}, v{LP+i}")
    for i in range(12):
        a(f"v_ldexp_f32 v{AC+i}, v{AC+i}, v{CE}")
    a(f"ds_write_b128 v{TA0}, {v(AC,4)}")
    a(f"ds_write_b64 v{TA1}, {v(AC+4,2)}")
    a(f"ds_write_b64 v{TA2}, {v(AC+6,2)}")
    for r in range(4):
        a(f"ds_write_b32 v{TA3}, v{AC+8+r} offset:{2048+64*r}")
    G0 = VB[0]
    OUT = VB[1]
    for i in range(8):
        a(f"ds_read_b32 v{G0+i}, v{EX+i}")
    a(f"""
    ds_read_b64 {v(G0+8,2)}, v{EX+8} offset:1536
    ds_read_b32 v{G0+10}, v{EX+8} offset:1544
    ds_read2_b32 {v(G0+12,2)}, v{EX+9} offset0:0 offset1:1
    ds_read2_b32 {v(G0+14,2)}, v{EX+9} offset0:64 offset1:65
    v_lshlrev_b32 v{t0}, 4, v0
    v_add_u32 v{t0}, s70, v{t0}
    v_and_b32 v{t1}, 3, v0
    v_lshlrev_b32 v{t1}, 4, v{t1}
    v_add_u32 v{t1}, s70, v{t1}
    v_mov_b32 v{OUT+16}, 0
    v_mov_b32 v{OUT+17}, 0
    v_mov_b32 v{OUT+18}, 0
    v_mov_b32 v{OUT+19}, 0
    s_mov_b32 s72, 0xaaaaaaaa
    s_mov_b32 s73, 0xaaaaaaaa
    ds_write_b128 v{t1}, {v(OUT+16,4)} offset:{KARR}
    s_waitcnt lgkmcnt(0)
    """)
    for k in range(4):
        a(f"v_cvt_pk_bf16_f32 v{OUT+k}, v{G0+2*k}, v{G0+2*k+1}")
    a(f"""
    v_cvt_pk_bf16_f32 v{OUT+4}, v{G0+8}, v{G0+8}
    v_cvt_pk_bf16_f32 v{OUT+5}, v{G0+8}, v{G0+9}
    v_cvt_pk_bf16_f32 v{OUT+6}, v{G0+9}, v{G0+9}
    v_cvt_pk_bf16_f32 v{OUT+7}, v{G0+10}, v{G0+10}
    """)
    for it in (2, 3):
        T0, T1 = G0 + 8 + 2 * it, G0 + 9 + 2 * it
        o = OUT + 4 * it
        a(f"""
        v_cndmask_b32 v{t2}, v{T0}, v{T1}, s[72:73]
        v_cvt_pk_bf16_f32 v{o}, v{T0}, v{T0}
        v_cvt_pk_bf16_f32 v{o+1}, v{T0}, v{T0}
        v_cvt_pk_bf16_f32 v{o+2}, v{t2}, v{T1}
        v_cvt_pk_bf16_f32 v{o+3}, v{T1}, v{T1}
        """)
    for it in range(4):
        a(f"ds_write_b128 v{t0}, {v(OUT+4*it,4)} offset:{KARR+64+1024*it}")
    if OPT.get("dbgk"):
        a(f"""
        s_lshl_b32 s72, s69, 12
        s_add_u32 s72, s72, {KX_OFF}
        v_lshlrev_b32 v{t0}, 4, v0
        """)
        for it in range(4):
            a(f"buffer_store_dwordx4 {v(OUT+4*it,4)}, v{t0}, {sr(SRD_WS)}, s72 offen offset:{1024*it}")
    a("s_waitcnt lgkmcnt(0)")

    out = list(pre.L)
    out.extend(stamp(1))
    kx = OPT.get("kx", 0)
    if kx == 1:
        ph2.L = []
    elif kx == 2:
        ph2.L = [x for x in ph2.L if not x.startswith("v_mfma")]
    elif kx == 3:
        ph2.L = [x for x in ph2.L if not x.startswith("ds_write")]
    elif kx == 4:
        ph2.L = [x for x in ph2.L if not x.startswith("ds_read")]
    elif kx == 5:
        L2 = []
        for x in ph2.L:
            L2.append(x)
            if x.startswith("ds_write_b64"):
                L2.append("s_nop 3")
        ph2.L = L2
    if gemm_wg:
        per = OPT.get("kper", 125)
        first = OPT.get("kfirst", 100)
        p2a = OPT.get("kp2a", 48)
        p2b = OPT.get("kp2b", 100)
        pos = min(first, len(main.L))
        out.extend(main.L[:pos])
        for sidx in range(9):
            out.extend(bstamp(2, 1 + sidx))
            out.append("s_barrier")
            if sidx < 6:
                end = len(main.L) if sidx == 5 else min(pos + per, len(main.L))
                out.extend(main.L[pos:end])
                pos = end
            elif sidx == 6:
                out.extend(ph2.L[:p2a])
            elif sidx == 7:
                out.extend(ph2.L[p2a:p2b])
            else:
                out.extend(ph2.L[p2b:])
        out.extend(stamp(2))
        out.append("s_barrier")
    else:
        out.extend(main.L)
        out.extend(ph2.L)
        out.append("s_barrier")
        out.extend(stamp(2))
        out.append("s_barrier")
    out.append("s_mov_b32 s6, s68")
    out.append("s_branch L_CONVB")
    return out


def lwave(gemm_wg):
    sfx = "G" if gemm_wg else "S"
    a = Asm()
    XV, WV, VL, VC = 8, 12, 2, 16
    t0, t1, t2 = 3, 4, 5
    DUM = 24
    ROT = OPT.get("rot", 0)
    SW = 12
    a(f"""
    s_setprio 3
    s_sub_u32 s6, s{S_WIDX}, 4
    """)

    def kofs(st):
        if not ROT:
            return []
        return [f"s_add_u32 s18, s{S_PHI}, {st}", "s_and_b32 s18, s18, 7", f"s_mul_i32 s19, s18, {64*3584}",
                "s_lshl_b32 s18, s18, 7"]

    def grp(st, g):
        sl = st % 3
        if g in (1, 5):
            j = 0 if g == 1 else 1
            L = [f"s_add_u32 m0, s{10+j}, {sl*SLOT}", f"s_add_u32 s22, s{8+j}, {'s18' if ROT else st*128}"]
            L += [f"buffer_load_dwordx4 v{XV+i}, {sr(SRD_X)}, s22 offen offset:{1024*i} lds" for i in range(4)]
        else:
            j = 0 if g == 0 else g - 1
            L = [f"s_add_u32 m0, s{72+j}, {sl*SLOT}", f"s_add_u32 s22, s{68+j}, {'s19' if ROT else st*64*3584}"]
            L += [f"buffer_load_dwordx4 v{WV+i}, {sr(SW)}, s22 offen offset:{1024*i} lds" for i in range(4)]
        return L

    def pref(st):
        L = [f"s_add_u32 s22, s68, {st*64*3584}"]
        L += [f"buffer_load_dwordx4 {v(DUM+4*i,4)}, v{WV+i}, {sr(SW)}, s22 offen offset:{1024*i}" for i in range(4)]
        L += [f"s_add_u32 s22, s23, {st*128}"]
        L += [f"buffer_load_dwordx4 {v(DUM+16+4*i,4)}, v{XV+i}, {sr(SRD_X)}, s22 offen offset:{1024*i}" for i in range(2)]
        return L

    cnt_ld = f"global_load_dword v{VC}, v{t0}, s[{S_DBG}:{S_DBG+1}] sc1"
    cnt_chk = [f"v_cmp_le_u32 vcc, 32, v{VC}", "s_nop 3", "s_cmp_eq_u64 vcc, exec"]
    fu_ld = [f"buffer_load_dwordx2 v[{VC}:{VC+1}], v{t1}, {sr(SRD_WS)}, s16 offen sc1"]
    fu_chk = [f"v_min_u32 v{VC}, v{VC}, v{VC+1}", f"v_cmp_ne_u32 vcc, 0, v{VC}", "s_nop 3", "s_cmp_eq_u64 vcc, exec"]

    def poll_setup():
        a(f"""
        s_lshl_b32 s7, s2, 1
        s_add_u32 s7, s7, s6
        v_lshlrev_b32 v{VL}, 4, v0
        v_and_b32 v{t0}, 7, v0
        v_lshlrev_b32 v{t0}, 5, v{t0}
        v_lshrrev_b32 v{t1}, 1, v0
        v_lshlrev_b32 v{t1}, 7, v{t1}
        v_and_b32 v{t2}, 1, v0
        v_lshl_add_u32 v{t1}, v{t2}, 3, v{t1}
        s_mov_b32 s16, {FU_OFF}
        s_mov_b32 s77, 0x100000
        """)

    STG = 24
    assert STG + 16 * n1() <= 256

    def wd_setup():
        a(f"""
        v_lshrrev_b32 v20, 3, v0
        v_and_b32 v21, 7, v0
        v_lshrrev_b32 v22, 1, v20
        v_and_b32 v22, 1, v22
        v_lshlrev_b32 v22, 2, v22
        v_xor_b32 v21, v21, v22
        v_lshlrev_b32 v18, 10, v20
        v_lshl_add_u32 v18, v21, 4, v18
        v_add_u32 v19, 8192, v18
        s_and_b32 s17, s{S_IDX}, 7
        s_lshl_b32 s17, s17, 7
        s_mul_i32 s3, s6, {56*16384}
        s_add_u32 s3, s3, s17
        s_lshl_b32 s17, s6, 16
        v_add_u32 v7, s17, v{VL}
        """)
        a(rot_scalar(76, 17))

    wpos = [0]

    def wd_ld(n):
        for _ in range(n):
            i = wpos[0]
            if i >= n1():
                break
            wpos[0] += 1
            R = STG + 16 * i
            a(f"""
            s_lshl_b32 s22, s76, 14
            s_add_u32 s22, s22, s3
            buffer_load_dwordx4 {v(R,4)}, v18, {sr(SRD_WD)}, s22 offen
            s_add_u32 s17, s22, {28*16384}
            buffer_load_dwordx4 {v(R+4,4)}, v19, {sr(SRD_WD)}, s22 offen
            s_add_u32 s76, s76, 1
            buffer_load_dwordx4 {v(R+8,4)}, v18, {sr(SRD_WD)}, s17 offen
            s_cmp_ge_u32 s76, 28
            s_cselect_b32 s76, 0, s76
            buffer_load_dwordx4 {v(R+12,4)}, v19, {sr(SRD_WD)}, s17 offen
            """)
            a.tag(f"wd{i}")

    wwp = [0]

    def wd_wr(n):
        for i in range(wwp[0], min(n1(), wwp[0] + n)):
            wwp[0] = i + 1
            R = STG + 16 * i
            a.wait(f"wd{i}")
            for k in range(4):
                a(f"ds_write_b128 v7, {v(R+4*k,4)} offset:{(k>>1)*RING2 + i*2048 + (k&1)*1024}")

    def u_load():
        a(f"""
        s_mul_i32 s18, s6, {USZ}
        s_add_u32 s18, s18, {U_BASE}
        s_lshl_b32 s17, s7, 12
        s_add_u32 s17, s17, {UT_OFF}
        v_mov_b32 v20, 0
        v_mov_b32 v21, 0
        v_mov_b32 v22, 0
        v_mov_b32 v23, 0
        v_and_b32 v{t2}, 7, v0
        v_lshrrev_b32 v6, 3, v0
        v_and_b32 v6, 3, v6
        v_min_u32 v{t2}, 6, v{t2}
        v_mul_u32_u24 v6, {UPITCH}, v6
        v_lshl_add_u32 v{t2}, v{t2}, 4, v6
        v_add_u32 v{t2}, s18, v{t2}
        ds_write_b128 v{t2}, v[20:23]
        """)
        for r in range(4):
            a(f"""
            s_add_u32 m0, s18, {r*UPITCH + 112}
            s_nop 0
            buffer_load_dwordx4 v{VL}, {sr(SRD_WS)}, s17 offen sc1 lds
            s_add_u32 s17, s17, 1024
            """)

    GLR = 8

    def gl_load():
        a(f"""
        s_lshl_b32 s17, s{S_XCD}, 2
        s_lshr_b32 s22, s{S_IDX}, 3
        s_add_u32 s17, s17, s22
        s_lshl_b32 s17, s17, 6
        s_add_u32 s17, s17, {GL_OFF}
        v_and_b32 v{t0}, 3, v0
        v_lshrrev_b32 v{t1}, 2, v0
        v_lshlrev_b32 v{t1}, 2, v{t1}
        v_lshl_add_u32 v{t1}, v{t0}, 11, v{t1}
        """)
        for g in range(8):
            a(f"buffer_load_dword v{GLR+g}, v{t1}, {sr(SRD_WS)}, s17 offen sc1")
            if g < 7:
                a("s_add_u32 s17, s17, 8192")
        a.tag("gl")

    def gl_finish():
        E = GLR
        a.wait("gl")
        a(f"""
        v_add_f32 v{E}, v{E}, v{E+1}
        v_add_f32 v{E+2}, v{E+2}, v{E+3}
        v_add_f32 v{E+4}, v{E+4}, v{E+5}
        v_add_f32 v{E+6}, v{E+6}, v{E+7}
        v_add_f32 v{E}, v{E}, v{E+2}
        v_add_f32 v{E+4}, v{E+4}, v{E+6}
        v_add_f32 v{E}, v{E}, v{E+4}
        v_cvt_pk_bf16_f32 v{E}, v{E}, v{E}
        v_lshlrev_b32 v{E}, 16, v{E}
        v_mul_f32 v{E}, {f32(-LOG2E)}, v{E}
        v_exp_f32 v{E}, v{E}
        v_lshlrev_b32 v{t0}, 2, v0
        v_add_f32 v{E}, 1.0, v{E}
        v_rcp_f32 v{E}, v{E}
        v_add_u32 v{t0}, {G_LDS}, v{t0}
        v_cvt_pk_bf16_f32 v{E}, v{E}, v{E}
        v_lshlrev_b32 v{E}, 16, v{E}
        ds_write_b32 v{t0}, v{E}
        """)

    if gemm_wg:
        a(f"""
        v_lshrrev_b32 v{t0}, 4, v0
        v_and_b32 v{t1}, 15, v0
        v_lshlrev_b32 v{t2}, 2, v{t0}
        v_xor_b32 v{t1}, v{t1}, v{t2}
        v_mul_u32_u24 v{t0}, 3584, v{t0}
        v_lshl_add_u32 v{WV}, v{t1}, 4, v{t0}
        """)
        for i in range(1, 4):
            a(f"v_add_u32 v{WV+i}, {(4*3584-1024)*i}, v{WV}")
        a(f"""
        s_cmp_eq_u32 s6, 0
        s_cselect_b32 s{SW}, s{SRD_WG}, s{SRD_WU}
        s_cselect_b32 s{SW+1}, s{SRD_WG+1}, s{SRD_WU+1}
        s_mov_b32 s{SW+2}, {512*1792*2}
        s_mov_b32 s{SW+3}, 0x00020000
        s_and_b32 s22, s{S_IDX}, 3
        s_lshl_b32 s23, s{S_CB}, 8
        s_lshl_b32 s16, s6, 14
        s_add_u32 s16, s16, 16384
        """)
        for j in range(4):
            a(f"""
            s_add_u32 s17, s22, {j}
            s_and_b32 s17, s17, 3
            s_mul_i32 s{68+j}, s17, {16*3584}
            s_add_u32 s{68+j}, s{68+j}, s23
            s_lshl_b32 s{72+j}, s17, 12
            s_add_u32 s{72+j}, s{72+j}, s16
            """)
        a(f"""
        v_lshrrev_b32 v{t0}, 3, v0
        v_and_b32 v{t1}, 7, v0
        v_lshrrev_b32 v{t2}, 1, v{t0}
        v_xor_b32 v{t1}, v{t1}, v{t2}
        v_lshlrev_b32 v{t0}, 10, v{t0}
        """)
        for i in range(4):
            a(f"""
            v_xor_b32 v{t2}, {4*(i&1)}, v{t1}
            v_lshl_add_u32 v{XV+i}, v{t2}, 4, v{t0}
            v_add_u32 v{XV+i}, {7168*i}, v{XV+i}
            """)
        a(f"""
        s_lshr_b32 s22, s{S_IDX}, 2
        s_and_b32 s17, s22, 1
        s_lshl_b32 s17, s17, 1
        s_add_u32 s17, s17, s6
        s_lshl_b32 s16, s{S_RB}, 17
        s_lshl_b32 s8, s17, 15
        s_add_u32 s8, s8, s16
        s_lshl_b32 s10, s17, 12
        s_xor_b32 s17, s17, 2
        s_lshl_b32 s9, s17, 15
        s_add_u32 s9, s9, s16
        s_lshl_b32 s11, s17, 12
        s_lshl_b32 s22, s22, 1
        s_add_u32 s22, s22, s6
        s_and_b32 s22, s22, 7
        s_lshl_b32 s23, s22, 14
        s_add_u32 s23, s23, s16
        """)
        tail = {3: "S5 R5", 4: "S6 R6", 5: "S7 R7"}
        scheds = [
            {-1: "S0 S1 S2 R0 P3 P4", 0: "R1 P5 P6", 1: "R2 P7 S3", 2: "R3 S4 R4"},
            {-1: "S0 S1 S2 R0 R1", 0: "P3 P4 R2", 1: "P5 P6 P7 S3 R3", 2: "S4 R4"},
            {-1: "S0 R0 S1 R1", 0: "S2 R2", 1: "S3 R3", 2: "S4 R4"},
            {-1: "S0 R0 S1", 0: "R1 S2", 1: "R2 S3", 2: "R3 S4 R4"},
            {-1: "S0 R0 S1 S2 P3", 0: "R1 P4 P5", 1: "R2 P6 P7 S3", 2: "R3 S4 R4"},
            {-1: "S0 R0 S1 S2", 0: "R1 R2", 1: "S3 R3", 2: "S4 R4"},
        ]
        sched = dict(scheds[OPT.get("lsched", 4)])
        sched.update(tail)

        def issue(k):
            for tok in sched.get(k, "").split():
                st = int(tok[1:])
                if tok[0] == "S":
                    a.ext(kofs(st) + grp(st, 0) + grp(st, 1))
                elif tok[0] == "R":
                    a.ext(kofs(st))
                    for g in (2, 5, 3, 4):
                        a.ext(grp(st, g))
                    a.tag(f"st{st}")
                elif tok[0] == "P":
                    assert not ROT
                    a.ext(pref(st))
        issue(-1)
        a.ext(stamp(1))
        poll_setup()
        for sidx in range(9):
            if sidx < 8:
                a.wait(f"st{sidx}")
            a.ext(bstamp(2, 1 + sidx))
            a("s_barrier")
            if sidx in (0, 3):
                a.ext(stamp(2 + (0, 3).index(sidx)))
            issue(sidx)
            if sidx == 4:
                a(cnt_ld)
                a.tag("cnt")
            if sidx == 3:
                wd_setup()
                wd_ld(OPT.get("w3", 0))
            if sidx == 4:
                wd_ld(OPT.get("w4", 0))
            if sidx == 5:
                wd_ld(OPT.get("w5", 2))
            if sidx == 6:
                a.wait("cnt")
                a(f"s_branch PC{sfx}_CHK")
                a.ext(spin(f"PC{sfx}", [cnt_ld], cnt_chk))
                a.ext(fu_ld)
                a.tag("fu")
                wd_ld(OPT.get("w6", 5))
            if sidx == 7:
                a.wait("fu")
                a(f"s_branch PU{sfx}_CHK")
                a.ext(spin(f"PU{sfx}", fu_ld, fu_chk))
                if not OPT.get("ulate"):
                    u_load()
                wd_ld(OPT.get("w7", 4))
            if sidx == 8:
                a.ext(stamp(4))
                wd_ld(28)
                if OPT.get("ulate"):
                    u_load()
                wd_wr(6)
                gl_load()
                wd_wr(28)
                gl_finish()
        a("s_waitcnt vmcnt(0) lgkmcnt(0)")
        a.ext(stamp(5))
        a("s_barrier")
    else:
        poll_setup()
        wd_setup()
        a("s_barrier")
        a.ext(spin(f"PC{sfx}", [cnt_ld], cnt_chk))
        a.ext(spin(f"PU{sfx}", fu_ld, fu_chk))
        u_load()
        wd_ld(28)
        wd_wr(6)
        gl_load()
        wd_wr(28)
        gl_finish()
        a("s_waitcnt vmcnt(0) lgkmcnt(0)")
        a.ext(stamp(5))
        a("s_barrier")
    a("s_branch L_CONVA")
    return resolve_vm(a.L)


def conv(a0, partB):
    a = Asm()
    KA, UA, YA = 2, 3, 5
    qs, outq = ([5, 6, 7], [6, 7]) if partB else ([0, 1, 2, 3, 4, 5], [0, 1, 2, 3, 4, 5])
    a.ext(stamp(6))
    a(f"""
    s_setprio {OPT.get("cprio", 3)}
    s_lshl_b32 s8, s6, 13
    s_add_u32 s8, s8, {KG_BASE + KARR + 32}
    s_mul_i32 s9, s6, {USZ}
    s_add_u32 s9, s9, {U_BASE + 16}
    v_lshrrev_b32 v6, 2, v0
    v_and_b32 v10, 7, v6
    v_and_b32 v6, 3, v6
    v_and_b32 v7, 3, v0
    v_lshrrev_b32 v8, 4, v0
    v_and_b32 v8, 1, v8
    v_lshrrev_b32 v9, 5, v0
    v_mul_u32_u24 v{UA}, {UPITCH}, v7
    v_sub_u32 v10, v10, v9
    v_lshl_add_u32 v{UA}, v10, 4, v{UA}
    v_add_u32 v{UA}, s9, v{UA}
    v_lshlrev_b32 v{KA}, 5, v8
    v_lshl_add_u32 v{KA}, v7, 3, v{KA}
    v_lshl_add_u32 v{KA}, v9, 6, v{KA}
    v_lshlrev_b32 v10, 3, v6
    v_sub_u32 v{KA}, v{KA}, v10
    v_add_u32 v{KA}, s8, v{KA}
    """)
    qmax = max(qs)
    nst = 4 * qmax + 4
    NU = 4
    UBUF = 8
    KT = 24
    ACC = KT + 4 * nst
    TMP = ACC + 16 * len(qs)
    assert TMP + 3 * len(qs) + 1 <= 256

    def acc(q):
        return ACC + 16 * qs.index(q)

    need = {}
    for i in range(nst):
        for q in qs:
            s_ = 4 * q + 3 - i
            if s_ >= 0 and s_ not in need:
                need[s_] = i

    def rd(i):
        L = [f"ds_read_b128 {v(UBUF+4*(i%NU),4)}, v{UA} offset:{32*i}"]
        for s_ in sorted(s for s in need if need[s] == i):
            L += [f"ds_read_b64_tr_b16 {v(KT+4*s_,2)}, v{KA} offset:{128*s_+32}",
                  f"ds_read_b64_tr_b16 {v(KT+4*s_+2,2)}, v{KA} offset:{128*s_}"]
        L.append(("LTAG", f"R{i}"))
        return L

    PF = NU - 1
    a.ext(rd(0))
    a.ext(rd(1))
    a(f"""
    v_and_b32 v4, 7, v0
    v_lshrrev_b32 v{YA}, 3, v0
    v_lshlrev_b32 v{YA}, 4, v{YA}
    v_lshl_add_u32 v{YA}, v4, 7, v{YA}
    v_mov_b32 v6, 0
    v_mov_b32 v7, 1
    s_mov_b32 s12, 0
    s_mov_b32 s13, 0x80000000
    s_mov_b32 s14, 0
    s_mov_b32 s15, 0xc0000000
    s_mov_b32 s16, 0
    s_mov_b32 s17, 0xe0000000
    s_lshl_b32 s7, s2, 1
    s_add_u32 s7, s7, s6
    s_lshl_b32 s18, s7, 12
    s_add_u32 s18, s18, {Y_OFF}
    s_lshl_b32 s19, s2, 4
    s_add_u32 s19, s19, s6
    s_lshl_b32 s19, s19, 3
    s_add_u32 s19, s19, {FY_OFF + (4 if partB else 0)}
    """)

    def Y(q, g, rho):
        return acc(q) + 4 * g + rho

    dpp = "wave_ror:1 row_mask:0xf bank_mask:0xf"
    ctl = "row_mask:0xf bank_mask:0xf"

    def post(q):
        L = []
        Z = {}
        for g in (3, 2, 1, 0):
            for rho in (1, 2, 3):
                Z[g, rho] = TMP + 3 * qs.index(q) + rho - 1 if g == 3 else Y(q, g, rho)
                if g > 0:
                    prev = f"v{Y(q,g-1,rho)}"
                elif q > 0:
                    prev = f"v{Y(q-1,3,rho)}"
                else:
                    prev = "v6"
                L.append(f"v_cndmask_b32 v{Z[g,rho]}, v{Y(q,g,rho)}, {prev}, s[{10+2*rho}:{11+2*rho}]")
        for g in (3, 2, 1, 0):
            L.append(f"v_add_f32_dpp v{Z[g,2]}, v{Z[g,3]}, v{Z[g,2]} {dpp}")
        for g in (3, 2, 1, 0):
            L.append(f"v_add_f32_dpp v{Z[g,1]}, v{Z[g,2]}, v{Z[g,1]} {dpp}")
        for g in (3, 2, 1, 0):
            L.append(f"v_add_f32_dpp v{Y(q,g,0)}, v{Z[g,1]}, v{Y(q,g,0)} {dpp}")
        return L

    def stage(S_, D_, bit, stride):
        m = {0: 0xaaaaaaaa, 1: 0xcccccccc, 2: 0xf0f0f0f0}[bit]
        up = {0: "quad_perm:[1,0,3,2]", 1: "quad_perm:[2,3,0,1]", 2: "row_ror:12"}[bit]
        dn = {0: "quad_perm:[1,0,3,2]", 1: "quad_perm:[2,3,0,1]", 2: "row_ror:4"}[bit]
        L = [f"s_mov_b32 vcc_lo, {m:#x}", f"s_mov_b32 vcc_hi, {m:#x}"]
        idx = [i for i in range(len(S_)) if not (i // stride) & 1]
        L += [f"v_cndmask_b32_dpp v{D_[i+stride]}, v{S_[i]}, v{S_[i+stride]}, vcc {up} {ctl}" for i in idx]
        L += ["s_not_b64 vcc, vcc"]
        L += [f"v_cndmask_b32_dpp v{D_[i]}, v{S_[i+stride]}, v{S_[i]}, vcc {dn} {ctl}" for i in idx]
        return L

    def xpose(q):
        S0 = [Y(q - 1 + (g >> 2), g & 3, 0) for g in range(8)]
        free = [Y(qq, g, r) for qq in (q - 1, q) for g in range(3) for r in (1, 2, 3)]
        D0 = free[:8]
        S1 = free[8:12]
        D1 = free[12:16]
        D2 = [acc(q - 1) + i for i in range(4)]
        L = stage(S0, D0, 0, 1)
        L += [f"v_cvt_pk_bf16_f32 v{S1[g]}, v{D0[2*g]}, v{D0[2*g+1]}" for g in range(4)]
        L += stage(S1, D1, 1, 1)
        L += stage(D1, D2, 2, 2)
        L.append(f"buffer_store_dwordx4 {v(D2[0],4)}, v{YA}, {sr(SRD_WS)}, s18 offen offset:{(q-1)*512} sc1")
        return L

    pend = []
    FILL = OPT.get("cfill", 4)
    since = {}
    issued = 2
    for i in range(nst):
        a.L.append(("LWAIT", f"R{i}"))
        rl = []
        while issued < nst and issued <= i + (2 if i < 2 else PF):
            rl += rd(issued)
            issued += 1
        act = [q for q in qs if 4 * q + 3 - i >= 0]
        per = -(-len(rl) // len(act))
        for q in act:
            s_ = 4 * q + 3 - i
            c = "0" if i == 0 else v(acc(q), 16)
            a(f"v_mfma_f32_32x32x16_bf16 {v(acc(q),16)}, {v(UBUF+4*(i%NU),4)}, {v(KT+4*s_,4)}, {c}")
            a.ext(rl[:per])
            rl = rl[per:]
            if s_ == 0:
                since[q] = len(a.L)
            for qq in list(since):
                if len([x for x in a.L[since[qq]:] if isinstance(x, str)]) >= 14:
                    del since[qq]
                    if qq in outq:
                        pend += post(qq)
                        if (qq - outq[0]) & 1:
                            pend += xpose(qq)
            a.ext(pend[:FILL])
            pend = pend[FILL:]
    a.ext(stamp(7))
    a.ext(pend)
    a("s_nop 7\ns_nop 3")
    for qq in sorted(since):
        if qq in outq:
            a.ext(post(qq))
            if (qq - outq[0]) & 1:
                a.ext(xpose(qq))
    a.ext(stamp(8))
    a(f"""
    s_waitcnt vmcnt(0)
    s_mov_b64 exec, 1
    buffer_store_dword v7, v6, {sr(SRD_WS)}, s19 offen sc1
    """)
    a.ext(stamp_end())
    a0.ext(resolve_lds(a.L))


HEADER = open("cdna_kernels/" + NAME + ".s.ref").read().split("; Override launch")[0]


def main(path):
    a = Asm()
    prologue(a)
    gemm1(a)
    a("L_SPARE:")
    spare(a)
    a("L_GEMM2:")
    gemm2(a)
    a("L_LWAVE:")
    a(f"s_cmp_ge_u32 s{S_IDX}, 28\ns_cbranch_scc1 L_LWAVE_S")
    a.ext(lwave(True))
    a("L_LWAVE_S:")
    a.ext(lwave(False))
    a("L_KWAVE:")
    a(f"s_cmp_ge_u32 s{S_IDX}, 28\ns_cbranch_scc1 L_KWAVE_S")
    a.ext(kwave(True))
    a("L_KWAVE_S:")
    a.ext(kwave(False))
    a("L_CONVA:")
    conv(a, False)
    a("L_CONVB:")
    conv(a, True)
    a("L_END:\ns_endpgm")
    body = "\n".join(("" if ln.endswith(":") or ln.startswith(".") else "    ") + ln for ln in a.L)
    kn = NAME + "_kernel"
    txt = HEADER
    if OPT.get("list"):
        txt += f"; @launch kernel={kn} grid=(256,1,1) block=(512,1,1) lds=163840\n"
    else:
        txt += "; @launch grid=(256,1,1) block=(512,1,1) lds=163840\n"
    txt += '.amdgcn_target "amdgcn-amd-amdhsa--gfx950"\n.text\n'
    txt += f".globl {kn}\n.p2align 8\n.type {kn},@function\n{kn}:\n"
    txt += body + "\n"
    txt += f"""
.section .rodata,"a"
.p2align 6
.amdhsa_kernel {kn}
  .amdhsa_next_free_vgpr 256
  .amdhsa_next_free_sgpr 102
  .amdhsa_accum_offset 256
  .amdhsa_group_segment_fixed_size 0
  .amdhsa_kernarg_size 136
  .amdhsa_user_sgpr_count 2
  .amdhsa_user_sgpr_kernarg_segment_ptr 1
  .amdhsa_system_sgpr_workgroup_id_x 1
.end_amdhsa_kernel
"""
    open(path, "w").write(txt)


if __name__ == "__main__":
    for o in list(sys.argv):
        if o.startswith("--opt="):
            k, _, val = o[6:].partition(":")
            OPT[k] = int(val) if val else 1
            sys.argv.remove(o)
    if "--stamps" in sys.argv:
        STAMPS = True
        sys.argv.remove("--stamps")
    main(sys.argv[1] if len(sys.argv) > 1 else "cdna_kernels/" + NAME + ".s")
```

```python
import sys, struct

NAME = "gated_mix__ssm_conv_s4__swiglu_ffn__prompt"

H_OFF = 0x000000
UT_OFF = 0x800000
KX_OFF = 0xA00000
Y_OFF = 0xC00000
GL_OFF = 0xE00000
FH_OFF = 0xE40000
FY_OFF = 0xE60000
FU_OFF = 0xE68000
ST_OFF = 0xE20000
WS_BYTES = 0x1000000

STAMPS = False
HDL = []
OPT = {}
ST_BASE = 78
NST = 12


def f32(x):
    return "0x%08x" % struct.unpack("<I", struct.pack("<f", x))[0]


LOG2E = 1.4426950408889634
LOG2E_HI = struct.unpack("<f", struct.pack("<f", LOG2E))[0]
LOG2E_LO = LOG2E - LOG2E_HI
LN2 = 0.6931471805599453
INV2PI = 0.15915494309189535


class Asm:
    def __init__(self):
        self.L = []

    def __call__(self, s):
        for line in s.strip().split("\n"):
            line = line.strip()
            if line:
                self.L.append(line)

    def ext(self, lines):
        self.L.extend(lines)

    def tag(self, n):
        self.L.append(("VMTAG", n))

    def wait(self, n):
        self.L.append(("VMWAIT", n))


def v(b, n=1):
    return f"v{b}" if n == 1 else f"v[{b}:{b+n-1}]"


def sr(b):
    return f"s[{b}:{b+3}]"


class RA:
    def __init__(self, start, end):
        self.p = start
        self.end = end

    def __call__(self, n=1, align=1):
        self.p = (self.p + align - 1) // align * align
        r = self.p
        self.p += n
        assert self.p <= self.end, "out of registers"
        return r


def stamp(k, force=False):
    if not STAMPS:
        return []
    assert k < NST
    if OPT.get("dbgbar") and 1 <= k <= 9 and not force:
        return []
    op = "s_memtime" if OPT.get("cyc") else "s_memrealtime"
    return [f"{op} s[{ST_BASE+2*k}:{ST_BASE+2*k+1}]"]


def bstamp(mode, k):
    return stamp(k, True) if OPT.get("dbgbar") == mode else []


def stamp_end():
    if not STAMPS:
        return ["s_endpgm"]
    L = stamp(10) + ["s_waitcnt vmcnt(0)"] + stamp(11)
    L += ["s_waitcnt lgkmcnt(0)", "s_mov_b64 exec, 1", "s_lshl_b32 s74, s2, 3", f"s_add_u32 s74, s74, s{S_WIDX}",
          "s_lshl_b32 s74, s74, 6", f"s_add_u32 s74, s74, {ST_OFF}", "v_mov_b32 v1, 0"]
    for k in range(NST):
        L.append(f"v_mov_b32 v{4+k}, s{ST_BASE+2*k}")
    for k in range(0, NST, 4):
        L.append(f"buffer_store_dwordx4 v[{4+k}:{7+k}], v1, {sr(SRD_WS)}, s74 offen offset:{4*k}")
    if OPT.get("hdbg"):
        lab = f"HD{len(HDL)}"
        HDL.append(lab)
        L += [f"v_not_b32 v20, v4", f"global_atomic_umax v1, v20, s[{S_DBG}:{S_DBG+1}] offset:56",
              f"global_atomic_umax v1, v15, s[{S_DBG}:{S_DBG+1}] offset:60",
              f"s_cmp_lg_u32 s2, {OPT['hdbg']}", f"s_cbranch_scc1 {lab}", f"s_cmp_lg_u32 s{S_WIDX}, 0", f"s_cbranch_scc1 {lab}"]
        words = [1, 2, 3, 4, 5, 6, 7, 9, 10, 11, 12]
        for k in range(1, NST):
            L += [f"v_sub_u32 v20, v{4+k}, v4", f"global_store_dword v1, v20, s[{S_DBG}:{S_DBG+1}] offset:{4*words[k-1]}", "s_nop 1"]
        L += [f"global_store_dword v1, v4, s[{S_DBG}:{S_DBG+1}] offset:52"]
        L.append(f"{lab}:")
    L.append("s_endpgm")
    return L


def is_vmem(line):
    return line.startswith("buffer_") or line.startswith("global_")


def resolve_vm(lines):
    out = []
    count = 0
    tags = {}
    done = -1
    for ln in lines:
        if isinstance(ln, tuple):
            if ln[0] == "VMTAG":
                tags[ln[1]] = count
            elif ln[0] == "VMWAIT":
                if tags[ln[1]] <= done:
                    continue
                n = count - tags[ln[1]]
                assert 0 <= n <= 63, n
                out.append(f"s_waitcnt vmcnt({n})")
                done = tags[ln[1]]
            elif ln[0] == "VMRESET":
                done = count
            elif ln[0] == "NOCOUNT":
                out.append(ln[1])
            else:
                raise ValueError(ln)
        else:
            if is_vmem(ln):
                count += 1
            out.append(ln)
    return out


def resolve_lds(lines):
    out = []
    count = 0
    tags = {}
    for ln in lines:
        if isinstance(ln, tuple):
            if ln[0] == "LTAG":
                tags[ln[1]] = count
            elif ln[0] == "LWAIT":
                out.append(f"s_waitcnt lgkmcnt({min(15, count - tags[ln[1]])})")
            else:
                raise ValueError(ln)
        else:
            if ln.startswith("ds_"):
                count += 1
            out.append(ln)
    return out


SLOT = 49152
KG_BASE = 147456
KARR = 3584
U_BASE = 131072
UPITCH = 1344
USZ = 4 * UPITCH
YB_BASE = U_BASE + 2 * USZ
RING2 = 32768

S_U, S_ARE, S_AIM, S_BRE, S_BIM, S_CRE, S_CIM, S_LDT = 4, 6, 8, 10, 12, 14, 16, 18
S_DS = 20
S_WG, S_WU, S_WD, S_GW = 24, 26, 28, 30
S_OUT, S_DBG, S_WS = 32, 34, 36
S_WIDX, S_XCD, S_IDX, S_RB, S_CB, S_PHI = 38, 39, 40, 41, 42, 43
SRD_X, SRD_WG, SRD_WU, SRD_WS, SRD_WD, SRD_OUT = 44, 48, 52, 56, 60, 64


def srd(a, d, base, nbytes):
    a(f"""
    s_mov_b32 s{d}, s{base}
    s_and_b32 s{d+1}, s{base+1}, 0xffff
    s_mov_b32 s{d+2}, {nbytes}
    s_mov_b32 s{d+3}, 0x00020000
    """)


def prologue(a):
    a("""
    s_cmp_ge_u32 s2, 256
    s_cbranch_scc1 L_END
    """)
    if STAMPS:
        a.ext([f"s_mov_b32 s{ST_BASE+2*k}, 0" for k in range(NST)])
    a.ext(stamp(0))
    a(f"""
    s_load_dwordx16 s[4:19], s[0:1], 0
    s_load_dwordx8 s[24:31], s[0:1], 80
    s_load_dwordx2 s[36:37], s[0:1], 128
    s_load_dwordx4 s[32:35], s[0:1], 112
    s_load_dwordx2 s[20:21], s[0:1], 64
    v_lshrrev_b32 v1, 6, v0
    v_and_b32 v0, 63, v0
    s_and_b32 s{S_XCD}, s2, 7
    v_readfirstlane_b32 s{S_WIDX}, v1
    s_lshr_b32 s{S_IDX}, s2, 3
    s_and_b32 s68, s{S_IDX}, 3
    s_lshr_b32 s69, s{S_IDX}, 2
    s_lshr_b32 s{S_RB}, s{S_XCD}, 1
    s_lshl_b32 s{S_RB}, s{S_RB}, 2
    s_add_u32 s{S_RB}, s{S_RB}, s68
    s_and_b32 s{S_CB}, s{S_XCD}, 1
    s_mul_i32 s{S_CB}, s{S_CB}, 7
    s_add_u32 s{S_CB}, s{S_CB}, s69
    s_lshl_b32 s{S_PHI}, s68, 1
    s_add_u32 s{S_PHI}, s{S_PHI}, s69
    s_and_b32 s{S_PHI}, s{S_PHI}, 7
    s_waitcnt lgkmcnt(0)
    """)
    srd(a, SRD_X, S_U, 2048 * 512 * 2)
    srd(a, SRD_WG, S_WG, 512 * 1792 * 2)
    srd(a, SRD_WU, S_WU, 512 * 1792 * 2)
    srd(a, SRD_WS, S_WS, WS_BYTES)
    srd(a, SRD_WD, S_WD, 1792 * 512 * 2)
    srd(a, SRD_OUT, S_OUT, 2048 * 512 * 2)
    a(f"""
    s_cmp_ge_u32 s{S_WIDX}, 6
    s_cbranch_scc1 L_KWAVE
    s_cmp_ge_u32 s{S_WIDX}, 4
    s_cbranch_scc1 L_LWAVE
    s_cmp_ge_u32 s{S_IDX}, 28
    s_cbranch_scc1 L_SPARE
    """)


VL16 = 1
XD = 8
(VD0, VD1, DA0, DA1, VEP, VPH, VFL, VG, VY, VYW, VYT, VW1, VW2, VW3, VR1, VR23) = range(112, 128)
YT_BASE = YB_BASE
G_LDS = YB_BASE
def n1():
    return OPT.get("n1", 14)


def rot_scalar(dst, tmp):
    return f"""
    s_and_b32 s{dst}, s{S_IDX}, 1
    s_lshl_b32 s{dst}, s{dst}, 1
    s_lshr_b32 s{tmp}, s{S_IDX}, 3
    s_add_u32 s{dst}, s{dst}, s{tmp}
    s_and_b32 s{dst}, s{dst}, 3
    s_mul_i32 s{dst}, s{dst}, 7
    """


def gemm2_setup(a):
    a(f"""
    s_lshl_b32 s6, s{S_XCD}, 2
    s_lshr_b32 s13, s{S_IDX}, 3
    s_add_u32 s6, s6, s13
    s_and_b32 s7, s{S_IDX}, 7
    s_lshl_b32 s17, s6, 6
    s_lshr_b32 s23, s{S_WIDX}, 1
    s_lshl_b32 s13, s23, 5
    s_add_u32 s17, s17, s13
    s_lshl_b32 s18, s7, 6
    s_and_b32 s14, s{S_WIDX}, 1
    s_lshl_b32 s13, s14, 5
    s_add_u32 s18, s18, s13
    v_lshrrev_b32 v5, 5, v0
    v_and_b32 v6, 31, v0
    v_add_u32 v6, s17, v6
    v_lshlrev_b32 v7, 4, v5
    v_add_u32 v7, s18, v7
    v_lshlrev_b32 v7, 1, v7
    v_lshl_add_u32 v{VEP}, v6, 10, v7
    v_mov_b32 v{VR23}, v7
    s_lshl_b32 s8, s{S_WIDX}, 15
    s_lshl_b32 s9, s6, 1
    s_add_u32 s9, s9, s23
    s_mul_i32 s9, s9, 112
    s_mul_i32 s13, s{S_WIDX}, 28
    s_add_u32 s9, s9, s13
    s_lshl_b32 s9, s9, 10
    s_mul_i32 s22, s23, {224*1024}
    s_sub_u32 s22, {112*1024}, s22
    s_lshl_b32 s10, s13, 14
    s_lshl_b32 s13, s7, 7
    s_add_u32 s10, s10, s13
    """)
    a(rot_scalar(12, 13))
    a(f"""
    s_add_u32 s11, s12, {n1()}
    s_cmp_ge_u32 s11, 28
    s_cselect_b32 s13, 28, 0
    s_sub_u32 s11, s11, s13
    s_lshl_b32 s15, s6, 5
    s_mul_i32 s13, s{S_WIDX}, 7
    s_add_u32 s15, s15, s13
    s_lshl_b32 s15, s15, 7
    s_add_u32 s15, s15, {FH_OFF}
    s_lshl_b32 s13, s7, 2
    s_add_u32 s13, s13, s{S_WIDX}
    s_lshl_b32 s16, s13, 10
    s_add_u32 s16, s16, {FY_OFF}
    s_lshl_b32 s19, s13, 16
    s_lshl_b32 s13, s6, 7
    s_add_u32 s19, s19, s13
    s_add_u32 s19, s19, {Y_OFF}
    v_lshlrev_b32 v{VL16}, 4, v0
    v_lshrrev_b32 v2, 3, v0
    v_and_b32 v3, 7, v0
    v_lshlrev_b32 v{VY}, 12, v2
    v_lshl_add_u32 v{VY}, v3, 4, v{VY}
    v_lshrrev_b32 v4, 1, v2
    v_and_b32 v4, 1, v4
    v_lshlrev_b32 v4, 2, v4
    v_xor_b32 v3, v3, v4
    v_lshlrev_b32 v{VD0}, 10, v2
    v_lshl_add_u32 v{VD0}, v3, 4, v{VD0}
    v_add_u32 v{VD1}, {8192-1024}, v{VD0}
    v_lshlrev_b32 v{VYW}, 7, v2
    v_lshl_add_u32 v{VYW}, v3, 4, v{VYW}
    v_add_u32 v{VYW}, s8, v{VYW}
    v_lshrrev_b32 v2, 2, v0
    v_and_b32 v2, 3, v2
    v_and_b32 v3, 3, v0
    v_lshrrev_b32 v4, 4, v0
    v_and_b32 v4, 1, v4
    v_lshl_add_u32 v6, v5, 2, v2
    v_lshlrev_b32 v6, 7, v6
    v_and_b32 v7, 1, v3
    v_lshl_add_u32 v6, v7, 5, v6
    v_lshl_add_u32 v6, v4, 4, v6
    v_lshrrev_b32 v7, 1, v3
    v_lshl_add_u32 v6, v7, 3, v6
    v_add_u32 v6, s8, v6
    v_lshrrev_b32 v7, 1, v2
    v_xor_b32 v7, s14, v7
    v_lshl_add_u32 v{DA0}, v7, 6, v6
    v_xor_b32 v7, 1, v7
    v_lshl_add_u32 v{DA1}, v7, 6, v6
    s_lshl_b32 s13, s14, 1
    v_add_u32 v6, s13, v5
    v_lshlrev_b32 v{VYT}, 15, v6
    v_lshl_add_u32 v{VYT}, v2, 7, v{VYT}
    v_lshrrev_b32 v7, 1, v2
    v_xor_b32 v7, s23, v7
    v_lshl_add_u32 v{VYT}, v7, 6, v{VYT}
    v_lshl_add_u32 v{VYT}, v4, 5, v{VYT}
    v_lshl_add_u32 v{VYT}, v3, 3, v{VYT}
    v_min_u32 v{VPH}, 6, v0
    v_lshlrev_b32 v{VPH}, 7, v{VPH}
    v_lshrrev_b32 v2, 2, v0
    v_and_b32 v2, 7, v2
    v_lshlrev_b32 v{VFL}, 7, v2
    v_lshl_add_u32 v{VFL}, v3, 2, v{VFL}
    v_and_b32 v{VG}, 31, v0
    s_lshl_b32 s13, s23, 5
    v_add_u32 v{VG}, s13, v{VG}
    v_lshlrev_b32 v{VG}, 2, v{VG}
    v_add_u32 v{VG}, {G_LDS}, v{VG}
    v_add_u32 v{VW1}, s8, v{VL16}
    s_xor_b32 s13, s{S_WIDX}, 1
    s_lshl_b32 s13, s13, 15
    v_add_u32 v{VR1}, s13, v{VL16}
    s_xor_b32 s13, s{S_WIDX}, 2
    s_lshl_b32 s13, s13, 15
    v_add_u32 v{VW2}, s13, v{VL16}
    s_xor_b32 s13, s{S_WIDX}, 3
    s_lshl_b32 s13, s13, 15
    v_add_u32 v{VW3}, s13, v{VL16}
    """)


def xd_loads():
    return [f"buffer_load_dwordx4 {v(XD,4)}, v{VEP}, {sr(SRD_X)}, 0 offen",
            f"buffer_load_dwordx4 {v(XD+4,4)}, v{VEP}, {sr(SRD_X)}, 0 offen offset:16",
            f"global_load_dwordx4 v[4:7], v{VR23}, s[{S_DS}:{S_DS+1}]",
            f"global_load_dwordx4 v[36:39], v{VR23}, s[{S_DS}:{S_DS+1}] offset:16"]


def xd_finish():
    L = ["s_mov_b32 s74, 0xffff0000", "s_waitcnt vmcnt(0)"]
    for i in range(8):
        d = 4 + i if i < 4 else 32 + i
        L += [f"v_lshlrev_b32 v2, 16, v{XD+i}", f"v_and_b32 v3, s74, v{XD+i}",
              f"v_lshlrev_b32 v34, 16, v{d}", f"v_and_b32 v35, s74, v{d}",
              "v_mul_f32 v2, v2, v34", "v_mul_f32 v3, v3, v35", f"v_cvt_pk_bf16_f32 v{XD+i}, v2, v3"]
    return L


def gemm1(a):
    XA = 16
    WA = 28
    BUFS = [64, 88, 40]
    ACC = 128

    def acc(mat, t, tt):
        return ACC + 16 * (mat * 4 + t * 2 + tt)

    def wf(b, mat, t):
        return BUFS[b] + 4 * (mat * 2 + t)

    def xf(b, tt):
        return BUFS[b] + 16 + 4 * tt

    gemm2_setup(a)
    a(f"""
    s_lshr_b32 s68, s{S_WIDX}, 1
    s_and_b32 s69, s{S_WIDX}, 1
    v_and_b32 v7, 31, v0
    v_lshrrev_b32 v2, 5, v0
    v_lshrrev_b32 v3, 1, v0
    v_and_b32 v3, 7, v3
    s_lshl_b32 s70, s68, 13
    v_lshlrev_b32 v4, 7, v7
    v_add_u32 v4, s70, v4
    """)
    for ks in range(4):
        a(f"""
        v_add_u32 v5, {2*ks}, v2
        v_xor_b32 v5, v5, v3
        v_lshl_add_u32 v{XA+ks}, v5, 4, v4
        """)
    a(f"""
    v_lshrrev_b32 v7, 2, v0
    v_and_b32 v7, 3, v7
    v_and_b32 v3, 3, v0
    v_lshrrev_b32 v4, 4, v0
    v_and_b32 v4, 1, v4
    v_lshl_add_u32 v5, v2, 3, v7
    v_lshlrev_b32 v5, 8, v5
    v_lshl_add_u32 v5, v4, 5, v5
    v_lshl_add_u32 v5, v3, 3, v5
    s_lshl_b32 s70, s69, 1
    """)
    for t in range(2):
        a(f"""
        s_add_u32 s71, s70, {t}
        v_xor_b32 v6, s71, v7
        v_lshl_add_u32 v{WA+t}, v6, 6, v5
        """)
    for sl in (1, 2):
        for ks in range(4):
            a(f"v_add_u32 v{XA+4*sl+ks}, {sl*SLOT}, v{XA+ks}")
        for t in range(2):
            a(f"v_add_u32 v{WA+2*sl+t}, {sl*SLOT}, v{WA+t}")
    a(f"""
    s_lshl_b32 s70, s{S_RB}, 2
    s_lshl_b32 s71, s68, 1
    s_add_u32 s70, s70, s71
    s_mul_i32 s70, s70, 112
    s_lshl_b32 s71, s{S_CB}, 3
    s_add_u32 s70, s70, s71
    s_lshl_b32 s71, s69, 2
    s_add_u32 s70, s70, s71
    s_lshl_b32 s70, s70, 10
    s_add_u32 s71, s70, {112*1024}
    s_lshl_b32 s3, s{S_RB}, 1
    s_add_u32 s3, s3, s68
    s_lshl_b32 s3, s3, 5
    s_lshl_b32 s72, s{S_CB}, 1
    s_add_u32 s3, s3, s72
    s_add_u32 s3, s3, s69
    s_lshl_b32 s3, s3, 7
    s_add_u32 s3, s3, {FH_OFF}
    s_mov_b32 s72, {f32(-LOG2E)}
    s_mov_b32 s73, {f32(-LOG2E)}
    """)

    def reads(n):
        st, ks = n >> 2, n & 3
        sl = st % 3
        b = n % 3
        r = []
        r.append(f"ds_read_b128 {v(xf(b,0),4)}, v{XA+4*sl+ks}")
        for mat in range(2):
            for t in range(2):
                for h2 in range(2):
                    off = 16384 * (1 + mat) + ks * 4096 + h2 * 1024
                    r.append(f"ds_read_b64_tr_b16 {v(wf(b,mat,t)+2*h2,2)}, v{WA+2*sl+t} offset:{off}")
                if mat == 0 and t == 0:
                    r.append(f"ds_read_b128 {v(xf(b,1),4)}, v{XA+4*sl+ks} offset:4096")
        return r

    T = 16

    def epi(p):
        t, tt = p >> 1, p & 1
        G, U = acc(0, t, tt), acc(1, t, tt)
        o = 32 + 8 * p
        L = []
        for h in range(2):
            R = range(8 * h, 8 * h + 8)
            L += [f"v_pk_mul_f32 {v(T+i,2)}, {v(G+i,2)}, s[72:73]" for i in R[::2]]
            for i in R[::2]:
                L += [f"v_exp_f32 v{T+i}, v{T+i}", f"v_exp_f32 v{T+i+1}, v{T+i+1}",
                      f"v_pk_mul_f32 {v(U+i,2)}, {v(G+i,2)}, {v(U+i,2)}"]
            L += [f"v_pk_add_f32 {v(T+i,2)}, {v(T+i,2)}, 1.0 op_sel_hi:[1,0]" for i in R[::2]]
            L += [f"v_rcp_f32 v{T+i}, v{T+i}" for i in R]
            L += [f"v_pk_mul_f32 {v(U+i,2)}, {v(U+i,2)}, {v(T+i,2)}" for i in R[::2]]
            for i in range(4):
                L.append(f"v_cvt_pk_bf16_f32 v{o+4*h+i}, v{U+8*h+2*i}, v{U+8*h+2*i+1}")
            L.append(f"buffer_store_dwordx4 {v(o+4*h,4)}, v{VL16}, {sr(SRD_WS)}, s{70+tt} offen offset:{t*2048+1024*h} sc1")
        return L

    a("s_barrier")
    a.ext(stamp(1))
    a.ext(bstamp(2, 1))
    a.ext(reads(0))
    a.ext(reads(1))
    extra = []
    XL = OPT.get("xl", 13)
    for n in range(32):
        b = n % 3
        if (n & 3) == 2:
            a("s_waitcnt lgkmcnt(0)")
            a.ext(bstamp(2, 2 + (n >> 2)))
            a("s_barrier")
            if n == 22:
                a.ext(stamp(2))
        elif (n & 3) != 3:
            a("s_waitcnt lgkmcnt(10)")
        rd = reads(n + 2) if n + 2 < 32 else []
        mf = []
        for t in range(2):
            for tt in range(2):
                for mat in range(2):
                    c = "0" if n == 0 else v(acc(mat, t, tt), 16)
                    mf.append(f"v_mfma_f32_32x32x16_bf16 {v(acc(mat,t,tt),16)}, {v(wf(b,mat,t),4)}, {v(xf(b,tt),4)}, {c}")
        if n == XL:
            extra = xd_loads()
        if n == XL + 6:
            extra = xd_finish()
        for i, m in enumerate(mf):
            a(m)
            a.ext(rd[2 * i:2 * i + 2])
            if i >= 4:
                a.ext(extra[:3])
                extra = extra[3:]
    assert not extra
    a.ext(stamp(3))
    a("s_nop 7")
    for p in range(4):
        a.ext(epi(p))
    a.ext(stamp(4))
    a("s_branch L_GEMM2")


def spare(a):
    R = 16
    O = 80
    GWv = 112
    SUM = 120
    a(f"""
    s_lshl_b32 s68, s{S_XCD}, 2
    s_add_u32 s68, s68, s{S_IDX}
    s_sub_u32 s68, s68, 28
    s_lshr_b32 s69, s68, 2
    s_lshl_b32 s3, s68, 5
    s_add_u32 s3, s3, s{S_WIDX}
    s_lshl_b32 s3, s3, 2
    s_add_u32 s3, s3, {FU_OFF}
    s_lshl_b32 s68, s68, 2
    s_add_u32 s68, s68, s{S_WIDX}
    s_and_b32 s68, s68, 15
    v_and_b32 v1, 7, v0
    v_lshrrev_b32 v2, 3, v0
    v_lshlrev_b32 v3, 15, v2
    v_lshl_add_u32 v3, v1, 4, v3
    v_lshlrev_b32 v4, 15, v1
    v_lshl_add_u32 v4, v2, 4, v4
    v_lshlrev_b32 v5, 4, v1
    v_lshlrev_b32 v6, 2, v0
    s_mov_b32 s70, 0x05040100
    s_mov_b32 s71, 0x07060302
    s_lshl_b32 s72, s69, 7
    v_add_u32 v7, s72, v5
    global_load_dwordx4 {v(GWv,4)}, v7, s[{S_GW}:{S_GW+1}]
    """)
    for i in range(2):
        b = 6 + 4 * i
        a(f"""
        s_lshl_b32 s73, s68, 1
        s_add_u32 s73, s73, {i}
        s_lshr_b32 s74, s73, 2
        s_and_b32 s73, s73, 3
        s_lshl_b32 s{b}, s74, 18
        s_lshl_b32 s75, s73, 10
        s_add_u32 s{b}, s{b}, s75
        s_add_u32 s{b}, s{b}, s72
        s_lshl_b32 s{b+1}, s69, 18
        s_add_u32 s{b+1}, s{b+1}, s75
        s_lshl_b32 s75, s74, 7
        s_add_u32 s{b+1}, s{b+1}, s75
        s_add_u32 s{b+1}, s{b+1}, {UT_OFF}
        s_lshl_b32 s{b+2}, s74, 8
        s_lshl_b32 s75, s73, 11
        s_add_u32 s{b+2}, s{b+2}, s75
        s_lshl_b32 s75, s69, 13
        s_add_u32 s{b+2}, s{b+2}, s75
        s_add_u32 s{b+2}, s{b+2}, {GL_OFF}
        """)
        for j in range(8):
            a(f"buffer_load_dwordx4 {v(R+32*i+4*j,4)}, v3, {sr(SRD_X)}, s{b} offen")
            if j < 7:
                a(f"s_add_u32 s{b}, s{b}, 4096")
    for i in range(2):
        b = 6 + 4 * i
        a(f"s_waitcnt vmcnt({8 if i == 0 else 9})")
        Ri = R + 32 * i
        for e in range(8):
            for jj in range(4):
                sel = 71 if (e & 1) else 70
                a(f"v_perm_b32 v{O+4*e+jj}, v{Ri+4*(2*jj+1)+(e>>1)}, v{Ri+4*(2*jj)+(e>>1)}, s{sel}")
            a(f"buffer_store_dwordx4 {v(O+4*e,4)}, v4, {sr(SRD_WS)}, s{b+1} offen sc1")
            if e < 7:
                a(f"s_add_u32 s{b+1}, s{b+1}, 4096")
        for j in range(8):
            a(f"v_mov_b32 v{SUM+j}, 0")
        for q in range(4):
            for j in range(8):
                a(f"v_dot2c_f32_bf16 v{SUM+j}, v{Ri+4*j+q}, v{GWv+q}")
        a("s_nop 3")
        for ctl in ("quad_perm:[1,0,3,2]", "quad_perm:[2,3,0,1]", "row_half_mirror"):
            for j in range(8):
                a(f"v_add_f32_dpp v{SUM+j}, v{SUM+j}, v{SUM+j} {ctl} row_mask:0xf bank_mask:0xf")
        for j in range(1, 8):
            a(f"""
            v_cmp_eq_u32 vcc, {j}, v1
            s_nop 1
            v_cndmask_b32 v{SUM}, v{SUM}, v{SUM+j}, vcc
            """)
        a(f"buffer_store_dword v{SUM}, v6, {sr(SRD_WS)}, s{b+2} offen sc1")
        a("s_nop 1")
    a.ext(stamp(1))
    a(f"""
    v_mov_b32 v2, 0
    v_mov_b32 v3, 1
    s_waitcnt vmcnt(0)
    s_barrier
    s_mov_b64 exec, 1
    buffer_store_dword v3, v2, {sr(SRD_WS)}, s3 offen sc1
    s_mov_b64 exec, -1
    """)
    a.ext(stamp(2))
    gemm2_setup(a)
    a.ext(xd_loads())
    a(f"""
    s_lshl_b32 s13, s{S_XCD}, 2
    s_add_u32 s13, s13, s{S_IDX}
    s_sub_u32 s13, s13, 28
    s_lshl_b32 s13, s13, 2
    s_add_u32 s13, s13, s{S_WIDX}
    s_mul_i32 s13, s13, {14*1024}
    """)
    for i in range(14):
        if i % 4 == 0 and i:
            a("s_add_u32 s13, s13, 4096")
        a(f"buffer_load_dwordx4 {v(64+4*(i%4),4)}, v{VL16}, {sr(SRD_WD)}, s13 offen offset:{1024*(i%4)}")
    a.ext(xd_finish())


def spin(label, loads, checks):
    L = [f"{label}_SPIN:", "s_sleep 1"]
    L += [("NOCOUNT", x) for x in loads]
    L += ["s_waitcnt vmcnt(0)"]
    L += ["s_sub_u32 s77, s77, 1", "s_cmp_eq_u32 s77, 0", f"s_cbranch_scc1 {label}_OK"]
    L += [f"{label}_CHK:"] + checks
    L += [f"s_cbranch_scc0 {label}_SPIN", f"{label}_OK:"]
    return L


def gemm2(a0):
    a = Asm()
    NS = 28
    NP = 12
    NR = 16
    DH = 6
    ACC = 192
    WF = 16
    WFR = 128
    HB = 144
    N1 = n1()
    NF = OPT.get("nf", 2)
    PP1 = OPT.get("pp1", 21)
    N2 = OPT.get("n2", 28)

    def acc(t, tt):
        return ACC + 16 * (t + 2 * tt)

    def wload(i):
        sl = i % NR
        return [
            "s_lshl_b32 s14, s11, 14", f"s_add_u32 m0, s8, {sl*2048}", "s_add_u32 s14, s14, s10",
            f"buffer_load_dwordx4 v{VD0}, {sr(SRD_WD)}, s14 offen lds",
            "s_add_u32 s11, s11, 1", "s_cmp_ge_u32 s11, 28", "s_cselect_b32 s11, 0, s11",
            f"buffer_load_dwordx4 v{VD1}, {sr(SRD_WD)}, s14 offen offset:1024 lds",
            ("VMTAG", f"W{i}"),
        ]

    def hload(i):
        sl = i % DH
        return [
            "s_lshl_b32 s13, s12, 10", "s_add_u32 s13, s13, s9",
            f"buffer_load_dwordx4 {v(HB+8*sl,4)}, v{VL16}, {sr(SRD_WS)}, s13 offen sc1",
            "s_add_u32 s13, s13, s22",
            "s_add_u32 s12, s12, 1", "s_cmp_ge_u32 s12, 28", "s_cselect_b32 s12, 0, s12",
            f"buffer_load_dwordx4 {v(HB+8*sl+4,4)}, v{VL16}, {sr(SRD_WS)}, s13 offen sc1",
            ("VMTAG", f"H{i}"),
        ]

    def wfrag(i):
        return WF + 8 * i if i < NP else WFR + 8 * (i & 1)

    def trd(i):
        sl = i % NR
        r = [("VMWAIT", f"W{i}")] if i >= N1 else []
        for t in range(2):
            for h2 in range(2):
                r.append(f"ds_read_b64_tr_b16 {v(wfrag(i)+4*t+2*h2,2)}, v{DA0+t} offset:{sl*2048+h2*1024}")
        return r

    a.tag("hst")
    a("s_barrier")
    a.ext(stamp(5))
    a(f"""
    s_setprio 2
    v_mov_b32 v2, 0
    v_mov_b32 v3, 1
    s_mov_b32 s77, 0x100000
    """)
    ph_ld = f"buffer_load_dword v4, v{VPH}, {sr(SRD_WS)}, s15 offen sc1"

    def wl(i):
        a.ext(wload(i))
        if i == N1 + NF - 1:
            a.wait("hst")
            a(f"""
            s_mov_b64 exec, 1
            buffer_store_dword v3, v2, {sr(SRD_WS)}, s3 offen sc1
            s_mov_b64 exec, -1
            """)
            a.ext(stamp(6))
        if i == PP1:
            a(ph_ld)
            a.tag("P1")
    assert N1 + NF <= NR
    for i in range(N1, NR):
        wl(i)
    for i in range(NP + 1):
        if i < NP:
            a.ext(trd(i))
        if i >= 1 and NR + i - 1 < N2:
            a(f"s_waitcnt lgkmcnt({4 if i < NP else 0})")
            wl(NR + i - 1)
    a.ext(stamp(7))
    a.wait("P1")
    a("s_branch PH_CHK")
    a.ext(spin("PH", [ph_ld], ["v_cmp_ne_u32 vcc, 0, v4", "s_nop 3", "s_cmp_eq_u64 vcc, exec"]))
    a.ext(stamp(8))
    a.ext(bstamp(3, 1))
    for i in range(DH):
        a.ext(hload(i))
    a("s_waitcnt lgkmcnt(0)")

    YR, FL, YT, EG = 80, 2, WFR, 6
    fl_ld = [f"buffer_load_dword v{FL}, v{VFL}, {sr(SRD_WS)}, s16 offen sc1"]
    chk = [f"v_cmp_ne_u32 vcc, 0, v{FL}", "s_nop 3", "s_cmp_eq_u64 vcc, exec"]

    def yloads():
        return [f"buffer_load_dwordx4 {v(YR,4)}, v{VY}, {sr(SRD_WS)}, s19 offen sc1",
                "s_add_u32 s13, s19, 0x8000",
                f"buffer_load_dwordx4 {v(YR+4,4)}, v{VY}, {sr(SRD_WS)}, s13 offen sc1"]

    IF = OPT.get("if", 22)
    IY = OPT.get("iy", 25)
    for i in range(NS):
        sl = i % DH
        a.wait(f"H{i}")
        if i >= NP:
            a("s_waitcnt lgkmcnt(0)")
        hl = hload(i - 1 + DH) if 1 <= i and i - 1 + DH < NS else []
        fill = [(trd(i + 1) if NP <= i + 1 < NS else []) + hl[:3], hl[3:], wload(N2 + i) if N2 + i < NS else [], []]
        k = 0
        for t in range(2):
            for tt in range(2):
                c = "0" if i == 0 else v(acc(t, tt), 16)
                a(f"v_mfma_f32_32x32x16_bf16 {v(acc(t,tt),16)}, {v(wfrag(i)+4*t,4)}, {v(HB+8*sl+4*tt,4)}, {c}")
                a.ext(fill[k])
                k += 1
        if i in (0, 3, 7, 11, 15, 19, 23, 27):
            a.ext(bstamp(3, 2 + (0, 3, 7, 11, 15, 19, 23, 27).index(i)))
        if i == IF:
            a.ext(fl_ld)
            a.tag("F")
        if i == IY:
            a.wait("F")
            a.ext(yloads())
    a.ext(stamp(9))
    a.ext(chk)
    a("s_cbranch_scc1 PY_DONE")
    a.ext(spin("PY", fl_ld, chk))
    a.ext([("NOCOUNT", x) if is_vmem(x) else x for x in yloads()])
    a("PY_DONE:")
    a("s_nop 5")
    for k in range(1, 4):
        for g in range(4):
            a(f"ds_write_b128 v{VW1}, {v(ACC+16*k+4*g,4)} offset:{k*4096+g*1024}")
    X1, Y1 = HB, HB + 16
    a(f"""
    v_mov_b32 v5, 0xffff0000
    ds_read_b32 v{EG}, v{VG}
    s_waitcnt vmcnt(0)
    ds_write_b128 v{VYW}, {v(YR,4)} offset:16384
    ds_write_b128 v{VYW}, {v(YR+4,4)} offset:17408
    """)
    for i in range(8):
        a(f"""
        v_lshlrev_b32 v{X1+2*i}, 16, v{XD+i}
        v_and_b32 v{X1+2*i+1}, v5, v{XD+i}
        """)
    a("s_waitcnt lgkmcnt(0)")
    a("s_barrier")
    PB = 16
    for q in range(4):
        a(f"ds_read_b64_tr_b16 {v(YT+2*q,2)}, v{VYT} offset:{16384+q*512}")
    for k, base in ((1, VR1), (2, VW2), (3, VW3)):
        for g in range(4):
            a(f"ds_read_b128 {v(PB+16*(k-1)+4*g,4)}, v{base} offset:{k*4096+g*1024}")
    a("s_waitcnt lgkmcnt(12)")
    for i in range(8):
        a(f"""
        v_lshlrev_b32 v{Y1+2*i}, 16, v{YT+i}
        v_and_b32 v{Y1+2*i+1}, v5, v{YT+i}
        """)
    for i in range(0, 16, 2):
        a(f"v_pk_add_f32 {v(Y1+i,2)}, {v(Y1+i,2)}, {v(X1+i,2)}")
    a("s_waitcnt lgkmcnt(8)")
    for i in range(0, 16, 2):
        a(f"v_pk_add_f32 {v(ACC+i,2)}, {v(ACC+i,2)}, {v(PB+i,2)}")
    a("s_waitcnt lgkmcnt(0)")
    for i in range(0, 16, 2):
        a(f"v_pk_add_f32 {v(PB+16+i,2)}, {v(PB+16+i,2)}, {v(PB+32+i,2)}")
    for i in range(0, 16, 2):
        a(f"v_pk_add_f32 {v(ACC+i,2)}, {v(ACC+i,2)}, {v(PB+16+i,2)}")
    for i in range(0, 16, 2):
        a(f"v_pk_add_f32 {v(Y1+i,2)}, {v(Y1+i,2)}, {v(ACC+i,2)} neg_lo:[0,1] neg_hi:[0,1]")
    for i in range(0, 16, 2):
        a(f"v_pk_fma_f32 {v(ACC+i,2)}, {v(Y1+i,2)}, {v(EG,2)}, {v(ACC+i,2)} op_sel_hi:[1,0,1]")
    for i in range(8):
        a(f"v_cvt_pk_bf16_f32 v{X1+i}, v{ACC+2*i}, v{ACC+2*i+1}")
    a(f"""
    buffer_store_dwordx4 {v(X1,4)}, v{VEP}, {sr(SRD_OUT)}, 0 offen
    buffer_store_dwordx4 {v(X1+4,4)}, v{VEP}, {sr(SRD_OUT)}, 0 offen offset:16
    """)
    a.ext(stamp_end())
    a0.ext(resolve_vm(a.L))


def kwave(gemm_wg):
    sfx = "G" if gemm_wg else "S"
    ra = RA(2, 256)
    pre = Asm()
    main = Asm()
    ph2 = Asm()
    a = pre
    a(f"""
    s_setprio {OPT.get("kprio", 0)}
    s_sub_u32 s68, s{S_WIDX}, 6
    s_lshl_b32 s69, s2, 1
    s_add_u32 s69, s69, s68
    s_lshl_b32 s70, s68, 13
    s_add_u32 s70, s70, {KG_BASE}
    s_lshl_b32 s71, s69, 8
    """)
    t0 = ra(); t1 = ra(); t2 = ra(); t3 = ra()
    PR = ra(7)
    a(f"""
    v_lshlrev_b32 v{t0}, 2, v0
    v_add_u32 v{t0}, s71, v{t0}
    s_lshl_b32 s72, s69, 1
    v_mov_b32 v{t1}, s72
    """)
    for i, sb in enumerate((S_ARE, S_AIM, S_BRE, S_BIM, S_CRE, S_CIM)):
        a(f"global_load_dword v{PR+i}, v{t0}, s[{sb}:{sb+1}]")
    a(f"global_load_ushort v{PR+6}, v{t1}, s[{S_LDT}:{S_LDT+1}]")
    a(f"""
    s_cmp_lg_u32 s68, 0
    s_cbranch_scc1 K{sfx}_NOCLR
    """)
    if gemm_wg:
        a(f"""
        s_lshl_b32 s72, s{S_RB}, 6
        s_lshl_b32 s73, s{S_CB}, 1
        s_add_u32 s72, s72, s73
        s_lshl_b32 s72, s72, 7
        s_add_u32 s72, s72, {FH_OFF}
        v_lshrrev_b32 v{t0}, 1, v0
        v_and_b32 v{t1}, 1, v0
        v_lshlrev_b32 v{t0}, 12, v{t0}
        v_lshl_add_u32 v{t0}, v{t1}, 7, v{t0}
        v_add_u32 v{t0}, s72, v{t0}
        """)
    else:
        a(f"""
        s_lshl_b32 s72, s{S_XCD}, 2
        s_add_u32 s72, s72, s{S_IDX}
        s_sub_u32 s72, s72, 28
        s_lshl_b32 s72, s72, 7
        s_add_u32 s72, s72, {FU_OFF}
        v_lshlrev_b32 v{t0}, 2, v0
        v_add_u32 v{t0}, s72, v{t0}
        """)
    a(f"""
    s_lshl_b32 s72, s2, 7
    s_add_u32 s72, s72, {FY_OFF - 16}
    v_cmp_gt_u32 vcc, 4, v0
    v_lshlrev_b32 v{t1}, 2, v0
    v_add_u32 v{t1}, s72, v{t1}
    v_cndmask_b32 v{t0}, v{t1}, v{t0}, vcc
    v_mov_b32 v{t1}, 0
    s_mov_b64 exec, 0xff
    buffer_store_dword v{t1}, v{t0}, {sr(SRD_WS)}, 0 offen sc1
    s_mov_b64 exec, -1
    K{sfx}_NOCLR:
    """)

    WR = ra(8)
    RD = ra(2)
    a(f"""
    v_lshrrev_b32 v{t0}, 1, v0
    v_and_b32 v{t1}, 7, v{t0}
    v_lshlrev_b32 v{t0}, 8, v{t0}
    v_and_b32 v{t2}, 1, v0
    v_lshl_add_u32 v{t0}, v{t2}, 3, v{t0}
    v_add_u32 v{t0}, s70, v{t0}
    """)
    for b in range(8):
        a(f"""
        v_xor_b32 v{t2}, {b}, v{t1}
        v_lshl_add_u32 v{WR+b}, v{t2}, 4, v{t0}
        """)
    a(f"""
    v_and_b32 v{t0}, 15, v0
    v_lshrrev_b32 v{t1}, 4, v0
    """)
    for p in range(2):
        a(f"""
        v_add_u32 v{t2}, {4*p}, v{t1}
        v_xor_b32 v{t3}, v{t2}, v{t0}
        v_lshlrev_b32 v{t3}, 4, v{t3}
        v_lshl_add_u32 v{t3}, v{t2}, 8, v{t3}
        v_add_u32 v{RD+p}, s70, v{t3}
        """)
    TA0 = ra(); TA1 = ra(); TA2 = ra(); TA3 = ra()
    LP = ra(12)
    a(f"""
    v_and_b32 v{t2}, 1, v{t1}
    v_lshrrev_b32 v{t3}, 1, v{t1}
    v_lshlrev_b32 v{TA0}, 5, v{t0}
    v_lshl_add_u32 v{TA0}, v{t2}, 4, v{TA0}
    v_lshl_add_u32 v{TA0}, v{t3}, 9, v{TA0}
    v_lshrrev_b32 v{LP}, 2, v{TA0}
    v_cvt_f32_u32 v{LP}, v{LP}
    v_add_u32 v{TA0}, s70, v{TA0}
    v_add_f32 v{LP+1}, 1.0, v{LP}
    v_add_f32 v{LP+2}, 2.0, v{LP}
    v_add_f32 v{LP+3}, 2.0, v{LP+1}
    v_cmp_gt_u32 vcc, 2, v{t1}
    v_lshlrev_b32 v{TA1}, 4, v{t0}
    v_lshlrev_b32 v{TA2}, 3, v{t0}
    v_cndmask_b32 v{TA1}, v{TA2}, v{TA1}, vcc
    v_lshl_add_u32 v{TA1}, v{t1}, 8, v{TA1}
    v_add_u32 v{TA1}, s70, v{TA1}
    v_add_u32 v{TA1}, 1024, v{TA1}
    v_mov_b32 v{TA2}, 128
    v_cndmask_b32 v{TA2}, v{TA2}, 8, vcc
    v_add_u32 v{TA2}, v{TA2}, v{TA1}
    v_lshlrev_b32 v{TA3}, 2, v{t0}
    v_lshl_add_u32 v{TA3}, v{t1}, 8, v{TA3}
    v_add_u32 v{TA3}, s70, v{TA3}
    """)
    a(f"""
    v_lshlrev_b32 v{t2}, 7, v{t1}
    v_add_u32 v{t2}, 256, v{t2}
    v_lshlrev_b32 v{t3}, 8, v{t1}
    v_cndmask_b32 v{t2}, v{t3}, v{t2}, vcc
    v_lshl_add_u32 v{t2}, v{t0}, 3, v{t2}
    v_cvt_f32_u32 v{LP+4}, v{t2}
    v_mov_b32 v{t2}, 4.0
    v_cndmask_b32 v{t2}, v{t2}, 2.0, vcc
    v_mov_b32 v{t3}, {f32(128.0)}
    v_cndmask_b32 v{t3}, v{t3}, 4.0, vcc
    v_add_f32 v{LP+5}, v{LP+4}, v{t2}
    v_add_f32 v{LP+6}, v{LP+4}, v{t3}
    v_add_f32 v{LP+7}, v{LP+6}, v{t2}
    v_lshlrev_b32 v{t2}, 9, v{t1}
    v_lshl_add_u32 v{t2}, v{t0}, 3, v{t2}
    v_add_u32 v{t2}, 1024, v{t2}
    v_cvt_f32_u32 v{LP+8}, v{t2}
    v_add_f32 v{LP+9}, {f32(128.0)}, v{LP+8}
    v_add_f32 v{LP+10}, {f32(256.0)}, v{LP+8}
    v_add_f32 v{LP+11}, {f32(384.0)}, v{LP+8}
    """)
    EX = ra(10)
    a(f"""
    s_sub_u32 s72, s70, {4*17024}
    v_lshlrev_b32 v{t0}, 3, v0
    v_cvt_f32_u32 v{t1}, v{t0}
    v_cmp_gt_u32 vcc, 16, v0
    v_add_u32 v{EX+8}, s70, v{t0}
    v_lshlrev_b32 v{t0}, 2, v{t0}
    v_add_u32 v{t0}, s70, v{t0}
    v_lshlrev_b32 v{EX+9}, 2, v0
    v_add_u32 v{EX+9}, s70, v{EX+9}
    v_add_u32 v{EX+9}, 2048, v{EX+9}
    """)
    for kk in range(4):
        e0, e1 = EX + 2 * kk, EX + 2 * kk + 1
        a(f"""
        v_add_f32 v{t2}, 1.0, v{t1}
        v_cvt_pk_bf16_f32 v{t3}, v{t1}, v{t2}
        v_add_f32 v{t1}, 2.0, v{t1}
        v_and_b32 v{e0}, 0xffff, v{t3}
        v_lshrrev_b32 v{e1}, 16, v{t3}
        v_lshl_add_u32 v{e0}, v{e0}, 2, s72
        v_lshl_add_u32 v{e1}, v{e1}, 2, s72
        v_add_u32 v{t2}, {8*kk}, v{t0}
        v_add_u32 v{t3}, {8*kk+4}, v{t0}
        v_cndmask_b32 v{e0}, v{e0}, v{t2}, vcc
        v_cndmask_b32 v{e1}, v{e1}, v{t3}, vcc
        """)
    a(f"""
    s_waitcnt vmcnt(0)
    s_cmp_lg_u32 s68, 0
    s_cbranch_scc1 K{sfx}_NOADD
    s_and_b32 s72, s2, 7
    s_lshl_b32 s72, s72, 5
    v_mov_b32 v{t0}, s72
    v_mov_b32 v{t1}, 1
    s_mov_b64 exec, 1
    global_atomic_add v{t0}, v{t1}, s[{S_DBG}:{S_DBG+1}] sc1
    s_mov_b64 exec, -1
    K{sfx}_NOADD:
    """)

    a = main
    MASK = ra()
    DT = ra()
    PP = ra(12)
    a(f"v_mov_b32 v{MASK}, 0xffff0000")
    for i in range(6):
        a(f"v_lshlrev_b32 v{PP+2*i}, 16, v{PR+i}")
        a(f"v_and_b32 v{PP+2*i+1}, v{MASK}, v{PR+i}")
    x = PR + 6
    a(f"""
    v_lshlrev_b32 v{x}, 16, v{x}
    v_mul_f32 v{t0}, {f32(LOG2E_HI)}, v{x}
    s_mov_b32 s72, {f32(LOG2E_HI)}
    v_fma_f32 v{t1}, v{x}, s72, -v{t0}
    v_fmac_f32 v{t1}, {f32(LOG2E_LO)}, v{x}
    v_exp_f32 v{t0}, v{t0}
    v_mul_f32 v{t1}, {f32(LN2)}, v{t1}
    v_fmac_f32 v{t0}, v{t0}, v{t1}
    v_cvt_pk_bf16_f32 v{t0}, v{t0}, v{t0}
    v_lshlrev_b32 v{DT}, 16, v{t0}
    """)
    A2, TH, Br, Bi, Cr, Ci = (PP + 2 * i for i in range(6))
    for m in range(2):
        a(f"""
        v_mul_f32 v{A2+m}, v{DT}, v{A2+m}
        v_mul_f32 v{TH+m}, v{DT}, v{TH+m}
        v_mul_f32 v{Br+m}, v{DT}, v{Br+m}
        v_mul_f32 v{Bi+m}, v{DT}, v{Bi+m}
        v_mul_f32 v{A2+m}, {f32(LOG2E)}, v{A2+m}
        v_mul_f32 v{TH+m}, {f32(INV2PI)}, v{TH+m}
        """)
    W0 = ra(4); W1 = ra(4)
    for m in range(2):
        a(f"""
        v_mul_f32 v{W0+2*m}, v{Cr+m}, v{Br+m}
        v_mul_f32 v{W0+2*m+1}, v{Cr+m}, v{Bi+m}
        v_fma_f32 v{W0+2*m}, -v{Ci+m}, v{Bi+m}, v{W0+2*m}
        v_fmac_f32 v{W0+2*m+1}, v{Ci+m}, v{Br+m}
        v_sub_f32 v{W0+2*m+1}, 0, v{W0+2*m+1}
        """)
    SIG = ra(); WM = ra(); CE = ra()
    a(f"""
    v_max_f32 v{SIG}, v{A2}, v{A2+1}
    v_max3_f32 v{WM}, |v{W0}|, |v{W0+1}|, |v{W0+2}|
    v_max_f32 v{WM}, |v{W0+3}|, v{WM}
    s_nop 1
    """)
    for ctl in ("quad_perm:[1,0,3,2]", "quad_perm:[2,3,0,1]", "row_half_mirror", "row_mirror"):
        a(f"""
        v_max_f32_dpp v{SIG}, v{SIG}, v{SIG} {ctl} row_mask:0xf bank_mask:0xf
        v_max_f32_dpp v{WM}, v{WM}, v{WM} {ctl} row_mask:0xf bank_mask:0xf
        s_nop 0
        """)
    a(f"""
    v_readlane_b32 s72, v{SIG}, 0
    v_readlane_b32 s73, v{SIG}, 16
    v_readlane_b32 s74, v{SIG}, 32
    v_readlane_b32 s75, v{SIG}, 48
    v_readlane_b32 s6, v{WM}, 0
    v_readlane_b32 s7, v{WM}, 16
    v_readlane_b32 s8, v{WM}, 32
    v_readlane_b32 s9, v{WM}, 48
    v_max_f32 v{SIG}, s72, v{SIG}
    v_max_f32 v{SIG}, s73, v{SIG}
    v_max_f32 v{SIG}, s74, v{SIG}
    v_max_f32 v{SIG}, s75, v{SIG}
    v_max_f32 v{WM}, s6, v{WM}
    v_max_f32 v{WM}, s7, v{WM}
    v_max_f32 v{WM}, s8, v{WM}
    v_max_f32 v{WM}, s9, v{WM}
    v_sub_f32 v{A2}, v{A2}, v{SIG}
    v_sub_f32 v{A2+1}, v{A2+1}, v{SIG}
    v_frexp_exp_i32_f32 v{CE}, v{WM}
    v_sub_u32 v{t0}, 14, v{CE}
    v_subrev_u32 v{CE}, 29, v{CE}
    """)
    for i in range(4):
        a(f"v_ldexp_f32 v{W0+i}, v{W0+i}, v{t0}")

    def cexp(l):
        r = ra(6)
        for m in range(2):
            a(f"""
            v_mul_f32 v{t0}, {f32(float(l))}, v{A2+m}
            v_mul_f32 v{t1}, {f32(float(l))}, v{TH+m}
            v_exp_f32 v{t0}, v{t0}
            v_fract_f32 v{t1}, v{t1}
            v_cos_f32 v{t2}, v{t1}
            v_sin_f32 v{t3}, v{t1}
            s_nop 0
            v_mul_f32 v{r+2*m}, v{t0}, v{t2}
            v_mul_f32 v{r+2*m+1}, v{t0}, v{t3}
            v_sub_f32 v{r+4+m}, 0, v{r+2*m+1}
            """)
        return r

    def cmul(d, x_, b, conj=False):
        for m in range(2):
            br, bi, nbi = b + 2 * m, b + 2 * m + 1, b + 4 + m
            if conj:
                bi, nbi = nbi, bi
            a(f"""
            v_mul_f32 v{d+2*m}, v{x_+2*m}, v{br}
            v_mul_f32 v{d+2*m+1}, v{x_+2*m}, v{bi}
            v_fmac_f32 v{d+2*m}, v{x_+2*m+1}, v{nbi}
            v_fmac_f32 v{d+2*m+1}, v{x_+2*m+1}, v{br}
            """)

    def neg(b):
        for m in range(2):
            a(f"v_sub_f32 v{b+4+m}, 0, v{b+2*m+1}")

    def scale(d, x_):
        for i in range(4):
            a(f"v_mul_f32 v{d+i}, {f32(32768.0)}, v{x_+i}")

    VB = [ra(32, 4), ra(32, 4), ra(32, 4), ra(18, 4)]
    CH0 = ra(0, 4)

    def put(batch, row, r):
        h = VB[batch] + 2 * row
        if r is None:
            a(f"v_mov_b32 v{h}, 0x7800\nv_mov_b32 v{h+1}, 0x7800")
        else:
            a(f"""
            v_cvt_pk_f16_f32 v{h}, v{r}, v{r+1}
            v_cvt_pk_f16_f32 v{h+1}, v{r+2}, v{r+3}
            """)

    E8 = cexp(8)
    cur, nxt = W0, W1
    for c in range(16):
        if c < 15:
            cmul(nxt, cur, E8, conj=True)
        put(0, c, cur)
        cur, nxt = nxt, cur
    E1 = cexp(1)
    Q1 = cexp(128)
    Q8 = cexp(1024)
    P = {}
    P[1] = ra(4)
    scale(P[1], E1)
    for j in range(2, 8):
        P[j] = ra(6 if j == 4 else 4)
        cmul(P[j], P[j - 1], E1)
    put(1, 0, None)
    for j in range(1, 8):
        put(1, j, P[j])
    scale(W0, Q1)
    put(1, 8, W0)
    for j in range(1, 8):
        cmul(W0, P[j], Q1)
        put(1, 8 + j, W0)
    Q = {1: Q1, 8: Q8}
    for j in range(2, 8):
        Q[j] = {2: E1, 3: PP + 4}[j] if j < 4 else P[2 * (j - 4) + 1]
        cmul(Q[j], Q[j - 1], Q1)
    neg(P[4]); neg(Q[2]); neg(Q[3])
    for qi, j in enumerate((2, 3)):
        scale(W0, Q[j])
        put(2, 4 * qi, W0)
        for r in range(1, 4):
            cmul(W0, P[2 * r], Q[j])
            put(2, 4 * qi + r, W0)
    for aa in range(4):
        scale(W0, Q[4 + aa])
        put(2, 8 + 2 * aa, W0)
        cmul(W0, Q[4 + aa], P[4])
        put(2, 8 + 2 * aa + 1, W0)
    QS = E8
    scale(QS, Q8)
    neg(QS)
    put(3, 0, QS)
    for j in range(1, 8):
        cmul(W0, Q[j], QS)
        put(3, j, W0)
    cmul(W0, Q8, QS)
    put(3, 8, W0)
    for i in range(12):
        a(f"v_mul_f32 v{LP+i}, v{SIG}, v{LP+i}")
    for i in range(12):
        a(f"v_exp_f32 v{LP+i}, v{LP+i}")

    a = ph2
    YF = CH0
    AC = CH0 + 32
    assert AC + 12 <= ra.p

    def wr(batch, nrows):
        for row in range(nrows):
            a(f"ds_write_b64 v{WR+(row&7)}, {v(VB[batch]+2*row,2)} offset:{(row>>3)*128}")

    def fetch(F):
        for ks in range(8):
            a(f"ds_read_b128 {v(F+4*ks,4)}, v{RD+(ks&1)} offset:{(ks>>1)*2048}")

    def mfmas(tile, XF):
        for ks in range(8):
            c = "0" if ks == 0 else v(AC + 4 * tile, 4)
            a(f"v_mfma_f32_16x16x32_f16 {v(AC+4*tile,4)}, {v(XF+4*ks,4)}, {v(YF+4*ks,4)}, {c}")

    wr(0, 16); fetch(YF)
    wr(1, 16); fetch(VB[0])
    wr(2, 16); fetch(VB[1])
    a("s_waitcnt lgkmcnt(15)")
    mf0 = len(a.L)
    wr(3, 9); fetch(VB[2])
    tail = a.L[mf0:]
    del a.L[mf0:]
    m = Asm()
    sv, a = a, m
    mfmas(0, VB[0])
    a = sv
    for i in range(8):
        a.ext(tail[2 * i:2 * i + 2])
        a(m.L[i])
    a.ext(tail[16:])
    a("s_waitcnt lgkmcnt(15)")
    mfmas(1, VB[1])
    a("s_waitcnt lgkmcnt(0)")
    mfmas(2, VB[2])
    a("s_nop 3")
    for i in range(12):
        a(f"v_mul_f32 v{AC+i}, v{AC+i}, v{LP+i}")
    for i in range(12):
        a(f"v_ldexp_f32 v{AC+i}, v{AC+i}, v{CE}")
    a(f"ds_write_b128 v{TA0}, {v(AC,4)}")
    a(f"ds_write_b64 v{TA1}, {v(AC+4,2)}")
    a(f"ds_write_b64 v{TA2}, {v(AC+6,2)}")
    for r in range(4):
        a(f"ds_write_b32 v{TA3}, v{AC+8+r} offset:{2048+64*r}")
    G0 = VB[0]
    OUT = VB[1]
    for i in range(8):
        a(f"ds_read_b32 v{G0+i}, v{EX+i}")
    a(f"""
    ds_read_b64 {v(G0+8,2)}, v{EX+8} offset:1536
    ds_read_b32 v{G0+10}, v{EX+8} offset:1544
    ds_read2_b32 {v(G0+12,2)}, v{EX+9} offset0:0 offset1:1
    ds_read2_b32 {v(G0+14,2)}, v{EX+9} offset0:64 offset1:65
    v_lshlrev_b32 v{t0}, 4, v0
    v_add_u32 v{t0}, s70, v{t0}
    v_and_b32 v{t1}, 3, v0
    v_lshlrev_b32 v{t1}, 4, v{t1}
    v_add_u32 v{t1}, s70, v{t1}
    v_mov_b32 v{OUT+16}, 0
    v_mov_b32 v{OUT+17}, 0
    v_mov_b32 v{OUT+18}, 0
    v_mov_b32 v{OUT+19}, 0
    s_mov_b32 s72, 0xaaaaaaaa
    s_mov_b32 s73, 0xaaaaaaaa
    ds_write_b128 v{t1}, {v(OUT+16,4)} offset:{KARR}
    s_waitcnt lgkmcnt(0)
    """)
    for k in range(4):
        a(f"v_cvt_pk_bf16_f32 v{OUT+k}, v{G0+2*k}, v{G0+2*k+1}")
    a(f"""
    v_cvt_pk_bf16_f32 v{OUT+4}, v{G0+8}, v{G0+8}
    v_cvt_pk_bf16_f32 v{OUT+5}, v{G0+8}, v{G0+9}
    v_cvt_pk_bf16_f32 v{OUT+6}, v{G0+9}, v{G0+9}
    v_cvt_pk_bf16_f32 v{OUT+7}, v{G0+10}, v{G0+10}
    """)
    for it in (2, 3):
        T0, T1 = G0 + 8 + 2 * it, G0 + 9 + 2 * it
        o = OUT + 4 * it
        a(f"""
        v_cndmask_b32 v{t2}, v{T0}, v{T1}, s[72:73]
        v_cvt_pk_bf16_f32 v{o}, v{T0}, v{T0}
        v_cvt_pk_bf16_f32 v{o+1}, v{T0}, v{T0}
        v_cvt_pk_bf16_f32 v{o+2}, v{t2}, v{T1}
        v_cvt_pk_bf16_f32 v{o+3}, v{T1}, v{T1}
        """)
    for it in range(4):
        a(f"ds_write_b128 v{t0}, {v(OUT+4*it,4)} offset:{KARR+64+1024*it}")
    if OPT.get("dbgk"):
        a(f"""
        s_lshl_b32 s72, s69, 12
        s_add_u32 s72, s72, {KX_OFF}
        v_lshlrev_b32 v{t0}, 4, v0
        """)
        for it in range(4):
            a(f"buffer_store_dwordx4 {v(OUT+4*it,4)}, v{t0}, {sr(SRD_WS)}, s72 offen offset:{1024*it}")
    a("s_waitcnt lgkmcnt(0)")

    out = list(pre.L)
    out.extend(stamp(1))
    kx = OPT.get("kx", 0)
    if kx == 1:
        ph2.L = []
    elif kx == 2:
        ph2.L = [x for x in ph2.L if not x.startswith("v_mfma")]
    elif kx == 3:
        ph2.L = [x for x in ph2.L if not x.startswith("ds_write")]
    elif kx == 4:
        ph2.L = [x for x in ph2.L if not x.startswith("ds_read")]
    elif kx == 5:
        L2 = []
        for x in ph2.L:
            L2.append(x)
            if x.startswith("ds_write_b64"):
                L2.append("s_nop 3")
        ph2.L = L2
    if gemm_wg:
        per = OPT.get("kper", 125)
        first = OPT.get("kfirst", 100)
        p2a = OPT.get("kp2a", 48)
        p2b = OPT.get("kp2b", 100)
        pos = min(first, len(main.L))
        out.extend(main.L[:pos])
        for sidx in range(9):
            out.extend(bstamp(2, 1 + sidx))
            out.append("s_barrier")
            if sidx < 6:
                end = len(main.L) if sidx == 5 else min(pos + per, len(main.L))
                out.extend(main.L[pos:end])
                pos = end
            elif sidx == 6:
                out.extend(ph2.L[:p2a])
            elif sidx == 7:
                out.extend(ph2.L[p2a:p2b])
            else:
                out.extend(ph2.L[p2b:])
        out.extend(stamp(2))
        out.append("s_barrier")
    else:
        out.extend(main.L)
        out.extend(ph2.L)
        out.append("s_barrier")
        out.extend(stamp(2))
        out.append("s_barrier")
    out.append("s_mov_b32 s6, s68")
    out.append("s_branch L_CONVB")
    return out


def lwave(gemm_wg):
    sfx = "G" if gemm_wg else "S"
    a = Asm()
    XV, WV, VL, VC = 8, 12, 2, 16
    t0, t1, t2 = 3, 4, 5
    DUM = 24
    ROT = OPT.get("rot", 0)
    SW = 12
    a(f"""
    s_setprio 3
    s_sub_u32 s6, s{S_WIDX}, 4
    """)

    def kofs(st):
        if not ROT:
            return []
        return [f"s_add_u32 s18, s{S_PHI}, {st}", "s_and_b32 s18, s18, 7", f"s_mul_i32 s19, s18, {64*3584}",
                "s_lshl_b32 s18, s18, 7"]

    def grp(st, g):
        sl = st % 3
        if g in (1, 5):
            j = 0 if g == 1 else 1
            L = [f"s_add_u32 m0, s{10+j}, {sl*SLOT}", f"s_add_u32 s22, s{8+j}, {'s18' if ROT else st*128}"]
            L += [f"buffer_load_dwordx4 v{XV+i}, {sr(SRD_X)}, s22 offen offset:{1024*i} lds" for i in range(4)]
        else:
            j = 0 if g == 0 else g - 1
            L = [f"s_add_u32 m0, s{72+j}, {sl*SLOT}", f"s_add_u32 s22, s{68+j}, {'s19' if ROT else st*64*3584}"]
            L += [f"buffer_load_dwordx4 v{WV+i}, {sr(SW)}, s22 offen offset:{1024*i} lds" for i in range(4)]
        return L

    def pref(st):
        L = [f"s_add_u32 s22, s68, {st*64*3584}"]
        L += [f"buffer_load_dwordx4 {v(DUM+4*i,4)}, v{WV+i}, {sr(SW)}, s22 offen offset:{1024*i}" for i in range(4)]
        L += [f"s_add_u32 s22, s23, {st*128}"]
        L += [f"buffer_load_dwordx4 {v(DUM+16+4*i,4)}, v{XV+i}, {sr(SRD_X)}, s22 offen offset:{1024*i}" for i in range(2)]
        return L

    cnt_ld = f"global_load_dword v{VC}, v{t0}, s[{S_DBG}:{S_DBG+1}] sc1"
    cnt_chk = [f"v_cmp_le_u32 vcc, 32, v{VC}", "s_nop 3", "s_cmp_eq_u64 vcc, exec"]
    fu_ld = [f"buffer_load_dwordx2 v[{VC}:{VC+1}], v{t1}, {sr(SRD_WS)}, s16 offen sc1"]
    fu_chk = [f"v_min_u32 v{VC}, v{VC}, v{VC+1}", f"v_cmp_ne_u32 vcc, 0, v{VC}", "s_nop 3", "s_cmp_eq_u64 vcc, exec"]

    def poll_setup():
        a(f"""
        s_lshl_b32 s7, s2, 1
        s_add_u32 s7, s7, s6
        v_lshlrev_b32 v{VL}, 4, v0
        v_and_b32 v{t0}, 7, v0
        v_lshlrev_b32 v{t0}, 5, v{t0}
        v_lshrrev_b32 v{t1}, 1, v0
        v_lshlrev_b32 v{t1}, 7, v{t1}
        v_and_b32 v{t2}, 1, v0
        v_lshl_add_u32 v{t1}, v{t2}, 3, v{t1}
        s_mov_b32 s16, {FU_OFF}
        s_mov_b32 s77, 0x100000
        """)

    STG = 24
    assert STG + 16 * n1() <= 256

    def wd_setup():
        a(f"""
        v_lshrrev_b32 v20, 3, v0
        v_and_b32 v21, 7, v0
        v_lshrrev_b32 v22, 1, v20
        v_and_b32 v22, 1, v22
        v_lshlrev_b32 v22, 2, v22
        v_xor_b32 v21, v21, v22
        v_lshlrev_b32 v18, 10, v20
        v_lshl_add_u32 v18, v21, 4, v18
        v_add_u32 v19, 8192, v18
        s_and_b32 s17, s{S_IDX}, 7
        s_lshl_b32 s17, s17, 7
        s_mul_i32 s3, s6, {56*16384}
        s_add_u32 s3, s3, s17
        s_lshl_b32 s17, s6, 16
        v_add_u32 v7, s17, v{VL}
        """)
        a(rot_scalar(76, 17))

    wpos = [0]

    def wd_ld(n):
        for _ in range(n):
            i = wpos[0]
            if i >= n1():
                break
            wpos[0] += 1
            R = STG + 16 * i
            a(f"""
            s_lshl_b32 s22, s76, 14
            s_add_u32 s22, s22, s3
            buffer_load_dwordx4 {v(R,4)}, v18, {sr(SRD_WD)}, s22 offen
            s_add_u32 s17, s22, {28*16384}
            buffer_load_dwordx4 {v(R+4,4)}, v19, {sr(SRD_WD)}, s22 offen
            s_add_u32 s76, s76, 1
            buffer_load_dwordx4 {v(R+8,4)}, v18, {sr(SRD_WD)}, s17 offen
            s_cmp_ge_u32 s76, 28
            s_cselect_b32 s76, 0, s76
            buffer_load_dwordx4 {v(R+12,4)}, v19, {sr(SRD_WD)}, s17 offen
            """)
            a.tag(f"wd{i}")

    wwp = [0]

    def wd_wr(n):
        for i in range(wwp[0], min(n1(), wwp[0] + n)):
            wwp[0] = i + 1
            R = STG + 16 * i
            a.wait(f"wd{i}")
            for k in range(4):
                a(f"ds_write_b128 v7, {v(R+4*k,4)} offset:{(k>>1)*RING2 + i*2048 + (k&1)*1024}")

    def u_load():
        a(f"""
        s_mul_i32 s18, s6, {USZ}
        s_add_u32 s18, s18, {U_BASE}
        s_lshl_b32 s17, s7, 12
        s_add_u32 s17, s17, {UT_OFF}
        v_mov_b32 v20, 0
        v_mov_b32 v21, 0
        v_mov_b32 v22, 0
        v_mov_b32 v23, 0
        v_and_b32 v{t2}, 7, v0
        v_lshrrev_b32 v6, 3, v0
        v_and_b32 v6, 3, v6
        v_min_u32 v{t2}, 6, v{t2}
        v_mul_u32_u24 v6, {UPITCH}, v6
        v_lshl_add_u32 v{t2}, v{t2}, 4, v6
        v_add_u32 v{t2}, s18, v{t2}
        ds_write_b128 v{t2}, v[20:23]
        """)
        for r in range(4):
            a(f"""
            s_add_u32 m0, s18, {r*UPITCH + 112}
            s_nop 0
            buffer_load_dwordx4 v{VL}, {sr(SRD_WS)}, s17 offen sc1 lds
            s_add_u32 s17, s17, 1024
            """)

    GLR = 8

    def gl_load():
        a(f"""
        s_lshl_b32 s17, s{S_XCD}, 2
        s_lshr_b32 s22, s{S_IDX}, 3
        s_add_u32 s17, s17, s22
        s_lshl_b32 s17, s17, 6
        s_add_u32 s17, s17, {GL_OFF}
        v_and_b32 v{t0}, 3, v0
        v_lshrrev_b32 v{t1}, 2, v0
        v_lshlrev_b32 v{t1}, 2, v{t1}
        v_lshl_add_u32 v{t1}, v{t0}, 11, v{t1}
        """)
        for g in range(8):
            a(f"buffer_load_dword v{GLR+g}, v{t1}, {sr(SRD_WS)}, s17 offen sc1")
            if g < 7:
                a("s_add_u32 s17, s17, 8192")
        a.tag("gl")

    def gl_finish():
        E = GLR
        a.wait("gl")
        a(f"""
        v_add_f32 v{E}, v{E}, v{E+1}
        v_add_f32 v{E+2}, v{E+2}, v{E+3}
        v_add_f32 v{E+4}, v{E+4}, v{E+5}
        v_add_f32 v{E+6}, v{E+6}, v{E+7}
        v_add_f32 v{E}, v{E}, v{E+2}
        v_add_f32 v{E+4}, v{E+4}, v{E+6}
        v_add_f32 v{E}, v{E}, v{E+4}
        v_cvt_pk_bf16_f32 v{E}, v{E}, v{E}
        v_lshlrev_b32 v{E}, 16, v{E}
        v_mul_f32 v{E}, {f32(-LOG2E)}, v{E}
        v_exp_f32 v{E}, v{E}
        v_lshlrev_b32 v{t0}, 2, v0
        v_add_f32 v{E}, 1.0, v{E}
        v_rcp_f32 v{E}, v{E}
        v_add_u32 v{t0}, {G_LDS}, v{t0}
        v_cvt_pk_bf16_f32 v{E}, v{E}, v{E}
        v_lshlrev_b32 v{E}, 16, v{E}
        ds_write_b32 v{t0}, v{E}
        """)

    if gemm_wg:
        a(f"""
        v_lshrrev_b32 v{t0}, 4, v0
        v_and_b32 v{t1}, 15, v0
        v_lshlrev_b32 v{t2}, 2, v{t0}
        v_xor_b32 v{t1}, v{t1}, v{t2}
        v_mul_u32_u24 v{t0}, 3584, v{t0}
        v_lshl_add_u32 v{WV}, v{t1}, 4, v{t0}
        """)
        for i in range(1, 4):
            a(f"v_add_u32 v{WV+i}, {(4*3584-1024)*i}, v{WV}")
        a(f"""
        s_cmp_eq_u32 s6, 0
        s_cselect_b32 s{SW}, s{SRD_WG}, s{SRD_WU}
        s_cselect_b32 s{SW+1}, s{SRD_WG+1}, s{SRD_WU+1}
        s_mov_b32 s{SW+2}, {512*1792*2}
        s_mov_b32 s{SW+3}, 0x00020000
        s_and_b32 s22, s{S_IDX}, 3
        s_lshl_b32 s23, s{S_CB}, 8
        s_lshl_b32 s16, s6, 14
        s_add_u32 s16, s16, 16384
        """)
        for j in range(4):
            a(f"""
            s_add_u32 s17, s22, {j}
            s_and_b32 s17, s17, 3
            s_mul_i32 s{68+j}, s17, {16*3584}
            s_add_u32 s{68+j}, s{68+j}, s23
            s_lshl_b32 s{72+j}, s17, 12
            s_add_u32 s{72+j}, s{72+j}, s16
            """)
        a(f"""
        v_lshrrev_b32 v{t0}, 3, v0
        v_and_b32 v{t1}, 7, v0
        v_lshrrev_b32 v{t2}, 1, v{t0}
        v_xor_b32 v{t1}, v{t1}, v{t2}
        v_lshlrev_b32 v{t0}, 10, v{t0}
        """)
        for i in range(4):
            a(f"""
            v_xor_b32 v{t2}, {4*(i&1)}, v{t1}
            v_lshl_add_u32 v{XV+i}, v{t2}, 4, v{t0}
            v_add_u32 v{XV+i}, {7168*i}, v{XV+i}
            """)
        a(f"""
        s_lshr_b32 s22, s{S_IDX}, 2
        s_and_b32 s17, s22, 1
        s_lshl_b32 s17, s17, 1
        s_add_u32 s17, s17, s6
        s_lshl_b32 s16, s{S_RB}, 17
        s_lshl_b32 s8, s17, 15
        s_add_u32 s8, s8, s16
        s_lshl_b32 s10, s17, 12
        s_xor_b32 s17, s17, 2
        s_lshl_b32 s9, s17, 15
        s_add_u32 s9, s9, s16
        s_lshl_b32 s11, s17, 12
        s_lshl_b32 s22, s22, 1
        s_add_u32 s22, s22, s6
        s_and_b32 s22, s22, 7
        s_lshl_b32 s23, s22, 14
        s_add_u32 s23, s23, s16
        """)
        tail = {3: "S5 R5", 4: "S6 R6", 5: "S7 R7"}
        scheds = [
            {-1: "S0 S1 S2 R0 P3 P4", 0: "R1 P5 P6", 1: "R2 P7 S3", 2: "R3 S4 R4"},
            {-1: "S0 S1 S2 R0 R1", 0: "P3 P4 R2", 1: "P5 P6 P7 S3 R3", 2: "S4 R4"},
            {-1: "S0 R0 S1 R1", 0: "S2 R2", 1: "S3 R3", 2: "S4 R4"},
            {-1: "S0 R0 S1", 0: "R1 S2", 1: "R2 S3", 2: "R3 S4 R4"},
            {-1: "S0 R0 S1 S2 P3", 0: "R1 P4 P5", 1: "R2 P6 P7 S3", 2: "R3 S4 R4"},
            {-1: "S0 R0 S1 S2", 0: "R1 R2", 1: "S3 R3", 2: "S4 R4"},
        ]
        sched = dict(scheds[OPT.get("lsched", 4)])
        sched.update(tail)

        def issue(k):
            for tok in sched.get(k, "").split():
                st = int(tok[1:])
                if tok[0] == "S":
                    a.ext(kofs(st) + grp(st, 0) + grp(st, 1))
                elif tok[0] == "R":
                    a.ext(kofs(st))
                    for g in (2, 5, 3, 4):
                        a.ext(grp(st, g))
                    a.tag(f"st{st}")
                elif tok[0] == "P":
                    assert not ROT
                    a.ext(pref(st))
        issue(-1)
        a.ext(stamp(1))
        poll_setup()
        for sidx in range(9):
            if sidx < 8:
                a.wait(f"st{sidx}")
            a.ext(bstamp(2, 1 + sidx))
            a("s_barrier")
            if sidx in (0, 3):
                a.ext(stamp(2 + (0, 3).index(sidx)))
            issue(sidx)
            if sidx == 4:
                a(cnt_ld)
                a.tag("cnt")
            if sidx == 3:
                wd_setup()
                wd_ld(OPT.get("w3", 0))
            if sidx == 4:
                wd_ld(OPT.get("w4", 0))
            if sidx == 5:
                wd_ld(OPT.get("w5", 2))
            if sidx == 6:
                a.wait("cnt")
                a(f"s_branch PC{sfx}_CHK")
                a.ext(spin(f"PC{sfx}", [cnt_ld], cnt_chk))
                a.ext(fu_ld)
                a.tag("fu")
                wd_ld(OPT.get("w6", 5))
            if sidx == 7:
                a.wait("fu")
                a(f"s_branch PU{sfx}_CHK")
                a.ext(spin(f"PU{sfx}", fu_ld, fu_chk))
                if not OPT.get("ulate"):
                    u_load()
                wd_ld(OPT.get("w7", 4))
            if sidx == 8:
                a.ext(stamp(4))
                wd_ld(28)
                if OPT.get("ulate"):
                    u_load()
                wd_wr(6)
                gl_load()
                wd_wr(28)
                gl_finish()
        a("s_waitcnt vmcnt(0) lgkmcnt(0)")
        a.ext(stamp(5))
        a("s_barrier")
    else:
        poll_setup()
        wd_setup()
        a("s_barrier")
        a.ext(spin(f"PC{sfx}", [cnt_ld], cnt_chk))
        a.ext(spin(f"PU{sfx}", fu_ld, fu_chk))
        u_load()
        wd_ld(28)
        wd_wr(6)
        gl_load()
        wd_wr(28)
        gl_finish()
        a("s_waitcnt vmcnt(0) lgkmcnt(0)")
        a.ext(stamp(5))
        a("s_barrier")
    a("s_branch L_CONVA")
    return resolve_vm(a.L)


def conv(a0, partB):
    a = Asm()
    KA, UA, YA = 2, 3, 5
    qs, outq = ([5, 6, 7], [6, 7]) if partB else ([0, 1, 2, 3, 4, 5], [0, 1, 2, 3, 4, 5])
    a.ext(stamp(6))
    a(f"""
    s_setprio {OPT.get("cprio", 3)}
    s_lshl_b32 s8, s6, 13
    s_add_u32 s8, s8, {KG_BASE + KARR + 32}
    s_mul_i32 s9, s6, {USZ}
    s_add_u32 s9, s9, {U_BASE + 16}
    v_lshrrev_b32 v6, 2, v0
    v_and_b32 v10, 7, v6
    v_and_b32 v6, 3, v6
    v_and_b32 v7, 3, v0
    v_lshrrev_b32 v8, 4, v0
    v_and_b32 v8, 1, v8
    v_lshrrev_b32 v9, 5, v0
    v_mul_u32_u24 v{UA}, {UPITCH}, v7
    v_sub_u32 v10, v10, v9
    v_lshl_add_u32 v{UA}, v10, 4, v{UA}
    v_add_u32 v{UA}, s9, v{UA}
    v_lshlrev_b32 v{KA}, 5, v8
    v_lshl_add_u32 v{KA}, v7, 3, v{KA}
    v_lshl_add_u32 v{KA}, v9, 6, v{KA}
    v_lshlrev_b32 v10, 3, v6
    v_sub_u32 v{KA}, v{KA}, v10
    v_add_u32 v{KA}, s8, v{KA}
    """)
    qmax = max(qs)
    nst = 4 * qmax + 4
    NU = 4
    UBUF = 8
    KT = 24
    ACC = KT + 4 * nst
    TMP = ACC + 16 * len(qs)
    assert TMP + 3 * len(qs) + 1 <= 256

    def acc(q):
        return ACC + 16 * qs.index(q)

    need = {}
    for i in range(nst):
        for q in qs:
            s_ = 4 * q + 3 - i
            if s_ >= 0 and s_ not in need:
                need[s_] = i

    def rd(i):
        L = [f"ds_read_b128 {v(UBUF+4*(i%NU),4)}, v{UA} offset:{32*i}"]
        for s_ in sorted(s for s in need if need[s] == i):
            L += [f"ds_read_b64_tr_b16 {v(KT+4*s_,2)}, v{KA} offset:{128*s_+32}",
                  f"ds_read_b64_tr_b16 {v(KT+4*s_+2,2)}, v{KA} offset:{128*s_}"]
        L.append(("LTAG", f"R{i}"))
        return L

    PF = NU - 1
    a.ext(rd(0))
    a.ext(rd(1))
    a(f"""
    v_and_b32 v4, 7, v0
    v_lshrrev_b32 v{YA}, 3, v0
    v_lshlrev_b32 v{YA}, 4, v{YA}
    v_lshl_add_u32 v{YA}, v4, 7, v{YA}
    v_mov_b32 v6, 0
    v_mov_b32 v7, 1
    s_mov_b32 s12, 0
    s_mov_b32 s13, 0x80000000
    s_mov_b32 s14, 0
    s_mov_b32 s15, 0xc0000000
    s_mov_b32 s16, 0
    s_mov_b32 s17, 0xe0000000
    s_lshl_b32 s7, s2, 1
    s_add_u32 s7, s7, s6
    s_lshl_b32 s18, s7, 12
    s_add_u32 s18, s18, {Y_OFF}
    s_lshl_b32 s19, s2, 4
    s_add_u32 s19, s19, s6
    s_lshl_b32 s19, s19, 3
    s_add_u32 s19, s19, {FY_OFF + (4 if partB else 0)}
    """)

    def Y(q, g, rho):
        return acc(q) + 4 * g + rho

    dpp = "wave_ror:1 row_mask:0xf bank_mask:0xf"
    ctl = "row_mask:0xf bank_mask:0xf"

    def post(q):
        L = []
        Z = {}
        for g in (3, 2, 1, 0):
            for rho in (1, 2, 3):
                Z[g, rho] = TMP + 3 * qs.index(q) + rho - 1 if g == 3 else Y(q, g, rho)
                if g > 0:
                    prev = f"v{Y(q,g-1,rho)}"
                elif q > 0:
                    prev = f"v{Y(q-1,3,rho)}"
                else:
                    prev = "v6"
                L.append(f"v_cndmask_b32 v{Z[g,rho]}, v{Y(q,g,rho)}, {prev}, s[{10+2*rho}:{11+2*rho}]")
        for g in (3, 2, 1, 0):
            L.append(f"v_add_f32_dpp v{Z[g,2]}, v{Z[g,3]}, v{Z[g,2]} {dpp}")
        for g in (3, 2, 1, 0):
            L.append(f"v_add_f32_dpp v{Z[g,1]}, v{Z[g,2]}, v{Z[g,1]} {dpp}")
        for g in (3, 2, 1, 0):
            L.append(f"v_add_f32_dpp v{Y(q,g,0)}, v{Z[g,1]}, v{Y(q,g,0)} {dpp}")
        return L

    def stage(S_, D_, bit, stride):
        m = {0: 0xaaaaaaaa, 1: 0xcccccccc, 2: 0xf0f0f0f0}[bit]
        up = {0: "quad_perm:[1,0,3,2]", 1: "quad_perm:[2,3,0,1]", 2: "row_ror:12"}[bit]
        dn = {0: "quad_perm:[1,0,3,2]", 1: "quad_perm:[2,3,0,1]", 2: "row_ror:4"}[bit]
        L = [f"s_mov_b32 vcc_lo, {m:#x}", f"s_mov_b32 vcc_hi, {m:#x}"]
        idx = [i for i in range(len(S_)) if not (i // stride) & 1]
        L += [f"v_cndmask_b32_dpp v{D_[i+stride]}, v{S_[i]}, v{S_[i+stride]}, vcc {up} {ctl}" for i in idx]
        L += ["s_not_b64 vcc, vcc"]
        L += [f"v_cndmask_b32_dpp v{D_[i]}, v{S_[i+stride]}, v{S_[i]}, vcc {dn} {ctl}" for i in idx]
        return L

    def xpose(q):
        S0 = [Y(q - 1 + (g >> 2), g & 3, 0) for g in range(8)]
        free = [Y(qq, g, r) for qq in (q - 1, q) for g in range(3) for r in (1, 2, 3)]
        D0 = free[:8]
        S1 = free[8:12]
        D1 = free[12:16]
        D2 = [acc(q - 1) + i for i in range(4)]
        L = stage(S0, D0, 0, 1)
        L += [f"v_cvt_pk_bf16_f32 v{S1[g]}, v{D0[2*g]}, v{D0[2*g+1]}" for g in range(4)]
        L += stage(S1, D1, 1, 1)
        L += stage(D1, D2, 2, 2)
        L.append(f"buffer_store_dwordx4 {v(D2[0],4)}, v{YA}, {sr(SRD_WS)}, s18 offen offset:{(q-1)*512} sc1")
        return L

    pend = []
    FILL = OPT.get("cfill", 4)
    since = {}
    issued = 2
    for i in range(nst):
        a.L.append(("LWAIT", f"R{i}"))
        rl = []
        while issued < nst and issued <= i + (2 if i < 2 else PF):
            rl += rd(issued)
            issued += 1
        act = [q for q in qs if 4 * q + 3 - i >= 0]
        per = -(-len(rl) // len(act))
        for q in act:
            s_ = 4 * q + 3 - i
            c = "0" if i == 0 else v(acc(q), 16)
            a(f"v_mfma_f32_32x32x16_bf16 {v(acc(q),16)}, {v(UBUF+4*(i%NU),4)}, {v(KT+4*s_,4)}, {c}")
            a.ext(rl[:per])
            rl = rl[per:]
            if s_ == 0:
                since[q] = len(a.L)
            for qq in list(since):
                if len([x for x in a.L[since[qq]:] if isinstance(x, str)]) >= 14:
                    del since[qq]
                    if qq in outq:
                        pend += post(qq)
                        if (qq - outq[0]) & 1:
                            pend += xpose(qq)
            a.ext(pend[:FILL])
            pend = pend[FILL:]
    a.ext(stamp(7))
    a.ext(pend)
    a("s_nop 7\ns_nop 3")
    for qq in sorted(since):
        if qq in outq:
            a.ext(post(qq))
            if (qq - outq[0]) & 1:
                a.ext(xpose(qq))
    a.ext(stamp(8))
    a(f"""
    s_waitcnt vmcnt(0)
    s_mov_b64 exec, 1
    buffer_store_dword v7, v6, {sr(SRD_WS)}, s19 offen sc1
    """)
    a.ext(stamp_end())
    a0.ext(resolve_lds(a.L))


HEADER = open("cdna_kernels/" + NAME + ".s.ref").read().split("; Override launch")[0]


def main(path):
    a = Asm()
    prologue(a)
    gemm1(a)
    a("L_SPARE:")
    spare(a)
    a("L_GEMM2:")
    gemm2(a)
    a("L_LWAVE:")
    a(f"s_cmp_ge_u32 s{S_IDX}, 28\ns_cbranch_scc1 L_LWAVE_S")
    a.ext(lwave(True))
    a("L_LWAVE_S:")
    a.ext(lwave(False))
    a("L_KWAVE:")
    a(f"s_cmp_ge_u32 s{S_IDX}, 28\ns_cbranch_scc1 L_KWAVE_S")
    a.ext(kwave(True))
    a("L_KWAVE_S:")
    a.ext(kwave(False))
    a("L_CONVA:")
    conv(a, False)
    a("L_CONVB:")
    conv(a, True)
    a("L_END:\ns_endpgm")
    body = "\n".join(("" if ln.endswith(":") or ln.startswith(".") else "    ") + ln for ln in a.L)
    kn = NAME + "_kernel"
    txt = HEADER
    if OPT.get("list"):
        txt += f"; @launch kernel={kn} grid=(256,1,1) block=(512,1,1) lds=163840\n"
    else:
        txt += "; @launch grid=(256,1,1) block=(512,1,1) lds=163840\n"
    txt += '.amdgcn_target "amdgcn-amd-amdhsa--gfx950"\n.text\n'
    txt += f".globl {kn}\n.p2align 8\n.type {kn},@function\n{kn}:\n"
    txt += body + "\n"
    txt += f"""
.section .rodata,"a"
.p2align 6
.amdhsa_kernel {kn}
  .amdhsa_next_free_vgpr 256
  .amdhsa_next_free_sgpr 102
  .amdhsa_accum_offset 256
  .amdhsa_group_segment_fixed_size 0
  .amdhsa_kernarg_size 136
  .amdhsa_user_sgpr_count 2
  .amdhsa_user_sgpr_kernarg_segment_ptr 1
  .amdhsa_system_sgpr_workgroup_id_x 1
.end_amdhsa_kernel
"""
    open(path, "w").write(txt)


if __name__ == "__main__":
    for o in list(sys.argv):
        if o.startswith("--opt="):
            k, _, val = o[6:].partition(":")
            OPT[k] = int(val) if val else 1
            sys.argv.remove(o)
    if "--stamps" in sys.argv:
        STAMPS = True
        sys.argv.remove("--stamps")
    main(sys.argv[1] if len(sys.argv) > 1 else "cdna_kernels/" + NAME + ".s")
```

```python
import sys, struct

NAME = "gated_mix__ssm_conv_s4__swiglu_ffn__prompt"

H_OFF = 0x000000
UT_OFF = 0x800000
KX_OFF = 0xA00000
Y_OFF = 0xC00000
GL_OFF = 0xE00000
FH_OFF = 0xE40000
FY_OFF = 0xE60000
FU_OFF = 0xE68000
ST_OFF = 0xE20000
WS_BYTES = 0x1000000

STAMPS = False
HDL = []
OPT = {}
ST_BASE = 78
NST = 12


def f32(x):
    return "0x%08x" % struct.unpack("<I", struct.pack("<f", x))[0]


LOG2E = 1.4426950408889634
LOG2E_HI = struct.unpack("<f", struct.pack("<f", LOG2E))[0]
LOG2E_LO = LOG2E - LOG2E_HI
LN2 = 0.6931471805599453
INV2PI = 0.15915494309189535


class Asm:
    def __init__(self):
        self.L = []

    def __call__(self, s):
        for line in s.strip().split("\n"):
            line = line.strip()
            if line:
                self.L.append(line)

    def ext(self, lines):
        self.L.extend(lines)

    def tag(self, n):
        self.L.append(("VMTAG", n))

    def wait(self, n):
        self.L.append(("VMWAIT", n))


def v(b, n=1):
    return f"v{b}" if n == 1 else f"v[{b}:{b+n-1}]"


def sr(b):
    return f"s[{b}:{b+3}]"


class RA:
    def __init__(self, start, end):
        self.p = start
        self.end = end

    def __call__(self, n=1, align=1):
        self.p = (self.p + align - 1) // align * align
        r = self.p
        self.p += n
        assert self.p <= self.end, "out of registers"
        return r


def stamp(k, force=False):
    if not STAMPS:
        return []
    assert k < NST
    if OPT.get("dbgbar") and 1 <= k <= 9 and not force:
        return []
    op = "s_memtime" if OPT.get("cyc") else "s_memrealtime"
    return [f"{op} s[{ST_BASE+2*k}:{ST_BASE+2*k+1}]"]


def bstamp(mode, k):
    return stamp(k, True) if OPT.get("dbgbar") == mode else []


def stamp_end():
    if not STAMPS:
        return ["s_endpgm"]
    L = stamp(10) + ["s_waitcnt vmcnt(0)"] + stamp(11)
    L += ["s_waitcnt lgkmcnt(0)", "s_mov_b64 exec, 1", "s_lshl_b32 s74, s2, 3", f"s_add_u32 s74, s74, s{S_WIDX}",
          "s_lshl_b32 s74, s74, 6", f"s_add_u32 s74, s74, {ST_OFF}", "v_mov_b32 v1, 0"]
    for k in range(NST):
        L.append(f"v_mov_b32 v{4+k}, s{ST_BASE+2*k}")
    for k in range(0, NST, 4):
        L.append(f"buffer_store_dwordx4 v[{4+k}:{7+k}], v1, {sr(SRD_WS)}, s74 offen offset:{4*k}")
    if OPT.get("hdbg"):
        lab = f"HD{len(HDL)}"
        HDL.append(lab)
        L += [f"v_not_b32 v20, v4", f"global_atomic_umax v1, v20, s[{S_DBG}:{S_DBG+1}] offset:56",
              f"global_atomic_umax v1, v15, s[{S_DBG}:{S_DBG+1}] offset:60",
              f"s_cmp_lg_u32 s2, {OPT['hdbg']}", f"s_cbranch_scc1 {lab}", f"s_cmp_lg_u32 s{S_WIDX}, 0", f"s_cbranch_scc1 {lab}"]
        words = [1, 2, 3, 4, 5, 6, 7, 9, 10, 11, 12]
        for k in range(1, NST):
            L += [f"v_sub_u32 v20, v{4+k}, v4", f"global_store_dword v1, v20, s[{S_DBG}:{S_DBG+1}] offset:{4*words[k-1]}", "s_nop 1"]
        L += [f"global_store_dword v1, v4, s[{S_DBG}:{S_DBG+1}] offset:52"]
        L.append(f"{lab}:")
    L.append("s_endpgm")
    return L


def is_vmem(line):
    return line.startswith("buffer_") or line.startswith("global_")


def resolve_vm(lines):
    out = []
    count = 0
    tags = {}
    done = -1
    for ln in lines:
        if isinstance(ln, tuple):
            if ln[0] == "VMTAG":
                tags[ln[1]] = count
            elif ln[0] == "VMWAIT":
                if tags[ln[1]] <= done:
                    continue
                n = count - tags[ln[1]]
                assert 0 <= n <= 63, n
                out.append(f"s_waitcnt vmcnt({n})")
                done = tags[ln[1]]
            elif ln[0] == "VMRESET":
                done = count
            elif ln[0] == "NOCOUNT":
                out.append(ln[1])
            else:
                raise ValueError(ln)
        else:
            if is_vmem(ln):
                count += 1
            out.append(ln)
    return out


def resolve_lds(lines):
    out = []
    count = 0
    tags = {}
    for ln in lines:
        if isinstance(ln, tuple):
            if ln[0] == "LTAG":
                tags[ln[1]] = count
            elif ln[0] == "LWAIT":
                out.append(f"s_waitcnt lgkmcnt({min(15, count - tags[ln[1]])})")
            else:
                raise ValueError(ln)
        else:
            if ln.startswith("ds_"):
                count += 1
            out.append(ln)
    return out


SLOT = 49152
KG_BASE = 147456
KARR = 3584
U_BASE = 131072
UPITCH = 1344
USZ = 4 * UPITCH
YB_BASE = U_BASE + 2 * USZ
RING2 = 32768

S_U, S_ARE, S_AIM, S_BRE, S_BIM, S_CRE, S_CIM, S_LDT = 4, 6, 8, 10, 12, 14, 16, 18
S_DS = 20
S_WG, S_WU, S_WD, S_GW = 24, 26, 28, 30
S_OUT, S_DBG, S_WS = 32, 34, 36
S_WIDX, S_XCD, S_IDX, S_RB, S_CB, S_PHI = 38, 39, 40, 41, 42, 43
SRD_X, SRD_WG, SRD_WU, SRD_WS, SRD_WD, SRD_OUT = 44, 48, 52, 56, 60, 64


def srd(a, d, base, nbytes):
    a(f"""
    s_mov_b32 s{d}, s{base}
    s_and_b32 s{d+1}, s{base+1}, 0xffff
    s_mov_b32 s{d+2}, {nbytes}
    s_mov_b32 s{d+3}, 0x00020000
    """)


def prologue(a):
    a("""
    s_cmp_ge_u32 s2, 256
    s_cbranch_scc1 L_END
    """)
    if STAMPS:
        a.ext([f"s_mov_b32 s{ST_BASE+2*k}, 0" for k in range(NST)])
    a.ext(stamp(0))
    a(f"""
    s_load_dwordx16 s[4:19], s[0:1], 0
    s_load_dwordx8 s[24:31], s[0:1], 80
    s_load_dwordx2 s[36:37], s[0:1], 128
    s_load_dwordx4 s[32:35], s[0:1], 112
    s_load_dwordx2 s[20:21], s[0:1], 64
    v_lshrrev_b32 v1, 6, v0
    v_and_b32 v0, 63, v0
    s_and_b32 s{S_XCD}, s2, 7
    v_readfirstlane_b32 s{S_WIDX}, v1
    s_lshr_b32 s{S_IDX}, s2, 3
    """)
    if OPT.get("map", 1) == 0:
        a(f"""
        s_and_b32 s68, s{S_IDX}, 3
        s_lshr_b32 s69, s{S_IDX}, 2
        s_lshr_b32 s{S_RB}, s{S_XCD}, 1
        s_lshl_b32 s{S_RB}, s{S_RB}, 2
        s_add_u32 s{S_RB}, s{S_RB}, s68
        s_and_b32 s{S_CB}, s{S_XCD}, 1
        s_mul_i32 s{S_CB}, s{S_CB}, 7
        s_add_u32 s{S_CB}, s{S_CB}, s69
        s_lshl_b32 s{S_PHI}, s68, 1
        s_add_u32 s{S_PHI}, s{S_PHI}, s69
        s_and_b32 s{S_PHI}, s{S_PHI}, 7
        """)
    else:
        a(f"""
        s_and_b32 s70, s{S_XCD}, 1
        s_lshl_b32 s70, s70, 2
        s_and_b32 s68, s{S_IDX}, 7
        s_lshr_b32 s69, s{S_IDX}, 3
        s_add_u32 s71, s69, s70
        s_add_u32 s72, s68, s70
        s_cmp_ge_u32 s{S_IDX}, 24
        s_cselect_b32 s71, 3, s71
        s_cselect_b32 s68, s72, s68
        s_lshr_b32 s{S_CB}, s{S_XCD}, 1
        s_and_b32 s{S_CB}, s{S_CB}, 1
        s_mul_i32 s{S_CB}, s{S_CB}, 7
        s_add_u32 s{S_CB}, s{S_CB}, s71
        s_lshr_b32 s{S_RB}, s{S_XCD}, 2
        s_lshl_b32 s{S_RB}, s{S_RB}, 3
        s_add_u32 s{S_RB}, s{S_RB}, s68
        s_lshl_b32 s{S_PHI}, s69, 1
        s_add_u32 s{S_PHI}, s{S_PHI}, s68
        s_and_b32 s{S_PHI}, s{S_PHI}, 7
        """)
    a(f"""
    s_waitcnt lgkmcnt(0)
    """)
    srd(a, SRD_X, S_U, 2048 * 512 * 2)
    srd(a, SRD_WG, S_WG, 512 * 1792 * 2)
    srd(a, SRD_WU, S_WU, 512 * 1792 * 2)
    srd(a, SRD_WS, S_WS, WS_BYTES)
    srd(a, SRD_WD, S_WD, 1792 * 512 * 2)
    srd(a, SRD_OUT, S_OUT, 2048 * 512 * 2)
    a(f"""
    s_cmp_ge_u32 s{S_WIDX}, 6
    s_cbranch_scc1 L_KWAVE
    s_cmp_ge_u32 s{S_WIDX}, 4
    s_cbranch_scc1 L_LWAVE
    s_cmp_ge_u32 s{S_IDX}, 28
    s_cbranch_scc1 L_SPARE
    """)


VL16 = 1
XD = 8
(VD0, VD1, DA0, DA1, VEP, VPH, VFL, VG, VY, VYW, VYT, VW1, VW2, VW3, VR1, VR23) = range(112, 128)
YT_BASE = YB_BASE
G_LDS = YB_BASE
def n1():
    return OPT.get("n1", 14)


def rot_scalar(dst, tmp):
    return f"""
    s_and_b32 s{dst}, s{S_IDX}, 1
    s_lshl_b32 s{dst}, s{dst}, 1
    s_lshr_b32 s{tmp}, s{S_IDX}, 3
    s_add_u32 s{dst}, s{dst}, s{tmp}
    s_and_b32 s{dst}, s{dst}, 3
    s_mul_i32 s{dst}, s{dst}, 7
    """


def gemm2_setup(a):
    a(f"""
    s_lshl_b32 s6, s{S_XCD}, 2
    s_lshr_b32 s13, s{S_IDX}, 3
    s_add_u32 s6, s6, s13
    s_and_b32 s7, s{S_IDX}, 7
    s_lshl_b32 s17, s6, 6
    s_lshr_b32 s23, s{S_WIDX}, 1
    s_lshl_b32 s13, s23, 5
    s_add_u32 s17, s17, s13
    s_lshl_b32 s18, s7, 6
    s_and_b32 s14, s{S_WIDX}, 1
    s_lshl_b32 s13, s14, 5
    s_add_u32 s18, s18, s13
    v_lshrrev_b32 v5, 5, v0
    v_and_b32 v6, 31, v0
    v_add_u32 v6, s17, v6
    v_lshlrev_b32 v7, 4, v5
    v_add_u32 v7, s18, v7
    v_lshlrev_b32 v7, 1, v7
    v_lshl_add_u32 v{VEP}, v6, 10, v7
    v_mov_b32 v{VR23}, v7
    s_lshl_b32 s8, s{S_WIDX}, 15
    s_lshl_b32 s9, s6, 1
    s_add_u32 s9, s9, s23
    s_mul_i32 s9, s9, 112
    s_mul_i32 s13, s{S_WIDX}, 28
    s_add_u32 s9, s9, s13
    s_lshl_b32 s9, s9, 10
    s_mul_i32 s22, s23, {224*1024}
    s_sub_u32 s22, {112*1024}, s22
    s_lshl_b32 s10, s13, 14
    s_lshl_b32 s13, s7, 7
    s_add_u32 s10, s10, s13
    """)
    a(rot_scalar(12, 13))
    a(f"""
    s_add_u32 s11, s12, {n1()}
    s_cmp_ge_u32 s11, 28
    s_cselect_b32 s13, 28, 0
    s_sub_u32 s11, s11, s13
    s_lshl_b32 s15, s6, 5
    s_mul_i32 s13, s{S_WIDX}, 7
    s_add_u32 s15, s15, s13
    s_lshl_b32 s15, s15, 7
    s_add_u32 s15, s15, {FH_OFF}
    s_lshl_b32 s13, s7, 2
    s_add_u32 s13, s13, s{S_WIDX}
    s_lshl_b32 s16, s13, 10
    s_add_u32 s16, s16, {FY_OFF}
    s_lshl_b32 s19, s13, 16
    s_lshl_b32 s13, s6, 7
    s_add_u32 s19, s19, s13
    s_add_u32 s19, s19, {Y_OFF}
    v_lshlrev_b32 v{VL16}, 4, v0
    v_lshrrev_b32 v2, 3, v0
    v_and_b32 v3, 7, v0
    v_lshlrev_b32 v{VY}, 12, v2
    v_lshl_add_u32 v{VY}, v3, 4, v{VY}
    v_lshrrev_b32 v4, 1, v2
    v_and_b32 v4, 1, v4
    v_lshlrev_b32 v4, 2, v4
    v_xor_b32 v3, v3, v4
    v_lshlrev_b32 v{VD0}, 10, v2
    v_lshl_add_u32 v{VD0}, v3, 4, v{VD0}
    v_add_u32 v{VD1}, {8192-1024}, v{VD0}
    v_lshlrev_b32 v{VYW}, 7, v2
    v_lshl_add_u32 v{VYW}, v3, 4, v{VYW}
    v_add_u32 v{VYW}, s8, v{VYW}
    v_lshrrev_b32 v2, 2, v0
    v_and_b32 v2, 3, v2
    v_and_b32 v3, 3, v0
    v_lshrrev_b32 v4, 4, v0
    v_and_b32 v4, 1, v4
    v_lshl_add_u32 v6, v5, 2, v2
    v_lshlrev_b32 v6, 7, v6
    v_and_b32 v7, 1, v3
    v_lshl_add_u32 v6, v7, 5, v6
    v_lshl_add_u32 v6, v4, 4, v6
    v_lshrrev_b32 v7, 1, v3
    v_lshl_add_u32 v6, v7, 3, v6
    v_add_u32 v6, s8, v6
    v_lshrrev_b32 v7, 1, v2
    v_xor_b32 v7, s14, v7
    v_lshl_add_u32 v{DA0}, v7, 6, v6
    v_xor_b32 v7, 1, v7
    v_lshl_add_u32 v{DA1}, v7, 6, v6
    s_lshl_b32 s13, s14, 1
    v_add_u32 v6, s13, v5
    v_lshlrev_b32 v{VYT}, 15, v6
    v_lshl_add_u32 v{VYT}, v2, 7, v{VYT}
    v_lshrrev_b32 v7, 1, v2
    v_xor_b32 v7, s23, v7
    v_lshl_add_u32 v{VYT}, v7, 6, v{VYT}
    v_lshl_add_u32 v{VYT}, v4, 5, v{VYT}
    v_lshl_add_u32 v{VYT}, v3, 3, v{VYT}
    v_min_u32 v{VPH}, 6, v0
    v_lshlrev_b32 v{VPH}, 7, v{VPH}
    v_lshrrev_b32 v2, 2, v0
    v_and_b32 v2, 7, v2
    v_lshlrev_b32 v{VFL}, 7, v2
    v_lshl_add_u32 v{VFL}, v3, 2, v{VFL}
    v_and_b32 v{VG}, 31, v0
    s_lshl_b32 s13, s23, 5
    v_add_u32 v{VG}, s13, v{VG}
    v_lshlrev_b32 v{VG}, 2, v{VG}
    v_add_u32 v{VG}, {G_LDS}, v{VG}
    v_add_u32 v{VW1}, s8, v{VL16}
    s_xor_b32 s13, s{S_WIDX}, 1
    s_lshl_b32 s13, s13, 15
    v_add_u32 v{VR1}, s13, v{VL16}
    s_xor_b32 s13, s{S_WIDX}, 2
    s_lshl_b32 s13, s13, 15
    v_add_u32 v{VW2}, s13, v{VL16}
    s_xor_b32 s13, s{S_WIDX}, 3
    s_lshl_b32 s13, s13, 15
    v_add_u32 v{VW3}, s13, v{VL16}
    """)


def xd_loads():
    return [f"buffer_load_dwordx4 {v(XD,4)}, v{VEP}, {sr(SRD_X)}, 0 offen",
            f"buffer_load_dwordx4 {v(XD+4,4)}, v{VEP}, {sr(SRD_X)}, 0 offen offset:16",
            f"global_load_dwordx4 v[4:7], v{VR23}, s[{S_DS}:{S_DS+1}]",
            f"global_load_dwordx4 v[36:39], v{VR23}, s[{S_DS}:{S_DS+1}] offset:16"]


def xd_finish():
    L = ["s_mov_b32 s74, 0xffff0000", "s_waitcnt vmcnt(0)"]
    for i in range(8):
        d = 4 + i if i < 4 else 32 + i
        L += [f"v_lshlrev_b32 v2, 16, v{XD+i}", f"v_and_b32 v3, s74, v{XD+i}",
              f"v_lshlrev_b32 v34, 16, v{d}", f"v_and_b32 v35, s74, v{d}",
              "v_mul_f32 v2, v2, v34", "v_mul_f32 v3, v3, v35", f"v_cvt_pk_bf16_f32 v{XD+i}, v2, v3"]
    return L


def gemm1(a):
    XA = 16
    WA = 28
    BUFS = [64, 88, 40]
    ACC = 128

    def acc(mat, t, tt):
        return ACC + 16 * (mat * 4 + t * 2 + tt)

    def wf(b, mat, t):
        return BUFS[b] + 4 * (mat * 2 + t)

    def xf(b, tt):
        return BUFS[b] + 16 + 4 * tt

    gemm2_setup(a)
    a(f"""
    s_lshr_b32 s68, s{S_WIDX}, 1
    s_and_b32 s69, s{S_WIDX}, 1
    v_and_b32 v7, 31, v0
    v_lshrrev_b32 v2, 5, v0
    v_lshrrev_b32 v3, 1, v0
    v_and_b32 v3, 7, v3
    s_lshl_b32 s70, s68, 13
    v_lshlrev_b32 v4, 7, v7
    v_add_u32 v4, s70, v4
    """)
    for ks in range(4):
        a(f"""
        v_add_u32 v5, {2*ks}, v2
        v_xor_b32 v5, v5, v3
        v_lshl_add_u32 v{XA+ks}, v5, 4, v4
        """)
    a(f"""
    v_lshrrev_b32 v7, 2, v0
    v_and_b32 v7, 3, v7
    v_and_b32 v3, 3, v0
    v_lshrrev_b32 v4, 4, v0
    v_and_b32 v4, 1, v4
    v_lshl_add_u32 v5, v2, 3, v7
    v_lshlrev_b32 v5, 8, v5
    v_lshl_add_u32 v5, v4, 5, v5
    v_lshl_add_u32 v5, v3, 3, v5
    s_lshl_b32 s70, s69, 1
    """)
    for t in range(2):
        a(f"""
        s_add_u32 s71, s70, {t}
        v_xor_b32 v6, s71, v7
        v_lshl_add_u32 v{WA+t}, v6, 6, v5
        """)
    for sl in (1, 2):
        for ks in range(4):
            a(f"v_add_u32 v{XA+4*sl+ks}, {sl*SLOT}, v{XA+ks}")
        for t in range(2):
            a(f"v_add_u32 v{WA+2*sl+t}, {sl*SLOT}, v{WA+t}")
    a(f"""
    s_lshl_b32 s70, s{S_RB}, 2
    s_lshl_b32 s71, s68, 1
    s_add_u32 s70, s70, s71
    s_mul_i32 s70, s70, 112
    s_lshl_b32 s71, s{S_CB}, 3
    s_add_u32 s70, s70, s71
    s_lshl_b32 s71, s69, 2
    s_add_u32 s70, s70, s71
    s_lshl_b32 s70, s70, 10
    s_add_u32 s71, s70, {112*1024}
    s_lshl_b32 s3, s{S_RB}, 1
    s_add_u32 s3, s3, s68
    s_lshl_b32 s3, s3, 5
    s_lshl_b32 s72, s{S_CB}, 1
    s_add_u32 s3, s3, s72
    s_add_u32 s3, s3, s69
    s_lshl_b32 s3, s3, 7
    s_add_u32 s3, s3, {FH_OFF}
    s_mov_b32 s72, {f32(-LOG2E)}
    s_mov_b32 s73, {f32(-LOG2E)}
    """)

    def reads(n):
        st, ks = n >> 2, n & 3
        sl = st % 3
        b = n % 3
        r = []
        r.append(f"ds_read_b128 {v(xf(b,0),4)}, v{XA+4*sl+ks}")
        for mat in range(2):
            for t in range(2):
                for h2 in range(2):
                    off = 16384 * (1 + mat) + ks * 4096 + h2 * 1024
                    r.append(f"ds_read_b64_tr_b16 {v(wf(b,mat,t)+2*h2,2)}, v{WA+2*sl+t} offset:{off}")
                if mat == 0 and t == 0:
                    r.append(f"ds_read_b128 {v(xf(b,1),4)}, v{XA+4*sl+ks} offset:4096")
        return r

    T = 16

    def epi(p):
        t, tt = p >> 1, p & 1
        G, U = acc(0, t, tt), acc(1, t, tt)
        o = 32 + 8 * p
        L = []
        for h in range(2):
            R = range(8 * h, 8 * h + 8)
            L += [f"v_pk_mul_f32 {v(T+i,2)}, {v(G+i,2)}, s[72:73]" for i in R[::2]]
            for i in R[::2]:
                L += [f"v_exp_f32 v{T+i}, v{T+i}", f"v_exp_f32 v{T+i+1}, v{T+i+1}",
                      f"v_pk_mul_f32 {v(U+i,2)}, {v(G+i,2)}, {v(U+i,2)}"]
            L += [f"v_pk_add_f32 {v(T+i,2)}, {v(T+i,2)}, 1.0 op_sel_hi:[1,0]" for i in R[::2]]
            L += [f"v_rcp_f32 v{T+i}, v{T+i}" for i in R]
            L += [f"v_pk_mul_f32 {v(U+i,2)}, {v(U+i,2)}, {v(T+i,2)}" for i in R[::2]]
            for i in range(4):
                L.append(f"v_cvt_pk_bf16_f32 v{o+4*h+i}, v{U+8*h+2*i}, v{U+8*h+2*i+1}")
            L.append(f"buffer_store_dwordx4 {v(o+4*h,4)}, v{VL16}, {sr(SRD_WS)}, s{70+tt} offen offset:{t*2048+1024*h} sc1")
        return L

    a("s_barrier")
    a.ext(stamp(1))
    a.ext(bstamp(2, 1))
    a.ext(reads(0))
    a.ext(reads(1))
    extra = []
    XL = OPT.get("xl", 13)
    for n in range(32):
        b = n % 3
        if (n & 3) == 2:
            a("s_waitcnt lgkmcnt(0)")
            a.ext(bstamp(2, 2 + (n >> 2)))
            a("s_barrier")
            if n == 22:
                a.ext(stamp(2))
        elif (n & 3) != 3:
            a("s_waitcnt lgkmcnt(10)")
        rd = reads(n + 2) if n + 2 < 32 else []
        mf = []
        for t in range(2):
            for tt in range(2):
                for mat in range(2):
                    c = "0" if n == 0 else v(acc(mat, t, tt), 16)
                    mf.append(f"v_mfma_f32_32x32x16_bf16 {v(acc(mat,t,tt),16)}, {v(wf(b,mat,t),4)}, {v(xf(b,tt),4)}, {c}")
        if n == XL:
            extra = xd_loads() + ["v_mov_b32 v2, 0", nonce_ld(VR23, 2)]
        if n == XL + 6:
            extra = xd_finish()
        for i, m in enumerate(mf):
            a(m)
            a.ext(rd[2 * i:2 * i + 2])
            if i >= 4:
                a.ext(extra[:3])
                extra = extra[3:]
    assert not extra
    a.ext(stamp(3))
    a("v_mov_b32 v2, 0")
    a.ext(plain(nonce_get("NG", VR23, 2)))
    for p in range(4):
        a.ext(epi(p))
    a.ext(stamp(4))
    a("s_branch L_GEMM2")


def spare(a):
    R = 16
    O = 80
    GWv = 112
    SUM = 120
    a(f"""
    s_sub_u32 s68, s{S_IDX}, 28
    s_lshl_b32 s3, s{S_XCD}, 2
    s_add_u32 s3, s3, s68
    s_lshl_b32 s3, s3, 5
    s_add_u32 s3, s3, s{S_WIDX}
    s_lshl_b32 s3, s3, 2
    s_add_u32 s3, s3, {FU_OFF}
    s_lshl_b32 s68, s68, 2
    s_add_u32 s68, s68, s{S_WIDX}
    s_lshr_b32 s69, s68, 1
    s_mov_b32 s74, s{S_XCD}
    v_and_b32 v1, 7, v0
    v_lshrrev_b32 v2, 3, v0
    v_lshlrev_b32 v3, 15, v2
    v_lshl_add_u32 v3, v1, 4, v3
    v_lshlrev_b32 v4, 15, v1
    v_lshl_add_u32 v4, v2, 4, v4
    v_lshlrev_b32 v5, 4, v1
    v_lshlrev_b32 v6, 2, v0
    s_mov_b32 s70, 0x05040100
    s_mov_b32 s71, 0x07060302
    s_lshl_b32 s72, s69, 7
    v_add_u32 v7, s72, v5
    global_load_dwordx4 {v(GWv,4)}, v7, s[{S_GW}:{S_GW+1}]
    """)
    for i in range(2):
        b = 6 + 4 * i
        a(f"""
        s_lshl_b32 s73, s68, 1
        s_add_u32 s73, s73, {i}
        s_and_b32 s73, s73, 3
        s_lshl_b32 s{b}, s74, 18
        s_lshl_b32 s75, s73, 10
        s_add_u32 s{b}, s{b}, s75
        s_add_u32 s{b}, s{b}, s72
        s_lshl_b32 s{b+1}, s69, 18
        s_add_u32 s{b+1}, s{b+1}, s75
        s_lshl_b32 s75, s74, 7
        s_add_u32 s{b+1}, s{b+1}, s75
        s_add_u32 s{b+1}, s{b+1}, {UT_OFF}
        s_lshl_b32 s{b+2}, s74, 8
        s_lshl_b32 s75, s73, 11
        s_add_u32 s{b+2}, s{b+2}, s75
        s_lshl_b32 s75, s69, 13
        s_add_u32 s{b+2}, s{b+2}, s75
        s_add_u32 s{b+2}, s{b+2}, {GL_OFF}
        """)
        for j in range(8):
            a(f"buffer_load_dwordx4 {v(R+32*i+4*j,4)}, v3, {sr(SRD_X)}, s{b} offen")
            if j < 7:
                a(f"s_add_u32 s{b}, s{b}, 4096")
    for i in range(2):
        b = 6 + 4 * i
        a(f"s_waitcnt vmcnt({8 if i == 0 else 9})")
        Ri = R + 32 * i
        for e in range(8):
            for jj in range(4):
                sel = 71 if (e & 1) else 70
                a(f"v_perm_b32 v{O+4*e+jj}, v{Ri+4*(2*jj+1)+(e>>1)}, v{Ri+4*(2*jj)+(e>>1)}, s{sel}")
            a(f"buffer_store_dwordx4 {v(O+4*e,4)}, v4, {sr(SRD_WS)}, s{b+1} offen sc1")
            if e < 7:
                a(f"s_add_u32 s{b+1}, s{b+1}, 4096")
        for j in range(8):
            a(f"v_mov_b32 v{SUM+j}, 0")
        for q in range(4):
            for j in range(8):
                a(f"v_dot2c_f32_bf16 v{SUM+j}, v{Ri+4*j+q}, v{GWv+q}")
        a("s_nop 3")
        for ctl in ("quad_perm:[1,0,3,2]", "quad_perm:[2,3,0,1]", "row_half_mirror"):
            for j in range(8):
                a(f"v_add_f32_dpp v{SUM+j}, v{SUM+j}, v{SUM+j} {ctl} row_mask:0xf bank_mask:0xf")
        for j in range(1, 8):
            a(f"""
            v_cmp_eq_u32 vcc, {j}, v1
            s_nop 1
            v_cndmask_b32 v{SUM}, v{SUM}, v{SUM+j}, vcc
            """)
        a(f"buffer_store_dword v{SUM}, v6, {sr(SRD_WS)}, s{b+2} offen sc1")
        a("s_nop 1")
    a.ext(stamp(1))
    a("v_mov_b32 v2, 0")
    a(nonce_ld(3, 2))
    a("s_waitcnt vmcnt(0)")
    a.ext(plain(nonce_get("NS", 3, 2)))
    a(f"""
    s_mov_b32 s76, s{S_NONCE}
    s_mov_b64 exec, 1
    buffer_store_dword v3, v2, {sr(SRD_WS)}, s3 offen sc1
    s_mov_b64 exec, -1
    s_barrier
    """)
    a.ext(stamp(2))
    gemm2_setup(a)
    a.ext(xd_loads())
    a(f"""
    s_lshl_b32 s13, s{S_XCD}, 2
    s_add_u32 s13, s13, s{S_IDX}
    s_sub_u32 s13, s13, 28
    s_lshl_b32 s13, s13, 2
    s_add_u32 s13, s13, s{S_WIDX}
    s_mul_i32 s13, s13, {14*1024}
    """)
    for i in range(14):
        if i % 4 == 0 and i:
            a("s_add_u32 s13, s13, 4096")
        a(f"buffer_load_dwordx4 {v(64+4*(i%4),4)}, v{VL16}, {sr(SRD_WD)}, s13 offen offset:{1024*(i%4)}")
    a.ext(xd_finish())
    a(f"s_mov_b32 s{S_NONCE}, s76")


def spin(label, loads, checks, sleep=2):
    L = [f"{label}_SPIN:", f"s_sleep {sleep}"]
    L += [("NOCOUNT", x) for x in loads]
    L += ["s_waitcnt vmcnt(0)"]
    L += ["s_sub_u32 s77, s77, 1", "s_cmp_eq_u32 s77, 0", f"s_cbranch_scc1 {label}_OK"]
    L += [f"{label}_CHK:"] + checks
    L += [f"s_cbranch_scc0 {label}_SPIN", f"{label}_OK:"]
    return L


S_NONCE = 23


def nonce_ld(vd, vz):
    return f"global_load_dword v{vd}, v{vz}, s[{S_DBG}:{S_DBG+1}] sc1"


def nonce_get(label, vd, vz, sleep=8):
    L = ["s_mov_b32 s77, 0x100000", f"s_branch {label}_CHK"]
    L += spin(label, [nonce_ld(vd, vz)], [f"v_cmp_ne_u32 vcc, 0, v{vd}", "s_nop 3", "s_cmp_eq_u64 vcc, exec"], sleep)
    L += [f"v_readfirstlane_b32 s{S_NONCE}, v{vd}", "s_nop 3"]
    return L


def plain(lines):
    return [x[1] if isinstance(x, tuple) else x for x in lines]


def gemm2(a0):
    a = Asm()
    NS = 28
    NP = 12
    NR = 16
    DH = 6
    ACC = 192
    WF = 16
    WFR = 128
    HB = 144
    N1 = n1()
    NF = OPT.get("nf", 2)
    PP1 = OPT.get("pp1", 21)
    N2 = OPT.get("n2", 28)

    def acc(t, tt):
        return ACC + 16 * (t + 2 * tt)

    def wload(i):
        sl = i % NR
        return [
            "s_lshl_b32 s14, s11, 14", f"s_add_u32 m0, s8, {sl*2048}", "s_add_u32 s14, s14, s10",
            f"buffer_load_dwordx4 v{VD0}, {sr(SRD_WD)}, s14 offen lds",
            "s_add_u32 s11, s11, 1", "s_cmp_ge_u32 s11, 28", "s_cselect_b32 s11, 0, s11",
            f"buffer_load_dwordx4 v{VD1}, {sr(SRD_WD)}, s14 offen offset:1024 lds",
            ("VMTAG", f"W{i}"),
        ]

    def hload(i):
        sl = i % DH
        return [
            "s_lshl_b32 s13, s12, 10", "s_add_u32 s13, s13, s9",
            f"buffer_load_dwordx4 {v(HB+8*sl,4)}, v{VL16}, {sr(SRD_WS)}, s13 offen sc1",
            "s_add_u32 s13, s13, s22",
            "s_add_u32 s12, s12, 1", "s_cmp_ge_u32 s12, 28", "s_cselect_b32 s12, 0, s12",
            f"buffer_load_dwordx4 {v(HB+8*sl+4,4)}, v{VL16}, {sr(SRD_WS)}, s13 offen sc1",
            ("VMTAG", f"H{i}"),
        ]

    def wfrag(i):
        return WF + 8 * i if i < NP else WFR + 8 * (i & 1)

    def trd(i):
        sl = i % NR
        r = [("VMWAIT", f"W{i}")] if i >= N1 else []
        for t in range(2):
            for h2 in range(2):
                r.append(f"ds_read_b64_tr_b16 {v(wfrag(i)+4*t+2*h2,2)}, v{DA0+t} offset:{sl*2048+h2*1024}")
        return r

    a.tag("hst")
    a("s_barrier")
    a.ext(stamp(5))
    a(f"""
    s_setprio 2
    v_mov_b32 v2, 0
    v_mov_b32 v3, s{S_NONCE}
    s_mov_b32 s77, 0x100000
    """)
    ph_ld = f"buffer_load_dword v4, v{VPH}, {sr(SRD_WS)}, s15 offen sc1"

    def wl(i):
        a.ext(wload(i))
        if i == N1 + NF - 1:
            a.wait("hst")
            a(f"""
            s_mov_b64 exec, 1
            buffer_store_dword v3, v2, {sr(SRD_WS)}, s3 offen sc1
            s_mov_b64 exec, -1
            """)
            a.ext(stamp(6))
        if i == PP1:
            a(ph_ld)
            a.tag("P1")
    assert N1 + NF <= NR
    for i in range(N1, NR):
        wl(i)
    for i in range(NP + 1):
        if i < NP:
            a.ext(trd(i))
        if i >= 1 and NR + i - 1 < N2:
            a(f"s_waitcnt lgkmcnt({4 if i < NP else 0})")
            wl(NR + i - 1)
    a.ext(stamp(7))
    a.wait("P1")
    a("s_branch PH_CHK")
    a.ext(spin("PH", [ph_ld], [f"v_cmp_eq_u32 vcc, s{S_NONCE}, v4", "s_nop 3", "s_cmp_eq_u64 vcc, exec"]))
    a.ext(stamp(8))
    a.ext(bstamp(3, 1))
    for i in range(DH):
        a.ext(hload(i))
    a("s_waitcnt lgkmcnt(0)")

    YR, FL, YT, EG = 80, 2, WFR, 6
    fl_ld = [f"buffer_load_dword v{FL}, v{VFL}, {sr(SRD_WS)}, s16 offen sc1"]
    chk = [f"v_cmp_eq_u32 vcc, s{S_NONCE}, v{FL}", "s_nop 3", "s_cmp_eq_u64 vcc, exec"]

    def yloads():
        return [f"buffer_load_dwordx4 {v(YR,4)}, v{VY}, {sr(SRD_WS)}, s19 offen sc1",
                "s_add_u32 s13, s19, 0x8000",
                f"buffer_load_dwordx4 {v(YR+4,4)}, v{VY}, {sr(SRD_WS)}, s13 offen sc1"]

    IF = OPT.get("if", 22)
    IY = OPT.get("iy", 25)
    for i in range(NS):
        sl = i % DH
        a.wait(f"H{i}")
        if i >= NP:
            a("s_waitcnt lgkmcnt(0)")
        hl = hload(i - 1 + DH) if 1 <= i and i - 1 + DH < NS else []
        fill = [(trd(i + 1) if NP <= i + 1 < NS else []) + hl[:3], hl[3:], wload(N2 + i) if N2 + i < NS else [], []]
        k = 0
        for t in range(2):
            for tt in range(2):
                c = "0" if i == 0 else v(acc(t, tt), 16)
                a(f"v_mfma_f32_32x32x16_bf16 {v(acc(t,tt),16)}, {v(wfrag(i)+4*t,4)}, {v(HB+8*sl+4*tt,4)}, {c}")
                a.ext(fill[k])
                k += 1
        if i in (0, 3, 7, 11, 15, 19, 23, 27):
            a.ext(bstamp(3, 2 + (0, 3, 7, 11, 15, 19, 23, 27).index(i)))
        if i == IF:
            a.ext(fl_ld)
            a.tag("F")
        if i == IY:
            a.wait("F")
            a.ext(yloads())
    a.ext(stamp(9))
    a.ext(chk)
    a("s_cbranch_scc1 PY_DONE")
    a.ext(spin("PY", fl_ld, chk))
    a.ext([("NOCOUNT", x) if is_vmem(x) else x for x in yloads()])
    a("PY_DONE:")
    a("s_nop 5")
    for k in range(1, 4):
        for g in range(4):
            a(f"ds_write_b128 v{VW1}, {v(ACC+16*k+4*g,4)} offset:{k*4096+g*1024}")
    X1, Y1 = HB, HB + 16
    a(f"""
    v_mov_b32 v5, 0xffff0000
    ds_read_b32 v{EG}, v{VG}
    s_waitcnt vmcnt(0)
    ds_write_b128 v{VYW}, {v(YR,4)} offset:16384
    ds_write_b128 v{VYW}, {v(YR+4,4)} offset:17408
    """)
    for i in range(8):
        a(f"""
        v_lshlrev_b32 v{X1+2*i}, 16, v{XD+i}
        v_and_b32 v{X1+2*i+1}, v5, v{XD+i}
        """)
    a("s_waitcnt lgkmcnt(0)")
    a("s_barrier")
    PB = 16
    for q in range(4):
        a(f"ds_read_b64_tr_b16 {v(YT+2*q,2)}, v{VYT} offset:{16384+q*512}")
    for k, base in ((1, VR1), (2, VW2), (3, VW3)):
        for g in range(4):
            a(f"ds_read_b128 {v(PB+16*(k-1)+4*g,4)}, v{base} offset:{k*4096+g*1024}")
    a("s_waitcnt lgkmcnt(12)")
    for i in range(8):
        a(f"""
        v_lshlrev_b32 v{Y1+2*i}, 16, v{YT+i}
        v_and_b32 v{Y1+2*i+1}, v5, v{YT+i}
        """)
    for i in range(0, 16, 2):
        a(f"v_pk_add_f32 {v(Y1+i,2)}, {v(Y1+i,2)}, {v(X1+i,2)}")
    a("s_waitcnt lgkmcnt(8)")
    for i in range(0, 16, 2):
        a(f"v_pk_add_f32 {v(ACC+i,2)}, {v(ACC+i,2)}, {v(PB+i,2)}")
    a("s_waitcnt lgkmcnt(0)")
    for i in range(0, 16, 2):
        a(f"v_pk_add_f32 {v(PB+16+i,2)}, {v(PB+16+i,2)}, {v(PB+32+i,2)}")
    for i in range(0, 16, 2):
        a(f"v_pk_add_f32 {v(ACC+i,2)}, {v(ACC+i,2)}, {v(PB+16+i,2)}")
    for i in range(0, 16, 2):
        a(f"v_pk_add_f32 {v(Y1+i,2)}, {v(Y1+i,2)}, {v(ACC+i,2)} neg_lo:[0,1] neg_hi:[0,1]")
    for i in range(0, 16, 2):
        a(f"v_pk_fma_f32 {v(ACC+i,2)}, {v(Y1+i,2)}, {v(EG,2)}, {v(ACC+i,2)} op_sel_hi:[1,0,1]")
    for i in range(8):
        a(f"v_cvt_pk_bf16_f32 v{X1+i}, v{ACC+2*i}, v{ACC+2*i+1}")
    a(f"""
    buffer_store_dwordx4 {v(X1,4)}, v{VEP}, {sr(SRD_OUT)}, 0 offen
    buffer_store_dwordx4 {v(X1+4,4)}, v{VEP}, {sr(SRD_OUT)}, 0 offen offset:16
    """)
    a.ext(stamp_end())
    a0.ext(resolve_vm(a.L))


def kwave(gemm_wg):
    sfx = "G" if gemm_wg else "S"
    ra = RA(2, 256)
    pre = Asm()
    main = Asm()
    ph2 = Asm()
    a = pre
    a(f"""
    s_setprio {OPT.get("kprio", 0)}
    s_sub_u32 s68, s{S_WIDX}, 6
    s_lshl_b32 s69, s2, 1
    s_add_u32 s69, s69, s68
    s_lshl_b32 s70, s68, 13
    s_add_u32 s70, s70, {KG_BASE}
    s_lshl_b32 s71, s69, 8
    """)
    t0 = ra(); t1 = ra(); t2 = ra(); t3 = ra()
    PR = ra(7)
    a(f"""
    v_lshlrev_b32 v{t0}, 2, v0
    v_add_u32 v{t0}, s71, v{t0}
    s_lshl_b32 s72, s69, 1
    v_mov_b32 v{t1}, s72
    """)
    for i, sb in enumerate((S_ARE, S_AIM, S_BRE, S_BIM, S_CRE, S_CIM)):
        a(f"global_load_dword v{PR+i}, v{t0}, s[{sb}:{sb+1}]")
    a(f"global_load_ushort v{PR+6}, v{t1}, s[{S_LDT}:{S_LDT+1}]")
    if gemm_wg:
        a(f"""
        s_cmp_lg_u32 s69, 0
        s_cbranch_scc1 K{sfx}_NOTAG
        s_memrealtime s[72:73]
        v_mov_b32 v{t0}, 0
        s_waitcnt lgkmcnt(0)
        s_or_b32 s72, s72, 1
        v_mov_b32 v{t1}, s72
        s_mov_b64 exec, 1
        global_store_dword v{t0}, v{t1}, s[{S_DBG}:{S_DBG+1}] sc1
        s_mov_b64 exec, -1
        K{sfx}_NOTAG:
        """)

    WR = ra(8)
    RD = ra(2)
    a(f"""
    v_lshrrev_b32 v{t0}, 1, v0
    v_and_b32 v{t1}, 7, v{t0}
    v_lshlrev_b32 v{t0}, 8, v{t0}
    v_and_b32 v{t2}, 1, v0
    v_lshl_add_u32 v{t0}, v{t2}, 3, v{t0}
    v_add_u32 v{t0}, s70, v{t0}
    """)
    for b in range(8):
        a(f"""
        v_xor_b32 v{t2}, {b}, v{t1}
        v_lshl_add_u32 v{WR+b}, v{t2}, 4, v{t0}
        """)
    a(f"""
    v_and_b32 v{t0}, 15, v0
    v_lshrrev_b32 v{t1}, 4, v0
    """)
    for p in range(2):
        a(f"""
        v_add_u32 v{t2}, {4*p}, v{t1}
        v_xor_b32 v{t3}, v{t2}, v{t0}
        v_lshlrev_b32 v{t3}, 4, v{t3}
        v_lshl_add_u32 v{t3}, v{t2}, 8, v{t3}
        v_add_u32 v{RD+p}, s70, v{t3}
        """)
    TA0 = ra(); TA1 = ra(); TA2 = ra(); TA3 = ra()
    LP = ra(12)
    a(f"""
    v_and_b32 v{t2}, 1, v{t1}
    v_lshrrev_b32 v{t3}, 1, v{t1}
    v_lshlrev_b32 v{TA0}, 5, v{t0}
    v_lshl_add_u32 v{TA0}, v{t2}, 4, v{TA0}
    v_lshl_add_u32 v{TA0}, v{t3}, 9, v{TA0}
    v_lshrrev_b32 v{LP}, 2, v{TA0}
    v_cvt_f32_u32 v{LP}, v{LP}
    v_add_u32 v{TA0}, s70, v{TA0}
    v_add_f32 v{LP+1}, 1.0, v{LP}
    v_add_f32 v{LP+2}, 2.0, v{LP}
    v_add_f32 v{LP+3}, 2.0, v{LP+1}
    v_cmp_gt_u32 vcc, 2, v{t1}
    v_lshlrev_b32 v{TA1}, 4, v{t0}
    v_lshlrev_b32 v{TA2}, 3, v{t0}
    v_cndmask_b32 v{TA1}, v{TA2}, v{TA1}, vcc
    v_lshl_add_u32 v{TA1}, v{t1}, 8, v{TA1}
    v_add_u32 v{TA1}, s70, v{TA1}
    v_add_u32 v{TA1}, 1024, v{TA1}
    v_mov_b32 v{TA2}, 128
    v_cndmask_b32 v{TA2}, v{TA2}, 8, vcc
    v_add_u32 v{TA2}, v{TA2}, v{TA1}
    v_lshlrev_b32 v{TA3}, 2, v{t0}
    v_lshl_add_u32 v{TA3}, v{t1}, 8, v{TA3}
    v_add_u32 v{TA3}, s70, v{TA3}
    """)
    a(f"""
    v_lshlrev_b32 v{t2}, 7, v{t1}
    v_add_u32 v{t2}, 256, v{t2}
    v_lshlrev_b32 v{t3}, 8, v{t1}
    v_cndmask_b32 v{t2}, v{t3}, v{t2}, vcc
    v_lshl_add_u32 v{t2}, v{t0}, 3, v{t2}
    v_cvt_f32_u32 v{LP+4}, v{t2}
    v_mov_b32 v{t2}, 4.0
    v_cndmask_b32 v{t2}, v{t2}, 2.0, vcc
    v_mov_b32 v{t3}, {f32(128.0)}
    v_cndmask_b32 v{t3}, v{t3}, 4.0, vcc
    v_add_f32 v{LP+5}, v{LP+4}, v{t2}
    v_add_f32 v{LP+6}, v{LP+4}, v{t3}
    v_add_f32 v{LP+7}, v{LP+6}, v{t2}
    v_lshlrev_b32 v{t2}, 9, v{t1}
    v_lshl_add_u32 v{t2}, v{t0}, 3, v{t2}
    v_add_u32 v{t2}, 1024, v{t2}
    v_cvt_f32_u32 v{LP+8}, v{t2}
    v_add_f32 v{LP+9}, {f32(128.0)}, v{LP+8}
    v_add_f32 v{LP+10}, {f32(256.0)}, v{LP+8}
    v_add_f32 v{LP+11}, {f32(384.0)}, v{LP+8}
    """)
    EX = ra(10)
    a(f"""
    s_sub_u32 s72, s70, {4*17024}
    v_lshlrev_b32 v{t0}, 3, v0
    v_cvt_f32_u32 v{t1}, v{t0}
    v_cmp_gt_u32 vcc, 16, v0
    v_add_u32 v{EX+8}, s70, v{t0}
    v_lshlrev_b32 v{t0}, 2, v{t0}
    v_add_u32 v{t0}, s70, v{t0}
    v_lshlrev_b32 v{EX+9}, 2, v0
    v_add_u32 v{EX+9}, s70, v{EX+9}
    v_add_u32 v{EX+9}, 2048, v{EX+9}
    """)
    for kk in range(4):
        e0, e1 = EX + 2 * kk, EX + 2 * kk + 1
        a(f"""
        v_add_f32 v{t2}, 1.0, v{t1}
        v_cvt_pk_bf16_f32 v{t3}, v{t1}, v{t2}
        v_add_f32 v{t1}, 2.0, v{t1}
        v_and_b32 v{e0}, 0xffff, v{t3}
        v_lshrrev_b32 v{e1}, 16, v{t3}
        v_lshl_add_u32 v{e0}, v{e0}, 2, s72
        v_lshl_add_u32 v{e1}, v{e1}, 2, s72
        v_add_u32 v{t2}, {8*kk}, v{t0}
        v_add_u32 v{t3}, {8*kk+4}, v{t0}
        v_cndmask_b32 v{e0}, v{e0}, v{t2}, vcc
        v_cndmask_b32 v{e1}, v{e1}, v{t3}, vcc
        """)
    a("s_waitcnt vmcnt(0)")

    a = main
    MASK = ra()
    DT = ra()
    PP = ra(12)
    a(f"v_mov_b32 v{MASK}, 0xffff0000")
    for i in range(6):
        a(f"v_lshlrev_b32 v{PP+2*i}, 16, v{PR+i}")
        a(f"v_and_b32 v{PP+2*i+1}, v{MASK}, v{PR+i}")
    x = PR + 6
    a(f"""
    v_lshlrev_b32 v{x}, 16, v{x}
    v_mul_f32 v{t0}, {f32(LOG2E_HI)}, v{x}
    s_mov_b32 s72, {f32(LOG2E_HI)}
    v_fma_f32 v{t1}, v{x}, s72, -v{t0}
    v_fmac_f32 v{t1}, {f32(LOG2E_LO)}, v{x}
    v_exp_f32 v{t0}, v{t0}
    v_mul_f32 v{t1}, {f32(LN2)}, v{t1}
    v_fmac_f32 v{t0}, v{t0}, v{t1}
    v_cvt_pk_bf16_f32 v{t0}, v{t0}, v{t0}
    v_lshlrev_b32 v{DT}, 16, v{t0}
    """)
    A2, TH, Br, Bi, Cr, Ci = (PP + 2 * i for i in range(6))
    for m in range(2):
        a(f"""
        v_mul_f32 v{A2+m}, v{DT}, v{A2+m}
        v_mul_f32 v{TH+m}, v{DT}, v{TH+m}
        v_mul_f32 v{Br+m}, v{DT}, v{Br+m}
        v_mul_f32 v{Bi+m}, v{DT}, v{Bi+m}
        v_mul_f32 v{A2+m}, {f32(LOG2E)}, v{A2+m}
        v_mul_f32 v{TH+m}, {f32(INV2PI)}, v{TH+m}
        """)
    W0 = ra(4); W1 = ra(4)
    for m in range(2):
        a(f"""
        v_mul_f32 v{W0+2*m}, v{Cr+m}, v{Br+m}
        v_mul_f32 v{W0+2*m+1}, v{Cr+m}, v{Bi+m}
        v_fma_f32 v{W0+2*m}, -v{Ci+m}, v{Bi+m}, v{W0+2*m}
        v_fmac_f32 v{W0+2*m+1}, v{Ci+m}, v{Br+m}
        v_sub_f32 v{W0+2*m+1}, 0, v{W0+2*m+1}
        """)
    SIG = ra(); WM = ra(); CE = ra()
    a(f"""
    v_max_f32 v{SIG}, v{A2}, v{A2+1}
    v_max3_f32 v{WM}, |v{W0}|, |v{W0+1}|, |v{W0+2}|
    v_max_f32 v{WM}, |v{W0+3}|, v{WM}
    s_nop 1
    """)
    for ctl in ("quad_perm:[1,0,3,2]", "quad_perm:[2,3,0,1]", "row_half_mirror", "row_mirror"):
        a(f"""
        v_max_f32_dpp v{SIG}, v{SIG}, v{SIG} {ctl} row_mask:0xf bank_mask:0xf
        v_max_f32_dpp v{WM}, v{WM}, v{WM} {ctl} row_mask:0xf bank_mask:0xf
        s_nop 0
        """)
    a(f"""
    v_readlane_b32 s72, v{SIG}, 0
    v_readlane_b32 s73, v{SIG}, 16
    v_readlane_b32 s74, v{SIG}, 32
    v_readlane_b32 s75, v{SIG}, 48
    v_readlane_b32 s6, v{WM}, 0
    v_readlane_b32 s7, v{WM}, 16
    v_readlane_b32 s8, v{WM}, 32
    v_readlane_b32 s9, v{WM}, 48
    v_max_f32 v{SIG}, s72, v{SIG}
    v_max_f32 v{SIG}, s73, v{SIG}
    v_max_f32 v{SIG}, s74, v{SIG}
    v_max_f32 v{SIG}, s75, v{SIG}
    v_max_f32 v{WM}, s6, v{WM}
    v_max_f32 v{WM}, s7, v{WM}
    v_max_f32 v{WM}, s8, v{WM}
    v_max_f32 v{WM}, s9, v{WM}
    v_sub_f32 v{A2}, v{A2}, v{SIG}
    v_sub_f32 v{A2+1}, v{A2+1}, v{SIG}
    v_frexp_exp_i32_f32 v{CE}, v{WM}
    v_sub_u32 v{t0}, 14, v{CE}
    v_subrev_u32 v{CE}, 29, v{CE}
    """)
    for i in range(4):
        a(f"v_ldexp_f32 v{W0+i}, v{W0+i}, v{t0}")

    def cexp(l):
        r = ra(6)
        for m in range(2):
            a(f"""
            v_mul_f32 v{t0}, {f32(float(l))}, v{A2+m}
            v_mul_f32 v{t1}, {f32(float(l))}, v{TH+m}
            v_exp_f32 v{t0}, v{t0}
            v_fract_f32 v{t1}, v{t1}
            v_cos_f32 v{t2}, v{t1}
            v_sin_f32 v{t3}, v{t1}
            s_nop 0
            v_mul_f32 v{r+2*m}, v{t0}, v{t2}
            v_mul_f32 v{r+2*m+1}, v{t0}, v{t3}
            v_sub_f32 v{r+4+m}, 0, v{r+2*m+1}
            """)
        return r

    def cmul(d, x_, b, conj=False):
        for m in range(2):
            br, bi, nbi = b + 2 * m, b + 2 * m + 1, b + 4 + m
            if conj:
                bi, nbi = nbi, bi
            a(f"""
            v_mul_f32 v{d+2*m}, v{x_+2*m}, v{br}
            v_mul_f32 v{d+2*m+1}, v{x_+2*m}, v{bi}
            v_fmac_f32 v{d+2*m}, v{x_+2*m+1}, v{nbi}
            v_fmac_f32 v{d+2*m+1}, v{x_+2*m+1}, v{br}
            """)

    def neg(b):
        for m in range(2):
            a(f"v_sub_f32 v{b+4+m}, 0, v{b+2*m+1}")

    def scale(d, x_):
        for i in range(4):
            a(f"v_mul_f32 v{d+i}, {f32(32768.0)}, v{x_+i}")

    VB = [ra(32, 4), ra(32, 4), ra(32, 4), ra(18, 4)]
    CH0 = ra(0, 4)

    def put(batch, row, r):
        h = VB[batch] + 2 * row
        if r is None:
            a(f"v_mov_b32 v{h}, 0x7800\nv_mov_b32 v{h+1}, 0x7800")
        else:
            a(f"""
            v_cvt_pk_f16_f32 v{h}, v{r}, v{r+1}
            v_cvt_pk_f16_f32 v{h+1}, v{r+2}, v{r+3}
            """)

    E8 = cexp(8)
    cur, nxt = W0, W1
    for c in range(16):
        if c < 15:
            cmul(nxt, cur, E8, conj=True)
        put(0, c, cur)
        cur, nxt = nxt, cur
    E1 = cexp(1)
    Q1 = cexp(128)
    Q8 = cexp(1024)
    P = {}
    P[1] = ra(4)
    scale(P[1], E1)
    for j in range(2, 8):
        P[j] = ra(6 if j == 4 else 4)
        cmul(P[j], P[j - 1], E1)
    put(1, 0, None)
    for j in range(1, 8):
        put(1, j, P[j])
    scale(W0, Q1)
    put(1, 8, W0)
    for j in range(1, 8):
        cmul(W0, P[j], Q1)
        put(1, 8 + j, W0)
    Q = {1: Q1, 8: Q8}
    for j in range(2, 8):
        Q[j] = {2: E1, 3: PP + 4}[j] if j < 4 else P[2 * (j - 4) + 1]
        cmul(Q[j], Q[j - 1], Q1)
    neg(P[4]); neg(Q[2]); neg(Q[3])
    for qi, j in enumerate((2, 3)):
        scale(W0, Q[j])
        put(2, 4 * qi, W0)
        for r in range(1, 4):
            cmul(W0, P[2 * r], Q[j])
            put(2, 4 * qi + r, W0)
    for aa in range(4):
        scale(W0, Q[4 + aa])
        put(2, 8 + 2 * aa, W0)
        cmul(W0, Q[4 + aa], P[4])
        put(2, 8 + 2 * aa + 1, W0)
    QS = E8
    scale(QS, Q8)
    neg(QS)
    put(3, 0, QS)
    for j in range(1, 8):
        cmul(W0, Q[j], QS)
        put(3, j, W0)
    cmul(W0, Q8, QS)
    put(3, 8, W0)
    for i in range(12):
        a(f"v_mul_f32 v{LP+i}, v{SIG}, v{LP+i}")
    for i in range(12):
        a(f"v_exp_f32 v{LP+i}, v{LP+i}")

    a = ph2
    YF = CH0
    AC = CH0 + 32
    assert AC + 12 <= ra.p

    def wr(batch, nrows):
        for row in range(nrows):
            a(f"ds_write_b64 v{WR+(row&7)}, {v(VB[batch]+2*row,2)} offset:{(row>>3)*128}")

    def fetch(F):
        for ks in range(8):
            a(f"ds_read_b128 {v(F+4*ks,4)}, v{RD+(ks&1)} offset:{(ks>>1)*2048}")

    def mfmas(tile, XF):
        for ks in range(8):
            c = "0" if ks == 0 else v(AC + 4 * tile, 4)
            a(f"v_mfma_f32_16x16x32_f16 {v(AC+4*tile,4)}, {v(XF+4*ks,4)}, {v(YF+4*ks,4)}, {c}")

    a(f"v_mov_b32 v{t2}, 0")
    a(nonce_ld(t3, t2))
    wr(0, 16); fetch(YF)
    wr(1, 16); fetch(VB[0])
    wr(2, 16); fetch(VB[1])
    a("s_waitcnt lgkmcnt(15)")
    mf0 = len(a.L)
    wr(3, 9); fetch(VB[2])
    tail = a.L[mf0:]
    del a.L[mf0:]
    m = Asm()
    sv, a = a, m
    mfmas(0, VB[0])
    a = sv
    for i in range(8):
        a.ext(tail[2 * i:2 * i + 2])
        a(m.L[i])
    a.ext(tail[16:])
    a("s_waitcnt lgkmcnt(15)")
    mfmas(1, VB[1])
    a("s_waitcnt lgkmcnt(0)")
    mfmas(2, VB[2])
    a("s_nop 3")
    for i in range(12):
        a(f"v_mul_f32 v{AC+i}, v{AC+i}, v{LP+i}")
    for i in range(12):
        a(f"v_ldexp_f32 v{AC+i}, v{AC+i}, v{CE}")
    a(f"ds_write_b128 v{TA0}, {v(AC,4)}")
    a(f"ds_write_b64 v{TA1}, {v(AC+4,2)}")
    a(f"ds_write_b64 v{TA2}, {v(AC+6,2)}")
    for r in range(4):
        a(f"ds_write_b32 v{TA3}, v{AC+8+r} offset:{2048+64*r}")
    G0 = VB[0]
    OUT = VB[1]
    for i in range(8):
        a(f"ds_read_b32 v{G0+i}, v{EX+i}")
    a(f"""
    ds_read_b64 {v(G0+8,2)}, v{EX+8} offset:1536
    ds_read_b32 v{G0+10}, v{EX+8} offset:1544
    ds_read2_b32 {v(G0+12,2)}, v{EX+9} offset0:0 offset1:1
    ds_read2_b32 {v(G0+14,2)}, v{EX+9} offset0:64 offset1:65
    v_lshlrev_b32 v{t0}, 4, v0
    v_add_u32 v{t0}, s70, v{t0}
    v_and_b32 v{t1}, 3, v0
    v_lshlrev_b32 v{t1}, 4, v{t1}
    v_add_u32 v{t1}, s70, v{t1}
    v_mov_b32 v{OUT+16}, 0
    v_mov_b32 v{OUT+17}, 0
    v_mov_b32 v{OUT+18}, 0
    v_mov_b32 v{OUT+19}, 0
    s_mov_b32 s72, 0xaaaaaaaa
    s_mov_b32 s73, 0xaaaaaaaa
    ds_write_b128 v{t1}, {v(OUT+16,4)} offset:{KARR}
    s_waitcnt lgkmcnt(0)
    """)
    for k in range(4):
        a(f"v_cvt_pk_bf16_f32 v{OUT+k}, v{G0+2*k}, v{G0+2*k+1}")
    a(f"""
    v_cvt_pk_bf16_f32 v{OUT+4}, v{G0+8}, v{G0+8}
    v_cvt_pk_bf16_f32 v{OUT+5}, v{G0+8}, v{G0+9}
    v_cvt_pk_bf16_f32 v{OUT+6}, v{G0+9}, v{G0+9}
    v_cvt_pk_bf16_f32 v{OUT+7}, v{G0+10}, v{G0+10}
    """)
    for it in (2, 3):
        T0, T1 = G0 + 8 + 2 * it, G0 + 9 + 2 * it
        o = OUT + 4 * it
        a(f"""
        v_cndmask_b32 v{t2}, v{T0}, v{T1}, s[72:73]
        v_cvt_pk_bf16_f32 v{o}, v{T0}, v{T0}
        v_cvt_pk_bf16_f32 v{o+1}, v{T0}, v{T0}
        v_cvt_pk_bf16_f32 v{o+2}, v{t2}, v{T1}
        v_cvt_pk_bf16_f32 v{o+3}, v{T1}, v{T1}
        """)
    a(f"v_mov_b32 v{t2}, 0")
    for it in range(4):
        a(f"ds_write_b128 v{t0}, {v(OUT+4*it,4)} offset:{KARR+64+1024*it}")
    if OPT.get("dbgk"):
        a(f"""
        s_lshl_b32 s72, s69, 12
        s_add_u32 s72, s72, {KX_OFF}
        v_lshlrev_b32 v{t0}, 4, v0
        """)
        for it in range(4):
            a(f"buffer_store_dwordx4 {v(OUT+4*it,4)}, v{t0}, {sr(SRD_WS)}, s72 offen offset:{1024*it}")
    a("s_waitcnt vmcnt(0) lgkmcnt(0)")
    a.ext(plain(nonce_get(f"NK{sfx}", t3, t2)))

    out = list(pre.L)
    out.extend(stamp(1))
    kx = OPT.get("kx", 0)
    if kx == 1:
        ph2.L = []
    elif kx == 2:
        ph2.L = [x for x in ph2.L if not x.startswith("v_mfma")]
    elif kx == 3:
        ph2.L = [x for x in ph2.L if not x.startswith("ds_write")]
    elif kx == 4:
        ph2.L = [x for x in ph2.L if not x.startswith("ds_read")]
    elif kx == 5:
        L2 = []
        for x in ph2.L:
            L2.append(x)
            if x.startswith("ds_write_b64"):
                L2.append("s_nop 3")
        ph2.L = L2
    if gemm_wg:
        per = OPT.get("kper", 125)
        first = OPT.get("kfirst", 100)
        p2a = OPT.get("kp2a", 48)
        p2b = OPT.get("kp2b", 100)
        pos = min(first, len(main.L))
        out.extend(main.L[:pos])
        for sidx in range(9):
            out.extend(bstamp(2, 1 + sidx))
            out.append("s_barrier")
            if sidx < 6:
                end = len(main.L) if sidx == 5 else min(pos + per, len(main.L))
                out.extend(main.L[pos:end])
                pos = end
            elif sidx == 6:
                out.extend(ph2.L[:p2a])
            elif sidx == 7:
                out.extend(ph2.L[p2a:p2b])
            else:
                out.extend(ph2.L[p2b:])
        out.extend(stamp(2))
        out.append("s_barrier")
    else:
        out.extend(main.L)
        out.extend(ph2.L)
        out.append("s_barrier")
        out.extend(stamp(2))
        out.append("s_barrier")
    out.append("s_mov_b32 s6, s68")
    out.append("s_branch L_CONVB")
    return out


def lwave(gemm_wg):
    sfx = "G" if gemm_wg else "S"
    a = Asm()
    XV, WV, VL, VC = 8, 12, 2, 16
    t0, t1, t2 = 3, 4, 5
    DUM = 24
    ROT = OPT.get("rot", 0)
    SW = 12
    a(f"""
    s_setprio 3
    s_sub_u32 s6, s{S_WIDX}, 4
    """)

    def kofs(st):
        if not ROT:
            return []
        return [f"s_add_u32 s18, s{S_PHI}, {st}", "s_and_b32 s18, s18, 7", f"s_mul_i32 s19, s18, {64*3584}",
                "s_lshl_b32 s18, s18, 7"]

    def grp(st, g):
        sl = st % 3
        if g in (1, 5):
            j = 0 if g == 1 else 1
            L = [f"s_add_u32 m0, s{10+j}, {sl*SLOT}", f"s_add_u32 s22, s{8+j}, {'s18' if ROT else st*128}"]
            L += [f"buffer_load_dwordx4 v{XV+i}, {sr(SRD_X)}, s22 offen offset:{1024*i} lds" for i in range(4)]
        else:
            j = 0 if g == 0 else g - 1
            L = [f"s_add_u32 m0, s{72+j}, {sl*SLOT}", f"s_add_u32 s22, s{68+j}, {'s19' if ROT else st*64*3584}"]
            L += [f"buffer_load_dwordx4 v{WV+i}, {sr(SW)}, s22 offen offset:{1024*i} lds" for i in range(4)]
        return L

    def pref(st):
        L = [f"s_add_u32 s22, s68, {st*64*3584}"]
        L += [f"buffer_load_dwordx4 {v(DUM+4*i,4)}, v{WV+i}, {sr(SW)}, s22 offen offset:{1024*i}" for i in range(4)]
        L += [f"s_add_u32 s22, s23, {st*128}"]
        L += [f"buffer_load_dwordx4 {v(DUM+16+4*i,4)}, v{XV+i}, {sr(SRD_X)}, s22 offen offset:{1024*i}" for i in range(2)]
        return L

    fu_ld = [f"buffer_load_dwordx2 v[{VC}:{VC+1}], v{t1}, {sr(SRD_WS)}, s16 offen sc1"]
    fu_chk = [f"v_cmp_eq_u32 vcc, s{S_NONCE}, v{VC}", f"v_cmp_eq_u32 s[18:19], s{S_NONCE}, v{VC+1}", "s_nop 3",
              "s_and_b64 vcc, vcc, s[18:19]", "s_cmp_eq_u64 vcc, exec"]

    def poll_setup():
        a(f"""
        s_lshl_b32 s7, s2, 1
        s_add_u32 s7, s7, s6
        v_lshlrev_b32 v{VL}, 4, v0
        v_mov_b32 v{t0}, 0
        v_lshrrev_b32 v{t1}, 1, v0
        v_lshlrev_b32 v{t1}, 7, v{t1}
        v_and_b32 v{t2}, 1, v0
        v_lshl_add_u32 v{t1}, v{t2}, 3, v{t1}
        s_mov_b32 s16, {FU_OFF}
        s_mov_b32 s77, 0x100000
        """)

    STG = 24
    assert STG + 16 * n1() <= 256

    def wd_setup():
        a(f"""
        v_lshrrev_b32 v20, 3, v0
        v_and_b32 v21, 7, v0
        v_lshrrev_b32 v22, 1, v20
        v_and_b32 v22, 1, v22
        v_lshlrev_b32 v22, 2, v22
        v_xor_b32 v21, v21, v22
        v_lshlrev_b32 v18, 10, v20
        v_lshl_add_u32 v18, v21, 4, v18
        v_add_u32 v19, 8192, v18
        s_and_b32 s17, s{S_IDX}, 7
        s_lshl_b32 s17, s17, 7
        s_mul_i32 s3, s6, {56*16384}
        s_add_u32 s3, s3, s17
        s_lshl_b32 s17, s6, 16
        v_add_u32 v7, s17, v{VL}
        """)
        a(rot_scalar(76, 17))

    wpos = [0]

    def wd_ld(n):
        for _ in range(n):
            i = wpos[0]
            if i >= n1():
                break
            wpos[0] += 1
            R = STG + 16 * i
            a(f"""
            s_lshl_b32 s22, s76, 14
            s_add_u32 s22, s22, s3
            buffer_load_dwordx4 {v(R,4)}, v18, {sr(SRD_WD)}, s22 offen
            s_add_u32 s17, s22, {28*16384}
            buffer_load_dwordx4 {v(R+4,4)}, v19, {sr(SRD_WD)}, s22 offen
            s_add_u32 s76, s76, 1
            buffer_load_dwordx4 {v(R+8,4)}, v18, {sr(SRD_WD)}, s17 offen
            s_cmp_ge_u32 s76, 28
            s_cselect_b32 s76, 0, s76
            buffer_load_dwordx4 {v(R+12,4)}, v19, {sr(SRD_WD)}, s17 offen
            """)
            a.tag(f"wd{i}")

    wwp = [0]

    def wd_wr(n):
        for i in range(wwp[0], min(n1(), wwp[0] + n)):
            wwp[0] = i + 1
            R = STG + 16 * i
            a.wait(f"wd{i}")
            for k in range(4):
                a(f"ds_write_b128 v7, {v(R+4*k,4)} offset:{(k>>1)*RING2 + i*2048 + (k&1)*1024}")

    def u_load():
        a(f"""
        s_mul_i32 s18, s6, {USZ}
        s_add_u32 s18, s18, {U_BASE}
        s_lshl_b32 s17, s7, 12
        s_add_u32 s17, s17, {UT_OFF}
        v_mov_b32 v20, 0
        v_mov_b32 v21, 0
        v_mov_b32 v22, 0
        v_mov_b32 v23, 0
        v_and_b32 v{t2}, 7, v0
        v_lshrrev_b32 v6, 3, v0
        v_and_b32 v6, 3, v6
        v_min_u32 v{t2}, 6, v{t2}
        v_mul_u32_u24 v6, {UPITCH}, v6
        v_lshl_add_u32 v{t2}, v{t2}, 4, v6
        v_add_u32 v{t2}, s18, v{t2}
        ds_write_b128 v{t2}, v[20:23]
        """)
        for r in range(4):
            a(f"""
            s_add_u32 m0, s18, {r*UPITCH + 112}
            s_nop 0
            buffer_load_dwordx4 v{VL}, {sr(SRD_WS)}, s17 offen sc1 lds
            s_add_u32 s17, s17, 1024
            """)

    GLR = 8

    def gl_load():
        a(f"""
        s_lshl_b32 s17, s{S_XCD}, 2
        s_lshr_b32 s22, s{S_IDX}, 3
        s_add_u32 s17, s17, s22
        s_lshl_b32 s17, s17, 6
        s_add_u32 s17, s17, {GL_OFF}
        v_and_b32 v{t0}, 3, v0
        v_lshrrev_b32 v{t1}, 2, v0
        v_lshlrev_b32 v{t1}, 2, v{t1}
        v_lshl_add_u32 v{t1}, v{t0}, 11, v{t1}
        """)
        for g in range(8):
            a(f"buffer_load_dword v{GLR+g}, v{t1}, {sr(SRD_WS)}, s17 offen sc1")
            if g < 7:
                a("s_add_u32 s17, s17, 8192")
        a.tag("gl")

    def gl_finish():
        E = GLR
        a.wait("gl")
        a(f"""
        v_add_f32 v{E}, v{E}, v{E+1}
        v_add_f32 v{E+2}, v{E+2}, v{E+3}
        v_add_f32 v{E+4}, v{E+4}, v{E+5}
        v_add_f32 v{E+6}, v{E+6}, v{E+7}
        v_add_f32 v{E}, v{E}, v{E+2}
        v_add_f32 v{E+4}, v{E+4}, v{E+6}
        v_add_f32 v{E}, v{E}, v{E+4}
        v_cvt_pk_bf16_f32 v{E}, v{E}, v{E}
        v_lshlrev_b32 v{E}, 16, v{E}
        v_mul_f32 v{E}, {f32(-LOG2E)}, v{E}
        v_exp_f32 v{E}, v{E}
        v_lshlrev_b32 v{t0}, 2, v0
        v_add_f32 v{E}, 1.0, v{E}
        v_rcp_f32 v{E}, v{E}
        v_add_u32 v{t0}, {G_LDS}, v{t0}
        v_cvt_pk_bf16_f32 v{E}, v{E}, v{E}
        v_lshlrev_b32 v{E}, 16, v{E}
        ds_write_b32 v{t0}, v{E}
        """)

    if gemm_wg:
        a(f"""
        v_lshrrev_b32 v{t0}, 4, v0
        v_and_b32 v{t1}, 15, v0
        v_lshlrev_b32 v{t2}, 2, v{t0}
        v_xor_b32 v{t1}, v{t1}, v{t2}
        v_mul_u32_u24 v{t0}, 3584, v{t0}
        v_lshl_add_u32 v{WV}, v{t1}, 4, v{t0}
        """)
        for i in range(1, 4):
            a(f"v_add_u32 v{WV+i}, {(4*3584-1024)*i}, v{WV}")
        a(f"""
        s_cmp_eq_u32 s6, 0
        s_cselect_b32 s{SW}, s{SRD_WG}, s{SRD_WU}
        s_cselect_b32 s{SW+1}, s{SRD_WG+1}, s{SRD_WU+1}
        s_mov_b32 s{SW+2}, {512*1792*2}
        s_mov_b32 s{SW+3}, 0x00020000
        s_and_b32 s22, s68, 3
        s_mov_b32 s19, s69
        s_lshl_b32 s23, s{S_CB}, 8
        s_lshl_b32 s16, s6, 14
        s_add_u32 s16, s16, 16384
        """)
        for j in range(4):
            a(f"""
            s_add_u32 s17, s22, {j}
            s_and_b32 s17, s17, 3
            s_mul_i32 s{68+j}, s17, {16*3584}
            s_add_u32 s{68+j}, s{68+j}, s23
            s_lshl_b32 s{72+j}, s17, 12
            s_add_u32 s{72+j}, s{72+j}, s16
            """)
        a(f"""
        v_lshrrev_b32 v{t0}, 3, v0
        v_and_b32 v{t1}, 7, v0
        v_lshrrev_b32 v{t2}, 1, v{t0}
        v_xor_b32 v{t1}, v{t1}, v{t2}
        v_lshlrev_b32 v{t0}, 10, v{t0}
        """)
        for i in range(4):
            a(f"""
            v_xor_b32 v{t2}, {4*(i&1)}, v{t1}
            v_lshl_add_u32 v{XV+i}, v{t2}, 4, v{t0}
            v_add_u32 v{XV+i}, {7168*i}, v{XV+i}
            """)
        a(f"""
        s_mov_b32 s22, s19
        s_and_b32 s17, s22, 1
        s_lshl_b32 s17, s17, 1
        s_add_u32 s17, s17, s6
        s_lshl_b32 s16, s{S_RB}, 17
        s_lshl_b32 s8, s17, 15
        s_add_u32 s8, s8, s16
        s_lshl_b32 s10, s17, 12
        s_xor_b32 s17, s17, 2
        s_lshl_b32 s9, s17, 15
        s_add_u32 s9, s9, s16
        s_lshl_b32 s11, s17, 12
        s_lshl_b32 s22, s22, 1
        s_add_u32 s22, s22, s6
        s_and_b32 s22, s22, 7
        s_lshl_b32 s23, s22, 14
        s_add_u32 s23, s23, s16
        """)
        tail = {3: "S5 R5", 4: "S6 R6", 5: "S7 R7"}
        scheds = [
            {-1: "S0 S1 S2 R0 P3 P4", 0: "R1 P5 P6", 1: "R2 P7 S3", 2: "R3 S4 R4"},
            {-1: "S0 S1 S2 R0 R1", 0: "P3 P4 R2", 1: "P5 P6 P7 S3 R3", 2: "S4 R4"},
            {-1: "S0 R0 S1 R1", 0: "S2 R2", 1: "S3 R3", 2: "S4 R4"},
            {-1: "S0 R0 S1", 0: "R1 S2", 1: "R2 S3", 2: "R3 S4 R4"},
            {-1: "S0 R0 S1 S2 P3", 0: "R1 P4 P5", 1: "R2 P6 P7 S3", 2: "R3 S4 R4"},
            {-1: "S0 R0 S1 S2", 0: "R1 R2", 1: "S3 R3", 2: "S4 R4"},
            {-1: "S0 R0 S1 S2", 0: "R1 R2", 1: "S3 R3 P5", 2: "S4 R4 P6 P7"},
            {-1: "S0 R0 S1 S2", 0: "R1 R2 P3", 1: "S3 R3 P4 P5", 2: "S4 R4 P6 P7"},
        ]
        sched = dict(scheds[OPT.get("lsched", 5)])
        sched.update(tail)

        def issue(k):
            for tok in sched.get(k, "").split():
                st = int(tok[1:])
                if tok[0] == "S":
                    a.ext(kofs(st) + grp(st, 0) + grp(st, 1))
                elif tok[0] == "R":
                    a.ext(kofs(st))
                    for g in (2, 5, 3, 4):
                        a.ext(grp(st, g))
                    a.tag(f"st{st}")
                elif tok[0] == "P":
                    assert not ROT
                    a.ext(pref(st))
        issue(-1)
        a.ext(stamp(1))
        poll_setup()
        for sidx in range(9):
            if sidx < 8:
                a.wait(f"st{sidx}")
            a.ext(bstamp(2, 1 + sidx))
            a("s_barrier")
            if sidx in (0, 3):
                a.ext(stamp(2 + (0, 3).index(sidx)))
            issue(sidx)
            if sidx == 3:
                wd_setup()
            if 3 <= sidx <= 7:
                wd_ld(OPT.get(f"w{sidx}", {3: 0, 4: 0, 5: 0, 6: 5, 7: 4}[sidx]))
            if sidx == 7:
                a(nonce_ld(6, t0))
                a.ext(fu_ld)
                a.tag("fu")
            if sidx == 8:
                a.ext(stamp(4))
                wd_ld(28)
                wd_wr(4)
                a.wait("fu")
                a.ext(nonce_get(f"NL{sfx}", 6, t0))
                a(f"s_branch PU{sfx}_CHK")
                a.ext(spin(f"PU{sfx}", fu_ld, fu_chk, 16))
                u_load()
                gl_load()
                wd_wr(28)
                gl_finish()
        a("s_waitcnt vmcnt(0) lgkmcnt(0)")
        a.ext(stamp(5))
        a("s_barrier")
    else:
        poll_setup()
        if OPT.get("spf", 0):
            a(f"""
            s_cmp_eq_u32 s6, 0
            s_cselect_b32 s{SW}, s{SRD_WG}, s{SRD_WU}
            s_cselect_b32 s{SW+1}, s{SRD_WG+1}, s{SRD_WU+1}
            s_mov_b32 s{SW+2}, {512*1792*2}
            s_mov_b32 s{SW+3}, 0x00020000
            s_sub_u32 s22, s{S_IDX}, 28
            s_lshl_b32 s22, s22, 3
            s_add_u32 s22, s22, s{S_XCD}
            s_mul_i32 s22, s22, {10*3584}
            s_add_u32 s22, s22, {192*3584}
            """)
            for i in range(35):
                if i % 4 == 0 and i:
                    a("s_add_u32 s22, s22, 4096")
                a(f"buffer_load_dwordx4 {v(DUM+4*(i%4),4)}, v{VL}, {sr(SW)}, s22 offen offset:{1024*(i%4)}")
        wd_setup()
        a("s_barrier")
        a(nonce_ld(6, t0))
        a("s_waitcnt vmcnt(0)")
        a.ext(nonce_get(f"NL{sfx}", 6, t0))
        a.ext(spin(f"PU{sfx}", fu_ld, fu_chk, 32))
        u_load()
        wd_ld(28)
        wd_wr(6)
        gl_load()
        wd_wr(28)
        gl_finish()
        a("s_waitcnt vmcnt(0) lgkmcnt(0)")
        a.ext(stamp(5))
        a("s_barrier")
    a("s_branch L_CONVA")
    return resolve_vm(a.L)


def conv(a0, partB):
    a = Asm()
    KA, UA, YA = 2, 3, 5
    qs, outq = ([5, 6, 7], [6, 7]) if partB else ([0, 1, 2, 3, 4, 5], [0, 1, 2, 3, 4, 5])
    a.ext(stamp(6))
    a(f"""
    s_setprio {OPT.get("cprio", 3)}
    s_lshl_b32 s8, s6, 13
    s_add_u32 s8, s8, {KG_BASE + KARR + 32}
    s_mul_i32 s9, s6, {USZ}
    s_add_u32 s9, s9, {U_BASE + 16}
    v_lshrrev_b32 v6, 2, v0
    v_and_b32 v10, 7, v6
    v_and_b32 v6, 3, v6
    v_and_b32 v7, 3, v0
    v_lshrrev_b32 v8, 4, v0
    v_and_b32 v8, 1, v8
    v_lshrrev_b32 v9, 5, v0
    v_mul_u32_u24 v{UA}, {UPITCH}, v7
    v_sub_u32 v10, v10, v9
    v_lshl_add_u32 v{UA}, v10, 4, v{UA}
    v_add_u32 v{UA}, s9, v{UA}
    v_lshlrev_b32 v{KA}, 5, v8
    v_lshl_add_u32 v{KA}, v7, 3, v{KA}
    v_lshl_add_u32 v{KA}, v9, 6, v{KA}
    v_lshlrev_b32 v10, 3, v6
    v_sub_u32 v{KA}, v{KA}, v10
    v_add_u32 v{KA}, s8, v{KA}
    """)
    qmax = max(qs)
    nst = 4 * qmax + 4
    NU = 4
    UBUF = 8
    KT = 24
    ACC = KT + 4 * nst
    TMP = ACC + 16 * len(qs)
    assert TMP + 3 * len(qs) + 1 <= 256

    def acc(q):
        return ACC + 16 * qs.index(q)

    need = {}
    for i in range(nst):
        for q in qs:
            s_ = 4 * q + 3 - i
            if s_ >= 0 and s_ not in need:
                need[s_] = i

    def rd(i):
        L = [f"ds_read_b128 {v(UBUF+4*(i%NU),4)}, v{UA} offset:{32*i}"]
        for s_ in sorted(s for s in need if need[s] == i):
            L += [f"ds_read_b64_tr_b16 {v(KT+4*s_,2)}, v{KA} offset:{128*s_+32}",
                  f"ds_read_b64_tr_b16 {v(KT+4*s_+2,2)}, v{KA} offset:{128*s_}"]
        L.append(("LTAG", f"R{i}"))
        return L

    PF = NU - 1
    a.ext(rd(0))
    a.ext(rd(1))
    a(f"""
    v_and_b32 v4, 7, v0
    v_lshrrev_b32 v{YA}, 3, v0
    v_lshlrev_b32 v{YA}, 4, v{YA}
    v_lshl_add_u32 v{YA}, v4, 7, v{YA}
    v_mov_b32 v6, 0
    v_mov_b32 v7, s{S_NONCE}
    s_mov_b32 s12, 0
    s_mov_b32 s13, 0x80000000
    s_mov_b32 s14, 0
    s_mov_b32 s15, 0xc0000000
    s_mov_b32 s16, 0
    s_mov_b32 s17, 0xe0000000
    s_lshl_b32 s7, s2, 1
    s_add_u32 s7, s7, s6
    s_lshl_b32 s18, s7, 12
    s_add_u32 s18, s18, {Y_OFF}
    s_lshl_b32 s19, s2, 4
    s_add_u32 s19, s19, s6
    s_lshl_b32 s19, s19, 3
    s_add_u32 s19, s19, {FY_OFF + (4 if partB else 0)}
    """)

    def Y(q, g, rho):
        return acc(q) + 4 * g + rho

    dpp = "wave_ror:1 row_mask:0xf bank_mask:0xf"
    ctl = "row_mask:0xf bank_mask:0xf"

    def post(q):
        L = []
        Z = {}
        for g in (3, 2, 1, 0):
            for rho in (1, 2, 3):
                Z[g, rho] = TMP + 3 * qs.index(q) + rho - 1 if g == 3 else Y(q, g, rho)
                if g > 0:
                    prev = f"v{Y(q,g-1,rho)}"
                elif q > 0:
                    prev = f"v{Y(q-1,3,rho)}"
                else:
                    prev = "v6"
                L.append(f"v_cndmask_b32 v{Z[g,rho]}, v{Y(q,g,rho)}, {prev}, s[{10+2*rho}:{11+2*rho}]")
        for g in (3, 2, 1, 0):
            L.append(f"v_add_f32_dpp v{Z[g,2]}, v{Z[g,3]}, v{Z[g,2]} {dpp}")
        for g in (3, 2, 1, 0):
            L.append(f"v_add_f32_dpp v{Z[g,1]}, v{Z[g,2]}, v{Z[g,1]} {dpp}")
        for g in (3, 2, 1, 0):
            L.append(f"v_add_f32_dpp v{Y(q,g,0)}, v{Z[g,1]}, v{Y(q,g,0)} {dpp}")
        return L

    def stage(S_, D_, bit, stride):
        m = {0: 0xaaaaaaaa, 1: 0xcccccccc, 2: 0xf0f0f0f0}[bit]
        up = {0: "quad_perm:[1,0,3,2]", 1: "quad_perm:[2,3,0,1]", 2: "row_ror:12"}[bit]
        dn = {0: "quad_perm:[1,0,3,2]", 1: "quad_perm:[2,3,0,1]", 2: "row_ror:4"}[bit]
        L = [f"s_mov_b32 vcc_lo, {m:#x}", f"s_mov_b32 vcc_hi, {m:#x}"]
        idx = [i for i in range(len(S_)) if not (i // stride) & 1]
        L += [f"v_cndmask_b32_dpp v{D_[i+stride]}, v{S_[i]}, v{S_[i+stride]}, vcc {up} {ctl}" for i in idx]
        L += ["s_not_b64 vcc, vcc"]
        L += [f"v_cndmask_b32_dpp v{D_[i]}, v{S_[i+stride]}, v{S_[i]}, vcc {dn} {ctl}" for i in idx]
        return L

    def xpose(q):
        S0 = [Y(q - 1 + (g >> 2), g & 3, 0) for g in range(8)]
        free = [Y(qq, g, r) for qq in (q - 1, q) for g in range(3) for r in (1, 2, 3)]
        D0 = free[:8]
        S1 = free[8:12]
        D1 = free[12:16]
        D2 = [acc(q - 1) + i for i in range(4)]
        L = stage(S0, D0, 0, 1)
        L += [f"v_cvt_pk_bf16_f32 v{S1[g]}, v{D0[2*g]}, v{D0[2*g+1]}" for g in range(4)]
        L += stage(S1, D1, 1, 1)
        L += stage(D1, D2, 2, 2)
        L.append(f"buffer_store_dwordx4 {v(D2[0],4)}, v{YA}, {sr(SRD_WS)}, s18 offen offset:{(q-1)*512} sc1")
        return L

    pend = []
    FILL = OPT.get("cfill", 4)
    since = {}
    issued = 2
    for i in range(nst):
        a.L.append(("LWAIT", f"R{i}"))
        rl = []
        while issued < nst and issued <= i + (2 if i < 2 else PF):
            rl += rd(issued)
            issued += 1
        act = [q for q in qs if 4 * q + 3 - i >= 0]
        per = -(-len(rl) // len(act))
        for q in act:
            s_ = 4 * q + 3 - i
            c = "0" if i == 0 else v(acc(q), 16)
            a(f"v_mfma_f32_32x32x16_bf16 {v(acc(q),16)}, {v(UBUF+4*(i%NU),4)}, {v(KT+4*s_,4)}, {c}")
            a.ext(rl[:per])
            rl = rl[per:]
            if s_ == 0:
                since[q] = len(a.L)
            for qq in list(since):
                if len([x for x in a.L[since[qq]:] if isinstance(x, str)]) >= 14:
                    del since[qq]
                    if qq in outq:
                        pend += post(qq)
                        if (qq - outq[0]) & 1:
                            pend += xpose(qq)
            a.ext(pend[:FILL])
            pend = pend[FILL:]
    a.ext(stamp(7))
    a.ext(pend)
    a("s_nop 7\ns_nop 3")
    for qq in sorted(since):
        if qq in outq:
            a.ext(post(qq))
            if (qq - outq[0]) & 1:
                a.ext(xpose(qq))
    a.ext(stamp(8))
    a(f"""
    s_waitcnt vmcnt(0)
    s_mov_b64 exec, 1
    buffer_store_dword v7, v6, {sr(SRD_WS)}, s19 offen sc1
    """)
    a.ext(stamp_end())
    a0.ext(resolve_lds(a.L))


HEADER = open("cdna_kernels/" + NAME + ".s.ref").read().split("; Override launch")[0]


def main(path):
    a = Asm()
    prologue(a)
    gemm1(a)
    a("L_SPARE:")
    spare(a)
    a("L_GEMM2:")
    gemm2(a)
    a("L_LWAVE:")
    a(f"s_cmp_ge_u32 s{S_IDX}, 28\ns_cbranch_scc1 L_LWAVE_S")
    a.ext(lwave(True))
    a("L_LWAVE_S:")
    a.ext(lwave(False))
    a("L_KWAVE:")
    a(f"s_cmp_ge_u32 s{S_IDX}, 28\ns_cbranch_scc1 L_KWAVE_S")
    a.ext(kwave(True))
    a("L_KWAVE_S:")
    a.ext(kwave(False))
    a("L_CONVA:")
    conv(a, False)
    a("L_CONVB:")
    conv(a, True)
    a("L_END:\ns_endpgm")
    body = "\n".join(("" if ln.endswith(":") or ln.startswith(".") else "    ") + ln for ln in a.L)
    kn = NAME + "_kernel"
    txt = HEADER
    if OPT.get("list"):
        txt += f"; @launch kernel={kn} grid=(256,1,1) block=(512,1,1) lds=163840\n"
    else:
        txt += "; @launch grid=(256,1,1) block=(512,1,1) lds=163840\n"
    txt += '.amdgcn_target "amdgcn-amd-amdhsa--gfx950"\n.text\n'
    txt += f".globl {kn}\n.p2align 8\n.type {kn},@function\n{kn}:\n"
    txt += body + "\n"
    txt += f"""
.section .rodata,"a"
.p2align 6
.amdhsa_kernel {kn}
  .amdhsa_next_free_vgpr 256
  .amdhsa_next_free_sgpr 102
  .amdhsa_accum_offset 256
  .amdhsa_group_segment_fixed_size 0
  .amdhsa_kernarg_size 136
  .amdhsa_user_sgpr_count 2
  .amdhsa_user_sgpr_kernarg_segment_ptr 1
  .amdhsa_system_sgpr_workgroup_id_x 1
.end_amdhsa_kernel
"""
    open(path, "w").write(txt)


if __name__ == "__main__":
    for o in list(sys.argv):
        if o.startswith("--opt="):
            k, _, val = o[6:].partition(":")
            OPT[k] = int(val) if val else 1
            sys.argv.remove(o)
    if "--stamps" in sys.argv:
        STAMPS = True
        sys.argv.remove("--stamps")
    main(sys.argv[1] if len(sys.argv) > 1 else "cdna_kernels/" + NAME + ".s")
```

```python
import sys, struct

NAME = "gated_mix__ssm_conv_s4__swiglu_ffn__prompt"

H_OFF = 0x000000
UT_OFF = 0x800000
KX_OFF = 0xA00000
Y_OFF = 0xC00000
GL_OFF = 0xE00000
FH_OFF = 0xE40000
FY_OFF = 0xE60000
FU_OFF = 0xE68000
ST_OFF = 0xE20000
WS_BYTES = 0x1000000

STAMPS = False
HDL = []
OPT = {}
ST_BASE = 78
NST = 12


def f32(x):
    return "0x%08x" % struct.unpack("<I", struct.pack("<f", x))[0]


LOG2E = 1.4426950408889634
LOG2E_HI = struct.unpack("<f", struct.pack("<f", LOG2E))[0]
LOG2E_LO = LOG2E - LOG2E_HI
LN2 = 0.6931471805599453
INV2PI = 0.15915494309189535


class Asm:
    def __init__(self):
        self.L = []

    def __call__(self, s):
        for line in s.strip().split("\n"):
            line = line.strip()
            if line:
                self.L.append(line)

    def ext(self, lines):
        self.L.extend(lines)

    def tag(self, n):
        self.L.append(("VMTAG", n))

    def wait(self, n):
        self.L.append(("VMWAIT", n))


def v(b, n=1):
    return f"v{b}" if n == 1 else f"v[{b}:{b+n-1}]"


def sr(b):
    return f"s[{b}:{b+3}]"


class RA:
    def __init__(self, start, end):
        self.p = start
        self.end = end

    def __call__(self, n=1, align=1):
        self.p = (self.p + align - 1) // align * align
        r = self.p
        self.p += n
        assert self.p <= self.end, "out of registers"
        return r


def stamp(k, force=False):
    if not STAMPS:
        return []
    assert k < NST
    if OPT.get("dbgbar") and 1 <= k <= 9 and not force:
        return []
    op = "s_memtime" if OPT.get("cyc") else "s_memrealtime"
    return [f"{op} s[{ST_BASE+2*k}:{ST_BASE+2*k+1}]"]


def bstamp(mode, k):
    return stamp(k, True) if OPT.get("dbgbar") == mode else []


def stamp_end():
    if not STAMPS:
        return ["s_endpgm"]
    L = stamp(10) + ["s_waitcnt vmcnt(0)"] + stamp(11)
    L += ["s_waitcnt lgkmcnt(0)", "s_mov_b64 exec, 1", "s_lshl_b32 s74, s2, 3", f"s_add_u32 s74, s74, s{S_WIDX}",
          "s_lshl_b32 s74, s74, 6", f"s_add_u32 s74, s74, {ST_OFF}", "v_mov_b32 v1, 0"]
    for k in range(NST):
        L.append(f"v_mov_b32 v{4+k}, s{ST_BASE+2*k}")
    for k in range(0, NST, 4):
        L.append(f"buffer_store_dwordx4 v[{4+k}:{7+k}], v1, {sr(SRD_WS)}, s74 offen offset:{4*k}")
    if OPT.get("hdbg"):
        lab = f"HD{len(HDL)}"
        HDL.append(lab)
        L += [f"v_not_b32 v20, v4", f"global_atomic_umax v1, v20, s[{S_DBG}:{S_DBG+1}] offset:56",
              f"global_atomic_umax v1, v15, s[{S_DBG}:{S_DBG+1}] offset:60",
              f"s_cmp_lg_u32 s2, {OPT['hdbg']}", f"s_cbranch_scc1 {lab}", f"s_cmp_lg_u32 s{S_WIDX}, 0", f"s_cbranch_scc1 {lab}"]
        words = [1, 2, 3, 4, 5, 6, 7, 9, 10, 11, 12]
        for k in range(1, NST):
            L += [f"v_sub_u32 v20, v{4+k}, v4", f"global_store_dword v1, v20, s[{S_DBG}:{S_DBG+1}] offset:{4*words[k-1]}", "s_nop 1"]
        L += [f"global_store_dword v1, v4, s[{S_DBG}:{S_DBG+1}] offset:52"]
        L.append(f"{lab}:")
    L.append("s_endpgm")
    return L


def is_vmem(line):
    return line.startswith("buffer_") or line.startswith("global_")


def resolve_vm(lines):
    out = []
    count = 0
    tags = {}
    done = -1
    for ln in lines:
        if isinstance(ln, tuple):
            if ln[0] == "VMTAG":
                tags[ln[1]] = count
            elif ln[0] == "VMWAIT":
                if tags[ln[1]] <= done:
                    continue
                n = count - tags[ln[1]]
                assert 0 <= n <= 63, n
                out.append(f"s_waitcnt vmcnt({n})")
                done = tags[ln[1]]
            elif ln[0] == "VMRESET":
                done = count
            elif ln[0] == "NOCOUNT":
                out.append(ln[1])
            else:
                raise ValueError(ln)
        else:
            if is_vmem(ln):
                count += 1
            out.append(ln)
    return out


def resolve_lds(lines):
    out = []
    count = 0
    tags = {}
    for ln in lines:
        if isinstance(ln, tuple):
            if ln[0] == "LTAG":
                tags[ln[1]] = count
            elif ln[0] == "LWAIT":
                out.append(f"s_waitcnt lgkmcnt({min(15, count - tags[ln[1]])})")
            else:
                raise ValueError(ln)
        else:
            if ln.startswith("ds_"):
                count += 1
            out.append(ln)
    return out


SLOT = 49152
KG_BASE = 147456
KARR = 3584
U_BASE = 131072
UPITCH = 1344
USZ = 4 * UPITCH
YB_BASE = U_BASE + 2 * USZ
RING2 = 32768

S_U, S_ARE, S_AIM, S_BRE, S_BIM, S_CRE, S_CIM, S_LDT = 4, 6, 8, 10, 12, 14, 16, 18
S_DS = 20
S_WG, S_WU, S_WD, S_GW = 24, 26, 28, 30
S_OUT, S_DBG, S_WS = 32, 34, 36
S_WIDX, S_XCD, S_IDX, S_RB, S_CB, S_PHI = 38, 39, 40, 41, 42, 43
SRD_X, SRD_WG, SRD_WU, SRD_WS, SRD_WD, SRD_OUT = 44, 48, 52, 56, 60, 64


def srd(a, d, base, nbytes):
    a(f"""
    s_mov_b32 s{d}, s{base}
    s_and_b32 s{d+1}, s{base+1}, 0xffff
    s_mov_b32 s{d+2}, {nbytes}
    s_mov_b32 s{d+3}, 0x00020000
    """)


def prologue(a):
    a("""
    s_cmp_ge_u32 s2, 256
    s_cbranch_scc1 L_END
    """)
    if STAMPS:
        a.ext([f"s_mov_b32 s{ST_BASE+2*k}, 0" for k in range(NST)])
    a.ext(stamp(0))
    a(f"""
    s_load_dwordx16 s[4:19], s[0:1], 0
    s_load_dwordx8 s[24:31], s[0:1], 80
    s_load_dwordx2 s[36:37], s[0:1], 128
    s_load_dwordx4 s[32:35], s[0:1], 112
    s_load_dwordx2 s[20:21], s[0:1], 64
    v_lshrrev_b32 v1, 6, v0
    v_and_b32 v0, 63, v0
    s_and_b32 s{S_XCD}, s2, 7
    v_readfirstlane_b32 s{S_WIDX}, v1
    s_lshr_b32 s{S_IDX}, s2, 3
    """)
    if OPT.get("map", 1) == 0:
        a(f"""
        s_and_b32 s68, s{S_IDX}, 3
        s_lshr_b32 s69, s{S_IDX}, 2
        s_lshr_b32 s{S_RB}, s{S_XCD}, 1
        s_lshl_b32 s{S_RB}, s{S_RB}, 2
        s_add_u32 s{S_RB}, s{S_RB}, s68
        s_and_b32 s{S_CB}, s{S_XCD}, 1
        s_mul_i32 s{S_CB}, s{S_CB}, 7
        s_add_u32 s{S_CB}, s{S_CB}, s69
        s_lshl_b32 s{S_PHI}, s68, 1
        s_add_u32 s{S_PHI}, s{S_PHI}, s69
        s_and_b32 s{S_PHI}, s{S_PHI}, 7
        """)
    else:
        a(f"""
        s_and_b32 s70, s{S_XCD}, 1
        s_lshl_b32 s70, s70, 2
        s_and_b32 s68, s{S_IDX}, 7
        s_lshr_b32 s69, s{S_IDX}, 3
        s_add_u32 s71, s69, s70
        s_add_u32 s72, s68, s70
        s_cmp_ge_u32 s{S_IDX}, 24
        s_cselect_b32 s71, 3, s71
        s_cselect_b32 s68, s72, s68
        s_lshr_b32 s{S_CB}, s{S_XCD}, 1
        s_and_b32 s{S_CB}, s{S_CB}, 1
        s_mul_i32 s{S_CB}, s{S_CB}, 7
        s_add_u32 s{S_CB}, s{S_CB}, s71
        s_lshr_b32 s{S_RB}, s{S_XCD}, 2
        s_lshl_b32 s{S_RB}, s{S_RB}, 3
        s_add_u32 s{S_RB}, s{S_RB}, s68
        s_lshl_b32 s{S_PHI}, s69, 1
        s_add_u32 s{S_PHI}, s{S_PHI}, s68
        s_and_b32 s{S_PHI}, s{S_PHI}, 7
        """)
    a(f"""
    s_waitcnt lgkmcnt(0)
    """)
    srd(a, SRD_X, S_U, 2048 * 512 * 2)
    srd(a, SRD_WG, S_WG, 512 * 1792 * 2)
    srd(a, SRD_WU, S_WU, 512 * 1792 * 2)
    srd(a, SRD_WS, S_WS, WS_BYTES)
    srd(a, SRD_WD, S_WD, 1792 * 512 * 2)
    srd(a, SRD_OUT, S_OUT, 2048 * 512 * 2)
    a(f"""
    s_cmp_ge_u32 s{S_WIDX}, 6
    s_cbranch_scc1 L_KWAVE
    s_cmp_ge_u32 s{S_WIDX}, 4
    s_cbranch_scc1 L_LWAVE
    s_cmp_ge_u32 s{S_IDX}, 28
    s_cbranch_scc1 L_SPARE
    """)


VL16 = 1
XD = 8
(VD0, VD1, DA0, DA1, VEP, VPH, VFL, VG, VY, VYW, VYT, VW1, VW2, VW3, VR1, VR23) = range(112, 128)
YT_BASE = YB_BASE
G_LDS = YB_BASE
def n1():
    return OPT.get("n1", 14)


def rot_scalar(dst, tmp):
    return f"""
    s_and_b32 s{dst}, s{S_IDX}, 1
    s_lshl_b32 s{dst}, s{dst}, 1
    s_lshr_b32 s{tmp}, s{S_IDX}, 3
    s_add_u32 s{dst}, s{dst}, s{tmp}
    s_and_b32 s{dst}, s{dst}, 3
    s_mul_i32 s{dst}, s{dst}, 7
    """


def gemm2_setup(a):
    a(f"""
    s_lshl_b32 s6, s{S_XCD}, 2
    s_lshr_b32 s13, s{S_IDX}, 3
    s_add_u32 s6, s6, s13
    s_and_b32 s7, s{S_IDX}, 7
    s_lshl_b32 s17, s6, 6
    s_lshr_b32 s23, s{S_WIDX}, 1
    s_lshl_b32 s13, s23, 5
    s_add_u32 s17, s17, s13
    s_lshl_b32 s18, s7, 6
    s_and_b32 s14, s{S_WIDX}, 1
    s_lshl_b32 s13, s14, 5
    s_add_u32 s18, s18, s13
    v_lshrrev_b32 v5, 5, v0
    v_and_b32 v6, 31, v0
    v_add_u32 v6, s17, v6
    v_lshlrev_b32 v7, 4, v5
    v_add_u32 v7, s18, v7
    v_lshlrev_b32 v7, 1, v7
    v_lshl_add_u32 v{VEP}, v6, 10, v7
    v_mov_b32 v{VR23}, v7
    s_lshl_b32 s8, s{S_WIDX}, 15
    s_lshl_b32 s9, s6, 1
    s_add_u32 s9, s9, s23
    s_mul_i32 s9, s9, 112
    s_mul_i32 s13, s{S_WIDX}, 28
    s_add_u32 s9, s9, s13
    s_lshl_b32 s9, s9, 10
    s_mul_i32 s22, s23, {224*1024}
    s_sub_u32 s22, {112*1024}, s22
    s_lshl_b32 s10, s13, 14
    s_lshl_b32 s13, s7, 7
    s_add_u32 s10, s10, s13
    """)
    a(rot_scalar(12, 13))
    a(f"""
    s_add_u32 s11, s12, {n1()}
    s_cmp_ge_u32 s11, 28
    s_cselect_b32 s13, 28, 0
    s_sub_u32 s11, s11, s13
    s_lshl_b32 s15, s6, 5
    s_mul_i32 s13, s{S_WIDX}, 7
    s_add_u32 s15, s15, s13
    s_lshl_b32 s15, s15, 7
    s_add_u32 s15, s15, {FH_OFF}
    s_lshl_b32 s13, s7, 2
    s_add_u32 s13, s13, s{S_WIDX}
    s_lshl_b32 s16, s13, 10
    s_add_u32 s16, s16, {FY_OFF}
    s_lshl_b32 s19, s13, 16
    s_lshl_b32 s13, s6, 7
    s_add_u32 s19, s19, s13
    s_add_u32 s19, s19, {Y_OFF}
    v_lshlrev_b32 v{VL16}, 4, v0
    v_lshrrev_b32 v2, 3, v0
    v_and_b32 v3, 7, v0
    v_lshlrev_b32 v{VY}, 12, v2
    v_lshl_add_u32 v{VY}, v3, 4, v{VY}
    v_lshrrev_b32 v4, 1, v2
    v_and_b32 v4, 1, v4
    v_lshlrev_b32 v4, 2, v4
    v_xor_b32 v3, v3, v4
    v_lshlrev_b32 v{VD0}, 10, v2
    v_lshl_add_u32 v{VD0}, v3, 4, v{VD0}
    v_add_u32 v{VD1}, {8192-1024}, v{VD0}
    v_lshlrev_b32 v{VYW}, 7, v2
    v_lshl_add_u32 v{VYW}, v3, 4, v{VYW}
    v_add_u32 v{VYW}, s8, v{VYW}
    v_lshrrev_b32 v2, 2, v0
    v_and_b32 v2, 3, v2
    v_and_b32 v3, 3, v0
    v_lshrrev_b32 v4, 4, v0
    v_and_b32 v4, 1, v4
    v_lshl_add_u32 v6, v5, 2, v2
    v_lshlrev_b32 v6, 7, v6
    v_and_b32 v7, 1, v3
    v_lshl_add_u32 v6, v7, 5, v6
    v_lshl_add_u32 v6, v4, 4, v6
    v_lshrrev_b32 v7, 1, v3
    v_lshl_add_u32 v6, v7, 3, v6
    v_add_u32 v6, s8, v6
    v_lshrrev_b32 v7, 1, v2
    v_xor_b32 v7, s14, v7
    v_lshl_add_u32 v{DA0}, v7, 6, v6
    v_xor_b32 v7, 1, v7
    v_lshl_add_u32 v{DA1}, v7, 6, v6
    s_lshl_b32 s13, s14, 1
    v_add_u32 v6, s13, v5
    v_lshlrev_b32 v{VYT}, 15, v6
    v_lshl_add_u32 v{VYT}, v2, 7, v{VYT}
    v_lshrrev_b32 v7, 1, v2
    v_xor_b32 v7, s23, v7
    v_lshl_add_u32 v{VYT}, v7, 6, v{VYT}
    v_lshl_add_u32 v{VYT}, v4, 5, v{VYT}
    v_lshl_add_u32 v{VYT}, v3, 3, v{VYT}
    v_min_u32 v{VPH}, 6, v0
    v_lshlrev_b32 v{VPH}, 7, v{VPH}
    v_lshrrev_b32 v2, 2, v0
    v_and_b32 v2, 7, v2
    v_lshlrev_b32 v{VFL}, 7, v2
    v_lshl_add_u32 v{VFL}, v3, 2, v{VFL}
    v_and_b32 v{VG}, 31, v0
    s_lshl_b32 s13, s23, 5
    v_add_u32 v{VG}, s13, v{VG}
    v_lshlrev_b32 v{VG}, 2, v{VG}
    v_add_u32 v{VG}, {G_LDS}, v{VG}
    v_add_u32 v{VW1}, s8, v{VL16}
    s_xor_b32 s13, s{S_WIDX}, 1
    s_lshl_b32 s13, s13, 15
    v_add_u32 v{VR1}, s13, v{VL16}
    s_xor_b32 s13, s{S_WIDX}, 2
    s_lshl_b32 s13, s13, 15
    v_add_u32 v{VW2}, s13, v{VL16}
    s_xor_b32 s13, s{S_WIDX}, 3
    s_lshl_b32 s13, s13, 15
    v_add_u32 v{VW3}, s13, v{VL16}
    """)


def xd_loads():
    return [f"buffer_load_dwordx4 {v(XD,4)}, v{VEP}, {sr(SRD_X)}, 0 offen",
            f"buffer_load_dwordx4 {v(XD+4,4)}, v{VEP}, {sr(SRD_X)}, 0 offen offset:16",
            f"global_load_dwordx4 v[4:7], v{VR23}, s[{S_DS}:{S_DS+1}]",
            f"global_load_dwordx4 v[36:39], v{VR23}, s[{S_DS}:{S_DS+1}] offset:16"]


def xd_finish():
    L = ["s_mov_b32 s74, 0xffff0000", "s_waitcnt vmcnt(0)"]
    for i in range(8):
        d = 4 + i if i < 4 else 32 + i
        L += [f"v_lshlrev_b32 v2, 16, v{XD+i}", f"v_and_b32 v3, s74, v{XD+i}",
              f"v_lshlrev_b32 v34, 16, v{d}", f"v_and_b32 v35, s74, v{d}",
              "v_mul_f32 v2, v2, v34", "v_mul_f32 v3, v3, v35", f"v_cvt_pk_bf16_f32 v{XD+i}, v2, v3"]
    return L


def gemm1(a):
    XA = 16
    WA = 28
    BUFS = [64, 88, 40]
    ACC = 128

    def acc(mat, t, tt):
        return ACC + 16 * (mat * 4 + t * 2 + tt)

    def wf(b, mat, t):
        return BUFS[b] + 4 * (mat * 2 + t)

    def xf(b, tt):
        return BUFS[b] + 16 + 4 * tt

    pt = OPT.get("pt", 0)
    if pt:
        gran = {1: 21, 2: 18, 3: 16}[pt]
        a(f"""
        s_cmp_lg_u32 s{S_WIDX}, 0
        s_cbranch_scc1 L_NOTOUCH
        v_lshlrev_b32 v2, {gran}, v0
        v_mov_b32 v3, 0
        """)
        for i in range(max(1, (16 << 20) >> (gran + 6))):
            a(f"s_mov_b32 s13, {i << (gran + 6)}")
            a(f"buffer_load_dword v64, v2, {sr(SRD_WS)}, s13 offen")
        a(f"""
        buffer_load_dword v65, v2, {sr(SRD_OUT)}, 0 offen
        buffer_load_dword v66, v2, {sr(SRD_WD)}, 0 offen
        global_load_dword v67, v3, s[{S_DS}:{S_DS+1}]
        global_load_dword v68, v3, s[{S_DBG}:{S_DBG+1}] offset:128
        s_waitcnt vmcnt(0)
        L_NOTOUCH:
        """)
    gemm2_setup(a)
    a(f"""
    s_lshr_b32 s68, s{S_WIDX}, 1
    s_and_b32 s69, s{S_WIDX}, 1
    v_and_b32 v7, 31, v0
    v_lshrrev_b32 v2, 5, v0
    v_lshrrev_b32 v3, 1, v0
    v_and_b32 v3, 7, v3
    s_lshl_b32 s70, s68, 13
    v_lshlrev_b32 v4, 7, v7
    v_add_u32 v4, s70, v4
    """)
    for ks in range(4):
        a(f"""
        v_add_u32 v5, {2*ks}, v2
        v_xor_b32 v5, v5, v3
        v_lshl_add_u32 v{XA+ks}, v5, 4, v4
        """)
    a(f"""
    v_lshrrev_b32 v7, 2, v0
    v_and_b32 v7, 3, v7
    v_and_b32 v3, 3, v0
    v_lshrrev_b32 v4, 4, v0
    v_and_b32 v4, 1, v4
    v_lshl_add_u32 v5, v2, 3, v7
    v_lshlrev_b32 v5, 8, v5
    v_lshl_add_u32 v5, v4, 5, v5
    v_lshl_add_u32 v5, v3, 3, v5
    s_lshl_b32 s70, s69, 1
    """)
    for t in range(2):
        a(f"""
        s_add_u32 s71, s70, {t}
        v_xor_b32 v6, s71, v7
        v_lshl_add_u32 v{WA+t}, v6, 6, v5
        """)
    for sl in (1, 2):
        for ks in range(4):
            a(f"v_add_u32 v{XA+4*sl+ks}, {sl*SLOT}, v{XA+ks}")
        for t in range(2):
            a(f"v_add_u32 v{WA+2*sl+t}, {sl*SLOT}, v{WA+t}")
    a(f"""
    s_lshl_b32 s70, s{S_RB}, 2
    s_lshl_b32 s71, s68, 1
    s_add_u32 s70, s70, s71
    s_mul_i32 s70, s70, 112
    s_lshl_b32 s71, s{S_CB}, 3
    s_add_u32 s70, s70, s71
    s_lshl_b32 s71, s69, 2
    s_add_u32 s70, s70, s71
    s_lshl_b32 s70, s70, 10
    s_add_u32 s71, s70, {112*1024}
    s_lshl_b32 s3, s{S_RB}, 1
    s_add_u32 s3, s3, s68
    s_lshl_b32 s3, s3, 5
    s_lshl_b32 s72, s{S_CB}, 1
    s_add_u32 s3, s3, s72
    s_add_u32 s3, s3, s69
    s_lshl_b32 s3, s3, 7
    s_add_u32 s3, s3, {FH_OFF}
    s_mov_b32 s72, {f32(-LOG2E)}
    s_mov_b32 s73, {f32(-LOG2E)}
    """)

    def reads(n):
        st, ks = n >> 2, n & 3
        sl = st % 3
        b = n % 3
        r = []
        r.append(f"ds_read_b128 {v(xf(b,0),4)}, v{XA+4*sl+ks}")
        for mat in range(2):
            for t in range(2):
                for h2 in range(2):
                    off = 16384 * (1 + mat) + ks * 4096 + h2 * 1024
                    r.append(f"ds_read_b64_tr_b16 {v(wf(b,mat,t)+2*h2,2)}, v{WA+2*sl+t} offset:{off}")
                if mat == 0 and t == 0:
                    r.append(f"ds_read_b128 {v(xf(b,1),4)}, v{XA+4*sl+ks} offset:4096")
        return r

    T = 16

    def epi(p):
        t, tt = p >> 1, p & 1
        G, U = acc(0, t, tt), acc(1, t, tt)
        o = 32 + 8 * p
        L = []
        for h in range(2):
            R = range(8 * h, 8 * h + 8)
            L += [f"v_pk_mul_f32 {v(T+i,2)}, {v(G+i,2)}, s[72:73]" for i in R[::2]]
            for i in R[::2]:
                L += [f"v_exp_f32 v{T+i}, v{T+i}", f"v_exp_f32 v{T+i+1}, v{T+i+1}",
                      f"v_pk_mul_f32 {v(U+i,2)}, {v(G+i,2)}, {v(U+i,2)}"]
            L += [f"v_pk_add_f32 {v(T+i,2)}, {v(T+i,2)}, 1.0 op_sel_hi:[1,0]" for i in R[::2]]
            L += [f"v_rcp_f32 v{T+i}, v{T+i}" for i in R]
            L += [f"v_pk_mul_f32 {v(U+i,2)}, {v(U+i,2)}, {v(T+i,2)}" for i in R[::2]]
            for i in range(4):
                L.append(f"v_cvt_pk_bf16_f32 v{o+4*h+i}, v{U+8*h+2*i}, v{U+8*h+2*i+1}")
            L.append(f"buffer_store_dwordx4 {v(o+4*h,4)}, v{VL16}, {sr(SRD_WS)}, s{70+tt} offen offset:{t*2048+1024*h} sc1")
        return L

    a("s_barrier")
    a.ext(stamp(1))
    a.ext(bstamp(2, 1))
    a.ext(reads(0))
    a.ext(reads(1))
    extra = []
    XL = OPT.get("xl", 13)
    for n in range(32):
        b = n % 3
        if (n & 3) == 2:
            a("s_waitcnt lgkmcnt(0)")
            a.ext(bstamp(2, 2 + (n >> 2)))
            a("s_barrier")
            if n == 22:
                a.ext(stamp(2))
        elif (n & 3) != 3:
            a("s_waitcnt lgkmcnt(10)")
        rd = reads(n + 2) if n + 2 < 32 else []
        mf = []
        for t in range(2):
            for tt in range(2):
                for mat in range(2):
                    c = "0" if n == 0 else v(acc(mat, t, tt), 16)
                    mf.append(f"v_mfma_f32_32x32x16_bf16 {v(acc(mat,t,tt),16)}, {v(wf(b,mat,t),4)}, {v(xf(b,tt),4)}, {c}")
        if n == XL:
            extra = xd_loads() + ["v_mov_b32 v2, 0", nonce_ld(VR23, 2)]
        if n == XL + 6:
            extra = xd_finish()
        for i, m in enumerate(mf):
            a(m)
            a.ext(rd[2 * i:2 * i + 2])
            if i >= 4:
                a.ext(extra[:3])
                extra = extra[3:]
    assert not extra
    a.ext(stamp(3))
    a("v_mov_b32 v2, 0")
    a.ext(plain(nonce_get("NG", VR23, 2)))
    for p in range(4):
        a.ext(epi(p))
    a.ext(stamp(4))
    a("s_branch L_GEMM2")


def spare(a):
    R = 16
    O = 80
    GWv = 112
    SUM = 120
    a(f"""
    s_sub_u32 s68, s{S_IDX}, 28
    s_lshl_b32 s3, s{S_XCD}, 2
    s_add_u32 s3, s3, s68
    s_lshl_b32 s3, s3, 5
    s_add_u32 s3, s3, s{S_WIDX}
    s_lshl_b32 s3, s3, 2
    s_add_u32 s3, s3, {FU_OFF}
    s_lshl_b32 s68, s68, 2
    s_add_u32 s68, s68, s{S_WIDX}
    s_lshr_b32 s69, s68, 1
    s_mov_b32 s74, s{S_XCD}
    v_and_b32 v1, 7, v0
    v_lshrrev_b32 v2, 3, v0
    v_lshlrev_b32 v3, 15, v2
    v_lshl_add_u32 v3, v1, 4, v3
    v_lshlrev_b32 v4, 15, v1
    v_lshl_add_u32 v4, v2, 4, v4
    v_lshlrev_b32 v5, 4, v1
    v_lshlrev_b32 v6, 2, v0
    s_mov_b32 s70, 0x05040100
    s_mov_b32 s71, 0x07060302
    s_lshl_b32 s72, s69, 7
    v_add_u32 v7, s72, v5
    global_load_dwordx4 {v(GWv,4)}, v7, s[{S_GW}:{S_GW+1}]
    """)
    for i in range(2):
        b = 6 + 4 * i
        a(f"""
        s_lshl_b32 s73, s68, 1
        s_add_u32 s73, s73, {i}
        s_and_b32 s73, s73, 3
        s_lshl_b32 s{b}, s74, 18
        s_lshl_b32 s75, s73, 10
        s_add_u32 s{b}, s{b}, s75
        s_add_u32 s{b}, s{b}, s72
        s_lshl_b32 s{b+1}, s69, 18
        s_add_u32 s{b+1}, s{b+1}, s75
        s_lshl_b32 s75, s74, 7
        s_add_u32 s{b+1}, s{b+1}, s75
        s_add_u32 s{b+1}, s{b+1}, {UT_OFF}
        s_lshl_b32 s{b+2}, s74, 8
        s_lshl_b32 s75, s73, 11
        s_add_u32 s{b+2}, s{b+2}, s75
        s_lshl_b32 s75, s69, 13
        s_add_u32 s{b+2}, s{b+2}, s75
        s_add_u32 s{b+2}, s{b+2}, {GL_OFF}
        """)
        for j in range(8):
            a(f"buffer_load_dwordx4 {v(R+32*i+4*j,4)}, v3, {sr(SRD_X)}, s{b} offen")
            if j < 7:
                a(f"s_add_u32 s{b}, s{b}, 4096")
    for i in range(2):
        b = 6 + 4 * i
        a(f"s_waitcnt vmcnt({8 if i == 0 else 9})")
        Ri = R + 32 * i
        for e in range(8):
            for jj in range(4):
                sel = 71 if (e & 1) else 70
                a(f"v_perm_b32 v{O+4*e+jj}, v{Ri+4*(2*jj+1)+(e>>1)}, v{Ri+4*(2*jj)+(e>>1)}, s{sel}")
            a(f"buffer_store_dwordx4 {v(O+4*e,4)}, v4, {sr(SRD_WS)}, s{b+1} offen sc1")
            if e < 7:
                a(f"s_add_u32 s{b+1}, s{b+1}, 4096")
        for j in range(8):
            a(f"v_mov_b32 v{SUM+j}, 0")
        for q in range(4):
            for j in range(8):
                a(f"v_dot2c_f32_bf16 v{SUM+j}, v{Ri+4*j+q}, v{GWv+q}")
        a("s_nop 3")
        for ctl in ("quad_perm:[1,0,3,2]", "quad_perm:[2,3,0,1]", "row_half_mirror"):
            for j in range(8):
                a(f"v_add_f32_dpp v{SUM+j}, v{SUM+j}, v{SUM+j} {ctl} row_mask:0xf bank_mask:0xf")
        for j in range(1, 8):
            a(f"""
            v_cmp_eq_u32 vcc, {j}, v1
            s_nop 1
            v_cndmask_b32 v{SUM}, v{SUM}, v{SUM+j}, vcc
            """)
        a(f"buffer_store_dword v{SUM}, v6, {sr(SRD_WS)}, s{b+2} offen sc1")
        a("s_nop 1")
    a.ext(stamp(1))
    a("v_mov_b32 v2, 0")
    a(nonce_ld(3, 2))
    a("s_waitcnt vmcnt(0)")
    a.ext(plain(nonce_get("NS", 3, 2)))
    a(f"""
    s_mov_b32 s76, s{S_NONCE}
    s_mov_b64 exec, 1
    buffer_store_dword v3, v2, {sr(SRD_WS)}, s3 offen sc1
    s_mov_b64 exec, -1
    s_barrier
    """)
    a.ext(stamp(2))
    gemm2_setup(a)
    a.ext(xd_loads())
    a(f"""
    s_lshl_b32 s13, s{S_XCD}, 2
    s_add_u32 s13, s13, s{S_IDX}
    s_sub_u32 s13, s13, 28
    s_lshl_b32 s13, s13, 2
    s_add_u32 s13, s13, s{S_WIDX}
    s_mul_i32 s13, s13, {14*1024}
    """)
    for i in range(14):
        if i % 4 == 0 and i:
            a("s_add_u32 s13, s13, 4096")
        a(f"buffer_load_dwordx4 {v(64+4*(i%4),4)}, v{VL16}, {sr(SRD_WD)}, s13 offen offset:{1024*(i%4)}")
    a.ext(xd_finish())
    a(f"s_mov_b32 s{S_NONCE}, s76")


def spin(label, loads, checks, sleep=2):
    L = [f"{label}_SPIN:", f"s_sleep {sleep}"]
    L += [("NOCOUNT", x) for x in loads]
    L += ["s_waitcnt vmcnt(0)"]
    L += ["s_sub_u32 s77, s77, 1", "s_cmp_eq_u32 s77, 0", f"s_cbranch_scc1 {label}_OK"]
    L += [f"{label}_CHK:"] + checks
    L += [f"s_cbranch_scc0 {label}_SPIN", f"{label}_OK:"]
    return L


S_NONCE = 23


def nonce_ld(vd, vz):
    return f"global_load_dword v{vd}, v{vz}, s[{S_DBG}:{S_DBG+1}] sc1"


def nonce_get(label, vd, vz, sleep=8):
    L = ["s_mov_b32 s77, 0x100000", f"s_branch {label}_CHK"]
    L += spin(label, [nonce_ld(vd, vz)], [f"v_cmp_ne_u32 vcc, 0, v{vd}", "s_nop 3", "s_cmp_eq_u64 vcc, exec"], sleep)
    L += [f"v_readfirstlane_b32 s{S_NONCE}, v{vd}", "s_nop 3"]
    return L


def plain(lines):
    return [x[1] if isinstance(x, tuple) else x for x in lines]


def gemm2(a0):
    a = Asm()
    NS = 28
    NP = 12
    NR = 16
    DH = 6
    ACC = 192
    WF = 16
    WFR = 128
    HB = 144
    N1 = n1()
    NF = OPT.get("nf", 2)
    PP1 = OPT.get("pp1", 21)
    N2 = OPT.get("n2", 28)

    def acc(t, tt):
        return ACC + 16 * (t + 2 * tt)

    def wload(i):
        sl = i % NR
        return [
            "s_lshl_b32 s14, s11, 14", f"s_add_u32 m0, s8, {sl*2048}", "s_add_u32 s14, s14, s10",
            f"buffer_load_dwordx4 v{VD0}, {sr(SRD_WD)}, s14 offen lds",
            "s_add_u32 s11, s11, 1", "s_cmp_ge_u32 s11, 28", "s_cselect_b32 s11, 0, s11",
            f"buffer_load_dwordx4 v{VD1}, {sr(SRD_WD)}, s14 offen offset:1024 lds",
            ("VMTAG", f"W{i}"),
        ]

    def hload(i):
        sl = i % DH
        return [
            "s_lshl_b32 s13, s12, 10", "s_add_u32 s13, s13, s9",
            f"buffer_load_dwordx4 {v(HB+8*sl,4)}, v{VL16}, {sr(SRD_WS)}, s13 offen sc1",
            "s_add_u32 s13, s13, s22",
            "s_add_u32 s12, s12, 1", "s_cmp_ge_u32 s12, 28", "s_cselect_b32 s12, 0, s12",
            f"buffer_load_dwordx4 {v(HB+8*sl+4,4)}, v{VL16}, {sr(SRD_WS)}, s13 offen sc1",
            ("VMTAG", f"H{i}"),
        ]

    def wfrag(i):
        return WF + 8 * i if i < NP else WFR + 8 * (i & 1)

    def trd(i):
        sl = i % NR
        r = [("VMWAIT", f"W{i}")] if i >= N1 else []
        for t in range(2):
            for h2 in range(2):
                r.append(f"ds_read_b64_tr_b16 {v(wfrag(i)+4*t+2*h2,2)}, v{DA0+t} offset:{sl*2048+h2*1024}")
        return r

    a.tag("hst")
    a("s_barrier")
    a.ext(stamp(5))
    a(f"""
    s_setprio 2
    v_mov_b32 v2, 0
    v_mov_b32 v3, s{S_NONCE}
    s_mov_b32 s77, 0x100000
    """)
    ph_ld = f"buffer_load_dword v4, v{VPH}, {sr(SRD_WS)}, s15 offen sc1"

    def wl(i):
        a.ext(wload(i))
        if i == N1 + NF - 1:
            a.wait("hst")
            a(f"""
            s_mov_b64 exec, 1
            buffer_store_dword v3, v2, {sr(SRD_WS)}, s3 offen sc1
            s_mov_b64 exec, -1
            """)
            a.ext(stamp(6))
        if i == PP1:
            a(ph_ld)
            a.tag("P1")
    assert N1 + NF <= NR
    for i in range(N1, NR):
        wl(i)
    for i in range(NP + 1):
        if i < NP:
            a.ext(trd(i))
        if i >= 1 and NR + i - 1 < N2:
            a(f"s_waitcnt lgkmcnt({4 if i < NP else 0})")
            wl(NR + i - 1)
    a.ext(stamp(7))
    a.wait("P1")
    a("s_branch PH_CHK")
    a.ext(spin("PH", [ph_ld], [f"v_cmp_eq_u32 vcc, s{S_NONCE}, v4", "s_nop 3", "s_cmp_eq_u64 vcc, exec"]))
    a.ext(stamp(8))
    a.ext(bstamp(3, 1))
    for i in range(DH):
        a.ext(hload(i))
    a("s_waitcnt lgkmcnt(0)")

    YR, FL, YT, EG = 80, 2, WFR, 6
    fl_ld = [f"buffer_load_dword v{FL}, v{VFL}, {sr(SRD_WS)}, s16 offen sc1"]
    chk = [f"v_cmp_eq_u32 vcc, s{S_NONCE}, v{FL}", "s_nop 3", "s_cmp_eq_u64 vcc, exec"]

    def yloads():
        return [f"buffer_load_dwordx4 {v(YR,4)}, v{VY}, {sr(SRD_WS)}, s19 offen sc1",
                "s_add_u32 s13, s19, 0x8000",
                f"buffer_load_dwordx4 {v(YR+4,4)}, v{VY}, {sr(SRD_WS)}, s13 offen sc1"]

    IF = OPT.get("if", 22)
    IY = OPT.get("iy", 25)
    for i in range(NS):
        sl = i % DH
        a.wait(f"H{i}")
        if i >= NP:
            a("s_waitcnt lgkmcnt(0)")
        hl = hload(i - 1 + DH) if 1 <= i and i - 1 + DH < NS else []
        fill = [(trd(i + 1) if NP <= i + 1 < NS else []) + hl[:3], hl[3:], wload(N2 + i) if N2 + i < NS else [], []]
        k = 0
        for t in range(2):
            for tt in range(2):
                c = "0" if i == 0 else v(acc(t, tt), 16)
                a(f"v_mfma_f32_32x32x16_bf16 {v(acc(t,tt),16)}, {v(wfrag(i)+4*t,4)}, {v(HB+8*sl+4*tt,4)}, {c}")
                a.ext(fill[k])
                k += 1
        if i in (0, 3, 7, 11, 15, 19, 23, 27):
            a.ext(bstamp(3, 2 + (0, 3, 7, 11, 15, 19, 23, 27).index(i)))
        if i == IF:
            a.ext(fl_ld)
            a.tag("F")
        if i == IY:
            a.wait("F")
            a.ext(yloads())
    a.ext(stamp(9))
    a.ext(chk)
    a("s_cbranch_scc1 PY_DONE")
    a.ext(spin("PY", fl_ld, chk))
    a.ext([("NOCOUNT", x) if is_vmem(x) else x for x in yloads()])
    a("PY_DONE:")
    a("s_nop 5")
    for k in range(1, 4):
        for g in range(4):
            a(f"ds_write_b128 v{VW1}, {v(ACC+16*k+4*g,4)} offset:{k*4096+g*1024}")
    X1, Y1 = HB, HB + 16
    a(f"""
    v_mov_b32 v5, 0xffff0000
    ds_read_b32 v{EG}, v{VG}
    s_waitcnt vmcnt(0)
    ds_write_b128 v{VYW}, {v(YR,4)} offset:16384
    ds_write_b128 v{VYW}, {v(YR+4,4)} offset:17408
    """)
    for i in range(8):
        a(f"""
        v_lshlrev_b32 v{X1+2*i}, 16, v{XD+i}
        v_and_b32 v{X1+2*i+1}, v5, v{XD+i}
        """)
    a("s_waitcnt lgkmcnt(0)")
    a("s_barrier")
    PB = 16
    for q in range(4):
        a(f"ds_read_b64_tr_b16 {v(YT+2*q,2)}, v{VYT} offset:{16384+q*512}")
    for k, base in ((1, VR1), (2, VW2), (3, VW3)):
        for g in range(4):
            a(f"ds_read_b128 {v(PB+16*(k-1)+4*g,4)}, v{base} offset:{k*4096+g*1024}")
    a("s_waitcnt lgkmcnt(12)")
    for i in range(8):
        a(f"""
        v_lshlrev_b32 v{Y1+2*i}, 16, v{YT+i}
        v_and_b32 v{Y1+2*i+1}, v5, v{YT+i}
        """)
    for i in range(0, 16, 2):
        a(f"v_pk_add_f32 {v(Y1+i,2)}, {v(Y1+i,2)}, {v(X1+i,2)}")
    a("s_waitcnt lgkmcnt(8)")
    for i in range(0, 16, 2):
        a(f"v_pk_add_f32 {v(ACC+i,2)}, {v(ACC+i,2)}, {v(PB+i,2)}")
    a("s_waitcnt lgkmcnt(0)")
    for i in range(0, 16, 2):
        a(f"v_pk_add_f32 {v(PB+16+i,2)}, {v(PB+16+i,2)}, {v(PB+32+i,2)}")
    for i in range(0, 16, 2):
        a(f"v_pk_add_f32 {v(ACC+i,2)}, {v(ACC+i,2)}, {v(PB+16+i,2)}")
    for i in range(0, 16, 2):
        a(f"v_pk_add_f32 {v(Y1+i,2)}, {v(Y1+i,2)}, {v(ACC+i,2)} neg_lo:[0,1] neg_hi:[0,1]")
    for i in range(0, 16, 2):
        a(f"v_pk_fma_f32 {v(ACC+i,2)}, {v(Y1+i,2)}, {v(EG,2)}, {v(ACC+i,2)} op_sel_hi:[1,0,1]")
    for i in range(8):
        a(f"v_cvt_pk_bf16_f32 v{X1+i}, v{ACC+2*i}, v{ACC+2*i+1}")
    a(f"""
    buffer_store_dwordx4 {v(X1,4)}, v{VEP}, {sr(SRD_OUT)}, 0 offen
    buffer_store_dwordx4 {v(X1+4,4)}, v{VEP}, {sr(SRD_OUT)}, 0 offen offset:16
    """)
    a.ext(stamp_end())
    a0.ext(resolve_vm(a.L))


def kwave(gemm_wg):
    sfx = "G" if gemm_wg else "S"
    ra = RA(2, 256)
    pre = Asm()
    main = Asm()
    ph2 = Asm()
    a = pre
    a(f"""
    s_setprio {OPT.get("kprio", 0)}
    s_sub_u32 s68, s{S_WIDX}, 6
    s_lshl_b32 s69, s2, 1
    s_add_u32 s69, s69, s68
    s_lshl_b32 s70, s68, 13
    s_add_u32 s70, s70, {KG_BASE}
    s_lshl_b32 s71, s69, 8
    """)
    t0 = ra(); t1 = ra(); t2 = ra(); t3 = ra()
    PR = ra(7)
    a(f"""
    v_lshlrev_b32 v{t0}, 2, v0
    v_add_u32 v{t0}, s71, v{t0}
    s_lshl_b32 s72, s69, 1
    v_mov_b32 v{t1}, s72
    """)
    for i, sb in enumerate((S_ARE, S_AIM, S_BRE, S_BIM, S_CRE, S_CIM)):
        a(f"global_load_dword v{PR+i}, v{t0}, s[{sb}:{sb+1}]")
    a(f"global_load_ushort v{PR+6}, v{t1}, s[{S_LDT}:{S_LDT+1}]")
    if gemm_wg:
        a(f"""
        s_cmp_lg_u32 s69, 0
        s_cbranch_scc1 K{sfx}_NOTAG
        s_memrealtime s[72:73]
        v_mov_b32 v{t0}, 0
        s_waitcnt lgkmcnt(0)
        s_or_b32 s72, s72, 1
        v_mov_b32 v{t1}, s72
        s_mov_b64 exec, 1
        global_store_dword v{t0}, v{t1}, s[{S_DBG}:{S_DBG+1}] sc1
        s_mov_b64 exec, -1
        K{sfx}_NOTAG:
        """)

    WR = ra(8)
    RD = ra(2)
    a(f"""
    v_lshrrev_b32 v{t0}, 1, v0
    v_and_b32 v{t1}, 7, v{t0}
    v_lshlrev_b32 v{t0}, 8, v{t0}
    v_and_b32 v{t2}, 1, v0
    v_lshl_add_u32 v{t0}, v{t2}, 3, v{t0}
    v_add_u32 v{t0}, s70, v{t0}
    """)
    for b in range(8):
        a(f"""
        v_xor_b32 v{t2}, {b}, v{t1}
        v_lshl_add_u32 v{WR+b}, v{t2}, 4, v{t0}
        """)
    a(f"""
    v_and_b32 v{t0}, 15, v0
    v_lshrrev_b32 v{t1}, 4, v0
    """)
    for p in range(2):
        a(f"""
        v_add_u32 v{t2}, {4*p}, v{t1}
        v_xor_b32 v{t3}, v{t2}, v{t0}
        v_lshlrev_b32 v{t3}, 4, v{t3}
        v_lshl_add_u32 v{t3}, v{t2}, 8, v{t3}
        v_add_u32 v{RD+p}, s70, v{t3}
        """)
    TA0 = ra(); TA1 = ra(); TA2 = ra(); TA3 = ra()
    LP = ra(12)
    a(f"""
    v_and_b32 v{t2}, 1, v{t1}
    v_lshrrev_b32 v{t3}, 1, v{t1}
    v_lshlrev_b32 v{TA0}, 5, v{t0}
    v_lshl_add_u32 v{TA0}, v{t2}, 4, v{TA0}
    v_lshl_add_u32 v{TA0}, v{t3}, 9, v{TA0}
    v_lshrrev_b32 v{LP}, 2, v{TA0}
    v_cvt_f32_u32 v{LP}, v{LP}
    v_add_u32 v{TA0}, s70, v{TA0}
    v_add_f32 v{LP+1}, 1.0, v{LP}
    v_add_f32 v{LP+2}, 2.0, v{LP}
    v_add_f32 v{LP+3}, 2.0, v{LP+1}
    v_cmp_gt_u32 vcc, 2, v{t1}
    v_lshlrev_b32 v{TA1}, 4, v{t0}
    v_lshlrev_b32 v{TA2}, 3, v{t0}
    v_cndmask_b32 v{TA1}, v{TA2}, v{TA1}, vcc
    v_lshl_add_u32 v{TA1}, v{t1}, 8, v{TA1}
    v_add_u32 v{TA1}, s70, v{TA1}
    v_add_u32 v{TA1}, 1024, v{TA1}
    v_mov_b32 v{TA2}, 128
    v_cndmask_b32 v{TA2}, v{TA2}, 8, vcc
    v_add_u32 v{TA2}, v{TA2}, v{TA1}
    v_lshlrev_b32 v{TA3}, 2, v{t0}
    v_lshl_add_u32 v{TA3}, v{t1}, 8, v{TA3}
    v_add_u32 v{TA3}, s70, v{TA3}
    """)
    a(f"""
    v_lshlrev_b32 v{t2}, 7, v{t1}
    v_add_u32 v{t2}, 256, v{t2}
    v_lshlrev_b32 v{t3}, 8, v{t1}
    v_cndmask_b32 v{t2}, v{t3}, v{t2}, vcc
    v_lshl_add_u32 v{t2}, v{t0}, 3, v{t2}
    v_cvt_f32_u32 v{LP+4}, v{t2}
    v_mov_b32 v{t2}, 4.0
    v_cndmask_b32 v{t2}, v{t2}, 2.0, vcc
    v_mov_b32 v{t3}, {f32(128.0)}
    v_cndmask_b32 v{t3}, v{t3}, 4.0, vcc
    v_add_f32 v{LP+5}, v{LP+4}, v{t2}
    v_add_f32 v{LP+6}, v{LP+4}, v{t3}
    v_add_f32 v{LP+7}, v{LP+6}, v{t2}
    v_lshlrev_b32 v{t2}, 9, v{t1}
    v_lshl_add_u32 v{t2}, v{t0}, 3, v{t2}
    v_add_u32 v{t2}, 1024, v{t2}
    v_cvt_f32_u32 v{LP+8}, v{t2}
    v_add_f32 v{LP+9}, {f32(128.0)}, v{LP+8}
    v_add_f32 v{LP+10}, {f32(256.0)}, v{LP+8}
    v_add_f32 v{LP+11}, {f32(384.0)}, v{LP+8}
    """)
    EX = ra(10)
    a(f"""
    s_sub_u32 s72, s70, {4*17024}
    v_lshlrev_b32 v{t0}, 3, v0
    v_cvt_f32_u32 v{t1}, v{t0}
    v_cmp_gt_u32 vcc, 16, v0
    v_add_u32 v{EX+8}, s70, v{t0}
    v_lshlrev_b32 v{t0}, 2, v{t0}
    v_add_u32 v{t0}, s70, v{t0}
    v_lshlrev_b32 v{EX+9}, 2, v0
    v_add_u32 v{EX+9}, s70, v{EX+9}
    v_add_u32 v{EX+9}, 2048, v{EX+9}
    """)
    for kk in range(4):
        e0, e1 = EX + 2 * kk, EX + 2 * kk + 1
        a(f"""
        v_add_f32 v{t2}, 1.0, v{t1}
        v_cvt_pk_bf16_f32 v{t3}, v{t1}, v{t2}
        v_add_f32 v{t1}, 2.0, v{t1}
        v_and_b32 v{e0}, 0xffff, v{t3}
        v_lshrrev_b32 v{e1}, 16, v{t3}
        v_lshl_add_u32 v{e0}, v{e0}, 2, s72
        v_lshl_add_u32 v{e1}, v{e1}, 2, s72
        v_add_u32 v{t2}, {8*kk}, v{t0}
        v_add_u32 v{t3}, {8*kk+4}, v{t0}
        v_cndmask_b32 v{e0}, v{e0}, v{t2}, vcc
        v_cndmask_b32 v{e1}, v{e1}, v{t3}, vcc
        """)
    a("s_waitcnt vmcnt(0)")

    a = main
    MASK = ra()
    DT = ra()
    PP = ra(12)
    a(f"v_mov_b32 v{MASK}, 0xffff0000")
    for i in range(6):
        a(f"v_lshlrev_b32 v{PP+2*i}, 16, v{PR+i}")
        a(f"v_and_b32 v{PP+2*i+1}, v{MASK}, v{PR+i}")
    x = PR + 6
    a(f"""
    v_lshlrev_b32 v{x}, 16, v{x}
    v_mul_f32 v{t0}, {f32(LOG2E_HI)}, v{x}
    s_mov_b32 s72, {f32(LOG2E_HI)}
    v_fma_f32 v{t1}, v{x}, s72, -v{t0}
    v_fmac_f32 v{t1}, {f32(LOG2E_LO)}, v{x}
    v_exp_f32 v{t0}, v{t0}
    v_mul_f32 v{t1}, {f32(LN2)}, v{t1}
    v_fmac_f32 v{t0}, v{t0}, v{t1}
    v_cvt_pk_bf16_f32 v{t0}, v{t0}, v{t0}
    v_lshlrev_b32 v{DT}, 16, v{t0}
    """)
    A2, TH, Br, Bi, Cr, Ci = (PP + 2 * i for i in range(6))
    for m in range(2):
        a(f"""
        v_mul_f32 v{A2+m}, v{DT}, v{A2+m}
        v_mul_f32 v{TH+m}, v{DT}, v{TH+m}
        v_mul_f32 v{Br+m}, v{DT}, v{Br+m}
        v_mul_f32 v{Bi+m}, v{DT}, v{Bi+m}
        v_mul_f32 v{A2+m}, {f32(LOG2E)}, v{A2+m}
        v_mul_f32 v{TH+m}, {f32(INV2PI)}, v{TH+m}
        """)
    W0 = ra(4); W1 = ra(4)
    for m in range(2):
        a(f"""
        v_mul_f32 v{W0+2*m}, v{Cr+m}, v{Br+m}
        v_mul_f32 v{W0+2*m+1}, v{Cr+m}, v{Bi+m}
        v_fma_f32 v{W0+2*m}, -v{Ci+m}, v{Bi+m}, v{W0+2*m}
        v_fmac_f32 v{W0+2*m+1}, v{Ci+m}, v{Br+m}
        v_sub_f32 v{W0+2*m+1}, 0, v{W0+2*m+1}
        """)
    SIG = ra(); WM = ra(); CE = ra()
    a(f"""
    v_max_f32 v{SIG}, v{A2}, v{A2+1}
    v_max3_f32 v{WM}, |v{W0}|, |v{W0+1}|, |v{W0+2}|
    v_max_f32 v{WM}, |v{W0+3}|, v{WM}
    s_nop 1
    """)
    for ctl in ("quad_perm:[1,0,3,2]", "quad_perm:[2,3,0,1]", "row_half_mirror", "row_mirror"):
        a(f"""
        v_max_f32_dpp v{SIG}, v{SIG}, v{SIG} {ctl} row_mask:0xf bank_mask:0xf
        v_max_f32_dpp v{WM}, v{WM}, v{WM} {ctl} row_mask:0xf bank_mask:0xf
        s_nop 0
        """)
    a(f"""
    v_readlane_b32 s72, v{SIG}, 0
    v_readlane_b32 s73, v{SIG}, 16
    v_readlane_b32 s74, v{SIG}, 32
    v_readlane_b32 s75, v{SIG}, 48
    v_readlane_b32 s6, v{WM}, 0
    v_readlane_b32 s7, v{WM}, 16
    v_readlane_b32 s8, v{WM}, 32
    v_readlane_b32 s9, v{WM}, 48
    v_max_f32 v{SIG}, s72, v{SIG}
    v_max_f32 v{SIG}, s73, v{SIG}
    v_max_f32 v{SIG}, s74, v{SIG}
    v_max_f32 v{SIG}, s75, v{SIG}
    v_max_f32 v{WM}, s6, v{WM}
    v_max_f32 v{WM}, s7, v{WM}
    v_max_f32 v{WM}, s8, v{WM}
    v_max_f32 v{WM}, s9, v{WM}
    v_sub_f32 v{A2}, v{A2}, v{SIG}
    v_sub_f32 v{A2+1}, v{A2+1}, v{SIG}
    v_frexp_exp_i32_f32 v{CE}, v{WM}
    v_sub_u32 v{t0}, 14, v{CE}
    v_subrev_u32 v{CE}, 29, v{CE}
    """)
    for i in range(4):
        a(f"v_ldexp_f32 v{W0+i}, v{W0+i}, v{t0}")

    def cexp(l):
        r = ra(6)
        for m in range(2):
            a(f"""
            v_mul_f32 v{t0}, {f32(float(l))}, v{A2+m}
            v_mul_f32 v{t1}, {f32(float(l))}, v{TH+m}
            v_exp_f32 v{t0}, v{t0}
            v_fract_f32 v{t1}, v{t1}
            v_cos_f32 v{t2}, v{t1}
            v_sin_f32 v{t3}, v{t1}
            s_nop 0
            v_mul_f32 v{r+2*m}, v{t0}, v{t2}
            v_mul_f32 v{r+2*m+1}, v{t0}, v{t3}
            v_sub_f32 v{r+4+m}, 0, v{r+2*m+1}
            """)
        return r

    def cmul(d, x_, b, conj=False):
        for m in range(2):
            br, bi, nbi = b + 2 * m, b + 2 * m + 1, b + 4 + m
            if conj:
                bi, nbi = nbi, bi
            a(f"""
            v_mul_f32 v{d+2*m}, v{x_+2*m}, v{br}
            v_mul_f32 v{d+2*m+1}, v{x_+2*m}, v{bi}
            v_fmac_f32 v{d+2*m}, v{x_+2*m+1}, v{nbi}
            v_fmac_f32 v{d+2*m+1}, v{x_+2*m+1}, v{br}
            """)

    def neg(b):
        for m in range(2):
            a(f"v_sub_f32 v{b+4+m}, 0, v{b+2*m+1}")

    def scale(d, x_):
        for i in range(4):
            a(f"v_mul_f32 v{d+i}, {f32(32768.0)}, v{x_+i}")

    VB = [ra(32, 4), ra(32, 4), ra(32, 4), ra(18, 4)]
    CH0 = ra(0, 4)

    def put(batch, row, r):
        h = VB[batch] + 2 * row
        if r is None:
            a(f"v_mov_b32 v{h}, 0x7800\nv_mov_b32 v{h+1}, 0x7800")
        else:
            a(f"""
            v_cvt_pk_f16_f32 v{h}, v{r}, v{r+1}
            v_cvt_pk_f16_f32 v{h+1}, v{r+2}, v{r+3}
            """)

    E8 = cexp(8)
    cur, nxt = W0, W1
    for c in range(16):
        if c < 15:
            cmul(nxt, cur, E8, conj=True)
        put(0, c, cur)
        cur, nxt = nxt, cur
    E1 = cexp(1)
    Q1 = cexp(128)
    Q8 = cexp(1024)
    P = {}
    P[1] = ra(4)
    scale(P[1], E1)
    for j in range(2, 8):
        P[j] = ra(6 if j == 4 else 4)
        cmul(P[j], P[j - 1], E1)
    put(1, 0, None)
    for j in range(1, 8):
        put(1, j, P[j])
    scale(W0, Q1)
    put(1, 8, W0)
    for j in range(1, 8):
        cmul(W0, P[j], Q1)
        put(1, 8 + j, W0)
    Q = {1: Q1, 8: Q8}
    for j in range(2, 8):
        Q[j] = {2: E1, 3: PP + 4}[j] if j < 4 else P[2 * (j - 4) + 1]
        cmul(Q[j], Q[j - 1], Q1)
    neg(P[4]); neg(Q[2]); neg(Q[3])
    for qi, j in enumerate((2, 3)):
        scale(W0, Q[j])
        put(2, 4 * qi, W0)
        for r in range(1, 4):
            cmul(W0, P[2 * r], Q[j])
            put(2, 4 * qi + r, W0)
    for aa in range(4):
        scale(W0, Q[4 + aa])
        put(2, 8 + 2 * aa, W0)
        cmul(W0, Q[4 + aa], P[4])
        put(2, 8 + 2 * aa + 1, W0)
    QS = E8
    scale(QS, Q8)
    neg(QS)
    put(3, 0, QS)
    for j in range(1, 8):
        cmul(W0, Q[j], QS)
        put(3, j, W0)
    cmul(W0, Q8, QS)
    put(3, 8, W0)
    for i in range(12):
        a(f"v_mul_f32 v{LP+i}, v{SIG}, v{LP+i}")
    for i in range(12):
        a(f"v_exp_f32 v{LP+i}, v{LP+i}")

    a = ph2
    YF = CH0
    AC = CH0 + 32
    assert AC + 12 <= ra.p

    def wr(batch, nrows):
        for row in range(nrows):
            a(f"ds_write_b64 v{WR+(row&7)}, {v(VB[batch]+2*row,2)} offset:{(row>>3)*128}")

    def fetch(F):
        for ks in range(8):
            a(f"ds_read_b128 {v(F+4*ks,4)}, v{RD+(ks&1)} offset:{(ks>>1)*2048}")

    def mfmas(tile, XF):
        for ks in range(8):
            c = "0" if ks == 0 else v(AC + 4 * tile, 4)
            a(f"v_mfma_f32_16x16x32_f16 {v(AC+4*tile,4)}, {v(XF+4*ks,4)}, {v(YF+4*ks,4)}, {c}")

    a(f"v_mov_b32 v{t2}, 0")
    a(nonce_ld(t3, t2))
    wr(0, 16); fetch(YF)
    wr(1, 16); fetch(VB[0])
    wr(2, 16); fetch(VB[1])
    a("s_waitcnt lgkmcnt(15)")
    mf0 = len(a.L)
    wr(3, 9); fetch(VB[2])
    tail = a.L[mf0:]
    del a.L[mf0:]
    m = Asm()
    sv, a = a, m
    mfmas(0, VB[0])
    a = sv
    for i in range(8):
        a.ext(tail[2 * i:2 * i + 2])
        a(m.L[i])
    a.ext(tail[16:])
    a("s_waitcnt lgkmcnt(15)")
    mfmas(1, VB[1])
    a("s_waitcnt lgkmcnt(0)")
    mfmas(2, VB[2])
    a("s_nop 3")
    for i in range(12):
        a(f"v_mul_f32 v{AC+i}, v{AC+i}, v{LP+i}")
    for i in range(12):
        a(f"v_ldexp_f32 v{AC+i}, v{AC+i}, v{CE}")
    a(f"ds_write_b128 v{TA0}, {v(AC,4)}")
    a(f"ds_write_b64 v{TA1}, {v(AC+4,2)}")
    a(f"ds_write_b64 v{TA2}, {v(AC+6,2)}")
    for r in range(4):
        a(f"ds_write_b32 v{TA3}, v{AC+8+r} offset:{2048+64*r}")
    G0 = VB[0]
    OUT = VB[1]
    for i in range(8):
        a(f"ds_read_b32 v{G0+i}, v{EX+i}")
    a(f"""
    ds_read_b64 {v(G0+8,2)}, v{EX+8} offset:1536
    ds_read_b32 v{G0+10}, v{EX+8} offset:1544
    ds_read2_b32 {v(G0+12,2)}, v{EX+9} offset0:0 offset1:1
    ds_read2_b32 {v(G0+14,2)}, v{EX+9} offset0:64 offset1:65
    v_lshlrev_b32 v{t0}, 4, v0
    v_add_u32 v{t0}, s70, v{t0}
    v_and_b32 v{t1}, 3, v0
    v_lshlrev_b32 v{t1}, 4, v{t1}
    v_add_u32 v{t1}, s70, v{t1}
    v_mov_b32 v{OUT+16}, 0
    v_mov_b32 v{OUT+17}, 0
    v_mov_b32 v{OUT+18}, 0
    v_mov_b32 v{OUT+19}, 0
    s_mov_b32 s72, 0xaaaaaaaa
    s_mov_b32 s73, 0xaaaaaaaa
    ds_write_b128 v{t1}, {v(OUT+16,4)} offset:{KARR}
    s_waitcnt lgkmcnt(0)
    """)
    for k in range(4):
        a(f"v_cvt_pk_bf16_f32 v{OUT+k}, v{G0+2*k}, v{G0+2*k+1}")
    a(f"""
    v_cvt_pk_bf16_f32 v{OUT+4}, v{G0+8}, v{G0+8}
    v_cvt_pk_bf16_f32 v{OUT+5}, v{G0+8}, v{G0+9}
    v_cvt_pk_bf16_f32 v{OUT+6}, v{G0+9}, v{G0+9}
    v_cvt_pk_bf16_f32 v{OUT+7}, v{G0+10}, v{G0+10}
    """)
    for it in (2, 3):
        T0, T1 = G0 + 8 + 2 * it, G0 + 9 + 2 * it
        o = OUT + 4 * it
        a(f"""
        v_cndmask_b32 v{t2}, v{T0}, v{T1}, s[72:73]
        v_cvt_pk_bf16_f32 v{o}, v{T0}, v{T0}
        v_cvt_pk_bf16_f32 v{o+1}, v{T0}, v{T0}
        v_cvt_pk_bf16_f32 v{o+2}, v{t2}, v{T1}
        v_cvt_pk_bf16_f32 v{o+3}, v{T1}, v{T1}
        """)
    a(f"v_mov_b32 v{t2}, 0")
    for it in range(4):
        a(f"ds_write_b128 v{t0}, {v(OUT+4*it,4)} offset:{KARR+64+1024*it}")
    if OPT.get("dbgk"):
        a(f"""
        s_lshl_b32 s72, s69, 12
        s_add_u32 s72, s72, {KX_OFF}
        v_lshlrev_b32 v{t0}, 4, v0
        """)
        for it in range(4):
            a(f"buffer_store_dwordx4 {v(OUT+4*it,4)}, v{t0}, {sr(SRD_WS)}, s72 offen offset:{1024*it}")
    a("s_waitcnt vmcnt(0) lgkmcnt(0)")
    a.ext(plain(nonce_get(f"NK{sfx}", t3, t2)))

    out = list(pre.L)
    out.extend(stamp(1))
    kx = OPT.get("kx", 0)
    if kx == 1:
        ph2.L = []
    elif kx == 2:
        ph2.L = [x for x in ph2.L if not x.startswith("v_mfma")]
    elif kx == 3:
        ph2.L = [x for x in ph2.L if not x.startswith("ds_write")]
    elif kx == 4:
        ph2.L = [x for x in ph2.L if not x.startswith("ds_read")]
    elif kx == 5:
        L2 = []
        for x in ph2.L:
            L2.append(x)
            if x.startswith("ds_write_b64"):
                L2.append("s_nop 3")
        ph2.L = L2
    if gemm_wg:
        per = OPT.get("kper", 125)
        first = OPT.get("kfirst", 100)
        p2a = OPT.get("kp2a", 48)
        p2b = OPT.get("kp2b", 100)
        pos = min(first, len(main.L))
        out.extend(main.L[:pos])
        for sidx in range(9):
            out.extend(bstamp(2, 1 + sidx))
            out.append("s_barrier")
            if sidx < 6:
                end = len(main.L) if sidx == 5 else min(pos + per, len(main.L))
                out.extend(main.L[pos:end])
                pos = end
            elif sidx == 6:
                out.extend(ph2.L[:p2a])
            elif sidx == 7:
                out.extend(ph2.L[p2a:p2b])
            else:
                out.extend(ph2.L[p2b:])
        out.extend(stamp(2))
        out.append("s_barrier")
    else:
        out.extend(main.L)
        out.extend(ph2.L)
        out.append("s_barrier")
        out.extend(stamp(2))
        out.append("s_barrier")
    out.append("s_mov_b32 s6, s68")
    out.append("s_branch L_CONVB")
    return out


def lwave(gemm_wg):
    sfx = "G" if gemm_wg else "S"
    a = Asm()
    XV, WV, VL, VC = 8, 12, 2, 16
    t0, t1, t2 = 3, 4, 5
    DUM = 24
    ROT = OPT.get("rot", 0)
    SW = 12
    a(f"""
    s_setprio 3
    s_sub_u32 s6, s{S_WIDX}, 4
    """)

    def kofs(st):
        if not ROT:
            return []
        return [f"s_add_u32 s18, s{S_PHI}, {st}", "s_and_b32 s18, s18, 7", f"s_mul_i32 s19, s18, {64*3584}",
                "s_lshl_b32 s18, s18, 7"]

    def grp(st, g):
        sl = st % 3
        if g in (1, 5):
            j = 0 if g == 1 else 1
            L = [f"s_add_u32 m0, s{10+j}, {sl*SLOT}", f"s_add_u32 s22, s{8+j}, {'s18' if ROT else st*128}"]
            L += [f"buffer_load_dwordx4 v{XV+i}, {sr(SRD_X)}, s22 offen offset:{1024*i} lds" for i in range(4)]
        else:
            j = 0 if g == 0 else g - 1
            L = [f"s_add_u32 m0, s{72+j}, {sl*SLOT}", f"s_add_u32 s22, s{68+j}, {'s19' if ROT else st*64*3584}"]
            L += [f"buffer_load_dwordx4 v{WV+i}, {sr(SW)}, s22 offen offset:{1024*i} lds" for i in range(4)]
        return L

    def pref(st):
        L = [f"s_add_u32 s22, s68, {st*64*3584}"]
        L += [f"buffer_load_dwordx4 {v(DUM+4*i,4)}, v{WV+i}, {sr(SW)}, s22 offen offset:{1024*i}" for i in range(4)]
        L += [f"s_add_u32 s22, s23, {st*128}"]
        L += [f"buffer_load_dwordx4 {v(DUM+16+4*i,4)}, v{XV+i}, {sr(SRD_X)}, s22 offen offset:{1024*i}" for i in range(2)]
        return L

    fu_ld = [f"buffer_load_dwordx2 v[{VC}:{VC+1}], v{t1}, {sr(SRD_WS)}, s16 offen sc1"]
    fu_chk = [f"v_cmp_eq_u32 vcc, s{S_NONCE}, v{VC}", f"v_cmp_eq_u32 s[18:19], s{S_NONCE}, v{VC+1}", "s_nop 3",
              "s_and_b64 vcc, vcc, s[18:19]", "s_cmp_eq_u64 vcc, exec"]

    def poll_setup():
        a(f"""
        s_lshl_b32 s7, s2, 1
        s_add_u32 s7, s7, s6
        v_lshlrev_b32 v{VL}, 4, v0
        v_mov_b32 v{t0}, 0
        v_lshrrev_b32 v{t1}, 1, v0
        v_lshlrev_b32 v{t1}, 7, v{t1}
        v_and_b32 v{t2}, 1, v0
        v_lshl_add_u32 v{t1}, v{t2}, 3, v{t1}
        s_mov_b32 s16, {FU_OFF}
        s_mov_b32 s77, 0x100000
        """)

    STG = 24
    assert STG + 16 * n1() <= 256

    def wd_setup():
        a(f"""
        v_lshrrev_b32 v20, 3, v0
        v_and_b32 v21, 7, v0
        v_lshrrev_b32 v22, 1, v20
        v_and_b32 v22, 1, v22
        v_lshlrev_b32 v22, 2, v22
        v_xor_b32 v21, v21, v22
        v_lshlrev_b32 v18, 10, v20
        v_lshl_add_u32 v18, v21, 4, v18
        v_add_u32 v19, 8192, v18
        s_and_b32 s17, s{S_IDX}, 7
        s_lshl_b32 s17, s17, 7
        s_mul_i32 s3, s6, {56*16384}
        s_add_u32 s3, s3, s17
        s_lshl_b32 s17, s6, 16
        v_add_u32 v7, s17, v{VL}
        """)
        a(rot_scalar(76, 17))

    wpos = [0]

    def wd_ld(n):
        for _ in range(n):
            i = wpos[0]
            if i >= n1():
                break
            wpos[0] += 1
            R = STG + 16 * i
            a(f"""
            s_lshl_b32 s22, s76, 14
            s_add_u32 s22, s22, s3
            buffer_load_dwordx4 {v(R,4)}, v18, {sr(SRD_WD)}, s22 offen
            s_add_u32 s17, s22, {28*16384}
            buffer_load_dwordx4 {v(R+4,4)}, v19, {sr(SRD_WD)}, s22 offen
            s_add_u32 s76, s76, 1
            buffer_load_dwordx4 {v(R+8,4)}, v18, {sr(SRD_WD)}, s17 offen
            s_cmp_ge_u32 s76, 28
            s_cselect_b32 s76, 0, s76
            buffer_load_dwordx4 {v(R+12,4)}, v19, {sr(SRD_WD)}, s17 offen
            """)
            a.tag(f"wd{i}")

    wwp = [0]

    def wd_wr(n):
        for i in range(wwp[0], min(n1(), wwp[0] + n)):
            wwp[0] = i + 1
            R = STG + 16 * i
            a.wait(f"wd{i}")
            for k in range(4):
                a(f"ds_write_b128 v7, {v(R+4*k,4)} offset:{(k>>1)*RING2 + i*2048 + (k&1)*1024}")

    def u_load():
        a(f"""
        s_mul_i32 s18, s6, {USZ}
        s_add_u32 s18, s18, {U_BASE}
        s_lshl_b32 s17, s7, 12
        s_add_u32 s17, s17, {UT_OFF}
        v_mov_b32 v20, 0
        v_mov_b32 v21, 0
        v_mov_b32 v22, 0
        v_mov_b32 v23, 0
        v_and_b32 v{t2}, 7, v0
        v_lshrrev_b32 v6, 3, v0
        v_and_b32 v6, 3, v6
        v_min_u32 v{t2}, 6, v{t2}
        v_mul_u32_u24 v6, {UPITCH}, v6
        v_lshl_add_u32 v{t2}, v{t2}, 4, v6
        v_add_u32 v{t2}, s18, v{t2}
        ds_write_b128 v{t2}, v[20:23]
        """)
        for r in range(4):
            a(f"""
            s_add_u32 m0, s18, {r*UPITCH + 112}
            s_nop 0
            buffer_load_dwordx4 v{VL}, {sr(SRD_WS)}, s17 offen sc1 lds
            s_add_u32 s17, s17, 1024
            """)

    GLR = 8

    def gl_load():
        a(f"""
        s_lshl_b32 s17, s{S_XCD}, 2
        s_lshr_b32 s22, s{S_IDX}, 3
        s_add_u32 s17, s17, s22
        s_lshl_b32 s17, s17, 6
        s_add_u32 s17, s17, {GL_OFF}
        v_and_b32 v{t0}, 3, v0
        v_lshrrev_b32 v{t1}, 2, v0
        v_lshlrev_b32 v{t1}, 2, v{t1}
        v_lshl_add_u32 v{t1}, v{t0}, 11, v{t1}
        """)
        for g in range(8):
            a(f"buffer_load_dword v{GLR+g}, v{t1}, {sr(SRD_WS)}, s17 offen sc1")
            if g < 7:
                a("s_add_u32 s17, s17, 8192")
        a.tag("gl")

    def gl_finish():
        E = GLR
        a.wait("gl")
        a(f"""
        v_add_f32 v{E}, v{E}, v{E+1}
        v_add_f32 v{E+2}, v{E+2}, v{E+3}
        v_add_f32 v{E+4}, v{E+4}, v{E+5}
        v_add_f32 v{E+6}, v{E+6}, v{E+7}
        v_add_f32 v{E}, v{E}, v{E+2}
        v_add_f32 v{E+4}, v{E+4}, v{E+6}
        v_add_f32 v{E}, v{E}, v{E+4}
        v_cvt_pk_bf16_f32 v{E}, v{E}, v{E}
        v_lshlrev_b32 v{E}, 16, v{E}
        v_mul_f32 v{E}, {f32(-LOG2E)}, v{E}
        v_exp_f32 v{E}, v{E}
        v_lshlrev_b32 v{t0}, 2, v0
        v_add_f32 v{E}, 1.0, v{E}
        v_rcp_f32 v{E}, v{E}
        v_add_u32 v{t0}, {G_LDS}, v{t0}
        v_cvt_pk_bf16_f32 v{E}, v{E}, v{E}
        v_lshlrev_b32 v{E}, 16, v{E}
        ds_write_b32 v{t0}, v{E}
        """)

    if gemm_wg:
        a(f"""
        v_lshrrev_b32 v{t0}, 4, v0
        v_and_b32 v{t1}, 15, v0
        v_lshlrev_b32 v{t2}, 2, v{t0}
        v_xor_b32 v{t1}, v{t1}, v{t2}
        v_mul_u32_u24 v{t0}, 3584, v{t0}
        v_lshl_add_u32 v{WV}, v{t1}, 4, v{t0}
        """)
        for i in range(1, 4):
            a(f"v_add_u32 v{WV+i}, {(4*3584-1024)*i}, v{WV}")
        a(f"""
        s_cmp_eq_u32 s6, 0
        s_cselect_b32 s{SW}, s{SRD_WG}, s{SRD_WU}
        s_cselect_b32 s{SW+1}, s{SRD_WG+1}, s{SRD_WU+1}
        s_mov_b32 s{SW+2}, {512*1792*2}
        s_mov_b32 s{SW+3}, 0x00020000
        s_and_b32 s22, s68, 3
        s_mov_b32 s19, s69
        s_lshl_b32 s23, s{S_CB}, 8
        s_lshl_b32 s16, s6, 14
        s_add_u32 s16, s16, 16384
        """)
        for j in range(4):
            a(f"""
            s_add_u32 s17, s22, {j}
            s_and_b32 s17, s17, 3
            s_mul_i32 s{68+j}, s17, {16*3584}
            s_add_u32 s{68+j}, s{68+j}, s23
            s_lshl_b32 s{72+j}, s17, 12
            s_add_u32 s{72+j}, s{72+j}, s16
            """)
        a(f"""
        v_lshrrev_b32 v{t0}, 3, v0
        v_and_b32 v{t1}, 7, v0
        v_lshrrev_b32 v{t2}, 1, v{t0}
        v_xor_b32 v{t1}, v{t1}, v{t2}
        v_lshlrev_b32 v{t0}, 10, v{t0}
        """)
        for i in range(4):
            a(f"""
            v_xor_b32 v{t2}, {4*(i&1)}, v{t1}
            v_lshl_add_u32 v{XV+i}, v{t2}, 4, v{t0}
            v_add_u32 v{XV+i}, {7168*i}, v{XV+i}
            """)
        a(f"""
        s_mov_b32 s22, s19
        s_and_b32 s17, s22, 1
        s_lshl_b32 s17, s17, 1
        s_add_u32 s17, s17, s6
        s_lshl_b32 s16, s{S_RB}, 17
        s_lshl_b32 s8, s17, 15
        s_add_u32 s8, s8, s16
        s_lshl_b32 s10, s17, 12
        s_xor_b32 s17, s17, 2
        s_lshl_b32 s9, s17, 15
        s_add_u32 s9, s9, s16
        s_lshl_b32 s11, s17, 12
        s_lshl_b32 s22, s22, 1
        s_add_u32 s22, s22, s6
        s_and_b32 s22, s22, 7
        s_lshl_b32 s23, s22, 14
        s_add_u32 s23, s23, s16
        """)
        tail = {3: "S5 R5", 4: "S6 R6", 5: "S7 R7"}
        scheds = [
            {-1: "S0 S1 S2 R0 P3 P4", 0: "R1 P5 P6", 1: "R2 P7 S3", 2: "R3 S4 R4"},
            {-1: "S0 S1 S2 R0 R1", 0: "P3 P4 R2", 1: "P5 P6 P7 S3 R3", 2: "S4 R4"},
            {-1: "S0 R0 S1 R1", 0: "S2 R2", 1: "S3 R3", 2: "S4 R4"},
            {-1: "S0 R0 S1", 0: "R1 S2", 1: "R2 S3", 2: "R3 S4 R4"},
            {-1: "S0 R0 S1 S2 P3", 0: "R1 P4 P5", 1: "R2 P6 P7 S3", 2: "R3 S4 R4"},
            {-1: "S0 R0 S1 S2", 0: "R1 R2", 1: "S3 R3", 2: "S4 R4"},
            {-1: "S0 R0 S1 S2", 0: "R1 R2", 1: "S3 R3 P5", 2: "S4 R4 P6 P7"},
            {-1: "S0 R0 S1 S2", 0: "R1 R2 P3", 1: "S3 R3 P4 P5", 2: "S4 R4 P6 P7"},
        ]
        sched = dict(scheds[OPT.get("lsched", 7)])
        sched.update(tail)

        def issue(k):
            for tok in sched.get(k, "").split():
                st = int(tok[1:])
                if tok[0] == "S":
                    a.ext(kofs(st) + grp(st, 0) + grp(st, 1))
                elif tok[0] == "R":
                    a.ext(kofs(st))
                    for g in (2, 5, 3, 4):
                        a.ext(grp(st, g))
                    a.tag(f"st{st}")
                elif tok[0] == "P":
                    assert not ROT
                    a.ext(pref(st))
        issue(-1)
        a.ext(stamp(1))
        poll_setup()
        for sidx in range(9):
            if sidx < 8:
                a.wait(f"st{sidx}")
            a.ext(bstamp(2, 1 + sidx))
            a("s_barrier")
            if sidx in (0, 3):
                a.ext(stamp(2 + (0, 3).index(sidx)))
            issue(sidx)
            if sidx == 3:
                wd_setup()
            if 3 <= sidx <= 7:
                wd_ld(OPT.get(f"w{sidx}", {3: 0, 4: 0, 5: 0, 6: 5, 7: 4}[sidx]))
            if sidx == 7:
                a(nonce_ld(6, t0))
                a.ext(fu_ld)
                a.tag("fu")
            if sidx == 8:
                a.ext(stamp(4))
                wd_ld(28)
                wd_wr(4)
                a.wait("fu")
                a.ext(nonce_get(f"NL{sfx}", 6, t0))
                a(f"s_branch PU{sfx}_CHK")
                a.ext(spin(f"PU{sfx}", fu_ld, fu_chk, 16))
                u_load()
                gl_load()
                wd_wr(28)
                gl_finish()
        a("s_waitcnt vmcnt(0) lgkmcnt(0)")
        a.ext(stamp(5))
        a("s_barrier")
    else:
        poll_setup()
        if OPT.get("spf", 0):
            a(f"""
            s_cmp_eq_u32 s6, 0
            s_cselect_b32 s{SW}, s{SRD_WG}, s{SRD_WU}
            s_cselect_b32 s{SW+1}, s{SRD_WG+1}, s{SRD_WU+1}
            s_mov_b32 s{SW+2}, {512*1792*2}
            s_mov_b32 s{SW+3}, 0x00020000
            s_sub_u32 s22, s{S_IDX}, 28
            s_lshl_b32 s22, s22, 3
            s_add_u32 s22, s22, s{S_XCD}
            s_mul_i32 s22, s22, {10*3584}
            s_add_u32 s22, s22, {192*3584}
            """)
            for i in range(35):
                if i % 4 == 0 and i:
                    a("s_add_u32 s22, s22, 4096")
                a(f"buffer_load_dwordx4 {v(DUM+4*(i%4),4)}, v{VL}, {sr(SW)}, s22 offen offset:{1024*(i%4)}")
        wd_setup()
        a("s_barrier")
        a(nonce_ld(6, t0))
        a("s_waitcnt vmcnt(0)")
        a.ext(nonce_get(f"NL{sfx}", 6, t0))
        a.ext(spin(f"PU{sfx}", fu_ld, fu_chk, 32))
        u_load()
        wd_ld(28)
        wd_wr(6)
        gl_load()
        wd_wr(28)
        gl_finish()
        a("s_waitcnt vmcnt(0) lgkmcnt(0)")
        a.ext(stamp(5))
        a("s_barrier")
    a("s_branch L_CONVA")
    return resolve_vm(a.L)


def conv(a0, partB):
    a = Asm()
    KA, UA, YA = 2, 3, 5
    qs, outq = ([5, 6, 7], [6, 7]) if partB else ([0, 1, 2, 3, 4, 5], [0, 1, 2, 3, 4, 5])
    a.ext(stamp(6))
    a(f"""
    s_setprio {OPT.get("cprio", 3)}
    s_lshl_b32 s8, s6, 13
    s_add_u32 s8, s8, {KG_BASE + KARR + 32}
    s_mul_i32 s9, s6, {USZ}
    s_add_u32 s9, s9, {U_BASE + 16}
    v_lshrrev_b32 v6, 2, v0
    v_and_b32 v10, 7, v6
    v_and_b32 v6, 3, v6
    v_and_b32 v7, 3, v0
    v_lshrrev_b32 v8, 4, v0
    v_and_b32 v8, 1, v8
    v_lshrrev_b32 v9, 5, v0
    v_mul_u32_u24 v{UA}, {UPITCH}, v7
    v_sub_u32 v10, v10, v9
    v_lshl_add_u32 v{UA}, v10, 4, v{UA}
    v_add_u32 v{UA}, s9, v{UA}
    v_lshlrev_b32 v{KA}, 5, v8
    v_lshl_add_u32 v{KA}, v7, 3, v{KA}
    v_lshl_add_u32 v{KA}, v9, 6, v{KA}
    v_lshlrev_b32 v10, 3, v6
    v_sub_u32 v{KA}, v{KA}, v10
    v_add_u32 v{KA}, s8, v{KA}
    """)
    qmax = max(qs)
    nst = 4 * qmax + 4
    NU = 4
    UBUF = 8
    KT = 24
    ACC = KT + 4 * nst
    TMP = ACC + 16 * len(qs)
    assert TMP + 3 * len(qs) + 1 <= 256

    def acc(q):
        return ACC + 16 * qs.index(q)

    need = {}
    for i in range(nst):
        for q in qs:
            s_ = 4 * q + 3 - i
            if s_ >= 0 and s_ not in need:
                need[s_] = i

    def rd(i):
        L = [f"ds_read_b128 {v(UBUF+4*(i%NU),4)}, v{UA} offset:{32*i}"]
        for s_ in sorted(s for s in need if need[s] == i):
            L += [f"ds_read_b64_tr_b16 {v(KT+4*s_,2)}, v{KA} offset:{128*s_+32}",
                  f"ds_read_b64_tr_b16 {v(KT+4*s_+2,2)}, v{KA} offset:{128*s_}"]
        L.append(("LTAG", f"R{i}"))
        return L

    PF = NU - 1
    a.ext(rd(0))
    a.ext(rd(1))
    a(f"""
    v_and_b32 v4, 7, v0
    v_lshrrev_b32 v{YA}, 3, v0
    v_lshlrev_b32 v{YA}, 4, v{YA}
    v_lshl_add_u32 v{YA}, v4, 7, v{YA}
    v_mov_b32 v6, 0
    v_mov_b32 v7, s{S_NONCE}
    s_mov_b32 s12, 0
    s_mov_b32 s13, 0x80000000
    s_mov_b32 s14, 0
    s_mov_b32 s15, 0xc0000000
    s_mov_b32 s16, 0
    s_mov_b32 s17, 0xe0000000
    s_lshl_b32 s7, s2, 1
    s_add_u32 s7, s7, s6
    s_lshl_b32 s18, s7, 12
    s_add_u32 s18, s18, {Y_OFF}
    s_lshl_b32 s19, s2, 4
    s_add_u32 s19, s19, s6
    s_lshl_b32 s19, s19, 3
    s_add_u32 s19, s19, {FY_OFF + (4 if partB else 0)}
    """)

    def Y(q, g, rho):
        return acc(q) + 4 * g + rho

    dpp = "wave_ror:1 row_mask:0xf bank_mask:0xf"
    ctl = "row_mask:0xf bank_mask:0xf"

    def post(q):
        L = []
        Z = {}
        for g in (3, 2, 1, 0):
            for rho in (1, 2, 3):
                Z[g, rho] = TMP + 3 * qs.index(q) + rho - 1 if g == 3 else Y(q, g, rho)
                if g > 0:
                    prev = f"v{Y(q,g-1,rho)}"
                elif q > 0:
                    prev = f"v{Y(q-1,3,rho)}"
                else:
                    prev = "v6"
                L.append(f"v_cndmask_b32 v{Z[g,rho]}, v{Y(q,g,rho)}, {prev}, s[{10+2*rho}:{11+2*rho}]")
        for g in (3, 2, 1, 0):
            L.append(f"v_add_f32_dpp v{Z[g,2]}, v{Z[g,3]}, v{Z[g,2]} {dpp}")
        for g in (3, 2, 1, 0):
            L.append(f"v_add_f32_dpp v{Z[g,1]}, v{Z[g,2]}, v{Z[g,1]} {dpp}")
        for g in (3, 2, 1, 0):
            L.append(f"v_add_f32_dpp v{Y(q,g,0)}, v{Z[g,1]}, v{Y(q,g,0)} {dpp}")
        return L

    def stage(S_, D_, bit, stride):
        m = {0: 0xaaaaaaaa, 1: 0xcccccccc, 2: 0xf0f0f0f0}[bit]
        up = {0: "quad_perm:[1,0,3,2]", 1: "quad_perm:[2,3,0,1]", 2: "row_ror:12"}[bit]
        dn = {0: "quad_perm:[1,0,3,2]", 1: "quad_perm:[2,3,0,1]", 2: "row_ror:4"}[bit]
        L = [f"s_mov_b32 vcc_lo, {m:#x}", f"s_mov_b32 vcc_hi, {m:#x}"]
        idx = [i for i in range(len(S_)) if not (i // stride) & 1]
        L += [f"v_cndmask_b32_dpp v{D_[i+stride]}, v{S_[i]}, v{S_[i+stride]}, vcc {up} {ctl}" for i in idx]
        L += ["s_not_b64 vcc, vcc"]
        L += [f"v_cndmask_b32_dpp v{D_[i]}, v{S_[i+stride]}, v{S_[i]}, vcc {dn} {ctl}" for i in idx]
        return L

    def xpose(q):
        S0 = [Y(q - 1 + (g >> 2), g & 3, 0) for g in range(8)]
        free = [Y(qq, g, r) for qq in (q - 1, q) for g in range(3) for r in (1, 2, 3)]
        D0 = free[:8]
        S1 = free[8:12]
        D1 = free[12:16]
        D2 = [acc(q - 1) + i for i in range(4)]
        L = stage(S0, D0, 0, 1)
        L += [f"v_cvt_pk_bf16_f32 v{S1[g]}, v{D0[2*g]}, v{D0[2*g+1]}" for g in range(4)]
        L += stage(S1, D1, 1, 1)
        L += stage(D1, D2, 2, 2)
        L.append(f"buffer_store_dwordx4 {v(D2[0],4)}, v{YA}, {sr(SRD_WS)}, s18 offen offset:{(q-1)*512} sc1")
        return L

    pend = []
    FILL = OPT.get("cfill", 4)
    since = {}
    issued = 2
    for i in range(nst):
        a.L.append(("LWAIT", f"R{i}"))
        rl = []
        while issued < nst and issued <= i + (2 if i < 2 else PF):
            rl += rd(issued)
            issued += 1
        act = [q for q in qs if 4 * q + 3 - i >= 0]
        per = -(-len(rl) // len(act))
        for q in act:
            s_ = 4 * q + 3 - i
            c = "0" if i == 0 else v(acc(q), 16)
            a(f"v_mfma_f32_32x32x16_bf16 {v(acc(q),16)}, {v(UBUF+4*(i%NU),4)}, {v(KT+4*s_,4)}, {c}")
            a.ext(rl[:per])
            rl = rl[per:]
            if s_ == 0:
                since[q] = len(a.L)
            for qq in list(since):
                if len([x for x in a.L[since[qq]:] if isinstance(x, str)]) >= 14:
                    del since[qq]
                    if qq in outq:
                        pend += post(qq)
                        if (qq - outq[0]) & 1:
                            pend += xpose(qq)
            a.ext(pend[:FILL])
            pend = pend[FILL:]
    a.ext(stamp(7))
    a.ext(pend)
    a("s_nop 7\ns_nop 3")
    for qq in sorted(since):
        if qq in outq:
            a.ext(post(qq))
            if (qq - outq[0]) & 1:
                a.ext(xpose(qq))
    a.ext(stamp(8))
    a(f"""
    s_waitcnt vmcnt(0)
    s_mov_b64 exec, 1
    buffer_store_dword v7, v6, {sr(SRD_WS)}, s19 offen sc1
    """)
    a.ext(stamp_end())
    a0.ext(resolve_lds(a.L))


HEADER = open("cdna_kernels/" + NAME + ".s.ref").read().split("; Override launch")[0]


def main(path):
    a = Asm()
    prologue(a)
    gemm1(a)
    a("L_SPARE:")
    spare(a)
    a("L_GEMM2:")
    gemm2(a)
    a("L_LWAVE:")
    a(f"s_cmp_ge_u32 s{S_IDX}, 28\ns_cbranch_scc1 L_LWAVE_S")
    a.ext(lwave(True))
    a("L_LWAVE_S:")
    a.ext(lwave(False))
    a("L_KWAVE:")
    a(f"s_cmp_ge_u32 s{S_IDX}, 28\ns_cbranch_scc1 L_KWAVE_S")
    a.ext(kwave(True))
    a("L_KWAVE_S:")
    a.ext(kwave(False))
    a("L_CONVA:")
    conv(a, False)
    a("L_CONVB:")
    conv(a, True)
    a("L_END:\ns_endpgm")
    body = "\n".join(("" if ln.endswith(":") or ln.startswith(".") else "    ") + ln for ln in a.L)
    kn = NAME + "_kernel"
    txt = HEADER
    if OPT.get("list"):
        txt += f"; @launch kernel={kn} grid=(256,1,1) block=(512,1,1) lds=163840\n"
    else:
        txt += "; @launch grid=(256,1,1) block=(512,1,1) lds=163840\n"
    txt += '.amdgcn_target "amdgcn-amd-amdhsa--gfx950"\n.text\n'
    txt += f".globl {kn}\n.p2align 8\n.type {kn},@function\n{kn}:\n"
    txt += body + "\n"
    txt += f"""
.section .rodata,"a"
.p2align 6
.amdhsa_kernel {kn}
  .amdhsa_next_free_vgpr 256
  .amdhsa_next_free_sgpr 102
  .amdhsa_accum_offset 256
  .amdhsa_group_segment_fixed_size 0
  .amdhsa_kernarg_size 136
  .amdhsa_user_sgpr_count 2
  .amdhsa_user_sgpr_kernarg_segment_ptr 1
  .amdhsa_system_sgpr_workgroup_id_x 1
.end_amdhsa_kernel
"""
    open(path, "w").write(txt)


if __name__ == "__main__":
    for o in list(sys.argv):
        if o.startswith("--opt="):
            k, _, val = o[6:].partition(":")
            OPT[k] = int(val) if val else 1
            sys.argv.remove(o)
    if "--stamps" in sys.argv:
        STAMPS = True
        sys.argv.remove("--stamps")
    main(sys.argv[1] if len(sys.argv) > 1 else "cdna_kernels/" + NAME + ".s")
```

```python
import sys, struct

NAME = "gated_mix__ssm_conv_s4__swiglu_ffn__prompt"

H_OFF = 0x000000
UT_OFF = 0x800000
KX_OFF = 0xA00000
Y_OFF = 0xC00000
GL_OFF = 0xE00000
FH_OFF = 0xE40000
FY_OFF = 0xE60000
FU_OFF = 0xE68000
ST_OFF = 0xE20000
WS_BYTES = 0x1000000

STAMPS = False
HDL = []
OPT = {}
ST_BASE = 78
NST = 12


def f32(x):
    return "0x%08x" % struct.unpack("<I", struct.pack("<f", x))[0]


LOG2E = 1.4426950408889634
LOG2E_HI = struct.unpack("<f", struct.pack("<f", LOG2E))[0]
LOG2E_LO = LOG2E - LOG2E_HI
LN2 = 0.6931471805599453
INV2PI = 0.15915494309189535


class Asm:
    def __init__(self):
        self.L = []

    def __call__(self, s):
        for line in s.strip().split("\n"):
            line = line.strip()
            if line:
                self.L.append(line)

    def ext(self, lines):
        self.L.extend(lines)

    def tag(self, n):
        self.L.append(("VMTAG", n))

    def wait(self, n):
        self.L.append(("VMWAIT", n))


def v(b, n=1):
    return f"v{b}" if n == 1 else f"v[{b}:{b+n-1}]"


def sr(b):
    return f"s[{b}:{b+3}]"


class RA:
    def __init__(self, start, end):
        self.p = start
        self.end = end

    def __call__(self, n=1, align=1):
        self.p = (self.p + align - 1) // align * align
        r = self.p
        self.p += n
        assert self.p <= self.end, "out of registers"
        return r


def stamp(k, force=False):
    if not STAMPS:
        return []
    assert k < NST
    if OPT.get("dbgbar") and 1 <= k <= 9 and not force:
        return []
    op = "s_memtime" if OPT.get("cyc") else "s_memrealtime"
    return [f"{op} s[{ST_BASE+2*k}:{ST_BASE+2*k+1}]"]


def bstamp(mode, k):
    return stamp(k, True) if OPT.get("dbgbar") == mode else []


def stamp_end():
    if not STAMPS:
        return ["s_endpgm"]
    L = stamp(10) + ["s_waitcnt vmcnt(0)"] + stamp(11)
    L += ["s_waitcnt lgkmcnt(0)", "s_mov_b64 exec, 1", "s_lshl_b32 s74, s2, 3", f"s_add_u32 s74, s74, s{S_WIDX}",
          "s_lshl_b32 s74, s74, 6", f"s_add_u32 s74, s74, {ST_OFF}", "v_mov_b32 v1, 0"]
    for k in range(NST):
        L.append(f"v_mov_b32 v{4+k}, s{ST_BASE+2*k}")
    for k in range(0, NST, 4):
        L.append(f"buffer_store_dwordx4 v[{4+k}:{7+k}], v1, {sr(SRD_WS)}, s74 offen offset:{4*k}")
    if OPT.get("hdbg"):
        lab = f"HD{len(HDL)}"
        HDL.append(lab)
        L += [f"v_not_b32 v20, v4", f"global_atomic_umax v1, v20, s[{S_DBG}:{S_DBG+1}] offset:56",
              f"global_atomic_umax v1, v15, s[{S_DBG}:{S_DBG+1}] offset:60",
              f"s_cmp_lg_u32 s2, {OPT['hdbg']}", f"s_cbranch_scc1 {lab}", f"s_cmp_lg_u32 s{S_WIDX}, 0", f"s_cbranch_scc1 {lab}"]
        words = [1, 2, 3, 4, 5, 6, 7, 9, 10, 11, 12]
        for k in range(1, NST):
            L += [f"v_sub_u32 v20, v{4+k}, v4", f"global_store_dword v1, v20, s[{S_DBG}:{S_DBG+1}] offset:{4*words[k-1]}", "s_nop 1"]
        L += [f"global_store_dword v1, v4, s[{S_DBG}:{S_DBG+1}] offset:52"]
        L.append(f"{lab}:")
    L.append("s_endpgm")
    return L


def is_vmem(line):
    return line.startswith("buffer_") or line.startswith("global_")


def resolve_vm(lines):
    out = []
    count = 0
    tags = {}
    done = -1
    for ln in lines:
        if isinstance(ln, tuple):
            if ln[0] == "VMTAG":
                tags[ln[1]] = count
            elif ln[0] == "VMWAIT":
                if tags[ln[1]] <= done:
                    continue
                n = count - tags[ln[1]]
                assert 0 <= n <= 63, n
                out.append(f"s_waitcnt vmcnt({n})")
                done = tags[ln[1]]
            elif ln[0] == "VMRESET":
                done = count
            elif ln[0] == "NOCOUNT":
                out.append(ln[1])
            else:
                raise ValueError(ln)
        else:
            if is_vmem(ln):
                count += 1
            out.append(ln)
    return out


def resolve_lds(lines):
    out = []
    count = 0
    tags = {}
    for ln in lines:
        if isinstance(ln, tuple):
            if ln[0] == "LTAG":
                tags[ln[1]] = count
            elif ln[0] == "LWAIT":
                out.append(f"s_waitcnt lgkmcnt({min(15, count - tags[ln[1]])})")
            else:
                raise ValueError(ln)
        else:
            if ln.startswith("ds_"):
                count += 1
            out.append(ln)
    return out


SLOT = 49152
KG_BASE = 147456
KARR = 3584
U_BASE = 131072
UPITCH = 1344
USZ = 4 * UPITCH
YB_BASE = U_BASE + 2 * USZ
RING2 = 32768

S_U, S_ARE, S_AIM, S_BRE, S_BIM, S_CRE, S_CIM, S_LDT = 4, 6, 8, 10, 12, 14, 16, 18
S_DS = 20
S_WG, S_WU, S_WD, S_GW = 24, 26, 28, 30
S_OUT, S_DBG, S_WS = 32, 34, 36
S_WIDX, S_XCD, S_IDX, S_RB, S_CB, S_PHI = 38, 39, 40, 41, 42, 43
SRD_X, SRD_WG, SRD_WU, SRD_WS, SRD_WD, SRD_OUT = 44, 48, 52, 56, 60, 64


def srd(a, d, base, nbytes):
    a(f"""
    s_mov_b32 s{d}, s{base}
    s_and_b32 s{d+1}, s{base+1}, 0xffff
    s_mov_b32 s{d+2}, {nbytes}
    s_mov_b32 s{d+3}, 0x00020000
    """)


def mapping(a):
    a(f"""
    s_and_b32 s{S_XCD}, s2, 7
    s_lshr_b32 s{S_IDX}, s2, 3
    """)
    if OPT.get("map", 1) == 0:
        a(f"""
        s_and_b32 s68, s{S_IDX}, 3
        s_lshr_b32 s69, s{S_IDX}, 2
        s_lshr_b32 s{S_RB}, s{S_XCD}, 1
        s_lshl_b32 s{S_RB}, s{S_RB}, 2
        s_add_u32 s{S_RB}, s{S_RB}, s68
        s_and_b32 s{S_CB}, s{S_XCD}, 1
        s_mul_i32 s{S_CB}, s{S_CB}, 7
        s_add_u32 s{S_CB}, s{S_CB}, s69
        s_lshl_b32 s{S_PHI}, s68, 1
        s_add_u32 s{S_PHI}, s{S_PHI}, s69
        s_and_b32 s{S_PHI}, s{S_PHI}, 7
        """)
    else:
        a(f"""
        s_and_b32 s70, s{S_XCD}, 1
        s_lshl_b32 s70, s70, 2
        s_and_b32 s68, s{S_IDX}, 7
        s_lshr_b32 s69, s{S_IDX}, 3
        s_add_u32 s71, s69, s70
        s_add_u32 s72, s68, s70
        s_cmp_ge_u32 s{S_IDX}, 24
        s_cselect_b32 s71, 3, s71
        s_cselect_b32 s68, s72, s68
        s_lshr_b32 s{S_CB}, s{S_XCD}, 1
        s_and_b32 s{S_CB}, s{S_CB}, 1
        s_mul_i32 s{S_CB}, s{S_CB}, 7
        s_add_u32 s{S_CB}, s{S_CB}, s71
        s_lshr_b32 s{S_RB}, s{S_XCD}, 2
        s_lshl_b32 s{S_RB}, s{S_RB}, 3
        s_add_u32 s{S_RB}, s{S_RB}, s68
        s_lshl_b32 s{S_PHI}, s69, 1
        s_add_u32 s{S_PHI}, s{S_PHI}, s68
        s_and_b32 s{S_PHI}, s{S_PHI}, 7
        """)


def prologue(a):
    a("""
    s_cmp_ge_u32 s2, 256
    s_cbranch_scc1 L_END
    """)
    if STAMPS:
        a.ext([f"s_mov_b32 s{ST_BASE+2*k}, 0" for k in range(NST)])
    a.ext(stamp(0))
    a(f"""
    s_load_dwordx2 s[4:5], s[0:1], 0
    s_load_dwordx8 s[24:31], s[0:1], 80
    s_load_dwordx2 s[36:37], s[0:1], 128
    s_load_dwordx4 s[32:35], s[0:1], 112
    s_load_dwordx2 s[20:21], s[0:1], 64
    v_lshrrev_b32 v1, 6, v0
    v_and_b32 v0, 63, v0
    s_nop 0
    v_readfirstlane_b32 s{S_WIDX}, v1
    """)
    mapping(a)
    a(f"""
    s_cmp_ge_u32 s{S_WIDX}, 6
    s_cbranch_scc1 L_KWAVE
    s_cmp_ge_u32 s{S_WIDX}, 4
    s_cbranch_scc1 L_LWAVE
    s_waitcnt lgkmcnt(0)
    """)
    srd(a, SRD_X, S_U, 2048 * 512 * 2)
    srd(a, SRD_WS, S_WS, WS_BYTES)
    srd(a, SRD_WD, S_WD, 1792 * 512 * 2)
    srd(a, SRD_OUT, S_OUT, 2048 * 512 * 2)
    a(f"""
    s_cmp_ge_u32 s{S_IDX}, 28
    s_cbranch_scc1 L_SPARE
    """)


VL16 = 1
XD = 8
(VD0, VD1, DA0, DA1, VEP, VPH, VFL, VG, VY, VYW, VYT, VW1, VW2, VW3, VR1, VR23) = range(112, 128)
YT_BASE = YB_BASE
G_LDS = YB_BASE
N_LDS = YB_BASE + 256
def n1():
    return OPT.get("n1", 14)


def rot_scalar(dst, tmp):
    return f"""
    s_and_b32 s{dst}, s{S_IDX}, 1
    s_lshl_b32 s{dst}, s{dst}, 1
    s_lshr_b32 s{tmp}, s{S_IDX}, 3
    s_add_u32 s{dst}, s{dst}, s{tmp}
    s_and_b32 s{dst}, s{dst}, 3
    s_mul_i32 s{dst}, s{dst}, 7
    """


def gemm2_setup(a):
    a(f"""
    s_lshl_b32 s6, s{S_XCD}, 2
    s_lshr_b32 s13, s{S_IDX}, 3
    s_add_u32 s6, s6, s13
    s_and_b32 s7, s{S_IDX}, 7
    s_lshl_b32 s17, s6, 6
    s_lshr_b32 s23, s{S_WIDX}, 1
    s_lshl_b32 s13, s23, 5
    s_add_u32 s17, s17, s13
    s_lshl_b32 s18, s7, 6
    s_and_b32 s14, s{S_WIDX}, 1
    s_lshl_b32 s13, s14, 5
    s_add_u32 s18, s18, s13
    v_lshrrev_b32 v5, 5, v0
    v_and_b32 v6, 31, v0
    v_add_u32 v6, s17, v6
    v_lshlrev_b32 v7, 4, v5
    v_add_u32 v7, s18, v7
    v_lshlrev_b32 v7, 1, v7
    v_lshl_add_u32 v{VEP}, v6, 10, v7
    s_lshl_b32 s8, s{S_WIDX}, 15
    s_lshl_b32 s9, s6, 1
    s_add_u32 s9, s9, s23
    s_mul_i32 s9, s9, 112
    s_mul_i32 s13, s{S_WIDX}, 28
    s_add_u32 s9, s9, s13
    s_lshl_b32 s9, s9, 10
    s_mul_i32 s22, s23, {224*1024}
    s_sub_u32 s22, {112*1024}, s22
    s_lshl_b32 s10, s13, 14
    s_lshl_b32 s13, s7, 7
    s_add_u32 s10, s10, s13
    """)
    a(rot_scalar(12, 13))
    a(f"""
    s_add_u32 s11, s12, {n1()}
    s_cmp_ge_u32 s11, 28
    s_cselect_b32 s13, 28, 0
    s_sub_u32 s11, s11, s13
    s_lshl_b32 s15, s6, 5
    s_mul_i32 s13, s{S_WIDX}, 7
    s_add_u32 s15, s15, s13
    s_lshl_b32 s15, s15, 7
    s_add_u32 s15, s15, {FH_OFF}
    s_lshl_b32 s13, s7, 2
    s_add_u32 s13, s13, s{S_WIDX}
    s_lshl_b32 s16, s13, 10
    s_add_u32 s16, s16, {FY_OFF}
    s_lshl_b32 s19, s13, 16
    s_lshl_b32 s13, s6, 7
    s_add_u32 s19, s19, s13
    s_add_u32 s19, s19, {Y_OFF}
    v_lshlrev_b32 v{VL16}, 4, v0
    v_lshrrev_b32 v2, 3, v0
    v_and_b32 v3, 7, v0
    v_lshlrev_b32 v{VY}, 12, v2
    v_lshl_add_u32 v{VY}, v3, 4, v{VY}
    v_lshrrev_b32 v4, 1, v2
    v_and_b32 v4, 1, v4
    v_lshlrev_b32 v4, 2, v4
    v_xor_b32 v3, v3, v4
    v_lshlrev_b32 v{VD0}, 10, v2
    v_lshl_add_u32 v{VD0}, v3, 4, v{VD0}
    v_add_u32 v{VD1}, {8192-1024}, v{VD0}
    v_lshlrev_b32 v{VYW}, 7, v2
    v_lshl_add_u32 v{VYW}, v3, 4, v{VYW}
    v_add_u32 v{VYW}, s8, v{VYW}
    v_lshrrev_b32 v2, 2, v0
    v_and_b32 v2, 3, v2
    v_and_b32 v3, 3, v0
    v_lshrrev_b32 v4, 4, v0
    v_and_b32 v4, 1, v4
    v_lshl_add_u32 v6, v5, 2, v2
    v_lshlrev_b32 v6, 7, v6
    v_and_b32 v7, 1, v3
    v_lshl_add_u32 v6, v7, 5, v6
    v_lshl_add_u32 v6, v4, 4, v6
    v_lshrrev_b32 v7, 1, v3
    v_lshl_add_u32 v6, v7, 3, v6
    v_add_u32 v6, s8, v6
    v_lshrrev_b32 v7, 1, v2
    v_xor_b32 v7, s14, v7
    v_lshl_add_u32 v{DA0}, v7, 6, v6
    v_xor_b32 v7, 1, v7
    v_lshl_add_u32 v{DA1}, v7, 6, v6
    s_lshl_b32 s13, s14, 1
    v_add_u32 v6, s13, v5
    v_lshlrev_b32 v{VYT}, 15, v6
    v_lshl_add_u32 v{VYT}, v2, 7, v{VYT}
    v_lshrrev_b32 v7, 1, v2
    v_xor_b32 v7, s23, v7
    v_lshl_add_u32 v{VYT}, v7, 6, v{VYT}
    v_lshl_add_u32 v{VYT}, v4, 5, v{VYT}
    v_lshl_add_u32 v{VYT}, v3, 3, v{VYT}
    v_min_u32 v{VPH}, 6, v0
    v_lshlrev_b32 v{VPH}, 7, v{VPH}
    v_lshrrev_b32 v2, 2, v0
    v_and_b32 v2, 7, v2
    v_lshlrev_b32 v{VFL}, 7, v2
    v_lshl_add_u32 v{VFL}, v3, 2, v{VFL}
    v_and_b32 v{VG}, 31, v0
    s_lshl_b32 s13, s23, 5
    v_add_u32 v{VG}, s13, v{VG}
    v_lshlrev_b32 v{VG}, 2, v{VG}
    v_add_u32 v{VG}, {G_LDS}, v{VG}
    v_add_u32 v{VW1}, s8, v{VL16}
    s_xor_b32 s13, s{S_WIDX}, 1
    s_lshl_b32 s13, s13, 15
    v_add_u32 v{VR1}, s13, v{VL16}
    s_xor_b32 s13, s{S_WIDX}, 2
    s_lshl_b32 s13, s13, 15
    v_add_u32 v{VW2}, s13, v{VL16}
    s_xor_b32 s13, s{S_WIDX}, 3
    s_lshl_b32 s13, s13, 15
    v_add_u32 v{VW3}, s13, v{VL16}
    """)


def gemm1(a):
    XA = 16
    WA = 28
    BUFS = [64, 88, 40]
    ACC = 128

    def acc(mat, t, tt):
        return ACC + 16 * (mat * 4 + t * 2 + tt)

    def wf(b, mat, t):
        return BUFS[b] + 4 * (mat * 2 + t)

    def xf(b, tt):
        return BUFS[b] + 16 + 4 * tt

    pt = OPT.get("pt", 0)
    if pt:
        gran = {1: 21, 2: 18, 3: 16}[pt]
        a(f"""
        s_cmp_lg_u32 s{S_WIDX}, 0
        s_cbranch_scc1 L_NOTOUCH
        v_lshlrev_b32 v2, {gran}, v0
        v_mov_b32 v3, 0
        """)
        for i in range(max(1, (16 << 20) >> (gran + 6))):
            a(f"s_mov_b32 s13, {i << (gran + 6)}")
            a(f"buffer_load_dword v64, v2, {sr(SRD_WS)}, s13 offen")
        a(f"""
        buffer_load_dword v65, v2, {sr(SRD_OUT)}, 0 offen
        buffer_load_dword v66, v2, {sr(SRD_WD)}, 0 offen
        global_load_dword v67, v3, s[{S_DS}:{S_DS+1}]
        global_load_dword v68, v3, s[{S_DBG}:{S_DBG+1}] offset:128
        s_waitcnt vmcnt(0)
        L_NOTOUCH:
        """)
    gemm2_setup(a)
    a(f"""
    s_lshr_b32 s68, s{S_WIDX}, 1
    s_and_b32 s69, s{S_WIDX}, 1
    v_and_b32 v7, 31, v0
    v_lshrrev_b32 v2, 5, v0
    v_lshrrev_b32 v3, 1, v0
    v_and_b32 v3, 7, v3
    s_lshl_b32 s70, s68, 13
    v_lshlrev_b32 v4, 7, v7
    v_add_u32 v4, s70, v4
    """)
    for ks in range(4):
        a(f"""
        v_add_u32 v5, {2*ks}, v2
        v_xor_b32 v5, v5, v3
        v_lshl_add_u32 v{XA+ks}, v5, 4, v4
        """)
    a(f"""
    v_lshrrev_b32 v7, 2, v0
    v_and_b32 v7, 3, v7
    v_and_b32 v3, 3, v0
    v_lshrrev_b32 v4, 4, v0
    v_and_b32 v4, 1, v4
    v_lshl_add_u32 v5, v2, 3, v7
    v_lshlrev_b32 v5, 8, v5
    v_lshl_add_u32 v5, v4, 5, v5
    v_lshl_add_u32 v5, v3, 3, v5
    s_lshl_b32 s70, s69, 1
    """)
    for t in range(2):
        a(f"""
        s_add_u32 s71, s70, {t}
        v_xor_b32 v6, s71, v7
        v_lshl_add_u32 v{WA+t}, v6, 6, v5
        """)
    for sl in (1, 2):
        for ks in range(4):
            a(f"v_add_u32 v{XA+4*sl+ks}, {sl*SLOT}, v{XA+ks}")
        for t in range(2):
            a(f"v_add_u32 v{WA+2*sl+t}, {sl*SLOT}, v{WA+t}")
    a(f"""
    s_lshl_b32 s70, s{S_RB}, 2
    s_lshl_b32 s71, s68, 1
    s_add_u32 s70, s70, s71
    s_mul_i32 s70, s70, 112
    s_lshl_b32 s71, s{S_CB}, 3
    s_add_u32 s70, s70, s71
    s_lshl_b32 s71, s69, 2
    s_add_u32 s70, s70, s71
    s_lshl_b32 s70, s70, 10
    s_add_u32 s71, s70, {112*1024}
    s_lshl_b32 s3, s{S_RB}, 1
    s_add_u32 s3, s3, s68
    s_lshl_b32 s3, s3, 5
    s_lshl_b32 s72, s{S_CB}, 1
    s_add_u32 s3, s3, s72
    s_add_u32 s3, s3, s69
    s_lshl_b32 s3, s3, 7
    s_add_u32 s3, s3, {FH_OFF}
    s_mov_b32 s72, {f32(-LOG2E)}
    s_mov_b32 s73, {f32(-LOG2E)}
    """)

    def reads(n):
        st, ks = n >> 2, n & 3
        sl = st % 3
        b = n % 3
        r = []
        r.append(f"ds_read_b128 {v(xf(b,0),4)}, v{XA+4*sl+ks}")
        for mat in range(2):
            for t in range(2):
                for h2 in range(2):
                    off = 16384 * (1 + mat) + ks * 4096 + h2 * 1024
                    r.append(f"ds_read_b64_tr_b16 {v(wf(b,mat,t)+2*h2,2)}, v{WA+2*sl+t} offset:{off}")
                if mat == 0 and t == 0:
                    r.append(f"ds_read_b128 {v(xf(b,1),4)}, v{XA+4*sl+ks} offset:4096")
        return r

    T = 16

    def epi(p):
        t, tt = p >> 1, p & 1
        G, U = acc(0, t, tt), acc(1, t, tt)
        o = 32 + 8 * p
        L = []
        for h in range(2):
            R = range(8 * h, 8 * h + 8)
            L += [f"v_pk_mul_f32 {v(T+i,2)}, {v(G+i,2)}, s[72:73]" for i in R[::2]]
            for i in R[::2]:
                L += [f"v_exp_f32 v{T+i}, v{T+i}", f"v_exp_f32 v{T+i+1}, v{T+i+1}",
                      f"v_pk_mul_f32 {v(U+i,2)}, {v(G+i,2)}, {v(U+i,2)}"]
            L += [f"v_pk_add_f32 {v(T+i,2)}, {v(T+i,2)}, 1.0 op_sel_hi:[1,0]" for i in R[::2]]
            L += [f"v_rcp_f32 v{T+i}, v{T+i}" for i in R]
            L += [f"v_pk_mul_f32 {v(U+i,2)}, {v(U+i,2)}, {v(T+i,2)}" for i in R[::2]]
            for i in range(4):
                L.append(f"v_cvt_pk_bf16_f32 v{o+4*h+i}, v{U+8*h+2*i}, v{U+8*h+2*i+1}")
            L.append(f"buffer_store_dwordx4 {v(o+4*h,4)}, v{VL16}, {sr(SRD_WS)}, s{70+tt} offen offset:{t*2048+1024*h} sc1")
        return L

    a("s_barrier")
    a.ext(stamp(1))
    a.ext(bstamp(2, 1))
    a.ext(reads(0))
    a.ext(reads(1))
    extra = []
    XL = OPT.get("xl", 13)
    for n in range(32):
        b = n % 3
        if (n & 3) == 2:
            a("s_waitcnt lgkmcnt(0)")
            a.ext(bstamp(2, 2 + (n >> 2)))
            a("s_barrier")
            if n == 22:
                a.ext(stamp(2))
        elif (n & 3) != 3:
            a("s_waitcnt lgkmcnt(10)")
        rd = reads(n + 2) if n + 2 < 32 else []
        mf = []
        for t in range(2):
            for tt in range(2):
                for mat in range(2):
                    c = "0" if n == 0 else v(acc(mat, t, tt), 16)
                    mf.append(f"v_mfma_f32_32x32x16_bf16 {v(acc(mat,t,tt),16)}, {v(wf(b,mat,t),4)}, {v(xf(b,tt),4)}, {c}")
        if n == 30:
            extra = [f"v_mov_b32 v2, {N_LDS}", "ds_read_b32 v3, v2"]
        for i, m in enumerate(mf):
            a(m)
            a.ext(rd[2 * i:2 * i + 2])
            if i >= 4:
                a.ext(extra[:3])
                extra = extra[3:]
    assert not extra
    a.ext(stamp(3))
    if OPT.get("eprio", 0):
        a(f"s_setprio {OPT['eprio']}")
    a(f"s_waitcnt lgkmcnt(0)\nv_readfirstlane_b32 s{S_NONCE}, v3\ns_nop 5")
    for p in range(4):
        a.ext(epi(p))
    a.ext(stamp(4))
    a("s_branch L_GEMM2")


def spare(a):
    R = 16
    O = 80
    GWv = 112
    SUM = 120
    a(f"""
    s_sub_u32 s68, s{S_IDX}, 28
    s_lshl_b32 s3, s{S_XCD}, 2
    s_add_u32 s3, s3, s68
    s_lshl_b32 s3, s3, 5
    s_add_u32 s3, s3, s{S_WIDX}
    s_lshl_b32 s3, s3, 2
    s_add_u32 s3, s3, {FU_OFF}
    s_lshl_b32 s68, s68, 2
    s_add_u32 s68, s68, s{S_WIDX}
    s_lshr_b32 s69, s68, 1
    s_mov_b32 s74, s{S_XCD}
    v_and_b32 v1, 7, v0
    v_lshrrev_b32 v2, 3, v0
    v_lshlrev_b32 v3, 15, v2
    v_lshl_add_u32 v3, v1, 4, v3
    v_lshlrev_b32 v4, 15, v1
    v_lshl_add_u32 v4, v2, 4, v4
    v_lshlrev_b32 v5, 4, v1
    v_lshlrev_b32 v6, 2, v0
    s_mov_b32 s70, 0x05040100
    s_mov_b32 s71, 0x07060302
    s_lshl_b32 s72, s69, 7
    v_add_u32 v7, s72, v5
    global_load_dwordx4 {v(GWv,4)}, v7, s[{S_GW}:{S_GW+1}]
    """)
    for i in range(2):
        b = 6 + 4 * i
        a(f"""
        s_lshl_b32 s73, s68, 1
        s_add_u32 s73, s73, {i}
        s_and_b32 s73, s73, 3
        s_lshl_b32 s{b}, s74, 18
        s_lshl_b32 s75, s73, 10
        s_add_u32 s{b}, s{b}, s75
        s_add_u32 s{b}, s{b}, s72
        s_lshl_b32 s{b+1}, s69, 18
        s_add_u32 s{b+1}, s{b+1}, s75
        s_lshl_b32 s75, s74, 7
        s_add_u32 s{b+1}, s{b+1}, s75
        s_add_u32 s{b+1}, s{b+1}, {UT_OFF}
        s_lshl_b32 s{b+2}, s74, 8
        s_lshl_b32 s75, s73, 11
        s_add_u32 s{b+2}, s{b+2}, s75
        s_lshl_b32 s75, s69, 13
        s_add_u32 s{b+2}, s{b+2}, s75
        s_add_u32 s{b+2}, s{b+2}, {GL_OFF}
        """)
        for j in range(8):
            a(f"buffer_load_dwordx4 {v(R+32*i+4*j,4)}, v3, {sr(SRD_X)}, s{b} offen")
            if j < 7:
                a(f"s_add_u32 s{b}, s{b}, 4096")
    for i in range(2):
        b = 6 + 4 * i
        a(f"s_waitcnt vmcnt({8 if i == 0 else 9})")
        Ri = R + 32 * i
        for e in range(8):
            for jj in range(4):
                sel = 71 if (e & 1) else 70
                a(f"v_perm_b32 v{O+4*e+jj}, v{Ri+4*(2*jj+1)+(e>>1)}, v{Ri+4*(2*jj)+(e>>1)}, s{sel}")
            a(f"buffer_store_dwordx4 {v(O+4*e,4)}, v4, {sr(SRD_WS)}, s{b+1} offen sc1")
            if e < 7:
                a(f"s_add_u32 s{b+1}, s{b+1}, 4096")
        for j in range(8):
            a(f"v_mov_b32 v{SUM+j}, 0")
        for q in range(4):
            for j in range(8):
                a(f"v_dot2c_f32_bf16 v{SUM+j}, v{Ri+4*j+q}, v{GWv+q}")
        a("s_nop 3")
        for ctl in ("quad_perm:[1,0,3,2]", "quad_perm:[2,3,0,1]", "row_half_mirror"):
            for j in range(8):
                a(f"v_add_f32_dpp v{SUM+j}, v{SUM+j}, v{SUM+j} {ctl} row_mask:0xf bank_mask:0xf")
        for j in range(1, 8):
            a(f"""
            v_cmp_eq_u32 vcc, {j}, v1
            s_nop 1
            v_cndmask_b32 v{SUM}, v{SUM}, v{SUM+j}, vcc
            """)
        a(f"buffer_store_dword v{SUM}, v6, {sr(SRD_WS)}, s{b+2} offen sc1")
        a("s_nop 1")
    a.ext(stamp(1))
    a("v_mov_b32 v2, 0")
    a(nonce_ld(3, 2))
    a("s_waitcnt vmcnt(0)")
    a.ext(plain(nonce_get("NS", 3, 2)))
    a(f"""
    s_mov_b32 s76, s{S_NONCE}
    s_mov_b64 exec, 1
    buffer_store_dword v3, v2, {sr(SRD_WS)}, s3 offen sc1
    s_mov_b64 exec, -1
    s_barrier
    """)
    a.ext(stamp(2))
    gemm2_setup(a)
    a(f"""
    s_lshl_b32 s13, s{S_XCD}, 2
    s_add_u32 s13, s13, s{S_IDX}
    s_sub_u32 s13, s13, 28
    s_lshl_b32 s13, s13, 2
    s_add_u32 s13, s13, s{S_WIDX}
    s_mul_i32 s13, s13, {14*1024}
    """)
    for i in range(14):
        if i % 4 == 0 and i:
            a("s_add_u32 s13, s13, 4096")
        a(f"buffer_load_dwordx4 {v(64+4*(i%4),4)}, v{VL16}, {sr(SRD_WD)}, s13 offen offset:{1024*(i%4)}")
    a(f"s_mov_b32 s{S_NONCE}, s76\ns_waitcnt vmcnt(0)")


def spin(label, loads, checks, sleep=2):
    L = [f"{label}_SPIN:", f"s_sleep {sleep}"]
    L += [("NOCOUNT", x) for x in loads]
    L += ["s_waitcnt vmcnt(0)"]
    L += ["s_sub_u32 s77, s77, 1", "s_cmp_eq_u32 s77, 0", f"s_cbranch_scc1 {label}_OK"]
    L += [f"{label}_CHK:"] + checks
    L += [f"s_cbranch_scc0 {label}_SPIN", f"{label}_OK:"]
    return L


S_NONCE = 23


def nonce_ld(vd, vz):
    return f"global_load_dword v{vd}, v{vz}, s[{S_DBG}:{S_DBG+1}] sc1"


def nonce_get(label, vd, vz, sleep=8):
    L = ["s_mov_b32 s77, 0x100000", f"s_branch {label}_CHK"]
    L += spin(label, [nonce_ld(vd, vz)], [f"v_cmp_ne_u32 vcc, 0, v{vd}", "s_nop 3", "s_cmp_eq_u64 vcc, exec"], sleep)
    L += [f"v_readfirstlane_b32 s{S_NONCE}, v{vd}", "s_nop 3"]
    return L


def plain(lines):
    return [x[1] if isinstance(x, tuple) else x for x in lines]


def gemm2(a0):
    a = Asm()
    NS = 28
    NP = 12
    NR = 16
    DH = 6
    ACC = 192
    WF = 16
    WFR = 128
    HB = 144
    N1 = n1()
    NF = OPT.get("nf", 2)
    PP1 = OPT.get("pp1", 21)
    N2 = OPT.get("n2", 28)

    def acc(t, tt):
        return ACC + 16 * (t + 2 * tt)

    def wload(i):
        sl = i % NR
        return [
            "s_lshl_b32 s14, s11, 14", f"s_add_u32 m0, s8, {sl*2048}", "s_add_u32 s14, s14, s10",
            f"buffer_load_dwordx4 v{VD0}, {sr(SRD_WD)}, s14 offen lds",
            "s_add_u32 s11, s11, 1", "s_cmp_ge_u32 s11, 28", "s_cselect_b32 s11, 0, s11",
            f"buffer_load_dwordx4 v{VD1}, {sr(SRD_WD)}, s14 offen offset:1024 lds",
            ("VMTAG", f"W{i}"),
        ]

    def hload(i):
        sl = i % DH
        return [
            "s_lshl_b32 s13, s12, 10", "s_add_u32 s13, s13, s9",
            f"buffer_load_dwordx4 {v(HB+8*sl,4)}, v{VL16}, {sr(SRD_WS)}, s13 offen sc1",
            "s_add_u32 s13, s13, s22",
            "s_add_u32 s12, s12, 1", "s_cmp_ge_u32 s12, 28", "s_cselect_b32 s12, 0, s12",
            f"buffer_load_dwordx4 {v(HB+8*sl+4,4)}, v{VL16}, {sr(SRD_WS)}, s13 offen sc1",
            ("VMTAG", f"H{i}"),
        ]

    def wfrag(i):
        return WF + 8 * i if i < NP else WFR + 8 * (i & 1)

    def trd(i):
        sl = i % NR
        r = [("VMWAIT", f"W{i}")] if i >= N1 else []
        for t in range(2):
            for h2 in range(2):
                r.append(f"ds_read_b64_tr_b16 {v(wfrag(i)+4*t+2*h2,2)}, v{DA0+t} offset:{sl*2048+h2*1024}")
        return r

    a.tag("hst")
    a("s_barrier")
    a.ext(stamp(5))
    a(f"""
    s_setprio 2
    v_mov_b32 v2, 0
    v_mov_b32 v3, s{S_NONCE}
    s_mov_b32 s77, 0x100000
    """)
    ph_ld = f"buffer_load_dword v4, v{VPH}, {sr(SRD_WS)}, s15 offen sc1"

    def wl(i):
        a.ext(wload(i))
        if i == N1 + NF - 1:
            a.wait("hst")
            a(f"""
            s_mov_b64 exec, 1
            buffer_store_dword v3, v2, {sr(SRD_WS)}, s3 offen sc1
            s_mov_b64 exec, -1
            """)
            a.ext(stamp(6))
        if i == PP1:
            a(ph_ld)
            a.tag("P1")
    assert N1 + NF <= NR
    for i in range(N1, NR):
        wl(i)
    for i in range(NP + 1):
        if i < NP:
            a.ext(trd(i))
        if i >= 1 and NR + i - 1 < N2:
            a(f"s_waitcnt lgkmcnt({4 if i < NP else 0})")
            wl(NR + i - 1)
    a.ext(stamp(7))
    a.wait("P1")
    a("s_branch PH_CHK")
    a.ext(spin("PH", [ph_ld], [f"v_cmp_eq_u32 vcc, s{S_NONCE}, v4", "s_nop 3", "s_cmp_eq_u64 vcc, exec"]))
    a.ext(stamp(8))
    a.ext(bstamp(3, 1))
    for i in range(DH):
        a.ext(hload(i))
    a("s_waitcnt lgkmcnt(0)")

    YR, FL, YT, EG = 80, 2, WFR, 6
    fl_ld = [f"buffer_load_dword v{FL}, v{VFL}, {sr(SRD_WS)}, s16 offen sc1"]
    chk = [f"v_cmp_eq_u32 vcc, s{S_NONCE}, v{FL}", "s_nop 3", "s_cmp_eq_u64 vcc, exec"]

    def yloads():
        return [f"buffer_load_dwordx4 {v(YR,4)}, v{VY}, {sr(SRD_WS)}, s19 offen sc1",
                "s_add_u32 s13, s19, 0x8000",
                f"buffer_load_dwordx4 {v(YR+4,4)}, v{VY}, {sr(SRD_WS)}, s13 offen sc1"]

    IF = OPT.get("if", 22)
    IY = OPT.get("iy", 25)
    for i in range(NS):
        sl = i % DH
        a.wait(f"H{i}")
        if i >= NP:
            a("s_waitcnt lgkmcnt(0)")
        hl = hload(i - 1 + DH) if 1 <= i and i - 1 + DH < NS else []
        fill = [(trd(i + 1) if NP <= i + 1 < NS else []) + hl[:3], hl[3:], wload(N2 + i) if N2 + i < NS else [], []]
        k = 0
        for t in range(2):
            for tt in range(2):
                c = "0" if i == 0 else v(acc(t, tt), 16)
                a(f"v_mfma_f32_32x32x16_bf16 {v(acc(t,tt),16)}, {v(wfrag(i)+4*t,4)}, {v(HB+8*sl+4*tt,4)}, {c}")
                a.ext(fill[k])
                k += 1
        if i in (0, 3, 7, 11, 15, 19, 23, 27):
            a.ext(bstamp(3, 2 + (0, 3, 7, 11, 15, 19, 23, 27).index(i)))
        if i == IF:
            a.ext(fl_ld)
            a.tag("F")
        if i == IY:
            a.wait("F")
            a.ext(yloads())
    a.ext(stamp(9))
    a.ext(chk)
    a("s_cbranch_scc1 PY_DONE")
    a.ext(spin("PY", fl_ld, chk))
    a.ext([("NOCOUNT", x) if is_vmem(x) else x for x in yloads()])
    a("PY_DONE:")
    a("s_nop 5")
    for k in range(1, 4):
        for g in range(4):
            a(f"ds_write_b128 v{VW1}, {v(ACC+16*k+4*g,4)} offset:{k*4096+g*1024}")
    X1, Y1 = HB, HB + 16
    a(f"""
    v_mov_b32 v5, 0xffff0000
    ds_read_b32 v{EG}, v{VG}
    s_waitcnt vmcnt(0)
    ds_write_b128 v{VYW}, {v(YR,4)} offset:16384
    ds_write_b128 v{VYW}, {v(YR+4,4)} offset:17408
    """)
    a("s_waitcnt lgkmcnt(0)")
    a("s_barrier")
    PB = 16
    for q in range(4):
        a(f"ds_read_b64_tr_b16 {v(YT+2*q,2)}, v{VYT} offset:{16384+q*512}")
    for k, base in ((1, VR1), (2, VW2), (3, VW3)):
        for g in range(4):
            a(f"ds_read_b128 {v(PB+16*(k-1)+4*g,4)}, v{base} offset:{k*4096+g*1024}")
    a("s_waitcnt lgkmcnt(12)")
    for i in range(8):
        a(f"""
        v_lshlrev_b32 v{Y1+2*i}, 16, v{YT+i}
        v_and_b32 v{Y1+2*i+1}, v5, v{YT+i}
        """)
    a("s_waitcnt lgkmcnt(8)")
    for i in range(0, 16, 2):
        a(f"v_pk_add_f32 {v(ACC+i,2)}, {v(ACC+i,2)}, {v(PB+i,2)}")
    a("s_waitcnt lgkmcnt(0)")
    for i in range(0, 16, 2):
        a(f"v_pk_add_f32 {v(PB+16+i,2)}, {v(PB+16+i,2)}, {v(PB+32+i,2)}")
    for i in range(0, 16, 2):
        a(f"v_pk_add_f32 {v(ACC+i,2)}, {v(ACC+i,2)}, {v(PB+16+i,2)}")
    for i in range(0, 16, 2):
        a(f"v_pk_add_f32 {v(Y1+i,2)}, {v(Y1+i,2)}, {v(ACC+i,2)} neg_lo:[0,1] neg_hi:[0,1]")
    for i in range(0, 16, 2):
        a(f"v_pk_fma_f32 {v(ACC+i,2)}, {v(Y1+i,2)}, {v(EG,2)}, {v(ACC+i,2)} op_sel_hi:[1,0,1]")
    for i in range(8):
        a(f"v_cvt_pk_bf16_f32 v{X1+i}, v{ACC+2*i}, v{ACC+2*i+1}")
    a(f"""
    buffer_store_dwordx4 {v(X1,4)}, v{VEP}, {sr(SRD_OUT)}, 0 offen
    buffer_store_dwordx4 {v(X1+4,4)}, v{VEP}, {sr(SRD_OUT)}, 0 offen offset:16
    """)
    a.ext(stamp_end())
    a0.ext(resolve_vm(a.L))


def kwave(gemm_wg):
    sfx = "G" if gemm_wg else "S"
    ra = RA(2, 256)
    pre = Asm()
    main = Asm()
    ph2 = Asm()
    a = pre
    a(f"""
    s_setprio {OPT.get("kprio", 0)}
    s_sub_u32 s68, s{S_WIDX}, 6
    s_lshl_b32 s69, s2, 1
    s_add_u32 s69, s69, s68
    s_lshl_b32 s70, s68, 13
    s_add_u32 s70, s70, {KG_BASE}
    s_lshl_b32 s71, s69, 8
    """)
    t0 = ra(); t1 = ra(); t2 = ra(); t3 = ra()
    PR = ra(7)
    DV = ra()
    a(f"""
    v_lshlrev_b32 v{t0}, 2, v0
    v_add_u32 v{t0}, s71, v{t0}
    s_lshl_b32 s72, s69, 1
    v_mov_b32 v{t1}, s72
    """)
    for i, sb in enumerate((S_ARE, S_AIM, S_BRE, S_BIM, S_CRE, S_CIM)):
        a(f"global_load_dword v{PR+i}, v{t0}, s[{sb}:{sb+1}]")
    a(f"global_load_ushort v{PR+6}, v{t1}, s[{S_LDT}:{S_LDT+1}]")
    a(f"global_load_ushort v{DV}, v{t1}, s[{S_DS}:{S_DS+1}]")
    if gemm_wg:
        a(f"""
        s_cmp_lg_u32 s69, 0
        s_cbranch_scc1 K{sfx}_NOTAG
        s_memrealtime s[72:73]
        v_mov_b32 v{t0}, 0
        s_waitcnt lgkmcnt(0)
        s_or_b32 s72, s72, 1
        v_mov_b32 v{t1}, s72
        s_mov_b64 exec, 1
        global_store_dword v{t0}, v{t1}, s[{S_DBG}:{S_DBG+1}] sc1
        s_mov_b64 exec, -1
        K{sfx}_NOTAG:
        """)

    WR = ra(8)
    RD = ra(2)
    a(f"""
    v_lshrrev_b32 v{t0}, 1, v0
    v_and_b32 v{t1}, 7, v{t0}
    v_lshlrev_b32 v{t0}, 8, v{t0}
    v_and_b32 v{t2}, 1, v0
    v_lshl_add_u32 v{t0}, v{t2}, 3, v{t0}
    v_add_u32 v{t0}, s70, v{t0}
    """)
    for b in range(8):
        a(f"""
        v_xor_b32 v{t2}, {b}, v{t1}
        v_lshl_add_u32 v{WR+b}, v{t2}, 4, v{t0}
        """)
    a(f"""
    v_and_b32 v{t0}, 15, v0
    v_lshrrev_b32 v{t1}, 4, v0
    """)
    for p in range(2):
        a(f"""
        v_add_u32 v{t2}, {4*p}, v{t1}
        v_xor_b32 v{t3}, v{t2}, v{t0}
        v_lshlrev_b32 v{t3}, 4, v{t3}
        v_lshl_add_u32 v{t3}, v{t2}, 8, v{t3}
        v_add_u32 v{RD+p}, s70, v{t3}
        """)
    TA0 = ra(); TA1 = ra(); TA2 = ra(); TA3 = ra()
    LP = ra(12)
    a(f"""
    v_and_b32 v{t2}, 1, v{t1}
    v_lshrrev_b32 v{t3}, 1, v{t1}
    v_lshlrev_b32 v{TA0}, 5, v{t0}
    v_lshl_add_u32 v{TA0}, v{t2}, 4, v{TA0}
    v_lshl_add_u32 v{TA0}, v{t3}, 9, v{TA0}
    v_lshrrev_b32 v{LP}, 2, v{TA0}
    v_cvt_f32_u32 v{LP}, v{LP}
    v_add_u32 v{TA0}, s70, v{TA0}
    v_add_f32 v{LP+1}, 1.0, v{LP}
    v_add_f32 v{LP+2}, 2.0, v{LP}
    v_add_f32 v{LP+3}, 2.0, v{LP+1}
    v_cmp_gt_u32 vcc, 2, v{t1}
    v_lshlrev_b32 v{TA1}, 4, v{t0}
    v_lshlrev_b32 v{TA2}, 3, v{t0}
    v_cndmask_b32 v{TA1}, v{TA2}, v{TA1}, vcc
    v_lshl_add_u32 v{TA1}, v{t1}, 8, v{TA1}
    v_add_u32 v{TA1}, s70, v{TA1}
    v_add_u32 v{TA1}, 1024, v{TA1}
    v_mov_b32 v{TA2}, 128
    v_cndmask_b32 v{TA2}, v{TA2}, 8, vcc
    v_add_u32 v{TA2}, v{TA2}, v{TA1}
    v_lshlrev_b32 v{TA3}, 2, v{t0}
    v_lshl_add_u32 v{TA3}, v{t1}, 8, v{TA3}
    v_add_u32 v{TA3}, s70, v{TA3}
    """)
    a(f"""
    v_lshlrev_b32 v{t2}, 7, v{t1}
    v_add_u32 v{t2}, 256, v{t2}
    v_lshlrev_b32 v{t3}, 8, v{t1}
    v_cndmask_b32 v{t2}, v{t3}, v{t2}, vcc
    v_lshl_add_u32 v{t2}, v{t0}, 3, v{t2}
    v_cvt_f32_u32 v{LP+4}, v{t2}
    v_mov_b32 v{t2}, 4.0
    v_cndmask_b32 v{t2}, v{t2}, 2.0, vcc
    v_mov_b32 v{t3}, {f32(128.0)}
    v_cndmask_b32 v{t3}, v{t3}, 4.0, vcc
    v_add_f32 v{LP+5}, v{LP+4}, v{t2}
    v_add_f32 v{LP+6}, v{LP+4}, v{t3}
    v_add_f32 v{LP+7}, v{LP+6}, v{t2}
    v_lshlrev_b32 v{t2}, 9, v{t1}
    v_lshl_add_u32 v{t2}, v{t0}, 3, v{t2}
    v_add_u32 v{t2}, 1024, v{t2}
    v_cvt_f32_u32 v{LP+8}, v{t2}
    v_add_f32 v{LP+9}, {f32(128.0)}, v{LP+8}
    v_add_f32 v{LP+10}, {f32(256.0)}, v{LP+8}
    v_add_f32 v{LP+11}, {f32(384.0)}, v{LP+8}
    """)
    EX = ra(10)
    a(f"""
    s_sub_u32 s72, s70, {4*17024}
    v_lshlrev_b32 v{t0}, 3, v0
    v_cvt_f32_u32 v{t1}, v{t0}
    v_cmp_gt_u32 vcc, 16, v0
    v_add_u32 v{EX+8}, s70, v{t0}
    v_lshlrev_b32 v{t0}, 2, v{t0}
    v_add_u32 v{t0}, s70, v{t0}
    v_lshlrev_b32 v{EX+9}, 2, v0
    v_add_u32 v{EX+9}, s70, v{EX+9}
    v_add_u32 v{EX+9}, 2048, v{EX+9}
    """)
    for kk in range(4):
        e0, e1 = EX + 2 * kk, EX + 2 * kk + 1
        a(f"""
        v_add_f32 v{t2}, 1.0, v{t1}
        v_cvt_pk_bf16_f32 v{t3}, v{t1}, v{t2}
        v_add_f32 v{t1}, 2.0, v{t1}
        v_and_b32 v{e0}, 0xffff, v{t3}
        v_lshrrev_b32 v{e1}, 16, v{t3}
        v_lshl_add_u32 v{e0}, v{e0}, 2, s72
        v_lshl_add_u32 v{e1}, v{e1}, 2, s72
        v_add_u32 v{t2}, {8*kk}, v{t0}
        v_add_u32 v{t3}, {8*kk+4}, v{t0}
        v_cndmask_b32 v{e0}, v{e0}, v{t2}, vcc
        v_cndmask_b32 v{e1}, v{e1}, v{t3}, vcc
        """)

    a = main
    a("s_waitcnt vmcnt(0)")
    MASK = ra()
    DT = ra()
    PP = ra(12)
    a(f"""
    v_mov_b32 v{MASK}, 0xffff0000
    v_cmp_eq_u32 vcc, 0, v0
    v_lshlrev_b32 v{DV}, 16, v{DV}
    s_nop 0
    v_cndmask_b32 v{DV}, 0, v{DV}, vcc
    """)
    for i in range(6):
        a(f"v_lshlrev_b32 v{PP+2*i}, 16, v{PR+i}")
        a(f"v_and_b32 v{PP+2*i+1}, v{MASK}, v{PR+i}")
    x = PR + 6
    a(f"""
    v_lshlrev_b32 v{x}, 16, v{x}
    v_mul_f32 v{t0}, {f32(LOG2E_HI)}, v{x}
    s_mov_b32 s72, {f32(LOG2E_HI)}
    v_fma_f32 v{t1}, v{x}, s72, -v{t0}
    v_fmac_f32 v{t1}, {f32(LOG2E_LO)}, v{x}
    v_exp_f32 v{t0}, v{t0}
    v_mul_f32 v{t1}, {f32(LN2)}, v{t1}
    v_fmac_f32 v{t0}, v{t0}, v{t1}
    v_cvt_pk_bf16_f32 v{t0}, v{t0}, v{t0}
    v_lshlrev_b32 v{DT}, 16, v{t0}
    """)
    A2, TH, Br, Bi, Cr, Ci = (PP + 2 * i for i in range(6))
    for m in range(2):
        a(f"""
        v_mul_f32 v{A2+m}, v{DT}, v{A2+m}
        v_mul_f32 v{TH+m}, v{DT}, v{TH+m}
        v_mul_f32 v{Br+m}, v{DT}, v{Br+m}
        v_mul_f32 v{Bi+m}, v{DT}, v{Bi+m}
        v_mul_f32 v{A2+m}, {f32(LOG2E)}, v{A2+m}
        v_mul_f32 v{TH+m}, {f32(INV2PI)}, v{TH+m}
        """)
    W0 = ra(4); W1 = ra(4)
    for m in range(2):
        a(f"""
        v_mul_f32 v{W0+2*m}, v{Cr+m}, v{Br+m}
        v_mul_f32 v{W0+2*m+1}, v{Cr+m}, v{Bi+m}
        v_fma_f32 v{W0+2*m}, -v{Ci+m}, v{Bi+m}, v{W0+2*m}
        v_fmac_f32 v{W0+2*m+1}, v{Ci+m}, v{Br+m}
        v_sub_f32 v{W0+2*m+1}, 0, v{W0+2*m+1}
        """)
    SIG = ra(); WM = ra(); CE = ra()
    a(f"""
    v_max_f32 v{SIG}, v{A2}, v{A2+1}
    v_max3_f32 v{WM}, |v{W0}|, |v{W0+1}|, |v{W0+2}|
    v_max_f32 v{WM}, |v{W0+3}|, v{WM}
    s_nop 1
    """)
    for ctl in ("quad_perm:[1,0,3,2]", "quad_perm:[2,3,0,1]", "row_half_mirror", "row_mirror"):
        a(f"""
        v_max_f32_dpp v{SIG}, v{SIG}, v{SIG} {ctl} row_mask:0xf bank_mask:0xf
        v_max_f32_dpp v{WM}, v{WM}, v{WM} {ctl} row_mask:0xf bank_mask:0xf
        s_nop 0
        """)
    a(f"""
    v_readlane_b32 s72, v{SIG}, 0
    v_readlane_b32 s73, v{SIG}, 16
    v_readlane_b32 s74, v{SIG}, 32
    v_readlane_b32 s75, v{SIG}, 48
    v_readlane_b32 s6, v{WM}, 0
    v_readlane_b32 s7, v{WM}, 16
    v_readlane_b32 s8, v{WM}, 32
    v_readlane_b32 s9, v{WM}, 48
    v_max_f32 v{SIG}, s72, v{SIG}
    v_max_f32 v{SIG}, s73, v{SIG}
    v_max_f32 v{SIG}, s74, v{SIG}
    v_max_f32 v{SIG}, s75, v{SIG}
    v_max_f32 v{WM}, s6, v{WM}
    v_max_f32 v{WM}, s7, v{WM}
    v_max_f32 v{WM}, s8, v{WM}
    v_max_f32 v{WM}, s9, v{WM}
    v_sub_f32 v{A2}, v{A2}, v{SIG}
    v_sub_f32 v{A2+1}, v{A2+1}, v{SIG}
    v_frexp_exp_i32_f32 v{CE}, v{WM}
    v_sub_u32 v{t0}, 14, v{CE}
    v_subrev_u32 v{CE}, 29, v{CE}
    """)
    for i in range(4):
        a(f"v_ldexp_f32 v{W0+i}, v{W0+i}, v{t0}")

    def cexp(l):
        r = ra(6)
        for m in range(2):
            a(f"""
            v_mul_f32 v{t0}, {f32(float(l))}, v{A2+m}
            v_mul_f32 v{t1}, {f32(float(l))}, v{TH+m}
            v_exp_f32 v{t0}, v{t0}
            v_fract_f32 v{t1}, v{t1}
            v_cos_f32 v{t2}, v{t1}
            v_sin_f32 v{t3}, v{t1}
            s_nop 0
            v_mul_f32 v{r+2*m}, v{t0}, v{t2}
            v_mul_f32 v{r+2*m+1}, v{t0}, v{t3}
            v_sub_f32 v{r+4+m}, 0, v{r+2*m+1}
            """)
        return r

    def cmul(d, x_, b, conj=False):
        for m in range(2):
            br, bi, nbi = b + 2 * m, b + 2 * m + 1, b + 4 + m
            if conj:
                bi, nbi = nbi, bi
            a(f"""
            v_mul_f32 v{d+2*m}, v{x_+2*m}, v{br}
            v_mul_f32 v{d+2*m+1}, v{x_+2*m}, v{bi}
            v_fmac_f32 v{d+2*m}, v{x_+2*m+1}, v{nbi}
            v_fmac_f32 v{d+2*m+1}, v{x_+2*m+1}, v{br}
            """)

    def neg(b):
        for m in range(2):
            a(f"v_sub_f32 v{b+4+m}, 0, v{b+2*m+1}")

    def scale(d, x_):
        for i in range(4):
            a(f"v_mul_f32 v{d+i}, {f32(32768.0)}, v{x_+i}")

    VB = [ra(32, 4), ra(32, 4), ra(32, 4), ra(18, 4)]
    CH0 = ra(0, 4)

    def put(batch, row, r):
        h = VB[batch] + 2 * row
        if r is None:
            a(f"v_mov_b32 v{h}, 0x7800\nv_mov_b32 v{h+1}, 0x7800")
        else:
            a(f"""
            v_cvt_pk_f16_f32 v{h}, v{r}, v{r+1}
            v_cvt_pk_f16_f32 v{h+1}, v{r+2}, v{r+3}
            """)

    E8 = cexp(8)
    cur, nxt = W0, W1
    for c in range(16):
        if c < 15:
            cmul(nxt, cur, E8, conj=True)
        put(0, c, cur)
        cur, nxt = nxt, cur
    E1 = cexp(1)
    Q1 = cexp(128)
    Q8 = cexp(1024)
    P = {}
    P[1] = ra(4)
    scale(P[1], E1)
    for j in range(2, 8):
        P[j] = ra(6 if j == 4 else 4)
        cmul(P[j], P[j - 1], E1)
    put(1, 0, None)
    for j in range(1, 8):
        put(1, j, P[j])
    scale(W0, Q1)
    put(1, 8, W0)
    for j in range(1, 8):
        cmul(W0, P[j], Q1)
        put(1, 8 + j, W0)
    Q = {1: Q1, 8: Q8}
    for j in range(2, 8):
        Q[j] = {2: E1, 3: PP + 4}[j] if j < 4 else P[2 * (j - 4) + 1]
        cmul(Q[j], Q[j - 1], Q1)
    neg(P[4]); neg(Q[2]); neg(Q[3])
    for qi, j in enumerate((2, 3)):
        scale(W0, Q[j])
        put(2, 4 * qi, W0)
        for r in range(1, 4):
            cmul(W0, P[2 * r], Q[j])
            put(2, 4 * qi + r, W0)
    for aa in range(4):
        scale(W0, Q[4 + aa])
        put(2, 8 + 2 * aa, W0)
        cmul(W0, Q[4 + aa], P[4])
        put(2, 8 + 2 * aa + 1, W0)
    a(f"v_mov_b32 v{PR}, 0")
    a(nonce_ld(PR + 1, PR))
    QS = E8
    scale(QS, Q8)
    neg(QS)
    put(3, 0, QS)
    for j in range(1, 8):
        cmul(W0, Q[j], QS)
        put(3, j, W0)
    cmul(W0, Q8, QS)
    put(3, 8, W0)
    for i in range(12):
        a(f"v_mul_f32 v{LP+i}, v{SIG}, v{LP+i}")
    for i in range(12):
        a(f"v_exp_f32 v{LP+i}, v{LP+i}")

    a = ph2
    YF = CH0
    AC = CH0 + 32
    assert AC + 12 <= ra.p

    def wr(batch, nrows):
        for row in range(nrows):
            a(f"ds_write_b64 v{WR+(row&7)}, {v(VB[batch]+2*row,2)} offset:{(row>>3)*128}")

    def fetch(F):
        for ks in range(8):
            a(f"ds_read_b128 {v(F+4*ks,4)}, v{RD+(ks&1)} offset:{(ks>>1)*2048}")

    def mfmas(tile, XF):
        for ks in range(8):
            c = "0" if ks == 0 else v(AC + 4 * tile, 4)
            a(f"v_mfma_f32_16x16x32_f16 {v(AC+4*tile,4)}, {v(XF+4*ks,4)}, {v(YF+4*ks,4)}, {c}")

    a("s_waitcnt vmcnt(0)")
    ng = plain(nonce_get(f"NK{sfx}", PR + 1, PR))
    a(f"v_mov_b32 v{t2}, {N_LDS}")
    a(f"ds_write_b32 v{t2}, v{PR+1}")
    wr(0, 16); fetch(YF)
    wr(1, 16); fetch(VB[0])
    wr(2, 16); fetch(VB[1])
    a("s_waitcnt lgkmcnt(15)")
    mf0 = len(a.L)
    wr(3, 9); fetch(VB[2])
    tail = a.L[mf0:]
    del a.L[mf0:]
    m = Asm()
    sv, a = a, m
    mfmas(0, VB[0])
    a = sv
    for i in range(8):
        a.ext(tail[2 * i:2 * i + 2])
        a(m.L[i])
    a.ext(tail[16:])
    a("s_waitcnt lgkmcnt(15)")
    mfmas(1, VB[1])
    a("s_waitcnt lgkmcnt(0)")
    mfmas(2, VB[2])
    a("s_nop 3")
    for i in range(12):
        a(f"v_mul_f32 v{AC+i}, v{AC+i}, v{LP+i}")
    for i in range(12):
        a(f"v_ldexp_f32 v{AC+i}, v{AC+i}, v{CE}")
    a(f"v_add_f32 v{AC}, v{AC}, v{DV}")
    a(f"ds_write_b128 v{TA0}, {v(AC,4)}")
    a(f"ds_write_b64 v{TA1}, {v(AC+4,2)}")
    a(f"ds_write_b64 v{TA2}, {v(AC+6,2)}")
    for r in range(4):
        a(f"ds_write_b32 v{TA3}, v{AC+8+r} offset:{2048+64*r}")
    G0 = VB[0]
    OUT = VB[1]
    for i in range(8):
        a(f"ds_read_b32 v{G0+i}, v{EX+i}")
    a(f"""
    ds_read_b64 {v(G0+8,2)}, v{EX+8} offset:1536
    ds_read_b32 v{G0+10}, v{EX+8} offset:1544
    ds_read2_b32 {v(G0+12,2)}, v{EX+9} offset0:0 offset1:1
    ds_read2_b32 {v(G0+14,2)}, v{EX+9} offset0:64 offset1:65
    v_lshlrev_b32 v{t0}, 4, v0
    v_add_u32 v{t0}, s70, v{t0}
    v_and_b32 v{t1}, 3, v0
    v_lshlrev_b32 v{t1}, 4, v{t1}
    v_add_u32 v{t1}, s70, v{t1}
    v_mov_b32 v{OUT+16}, 0
    v_mov_b32 v{OUT+17}, 0
    v_mov_b32 v{OUT+18}, 0
    v_mov_b32 v{OUT+19}, 0
    s_mov_b32 s72, 0xaaaaaaaa
    s_mov_b32 s73, 0xaaaaaaaa
    ds_write_b128 v{t1}, {v(OUT+16,4)} offset:{KARR}
    s_waitcnt lgkmcnt(0)
    """)
    for k in range(4):
        a(f"v_cvt_pk_bf16_f32 v{OUT+k}, v{G0+2*k}, v{G0+2*k+1}")
    a(f"""
    v_cvt_pk_bf16_f32 v{OUT+4}, v{G0+8}, v{G0+8}
    v_cvt_pk_bf16_f32 v{OUT+5}, v{G0+8}, v{G0+9}
    v_cvt_pk_bf16_f32 v{OUT+6}, v{G0+9}, v{G0+9}
    v_cvt_pk_bf16_f32 v{OUT+7}, v{G0+10}, v{G0+10}
    """)
    for it in (2, 3):
        T0, T1 = G0 + 8 + 2 * it, G0 + 9 + 2 * it
        o = OUT + 4 * it
        a(f"""
        v_cndmask_b32 v{t2}, v{T0}, v{T1}, s[72:73]
        v_cvt_pk_bf16_f32 v{o}, v{T0}, v{T0}
        v_cvt_pk_bf16_f32 v{o+1}, v{T0}, v{T0}
        v_cvt_pk_bf16_f32 v{o+2}, v{t2}, v{T1}
        v_cvt_pk_bf16_f32 v{o+3}, v{T1}, v{T1}
        """)
    a(f"v_mov_b32 v{t2}, 0")
    for it in range(4):
        a(f"ds_write_b128 v{t0}, {v(OUT+4*it,4)} offset:{KARR+64+1024*it}")
    if OPT.get("dbgk"):
        a(f"""
        s_lshl_b32 s72, s69, 12
        s_add_u32 s72, s72, {KX_OFF}
        v_lshlrev_b32 v{t0}, 4, v0
        """)
        for it in range(4):
            a(f"buffer_store_dwordx4 {v(OUT+4*it,4)}, v{t0}, {sr(SRD_WS)}, s72 offen offset:{1024*it}")
    a("s_waitcnt vmcnt(0) lgkmcnt(0)")
    ph2.L[1:1] = ["\n    ".join(ng)]

    out = list(pre.L)
    out.extend(stamp(1))
    kx = OPT.get("kx", 0)
    if kx == 1:
        ph2.L = []
    elif kx == 2:
        ph2.L = [x for x in ph2.L if not x.startswith("v_mfma")]
    elif kx == 3:
        ph2.L = [x for x in ph2.L if not x.startswith("ds_write")]
    elif kx == 4:
        ph2.L = [x for x in ph2.L if not x.startswith("ds_read")]
    elif kx == 5:
        L2 = []
        for x in ph2.L:
            L2.append(x)
            if x.startswith("ds_write_b64"):
                L2.append("s_nop 3")
        ph2.L = L2
    if gemm_wg:
        per = OPT.get("kper", 132)
        first = OPT.get("kfirst", 0)
        p2a = OPT.get("kp2a", 56)
        p2b = OPT.get("kp2b", 115)
        pos = min(first, len(main.L))
        out.extend(main.L[:pos])
        for sidx in range(9):
            out.extend(bstamp(2, 1 + sidx))
            out.append("s_barrier")
            if sidx < 6:
                end = len(main.L) if sidx == 5 else min(pos + per, len(main.L))
                out.extend(main.L[pos:end])
                pos = end
            elif sidx == 6:
                out.extend(ph2.L[:p2a])
            elif sidx == 7:
                out.extend(ph2.L[p2a:p2b])
            else:
                out.extend(ph2.L[p2b:])
        out.extend(stamp(2))
        out.append("s_barrier")
    else:
        out.extend(main.L)
        out.extend(ph2.L)
        out.append("s_barrier")
        out.extend(stamp(2))
        out.append("s_barrier")
    out.append("s_mov_b32 s6, s68")
    out.append("s_branch L_CONVB")
    return out


def lwave(gemm_wg):
    sfx = "G" if gemm_wg else "S"
    a = Asm()
    XV, WV, VL, VC = 8, 12, 2, 16
    t0, t1, t2 = 3, 4, 5
    DUM = 24
    ROT = OPT.get("rot", 0)
    SW = 12
    a(f"""
    s_setprio 3
    s_sub_u32 s6, s{S_WIDX}, 4
    """)

    def kofs(st):
        if not ROT:
            return []
        return [f"s_add_u32 s18, s{S_PHI}, {st}", "s_and_b32 s18, s18, 7", f"s_mul_i32 s19, s18, {64*3584}",
                "s_lshl_b32 s18, s18, 7"]

    def grp(st, g):
        sl = st % 3
        if g in (1, 5):
            j = 0 if g == 1 else 1
            L = [f"s_add_u32 m0, s{10+j}, {sl*SLOT}", f"s_add_u32 s22, s{8+j}, {'s18' if ROT else st*128}"]
            L += [f"buffer_load_dwordx4 v{XV+i}, {sr(SRD_X)}, s22 offen offset:{1024*i} lds" for i in range(4)]
        else:
            j = 0 if g == 0 else g - 1
            L = [f"s_add_u32 m0, s{72+j}, {sl*SLOT}", f"s_add_u32 s22, s{68+j}, {'s19' if ROT else st*64*3584}"]
            L += [f"buffer_load_dwordx4 v{WV+i}, {sr(SW)}, s22 offen offset:{1024*i} lds" for i in range(4)]
        return L

    def pref(st):
        L = [f"s_add_u32 s22, s68, {st*64*3584}"]
        L += [f"buffer_load_dwordx4 {v(DUM+4*i,4)}, v{WV+i}, {sr(SW)}, s22 offen offset:{1024*i}" for i in range(4)]
        L += [f"s_add_u32 s22, s23, {st*128}"]
        L += [f"buffer_load_dwordx4 {v(DUM+16+4*i,4)}, v{XV+i}, {sr(SRD_X)}, s22 offen offset:{1024*i}" for i in range(2)]
        return L

    fu_ld = [f"buffer_load_dwordx2 v[{VC}:{VC+1}], v{t1}, {sr(SRD_WS)}, s16 offen sc1"]
    fu_chk = [f"v_cmp_eq_u32 vcc, s{S_NONCE}, v{VC}", f"v_cmp_eq_u32 s[18:19], s{S_NONCE}, v{VC+1}", "s_nop 3",
              "s_and_b64 vcc, vcc, s[18:19]", "s_cmp_eq_u64 vcc, exec"]

    def poll_setup():
        a(f"""
        s_lshl_b32 s7, s2, 1
        s_add_u32 s7, s7, s6
        v_lshlrev_b32 v{VL}, 4, v0
        v_mov_b32 v{t0}, 0
        v_lshrrev_b32 v{t1}, 1, v0
        v_lshlrev_b32 v{t1}, 7, v{t1}
        v_and_b32 v{t2}, 1, v0
        v_lshl_add_u32 v{t1}, v{t2}, 3, v{t1}
        s_mov_b32 s16, {FU_OFF}
        s_mov_b32 s77, 0x100000
        """)

    STG = 24
    assert STG + 16 * n1() <= 256

    def wd_setup():
        a(f"""
        v_lshrrev_b32 v20, 3, v0
        v_and_b32 v21, 7, v0
        v_lshrrev_b32 v22, 1, v20
        v_and_b32 v22, 1, v22
        v_lshlrev_b32 v22, 2, v22
        v_xor_b32 v21, v21, v22
        v_lshlrev_b32 v18, 10, v20
        v_lshl_add_u32 v18, v21, 4, v18
        v_add_u32 v19, 8192, v18
        s_and_b32 s17, s{S_IDX}, 7
        s_lshl_b32 s17, s17, 7
        s_mul_i32 s3, s6, {3*28*16384}
        s_add_u32 s3, s3, s17
        s_sub_u32 s48, 2, s6
        s_lshl_b32 s49, s48, 15
        v_add_u32 v1, s49, v{VL}
        s_mul_i32 s48, s48, {28*16384}
        s_add_u32 s48, s48, s17
        s_mul_i32 s17, s6, {3*RING2}
        v_add_u32 v7, s17, v{VL}
        """)
        a(rot_scalar(76, 17))
        a("s_mov_b32 s49, s76")

    wpos = [0, 0]
    wwp = [0, 0]

    def wd_ld(g, n):
        sb, ss = ((3, 76), (48, 49))[g]
        for _ in range(n):
            i = wpos[g]
            if i >= n1():
                break
            wpos[g] += 1
            R = STG + 8 * (g * n1() + i)
            a(f"""
            s_lshl_b32 s22, s{ss}, 14
            s_add_u32 s22, s22, s{sb}
            buffer_load_dwordx4 {v(R,4)}, v18, {sr(SRD_WD)}, s22 offen
            s_add_u32 s{ss}, s{ss}, 1
            s_cmp_ge_u32 s{ss}, 28
            s_cselect_b32 s{ss}, 0, s{ss}
            buffer_load_dwordx4 {v(R+4,4)}, v19, {sr(SRD_WD)}, s22 offen
            """)
            a.tag(f"wd{g}_{i}")

    def wd_wr(g, n):
        for i in range(wwp[g], min(n1(), wwp[g] + n)):
            wwp[g] = i + 1
            R = STG + 8 * (g * n1() + i)
            a.wait(f"wd{g}_{i}")
            for k in range(2):
                a(f"ds_write_b128 v{(7, 1)[g]}, {v(R+4*k,4)} offset:{i*2048 + k*1024}")

    def u_load():
        a(f"""
        s_mul_i32 s18, s6, {USZ}
        s_add_u32 s18, s18, {U_BASE}
        s_lshl_b32 s17, s7, 12
        s_add_u32 s17, s17, {UT_OFF}
        v_mov_b32 v20, 0
        v_mov_b32 v21, 0
        v_mov_b32 v22, 0
        v_mov_b32 v23, 0
        v_and_b32 v{t2}, 7, v0
        v_lshrrev_b32 v6, 3, v0
        v_and_b32 v6, 3, v6
        v_min_u32 v{t2}, 6, v{t2}
        v_mul_u32_u24 v6, {UPITCH}, v6
        v_lshl_add_u32 v{t2}, v{t2}, 4, v6
        v_add_u32 v{t2}, s18, v{t2}
        ds_write_b128 v{t2}, v[20:23]
        """)
        for r in range(4):
            a(f"""
            s_add_u32 m0, s18, {r*UPITCH + 112}
            s_nop 0
            buffer_load_dwordx4 v{VL}, {sr(SRD_WS)}, s17 offen sc1 lds
            s_add_u32 s17, s17, 1024
            """)

    GLR = 8

    def gl_load():
        a(f"""
        s_lshl_b32 s17, s{S_XCD}, 2
        s_lshr_b32 s22, s{S_IDX}, 3
        s_add_u32 s17, s17, s22
        s_lshl_b32 s17, s17, 6
        s_add_u32 s17, s17, {GL_OFF}
        v_and_b32 v{t0}, 3, v0
        v_lshrrev_b32 v{t1}, 2, v0
        v_lshlrev_b32 v{t1}, 2, v{t1}
        v_lshl_add_u32 v{t1}, v{t0}, 11, v{t1}
        """)
        for g in range(8):
            a(f"buffer_load_dword v{GLR+g}, v{t1}, {sr(SRD_WS)}, s17 offen sc1")
            if g < 7:
                a("s_add_u32 s17, s17, 8192")
        a.tag("gl")

    def gl_finish():
        E = GLR
        a.wait("gl")
        a(f"""
        v_add_f32 v{E}, v{E}, v{E+1}
        v_add_f32 v{E+2}, v{E+2}, v{E+3}
        v_add_f32 v{E+4}, v{E+4}, v{E+5}
        v_add_f32 v{E+6}, v{E+6}, v{E+7}
        v_add_f32 v{E}, v{E}, v{E+2}
        v_add_f32 v{E+4}, v{E+4}, v{E+6}
        v_add_f32 v{E}, v{E}, v{E+4}
        v_cvt_pk_bf16_f32 v{E}, v{E}, v{E}
        v_lshlrev_b32 v{E}, 16, v{E}
        v_mul_f32 v{E}, {f32(-LOG2E)}, v{E}
        v_exp_f32 v{E}, v{E}
        v_lshlrev_b32 v{t0}, 2, v0
        v_add_f32 v{E}, 1.0, v{E}
        v_rcp_f32 v{E}, v{E}
        v_add_u32 v{t0}, {G_LDS}, v{t0}
        v_cvt_pk_bf16_f32 v{E}, v{E}, v{E}
        v_lshlrev_b32 v{E}, 16, v{E}
        ds_write_b32 v{t0}, v{E}
        """)

    if gemm_wg:
        a(f"""
        v_lshrrev_b32 v{t0}, 4, v0
        v_and_b32 v{t1}, 15, v0
        v_lshlrev_b32 v{t2}, 2, v{t0}
        v_xor_b32 v{t1}, v{t1}, v{t2}
        v_mul_u32_u24 v{t0}, 3584, v{t0}
        v_lshl_add_u32 v{WV}, v{t1}, 4, v{t0}
        """)
        for i in range(1, 4):
            a(f"v_add_u32 v{WV+i}, {(4*3584-1024)*i}, v{WV}")
        a(f"""
        s_mov_b32 s{SW+2}, {512*1792*2}
        s_mov_b32 s{SW+3}, 0x00020000
        s_and_b32 s22, s68, 3
        s_mov_b32 s19, s69
        s_lshl_b32 s23, s{S_CB}, 8
        s_lshl_b32 s16, s6, 14
        s_add_u32 s16, s16, 16384
        """)
        for j in range(4):
            a(f"""
            s_add_u32 s17, s22, {j}
            s_and_b32 s17, s17, 3
            s_mul_i32 s{68+j}, s17, {16*3584}
            s_add_u32 s{68+j}, s{68+j}, s23
            s_lshl_b32 s{72+j}, s17, 12
            s_add_u32 s{72+j}, s{72+j}, s16
            """)
        a(f"""
        v_lshrrev_b32 v{t0}, 3, v0
        v_and_b32 v{t1}, 7, v0
        v_lshrrev_b32 v{t2}, 1, v{t0}
        v_xor_b32 v{t1}, v{t1}, v{t2}
        v_lshlrev_b32 v{t0}, 10, v{t0}
        """)
        for i in range(4):
            a(f"""
            v_xor_b32 v{t2}, {4*(i&1)}, v{t1}
            v_lshl_add_u32 v{XV+i}, v{t2}, 4, v{t0}
            v_add_u32 v{XV+i}, {7168*i}, v{XV+i}
            """)
        a(f"""
        s_mov_b32 s22, s19
        s_and_b32 s17, s22, 1
        s_lshl_b32 s17, s17, 1
        s_add_u32 s17, s17, s6
        s_lshl_b32 s16, s{S_RB}, 17
        s_lshl_b32 s8, s17, 15
        s_add_u32 s8, s8, s16
        s_lshl_b32 s10, s17, 12
        s_xor_b32 s17, s17, 2
        s_lshl_b32 s9, s17, 15
        s_add_u32 s9, s9, s16
        s_lshl_b32 s11, s17, 12
        s_lshl_b32 s22, s22, 1
        s_add_u32 s22, s22, s6
        s_and_b32 s22, s22, 7
        s_lshl_b32 s23, s22, 14
        s_add_u32 s23, s23, s16
        """)
        tail = {3: "S5 R5", 4: "S6 R6", 5: "S7 R7"}
        scheds = [
            {-1: "S0 S1 S2 R0 P3 P4", 0: "R1 P5 P6", 1: "R2 P7 S3", 2: "R3 S4 R4"},
            {-1: "S0 S1 S2 R0 R1", 0: "P3 P4 R2", 1: "P5 P6 P7 S3 R3", 2: "S4 R4"},
            {-1: "S0 R0 S1 R1", 0: "S2 R2", 1: "S3 R3", 2: "S4 R4"},
            {-1: "S0 R0 S1", 0: "R1 S2", 1: "R2 S3", 2: "R3 S4 R4"},
            {-1: "S0 R0 S1 S2 P3", 0: "R1 P4 P5", 1: "R2 P6 P7 S3", 2: "R3 S4 R4"},
            {-1: "S0 R0 S1 S2", 0: "R1 R2", 1: "S3 R3", 2: "S4 R4"},
            {-1: "S0 R0 S1 S2", 0: "R1 R2", 1: "S3 R3 P5", 2: "S4 R4 P6 P7"},
            {-1: "S0 R0 S1 S2", 0: "R1 R2 P3", 1: "S3 R3 P4 P5", 2: "S4 R4 P6 P7"},
        ]
        sched = dict(scheds[OPT.get("lsched", 7)])
        sched.update(tail)

        def issue(k):
            for tok in sched.get(k, "").split():
                st = int(tok[1:])
                if tok[0] == "S":
                    a.ext(kofs(st) + grp(st, 0) + grp(st, 1))
                elif tok[0] == "R":
                    a.ext(kofs(st))
                    for g in (2, 5, 3, 4):
                        a.ext(grp(st, g))
                    a.tag(f"st{st}")
                elif tok[0] == "P":
                    assert not ROT
                    a.ext(pref(st))
        a(f"""
        s_mov_b32 s{SRD_X+2}, {2048*512*2}
        s_mov_b32 s{SRD_X+3}, 0x00020000
        s_cmp_eq_u32 s6, 0
        s_waitcnt lgkmcnt(0)
        s_cselect_b32 s{SW}, s{S_WG}, s{S_WU}
        s_cselect_b32 s{SW+1}, s{S_WG+1}, s{S_WU+1}
        s_and_b32 s{SW+1}, s{SW+1}, 0xffff
        s_mov_b32 s{SRD_X}, s{S_U}
        s_and_b32 s{SRD_X+1}, s{S_U+1}, 0xffff
        """)
        issue(-1)
        a.ext(stamp(1))
        srd(a, SRD_WS, S_WS, WS_BYTES)
        srd(a, SRD_WD, S_WD, 1792 * 512 * 2)
        poll_setup()
        for sidx in range(9):
            if sidx < 8:
                a.wait(f"st{sidx}")
            a.ext(bstamp(2, 1 + sidx))
            a("s_barrier")
            if sidx in (0, 3):
                a.ext(stamp(2 + (0, 3).index(sidx)))
            issue(sidx)
            if sidx == 4:
                wd_setup()
            if sidx == 5:
                wd_ld(0, OPT.get("w5", 0))
            if sidx == 6:
                a(f"s_setprio {OPT.get('lprio', 1)}")
                wd_ld(0, OPT.get("w6", 10))
            if sidx == 7:
                wd_ld(0, 28)
                a.ext(fu_ld)
                a.tag("fu")
                for _ in range(OPT.get("w7", 8) // 2):
                    wd_ld(1, 2)
                    wd_wr(0, OPT.get("e7", 3))
            if sidx == 8:
                a.ext(stamp(4))
                a(f"v_mov_b32 v6, {N_LDS}\nds_read_b32 v6, v6")
                wd_ld(1, 28)
                a.wait("fu")
                a(f"s_waitcnt lgkmcnt(0)\nv_readfirstlane_b32 s{S_NONCE}, v6\ns_nop 3")
                a(f"s_branch PU{sfx}_CHK")
                a.ext(spin(f"PU{sfx}", fu_ld, fu_chk, 16))
                u_load()
                gl_load()
                wd_wr(0, 28)
                wd_wr(1, 28)
                gl_finish()
        a("s_waitcnt vmcnt(0) lgkmcnt(0)")
        a.ext(stamp(5))
        a("s_barrier")
    else:
        a("s_waitcnt lgkmcnt(0)")
        srd(a, SRD_WS, S_WS, WS_BYTES)
        srd(a, SRD_WD, S_WD, 1792 * 512 * 2)
        poll_setup()
        wd_setup()
        a("s_barrier")
        a(f"v_mov_b32 v6, {N_LDS}\nds_read_b32 v6, v6")
        a(f"s_waitcnt lgkmcnt(0)\nv_readfirstlane_b32 s{S_NONCE}, v6\ns_nop 3")
        a.ext(spin(f"PU{sfx}", fu_ld, fu_chk, 32))
        u_load()
        wd_ld(0, 28)
        wd_ld(1, 28)
        wd_wr(0, 6)
        gl_load()
        wd_wr(0, 28)
        wd_wr(1, 28)
        gl_finish()
        a("s_waitcnt vmcnt(0) lgkmcnt(0)")
        a.ext(stamp(5))
        a("s_barrier")
    a("s_branch L_CONVA")
    return resolve_vm(a.L)


def conv(a0, partB):
    a = Asm()
    KA, UA, YA = 2, 3, 5
    qs, outq = ([5, 6, 7], [6, 7]) if partB else ([0, 1, 2, 3, 4, 5], [0, 1, 2, 3, 4, 5])
    a.ext(stamp(6))
    a(f"""
    s_setprio {OPT.get("cprio", 3)}
    s_lshl_b32 s8, s6, 13
    s_add_u32 s8, s8, {KG_BASE + KARR + 32}
    s_mul_i32 s9, s6, {USZ}
    s_add_u32 s9, s9, {U_BASE + 16}
    v_lshrrev_b32 v6, 2, v0
    v_and_b32 v10, 7, v6
    v_and_b32 v6, 3, v6
    v_and_b32 v7, 3, v0
    v_lshrrev_b32 v8, 4, v0
    v_and_b32 v8, 1, v8
    v_lshrrev_b32 v9, 5, v0
    v_mul_u32_u24 v{UA}, {UPITCH}, v7
    v_sub_u32 v10, v10, v9
    v_lshl_add_u32 v{UA}, v10, 4, v{UA}
    v_add_u32 v{UA}, s9, v{UA}
    v_lshlrev_b32 v{KA}, 5, v8
    v_lshl_add_u32 v{KA}, v7, 3, v{KA}
    v_lshl_add_u32 v{KA}, v9, 6, v{KA}
    v_lshlrev_b32 v10, 3, v6
    v_sub_u32 v{KA}, v{KA}, v10
    v_add_u32 v{KA}, s8, v{KA}
    """)
    qmax = max(qs)
    nst = 4 * qmax + 4
    NU = 4
    UBUF = 8
    KT = 24
    ACC = KT + 4 * nst
    TMP = ACC + 16 * len(qs)
    assert TMP + 3 * len(qs) + 1 <= 256

    def acc(q):
        return ACC + 16 * qs.index(q)

    need = {}
    for i in range(nst):
        for q in qs:
            s_ = 4 * q + 3 - i
            if s_ >= 0 and s_ not in need:
                need[s_] = i

    def rd(i):
        L = [f"ds_read_b128 {v(UBUF+4*(i%NU),4)}, v{UA} offset:{32*i}"]
        for s_ in sorted(s for s in need if need[s] == i):
            L += [f"ds_read_b64_tr_b16 {v(KT+4*s_,2)}, v{KA} offset:{128*s_+32}",
                  f"ds_read_b64_tr_b16 {v(KT+4*s_+2,2)}, v{KA} offset:{128*s_}"]
        L.append(("LTAG", f"R{i}"))
        return L

    PF = NU - 1
    a.ext(rd(0))
    a.ext(rd(1))
    a(f"""
    v_and_b32 v4, 7, v0
    v_lshrrev_b32 v{YA}, 3, v0
    v_lshlrev_b32 v{YA}, 4, v{YA}
    v_lshl_add_u32 v{YA}, v4, 7, v{YA}
    v_mov_b32 v6, 0
    v_mov_b32 v7, s{S_NONCE}
    s_mov_b32 s12, 0
    s_mov_b32 s13, 0x80000000
    s_mov_b32 s14, 0
    s_mov_b32 s15, 0xc0000000
    s_mov_b32 s16, 0
    s_mov_b32 s17, 0xe0000000
    s_lshl_b32 s7, s2, 1
    s_add_u32 s7, s7, s6
    s_lshl_b32 s18, s7, 12
    s_add_u32 s18, s18, {Y_OFF}
    s_lshl_b32 s19, s2, 4
    s_add_u32 s19, s19, s6
    s_lshl_b32 s19, s19, 3
    s_add_u32 s19, s19, {FY_OFF + (4 if partB else 0)}
    """)

    def Y(q, g, rho):
        return acc(q) + 4 * g + rho

    dpp = "wave_ror:1 row_mask:0xf bank_mask:0xf"
    ctl = "row_mask:0xf bank_mask:0xf"

    def post(q):
        L = []
        Z = {}
        for g in (3, 2, 1, 0):
            for rho in (1, 2, 3):
                Z[g, rho] = TMP + 3 * qs.index(q) + rho - 1 if g == 3 else Y(q, g, rho)
                if g > 0:
                    prev = f"v{Y(q,g-1,rho)}"
                elif q > 0:
                    prev = f"v{Y(q-1,3,rho)}"
                else:
                    prev = "v6"
                L.append(f"v_cndmask_b32 v{Z[g,rho]}, v{Y(q,g,rho)}, {prev}, s[{10+2*rho}:{11+2*rho}]")
        for g in (3, 2, 1, 0):
            L.append(f"v_add_f32_dpp v{Z[g,2]}, v{Z[g,3]}, v{Z[g,2]} {dpp}")
        for g in (3, 2, 1, 0):
            L.append(f"v_add_f32_dpp v{Z[g,1]}, v{Z[g,2]}, v{Z[g,1]} {dpp}")
        for g in (3, 2, 1, 0):
            L.append(f"v_add_f32_dpp v{Y(q,g,0)}, v{Z[g,1]}, v{Y(q,g,0)} {dpp}")
        return L

    def stage(S_, D_, bit, stride):
        m = {0: 0xaaaaaaaa, 1: 0xcccccccc, 2: 0xf0f0f0f0}[bit]
        up = {0: "quad_perm:[1,0,3,2]", 1: "quad_perm:[2,3,0,1]", 2: "row_ror:12"}[bit]
        dn = {0: "quad_perm:[1,0,3,2]", 1: "quad_perm:[2,3,0,1]", 2: "row_ror:4"}[bit]
        L = [f"s_mov_b32 vcc_lo, {m:#x}", f"s_mov_b32 vcc_hi, {m:#x}"]
        idx = [i for i in range(len(S_)) if not (i // stride) & 1]
        L += [f"v_cndmask_b32_dpp v{D_[i+stride]}, v{S_[i]}, v{S_[i+stride]}, vcc {up} {ctl}" for i in idx]
        L += ["s_not_b64 vcc, vcc"]
        L += [f"v_cndmask_b32_dpp v{D_[i]}, v{S_[i+stride]}, v{S_[i]}, vcc {dn} {ctl}" for i in idx]
        return L

    def xpose(q):
        S0 = [Y(q - 1 + (g >> 2), g & 3, 0) for g in range(8)]
        free = [Y(qq, g, r) for qq in (q - 1, q) for g in range(3) for r in (1, 2, 3)]
        D0 = free[:8]
        S1 = free[8:12]
        D1 = free[12:16]
        D2 = [acc(q - 1) + i for i in range(4)]
        L = stage(S0, D0, 0, 1)
        L += [f"v_cvt_pk_bf16_f32 v{S1[g]}, v{D0[2*g]}, v{D0[2*g+1]}" for g in range(4)]
        L += stage(S1, D1, 1, 1)
        L += stage(D1, D2, 2, 2)
        L.append(f"buffer_store_dwordx4 {v(D2[0],4)}, v{YA}, {sr(SRD_WS)}, s18 offen offset:{(q-1)*512} sc1")
        return L

    pend = []
    FILL = OPT.get("cfill", 4)
    since = {}
    issued = 2
    for i in range(nst):
        a.L.append(("LWAIT", f"R{i}"))
        rl = []
        while issued < nst and issued <= i + (2 if i < 2 else PF):
            rl += rd(issued)
            issued += 1
        act = [q for q in qs if 4 * q + 3 - i >= 0]
        per = -(-len(rl) // len(act))
        for q in act:
            s_ = 4 * q + 3 - i
            c = "0" if i == 0 else v(acc(q), 16)
            a(f"v_mfma_f32_32x32x16_bf16 {v(acc(q),16)}, {v(UBUF+4*(i%NU),4)}, {v(KT+4*s_,4)}, {c}")
            a.ext(rl[:per])
            rl = rl[per:]
            if s_ == 0:
                since[q] = len(a.L)
            for qq in list(since):
                if len([x for x in a.L[since[qq]:] if isinstance(x, str)]) >= 14:
                    del since[qq]
                    if qq in outq:
                        pend += post(qq)
                        if (qq - outq[0]) & 1:
                            pend += xpose(qq)
            a.ext(pend[:FILL])
            pend = pend[FILL:]
    a.ext(stamp(7))
    a.ext(pend)
    a("s_nop 7\ns_nop 3")
    for qq in sorted(since):
        if qq in outq:
            a.ext(post(qq))
            if (qq - outq[0]) & 1:
                a.ext(xpose(qq))
    a.ext(stamp(8))
    a(f"""
    s_waitcnt vmcnt(0)
    s_mov_b64 exec, 1
    buffer_store_dword v7, v6, {sr(SRD_WS)}, s19 offen sc1
    """)
    a.ext(stamp_end())
    a0.ext(resolve_lds(a.L))


HEADER = open("cdna_kernels/" + NAME + ".s.ref").read().split("; Override launch")[0]


def main(path):
    a = Asm()
    prologue(a)
    gemm1(a)
    a("L_SPARE:")
    spare(a)
    a("L_GEMM2:")
    gemm2(a)
    a("L_LWAVE:")
    a(f"s_cmp_ge_u32 s{S_IDX}, 28\ns_cbranch_scc1 L_LWAVE_S")
    a.ext(lwave(True))
    a("L_LWAVE_S:")
    a.ext(lwave(False))
    a("L_KWAVE:")
    a("s_load_dwordx2 s[6:7], s[0:1], 8\ns_load_dwordx4 s[8:11], s[0:1], 16\ns_load_dwordx8 s[12:19], s[0:1], 32")
    a("s_waitcnt lgkmcnt(0)")
    srd(a, SRD_WS, S_WS, WS_BYTES)
    a(f"s_cmp_ge_u32 s{S_IDX}, 28\ns_cbranch_scc1 L_KWAVE_S")
    a.ext(kwave(True))
    a("L_KWAVE_S:")
    a.ext(kwave(False))
    a("L_CONVA:")
    conv(a, False)
    a("L_CONVB:")
    conv(a, True)
    a("L_END:\ns_endpgm")
    body = "\n".join(("" if ln.endswith(":") or ln.startswith(".") else "    ") + ln for ln in a.L)
    kn = NAME + "_kernel"
    txt = HEADER
    if OPT.get("list"):
        txt += f"; @launch kernel={kn} grid=(256,1,1) block=(512,1,1) lds=163840\n"
    else:
        txt += "; @launch grid=(256,1,1) block=(512,1,1) lds=163840\n"
    txt += '.amdgcn_target "amdgcn-amd-amdhsa--gfx950"\n.text\n'
    txt += f".globl {kn}\n.p2align 8\n.type {kn},@function\n{kn}:\n"
    txt += body + "\n"
    txt += f"""
.section .rodata,"a"
.p2align 6
.amdhsa_kernel {kn}
  .amdhsa_next_free_vgpr 256
  .amdhsa_next_free_sgpr 102
  .amdhsa_accum_offset 256
  .amdhsa_group_segment_fixed_size 0
  .amdhsa_kernarg_size 136
  .amdhsa_user_sgpr_count 2
  .amdhsa_user_sgpr_kernarg_segment_ptr 1
  .amdhsa_system_sgpr_workgroup_id_x 1
.end_amdhsa_kernel
"""
    open(path, "w").write(txt)


if __name__ == "__main__":
    for o in list(sys.argv):
        if o.startswith("--opt="):
            k, _, val = o[6:].partition(":")
            OPT[k] = int(val) if val else 1
            sys.argv.remove(o)
    if "--stamps" in sys.argv:
        STAMPS = True
        sys.argv.remove("--stamps")
    main(sys.argv[1] if len(sys.argv) > 1 else "cdna_kernels/" + NAME + ".s")
```

```python
import sys, struct

NAME = "gated_mix__ssm_conv_s4__swiglu_ffn__prompt"

H_OFF = 0x000000
UT_OFF = 0x800000
KX_OFF = 0xA00000
Y_OFF = 0xC00000
GL_OFF = 0xE00000
FH_OFF = 0xE40000
FY_OFF = 0xE60000
FU_OFF = 0xE68000
ST_OFF = 0xE20000
WS_BYTES = 0x1000000

STAMPS = False
HDL = []
OPT = {}
ST_BASE = 78
NST = 12


def f32(x):
    return "0x%08x" % struct.unpack("<I", struct.pack("<f", x))[0]


LOG2E = 1.4426950408889634
LOG2E_HI = struct.unpack("<f", struct.pack("<f", LOG2E))[0]
LOG2E_LO = LOG2E - LOG2E_HI
LN2 = 0.6931471805599453
INV2PI = 0.15915494309189535


class Asm:
    def __init__(self):
        self.L = []

    def __call__(self, s):
        for line in s.strip().split("\n"):
            line = line.strip()
            if line:
                self.L.append(line)

    def ext(self, lines):
        self.L.extend(lines)

    def tag(self, n):
        self.L.append(("VMTAG", n))

    def wait(self, n):
        self.L.append(("VMWAIT", n))


def v(b, n=1):
    return f"v{b}" if n == 1 else f"v[{b}:{b+n-1}]"


def sr(b):
    return f"s[{b}:{b+3}]"


class RA:
    def __init__(self, start, end):
        self.p = start
        self.end = end

    def __call__(self, n=1, align=1):
        self.p = (self.p + align - 1) // align * align
        r = self.p
        self.p += n
        assert self.p <= self.end, "out of registers"
        return r


def stamp(k, force=False):
    if not STAMPS:
        return []
    assert k < NST
    if OPT.get("dbgbar") and 1 <= k <= 9 and not force:
        return []
    op = "s_memtime" if OPT.get("cyc") else "s_memrealtime"
    return [f"{op} s[{ST_BASE+2*k}:{ST_BASE+2*k+1}]"]


def bstamp(mode, k):
    return stamp(k, True) if OPT.get("dbgbar") == mode else []


def stamp_end():
    if not STAMPS:
        return ["s_endpgm"]
    L = stamp(10) + ["s_waitcnt vmcnt(0)"] + stamp(11)
    L += ["s_waitcnt lgkmcnt(0)", "s_mov_b64 exec, 1", "s_lshl_b32 s74, s2, 3", f"s_add_u32 s74, s74, s{S_WIDX}",
          "s_lshl_b32 s74, s74, 6", f"s_add_u32 s74, s74, {ST_OFF}", "v_mov_b32 v1, 0"]
    for k in range(NST):
        L.append(f"v_mov_b32 v{4+k}, s{ST_BASE+2*k}")
    for k in range(0, NST, 4):
        L.append(f"buffer_store_dwordx4 v[{4+k}:{7+k}], v1, {sr(SRD_WS)}, s74 offen offset:{4*k}")
    if OPT.get("hdbg"):
        lab = f"HD{len(HDL)}"
        HDL.append(lab)
        L += [f"v_not_b32 v20, v4", f"global_atomic_umax v1, v20, s[{S_DBG}:{S_DBG+1}] offset:56",
              f"global_atomic_umax v1, v15, s[{S_DBG}:{S_DBG+1}] offset:60",
              f"s_cmp_lg_u32 s2, {OPT['hdbg']}", f"s_cbranch_scc1 {lab}", f"s_cmp_lg_u32 s{S_WIDX}, 0", f"s_cbranch_scc1 {lab}"]
        words = [1, 2, 3, 4, 5, 6, 7, 9, 10, 11, 12]
        for k in range(1, NST):
            L += [f"v_sub_u32 v20, v{4+k}, v4", f"global_store_dword v1, v20, s[{S_DBG}:{S_DBG+1}] offset:{4*words[k-1]}", "s_nop 1"]
        L += [f"global_store_dword v1, v4, s[{S_DBG}:{S_DBG+1}] offset:52"]
        L.append(f"{lab}:")
    L.append("s_endpgm")
    return L


def is_vmem(line):
    return line.startswith("buffer_") or line.startswith("global_")


def resolve_vm(lines):
    out = []
    count = 0
    tags = {}
    done = -1
    for ln in lines:
        if isinstance(ln, tuple):
            if ln[0] == "VMTAG":
                tags[ln[1]] = count
            elif ln[0] == "VMWAIT":
                if tags[ln[1]] <= done:
                    continue
                n = count - tags[ln[1]]
                assert 0 <= n <= 63, n
                out.append(f"s_waitcnt vmcnt({n})")
                done = tags[ln[1]]
            elif ln[0] == "VMRESET":
                done = count
            elif ln[0] == "NOCOUNT":
                out.append(ln[1])
            else:
                raise ValueError(ln)
        else:
            if is_vmem(ln):
                count += 1
            out.append(ln)
    return out


def resolve_lds(lines):
    out = []
    count = 0
    tags = {}
    for ln in lines:
        if isinstance(ln, tuple):
            if ln[0] == "LTAG":
                tags[ln[1]] = count
            elif ln[0] == "LWAIT":
                out.append(f"s_waitcnt lgkmcnt({min(15, count - tags[ln[1]])})")
            else:
                raise ValueError(ln)
        else:
            if ln.startswith("ds_"):
                count += 1
            out.append(ln)
    return out


SLOT = 49152
KG_BASE = 147456
KARR = 3584
U_BASE = 131072
UPITCH = 1344
USZ = 4 * UPITCH
YB_BASE = U_BASE + 2 * USZ
RING2 = 32768

S_U, S_ARE, S_AIM, S_BRE, S_BIM, S_CRE, S_CIM, S_LDT = 4, 6, 8, 10, 12, 14, 16, 18
S_DS = 20
S_WG, S_WU, S_WD, S_GW = 24, 26, 28, 30
S_OUT, S_DBG, S_WS = 32, 34, 36
S_WIDX, S_XCD, S_IDX, S_RB, S_CB, S_PHI = 38, 39, 40, 41, 42, 43
SRD_X, SRD_WG, SRD_WU, SRD_WS, SRD_WD, SRD_OUT = 44, 48, 52, 56, 60, 64


def srd(a, d, base, nbytes):
    a(f"""
    s_mov_b32 s{d}, s{base}
    s_and_b32 s{d+1}, s{base+1}, 0xffff
    s_mov_b32 s{d+2}, {nbytes}
    s_mov_b32 s{d+3}, 0x00020000
    """)


def mapping(a):
    a(f"""
    s_and_b32 s{S_XCD}, s2, 7
    s_lshr_b32 s{S_IDX}, s2, 3
    """)
    if OPT.get("map", 1) == 0:
        a(f"""
        s_and_b32 s68, s{S_IDX}, 3
        s_lshr_b32 s69, s{S_IDX}, 2
        s_lshr_b32 s{S_RB}, s{S_XCD}, 1
        s_lshl_b32 s{S_RB}, s{S_RB}, 2
        s_add_u32 s{S_RB}, s{S_RB}, s68
        s_and_b32 s{S_CB}, s{S_XCD}, 1
        s_mul_i32 s{S_CB}, s{S_CB}, 7
        s_add_u32 s{S_CB}, s{S_CB}, s69
        s_lshl_b32 s{S_PHI}, s68, 1
        s_add_u32 s{S_PHI}, s{S_PHI}, s69
        s_and_b32 s{S_PHI}, s{S_PHI}, 7
        """)
    else:
        a(f"""
        s_and_b32 s70, s{S_XCD}, 1
        s_lshl_b32 s70, s70, 2
        s_and_b32 s68, s{S_IDX}, 7
        s_lshr_b32 s69, s{S_IDX}, 3
        s_add_u32 s71, s69, s70
        s_add_u32 s72, s68, s70
        s_cmp_ge_u32 s{S_IDX}, 24
        s_cselect_b32 s71, 3, s71
        s_cselect_b32 s68, s72, s68
        s_lshr_b32 s{S_CB}, s{S_XCD}, 1
        s_and_b32 s{S_CB}, s{S_CB}, 1
        s_mul_i32 s{S_CB}, s{S_CB}, 7
        s_add_u32 s{S_CB}, s{S_CB}, s71
        s_lshr_b32 s{S_RB}, s{S_XCD}, 2
        s_lshl_b32 s{S_RB}, s{S_RB}, 3
        s_add_u32 s{S_RB}, s{S_RB}, s68
        s_lshl_b32 s{S_PHI}, s69, 1
        s_add_u32 s{S_PHI}, s{S_PHI}, s68
        s_and_b32 s{S_PHI}, s{S_PHI}, 7
        """)


def prologue(a):
    a("""
    s_cmp_ge_u32 s2, 256
    s_cbranch_scc1 L_END
    """)
    if STAMPS:
        a.ext([f"s_mov_b32 s{ST_BASE+2*k}, 0" for k in range(NST)])
    a.ext(stamp(0))
    a(f"""
    s_load_dwordx2 s[4:5], s[0:1], 0
    s_load_dwordx8 s[24:31], s[0:1], 80
    s_load_dwordx2 s[36:37], s[0:1], 128
    s_load_dwordx4 s[32:35], s[0:1], 112
    s_load_dwordx2 s[20:21], s[0:1], 64
    v_lshrrev_b32 v1, 6, v0
    v_and_b32 v0, 63, v0
    s_nop 0
    v_readfirstlane_b32 s{S_WIDX}, v1
    """)
    mapping(a)
    a(f"""
    s_cmp_ge_u32 s{S_WIDX}, 6
    s_cbranch_scc1 L_KWAVE
    s_cmp_ge_u32 s{S_WIDX}, 4
    s_cbranch_scc1 L_LWAVE
    s_waitcnt lgkmcnt(0)
    """)
    srd(a, SRD_X, S_U, 2048 * 512 * 2)
    srd(a, SRD_WS, S_WS, WS_BYTES)
    srd(a, SRD_WD, S_WD, 1792 * 512 * 2)
    srd(a, SRD_OUT, S_OUT, 2048 * 512 * 2)
    a(f"""
    s_cmp_ge_u32 s{S_IDX}, 28
    s_cbranch_scc1 L_SPARE
    """)


VL16 = 1
XD = 8
(VD0, VD1, DA0, DA1, VEP, VPH, VFL, VG, VY, VYW, VYT, VW1, VW2, VW3, VR1, VR23) = range(112, 128)
YT_BASE = YB_BASE
G_LDS = YB_BASE
N_LDS = YB_BASE + 256
def n1():
    return OPT.get("n1", 14)


def rot_scalar(dst, tmp):
    return f"""
    s_and_b32 s{dst}, s{S_IDX}, 1
    s_lshl_b32 s{dst}, s{dst}, 1
    s_lshr_b32 s{tmp}, s{S_IDX}, 3
    s_add_u32 s{dst}, s{dst}, s{tmp}
    s_and_b32 s{dst}, s{dst}, 3
    s_mul_i32 s{dst}, s{dst}, 7
    """


def gemm2_setup(a):
    a(f"""
    s_lshl_b32 s6, s{S_XCD}, 2
    s_lshr_b32 s13, s{S_IDX}, 3
    s_add_u32 s6, s6, s13
    s_and_b32 s7, s{S_IDX}, 7
    s_lshl_b32 s17, s6, 6
    s_lshr_b32 s23, s{S_WIDX}, 1
    s_lshl_b32 s13, s23, 5
    s_add_u32 s17, s17, s13
    s_lshl_b32 s18, s7, 6
    s_and_b32 s14, s{S_WIDX}, 1
    s_lshl_b32 s13, s14, 5
    s_add_u32 s18, s18, s13
    v_lshrrev_b32 v5, 5, v0
    v_and_b32 v6, 31, v0
    v_add_u32 v6, s17, v6
    v_lshlrev_b32 v7, 4, v5
    v_add_u32 v7, s18, v7
    v_lshlrev_b32 v7, 1, v7
    v_lshl_add_u32 v{VEP}, v6, 10, v7
    s_lshl_b32 s8, s{S_WIDX}, 15
    s_lshl_b32 s9, s6, 1
    s_add_u32 s9, s9, s23
    s_mul_i32 s9, s9, 112
    s_mul_i32 s13, s{S_WIDX}, 28
    s_add_u32 s9, s9, s13
    s_lshl_b32 s9, s9, 10
    s_mul_i32 s22, s23, {224*1024}
    s_sub_u32 s22, {112*1024}, s22
    s_lshl_b32 s10, s13, 14
    s_lshl_b32 s13, s7, 7
    s_add_u32 s10, s10, s13
    """)
    a(rot_scalar(12, 13))
    a(f"""
    s_add_u32 s11, s12, {n1()}
    s_cmp_ge_u32 s11, 28
    s_cselect_b32 s13, 28, 0
    s_sub_u32 s11, s11, s13
    s_lshl_b32 s15, s6, 5
    s_mul_i32 s13, s{S_WIDX}, 7
    s_add_u32 s15, s15, s13
    s_lshl_b32 s15, s15, 7
    s_add_u32 s15, s15, {FH_OFF}
    s_lshl_b32 s13, s7, 2
    s_add_u32 s13, s13, s{S_WIDX}
    s_lshl_b32 s16, s13, 10
    s_add_u32 s16, s16, {FY_OFF}
    s_lshl_b32 s19, s13, 16
    s_lshl_b32 s13, s6, 7
    s_add_u32 s19, s19, s13
    s_add_u32 s19, s19, {Y_OFF}
    v_lshlrev_b32 v{VL16}, 4, v0
    v_lshrrev_b32 v2, 3, v0
    v_and_b32 v3, 7, v0
    v_lshlrev_b32 v{VY}, 12, v2
    v_lshl_add_u32 v{VY}, v3, 4, v{VY}
    v_lshrrev_b32 v4, 1, v2
    v_and_b32 v4, 1, v4
    v_lshlrev_b32 v4, 2, v4
    v_xor_b32 v3, v3, v4
    v_lshlrev_b32 v{VD0}, 10, v2
    v_lshl_add_u32 v{VD0}, v3, 4, v{VD0}
    v_add_u32 v{VD1}, {8192-1024}, v{VD0}
    v_lshlrev_b32 v{VYW}, 7, v2
    v_lshl_add_u32 v{VYW}, v3, 4, v{VYW}
    v_add_u32 v{VYW}, s8, v{VYW}
    v_lshrrev_b32 v2, 2, v0
    v_and_b32 v2, 3, v2
    v_and_b32 v3, 3, v0
    v_lshrrev_b32 v4, 4, v0
    v_and_b32 v4, 1, v4
    v_lshl_add_u32 v6, v5, 2, v2
    v_lshlrev_b32 v6, 7, v6
    v_and_b32 v7, 1, v3
    v_lshl_add_u32 v6, v7, 5, v6
    v_lshl_add_u32 v6, v4, 4, v6
    v_lshrrev_b32 v7, 1, v3
    v_lshl_add_u32 v6, v7, 3, v6
    v_add_u32 v6, s8, v6
    v_lshrrev_b32 v7, 1, v2
    v_xor_b32 v7, s14, v7
    v_lshl_add_u32 v{DA0}, v7, 6, v6
    v_xor_b32 v7, 1, v7
    v_lshl_add_u32 v{DA1}, v7, 6, v6
    s_lshl_b32 s13, s14, 1
    v_add_u32 v6, s13, v5
    v_lshlrev_b32 v{VYT}, 15, v6
    v_lshl_add_u32 v{VYT}, v2, 7, v{VYT}
    v_lshrrev_b32 v7, 1, v2
    v_xor_b32 v7, s23, v7
    v_lshl_add_u32 v{VYT}, v7, 6, v{VYT}
    v_lshl_add_u32 v{VYT}, v4, 5, v{VYT}
    v_lshl_add_u32 v{VYT}, v3, 3, v{VYT}
    v_min_u32 v{VPH}, 6, v0
    v_lshlrev_b32 v{VPH}, 7, v{VPH}
    v_lshrrev_b32 v2, 2, v0
    v_and_b32 v2, 7, v2
    v_lshlrev_b32 v{VFL}, 7, v2
    v_lshl_add_u32 v{VFL}, v3, 2, v{VFL}
    v_and_b32 v{VG}, 31, v0
    s_lshl_b32 s13, s23, 5
    v_add_u32 v{VG}, s13, v{VG}
    v_lshlrev_b32 v{VG}, 2, v{VG}
    v_add_u32 v{VG}, {G_LDS}, v{VG}
    v_add_u32 v{VW1}, s8, v{VL16}
    s_xor_b32 s13, s{S_WIDX}, 1
    s_lshl_b32 s13, s13, 15
    v_add_u32 v{VR1}, s13, v{VL16}
    s_xor_b32 s13, s{S_WIDX}, 2
    s_lshl_b32 s13, s13, 15
    v_add_u32 v{VW2}, s13, v{VL16}
    s_xor_b32 s13, s{S_WIDX}, 3
    s_lshl_b32 s13, s13, 15
    v_add_u32 v{VW3}, s13, v{VL16}
    """)


def gemm1(a):
    XA = 16
    WA = 28
    BUFS = [64, 88, 40]
    ACC = 128

    def acc(mat, t, tt):
        return ACC + 16 * (mat * 4 + t * 2 + tt)

    def wf(b, mat, t):
        return BUFS[b] + 4 * (mat * 2 + t)

    def xf(b, tt):
        return BUFS[b] + 16 + 4 * tt

    pt = OPT.get("pt", 0)
    if pt:
        gran = {1: 21, 2: 18, 3: 16}[pt]
        a(f"""
        s_cmp_lg_u32 s{S_WIDX}, 0
        s_cbranch_scc1 L_NOTOUCH
        v_lshlrev_b32 v2, {gran}, v0
        v_mov_b32 v3, 0
        """)
        for i in range(max(1, (16 << 20) >> (gran + 6))):
            a(f"s_mov_b32 s13, {i << (gran + 6)}")
            a(f"buffer_load_dword v64, v2, {sr(SRD_WS)}, s13 offen")
        a(f"""
        buffer_load_dword v65, v2, {sr(SRD_OUT)}, 0 offen
        buffer_load_dword v66, v2, {sr(SRD_WD)}, 0 offen
        global_load_dword v67, v3, s[{S_DS}:{S_DS+1}]
        global_load_dword v68, v3, s[{S_DBG}:{S_DBG+1}] offset:128
        s_waitcnt vmcnt(0)
        L_NOTOUCH:
        """)
    gemm2_setup(a)
    a(f"""
    s_lshr_b32 s68, s{S_WIDX}, 1
    s_and_b32 s69, s{S_WIDX}, 1
    v_and_b32 v7, 31, v0
    v_lshrrev_b32 v2, 5, v0
    v_lshrrev_b32 v3, 1, v0
    v_and_b32 v3, 7, v3
    s_lshl_b32 s70, s68, 13
    v_lshlrev_b32 v4, 7, v7
    v_add_u32 v4, s70, v4
    """)
    for ks in range(4):
        a(f"""
        v_add_u32 v5, {2*ks}, v2
        v_xor_b32 v5, v5, v3
        v_lshl_add_u32 v{XA+ks}, v5, 4, v4
        """)
    a(f"""
    v_lshrrev_b32 v7, 2, v0
    v_and_b32 v7, 3, v7
    v_and_b32 v3, 3, v0
    v_lshrrev_b32 v4, 4, v0
    v_and_b32 v4, 1, v4
    v_lshl_add_u32 v5, v2, 3, v7
    v_lshlrev_b32 v5, 8, v5
    v_lshl_add_u32 v5, v4, 5, v5
    v_lshl_add_u32 v5, v3, 3, v5
    s_lshl_b32 s70, s69, 1
    """)
    for t in range(2):
        a(f"""
        s_add_u32 s71, s70, {t}
        v_xor_b32 v6, s71, v7
        v_lshl_add_u32 v{WA+t}, v6, 6, v5
        """)
    for sl in (1, 2):
        for ks in range(4):
            a(f"v_add_u32 v{XA+4*sl+ks}, {sl*SLOT}, v{XA+ks}")
        for t in range(2):
            a(f"v_add_u32 v{WA+2*sl+t}, {sl*SLOT}, v{WA+t}")
    a(f"""
    s_lshl_b32 s70, s{S_RB}, 2
    s_lshl_b32 s71, s68, 1
    s_add_u32 s70, s70, s71
    s_mul_i32 s70, s70, 112
    s_lshl_b32 s71, s{S_CB}, 3
    s_add_u32 s70, s70, s71
    s_lshl_b32 s71, s69, 2
    s_add_u32 s70, s70, s71
    s_lshl_b32 s70, s70, 10
    s_add_u32 s71, s70, {112*1024}
    s_lshl_b32 s3, s{S_RB}, 1
    s_add_u32 s3, s3, s68
    s_lshl_b32 s3, s3, 5
    s_lshl_b32 s72, s{S_CB}, 1
    s_add_u32 s3, s3, s72
    s_add_u32 s3, s3, s69
    s_lshl_b32 s3, s3, 7
    s_add_u32 s3, s3, {FH_OFF}
    s_mov_b32 s72, {f32(-LOG2E)}
    s_mov_b32 s73, {f32(-LOG2E)}
    """)

    def reads(n):
        st, ks = n >> 2, n & 3
        sl = st % 3
        b = n % 3
        r = []
        r.append(f"ds_read_b128 {v(xf(b,0),4)}, v{XA+4*sl+ks}")
        for mat in range(2):
            for t in range(2):
                for h2 in range(2):
                    off = 16384 * (1 + mat) + ks * 4096 + h2 * 1024
                    r.append(f"ds_read_b64_tr_b16 {v(wf(b,mat,t)+2*h2,2)}, v{WA+2*sl+t} offset:{off}")
                if mat == 0 and t == 0:
                    r.append(f"ds_read_b128 {v(xf(b,1),4)}, v{XA+4*sl+ks} offset:4096")
        return r

    T = 16

    def epi(p):
        t, tt = p >> 1, p & 1
        G, U = acc(0, t, tt), acc(1, t, tt)
        o = 32 + 8 * p
        L = []
        for h in range(2):
            R = range(8 * h, 8 * h + 8)
            L += [f"v_pk_mul_f32 {v(T+i,2)}, {v(G+i,2)}, s[72:73]" for i in R[::2]]
            for i in R[::2]:
                L += [f"v_exp_f32 v{T+i}, v{T+i}", f"v_exp_f32 v{T+i+1}, v{T+i+1}",
                      f"v_pk_mul_f32 {v(U+i,2)}, {v(G+i,2)}, {v(U+i,2)}"]
            L += [f"v_pk_add_f32 {v(T+i,2)}, {v(T+i,2)}, 1.0 op_sel_hi:[1,0]" for i in R[::2]]
            L += [f"v_rcp_f32 v{T+i}, v{T+i}" for i in R]
            L += [f"v_pk_mul_f32 {v(U+i,2)}, {v(U+i,2)}, {v(T+i,2)}" for i in R[::2]]
            for i in range(4):
                L.append(f"v_cvt_pk_bf16_f32 v{o+4*h+i}, v{U+8*h+2*i}, v{U+8*h+2*i+1}")
            L.append(f"buffer_store_dwordx4 {v(o+4*h,4)}, v{VL16}, {sr(SRD_WS)}, s{70+tt} offen offset:{t*2048+1024*h} sc1")
        return L

    a("s_barrier")
    a.ext(stamp(1))
    a.ext(bstamp(2, 1))
    a.ext(reads(0))
    a.ext(reads(1))
    extra = []
    XL = OPT.get("xl", 13)
    for n in range(32):
        b = n % 3
        if (n & 3) == 2:
            a("s_waitcnt lgkmcnt(0)")
            a.ext(bstamp(2, 2 + (n >> 2)))
            a("s_barrier")
            if n == 22:
                a.ext(stamp(2))
        elif (n & 3) != 3:
            a("s_waitcnt lgkmcnt(10)")
        rd = reads(n + 2) if n + 2 < 32 else []
        mf = []
        for t in range(2):
            for tt in range(2):
                for mat in range(2):
                    c = "0" if n == 0 else v(acc(mat, t, tt), 16)
                    mf.append(f"v_mfma_f32_32x32x16_bf16 {v(acc(mat,t,tt),16)}, {v(wf(b,mat,t),4)}, {v(xf(b,tt),4)}, {c}")
        if n == 30:
            extra = [f"v_mov_b32 v2, {N_LDS}", "ds_read_b32 v3, v2"]
        for i, m in enumerate(mf):
            a(m)
            a.ext(rd[2 * i:2 * i + 2])
            if i >= 4:
                a.ext(extra[:3])
                extra = extra[3:]
    assert not extra
    a.ext(stamp(3))
    if OPT.get("eprio", 0):
        a(f"s_setprio {OPT['eprio']}")
    a(f"s_waitcnt lgkmcnt(0)\nv_readfirstlane_b32 s{S_NONCE}, v3\ns_nop 5")
    for p in range(4):
        a.ext(epi(p))
    a.ext(stamp(4))
    a("s_branch L_GEMM2")


def spare(a):
    R = 16
    O = 80
    GWv = 112
    SUM = 120
    a(f"""
    s_sub_u32 s68, s{S_IDX}, 28
    s_lshl_b32 s3, s{S_XCD}, 2
    s_add_u32 s3, s3, s68
    s_lshl_b32 s3, s3, 5
    s_add_u32 s3, s3, s{S_WIDX}
    s_lshl_b32 s3, s3, 2
    s_add_u32 s3, s3, {FU_OFF}
    s_lshl_b32 s68, s68, 2
    s_add_u32 s68, s68, s{S_WIDX}
    s_lshr_b32 s69, s68, 1
    s_mov_b32 s74, s{S_XCD}
    v_and_b32 v1, 7, v0
    v_lshrrev_b32 v2, 3, v0
    v_lshlrev_b32 v3, 15, v2
    v_lshl_add_u32 v3, v1, 4, v3
    v_lshlrev_b32 v4, 15, v1
    v_lshl_add_u32 v4, v2, 4, v4
    v_lshlrev_b32 v5, 4, v1
    v_lshlrev_b32 v6, 2, v0
    s_mov_b32 s70, 0x05040100
    s_mov_b32 s71, 0x07060302
    s_lshl_b32 s72, s69, 7
    v_add_u32 v7, s72, v5
    global_load_dwordx4 {v(GWv,4)}, v7, s[{S_GW}:{S_GW+1}]
    """)
    for i in range(2):
        b = 6 + 4 * i
        a(f"""
        s_lshl_b32 s73, s68, 1
        s_add_u32 s73, s73, {i}
        s_and_b32 s73, s73, 3
        s_lshl_b32 s{b}, s74, 18
        s_lshl_b32 s75, s73, 10
        s_add_u32 s{b}, s{b}, s75
        s_add_u32 s{b}, s{b}, s72
        s_lshl_b32 s{b+1}, s69, 18
        s_add_u32 s{b+1}, s{b+1}, s75
        s_lshl_b32 s75, s74, 7
        s_add_u32 s{b+1}, s{b+1}, s75
        s_add_u32 s{b+1}, s{b+1}, {UT_OFF}
        s_lshl_b32 s{b+2}, s74, 8
        s_lshl_b32 s75, s73, 11
        s_add_u32 s{b+2}, s{b+2}, s75
        s_lshl_b32 s75, s69, 13
        s_add_u32 s{b+2}, s{b+2}, s75
        s_add_u32 s{b+2}, s{b+2}, {GL_OFF}
        """)
        for j in range(8):
            a(f"buffer_load_dwordx4 {v(R+32*i+4*j,4)}, v3, {sr(SRD_X)}, s{b} offen")
            if j < 7:
                a(f"s_add_u32 s{b}, s{b}, 4096")
    for i in range(2):
        b = 6 + 4 * i
        a(f"s_waitcnt vmcnt({8 if i == 0 else 9})")
        Ri = R + 32 * i
        for e in range(8):
            for jj in range(4):
                sel = 71 if (e & 1) else 70
                a(f"v_perm_b32 v{O+4*e+jj}, v{Ri+4*(2*jj+1)+(e>>1)}, v{Ri+4*(2*jj)+(e>>1)}, s{sel}")
            a(f"buffer_store_dwordx4 {v(O+4*e,4)}, v4, {sr(SRD_WS)}, s{b+1} offen sc1")
            if e < 7:
                a(f"s_add_u32 s{b+1}, s{b+1}, 4096")
        for j in range(8):
            a(f"v_mov_b32 v{SUM+j}, 0")
        for q in range(4):
            for j in range(8):
                a(f"v_dot2c_f32_bf16 v{SUM+j}, v{Ri+4*j+q}, v{GWv+q}")
        a("s_nop 3")
        for ctl in ("quad_perm:[1,0,3,2]", "quad_perm:[2,3,0,1]", "row_half_mirror"):
            for j in range(8):
                a(f"v_add_f32_dpp v{SUM+j}, v{SUM+j}, v{SUM+j} {ctl} row_mask:0xf bank_mask:0xf")
        for j in range(1, 8):
            a(f"""
            v_cmp_eq_u32 vcc, {j}, v1
            s_nop 1
            v_cndmask_b32 v{SUM}, v{SUM}, v{SUM+j}, vcc
            """)
        a(f"buffer_store_dword v{SUM}, v6, {sr(SRD_WS)}, s{b+2} offen sc1")
        a("s_nop 1")
    a.ext(stamp(1))
    a("v_mov_b32 v2, 0")
    a(nonce_ld(3, 2))
    a("s_waitcnt vmcnt(0)")
    a.ext(plain(nonce_get("NS", 3, 2)))
    a(f"""
    s_mov_b32 s76, s{S_NONCE}
    s_mov_b64 exec, 1
    buffer_store_dword v3, v2, {sr(SRD_WS)}, s3 offen sc1
    s_mov_b64 exec, -1
    s_barrier
    """)
    a.ext(stamp(2))
    gemm2_setup(a)
    a(f"""
    s_lshl_b32 s13, s{S_XCD}, 2
    s_add_u32 s13, s13, s{S_IDX}
    s_sub_u32 s13, s13, 28
    s_lshl_b32 s13, s13, 2
    s_add_u32 s13, s13, s{S_WIDX}
    s_mul_i32 s13, s13, {14*1024}
    """)
    for i in range(14):
        if i % 4 == 0 and i:
            a("s_add_u32 s13, s13, 4096")
        a(f"buffer_load_dwordx4 {v(64+4*(i%4),4)}, v{VL16}, {sr(SRD_WD)}, s13 offen offset:{1024*(i%4)}")
    a(f"s_mov_b32 s{S_NONCE}, s76\ns_waitcnt vmcnt(0)")


def spin(label, loads, checks, sleep=2):
    L = [f"{label}_SPIN:", f"s_sleep {sleep}"]
    L += [("NOCOUNT", x) for x in loads]
    L += ["s_waitcnt vmcnt(0)"]
    L += ["s_sub_u32 s77, s77, 1", "s_cmp_eq_u32 s77, 0", f"s_cbranch_scc1 {label}_OK"]
    L += [f"{label}_CHK:"] + checks
    L += [f"s_cbranch_scc0 {label}_SPIN", f"{label}_OK:"]
    return L


S_NONCE = 23


def nonce_ld(vd, vz):
    return f"global_load_dword v{vd}, v{vz}, s[{S_DBG}:{S_DBG+1}] sc1"


def nonce_get(label, vd, vz, sleep=8):
    L = ["s_mov_b32 s77, 0x100000", f"s_branch {label}_CHK"]
    L += spin(label, [nonce_ld(vd, vz)], [f"v_cmp_ne_u32 vcc, 0, v{vd}", "s_nop 3", "s_cmp_eq_u64 vcc, exec"], sleep)
    L += [f"v_readfirstlane_b32 s{S_NONCE}, v{vd}", "s_nop 3"]
    return L


def plain(lines):
    return [x[1] if isinstance(x, tuple) else x for x in lines]


def gemm2(a0):
    a = Asm()
    NS = 28
    NP = 12
    NR = 16
    DH = 6
    ACC = 192
    WF = 16
    WFR = 128
    HB = 144
    N1 = n1()
    NF = OPT.get("nf", 2)
    PP1 = OPT.get("pp1", 21)
    N2 = OPT.get("n2", 28)

    def acc(t, tt):
        return ACC + 16 * (t + 2 * tt)

    def wload(i):
        sl = i % NR
        return [
            "s_lshl_b32 s14, s11, 14", f"s_add_u32 m0, s8, {sl*2048}", "s_add_u32 s14, s14, s10",
            f"buffer_load_dwordx4 v{VD0}, {sr(SRD_WD)}, s14 offen lds",
            "s_add_u32 s11, s11, 1", "s_cmp_ge_u32 s11, 28", "s_cselect_b32 s11, 0, s11",
            f"buffer_load_dwordx4 v{VD1}, {sr(SRD_WD)}, s14 offen offset:1024 lds",
            ("VMTAG", f"W{i}"),
        ]

    def hload(i):
        sl = i % DH
        return [
            "s_lshl_b32 s13, s12, 10", "s_add_u32 s13, s13, s9",
            f"buffer_load_dwordx4 {v(HB+8*sl,4)}, v{VL16}, {sr(SRD_WS)}, s13 offen sc1",
            "s_add_u32 s13, s13, s22",
            "s_add_u32 s12, s12, 1", "s_cmp_ge_u32 s12, 28", "s_cselect_b32 s12, 0, s12",
            f"buffer_load_dwordx4 {v(HB+8*sl+4,4)}, v{VL16}, {sr(SRD_WS)}, s13 offen sc1",
            ("VMTAG", f"H{i}"),
        ]

    def wfrag(i):
        return WF + 8 * i if i < NP else WFR + 8 * (i & 1)

    def trd(i):
        sl = i % NR
        r = [("VMWAIT", f"W{i}")] if i >= N1 else []
        for t in range(2):
            for h2 in range(2):
                r.append(f"ds_read_b64_tr_b16 {v(wfrag(i)+4*t+2*h2,2)}, v{DA0+t} offset:{sl*2048+h2*1024}")
        return r

    a.tag("hst")
    a("s_barrier")
    a.ext(stamp(5))
    a(f"""
    s_setprio 2
    v_mov_b32 v2, 0
    v_mov_b32 v3, s{S_NONCE}
    s_mov_b32 s77, 0x100000
    """)
    ph_ld = f"buffer_load_dword v4, v{VPH}, {sr(SRD_WS)}, s15 offen sc1"

    def wl(i):
        a.ext(wload(i))
        if i == N1 + NF - 1:
            a.wait("hst")
            a(f"""
            s_mov_b64 exec, 1
            buffer_store_dword v3, v2, {sr(SRD_WS)}, s3 offen sc1
            s_mov_b64 exec, -1
            """)
            a.ext(stamp(6))
        if i == PP1:
            a(ph_ld)
            a.tag("P1")
    assert N1 + NF <= NR
    for i in range(N1, NR):
        wl(i)
    for i in range(NP + 1):
        if i < NP:
            a.ext(trd(i))
        if i >= 1 and NR + i - 1 < N2:
            a(f"s_waitcnt lgkmcnt({4 if i < NP else 0})")
            wl(NR + i - 1)
    a.ext(stamp(7))
    a.wait("P1")
    a("s_branch PH_CHK")
    a.ext(spin("PH", [ph_ld], [f"v_cmp_eq_u32 vcc, s{S_NONCE}, v4", "s_nop 3", "s_cmp_eq_u64 vcc, exec"]))
    a.ext(stamp(8))
    a.ext(bstamp(3, 1))
    for i in range(DH):
        a.ext(hload(i))
    a("s_waitcnt lgkmcnt(0)")

    YR, FL, YT, EG = 80, 2, WFR, 6
    fl_ld = [f"buffer_load_dword v{FL}, v{VFL}, {sr(SRD_WS)}, s16 offen sc1"]
    chk = [f"v_cmp_eq_u32 vcc, s{S_NONCE}, v{FL}", "s_nop 3", "s_cmp_eq_u64 vcc, exec"]

    def yloads():
        return [f"buffer_load_dwordx4 {v(YR,4)}, v{VY}, {sr(SRD_WS)}, s19 offen sc1",
                "s_add_u32 s13, s19, 0x8000",
                f"buffer_load_dwordx4 {v(YR+4,4)}, v{VY}, {sr(SRD_WS)}, s13 offen sc1"]

    IF = OPT.get("if", 22)
    IY = OPT.get("iy", 25)
    for i in range(NS):
        sl = i % DH
        a.wait(f"H{i}")
        if i >= NP:
            a("s_waitcnt lgkmcnt(0)")
        hl = hload(i - 1 + DH) if 1 <= i and i - 1 + DH < NS else []
        fill = [(trd(i + 1) if NP <= i + 1 < NS else []) + hl[:3], hl[3:], wload(N2 + i) if N2 + i < NS else [], []]
        k = 0
        for t in range(2):
            for tt in range(2):
                c = "0" if i == 0 else v(acc(t, tt), 16)
                a(f"v_mfma_f32_32x32x16_bf16 {v(acc(t,tt),16)}, {v(wfrag(i)+4*t,4)}, {v(HB+8*sl+4*tt,4)}, {c}")
                a.ext(fill[k])
                k += 1
        if i in (0, 3, 7, 11, 15, 19, 23, 27):
            a.ext(bstamp(3, 2 + (0, 3, 7, 11, 15, 19, 23, 27).index(i)))
        if i == IF:
            a.ext(fl_ld)
            a.tag("F")
        if i == IY:
            a.wait("F")
            a.ext(yloads())
    a.ext(stamp(9))
    a.ext(chk)
    a("s_cbranch_scc1 PY_DONE")
    a.ext(spin("PY", fl_ld, chk))
    a.ext([("NOCOUNT", x) if is_vmem(x) else x for x in yloads()])
    a("PY_DONE:")
    a("s_nop 5")
    for k in range(1, 4):
        for g in range(4):
            a(f"ds_write_b128 v{VW1}, {v(ACC+16*k+4*g,4)} offset:{k*4096+g*1024}")
    X1, Y1 = HB, HB + 16
    OST = {0: "", 1: " sc1", 2: " nt", 3: " sc0 sc1"}[OPT.get("ost", 0)]
    a(f"""
    v_mov_b32 v5, 0xffff0000
    ds_read_b32 v{EG}, v{VG}
    s_waitcnt vmcnt(0)
    ds_write_b128 v{VYW}, {v(YR,4)} offset:16384
    ds_write_b128 v{VYW}, {v(YR+4,4)} offset:17408
    """)
    a("s_waitcnt lgkmcnt(0)")
    a("s_barrier")
    PB = 16
    for q in range(4):
        a(f"ds_read_b64_tr_b16 {v(YT+2*q,2)}, v{VYT} offset:{16384+q*512}")
    for k, base in ((1, VR1), (2, VW2), (3, VW3)):
        for g in range(4):
            a(f"ds_read_b128 {v(PB+16*(k-1)+4*g,4)}, v{base} offset:{k*4096+g*1024}")
    a("s_waitcnt lgkmcnt(12)")
    for i in range(8):
        a(f"""
        v_lshlrev_b32 v{Y1+2*i}, 16, v{YT+i}
        v_and_b32 v{Y1+2*i+1}, v5, v{YT+i}
        """)
    a("s_waitcnt lgkmcnt(8)")
    for i in range(0, 16, 2):
        a(f"v_pk_add_f32 {v(ACC+i,2)}, {v(ACC+i,2)}, {v(PB+i,2)}")
    a("s_waitcnt lgkmcnt(0)")
    for i in range(0, 16, 2):
        a(f"v_pk_add_f32 {v(PB+16+i,2)}, {v(PB+16+i,2)}, {v(PB+32+i,2)}")
    for i in range(0, 16, 2):
        a(f"v_pk_add_f32 {v(ACC+i,2)}, {v(ACC+i,2)}, {v(PB+16+i,2)}")
    for i in range(0, 16, 2):
        a(f"v_pk_add_f32 {v(Y1+i,2)}, {v(Y1+i,2)}, {v(ACC+i,2)} neg_lo:[0,1] neg_hi:[0,1]")
    for i in range(0, 16, 2):
        a(f"v_pk_fma_f32 {v(ACC+i,2)}, {v(Y1+i,2)}, {v(EG,2)}, {v(ACC+i,2)} op_sel_hi:[1,0,1]")
    for i in range(8):
        a(f"v_cvt_pk_bf16_f32 v{X1+i}, v{ACC+2*i}, v{ACC+2*i+1}")
    a(f"""
    buffer_store_dwordx4 {v(X1,4)}, v{VEP}, {sr(SRD_OUT)}, 0 offen{OST}
    buffer_store_dwordx4 {v(X1+4,4)}, v{VEP}, {sr(SRD_OUT)}, 0 offen offset:16{OST}
    """)
    a.ext(stamp_end())
    a0.ext(resolve_vm(a.L))


def kwave(gemm_wg):
    sfx = "G" if gemm_wg else "S"
    ra = RA(2, 256)
    pre = Asm()
    main = Asm()
    ph2 = Asm()
    a = pre
    a(f"""
    s_setprio {OPT.get("kprio", 0)}
    s_sub_u32 s68, s{S_WIDX}, 6
    s_lshl_b32 s69, s2, 1
    s_add_u32 s69, s69, s68
    s_lshl_b32 s70, s68, 13
    s_add_u32 s70, s70, {KG_BASE}
    s_lshl_b32 s71, s69, 8
    """)
    t0 = ra(); t1 = ra(); t2 = ra(); t3 = ra()
    PR = ra(7)
    DV = ra()
    a(f"""
    v_lshlrev_b32 v{t0}, 2, v0
    v_add_u32 v{t0}, s71, v{t0}
    s_lshl_b32 s72, s69, 1
    v_mov_b32 v{t1}, s72
    """)
    for i, sb in enumerate((S_ARE, S_AIM, S_BRE, S_BIM, S_CRE, S_CIM)):
        a(f"global_load_dword v{PR+i}, v{t0}, s[{sb}:{sb+1}]")
    a(f"global_load_ushort v{PR+6}, v{t1}, s[{S_LDT}:{S_LDT+1}]")
    a(f"global_load_ushort v{DV}, v{t1}, s[{S_DS}:{S_DS+1}]")
    if gemm_wg:
        a(f"""
        s_cmp_lg_u32 s69, 0
        s_cbranch_scc1 K{sfx}_NOTAG
        s_memrealtime s[72:73]
        v_mov_b32 v{t0}, 0
        s_waitcnt lgkmcnt(0)
        s_or_b32 s72, s72, 1
        v_mov_b32 v{t1}, s72
        s_mov_b64 exec, 1
        global_store_dword v{t0}, v{t1}, s[{S_DBG}:{S_DBG+1}] sc1
        s_mov_b64 exec, -1
        K{sfx}_NOTAG:
        """)

    WR = ra(8)
    RD = ra(2)
    a(f"""
    v_lshrrev_b32 v{t0}, 1, v0
    v_and_b32 v{t1}, 7, v{t0}
    v_lshlrev_b32 v{t0}, 8, v{t0}
    v_and_b32 v{t2}, 1, v0
    v_lshl_add_u32 v{t0}, v{t2}, 3, v{t0}
    v_add_u32 v{t0}, s70, v{t0}
    """)
    for b in range(8):
        a(f"""
        v_xor_b32 v{t2}, {b}, v{t1}
        v_lshl_add_u32 v{WR+b}, v{t2}, 4, v{t0}
        """)
    a(f"""
    v_and_b32 v{t0}, 15, v0
    v_lshrrev_b32 v{t1}, 4, v0
    """)
    for p in range(2):
        a(f"""
        v_add_u32 v{t2}, {4*p}, v{t1}
        v_xor_b32 v{t3}, v{t2}, v{t0}
        v_lshlrev_b32 v{t3}, 4, v{t3}
        v_lshl_add_u32 v{t3}, v{t2}, 8, v{t3}
        v_add_u32 v{RD+p}, s70, v{t3}
        """)
    TA0 = ra(); TA1 = ra(); TA2 = ra(); TA3 = ra()
    LP = ra(12)
    a(f"""
    v_and_b32 v{t2}, 1, v{t1}
    v_lshrrev_b32 v{t3}, 1, v{t1}
    v_lshlrev_b32 v{TA0}, 5, v{t0}
    v_lshl_add_u32 v{TA0}, v{t2}, 4, v{TA0}
    v_lshl_add_u32 v{TA0}, v{t3}, 9, v{TA0}
    v_lshrrev_b32 v{LP}, 2, v{TA0}
    v_cvt_f32_u32 v{LP}, v{LP}
    v_add_u32 v{TA0}, s70, v{TA0}
    v_add_f32 v{LP+1}, 1.0, v{LP}
    v_add_f32 v{LP+2}, 2.0, v{LP}
    v_add_f32 v{LP+3}, 2.0, v{LP+1}
    v_cmp_gt_u32 vcc, 2, v{t1}
    v_lshlrev_b32 v{TA1}, 4, v{t0}
    v_lshlrev_b32 v{TA2}, 3, v{t0}
    v_cndmask_b32 v{TA1}, v{TA2}, v{TA1}, vcc
    v_lshl_add_u32 v{TA1}, v{t1}, 8, v{TA1}
    v_add_u32 v{TA1}, s70, v{TA1}
    v_add_u32 v{TA1}, 1024, v{TA1}
    v_mov_b32 v{TA2}, 128
    v_cndmask_b32 v{TA2}, v{TA2}, 8, vcc
    v_add_u32 v{TA2}, v{TA2}, v{TA1}
    v_lshlrev_b32 v{TA3}, 2, v{t0}
    v_lshl_add_u32 v{TA3}, v{t1}, 8, v{TA3}
    v_add_u32 v{TA3}, s70, v{TA3}
    """)
    a(f"""
    v_lshlrev_b32 v{t2}, 7, v{t1}
    v_add_u32 v{t2}, 256, v{t2}
    v_lshlrev_b32 v{t3}, 8, v{t1}
    v_cndmask_b32 v{t2}, v{t3}, v{t2}, vcc
    v_lshl_add_u32 v{t2}, v{t0}, 3, v{t2}
    v_cvt_f32_u32 v{LP+4}, v{t2}
    v_mov_b32 v{t2}, 4.0
    v_cndmask_b32 v{t2}, v{t2}, 2.0, vcc
    v_mov_b32 v{t3}, {f32(128.0)}
    v_cndmask_b32 v{t3}, v{t3}, 4.0, vcc
    v_add_f32 v{LP+5}, v{LP+4}, v{t2}
    v_add_f32 v{LP+6}, v{LP+4}, v{t3}
    v_add_f32 v{LP+7}, v{LP+6}, v{t2}
    v_lshlrev_b32 v{t2}, 9, v{t1}
    v_lshl_add_u32 v{t2}, v{t0}, 3, v{t2}
    v_add_u32 v{t2}, 1024, v{t2}
    v_cvt_f32_u32 v{LP+8}, v{t2}
    v_add_f32 v{LP+9}, {f32(128.0)}, v{LP+8}
    v_add_f32 v{LP+10}, {f32(256.0)}, v{LP+8}
    v_add_f32 v{LP+11}, {f32(384.0)}, v{LP+8}
    """)
    EX = ra(10)
    a(f"""
    s_sub_u32 s72, s70, {4*17024}
    v_lshlrev_b32 v{t0}, 3, v0
    v_cvt_f32_u32 v{t1}, v{t0}
    v_cmp_gt_u32 vcc, 16, v0
    v_add_u32 v{EX+8}, s70, v{t0}
    v_lshlrev_b32 v{t0}, 2, v{t0}
    v_add_u32 v{t0}, s70, v{t0}
    v_lshlrev_b32 v{EX+9}, 2, v0
    v_add_u32 v{EX+9}, s70, v{EX+9}
    v_add_u32 v{EX+9}, 2048, v{EX+9}
    """)
    for kk in range(4):
        e0, e1 = EX + 2 * kk, EX + 2 * kk + 1
        a(f"""
        v_add_f32 v{t2}, 1.0, v{t1}
        v_cvt_pk_bf16_f32 v{t3}, v{t1}, v{t2}
        v_add_f32 v{t1}, 2.0, v{t1}
        v_and_b32 v{e0}, 0xffff, v{t3}
        v_lshrrev_b32 v{e1}, 16, v{t3}
        v_lshl_add_u32 v{e0}, v{e0}, 2, s72
        v_lshl_add_u32 v{e1}, v{e1}, 2, s72
        v_add_u32 v{t2}, {8*kk}, v{t0}
        v_add_u32 v{t3}, {8*kk+4}, v{t0}
        v_cndmask_b32 v{e0}, v{e0}, v{t2}, vcc
        v_cndmask_b32 v{e1}, v{e1}, v{t3}, vcc
        """)

    a = main
    a("s_waitcnt vmcnt(0)")
    MASK = ra()
    DT = ra()
    PP = ra(12)
    a(f"""
    v_mov_b32 v{MASK}, 0xffff0000
    v_cmp_eq_u32 vcc, 0, v0
    v_lshlrev_b32 v{DV}, 16, v{DV}
    s_nop 0
    v_cndmask_b32 v{DV}, 0, v{DV}, vcc
    """)
    for i in range(6):
        a(f"v_lshlrev_b32 v{PP+2*i}, 16, v{PR+i}")
        a(f"v_and_b32 v{PP+2*i+1}, v{MASK}, v{PR+i}")
    x = PR + 6
    a(f"""
    v_lshlrev_b32 v{x}, 16, v{x}
    v_mul_f32 v{t0}, {f32(LOG2E_HI)}, v{x}
    s_mov_b32 s72, {f32(LOG2E_HI)}
    v_fma_f32 v{t1}, v{x}, s72, -v{t0}
    v_fmac_f32 v{t1}, {f32(LOG2E_LO)}, v{x}
    v_exp_f32 v{t0}, v{t0}
    v_mul_f32 v{t1}, {f32(LN2)}, v{t1}
    v_fmac_f32 v{t0}, v{t0}, v{t1}
    v_cvt_pk_bf16_f32 v{t0}, v{t0}, v{t0}
    v_lshlrev_b32 v{DT}, 16, v{t0}
    """)
    A2, TH, Br, Bi, Cr, Ci = (PP + 2 * i for i in range(6))
    for m in range(2):
        a(f"""
        v_mul_f32 v{A2+m}, v{DT}, v{A2+m}
        v_mul_f32 v{TH+m}, v{DT}, v{TH+m}
        v_mul_f32 v{Br+m}, v{DT}, v{Br+m}
        v_mul_f32 v{Bi+m}, v{DT}, v{Bi+m}
        v_mul_f32 v{A2+m}, {f32(LOG2E)}, v{A2+m}
        v_mul_f32 v{TH+m}, {f32(INV2PI)}, v{TH+m}
        """)
    W0 = ra(4); W1 = ra(4)
    for m in range(2):
        a(f"""
        v_mul_f32 v{W0+2*m}, v{Cr+m}, v{Br+m}
        v_mul_f32 v{W0+2*m+1}, v{Cr+m}, v{Bi+m}
        v_fma_f32 v{W0+2*m}, -v{Ci+m}, v{Bi+m}, v{W0+2*m}
        v_fmac_f32 v{W0+2*m+1}, v{Ci+m}, v{Br+m}
        v_sub_f32 v{W0+2*m+1}, 0, v{W0+2*m+1}
        """)
    SIG = ra(); WM = ra(); CE = ra()
    a(f"""
    v_max_f32 v{SIG}, v{A2}, v{A2+1}
    v_max3_f32 v{WM}, |v{W0}|, |v{W0+1}|, |v{W0+2}|
    v_max_f32 v{WM}, |v{W0+3}|, v{WM}
    s_nop 1
    """)
    for ctl in ("quad_perm:[1,0,3,2]", "quad_perm:[2,3,0,1]", "row_half_mirror", "row_mirror"):
        a(f"""
        v_max_f32_dpp v{SIG}, v{SIG}, v{SIG} {ctl} row_mask:0xf bank_mask:0xf
        v_max_f32_dpp v{WM}, v{WM}, v{WM} {ctl} row_mask:0xf bank_mask:0xf
        s_nop 0
        """)
    a(f"""
    v_readlane_b32 s72, v{SIG}, 0
    v_readlane_b32 s73, v{SIG}, 16
    v_readlane_b32 s74, v{SIG}, 32
    v_readlane_b32 s75, v{SIG}, 48
    v_readlane_b32 s6, v{WM}, 0
    v_readlane_b32 s7, v{WM}, 16
    v_readlane_b32 s8, v{WM}, 32
    v_readlane_b32 s9, v{WM}, 48
    v_max_f32 v{SIG}, s72, v{SIG}
    v_max_f32 v{SIG}, s73, v{SIG}
    v_max_f32 v{SIG}, s74, v{SIG}
    v_max_f32 v{SIG}, s75, v{SIG}
    v_max_f32 v{WM}, s6, v{WM}
    v_max_f32 v{WM}, s7, v{WM}
    v_max_f32 v{WM}, s8, v{WM}
    v_max_f32 v{WM}, s9, v{WM}
    v_sub_f32 v{A2}, v{A2}, v{SIG}
    v_sub_f32 v{A2+1}, v{A2+1}, v{SIG}
    v_frexp_exp_i32_f32 v{CE}, v{WM}
    v_sub_u32 v{t0}, 14, v{CE}
    v_subrev_u32 v{CE}, 29, v{CE}
    """)
    for i in range(4):
        a(f"v_ldexp_f32 v{W0+i}, v{W0+i}, v{t0}")

    def cexp(l):
        r = ra(6)
        for m in range(2):
            a(f"""
            v_mul_f32 v{t0}, {f32(float(l))}, v{A2+m}
            v_mul_f32 v{t1}, {f32(float(l))}, v{TH+m}
            v_exp_f32 v{t0}, v{t0}
            v_fract_f32 v{t1}, v{t1}
            v_cos_f32 v{t2}, v{t1}
            v_sin_f32 v{t3}, v{t1}
            s_nop 0
            v_mul_f32 v{r+2*m}, v{t0}, v{t2}
            v_mul_f32 v{r+2*m+1}, v{t0}, v{t3}
            v_sub_f32 v{r+4+m}, 0, v{r+2*m+1}
            """)
        return r

    def cmul(d, x_, b, conj=False):
        for m in range(2):
            br, bi, nbi = b + 2 * m, b + 2 * m + 1, b + 4 + m
            if conj:
                bi, nbi = nbi, bi
            a(f"""
            v_mul_f32 v{d+2*m}, v{x_+2*m}, v{br}
            v_mul_f32 v{d+2*m+1}, v{x_+2*m}, v{bi}
            v_fmac_f32 v{d+2*m}, v{x_+2*m+1}, v{nbi}
            v_fmac_f32 v{d+2*m+1}, v{x_+2*m+1}, v{br}
            """)

    def neg(b):
        for m in range(2):
            a(f"v_sub_f32 v{b+4+m}, 0, v{b+2*m+1}")

    def scale(d, x_):
        for i in range(4):
            a(f"v_mul_f32 v{d+i}, {f32(32768.0)}, v{x_+i}")

    VB = [ra(32, 4), ra(32, 4), ra(32, 4), ra(18, 4)]
    CH0 = ra(0, 4)

    def put(batch, row, r):
        h = VB[batch] + 2 * row
        if r is None:
            a(f"v_mov_b32 v{h}, 0x7800\nv_mov_b32 v{h+1}, 0x7800")
        else:
            a(f"""
            v_cvt_pk_f16_f32 v{h}, v{r}, v{r+1}
            v_cvt_pk_f16_f32 v{h+1}, v{r+2}, v{r+3}
            """)

    E8 = cexp(8)
    cur, nxt = W0, W1
    for c in range(16):
        if c < 15:
            cmul(nxt, cur, E8, conj=True)
        put(0, c, cur)
        cur, nxt = nxt, cur
    E1 = cexp(1)
    Q1 = cexp(128)
    Q8 = cexp(1024)
    P = {}
    P[1] = ra(4)
    scale(P[1], E1)
    for j in range(2, 8):
        P[j] = ra(6 if j == 4 else 4)
        cmul(P[j], P[j - 1], E1)
    put(1, 0, None)
    for j in range(1, 8):
        put(1, j, P[j])
    scale(W0, Q1)
    put(1, 8, W0)
    for j in range(1, 8):
        cmul(W0, P[j], Q1)
        put(1, 8 + j, W0)
    Q = {1: Q1, 8: Q8}
    for j in range(2, 8):
        Q[j] = {2: E1, 3: PP + 4}[j] if j < 4 else P[2 * (j - 4) + 1]
        cmul(Q[j], Q[j - 1], Q1)
    neg(P[4]); neg(Q[2]); neg(Q[3])
    for qi, j in enumerate((2, 3)):
        scale(W0, Q[j])
        put(2, 4 * qi, W0)
        for r in range(1, 4):
            cmul(W0, P[2 * r], Q[j])
            put(2, 4 * qi + r, W0)
    for aa in range(4):
        scale(W0, Q[4 + aa])
        put(2, 8 + 2 * aa, W0)
        cmul(W0, Q[4 + aa], P[4])
        put(2, 8 + 2 * aa + 1, W0)
    a(f"v_mov_b32 v{PR}, 0")
    a(nonce_ld(PR + 1, PR))
    QS = E8
    scale(QS, Q8)
    neg(QS)
    put(3, 0, QS)
    for j in range(1, 8):
        cmul(W0, Q[j], QS)
        put(3, j, W0)
    cmul(W0, Q8, QS)
    put(3, 8, W0)
    for i in range(12):
        a(f"v_mul_f32 v{LP+i}, v{SIG}, v{LP+i}")
    for i in range(12):
        a(f"v_exp_f32 v{LP+i}, v{LP+i}")

    a = ph2
    YF = CH0
    AC = CH0 + 32
    assert AC + 12 <= ra.p

    def wr(batch, nrows):
        for row in range(nrows):
            a(f"ds_write_b64 v{WR+(row&7)}, {v(VB[batch]+2*row,2)} offset:{(row>>3)*128}")

    def fetch(F):
        for ks in range(8):
            a(f"ds_read_b128 {v(F+4*ks,4)}, v{RD+(ks&1)} offset:{(ks>>1)*2048}")

    def mfmas(tile, XF):
        for ks in range(8):
            c = "0" if ks == 0 else v(AC + 4 * tile, 4)
            a(f"v_mfma_f32_16x16x32_f16 {v(AC+4*tile,4)}, {v(XF+4*ks,4)}, {v(YF+4*ks,4)}, {c}")

    a("s_waitcnt vmcnt(0)")
    ng = plain(nonce_get(f"NK{sfx}", PR + 1, PR))
    a(f"v_mov_b32 v{t2}, {N_LDS}")
    a(f"ds_write_b32 v{t2}, v{PR+1}")
    wr(0, 16); fetch(YF)
    wr(1, 16); fetch(VB[0])
    wr(2, 16); fetch(VB[1])
    a("s_waitcnt lgkmcnt(15)")
    mf0 = len(a.L)
    wr(3, 9); fetch(VB[2])
    tail = a.L[mf0:]
    del a.L[mf0:]
    m = Asm()
    sv, a = a, m
    mfmas(0, VB[0])
    a = sv
    for i in range(8):
        a.ext(tail[2 * i:2 * i + 2])
        a(m.L[i])
    a.ext(tail[16:])
    a("s_waitcnt lgkmcnt(15)")
    mfmas(1, VB[1])
    a("s_waitcnt lgkmcnt(0)")
    mfmas(2, VB[2])
    a("s_nop 3")
    for i in range(12):
        a(f"v_mul_f32 v{AC+i}, v{AC+i}, v{LP+i}")
    for i in range(12):
        a(f"v_ldexp_f32 v{AC+i}, v{AC+i}, v{CE}")
    a(f"v_add_f32 v{AC}, v{AC}, v{DV}")
    a(f"ds_write_b128 v{TA0}, {v(AC,4)}")
    a(f"ds_write_b64 v{TA1}, {v(AC+4,2)}")
    a(f"ds_write_b64 v{TA2}, {v(AC+6,2)}")
    for r in range(4):
        a(f"ds_write_b32 v{TA3}, v{AC+8+r} offset:{2048+64*r}")
    G0 = VB[0]
    OUT = VB[1]
    for i in range(8):
        a(f"ds_read_b32 v{G0+i}, v{EX+i}")
    a(f"""
    ds_read_b64 {v(G0+8,2)}, v{EX+8} offset:1536
    ds_read_b32 v{G0+10}, v{EX+8} offset:1544
    ds_read2_b32 {v(G0+12,2)}, v{EX+9} offset0:0 offset1:1
    ds_read2_b32 {v(G0+14,2)}, v{EX+9} offset0:64 offset1:65
    v_lshlrev_b32 v{t0}, 4, v0
    v_add_u32 v{t0}, s70, v{t0}
    v_and_b32 v{t1}, 3, v0
    v_lshlrev_b32 v{t1}, 4, v{t1}
    v_add_u32 v{t1}, s70, v{t1}
    v_mov_b32 v{OUT+16}, 0
    v_mov_b32 v{OUT+17}, 0
    v_mov_b32 v{OUT+18}, 0
    v_mov_b32 v{OUT+19}, 0
    s_mov_b32 s72, 0xaaaaaaaa
    s_mov_b32 s73, 0xaaaaaaaa
    ds_write_b128 v{t1}, {v(OUT+16,4)} offset:{KARR}
    s_waitcnt lgkmcnt(0)
    """)
    for k in range(4):
        a(f"v_cvt_pk_bf16_f32 v{OUT+k}, v{G0+2*k}, v{G0+2*k+1}")
    a(f"""
    v_cvt_pk_bf16_f32 v{OUT+4}, v{G0+8}, v{G0+8}
    v_cvt_pk_bf16_f32 v{OUT+5}, v{G0+8}, v{G0+9}
    v_cvt_pk_bf16_f32 v{OUT+6}, v{G0+9}, v{G0+9}
    v_cvt_pk_bf16_f32 v{OUT+7}, v{G0+10}, v{G0+10}
    """)
    for it in (2, 3):
        T0, T1 = G0 + 8 + 2 * it, G0 + 9 + 2 * it
        o = OUT + 4 * it
        a(f"""
        v_cndmask_b32 v{t2}, v{T0}, v{T1}, s[72:73]
        v_cvt_pk_bf16_f32 v{o}, v{T0}, v{T0}
        v_cvt_pk_bf16_f32 v{o+1}, v{T0}, v{T0}
        v_cvt_pk_bf16_f32 v{o+2}, v{t2}, v{T1}
        v_cvt_pk_bf16_f32 v{o+3}, v{T1}, v{T1}
        """)
    a(f"v_mov_b32 v{t2}, 0")
    for it in range(4):
        a(f"ds_write_b128 v{t0}, {v(OUT+4*it,4)} offset:{KARR+64+1024*it}")
    if OPT.get("dbgk"):
        a(f"""
        s_lshl_b32 s72, s69, 12
        s_add_u32 s72, s72, {KX_OFF}
        v_lshlrev_b32 v{t0}, 4, v0
        """)
        for it in range(4):
            a(f"buffer_store_dwordx4 {v(OUT+4*it,4)}, v{t0}, {sr(SRD_WS)}, s72 offen offset:{1024*it}")
    a("s_waitcnt vmcnt(0) lgkmcnt(0)")
    ph2.L[1:1] = ["\n    ".join(ng)]

    out = list(pre.L)
    out.extend(stamp(1))
    kx = OPT.get("kx", 0)
    if kx == 1:
        ph2.L = []
    elif kx == 2:
        ph2.L = [x for x in ph2.L if not x.startswith("v_mfma")]
    elif kx == 3:
        ph2.L = [x for x in ph2.L if not x.startswith("ds_write")]
    elif kx == 4:
        ph2.L = [x for x in ph2.L if not x.startswith("ds_read")]
    elif kx == 5:
        L2 = []
        for x in ph2.L:
            L2.append(x)
            if x.startswith("ds_write_b64"):
                L2.append("s_nop 3")
        ph2.L = L2
    if gemm_wg:
        per = OPT.get("kper", 132)
        first = OPT.get("kfirst", 0)
        p2a = OPT.get("kp2a", 56)
        p2b = OPT.get("kp2b", 115)
        pos = min(first, len(main.L))
        out.extend(main.L[:pos])
        for sidx in range(9):
            out.extend(bstamp(2, 1 + sidx))
            out.append("s_barrier")
            if sidx < 6:
                end = len(main.L) if sidx == 5 else min(pos + per, len(main.L))
                out.extend(main.L[pos:end])
                pos = end
            elif sidx == 6:
                out.extend(ph2.L[:p2a])
            elif sidx == 7:
                out.extend(ph2.L[p2a:p2b])
            else:
                out.extend(ph2.L[p2b:])
        out.extend(stamp(2))
        out.append("s_barrier")
    else:
        out.extend(main.L)
        out.extend(ph2.L)
        out.append("s_barrier")
        out.extend(stamp(2))
        out.append("s_barrier")
    out.append("s_mov_b32 s6, s68")
    out.append("s_branch L_CONVB")
    return out


def lwave(gemm_wg):
    sfx = "G" if gemm_wg else "S"
    a = Asm()
    XV, WV, VL, VC = 8, 12, 2, 16
    t0, t1, t2 = 3, 4, 5
    DUM = 24
    ROT = OPT.get("rot", 0)
    SW = 12
    a(f"""
    s_setprio 3
    s_sub_u32 s6, s{S_WIDX}, 4
    """)

    def kofs(st):
        if not ROT:
            return []
        return [f"s_add_u32 s18, s{S_PHI}, {st}", "s_and_b32 s18, s18, 7", f"s_mul_i32 s19, s18, {64*3584}",
                "s_lshl_b32 s18, s18, 7"]

    def grp(st, g):
        sl = st % 3
        if g in (1, 5):
            j = 0 if g == 1 else 1
            L = [f"s_add_u32 m0, s{10+j}, {sl*SLOT}", f"s_add_u32 s22, s{8+j}, {'s18' if ROT else st*128}"]
            L += [f"buffer_load_dwordx4 v{XV+i}, {sr(SRD_X)}, s22 offen offset:{1024*i} lds" for i in range(4)]
        else:
            j = 0 if g == 0 else g - 1
            L = [f"s_add_u32 m0, s{72+j}, {sl*SLOT}", f"s_add_u32 s22, s{68+j}, {'s19' if ROT else st*64*3584}"]
            L += [f"buffer_load_dwordx4 v{WV+i}, {sr(SW)}, s22 offen offset:{1024*i} lds" for i in range(4)]
        return L

    def pref(st):
        L = [f"s_add_u32 s22, s68, {st*64*3584}"]
        L += [f"buffer_load_dwordx4 {v(DUM+4*i,4)}, v{WV+i}, {sr(SW)}, s22 offen offset:{1024*i}" for i in range(4)]
        L += [f"s_add_u32 s22, s23, {st*128}"]
        L += [f"buffer_load_dwordx4 {v(DUM+16+4*i,4)}, v{XV+i}, {sr(SRD_X)}, s22 offen offset:{1024*i}" for i in range(2)]
        return L

    fu_ld = [f"buffer_load_dwordx2 v[{VC}:{VC+1}], v{t1}, {sr(SRD_WS)}, s16 offen sc1"]
    fu_chk = [f"v_cmp_eq_u32 vcc, s{S_NONCE}, v{VC}", f"v_cmp_eq_u32 s[18:19], s{S_NONCE}, v{VC+1}", "s_nop 3",
              "s_and_b64 vcc, vcc, s[18:19]", "s_cmp_eq_u64 vcc, exec"]

    def poll_setup():
        a(f"""
        s_lshl_b32 s7, s2, 1
        s_add_u32 s7, s7, s6
        v_lshlrev_b32 v{VL}, 4, v0
        v_mov_b32 v{t0}, 0
        v_lshrrev_b32 v{t1}, 1, v0
        v_lshlrev_b32 v{t1}, 7, v{t1}
        v_and_b32 v{t2}, 1, v0
        v_lshl_add_u32 v{t1}, v{t2}, 3, v{t1}
        s_mov_b32 s16, {FU_OFF}
        s_mov_b32 s77, 0x100000
        """)

    STG = 24
    assert STG + 16 * n1() <= 256

    def wd_setup():
        a(f"""
        v_lshrrev_b32 v20, 3, v0
        v_and_b32 v21, 7, v0
        v_lshrrev_b32 v22, 1, v20
        v_and_b32 v22, 1, v22
        v_lshlrev_b32 v22, 2, v22
        v_xor_b32 v21, v21, v22
        v_lshlrev_b32 v18, 10, v20
        v_lshl_add_u32 v18, v21, 4, v18
        v_add_u32 v19, 8192, v18
        s_and_b32 s17, s{S_IDX}, 7
        s_lshl_b32 s17, s17, 7
        s_mul_i32 s3, s6, {3*28*16384}
        s_add_u32 s3, s3, s17
        s_sub_u32 s48, 2, s6
        s_lshl_b32 s49, s48, 15
        v_add_u32 v1, s49, v{VL}
        s_mul_i32 s48, s48, {28*16384}
        s_add_u32 s48, s48, s17
        s_mul_i32 s17, s6, {3*RING2}
        v_add_u32 v7, s17, v{VL}
        """)
        a(rot_scalar(76, 17))
        a("s_mov_b32 s49, s76")

    wpos = [0, 0]
    wwp = [0, 0]

    def wd_ld(g, n):
        sb, ss = ((3, 76), (48, 49))[g]
        for _ in range(n):
            i = wpos[g]
            if i >= n1():
                break
            wpos[g] += 1
            R = STG + 8 * (g * n1() + i)
            a(f"""
            s_lshl_b32 s22, s{ss}, 14
            s_add_u32 s22, s22, s{sb}
            buffer_load_dwordx4 {v(R,4)}, v18, {sr(SRD_WD)}, s22 offen
            s_add_u32 s{ss}, s{ss}, 1
            s_cmp_ge_u32 s{ss}, 28
            s_cselect_b32 s{ss}, 0, s{ss}
            buffer_load_dwordx4 {v(R+4,4)}, v19, {sr(SRD_WD)}, s22 offen
            """)
            a.tag(f"wd{g}_{i}")

    def wd_wr(g, n):
        for i in range(wwp[g], min(n1(), wwp[g] + n)):
            wwp[g] = i + 1
            R = STG + 8 * (g * n1() + i)
            a.wait(f"wd{g}_{i}")
            for k in range(2):
                a(f"ds_write_b128 v{(7, 1)[g]}, {v(R+4*k,4)} offset:{i*2048 + k*1024}")

    def u_load():
        a(f"""
        s_mul_i32 s18, s6, {USZ}
        s_add_u32 s18, s18, {U_BASE}
        s_lshl_b32 s17, s7, 12
        s_add_u32 s17, s17, {UT_OFF}
        v_mov_b32 v20, 0
        v_mov_b32 v21, 0
        v_mov_b32 v22, 0
        v_mov_b32 v23, 0
        v_and_b32 v{t2}, 7, v0
        v_lshrrev_b32 v6, 3, v0
        v_and_b32 v6, 3, v6
        v_min_u32 v{t2}, 6, v{t2}
        v_mul_u32_u24 v6, {UPITCH}, v6
        v_lshl_add_u32 v{t2}, v{t2}, 4, v6
        v_add_u32 v{t2}, s18, v{t2}
        ds_write_b128 v{t2}, v[20:23]
        """)
        for r in range(4):
            a(f"""
            s_add_u32 m0, s18, {r*UPITCH + 112}
            s_nop 0
            buffer_load_dwordx4 v{VL}, {sr(SRD_WS)}, s17 offen sc1 lds
            s_add_u32 s17, s17, 1024
            """)

    GLR = 8

    def gl_load():
        a(f"""
        s_lshl_b32 s17, s{S_XCD}, 2
        s_lshr_b32 s22, s{S_IDX}, 3
        s_add_u32 s17, s17, s22
        s_lshl_b32 s17, s17, 6
        s_add_u32 s17, s17, {GL_OFF}
        v_and_b32 v{t0}, 3, v0
        v_lshrrev_b32 v{t1}, 2, v0
        v_lshlrev_b32 v{t1}, 2, v{t1}
        v_lshl_add_u32 v{t1}, v{t0}, 11, v{t1}
        """)
        for g in range(8):
            a(f"buffer_load_dword v{GLR+g}, v{t1}, {sr(SRD_WS)}, s17 offen sc1")
            if g < 7:
                a("s_add_u32 s17, s17, 8192")
        a.tag("gl")

    def gl_finish():
        E = GLR
        a.wait("gl")
        a(f"""
        v_add_f32 v{E}, v{E}, v{E+1}
        v_add_f32 v{E+2}, v{E+2}, v{E+3}
        v_add_f32 v{E+4}, v{E+4}, v{E+5}
        v_add_f32 v{E+6}, v{E+6}, v{E+7}
        v_add_f32 v{E}, v{E}, v{E+2}
        v_add_f32 v{E+4}, v{E+4}, v{E+6}
        v_add_f32 v{E}, v{E}, v{E+4}
        v_cvt_pk_bf16_f32 v{E}, v{E}, v{E}
        v_lshlrev_b32 v{E}, 16, v{E}
        v_mul_f32 v{E}, {f32(-LOG2E)}, v{E}
        v_exp_f32 v{E}, v{E}
        v_lshlrev_b32 v{t0}, 2, v0
        v_add_f32 v{E}, 1.0, v{E}
        v_rcp_f32 v{E}, v{E}
        v_add_u32 v{t0}, {G_LDS}, v{t0}
        v_cvt_pk_bf16_f32 v{E}, v{E}, v{E}
        v_lshlrev_b32 v{E}, 16, v{E}
        ds_write_b32 v{t0}, v{E}
        """)

    if gemm_wg:
        a(f"""
        v_lshrrev_b32 v{t0}, 4, v0
        v_and_b32 v{t1}, 15, v0
        v_lshlrev_b32 v{t2}, 2, v{t0}
        v_xor_b32 v{t1}, v{t1}, v{t2}
        v_mul_u32_u24 v{t0}, 3584, v{t0}
        v_lshl_add_u32 v{WV}, v{t1}, 4, v{t0}
        """)
        for i in range(1, 4):
            a(f"v_add_u32 v{WV+i}, {(4*3584-1024)*i}, v{WV}")
        a(f"""
        s_mov_b32 s{SW+2}, {512*1792*2}
        s_mov_b32 s{SW+3}, 0x00020000
        s_and_b32 s22, s68, 3
        s_mov_b32 s19, s69
        s_lshl_b32 s23, s{S_CB}, 8
        s_lshl_b32 s16, s6, 14
        s_add_u32 s16, s16, 16384
        """)
        for j in range(4):
            a(f"""
            s_add_u32 s17, s22, {j}
            s_and_b32 s17, s17, 3
            s_mul_i32 s{68+j}, s17, {16*3584}
            s_add_u32 s{68+j}, s{68+j}, s23
            s_lshl_b32 s{72+j}, s17, 12
            s_add_u32 s{72+j}, s{72+j}, s16
            """)
        a(f"""
        v_lshrrev_b32 v{t0}, 3, v0
        v_and_b32 v{t1}, 7, v0
        v_lshrrev_b32 v{t2}, 1, v{t0}
        v_xor_b32 v{t1}, v{t1}, v{t2}
        v_lshlrev_b32 v{t0}, 10, v{t0}
        """)
        for i in range(4):
            a(f"""
            v_xor_b32 v{t2}, {4*(i&1)}, v{t1}
            v_lshl_add_u32 v{XV+i}, v{t2}, 4, v{t0}
            v_add_u32 v{XV+i}, {7168*i}, v{XV+i}
            """)
        a(f"""
        s_mov_b32 s22, s19
        s_and_b32 s17, s22, 1
        s_lshl_b32 s17, s17, 1
        s_add_u32 s17, s17, s6
        s_lshl_b32 s16, s{S_RB}, 17
        s_lshl_b32 s8, s17, 15
        s_add_u32 s8, s8, s16
        s_lshl_b32 s10, s17, 12
        s_xor_b32 s17, s17, 2
        s_lshl_b32 s9, s17, 15
        s_add_u32 s9, s9, s16
        s_lshl_b32 s11, s17, 12
        s_lshl_b32 s22, s22, 1
        s_add_u32 s22, s22, s6
        s_and_b32 s22, s22, 7
        s_lshl_b32 s23, s22, 14
        s_add_u32 s23, s23, s16
        """)
        tail = {3: "S5 R5", 4: "S6 R6", 5: "S7 R7"}
        scheds = [
            {-1: "S0 S1 S2 R0 P3 P4", 0: "R1 P5 P6", 1: "R2 P7 S3", 2: "R3 S4 R4"},
            {-1: "S0 S1 S2 R0 R1", 0: "P3 P4 R2", 1: "P5 P6 P7 S3 R3", 2: "S4 R4"},
            {-1: "S0 R0 S1 R1", 0: "S2 R2", 1: "S3 R3", 2: "S4 R4"},
            {-1: "S0 R0 S1", 0: "R1 S2", 1: "R2 S3", 2: "R3 S4 R4"},
            {-1: "S0 R0 S1 S2 P3", 0: "R1 P4 P5", 1: "R2 P6 P7 S3", 2: "R3 S4 R4"},
            {-1: "S0 R0 S1 S2", 0: "R1 R2", 1: "S3 R3", 2: "S4 R4"},
            {-1: "S0 R0 S1 S2", 0: "R1 R2", 1: "S3 R3 P5", 2: "S4 R4 P6 P7"},
            {-1: "S0 R0 S1 S2", 0: "R1 R2 P3", 1: "S3 R3 P4 P5", 2: "S4 R4 P6 P7"},
        ]
        sched = dict(scheds[OPT.get("lsched", 5)])
        sched.update(tail)

        def issue(k):
            for tok in sched.get(k, "").split():
                st = int(tok[1:])
                if tok[0] == "S":
                    a.ext(kofs(st) + grp(st, 0) + grp(st, 1))
                elif tok[0] == "R":
                    a.ext(kofs(st))
                    for g in (2, 5, 3, 4):
                        a.ext(grp(st, g))
                    a.tag(f"st{st}")
                elif tok[0] == "P":
                    assert not ROT
                    a.ext(pref(st))
        a(f"""
        s_mov_b32 s{SRD_X+2}, {2048*512*2}
        s_mov_b32 s{SRD_X+3}, 0x00020000
        s_cmp_eq_u32 s6, 0
        s_waitcnt lgkmcnt(0)
        s_cselect_b32 s{SW}, s{S_WG}, s{S_WU}
        s_cselect_b32 s{SW+1}, s{S_WG+1}, s{S_WU+1}
        s_and_b32 s{SW+1}, s{SW+1}, 0xffff
        s_mov_b32 s{SRD_X}, s{S_U}
        s_and_b32 s{SRD_X+1}, s{S_U+1}, 0xffff
        """)
        issue(-1)
        a.ext(stamp(1))
        srd(a, SRD_WS, S_WS, WS_BYTES)
        srd(a, SRD_WD, S_WD, 1792 * 512 * 2)
        poll_setup()
        for sidx in range(9):
            if sidx < 8:
                a.wait(f"st{sidx}")
            a.ext(bstamp(2, 1 + sidx))
            a("s_barrier")
            if sidx in (0, 3):
                a.ext(stamp(2 + (0, 3).index(sidx)))
            issue(sidx)
            if sidx == 4:
                wd_setup()
            if sidx == 5:
                wd_ld(0, OPT.get("w5", 0))
            if sidx == 6:
                a(f"s_setprio {OPT.get('lprio', 1)}")
                wd_ld(0, OPT.get("w6", 10))
            if sidx == 7:
                wd_ld(0, 28)
                a.ext(fu_ld)
                a.tag("fu")
                for _ in range(OPT.get("w7", 8) // 2):
                    wd_ld(1, 2)
                    wd_wr(0, OPT.get("e7", 0))
            if sidx == 8:
                a.ext(stamp(4))
                a(f"v_mov_b32 v6, {N_LDS}\nds_read_b32 v6, v6")
                wd_ld(1, 28)
                a.wait("fu")
                a(f"s_waitcnt lgkmcnt(0)\nv_readfirstlane_b32 s{S_NONCE}, v6\ns_nop 3")
                a(f"s_branch PU{sfx}_CHK")
                a.ext(spin(f"PU{sfx}", fu_ld, fu_chk, 16))
                u_load()
                gl_load()
                wd_wr(0, 28)
                wd_wr(1, 28)
                gl_finish()
        a("s_waitcnt vmcnt(0) lgkmcnt(0)")
        a.ext(stamp(5))
        a("s_barrier")
    else:
        a("s_waitcnt lgkmcnt(0)")
        srd(a, SRD_WS, S_WS, WS_BYTES)
        srd(a, SRD_WD, S_WD, 1792 * 512 * 2)
        poll_setup()
        wd_setup()
        a("s_barrier")
        a(f"v_mov_b32 v6, {N_LDS}\nds_read_b32 v6, v6")
        a(f"s_waitcnt lgkmcnt(0)\nv_readfirstlane_b32 s{S_NONCE}, v6\ns_nop 3")
        a.ext(spin(f"PU{sfx}", fu_ld, fu_chk, 32))
        u_load()
        wd_ld(0, 28)
        wd_ld(1, 28)
        wd_wr(0, 6)
        gl_load()
        wd_wr(0, 28)
        wd_wr(1, 28)
        gl_finish()
        a("s_waitcnt vmcnt(0) lgkmcnt(0)")
        a.ext(stamp(5))
        a("s_barrier")
    a("s_branch L_CONVA")
    return resolve_vm(a.L)


def conv(a0, partB):
    a = Asm()
    KA, UA, YA = 2, 3, 5
    qs, outq = ([5, 6, 7], [6, 7]) if partB else ([0, 1, 2, 3, 4, 5], [0, 1, 2, 3, 4, 5])
    a.ext(stamp(6))
    a(f"""
    s_setprio {OPT.get("cprio", 3)}
    s_lshl_b32 s8, s6, 13
    s_add_u32 s8, s8, {KG_BASE + KARR + 32}
    s_mul_i32 s9, s6, {USZ}
    s_add_u32 s9, s9, {U_BASE + 16}
    v_lshrrev_b32 v6, 2, v0
    v_and_b32 v10, 7, v6
    v_and_b32 v6, 3, v6
    v_and_b32 v7, 3, v0
    v_lshrrev_b32 v8, 4, v0
    v_and_b32 v8, 1, v8
    v_lshrrev_b32 v9, 5, v0
    v_mul_u32_u24 v{UA}, {UPITCH}, v7
    v_sub_u32 v10, v10, v9
    v_lshl_add_u32 v{UA}, v10, 4, v{UA}
    v_add_u32 v{UA}, s9, v{UA}
    v_lshlrev_b32 v{KA}, 5, v8
    v_lshl_add_u32 v{KA}, v7, 3, v{KA}
    v_lshl_add_u32 v{KA}, v9, 6, v{KA}
    v_lshlrev_b32 v10, 3, v6
    v_sub_u32 v{KA}, v{KA}, v10
    v_add_u32 v{KA}, s8, v{KA}
    """)
    qmax = max(qs)
    nst = 4 * qmax + 4
    NU = 4
    UBUF = 8
    KT = 24
    ACC = KT + 4 * nst
    TMP = ACC + 16 * len(qs)
    assert TMP + 3 * len(qs) + 1 <= 256

    def acc(q):
        return ACC + 16 * qs.index(q)

    need = {}
    for i in range(nst):
        for q in qs:
            s_ = 4 * q + 3 - i
            if s_ >= 0 and s_ not in need:
                need[s_] = i

    def rd(i):
        L = [f"ds_read_b128 {v(UBUF+4*(i%NU),4)}, v{UA} offset:{32*i}"]
        for s_ in sorted(s for s in need if need[s] == i):
            L += [f"ds_read_b64_tr_b16 {v(KT+4*s_,2)}, v{KA} offset:{128*s_+32}",
                  f"ds_read_b64_tr_b16 {v(KT+4*s_+2,2)}, v{KA} offset:{128*s_}"]
        L.append(("LTAG", f"R{i}"))
        return L

    PF = NU - 1
    a.ext(rd(0))
    a.ext(rd(1))
    a(f"""
    v_and_b32 v4, 7, v0
    v_lshrrev_b32 v{YA}, 3, v0
    v_lshlrev_b32 v{YA}, 4, v{YA}
    v_lshl_add_u32 v{YA}, v4, 7, v{YA}
    v_mov_b32 v6, 0
    v_mov_b32 v7, s{S_NONCE}
    s_mov_b32 s12, 0
    s_mov_b32 s13, 0x80000000
    s_mov_b32 s14, 0
    s_mov_b32 s15, 0xc0000000
    s_mov_b32 s16, 0
    s_mov_b32 s17, 0xe0000000
    s_lshl_b32 s7, s2, 1
    s_add_u32 s7, s7, s6
    s_lshl_b32 s18, s7, 12
    s_add_u32 s18, s18, {Y_OFF}
    s_lshl_b32 s19, s2, 4
    s_add_u32 s19, s19, s6
    s_lshl_b32 s19, s19, 3
    s_add_u32 s19, s19, {FY_OFF + (4 if partB else 0)}
    """)

    def Y(q, g, rho):
        return acc(q) + 4 * g + rho

    dpp = "wave_ror:1 row_mask:0xf bank_mask:0xf"
    ctl = "row_mask:0xf bank_mask:0xf"

    def post(q):
        L = []
        Z = {}
        for g in (3, 2, 1, 0):
            for rho in (1, 2, 3):
                Z[g, rho] = TMP + 3 * qs.index(q) + rho - 1 if g == 3 else Y(q, g, rho)
                if g > 0:
                    prev = f"v{Y(q,g-1,rho)}"
                elif q > 0:
                    prev = f"v{Y(q-1,3,rho)}"
                else:
                    prev = "v6"
                L.append(f"v_cndmask_b32 v{Z[g,rho]}, v{Y(q,g,rho)}, {prev}, s[{10+2*rho}:{11+2*rho}]")
        for g in (3, 2, 1, 0):
            L.append(f"v_add_f32_dpp v{Z[g,2]}, v{Z[g,3]}, v{Z[g,2]} {dpp}")
        for g in (3, 2, 1, 0):
            L.append(f"v_add_f32_dpp v{Z[g,1]}, v{Z[g,2]}, v{Z[g,1]} {dpp}")
        for g in (3, 2, 1, 0):
            L.append(f"v_add_f32_dpp v{Y(q,g,0)}, v{Z[g,1]}, v{Y(q,g,0)} {dpp}")
        return L

    def stage(S_, D_, bit, stride):
        m = {0: 0xaaaaaaaa, 1: 0xcccccccc, 2: 0xf0f0f0f0}[bit]
        up = {0: "quad_perm:[1,0,3,2]", 1: "quad_perm:[2,3,0,1]", 2: "row_ror:12"}[bit]
        dn = {0: "quad_perm:[1,0,3,2]", 1: "quad_perm:[2,3,0,1]", 2: "row_ror:4"}[bit]
        L = [f"s_mov_b32 vcc_lo, {m:#x}", f"s_mov_b32 vcc_hi, {m:#x}"]
        idx = [i for i in range(len(S_)) if not (i // stride) & 1]
        L += [f"v_cndmask_b32_dpp v{D_[i+stride]}, v{S_[i]}, v{S_[i+stride]}, vcc {up} {ctl}" for i in idx]
        L += ["s_not_b64 vcc, vcc"]
        L += [f"v_cndmask_b32_dpp v{D_[i]}, v{S_[i+stride]}, v{S_[i]}, vcc {dn} {ctl}" for i in idx]
        return L

    def xpose(q):
        S0 = [Y(q - 1 + (g >> 2), g & 3, 0) for g in range(8)]
        free = [Y(qq, g, r) for qq in (q - 1, q) for g in range(3) for r in (1, 2, 3)]
        D0 = free[:8]
        S1 = free[8:12]
        D1 = free[12:16]
        D2 = [acc(q - 1) + i for i in range(4)]
        L = stage(S0, D0, 0, 1)
        L += [f"v_cvt_pk_bf16_f32 v{S1[g]}, v{D0[2*g]}, v{D0[2*g+1]}" for g in range(4)]
        L += stage(S1, D1, 1, 1)
        L += stage(D1, D2, 2, 2)
        L.append(f"buffer_store_dwordx4 {v(D2[0],4)}, v{YA}, {sr(SRD_WS)}, s18 offen offset:{(q-1)*512} sc1")
        return L

    pend = []
    FILL = OPT.get("cfill", 4)
    since = {}
    issued = 2
    for i in range(nst):
        a.L.append(("LWAIT", f"R{i}"))
        rl = []
        while issued < nst and issued <= i + (2 if i < 2 else PF):
            rl += rd(issued)
            issued += 1
        act = [q for q in qs if 4 * q + 3 - i >= 0]
        per = -(-len(rl) // len(act))
        for q in act:
            s_ = 4 * q + 3 - i
            c = "0" if i == 0 else v(acc(q), 16)
            a(f"v_mfma_f32_32x32x16_bf16 {v(acc(q),16)}, {v(UBUF+4*(i%NU),4)}, {v(KT+4*s_,4)}, {c}")
            a.ext(rl[:per])
            rl = rl[per:]
            if s_ == 0:
                since[q] = len(a.L)
            for qq in list(since):
                if len([x for x in a.L[since[qq]:] if isinstance(x, str)]) >= 14:
                    del since[qq]
                    if qq in outq:
                        pend += post(qq)
                        if (qq - outq[0]) & 1:
                            pend += xpose(qq)
            a.ext(pend[:FILL])
            pend = pend[FILL:]
    a.ext(stamp(7))
    a.ext(pend)
    a("s_nop 7\ns_nop 3")
    for qq in sorted(since):
        if qq in outq:
            a.ext(post(qq))
            if (qq - outq[0]) & 1:
                a.ext(xpose(qq))
    a.ext(stamp(8))
    a(f"""
    s_waitcnt vmcnt(0)
    s_mov_b64 exec, 1
    buffer_store_dword v7, v6, {sr(SRD_WS)}, s19 offen sc1
    """)
    a.ext(stamp_end())
    a0.ext(resolve_lds(a.L))


HEADER = open("cdna_kernels/" + NAME + ".s.ref").read().split("; Override launch")[0]


def main(path):
    a = Asm()
    prologue(a)
    gemm1(a)
    a("L_SPARE:")
    spare(a)
    a("L_GEMM2:")
    gemm2(a)
    a("L_LWAVE:")
    a(f"s_cmp_ge_u32 s{S_IDX}, 28\ns_cbranch_scc1 L_LWAVE_S")
    a.ext(lwave(True))
    a("L_LWAVE_S:")
    a.ext(lwave(False))
    a("L_KWAVE:")
    a("s_load_dwordx2 s[6:7], s[0:1], 8\ns_load_dwordx4 s[8:11], s[0:1], 16\ns_load_dwordx8 s[12:19], s[0:1], 32")
    a("s_waitcnt lgkmcnt(0)")
    srd(a, SRD_WS, S_WS, WS_BYTES)
    a(f"s_cmp_ge_u32 s{S_IDX}, 28\ns_cbranch_scc1 L_KWAVE_S")
    a.ext(kwave(True))
    a("L_KWAVE_S:")
    a.ext(kwave(False))
    a("L_CONVA:")
    conv(a, False)
    a("L_CONVB:")
    conv(a, True)
    a("L_END:\ns_endpgm")
    body = "\n".join(("" if ln.endswith(":") or ln.startswith(".") else "    ") + ln for ln in a.L)
    kn = NAME + "_kernel"
    txt = HEADER
    if OPT.get("list"):
        txt += f"; @launch kernel={kn} grid=(256,1,1) block=(512,1,1) lds=163840\n"
    else:
        txt += "; @launch grid=(256,1,1) block=(512,1,1) lds=163840\n"
    txt += '.amdgcn_target "amdgcn-amd-amdhsa--gfx950"\n.text\n'
    txt += f".globl {kn}\n.p2align 8\n.type {kn},@function\n{kn}:\n"
    txt += body + "\n"
    txt += f"""
.section .rodata,"a"
.p2align 6
.amdhsa_kernel {kn}
  .amdhsa_next_free_vgpr 256
  .amdhsa_next_free_sgpr 102
  .amdhsa_accum_offset 256
  .amdhsa_group_segment_fixed_size 0
  .amdhsa_kernarg_size 136
  .amdhsa_user_sgpr_count 2
  .amdhsa_user_sgpr_kernarg_segment_ptr 1
  .amdhsa_system_sgpr_workgroup_id_x 1
.end_amdhsa_kernel
"""
    open(path, "w").write(txt)


if __name__ == "__main__":
    for o in list(sys.argv):
        if o.startswith("--opt="):
            k, _, val = o[6:].partition(":")
            OPT[k] = int(val) if val else 1
            sys.argv.remove(o)
    if "--stamps" in sys.argv:
        STAMPS = True
        sys.argv.remove("--stamps")
    main(sys.argv[1] if len(sys.argv) > 1 else "cdna_kernels/" + NAME + ".s")
```

```python
import sys, struct

NAME = "gated_mix__ssm_conv_s4__swiglu_ffn__prompt"

H_OFF = 0x000000
UT_OFF = 0x800000
KX_OFF = 0xA00000
Y_OFF = 0xC00000
GL_OFF = 0xE00000
FH_OFF = 0xE40000
FY_OFF = 0xE60000
FU_OFF = 0xE68000
ST_OFF = 0xE20000
WS_BYTES = 0x1000000

STAMPS = False
HDL = []
OPT = {}
ST_BASE = 78
NST = 12


def f32(x):
    return "0x%08x" % struct.unpack("<I", struct.pack("<f", x))[0]


LOG2E = 1.4426950408889634
LOG2E_HI = struct.unpack("<f", struct.pack("<f", LOG2E))[0]
LOG2E_LO = LOG2E - LOG2E_HI
LN2 = 0.6931471805599453
INV2PI = 0.15915494309189535


class Asm:
    def __init__(self):
        self.L = []

    def __call__(self, s):
        for line in s.strip().split("\n"):
            line = line.strip()
            if line:
                self.L.append(line)

    def ext(self, lines):
        self.L.extend(lines)

    def tag(self, n):
        self.L.append(("VMTAG", n))

    def wait(self, n):
        self.L.append(("VMWAIT", n))


def v(b, n=1):
    return f"v{b}" if n == 1 else f"v[{b}:{b+n-1}]"


def sr(b):
    return f"s[{b}:{b+3}]"


class RA:
    def __init__(self, start, end):
        self.p = start
        self.end = end

    def __call__(self, n=1, align=1):
        self.p = (self.p + align - 1) // align * align
        r = self.p
        self.p += n
        assert self.p <= self.end, "out of registers"
        return r


def stamp(k, force=False):
    if not STAMPS:
        return []
    assert k < NST
    if OPT.get("dbgbar") and 1 <= k <= 9 and not force:
        return []
    op = "s_memtime" if OPT.get("cyc") else "s_memrealtime"
    return [f"{op} s[{ST_BASE+2*k}:{ST_BASE+2*k+1}]"]


def bstamp(mode, k):
    return stamp(k, True) if OPT.get("dbgbar") == mode else []


def stamp_end():
    if not STAMPS:
        return ["s_endpgm"]
    L = stamp(10) + ["s_waitcnt vmcnt(0)"] + stamp(11)
    L += ["s_waitcnt lgkmcnt(0)", "s_mov_b64 exec, 1", "s_lshl_b32 s74, s2, 3", f"s_add_u32 s74, s74, s{S_WIDX}",
          "s_lshl_b32 s74, s74, 6", f"s_add_u32 s74, s74, {ST_OFF}", "v_mov_b32 v1, 0"]
    for k in range(NST):
        L.append(f"v_mov_b32 v{4+k}, s{ST_BASE+2*k}")
    for k in range(0, NST, 4):
        L.append(f"buffer_store_dwordx4 v[{4+k}:{7+k}], v1, {sr(SRD_WS)}, s74 offen offset:{4*k}")
    if OPT.get("hdbg"):
        lab = f"HD{len(HDL)}"
        HDL.append(lab)
        L += [f"v_not_b32 v20, v4", f"global_atomic_umax v1, v20, s[{S_DBG}:{S_DBG+1}] offset:56",
              f"global_atomic_umax v1, v15, s[{S_DBG}:{S_DBG+1}] offset:60",
              f"s_cmp_lg_u32 s2, {OPT['hdbg']}", f"s_cbranch_scc1 {lab}", f"s_cmp_lg_u32 s{S_WIDX}, 0", f"s_cbranch_scc1 {lab}"]
        words = [1, 2, 3, 4, 5, 6, 7, 9, 10, 11, 12]
        for k in range(1, NST):
            L += [f"v_sub_u32 v20, v{4+k}, v4", f"global_store_dword v1, v20, s[{S_DBG}:{S_DBG+1}] offset:{4*words[k-1]}", "s_nop 1"]
        L += [f"global_store_dword v1, v4, s[{S_DBG}:{S_DBG+1}] offset:52"]
        L.append(f"{lab}:")
    L.append("s_endpgm")
    return L


def is_vmem(line):
    return line.startswith("buffer_") or line.startswith("global_")


def resolve_vm(lines):
    out = []
    count = 0
    tags = {}
    done = -1
    for ln in lines:
        if isinstance(ln, tuple):
            if ln[0] == "VMTAG":
                tags[ln[1]] = count
            elif ln[0] == "VMWAIT":
                if tags[ln[1]] <= done:
                    continue
                n = count - tags[ln[1]]
                assert 0 <= n <= 63, n
                out.append(f"s_waitcnt vmcnt({n})")
                done = tags[ln[1]]
            elif ln[0] == "VMRESET":
                done = count
            elif ln[0] == "NOCOUNT":
                out.append(ln[1])
            else:
                raise ValueError(ln)
        else:
            if is_vmem(ln):
                count += 1
            out.append(ln)
    return out


def resolve_lds(lines):
    out = []
    count = 0
    tags = {}
    for ln in lines:
        if isinstance(ln, tuple):
            if ln[0] == "LTAG":
                tags[ln[1]] = count
            elif ln[0] == "LWAIT":
                out.append(f"s_waitcnt lgkmcnt({min(15, count - tags[ln[1]])})")
            else:
                raise ValueError(ln)
        else:
            if ln.startswith("ds_"):
                count += 1
            out.append(ln)
    return out


SLOT = 49152
KG_BASE = 147456
KARR = 3584
U_BASE = 131072
UPITCH = 1344
USZ = 4 * UPITCH
YB_BASE = U_BASE + 2 * USZ
RING2 = 32768

S_U, S_ARE, S_AIM, S_BRE, S_BIM, S_CRE, S_CIM, S_LDT = 4, 6, 8, 10, 12, 14, 16, 18
S_DS = 20
S_WG, S_WU, S_WD, S_GW = 24, 26, 28, 30
S_OUT, S_DBG, S_WS = 32, 34, 36
S_WIDX, S_XCD, S_IDX, S_RB, S_CB, S_PHI = 38, 39, 40, 41, 42, 43
SRD_X, SRD_WG, SRD_WU, SRD_WS, SRD_WD, SRD_OUT = 44, 48, 52, 56, 60, 64


def srd(a, d, base, nbytes):
    a(f"""
    s_mov_b32 s{d}, s{base}
    s_and_b32 s{d+1}, s{base+1}, 0xffff
    s_mov_b32 s{d+2}, {nbytes}
    s_mov_b32 s{d+3}, 0x00020000
    """)


def mapping(a):
    a(f"""
    s_and_b32 s{S_XCD}, s2, 7
    s_lshr_b32 s{S_IDX}, s2, 3
    """)
    if OPT.get("map", 1) == 0:
        a(f"""
        s_and_b32 s68, s{S_IDX}, 3
        s_lshr_b32 s69, s{S_IDX}, 2
        s_lshr_b32 s{S_RB}, s{S_XCD}, 1
        s_lshl_b32 s{S_RB}, s{S_RB}, 2
        s_add_u32 s{S_RB}, s{S_RB}, s68
        s_and_b32 s{S_CB}, s{S_XCD}, 1
        s_mul_i32 s{S_CB}, s{S_CB}, 7
        s_add_u32 s{S_CB}, s{S_CB}, s69
        s_lshl_b32 s{S_PHI}, s68, 1
        s_add_u32 s{S_PHI}, s{S_PHI}, s69
        s_and_b32 s{S_PHI}, s{S_PHI}, 7
        """)
    else:
        a(f"""
        s_and_b32 s70, s{S_XCD}, 1
        s_lshl_b32 s70, s70, 2
        s_and_b32 s68, s{S_IDX}, 7
        s_lshr_b32 s69, s{S_IDX}, 3
        s_add_u32 s71, s69, s70
        s_add_u32 s72, s68, s70
        s_cmp_ge_u32 s{S_IDX}, 24
        s_cselect_b32 s71, 3, s71
        s_cselect_b32 s68, s72, s68
        s_lshr_b32 s{S_CB}, s{S_XCD}, 1
        s_and_b32 s{S_CB}, s{S_CB}, 1
        s_mul_i32 s{S_CB}, s{S_CB}, 7
        s_add_u32 s{S_CB}, s{S_CB}, s71
        s_lshr_b32 s{S_RB}, s{S_XCD}, 2
        s_lshl_b32 s{S_RB}, s{S_RB}, 3
        s_add_u32 s{S_RB}, s{S_RB}, s68
        s_lshl_b32 s{S_PHI}, s69, 1
        s_add_u32 s{S_PHI}, s{S_PHI}, s68
        s_and_b32 s{S_PHI}, s{S_PHI}, 7
        """)


def prologue(a):
    a("""
    s_cmp_ge_u32 s2, 256
    s_cbranch_scc1 L_END
    """)
    if STAMPS:
        a.ext([f"s_mov_b32 s{ST_BASE+2*k}, 0" for k in range(NST)])
    a.ext(stamp(0))
    a(f"""
    s_load_dwordx2 s[4:5], s[0:1], 0
    s_load_dwordx8 s[24:31], s[0:1], 80
    s_load_dwordx2 s[36:37], s[0:1], 128
    s_load_dwordx4 s[32:35], s[0:1], 112
    s_load_dwordx2 s[20:21], s[0:1], 64
    v_lshrrev_b32 v1, 6, v0
    v_and_b32 v0, 63, v0
    s_nop 0
    v_readfirstlane_b32 s{S_WIDX}, v1
    """)
    mapping(a)
    a(f"""
    s_cmp_ge_u32 s{S_WIDX}, 6
    s_cbranch_scc1 L_KWAVE
    s_cmp_ge_u32 s{S_WIDX}, 4
    s_cbranch_scc1 L_LWAVE
    s_waitcnt lgkmcnt(0)
    """)
    srd(a, SRD_X, S_U, 2048 * 512 * 2)
    srd(a, SRD_WS, S_WS, WS_BYTES)
    srd(a, SRD_WD, S_WD, 1792 * 512 * 2)
    srd(a, SRD_OUT, S_OUT, 2048 * 512 * 2)
    cp = OPT.get("cpf", 0)
    if cp:
        a(f"""
        s_getpc_b64 s[70:71]
        L_PC:
        s_sub_u32 s70, s70, L_PC-{NAME}_kernel
        s_subb_u32 s71, s71, 0
        """)
        if cp == 1:
            a(f"""
            s_lshl_b32 s72, s{S_IDX}, 2
            s_add_u32 s72, s72, s{S_WIDX}
            s_lshl_b32 s72, s72, 9
            v_and_b32 v2, 7, v0
            v_lshlrev_b32 v2, 6, v2
            v_add_u32 v2, s72, v2
            v_min_u32 v2, L_END-{NAME}_kernel, v2
            global_load_dword v64, v2, s[70:71]
            """)
        else:
            a(f"""
            s_lshl_b32 s72, s{S_WIDX}, 14
            v_lshlrev_b32 v2, 7, v0
            v_add_u32 v2, s72, v2
            v_add_u32 v3, 8192, v2
            v_min_u32 v2, L_END-{NAME}_kernel, v2
            v_min_u32 v3, L_END-{NAME}_kernel, v3
            global_load_dword v64, v2, s[70:71]
            global_load_dword v65, v3, s[70:71]
            """)
        a("s_waitcnt vmcnt(0)")
    a(f"""
    s_cmp_ge_u32 s{S_IDX}, 28
    s_cbranch_scc1 L_SPARE
    """)


VL16 = 1
XD = 8
(VD0, VD1, DA0, DA1, VEP, VPH, VFL, VG, VY, VYW, VYT, VW1, VW2, VW3, VR1, VR23) = range(112, 128)
YT_BASE = YB_BASE
G_LDS = YB_BASE
N_LDS = YB_BASE + 256
def n1():
    return OPT.get("n1", 14)


def rot_scalar(dst, tmp):
    return f"""
    s_and_b32 s{dst}, s{S_IDX}, 1
    s_lshl_b32 s{dst}, s{dst}, 1
    s_lshr_b32 s{tmp}, s{S_IDX}, 3
    s_add_u32 s{dst}, s{dst}, s{tmp}
    s_and_b32 s{dst}, s{dst}, 3
    s_mul_i32 s{dst}, s{dst}, 7
    """


def gemm2_setup(a):
    a(f"""
    s_lshl_b32 s6, s{S_XCD}, 2
    s_lshr_b32 s13, s{S_IDX}, 3
    s_add_u32 s6, s6, s13
    s_and_b32 s7, s{S_IDX}, 7
    s_lshl_b32 s17, s6, 6
    s_lshr_b32 s23, s{S_WIDX}, 1
    s_lshl_b32 s13, s23, 5
    s_add_u32 s17, s17, s13
    s_lshl_b32 s18, s7, 6
    s_and_b32 s14, s{S_WIDX}, 1
    s_lshl_b32 s13, s14, 5
    s_add_u32 s18, s18, s13
    v_lshrrev_b32 v5, 5, v0
    v_and_b32 v6, 31, v0
    v_add_u32 v6, s17, v6
    v_lshlrev_b32 v7, 4, v5
    v_add_u32 v7, s18, v7
    v_lshlrev_b32 v7, 1, v7
    v_lshl_add_u32 v{VEP}, v6, 10, v7
    s_lshl_b32 s8, s{S_WIDX}, 15
    s_lshl_b32 s9, s6, 1
    s_add_u32 s9, s9, s23
    s_mul_i32 s9, s9, 112
    s_mul_i32 s13, s{S_WIDX}, 28
    s_add_u32 s9, s9, s13
    s_lshl_b32 s9, s9, 10
    s_mul_i32 s22, s23, {224*1024}
    s_sub_u32 s22, {112*1024}, s22
    s_lshl_b32 s10, s13, 14
    s_lshl_b32 s13, s7, 7
    s_add_u32 s10, s10, s13
    """)
    a(rot_scalar(12, 13))
    a(f"""
    s_add_u32 s11, s12, {n1()}
    s_cmp_ge_u32 s11, 28
    s_cselect_b32 s13, 28, 0
    s_sub_u32 s11, s11, s13
    s_lshl_b32 s15, s6, 5
    s_mul_i32 s13, s{S_WIDX}, 7
    s_add_u32 s15, s15, s13
    s_lshl_b32 s15, s15, 7
    s_add_u32 s15, s15, {FH_OFF}
    s_lshl_b32 s13, s7, 2
    s_add_u32 s13, s13, s{S_WIDX}
    s_lshl_b32 s16, s13, 10
    s_add_u32 s16, s16, {FY_OFF}
    s_lshl_b32 s19, s13, 16
    s_lshl_b32 s13, s6, 7
    s_add_u32 s19, s19, s13
    s_add_u32 s19, s19, {Y_OFF}
    v_lshlrev_b32 v{VL16}, 4, v0
    v_lshrrev_b32 v2, 3, v0
    v_and_b32 v3, 7, v0
    v_lshlrev_b32 v{VY}, 12, v2
    v_lshl_add_u32 v{VY}, v3, 4, v{VY}
    v_lshrrev_b32 v4, 1, v2
    v_and_b32 v4, 1, v4
    v_lshlrev_b32 v4, 2, v4
    v_xor_b32 v3, v3, v4
    v_lshlrev_b32 v{VD0}, 10, v2
    v_lshl_add_u32 v{VD0}, v3, 4, v{VD0}
    v_add_u32 v{VD1}, {8192-1024}, v{VD0}
    v_lshlrev_b32 v{VYW}, 7, v2
    v_lshl_add_u32 v{VYW}, v3, 4, v{VYW}
    v_add_u32 v{VYW}, s8, v{VYW}
    v_lshrrev_b32 v2, 2, v0
    v_and_b32 v2, 3, v2
    v_and_b32 v3, 3, v0
    v_lshrrev_b32 v4, 4, v0
    v_and_b32 v4, 1, v4
    v_lshl_add_u32 v6, v5, 2, v2
    v_lshlrev_b32 v6, 7, v6
    v_and_b32 v7, 1, v3
    v_lshl_add_u32 v6, v7, 5, v6
    v_lshl_add_u32 v6, v4, 4, v6
    v_lshrrev_b32 v7, 1, v3
    v_lshl_add_u32 v6, v7, 3, v6
    v_add_u32 v6, s8, v6
    v_lshrrev_b32 v7, 1, v2
    v_xor_b32 v7, s14, v7
    v_lshl_add_u32 v{DA0}, v7, 6, v6
    v_xor_b32 v7, 1, v7
    v_lshl_add_u32 v{DA1}, v7, 6, v6
    s_lshl_b32 s13, s14, 1
    v_add_u32 v6, s13, v5
    v_lshlrev_b32 v{VYT}, 15, v6
    v_lshl_add_u32 v{VYT}, v2, 7, v{VYT}
    v_lshrrev_b32 v7, 1, v2
    v_xor_b32 v7, s23, v7
    v_lshl_add_u32 v{VYT}, v7, 6, v{VYT}
    v_lshl_add_u32 v{VYT}, v4, 5, v{VYT}
    v_lshl_add_u32 v{VYT}, v3, 3, v{VYT}
    v_min_u32 v{VPH}, 6, v0
    v_lshlrev_b32 v{VPH}, 7, v{VPH}
    v_lshrrev_b32 v2, 2, v0
    v_and_b32 v2, 7, v2
    v_lshlrev_b32 v{VFL}, 7, v2
    v_lshl_add_u32 v{VFL}, v3, 2, v{VFL}
    v_and_b32 v{VG}, 31, v0
    s_lshl_b32 s13, s23, 5
    v_add_u32 v{VG}, s13, v{VG}
    v_lshlrev_b32 v{VG}, 2, v{VG}
    v_add_u32 v{VG}, {G_LDS}, v{VG}
    v_add_u32 v{VW1}, s8, v{VL16}
    s_xor_b32 s13, s{S_WIDX}, 1
    s_lshl_b32 s13, s13, 15
    v_add_u32 v{VR1}, s13, v{VL16}
    s_xor_b32 s13, s{S_WIDX}, 2
    s_lshl_b32 s13, s13, 15
    v_add_u32 v{VW2}, s13, v{VL16}
    s_xor_b32 s13, s{S_WIDX}, 3
    s_lshl_b32 s13, s13, 15
    v_add_u32 v{VW3}, s13, v{VL16}
    """)


def gemm1(a):
    XA = 16
    WA = 28
    BUFS = [64, 88, 40]
    ACC = 128

    def acc(mat, t, tt):
        return ACC + 16 * (mat * 4 + t * 2 + tt)

    def wf(b, mat, t):
        return BUFS[b] + 4 * (mat * 2 + t)

    def xf(b, tt):
        return BUFS[b] + 16 + 4 * tt

    pt = OPT.get("pt", 0)
    if pt:
        gran = {1: 21, 2: 18, 3: 16}[pt]
        a(f"""
        s_cmp_lg_u32 s{S_WIDX}, 0
        s_cbranch_scc1 L_NOTOUCH
        v_lshlrev_b32 v2, {gran}, v0
        v_mov_b32 v3, 0
        """)
        for i in range(max(1, (16 << 20) >> (gran + 6))):
            a(f"s_mov_b32 s13, {i << (gran + 6)}")
            a(f"buffer_load_dword v64, v2, {sr(SRD_WS)}, s13 offen")
        a(f"""
        buffer_load_dword v65, v2, {sr(SRD_OUT)}, 0 offen
        buffer_load_dword v66, v2, {sr(SRD_WD)}, 0 offen
        global_load_dword v67, v3, s[{S_DS}:{S_DS+1}]
        global_load_dword v68, v3, s[{S_DBG}:{S_DBG+1}] offset:128
        s_waitcnt vmcnt(0)
        L_NOTOUCH:
        """)
    gemm2_setup(a)
    a(f"""
    s_lshr_b32 s68, s{S_WIDX}, 1
    s_and_b32 s69, s{S_WIDX}, 1
    v_and_b32 v7, 31, v0
    v_lshrrev_b32 v2, 5, v0
    v_lshrrev_b32 v3, 1, v0
    v_and_b32 v3, 7, v3
    s_lshl_b32 s70, s68, 13
    v_lshlrev_b32 v4, 7, v7
    v_add_u32 v4, s70, v4
    """)
    for ks in range(4):
        a(f"""
        v_add_u32 v5, {2*ks}, v2
        v_xor_b32 v5, v5, v3
        v_lshl_add_u32 v{XA+ks}, v5, 4, v4
        """)
    a(f"""
    v_lshrrev_b32 v7, 2, v0
    v_and_b32 v7, 3, v7
    v_and_b32 v3, 3, v0
    v_lshrrev_b32 v4, 4, v0
    v_and_b32 v4, 1, v4
    v_lshl_add_u32 v5, v2, 3, v7
    v_lshlrev_b32 v5, 8, v5
    v_lshl_add_u32 v5, v4, 5, v5
    v_lshl_add_u32 v5, v3, 3, v5
    s_lshl_b32 s70, s69, 1
    """)
    for t in range(2):
        a(f"""
        s_add_u32 s71, s70, {t}
        v_xor_b32 v6, s71, v7
        v_lshl_add_u32 v{WA+t}, v6, 6, v5
        """)
    for sl in (1, 2):
        for ks in range(4):
            a(f"v_add_u32 v{XA+4*sl+ks}, {sl*SLOT}, v{XA+ks}")
        for t in range(2):
            a(f"v_add_u32 v{WA+2*sl+t}, {sl*SLOT}, v{WA+t}")
    a(f"""
    s_lshl_b32 s70, s{S_RB}, 2
    s_lshl_b32 s71, s68, 1
    s_add_u32 s70, s70, s71
    s_mul_i32 s70, s70, 112
    s_lshl_b32 s71, s{S_CB}, 3
    s_add_u32 s70, s70, s71
    s_lshl_b32 s71, s69, 2
    s_add_u32 s70, s70, s71
    s_lshl_b32 s70, s70, 10
    s_add_u32 s71, s70, {112*1024}
    s_lshl_b32 s3, s{S_RB}, 1
    s_add_u32 s3, s3, s68
    s_lshl_b32 s3, s3, 5
    s_lshl_b32 s72, s{S_CB}, 1
    s_add_u32 s3, s3, s72
    s_add_u32 s3, s3, s69
    s_lshl_b32 s3, s3, 7
    s_add_u32 s3, s3, {FH_OFF}
    s_mov_b32 s72, {f32(-LOG2E)}
    s_mov_b32 s73, {f32(-LOG2E)}
    """)

    def reads(n):
        st, ks = n >> 2, n & 3
        sl = st % 3
        b = n % 3
        r = []
        r.append(f"ds_read_b128 {v(xf(b,0),4)}, v{XA+4*sl+ks}")
        for mat in range(2):
            for t in range(2):
                for h2 in range(2):
                    off = 16384 * (1 + mat) + ks * 4096 + h2 * 1024
                    r.append(f"ds_read_b64_tr_b16 {v(wf(b,mat,t)+2*h2,2)}, v{WA+2*sl+t} offset:{off}")
                if mat == 0 and t == 0:
                    r.append(f"ds_read_b128 {v(xf(b,1),4)}, v{XA+4*sl+ks} offset:4096")
        return r

    T = 16

    def epi(p):
        t, tt = p >> 1, p & 1
        G, U = acc(0, t, tt), acc(1, t, tt)
        o = 32 + 8 * p
        L = []
        for h in range(2):
            R = range(8 * h, 8 * h + 8)
            L += [f"v_pk_mul_f32 {v(T+i,2)}, {v(G+i,2)}, s[72:73]" for i in R[::2]]
            for i in R[::2]:
                L += [f"v_exp_f32 v{T+i}, v{T+i}", f"v_exp_f32 v{T+i+1}, v{T+i+1}",
                      f"v_pk_mul_f32 {v(U+i,2)}, {v(G+i,2)}, {v(U+i,2)}"]
            L += [f"v_pk_add_f32 {v(T+i,2)}, {v(T+i,2)}, 1.0 op_sel_hi:[1,0]" for i in R[::2]]
            L += [f"v_rcp_f32 v{T+i}, v{T+i}" for i in R]
            L += [f"v_pk_mul_f32 {v(U+i,2)}, {v(U+i,2)}, {v(T+i,2)}" for i in R[::2]]
            for i in range(4):
                L.append(f"v_cvt_pk_bf16_f32 v{o+4*h+i}, v{U+8*h+2*i}, v{U+8*h+2*i+1}")
            L.append(f"buffer_store_dwordx4 {v(o+4*h,4)}, v{VL16}, {sr(SRD_WS)}, s{70+tt} offen offset:{t*2048+1024*h} sc1")
        return L

    a("s_barrier")
    a.ext(stamp(1))
    a.ext(bstamp(2, 1))
    a.ext(reads(0))
    a.ext(reads(1))
    extra = []
    XL = OPT.get("xl", 13)
    for n in range(32):
        b = n % 3
        if (n & 3) == 2:
            a("s_waitcnt lgkmcnt(0)")
            a.ext(bstamp(2, 2 + (n >> 2)))
            a("s_barrier")
            if n == 22:
                a.ext(stamp(2))
        elif (n & 3) != 3:
            a("s_waitcnt lgkmcnt(10)")
        rd = reads(n + 2) if n + 2 < 32 else []
        mf = []
        for t in range(2):
            for tt in range(2):
                for mat in range(2):
                    c = "0" if n == 0 else v(acc(mat, t, tt), 16)
                    mf.append(f"v_mfma_f32_32x32x16_bf16 {v(acc(mat,t,tt),16)}, {v(wf(b,mat,t),4)}, {v(xf(b,tt),4)}, {c}")
        if n == 30:
            extra = [f"v_mov_b32 v2, {N_LDS}", "ds_read_b32 v3, v2"]
        for i, m in enumerate(mf):
            a(m)
            a.ext(rd[2 * i:2 * i + 2])
            if i >= 4:
                a.ext(extra[:3])
                extra = extra[3:]
    assert not extra
    a.ext(stamp(3))
    if OPT.get("eprio", 0):
        a(f"s_setprio {OPT['eprio']}")
    a(f"s_waitcnt lgkmcnt(0)\nv_readfirstlane_b32 s{S_NONCE}, v3\ns_nop 5")
    for p in range(4):
        a.ext(epi(p))
    a.ext(stamp(4))
    a("s_branch L_GEMM2")


def spare(a):
    R = 16
    O = 80
    GWv = 112
    SUM = 120
    a(f"""
    s_sub_u32 s68, s{S_IDX}, 28
    s_lshl_b32 s3, s{S_XCD}, 2
    s_add_u32 s3, s3, s68
    s_lshl_b32 s3, s3, 5
    s_add_u32 s3, s3, s{S_WIDX}
    s_lshl_b32 s3, s3, 2
    s_add_u32 s3, s3, {FU_OFF}
    s_lshl_b32 s68, s68, 2
    s_add_u32 s68, s68, s{S_WIDX}
    s_lshr_b32 s69, s68, 1
    s_mov_b32 s74, s{S_XCD}
    v_and_b32 v1, 7, v0
    v_lshrrev_b32 v2, 3, v0
    v_lshlrev_b32 v3, 15, v2
    v_lshl_add_u32 v3, v1, 4, v3
    v_lshlrev_b32 v4, 15, v1
    v_lshl_add_u32 v4, v2, 4, v4
    v_lshlrev_b32 v5, 4, v1
    v_lshlrev_b32 v6, 2, v0
    s_mov_b32 s70, 0x05040100
    s_mov_b32 s71, 0x07060302
    s_lshl_b32 s72, s69, 7
    v_add_u32 v7, s72, v5
    global_load_dwordx4 {v(GWv,4)}, v7, s[{S_GW}:{S_GW+1}]
    """)
    for i in range(2):
        b = 6 + 4 * i
        a(f"""
        s_lshl_b32 s73, s68, 1
        s_add_u32 s73, s73, {i}
        s_and_b32 s73, s73, 3
        s_lshl_b32 s{b}, s74, 18
        s_lshl_b32 s75, s73, 10
        s_add_u32 s{b}, s{b}, s75
        s_add_u32 s{b}, s{b}, s72
        s_lshl_b32 s{b+1}, s69, 18
        s_add_u32 s{b+1}, s{b+1}, s75
        s_lshl_b32 s75, s74, 7
        s_add_u32 s{b+1}, s{b+1}, s75
        s_add_u32 s{b+1}, s{b+1}, {UT_OFF}
        s_lshl_b32 s{b+2}, s74, 8
        s_lshl_b32 s75, s73, 11
        s_add_u32 s{b+2}, s{b+2}, s75
        s_lshl_b32 s75, s69, 13
        s_add_u32 s{b+2}, s{b+2}, s75
        s_add_u32 s{b+2}, s{b+2}, {GL_OFF}
        """)
        for j in range(8):
            a(f"buffer_load_dwordx4 {v(R+32*i+4*j,4)}, v3, {sr(SRD_X)}, s{b} offen")
            if j < 7:
                a(f"s_add_u32 s{b}, s{b}, 4096")
    for i in range(2):
        b = 6 + 4 * i
        a(f"s_waitcnt vmcnt({8 if i == 0 else 9})")
        Ri = R + 32 * i
        for e in range(8):
            for jj in range(4):
                sel = 71 if (e & 1) else 70
                a(f"v_perm_b32 v{O+4*e+jj}, v{Ri+4*(2*jj+1)+(e>>1)}, v{Ri+4*(2*jj)+(e>>1)}, s{sel}")
            a(f"buffer_store_dwordx4 {v(O+4*e,4)}, v4, {sr(SRD_WS)}, s{b+1} offen sc1")
            if e < 7:
                a(f"s_add_u32 s{b+1}, s{b+1}, 4096")
        for j in range(8):
            a(f"v_mov_b32 v{SUM+j}, 0")
        for q in range(4):
            for j in range(8):
                a(f"v_dot2c_f32_bf16 v{SUM+j}, v{Ri+4*j+q}, v{GWv+q}")
        a("s_nop 3")
        for ctl in ("quad_perm:[1,0,3,2]", "quad_perm:[2,3,0,1]", "row_half_mirror"):
            for j in range(8):
                a(f"v_add_f32_dpp v{SUM+j}, v{SUM+j}, v{SUM+j} {ctl} row_mask:0xf bank_mask:0xf")
        for j in range(1, 8):
            a(f"""
            v_cmp_eq_u32 vcc, {j}, v1
            s_nop 1
            v_cndmask_b32 v{SUM}, v{SUM}, v{SUM+j}, vcc
            """)
        a(f"buffer_store_dword v{SUM}, v6, {sr(SRD_WS)}, s{b+2} offen sc1")
        a("s_nop 1")
    a.ext(stamp(1))
    a("v_mov_b32 v2, 0")
    a(nonce_ld(3, 2))
    a("s_waitcnt vmcnt(0)")
    a.ext(plain(nonce_get("NS", 3, 2)))
    a(f"""
    s_mov_b32 s76, s{S_NONCE}
    s_mov_b64 exec, 1
    buffer_store_dword v3, v2, {sr(SRD_WS)}, s3 offen sc1
    s_mov_b64 exec, -1
    s_barrier
    """)
    a.ext(stamp(2))
    gemm2_setup(a)
    a(f"""
    s_lshl_b32 s13, s{S_XCD}, 2
    s_add_u32 s13, s13, s{S_IDX}
    s_sub_u32 s13, s13, 28
    s_lshl_b32 s13, s13, 2
    s_add_u32 s13, s13, s{S_WIDX}
    s_mul_i32 s13, s13, {14*1024}
    """)
    for i in range(14):
        if i % 4 == 0 and i:
            a("s_add_u32 s13, s13, 4096")
        a(f"buffer_load_dwordx4 {v(64+4*(i%4),4)}, v{VL16}, {sr(SRD_WD)}, s13 offen offset:{1024*(i%4)}")
    a(f"s_mov_b32 s{S_NONCE}, s76\ns_waitcnt vmcnt(0)")


def spin(label, loads, checks, sleep=2):
    L = [f"{label}_SPIN:", f"s_sleep {sleep}"]
    L += [("NOCOUNT", x) for x in loads]
    L += ["s_waitcnt vmcnt(0)"]
    L += ["s_sub_u32 s77, s77, 1", "s_cmp_eq_u32 s77, 0", f"s_cbranch_scc1 {label}_OK"]
    L += [f"{label}_CHK:"] + checks
    L += [f"s_cbranch_scc0 {label}_SPIN", f"{label}_OK:"]
    return L


S_NONCE = 23


def nonce_ld(vd, vz):
    return f"global_load_dword v{vd}, v{vz}, s[{S_DBG}:{S_DBG+1}] sc1"


def nonce_get(label, vd, vz, sleep=8):
    L = ["s_mov_b32 s77, 0x100000", f"s_branch {label}_CHK"]
    L += spin(label, [nonce_ld(vd, vz)], [f"v_cmp_ne_u32 vcc, 0, v{vd}", "s_nop 3", "s_cmp_eq_u64 vcc, exec"], sleep)
    L += [f"v_readfirstlane_b32 s{S_NONCE}, v{vd}", "s_nop 3"]
    return L


def plain(lines):
    return [x[1] if isinstance(x, tuple) else x for x in lines]


def gemm2(a0):
    a = Asm()
    NS = 28
    NP = 12
    NR = 16
    DH = 6
    ACC = 192
    WF = 16
    WFR = 128
    HB = 144
    N1 = n1()
    NF = OPT.get("nf", 2)
    PP1 = OPT.get("pp1", 21)
    N2 = OPT.get("n2", 28)

    def acc(t, tt):
        return ACC + 16 * (t + 2 * tt)

    def wload(i):
        sl = i % NR
        return [
            "s_lshl_b32 s14, s11, 14", f"s_add_u32 m0, s8, {sl*2048}", "s_add_u32 s14, s14, s10",
            f"buffer_load_dwordx4 v{VD0}, {sr(SRD_WD)}, s14 offen lds",
            "s_add_u32 s11, s11, 1", "s_cmp_ge_u32 s11, 28", "s_cselect_b32 s11, 0, s11",
            f"buffer_load_dwordx4 v{VD1}, {sr(SRD_WD)}, s14 offen offset:1024 lds",
            ("VMTAG", f"W{i}"),
        ]

    def hload(i):
        sl = i % DH
        return [
            "s_lshl_b32 s13, s12, 10", "s_add_u32 s13, s13, s9",
            f"buffer_load_dwordx4 {v(HB+8*sl,4)}, v{VL16}, {sr(SRD_WS)}, s13 offen sc1",
            "s_add_u32 s13, s13, s22",
            "s_add_u32 s12, s12, 1", "s_cmp_ge_u32 s12, 28", "s_cselect_b32 s12, 0, s12",
            f"buffer_load_dwordx4 {v(HB+8*sl+4,4)}, v{VL16}, {sr(SRD_WS)}, s13 offen sc1",
            ("VMTAG", f"H{i}"),
        ]

    def wfrag(i):
        return WF + 8 * i if i < NP else WFR + 8 * (i & 1)

    def trd(i):
        sl = i % NR
        r = [("VMWAIT", f"W{i}")] if i >= N1 else []
        for t in range(2):
            for h2 in range(2):
                r.append(f"ds_read_b64_tr_b16 {v(wfrag(i)+4*t+2*h2,2)}, v{DA0+t} offset:{sl*2048+h2*1024}")
        return r

    a.tag("hst")
    a("s_barrier")
    a.ext(stamp(5))
    a(f"""
    s_setprio 2
    v_mov_b32 v2, 0
    v_mov_b32 v3, s{S_NONCE}
    s_mov_b32 s77, 0x100000
    """)
    ph_ld = f"buffer_load_dword v4, v{VPH}, {sr(SRD_WS)}, s15 offen sc1"

    def wl(i):
        a.ext(wload(i))
        if i == N1 + NF - 1:
            a.wait("hst")
            a(f"""
            s_mov_b64 exec, 1
            buffer_store_dword v3, v2, {sr(SRD_WS)}, s3 offen sc1
            s_mov_b64 exec, -1
            """)
            a.ext(stamp(6))
        if i == PP1:
            a(ph_ld)
            a.tag("P1")
    assert N1 + NF <= NR
    for i in range(N1, NR):
        wl(i)
    for i in range(NP + 1):
        if i < NP:
            a.ext(trd(i))
        if i >= 1 and NR + i - 1 < N2:
            a(f"s_waitcnt lgkmcnt({4 if i < NP else 0})")
            wl(NR + i - 1)
    a.ext(stamp(7))
    a.wait("P1")
    a("s_branch PH_CHK")
    a.ext(spin("PH", [ph_ld], [f"v_cmp_eq_u32 vcc, s{S_NONCE}, v4", "s_nop 3", "s_cmp_eq_u64 vcc, exec"]))
    a.ext(stamp(8))
    a.ext(bstamp(3, 1))
    for i in range(DH):
        a.ext(hload(i))
    a("s_waitcnt lgkmcnt(0)")

    YR, FL, YT, EG = 80, 2, WFR, 6
    fl_ld = [f"buffer_load_dword v{FL}, v{VFL}, {sr(SRD_WS)}, s16 offen sc1"]
    chk = [f"v_cmp_eq_u32 vcc, s{S_NONCE}, v{FL}", "s_nop 3", "s_cmp_eq_u64 vcc, exec"]

    def yloads():
        return [f"buffer_load_dwordx4 {v(YR,4)}, v{VY}, {sr(SRD_WS)}, s19 offen sc1",
                "s_add_u32 s13, s19, 0x8000",
                f"buffer_load_dwordx4 {v(YR+4,4)}, v{VY}, {sr(SRD_WS)}, s13 offen sc1"]

    IF = OPT.get("if", 22)
    IY = OPT.get("iy", 25)
    for i in range(NS):
        sl = i % DH
        a.wait(f"H{i}")
        if i >= NP:
            a("s_waitcnt lgkmcnt(0)")
        hl = hload(i - 1 + DH) if 1 <= i and i - 1 + DH < NS else []
        fill = [(trd(i + 1) if NP <= i + 1 < NS else []) + hl[:3], hl[3:], wload(N2 + i) if N2 + i < NS else [], []]
        k = 0
        for t in range(2):
            for tt in range(2):
                c = "0" if i == 0 else v(acc(t, tt), 16)
                a(f"v_mfma_f32_32x32x16_bf16 {v(acc(t,tt),16)}, {v(wfrag(i)+4*t,4)}, {v(HB+8*sl+4*tt,4)}, {c}")
                a.ext(fill[k])
                k += 1
        if i in (0, 3, 7, 11, 15, 19, 23, 27):
            a.ext(bstamp(3, 2 + (0, 3, 7, 11, 15, 19, 23, 27).index(i)))
        if i == IF:
            a.ext(fl_ld)
            a.tag("F")
        if i == IY:
            a.wait("F")
            a.ext(yloads())
    a.ext(stamp(9))
    a.ext(chk)
    a("s_cbranch_scc1 PY_DONE")
    a.ext(spin("PY", fl_ld, chk))
    a.ext([("NOCOUNT", x) if is_vmem(x) else x for x in yloads()])
    a("PY_DONE:")
    a("s_nop 5")
    for k in range(1, 4):
        for g in range(4):
            a(f"ds_write_b128 v{VW1}, {v(ACC+16*k+4*g,4)} offset:{k*4096+g*1024}")
    X1, Y1 = HB, HB + 16
    OST = {0: "", 1: " sc1", 2: " nt", 3: " sc0 sc1"}[OPT.get("ost", 0)]
    a(f"""
    v_mov_b32 v5, 0xffff0000
    ds_read_b32 v{EG}, v{VG}
    s_waitcnt vmcnt(0)
    ds_write_b128 v{VYW}, {v(YR,4)} offset:16384
    ds_write_b128 v{VYW}, {v(YR+4,4)} offset:17408
    """)
    a("s_waitcnt lgkmcnt(0)")
    a("s_barrier")
    PB = 16
    for q in range(4):
        a(f"ds_read_b64_tr_b16 {v(YT+2*q,2)}, v{VYT} offset:{16384+q*512}")
    for k, base in ((1, VR1), (2, VW2), (3, VW3)):
        for g in range(4):
            a(f"ds_read_b128 {v(PB+16*(k-1)+4*g,4)}, v{base} offset:{k*4096+g*1024}")
    a("s_waitcnt lgkmcnt(12)")
    for i in range(8):
        a(f"""
        v_lshlrev_b32 v{Y1+2*i}, 16, v{YT+i}
        v_and_b32 v{Y1+2*i+1}, v5, v{YT+i}
        """)
    a("s_waitcnt lgkmcnt(8)")
    for i in range(0, 16, 2):
        a(f"v_pk_add_f32 {v(ACC+i,2)}, {v(ACC+i,2)}, {v(PB+i,2)}")
    a("s_waitcnt lgkmcnt(0)")
    for i in range(0, 16, 2):
        a(f"v_pk_add_f32 {v(PB+16+i,2)}, {v(PB+16+i,2)}, {v(PB+32+i,2)}")
    for i in range(0, 16, 2):
        a(f"v_pk_add_f32 {v(ACC+i,2)}, {v(ACC+i,2)}, {v(PB+16+i,2)}")
    for i in range(0, 16, 2):
        a(f"v_pk_add_f32 {v(Y1+i,2)}, {v(Y1+i,2)}, {v(ACC+i,2)} neg_lo:[0,1] neg_hi:[0,1]")
    for i in range(0, 16, 2):
        a(f"v_pk_fma_f32 {v(ACC+i,2)}, {v(Y1+i,2)}, {v(EG,2)}, {v(ACC+i,2)} op_sel_hi:[1,0,1]")
    for i in range(8):
        a(f"v_cvt_pk_bf16_f32 v{X1+i}, v{ACC+2*i}, v{ACC+2*i+1}")
    a(f"""
    buffer_store_dwordx4 {v(X1,4)}, v{VEP}, {sr(SRD_OUT)}, 0 offen{OST}
    buffer_store_dwordx4 {v(X1+4,4)}, v{VEP}, {sr(SRD_OUT)}, 0 offen offset:16{OST}
    """)
    a.ext(stamp_end())
    a0.ext(resolve_vm(a.L))


def kwave(gemm_wg):
    sfx = "G" if gemm_wg else "S"
    ra = RA(2, 256)
    pre = Asm()
    main = Asm()
    ph2 = Asm()
    a = pre
    a(f"""
    s_setprio {OPT.get("kprio", 0)}
    s_sub_u32 s68, s{S_WIDX}, 6
    s_lshl_b32 s69, s2, 1
    s_add_u32 s69, s69, s68
    s_lshl_b32 s70, s68, 13
    s_add_u32 s70, s70, {KG_BASE}
    s_lshl_b32 s71, s69, 8
    """)
    t0 = ra(); t1 = ra(); t2 = ra(); t3 = ra()
    PR = ra(7)
    DV = ra()
    a(f"""
    v_lshlrev_b32 v{t0}, 2, v0
    v_add_u32 v{t0}, s71, v{t0}
    s_lshl_b32 s72, s69, 1
    v_mov_b32 v{t1}, s72
    """)
    for i, sb in enumerate((S_ARE, S_AIM, S_BRE, S_BIM, S_CRE, S_CIM)):
        a(f"global_load_dword v{PR+i}, v{t0}, s[{sb}:{sb+1}]")
    a(f"global_load_ushort v{PR+6}, v{t1}, s[{S_LDT}:{S_LDT+1}]")
    a(f"global_load_ushort v{DV}, v{t1}, s[{S_DS}:{S_DS+1}]")
    if gemm_wg:
        a(f"""
        s_cmp_lg_u32 s69, 0
        s_cbranch_scc1 K{sfx}_NOTAG
        s_memrealtime s[72:73]
        v_mov_b32 v{t0}, 0
        s_waitcnt lgkmcnt(0)
        s_or_b32 s72, s72, 1
        v_mov_b32 v{t1}, s72
        s_mov_b64 exec, 1
        global_store_dword v{t0}, v{t1}, s[{S_DBG}:{S_DBG+1}] sc1
        s_mov_b64 exec, -1
        K{sfx}_NOTAG:
        """)

    WR = ra(8)
    RD = ra(2)
    a(f"""
    v_lshrrev_b32 v{t0}, 1, v0
    v_and_b32 v{t1}, 7, v{t0}
    v_lshlrev_b32 v{t0}, 8, v{t0}
    v_and_b32 v{t2}, 1, v0
    v_lshl_add_u32 v{t0}, v{t2}, 3, v{t0}
    v_add_u32 v{t0}, s70, v{t0}
    """)
    for b in range(8):
        a(f"""
        v_xor_b32 v{t2}, {b}, v{t1}
        v_lshl_add_u32 v{WR+b}, v{t2}, 4, v{t0}
        """)
    a(f"""
    v_and_b32 v{t0}, 15, v0
    v_lshrrev_b32 v{t1}, 4, v0
    """)
    for p in range(2):
        a(f"""
        v_add_u32 v{t2}, {4*p}, v{t1}
        v_xor_b32 v{t3}, v{t2}, v{t0}
        v_lshlrev_b32 v{t3}, 4, v{t3}
        v_lshl_add_u32 v{t3}, v{t2}, 8, v{t3}
        v_add_u32 v{RD+p}, s70, v{t3}
        """)
    TA0 = ra(); TA1 = ra(); TA2 = ra(); TA3 = ra()
    LP = ra(12)
    a(f"""
    v_and_b32 v{t2}, 1, v{t1}
    v_lshrrev_b32 v{t3}, 1, v{t1}
    v_lshlrev_b32 v{TA0}, 5, v{t0}
    v_lshl_add_u32 v{TA0}, v{t2}, 4, v{TA0}
    v_lshl_add_u32 v{TA0}, v{t3}, 9, v{TA0}
    v_lshrrev_b32 v{LP}, 2, v{TA0}
    v_cvt_f32_u32 v{LP}, v{LP}
    v_add_u32 v{TA0}, s70, v{TA0}
    v_add_f32 v{LP+1}, 1.0, v{LP}
    v_add_f32 v{LP+2}, 2.0, v{LP}
    v_add_f32 v{LP+3}, 2.0, v{LP+1}
    v_cmp_gt_u32 vcc, 2, v{t1}
    v_lshlrev_b32 v{TA1}, 4, v{t0}
    v_lshlrev_b32 v{TA2}, 3, v{t0}
    v_cndmask_b32 v{TA1}, v{TA2}, v{TA1}, vcc
    v_lshl_add_u32 v{TA1}, v{t1}, 8, v{TA1}
    v_add_u32 v{TA1}, s70, v{TA1}
    v_add_u32 v{TA1}, 1024, v{TA1}
    v_mov_b32 v{TA2}, 128
    v_cndmask_b32 v{TA2}, v{TA2}, 8, vcc
    v_add_u32 v{TA2}, v{TA2}, v{TA1}
    v_lshlrev_b32 v{TA3}, 2, v{t0}
    v_lshl_add_u32 v{TA3}, v{t1}, 8, v{TA3}
    v_add_u32 v{TA3}, s70, v{TA3}
    """)
    a(f"""
    v_lshlrev_b32 v{t2}, 7, v{t1}
    v_add_u32 v{t2}, 256, v{t2}
    v_lshlrev_b32 v{t3}, 8, v{t1}
    v_cndmask_b32 v{t2}, v{t3}, v{t2}, vcc
    v_lshl_add_u32 v{t2}, v{t0}, 3, v{t2}
    v_cvt_f32_u32 v{LP+4}, v{t2}
    v_mov_b32 v{t2}, 4.0
    v_cndmask_b32 v{t2}, v{t2}, 2.0, vcc
    v_mov_b32 v{t3}, {f32(128.0)}
    v_cndmask_b32 v{t3}, v{t3}, 4.0, vcc
    v_add_f32 v{LP+5}, v{LP+4}, v{t2}
    v_add_f32 v{LP+6}, v{LP+4}, v{t3}
    v_add_f32 v{LP+7}, v{LP+6}, v{t2}
    v_lshlrev_b32 v{t2}, 9, v{t1}
    v_lshl_add_u32 v{t2}, v{t0}, 3, v{t2}
    v_add_u32 v{t2}, 1024, v{t2}
    v_cvt_f32_u32 v{LP+8}, v{t2}
    v_add_f32 v{LP+9}, {f32(128.0)}, v{LP+8}
    v_add_f32 v{LP+10}, {f32(256.0)}, v{LP+8}
    v_add_f32 v{LP+11}, {f32(384.0)}, v{LP+8}
    """)
    EX = ra(10)
    a(f"""
    s_sub_u32 s72, s70, {4*17024}
    v_lshlrev_b32 v{t0}, 3, v0
    v_cvt_f32_u32 v{t1}, v{t0}
    v_cmp_gt_u32 vcc, 16, v0
    v_add_u32 v{EX+8}, s70, v{t0}
    v_lshlrev_b32 v{t0}, 2, v{t0}
    v_add_u32 v{t0}, s70, v{t0}
    v_lshlrev_b32 v{EX+9}, 2, v0
    v_add_u32 v{EX+9}, s70, v{EX+9}
    v_add_u32 v{EX+9}, 2048, v{EX+9}
    """)
    for kk in range(4):
        e0, e1 = EX + 2 * kk, EX + 2 * kk + 1
        a(f"""
        v_add_f32 v{t2}, 1.0, v{t1}
        v_cvt_pk_bf16_f32 v{t3}, v{t1}, v{t2}
        v_add_f32 v{t1}, 2.0, v{t1}
        v_and_b32 v{e0}, 0xffff, v{t3}
        v_lshrrev_b32 v{e1}, 16, v{t3}
        v_lshl_add_u32 v{e0}, v{e0}, 2, s72
        v_lshl_add_u32 v{e1}, v{e1}, 2, s72
        v_add_u32 v{t2}, {8*kk}, v{t0}
        v_add_u32 v{t3}, {8*kk+4}, v{t0}
        v_cndmask_b32 v{e0}, v{e0}, v{t2}, vcc
        v_cndmask_b32 v{e1}, v{e1}, v{t3}, vcc
        """)

    a = main
    a("s_waitcnt vmcnt(0)")
    MASK = ra()
    DT = ra()
    PP = ra(12)
    a(f"""
    v_mov_b32 v{MASK}, 0xffff0000
    v_cmp_eq_u32 vcc, 0, v0
    v_lshlrev_b32 v{DV}, 16, v{DV}
    s_nop 0
    v_cndmask_b32 v{DV}, 0, v{DV}, vcc
    """)
    for i in range(6):
        a(f"v_lshlrev_b32 v{PP+2*i}, 16, v{PR+i}")
        a(f"v_and_b32 v{PP+2*i+1}, v{MASK}, v{PR+i}")
    x = PR + 6
    a(f"""
    v_lshlrev_b32 v{x}, 16, v{x}
    v_mul_f32 v{t0}, {f32(LOG2E_HI)}, v{x}
    s_mov_b32 s72, {f32(LOG2E_HI)}
    v_fma_f32 v{t1}, v{x}, s72, -v{t0}
    v_fmac_f32 v{t1}, {f32(LOG2E_LO)}, v{x}
    v_exp_f32 v{t0}, v{t0}
    v_mul_f32 v{t1}, {f32(LN2)}, v{t1}
    v_fmac_f32 v{t0}, v{t0}, v{t1}
    v_cvt_pk_bf16_f32 v{t0}, v{t0}, v{t0}
    v_lshlrev_b32 v{DT}, 16, v{t0}
    """)
    A2, TH, Br, Bi, Cr, Ci = (PP + 2 * i for i in range(6))
    for m in range(2):
        a(f"""
        v_mul_f32 v{A2+m}, v{DT}, v{A2+m}
        v_mul_f32 v{TH+m}, v{DT}, v{TH+m}
        v_mul_f32 v{Br+m}, v{DT}, v{Br+m}
        v_mul_f32 v{Bi+m}, v{DT}, v{Bi+m}
        v_mul_f32 v{A2+m}, {f32(LOG2E)}, v{A2+m}
        v_mul_f32 v{TH+m}, {f32(INV2PI)}, v{TH+m}
        """)
    W0 = ra(4); W1 = ra(4)
    for m in range(2):
        a(f"""
        v_mul_f32 v{W0+2*m}, v{Cr+m}, v{Br+m}
        v_mul_f32 v{W0+2*m+1}, v{Cr+m}, v{Bi+m}
        v_fma_f32 v{W0+2*m}, -v{Ci+m}, v{Bi+m}, v{W0+2*m}
        v_fmac_f32 v{W0+2*m+1}, v{Ci+m}, v{Br+m}
        v_sub_f32 v{W0+2*m+1}, 0, v{W0+2*m+1}
        """)
    SIG = ra(); WM = ra(); CE = ra()
    a(f"""
    v_max_f32 v{SIG}, v{A2}, v{A2+1}
    v_max3_f32 v{WM}, |v{W0}|, |v{W0+1}|, |v{W0+2}|
    v_max_f32 v{WM}, |v{W0+3}|, v{WM}
    s_nop 1
    """)
    for ctl in ("quad_perm:[1,0,3,2]", "quad_perm:[2,3,0,1]", "row_half_mirror", "row_mirror"):
        a(f"""
        v_max_f32_dpp v{SIG}, v{SIG}, v{SIG} {ctl} row_mask:0xf bank_mask:0xf
        v_max_f32_dpp v{WM}, v{WM}, v{WM} {ctl} row_mask:0xf bank_mask:0xf
        s_nop 0
        """)
    a(f"""
    v_readlane_b32 s72, v{SIG}, 0
    v_readlane_b32 s73, v{SIG}, 16
    v_readlane_b32 s74, v{SIG}, 32
    v_readlane_b32 s75, v{SIG}, 48
    v_readlane_b32 s6, v{WM}, 0
    v_readlane_b32 s7, v{WM}, 16
    v_readlane_b32 s8, v{WM}, 32
    v_readlane_b32 s9, v{WM}, 48
    v_max_f32 v{SIG}, s72, v{SIG}
    v_max_f32 v{SIG}, s73, v{SIG}
    v_max_f32 v{SIG}, s74, v{SIG}
    v_max_f32 v{SIG}, s75, v{SIG}
    v_max_f32 v{WM}, s6, v{WM}
    v_max_f32 v{WM}, s7, v{WM}
    v_max_f32 v{WM}, s8, v{WM}
    v_max_f32 v{WM}, s9, v{WM}
    v_sub_f32 v{A2}, v{A2}, v{SIG}
    v_sub_f32 v{A2+1}, v{A2+1}, v{SIG}
    v_frexp_exp_i32_f32 v{CE}, v{WM}
    v_sub_u32 v{t0}, 14, v{CE}
    v_subrev_u32 v{CE}, 29, v{CE}
    """)
    for i in range(4):
        a(f"v_ldexp_f32 v{W0+i}, v{W0+i}, v{t0}")

    def cexp(l):
        r = ra(6)
        for m in range(2):
            a(f"""
            v_mul_f32 v{t0}, {f32(float(l))}, v{A2+m}
            v_mul_f32 v{t1}, {f32(float(l))}, v{TH+m}
            v_exp_f32 v{t0}, v{t0}
            v_fract_f32 v{t1}, v{t1}
            v_cos_f32 v{t2}, v{t1}
            v_sin_f32 v{t3}, v{t1}
            s_nop 0
            v_mul_f32 v{r+2*m}, v{t0}, v{t2}
            v_mul_f32 v{r+2*m+1}, v{t0}, v{t3}
            v_sub_f32 v{r+4+m}, 0, v{r+2*m+1}
            """)
        return r

    def cmul(d, x_, b, conj=False):
        for m in range(2):
            br, bi, nbi = b + 2 * m, b + 2 * m + 1, b + 4 + m
            if conj:
                bi, nbi = nbi, bi
            a(f"""
            v_mul_f32 v{d+2*m}, v{x_+2*m}, v{br}
            v_mul_f32 v{d+2*m+1}, v{x_+2*m}, v{bi}
            v_fmac_f32 v{d+2*m}, v{x_+2*m+1}, v{nbi}
            v_fmac_f32 v{d+2*m+1}, v{x_+2*m+1}, v{br}
            """)

    def neg(b):
        for m in range(2):
            a(f"v_sub_f32 v{b+4+m}, 0, v{b+2*m+1}")

    def scale(d, x_):
        for i in range(4):
            a(f"v_mul_f32 v{d+i}, {f32(32768.0)}, v{x_+i}")

    VB = [ra(32, 4), ra(32, 4), ra(32, 4), ra(18, 4)]
    CH0 = ra(0, 4)

    def put(batch, row, r):
        h = VB[batch] + 2 * row
        if r is None:
            a(f"v_mov_b32 v{h}, 0x7800\nv_mov_b32 v{h+1}, 0x7800")
        else:
            a(f"""
            v_cvt_pk_f16_f32 v{h}, v{r}, v{r+1}
            v_cvt_pk_f16_f32 v{h+1}, v{r+2}, v{r+3}
            """)

    E8 = cexp(8)
    cur, nxt = W0, W1
    for c in range(16):
        if c < 15:
            cmul(nxt, cur, E8, conj=True)
        put(0, c, cur)
        cur, nxt = nxt, cur
    E1 = cexp(1)
    Q1 = cexp(128)
    Q8 = cexp(1024)
    P = {}
    P[1] = ra(4)
    scale(P[1], E1)
    for j in range(2, 8):
        P[j] = ra(6 if j == 4 else 4)
        cmul(P[j], P[j - 1], E1)
    put(1, 0, None)
    for j in range(1, 8):
        put(1, j, P[j])
    scale(W0, Q1)
    put(1, 8, W0)
    for j in range(1, 8):
        cmul(W0, P[j], Q1)
        put(1, 8 + j, W0)
    Q = {1: Q1, 8: Q8}
    for j in range(2, 8):
        Q[j] = {2: E1, 3: PP + 4}[j] if j < 4 else P[2 * (j - 4) + 1]
        cmul(Q[j], Q[j - 1], Q1)
    neg(P[4]); neg(Q[2]); neg(Q[3])
    for qi, j in enumerate((2, 3)):
        scale(W0, Q[j])
        put(2, 4 * qi, W0)
        for r in range(1, 4):
            cmul(W0, P[2 * r], Q[j])
            put(2, 4 * qi + r, W0)
    for aa in range(4):
        scale(W0, Q[4 + aa])
        put(2, 8 + 2 * aa, W0)
        cmul(W0, Q[4 + aa], P[4])
        put(2, 8 + 2 * aa + 1, W0)
    a(f"v_mov_b32 v{PR}, 0")
    a(nonce_ld(PR + 1, PR))
    QS = E8
    scale(QS, Q8)
    neg(QS)
    put(3, 0, QS)
    for j in range(1, 8):
        cmul(W0, Q[j], QS)
        put(3, j, W0)
    cmul(W0, Q8, QS)
    put(3, 8, W0)
    for i in range(12):
        a(f"v_mul_f32 v{LP+i}, v{SIG}, v{LP+i}")
    for i in range(12):
        a(f"v_exp_f32 v{LP+i}, v{LP+i}")

    a = ph2
    YF = CH0
    AC = CH0 + 32
    assert AC + 12 <= ra.p

    def wr(batch, nrows):
        for row in range(nrows):
            a(f"ds_write_b64 v{WR+(row&7)}, {v(VB[batch]+2*row,2)} offset:{(row>>3)*128}")

    def fetch(F):
        for ks in range(8):
            a(f"ds_read_b128 {v(F+4*ks,4)}, v{RD+(ks&1)} offset:{(ks>>1)*2048}")

    def mfmas(tile, XF):
        for ks in range(8):
            c = "0" if ks == 0 else v(AC + 4 * tile, 4)
            a(f"v_mfma_f32_16x16x32_f16 {v(AC+4*tile,4)}, {v(XF+4*ks,4)}, {v(YF+4*ks,4)}, {c}")

    a("s_waitcnt vmcnt(0)")
    ng = plain(nonce_get(f"NK{sfx}", PR + 1, PR))
    a(f"v_mov_b32 v{t2}, {N_LDS}")
    a(f"ds_write_b32 v{t2}, v{PR+1}")
    wr(0, 16); fetch(YF)
    wr(1, 16); fetch(VB[0])
    wr(2, 16); fetch(VB[1])
    a("s_waitcnt lgkmcnt(15)")
    mf0 = len(a.L)
    wr(3, 9); fetch(VB[2])
    tail = a.L[mf0:]
    del a.L[mf0:]
    m = Asm()
    sv, a = a, m
    mfmas(0, VB[0])
    a = sv
    for i in range(8):
        a.ext(tail[2 * i:2 * i + 2])
        a(m.L[i])
    a.ext(tail[16:])
    a("s_waitcnt lgkmcnt(15)")
    mfmas(1, VB[1])
    a("s_waitcnt lgkmcnt(0)")
    mfmas(2, VB[2])
    a("s_nop 3")
    for i in range(12):
        a(f"v_mul_f32 v{AC+i}, v{AC+i}, v{LP+i}")
    for i in range(12):
        a(f"v_ldexp_f32 v{AC+i}, v{AC+i}, v{CE}")
    a(f"v_add_f32 v{AC}, v{AC}, v{DV}")
    a(f"ds_write_b128 v{TA0}, {v(AC,4)}")
    a(f"ds_write_b64 v{TA1}, {v(AC+4,2)}")
    a(f"ds_write_b64 v{TA2}, {v(AC+6,2)}")
    for r in range(4):
        a(f"ds_write_b32 v{TA3}, v{AC+8+r} offset:{2048+64*r}")
    G0 = VB[0]
    OUT = VB[1]
    for i in range(8):
        a(f"ds_read_b32 v{G0+i}, v{EX+i}")
    a(f"""
    ds_read_b64 {v(G0+8,2)}, v{EX+8} offset:1536
    ds_read_b32 v{G0+10}, v{EX+8} offset:1544
    ds_read2_b32 {v(G0+12,2)}, v{EX+9} offset0:0 offset1:1
    ds_read2_b32 {v(G0+14,2)}, v{EX+9} offset0:64 offset1:65
    v_lshlrev_b32 v{t0}, 4, v0
    v_add_u32 v{t0}, s70, v{t0}
    v_and_b32 v{t1}, 3, v0
    v_lshlrev_b32 v{t1}, 4, v{t1}
    v_add_u32 v{t1}, s70, v{t1}
    v_mov_b32 v{OUT+16}, 0
    v_mov_b32 v{OUT+17}, 0
    v_mov_b32 v{OUT+18}, 0
    v_mov_b32 v{OUT+19}, 0
    s_mov_b32 s72, 0xaaaaaaaa
    s_mov_b32 s73, 0xaaaaaaaa
    ds_write_b128 v{t1}, {v(OUT+16,4)} offset:{KARR}
    s_waitcnt lgkmcnt(0)
    """)
    for k in range(4):
        a(f"v_cvt_pk_bf16_f32 v{OUT+k}, v{G0+2*k}, v{G0+2*k+1}")
    a(f"""
    v_cvt_pk_bf16_f32 v{OUT+4}, v{G0+8}, v{G0+8}
    v_cvt_pk_bf16_f32 v{OUT+5}, v{G0+8}, v{G0+9}
    v_cvt_pk_bf16_f32 v{OUT+6}, v{G0+9}, v{G0+9}
    v_cvt_pk_bf16_f32 v{OUT+7}, v{G0+10}, v{G0+10}
    """)
    for it in (2, 3):
        T0, T1 = G0 + 8 + 2 * it, G0 + 9 + 2 * it
        o = OUT + 4 * it
        a(f"""
        v_cndmask_b32 v{t2}, v{T0}, v{T1}, s[72:73]
        v_cvt_pk_bf16_f32 v{o}, v{T0}, v{T0}
        v_cvt_pk_bf16_f32 v{o+1}, v{T0}, v{T0}
        v_cvt_pk_bf16_f32 v{o+2}, v{t2}, v{T1}
        v_cvt_pk_bf16_f32 v{o+3}, v{T1}, v{T1}
        """)
    a(f"v_mov_b32 v{t2}, 0")
    for it in range(4):
        a(f"ds_write_b128 v{t0}, {v(OUT+4*it,4)} offset:{KARR+64+1024*it}")
    if OPT.get("dbgk"):
        a(f"""
        s_lshl_b32 s72, s69, 12
        s_add_u32 s72, s72, {KX_OFF}
        v_lshlrev_b32 v{t0}, 4, v0
        """)
        for it in range(4):
            a(f"buffer_store_dwordx4 {v(OUT+4*it,4)}, v{t0}, {sr(SRD_WS)}, s72 offen offset:{1024*it}")
    a("s_waitcnt vmcnt(0) lgkmcnt(0)")
    ph2.L[1:1] = ["\n    ".join(ng)]

    out = list(pre.L)
    out.extend(stamp(1))
    kx = OPT.get("kx", 0)
    if kx == 1:
        ph2.L = []
    elif kx == 2:
        ph2.L = [x for x in ph2.L if not x.startswith("v_mfma")]
    elif kx == 3:
        ph2.L = [x for x in ph2.L if not x.startswith("ds_write")]
    elif kx == 4:
        ph2.L = [x for x in ph2.L if not x.startswith("ds_read")]
    elif kx == 5:
        L2 = []
        for x in ph2.L:
            L2.append(x)
            if x.startswith("ds_write_b64"):
                L2.append("s_nop 3")
        ph2.L = L2
    if gemm_wg:
        per = OPT.get("kper", 132)
        first = OPT.get("kfirst", 0)
        p2a = OPT.get("kp2a", 56)
        p2b = OPT.get("kp2b", 115)
        pos = min(first, len(main.L))
        out.extend(main.L[:pos])
        for sidx in range(9):
            out.extend(bstamp(2, 1 + sidx))
            out.append("s_barrier")
            if sidx < 6:
                end = len(main.L) if sidx == 5 else min(pos + per, len(main.L))
                out.extend(main.L[pos:end])
                pos = end
            elif sidx == 6:
                out.extend(ph2.L[:p2a])
            elif sidx == 7:
                out.extend(ph2.L[p2a:p2b])
            else:
                out.extend(ph2.L[p2b:])
        out.extend(stamp(2))
        out.append("s_barrier")
    else:
        out.extend(main.L)
        out.extend(ph2.L)
        out.append("s_barrier")
        out.extend(stamp(2))
        out.append("s_barrier")
    out.append("s_mov_b32 s6, s68")
    out.append("s_branch L_CONVB")
    return out


def lwave(gemm_wg):
    sfx = "G" if gemm_wg else "S"
    a = Asm()
    XV, WV, VL, VC = 8, 12, 2, 16
    t0, t1, t2 = 3, 4, 5
    DUM = 24
    ROT = OPT.get("rot", 0)
    SW = 12
    a(f"""
    s_setprio 3
    s_sub_u32 s6, s{S_WIDX}, 4
    """)

    def kofs(st):
        if not ROT:
            return []
        return [f"s_add_u32 s18, s{S_PHI}, {st}", "s_and_b32 s18, s18, 7", f"s_mul_i32 s19, s18, {64*3584}",
                "s_lshl_b32 s18, s18, 7"]

    def grp(st, g):
        sl = st % 3
        if g in (1, 5):
            j = 0 if g == 1 else 1
            L = [f"s_add_u32 m0, s{10+j}, {sl*SLOT}", f"s_add_u32 s22, s{8+j}, {'s18' if ROT else st*128}"]
            L += [f"buffer_load_dwordx4 v{XV+i}, {sr(SRD_X)}, s22 offen offset:{1024*i} lds" for i in range(4)]
        else:
            j = 0 if g == 0 else g - 1
            L = [f"s_add_u32 m0, s{72+j}, {sl*SLOT}", f"s_add_u32 s22, s{68+j}, {'s19' if ROT else st*64*3584}"]
            L += [f"buffer_load_dwordx4 v{WV+i}, {sr(SW)}, s22 offen offset:{1024*i} lds" for i in range(4)]
        return L

    def pref(st):
        L = [f"s_add_u32 s22, s68, {st*64*3584}"]
        L += [f"buffer_load_dwordx4 {v(DUM+4*i,4)}, v{WV+i}, {sr(SW)}, s22 offen offset:{1024*i}" for i in range(4)]
        L += [f"s_add_u32 s22, s23, {st*128}"]
        L += [f"buffer_load_dwordx4 {v(DUM+16+4*i,4)}, v{XV+i}, {sr(SRD_X)}, s22 offen offset:{1024*i}" for i in range(2)]
        return L

    fu_ld = [f"buffer_load_dwordx2 v[{VC}:{VC+1}], v{t1}, {sr(SRD_WS)}, s16 offen sc1"]
    fu_chk = [f"v_cmp_eq_u32 vcc, s{S_NONCE}, v{VC}", f"v_cmp_eq_u32 s[18:19], s{S_NONCE}, v{VC+1}", "s_nop 3",
              "s_and_b64 vcc, vcc, s[18:19]", "s_cmp_eq_u64 vcc, exec"]

    def poll_setup():
        a(f"""
        s_lshl_b32 s7, s2, 1
        s_add_u32 s7, s7, s6
        v_lshlrev_b32 v{VL}, 4, v0
        v_mov_b32 v{t0}, 0
        v_lshrrev_b32 v{t1}, 1, v0
        v_lshlrev_b32 v{t1}, 7, v{t1}
        v_and_b32 v{t2}, 1, v0
        v_lshl_add_u32 v{t1}, v{t2}, 3, v{t1}
        s_mov_b32 s16, {FU_OFF}
        s_mov_b32 s77, 0x100000
        """)

    STG = 24
    assert STG + 16 * n1() <= 256

    def wd_setup():
        a(f"""
        v_lshrrev_b32 v20, 3, v0
        v_and_b32 v21, 7, v0
        v_lshrrev_b32 v22, 1, v20
        v_and_b32 v22, 1, v22
        v_lshlrev_b32 v22, 2, v22
        v_xor_b32 v21, v21, v22
        v_lshlrev_b32 v18, 10, v20
        v_lshl_add_u32 v18, v21, 4, v18
        v_add_u32 v19, 8192, v18
        s_and_b32 s17, s{S_IDX}, 7
        s_lshl_b32 s17, s17, 7
        s_mul_i32 s3, s6, {3*28*16384}
        s_add_u32 s3, s3, s17
        s_sub_u32 s48, 2, s6
        s_lshl_b32 s49, s48, 15
        v_add_u32 v1, s49, v{VL}
        s_mul_i32 s48, s48, {28*16384}
        s_add_u32 s48, s48, s17
        s_mul_i32 s17, s6, {3*RING2}
        v_add_u32 v7, s17, v{VL}
        """)
        a(rot_scalar(76, 17))
        a("s_mov_b32 s49, s76")

    wpos = [0, 0]
    wwp = [0, 0]

    def wd_ld(g, n):
        sb, ss = ((3, 76), (48, 49))[g]
        for _ in range(n):
            i = wpos[g]
            if i >= n1():
                break
            wpos[g] += 1
            R = STG + 8 * (g * n1() + i)
            a(f"""
            s_lshl_b32 s22, s{ss}, 14
            s_add_u32 s22, s22, s{sb}
            buffer_load_dwordx4 {v(R,4)}, v18, {sr(SRD_WD)}, s22 offen
            s_add_u32 s{ss}, s{ss}, 1
            s_cmp_ge_u32 s{ss}, 28
            s_cselect_b32 s{ss}, 0, s{ss}
            buffer_load_dwordx4 {v(R+4,4)}, v19, {sr(SRD_WD)}, s22 offen
            """)
            a.tag(f"wd{g}_{i}")

    def wd_wr(g, n):
        for i in range(wwp[g], min(n1(), wwp[g] + n)):
            wwp[g] = i + 1
            R = STG + 8 * (g * n1() + i)
            a.wait(f"wd{g}_{i}")
            for k in range(2):
                a(f"ds_write_b128 v{(7, 1)[g]}, {v(R+4*k,4)} offset:{i*2048 + k*1024}")

    def u_load():
        a(f"""
        s_mul_i32 s18, s6, {USZ}
        s_add_u32 s18, s18, {U_BASE}
        s_lshl_b32 s17, s7, 12
        s_add_u32 s17, s17, {UT_OFF}
        v_mov_b32 v20, 0
        v_mov_b32 v21, 0
        v_mov_b32 v22, 0
        v_mov_b32 v23, 0
        v_and_b32 v{t2}, 7, v0
        v_lshrrev_b32 v6, 3, v0
        v_and_b32 v6, 3, v6
        v_min_u32 v{t2}, 6, v{t2}
        v_mul_u32_u24 v6, {UPITCH}, v6
        v_lshl_add_u32 v{t2}, v{t2}, 4, v6
        v_add_u32 v{t2}, s18, v{t2}
        ds_write_b128 v{t2}, v[20:23]
        """)
        for r in range(4):
            a(f"""
            s_add_u32 m0, s18, {r*UPITCH + 112}
            s_nop 0
            buffer_load_dwordx4 v{VL}, {sr(SRD_WS)}, s17 offen sc1 lds
            s_add_u32 s17, s17, 1024
            """)

    GLR = 8

    def gl_load():
        a(f"""
        s_lshl_b32 s17, s{S_XCD}, 2
        s_lshr_b32 s22, s{S_IDX}, 3
        s_add_u32 s17, s17, s22
        s_lshl_b32 s17, s17, 6
        s_add_u32 s17, s17, {GL_OFF}
        v_and_b32 v{t0}, 3, v0
        v_lshrrev_b32 v{t1}, 2, v0
        v_lshlrev_b32 v{t1}, 2, v{t1}
        v_lshl_add_u32 v{t1}, v{t0}, 11, v{t1}
        """)
        for g in range(8):
            a(f"buffer_load_dword v{GLR+g}, v{t1}, {sr(SRD_WS)}, s17 offen sc1")
            if g < 7:
                a("s_add_u32 s17, s17, 8192")
        a.tag("gl")

    def gl_finish():
        E = GLR
        a.wait("gl")
        a(f"""
        v_add_f32 v{E}, v{E}, v{E+1}
        v_add_f32 v{E+2}, v{E+2}, v{E+3}
        v_add_f32 v{E+4}, v{E+4}, v{E+5}
        v_add_f32 v{E+6}, v{E+6}, v{E+7}
        v_add_f32 v{E}, v{E}, v{E+2}
        v_add_f32 v{E+4}, v{E+4}, v{E+6}
        v_add_f32 v{E}, v{E}, v{E+4}
        v_cvt_pk_bf16_f32 v{E}, v{E}, v{E}
        v_lshlrev_b32 v{E}, 16, v{E}
        v_mul_f32 v{E}, {f32(-LOG2E)}, v{E}
        v_exp_f32 v{E}, v{E}
        v_lshlrev_b32 v{t0}, 2, v0
        v_add_f32 v{E}, 1.0, v{E}
        v_rcp_f32 v{E}, v{E}
        v_add_u32 v{t0}, {G_LDS}, v{t0}
        v_cvt_pk_bf16_f32 v{E}, v{E}, v{E}
        v_lshlrev_b32 v{E}, 16, v{E}
        ds_write_b32 v{t0}, v{E}
        """)

    if gemm_wg:
        a(f"""
        v_lshrrev_b32 v{t0}, 4, v0
        v_and_b32 v{t1}, 15, v0
        v_lshlrev_b32 v{t2}, 2, v{t0}
        v_xor_b32 v{t1}, v{t1}, v{t2}
        v_mul_u32_u24 v{t0}, 3584, v{t0}
        v_lshl_add_u32 v{WV}, v{t1}, 4, v{t0}
        """)
        for i in range(1, 4):
            a(f"v_add_u32 v{WV+i}, {(4*3584-1024)*i}, v{WV}")
        a(f"""
        s_mov_b32 s{SW+2}, {512*1792*2}
        s_mov_b32 s{SW+3}, 0x00020000
        s_and_b32 s22, s68, 3
        s_mov_b32 s19, s69
        s_lshl_b32 s23, s{S_CB}, 8
        s_lshl_b32 s16, s6, 14
        s_add_u32 s16, s16, 16384
        """)
        for j in range(4):
            a(f"""
            s_add_u32 s17, s22, {j}
            s_and_b32 s17, s17, 3
            s_mul_i32 s{68+j}, s17, {16*3584}
            s_add_u32 s{68+j}, s{68+j}, s23
            s_lshl_b32 s{72+j}, s17, 12
            s_add_u32 s{72+j}, s{72+j}, s16
            """)
        a(f"""
        v_lshrrev_b32 v{t0}, 3, v0
        v_and_b32 v{t1}, 7, v0
        v_lshrrev_b32 v{t2}, 1, v{t0}
        v_xor_b32 v{t1}, v{t1}, v{t2}
        v_lshlrev_b32 v{t0}, 10, v{t0}
        """)
        for i in range(4):
            a(f"""
            v_xor_b32 v{t2}, {4*(i&1)}, v{t1}
            v_lshl_add_u32 v{XV+i}, v{t2}, 4, v{t0}
            v_add_u32 v{XV+i}, {7168*i}, v{XV+i}
            """)
        a(f"""
        s_mov_b32 s22, s19
        s_and_b32 s17, s22, 1
        s_lshl_b32 s17, s17, 1
        s_add_u32 s17, s17, s6
        s_lshl_b32 s16, s{S_RB}, 17
        s_lshl_b32 s8, s17, 15
        s_add_u32 s8, s8, s16
        s_lshl_b32 s10, s17, 12
        s_xor_b32 s17, s17, 2
        s_lshl_b32 s9, s17, 15
        s_add_u32 s9, s9, s16
        s_lshl_b32 s11, s17, 12
        s_lshl_b32 s22, s22, 1
        s_add_u32 s22, s22, s6
        s_and_b32 s22, s22, 7
        s_lshl_b32 s23, s22, 14
        s_add_u32 s23, s23, s16
        """)
        tail = {3: "S5 R5", 4: "S6 R6", 5: "S7 R7"}
        scheds = [
            {-1: "S0 S1 S2 R0 P3 P4", 0: "R1 P5 P6", 1: "R2 P7 S3", 2: "R3 S4 R4"},
            {-1: "S0 S1 S2 R0 R1", 0: "P3 P4 R2", 1: "P5 P6 P7 S3 R3", 2: "S4 R4"},
            {-1: "S0 R0 S1 R1", 0: "S2 R2", 1: "S3 R3", 2: "S4 R4"},
            {-1: "S0 R0 S1", 0: "R1 S2", 1: "R2 S3", 2: "R3 S4 R4"},
            {-1: "S0 R0 S1 S2 P3", 0: "R1 P4 P5", 1: "R2 P6 P7 S3", 2: "R3 S4 R4"},
            {-1: "S0 R0 S1 S2", 0: "R1 R2", 1: "S3 R3", 2: "S4 R4"},
            {-1: "S0 R0 S1 S2", 0: "R1 R2", 1: "S3 R3 P5", 2: "S4 R4 P6 P7"},
            {-1: "S0 R0 S1 S2", 0: "R1 R2 P3", 1: "S3 R3 P4 P5", 2: "S4 R4 P6 P7"},
        ]
        sched = dict(scheds[OPT.get("lsched", 5)])
        sched.update(tail)

        def issue(k):
            for tok in sched.get(k, "").split():
                st = int(tok[1:])
                if tok[0] == "S":
                    a.ext(kofs(st) + grp(st, 0) + grp(st, 1))
                elif tok[0] == "R":
                    a.ext(kofs(st))
                    for g in (2, 5, 3, 4):
                        a.ext(grp(st, g))
                    a.tag(f"st{st}")
                elif tok[0] == "P":
                    assert not ROT
                    a.ext(pref(st))
        a(f"""
        s_mov_b32 s{SRD_X+2}, {2048*512*2}
        s_mov_b32 s{SRD_X+3}, 0x00020000
        s_cmp_eq_u32 s6, 0
        s_waitcnt lgkmcnt(0)
        s_cselect_b32 s{SW}, s{S_WG}, s{S_WU}
        s_cselect_b32 s{SW+1}, s{S_WG+1}, s{S_WU+1}
        s_and_b32 s{SW+1}, s{SW+1}, 0xffff
        s_mov_b32 s{SRD_X}, s{S_U}
        s_and_b32 s{SRD_X+1}, s{S_U+1}, 0xffff
        """)
        issue(-1)
        a.ext(stamp(1))
        srd(a, SRD_WS, S_WS, WS_BYTES)
        srd(a, SRD_WD, S_WD, 1792 * 512 * 2)
        poll_setup()
        for sidx in range(9):
            if sidx < 8:
                a.wait(f"st{sidx}")
            a.ext(bstamp(2, 1 + sidx))
            a("s_barrier")
            if sidx in (0, 3):
                a.ext(stamp(2 + (0, 3).index(sidx)))
            issue(sidx)
            if sidx == 4:
                wd_setup()
            if sidx == 5:
                wd_ld(0, OPT.get("w5", 0))
            if sidx == 6:
                a(f"s_setprio {OPT.get('lprio', 1)}")
                wd_ld(0, OPT.get("w6", 10))
            if sidx == 7:
                wd_ld(0, 28)
                a.ext(fu_ld)
                a.tag("fu")
                for _ in range(OPT.get("w7", 8) // 2):
                    wd_ld(1, 2)
                    wd_wr(0, OPT.get("e7", 0))
            if sidx == 8:
                a.ext(stamp(4))
                a(f"v_mov_b32 v6, {N_LDS}\nds_read_b32 v6, v6")
                wd_ld(1, 28)
                a.wait("fu")
                a(f"s_waitcnt lgkmcnt(0)\nv_readfirstlane_b32 s{S_NONCE}, v6\ns_nop 3")
                a(f"s_branch PU{sfx}_CHK")
                a.ext(spin(f"PU{sfx}", fu_ld, fu_chk, 16))
                u_load()
                gl_load()
                wd_wr(0, 28)
                wd_wr(1, 28)
                gl_finish()
        a("s_waitcnt vmcnt(0) lgkmcnt(0)")
        a.ext(stamp(5))
        a("s_barrier")
    else:
        a("s_waitcnt lgkmcnt(0)")
        srd(a, SRD_WS, S_WS, WS_BYTES)
        srd(a, SRD_WD, S_WD, 1792 * 512 * 2)
        poll_setup()
        wd_setup()
        a("s_barrier")
        a(f"v_mov_b32 v6, {N_LDS}\nds_read_b32 v6, v6")
        a(f"s_waitcnt lgkmcnt(0)\nv_readfirstlane_b32 s{S_NONCE}, v6\ns_nop 3")
        a.ext(spin(f"PU{sfx}", fu_ld, fu_chk, 32))
        u_load()
        wd_ld(0, 28)
        wd_ld(1, 28)
        wd_wr(0, 6)
        gl_load()
        wd_wr(0, 28)
        wd_wr(1, 28)
        gl_finish()
        a("s_waitcnt vmcnt(0) lgkmcnt(0)")
        a.ext(stamp(5))
        a("s_barrier")
    a("s_branch L_CONVA")
    return resolve_vm(a.L)


def conv(a0, partB):
    a = Asm()
    KA, UA, YA = 2, 3, 5
    qs, outq = ([5, 6, 7], [6, 7]) if partB else ([0, 1, 2, 3, 4, 5], [0, 1, 2, 3, 4, 5])
    a.ext(stamp(6))
    a(f"""
    s_setprio {OPT.get("cprio", 3)}
    s_lshl_b32 s8, s6, 13
    s_add_u32 s8, s8, {KG_BASE + KARR + 32}
    s_mul_i32 s9, s6, {USZ}
    s_add_u32 s9, s9, {U_BASE + 16}
    v_lshrrev_b32 v6, 2, v0
    v_and_b32 v10, 7, v6
    v_and_b32 v6, 3, v6
    v_and_b32 v7, 3, v0
    v_lshrrev_b32 v8, 4, v0
    v_and_b32 v8, 1, v8
    v_lshrrev_b32 v9, 5, v0
    v_mul_u32_u24 v{UA}, {UPITCH}, v7
    v_sub_u32 v10, v10, v9
    v_lshl_add_u32 v{UA}, v10, 4, v{UA}
    v_add_u32 v{UA}, s9, v{UA}
    v_lshlrev_b32 v{KA}, 5, v8
    v_lshl_add_u32 v{KA}, v7, 3, v{KA}
    v_lshl_add_u32 v{KA}, v9, 6, v{KA}
    v_lshlrev_b32 v10, 3, v6
    v_sub_u32 v{KA}, v{KA}, v10
    v_add_u32 v{KA}, s8, v{KA}
    """)
    qmax = max(qs)
    nst = 4 * qmax + 4
    NU = 4
    UBUF = 8
    KT = 24
    ACC = KT + 4 * nst
    TMP = ACC + 16 * len(qs)
    assert TMP + 3 * len(qs) + 1 <= 256

    def acc(q):
        return ACC + 16 * qs.index(q)

    need = {}
    for i in range(nst):
        for q in qs:
            s_ = 4 * q + 3 - i
            if s_ >= 0 and s_ not in need:
                need[s_] = i

    def rd(i):
        L = [f"ds_read_b128 {v(UBUF+4*(i%NU),4)}, v{UA} offset:{32*i}"]
        for s_ in sorted(s for s in need if need[s] == i):
            L += [f"ds_read_b64_tr_b16 {v(KT+4*s_,2)}, v{KA} offset:{128*s_+32}",
                  f"ds_read_b64_tr_b16 {v(KT+4*s_+2,2)}, v{KA} offset:{128*s_}"]
        L.append(("LTAG", f"R{i}"))
        return L

    PF = NU - 1
    a.ext(rd(0))
    a.ext(rd(1))
    a(f"""
    v_and_b32 v4, 7, v0
    v_lshrrev_b32 v{YA}, 3, v0
    v_lshlrev_b32 v{YA}, 4, v{YA}
    v_lshl_add_u32 v{YA}, v4, 7, v{YA}
    v_mov_b32 v6, 0
    v_mov_b32 v7, s{S_NONCE}
    s_mov_b32 s12, 0
    s_mov_b32 s13, 0x80000000
    s_mov_b32 s14, 0
    s_mov_b32 s15, 0xc0000000
    s_mov_b32 s16, 0
    s_mov_b32 s17, 0xe0000000
    s_lshl_b32 s7, s2, 1
    s_add_u32 s7, s7, s6
    s_lshl_b32 s18, s7, 12
    s_add_u32 s18, s18, {Y_OFF}
    s_lshl_b32 s19, s2, 4
    s_add_u32 s19, s19, s6
    s_lshl_b32 s19, s19, 3
    s_add_u32 s19, s19, {FY_OFF + (4 if partB else 0)}
    """)

    def Y(q, g, rho):
        return acc(q) + 4 * g + rho

    dpp = "wave_ror:1 row_mask:0xf bank_mask:0xf"
    ctl = "row_mask:0xf bank_mask:0xf"

    def post(q):
        L = []
        Z = {}
        for g in (3, 2, 1, 0):
            for rho in (1, 2, 3):
                Z[g, rho] = TMP + 3 * qs.index(q) + rho - 1 if g == 3 else Y(q, g, rho)
                if g > 0:
                    prev = f"v{Y(q,g-1,rho)}"
                elif q > 0:
                    prev = f"v{Y(q-1,3,rho)}"
                else:
                    prev = "v6"
                L.append(f"v_cndmask_b32 v{Z[g,rho]}, v{Y(q,g,rho)}, {prev}, s[{10+2*rho}:{11+2*rho}]")
        for g in (3, 2, 1, 0):
            L.append(f"v_add_f32_dpp v{Z[g,2]}, v{Z[g,3]}, v{Z[g,2]} {dpp}")
        for g in (3, 2, 1, 0):
            L.append(f"v_add_f32_dpp v{Z[g,1]}, v{Z[g,2]}, v{Z[g,1]} {dpp}")
        for g in (3, 2, 1, 0):
            L.append(f"v_add_f32_dpp v{Y(q,g,0)}, v{Z[g,1]}, v{Y(q,g,0)} {dpp}")
        return L

    def stage(S_, D_, bit, stride):
        m = {0: 0xaaaaaaaa, 1: 0xcccccccc, 2: 0xf0f0f0f0}[bit]
        up = {0: "quad_perm:[1,0,3,2]", 1: "quad_perm:[2,3,0,1]", 2: "row_ror:12"}[bit]
        dn = {0: "quad_perm:[1,0,3,2]", 1: "quad_perm:[2,3,0,1]", 2: "row_ror:4"}[bit]
        L = [f"s_mov_b32 vcc_lo, {m:#x}", f"s_mov_b32 vcc_hi, {m:#x}"]
        idx = [i for i in range(len(S_)) if not (i // stride) & 1]
        L += [f"v_cndmask_b32_dpp v{D_[i+stride]}, v{S_[i]}, v{S_[i+stride]}, vcc {up} {ctl}" for i in idx]
        L += ["s_not_b64 vcc, vcc"]
        L += [f"v_cndmask_b32_dpp v{D_[i]}, v{S_[i+stride]}, v{S_[i]}, vcc {dn} {ctl}" for i in idx]
        return L

    def xpose(q):
        S0 = [Y(q - 1 + (g >> 2), g & 3, 0) for g in range(8)]
        free = [Y(qq, g, r) for qq in (q - 1, q) for g in range(3) for r in (1, 2, 3)]
        D0 = free[:8]
        S1 = free[8:12]
        D1 = free[12:16]
        D2 = [acc(q - 1) + i for i in range(4)]
        L = stage(S0, D0, 0, 1)
        L += [f"v_cvt_pk_bf16_f32 v{S1[g]}, v{D0[2*g]}, v{D0[2*g+1]}" for g in range(4)]
        L += stage(S1, D1, 1, 1)
        L += stage(D1, D2, 2, 2)
        L.append(f"buffer_store_dwordx4 {v(D2[0],4)}, v{YA}, {sr(SRD_WS)}, s18 offen offset:{(q-1)*512} sc1")
        return L

    pend = []
    FILL = OPT.get("cfill", 4)
    since = {}
    issued = 2
    for i in range(nst):
        a.L.append(("LWAIT", f"R{i}"))
        rl = []
        while issued < nst and issued <= i + (2 if i < 2 else PF):
            rl += rd(issued)
            issued += 1
        act = [q for q in qs if 4 * q + 3 - i >= 0]
        per = -(-len(rl) // len(act))
        for q in act:
            s_ = 4 * q + 3 - i
            c = "0" if i == 0 else v(acc(q), 16)
            a(f"v_mfma_f32_32x32x16_bf16 {v(acc(q),16)}, {v(UBUF+4*(i%NU),4)}, {v(KT+4*s_,4)}, {c}")
            a.ext(rl[:per])
            rl = rl[per:]
            if s_ == 0:
                since[q] = len(a.L)
            for qq in list(since):
                if len([x for x in a.L[since[qq]:] if isinstance(x, str)]) >= 14:
                    del since[qq]
                    if qq in outq:
                        pend += post(qq)
                        if (qq - outq[0]) & 1:
                            pend += xpose(qq)
            a.ext(pend[:FILL])
            pend = pend[FILL:]
    a.ext(stamp(7))
    a.ext(pend)
    a("s_nop 7\ns_nop 3")
    for qq in sorted(since):
        if qq in outq:
            a.ext(post(qq))
            if (qq - outq[0]) & 1:
                a.ext(xpose(qq))
    a.ext(stamp(8))
    a(f"""
    s_waitcnt vmcnt(0)
    s_mov_b64 exec, 1
    buffer_store_dword v7, v6, {sr(SRD_WS)}, s19 offen sc1
    """)
    a.ext(stamp_end())
    a0.ext(resolve_lds(a.L))


HEADER = open("cdna_kernels/" + NAME + ".s.ref").read().split("; Override launch")[0]


def main(path):
    a = Asm()
    prologue(a)
    gemm1(a)
    a("L_SPARE:")
    spare(a)
    a("L_GEMM2:")
    gemm2(a)
    a("L_LWAVE:")
    a(f"s_cmp_ge_u32 s{S_IDX}, 28\ns_cbranch_scc1 L_LWAVE_S")
    a.ext(lwave(True))
    a("L_LWAVE_S:")
    a.ext(lwave(False))
    a("L_KWAVE:")
    a("s_load_dwordx2 s[6:7], s[0:1], 8\ns_load_dwordx4 s[8:11], s[0:1], 16\ns_load_dwordx8 s[12:19], s[0:1], 32")
    a("s_waitcnt lgkmcnt(0)")
    srd(a, SRD_WS, S_WS, WS_BYTES)
    a(f"s_cmp_ge_u32 s{S_IDX}, 28\ns_cbranch_scc1 L_KWAVE_S")
    a.ext(kwave(True))
    a("L_KWAVE_S:")
    a.ext(kwave(False))
    a("L_CONVA:")
    conv(a, False)
    a("L_CONVB:")
    conv(a, True)
    a("L_END:\ns_endpgm")
    body = "\n".join(("" if ln.endswith(":") or ln.startswith(".") else "    ") + ln for ln in a.L)
    kn = NAME + "_kernel"
    txt = HEADER
    if OPT.get("list"):
        txt += f"; @launch kernel={kn} grid=(256,1,1) block=(512,1,1) lds=163840\n"
    else:
        txt += "; @launch grid=(256,1,1) block=(512,1,1) lds=163840\n"
    txt += '.amdgcn_target "amdgcn-amd-amdhsa--gfx950"\n.text\n'
    txt += f".globl {kn}\n.p2align 8\n.type {kn},@function\n{kn}:\n"
    txt += body + "\n"
    txt += f"""
.section .rodata,"a"
.p2align 6
.amdhsa_kernel {kn}
  .amdhsa_next_free_vgpr 256
  .amdhsa_next_free_sgpr 102
  .amdhsa_accum_offset 256
  .amdhsa_group_segment_fixed_size 0
  .amdhsa_kernarg_size 136
  .amdhsa_user_sgpr_count 2
  .amdhsa_user_sgpr_kernarg_segment_ptr 1
  .amdhsa_system_sgpr_workgroup_id_x 1
.end_amdhsa_kernel
"""
    open(path, "w").write(txt)


if __name__ == "__main__":
    for o in list(sys.argv):
        if o.startswith("--opt="):
            k, _, val = o[6:].partition(":")
            OPT[k] = int(val) if val else 1
            sys.argv.remove(o)
    if "--stamps" in sys.argv:
        STAMPS = True
        sys.argv.remove("--stamps")
    main(sys.argv[1] if len(sys.argv) > 1 else "cdna_kernels/" + NAME + ".s")
```

```python
import sys, struct

NAME = "gated_mix__ssm_conv_s4__swiglu_ffn__prompt"

H_OFF = 0x000000
UT_OFF = 0x800000
KX_OFF = 0xA00000
Y_OFF = 0xC00000
GL_OFF = 0xE00000
FH_OFF = 0xE40000
FY_OFF = 0xE60000
FU_OFF = 0xE68000
FD_OFF = 0xE80000
ST_OFF = 0xE20000
WS_BYTES = 0x1000000

STAMPS = False
HDL = []
OPT = {}
ST_BASE = 78
NST = 12


def f32(x):
    return "0x%08x" % struct.unpack("<I", struct.pack("<f", x))[0]


LOG2E = 1.4426950408889634
LOG2E_HI = struct.unpack("<f", struct.pack("<f", LOG2E))[0]
LOG2E_LO = LOG2E - LOG2E_HI
LN2 = 0.6931471805599453
INV2PI = 0.15915494309189535


class Asm:
    def __init__(self):
        self.L = []

    def __call__(self, s):
        for line in s.strip().split("\n"):
            line = line.strip()
            if line:
                self.L.append(line)

    def ext(self, lines):
        self.L.extend(lines)

    def tag(self, n):
        self.L.append(("VMTAG", n))

    def wait(self, n):
        self.L.append(("VMWAIT", n))


def v(b, n=1):
    return f"v{b}" if n == 1 else f"v[{b}:{b+n-1}]"


def sr(b):
    return f"s[{b}:{b+3}]"


class RA:
    def __init__(self, start, end):
        self.p = start
        self.end = end

    def __call__(self, n=1, align=1):
        self.p = (self.p + align - 1) // align * align
        r = self.p
        self.p += n
        assert self.p <= self.end, "out of registers"
        return r


def stamp(k, force=False):
    if not STAMPS:
        return []
    assert k < NST
    if OPT.get("dbgbar") and 1 <= k <= 9 and not force:
        return []
    op = "s_memtime" if OPT.get("cyc") else "s_memrealtime"
    return [f"{op} s[{ST_BASE+2*k}:{ST_BASE+2*k+1}]"]


def bstamp(mode, k):
    return stamp(k, True) if OPT.get("dbgbar") == mode else []


def stamp_end():
    if not STAMPS:
        return ["s_endpgm"]
    L = stamp(10) + ["s_waitcnt vmcnt(0)"] + stamp(11)
    L += ["s_waitcnt lgkmcnt(0)", "s_mov_b64 exec, 1", "s_lshl_b32 s74, s2, 3", f"s_add_u32 s74, s74, s{S_WIDX}",
          "s_lshl_b32 s74, s74, 6", f"s_add_u32 s74, s74, {ST_OFF}", "v_mov_b32 v1, 0"]
    for k in range(NST):
        L.append(f"v_mov_b32 v{4+k}, s{ST_BASE+2*k}")
    for k in range(0, NST, 4):
        L.append(f"buffer_store_dwordx4 v[{4+k}:{7+k}], v1, {sr(SRD_WS)}, s74 offen offset:{4*k}")
    if OPT.get("hdbg"):
        lab = f"HD{len(HDL)}"
        HDL.append(lab)
        L += [f"v_not_b32 v20, v4", f"global_atomic_umax v1, v20, s[{S_DBG}:{S_DBG+1}] offset:56",
              f"global_atomic_umax v1, v15, s[{S_DBG}:{S_DBG+1}] offset:60",
              f"s_cmp_lg_u32 s2, {OPT['hdbg']}", f"s_cbranch_scc1 {lab}", f"s_cmp_lg_u32 s{S_WIDX}, 0", f"s_cbranch_scc1 {lab}"]
        words = [1, 2, 3, 4, 5, 6, 7, 9, 10, 11, 12]
        for k in range(1, NST):
            L += [f"v_sub_u32 v20, v{4+k}, v4", f"global_store_dword v1, v20, s[{S_DBG}:{S_DBG+1}] offset:{4*words[k-1]}", "s_nop 1"]
        L += [f"global_store_dword v1, v4, s[{S_DBG}:{S_DBG+1}] offset:52"]
        L.append(f"{lab}:")
    L.append("s_endpgm")
    return L


def is_vmem(line):
    return line.startswith("buffer_") or line.startswith("global_")


def resolve_vm(lines):
    out = []
    count = 0
    tags = {}
    done = -1
    for ln in lines:
        if isinstance(ln, tuple):
            if ln[0] == "VMTAG":
                tags[ln[1]] = count
            elif ln[0] == "VMWAIT":
                if tags[ln[1]] <= done:
                    continue
                n = count - tags[ln[1]]
                assert 0 <= n <= 63, n
                out.append(f"s_waitcnt vmcnt({n})")
                done = tags[ln[1]]
            elif ln[0] == "VMRESET":
                done = count
            elif ln[0] == "NOCOUNT":
                out.append(ln[1])
            else:
                raise ValueError(ln)
        else:
            if is_vmem(ln):
                count += 1
            out.append(ln)
    return out


def resolve_lds(lines):
    out = []
    count = 0
    tags = {}
    for ln in lines:
        if isinstance(ln, tuple):
            if ln[0] == "LTAG":
                tags[ln[1]] = count
            elif ln[0] == "LWAIT":
                out.append(f"s_waitcnt lgkmcnt({min(15, count - tags[ln[1]])})")
            else:
                raise ValueError(ln)
        else:
            if ln.startswith("ds_"):
                count += 1
            out.append(ln)
    return out


SLOT = 49152
KG_BASE = 147456
KARR = 3584
U_BASE = 131072
UPITCH = 1344
USZ = 4 * UPITCH
YB_BASE = U_BASE + 2 * USZ
RING2 = 32768

S_U, S_ARE, S_AIM, S_BRE, S_BIM, S_CRE, S_CIM, S_LDT = 4, 6, 8, 10, 12, 14, 16, 18
S_DS = 20
S_WG, S_WU, S_WD, S_GW = 24, 26, 28, 30
S_OUT, S_DBG, S_WS = 32, 34, 36
S_WIDX, S_XCD, S_IDX, S_RB, S_CB, S_PHI = 38, 39, 40, 41, 42, 43
SRD_X, SRD_WG, SRD_WU, SRD_WS, SRD_WD, SRD_OUT = 44, 48, 52, 56, 60, 64


def srd(a, d, base, nbytes):
    a(f"""
    s_mov_b32 s{d}, s{base}
    s_and_b32 s{d+1}, s{base+1}, 0xffff
    s_mov_b32 s{d+2}, {nbytes}
    s_mov_b32 s{d+3}, 0x00020000
    """)


def mapping(a):
    a(f"""
    s_and_b32 s{S_XCD}, s2, 7
    s_lshr_b32 s{S_IDX}, s2, 3
    """)
    if OPT.get("map", 1) == 0:
        a(f"""
        s_and_b32 s68, s{S_IDX}, 3
        s_lshr_b32 s69, s{S_IDX}, 2
        s_lshr_b32 s{S_RB}, s{S_XCD}, 1
        s_lshl_b32 s{S_RB}, s{S_RB}, 2
        s_add_u32 s{S_RB}, s{S_RB}, s68
        s_and_b32 s{S_CB}, s{S_XCD}, 1
        s_mul_i32 s{S_CB}, s{S_CB}, 7
        s_add_u32 s{S_CB}, s{S_CB}, s69
        s_lshl_b32 s{S_PHI}, s68, 1
        s_add_u32 s{S_PHI}, s{S_PHI}, s69
        s_and_b32 s{S_PHI}, s{S_PHI}, 7
        """)
    else:
        a(f"""
        s_and_b32 s70, s{S_XCD}, 1
        s_lshl_b32 s70, s70, 2
        s_and_b32 s68, s{S_IDX}, 7
        s_lshr_b32 s69, s{S_IDX}, 3
        s_add_u32 s71, s69, s70
        s_add_u32 s72, s68, s70
        s_cmp_ge_u32 s{S_IDX}, 24
        s_cselect_b32 s71, 3, s71
        s_cselect_b32 s68, s72, s68
        s_lshr_b32 s{S_CB}, s{S_XCD}, 1
        s_and_b32 s{S_CB}, s{S_CB}, 1
        s_mul_i32 s{S_CB}, s{S_CB}, 7
        s_add_u32 s{S_CB}, s{S_CB}, s71
        s_lshr_b32 s{S_RB}, s{S_XCD}, 2
        s_lshl_b32 s{S_RB}, s{S_RB}, 3
        s_add_u32 s{S_RB}, s{S_RB}, s68
        s_lshl_b32 s{S_PHI}, s69, 1
        s_add_u32 s{S_PHI}, s{S_PHI}, s68
        s_and_b32 s{S_PHI}, s{S_PHI}, 7
        """)


def prologue(a):
    a("""
    s_cmp_ge_u32 s2, 256
    s_cbranch_scc1 L_END
    """)
    if STAMPS:
        a.ext([f"s_mov_b32 s{ST_BASE+2*k}, 0" for k in range(NST)])
    a.ext(stamp(0))
    a(f"""
    s_load_dwordx2 s[4:5], s[0:1], 0
    s_load_dwordx8 s[24:31], s[0:1], 80
    s_load_dwordx2 s[36:37], s[0:1], 128
    s_load_dwordx4 s[32:35], s[0:1], 112
    s_load_dwordx2 s[20:21], s[0:1], 64
    v_lshrrev_b32 v1, 6, v0
    v_and_b32 v0, 63, v0
    s_nop 0
    v_readfirstlane_b32 s{S_WIDX}, v1
    """)
    mapping(a)
    a(f"""
    s_cmp_ge_u32 s{S_WIDX}, 6
    s_cbranch_scc1 L_KWAVE
    s_cmp_ge_u32 s{S_WIDX}, 4
    s_cbranch_scc1 L_LWAVE
    s_waitcnt lgkmcnt(0)
    """)
    srd(a, SRD_X, S_U, 2048 * 512 * 2)
    srd(a, SRD_WS, S_WS, WS_BYTES)
    srd(a, SRD_WD, S_WD, 1792 * 512 * 2)
    srd(a, SRD_OUT, S_OUT, 2048 * 512 * 2)
    cp = OPT.get("cpf", 0)
    if cp:
        a(f"""
        s_getpc_b64 s[70:71]
        L_PC:
        s_sub_u32 s70, s70, L_PC-{NAME}_kernel
        s_subb_u32 s71, s71, 0
        """)
        if cp == 1:
            a(f"""
            s_lshl_b32 s72, s{S_IDX}, 2
            s_add_u32 s72, s72, s{S_WIDX}
            s_lshl_b32 s72, s72, 9
            v_and_b32 v2, 7, v0
            v_lshlrev_b32 v2, 6, v2
            v_add_u32 v2, s72, v2
            v_min_u32 v2, L_END-{NAME}_kernel, v2
            global_load_dword v64, v2, s[70:71]
            """)
        else:
            a(f"""
            s_lshl_b32 s72, s{S_WIDX}, 14
            v_lshlrev_b32 v2, 7, v0
            v_add_u32 v2, s72, v2
            v_add_u32 v3, 8192, v2
            v_min_u32 v2, L_END-{NAME}_kernel, v2
            v_min_u32 v3, L_END-{NAME}_kernel, v3
            global_load_dword v64, v2, s[70:71]
            global_load_dword v65, v3, s[70:71]
            """)
        a("s_waitcnt vmcnt(0)")
    a(f"""
    s_cmp_ge_u32 s{S_IDX}, 28
    s_cbranch_scc1 L_SPARE
    """)


VL16 = 1
XD = 8
(VD0, VD1, DA0, DA1, VEP, VPH, VFL, VG, VY, VYW, VYT, VW1, VW2, VW3, VR1, VR23) = range(112, 128)
YT_BASE = YB_BASE
G_LDS = YB_BASE
N_LDS = YB_BASE + 256
def n1():
    return OPT.get("n1", 14)


def rot_scalar(dst, tmp):
    return f"""
    s_and_b32 s{dst}, s{S_IDX}, 1
    s_lshl_b32 s{dst}, s{dst}, 1
    s_lshr_b32 s{tmp}, s{S_IDX}, 3
    s_add_u32 s{dst}, s{dst}, s{tmp}
    s_and_b32 s{dst}, s{dst}, 3
    s_mul_i32 s{dst}, s{dst}, 7
    """


def gemm2_setup(a):
    a(f"""
    s_lshl_b32 s6, s{S_XCD}, 2
    s_lshr_b32 s13, s{S_IDX}, 3
    s_add_u32 s6, s6, s13
    s_and_b32 s7, s{S_IDX}, 7
    s_lshl_b32 s17, s6, 6
    s_lshr_b32 s23, s{S_WIDX}, 1
    s_lshl_b32 s13, s23, 5
    s_add_u32 s17, s17, s13
    s_lshl_b32 s18, s7, 6
    s_and_b32 s14, s{S_WIDX}, 1
    s_lshl_b32 s13, s14, 5
    s_add_u32 s18, s18, s13
    v_lshrrev_b32 v5, 5, v0
    v_and_b32 v6, 31, v0
    v_add_u32 v6, s17, v6
    v_lshlrev_b32 v7, 4, v5
    v_add_u32 v7, s18, v7
    v_lshlrev_b32 v7, 1, v7
    v_lshl_add_u32 v{VEP}, v6, 10, v7
    s_lshl_b32 s8, s{S_WIDX}, 15
    s_lshl_b32 s9, s6, 1
    s_add_u32 s9, s9, s23
    s_mul_i32 s9, s9, 112
    s_mul_i32 s13, s{S_WIDX}, 28
    s_add_u32 s9, s9, s13
    s_lshl_b32 s9, s9, 10
    s_mul_i32 s22, s23, {224*1024}
    s_sub_u32 s22, {112*1024}, s22
    s_lshl_b32 s10, s13, 14
    s_lshl_b32 s13, s7, 7
    s_add_u32 s10, s10, s13
    """)
    a(rot_scalar(12, 13))
    a(f"""
    s_add_u32 s11, s12, {n1()}
    s_cmp_ge_u32 s11, 28
    s_cselect_b32 s13, 28, 0
    s_sub_u32 s11, s11, s13
    s_lshl_b32 s15, s6, 5
    s_mul_i32 s13, s{S_WIDX}, 7
    s_add_u32 s15, s15, s13
    s_lshl_b32 s15, s15, 7
    s_add_u32 s15, s15, {FH_OFF}
    s_lshl_b32 s13, s7, 2
    s_add_u32 s13, s13, s{S_WIDX}
    s_lshl_b32 s16, s13, 10
    s_add_u32 s16, s16, {FY_OFF}
    s_lshl_b32 s19, s13, 16
    s_lshl_b32 s13, s6, 7
    s_add_u32 s19, s19, s13
    s_add_u32 s19, s19, {Y_OFF}
    v_lshlrev_b32 v{VL16}, 4, v0
    v_lshrrev_b32 v2, 3, v0
    v_and_b32 v3, 7, v0
    v_lshlrev_b32 v{VY}, 12, v2
    v_lshl_add_u32 v{VY}, v3, 4, v{VY}
    v_lshrrev_b32 v4, 1, v2
    v_and_b32 v4, 1, v4
    v_lshlrev_b32 v4, 2, v4
    v_xor_b32 v3, v3, v4
    v_lshlrev_b32 v{VD0}, 10, v2
    v_lshl_add_u32 v{VD0}, v3, 4, v{VD0}
    v_add_u32 v{VD1}, {8192-1024}, v{VD0}
    v_lshlrev_b32 v{VYW}, 7, v2
    v_lshl_add_u32 v{VYW}, v3, 4, v{VYW}
    v_add_u32 v{VYW}, s8, v{VYW}
    v_lshrrev_b32 v2, 2, v0
    v_and_b32 v2, 3, v2
    v_and_b32 v3, 3, v0
    v_lshrrev_b32 v4, 4, v0
    v_and_b32 v4, 1, v4
    v_lshl_add_u32 v6, v5, 2, v2
    v_lshlrev_b32 v6, 7, v6
    v_and_b32 v7, 1, v3
    v_lshl_add_u32 v6, v7, 5, v6
    v_lshl_add_u32 v6, v4, 4, v6
    v_lshrrev_b32 v7, 1, v3
    v_lshl_add_u32 v6, v7, 3, v6
    v_add_u32 v6, s8, v6
    v_lshrrev_b32 v7, 1, v2
    v_xor_b32 v7, s14, v7
    v_lshl_add_u32 v{DA0}, v7, 6, v6
    v_xor_b32 v7, 1, v7
    v_lshl_add_u32 v{DA1}, v7, 6, v6
    s_lshl_b32 s13, s14, 1
    v_add_u32 v6, s13, v5
    v_lshlrev_b32 v{VYT}, 15, v6
    v_lshl_add_u32 v{VYT}, v2, 7, v{VYT}
    v_lshrrev_b32 v7, 1, v2
    v_xor_b32 v7, s23, v7
    v_lshl_add_u32 v{VYT}, v7, 6, v{VYT}
    v_lshl_add_u32 v{VYT}, v4, 5, v{VYT}
    v_lshl_add_u32 v{VYT}, v3, 3, v{VYT}
    v_min_u32 v{VPH}, 6, v0
    v_lshlrev_b32 v{VPH}, 7, v{VPH}
    v_lshrrev_b32 v2, 2, v0
    v_and_b32 v2, 7, v2
    v_lshlrev_b32 v{VFL}, 7, v2
    v_lshl_add_u32 v{VFL}, v3, 2, v{VFL}
    v_and_b32 v{VG}, 31, v0
    s_lshl_b32 s13, s23, 5
    v_add_u32 v{VG}, s13, v{VG}
    v_lshlrev_b32 v{VG}, 2, v{VG}
    v_add_u32 v{VG}, {G_LDS}, v{VG}
    v_add_u32 v{VW1}, s8, v{VL16}
    s_xor_b32 s13, s{S_WIDX}, 1
    s_lshl_b32 s13, s13, 15
    v_add_u32 v{VR1}, s13, v{VL16}
    s_xor_b32 s13, s{S_WIDX}, 2
    s_lshl_b32 s13, s13, 15
    v_add_u32 v{VW2}, s13, v{VL16}
    s_xor_b32 s13, s{S_WIDX}, 3
    s_lshl_b32 s13, s13, 15
    v_add_u32 v{VW3}, s13, v{VL16}
    """)


def gemm1(a):
    XA = 16
    WA = 28
    BUFS = [64, 88, 40]
    ACC = 128

    def acc(mat, t, tt):
        return ACC + 16 * (mat * 4 + t * 2 + tt)

    def wf(b, mat, t):
        return BUFS[b] + 4 * (mat * 2 + t)

    def xf(b, tt):
        return BUFS[b] + 16 + 4 * tt

    pt = OPT.get("pt", 0)
    if pt:
        gran = {1: 21, 2: 18, 3: 16}[pt]
        a(f"""
        s_cmp_lg_u32 s{S_WIDX}, 0
        s_cbranch_scc1 L_NOTOUCH
        v_lshlrev_b32 v2, {gran}, v0
        v_mov_b32 v3, 0
        """)
        for i in range(max(1, (16 << 20) >> (gran + 6))):
            a(f"s_mov_b32 s13, {i << (gran + 6)}")
            a(f"buffer_load_dword v64, v2, {sr(SRD_WS)}, s13 offen")
        a(f"""
        buffer_load_dword v65, v2, {sr(SRD_OUT)}, 0 offen
        buffer_load_dword v66, v2, {sr(SRD_WD)}, 0 offen
        global_load_dword v67, v3, s[{S_DS}:{S_DS+1}]
        global_load_dword v68, v3, s[{S_DBG}:{S_DBG+1}] offset:128
        s_waitcnt vmcnt(0)
        L_NOTOUCH:
        """)
    gemm2_setup(a)
    a(f"""
    s_lshr_b32 s68, s{S_WIDX}, 1
    s_and_b32 s69, s{S_WIDX}, 1
    v_and_b32 v7, 31, v0
    v_lshrrev_b32 v2, 5, v0
    v_lshrrev_b32 v3, 1, v0
    v_and_b32 v3, 7, v3
    s_lshl_b32 s70, s68, 13
    v_lshlrev_b32 v4, 7, v7
    v_add_u32 v4, s70, v4
    """)
    for ks in range(4):
        a(f"""
        v_add_u32 v5, {2*ks}, v2
        v_xor_b32 v5, v5, v3
        v_lshl_add_u32 v{XA+ks}, v5, 4, v4
        """)
    a(f"""
    v_lshrrev_b32 v7, 2, v0
    v_and_b32 v7, 3, v7
    v_and_b32 v3, 3, v0
    v_lshrrev_b32 v4, 4, v0
    v_and_b32 v4, 1, v4
    v_lshl_add_u32 v5, v2, 3, v7
    v_lshlrev_b32 v5, 8, v5
    v_lshl_add_u32 v5, v4, 5, v5
    v_lshl_add_u32 v5, v3, 3, v5
    s_lshl_b32 s70, s69, 1
    """)
    for t in range(2):
        a(f"""
        s_add_u32 s71, s70, {t}
        v_xor_b32 v6, s71, v7
        v_lshl_add_u32 v{WA+t}, v6, 6, v5
        """)
    for sl in (1, 2):
        for ks in range(4):
            a(f"v_add_u32 v{XA+4*sl+ks}, {sl*SLOT}, v{XA+ks}")
        for t in range(2):
            a(f"v_add_u32 v{WA+2*sl+t}, {sl*SLOT}, v{WA+t}")
    a(f"""
    s_lshl_b32 s70, s{S_RB}, 2
    s_lshl_b32 s71, s68, 1
    s_add_u32 s70, s70, s71
    s_mul_i32 s70, s70, 112
    s_lshl_b32 s71, s{S_CB}, 3
    s_add_u32 s70, s70, s71
    s_lshl_b32 s71, s69, 2
    s_add_u32 s70, s70, s71
    s_lshl_b32 s70, s70, 10
    s_add_u32 s71, s70, {112*1024}
    s_lshl_b32 s3, s{S_RB}, 1
    s_add_u32 s3, s3, s68
    s_lshl_b32 s3, s3, 5
    s_lshl_b32 s72, s{S_CB}, 1
    s_add_u32 s3, s3, s72
    s_add_u32 s3, s3, s69
    s_lshl_b32 s3, s3, 7
    s_add_u32 s3, s3, {FH_OFF}
    s_mov_b32 s72, {f32(-LOG2E)}
    s_mov_b32 s73, {f32(-LOG2E)}
    """)

    def reads(n):
        st, ks = n >> 2, n & 3
        sl = st % 3
        b = n % 3
        r = []
        r.append(f"ds_read_b128 {v(xf(b,0),4)}, v{XA+4*sl+ks}")
        for mat in range(2):
            for t in range(2):
                for h2 in range(2):
                    off = 16384 * (1 + mat) + ks * 4096 + h2 * 1024
                    r.append(f"ds_read_b64_tr_b16 {v(wf(b,mat,t)+2*h2,2)}, v{WA+2*sl+t} offset:{off}")
                if mat == 0 and t == 0:
                    r.append(f"ds_read_b128 {v(xf(b,1),4)}, v{XA+4*sl+ks} offset:4096")
        return r

    T = 16

    def epi(p):
        t, tt = p >> 1, p & 1
        G, U = acc(0, t, tt), acc(1, t, tt)
        o = 32 + 8 * p
        L = []
        for h in range(2):
            R = range(8 * h, 8 * h + 8)
            L += [f"v_pk_mul_f32 {v(T+i,2)}, {v(G+i,2)}, s[72:73]" for i in R[::2]]
            for i in R[::2]:
                L += [f"v_exp_f32 v{T+i}, v{T+i}", f"v_exp_f32 v{T+i+1}, v{T+i+1}",
                      f"v_pk_mul_f32 {v(U+i,2)}, {v(G+i,2)}, {v(U+i,2)}"]
            L += [f"v_pk_add_f32 {v(T+i,2)}, {v(T+i,2)}, 1.0 op_sel_hi:[1,0]" for i in R[::2]]
            L += [f"v_rcp_f32 v{T+i}, v{T+i}" for i in R]
            L += [f"v_pk_mul_f32 {v(U+i,2)}, {v(U+i,2)}, {v(T+i,2)}" for i in R[::2]]
            for i in range(4):
                L.append(f"v_cvt_pk_bf16_f32 v{o+4*h+i}, v{U+8*h+2*i}, v{U+8*h+2*i+1}")
            L.append(f"buffer_store_dwordx4 {v(o+4*h,4)}, v{VL16}, {sr(SRD_WS)}, s{70+tt} offen offset:{t*2048+1024*h} sc1")
        return L

    a("s_barrier")
    a.ext(stamp(1))
    a.ext(bstamp(2, 1))
    a.ext(reads(0))
    a.ext(reads(1))
    extra = []
    XL = OPT.get("xl", 13)
    for n in range(32):
        b = n % 3
        if (n & 3) == 2:
            a("s_waitcnt lgkmcnt(0)")
            a.ext(bstamp(2, 2 + (n >> 2)))
            a("s_barrier")
            if n == 22:
                a.ext(stamp(2))
        elif (n & 3) != 3:
            a("s_waitcnt lgkmcnt(10)")
        rd = reads(n + 2) if n + 2 < 32 else []
        mf = []
        for t in range(2):
            for tt in range(2):
                for mat in range(2):
                    c = "0" if n == 0 else v(acc(mat, t, tt), 16)
                    mf.append(f"v_mfma_f32_32x32x16_bf16 {v(acc(mat,t,tt),16)}, {v(wf(b,mat,t),4)}, {v(xf(b,tt),4)}, {c}")
        if n == 30:
            extra = [f"v_mov_b32 v2, {N_LDS}", "ds_read_b32 v3, v2"]
        for i, m in enumerate(mf):
            a(m)
            a.ext(rd[2 * i:2 * i + 2])
            if i >= 4:
                a.ext(extra[:3])
                extra = extra[3:]
    assert not extra
    a.ext(stamp(3))
    if OPT.get("eprio", 0):
        a(f"s_setprio {OPT['eprio']}")
    a(f"s_waitcnt lgkmcnt(0)\nv_readfirstlane_b32 s{S_NONCE}, v3\ns_nop 5")
    for p in range(4):
        a.ext(epi(p))
    a.ext(stamp(4))
    a("s_branch L_GEMM2")


def spare(a):
    R = 16
    O = 80
    GWv = 112
    SUM = 120
    a(f"""
    s_sub_u32 s68, s{S_IDX}, 28
    s_lshl_b32 s3, s{S_XCD}, 2
    s_add_u32 s3, s3, s68
    s_lshl_b32 s3, s3, 5
    s_add_u32 s3, s3, s{S_WIDX}
    s_lshl_b32 s3, s3, 2
    s_add_u32 s3, s3, {FU_OFF}
    s_lshl_b32 s68, s68, 2
    s_add_u32 s68, s68, s{S_WIDX}
    s_lshr_b32 s69, s68, 1
    s_mov_b32 s74, s{S_XCD}
    v_and_b32 v1, 7, v0
    v_lshrrev_b32 v2, 3, v0
    v_lshlrev_b32 v3, 15, v2
    v_lshl_add_u32 v3, v1, 4, v3
    v_lshlrev_b32 v4, 15, v1
    v_lshl_add_u32 v4, v2, 4, v4
    v_lshlrev_b32 v5, 4, v1
    v_lshlrev_b32 v6, 2, v0
    s_mov_b32 s70, 0x05040100
    s_mov_b32 s71, 0x07060302
    s_lshl_b32 s72, s69, 7
    v_add_u32 v7, s72, v5
    global_load_dwordx4 {v(GWv,4)}, v7, s[{S_GW}:{S_GW+1}]
    """)
    for i in range(2):
        b = 6 + 4 * i
        a(f"""
        s_lshl_b32 s73, s68, 1
        s_add_u32 s73, s73, {i}
        s_and_b32 s73, s73, 3
        s_lshl_b32 s{b}, s74, 18
        s_lshl_b32 s75, s73, 10
        s_add_u32 s{b}, s{b}, s75
        s_add_u32 s{b}, s{b}, s72
        s_lshl_b32 s{b+1}, s69, 18
        s_add_u32 s{b+1}, s{b+1}, s75
        s_lshl_b32 s75, s74, 7
        s_add_u32 s{b+1}, s{b+1}, s75
        s_add_u32 s{b+1}, s{b+1}, {UT_OFF}
        s_lshl_b32 s{b+2}, s74, 8
        s_lshl_b32 s75, s73, 11
        s_add_u32 s{b+2}, s{b+2}, s75
        s_lshl_b32 s75, s69, 13
        s_add_u32 s{b+2}, s{b+2}, s75
        s_add_u32 s{b+2}, s{b+2}, {GL_OFF}
        """)
        for j in range(8):
            a(f"buffer_load_dwordx4 {v(R+32*i+4*j,4)}, v3, {sr(SRD_X)}, s{b} offen")
            if j < 7:
                a(f"s_add_u32 s{b}, s{b}, 4096")
    a("v_mov_b32 v2, 0")
    for i in range(2):
        b = 6 + 4 * i
        a("s_waitcnt vmcnt(8)")
        Ri = R + 32 * i
        for e in range(8):
            for jj in range(4):
                sel = 71 if (e & 1) else 70
                a(f"v_perm_b32 v{O+4*e+jj}, v{Ri+4*(2*jj+1)+(e>>1)}, v{Ri+4*(2*jj)+(e>>1)}, s{sel}")
            a(f"buffer_store_dwordx4 {v(O+4*e,4)}, v4, {sr(SRD_WS)}, s{b+1} offen sc1")
            if e < 7:
                a(f"s_add_u32 s{b+1}, s{b+1}, 4096")
    a(nonce_ld(3, 2))
    for i in range(2):
        b = 6 + 4 * i
        Ri = R + 32 * i
        for j in range(8):
            a(f"v_mov_b32 v{SUM+j}, 0")
        for q in range(4):
            for j in range(8):
                a(f"v_dot2c_f32_bf16 v{SUM+j}, v{Ri+4*j+q}, v{GWv+q}")
        a("s_nop 3")
        for ctl in ("quad_perm:[1,0,3,2]", "quad_perm:[2,3,0,1]", "row_half_mirror"):
            for j in range(8):
                a(f"v_add_f32_dpp v{SUM+j}, v{SUM+j}, v{SUM+j} {ctl} row_mask:0xf bank_mask:0xf")
        for j in range(1, 8):
            a(f"""
            v_cmp_eq_u32 vcc, {j}, v1
            s_nop 1
            v_cndmask_b32 v{SUM}, v{SUM}, v{SUM+j}, vcc
            """)
        a(f"buffer_store_dword v{SUM}, v6, {sr(SRD_WS)}, s{b+2} offen sc1")
        a("s_nop 1")
    a.ext(stamp(1))
    a("s_waitcnt vmcnt(0)")
    a.ext(plain(nonce_get("NS", 3, 2)))
    a(f"""
    s_mov_b32 s76, s{S_NONCE}
    s_mov_b64 exec, 1
    buffer_store_dword v3, v2, {sr(SRD_WS)}, s3 offen sc1
    s_mov_b64 exec, -1
    s_sub_u32 s3, s3, {FU_OFF}
    s_lshl_b32 s3, s3, 5
    s_add_u32 s3, s3, {FD_OFF}
    """)
    a.ext(stamp(2))
    a("s_barrier")
    gemm2_setup(a)
    a(f"""
    s_lshl_b32 s13, s{S_XCD}, 2
    s_add_u32 s13, s13, s{S_IDX}
    s_sub_u32 s13, s13, 28
    s_lshl_b32 s13, s13, 2
    s_add_u32 s13, s13, s{S_WIDX}
    s_mul_i32 s13, s13, {14*1024}
    """)
    for i in range(14):
        if i % 4 == 0 and i:
            a("s_add_u32 s13, s13, 4096")
        a(f"buffer_load_dwordx4 {v(64+4*(i%4),4)}, v{VL16}, {sr(SRD_WD)}, s13 offen offset:{1024*(i%4)}")
    a(f"s_mov_b32 s{S_NONCE}, s76\ns_waitcnt vmcnt(0)")


def spin(label, loads, checks, sleep=2):
    L = [f"{label}_SPIN:", f"s_sleep {sleep}"]
    L += [("NOCOUNT", x) for x in loads]
    L += ["s_waitcnt vmcnt(0)"]
    L += ["s_sub_u32 s77, s77, 1", "s_cmp_eq_u32 s77, 0", f"s_cbranch_scc1 {label}_OK"]
    L += [f"{label}_CHK:"] + checks
    L += [f"s_cbranch_scc0 {label}_SPIN", f"{label}_OK:"]
    return L


S_NONCE = 23


def nonce_ld(vd, vz):
    return f"global_load_dword v{vd}, v{vz}, s[{S_DBG}:{S_DBG+1}] sc1"


def nonce_get(label, vd, vz, sleep=8):
    L = ["s_mov_b32 s77, 0x100000", f"s_branch {label}_CHK"]
    L += spin(label, [nonce_ld(vd, vz)], [f"v_cmp_ne_u32 vcc, 0, v{vd}", "s_nop 3", "s_cmp_eq_u64 vcc, exec"], sleep)
    L += [f"v_readfirstlane_b32 s{S_NONCE}, v{vd}", "s_nop 3"]
    return L


def plain(lines):
    return [x[1] if isinstance(x, tuple) else x for x in lines]


def gemm2(a0):
    a = Asm()
    NS = 28
    NP = 12
    NR = 16
    DH = 6
    ACC = 192
    WF = 16
    WFR = 128
    HB = 144
    N1 = n1()
    NF = OPT.get("nf", 2)
    PP1 = OPT.get("pp1", 21)
    N2 = OPT.get("n2", 28)

    def acc(t, tt):
        return ACC + 16 * (t + 2 * tt)

    def wload(i):
        sl = i % NR
        return [
            "s_lshl_b32 s14, s11, 14", f"s_add_u32 m0, s8, {sl*2048}", "s_add_u32 s14, s14, s10",
            f"buffer_load_dwordx4 v{VD0}, {sr(SRD_WD)}, s14 offen lds",
            "s_add_u32 s11, s11, 1", "s_cmp_ge_u32 s11, 28", "s_cselect_b32 s11, 0, s11",
            f"buffer_load_dwordx4 v{VD1}, {sr(SRD_WD)}, s14 offen offset:1024 lds",
            ("VMTAG", f"W{i}"),
        ]

    def hload(i):
        sl = i % DH
        return [
            "s_lshl_b32 s13, s12, 10", "s_add_u32 s13, s13, s9",
            f"buffer_load_dwordx4 {v(HB+8*sl,4)}, v{VL16}, {sr(SRD_WS)}, s13 offen sc1",
            "s_add_u32 s13, s13, s22",
            "s_add_u32 s12, s12, 1", "s_cmp_ge_u32 s12, 28", "s_cselect_b32 s12, 0, s12",
            f"buffer_load_dwordx4 {v(HB+8*sl+4,4)}, v{VL16}, {sr(SRD_WS)}, s13 offen sc1",
            ("VMTAG", f"H{i}"),
        ]

    def wfrag(i):
        return WF + 8 * i if i < NP else WFR + 8 * (i & 1)

    def trd(i):
        sl = i % NR
        r = [("VMWAIT", f"W{i}")] if i >= N1 else []
        for t in range(2):
            for h2 in range(2):
                r.append(f"ds_read_b64_tr_b16 {v(wfrag(i)+4*t+2*h2,2)}, v{DA0+t} offset:{sl*2048+h2*1024}")
        return r

    a(f"""
    s_setprio 2
    v_mov_b32 v2, 0
    v_mov_b32 v3, s{S_NONCE}
    s_mov_b32 s77, 0x100000
    s_waitcnt vmcnt(0)
    s_mov_b64 exec, 1
    buffer_store_dword v3, v2, {sr(SRD_WS)}, s3 offen sc1
    s_mov_b64 exec, -1
    """)
    a.ext(stamp(5))
    a("s_barrier")
    a.ext(stamp(6))
    ph_ld = f"buffer_load_dword v4, v{VPH}, {sr(SRD_WS)}, s15 offen sc1"

    def wl(i):
        a.ext(wload(i))
        if i == PP1:
            a(ph_ld)
            a.tag("P1")
    assert NP <= N1
    for i in range(N1, NR):
        wl(i)
    for i in range(NP + 1):
        if i < NP:
            a.ext(trd(i))
        if i >= 1 and NR + i - 1 < N2:
            a(f"s_waitcnt lgkmcnt({4 if i < NP else 0})")
            wl(NR + i - 1)
    a.ext(stamp(7))
    a.wait("P1")
    a("s_branch PH_CHK")
    a.ext(spin("PH", [ph_ld], [f"v_cmp_eq_u32 vcc, s{S_NONCE}, v4", "s_nop 3", "s_cmp_eq_u64 vcc, exec"]))
    a.ext(stamp(8))
    a.ext(bstamp(3, 1))
    for i in range(DH):
        a.ext(hload(i))
    a("s_waitcnt lgkmcnt(0)")

    YR, FL, YT, EG = 80, 2, WFR, 6
    fl_ld = [f"buffer_load_dword v{FL}, v{VFL}, {sr(SRD_WS)}, s16 offen sc1"]
    chk = [f"v_cmp_eq_u32 vcc, s{S_NONCE}, v{FL}", "s_nop 3", "s_cmp_eq_u64 vcc, exec"]

    def yloads():
        return [f"buffer_load_dwordx4 {v(YR,4)}, v{VY}, {sr(SRD_WS)}, s19 offen sc1",
                "s_add_u32 s13, s19, 0x8000",
                f"buffer_load_dwordx4 {v(YR+4,4)}, v{VY}, {sr(SRD_WS)}, s13 offen sc1"]

    IF = OPT.get("if", 22)
    IY = OPT.get("iy", 25)
    for i in range(NS):
        sl = i % DH
        a.wait(f"H{i}")
        if i >= NP:
            a("s_waitcnt lgkmcnt(0)")
        hl = hload(i - 1 + DH) if 1 <= i and i - 1 + DH < NS else []
        fill = [(trd(i + 1) if NP <= i + 1 < NS else []) + hl[:3], hl[3:], wload(N2 + i) if N2 + i < NS else [], []]
        k = 0
        for t in range(2):
            for tt in range(2):
                c = "0" if i == 0 else v(acc(t, tt), 16)
                a(f"v_mfma_f32_32x32x16_bf16 {v(acc(t,tt),16)}, {v(wfrag(i)+4*t,4)}, {v(HB+8*sl+4*tt,4)}, {c}")
                a.ext(fill[k])
                k += 1
        if i in (0, 3, 7, 11, 15, 19, 23, 27):
            a.ext(bstamp(3, 2 + (0, 3, 7, 11, 15, 19, 23, 27).index(i)))
        if i == IF:
            a.ext(fl_ld)
            a.tag("F")
        if i == IY:
            a.wait("F")
            a.ext(yloads())
    a.ext(stamp(9))
    a.ext(chk)
    a("s_cbranch_scc1 PY_DONE")
    a.ext(spin("PY", fl_ld, chk))
    a.ext([("NOCOUNT", x) if is_vmem(x) else x for x in yloads()])
    a("PY_DONE:")
    a("s_nop 5")
    for k in range(1, 4):
        for g in range(4):
            a(f"ds_write_b128 v{VW1}, {v(ACC+16*k+4*g,4)} offset:{k*4096+g*1024}")
    X1, Y1 = HB, HB + 16
    OST = {0: "", 1: " sc1", 2: " nt", 3: " sc0 sc1"}[OPT.get("ost", 0)]
    a(f"""
    v_mov_b32 v5, 0xffff0000
    ds_read_b32 v{EG}, v{VG}
    s_waitcnt vmcnt(0)
    ds_write_b128 v{VYW}, {v(YR,4)} offset:16384
    ds_write_b128 v{VYW}, {v(YR+4,4)} offset:17408
    """)
    a("s_waitcnt lgkmcnt(0)")
    a("s_barrier")
    PB = 16
    for q in range(4):
        a(f"ds_read_b64_tr_b16 {v(YT+2*q,2)}, v{VYT} offset:{16384+q*512}")
    for k, base in ((1, VR1), (2, VW2), (3, VW3)):
        for g in range(4):
            a(f"ds_read_b128 {v(PB+16*(k-1)+4*g,4)}, v{base} offset:{k*4096+g*1024}")
    a("s_waitcnt lgkmcnt(12)")
    for i in range(8):
        a(f"""
        v_lshlrev_b32 v{Y1+2*i}, 16, v{YT+i}
        v_and_b32 v{Y1+2*i+1}, v5, v{YT+i}
        """)
    a("s_waitcnt lgkmcnt(8)")
    for i in range(0, 16, 2):
        a(f"v_pk_add_f32 {v(ACC+i,2)}, {v(ACC+i,2)}, {v(PB+i,2)}")
    a("s_waitcnt lgkmcnt(0)")
    for i in range(0, 16, 2):
        a(f"v_pk_add_f32 {v(PB+16+i,2)}, {v(PB+16+i,2)}, {v(PB+32+i,2)}")
    for i in range(0, 16, 2):
        a(f"v_pk_add_f32 {v(ACC+i,2)}, {v(ACC+i,2)}, {v(PB+16+i,2)}")
    for i in range(0, 16, 2):
        a(f"v_pk_add_f32 {v(Y1+i,2)}, {v(Y1+i,2)}, {v(ACC+i,2)} neg_lo:[0,1] neg_hi:[0,1]")
    for i in range(0, 16, 2):
        a(f"v_pk_fma_f32 {v(ACC+i,2)}, {v(Y1+i,2)}, {v(EG,2)}, {v(ACC+i,2)} op_sel_hi:[1,0,1]")
    for i in range(8):
        a(f"v_cvt_pk_bf16_f32 v{X1+i}, v{ACC+2*i}, v{ACC+2*i+1}")
    a(f"""
    buffer_store_dwordx4 {v(X1,4)}, v{VEP}, {sr(SRD_OUT)}, 0 offen{OST}
    buffer_store_dwordx4 {v(X1+4,4)}, v{VEP}, {sr(SRD_OUT)}, 0 offen offset:16{OST}
    """)
    a.ext(stamp_end())
    a0.ext(resolve_vm(a.L))


def kwave(gemm_wg):
    sfx = "G" if gemm_wg else "S"
    ra = RA(2, 256)
    pre = Asm()
    main = Asm()
    ph2 = Asm()
    a = pre
    a(f"""
    s_setprio {OPT.get("kprio", 0)}
    s_sub_u32 s68, s{S_WIDX}, 6
    s_lshl_b32 s69, s2, 1
    s_add_u32 s69, s69, s68
    s_lshl_b32 s70, s68, 13
    s_add_u32 s70, s70, {KG_BASE}
    s_lshl_b32 s71, s69, 8
    """)
    t0 = ra(); t1 = ra(); t2 = ra(); t3 = ra()
    PR = ra(7)
    DV = ra()
    a(f"""
    v_lshlrev_b32 v{t0}, 2, v0
    v_add_u32 v{t0}, s71, v{t0}
    s_lshl_b32 s72, s69, 1
    v_mov_b32 v{t1}, s72
    """)
    for i, sb in enumerate((S_ARE, S_AIM, S_BRE, S_BIM, S_CRE, S_CIM)):
        a(f"global_load_dword v{PR+i}, v{t0}, s[{sb}:{sb+1}]")
    a(f"global_load_ushort v{PR+6}, v{t1}, s[{S_LDT}:{S_LDT+1}]")
    a(f"global_load_ushort v{DV}, v{t1}, s[{S_DS}:{S_DS+1}]")
    if gemm_wg:
        a(f"""
        s_cmp_lg_u32 s69, 0
        s_cbranch_scc1 K{sfx}_NOTAG
        s_memrealtime s[72:73]
        v_mov_b32 v{t0}, 0
        s_waitcnt lgkmcnt(0)
        s_or_b32 s72, s72, 1
        v_mov_b32 v{t1}, s72
        s_mov_b64 exec, 1
        global_store_dword v{t0}, v{t1}, s[{S_DBG}:{S_DBG+1}] sc1
        s_mov_b64 exec, -1
        K{sfx}_NOTAG:
        """)

    WR = ra(8)
    RD = ra(2)
    a(f"""
    v_lshrrev_b32 v{t0}, 1, v0
    v_and_b32 v{t1}, 7, v{t0}
    v_lshlrev_b32 v{t0}, 8, v{t0}
    v_and_b32 v{t2}, 1, v0
    v_lshl_add_u32 v{t0}, v{t2}, 3, v{t0}
    v_add_u32 v{t0}, s70, v{t0}
    """)
    for b in range(8):
        a(f"""
        v_xor_b32 v{t2}, {b}, v{t1}
        v_lshl_add_u32 v{WR+b}, v{t2}, 4, v{t0}
        """)
    a(f"""
    v_and_b32 v{t0}, 15, v0
    v_lshrrev_b32 v{t1}, 4, v0
    """)
    for p in range(2):
        a(f"""
        v_add_u32 v{t2}, {4*p}, v{t1}
        v_xor_b32 v{t3}, v{t2}, v{t0}
        v_lshlrev_b32 v{t3}, 4, v{t3}
        v_lshl_add_u32 v{t3}, v{t2}, 8, v{t3}
        v_add_u32 v{RD+p}, s70, v{t3}
        """)
    TA0 = ra(); TA1 = ra(); TA2 = ra(); TA3 = ra()
    LP = ra(12)
    a(f"""
    v_and_b32 v{t2}, 1, v{t1}
    v_lshrrev_b32 v{t3}, 1, v{t1}
    v_lshlrev_b32 v{TA0}, 5, v{t0}
    v_lshl_add_u32 v{TA0}, v{t2}, 4, v{TA0}
    v_lshl_add_u32 v{TA0}, v{t3}, 9, v{TA0}
    v_lshrrev_b32 v{LP}, 2, v{TA0}
    v_cvt_f32_u32 v{LP}, v{LP}
    v_add_u32 v{TA0}, s70, v{TA0}
    v_add_f32 v{LP+1}, 1.0, v{LP}
    v_add_f32 v{LP+2}, 2.0, v{LP}
    v_add_f32 v{LP+3}, 2.0, v{LP+1}
    v_cmp_gt_u32 vcc, 2, v{t1}
    v_lshlrev_b32 v{TA1}, 4, v{t0}
    v_lshlrev_b32 v{TA2}, 3, v{t0}
    v_cndmask_b32 v{TA1}, v{TA2}, v{TA1}, vcc
    v_lshl_add_u32 v{TA1}, v{t1}, 8, v{TA1}
    v_add_u32 v{TA1}, s70, v{TA1}
    v_add_u32 v{TA1}, 1024, v{TA1}
    v_mov_b32 v{TA2}, 128
    v_cndmask_b32 v{TA2}, v{TA2}, 8, vcc
    v_add_u32 v{TA2}, v{TA2}, v{TA1}
    v_lshlrev_b32 v{TA3}, 2, v{t0}
    v_lshl_add_u32 v{TA3}, v{t1}, 8, v{TA3}
    v_add_u32 v{TA3}, s70, v{TA3}
    """)
    a(f"""
    v_lshlrev_b32 v{t2}, 7, v{t1}
    v_add_u32 v{t2}, 256, v{t2}
    v_lshlrev_b32 v{t3}, 8, v{t1}
    v_cndmask_b32 v{t2}, v{t3}, v{t2}, vcc
    v_lshl_add_u32 v{t2}, v{t0}, 3, v{t2}
    v_cvt_f32_u32 v{LP+4}, v{t2}
    v_mov_b32 v{t2}, 4.0
    v_cndmask_b32 v{t2}, v{t2}, 2.0, vcc
    v_mov_b32 v{t3}, {f32(128.0)}
    v_cndmask_b32 v{t3}, v{t3}, 4.0, vcc
    v_add_f32 v{LP+5}, v{LP+4}, v{t2}
    v_add_f32 v{LP+6}, v{LP+4}, v{t3}
    v_add_f32 v{LP+7}, v{LP+6}, v{t2}
    v_lshlrev_b32 v{t2}, 9, v{t1}
    v_lshl_add_u32 v{t2}, v{t0}, 3, v{t2}
    v_add_u32 v{t2}, 1024, v{t2}
    v_cvt_f32_u32 v{LP+8}, v{t2}
    v_add_f32 v{LP+9}, {f32(128.0)}, v{LP+8}
    v_add_f32 v{LP+10}, {f32(256.0)}, v{LP+8}
    v_add_f32 v{LP+11}, {f32(384.0)}, v{LP+8}
    """)
    EX = ra(10)
    a(f"""
    s_sub_u32 s72, s70, {4*17024}
    v_lshlrev_b32 v{t0}, 3, v0
    v_cvt_f32_u32 v{t1}, v{t0}
    v_cmp_gt_u32 vcc, 16, v0
    v_add_u32 v{EX+8}, s70, v{t0}
    v_lshlrev_b32 v{t0}, 2, v{t0}
    v_add_u32 v{t0}, s70, v{t0}
    v_lshlrev_b32 v{EX+9}, 2, v0
    v_add_u32 v{EX+9}, s70, v{EX+9}
    v_add_u32 v{EX+9}, 2048, v{EX+9}
    """)
    for kk in range(4):
        e0, e1 = EX + 2 * kk, EX + 2 * kk + 1
        a(f"""
        v_add_f32 v{t2}, 1.0, v{t1}
        v_cvt_pk_bf16_f32 v{t3}, v{t1}, v{t2}
        v_add_f32 v{t1}, 2.0, v{t1}
        v_and_b32 v{e0}, 0xffff, v{t3}
        v_lshrrev_b32 v{e1}, 16, v{t3}
        v_lshl_add_u32 v{e0}, v{e0}, 2, s72
        v_lshl_add_u32 v{e1}, v{e1}, 2, s72
        v_add_u32 v{t2}, {8*kk}, v{t0}
        v_add_u32 v{t3}, {8*kk+4}, v{t0}
        v_cndmask_b32 v{e0}, v{e0}, v{t2}, vcc
        v_cndmask_b32 v{e1}, v{e1}, v{t3}, vcc
        """)

    a = main
    a("s_waitcnt vmcnt(0)")
    MASK = ra()
    DT = ra()
    PP = ra(12)
    a(f"""
    v_mov_b32 v{MASK}, 0xffff0000
    v_cmp_eq_u32 vcc, 0, v0
    v_lshlrev_b32 v{DV}, 16, v{DV}
    s_nop 0
    v_cndmask_b32 v{DV}, 0, v{DV}, vcc
    """)
    for i in range(6):
        a(f"v_lshlrev_b32 v{PP+2*i}, 16, v{PR+i}")
        a(f"v_and_b32 v{PP+2*i+1}, v{MASK}, v{PR+i}")
    x = PR + 6
    a(f"""
    v_lshlrev_b32 v{x}, 16, v{x}
    v_mul_f32 v{t0}, {f32(LOG2E_HI)}, v{x}
    s_mov_b32 s72, {f32(LOG2E_HI)}
    v_fma_f32 v{t1}, v{x}, s72, -v{t0}
    v_fmac_f32 v{t1}, {f32(LOG2E_LO)}, v{x}
    v_exp_f32 v{t0}, v{t0}
    v_mul_f32 v{t1}, {f32(LN2)}, v{t1}
    v_fmac_f32 v{t0}, v{t0}, v{t1}
    v_cvt_pk_bf16_f32 v{t0}, v{t0}, v{t0}
    v_lshlrev_b32 v{DT}, 16, v{t0}
    """)
    A2, TH, Br, Bi, Cr, Ci = (PP + 2 * i for i in range(6))
    for m in range(2):
        a(f"""
        v_mul_f32 v{A2+m}, v{DT}, v{A2+m}
        v_mul_f32 v{TH+m}, v{DT}, v{TH+m}
        v_mul_f32 v{Br+m}, v{DT}, v{Br+m}
        v_mul_f32 v{Bi+m}, v{DT}, v{Bi+m}
        v_mul_f32 v{A2+m}, {f32(LOG2E)}, v{A2+m}
        v_mul_f32 v{TH+m}, {f32(INV2PI)}, v{TH+m}
        """)
    W0 = ra(4); W1 = ra(4)
    for m in range(2):
        a(f"""
        v_mul_f32 v{W0+2*m}, v{Cr+m}, v{Br+m}
        v_mul_f32 v{W0+2*m+1}, v{Cr+m}, v{Bi+m}
        v_fma_f32 v{W0+2*m}, -v{Ci+m}, v{Bi+m}, v{W0+2*m}
        v_fmac_f32 v{W0+2*m+1}, v{Ci+m}, v{Br+m}
        v_sub_f32 v{W0+2*m+1}, 0, v{W0+2*m+1}
        """)
    SIG = ra(); WM = ra(); CE = ra()
    a(f"""
    v_max_f32 v{SIG}, v{A2}, v{A2+1}
    v_max3_f32 v{WM}, |v{W0}|, |v{W0+1}|, |v{W0+2}|
    v_max_f32 v{WM}, |v{W0+3}|, v{WM}
    s_nop 1
    """)
    for ctl in ("quad_perm:[1,0,3,2]", "quad_perm:[2,3,0,1]", "row_half_mirror", "row_mirror"):
        a(f"""
        v_max_f32_dpp v{SIG}, v{SIG}, v{SIG} {ctl} row_mask:0xf bank_mask:0xf
        v_max_f32_dpp v{WM}, v{WM}, v{WM} {ctl} row_mask:0xf bank_mask:0xf
        s_nop 0
        """)
    a(f"""
    v_readlane_b32 s72, v{SIG}, 0
    v_readlane_b32 s73, v{SIG}, 16
    v_readlane_b32 s74, v{SIG}, 32
    v_readlane_b32 s75, v{SIG}, 48
    v_readlane_b32 s6, v{WM}, 0
    v_readlane_b32 s7, v{WM}, 16
    v_readlane_b32 s8, v{WM}, 32
    v_readlane_b32 s9, v{WM}, 48
    v_max_f32 v{SIG}, s72, v{SIG}
    v_max_f32 v{SIG}, s73, v{SIG}
    v_max_f32 v{SIG}, s74, v{SIG}
    v_max_f32 v{SIG}, s75, v{SIG}
    v_max_f32 v{WM}, s6, v{WM}
    v_max_f32 v{WM}, s7, v{WM}
    v_max_f32 v{WM}, s8, v{WM}
    v_max_f32 v{WM}, s9, v{WM}
    v_sub_f32 v{A2}, v{A2}, v{SIG}
    v_sub_f32 v{A2+1}, v{A2+1}, v{SIG}
    v_frexp_exp_i32_f32 v{CE}, v{WM}
    v_sub_u32 v{t0}, 14, v{CE}
    v_subrev_u32 v{CE}, 29, v{CE}
    """)
    for i in range(4):
        a(f"v_ldexp_f32 v{W0+i}, v{W0+i}, v{t0}")

    def cexp(l):
        r = ra(6)
        for m in range(2):
            a(f"""
            v_mul_f32 v{t0}, {f32(float(l))}, v{A2+m}
            v_mul_f32 v{t1}, {f32(float(l))}, v{TH+m}
            v_exp_f32 v{t0}, v{t0}
            v_fract_f32 v{t1}, v{t1}
            v_cos_f32 v{t2}, v{t1}
            v_sin_f32 v{t3}, v{t1}
            s_nop 0
            v_mul_f32 v{r+2*m}, v{t0}, v{t2}
            v_mul_f32 v{r+2*m+1}, v{t0}, v{t3}
            v_sub_f32 v{r+4+m}, 0, v{r+2*m+1}
            """)
        return r

    def cmul(d, x_, b, conj=False):
        for m in range(2):
            br, bi, nbi = b + 2 * m, b + 2 * m + 1, b + 4 + m
            if conj:
                bi, nbi = nbi, bi
            a(f"""
            v_mul_f32 v{d+2*m}, v{x_+2*m}, v{br}
            v_mul_f32 v{d+2*m+1}, v{x_+2*m}, v{bi}
            v_fmac_f32 v{d+2*m}, v{x_+2*m+1}, v{nbi}
            v_fmac_f32 v{d+2*m+1}, v{x_+2*m+1}, v{br}
            """)

    def neg(b):
        for m in range(2):
            a(f"v_sub_f32 v{b+4+m}, 0, v{b+2*m+1}")

    def scale(d, x_):
        for i in range(4):
            a(f"v_mul_f32 v{d+i}, {f32(32768.0)}, v{x_+i}")

    VB = [ra(32, 4), ra(32, 4), ra(32, 4), ra(18, 4)]
    CH0 = ra(0, 4)

    def put(batch, row, r):
        h = VB[batch] + 2 * row
        if r is None:
            a(f"v_mov_b32 v{h}, 0x7800\nv_mov_b32 v{h+1}, 0x7800")
        else:
            a(f"""
            v_cvt_pk_f16_f32 v{h}, v{r}, v{r+1}
            v_cvt_pk_f16_f32 v{h+1}, v{r+2}, v{r+3}
            """)

    E8 = cexp(8)
    cur, nxt = W0, W1
    for c in range(16):
        if c < 15:
            cmul(nxt, cur, E8, conj=True)
        put(0, c, cur)
        cur, nxt = nxt, cur
    E1 = cexp(1)
    Q1 = cexp(128)
    Q8 = cexp(1024)
    P = {}
    P[1] = ra(4)
    scale(P[1], E1)
    for j in range(2, 8):
        P[j] = ra(6 if j == 4 else 4)
        cmul(P[j], P[j - 1], E1)
    put(1, 0, None)
    for j in range(1, 8):
        put(1, j, P[j])
    scale(W0, Q1)
    put(1, 8, W0)
    for j in range(1, 8):
        cmul(W0, P[j], Q1)
        put(1, 8 + j, W0)
    Q = {1: Q1, 8: Q8}
    for j in range(2, 8):
        Q[j] = {2: E1, 3: PP + 4}[j] if j < 4 else P[2 * (j - 4) + 1]
        cmul(Q[j], Q[j - 1], Q1)
    neg(P[4]); neg(Q[2]); neg(Q[3])
    for qi, j in enumerate((2, 3)):
        scale(W0, Q[j])
        put(2, 4 * qi, W0)
        for r in range(1, 4):
            cmul(W0, P[2 * r], Q[j])
            put(2, 4 * qi + r, W0)
    for aa in range(4):
        scale(W0, Q[4 + aa])
        put(2, 8 + 2 * aa, W0)
        cmul(W0, Q[4 + aa], P[4])
        put(2, 8 + 2 * aa + 1, W0)
    a(f"v_mov_b32 v{PR}, 0")
    a(nonce_ld(PR + 1, PR))
    QS = E8
    scale(QS, Q8)
    neg(QS)
    put(3, 0, QS)
    for j in range(1, 8):
        cmul(W0, Q[j], QS)
        put(3, j, W0)
    cmul(W0, Q8, QS)
    put(3, 8, W0)
    for i in range(12):
        a(f"v_mul_f32 v{LP+i}, v{SIG}, v{LP+i}")
    for i in range(12):
        a(f"v_exp_f32 v{LP+i}, v{LP+i}")

    a = ph2
    YF = CH0
    AC = CH0 + 32
    assert AC + 12 <= ra.p

    def wr(batch, nrows):
        for row in range(nrows):
            a(f"ds_write_b64 v{WR+(row&7)}, {v(VB[batch]+2*row,2)} offset:{(row>>3)*128}")

    def fetch(F):
        for ks in range(8):
            a(f"ds_read_b128 {v(F+4*ks,4)}, v{RD+(ks&1)} offset:{(ks>>1)*2048}")

    def mfmas(tile, XF):
        for ks in range(8):
            c = "0" if ks == 0 else v(AC + 4 * tile, 4)
            a(f"v_mfma_f32_16x16x32_f16 {v(AC+4*tile,4)}, {v(XF+4*ks,4)}, {v(YF+4*ks,4)}, {c}")

    a("s_waitcnt vmcnt(0)")
    ng = plain(nonce_get(f"NK{sfx}", PR + 1, PR))
    a(f"v_mov_b32 v{t2}, {N_LDS}")
    a(f"ds_write_b32 v{t2}, v{PR+1}")
    wr(0, 16); fetch(YF)
    wr(1, 16); fetch(VB[0])
    wr(2, 16); fetch(VB[1])
    a("s_waitcnt lgkmcnt(15)")
    mf0 = len(a.L)
    wr(3, 9); fetch(VB[2])
    tail = a.L[mf0:]
    del a.L[mf0:]
    m = Asm()
    sv, a = a, m
    mfmas(0, VB[0])
    a = sv
    for i in range(8):
        a.ext(tail[2 * i:2 * i + 2])
        a(m.L[i])
    a.ext(tail[16:])
    a("s_waitcnt lgkmcnt(15)")
    mfmas(1, VB[1])
    a("s_waitcnt lgkmcnt(0)")
    mfmas(2, VB[2])
    a("s_nop 3")
    for i in range(12):
        a(f"v_mul_f32 v{AC+i}, v{AC+i}, v{LP+i}")
    for i in range(12):
        a(f"v_ldexp_f32 v{AC+i}, v{AC+i}, v{CE}")
    a(f"v_add_f32 v{AC}, v{AC}, v{DV}")
    a(f"ds_write_b128 v{TA0}, {v(AC,4)}")
    a(f"ds_write_b64 v{TA1}, {v(AC+4,2)}")
    a(f"ds_write_b64 v{TA2}, {v(AC+6,2)}")
    for r in range(4):
        a(f"ds_write_b32 v{TA3}, v{AC+8+r} offset:{2048+64*r}")
    G0 = VB[0]
    OUT = VB[1]
    for i in range(8):
        a(f"ds_read_b32 v{G0+i}, v{EX+i}")
    a(f"""
    ds_read_b64 {v(G0+8,2)}, v{EX+8} offset:1536
    ds_read_b32 v{G0+10}, v{EX+8} offset:1544
    ds_read2_b32 {v(G0+12,2)}, v{EX+9} offset0:0 offset1:1
    ds_read2_b32 {v(G0+14,2)}, v{EX+9} offset0:64 offset1:65
    v_lshlrev_b32 v{t0}, 4, v0
    v_add_u32 v{t0}, s70, v{t0}
    v_and_b32 v{t1}, 3, v0
    v_lshlrev_b32 v{t1}, 4, v{t1}
    v_add_u32 v{t1}, s70, v{t1}
    v_mov_b32 v{OUT+16}, 0
    v_mov_b32 v{OUT+17}, 0
    v_mov_b32 v{OUT+18}, 0
    v_mov_b32 v{OUT+19}, 0
    s_mov_b32 s72, 0xaaaaaaaa
    s_mov_b32 s73, 0xaaaaaaaa
    ds_write_b128 v{t1}, {v(OUT+16,4)} offset:{KARR}
    s_waitcnt lgkmcnt(0)
    """)
    for k in range(4):
        a(f"v_cvt_pk_bf16_f32 v{OUT+k}, v{G0+2*k}, v{G0+2*k+1}")
    a(f"""
    v_cvt_pk_bf16_f32 v{OUT+4}, v{G0+8}, v{G0+8}
    v_cvt_pk_bf16_f32 v{OUT+5}, v{G0+8}, v{G0+9}
    v_cvt_pk_bf16_f32 v{OUT+6}, v{G0+9}, v{G0+9}
    v_cvt_pk_bf16_f32 v{OUT+7}, v{G0+10}, v{G0+10}
    """)
    for it in (2, 3):
        T0, T1 = G0 + 8 + 2 * it, G0 + 9 + 2 * it
        o = OUT + 4 * it
        a(f"""
        v_cndmask_b32 v{t2}, v{T0}, v{T1}, s[72:73]
        v_cvt_pk_bf16_f32 v{o}, v{T0}, v{T0}
        v_cvt_pk_bf16_f32 v{o+1}, v{T0}, v{T0}
        v_cvt_pk_bf16_f32 v{o+2}, v{t2}, v{T1}
        v_cvt_pk_bf16_f32 v{o+3}, v{T1}, v{T1}
        """)
    a(f"v_mov_b32 v{t2}, 0")
    for it in range(4):
        a(f"ds_write_b128 v{t0}, {v(OUT+4*it,4)} offset:{KARR+64+1024*it}")
    if OPT.get("dbgk"):
        a(f"""
        s_lshl_b32 s72, s69, 12
        s_add_u32 s72, s72, {KX_OFF}
        v_lshlrev_b32 v{t0}, 4, v0
        """)
        for it in range(4):
            a(f"buffer_store_dwordx4 {v(OUT+4*it,4)}, v{t0}, {sr(SRD_WS)}, s72 offen offset:{1024*it}")
    a("s_waitcnt vmcnt(0) lgkmcnt(0)")
    ph2.L[1:1] = ["\n    ".join(ng)]

    out = list(pre.L)
    out.extend(stamp(1))
    kx = OPT.get("kx", 0)
    if kx == 1:
        ph2.L = []
    elif kx == 2:
        ph2.L = [x for x in ph2.L if not x.startswith("v_mfma")]
    elif kx == 3:
        ph2.L = [x for x in ph2.L if not x.startswith("ds_write")]
    elif kx == 4:
        ph2.L = [x for x in ph2.L if not x.startswith("ds_read")]
    elif kx == 5:
        L2 = []
        for x in ph2.L:
            L2.append(x)
            if x.startswith("ds_write_b64"):
                L2.append("s_nop 3")
        ph2.L = L2
    if gemm_wg:
        per = OPT.get("kper", 132)
        first = OPT.get("kfirst", 0)
        p2a = OPT.get("kp2a", 56)
        p2b = OPT.get("kp2b", 115)
        pos = min(first, len(main.L))
        out.extend(main.L[:pos])
        for sidx in range(9):
            out.extend(bstamp(2, 1 + sidx))
            out.append("s_barrier")
            if sidx < 6:
                end = len(main.L) if sidx == 5 else min(pos + per, len(main.L))
                out.extend(main.L[pos:end])
                pos = end
            elif sidx == 6:
                out.extend(ph2.L[:p2a])
            elif sidx == 7:
                out.extend(ph2.L[p2a:p2b])
            else:
                out.extend(ph2.L[p2b:])
        out.extend(stamp(2))
        out.append("s_barrier")
    else:
        out.extend(main.L)
        out.extend(ph2.L)
        out.append("s_barrier")
        out.extend(stamp(2))
        out.append("s_barrier")
    out.append("s_mov_b32 s6, s68")
    out.append("s_branch L_CONVB")
    return out


def lwave(gemm_wg):
    sfx = "G" if gemm_wg else "S"
    a = Asm()
    XV, WV, VL, VC = 8, 12, 2, 16
    t0, t1, t2 = 3, 4, 5
    DUM = 24
    ROT = OPT.get("rot", 0)
    SW = 12
    a(f"""
    s_setprio 3
    s_sub_u32 s6, s{S_WIDX}, 4
    """)

    def kofs(st):
        if not ROT:
            return []
        return [f"s_add_u32 s18, s{S_PHI}, {st}", "s_and_b32 s18, s18, 7", f"s_mul_i32 s19, s18, {64*3584}",
                "s_lshl_b32 s18, s18, 7"]

    def grp(st, g):
        sl = st % 3
        if g in (1, 5):
            j = 0 if g == 1 else 1
            L = [f"s_add_u32 m0, s{10+j}, {sl*SLOT}", f"s_add_u32 s22, s{8+j}, {'s18' if ROT else st*128}"]
            L += [f"buffer_load_dwordx4 v{XV+i}, {sr(SRD_X)}, s22 offen offset:{1024*i} lds" for i in range(4)]
        else:
            j = 0 if g == 0 else g - 1
            L = [f"s_add_u32 m0, s{72+j}, {sl*SLOT}", f"s_add_u32 s22, s{68+j}, {'s19' if ROT else st*64*3584}"]
            L += [f"buffer_load_dwordx4 v{WV+i}, {sr(SW)}, s22 offen offset:{1024*i} lds" for i in range(4)]
        return L

    def pref(st):
        L = [f"s_add_u32 s22, s68, {st*64*3584}"]
        L += [f"buffer_load_dwordx4 {v(DUM+4*i,4)}, v{WV+i}, {sr(SW)}, s22 offen offset:{1024*i}" for i in range(4)]
        L += [f"s_add_u32 s22, s23, {st*128}"]
        L += [f"buffer_load_dwordx4 {v(DUM+16+4*i,4)}, v{XV+i}, {sr(SRD_X)}, s22 offen offset:{1024*i}" for i in range(2)]
        return L

    fu_ld = [f"buffer_load_dwordx2 v[{VC}:{VC+1}], v{t1}, {sr(SRD_WS)}, s16 offen sc1"]
    fu_chk = [f"v_cmp_eq_u32 vcc, s{S_NONCE}, v{VC}", f"v_cmp_eq_u32 s[18:19], s{S_NONCE}, v{VC+1}", "s_nop 3",
              "s_and_b64 vcc, vcc, s[18:19]", "s_cmp_eq_u64 vcc, exec"]

    def poll_setup():
        a(f"""
        s_lshl_b32 s7, s2, 1
        s_add_u32 s7, s7, s6
        v_lshlrev_b32 v{VL}, 4, v0
        s_mov_b32 s16, {FU_OFF}
        s_mov_b32 s77, 0x100000
        """)
        fu_addr()

    def fu_addr():
        a(f"""
        v_lshrrev_b32 v{t1}, 1, v0
        v_lshlrev_b32 v{t1}, 7, v{t1}
        v_and_b32 v{t2}, 1, v0
        v_lshl_add_u32 v{t1}, v{t2}, 3, v{t1}
        """)

    def late_addr():
        a(f"""
        s_sub_u32 s17, 2, s6
        s_lshl_b32 s17, s17, 15
        v_add_u32 v1, s17, v{VL}
        """)

    STG = 24
    assert STG + 16 * n1() <= 256

    def wd_setup():
        a(f"""
        v_lshrrev_b32 v20, 3, v0
        v_and_b32 v21, 7, v0
        v_lshrrev_b32 v22, 1, v20
        v_and_b32 v22, 1, v22
        v_lshlrev_b32 v22, 2, v22
        v_xor_b32 v21, v21, v22
        v_lshlrev_b32 v18, 10, v20
        v_lshl_add_u32 v18, v21, 4, v18
        v_add_u32 v19, 8192, v18
        s_and_b32 s17, s{S_IDX}, 7
        s_lshl_b32 s17, s17, 7
        s_mul_i32 s3, s6, {3*28*16384}
        s_add_u32 s3, s3, s17
        s_sub_u32 s48, 2, s6
        s_lshl_b32 s49, s48, 15
        v_add_u32 v1, s49, v{VL}
        s_mul_i32 s48, s48, {28*16384}
        s_add_u32 s48, s48, s17
        s_mul_i32 s17, s6, {3*RING2}
        v_add_u32 v7, s17, v{VL}
        """)
        a(rot_scalar(76, 17))
        a("s_mov_b32 s49, s76")

    wpos = [0, 0]
    wwp = [0, 0]

    def wd_ld(g, n):
        sb, ss = ((3, 76), (48, 49))[g]
        for _ in range(n):
            i = wpos[g]
            if i >= n1():
                break
            wpos[g] += 1
            R = STG + 8 * (g * n1() + i)
            a(f"""
            s_lshl_b32 s22, s{ss}, 14
            s_add_u32 s22, s22, s{sb}
            buffer_load_dwordx4 {v(R,4)}, v18, {sr(SRD_WD)}, s22 offen
            s_add_u32 s{ss}, s{ss}, 1
            s_cmp_ge_u32 s{ss}, 28
            s_cselect_b32 s{ss}, 0, s{ss}
            buffer_load_dwordx4 {v(R+4,4)}, v19, {sr(SRD_WD)}, s22 offen
            """)
            a.tag(f"wd{g}_{i}")

    def wd_wr(g, n):
        for i in range(wwp[g], min(n1(), wwp[g] + n)):
            wwp[g] = i + 1
            R = STG + 8 * (g * n1() + i)
            a.wait(f"wd{g}_{i}")
            for k in range(2):
                a(f"ds_write_b128 v{(7, 1)[g]}, {v(R+4*k,4)} offset:{i*2048 + k*1024}")

    def u_load():
        a(f"""
        s_mul_i32 s18, s6, {USZ}
        s_add_u32 s18, s18, {U_BASE}
        s_lshl_b32 s17, s7, 12
        s_add_u32 s17, s17, {UT_OFF}
        v_mov_b32 v20, 0
        v_mov_b32 v21, 0
        v_mov_b32 v22, 0
        v_mov_b32 v23, 0
        v_and_b32 v{t2}, 7, v0
        v_lshrrev_b32 v6, 3, v0
        v_and_b32 v6, 3, v6
        v_min_u32 v{t2}, 6, v{t2}
        v_mul_u32_u24 v6, {UPITCH}, v6
        v_lshl_add_u32 v{t2}, v{t2}, 4, v6
        v_add_u32 v{t2}, s18, v{t2}
        ds_write_b128 v{t2}, v[20:23]
        """)
        for r in range(4):
            a(f"""
            s_add_u32 m0, s18, {r*UPITCH + 112}
            s_nop 0
            buffer_load_dwordx4 v{VL}, {sr(SRD_WS)}, s17 offen sc1 lds
            s_add_u32 s17, s17, 1024
            """)

    GLR = 8

    def gl_load(tag="gl"):
        a(f"""
        s_lshl_b32 s17, s{S_XCD}, 2
        s_lshr_b32 s22, s{S_IDX}, 3
        s_add_u32 s17, s17, s22
        s_lshl_b32 s17, s17, 6
        s_add_u32 s17, s17, {GL_OFF}
        v_and_b32 v{t0}, 3, v0
        v_lshrrev_b32 v{t1}, 2, v0
        v_lshlrev_b32 v{t1}, 2, v{t1}
        v_lshl_add_u32 v{t1}, v{t0}, 11, v{t1}
        """)
        for g in range(8):
            a(f"buffer_load_dword v{GLR+g}, v{t1}, {sr(SRD_WS)}, s17 offen sc1")
            if g < 7:
                a("s_add_u32 s17, s17, 8192")
        a.tag(tag)

    def gl_finish():
        E = GLR
        a.wait("gl")
        a(f"""
        v_add_f32 v{E}, v{E}, v{E+1}
        v_add_f32 v{E+2}, v{E+2}, v{E+3}
        v_add_f32 v{E+4}, v{E+4}, v{E+5}
        v_add_f32 v{E+6}, v{E+6}, v{E+7}
        v_add_f32 v{E}, v{E}, v{E+2}
        v_add_f32 v{E+4}, v{E+4}, v{E+6}
        v_add_f32 v{E}, v{E}, v{E+4}
        v_cvt_pk_bf16_f32 v{E}, v{E}, v{E}
        v_lshlrev_b32 v{E}, 16, v{E}
        v_mul_f32 v{E}, {f32(-LOG2E)}, v{E}
        v_exp_f32 v{E}, v{E}
        v_lshlrev_b32 v{t0}, 2, v0
        v_add_f32 v{E}, 1.0, v{E}
        v_rcp_f32 v{E}, v{E}
        v_add_u32 v{t0}, {G_LDS}, v{t0}
        v_cvt_pk_bf16_f32 v{E}, v{E}, v{E}
        v_lshlrev_b32 v{E}, 16, v{E}
        ds_write_b32 v{t0}, v{E}
        """)

    if gemm_wg:
        a(f"""
        v_lshrrev_b32 v{t0}, 4, v0
        v_and_b32 v{t1}, 15, v0
        v_lshlrev_b32 v{t2}, 2, v{t0}
        v_xor_b32 v{t1}, v{t1}, v{t2}
        v_mul_u32_u24 v{t0}, 3584, v{t0}
        v_lshl_add_u32 v{WV}, v{t1}, 4, v{t0}
        """)
        for i in range(1, 4):
            a(f"v_add_u32 v{WV+i}, {(4*3584-1024)*i}, v{WV}")
        a(f"""
        s_mov_b32 s{SW+2}, {512*1792*2}
        s_mov_b32 s{SW+3}, 0x00020000
        s_and_b32 s22, s68, 3
        s_mov_b32 s19, s69
        s_lshl_b32 s23, s{S_CB}, 8
        s_lshl_b32 s16, s6, 14
        s_add_u32 s16, s16, 16384
        """)
        for j in range(4):
            a(f"""
            s_add_u32 s17, s22, {j}
            s_and_b32 s17, s17, 3
            s_mul_i32 s{68+j}, s17, {16*3584}
            s_add_u32 s{68+j}, s{68+j}, s23
            s_lshl_b32 s{72+j}, s17, 12
            s_add_u32 s{72+j}, s{72+j}, s16
            """)
        a(f"""
        v_lshrrev_b32 v{t0}, 3, v0
        v_and_b32 v{t1}, 7, v0
        v_lshrrev_b32 v{t2}, 1, v{t0}
        v_xor_b32 v{t1}, v{t1}, v{t2}
        v_lshlrev_b32 v{t0}, 10, v{t0}
        """)
        for i in range(4):
            a(f"""
            v_xor_b32 v{t2}, {4*(i&1)}, v{t1}
            v_lshl_add_u32 v{XV+i}, v{t2}, 4, v{t0}
            v_add_u32 v{XV+i}, {7168*i}, v{XV+i}
            """)
        a(f"""
        s_mov_b32 s22, s19
        s_and_b32 s17, s22, 1
        s_lshl_b32 s17, s17, 1
        s_add_u32 s17, s17, s6
        s_lshl_b32 s16, s{S_RB}, 17
        s_lshl_b32 s8, s17, 15
        s_add_u32 s8, s8, s16
        s_lshl_b32 s10, s17, 12
        s_xor_b32 s17, s17, 2
        s_lshl_b32 s9, s17, 15
        s_add_u32 s9, s9, s16
        s_lshl_b32 s11, s17, 12
        s_lshl_b32 s22, s22, 1
        s_add_u32 s22, s22, s6
        s_and_b32 s22, s22, 7
        s_lshl_b32 s23, s22, 14
        s_add_u32 s23, s23, s16
        """)
        tail = {3: "S5 R5", 4: "S6 R6", 5: "S7 R7"}
        scheds = [
            {-1: "S0 S1 S2 R0 P3 P4", 0: "R1 P5 P6", 1: "R2 P7 S3", 2: "R3 S4 R4"},
            {-1: "S0 S1 S2 R0 R1", 0: "P3 P4 R2", 1: "P5 P6 P7 S3 R3", 2: "S4 R4"},
            {-1: "S0 R0 S1 R1", 0: "S2 R2", 1: "S3 R3", 2: "S4 R4"},
            {-1: "S0 R0 S1", 0: "R1 S2", 1: "R2 S3", 2: "R3 S4 R4"},
            {-1: "S0 R0 S1 S2 P3", 0: "R1 P4 P5", 1: "R2 P6 P7 S3", 2: "R3 S4 R4"},
            {-1: "S0 R0 S1 S2", 0: "R1 R2", 1: "S3 R3", 2: "S4 R4"},
            {-1: "S0 R0 S1 S2", 0: "R1 R2", 1: "S3 R3 P5", 2: "S4 R4 P6 P7"},
            {-1: "S0 R0 S1 S2", 0: "R1 R2 P3", 1: "S3 R3 P4 P5", 2: "S4 R4 P6 P7"},
        ]
        sched = dict(scheds[OPT.get("lsched", 5)])
        sched.update(tail)

        def issue(k):
            for tok in sched.get(k, "").split():
                st = int(tok[1:])
                if tok[0] == "S":
                    a.ext(kofs(st) + grp(st, 0) + grp(st, 1))
                elif tok[0] == "R":
                    a.ext(kofs(st))
                    for g in (2, 5, 3, 4):
                        a.ext(grp(st, g))
                    a.tag(f"st{st}")
                elif tok[0] == "P":
                    assert not ROT
                    a.ext(pref(st))
        a(f"""
        s_mov_b32 s{SRD_X+2}, {2048*512*2}
        s_mov_b32 s{SRD_X+3}, 0x00020000
        s_cmp_eq_u32 s6, 0
        s_waitcnt lgkmcnt(0)
        s_cselect_b32 s{SW}, s{S_WG}, s{S_WU}
        s_cselect_b32 s{SW+1}, s{S_WG+1}, s{S_WU+1}
        s_and_b32 s{SW+1}, s{SW+1}, 0xffff
        s_mov_b32 s{SRD_X}, s{S_U}
        s_and_b32 s{SRD_X+1}, s{S_U+1}, 0xffff
        """)
        issue(-1)
        a.ext(stamp(1))
        srd(a, SRD_WS, S_WS, WS_BYTES)
        srd(a, SRD_WD, S_WD, 1792 * 512 * 2)
        poll_setup()
        for sidx in range(9):
            if sidx < 8:
                a.wait(f"st{sidx}")
            a.ext(bstamp(2, 1 + sidx))
            a("s_barrier")
            if sidx in (0, 3):
                a.ext(stamp(2 + (0, 3).index(sidx)))
            issue(sidx)
            if sidx == 4:
                wd_setup()
            if sidx == 5:
                wd_ld(0, OPT.get("w5", 0))
            if sidx == 6:
                a(f"s_setprio {OPT.get('lprio', 1)}")
                a.ext(fu_ld)
                a.tag("fu")
                wd_ld(0, OPT.get("w6", 10))
            if sidx == 7:
                a(f"v_mov_b32 v1, {N_LDS}\nds_read_b32 v6, v1")
                a.wait("fu")
                a(f"s_waitcnt lgkmcnt(0)\nv_readfirstlane_b32 s{S_NONCE}, v6\ns_nop 3")
                a.ext(fu_chk)
                a("s_cselect_b32 s50, 1, 0")
                late_addr()
                u_load()
                gl_load()
                wd_ld(0, 28)
                a.wait("wd0_3")
                wd_ld(1, OPT.get("w7", 8))
            if sidx == 8:
                a.ext(stamp(4))
                wd_ld(1, 28)
                a(f"s_cmp_eq_u32 s50, 1\ns_cbranch_scc1 PU{sfx}_DONE")
                fu_addr()
                a.ext(spin(f"PU{sfx}", fu_ld, fu_chk, 16))
                p0 = len(a.L)
                u_load()
                gl_load("gl2")
                a.L[p0:] = [("NOCOUNT", x) if isinstance(x, str) and is_vmem(x) else x for x in a.L[p0:]]
                a("s_waitcnt vmcnt(0)")
                a(f"PU{sfx}_DONE:")
                wd_wr(0, 28)
                wd_wr(1, 28)
                gl_finish()
        a("s_waitcnt vmcnt(0) lgkmcnt(0)")
        a.ext(stamp(5))
        a("s_barrier")
    else:
        a("s_waitcnt lgkmcnt(0)")
        srd(a, SRD_WS, S_WS, WS_BYTES)
        srd(a, SRD_WD, S_WD, 1792 * 512 * 2)
        poll_setup()
        wd_setup()
        a("s_barrier")
        a(f"v_mov_b32 v6, {N_LDS}\nds_read_b32 v6, v6")
        a(f"s_waitcnt lgkmcnt(0)\nv_readfirstlane_b32 s{S_NONCE}, v6\ns_nop 3")
        a.ext(spin(f"PU{sfx}", fu_ld, fu_chk, 32))
        u_load()
        wd_ld(0, 28)
        wd_ld(1, 28)
        wd_wr(0, 6)
        gl_load()
        wd_wr(0, 28)
        wd_wr(1, 28)
        gl_finish()
        a("s_waitcnt vmcnt(0) lgkmcnt(0)")
        a.ext(stamp(5))
        a("s_barrier")
    a("s_branch L_CONVA")
    return resolve_vm(a.L)


def conv(a0, partB):
    a = Asm()
    KA, UA, YA = 2, 3, 5
    qs, outq = ([5, 6, 7], [6, 7]) if partB else ([0, 1, 2, 3, 4, 5], [0, 1, 2, 3, 4, 5])
    a.ext(stamp(6))
    a(f"""
    s_setprio {OPT.get("cprio", 3)}
    s_lshl_b32 s8, s6, 13
    s_add_u32 s8, s8, {KG_BASE + KARR + 32}
    s_mul_i32 s9, s6, {USZ}
    s_add_u32 s9, s9, {U_BASE + 16}
    v_lshrrev_b32 v6, 2, v0
    v_and_b32 v10, 7, v6
    v_and_b32 v6, 3, v6
    v_and_b32 v7, 3, v0
    v_lshrrev_b32 v8, 4, v0
    v_and_b32 v8, 1, v8
    v_lshrrev_b32 v9, 5, v0
    v_mul_u32_u24 v{UA}, {UPITCH}, v7
    v_sub_u32 v10, v10, v9
    v_lshl_add_u32 v{UA}, v10, 4, v{UA}
    v_add_u32 v{UA}, s9, v{UA}
    v_lshlrev_b32 v{KA}, 5, v8
    v_lshl_add_u32 v{KA}, v7, 3, v{KA}
    v_lshl_add_u32 v{KA}, v9, 6, v{KA}
    v_lshlrev_b32 v10, 3, v6
    v_sub_u32 v{KA}, v{KA}, v10
    v_add_u32 v{KA}, s8, v{KA}
    """)
    qmax = max(qs)
    nst = 4 * qmax + 4
    NU = 4
    UBUF = 8
    KT = 24
    ACC = KT + 4 * nst
    TMP = ACC + 16 * len(qs)
    assert TMP + 3 * len(qs) + 1 <= 256

    def acc(q):
        return ACC + 16 * qs.index(q)

    need = {}
    for i in range(nst):
        for q in qs:
            s_ = 4 * q + 3 - i
            if s_ >= 0 and s_ not in need:
                need[s_] = i

    def rd(i):
        L = [f"ds_read_b128 {v(UBUF+4*(i%NU),4)}, v{UA} offset:{32*i}"]
        for s_ in sorted(s for s in need if need[s] == i):
            L += [f"ds_read_b64_tr_b16 {v(KT+4*s_,2)}, v{KA} offset:{128*s_+32}",
                  f"ds_read_b64_tr_b16 {v(KT+4*s_+2,2)}, v{KA} offset:{128*s_}"]
        L.append(("LTAG", f"R{i}"))
        return L

    PF = NU - 1
    a.ext(rd(0))
    a.ext(rd(1))
    a(f"""
    v_and_b32 v4, 7, v0
    v_lshrrev_b32 v{YA}, 3, v0
    v_lshlrev_b32 v{YA}, 4, v{YA}
    v_lshl_add_u32 v{YA}, v4, 7, v{YA}
    v_mov_b32 v6, 0
    v_mov_b32 v7, s{S_NONCE}
    s_mov_b32 s12, 0
    s_mov_b32 s13, 0x80000000
    s_mov_b32 s14, 0
    s_mov_b32 s15, 0xc0000000
    s_mov_b32 s16, 0
    s_mov_b32 s17, 0xe0000000
    s_lshl_b32 s7, s2, 1
    s_add_u32 s7, s7, s6
    s_lshl_b32 s18, s7, 12
    s_add_u32 s18, s18, {Y_OFF}
    s_lshl_b32 s19, s2, 4
    s_add_u32 s19, s19, s6
    s_lshl_b32 s19, s19, 3
    s_add_u32 s19, s19, {FY_OFF + (4 if partB else 0)}
    """)

    def Y(q, g, rho):
        return acc(q) + 4 * g + rho

    dpp = "wave_ror:1 row_mask:0xf bank_mask:0xf"
    ctl = "row_mask:0xf bank_mask:0xf"

    def post(q):
        L = []
        Z = {}
        for g in (3, 2, 1, 0):
            for rho in (1, 2, 3):
                Z[g, rho] = TMP + 3 * qs.index(q) + rho - 1 if g == 3 else Y(q, g, rho)
                if g > 0:
                    prev = f"v{Y(q,g-1,rho)}"
                elif q > 0:
                    prev = f"v{Y(q-1,3,rho)}"
                else:
                    prev = "v6"
                L.append(f"v_cndmask_b32 v{Z[g,rho]}, v{Y(q,g,rho)}, {prev}, s[{10+2*rho}:{11+2*rho}]")
        for g in (3, 2, 1, 0):
            L.append(f"v_add_f32_dpp v{Z[g,2]}, v{Z[g,3]}, v{Z[g,2]} {dpp}")
        for g in (3, 2, 1, 0):
            L.append(f"v_add_f32_dpp v{Z[g,1]}, v{Z[g,2]}, v{Z[g,1]} {dpp}")
        for g in (3, 2, 1, 0):
            L.append(f"v_add_f32_dpp v{Y(q,g,0)}, v{Z[g,1]}, v{Y(q,g,0)} {dpp}")
        return L

    def stage(S_, D_, bit, stride):
        m = {0: 0xaaaaaaaa, 1: 0xcccccccc, 2: 0xf0f0f0f0}[bit]
        up = {0: "quad_perm:[1,0,3,2]", 1: "quad_perm:[2,3,0,1]", 2: "row_ror:12"}[bit]
        dn = {0: "quad_perm:[1,0,3,2]", 1: "quad_perm:[2,3,0,1]", 2: "row_ror:4"}[bit]
        L = [f"s_mov_b32 vcc_lo, {m:#x}", f"s_mov_b32 vcc_hi, {m:#x}"]
        idx = [i for i in range(len(S_)) if not (i // stride) & 1]
        L += [f"v_cndmask_b32_dpp v{D_[i+stride]}, v{S_[i]}, v{S_[i+stride]}, vcc {up} {ctl}" for i in idx]
        L += ["s_not_b64 vcc, vcc"]
        L += [f"v_cndmask_b32_dpp v{D_[i]}, v{S_[i+stride]}, v{S_[i]}, vcc {dn} {ctl}" for i in idx]
        return L

    def xpose(q):
        S0 = [Y(q - 1 + (g >> 2), g & 3, 0) for g in range(8)]
        free = [Y(qq, g, r) for qq in (q - 1, q) for g in range(3) for r in (1, 2, 3)]
        D0 = free[:8]
        S1 = free[8:12]
        D1 = free[12:16]
        D2 = [acc(q - 1) + i for i in range(4)]
        L = stage(S0, D0, 0, 1)
        L += [f"v_cvt_pk_bf16_f32 v{S1[g]}, v{D0[2*g]}, v{D0[2*g+1]}" for g in range(4)]
        L += stage(S1, D1, 1, 1)
        L += stage(D1, D2, 2, 2)
        L.append(f"buffer_store_dwordx4 {v(D2[0],4)}, v{YA}, {sr(SRD_WS)}, s18 offen offset:{(q-1)*512} sc1")
        return L

    pend = []
    FILL = OPT.get("cfill", 4)
    since = {}
    issued = 2
    for i in range(nst):
        a.L.append(("LWAIT", f"R{i}"))
        rl = []
        while issued < nst and issued <= i + (2 if i < 2 else PF):
            rl += rd(issued)
            issued += 1
        act = [q for q in qs if 4 * q + 3 - i >= 0]
        per = -(-len(rl) // len(act))
        for q in act:
            s_ = 4 * q + 3 - i
            c = "0" if i == 0 else v(acc(q), 16)
            a(f"v_mfma_f32_32x32x16_bf16 {v(acc(q),16)}, {v(UBUF+4*(i%NU),4)}, {v(KT+4*s_,4)}, {c}")
            a.ext(rl[:per])
            rl = rl[per:]
            if s_ == 0:
                since[q] = len(a.L)
            for qq in list(since):
                if len([x for x in a.L[since[qq]:] if isinstance(x, str)]) >= 14:
                    del since[qq]
                    if qq in outq:
                        pend += post(qq)
                        if (qq - outq[0]) & 1:
                            pend += xpose(qq)
            a.ext(pend[:FILL])
            pend = pend[FILL:]
    a.ext(stamp(7))
    a.ext(pend)
    a("s_nop 7\ns_nop 3")
    for qq in sorted(since):
        if qq in outq:
            a.ext(post(qq))
            if (qq - outq[0]) & 1:
                a.ext(xpose(qq))
    a.ext(stamp(8))
    a(f"""
    s_waitcnt vmcnt(0)
    s_mov_b64 exec, 1
    buffer_store_dword v7, v6, {sr(SRD_WS)}, s19 offen sc1
    """)
    a.ext(stamp_end())
    a0.ext(resolve_lds(a.L))


HEADER = open("cdna_kernels/" + NAME + ".s.ref").read().split("; Override launch")[0]


def main(path):
    a = Asm()
    prologue(a)
    gemm1(a)
    a("L_SPARE:")
    spare(a)
    a("L_GEMM2:")
    gemm2(a)
    a("L_LWAVE:")
    a(f"s_cmp_ge_u32 s{S_IDX}, 28\ns_cbranch_scc1 L_LWAVE_S")
    a.ext(lwave(True))
    a("L_LWAVE_S:")
    a.ext(lwave(False))
    a("L_KWAVE:")
    a("s_load_dwordx2 s[6:7], s[0:1], 8\ns_load_dwordx4 s[8:11], s[0:1], 16\ns_load_dwordx8 s[12:19], s[0:1], 32")
    a("s_waitcnt lgkmcnt(0)")
    srd(a, SRD_WS, S_WS, WS_BYTES)
    a(f"s_cmp_ge_u32 s{S_IDX}, 28\ns_cbranch_scc1 L_KWAVE_S")
    a.ext(kwave(True))
    a("L_KWAVE_S:")
    a.ext(kwave(False))
    a("L_CONVA:")
    conv(a, False)
    a("L_CONVB:")
    conv(a, True)
    a("L_END:\ns_endpgm")
    body = "\n".join(("" if ln.endswith(":") or ln.startswith(".") else "    ") + ln for ln in a.L)
    kn = NAME + "_kernel"
    txt = HEADER
    if OPT.get("list"):
        txt += f"; @launch kernel={kn} grid=(256,1,1) block=(512,1,1) lds=163840\n"
    else:
        txt += "; @launch grid=(256,1,1) block=(512,1,1) lds=163840\n"
    txt += '.amdgcn_target "amdgcn-amd-amdhsa--gfx950"\n.text\n'
    txt += f".globl {kn}\n.p2align 8\n.type {kn},@function\n{kn}:\n"
    txt += body + "\n"
    txt += f"""
.section .rodata,"a"
.p2align 6
.amdhsa_kernel {kn}
  .amdhsa_next_free_vgpr 256
  .amdhsa_next_free_sgpr 102
  .amdhsa_accum_offset 256
  .amdhsa_group_segment_fixed_size 0
  .amdhsa_kernarg_size 136
  .amdhsa_user_sgpr_count 2
  .amdhsa_user_sgpr_kernarg_segment_ptr 1
  .amdhsa_system_sgpr_workgroup_id_x 1
.end_amdhsa_kernel
"""
    open(path, "w").write(txt)


if __name__ == "__main__":
    for o in list(sys.argv):
        if o.startswith("--opt="):
            k, _, val = o[6:].partition(":")
            OPT[k] = int(val) if val else 1
            sys.argv.remove(o)
    if "--stamps" in sys.argv:
        STAMPS = True
        sys.argv.remove("--stamps")
    main(sys.argv[1] if len(sys.argv) > 1 else "cdna_kernels/" + NAME + ".s")
```

```python
import sys, struct

NAME = "gated_mix__ssm_conv_s4__swiglu_ffn__prompt"

H_OFF = 0x000000
DP = 4224
UT_OFF = 0x800000
Y_OFF = 0xA80000
KX_OFF = 0xD00000
GL_OFF = 0xF00000
ST_OFF = 0xF20000
FH_OFF = 0xF40000
FY_OFF = 0xF60000
FU_OFF = 0xF68000
FD_OFF = 0xF80000
WS_BYTES = 0x1000000

STAMPS = False
HDL = []
OPT = {}
ST_BASE = 78
NST = 12


def f32(x):
    return "0x%08x" % struct.unpack("<I", struct.pack("<f", x))[0]


LOG2E = 1.4426950408889634
LOG2E_HI = struct.unpack("<f", struct.pack("<f", LOG2E))[0]
LOG2E_LO = LOG2E - LOG2E_HI
LN2 = 0.6931471805599453
INV2PI = 0.15915494309189535


class Asm:
    def __init__(self):
        self.L = []

    def __call__(self, s):
        for line in s.strip().split("\n"):
            line = line.strip()
            if line:
                self.L.append(line)

    def ext(self, lines):
        self.L.extend(lines)

    def tag(self, n):
        self.L.append(("VMTAG", n))

    def wait(self, n):
        self.L.append(("VMWAIT", n))


def v(b, n=1):
    return f"v{b}" if n == 1 else f"v[{b}:{b+n-1}]"


def sr(b):
    return f"s[{b}:{b+3}]"


class RA:
    def __init__(self, start, end):
        self.p = start
        self.end = end

    def __call__(self, n=1, align=1):
        self.p = (self.p + align - 1) // align * align
        r = self.p
        self.p += n
        assert self.p <= self.end, "out of registers"
        return r


def stamp(k, force=False):
    if not STAMPS:
        return []
    assert k < NST
    if OPT.get("dbgbar") and 1 <= k <= 9 and not force:
        return []
    op = "s_memtime" if OPT.get("cyc") else "s_memrealtime"
    return [f"{op} s[{ST_BASE+2*k}:{ST_BASE+2*k+1}]"]


def bstamp(mode, k):
    return stamp(k, True) if OPT.get("dbgbar") == mode else []


def stamp_end():
    if not STAMPS:
        return ["s_endpgm"]
    L = stamp(10) + ["s_waitcnt vmcnt(0)"] + stamp(11)
    L += ["s_waitcnt lgkmcnt(0)", "s_mov_b64 exec, 1", "s_lshl_b32 s74, s2, 3", f"s_add_u32 s74, s74, s{S_WIDX}",
          "s_lshl_b32 s74, s74, 6", f"s_add_u32 s74, s74, {ST_OFF}", "v_mov_b32 v1, 0"]
    for k in range(NST):
        L.append(f"v_mov_b32 v{4+k}, s{ST_BASE+2*k}")
    for k in range(0, NST, 4):
        L.append(f"buffer_store_dwordx4 v[{4+k}:{7+k}], v1, {sr(SRD_WS)}, s74 offen offset:{4*k}")
    if OPT.get("hdbg"):
        lab = f"HD{len(HDL)}"
        HDL.append(lab)
        L += [f"v_not_b32 v20, v4", f"global_atomic_umax v1, v20, s[{S_DBG}:{S_DBG+1}] offset:56",
              f"global_atomic_umax v1, v15, s[{S_DBG}:{S_DBG+1}] offset:60",
              f"s_cmp_lg_u32 s2, {OPT['hdbg']}", f"s_cbranch_scc1 {lab}", f"s_cmp_lg_u32 s{S_WIDX}, 0", f"s_cbranch_scc1 {lab}"]
        words = [1, 2, 3, 4, 5, 6, 7, 9, 10, 11, 12]
        for k in range(1, NST):
            L += [f"v_sub_u32 v20, v{4+k}, v4", f"global_store_dword v1, v20, s[{S_DBG}:{S_DBG+1}] offset:{4*words[k-1]}", "s_nop 1"]
        L += [f"global_store_dword v1, v4, s[{S_DBG}:{S_DBG+1}] offset:52"]
        L.append(f"{lab}:")
    L.append("s_endpgm")
    return L


def is_vmem(line):
    return line.startswith("buffer_") or line.startswith("global_")


def resolve_vm(lines):
    out = []
    count = 0
    tags = {}
    done = -1
    for ln in lines:
        if isinstance(ln, tuple):
            if ln[0] == "VMTAG":
                tags[ln[1]] = count
            elif ln[0] == "VMWAIT":
                if tags[ln[1]] <= done:
                    continue
                n = count - tags[ln[1]]
                assert 0 <= n <= 63, n
                out.append(f"s_waitcnt vmcnt({n})")
                done = tags[ln[1]]
            elif ln[0] == "VMRESET":
                done = count
            elif ln[0] == "NOCOUNT":
                out.append(ln[1])
            else:
                raise ValueError(ln)
        else:
            if is_vmem(ln):
                count += 1
            out.append(ln)
    return out


def resolve_lds(lines):
    out = []
    count = 0
    tags = {}
    for ln in lines:
        if isinstance(ln, tuple):
            if ln[0] == "LTAG":
                tags[ln[1]] = count
            elif ln[0] == "LWAIT":
                out.append(f"s_waitcnt lgkmcnt({min(15, count - tags[ln[1]])})")
            else:
                raise ValueError(ln)
        else:
            if ln.startswith("ds_"):
                count += 1
            out.append(ln)
    return out


SLOT = 49152
KG_BASE = 147456
KARR = 3584
U_BASE = 131072
UPITCH = 1344
USZ = 4 * UPITCH
YB_BASE = U_BASE + 2 * USZ
RING2 = 32768

S_U, S_ARE, S_AIM, S_BRE, S_BIM, S_CRE, S_CIM, S_LDT = 4, 6, 8, 10, 12, 14, 16, 18
S_DS = 20
S_WG, S_WU, S_WD, S_GW = 24, 26, 28, 30
S_OUT, S_DBG, S_WS = 32, 34, 36
S_WIDX, S_XCD, S_IDX, S_RB, S_CB, S_PHI = 38, 39, 40, 41, 42, 43
SRD_X, SRD_WG, SRD_WU, SRD_WS, SRD_WD, SRD_OUT = 44, 48, 52, 56, 60, 64


def srd(a, d, base, nbytes):
    a(f"""
    s_mov_b32 s{d}, s{base}
    s_and_b32 s{d+1}, s{base+1}, 0xffff
    s_mov_b32 s{d+2}, {nbytes}
    s_mov_b32 s{d+3}, 0x00020000
    """)


def mapping(a):
    a(f"""
    s_and_b32 s{S_XCD}, s2, 7
    s_lshr_b32 s{S_IDX}, s2, 3
    """)
    if OPT.get("map", 1) == 0:
        a(f"""
        s_and_b32 s68, s{S_IDX}, 3
        s_lshr_b32 s69, s{S_IDX}, 2
        s_lshr_b32 s{S_RB}, s{S_XCD}, 1
        s_lshl_b32 s{S_RB}, s{S_RB}, 2
        s_add_u32 s{S_RB}, s{S_RB}, s68
        s_and_b32 s{S_CB}, s{S_XCD}, 1
        s_mul_i32 s{S_CB}, s{S_CB}, 7
        s_add_u32 s{S_CB}, s{S_CB}, s69
        s_lshl_b32 s{S_PHI}, s68, 1
        s_add_u32 s{S_PHI}, s{S_PHI}, s69
        s_and_b32 s{S_PHI}, s{S_PHI}, 7
        """)
    else:
        a(f"""
        s_and_b32 s70, s{S_XCD}, 1
        s_lshl_b32 s70, s70, 2
        s_and_b32 s68, s{S_IDX}, 7
        s_lshr_b32 s69, s{S_IDX}, 3
        s_add_u32 s71, s69, s70
        s_add_u32 s72, s68, s70
        s_cmp_ge_u32 s{S_IDX}, 24
        s_cselect_b32 s71, 3, s71
        s_cselect_b32 s68, s72, s68
        s_lshr_b32 s{S_CB}, s{S_XCD}, 1
        s_and_b32 s{S_CB}, s{S_CB}, 1
        s_mul_i32 s{S_CB}, s{S_CB}, 7
        s_add_u32 s{S_CB}, s{S_CB}, s71
        s_lshr_b32 s{S_RB}, s{S_XCD}, 2
        s_lshl_b32 s{S_RB}, s{S_RB}, 3
        s_add_u32 s{S_RB}, s{S_RB}, s68
        s_lshl_b32 s{S_PHI}, s69, 1
        s_add_u32 s{S_PHI}, s{S_PHI}, s68
        s_and_b32 s{S_PHI}, s{S_PHI}, 7
        """)


def prologue(a):
    a("""
    s_cmp_ge_u32 s2, 256
    s_cbranch_scc1 L_END
    """)
    if STAMPS:
        a.ext([f"s_mov_b32 s{ST_BASE+2*k}, 0" for k in range(NST)])
    a.ext(stamp(0))
    a(f"""
    s_load_dwordx2 s[4:5], s[0:1], 0
    s_load_dwordx8 s[24:31], s[0:1], 80
    s_load_dwordx2 s[36:37], s[0:1], 128
    s_load_dwordx4 s[32:35], s[0:1], 112
    s_load_dwordx2 s[20:21], s[0:1], 64
    v_lshrrev_b32 v1, 6, v0
    v_and_b32 v0, 63, v0
    s_nop 0
    v_readfirstlane_b32 s{S_WIDX}, v1
    """)
    mapping(a)
    a(f"""
    s_cmp_ge_u32 s{S_WIDX}, 6
    s_cbranch_scc1 L_KWAVE
    s_cmp_ge_u32 s{S_WIDX}, 4
    s_cbranch_scc1 L_LWAVE
    s_waitcnt lgkmcnt(0)
    """)
    srd(a, SRD_X, S_U, 2048 * 512 * 2)
    srd(a, SRD_WS, S_WS, WS_BYTES)
    srd(a, SRD_WD, S_WD, 1792 * 512 * 2)
    srd(a, SRD_OUT, S_OUT, 2048 * 512 * 2)
    cp = OPT.get("cpf", 1)
    if cp:
        a(f"""
        s_getpc_b64 s[70:71]
        L_PC:
        s_sub_u32 s70, s70, L_PC-{NAME}_kernel
        s_subb_u32 s71, s71, 0
        """)
        if cp == 1:
            a(f"""
            s_lshl_b32 s72, s{S_IDX}, 2
            s_add_u32 s72, s72, s{S_WIDX}
            s_lshl_b32 s72, s72, 9
            v_and_b32 v2, 7, v0
            v_lshlrev_b32 v2, 6, v2
            v_add_u32 v2, s72, v2
            v_min_u32 v2, L_END-{NAME}_kernel, v2
            global_load_dword v127, v2, s[70:71]
            """)
        else:
            a(f"""
            s_lshl_b32 s72, s{S_WIDX}, 14
            v_lshlrev_b32 v2, 7, v0
            v_add_u32 v2, s72, v2
            v_add_u32 v3, 8192, v2
            v_min_u32 v2, L_END-{NAME}_kernel, v2
            v_min_u32 v3, L_END-{NAME}_kernel, v3
            global_load_dword v64, v2, s[70:71]
            global_load_dword v65, v3, s[70:71]
            """)
    a(f"""
    s_cmp_ge_u32 s{S_IDX}, 28
    s_cbranch_scc1 L_SPARE
    """)


VL16 = 1
XD = 8
(VD0, VD1, DA0, DA1, VEP, VPH, VFL, VG, VY, VYW, VYT, VW1, VW2, VW3, VR1, VR23) = range(112, 128)
YT_BASE = YB_BASE
G_LDS = YB_BASE
N_LDS = YB_BASE + 256
def n1():
    return OPT.get("n1", 14)


def rot_scalar(dst, tmp):
    return f"""
    s_lshr_b32 s{dst}, s{S_IDX}, 1
    s_and_b32 s{dst}, s{dst}, 2
    s_add_u32 s{dst}, s{dst}, s{S_IDX}
    s_and_b32 s{dst}, s{dst}, 3
    s_mul_i32 s{dst}, s{dst}, 7
    """


def rb64_scalar(dst, tmp):
    return f"""
    s_lshl_b32 s{dst}, s{S_XCD}, 2
    s_and_b32 s{tmp}, s{S_IDX}, 3
    s_add_u32 s{dst}, s{dst}, s{tmp}
    """


def cb64_scalar(dst, tmp):
    return f"""
    s_lshr_b32 s{dst}, s{S_IDX}, 2
    s_lshr_b32 s{tmp}, s{S_WD}, 7
    s_sub_u32 s{dst}, s{dst}, s{tmp}
    s_add_u32 s{dst}, s{dst}, {OPT.get("cbs", 4)}
    s_and_b32 s{dst}, s{dst}, 7
    """


def gemm2_setup(a):
    a(rb64_scalar(6, 13))
    a(cb64_scalar(7, 13))
    a(f"""
    s_lshl_b32 s17, s6, 6
    s_lshr_b32 s23, s{S_WIDX}, 1
    s_lshl_b32 s13, s23, 5
    s_add_u32 s17, s17, s13
    s_lshl_b32 s18, s7, 6
    s_and_b32 s14, s{S_WIDX}, 1
    s_lshl_b32 s13, s14, 5
    s_add_u32 s18, s18, s13
    v_lshrrev_b32 v5, 5, v0
    v_and_b32 v6, 31, v0
    v_add_u32 v6, s17, v6
    v_lshlrev_b32 v7, 4, v5
    v_add_u32 v7, s18, v7
    v_lshlrev_b32 v7, 1, v7
    v_lshl_add_u32 v{VEP}, v6, 10, v7
    s_lshl_b32 s8, s{S_WIDX}, 15
    s_lshl_b32 s9, s6, 1
    s_add_u32 s9, s9, s23
    s_mul_i32 s9, s9, 112
    s_mul_i32 s13, s{S_WIDX}, 28
    s_add_u32 s9, s9, s13
    s_lshl_b32 s9, s9, 10
    s_mul_i32 s22, s23, {224*1024}
    s_sub_u32 s22, {112*1024}, s22
    s_lshl_b32 s10, s13, 14
    s_lshl_b32 s13, s7, 7
    s_add_u32 s10, s10, s13
    """)
    a(rot_scalar(12, 13))
    a(f"""
    s_add_u32 s11, s12, {n1()}
    s_cmp_ge_u32 s11, 28
    s_cselect_b32 s13, 28, 0
    s_sub_u32 s11, s11, s13
    s_lshl_b32 s15, s6, 5
    s_mul_i32 s13, s{S_WIDX}, 7
    s_add_u32 s15, s15, s13
    s_lshl_b32 s15, s15, 7
    s_add_u32 s15, s15, {FH_OFF}
    s_lshl_b32 s13, s7, 2
    s_add_u32 s13, s13, s{S_WIDX}
    s_lshl_b32 s16, s13, 10
    s_add_u32 s16, s16, {FY_OFF}
    s_mul_i32 s19, s13, {16*DP}
    s_lshl_b32 s13, s6, 7
    s_add_u32 s19, s19, s13
    s_add_u32 s19, s19, {Y_OFF}
    v_lshlrev_b32 v{VL16}, 4, v0
    v_lshrrev_b32 v2, 3, v0
    v_and_b32 v3, 7, v0
    v_mul_u32_u24 v{VY}, {DP}, v2
    v_lshl_add_u32 v{VY}, v3, 4, v{VY}
    v_lshrrev_b32 v4, 1, v2
    v_and_b32 v4, 1, v4
    v_lshlrev_b32 v4, 2, v4
    v_xor_b32 v3, v3, v4
    v_lshlrev_b32 v{VD0}, 10, v2
    v_lshl_add_u32 v{VD0}, v3, 4, v{VD0}
    v_add_u32 v{VD1}, {8192-1024}, v{VD0}
    v_lshlrev_b32 v{VYW}, 7, v2
    v_lshl_add_u32 v{VYW}, v3, 4, v{VYW}
    v_add_u32 v{VYW}, s8, v{VYW}
    v_lshrrev_b32 v2, 2, v0
    v_and_b32 v2, 3, v2
    v_and_b32 v3, 3, v0
    v_lshrrev_b32 v4, 4, v0
    v_and_b32 v4, 1, v4
    v_lshl_add_u32 v6, v5, 2, v2
    v_lshlrev_b32 v6, 7, v6
    v_and_b32 v7, 1, v3
    v_lshl_add_u32 v6, v7, 5, v6
    v_lshl_add_u32 v6, v4, 4, v6
    v_lshrrev_b32 v7, 1, v3
    v_lshl_add_u32 v6, v7, 3, v6
    v_add_u32 v6, s8, v6
    v_lshrrev_b32 v7, 1, v2
    v_xor_b32 v7, s14, v7
    v_lshl_add_u32 v{DA0}, v7, 6, v6
    v_xor_b32 v7, 1, v7
    v_lshl_add_u32 v{DA1}, v7, 6, v6
    s_lshl_b32 s13, s14, 1
    v_add_u32 v6, s13, v5
    v_lshlrev_b32 v{VYT}, 15, v6
    v_lshl_add_u32 v{VYT}, v2, 7, v{VYT}
    v_lshrrev_b32 v7, 1, v2
    v_xor_b32 v7, s23, v7
    v_lshl_add_u32 v{VYT}, v7, 6, v{VYT}
    v_lshl_add_u32 v{VYT}, v4, 5, v{VYT}
    v_lshl_add_u32 v{VYT}, v3, 3, v{VYT}
    v_min_u32 v{VPH}, 6, v0
    v_lshlrev_b32 v{VPH}, 7, v{VPH}
    v_lshrrev_b32 v2, 2, v0
    v_and_b32 v2, 7, v2
    v_lshlrev_b32 v{VFL}, 7, v2
    v_lshl_add_u32 v{VFL}, v3, 2, v{VFL}
    v_and_b32 v{VG}, 31, v0
    s_lshl_b32 s13, s23, 5
    v_add_u32 v{VG}, s13, v{VG}
    v_lshlrev_b32 v{VG}, 2, v{VG}
    v_add_u32 v{VG}, {G_LDS}, v{VG}
    v_add_u32 v{VW1}, s8, v{VL16}
    s_xor_b32 s13, s{S_WIDX}, 1
    s_lshl_b32 s13, s13, 15
    v_add_u32 v{VR1}, s13, v{VL16}
    s_xor_b32 s13, s{S_WIDX}, 2
    s_lshl_b32 s13, s13, 15
    v_add_u32 v{VW2}, s13, v{VL16}
    s_xor_b32 s13, s{S_WIDX}, 3
    s_lshl_b32 s13, s13, 15
    v_add_u32 v{VW3}, s13, v{VL16}
    """)


def gemm1(a):
    XA = 16
    WA = 28
    BUFS = [64, 88, 40]
    ACC = 128

    def acc(mat, t, tt):
        return ACC + 16 * (mat * 4 + t * 2 + tt)

    def wf(b, mat, t):
        return BUFS[b] + 4 * (mat * 2 + t)

    def xf(b, tt):
        return BUFS[b] + 16 + 4 * tt

    pt = OPT.get("pt", 0)
    if pt:
        gran = {1: 21, 2: 18, 3: 16}[pt]
        a(f"""
        s_cmp_lg_u32 s{S_WIDX}, 0
        s_cbranch_scc1 L_NOTOUCH
        v_lshlrev_b32 v2, {gran}, v0
        v_mov_b32 v3, 0
        """)
        for i in range(max(1, (16 << 20) >> (gran + 6))):
            a(f"s_mov_b32 s13, {i << (gran + 6)}")
            a(f"buffer_load_dword v64, v2, {sr(SRD_WS)}, s13 offen")
        a(f"""
        buffer_load_dword v65, v2, {sr(SRD_OUT)}, 0 offen
        buffer_load_dword v66, v2, {sr(SRD_WD)}, 0 offen
        global_load_dword v67, v3, s[{S_DS}:{S_DS+1}]
        global_load_dword v68, v3, s[{S_DBG}:{S_DBG+1}] offset:128
        s_waitcnt vmcnt(0)
        L_NOTOUCH:
        """)
    gemm2_setup(a)
    a(f"""
    s_lshr_b32 s68, s{S_WIDX}, 1
    s_and_b32 s69, s{S_WIDX}, 1
    v_and_b32 v7, 31, v0
    v_lshrrev_b32 v2, 5, v0
    v_lshrrev_b32 v3, 1, v0
    v_and_b32 v3, 7, v3
    s_lshl_b32 s70, s68, 13
    v_lshlrev_b32 v4, 7, v7
    v_add_u32 v4, s70, v4
    """)
    for ks in range(4):
        a(f"""
        v_add_u32 v5, {2*ks}, v2
        v_xor_b32 v5, v5, v3
        v_lshl_add_u32 v{XA+ks}, v5, 4, v4
        """)
    a(f"""
    v_lshrrev_b32 v7, 2, v0
    v_and_b32 v7, 3, v7
    v_and_b32 v3, 3, v0
    v_lshrrev_b32 v4, 4, v0
    v_and_b32 v4, 1, v4
    v_lshl_add_u32 v5, v2, 3, v7
    v_lshlrev_b32 v5, 8, v5
    v_lshl_add_u32 v5, v4, 5, v5
    v_lshl_add_u32 v5, v3, 3, v5
    s_lshl_b32 s70, s69, 1
    """)
    for t in range(2):
        a(f"""
        s_add_u32 s71, s70, {t}
        v_xor_b32 v6, s71, v7
        v_lshl_add_u32 v{WA+t}, v6, 6, v5
        """)
    for sl in (1, 2):
        for ks in range(4):
            a(f"v_add_u32 v{XA+4*sl+ks}, {sl*SLOT}, v{XA+ks}")
        for t in range(2):
            a(f"v_add_u32 v{WA+2*sl+t}, {sl*SLOT}, v{WA+t}")
    a(f"""
    s_lshl_b32 s70, s{S_RB}, 2
    s_lshl_b32 s71, s68, 1
    s_add_u32 s70, s70, s71
    s_mul_i32 s70, s70, 112
    s_lshl_b32 s71, s{S_CB}, 3
    s_add_u32 s70, s70, s71
    s_lshl_b32 s71, s69, 2
    s_add_u32 s70, s70, s71
    s_lshl_b32 s70, s70, 10
    s_add_u32 s71, s70, {112*1024}
    s_lshl_b32 s3, s{S_RB}, 1
    s_add_u32 s3, s3, s68
    s_lshl_b32 s3, s3, 5
    s_lshl_b32 s72, s{S_CB}, 1
    s_add_u32 s3, s3, s72
    s_add_u32 s3, s3, s69
    s_lshl_b32 s3, s3, 7
    s_add_u32 s3, s3, {FH_OFF}
    s_mov_b32 s72, {f32(-LOG2E)}
    s_mov_b32 s73, {f32(-LOG2E)}
    """)

    def reads(n):
        st, ks = n >> 2, n & 3
        sl = st % 3
        b = n % 3
        r = []
        r.append(f"ds_read_b128 {v(xf(b,0),4)}, v{XA+4*sl+ks}")
        for mat in range(2):
            for t in range(2):
                for h2 in range(2):
                    off = 16384 * (1 + mat) + ks * 4096 + h2 * 1024
                    r.append(f"ds_read_b64_tr_b16 {v(wf(b,mat,t)+2*h2,2)}, v{WA+2*sl+t} offset:{off}")
                if mat == 0 and t == 0:
                    r.append(f"ds_read_b128 {v(xf(b,1),4)}, v{XA+4*sl+ks} offset:4096")
        return r

    T = 16

    def epi(p):
        t, tt = p >> 1, p & 1
        G, U = acc(0, t, tt), acc(1, t, tt)
        o = 32 + 8 * p
        L = []
        for h in range(2):
            R = range(8 * h, 8 * h + 8)
            L += [f"v_pk_mul_f32 {v(T+i,2)}, {v(G+i,2)}, s[72:73]" for i in R[::2]]
            for i in R[::2]:
                L += [f"v_exp_f32 v{T+i}, v{T+i}", f"v_exp_f32 v{T+i+1}, v{T+i+1}",
                      f"v_pk_mul_f32 {v(U+i,2)}, {v(G+i,2)}, {v(U+i,2)}"]
            L += [f"v_pk_add_f32 {v(T+i,2)}, {v(T+i,2)}, 1.0 op_sel_hi:[1,0]" for i in R[::2]]
            L += [f"v_rcp_f32 v{T+i}, v{T+i}" for i in R]
            L += [f"v_pk_mul_f32 {v(U+i,2)}, {v(U+i,2)}, {v(T+i,2)}" for i in R[::2]]
            for i in range(4):
                L.append(f"v_cvt_pk_bf16_f32 v{o+4*h+i}, v{U+8*h+2*i}, v{U+8*h+2*i+1}")
            L.append(f"buffer_store_dwordx4 {v(o+4*h,4)}, v{VL16}, {sr(SRD_WS)}, s{70+tt} offen offset:{t*2048+1024*h} sc1")
        return L

    a("s_barrier")
    a.ext(stamp(1))
    a.ext(bstamp(2, 1))
    a.ext(reads(0))
    a.ext(reads(1))
    extra = []
    XL = OPT.get("xl", 13)
    for n in range(32):
        b = n % 3
        if (n & 3) == 2:
            a("s_waitcnt lgkmcnt(0)")
            a.ext(bstamp(2, 2 + (n >> 2)))
            a("s_barrier")
            if n == 22:
                a.ext(stamp(2))
        elif (n & 3) != 3:
            a("s_waitcnt lgkmcnt(10)")
        rd = reads(n + 2) if n + 2 < 32 else []
        mf = []
        for t in range(2):
            for tt in range(2):
                for mat in range(2):
                    c = "0" if n == 0 else v(acc(mat, t, tt), 16)
                    mf.append(f"v_mfma_f32_32x32x16_bf16 {v(acc(mat,t,tt),16)}, {v(wf(b,mat,t),4)}, {v(xf(b,tt),4)}, {c}")
        if n == 30:
            extra = [f"v_mov_b32 v2, {N_LDS}", "ds_read_b32 v3, v2"]
        for i, m in enumerate(mf):
            a(m)
            a.ext(rd[2 * i:2 * i + 2])
            if i >= 4:
                a.ext(extra[:3])
                extra = extra[3:]
    assert not extra
    a.ext(stamp(3))
    if OPT.get("eprio", 0):
        a(f"s_setprio {OPT['eprio']}")
    a(f"s_waitcnt lgkmcnt(0)\nv_readfirstlane_b32 s{S_NONCE}, v3\ns_nop 5")
    for p in range(4):
        a.ext(epi(p))
    a.ext(stamp(4))
    a("s_branch L_GEMM2")


def spare(a):
    R = 16
    O = 80
    GWv = 112
    SUM = 120
    a(f"""
    s_sub_u32 s68, s{S_IDX}, 28
    s_lshl_b32 s3, s{S_XCD}, 2
    s_add_u32 s3, s3, s68
    s_lshl_b32 s3, s3, 5
    s_add_u32 s3, s3, s{S_WIDX}
    s_lshl_b32 s3, s3, 2
    s_add_u32 s3, s3, {FU_OFF}
    s_lshl_b32 s68, s68, 2
    s_add_u32 s68, s68, s{S_WIDX}
    s_lshr_b32 s69, s68, 1
    s_mov_b32 s74, s{S_XCD}
    v_and_b32 v1, 7, v0
    v_lshrrev_b32 v2, 3, v0
    v_lshlrev_b32 v3, 15, v2
    v_lshl_add_u32 v3, v1, 4, v3
    v_mul_u32_u24 v4, {8*DP}, v1
    v_lshl_add_u32 v4, v2, 4, v4
    v_lshlrev_b32 v5, 4, v1
    v_lshlrev_b32 v6, 2, v0
    s_mov_b32 s70, 0x05040100
    s_mov_b32 s71, 0x07060302
    s_lshl_b32 s72, s69, 7
    v_add_u32 v7, s72, v5
    global_load_dwordx4 {v(GWv,4)}, v7, s[{S_GW}:{S_GW+1}]
    """)
    for i in range(2):
        b = 6 + 4 * i
        a(f"""
        s_lshl_b32 s73, s68, 1
        s_add_u32 s73, s73, {i}
        s_and_b32 s73, s73, 3
        s_lshl_b32 s{b}, s74, 18
        s_lshl_b32 s75, s73, 10
        s_add_u32 s{b}, s{b}, s75
        s_add_u32 s{b}, s{b}, s72
        s_mul_i32 s{b+1}, s69, {64*DP}
        s_add_u32 s{b+1}, s{b+1}, s75
        s_lshl_b32 s75, s74, 7
        s_add_u32 s{b+1}, s{b+1}, s75
        s_add_u32 s{b+1}, s{b+1}, {UT_OFF}
        s_lshl_b32 s{b+2}, s74, 8
        s_lshl_b32 s75, s73, 11
        s_add_u32 s{b+2}, s{b+2}, s75
        s_lshl_b32 s75, s69, 13
        s_add_u32 s{b+2}, s{b+2}, s75
        s_add_u32 s{b+2}, s{b+2}, {GL_OFF}
        """)
        for j in range(8):
            a(f"buffer_load_dwordx4 {v(R+32*i+4*j,4)}, v3, {sr(SRD_X)}, s{b} offen")
            if j < 7:
                a(f"s_add_u32 s{b}, s{b}, 4096")
    a("v_mov_b32 v2, 0")
    for i in range(2):
        b = 6 + 4 * i
        a("s_waitcnt vmcnt(8)")
        if i == OPT.get("s0", 3):
            a("s_barrier")
        Ri = R + 32 * i
        for e in range(8):
            for jj in range(4):
                sel = 71 if (e & 1) else 70
                a(f"v_perm_b32 v{O+4*e+jj}, v{Ri+4*(2*jj+1)+(e>>1)}, v{Ri+4*(2*jj)+(e>>1)}, s{sel}")
            a(f"buffer_store_dwordx4 {v(O+4*e,4)}, v4, {sr(SRD_WS)}, s{b+1} offen sc1")
            if e < 7:
                a(f"s_add_u32 s{b+1}, s{b+1}, {DP}")
    a(nonce_ld(3, 2))
    if OPT.get("s0", 3) == 2:
        a("s_barrier")
    for i in range(2):
        b = 6 + 4 * i
        Ri = R + 32 * i
        for j in range(8):
            a(f"v_mov_b32 v{SUM+j}, 0")
        for q in range(4):
            for j in range(8):
                a(f"v_dot2c_f32_bf16 v{SUM+j}, v{Ri+4*j+q}, v{GWv+q}")
        a("s_nop 3")
        for ctl in ("quad_perm:[1,0,3,2]", "quad_perm:[2,3,0,1]", "row_half_mirror"):
            for j in range(8):
                a(f"v_add_f32_dpp v{SUM+j}, v{SUM+j}, v{SUM+j} {ctl} row_mask:0xf bank_mask:0xf")
        for j in range(1, 8):
            a(f"""
            v_cmp_eq_u32 vcc, {j}, v1
            s_nop 1
            v_cndmask_b32 v{SUM}, v{SUM}, v{SUM+j}, vcc
            """)
        a(f"buffer_store_dword v{SUM}, v6, {sr(SRD_WS)}, s{b+2} offen sc1")
        a("s_nop 1")
    a.ext(stamp(1))
    if OPT.get("s0", 3) == 3:
        a("s_barrier")
    a("s_waitcnt vmcnt(0)")
    a.ext(plain(nonce_get("NS", 3, 2)))
    a(f"""
    s_mov_b32 s76, s{S_NONCE}
    s_mov_b64 exec, 1
    buffer_store_dword v3, v2, {sr(SRD_WS)}, s3 offen sc1
    s_mov_b64 exec, -1
    s_sub_u32 s3, s3, {FU_OFF}
    s_lshl_b32 s3, s3, 5
    s_add_u32 s3, s3, {FD_OFF}
    v_mov_b32 v2, {N_LDS}
    ds_write_b32 v2, v3
    s_waitcnt lgkmcnt(0)
    """)
    a.ext(stamp(2))
    a("s_barrier")
    gemm2_setup(a)
    a(f"s_mov_b32 s{S_NONCE}, s76\ns_waitcnt vmcnt(0)")


def spin(label, loads, checks, sleep=2):
    L = [f"{label}_SPIN:", f"s_sleep {sleep}"]
    L += [("NOCOUNT", x) for x in loads]
    L += ["s_waitcnt vmcnt(0)"]
    L += ["s_sub_u32 s77, s77, 1", "s_cmp_eq_u32 s77, 0", f"s_cbranch_scc1 {label}_OK"]
    L += [f"{label}_CHK:"] + checks
    L += [f"s_cbranch_scc0 {label}_SPIN", f"{label}_OK:"]
    return L


S_NONCE = 23


def nonce_ld(vd, vz):
    return f"global_load_dword v{vd}, v{vz}, s[{S_DBG}:{S_DBG+1}] sc1"


def nonce_get(label, vd, vz, sleep=8):
    L = ["s_mov_b32 s77, 0x100000", f"s_branch {label}_CHK"]
    L += spin(label, [nonce_ld(vd, vz)], [f"v_cmp_ne_u32 vcc, 0, v{vd}", "s_nop 3", "s_cmp_eq_u64 vcc, exec"], sleep)
    L += [f"v_readfirstlane_b32 s{S_NONCE}, v{vd}", "s_nop 3"]
    return L


def plain(lines):
    return [x[1] if isinstance(x, tuple) else x for x in lines]


def gemm2(a0):
    a = Asm()
    NS = 28
    NP = 12
    NR = 16
    DH = 6
    ACC = 192
    WF = 16
    WFR = 128
    HB = 144
    N1 = n1()
    NF = OPT.get("nf", 2)
    PP1 = OPT.get("pp1", 21)
    N2 = OPT.get("n2", 28)

    def acc(t, tt):
        return ACC + 16 * (t + 2 * tt)

    def wload(i):
        sl = i % NR
        return [
            "s_lshl_b32 s14, s11, 14", f"s_add_u32 m0, s8, {sl*2048}", "s_add_u32 s14, s14, s10",
            f"buffer_load_dwordx4 v{VD0}, {sr(SRD_WD)}, s14 offen lds",
            "s_add_u32 s11, s11, 1", "s_cmp_ge_u32 s11, 28", "s_cselect_b32 s11, 0, s11",
            f"buffer_load_dwordx4 v{VD1}, {sr(SRD_WD)}, s14 offen offset:1024 lds",
            ("VMTAG", f"W{i}"),
        ]

    def hload(i):
        sl = i % DH
        return [
            "s_lshl_b32 s13, s12, 10", "s_add_u32 s13, s13, s9",
            f"buffer_load_dwordx4 {v(HB+8*sl,4)}, v{VL16}, {sr(SRD_WS)}, s13 offen sc1",
            "s_add_u32 s13, s13, s22",
            "s_add_u32 s12, s12, 1", "s_cmp_ge_u32 s12, 28", "s_cselect_b32 s12, 0, s12",
            f"buffer_load_dwordx4 {v(HB+8*sl+4,4)}, v{VL16}, {sr(SRD_WS)}, s13 offen sc1",
            ("VMTAG", f"H{i}"),
        ]

    def wfrag(i):
        return WF + 8 * i if i < NP else WFR + 8 * (i & 1)

    def trd(i):
        sl = i % NR
        r = [("VMWAIT", f"W{i}")] if i >= N1 else []
        for t in range(2):
            for h2 in range(2):
                r.append(f"ds_read_b64_tr_b16 {v(wfrag(i)+4*t+2*h2,2)}, v{DA0+t} offset:{sl*2048+h2*1024}")
        return r

    a(f"""
    s_setprio 2
    v_mov_b32 v2, 0
    v_mov_b32 v3, s{S_NONCE}
    s_mov_b32 s77, 0x100000
    s_waitcnt vmcnt(0)
    s_mov_b64 exec, 1
    buffer_store_dword v3, v2, {sr(SRD_WS)}, s3 offen sc1
    s_mov_b64 exec, -1
    """)
    a.ext(stamp(5))
    a("s_barrier")
    a.ext(stamp(6))
    ph_ld = f"buffer_load_dword v4, v{VPH}, {sr(SRD_WS)}, s15 offen sc1"

    def wl(i):
        a.ext(wload(i))
        if i == PP1:
            a(ph_ld)
            a.tag("P1")
    assert NP <= N1
    for i in range(N1, NR):
        wl(i)
    for i in range(NP + 1):
        if i < NP:
            a.ext(trd(i))
        if i >= 1 and NR + i - 1 < N2:
            a(f"s_waitcnt lgkmcnt({4 if i < NP else 0})")
            wl(NR + i - 1)
    a.ext(stamp(7))
    a.wait("P1")
    a("s_branch PH_CHK")
    a.ext(spin("PH", [ph_ld], [f"v_cmp_eq_u32 vcc, s{S_NONCE}, v4", "s_nop 3", "s_cmp_eq_u64 vcc, exec"]))
    a.ext(stamp(8))
    a.ext(bstamp(3, 1))
    for i in range(DH):
        a.ext(hload(i))
    a("s_waitcnt lgkmcnt(0)")

    YR, FL, YT, EG = 80, 2, WFR, 6
    fl_ld = [f"buffer_load_dword v{FL}, v{VFL}, {sr(SRD_WS)}, s16 offen sc1"]
    chk = [f"v_cmp_eq_u32 vcc, s{S_NONCE}, v{FL}", "s_nop 3", "s_cmp_eq_u64 vcc, exec"]

    def yloads():
        return [f"buffer_load_dwordx4 {v(YR,4)}, v{VY}, {sr(SRD_WS)}, s19 offen sc1",
                f"s_add_u32 s13, s19, {8*DP}",
                f"buffer_load_dwordx4 {v(YR+4,4)}, v{VY}, {sr(SRD_WS)}, s13 offen sc1"]

    IF = OPT.get("if", 22)
    IY = OPT.get("iy", 25)
    for i in range(NS):
        sl = i % DH
        a.wait(f"H{i}")
        if i >= NP:
            a("s_waitcnt lgkmcnt(0)")
        hl = hload(i - 1 + DH) if 1 <= i and i - 1 + DH < NS else []
        fill = [(trd(i + 1) if NP <= i + 1 < NS else []) + hl[:3], hl[3:], wload(N2 + i) if N2 + i < NS else [], []]
        k = 0
        for t in range(2):
            for tt in range(2):
                c = "0" if i == 0 else v(acc(t, tt), 16)
                a(f"v_mfma_f32_32x32x16_bf16 {v(acc(t,tt),16)}, {v(wfrag(i)+4*t,4)}, {v(HB+8*sl+4*tt,4)}, {c}")
                a.ext(fill[k])
                k += 1
        if i in (0, 3, 7, 11, 15, 19, 23, 27):
            a.ext(bstamp(3, 2 + (0, 3, 7, 11, 15, 19, 23, 27).index(i)))
        if i == IF:
            a.ext(fl_ld)
            a.tag("F")
        if i == IY:
            a.wait("F")
            a.ext(yloads())
    a.ext(stamp(9))
    a.ext(chk)
    a("s_cbranch_scc1 PY_DONE")
    a.ext(spin("PY", fl_ld, chk))
    a.ext([("NOCOUNT", x) if is_vmem(x) else x for x in yloads()])
    a("PY_DONE:")
    a("s_nop 5")
    for k in range(1, 4):
        for g in range(4):
            a(f"ds_write_b128 v{VW1}, {v(ACC+16*k+4*g,4)} offset:{k*4096+g*1024}")
    X1, Y1 = HB, HB + 16
    OST = {0: "", 1: " sc1", 2: " nt", 3: " sc0 sc1"}[OPT.get("ost", 0)]
    a(f"""
    v_mov_b32 v5, 0xffff0000
    ds_read_b32 v{EG}, v{VG}
    s_waitcnt vmcnt(0)
    ds_write_b128 v{VYW}, {v(YR,4)} offset:16384
    ds_write_b128 v{VYW}, {v(YR+4,4)} offset:17408
    """)
    a("s_waitcnt lgkmcnt(0)")
    a("s_barrier")
    PB = 16
    for q in range(4):
        a(f"ds_read_b64_tr_b16 {v(YT+2*q,2)}, v{VYT} offset:{16384+q*512}")
    for k, base in ((1, VR1), (2, VW2), (3, VW3)):
        for g in range(4):
            a(f"ds_read_b128 {v(PB+16*(k-1)+4*g,4)}, v{base} offset:{k*4096+g*1024}")
    a("s_waitcnt lgkmcnt(12)")
    for i in range(8):
        a(f"""
        v_lshlrev_b32 v{Y1+2*i}, 16, v{YT+i}
        v_and_b32 v{Y1+2*i+1}, v5, v{YT+i}
        """)
    a("s_waitcnt lgkmcnt(8)")
    for i in range(0, 16, 2):
        a(f"v_pk_add_f32 {v(ACC+i,2)}, {v(ACC+i,2)}, {v(PB+i,2)}")
    a("s_waitcnt lgkmcnt(0)")
    for i in range(0, 16, 2):
        a(f"v_pk_add_f32 {v(PB+16+i,2)}, {v(PB+16+i,2)}, {v(PB+32+i,2)}")
    for i in range(0, 16, 2):
        a(f"v_pk_add_f32 {v(ACC+i,2)}, {v(ACC+i,2)}, {v(PB+16+i,2)}")
    for i in range(0, 16, 2):
        a(f"v_pk_add_f32 {v(Y1+i,2)}, {v(Y1+i,2)}, {v(ACC+i,2)} neg_lo:[0,1] neg_hi:[0,1]")
    for i in range(0, 16, 2):
        a(f"v_pk_fma_f32 {v(ACC+i,2)}, {v(Y1+i,2)}, {v(EG,2)}, {v(ACC+i,2)} op_sel_hi:[1,0,1]")
    for i in range(8):
        a(f"v_cvt_pk_bf16_f32 v{X1+i}, v{ACC+2*i}, v{ACC+2*i+1}")
    a(f"""
    buffer_store_dwordx4 {v(X1,4)}, v{VEP}, {sr(SRD_OUT)}, 0 offen{OST}
    buffer_store_dwordx4 {v(X1+4,4)}, v{VEP}, {sr(SRD_OUT)}, 0 offen offset:16{OST}
    """)
    a.ext(stamp_end())
    a0.ext(resolve_vm(a.L))


def kwave(gemm_wg):
    sfx = "G" if gemm_wg else "S"
    ra = RA(2, 256)
    pre = Asm()
    main = Asm()
    ph2 = Asm()
    a = pre
    a(f"""
    s_setprio {OPT.get("kprio", 0)}
    s_sub_u32 s68, s{S_WIDX}, 6
    s_lshl_b32 s69, s2, 1
    s_add_u32 s69, s69, s68
    s_lshl_b32 s70, s68, 13
    s_add_u32 s70, s70, {KG_BASE}
    s_lshl_b32 s71, s69, 8
    """)
    t0 = ra(); t1 = ra(); t2 = ra(); t3 = ra()
    PR = ra(7)
    DV = ra()
    a(f"""
    v_lshlrev_b32 v{t0}, 2, v0
    v_add_u32 v{t0}, s71, v{t0}
    s_lshl_b32 s72, s69, 1
    v_mov_b32 v{t1}, s72
    """)
    for i, sb in enumerate((S_ARE, S_AIM, S_BRE, S_BIM, S_CRE, S_CIM)):
        a(f"global_load_dword v{PR+i}, v{t0}, s[{sb}:{sb+1}]")
    a(f"global_load_ushort v{PR+6}, v{t1}, s[{S_LDT}:{S_LDT+1}]")
    a(f"global_load_ushort v{DV}, v{t1}, s[{S_DS}:{S_DS+1}]")
    if gemm_wg:
        a(f"""
        s_cmp_lg_u32 s69, 0
        s_cbranch_scc1 K{sfx}_NOTAG
        s_memrealtime s[72:73]
        v_mov_b32 v{t0}, 0
        s_waitcnt lgkmcnt(0)
        s_or_b32 s72, s72, 1
        v_mov_b32 v{t1}, s72
        s_mov_b64 exec, 1
        global_store_dword v{t0}, v{t1}, s[{S_DBG}:{S_DBG+1}] sc1
        s_mov_b64 exec, -1
        K{sfx}_NOTAG:
        """)

    WR = ra(8)
    RD = ra(2)
    a(f"""
    v_lshrrev_b32 v{t0}, 1, v0
    v_and_b32 v{t1}, 7, v{t0}
    v_lshlrev_b32 v{t0}, 8, v{t0}
    v_and_b32 v{t2}, 1, v0
    v_lshl_add_u32 v{t0}, v{t2}, 3, v{t0}
    v_add_u32 v{t0}, s70, v{t0}
    """)
    for b in range(8):
        a(f"""
        v_xor_b32 v{t2}, {b}, v{t1}
        v_lshl_add_u32 v{WR+b}, v{t2}, 4, v{t0}
        """)
    a(f"""
    v_and_b32 v{t0}, 15, v0
    v_lshrrev_b32 v{t1}, 4, v0
    """)
    for p in range(2):
        a(f"""
        v_add_u32 v{t2}, {4*p}, v{t1}
        v_xor_b32 v{t3}, v{t2}, v{t0}
        v_lshlrev_b32 v{t3}, 4, v{t3}
        v_lshl_add_u32 v{t3}, v{t2}, 8, v{t3}
        v_add_u32 v{RD+p}, s70, v{t3}
        """)
    TA0 = ra(); TA1 = ra(); TA2 = ra(); TA3 = ra()
    LP = ra(12)
    a(f"""
    v_and_b32 v{t2}, 1, v{t1}
    v_lshrrev_b32 v{t3}, 1, v{t1}
    v_lshlrev_b32 v{TA0}, 5, v{t0}
    v_lshl_add_u32 v{TA0}, v{t2}, 4, v{TA0}
    v_lshl_add_u32 v{TA0}, v{t3}, 9, v{TA0}
    v_lshrrev_b32 v{LP}, 2, v{TA0}
    v_cvt_f32_u32 v{LP}, v{LP}
    v_add_u32 v{TA0}, s70, v{TA0}
    v_add_f32 v{LP+1}, 1.0, v{LP}
    v_add_f32 v{LP+2}, 2.0, v{LP}
    v_add_f32 v{LP+3}, 2.0, v{LP+1}
    v_cmp_gt_u32 vcc, 2, v{t1}
    v_lshlrev_b32 v{TA1}, 4, v{t0}
    v_lshlrev_b32 v{TA2}, 3, v{t0}
    v_cndmask_b32 v{TA1}, v{TA2}, v{TA1}, vcc
    v_lshl_add_u32 v{TA1}, v{t1}, 8, v{TA1}
    v_add_u32 v{TA1}, s70, v{TA1}
    v_add_u32 v{TA1}, 1024, v{TA1}
    v_mov_b32 v{TA2}, 128
    v_cndmask_b32 v{TA2}, v{TA2}, 8, vcc
    v_add_u32 v{TA2}, v{TA2}, v{TA1}
    v_lshlrev_b32 v{TA3}, 2, v{t0}
    v_lshl_add_u32 v{TA3}, v{t1}, 8, v{TA3}
    v_add_u32 v{TA3}, s70, v{TA3}
    """)
    a(f"""
    v_lshlrev_b32 v{t2}, 7, v{t1}
    v_add_u32 v{t2}, 256, v{t2}
    v_lshlrev_b32 v{t3}, 8, v{t1}
    v_cndmask_b32 v{t2}, v{t3}, v{t2}, vcc
    v_lshl_add_u32 v{t2}, v{t0}, 3, v{t2}
    v_cvt_f32_u32 v{LP+4}, v{t2}
    v_mov_b32 v{t2}, 4.0
    v_cndmask_b32 v{t2}, v{t2}, 2.0, vcc
    v_mov_b32 v{t3}, {f32(128.0)}
    v_cndmask_b32 v{t3}, v{t3}, 4.0, vcc
    v_add_f32 v{LP+5}, v{LP+4}, v{t2}
    v_add_f32 v{LP+6}, v{LP+4}, v{t3}
    v_add_f32 v{LP+7}, v{LP+6}, v{t2}
    v_lshlrev_b32 v{t2}, 9, v{t1}
    v_lshl_add_u32 v{t2}, v{t0}, 3, v{t2}
    v_add_u32 v{t2}, 1024, v{t2}
    v_cvt_f32_u32 v{LP+8}, v{t2}
    v_add_f32 v{LP+9}, {f32(128.0)}, v{LP+8}
    v_add_f32 v{LP+10}, {f32(256.0)}, v{LP+8}
    v_add_f32 v{LP+11}, {f32(384.0)}, v{LP+8}
    """)
    EX = ra(10)
    a(f"""
    s_sub_u32 s72, s70, {4*17024}
    v_lshlrev_b32 v{t0}, 3, v0
    v_cvt_f32_u32 v{t1}, v{t0}
    v_cmp_gt_u32 vcc, 16, v0
    v_add_u32 v{EX+8}, s70, v{t0}
    v_lshlrev_b32 v{t0}, 2, v{t0}
    v_add_u32 v{t0}, s70, v{t0}
    v_lshlrev_b32 v{EX+9}, 2, v0
    v_add_u32 v{EX+9}, s70, v{EX+9}
    v_add_u32 v{EX+9}, 2048, v{EX+9}
    """)
    for kk in range(4):
        e0, e1 = EX + 2 * kk, EX + 2 * kk + 1
        a(f"""
        v_add_f32 v{t2}, 1.0, v{t1}
        v_cvt_pk_bf16_f32 v{t3}, v{t1}, v{t2}
        v_add_f32 v{t1}, 2.0, v{t1}
        v_and_b32 v{e0}, 0xffff, v{t3}
        v_lshrrev_b32 v{e1}, 16, v{t3}
        v_lshl_add_u32 v{e0}, v{e0}, 2, s72
        v_lshl_add_u32 v{e1}, v{e1}, 2, s72
        v_add_u32 v{t2}, {8*kk}, v{t0}
        v_add_u32 v{t3}, {8*kk+4}, v{t0}
        v_cndmask_b32 v{e0}, v{e0}, v{t2}, vcc
        v_cndmask_b32 v{e1}, v{e1}, v{t3}, vcc
        """)

    a = main
    a("s_waitcnt vmcnt(0)")
    MASK = ra()
    DT = ra()
    PP = ra(12)
    a(f"""
    v_mov_b32 v{MASK}, 0xffff0000
    v_cmp_eq_u32 vcc, 0, v0
    v_lshlrev_b32 v{DV}, 16, v{DV}
    s_nop 0
    v_cndmask_b32 v{DV}, 0, v{DV}, vcc
    """)
    for i in range(6):
        a(f"v_lshlrev_b32 v{PP+2*i}, 16, v{PR+i}")
        a(f"v_and_b32 v{PP+2*i+1}, v{MASK}, v{PR+i}")
    x = PR + 6
    a(f"""
    v_lshlrev_b32 v{x}, 16, v{x}
    v_mul_f32 v{t0}, {f32(LOG2E_HI)}, v{x}
    s_mov_b32 s72, {f32(LOG2E_HI)}
    v_fma_f32 v{t1}, v{x}, s72, -v{t0}
    v_fmac_f32 v{t1}, {f32(LOG2E_LO)}, v{x}
    v_exp_f32 v{t0}, v{t0}
    v_mul_f32 v{t1}, {f32(LN2)}, v{t1}
    v_fmac_f32 v{t0}, v{t0}, v{t1}
    v_cvt_pk_bf16_f32 v{t0}, v{t0}, v{t0}
    v_lshlrev_b32 v{DT}, 16, v{t0}
    """)
    A2, TH, Br, Bi, Cr, Ci = (PP + 2 * i for i in range(6))
    for m in range(2):
        a(f"""
        v_mul_f32 v{A2+m}, v{DT}, v{A2+m}
        v_mul_f32 v{TH+m}, v{DT}, v{TH+m}
        v_mul_f32 v{Br+m}, v{DT}, v{Br+m}
        v_mul_f32 v{Bi+m}, v{DT}, v{Bi+m}
        v_mul_f32 v{A2+m}, {f32(LOG2E)}, v{A2+m}
        v_mul_f32 v{TH+m}, {f32(INV2PI)}, v{TH+m}
        """)
    W0 = ra(4); W1 = ra(4)
    for m in range(2):
        a(f"""
        v_mul_f32 v{W0+2*m}, v{Cr+m}, v{Br+m}
        v_mul_f32 v{W0+2*m+1}, v{Cr+m}, v{Bi+m}
        v_fma_f32 v{W0+2*m}, -v{Ci+m}, v{Bi+m}, v{W0+2*m}
        v_fmac_f32 v{W0+2*m+1}, v{Ci+m}, v{Br+m}
        v_sub_f32 v{W0+2*m+1}, 0, v{W0+2*m+1}
        """)
    SIG = ra(); WM = ra(); CE = ra()
    a(f"""
    v_max_f32 v{SIG}, v{A2}, v{A2+1}
    v_max3_f32 v{WM}, |v{W0}|, |v{W0+1}|, |v{W0+2}|
    v_max_f32 v{WM}, |v{W0+3}|, v{WM}
    s_nop 1
    """)
    for ctl in ("quad_perm:[1,0,3,2]", "quad_perm:[2,3,0,1]", "row_half_mirror", "row_mirror"):
        a(f"""
        v_max_f32_dpp v{SIG}, v{SIG}, v{SIG} {ctl} row_mask:0xf bank_mask:0xf
        v_max_f32_dpp v{WM}, v{WM}, v{WM} {ctl} row_mask:0xf bank_mask:0xf
        s_nop 0
        """)
    a(f"""
    v_readlane_b32 s72, v{SIG}, 0
    v_readlane_b32 s73, v{SIG}, 16
    v_readlane_b32 s74, v{SIG}, 32
    v_readlane_b32 s75, v{SIG}, 48
    v_readlane_b32 s6, v{WM}, 0
    v_readlane_b32 s7, v{WM}, 16
    v_readlane_b32 s8, v{WM}, 32
    v_readlane_b32 s9, v{WM}, 48
    v_max_f32 v{SIG}, s72, v{SIG}
    v_max_f32 v{SIG}, s73, v{SIG}
    v_max_f32 v{SIG}, s74, v{SIG}
    v_max_f32 v{SIG}, s75, v{SIG}
    v_max_f32 v{WM}, s6, v{WM}
    v_max_f32 v{WM}, s7, v{WM}
    v_max_f32 v{WM}, s8, v{WM}
    v_max_f32 v{WM}, s9, v{WM}
    v_sub_f32 v{A2}, v{A2}, v{SIG}
    v_sub_f32 v{A2+1}, v{A2+1}, v{SIG}
    v_frexp_exp_i32_f32 v{CE}, v{WM}
    v_sub_u32 v{t0}, 14, v{CE}
    v_subrev_u32 v{CE}, 29, v{CE}
    """)
    for i in range(4):
        a(f"v_ldexp_f32 v{W0+i}, v{W0+i}, v{t0}")

    def cexp(l):
        r = ra(6)
        for m in range(2):
            a(f"""
            v_mul_f32 v{t0}, {f32(float(l))}, v{A2+m}
            v_mul_f32 v{t1}, {f32(float(l))}, v{TH+m}
            v_exp_f32 v{t0}, v{t0}
            v_fract_f32 v{t1}, v{t1}
            v_cos_f32 v{t2}, v{t1}
            v_sin_f32 v{t3}, v{t1}
            s_nop 0
            v_mul_f32 v{r+2*m}, v{t0}, v{t2}
            v_mul_f32 v{r+2*m+1}, v{t0}, v{t3}
            v_sub_f32 v{r+4+m}, 0, v{r+2*m+1}
            """)
        return r

    def cmul(d, x_, b, conj=False):
        for m in range(2):
            br, bi, nbi = b + 2 * m, b + 2 * m + 1, b + 4 + m
            if conj:
                bi, nbi = nbi, bi
            a(f"""
            v_mul_f32 v{d+2*m}, v{x_+2*m}, v{br}
            v_mul_f32 v{d+2*m+1}, v{x_+2*m}, v{bi}
            v_fmac_f32 v{d+2*m}, v{x_+2*m+1}, v{nbi}
            v_fmac_f32 v{d+2*m+1}, v{x_+2*m+1}, v{br}
            """)

    def neg(b):
        for m in range(2):
            a(f"v_sub_f32 v{b+4+m}, 0, v{b+2*m+1}")

    def scale(d, x_):
        for i in range(4):
            a(f"v_mul_f32 v{d+i}, {f32(32768.0)}, v{x_+i}")

    VB = [ra(32, 4), ra(32, 4), ra(32, 4), ra(18, 4)]
    CH0 = ra(0, 4)

    def put(batch, row, r):
        h = VB[batch] + 2 * row
        if r is None:
            a(f"v_mov_b32 v{h}, 0x7800\nv_mov_b32 v{h+1}, 0x7800")
        else:
            a(f"""
            v_cvt_pk_f16_f32 v{h}, v{r}, v{r+1}
            v_cvt_pk_f16_f32 v{h+1}, v{r+2}, v{r+3}
            """)

    E8 = cexp(8)
    cur, nxt = W0, W1
    for c in range(16):
        if c < 15:
            cmul(nxt, cur, E8, conj=True)
        put(0, c, cur)
        cur, nxt = nxt, cur
    E1 = cexp(1)
    Q1 = cexp(128)
    Q8 = cexp(1024)
    P = {}
    P[1] = ra(4)
    scale(P[1], E1)
    for j in range(2, 8):
        P[j] = ra(6 if j == 4 else 4)
        cmul(P[j], P[j - 1], E1)
    put(1, 0, None)
    for j in range(1, 8):
        put(1, j, P[j])
    scale(W0, Q1)
    put(1, 8, W0)
    for j in range(1, 8):
        cmul(W0, P[j], Q1)
        put(1, 8 + j, W0)
    Q = {1: Q1, 8: Q8}
    for j in range(2, 8):
        Q[j] = {2: E1, 3: PP + 4}[j] if j < 4 else P[2 * (j - 4) + 1]
        cmul(Q[j], Q[j - 1], Q1)
    neg(P[4]); neg(Q[2]); neg(Q[3])
    for qi, j in enumerate((2, 3)):
        scale(W0, Q[j])
        put(2, 4 * qi, W0)
        for r in range(1, 4):
            cmul(W0, P[2 * r], Q[j])
            put(2, 4 * qi + r, W0)
    for aa in range(4):
        scale(W0, Q[4 + aa])
        put(2, 8 + 2 * aa, W0)
        cmul(W0, Q[4 + aa], P[4])
        put(2, 8 + 2 * aa + 1, W0)
    a(f"v_mov_b32 v{PR}, 0")
    a(nonce_ld(PR + 1, PR))
    QS = E8
    scale(QS, Q8)
    neg(QS)
    put(3, 0, QS)
    for j in range(1, 8):
        cmul(W0, Q[j], QS)
        put(3, j, W0)
    cmul(W0, Q8, QS)
    put(3, 8, W0)
    for i in range(12):
        a(f"v_mul_f32 v{LP+i}, v{SIG}, v{LP+i}")
    for i in range(12):
        a(f"v_exp_f32 v{LP+i}, v{LP+i}")

    a = ph2
    YF = CH0
    AC = CH0 + 32
    assert AC + 12 <= ra.p

    def wr(batch, nrows):
        for row in range(nrows):
            a(f"ds_write_b64 v{WR+(row&7)}, {v(VB[batch]+2*row,2)} offset:{(row>>3)*128}")

    def fetch(F):
        for ks in range(8):
            a(f"ds_read_b128 {v(F+4*ks,4)}, v{RD+(ks&1)} offset:{(ks>>1)*2048}")

    def mfmas(tile, XF):
        for ks in range(8):
            c = "0" if ks == 0 else v(AC + 4 * tile, 4)
            a(f"v_mfma_f32_16x16x32_f16 {v(AC+4*tile,4)}, {v(XF+4*ks,4)}, {v(YF+4*ks,4)}, {c}")

    a("s_waitcnt vmcnt(0)")
    ng = plain(nonce_get(f"NK{sfx}", PR + 1, PR))
    a(f"v_mov_b32 v{t2}, {N_LDS}")
    a(f"ds_write_b32 v{t2}, v{PR+1}")
    wr(0, 16); fetch(YF)
    wr(1, 16); fetch(VB[0])
    wr(2, 16); fetch(VB[1])
    a("s_waitcnt lgkmcnt(15)")
    mf0 = len(a.L)
    wr(3, 9); fetch(VB[2])
    tail = a.L[mf0:]
    del a.L[mf0:]
    m = Asm()
    sv, a = a, m
    mfmas(0, VB[0])
    a = sv
    for i in range(8):
        a.ext(tail[2 * i:2 * i + 2])
        a(m.L[i])
    a.ext(tail[16:])
    a("s_waitcnt lgkmcnt(15)")
    mfmas(1, VB[1])
    a("s_waitcnt lgkmcnt(0)")
    mfmas(2, VB[2])
    a("s_nop 3")
    for i in range(12):
        a(f"v_mul_f32 v{AC+i}, v{AC+i}, v{LP+i}")
    for i in range(12):
        a(f"v_ldexp_f32 v{AC+i}, v{AC+i}, v{CE}")
    a(f"v_add_f32 v{AC}, v{AC}, v{DV}")
    a(f"ds_write_b128 v{TA0}, {v(AC,4)}")
    a(f"ds_write_b64 v{TA1}, {v(AC+4,2)}")
    a(f"ds_write_b64 v{TA2}, {v(AC+6,2)}")
    for r in range(4):
        a(f"ds_write_b32 v{TA3}, v{AC+8+r} offset:{2048+64*r}")
    G0 = VB[0]
    OUT = VB[1]
    for i in range(8):
        a(f"ds_read_b32 v{G0+i}, v{EX+i}")
    a(f"""
    ds_read_b64 {v(G0+8,2)}, v{EX+8} offset:1536
    ds_read_b32 v{G0+10}, v{EX+8} offset:1544
    ds_read2_b32 {v(G0+12,2)}, v{EX+9} offset0:0 offset1:1
    ds_read2_b32 {v(G0+14,2)}, v{EX+9} offset0:64 offset1:65
    v_lshlrev_b32 v{t0}, 4, v0
    v_add_u32 v{t0}, s70, v{t0}
    v_and_b32 v{t1}, 3, v0
    v_lshlrev_b32 v{t1}, 4, v{t1}
    v_add_u32 v{t1}, s70, v{t1}
    v_mov_b32 v{OUT+16}, 0
    v_mov_b32 v{OUT+17}, 0
    v_mov_b32 v{OUT+18}, 0
    v_mov_b32 v{OUT+19}, 0
    s_mov_b32 s72, 0xaaaaaaaa
    s_mov_b32 s73, 0xaaaaaaaa
    ds_write_b128 v{t1}, {v(OUT+16,4)} offset:{KARR}
    s_waitcnt lgkmcnt(0)
    """)
    for k in range(4):
        a(f"v_cvt_pk_bf16_f32 v{OUT+k}, v{G0+2*k}, v{G0+2*k+1}")
    a(f"""
    v_cvt_pk_bf16_f32 v{OUT+4}, v{G0+8}, v{G0+8}
    v_cvt_pk_bf16_f32 v{OUT+5}, v{G0+8}, v{G0+9}
    v_cvt_pk_bf16_f32 v{OUT+6}, v{G0+9}, v{G0+9}
    v_cvt_pk_bf16_f32 v{OUT+7}, v{G0+10}, v{G0+10}
    """)
    for it in (2, 3):
        T0, T1 = G0 + 8 + 2 * it, G0 + 9 + 2 * it
        o = OUT + 4 * it
        a(f"""
        v_cndmask_b32 v{t2}, v{T0}, v{T1}, s[72:73]
        v_cvt_pk_bf16_f32 v{o}, v{T0}, v{T0}
        v_cvt_pk_bf16_f32 v{o+1}, v{T0}, v{T0}
        v_cvt_pk_bf16_f32 v{o+2}, v{t2}, v{T1}
        v_cvt_pk_bf16_f32 v{o+3}, v{T1}, v{T1}
        """)
    a(f"v_mov_b32 v{t2}, 0")
    for it in range(4):
        a(f"ds_write_b128 v{t0}, {v(OUT+4*it,4)} offset:{KARR+64+1024*it}")
    if OPT.get("dbgk"):
        a(f"""
        s_lshl_b32 s72, s69, 12
        s_add_u32 s72, s72, {KX_OFF}
        v_lshlrev_b32 v{t0}, 4, v0
        """)
        for it in range(4):
            a(f"buffer_store_dwordx4 {v(OUT+4*it,4)}, v{t0}, {sr(SRD_WS)}, s72 offen offset:{1024*it}")
    a("s_waitcnt vmcnt(0) lgkmcnt(0)")
    ph2.L[1:1] = ["\n    ".join(ng)]

    out = list(pre.L)
    out.extend(stamp(1))
    kx = OPT.get("kx", 0)
    if kx == 1:
        ph2.L = []
    elif kx == 2:
        ph2.L = [x for x in ph2.L if not x.startswith("v_mfma")]
    elif kx == 3:
        ph2.L = [x for x in ph2.L if not x.startswith("ds_write")]
    elif kx == 4:
        ph2.L = [x for x in ph2.L if not x.startswith("ds_read")]
    elif kx == 5:
        L2 = []
        for x in ph2.L:
            L2.append(x)
            if x.startswith("ds_write_b64"):
                L2.append("s_nop 3")
        ph2.L = L2
    if gemm_wg:
        per = OPT.get("kper", 132)
        first = OPT.get("kfirst", 0)
        p2a = OPT.get("kp2a", 56)
        p2b = OPT.get("kp2b", 115)
        pos = min(first, len(main.L))
        out.extend(main.L[:pos])
        for sidx in range(9):
            out.extend(bstamp(2, 1 + sidx))
            out.append("s_barrier")
            if sidx < 6:
                end = len(main.L) if sidx == 5 else min(pos + per, len(main.L))
                out.extend(main.L[pos:end])
                pos = end
            elif sidx == 6:
                out.extend(ph2.L[:p2a])
            elif sidx == 7:
                out.extend(ph2.L[p2a:p2b])
            else:
                out.extend(ph2.L[p2b:])
        out.extend(stamp(2))
    else:
        ks0 = OPT.get("ks0", 500)
        out.extend(main.L[:ks0])
        out.append("s_barrier")
        out.extend(main.L[ks0:])
        out.append("s_barrier")
        out.extend(ph2.L)
        out.extend(stamp(2))
    out.append("s_mov_b32 s6, s68")
    out.append("s_branch L_CONVB")
    return out


def lwave(gemm_wg):
    sfx = "G" if gemm_wg else "S"
    a = Asm()
    XV, WV, VL, VC = 8, 12, 2, 16
    t0, t1, t2 = 3, 4, 5
    DUM = 24
    ROT = OPT.get("rot", 0)
    FL8 = OPT.get("fl8", 1)
    SW = 12
    a(f"""
    s_setprio 3
    s_sub_u32 s6, s{S_WIDX}, 4
    """)

    def kofs(st):
        if not ROT:
            return []
        return [f"s_add_u32 s18, s{S_PHI}, {st}", "s_and_b32 s18, s18, 7", f"s_mul_i32 s19, s18, {64*3584}",
                "s_lshl_b32 s18, s18, 7"]

    def grp(st, g):
        sl = st % 3
        if g in (1, 5):
            j = 0 if g == 1 else 1
            L = [f"s_add_u32 m0, s{10+j}, {sl*SLOT}", f"s_add_u32 s22, s{8+j}, {'s18' if ROT else st*128}"]
            L += [f"buffer_load_dwordx4 v{XV+i}, {sr(SRD_X)}, s22 offen offset:{1024*i} lds" for i in range(4)]
        else:
            j = 0 if g == 0 else g - 1
            L = [f"s_add_u32 m0, s{72+j}, {sl*SLOT}", f"s_add_u32 s22, s{68+j}, {'s19' if ROT else st*64*3584}"]
            L += [f"buffer_load_dwordx4 v{WV+i}, {sr(SW)}, s22 offen offset:{1024*i} lds" for i in range(4)]
        return L

    def pref(st):
        L = [f"s_add_u32 s22, s68, {st*64*3584}"]
        L += [f"buffer_load_dwordx4 {v(DUM+4*i,4)}, v{WV+i}, {sr(SW)}, s22 offen offset:{1024*i}" for i in range(4)]
        L += [f"s_add_u32 s22, s23, {st*128}"]
        L += [f"buffer_load_dwordx4 {v(DUM+16+4*i,4)}, v{XV+i}, {sr(SRD_X)}, s22 offen offset:{1024*i}" for i in range(2)]
        return L

    fu_ld = [f"buffer_load_dwordx2 v[{VC}:{VC+1}], v{t1}, {sr(SRD_WS)}, s16 offen sc1"]
    fu_chk = [f"v_cmp_eq_u32 vcc, s{S_NONCE}, v{VC}", f"v_cmp_eq_u32 s[18:19], s{S_NONCE}, v{VC+1}", "s_nop 3",
              "s_and_b64 vcc, vcc, s[18:19]", "s_cmp_eq_u64 vcc, exec"]

    def poll_setup():
        a(f"""
        s_lshl_b32 s7, s2, 1
        s_add_u32 s7, s7, s6
        v_lshlrev_b32 v{VL}, 4, v0
        s_mov_b32 s16, {FU_OFF}
        s_mov_b32 s77, 0x100000
        """)
        fu_addr()

    def fu_addr():
        a(f"""
        v_lshrrev_b32 v{t1}, 1, v0
        v_lshlrev_b32 v{t1}, 7, v{t1}
        v_and_b32 v{t2}, 1, v0
        v_lshl_add_u32 v{t1}, v{t2}, 3, v{t1}
        """)

    def late_addr():
        a(f"""
        s_sub_u32 s17, 2, s6
        s_lshl_b32 s17, s17, 15
        v_add_u32 v1, s17, v{VL}
        """)

    STG = 24
    assert STG + 16 * n1() <= 256

    def wd_setup():
        a(f"""
        v_lshrrev_b32 v20, 3, v0
        v_and_b32 v21, 7, v0
        v_lshrrev_b32 v22, 1, v20
        v_and_b32 v22, 1, v22
        v_lshlrev_b32 v22, 2, v22
        v_xor_b32 v21, v21, v22
        v_lshlrev_b32 v18, 10, v20
        v_lshl_add_u32 v18, v21, 4, v18
        v_add_u32 v19, 8192, v18
        """)
        a(cb64_scalar(17, 3))
        a(f"""
        s_lshl_b32 s17, s17, 7
        s_mul_i32 s3, s6, {3*28*16384}
        s_add_u32 s3, s3, s17
        s_sub_u32 s48, 2, s6
        s_lshl_b32 s49, s48, 15
        v_add_u32 v1, s49, v{VL}
        s_mul_i32 s48, s48, {28*16384}
        s_add_u32 s48, s48, s17
        s_mul_i32 s17, s6, {3*RING2}
        v_add_u32 v7, s17, v{VL}
        """)
        a(rot_scalar(76, 17))
        a("s_mov_b32 s49, s76")

    wpos = [0, 0]
    wwp = [0, 0]

    def wd_ld(g, n):
        sb, ss = ((3, 76), (48, 49))[g]
        for _ in range(n):
            i = wpos[g]
            if i >= n1():
                break
            wpos[g] += 1
            R = STG + 8 * (g * n1() + i)
            a(f"""
            s_lshl_b32 s22, s{ss}, 14
            s_add_u32 s22, s22, s{sb}
            buffer_load_dwordx4 {v(R,4)}, v18, {sr(SRD_WD)}, s22 offen
            s_add_u32 s{ss}, s{ss}, 1
            s_cmp_ge_u32 s{ss}, 28
            s_cselect_b32 s{ss}, 0, s{ss}
            buffer_load_dwordx4 {v(R+4,4)}, v19, {sr(SRD_WD)}, s22 offen
            """)
            a.tag(f"wd{g}_{i}")

    def wd_wr(g, n):
        for i in range(wwp[g], min(n1(), wwp[g] + n)):
            wwp[g] = i + 1
            R = STG + 8 * (g * n1() + i)
            a.wait(f"wd{g}_{i}")
            for k in range(2):
                a(f"ds_write_b128 v{(7, 1)[g]}, {v(R+4*k,4)} offset:{i*2048 + k*1024}")

    def u_load():
        a(f"""
        s_mul_i32 s18, s6, {USZ}
        s_add_u32 s18, s18, {U_BASE}
        s_mul_i32 s17, s7, {DP}
        s_add_u32 s17, s17, {UT_OFF}
        v_mov_b32 v20, 0
        v_mov_b32 v21, 0
        v_mov_b32 v22, 0
        v_mov_b32 v23, 0
        v_and_b32 v{t2}, 7, v0
        v_lshrrev_b32 v6, 3, v0
        v_and_b32 v6, 3, v6
        v_min_u32 v{t2}, 6, v{t2}
        v_mul_u32_u24 v6, {UPITCH}, v6
        v_lshl_add_u32 v{t2}, v{t2}, 4, v6
        v_add_u32 v{t2}, s18, v{t2}
        ds_write_b128 v{t2}, v[20:23]
        """)
        for r in range(4):
            a(f"""
            s_add_u32 m0, s18, {r*UPITCH + 112}
            s_nop 0
            buffer_load_dwordx4 v{VL}, {sr(SRD_WS)}, s17 offen sc1 lds
            s_add_u32 s17, s17, 1024
            """)

    GLR = 8

    def gl_load(tag="gl"):
        a(rb64_scalar(17, 22))
        a(f"""
        s_lshl_b32 s17, s17, 6
        s_add_u32 s17, s17, {GL_OFF}
        v_and_b32 v{t0}, 3, v0
        v_lshrrev_b32 v{t1}, 2, v0
        v_lshlrev_b32 v{t1}, 2, v{t1}
        v_lshl_add_u32 v{t1}, v{t0}, 11, v{t1}
        """)
        for g in range(8):
            a(f"buffer_load_dword v{GLR+g}, v{t1}, {sr(SRD_WS)}, s17 offen sc1")
            if g < 7:
                a("s_add_u32 s17, s17, 8192")
        a.tag(tag)

    def gl_finish():
        E = GLR
        a.wait("gl")
        a(f"""
        v_add_f32 v{E}, v{E}, v{E+1}
        v_add_f32 v{E+2}, v{E+2}, v{E+3}
        v_add_f32 v{E+4}, v{E+4}, v{E+5}
        v_add_f32 v{E+6}, v{E+6}, v{E+7}
        v_add_f32 v{E}, v{E}, v{E+2}
        v_add_f32 v{E+4}, v{E+4}, v{E+6}
        v_add_f32 v{E}, v{E}, v{E+4}
        v_cvt_pk_bf16_f32 v{E}, v{E}, v{E}
        v_lshlrev_b32 v{E}, 16, v{E}
        v_mul_f32 v{E}, {f32(-LOG2E)}, v{E}
        v_exp_f32 v{E}, v{E}
        v_lshlrev_b32 v{t0}, 2, v0
        v_add_f32 v{E}, 1.0, v{E}
        v_rcp_f32 v{E}, v{E}
        v_add_u32 v{t0}, {G_LDS}, v{t0}
        v_cvt_pk_bf16_f32 v{E}, v{E}, v{E}
        v_lshlrev_b32 v{E}, 16, v{E}
        ds_write_b32 v{t0}, v{E}
        """)

    if gemm_wg:
        a(f"""
        v_lshrrev_b32 v{t0}, 4, v0
        v_and_b32 v{t1}, 15, v0
        v_lshlrev_b32 v{t2}, 2, v{t0}
        v_xor_b32 v{t1}, v{t1}, v{t2}
        v_mul_u32_u24 v{t0}, 3584, v{t0}
        v_lshl_add_u32 v{WV}, v{t1}, 4, v{t0}
        """)
        for i in range(1, 4):
            a(f"v_add_u32 v{WV+i}, {(4*3584-1024)*i}, v{WV}")
        a(f"""
        s_mov_b32 s{SW+2}, {512*1792*2}
        s_mov_b32 s{SW+3}, 0x00020000
        s_and_b32 s22, s68, 3
        s_mov_b32 s19, s69
        s_lshl_b32 s23, s{S_CB}, 8
        s_lshl_b32 s16, s6, 14
        s_add_u32 s16, s16, 16384
        """)
        for j in range(4):
            a(f"""
            s_add_u32 s17, s22, {j}
            s_and_b32 s17, s17, 3
            s_mul_i32 s{68+j}, s17, {16*3584}
            s_add_u32 s{68+j}, s{68+j}, s23
            s_lshl_b32 s{72+j}, s17, 12
            s_add_u32 s{72+j}, s{72+j}, s16
            """)
        a(f"""
        v_lshrrev_b32 v{t0}, 3, v0
        v_and_b32 v{t1}, 7, v0
        v_lshrrev_b32 v{t2}, 1, v{t0}
        v_xor_b32 v{t1}, v{t1}, v{t2}
        v_lshlrev_b32 v{t0}, 10, v{t0}
        """)
        for i in range(4):
            a(f"""
            v_xor_b32 v{t2}, {4*(i&1)}, v{t1}
            v_lshl_add_u32 v{XV+i}, v{t2}, 4, v{t0}
            v_add_u32 v{XV+i}, {7168*i}, v{XV+i}
            """)
        a(f"""
        s_mov_b32 s22, s19
        s_and_b32 s17, s22, 1
        s_lshl_b32 s17, s17, 1
        s_add_u32 s17, s17, s6
        s_lshl_b32 s16, s{S_RB}, 17
        s_lshl_b32 s8, s17, 15
        s_add_u32 s8, s8, s16
        s_lshl_b32 s10, s17, 12
        s_xor_b32 s17, s17, 2
        s_lshl_b32 s9, s17, 15
        s_add_u32 s9, s9, s16
        s_lshl_b32 s11, s17, 12
        s_lshl_b32 s22, s22, 1
        s_add_u32 s22, s22, s6
        s_and_b32 s22, s22, 7
        s_lshl_b32 s23, s22, 14
        s_add_u32 s23, s23, s16
        """)
        tail = {3: "S5 R5", 4: "S6 R6", 5: "S7 R7"}
        scheds = [
            {-1: "S0 S1 S2 R0 P3 P4", 0: "R1 P5 P6", 1: "R2 P7 S3", 2: "R3 S4 R4"},
            {-1: "S0 S1 S2 R0 R1", 0: "P3 P4 R2", 1: "P5 P6 P7 S3 R3", 2: "S4 R4"},
            {-1: "S0 R0 S1 R1", 0: "S2 R2", 1: "S3 R3", 2: "S4 R4"},
            {-1: "S0 R0 S1", 0: "R1 S2", 1: "R2 S3", 2: "R3 S4 R4"},
            {-1: "S0 R0 S1 S2 P3", 0: "R1 P4 P5", 1: "R2 P6 P7 S3", 2: "R3 S4 R4"},
            {-1: "S0 R0 S1 S2", 0: "R1 R2", 1: "S3 R3", 2: "S4 R4"},
            {-1: "S0 R0 S1 S2", 0: "R1 R2", 1: "S3 R3 P5", 2: "S4 R4 P6 P7"},
            {-1: "S0 R0 S1 S2", 0: "R1 R2 P3", 1: "S3 R3 P4 P5", 2: "S4 R4 P6 P7"},
        ]
        sched = dict(scheds[OPT.get("lsched", 5)])
        sched.update(tail)

        def issue(k):
            for tok in sched.get(k, "").split():
                st = int(tok[1:])
                if tok[0] == "S":
                    a.ext(kofs(st) + grp(st, 0) + grp(st, 1))
                elif tok[0] == "R":
                    a.ext(kofs(st))
                    for g in (2, 5, 3, 4):
                        a.ext(grp(st, g))
                    a.tag(f"st{st}")
                elif tok[0] == "P":
                    assert not ROT
                    a.ext(pref(st))
        a(f"""
        s_mov_b32 s{SRD_X+2}, {2048*512*2}
        s_mov_b32 s{SRD_X+3}, 0x00020000
        s_cmp_eq_u32 s6, 0
        s_waitcnt lgkmcnt(0)
        s_cselect_b32 s{SW}, s{S_WG}, s{S_WU}
        s_cselect_b32 s{SW+1}, s{S_WG+1}, s{S_WU+1}
        s_and_b32 s{SW+1}, s{SW+1}, 0xffff
        s_mov_b32 s{SRD_X}, s{S_U}
        s_and_b32 s{SRD_X+1}, s{S_U+1}, 0xffff
        """)
        if ROT == 2:
            a(f"""
            s_lshr_b32 s{S_PHI}, s{S_U}, 7
            s_sub_u32 s{S_PHI}, {OPT.get("phi", 4)}, s{S_PHI}
            """)
        issue(-1)
        a.ext(stamp(1))
        srd(a, SRD_WS, S_WS, WS_BYTES)
        srd(a, SRD_WD, S_WD, 1792 * 512 * 2)
        poll_setup()
        for sidx in range(9):
            if sidx < 8:
                a.wait(f"st{sidx}")
            a.ext(bstamp(2, 1 + sidx))
            a("s_barrier")
            if sidx in (0, 3):
                a.ext(stamp(2 + (0, 3).index(sidx)))
            issue(sidx)
            if sidx == 4:
                wd_setup()
            if sidx == 5:
                wd_ld(0, OPT.get("w5", 0))
            if sidx == 6:
                a(f"s_setprio {OPT.get('lprio', 1)}")
                if not FL8:
                    a.ext(fu_ld)
                    a.tag("fu")
                wd_ld(0, OPT.get("w6", 10))
            if sidx == 7 and FL8:
                wd_ld(0, 28)
                a.ext(fu_ld)
                a.tag("fu")
                wd_ld(1, OPT.get("w7", 8))
            if sidx == 8 and FL8:
                a.ext(stamp(4))
                a(f"v_mov_b32 v6, {N_LDS}\nds_read_b32 v6, v6")
                wd_ld(1, 28)
                a.wait("fu")
                a(f"s_waitcnt lgkmcnt(0)\nv_readfirstlane_b32 s{S_NONCE}, v6\ns_nop 3")
                a(f"s_branch PU{sfx}_CHK")
                a.ext(spin(f"PU{sfx}", fu_ld, fu_chk, 16))
                u_load()
                gl_load()
                wd_wr(0, 28)
                wd_wr(1, 28)
                gl_finish()
            if sidx == 7 and not FL8:
                a(f"v_mov_b32 v1, {N_LDS}\nds_read_b32 v6, v1")
                a.wait("fu")
                a(f"s_waitcnt lgkmcnt(0)\nv_readfirstlane_b32 s{S_NONCE}, v6\ns_nop 3")
                a.ext(fu_chk)
                a("s_cselect_b32 s50, 1, 0")
                late_addr()
                u_load()
                gl_load()
                wd_ld(0, 28)
                a.wait("wd0_3")
                wd_ld(1, OPT.get("w7", 8))
            if sidx == 8 and not FL8:
                a.ext(stamp(4))
                wd_ld(1, 28)
                a(f"s_cmp_eq_u32 s50, 1\ns_cbranch_scc1 PU{sfx}_DONE")
                fu_addr()
                a.ext(spin(f"PU{sfx}", fu_ld, fu_chk, 16))
                p0 = len(a.L)
                u_load()
                gl_load("gl2")
                a.L[p0:] = [("NOCOUNT", x) if isinstance(x, str) and is_vmem(x) else x for x in a.L[p0:]]
                a("s_waitcnt vmcnt(0)")
                a(f"PU{sfx}_DONE:")
                wd_wr(0, 28)
                wd_wr(1, 28)
                gl_finish()
        a("s_waitcnt vmcnt(0) lgkmcnt(0)")
        a.ext(stamp(5))
    else:
        a("s_waitcnt lgkmcnt(0)")
        srd(a, SRD_WS, S_WS, WS_BYTES)
        srd(a, SRD_WD, S_WD, 1792 * 512 * 2)
        poll_setup()
        wd_setup()
        a(f"""
        s_sub_u32 s22, s{S_IDX}, 28
        s_lshl_b32 s22, s22, 3
        s_add_u32 s22, s22, s{S_XCD}
        s_lshl_b32 s22, s22, 1
        s_add_u32 s22, s22, s6
        s_mul_i32 s22, s22, {28*1024}
        s_barrier
        """)
        for i in range(28):
            if i % 4 == 0 and i:
                a("s_add_u32 s22, s22, 4096")
            a(f"buffer_load_dwordx4 {v(DUM+4*(i%4),4)}, v{VL}, {sr(SRD_WD)}, s22 offen offset:{1024*(i%4)}")
        a("s_waitcnt vmcnt(0)")
        a("s_barrier")
        a(f"v_mov_b32 v6, {N_LDS}\nds_read_b32 v6, v6")
        a(f"s_waitcnt lgkmcnt(0)\nv_readfirstlane_b32 s{S_NONCE}, v6\ns_nop 3")
        wd_ld(0, 28)
        wd_ld(1, 28)
        wd_wr(0, 28)
        a.ext(stamp(4))
        a.ext(spin(f"PU{sfx}", fu_ld, fu_chk, 16))
        u_load()
        gl_load()
        wd_wr(1, 28)
        gl_finish()
        a("s_waitcnt vmcnt(0) lgkmcnt(0)")
        a.ext(stamp(5))
    a("s_branch L_CONVA")
    return resolve_vm(a.L)


def conv(a0, partB):
    a = Asm()
    KA, UA, YA = 2, 3, 5
    qs, outq = ([5, 6, 7], [6, 7]) if partB else ([0, 1, 2, 3, 4, 5], [0, 1, 2, 3, 4, 5])
    a(f"""
    s_lshl_b32 s8, s6, 13
    s_add_u32 s8, s8, {KG_BASE + KARR + 32}
    s_mul_i32 s9, s6, {USZ}
    s_add_u32 s9, s9, {U_BASE + 16}
    v_lshrrev_b32 v6, 2, v0
    v_and_b32 v10, 7, v6
    v_and_b32 v6, 3, v6
    v_and_b32 v7, 3, v0
    v_lshrrev_b32 v8, 4, v0
    v_and_b32 v8, 1, v8
    v_lshrrev_b32 v9, 5, v0
    v_mul_u32_u24 v{UA}, {UPITCH}, v7
    v_sub_u32 v10, v10, v9
    v_lshl_add_u32 v{UA}, v10, 4, v{UA}
    v_add_u32 v{UA}, s9, v{UA}
    v_lshlrev_b32 v{KA}, 5, v8
    v_lshl_add_u32 v{KA}, v7, 3, v{KA}
    v_lshl_add_u32 v{KA}, v9, 6, v{KA}
    v_lshlrev_b32 v10, 3, v6
    v_sub_u32 v{KA}, v{KA}, v10
    v_add_u32 v{KA}, s8, v{KA}
    """)
    qmax = max(qs)
    nst = 4 * qmax + 4
    NU = 4
    UBUF = 8
    KT = 24
    ACC = KT + 4 * nst
    TMP = ACC + 16 * len(qs)
    assert TMP + 3 * len(qs) + 1 <= 256

    def acc(q):
        return ACC + 16 * qs.index(q)

    need = {}
    for i in range(nst):
        for q in qs:
            s_ = 4 * q + 3 - i
            if s_ >= 0 and s_ not in need:
                need[s_] = i

    def rd(i):
        L = [f"ds_read_b128 {v(UBUF+4*(i%NU),4)}, v{UA} offset:{32*i}"]
        for s_ in sorted(s for s in need if need[s] == i):
            L += [f"ds_read_b64_tr_b16 {v(KT+4*s_,2)}, v{KA} offset:{128*s_+32}",
                  f"ds_read_b64_tr_b16 {v(KT+4*s_+2,2)}, v{KA} offset:{128*s_}"]
        L.append(("LTAG", f"R{i}"))
        return L

    PF = NU - 1
    a(f"""
    v_and_b32 v4, 7, v0
    v_lshrrev_b32 v{YA}, 3, v0
    v_lshlrev_b32 v{YA}, 4, v{YA}
    v_lshl_add_u32 v{YA}, v4, 7, v{YA}
    v_mov_b32 v6, 0
    v_mov_b32 v7, s{S_NONCE}
    s_mov_b32 s12, 0
    s_mov_b32 s13, 0x80000000
    s_mov_b32 s14, 0
    s_mov_b32 s15, 0xc0000000
    s_mov_b32 s16, 0
    s_mov_b32 s17, 0xe0000000
    s_lshl_b32 s7, s2, 1
    s_add_u32 s7, s7, s6
    s_mul_i32 s18, s7, {DP}
    s_add_u32 s18, s18, {Y_OFF}
    s_lshl_b32 s19, s2, 4
    s_add_u32 s19, s19, s6
    s_lshl_b32 s19, s19, 3
    s_add_u32 s19, s19, {FY_OFF + (4 if partB else 0)}
    """)
    a(f"s_setprio {OPT.get('cprio', 3)}")
    a("s_barrier")
    a.ext(stamp(6))
    a.ext(rd(0))
    a.ext(rd(1))

    def Y(q, g, rho):
        return acc(q) + 4 * g + rho

    dpp = "wave_ror:1 row_mask:0xf bank_mask:0xf"
    ctl = "row_mask:0xf bank_mask:0xf"

    def post(q):
        L = []
        Z = {}
        for g in (3, 2, 1, 0):
            for rho in (1, 2, 3):
                Z[g, rho] = TMP + 3 * qs.index(q) + rho - 1 if g == 3 else Y(q, g, rho)
                if g > 0:
                    prev = f"v{Y(q,g-1,rho)}"
                elif q > 0:
                    prev = f"v{Y(q-1,3,rho)}"
                else:
                    prev = "v6"
                L.append(f"v_cndmask_b32 v{Z[g,rho]}, v{Y(q,g,rho)}, {prev}, s[{10+2*rho}:{11+2*rho}]")
        for g in (3, 2, 1, 0):
            L.append(f"v_add_f32_dpp v{Z[g,2]}, v{Z[g,3]}, v{Z[g,2]} {dpp}")
        for g in (3, 2, 1, 0):
            L.append(f"v_add_f32_dpp v{Z[g,1]}, v{Z[g,2]}, v{Z[g,1]} {dpp}")
        for g in (3, 2, 1, 0):
            L.append(f"v_add_f32_dpp v{Y(q,g,0)}, v{Z[g,1]}, v{Y(q,g,0)} {dpp}")
        return L

    def stage(S_, D_, bit, stride):
        m = {0: 0xaaaaaaaa, 1: 0xcccccccc, 2: 0xf0f0f0f0}[bit]
        up = {0: "quad_perm:[1,0,3,2]", 1: "quad_perm:[2,3,0,1]", 2: "row_ror:12"}[bit]
        dn = {0: "quad_perm:[1,0,3,2]", 1: "quad_perm:[2,3,0,1]", 2: "row_ror:4"}[bit]
        L = [f"s_mov_b32 vcc_lo, {m:#x}", f"s_mov_b32 vcc_hi, {m:#x}"]
        idx = [i for i in range(len(S_)) if not (i // stride) & 1]
        L += [f"v_cndmask_b32_dpp v{D_[i+stride]}, v{S_[i]}, v{S_[i+stride]}, vcc {up} {ctl}" for i in idx]
        L += ["s_not_b64 vcc, vcc"]
        L += [f"v_cndmask_b32_dpp v{D_[i]}, v{S_[i+stride]}, v{S_[i]}, vcc {dn} {ctl}" for i in idx]
        return L

    def xpose(q):
        S0 = [Y(q - 1 + (g >> 2), g & 3, 0) for g in range(8)]
        free = [Y(qq, g, r) for qq in (q - 1, q) for g in range(3) for r in (1, 2, 3)]
        D0 = free[:8]
        S1 = free[8:12]
        D1 = free[12:16]
        D2 = [acc(q - 1) + i for i in range(4)]
        L = stage(S0, D0, 0, 1)
        L += [f"v_cvt_pk_bf16_f32 v{S1[g]}, v{D0[2*g]}, v{D0[2*g+1]}" for g in range(4)]
        L += stage(S1, D1, 1, 1)
        L += stage(D1, D2, 2, 2)
        L.append(f"buffer_store_dwordx4 {v(D2[0],4)}, v{YA}, {sr(SRD_WS)}, s18 offen offset:{(q-1)*512} sc1")
        return L

    pend = []
    FILL = OPT.get("cfill", 4)
    since = {}
    issued = 2
    for i in range(nst):
        a.L.append(("LWAIT", f"R{i}"))
        rl = []
        while issued < nst and issued <= i + (2 if i < 2 else PF):
            rl += rd(issued)
            issued += 1
        act = [q for q in qs if 4 * q + 3 - i >= 0]
        per = -(-len(rl) // len(act))
        for q in act:
            s_ = 4 * q + 3 - i
            c = "0" if i == 0 else v(acc(q), 16)
            a(f"v_mfma_f32_32x32x16_bf16 {v(acc(q),16)}, {v(UBUF+4*(i%NU),4)}, {v(KT+4*s_,4)}, {c}")
            a.ext(rl[:per])
            rl = rl[per:]
            if s_ == 0:
                since[q] = len(a.L)
            for qq in list(since):
                if len([x for x in a.L[since[qq]:] if isinstance(x, str)]) >= 14:
                    del since[qq]
                    if qq in outq:
                        pend += post(qq)
                        if (qq - outq[0]) & 1:
                            pend += xpose(qq)
            a.ext(pend[:FILL])
            pend = pend[FILL:]
    a.ext(stamp(7))
    a.ext(pend)
    a("s_nop 7\ns_nop 3")
    for qq in sorted(since):
        if qq in outq:
            a.ext(post(qq))
            if (qq - outq[0]) & 1:
                a.ext(xpose(qq))
    a.ext(stamp(8))
    a(f"""
    s_waitcnt vmcnt(0)
    s_mov_b64 exec, 1
    buffer_store_dword v7, v6, {sr(SRD_WS)}, s19 offen sc1
    """)
    a.ext(stamp_end())
    a0.ext(resolve_lds(a.L))


HEADER = open("cdna_kernels/" + NAME + ".s.ref").read().split("; Override launch")[0]


def main(path):
    a = Asm()
    prologue(a)
    gemm1(a)
    a("L_SPARE:")
    spare(a)
    a("L_GEMM2:")
    gemm2(a)
    a("L_LWAVE:")
    a(f"s_cmp_ge_u32 s{S_IDX}, 28\ns_cbranch_scc1 L_LWAVE_S")
    a.ext(lwave(True))
    a("L_LWAVE_S:")
    a.ext(lwave(False))
    a("L_KWAVE:")
    a("s_load_dwordx2 s[6:7], s[0:1], 8\ns_load_dwordx4 s[8:11], s[0:1], 16\ns_load_dwordx8 s[12:19], s[0:1], 32")
    a("s_waitcnt lgkmcnt(0)")
    srd(a, SRD_WS, S_WS, WS_BYTES)
    a(f"s_cmp_ge_u32 s{S_IDX}, 28\ns_cbranch_scc1 L_KWAVE_S")
    a.ext(kwave(True))
    a("L_KWAVE_S:")
    a.ext(kwave(False))
    a("L_CONVA:")
    conv(a, False)
    a("L_CONVB:")
    conv(a, True)
    a("L_END:\ns_endpgm")
    body = "\n".join(("" if ln.endswith(":") or ln.startswith(".") else "    ") + ln for ln in a.L)
    kn = NAME + "_kernel"
    txt = HEADER
    if OPT.get("list"):
        txt += f"; @launch kernel={kn} grid=(256,1,1) block=(512,1,1) lds=163840\n"
    else:
        txt += "; @launch grid=(256,1,1) block=(512,1,1) lds=163840\n"
    txt += '.amdgcn_target "amdgcn-amd-amdhsa--gfx950"\n.text\n'
    txt += f".globl {kn}\n.p2align 8\n.type {kn},@function\n{kn}:\n"
    txt += body + "\n"
    txt += f"""
.section .rodata,"a"
.p2align 6
.amdhsa_kernel {kn}
  .amdhsa_next_free_vgpr 256
  .amdhsa_next_free_sgpr 102
  .amdhsa_accum_offset 256
  .amdhsa_group_segment_fixed_size 0
  .amdhsa_kernarg_size 136
  .amdhsa_user_sgpr_count 2
  .amdhsa_user_sgpr_kernarg_segment_ptr 1
  .amdhsa_system_sgpr_workgroup_id_x 1
.end_amdhsa_kernel
"""
    open(path, "w").write(txt)


if __name__ == "__main__":
    for o in list(sys.argv):
        if o.startswith("--opt="):
            k, _, val = o[6:].partition(":")
            OPT[k] = int(val) if val else 1
            sys.argv.remove(o)
    if OPT.get("oldlay"):
        DP = 4096
        UT_OFF, Y_OFF, GL_OFF = 0x800000, 0xC00000, 0xE00000
        FH_OFF, FY_OFF, FU_OFF, FD_OFF = 0xE40000, 0xE60000, 0xE68000, 0xE80000
    if OPT.get("dp"):
        DP = OPT["dp"]
    if "--stamps" in sys.argv:
        STAMPS = True
        sys.argv.remove("--stamps")
    main(sys.argv[1] if len(sys.argv) > 1 else "cdna_kernels/" + NAME + ".s")
```

```python
import sys, struct

NAME = "gated_mix__ssm_conv_s4__swiglu_ffn__prompt"

H_OFF = 0x000000
DP = 4224
UT_OFF = 0x800000
Y_OFF = 0xA80000
KX_OFF = 0xD00000
GL_OFF = 0xF00000
ST_OFF = 0xF20000
FH_OFF = 0xF40000
FY_OFF = 0xF60000
FU_OFF = 0xF68000
FG_OFF = 0xF6A000
FD_OFF = 0xF80000
WS_BYTES = 0x1000000

STAMPS = False
HDL = []
OPT = {}
ST_BASE = 78
NST = 12


def f32(x):
    return "0x%08x" % struct.unpack("<I", struct.pack("<f", x))[0]


LOG2E = 1.4426950408889634
LOG2E_HI = struct.unpack("<f", struct.pack("<f", LOG2E))[0]
LOG2E_LO = LOG2E - LOG2E_HI
LN2 = 0.6931471805599453
INV2PI = 0.15915494309189535


class Asm:
    def __init__(self):
        self.L = []

    def __call__(self, s):
        for line in s.strip().split("\n"):
            line = line.strip()
            if line:
                self.L.append(line)

    def ext(self, lines):
        self.L.extend(lines)

    def tag(self, n):
        self.L.append(("VMTAG", n))

    def wait(self, n):
        self.L.append(("VMWAIT", n))


def v(b, n=1):
    return f"v{b}" if n == 1 else f"v[{b}:{b+n-1}]"


def sr(b):
    return f"s[{b}:{b+3}]"


class RA:
    def __init__(self, start, end):
        self.p = start
        self.end = end

    def __call__(self, n=1, align=1):
        self.p = (self.p + align - 1) // align * align
        r = self.p
        self.p += n
        assert self.p <= self.end, "out of registers"
        return r


def stamp(k, force=False):
    if not STAMPS:
        return []
    assert k < NST
    if OPT.get("dbgbar") and 1 <= k <= 9 and not force:
        return []
    op = "s_memtime" if OPT.get("cyc") else "s_memrealtime"
    return [f"{op} s[{ST_BASE+2*k}:{ST_BASE+2*k+1}]"]


def bstamp(mode, k):
    return stamp(k, True) if OPT.get("dbgbar") == mode else []


def stamp_end():
    if not STAMPS:
        return ["s_endpgm"]
    L = stamp(10) + ["s_waitcnt vmcnt(0)"] + stamp(11)
    L += ["s_waitcnt lgkmcnt(0)", "s_mov_b64 exec, 1", "s_lshl_b32 s74, s2, 3", f"s_add_u32 s74, s74, s{S_WIDX}",
          "s_lshl_b32 s74, s74, 6", f"s_add_u32 s74, s74, {ST_OFF}", "v_mov_b32 v1, 0"]
    for k in range(NST):
        L.append(f"v_mov_b32 v{4+k}, s{ST_BASE+2*k}")
    for k in range(0, NST, 4):
        L.append(f"buffer_store_dwordx4 v[{4+k}:{7+k}], v1, {sr(SRD_WS)}, s74 offen offset:{4*k}")
    if OPT.get("hdbg"):
        lab = f"HD{len(HDL)}"
        HDL.append(lab)
        L += [f"v_not_b32 v20, v4", f"global_atomic_umax v1, v20, s[{S_DBG}:{S_DBG+1}] offset:56",
              f"global_atomic_umax v1, v15, s[{S_DBG}:{S_DBG+1}] offset:60",
              f"s_cmp_lg_u32 s2, {OPT['hdbg']}", f"s_cbranch_scc1 {lab}", f"s_cmp_lg_u32 s{S_WIDX}, 0", f"s_cbranch_scc1 {lab}"]
        words = [1, 2, 3, 4, 5, 6, 7, 9, 10, 11, 12]
        for k in range(1, NST):
            L += [f"v_sub_u32 v20, v{4+k}, v4", f"global_store_dword v1, v20, s[{S_DBG}:{S_DBG+1}] offset:{4*words[k-1]}", "s_nop 1"]
        L += [f"global_store_dword v1, v4, s[{S_DBG}:{S_DBG+1}] offset:52"]
        L.append(f"{lab}:")
    L.append("s_endpgm")
    return L


def is_vmem(line):
    return line.startswith("buffer_") or line.startswith("global_")


def resolve_vm(lines):
    out = []
    count = 0
    tags = {}
    done = -1
    for ln in lines:
        if isinstance(ln, tuple):
            if ln[0] == "VMTAG":
                tags[ln[1]] = count
            elif ln[0] == "VMWAIT":
                if tags[ln[1]] <= done:
                    continue
                n = count - tags[ln[1]]
                assert 0 <= n <= 63, n
                out.append(f"s_waitcnt vmcnt({n})")
                done = tags[ln[1]]
            elif ln[0] == "VMRESET":
                done = count
            elif ln[0] == "NOCOUNT":
                out.append(ln[1])
            else:
                raise ValueError(ln)
        else:
            if is_vmem(ln):
                count += 1
            out.append(ln)
    return out


def resolve_lds(lines):
    out = []
    count = 0
    tags = {}
    for ln in lines:
        if isinstance(ln, tuple):
            if ln[0] == "LTAG":
                tags[ln[1]] = count
            elif ln[0] == "LWAIT":
                out.append(f"s_waitcnt lgkmcnt({min(15, count - tags[ln[1]])})")
            else:
                raise ValueError(ln)
        else:
            if ln.startswith("ds_"):
                count += 1
            out.append(ln)
    return out


SLOT = 49152
KG_BASE = 147456
KARR = 3584
U_BASE = 131072
UPITCH = 1344
USZ = 4 * UPITCH
YB_BASE = U_BASE + 2 * USZ
RING2 = 32768

S_U, S_ARE, S_AIM, S_BRE, S_BIM, S_CRE, S_CIM, S_LDT = 4, 6, 8, 10, 12, 14, 16, 18
S_DS = 20
S_WG, S_WU, S_WD, S_GW = 24, 26, 28, 30
S_OUT, S_DBG, S_WS = 32, 34, 36
S_WIDX, S_XCD, S_IDX, S_RB, S_CB, S_PHI = 38, 39, 40, 41, 42, 43
SRD_X, SRD_WG, SRD_WU, SRD_WS, SRD_WD, SRD_OUT = 44, 48, 52, 56, 60, 64


def srd(a, d, base, nbytes):
    a(f"""
    s_mov_b32 s{d}, s{base}
    s_and_b32 s{d+1}, s{base+1}, 0xffff
    s_mov_b32 s{d+2}, {nbytes}
    s_mov_b32 s{d+3}, 0x00020000
    """)


def mapping(a):
    a(f"""
    s_and_b32 s{S_XCD}, s2, 7
    s_lshr_b32 s{S_IDX}, s2, 3
    """)
    if OPT.get("map", 1) == 0:
        a(f"""
        s_and_b32 s68, s{S_IDX}, 3
        s_lshr_b32 s69, s{S_IDX}, 2
        s_lshr_b32 s{S_RB}, s{S_XCD}, 1
        s_lshl_b32 s{S_RB}, s{S_RB}, 2
        s_add_u32 s{S_RB}, s{S_RB}, s68
        s_and_b32 s{S_CB}, s{S_XCD}, 1
        s_mul_i32 s{S_CB}, s{S_CB}, 7
        s_add_u32 s{S_CB}, s{S_CB}, s69
        s_lshl_b32 s{S_PHI}, s68, 1
        s_add_u32 s{S_PHI}, s{S_PHI}, s69
        s_and_b32 s{S_PHI}, s{S_PHI}, 7
        """)
    else:
        a(f"""
        s_and_b32 s70, s{S_XCD}, 1
        s_lshl_b32 s70, s70, 2
        s_and_b32 s68, s{S_IDX}, 7
        s_lshr_b32 s69, s{S_IDX}, 3
        s_add_u32 s71, s69, s70
        s_add_u32 s72, s68, s70
        s_cmp_ge_u32 s{S_IDX}, 24
        s_cselect_b32 s71, 3, s71
        s_cselect_b32 s68, s72, s68
        s_lshr_b32 s{S_CB}, s{S_XCD}, 1
        s_and_b32 s{S_CB}, s{S_CB}, 1
        s_mul_i32 s{S_CB}, s{S_CB}, 7
        s_add_u32 s{S_CB}, s{S_CB}, s71
        s_lshr_b32 s{S_RB}, s{S_XCD}, 2
        s_lshl_b32 s{S_RB}, s{S_RB}, 3
        s_add_u32 s{S_RB}, s{S_RB}, s68
        s_lshl_b32 s{S_PHI}, s69, 1
        s_add_u32 s{S_PHI}, s{S_PHI}, s68
        s_and_b32 s{S_PHI}, s{S_PHI}, 7
        """)


def prologue(a):
    a("""
    s_cmp_ge_u32 s2, 256
    s_cbranch_scc1 L_END
    """)
    if STAMPS:
        a.ext([f"s_mov_b32 s{ST_BASE+2*k}, 0" for k in range(NST)])
    a.ext(stamp(0))
    a(f"""
    s_load_dwordx2 s[4:5], s[0:1], 0
    s_load_dwordx8 s[24:31], s[0:1], 80
    s_load_dwordx2 s[36:37], s[0:1], 128
    s_load_dwordx4 s[32:35], s[0:1], 112
    s_load_dwordx2 s[20:21], s[0:1], 64
    v_lshrrev_b32 v1, 6, v0
    v_and_b32 v0, 63, v0
    s_nop 0
    v_readfirstlane_b32 s{S_WIDX}, v1
    """)
    mapping(a)
    a(f"""
    s_cmp_ge_u32 s{S_WIDX}, 6
    s_cbranch_scc1 L_KWAVE
    s_cmp_ge_u32 s{S_WIDX}, 4
    s_cbranch_scc1 L_LWAVE
    s_waitcnt lgkmcnt(0)
    """)
    srd(a, SRD_X, S_U, 2048 * 512 * 2)
    srd(a, SRD_WS, S_WS, WS_BYTES)
    srd(a, SRD_WD, S_WD, 1792 * 512 * 2)
    srd(a, SRD_OUT, S_OUT, 2048 * 512 * 2)
    cp = OPT.get("cpf", 1)
    if cp:
        a(f"""
        s_getpc_b64 s[70:71]
        L_PC:
        s_sub_u32 s70, s70, L_PC-{NAME}_kernel
        s_subb_u32 s71, s71, 0
        """)
        if cp == 1:
            a(f"""
            s_lshl_b32 s72, s{S_IDX}, 2
            s_add_u32 s72, s72, s{S_WIDX}
            s_lshl_b32 s72, s72, 9
            v_and_b32 v2, 7, v0
            v_lshlrev_b32 v2, 6, v2
            v_add_u32 v2, s72, v2
            v_min_u32 v2, L_END-{NAME}_kernel, v2
            global_load_dword v127, v2, s[70:71]
            """)
        else:
            a(f"""
            s_lshl_b32 s72, s{S_WIDX}, 14
            v_lshlrev_b32 v2, 7, v0
            v_add_u32 v2, s72, v2
            v_add_u32 v3, 8192, v2
            v_min_u32 v2, L_END-{NAME}_kernel, v2
            v_min_u32 v3, L_END-{NAME}_kernel, v3
            global_load_dword v64, v2, s[70:71]
            global_load_dword v65, v3, s[70:71]
            """)
    a(f"""
    s_cmp_ge_u32 s{S_IDX}, 28
    s_cbranch_scc1 L_SPARE
    """)


VL16 = 1
XD = 8
(VD0, VD1, DA0, DA1, VEP, VPH, VFL, VG, VY, VYW, VYT, VW1, VW2, VW3, VR1, VR23) = range(112, 128)
YT_BASE = YB_BASE
G_LDS = YB_BASE
N_LDS = YB_BASE + 256
S_LDS = YB_BASE + 272
def n1():
    return OPT.get("n1", 14)


def rot_scalar(dst, tmp):
    return f"""
    s_lshr_b32 s{dst}, s{S_IDX}, 1
    s_and_b32 s{dst}, s{dst}, 2
    s_add_u32 s{dst}, s{dst}, s{S_IDX}
    s_and_b32 s{dst}, s{dst}, 3
    s_mul_i32 s{dst}, s{dst}, 7
    """


def rb64_scalar(dst, tmp):
    return f"""
    s_lshl_b32 s{dst}, s{S_XCD}, 2
    s_and_b32 s{tmp}, s{S_IDX}, 3
    s_add_u32 s{dst}, s{dst}, s{tmp}
    """


def cb64_scalar(dst, tmp):
    return f"""
    s_lshr_b32 s{dst}, s{S_IDX}, 2
    s_lshr_b32 s{tmp}, s{S_WD}, 7
    s_sub_u32 s{dst}, s{dst}, s{tmp}
    s_add_u32 s{dst}, s{dst}, {OPT.get("cbs", 4)}
    s_and_b32 s{dst}, s{dst}, 7
    """


def gemm2_setup(a):
    a(rb64_scalar(6, 13))
    a(cb64_scalar(7, 13))
    a(f"""
    s_lshl_b32 s17, s6, 6
    s_lshr_b32 s23, s{S_WIDX}, 1
    s_lshl_b32 s13, s23, 5
    s_add_u32 s17, s17, s13
    s_lshl_b32 s18, s7, 6
    s_and_b32 s14, s{S_WIDX}, 1
    s_lshl_b32 s13, s14, 5
    s_add_u32 s18, s18, s13
    v_lshrrev_b32 v5, 5, v0
    v_and_b32 v6, 31, v0
    v_add_u32 v6, s17, v6
    v_lshlrev_b32 v7, 4, v5
    v_add_u32 v7, s18, v7
    v_lshlrev_b32 v7, 1, v7
    v_lshl_add_u32 v{VEP}, v6, 10, v7
    s_lshl_b32 s8, s{S_WIDX}, 15
    s_lshl_b32 s9, s6, 1
    s_add_u32 s9, s9, s23
    s_mul_i32 s9, s9, 112
    s_mul_i32 s13, s{S_WIDX}, 28
    s_add_u32 s9, s9, s13
    s_lshl_b32 s9, s9, 10
    s_mul_i32 s22, s23, {224*1024}
    s_sub_u32 s22, {112*1024}, s22
    s_lshl_b32 s10, s13, 14
    s_lshl_b32 s13, s7, 7
    s_add_u32 s10, s10, s13
    """)
    a(rot_scalar(12, 13))
    a(f"""
    s_add_u32 s11, s12, {n1()}
    s_cmp_ge_u32 s11, 28
    s_cselect_b32 s13, 28, 0
    s_sub_u32 s11, s11, s13
    s_lshl_b32 s15, s6, 5
    s_mul_i32 s13, s{S_WIDX}, 7
    s_add_u32 s15, s15, s13
    s_lshl_b32 s15, s15, 7
    s_add_u32 s15, s15, {FH_OFF}
    s_lshl_b32 s13, s7, 2
    s_add_u32 s13, s13, s{S_WIDX}
    s_lshl_b32 s16, s13, 10
    s_add_u32 s16, s16, {FY_OFF}
    s_mul_i32 s19, s13, {16*DP}
    s_lshl_b32 s13, s6, 7
    s_add_u32 s19, s19, s13
    s_add_u32 s19, s19, {Y_OFF}
    v_lshlrev_b32 v{VL16}, 4, v0
    v_lshrrev_b32 v2, 3, v0
    v_and_b32 v3, 7, v0
    v_mul_u32_u24 v{VY}, {DP}, v2
    v_lshl_add_u32 v{VY}, v3, 4, v{VY}
    v_lshrrev_b32 v4, 1, v2
    v_and_b32 v4, 1, v4
    v_lshlrev_b32 v4, 2, v4
    v_xor_b32 v3, v3, v4
    v_lshlrev_b32 v{VD0}, 10, v2
    v_lshl_add_u32 v{VD0}, v3, 4, v{VD0}
    v_add_u32 v{VD1}, {8192-1024}, v{VD0}
    v_lshlrev_b32 v{VYW}, 7, v2
    v_lshl_add_u32 v{VYW}, v3, 4, v{VYW}
    v_add_u32 v{VYW}, s8, v{VYW}
    v_lshrrev_b32 v2, 2, v0
    v_and_b32 v2, 3, v2
    v_and_b32 v3, 3, v0
    v_lshrrev_b32 v4, 4, v0
    v_and_b32 v4, 1, v4
    v_lshl_add_u32 v6, v5, 2, v2
    v_lshlrev_b32 v6, 7, v6
    v_and_b32 v7, 1, v3
    v_lshl_add_u32 v6, v7, 5, v6
    v_lshl_add_u32 v6, v4, 4, v6
    v_lshrrev_b32 v7, 1, v3
    v_lshl_add_u32 v6, v7, 3, v6
    v_add_u32 v6, s8, v6
    v_lshrrev_b32 v7, 1, v2
    v_xor_b32 v7, s14, v7
    v_lshl_add_u32 v{DA0}, v7, 6, v6
    v_xor_b32 v7, 1, v7
    v_lshl_add_u32 v{DA1}, v7, 6, v6
    s_lshl_b32 s13, s14, 1
    v_add_u32 v6, s13, v5
    v_lshlrev_b32 v{VYT}, 15, v6
    v_lshl_add_u32 v{VYT}, v2, 7, v{VYT}
    v_lshrrev_b32 v7, 1, v2
    v_xor_b32 v7, s23, v7
    v_lshl_add_u32 v{VYT}, v7, 6, v{VYT}
    v_lshl_add_u32 v{VYT}, v4, 5, v{VYT}
    v_lshl_add_u32 v{VYT}, v3, 3, v{VYT}
    v_min_u32 v{VPH}, 6, v0
    v_lshlrev_b32 v{VPH}, 7, v{VPH}
    v_lshrrev_b32 v2, 2, v0
    v_and_b32 v2, 7, v2
    v_lshlrev_b32 v{VFL}, 7, v2
    v_lshl_add_u32 v{VFL}, v3, 2, v{VFL}
    v_and_b32 v{VG}, 31, v0
    s_lshl_b32 s13, s23, 5
    v_add_u32 v{VG}, s13, v{VG}
    v_lshlrev_b32 v{VG}, 2, v{VG}
    v_add_u32 v{VG}, {G_LDS}, v{VG}
    v_add_u32 v{VW1}, s8, v{VL16}
    s_xor_b32 s13, s{S_WIDX}, 1
    s_lshl_b32 s13, s13, 15
    v_add_u32 v{VR1}, s13, v{VL16}
    s_xor_b32 s13, s{S_WIDX}, 2
    s_lshl_b32 s13, s13, 15
    v_add_u32 v{VW2}, s13, v{VL16}
    s_xor_b32 s13, s{S_WIDX}, 3
    s_lshl_b32 s13, s13, 15
    v_add_u32 v{VW3}, s13, v{VL16}
    """)


def gemm1(a):
    XA = 16
    WA = 28
    BUFS = [64, 88, 40]
    ACC = 128

    def acc(mat, t, tt):
        return ACC + 16 * (mat * 4 + t * 2 + tt)

    def wf(b, mat, t):
        return BUFS[b] + 4 * (mat * 2 + t)

    def xf(b, tt):
        return BUFS[b] + 16 + 4 * tt

    pt = OPT.get("pt", 0)
    if pt:
        gran = {1: 21, 2: 18, 3: 16}[pt]
        a(f"""
        s_cmp_lg_u32 s{S_WIDX}, 0
        s_cbranch_scc1 L_NOTOUCH
        v_lshlrev_b32 v2, {gran}, v0
        v_mov_b32 v3, 0
        """)
        for i in range(max(1, (16 << 20) >> (gran + 6))):
            a(f"s_mov_b32 s13, {i << (gran + 6)}")
            a(f"buffer_load_dword v64, v2, {sr(SRD_WS)}, s13 offen")
        a(f"""
        buffer_load_dword v65, v2, {sr(SRD_OUT)}, 0 offen
        buffer_load_dword v66, v2, {sr(SRD_WD)}, 0 offen
        global_load_dword v67, v3, s[{S_DS}:{S_DS+1}]
        global_load_dword v68, v3, s[{S_DBG}:{S_DBG+1}] offset:128
        s_waitcnt vmcnt(0)
        L_NOTOUCH:
        """)
    gemm2_setup(a)
    a(f"""
    s_lshr_b32 s68, s{S_WIDX}, 1
    s_and_b32 s69, s{S_WIDX}, 1
    v_and_b32 v7, 31, v0
    v_lshrrev_b32 v2, 5, v0
    v_lshrrev_b32 v3, 1, v0
    v_and_b32 v3, 7, v3
    s_lshl_b32 s70, s68, 13
    v_lshlrev_b32 v4, 7, v7
    v_add_u32 v4, s70, v4
    """)
    for ks in range(4):
        a(f"""
        v_add_u32 v5, {2*ks}, v2
        v_xor_b32 v5, v5, v3
        v_lshl_add_u32 v{XA+ks}, v5, 4, v4
        """)
    a(f"""
    v_lshrrev_b32 v7, 2, v0
    v_and_b32 v7, 3, v7
    v_and_b32 v3, 3, v0
    v_lshrrev_b32 v4, 4, v0
    v_and_b32 v4, 1, v4
    v_lshl_add_u32 v5, v2, 3, v7
    v_lshlrev_b32 v5, 8, v5
    v_lshl_add_u32 v5, v4, 5, v5
    v_lshl_add_u32 v5, v3, 3, v5
    s_lshl_b32 s70, s69, 1
    """)
    for t in range(2):
        a(f"""
        s_add_u32 s71, s70, {t}
        v_xor_b32 v6, s71, v7
        v_lshl_add_u32 v{WA+t}, v6, 6, v5
        """)
    for sl in (1, 2):
        for ks in range(4):
            a(f"v_add_u32 v{XA+4*sl+ks}, {sl*SLOT}, v{XA+ks}")
        for t in range(2):
            a(f"v_add_u32 v{WA+2*sl+t}, {sl*SLOT}, v{WA+t}")
    a(f"""
    s_lshl_b32 s70, s{S_RB}, 2
    s_lshl_b32 s71, s68, 1
    s_add_u32 s70, s70, s71
    s_mul_i32 s70, s70, 112
    s_lshl_b32 s71, s{S_CB}, 3
    s_add_u32 s70, s70, s71
    s_lshl_b32 s71, s69, 2
    s_add_u32 s70, s70, s71
    s_lshl_b32 s70, s70, 10
    s_add_u32 s71, s70, {112*1024}
    s_lshl_b32 s3, s{S_RB}, 1
    s_add_u32 s3, s3, s68
    s_lshl_b32 s3, s3, 5
    s_lshl_b32 s72, s{S_CB}, 1
    s_add_u32 s3, s3, s72
    s_add_u32 s3, s3, s69
    s_lshl_b32 s3, s3, 7
    s_add_u32 s3, s3, {FH_OFF}
    s_mov_b32 s72, {f32(-LOG2E)}
    s_mov_b32 s73, {f32(-LOG2E)}
    """)

    def reads(n):
        st, ks = n >> 2, n & 3
        sl = st % 3
        b = n % 3
        r = []
        r.append(f"ds_read_b128 {v(xf(b,0),4)}, v{XA+4*sl+ks}")
        for mat in range(2):
            for t in range(2):
                for h2 in range(2):
                    off = 16384 * (1 + mat) + ks * 4096 + h2 * 1024
                    r.append(f"ds_read_b64_tr_b16 {v(wf(b,mat,t)+2*h2,2)}, v{WA+2*sl+t} offset:{off}")
                if mat == 0 and t == 0:
                    r.append(f"ds_read_b128 {v(xf(b,1),4)}, v{XA+4*sl+ks} offset:4096")
        return r

    T = 16

    def epi(p):
        t, tt = p >> 1, p & 1
        G, U = acc(0, t, tt), acc(1, t, tt)
        o = 32 + 8 * p
        L = []
        for h in range(2):
            R = range(8 * h, 8 * h + 8)
            L += [f"v_pk_mul_f32 {v(T+i,2)}, {v(G+i,2)}, s[72:73]" for i in R[::2]]
            for i in R[::2]:
                L += [f"v_exp_f32 v{T+i}, v{T+i}", f"v_exp_f32 v{T+i+1}, v{T+i+1}",
                      f"v_pk_mul_f32 {v(U+i,2)}, {v(G+i,2)}, {v(U+i,2)}"]
            L += [f"v_pk_add_f32 {v(T+i,2)}, {v(T+i,2)}, 1.0 op_sel_hi:[1,0]" for i in R[::2]]
            L += [f"v_rcp_f32 v{T+i}, v{T+i}" for i in R]
            L += [f"v_pk_mul_f32 {v(U+i,2)}, {v(U+i,2)}, {v(T+i,2)}" for i in R[::2]]
            for i in range(4):
                L.append(f"v_cvt_pk_bf16_f32 v{o+4*h+i}, v{U+8*h+2*i}, v{U+8*h+2*i+1}")
            L.append(f"buffer_store_dwordx4 {v(o+4*h,4)}, v{VL16}, {sr(SRD_WS)}, s{70+tt} offen offset:{t*2048+1024*h} sc1")
        return L

    a("s_barrier")
    a.ext(stamp(1))
    a.ext(bstamp(2, 1))
    a.ext(reads(0))
    a.ext(reads(1))
    extra = []
    XL = OPT.get("xl", 13)
    for n in range(32):
        b = n % 3
        if (n & 3) == 2:
            a("s_waitcnt lgkmcnt(0)")
            a.ext(bstamp(2, 2 + (n >> 2)))
            a("s_barrier")
            if n == 22:
                a.ext(stamp(2))
        elif (n & 3) != 3:
            a("s_waitcnt lgkmcnt(10)")
        rd = reads(n + 2) if n + 2 < 32 else []
        mf = []
        for t in range(2):
            for tt in range(2):
                for mat in range(2):
                    c = "0" if n == 0 else v(acc(mat, t, tt), 16)
                    mf.append(f"v_mfma_f32_32x32x16_bf16 {v(acc(mat,t,tt),16)}, {v(wf(b,mat,t),4)}, {v(xf(b,tt),4)}, {c}")
        if n == 30:
            extra = [f"v_mov_b32 v2, {N_LDS}", "ds_read_b32 v3, v2"]
        for i, m in enumerate(mf):
            a(m)
            a.ext(rd[2 * i:2 * i + 2])
            if i >= 4:
                a.ext(extra[:3])
                extra = extra[3:]
    assert not extra
    a.ext(stamp(3))
    if OPT.get("eprio", 0):
        a(f"s_setprio {OPT['eprio']}")
    a(f"s_waitcnt lgkmcnt(0)\nv_readfirstlane_b32 s{S_NONCE}, v3\ns_nop 5")
    for p in range(4):
        a.ext(epi(p))
    a.ext(stamp(4))
    a("s_branch L_GEMM2")


def spare(a):
    R = 16
    O = 80
    GWv = 112
    SUM = 120
    a(f"""
    s_sub_u32 s68, s{S_IDX}, 28
    s_lshl_b32 s3, s{S_XCD}, 2
    s_add_u32 s3, s3, s68
    s_lshl_b32 s3, s3, 5
    s_add_u32 s3, s3, s{S_WIDX}
    s_lshl_b32 s3, s3, 2
    s_add_u32 s3, s3, {FU_OFF}
    s_lshl_b32 s68, s68, 2
    s_add_u32 s68, s68, s{S_WIDX}
    s_lshr_b32 s69, s68, 1
    s_mov_b32 s74, s{S_XCD}
    v_and_b32 v1, 7, v0
    v_lshrrev_b32 v2, 3, v0
    v_lshlrev_b32 v3, 15, v2
    v_lshl_add_u32 v3, v1, 4, v3
    v_mul_u32_u24 v4, {8*DP}, v1
    v_lshl_add_u32 v4, v2, 4, v4
    v_lshlrev_b32 v5, 4, v1
    v_lshlrev_b32 v6, 2, v0
    s_mov_b32 s70, 0x05040100
    s_mov_b32 s71, 0x07060302
    s_lshl_b32 s72, s69, 7
    v_add_u32 v7, s72, v5
    global_load_dwordx4 {v(GWv,4)}, v7, s[{S_GW}:{S_GW+1}]
    """)
    for i in range(2):
        b = 6 + 4 * i
        a(f"""
        s_lshl_b32 s73, s68, 1
        s_add_u32 s73, s73, {i}
        s_and_b32 s73, s73, 3
        s_lshl_b32 s{b}, s74, 18
        s_lshl_b32 s75, s73, 10
        s_add_u32 s{b}, s{b}, s75
        s_add_u32 s{b}, s{b}, s72
        s_mul_i32 s{b+1}, s69, {64*DP}
        s_add_u32 s{b+1}, s{b+1}, s75
        s_lshl_b32 s75, s74, 7
        s_add_u32 s{b+1}, s{b+1}, s75
        s_add_u32 s{b+1}, s{b+1}, {UT_OFF}
        s_lshl_b32 s{b+2}, s74, 8
        s_lshl_b32 s75, s73, 11
        s_add_u32 s{b+2}, s{b+2}, s75
        s_lshl_b32 s75, s69, 13
        s_add_u32 s{b+2}, s{b+2}, s75
        s_add_u32 s{b+2}, s{b+2}, {GL_OFF}
        """)
        for j in range(8):
            a(f"buffer_load_dwordx4 {v(R+32*i+4*j,4)}, v3, {sr(SRD_X)}, s{b} offen")
            if j < 7:
                a(f"s_add_u32 s{b}, s{b}, 4096")
    a("v_mov_b32 v2, 0")
    for i in range(2):
        b = 6 + 4 * i
        a("s_waitcnt vmcnt(8)")
        Ri = R + 32 * i
        for e in range(8):
            for jj in range(4):
                sel = 71 if (e & 1) else 70
                a(f"v_perm_b32 v{O+4*e+jj}, v{Ri+4*(2*jj+1)+(e>>1)}, v{Ri+4*(2*jj)+(e>>1)}, s{sel}")
            a(f"buffer_store_dwordx4 {v(O+4*e,4)}, v4, {sr(SRD_WS)}, s{b+1} offen sc1")
            if e < 7:
                a(f"s_add_u32 s{b+1}, s{b+1}, {DP}")
    a(nonce_ld(3, 2))
    a.ext(stamp(1))
    for i in range(2):
        Ri = R + 32 * i
        S_ = SUM - 8 * i * 5
        for j in range(8):
            a(f"v_mov_b32 v{S_+j}, 0")
        for q in range(4):
            for j in range(8):
                a(f"v_dot2c_f32_bf16 v{S_+j}, v{Ri+4*j+q}, v{GWv+q}")
        a("s_nop 3")
        for ctl in ("quad_perm:[1,0,3,2]", "quad_perm:[2,3,0,1]", "row_half_mirror"):
            for j in range(8):
                a(f"v_add_f32_dpp v{S_+j}, v{S_+j}, v{S_+j} {ctl} row_mask:0xf bank_mask:0xf")
        for j in range(1, 8):
            a(f"""
            v_cmp_eq_u32 vcc, {j}, v1
            s_nop 1
            v_cndmask_b32 v{S_}, v{S_}, v{S_+j}, vcc
            """)
        if i == 0:
            a("s_waitcnt vmcnt(0)")
            a.ext(plain(nonce_get("NS", 3, 2)))
            a(f"""
            s_mov_b32 s76, s{S_NONCE}
            s_mov_b64 exec, 1
            buffer_store_dword v3, v2, {sr(SRD_WS)}, s3 offen sc1
            s_mov_b64 exec, -1
            """)
            a.ext(stamp(2))
    a(f"""
    buffer_store_dword v{SUM}, v6, {sr(SRD_WS)}, s8 offen sc1
    buffer_store_dword v{SUM-40}, v6, {sr(SRD_WS)}, s12 offen sc1
    v_mov_b32 v5, {N_LDS}
    ds_write_b32 v5, v3
    s_add_u32 s3, s3, {FG_OFF - FU_OFF}
    s_waitcnt vmcnt(0)
    s_mov_b64 exec, 1
    buffer_store_dword v3, v2, {sr(SRD_WS)}, s3 offen sc1
    s_mov_b64 exec, -1
    s_sub_u32 s3, s3, {FG_OFF}
    s_lshl_b32 s3, s3, 5
    s_add_u32 s3, s3, {FD_OFF}
    s_waitcnt lgkmcnt(0)
    """)
    a.ext(stamp(3))
    a("s_barrier")
    gemm2_setup(a)
    a(f"s_mov_b32 s{S_NONCE}, s76\ns_waitcnt vmcnt(0)")


def spin(label, loads, checks, sleep=2):
    L = [f"{label}_SPIN:", f"s_sleep {sleep}"]
    L += [("NOCOUNT", x) for x in loads]
    L += ["s_waitcnt vmcnt(0)"]
    L += ["s_sub_u32 s77, s77, 1", "s_cmp_eq_u32 s77, 0", f"s_cbranch_scc1 {label}_OK"]
    L += [f"{label}_CHK:"] + checks
    L += [f"s_cbranch_scc0 {label}_SPIN", f"{label}_OK:"]
    return L


S_NONCE = 23


def nonce_ld(vd, vz):
    return f"global_load_dword v{vd}, v{vz}, s[{S_DBG}:{S_DBG+1}] sc1"


def nonce_get(label, vd, vz, sleep=8):
    L = ["s_mov_b32 s77, 0x100000", f"s_branch {label}_CHK"]
    L += spin(label, [nonce_ld(vd, vz)], [f"v_cmp_ne_u32 vcc, 0, v{vd}", "s_nop 3", "s_cmp_eq_u64 vcc, exec"], sleep)
    L += [f"v_readfirstlane_b32 s{S_NONCE}, v{vd}", "s_nop 3"]
    return L


def plain(lines):
    return [x[1] if isinstance(x, tuple) else x for x in lines]


def gemm2(a0):
    a = Asm()
    NS = 28
    NP = 12
    NR = 16
    DH = 6
    ACC = 192
    WF = 16
    WFR = 128
    HB = 144
    N1 = n1()
    NF = OPT.get("nf", 2)
    PP1 = OPT.get("pp1", 21)
    N2 = OPT.get("n2", 28)

    def acc(t, tt):
        return ACC + 16 * (t + 2 * tt)

    def wload(i):
        sl = i % NR
        return [
            "s_lshl_b32 s14, s11, 14", f"s_add_u32 m0, s8, {sl*2048}", "s_add_u32 s14, s14, s10",
            f"buffer_load_dwordx4 v{VD0}, {sr(SRD_WD)}, s14 offen lds",
            "s_add_u32 s11, s11, 1", "s_cmp_ge_u32 s11, 28", "s_cselect_b32 s11, 0, s11",
            f"buffer_load_dwordx4 v{VD1}, {sr(SRD_WD)}, s14 offen offset:1024 lds",
            ("VMTAG", f"W{i}"),
        ]

    def hload(i):
        sl = i % DH
        return [
            "s_lshl_b32 s13, s12, 10", "s_add_u32 s13, s13, s9",
            f"buffer_load_dwordx4 {v(HB+8*sl,4)}, v{VL16}, {sr(SRD_WS)}, s13 offen sc1",
            "s_add_u32 s13, s13, s22",
            "s_add_u32 s12, s12, 1", "s_cmp_ge_u32 s12, 28", "s_cselect_b32 s12, 0, s12",
            f"buffer_load_dwordx4 {v(HB+8*sl+4,4)}, v{VL16}, {sr(SRD_WS)}, s13 offen sc1",
            ("VMTAG", f"H{i}"),
        ]

    def wfrag(i):
        return WF + 8 * i if i < NP else WFR + 8 * (i & 1)

    def trd(i):
        sl = i % NR
        r = [("VMWAIT", f"W{i}")] if i >= N1 else []
        for t in range(2):
            for h2 in range(2):
                r.append(f"ds_read_b64_tr_b16 {v(wfrag(i)+4*t+2*h2,2)}, v{DA0+t} offset:{sl*2048+h2*1024}")
        return r

    NE = OPT.get("ne", -1)
    a(f"""
    s_setprio 2
    v_mov_b32 v2, 0
    v_mov_b32 v3, s{S_NONCE}
    s_mov_b32 s77, 0x100000
    """)
    pub = f"""
    s_waitcnt vmcnt(0)
    s_mov_b64 exec, 1
    buffer_store_dword v3, v2, {sr(SRD_WS)}, s3 offen sc1
    s_mov_b64 exec, -1
    """
    if NE < 0:
        a(pub)
    a.ext(stamp(5))
    a("s_barrier")
    ph_ld = f"buffer_load_dword v4, v{VPH}, {sr(SRD_WS)}, s15 offen sc1"

    def wl(i):
        a.ext(wload(i))
        if i == PP1:
            a(ph_ld)
            a.tag("P1")
    assert NP <= N1
    first = list(range(NP - max(NE, 0), NP))
    for i in first:
        a.ext(trd(i))
    if NE >= 0:
        a(pub)
    a.ext(stamp(6))
    for i in range(N1, NR):
        wl(i)
    rest = [i for i in range(NP) if i not in first]
    for i in range(NP + 1):
        if i in rest:
            a.ext(trd(i))
        if i >= 1 and NR + i - 1 < N2:
            if i - 1 in rest:
                a(f"s_waitcnt lgkmcnt({4 if i in rest else 0})")
            wl(NR + i - 1)
    a.ext(stamp(7))
    a.wait("P1")
    a("s_branch PH_CHK")
    a.ext(spin("PH", [ph_ld], [f"v_cmp_eq_u32 vcc, s{S_NONCE}, v4", "s_nop 3", "s_cmp_eq_u64 vcc, exec"]))
    a.ext(stamp(8))
    a.ext(bstamp(3, 1))
    for i in range(DH):
        a.ext(hload(i))
    a("s_waitcnt lgkmcnt(0)")

    YR, FL, YT, EG = 80, 2, WFR, 6
    fl_ld = [f"buffer_load_dword v{FL}, v{VFL}, {sr(SRD_WS)}, s16 offen sc1"]
    chk = [f"v_cmp_eq_u32 vcc, s{S_NONCE}, v{FL}", "s_nop 3", "s_cmp_eq_u64 vcc, exec"]

    def yloads():
        return [f"buffer_load_dwordx4 {v(YR,4)}, v{VY}, {sr(SRD_WS)}, s19 offen sc1",
                f"s_add_u32 s13, s19, {8*DP}",
                f"buffer_load_dwordx4 {v(YR+4,4)}, v{VY}, {sr(SRD_WS)}, s13 offen sc1"]

    IF = OPT.get("if", 22)
    IY = OPT.get("iy", 25)
    for i in range(NS):
        sl = i % DH
        a.wait(f"H{i}")
        if i >= NP:
            a("s_waitcnt lgkmcnt(0)")
        hl = hload(i - 1 + DH) if 1 <= i and i - 1 + DH < NS else []
        fill = [(trd(i + 1) if NP <= i + 1 < NS else []) + hl[:3], hl[3:], wload(N2 + i) if N2 + i < NS else [], []]
        k = 0
        for t in range(2):
            for tt in range(2):
                c = "0" if i == 0 else v(acc(t, tt), 16)
                a(f"v_mfma_f32_32x32x16_bf16 {v(acc(t,tt),16)}, {v(wfrag(i)+4*t,4)}, {v(HB+8*sl+4*tt,4)}, {c}")
                a.ext(fill[k])
                k += 1
        if i in (0, 3, 7, 11, 15, 19, 23, 27):
            a.ext(bstamp(3, 2 + (0, 3, 7, 11, 15, 19, 23, 27).index(i)))
        if i == IF:
            a.ext(fl_ld)
            a.tag("F")
        if i == IY:
            a.wait("F")
            a.ext(yloads())
    a.ext(stamp(9))
    a.ext(chk)
    a("s_cbranch_scc1 PY_DONE")
    a.ext(spin("PY", fl_ld, chk))
    a.ext([("NOCOUNT", x) if is_vmem(x) else x for x in yloads()])
    a("PY_DONE:")
    a("s_nop 5")
    for k in range(1, 4):
        for g in range(4):
            a(f"ds_write_b128 v{VW1}, {v(ACC+16*k+4*g,4)} offset:{k*4096+g*1024}")
    X1, Y1 = HB, HB + 16
    OST = {0: "", 1: " sc1", 2: " nt", 3: " sc0 sc1"}[OPT.get("ost", 0)]
    a(f"""
    v_mov_b32 v5, 0xffff0000
    s_waitcnt vmcnt(0)
    ds_write_b128 v{VYW}, {v(YR,4)} offset:16384
    ds_write_b128 v{VYW}, {v(YR+4,4)} offset:17408
    """)
    a("s_waitcnt lgkmcnt(0)")
    a("s_barrier")
    PB = 16
    a(f"ds_read_b32 v{EG}, v{VG}")
    for q in range(4):
        a(f"ds_read_b64_tr_b16 {v(YT+2*q,2)}, v{VYT} offset:{16384+q*512}")
    for k, base in ((1, VR1), (2, VW2), (3, VW3)):
        for g in range(4):
            a(f"ds_read_b128 {v(PB+16*(k-1)+4*g,4)}, v{base} offset:{k*4096+g*1024}")
    a("s_waitcnt lgkmcnt(12)")
    for i in range(8):
        a(f"""
        v_lshlrev_b32 v{Y1+2*i}, 16, v{YT+i}
        v_and_b32 v{Y1+2*i+1}, v5, v{YT+i}
        """)
    a("s_waitcnt lgkmcnt(8)")
    for i in range(0, 16, 2):
        a(f"v_pk_add_f32 {v(ACC+i,2)}, {v(ACC+i,2)}, {v(PB+i,2)}")
    a("s_waitcnt lgkmcnt(0)")
    for i in range(0, 16, 2):
        a(f"v_pk_add_f32 {v(PB+16+i,2)}, {v(PB+16+i,2)}, {v(PB+32+i,2)}")
    for i in range(0, 16, 2):
        a(f"v_pk_add_f32 {v(ACC+i,2)}, {v(ACC+i,2)}, {v(PB+16+i,2)}")
    for i in range(0, 16, 2):
        a(f"v_pk_add_f32 {v(Y1+i,2)}, {v(Y1+i,2)}, {v(ACC+i,2)} neg_lo:[0,1] neg_hi:[0,1]")
    for i in range(0, 16, 2):
        a(f"v_pk_fma_f32 {v(ACC+i,2)}, {v(Y1+i,2)}, {v(EG,2)}, {v(ACC+i,2)} op_sel_hi:[1,0,1]")
    for i in range(8):
        a(f"v_cvt_pk_bf16_f32 v{X1+i}, v{ACC+2*i}, v{ACC+2*i+1}")
    a(f"""
    buffer_store_dwordx4 {v(X1,4)}, v{VEP}, {sr(SRD_OUT)}, 0 offen{OST}
    buffer_store_dwordx4 {v(X1+4,4)}, v{VEP}, {sr(SRD_OUT)}, 0 offen offset:16{OST}
    """)
    a.ext(stamp_end())
    a0.ext(resolve_vm(a.L))


def kwave(gemm_wg):
    sfx = "G" if gemm_wg else "S"
    ra = RA(2, 256)
    pre = Asm()
    main = Asm()
    ph2 = Asm()
    a = pre
    a(f"""
    s_setprio {OPT.get("kprio", 0)}
    s_sub_u32 s68, s{S_WIDX}, 6
    s_lshl_b32 s69, s2, 1
    s_add_u32 s69, s69, s68
    s_lshl_b32 s70, s68, 13
    s_add_u32 s70, s70, {KG_BASE}
    s_lshl_b32 s71, s69, 8
    """)
    t0 = ra(); t1 = ra(); t2 = ra(); t3 = ra()
    PR = ra(7)
    DV = ra()
    a(f"""
    v_lshlrev_b32 v{t0}, 2, v0
    v_add_u32 v{t0}, s71, v{t0}
    s_lshl_b32 s72, s69, 1
    v_mov_b32 v{t1}, s72
    """)
    for i, sb in enumerate((S_ARE, S_AIM, S_BRE, S_BIM, S_CRE, S_CIM)):
        a(f"global_load_dword v{PR+i}, v{t0}, s[{sb}:{sb+1}]")
    a(f"global_load_ushort v{PR+6}, v{t1}, s[{S_LDT}:{S_LDT+1}]")
    a(f"global_load_ushort v{DV}, v{t1}, s[{S_DS}:{S_DS+1}]")
    if gemm_wg:
        a(f"""
        s_cmp_lg_u32 s69, 0
        s_cbranch_scc1 K{sfx}_NOTAG
        s_memrealtime s[72:73]
        v_mov_b32 v{t0}, 0
        s_waitcnt lgkmcnt(0)
        s_or_b32 s72, s72, 1
        v_mov_b32 v{t1}, s72
        s_mov_b64 exec, 1
        global_store_dword v{t0}, v{t1}, s[{S_DBG}:{S_DBG+1}] sc1
        s_mov_b64 exec, -1
        K{sfx}_NOTAG:
        """)

    WR = ra(8)
    RD = ra(2)
    a(f"""
    v_lshrrev_b32 v{t0}, 1, v0
    v_and_b32 v{t1}, 7, v{t0}
    v_lshlrev_b32 v{t0}, 8, v{t0}
    v_and_b32 v{t2}, 1, v0
    v_lshl_add_u32 v{t0}, v{t2}, 3, v{t0}
    v_add_u32 v{t0}, s70, v{t0}
    """)
    for b in range(8):
        a(f"""
        v_xor_b32 v{t2}, {b}, v{t1}
        v_lshl_add_u32 v{WR+b}, v{t2}, 4, v{t0}
        """)
    a(f"""
    v_and_b32 v{t0}, 15, v0
    v_lshrrev_b32 v{t1}, 4, v0
    """)
    for p in range(2):
        a(f"""
        v_add_u32 v{t2}, {4*p}, v{t1}
        v_xor_b32 v{t3}, v{t2}, v{t0}
        v_lshlrev_b32 v{t3}, 4, v{t3}
        v_lshl_add_u32 v{t3}, v{t2}, 8, v{t3}
        v_add_u32 v{RD+p}, s70, v{t3}
        """)
    TA0 = ra(); TA1 = ra(); TA2 = ra(); TA3 = ra()
    LP = ra(12)
    a(f"""
    v_and_b32 v{t2}, 1, v{t1}
    v_lshrrev_b32 v{t3}, 1, v{t1}
    v_lshlrev_b32 v{TA0}, 5, v{t0}
    v_lshl_add_u32 v{TA0}, v{t2}, 4, v{TA0}
    v_lshl_add_u32 v{TA0}, v{t3}, 9, v{TA0}
    v_lshrrev_b32 v{LP}, 2, v{TA0}
    v_cvt_f32_u32 v{LP}, v{LP}
    v_add_u32 v{TA0}, s70, v{TA0}
    v_add_f32 v{LP+1}, 1.0, v{LP}
    v_add_f32 v{LP+2}, 2.0, v{LP}
    v_add_f32 v{LP+3}, 2.0, v{LP+1}
    v_cmp_gt_u32 vcc, 2, v{t1}
    v_lshlrev_b32 v{TA1}, 4, v{t0}
    v_lshlrev_b32 v{TA2}, 3, v{t0}
    v_cndmask_b32 v{TA1}, v{TA2}, v{TA1}, vcc
    v_lshl_add_u32 v{TA1}, v{t1}, 8, v{TA1}
    v_add_u32 v{TA1}, s70, v{TA1}
    v_add_u32 v{TA1}, 1024, v{TA1}
    v_mov_b32 v{TA2}, 128
    v_cndmask_b32 v{TA2}, v{TA2}, 8, vcc
    v_add_u32 v{TA2}, v{TA2}, v{TA1}
    v_lshlrev_b32 v{TA3}, 2, v{t0}
    v_lshl_add_u32 v{TA3}, v{t1}, 8, v{TA3}
    v_add_u32 v{TA3}, s70, v{TA3}
    """)
    a(f"""
    v_lshlrev_b32 v{t2}, 7, v{t1}
    v_add_u32 v{t2}, 256, v{t2}
    v_lshlrev_b32 v{t3}, 8, v{t1}
    v_cndmask_b32 v{t2}, v{t3}, v{t2}, vcc
    v_lshl_add_u32 v{t2}, v{t0}, 3, v{t2}
    v_cvt_f32_u32 v{LP+4}, v{t2}
    v_mov_b32 v{t2}, 4.0
    v_cndmask_b32 v{t2}, v{t2}, 2.0, vcc
    v_mov_b32 v{t3}, {f32(128.0)}
    v_cndmask_b32 v{t3}, v{t3}, 4.0, vcc
    v_add_f32 v{LP+5}, v{LP+4}, v{t2}
    v_add_f32 v{LP+6}, v{LP+4}, v{t3}
    v_add_f32 v{LP+7}, v{LP+6}, v{t2}
    v_lshlrev_b32 v{t2}, 9, v{t1}
    v_lshl_add_u32 v{t2}, v{t0}, 3, v{t2}
    v_add_u32 v{t2}, 1024, v{t2}
    v_cvt_f32_u32 v{LP+8}, v{t2}
    v_add_f32 v{LP+9}, {f32(128.0)}, v{LP+8}
    v_add_f32 v{LP+10}, {f32(256.0)}, v{LP+8}
    v_add_f32 v{LP+11}, {f32(384.0)}, v{LP+8}
    """)
    EX = ra(10)
    a(f"""
    s_sub_u32 s72, s70, {4*17024}
    v_lshlrev_b32 v{t0}, 3, v0
    v_cvt_f32_u32 v{t1}, v{t0}
    v_cmp_gt_u32 vcc, 16, v0
    v_add_u32 v{EX+8}, s70, v{t0}
    v_lshlrev_b32 v{t0}, 2, v{t0}
    v_add_u32 v{t0}, s70, v{t0}
    v_lshlrev_b32 v{EX+9}, 2, v0
    v_add_u32 v{EX+9}, s70, v{EX+9}
    v_add_u32 v{EX+9}, 2048, v{EX+9}
    """)
    for kk in range(4):
        e0, e1 = EX + 2 * kk, EX + 2 * kk + 1
        a(f"""
        v_add_f32 v{t2}, 1.0, v{t1}
        v_cvt_pk_bf16_f32 v{t3}, v{t1}, v{t2}
        v_add_f32 v{t1}, 2.0, v{t1}
        v_and_b32 v{e0}, 0xffff, v{t3}
        v_lshrrev_b32 v{e1}, 16, v{t3}
        v_lshl_add_u32 v{e0}, v{e0}, 2, s72
        v_lshl_add_u32 v{e1}, v{e1}, 2, s72
        v_add_u32 v{t2}, {8*kk}, v{t0}
        v_add_u32 v{t3}, {8*kk+4}, v{t0}
        v_cndmask_b32 v{e0}, v{e0}, v{t2}, vcc
        v_cndmask_b32 v{e1}, v{e1}, v{t3}, vcc
        """)

    a = main
    a("s_waitcnt vmcnt(0)")
    MASK = ra()
    DT = ra()
    PP = ra(12)
    a(f"""
    v_mov_b32 v{MASK}, 0xffff0000
    v_cmp_eq_u32 vcc, 0, v0
    v_lshlrev_b32 v{DV}, 16, v{DV}
    s_nop 0
    v_cndmask_b32 v{DV}, 0, v{DV}, vcc
    """)
    for i in range(6):
        a(f"v_lshlrev_b32 v{PP+2*i}, 16, v{PR+i}")
        a(f"v_and_b32 v{PP+2*i+1}, v{MASK}, v{PR+i}")
    x = PR + 6
    a(f"""
    v_lshlrev_b32 v{x}, 16, v{x}
    v_mul_f32 v{t0}, {f32(LOG2E_HI)}, v{x}
    s_mov_b32 s72, {f32(LOG2E_HI)}
    v_fma_f32 v{t1}, v{x}, s72, -v{t0}
    v_fmac_f32 v{t1}, {f32(LOG2E_LO)}, v{x}
    v_exp_f32 v{t0}, v{t0}
    v_mul_f32 v{t1}, {f32(LN2)}, v{t1}
    v_fmac_f32 v{t0}, v{t0}, v{t1}
    v_cvt_pk_bf16_f32 v{t0}, v{t0}, v{t0}
    v_lshlrev_b32 v{DT}, 16, v{t0}
    """)
    A2, TH, Br, Bi, Cr, Ci = (PP + 2 * i for i in range(6))
    for m in range(2):
        a(f"""
        v_mul_f32 v{A2+m}, v{DT}, v{A2+m}
        v_mul_f32 v{TH+m}, v{DT}, v{TH+m}
        v_mul_f32 v{Br+m}, v{DT}, v{Br+m}
        v_mul_f32 v{Bi+m}, v{DT}, v{Bi+m}
        v_mul_f32 v{A2+m}, {f32(LOG2E)}, v{A2+m}
        v_mul_f32 v{TH+m}, {f32(INV2PI)}, v{TH+m}
        """)
    W0 = ra(4); W1 = ra(4)
    for m in range(2):
        a(f"""
        v_mul_f32 v{W0+2*m}, v{Cr+m}, v{Br+m}
        v_mul_f32 v{W0+2*m+1}, v{Cr+m}, v{Bi+m}
        v_fma_f32 v{W0+2*m}, -v{Ci+m}, v{Bi+m}, v{W0+2*m}
        v_fmac_f32 v{W0+2*m+1}, v{Ci+m}, v{Br+m}
        v_sub_f32 v{W0+2*m+1}, 0, v{W0+2*m+1}
        """)
    SIG = ra(); WM = ra(); CE = ra()
    a(f"""
    v_max_f32 v{SIG}, v{A2}, v{A2+1}
    v_max3_f32 v{WM}, |v{W0}|, |v{W0+1}|, |v{W0+2}|
    v_max_f32 v{WM}, |v{W0+3}|, v{WM}
    s_nop 1
    """)
    for ctl in ("quad_perm:[1,0,3,2]", "quad_perm:[2,3,0,1]", "row_half_mirror", "row_mirror"):
        a(f"""
        v_max_f32_dpp v{SIG}, v{SIG}, v{SIG} {ctl} row_mask:0xf bank_mask:0xf
        v_max_f32_dpp v{WM}, v{WM}, v{WM} {ctl} row_mask:0xf bank_mask:0xf
        s_nop 0
        """)
    a(f"""
    v_readlane_b32 s72, v{SIG}, 0
    v_readlane_b32 s73, v{SIG}, 16
    v_readlane_b32 s74, v{SIG}, 32
    v_readlane_b32 s75, v{SIG}, 48
    v_readlane_b32 s6, v{WM}, 0
    v_readlane_b32 s7, v{WM}, 16
    v_readlane_b32 s8, v{WM}, 32
    v_readlane_b32 s9, v{WM}, 48
    v_max_f32 v{SIG}, s72, v{SIG}
    v_max_f32 v{SIG}, s73, v{SIG}
    v_max_f32 v{SIG}, s74, v{SIG}
    v_max_f32 v{SIG}, s75, v{SIG}
    v_max_f32 v{WM}, s6, v{WM}
    v_max_f32 v{WM}, s7, v{WM}
    v_max_f32 v{WM}, s8, v{WM}
    v_max_f32 v{WM}, s9, v{WM}
    v_sub_f32 v{A2}, v{A2}, v{SIG}
    v_sub_f32 v{A2+1}, v{A2+1}, v{SIG}
    v_frexp_exp_i32_f32 v{CE}, v{WM}
    v_sub_u32 v{t0}, 14, v{CE}
    v_subrev_u32 v{CE}, 29, v{CE}
    """)
    for i in range(4):
        a(f"v_ldexp_f32 v{W0+i}, v{W0+i}, v{t0}")

    def cexp(l):
        r = ra(6)
        for m in range(2):
            a(f"""
            v_mul_f32 v{t0}, {f32(float(l))}, v{A2+m}
            v_mul_f32 v{t1}, {f32(float(l))}, v{TH+m}
            v_exp_f32 v{t0}, v{t0}
            v_fract_f32 v{t1}, v{t1}
            v_cos_f32 v{t2}, v{t1}
            v_sin_f32 v{t3}, v{t1}
            s_nop 0
            v_mul_f32 v{r+2*m}, v{t0}, v{t2}
            v_mul_f32 v{r+2*m+1}, v{t0}, v{t3}
            v_sub_f32 v{r+4+m}, 0, v{r+2*m+1}
            """)
        return r

    def cmul(d, x_, b, conj=False):
        for m in range(2):
            br, bi, nbi = b + 2 * m, b + 2 * m + 1, b + 4 + m
            if conj:
                bi, nbi = nbi, bi
            a(f"""
            v_mul_f32 v{d+2*m}, v{x_+2*m}, v{br}
            v_mul_f32 v{d+2*m+1}, v{x_+2*m}, v{bi}
            v_fmac_f32 v{d+2*m}, v{x_+2*m+1}, v{nbi}
            v_fmac_f32 v{d+2*m+1}, v{x_+2*m+1}, v{br}
            """)

    def neg(b):
        for m in range(2):
            a(f"v_sub_f32 v{b+4+m}, 0, v{b+2*m+1}")

    def scale(d, x_):
        for i in range(4):
            a(f"v_mul_f32 v{d+i}, {f32(32768.0)}, v{x_+i}")

    VB = [ra(32, 4), ra(32, 4), ra(32, 4), ra(18, 4)]
    CH0 = ra(0, 4)

    def put(batch, row, r):
        h = VB[batch] + 2 * row
        if r is None:
            a(f"v_mov_b32 v{h}, 0x7800\nv_mov_b32 v{h+1}, 0x7800")
        else:
            a(f"""
            v_cvt_pk_f16_f32 v{h}, v{r}, v{r+1}
            v_cvt_pk_f16_f32 v{h+1}, v{r+2}, v{r+3}
            """)

    E8 = cexp(8)
    cur, nxt = W0, W1
    for c in range(16):
        if c < 15:
            cmul(nxt, cur, E8, conj=True)
        put(0, c, cur)
        cur, nxt = nxt, cur
    E1 = cexp(1)
    Q1 = cexp(128)
    Q8 = cexp(1024)
    P = {}
    P[1] = ra(4)
    scale(P[1], E1)
    for j in range(2, 8):
        P[j] = ra(6 if j == 4 else 4)
        cmul(P[j], P[j - 1], E1)
    put(1, 0, None)
    for j in range(1, 8):
        put(1, j, P[j])
    scale(W0, Q1)
    put(1, 8, W0)
    for j in range(1, 8):
        cmul(W0, P[j], Q1)
        put(1, 8 + j, W0)
    Q = {1: Q1, 8: Q8}
    for j in range(2, 8):
        Q[j] = {2: E1, 3: PP + 4}[j] if j < 4 else P[2 * (j - 4) + 1]
        cmul(Q[j], Q[j - 1], Q1)
    neg(P[4]); neg(Q[2]); neg(Q[3])
    for qi, j in enumerate((2, 3)):
        scale(W0, Q[j])
        put(2, 4 * qi, W0)
        for r in range(1, 4):
            cmul(W0, P[2 * r], Q[j])
            put(2, 4 * qi + r, W0)
    for aa in range(4):
        scale(W0, Q[4 + aa])
        put(2, 8 + 2 * aa, W0)
        cmul(W0, Q[4 + aa], P[4])
        put(2, 8 + 2 * aa + 1, W0)
    a(f"v_mov_b32 v{PR}, 0")
    a(nonce_ld(PR + 1, PR))
    QS = E8
    scale(QS, Q8)
    neg(QS)
    put(3, 0, QS)
    for j in range(1, 8):
        cmul(W0, Q[j], QS)
        put(3, j, W0)
    cmul(W0, Q8, QS)
    put(3, 8, W0)
    for i in range(12):
        a(f"v_mul_f32 v{LP+i}, v{SIG}, v{LP+i}")
    for i in range(12):
        a(f"v_exp_f32 v{LP+i}, v{LP+i}")

    a = ph2
    YF = CH0
    AC = CH0 + 32
    assert AC + 12 <= ra.p

    def wr(batch, nrows):
        for row in range(nrows):
            a(f"ds_write_b64 v{WR+(row&7)}, {v(VB[batch]+2*row,2)} offset:{(row>>3)*128}")

    def fetch(F):
        for ks in range(8):
            a(f"ds_read_b128 {v(F+4*ks,4)}, v{RD+(ks&1)} offset:{(ks>>1)*2048}")

    def mfmas(tile, XF):
        for ks in range(8):
            c = "0" if ks == 0 else v(AC + 4 * tile, 4)
            a(f"v_mfma_f32_16x16x32_f16 {v(AC+4*tile,4)}, {v(XF+4*ks,4)}, {v(YF+4*ks,4)}, {c}")

    a("s_waitcnt vmcnt(0)")
    ng = plain(nonce_get(f"NK{sfx}", PR + 1, PR))
    a(f"v_mov_b32 v{t2}, {N_LDS}")
    a(f"ds_write_b32 v{t2}, v{PR+1}")
    wr(0, 16); fetch(YF)
    wr(1, 16); fetch(VB[0])
    wr(2, 16); fetch(VB[1])
    a("s_waitcnt lgkmcnt(15)")
    mf0 = len(a.L)
    wr(3, 9); fetch(VB[2])
    tail = a.L[mf0:]
    del a.L[mf0:]
    m = Asm()
    sv, a = a, m
    mfmas(0, VB[0])
    a = sv
    for i in range(8):
        a.ext(tail[2 * i:2 * i + 2])
        a(m.L[i])
    a.ext(tail[16:])
    a("s_waitcnt lgkmcnt(15)")
    mfmas(1, VB[1])
    a("s_waitcnt lgkmcnt(0)")
    mfmas(2, VB[2])
    a("s_nop 3")
    for i in range(12):
        a(f"v_mul_f32 v{AC+i}, v{AC+i}, v{LP+i}")
    for i in range(12):
        a(f"v_ldexp_f32 v{AC+i}, v{AC+i}, v{CE}")
    a(f"v_add_f32 v{AC}, v{AC}, v{DV}")
    a(f"ds_write_b128 v{TA0}, {v(AC,4)}")
    a(f"ds_write_b64 v{TA1}, {v(AC+4,2)}")
    a(f"ds_write_b64 v{TA2}, {v(AC+6,2)}")
    for r in range(4):
        a(f"ds_write_b32 v{TA3}, v{AC+8+r} offset:{2048+64*r}")
    G0 = VB[0]
    OUT = VB[1]
    for i in range(8):
        a(f"ds_read_b32 v{G0+i}, v{EX+i}")
    a(f"""
    ds_read_b64 {v(G0+8,2)}, v{EX+8} offset:1536
    ds_read_b32 v{G0+10}, v{EX+8} offset:1544
    ds_read2_b32 {v(G0+12,2)}, v{EX+9} offset0:0 offset1:1
    ds_read2_b32 {v(G0+14,2)}, v{EX+9} offset0:64 offset1:65
    v_lshlrev_b32 v{t0}, 4, v0
    v_add_u32 v{t0}, s70, v{t0}
    v_and_b32 v{t1}, 3, v0
    v_lshlrev_b32 v{t1}, 4, v{t1}
    v_add_u32 v{t1}, s70, v{t1}
    v_mov_b32 v{OUT+16}, 0
    v_mov_b32 v{OUT+17}, 0
    v_mov_b32 v{OUT+18}, 0
    v_mov_b32 v{OUT+19}, 0
    s_mov_b32 s72, 0xaaaaaaaa
    s_mov_b32 s73, 0xaaaaaaaa
    ds_write_b128 v{t1}, {v(OUT+16,4)} offset:{KARR}
    s_waitcnt lgkmcnt(0)
    """)
    for k in range(4):
        a(f"v_cvt_pk_bf16_f32 v{OUT+k}, v{G0+2*k}, v{G0+2*k+1}")
    a(f"""
    v_cvt_pk_bf16_f32 v{OUT+4}, v{G0+8}, v{G0+8}
    v_cvt_pk_bf16_f32 v{OUT+5}, v{G0+8}, v{G0+9}
    v_cvt_pk_bf16_f32 v{OUT+6}, v{G0+9}, v{G0+9}
    v_cvt_pk_bf16_f32 v{OUT+7}, v{G0+10}, v{G0+10}
    """)
    for it in (2, 3):
        T0, T1 = G0 + 8 + 2 * it, G0 + 9 + 2 * it
        o = OUT + 4 * it
        a(f"""
        v_cndmask_b32 v{t2}, v{T0}, v{T1}, s[72:73]
        v_cvt_pk_bf16_f32 v{o}, v{T0}, v{T0}
        v_cvt_pk_bf16_f32 v{o+1}, v{T0}, v{T0}
        v_cvt_pk_bf16_f32 v{o+2}, v{t2}, v{T1}
        v_cvt_pk_bf16_f32 v{o+3}, v{T1}, v{T1}
        """)
    a(f"v_mov_b32 v{t2}, 0")
    for it in range(4):
        a(f"ds_write_b128 v{t0}, {v(OUT+4*it,4)} offset:{KARR+64+1024*it}")
    if OPT.get("dbgk"):
        a(f"""
        s_lshl_b32 s72, s69, 12
        s_add_u32 s72, s72, {KX_OFF}
        v_lshlrev_b32 v{t0}, 4, v0
        """)
        for it in range(4):
            a(f"buffer_store_dwordx4 {v(OUT+4*it,4)}, v{t0}, {sr(SRD_WS)}, s72 offen offset:{1024*it}")
    a("s_waitcnt vmcnt(0) lgkmcnt(0)")
    ph2.L[1:1] = ["\n    ".join(ng)]

    out = list(pre.L)
    out.extend(stamp(1))
    kx = OPT.get("kx", 0)
    if kx == 1:
        ph2.L = []
    elif kx == 2:
        ph2.L = [x for x in ph2.L if not x.startswith("v_mfma")]
    elif kx == 3:
        ph2.L = [x for x in ph2.L if not x.startswith("ds_write")]
    elif kx == 4:
        ph2.L = [x for x in ph2.L if not x.startswith("ds_read")]
    elif kx == 5:
        L2 = []
        for x in ph2.L:
            L2.append(x)
            if x.startswith("ds_write_b64"):
                L2.append("s_nop 3")
        ph2.L = L2
    if gemm_wg:
        per = OPT.get("kper", 132)
        first = OPT.get("kfirst", 0)
        p2a = OPT.get("kp2a", 56)
        p2b = OPT.get("kp2b", 115)
        pos = min(first, len(main.L))
        out.extend(main.L[:pos])
        for sidx in range(9):
            out.extend(bstamp(2, 1 + sidx))
            out.append("s_barrier")
            if sidx < 6:
                end = len(main.L) if sidx == 5 else min(pos + per, len(main.L))
                out.extend(main.L[pos:end])
                pos = end
            elif sidx == 6:
                out.extend(ph2.L[:p2a])
            elif sidx == 7:
                out.extend(ph2.L[p2a:p2b])
            else:
                out.extend(ph2.L[p2b:])
        out.extend(stamp(2))
    else:
        out.extend(main.L)
        out.append("s_barrier")
        out.extend(ph2.L)
        out.extend(stamp(2))
    out.append("s_mov_b32 s6, s68")
    out.append("s_branch L_CONVB")
    return out


def fu_code(vaddr, vtmp, vdst, sd):
    setup = [f"s_lshr_b32 s16, s{sd}, 7", "s_lshl_b32 s16, s16, 7", f"s_lshr_b32 s17, s{sd}, 3", "s_and_b32 s17, s17, 8",
             "s_add_u32 s16, s16, s17", f"s_add_u32 s16, s16, {FU_OFF}",
             f"v_and_b32 v{vaddr}, 7, v0", f"v_lshlrev_b32 v{vaddr}, 9, v{vaddr}"]
    ld = [f"buffer_load_dwordx2 v[{vdst}:{vdst+1}], v{vaddr}, {sr(SRD_WS)}, s16 offen sc1"]
    chk = [f"v_cmp_eq_u32 vcc, s{S_NONCE}, v{vdst}", f"v_cmp_eq_u32 s[50:51], s{S_NONCE}, v{vdst+1}", "s_nop 3",
           "s_and_b64 vcc, vcc, s[50:51]", "s_cmp_eq_u64 vcc, exec"]
    return setup, ld, chk


def u_dma(vl16, sd):
    L = [f"s_mul_i32 s52, s6, {USZ}", f"s_mul_i32 s53, s{sd}, {DP}", f"s_add_u32 s53, s53, {UT_OFF}"]
    for r in range(4):
        L += [f"s_add_u32 m0, s52, {U_BASE + r*UPITCH + 112}", "s_nop 0",
              f"buffer_load_dwordx4 v{vl16}, {sr(SRD_WS)}, s53 offen sc1 lds", "s_add_u32 s53, s53, 1024"]
    return L


def lwave(gemm_wg):
    sfx = "G" if gemm_wg else "S"
    a = Asm()
    XV, WV, VL, VC = 8, 12, 2, 16
    t0, t1, t2 = 3, 4, 5
    DUM = 24
    ROT = OPT.get("rot", 0)
    FL8 = OPT.get("fl8", 1)
    SW = 12
    a(f"""
    s_setprio 3
    s_sub_u32 s6, s{S_WIDX}, 4
    """)

    def kofs(st):
        if not ROT:
            return []
        return [f"s_add_u32 s18, s{S_PHI}, {st}", "s_and_b32 s18, s18, 7", f"s_mul_i32 s19, s18, {64*3584}",
                "s_lshl_b32 s18, s18, 7"]

    def grp(st, g):
        sl = st % 3
        if g in (1, 5):
            j = 0 if g == 1 else 1
            L = [f"s_add_u32 m0, s{10+j}, {sl*SLOT}", f"s_add_u32 s22, s{8+j}, {'s18' if ROT else st*128}"]
            L += [f"buffer_load_dwordx4 v{XV+i}, {sr(SRD_X)}, s22 offen offset:{1024*i} lds" for i in range(4)]
        else:
            j = 0 if g == 0 else g - 1
            L = [f"s_add_u32 m0, s{72+j}, {sl*SLOT}", f"s_add_u32 s22, s{68+j}, {'s19' if ROT else st*64*3584}"]
            L += [f"buffer_load_dwordx4 v{WV+i}, {sr(SW)}, s22 offen offset:{1024*i} lds" for i in range(4)]
        return L

    def pref(st):
        L = [f"s_add_u32 s22, s68, {st*64*3584}"]
        L += [f"buffer_load_dwordx4 {v(DUM+4*i,4)}, v{WV+i}, {sr(SW)}, s22 offen offset:{1024*i}" for i in range(4)]
        L += [f"s_add_u32 s22, s23, {st*128}"]
        L += [f"buffer_load_dwordx4 {v(DUM+16+4*i,4)}, v{XV+i}, {sr(SRD_X)}, s22 offen offset:{1024*i}" for i in range(2)]
        return L

    fu_setup, fu_ld, fu_chk = fu_code(t1, t2, VC, 7)

    def poll_setup():
        a(f"""
        s_lshl_b32 s7, s2, 1
        s_add_u32 s7, s7, s6
        v_lshlrev_b32 v{VL}, 4, v0
        s_mov_b32 s77, 0x100000
        """)
        a.ext(fu_setup)

    STG = 24
    assert STG + 16 * n1() <= 256

    def wd_setup():
        a(f"""
        v_lshrrev_b32 v20, 3, v0
        v_and_b32 v21, 7, v0
        v_lshrrev_b32 v22, 1, v20
        v_and_b32 v22, 1, v22
        v_lshlrev_b32 v22, 2, v22
        v_xor_b32 v21, v21, v22
        v_lshlrev_b32 v18, 10, v20
        v_lshl_add_u32 v18, v21, 4, v18
        v_add_u32 v19, 8192, v18
        """)
        a(cb64_scalar(17, 3))
        a(f"""
        s_lshl_b32 s17, s17, 7
        s_mul_i32 s3, s6, {3*28*16384}
        s_add_u32 s3, s3, s17
        s_sub_u32 s48, 2, s6
        s_lshl_b32 s49, s48, 15
        v_add_u32 v1, s49, v{VL}
        s_mul_i32 s48, s48, {28*16384}
        s_add_u32 s48, s48, s17
        s_mul_i32 s17, s6, {3*RING2}
        v_add_u32 v7, s17, v{VL}
        """)
        a(rot_scalar(76, 17))
        a("s_mov_b32 s49, s76")

    wpos = [0, 0]
    wwp = [0, 0]

    def wd_ld(g, n):
        sb, ss = ((3, 76), (48, 49))[g]
        for _ in range(n):
            i = wpos[g]
            if i >= n1():
                break
            wpos[g] += 1
            R = STG + 8 * (g * n1() + i)
            a(f"""
            s_lshl_b32 s22, s{ss}, 14
            s_add_u32 s22, s22, s{sb}
            buffer_load_dwordx4 {v(R,4)}, v18, {sr(SRD_WD)}, s22 offen
            s_add_u32 s{ss}, s{ss}, 1
            s_cmp_ge_u32 s{ss}, 28
            s_cselect_b32 s{ss}, 0, s{ss}
            buffer_load_dwordx4 {v(R+4,4)}, v19, {sr(SRD_WD)}, s22 offen
            """)
            a.tag(f"wd{g}_{i}")

    def wd_wr(g, n):
        for i in range(wwp[g], min(n1(), wwp[g] + n)):
            wwp[g] = i + 1
            R = STG + 8 * (g * n1() + i)
            a.wait(f"wd{g}_{i}")
            for k in range(2):
                a(f"ds_write_b128 v{(7, 1)[g]}, {v(R+4*k,4)} offset:{i*2048 + k*1024}")

    def u_load():
        a(f"""
        s_cselect_b32 s19, {0 if OPT.get("forceslow") else 1}, 0
        s_mul_i32 s18, s6, {USZ}
        s_add_u32 s18, s18, {U_BASE}
        v_mov_b32 v20, 0
        v_mov_b32 v21, 0
        v_mov_b32 v22, 0
        v_mov_b32 v23, 0
        v_and_b32 v{t2}, 7, v0
        v_lshrrev_b32 v6, 3, v0
        v_and_b32 v6, 3, v6
        v_min_u32 v{t2}, 6, v{t2}
        v_mul_u32_u24 v6, {UPITCH}, v6
        v_lshl_add_u32 v{t2}, v{t2}, 4, v6
        v_add_u32 v{t2}, s18, v{t2}
        ds_write_b128 v{t2}, v[20:23]
        s_lshl_b32 s18, s6, 2
        s_add_u32 s18, s18, {S_LDS}
        v_mov_b32 v{t2}, s18
        v_mov_b32 v6, s19
        ds_write_b32 v{t2}, v6
        s_cmp_eq_u32 s19, 0
        s_cbranch_scc1 NOU{sfx}
        """)
        a.ext([("NOCOUNT", x) if is_vmem(x) else x for x in u_dma(VL, 7)])
        a(f"NOU{sfx}:")

    if gemm_wg:
        a(f"""
        v_lshrrev_b32 v{t0}, 4, v0
        v_and_b32 v{t1}, 15, v0
        v_lshlrev_b32 v{t2}, 2, v{t0}
        v_xor_b32 v{t1}, v{t1}, v{t2}
        v_mul_u32_u24 v{t0}, 3584, v{t0}
        v_lshl_add_u32 v{WV}, v{t1}, 4, v{t0}
        """)
        for i in range(1, 4):
            a(f"v_add_u32 v{WV+i}, {(4*3584-1024)*i}, v{WV}")
        a(f"""
        s_mov_b32 s{SW+2}, {512*1792*2}
        s_mov_b32 s{SW+3}, 0x00020000
        s_and_b32 s22, s68, 3
        s_mov_b32 s19, s69
        s_lshl_b32 s23, s{S_CB}, 8
        s_lshl_b32 s16, s6, 14
        s_add_u32 s16, s16, 16384
        """)
        for j in range(4):
            a(f"""
            s_add_u32 s17, s22, {j}
            s_and_b32 s17, s17, 3
            s_mul_i32 s{68+j}, s17, {16*3584}
            s_add_u32 s{68+j}, s{68+j}, s23
            s_lshl_b32 s{72+j}, s17, 12
            s_add_u32 s{72+j}, s{72+j}, s16
            """)
        a(f"""
        v_lshrrev_b32 v{t0}, 3, v0
        v_and_b32 v{t1}, 7, v0
        v_lshrrev_b32 v{t2}, 1, v{t0}
        v_xor_b32 v{t1}, v{t1}, v{t2}
        v_lshlrev_b32 v{t0}, 10, v{t0}
        """)
        for i in range(4):
            a(f"""
            v_xor_b32 v{t2}, {4*(i&1)}, v{t1}
            v_lshl_add_u32 v{XV+i}, v{t2}, 4, v{t0}
            v_add_u32 v{XV+i}, {7168*i}, v{XV+i}
            """)
        a(f"""
        s_mov_b32 s22, s19
        s_and_b32 s17, s22, 1
        s_lshl_b32 s17, s17, 1
        s_add_u32 s17, s17, s6
        s_lshl_b32 s16, s{S_RB}, 17
        s_lshl_b32 s8, s17, 15
        s_add_u32 s8, s8, s16
        s_lshl_b32 s10, s17, 12
        s_xor_b32 s17, s17, 2
        s_lshl_b32 s9, s17, 15
        s_add_u32 s9, s9, s16
        s_lshl_b32 s11, s17, 12
        s_lshl_b32 s22, s22, 1
        s_add_u32 s22, s22, s6
        s_and_b32 s22, s22, 7
        s_lshl_b32 s23, s22, 14
        s_add_u32 s23, s23, s16
        """)
        tail = {3: "S5 R5", 4: "S6 R6", 5: "S7 R7"}
        scheds = [
            {-1: "S0 S1 S2 R0 P3 P4", 0: "R1 P5 P6", 1: "R2 P7 S3", 2: "R3 S4 R4"},
            {-1: "S0 S1 S2 R0 R1", 0: "P3 P4 R2", 1: "P5 P6 P7 S3 R3", 2: "S4 R4"},
            {-1: "S0 R0 S1 R1", 0: "S2 R2", 1: "S3 R3", 2: "S4 R4"},
            {-1: "S0 R0 S1", 0: "R1 S2", 1: "R2 S3", 2: "R3 S4 R4"},
            {-1: "S0 R0 S1 S2 P3", 0: "R1 P4 P5", 1: "R2 P6 P7 S3", 2: "R3 S4 R4"},
            {-1: "S0 R0 S1 S2", 0: "R1 R2", 1: "S3 R3", 2: "S4 R4"},
            {-1: "S0 R0 S1 S2", 0: "R1 R2", 1: "S3 R3 P5", 2: "S4 R4 P6 P7"},
            {-1: "S0 R0 S1 S2", 0: "R1 R2 P3", 1: "S3 R3 P4 P5", 2: "S4 R4 P6 P7"},
        ]
        sched = dict(scheds[OPT.get("lsched", 5)])
        sched.update(tail)

        def issue(k):
            for tok in sched.get(k, "").split():
                st = int(tok[1:])
                if tok[0] == "S":
                    a.ext(kofs(st) + grp(st, 0) + grp(st, 1))
                elif tok[0] == "R":
                    a.ext(kofs(st))
                    for g in (2, 5, 3, 4):
                        a.ext(grp(st, g))
                    a.tag(f"st{st}")
                elif tok[0] == "P":
                    assert not ROT
                    a.ext(pref(st))
        a(f"""
        s_mov_b32 s{SRD_X+2}, {2048*512*2}
        s_mov_b32 s{SRD_X+3}, 0x00020000
        s_cmp_eq_u32 s6, 0
        s_waitcnt lgkmcnt(0)
        s_cselect_b32 s{SW}, s{S_WG}, s{S_WU}
        s_cselect_b32 s{SW+1}, s{S_WG+1}, s{S_WU+1}
        s_and_b32 s{SW+1}, s{SW+1}, 0xffff
        s_mov_b32 s{SRD_X}, s{S_U}
        s_and_b32 s{SRD_X+1}, s{S_U+1}, 0xffff
        """)
        if ROT == 2:
            a(f"""
            s_lshr_b32 s{S_PHI}, s{S_U}, 7
            s_sub_u32 s{S_PHI}, {OPT.get("phi", 4)}, s{S_PHI}
            """)
        issue(-1)
        a.ext(stamp(1))
        srd(a, SRD_WS, S_WS, WS_BYTES)
        srd(a, SRD_WD, S_WD, 1792 * 512 * 2)
        poll_setup()
        for sidx in range(9):
            if sidx < 8:
                a.wait(f"st{sidx}")
            a.ext(bstamp(2, 1 + sidx))
            a("s_barrier")
            if sidx in (0, 3):
                a.ext(stamp(2 + (0, 3).index(sidx)))
            issue(sidx)
            if sidx == 4:
                wd_setup()
            if sidx == 5:
                wd_ld(0, OPT.get("w5", 0))
            if sidx == 6:
                a(f"s_setprio {OPT.get('lprio', 1)}")
                wd_ld(0, OPT.get("w6", 10))
            if sidx == 7:
                wd_ld(0, 28)
                wd_ld(1, OPT.get("w7", 14))
                a.ext(fu_ld)
                a.tag("fu")
            if sidx == 8:
                a.ext(stamp(4))
                a(f"v_mov_b32 v6, {N_LDS}\nds_read_b32 v6, v6")
                wd_ld(1, 28)
                wd_wr(0, OPT.get("e8", 6))
                a("s_waitcnt vmcnt(0)")
                a.L.append(("VMRESET",))
                a(f"s_waitcnt lgkmcnt(0)\nv_readfirstlane_b32 s{S_NONCE}, v6\ns_nop 3")
                a.ext(fu_chk)
                u_load()
                wd_wr(0, 28)
                wd_wr(1, 28)
        a("s_waitcnt vmcnt(0) lgkmcnt(0)")
        a.ext(stamp(5))
    else:
        a("s_waitcnt lgkmcnt(0)")
        srd(a, SRD_WS, S_WS, WS_BYTES)
        srd(a, SRD_WD, S_WD, 1792 * 512 * 2)
        poll_setup()
        wd_setup()
        a(f"""
        s_sub_u32 s22, s{S_IDX}, 28
        s_lshl_b32 s22, s22, 3
        s_add_u32 s22, s22, s{S_XCD}
        s_lshl_b32 s22, s22, 1
        s_add_u32 s22, s22, s6
        s_mul_i32 s22, s22, {28*1024}
        s_barrier
        """)
        for i in range(28):
            if i % 4 == 0 and i:
                a("s_add_u32 s22, s22, 4096")
            a(f"buffer_load_dwordx4 {v(DUM+4*(i%4),4)}, v{VL}, {sr(SRD_WD)}, s22 offen offset:{1024*(i%4)}")
        a(f"v_mov_b32 v6, {N_LDS}\nds_read_b32 v6, v6")
        a("s_waitcnt vmcnt(0)")
        wd_ld(0, 28)
        wd_ld(1, 28)
        a.ext(fu_ld)
        wd_wr(0, 28)
        a("s_waitcnt vmcnt(0)")
        a.L.append(("VMRESET",))
        a.ext(stamp(4))
        a(f"s_waitcnt lgkmcnt(0)\nv_readfirstlane_b32 s{S_NONCE}, v6\ns_nop 3")
        a.ext(fu_chk)
        u_load()
        wd_wr(1, 28)
        a("s_waitcnt vmcnt(0) lgkmcnt(0)")
        a.ext(stamp(5))
    a("s_branch L_CONVA")
    return resolve_vm(a.L)


def conv(a0, partB):
    a = Asm()
    KA, UA, YA = 2, 3, 5
    qs, outq = ([5, 6, 7], [6, 7]) if partB else ([0, 1, 2, 3, 4, 5], [0, 1, 2, 3, 4, 5])
    a(f"""
    s_lshl_b32 s8, s6, 13
    s_add_u32 s8, s8, {KG_BASE + KARR + 32}
    s_mul_i32 s9, s6, {USZ}
    s_add_u32 s9, s9, {U_BASE + 16}
    v_lshrrev_b32 v6, 2, v0
    v_and_b32 v10, 7, v6
    v_and_b32 v6, 3, v6
    v_and_b32 v7, 3, v0
    v_lshrrev_b32 v8, 4, v0
    v_and_b32 v8, 1, v8
    v_lshrrev_b32 v9, 5, v0
    v_mul_u32_u24 v{UA}, {UPITCH}, v7
    v_sub_u32 v10, v10, v9
    v_lshl_add_u32 v{UA}, v10, 4, v{UA}
    v_add_u32 v{UA}, s9, v{UA}
    v_lshlrev_b32 v{KA}, 5, v8
    v_lshl_add_u32 v{KA}, v7, 3, v{KA}
    v_lshl_add_u32 v{KA}, v9, 6, v{KA}
    v_lshlrev_b32 v10, 3, v6
    v_sub_u32 v{KA}, v{KA}, v10
    v_add_u32 v{KA}, s8, v{KA}
    """)
    qmax = max(qs)
    nst = 4 * qmax + 4
    NU = 4
    UBUF = 8
    KT = 24
    ACC = KT + 4 * nst
    TMP = ACC + 16 * len(qs)
    assert TMP + 3 * len(qs) + 1 <= 256

    def acc(q):
        return ACC + 16 * qs.index(q)

    need = {}
    for i in range(nst):
        for q in qs:
            s_ = 4 * q + 3 - i
            if s_ >= 0 and s_ not in need:
                need[s_] = i

    def rd(i):
        L = [f"ds_read_b128 {v(UBUF+4*(i%NU),4)}, v{UA} offset:{32*i}"]
        for s_ in sorted(s for s in need if need[s] == i):
            L += [f"ds_read_b64_tr_b16 {v(KT+4*s_,2)}, v{KA} offset:{128*s_+32}",
                  f"ds_read_b64_tr_b16 {v(KT+4*s_+2,2)}, v{KA} offset:{128*s_}"]
        L.append(("LTAG", f"R{i}"))
        return L

    PF = NU - 1
    a(f"""
    v_and_b32 v4, 7, v0
    v_lshrrev_b32 v{YA}, 3, v0
    v_lshlrev_b32 v{YA}, 4, v{YA}
    v_lshl_add_u32 v{YA}, v4, 7, v{YA}
    v_mov_b32 v6, 0
    v_mov_b32 v7, s{S_NONCE}
    s_mov_b32 s12, 0
    s_mov_b32 s13, 0x80000000
    s_mov_b32 s14, 0
    s_mov_b32 s15, 0xc0000000
    s_mov_b32 s16, 0
    s_mov_b32 s17, 0xe0000000
    s_lshl_b32 s7, s2, 1
    s_add_u32 s7, s7, s6
    s_mul_i32 s18, s7, {DP}
    s_add_u32 s18, s18, {Y_OFF}
    s_lshl_b32 s19, s2, 4
    s_add_u32 s19, s19, s6
    s_lshl_b32 s19, s19, 3
    s_add_u32 s19, s19, {FY_OFF + (4 if partB else 0)}
    """)
    a(f"s_setprio {OPT.get('cprio', 3)}")
    P = "B" if partB else "A"
    a(f"""
    s_lshl_b32 s52, s6, 2
    s_add_u32 s52, s52, {S_LDS}
    v_mov_b32 v4, s52
    """)
    a("s_barrier")
    a.ext(stamp(6))
    a("ds_read_b32 v4, v4")
    a.L.append(("LTAG", "ST"))
    a(f"CV{P}_GO:")
    a.ext(rd(0))
    a.L.append(("LWAIT", "ST"))
    a(f"""
    v_readfirstlane_b32 s52, v4
    s_nop 3
    s_cmp_eq_u32 s52, 0
    s_cbranch_scc1 CV{P}_SLOW
    """)
    a.ext(rd(1))

    def Y(q, g, rho):
        return acc(q) + 4 * g + rho

    dpp = "wave_ror:1 row_mask:0xf bank_mask:0xf"
    ctl = "row_mask:0xf bank_mask:0xf"

    def post(q):
        L = []
        Z = {}
        for g in (3, 2, 1, 0):
            for rho in (1, 2, 3):
                Z[g, rho] = TMP + 3 * qs.index(q) + rho - 1 if g == 3 else Y(q, g, rho)
                if g > 0:
                    prev = f"v{Y(q,g-1,rho)}"
                elif q > 0:
                    prev = f"v{Y(q-1,3,rho)}"
                else:
                    prev = "v6"
                L.append(f"v_cndmask_b32 v{Z[g,rho]}, v{Y(q,g,rho)}, {prev}, s[{10+2*rho}:{11+2*rho}]")
        for g in (3, 2, 1, 0):
            L.append(f"v_add_f32_dpp v{Z[g,2]}, v{Z[g,3]}, v{Z[g,2]} {dpp}")
        for g in (3, 2, 1, 0):
            L.append(f"v_add_f32_dpp v{Z[g,1]}, v{Z[g,2]}, v{Z[g,1]} {dpp}")
        for g in (3, 2, 1, 0):
            L.append(f"v_add_f32_dpp v{Y(q,g,0)}, v{Z[g,1]}, v{Y(q,g,0)} {dpp}")
        return L

    def stage(S_, D_, bit, stride):
        m = {0: 0xaaaaaaaa, 1: 0xcccccccc, 2: 0xf0f0f0f0}[bit]
        up = {0: "quad_perm:[1,0,3,2]", 1: "quad_perm:[2,3,0,1]", 2: "row_ror:12"}[bit]
        dn = {0: "quad_perm:[1,0,3,2]", 1: "quad_perm:[2,3,0,1]", 2: "row_ror:4"}[bit]
        L = [f"s_mov_b32 vcc_lo, {m:#x}", f"s_mov_b32 vcc_hi, {m:#x}"]
        idx = [i for i in range(len(S_)) if not (i // stride) & 1]
        L += [f"v_cndmask_b32_dpp v{D_[i+stride]}, v{S_[i]}, v{S_[i+stride]}, vcc {up} {ctl}" for i in idx]
        L += ["s_not_b64 vcc, vcc"]
        L += [f"v_cndmask_b32_dpp v{D_[i]}, v{S_[i+stride]}, v{S_[i]}, vcc {dn} {ctl}" for i in idx]
        return L

    def xpose(q):
        S0 = [Y(q - 1 + (g >> 2), g & 3, 0) for g in range(8)]
        free = [Y(qq, g, r) for qq in (q - 1, q) for g in range(3) for r in (1, 2, 3)]
        D0 = free[:8]
        S1 = free[8:12]
        D1 = free[12:16]
        D2 = [acc(q - 1) + i for i in range(4)]
        L = stage(S0, D0, 0, 1)
        L += [f"v_cvt_pk_bf16_f32 v{S1[g]}, v{D0[2*g]}, v{D0[2*g+1]}" for g in range(4)]
        L += stage(S1, D1, 1, 1)
        L += stage(D1, D2, 2, 2)
        L.append(f"buffer_store_dwordx4 {v(D2[0],4)}, v{YA}, {sr(SRD_WS)}, s18 offen offset:{(q-1)*512} sc1")
        return L

    pend = []
    FILL = OPT.get("cfill", 4)
    since = {}
    issued = 2
    for i in range(nst):
        a.L.append(("LWAIT", f"R{i}"))
        rl = []
        while issued < nst and issued <= i + (2 if i < 2 else PF):
            rl += rd(issued)
            issued += 1
        act = [q for q in qs if 4 * q + 3 - i >= 0]
        per = -(-len(rl) // len(act))
        for q in act:
            s_ = 4 * q + 3 - i
            c = "0" if i == 0 else v(acc(q), 16)
            a(f"v_mfma_f32_32x32x16_bf16 {v(acc(q),16)}, {v(UBUF+4*(i%NU),4)}, {v(KT+4*s_,4)}, {c}")
            a.ext(rl[:per])
            rl = rl[per:]
            if s_ == 0:
                since[q] = len(a.L)
            for qq in list(since):
                if len([x for x in a.L[since[qq]:] if isinstance(x, str)]) >= 14:
                    del since[qq]
                    if qq in outq:
                        pend += post(qq)
                        if (qq - outq[0]) & 1:
                            pend += xpose(qq)
            a.ext(pend[:FILL])
            pend = pend[FILL:]
    a.ext(stamp(7))
    a.ext(pend)
    a("s_nop 7\ns_nop 3")
    for qq in sorted(since):
        if qq in outq:
            a.ext(post(qq))
            if (qq - outq[0]) & 1:
                a.ext(xpose(qq))
    a.ext(stamp(8))
    a(f"""
    s_waitcnt vmcnt(0)
    s_mov_b64 exec, 1
    buffer_store_dword v7, v6, {sr(SRD_WS)}, s19 offen sc1
    s_mov_b64 exec, -1
    """)
    if partB:
        E = 8
        a(f"""
        s_cmp_lg_u32 s6, 0
        s_cbranch_scc1 CV_NOGATE
        s_lshl_b32 s16, s{S_XCD}, 9
        s_add_u32 s16, s16, {FG_OFF}
        v_lshrrev_b32 v2, 2, v0
        v_and_b32 v3, 3, v0
        v_and_b32 v4, 3, v2
        v_lshlrev_b32 v4, 7, v4
        v_lshl_add_u32 v4, v3, 2, v4
        v_lshlrev_b32 v2, 2, v2
        v_lshl_add_u32 v2, v3, 11, v2
        s_mov_b32 s77, 0x100000
        """)
        a(rb64_scalar(17, 22))
        a(f"s_lshl_b32 s17, s17, 6\ns_add_u32 s17, s17, {GL_OFF}")
        a.ext(plain(spin("PG", [f"buffer_load_dword v5, v4, {sr(SRD_WS)}, s16 offen sc1"],
                         [f"v_cmp_eq_u32 vcc, s{S_NONCE}, v5", "s_nop 3", "s_cmp_eq_u64 vcc, exec"], 1)))
        for g in range(8):
            a(f"buffer_load_dword v{E+g}, v2, {sr(SRD_WS)}, s17 offen sc1")
            if g < 7:
                a("s_add_u32 s17, s17, 8192")
        a(f"""
        s_waitcnt vmcnt(0)
        v_add_f32 v{E}, v{E}, v{E+1}
        v_add_f32 v{E+2}, v{E+2}, v{E+3}
        v_add_f32 v{E+4}, v{E+4}, v{E+5}
        v_add_f32 v{E+6}, v{E+6}, v{E+7}
        v_add_f32 v{E}, v{E}, v{E+2}
        v_add_f32 v{E+4}, v{E+4}, v{E+6}
        v_add_f32 v{E}, v{E}, v{E+4}
        v_cvt_pk_bf16_f32 v{E}, v{E}, v{E}
        v_lshlrev_b32 v{E}, 16, v{E}
        v_mul_f32 v{E}, {f32(-LOG2E)}, v{E}
        v_exp_f32 v{E}, v{E}
        v_lshlrev_b32 v2, 2, v0
        v_add_f32 v{E}, 1.0, v{E}
        v_rcp_f32 v{E}, v{E}
        v_add_u32 v2, {G_LDS}, v2
        v_cvt_pk_bf16_f32 v{E}, v{E}, v{E}
        v_lshlrev_b32 v{E}, 16, v{E}
        ds_write_b32 v2, v{E}
        s_waitcnt lgkmcnt(0)
        CV_NOGATE:
        """)
    a.ext(stamp_end())
    st, ld, chk = fu_code(TMP, TMP + 1, TMP + 2, 7)
    a(f"CV{P}_SLOW:")
    a("s_waitcnt lgkmcnt(0)\ns_mov_b32 s77, 0x100000")
    a.ext(st)
    a.ext(plain(spin(f"PU{P}", ld, chk, 8)))
    a(f"v_lshlrev_b32 v{TMP}, 4, v0")
    a.ext(u_dma(TMP, 7))
    a(f"""
    s_mov_b32 s16, 0
    s_mov_b32 s17, 0xe0000000
    v_mov_b32 v4, 1
    s_waitcnt vmcnt(0)
    s_branch CV{P}_GO
    """)
    a0.ext(resolve_lds(a.L))


HEADER = open("cdna_kernels/" + NAME + ".s.ref").read().split("; Override launch")[0]


def main(path):
    a = Asm()
    prologue(a)
    gemm1(a)
    a("L_SPARE:")
    spare(a)
    a("L_GEMM2:")
    gemm2(a)
    a("L_LWAVE:")
    a(f"s_cmp_ge_u32 s{S_IDX}, 28\ns_cbranch_scc1 L_LWAVE_S")
    a.ext(lwave(True))
    a("L_LWAVE_S:")
    a.ext(lwave(False))
    a("L_KWAVE:")
    a("s_load_dwordx2 s[6:7], s[0:1], 8\ns_load_dwordx4 s[8:11], s[0:1], 16\ns_load_dwordx8 s[12:19], s[0:1], 32")
    a("s_waitcnt lgkmcnt(0)")
    srd(a, SRD_WS, S_WS, WS_BYTES)
    a(f"s_cmp_ge_u32 s{S_IDX}, 28\ns_cbranch_scc1 L_KWAVE_S")
    a.ext(kwave(True))
    a("L_KWAVE_S:")
    a.ext(kwave(False))
    a("L_CONVA:")
    conv(a, False)
    a("L_CONVB:")
    conv(a, True)
    a("L_END:\ns_endpgm")
    body = "\n".join(("" if ln.endswith(":") or ln.startswith(".") else "    ") + ln for ln in a.L)
    kn = NAME + "_kernel"
    txt = HEADER
    if OPT.get("list"):
        txt += f"; @launch kernel={kn} grid=(256,1,1) block=(512,1,1) lds=163840\n"
    else:
        txt += "; @launch grid=(256,1,1) block=(512,1,1) lds=163840\n"
    txt += '.amdgcn_target "amdgcn-amd-amdhsa--gfx950"\n.text\n'
    txt += f".globl {kn}\n.p2align 8\n.type {kn},@function\n{kn}:\n"
    txt += body + "\n"
    txt += f"""
.section .rodata,"a"
.p2align 6
.amdhsa_kernel {kn}
  .amdhsa_next_free_vgpr 256
  .amdhsa_next_free_sgpr 102
  .amdhsa_accum_offset 256
  .amdhsa_group_segment_fixed_size 0
  .amdhsa_kernarg_size 136
  .amdhsa_user_sgpr_count 2
  .amdhsa_user_sgpr_kernarg_segment_ptr 1
  .amdhsa_system_sgpr_workgroup_id_x 1
.end_amdhsa_kernel
"""
    open(path, "w").write(txt)


if __name__ == "__main__":
    for o in list(sys.argv):
        if o.startswith("--opt="):
            k, _, val = o[6:].partition(":")
            OPT[k] = int(val) if val else 1
            sys.argv.remove(o)
    if OPT.get("oldlay"):
        DP = 4096
        UT_OFF, Y_OFF, GL_OFF = 0x800000, 0xC00000, 0xE00000
        FH_OFF, FY_OFF, FU_OFF, FD_OFF = 0xE40000, 0xE60000, 0xE68000, 0xE80000
    if OPT.get("dp"):
        DP = OPT["dp"]
    if "--stamps" in sys.argv:
        STAMPS = True
        sys.argv.remove("--stamps")
    main(sys.argv[1] if len(sys.argv) > 1 else "cdna_kernels/" + NAME + ".s")
```

```python
import sys, struct

NAME = "gated_mix__ssm_conv_s4__swiglu_ffn__prompt"

H_OFF = 0x000000
DP = 4224
UT_OFF = 0x800000
Y_OFF = 0xA80000
KX_OFF = 0xD00000
GL_OFF = 0xF00000
ST_OFF = 0xF20000
FH_OFF = 0xF40000
FY_OFF = 0xF60000
FU_OFF = 0xF68000
FG_OFF = 0xF6A000
FD_OFF = 0xF80000
WS_BYTES = 0x1000000

STAMPS = False
HDL = []
OPT = {}
ST_BASE = 78
NST = 12


def f32(x):
    return "0x%08x" % struct.unpack("<I", struct.pack("<f", x))[0]


LOG2E = 1.4426950408889634
LOG2E_HI = struct.unpack("<f", struct.pack("<f", LOG2E))[0]
LOG2E_LO = LOG2E - LOG2E_HI
LN2 = 0.6931471805599453
INV2PI = 0.15915494309189535


class Asm:
    def __init__(self):
        self.L = []

    def __call__(self, s):
        for line in s.strip().split("\n"):
            line = line.strip()
            if line:
                self.L.append(line)

    def ext(self, lines):
        self.L.extend(lines)

    def tag(self, n):
        self.L.append(("VMTAG", n))

    def wait(self, n):
        self.L.append(("VMWAIT", n))


def v(b, n=1):
    return f"v{b}" if n == 1 else f"v[{b}:{b+n-1}]"


def sr(b):
    return f"s[{b}:{b+3}]"


class RA:
    def __init__(self, start, end):
        self.p = start
        self.end = end

    def __call__(self, n=1, align=1):
        self.p = (self.p + align - 1) // align * align
        r = self.p
        self.p += n
        assert self.p <= self.end, "out of registers"
        return r


def stamp(k, force=False):
    if not STAMPS:
        return []
    assert k < NST
    if OPT.get("dbgbar") and 1 <= k <= 9 and not force:
        return []
    op = "s_memtime" if OPT.get("cyc") else "s_memrealtime"
    return [f"{op} s[{ST_BASE+2*k}:{ST_BASE+2*k+1}]"]


def bstamp(mode, k):
    return stamp(k, True) if OPT.get("dbgbar") == mode else []


def stamp_end():
    if not STAMPS:
        return ["s_endpgm"]
    L = stamp(10) + ["s_waitcnt vmcnt(0)"] + stamp(11)
    L += ["s_waitcnt lgkmcnt(0)", "s_mov_b64 exec, 1", "s_lshl_b32 s74, s2, 3", f"s_add_u32 s74, s74, s{S_WIDX}",
          "s_lshl_b32 s74, s74, 6", f"s_add_u32 s74, s74, {ST_OFF}", "v_mov_b32 v1, 0"]
    for k in range(NST):
        L.append(f"v_mov_b32 v{4+k}, s{ST_BASE+2*k}")
    for k in range(0, NST, 4):
        L.append(f"buffer_store_dwordx4 v[{4+k}:{7+k}], v1, {sr(SRD_WS)}, s74 offen offset:{4*k}")
    if OPT.get("hdbg"):
        lab = f"HD{len(HDL)}"
        HDL.append(lab)
        L += [f"v_not_b32 v20, v4", f"global_atomic_umax v1, v20, s[{S_DBG}:{S_DBG+1}] offset:56",
              f"global_atomic_umax v1, v15, s[{S_DBG}:{S_DBG+1}] offset:60",
              f"s_cmp_lg_u32 s2, {OPT['hdbg']}", f"s_cbranch_scc1 {lab}", f"s_cmp_lg_u32 s{S_WIDX}, 0", f"s_cbranch_scc1 {lab}"]
        words = [1, 2, 3, 4, 5, 6, 7, 9, 10, 11, 12]
        for k in range(1, NST):
            L += [f"v_sub_u32 v20, v{4+k}, v4", f"global_store_dword v1, v20, s[{S_DBG}:{S_DBG+1}] offset:{4*words[k-1]}", "s_nop 1"]
        L += [f"global_store_dword v1, v4, s[{S_DBG}:{S_DBG+1}] offset:52"]
        L.append(f"{lab}:")
    L.append("s_endpgm")
    return L


def is_vmem(line):
    return line.startswith("buffer_") or line.startswith("global_")


def resolve_vm(lines):
    out = []
    count = 0
    tags = {}
    done = -1
    for ln in lines:
        if isinstance(ln, tuple):
            if ln[0] == "VMTAG":
                tags[ln[1]] = count
            elif ln[0] == "VMWAIT":
                if tags[ln[1]] <= done:
                    continue
                n = count - tags[ln[1]]
                assert 0 <= n <= 63, n
                out.append(f"s_waitcnt vmcnt({n})")
                done = tags[ln[1]]
            elif ln[0] == "VMRESET":
                done = count
            elif ln[0] == "NOCOUNT":
                out.append(ln[1])
            else:
                raise ValueError(ln)
        else:
            if is_vmem(ln):
                count += 1
            out.append(ln)
    return out


def resolve_lds(lines):
    out = []
    count = 0
    tags = {}
    for ln in lines:
        if isinstance(ln, tuple):
            if ln[0] == "LTAG":
                tags[ln[1]] = count
            elif ln[0] == "LWAIT":
                out.append(f"s_waitcnt lgkmcnt({min(15, count - tags[ln[1]])})")
            else:
                raise ValueError(ln)
        else:
            if ln.startswith("ds_"):
                count += 1
            out.append(ln)
    return out


SLOT = 49152
KG_BASE = 147456
KARR = 3584
U_BASE = 131072
UPITCH = 1344
USZ = 4 * UPITCH
YB_BASE = U_BASE + 2 * USZ
RING2 = 32768

S_U = 4
S_ARE, S_AIM, S_BRE, S_BIM, S_CRE, S_CIM, S_LDT = 54, 56, 58, 60, 62, 64, 66
S_DS = 20
S_WG, S_WU, S_WD, S_GW = 24, 26, 28, 30
S_OUT, S_DBG, S_WS = 32, 34, 36
S_WIDX, S_XCD, S_IDX, S_RB, S_CB, S_PHI = 38, 39, 40, 41, 42, 43
SRD_X, SRD_WG, SRD_WU, SRD_WS, SRD_WD, SRD_OUT = 44, 48, 52, 56, 60, 64


def srd(a, d, base, nbytes):
    a(f"""
    s_mov_b32 s{d}, s{base}
    s_and_b32 s{d+1}, s{base+1}, 0xffff
    s_mov_b32 s{d+2}, {nbytes}
    s_mov_b32 s{d+3}, 0x00020000
    """)


def mapping(a):
    a(f"""
    s_and_b32 s{S_XCD}, s2, 7
    s_lshr_b32 s{S_IDX}, s2, 3
    """)
    if OPT.get("map", 1) == 0:
        a(f"""
        s_and_b32 s68, s{S_IDX}, 3
        s_lshr_b32 s69, s{S_IDX}, 2
        s_lshr_b32 s{S_RB}, s{S_XCD}, 1
        s_lshl_b32 s{S_RB}, s{S_RB}, 2
        s_add_u32 s{S_RB}, s{S_RB}, s68
        s_and_b32 s{S_CB}, s{S_XCD}, 1
        s_mul_i32 s{S_CB}, s{S_CB}, 7
        s_add_u32 s{S_CB}, s{S_CB}, s69
        s_lshl_b32 s{S_PHI}, s68, 1
        s_add_u32 s{S_PHI}, s{S_PHI}, s69
        s_and_b32 s{S_PHI}, s{S_PHI}, 7
        """)
    else:
        a(f"""
        s_and_b32 s70, s{S_XCD}, 1
        s_lshl_b32 s70, s70, 2
        s_and_b32 s68, s{S_IDX}, 7
        s_lshr_b32 s69, s{S_IDX}, 3
        s_add_u32 s71, s69, s70
        s_add_u32 s72, s68, s70
        s_cmp_ge_u32 s{S_IDX}, 24
        s_cselect_b32 s71, 3, s71
        s_cselect_b32 s68, s72, s68
        s_lshr_b32 s{S_CB}, s{S_XCD}, 1
        s_and_b32 s{S_CB}, s{S_CB}, 1
        s_mul_i32 s{S_CB}, s{S_CB}, 7
        s_add_u32 s{S_CB}, s{S_CB}, s71
        s_lshr_b32 s{S_RB}, s{S_XCD}, 2
        s_lshl_b32 s{S_RB}, s{S_RB}, 3
        s_add_u32 s{S_RB}, s{S_RB}, s68
        s_lshl_b32 s{S_PHI}, s69, 1
        s_add_u32 s{S_PHI}, s{S_PHI}, s68
        s_and_b32 s{S_PHI}, s{S_PHI}, 7
        """)


K_PR = 6


def prologue(a):
    a("""
    s_cmp_ge_u32 s2, 256
    s_cbranch_scc1 L_END
    """)
    if STAMPS:
        a.ext([f"s_mov_b32 s{ST_BASE+2*k}, 0" for k in range(NST)])
    a.ext(stamp(0))
    a(f"""
    s_load_dwordx8 s[24:31], s[0:1], 80
    s_load_dwordx16 s[52:67], s[0:1], 0
    s_load_dwordx2 s[4:5], s[0:1], 0
    s_load_dwordx2 s[36:37], s[0:1], 128
    s_load_dwordx4 s[32:35], s[0:1], 112
    s_load_dwordx2 s[20:21], s[0:1], 64
    v_lshrrev_b32 v1, 6, v0
    v_and_b32 v0, 63, v0
    s_nop 0
    v_readfirstlane_b32 s{S_WIDX}, v1
    s_lshl_b32 s69, s2, 1
    v_lshlrev_b32 v2, 2, v0
    s_nop 1
    s_cmp_lt_u32 s{S_WIDX}, 6
    s_cbranch_scc1 L_NOTK
    s_sub_u32 s68, s{S_WIDX}, 6
    s_add_u32 s69, s69, s68
    s_lshl_b32 s71, s69, 8
    v_add_u32 v2, s71, v2
    s_lshl_b32 s72, s69, 1
    v_mov_b32 v3, s72
    s_waitcnt lgkmcnt(0)
    """)
    for i, sb in enumerate((S_ARE, S_AIM, S_BRE, S_BIM, S_CRE, S_CIM)):
        a(f"global_load_dword v{K_PR+i}, v2, s[{sb}:{sb+1}]")
    a(f"global_load_ushort v{K_PR+6}, v3, s[{S_LDT}:{S_LDT+1}]")
    a(f"global_load_ushort v{K_PR+7}, v3, s[{S_DS}:{S_DS+1}]")
    a("s_branch L_KWAVE\nL_NOTK:")
    mapping(a)
    a(f"""
    s_sub_u32 s6, s{S_WIDX}, 4
    s_cmp_ge_u32 s6, 2
    s_cbranch_scc1 L_NOTL
    s_cmp_ge_u32 s{S_IDX}, 28
    s_cbranch_scc1 L_LWAVE_S
    """)
    a.ext(lwave(True))
    a(f"""
    L_NOTL:
    s_waitcnt lgkmcnt(0)
    """)
    srd(a, SRD_X, S_U, 2048 * 512 * 2)
    srd(a, SRD_WS, S_WS, WS_BYTES)
    srd(a, SRD_WD, S_WD, 1792 * 512 * 2)
    srd(a, SRD_OUT, S_OUT, 2048 * 512 * 2)
    cp = OPT.get("cpf", 1)
    if cp:
        a(f"""
        s_getpc_b64 s[70:71]
        L_PC:
        s_sub_u32 s70, s70, L_PC-{NAME}_kernel
        s_subb_u32 s71, s71, 0
        """)
        if cp == 1:
            a(f"""
            s_lshl_b32 s72, s{S_IDX}, 2
            s_add_u32 s72, s72, s{S_WIDX}
            s_lshl_b32 s72, s72, 9
            v_and_b32 v2, 7, v0
            v_lshlrev_b32 v2, 6, v2
            v_add_u32 v2, s72, v2
            v_min_u32 v2, L_END-{NAME}_kernel, v2
            global_load_dword v127, v2, s[70:71]
            """)
        else:
            a(f"""
            s_lshl_b32 s72, s{S_WIDX}, 14
            v_lshlrev_b32 v2, 7, v0
            v_add_u32 v2, s72, v2
            v_add_u32 v3, 8192, v2
            v_min_u32 v2, L_END-{NAME}_kernel, v2
            v_min_u32 v3, L_END-{NAME}_kernel, v3
            global_load_dword v64, v2, s[70:71]
            global_load_dword v65, v3, s[70:71]
            """)
    a(f"""
    s_cmp_lt_u32 s{S_IDX}, 28
    s_cbranch_scc1 L_GEMM1
    """)


VL16 = 1
XD = 8
(VD0, VD1, DA0, DA1, VEP, VPH, VFL, VG, VY, VYW, VYT, VW1, VW2, VW3, VR1, VR23) = range(112, 128)
YT_BASE = YB_BASE
G_LDS = YB_BASE
N_LDS = YB_BASE + 256
S_LDS = YB_BASE + 272
def n1():
    return OPT.get("n1", 14)


def rot_scalar(dst, tmp):
    return f"""
    s_lshr_b32 s{dst}, s{S_IDX}, 1
    s_and_b32 s{dst}, s{dst}, 2
    s_add_u32 s{dst}, s{dst}, s{S_IDX}
    s_and_b32 s{dst}, s{dst}, 3
    s_mul_i32 s{dst}, s{dst}, 7
    """


def rb64_scalar(dst, tmp):
    return f"""
    s_lshl_b32 s{dst}, s{S_XCD}, 2
    s_and_b32 s{tmp}, s{S_IDX}, 3
    s_add_u32 s{dst}, s{dst}, s{tmp}
    """


def cb64_scalar(dst, tmp):
    return f"""
    s_lshr_b32 s{dst}, s{S_IDX}, 2
    s_lshr_b32 s{tmp}, s{S_WD}, 7
    s_sub_u32 s{dst}, s{dst}, s{tmp}
    s_add_u32 s{dst}, s{dst}, {OPT.get("cbs", 4)}
    s_and_b32 s{dst}, s{dst}, 7
    """


def gemm2_setup(a):
    a(rb64_scalar(6, 13))
    a(cb64_scalar(7, 13))
    a(f"""
    s_lshl_b32 s17, s6, 6
    s_lshr_b32 s23, s{S_WIDX}, 1
    s_lshl_b32 s13, s23, 5
    s_add_u32 s17, s17, s13
    s_lshl_b32 s18, s7, 6
    s_and_b32 s14, s{S_WIDX}, 1
    s_lshl_b32 s13, s14, 5
    s_add_u32 s18, s18, s13
    v_lshrrev_b32 v5, 5, v0
    v_and_b32 v6, 31, v0
    v_add_u32 v6, s17, v6
    v_lshlrev_b32 v7, 4, v5
    v_add_u32 v7, s18, v7
    v_lshlrev_b32 v7, 1, v7
    v_lshl_add_u32 v{VEP}, v6, 10, v7
    s_lshl_b32 s8, s{S_WIDX}, 15
    s_lshl_b32 s9, s6, 1
    s_add_u32 s9, s9, s23
    s_mul_i32 s9, s9, 112
    s_mul_i32 s13, s{S_WIDX}, 28
    s_add_u32 s9, s9, s13
    s_lshl_b32 s9, s9, 10
    s_mul_i32 s22, s23, {224*1024}
    s_sub_u32 s22, {112*1024}, s22
    s_lshl_b32 s10, s13, 14
    s_lshl_b32 s13, s7, 7
    s_add_u32 s10, s10, s13
    """)
    a(rot_scalar(12, 13))
    a(f"""
    s_add_u32 s11, s12, {n1()}
    s_cmp_ge_u32 s11, 28
    s_cselect_b32 s13, 28, 0
    s_sub_u32 s11, s11, s13
    s_lshl_b32 s15, s6, 5
    s_mul_i32 s13, s{S_WIDX}, 7
    s_add_u32 s15, s15, s13
    s_lshl_b32 s15, s15, 7
    s_add_u32 s15, s15, {FH_OFF}
    s_lshl_b32 s13, s7, 2
    s_add_u32 s13, s13, s{S_WIDX}
    s_lshl_b32 s16, s13, 10
    s_add_u32 s16, s16, {FY_OFF}
    s_mul_i32 s19, s13, {16*DP}
    s_lshl_b32 s13, s6, 7
    s_add_u32 s19, s19, s13
    s_add_u32 s19, s19, {Y_OFF}
    v_lshlrev_b32 v{VL16}, 4, v0
    v_lshrrev_b32 v2, 3, v0
    v_and_b32 v3, 7, v0
    v_mul_u32_u24 v{VY}, {DP}, v2
    v_lshl_add_u32 v{VY}, v3, 4, v{VY}
    v_lshrrev_b32 v4, 1, v2
    v_and_b32 v4, 1, v4
    v_lshlrev_b32 v4, 2, v4
    v_xor_b32 v3, v3, v4
    v_lshlrev_b32 v{VD0}, 10, v2
    v_lshl_add_u32 v{VD0}, v3, 4, v{VD0}
    v_add_u32 v{VD1}, {8192-1024}, v{VD0}
    v_lshlrev_b32 v{VYW}, 7, v2
    v_lshl_add_u32 v{VYW}, v3, 4, v{VYW}
    v_add_u32 v{VYW}, s8, v{VYW}
    v_lshrrev_b32 v2, 2, v0
    v_and_b32 v2, 3, v2
    v_and_b32 v3, 3, v0
    v_lshrrev_b32 v4, 4, v0
    v_and_b32 v4, 1, v4
    v_lshl_add_u32 v6, v5, 2, v2
    v_lshlrev_b32 v6, 7, v6
    v_and_b32 v7, 1, v3
    v_lshl_add_u32 v6, v7, 5, v6
    v_lshl_add_u32 v6, v4, 4, v6
    v_lshrrev_b32 v7, 1, v3
    v_lshl_add_u32 v6, v7, 3, v6
    v_add_u32 v6, s8, v6
    v_lshrrev_b32 v7, 1, v2
    v_xor_b32 v7, s14, v7
    v_lshl_add_u32 v{DA0}, v7, 6, v6
    v_xor_b32 v7, 1, v7
    v_lshl_add_u32 v{DA1}, v7, 6, v6
    s_lshl_b32 s13, s14, 1
    v_add_u32 v6, s13, v5
    v_lshlrev_b32 v{VYT}, 15, v6
    v_lshl_add_u32 v{VYT}, v2, 7, v{VYT}
    v_lshrrev_b32 v7, 1, v2
    v_xor_b32 v7, s23, v7
    v_lshl_add_u32 v{VYT}, v7, 6, v{VYT}
    v_lshl_add_u32 v{VYT}, v4, 5, v{VYT}
    v_lshl_add_u32 v{VYT}, v3, 3, v{VYT}
    v_min_u32 v{VPH}, 6, v0
    v_lshlrev_b32 v{VPH}, 7, v{VPH}
    v_lshrrev_b32 v2, 2, v0
    v_and_b32 v2, 7, v2
    v_lshlrev_b32 v{VFL}, 7, v2
    v_lshl_add_u32 v{VFL}, v3, 2, v{VFL}
    v_and_b32 v{VG}, 31, v0
    s_lshl_b32 s13, s23, 5
    v_add_u32 v{VG}, s13, v{VG}
    v_lshlrev_b32 v{VG}, 2, v{VG}
    v_add_u32 v{VG}, {G_LDS}, v{VG}
    v_add_u32 v{VW1}, s8, v{VL16}
    s_xor_b32 s13, s{S_WIDX}, 1
    s_lshl_b32 s13, s13, 15
    v_add_u32 v{VR1}, s13, v{VL16}
    s_xor_b32 s13, s{S_WIDX}, 2
    s_lshl_b32 s13, s13, 15
    v_add_u32 v{VW2}, s13, v{VL16}
    s_xor_b32 s13, s{S_WIDX}, 3
    s_lshl_b32 s13, s13, 15
    v_add_u32 v{VW3}, s13, v{VL16}
    """)


def gemm1(a):
    XA = 16
    WA = 28
    BUFS = [64, 88, 40]
    ACC = 128

    def acc(mat, t, tt):
        return ACC + 16 * (mat * 4 + t * 2 + tt)

    def wf(b, mat, t):
        return BUFS[b] + 4 * (mat * 2 + t)

    def xf(b, tt):
        return BUFS[b] + 16 + 4 * tt

    pt = OPT.get("pt", 0)
    if pt:
        gran = {1: 21, 2: 18, 3: 16}[pt]
        a(f"""
        s_cmp_lg_u32 s{S_WIDX}, 0
        s_cbranch_scc1 L_NOTOUCH
        v_lshlrev_b32 v2, {gran}, v0
        v_mov_b32 v3, 0
        """)
        for i in range(max(1, (16 << 20) >> (gran + 6))):
            a(f"s_mov_b32 s13, {i << (gran + 6)}")
            a(f"buffer_load_dword v64, v2, {sr(SRD_WS)}, s13 offen")
        a(f"""
        buffer_load_dword v65, v2, {sr(SRD_OUT)}, 0 offen
        buffer_load_dword v66, v2, {sr(SRD_WD)}, 0 offen
        global_load_dword v67, v3, s[{S_DS}:{S_DS+1}]
        global_load_dword v68, v3, s[{S_DBG}:{S_DBG+1}] offset:128
        s_waitcnt vmcnt(0)
        L_NOTOUCH:
        """)
    g2 = Asm()
    gemm2_setup(g2)
    a(f"""
    s_lshr_b32 s68, s{S_WIDX}, 1
    s_and_b32 s69, s{S_WIDX}, 1
    v_and_b32 v7, 31, v0
    v_lshrrev_b32 v2, 5, v0
    v_lshrrev_b32 v3, 1, v0
    v_and_b32 v3, 7, v3
    s_lshl_b32 s70, s68, 13
    v_lshlrev_b32 v4, 7, v7
    v_add_u32 v4, s70, v4
    """)
    for ks in range(4):
        a(f"""
        v_add_u32 v5, {2*ks}, v2
        v_xor_b32 v5, v5, v3
        v_lshl_add_u32 v{XA+ks}, v5, 4, v4
        """)
    a(f"""
    v_lshrrev_b32 v7, 2, v0
    v_and_b32 v7, 3, v7
    v_and_b32 v3, 3, v0
    v_lshrrev_b32 v4, 4, v0
    v_and_b32 v4, 1, v4
    v_lshl_add_u32 v5, v2, 3, v7
    v_lshlrev_b32 v5, 8, v5
    v_lshl_add_u32 v5, v4, 5, v5
    v_lshl_add_u32 v5, v3, 3, v5
    s_lshl_b32 s70, s69, 1
    """)
    for t in range(2):
        a(f"""
        s_add_u32 s71, s70, {t}
        v_xor_b32 v6, s71, v7
        v_lshl_add_u32 v{WA+t}, v6, 6, v5
        """)
    for sl in (1, 2):
        for ks in range(4):
            a(f"v_add_u32 v{XA+4*sl+ks}, {sl*SLOT}, v{XA+ks}")
        for t in range(2):
            a(f"v_add_u32 v{WA+2*sl+t}, {sl*SLOT}, v{WA+t}")
    a(f"""
    s_lshl_b32 s70, s{S_RB}, 2
    s_lshl_b32 s71, s68, 1
    s_add_u32 s70, s70, s71
    s_mul_i32 s70, s70, 112
    s_lshl_b32 s71, s{S_CB}, 3
    s_add_u32 s70, s70, s71
    s_lshl_b32 s71, s69, 2
    s_add_u32 s70, s70, s71
    s_lshl_b32 s70, s70, 10
    s_add_u32 s71, s70, {112*1024}
    s_lshl_b32 s3, s{S_RB}, 1
    s_add_u32 s3, s3, s68
    s_lshl_b32 s3, s3, 5
    s_lshl_b32 s72, s{S_CB}, 1
    s_add_u32 s3, s3, s72
    s_add_u32 s3, s3, s69
    s_lshl_b32 s3, s3, 7
    s_add_u32 s3, s3, {FH_OFF}
    s_mov_b32 s72, {f32(-LOG2E)}
    s_mov_b32 s73, {f32(-LOG2E)}
    """)

    def reads(n):
        st, ks = n >> 2, n & 3
        sl = st % 3
        b = n % 3
        r = []
        r.append(f"ds_read_b128 {v(xf(b,0),4)}, v{XA+4*sl+ks}")
        for mat in range(2):
            for t in range(2):
                for h2 in range(2):
                    off = 16384 * (1 + mat) + ks * 4096 + h2 * 1024
                    r.append(f"ds_read_b64_tr_b16 {v(wf(b,mat,t)+2*h2,2)}, v{WA+2*sl+t} offset:{off}")
                if mat == 0 and t == 0:
                    r.append(f"ds_read_b128 {v(xf(b,1),4)}, v{XA+4*sl+ks} offset:4096")
        return r

    T = 16

    def epi(p):
        t, tt = p >> 1, p & 1
        G, U = acc(0, t, tt), acc(1, t, tt)
        o = 32 + 8 * p
        L = []
        for h in range(2):
            R = range(8 * h, 8 * h + 8)
            L += [f"v_pk_mul_f32 {v(T+i,2)}, {v(G+i,2)}, s[72:73]" for i in R[::2]]
            for i in R[::2]:
                L += [f"v_exp_f32 v{T+i}, v{T+i}", f"v_exp_f32 v{T+i+1}, v{T+i+1}",
                      f"v_pk_mul_f32 {v(U+i,2)}, {v(G+i,2)}, {v(U+i,2)}"]
            L += [f"v_pk_add_f32 {v(T+i,2)}, {v(T+i,2)}, 1.0 op_sel_hi:[1,0]" for i in R[::2]]
            L += [f"v_rcp_f32 v{T+i}, v{T+i}" for i in R]
            L += [f"v_pk_mul_f32 {v(U+i,2)}, {v(U+i,2)}, {v(T+i,2)}" for i in R[::2]]
            for i in range(4):
                L.append(f"v_cvt_pk_bf16_f32 v{o+4*h+i}, v{U+8*h+2*i}, v{U+8*h+2*i+1}")
            L.append(f"buffer_store_dwordx4 {v(o+4*h,4)}, v{VL16}, {sr(SRD_WS)}, s{70+tt} offen offset:{t*2048+1024*h} sc1")
        return L

    a("s_barrier")
    a.ext(stamp(1))
    a.ext(bstamp(2, 1))
    a.ext(reads(0))
    a.ext(reads(1))
    extra = []
    XL = OPT.get("xl", 13)
    for n in range(32):
        b = n % 3
        if (n & 3) == 2:
            a("s_waitcnt lgkmcnt(0)")
            a.ext(bstamp(2, 2 + (n >> 2)))
            a("s_barrier")
            if n == 22:
                a.ext(stamp(2))
        elif (n & 3) != 3:
            a("s_waitcnt lgkmcnt(10)")
        rd = reads(n + 2) if n + 2 < 32 else []
        mf = []
        for t in range(2):
            for tt in range(2):
                for mat in range(2):
                    c = "0" if n == 0 else v(acc(mat, t, tt), 16)
                    mf.append(f"v_mfma_f32_32x32x16_bf16 {v(acc(mat,t,tt),16)}, {v(wf(b,mat,t),4)}, {v(xf(b,tt),4)}, {c}")
        if n == 3:
            extra = list(g2.L)
        if n == 30:
            assert not extra
            extra = [f"v_mov_b32 v2, {N_LDS}", "ds_read_b32 v3, v2"]
        for i, m in enumerate(mf):
            a(m)
            a.ext(rd[2 * i:2 * i + 2])
            if i >= 4:
                a.ext(extra[:3])
                extra = extra[3:]
    assert not extra
    a.ext(stamp(3))
    if OPT.get("eprio", 0):
        a(f"s_setprio {OPT['eprio']}")
    a(f"s_waitcnt lgkmcnt(0)\nv_readfirstlane_b32 s{S_NONCE}, v3\ns_nop 5")
    for p in range(4):
        a.ext(epi(p))
    a.ext(stamp(4))


def spare(a):
    R = 16
    O = 80
    GWv = 112
    SUM = 120
    a(f"""
    s_sub_u32 s68, s{S_IDX}, 28
    s_lshl_b32 s3, s{S_XCD}, 2
    s_add_u32 s3, s3, s68
    s_lshl_b32 s3, s3, 5
    s_add_u32 s3, s3, s{S_WIDX}
    s_lshl_b32 s3, s3, 2
    s_add_u32 s3, s3, {FU_OFF}
    s_lshl_b32 s68, s68, 2
    s_add_u32 s68, s68, s{S_WIDX}
    s_lshr_b32 s69, s68, 1
    s_mov_b32 s74, s{S_XCD}
    v_and_b32 v1, 7, v0
    v_lshrrev_b32 v2, 3, v0
    v_lshlrev_b32 v3, 15, v2
    v_lshl_add_u32 v3, v1, 4, v3
    v_mul_u32_u24 v4, {8*DP}, v1
    v_lshl_add_u32 v4, v2, 4, v4
    v_lshlrev_b32 v5, 4, v1
    v_lshlrev_b32 v6, 2, v0
    s_mov_b32 s70, 0x05040100
    s_mov_b32 s71, 0x07060302
    s_lshl_b32 s72, s69, 7
    v_add_u32 v7, s72, v5
    global_load_dwordx4 {v(GWv,4)}, v7, s[{S_GW}:{S_GW+1}]
    """)
    for i in range(2):
        b = 6 + 4 * i
        a(f"""
        s_lshl_b32 s73, s68, 1
        s_add_u32 s73, s73, {i}
        s_and_b32 s73, s73, 3
        s_lshl_b32 s{b}, s74, 18
        s_lshl_b32 s75, s73, 10
        s_add_u32 s{b}, s{b}, s75
        s_add_u32 s{b}, s{b}, s72
        s_mul_i32 s{b+1}, s69, {64*DP}
        s_add_u32 s{b+1}, s{b+1}, s75
        s_lshl_b32 s75, s74, 7
        s_add_u32 s{b+1}, s{b+1}, s75
        s_add_u32 s{b+1}, s{b+1}, {UT_OFF}
        s_lshl_b32 s{b+2}, s74, 8
        s_lshl_b32 s75, s73, 11
        s_add_u32 s{b+2}, s{b+2}, s75
        s_lshl_b32 s75, s69, 13
        s_add_u32 s{b+2}, s{b+2}, s75
        s_add_u32 s{b+2}, s{b+2}, {GL_OFF}
        """)
        for j in range(8):
            a(f"buffer_load_dwordx4 {v(R+32*i+4*j,4)}, v3, {sr(SRD_X)}, s{b} offen")
            if j < 7:
                a(f"s_add_u32 s{b}, s{b}, 4096")
    a("v_mov_b32 v2, 0")
    for i in range(2):
        b = 6 + 4 * i
        a("s_waitcnt vmcnt(8)")
        Ri = R + 32 * i
        for e in range(8):
            for jj in range(4):
                sel = 71 if (e & 1) else 70
                a(f"v_perm_b32 v{O+4*e+jj}, v{Ri+4*(2*jj+1)+(e>>1)}, v{Ri+4*(2*jj)+(e>>1)}, s{sel}")
            a(f"buffer_store_dwordx4 {v(O+4*e,4)}, v4, {sr(SRD_WS)}, s{b+1} offen sc1")
            if e < 7:
                a(f"s_add_u32 s{b+1}, s{b+1}, {DP}")
    a(nonce_ld(3, 2))
    a.ext(stamp(1))
    a("s_barrier")
    for i in range(2):
        Ri = R + 32 * i
        S_ = SUM - 8 * i * 5
        for j in range(8):
            a(f"v_mov_b32 v{S_+j}, 0")
        for q in range(4):
            for j in range(8):
                a(f"v_dot2c_f32_bf16 v{S_+j}, v{Ri+4*j+q}, v{GWv+q}")
        a("s_nop 3")
        for ctl in ("quad_perm:[1,0,3,2]", "quad_perm:[2,3,0,1]", "row_half_mirror"):
            for j in range(8):
                a(f"v_add_f32_dpp v{S_+j}, v{S_+j}, v{S_+j} {ctl} row_mask:0xf bank_mask:0xf")
        for j in range(1, 8):
            a(f"""
            v_cmp_eq_u32 vcc, {j}, v1
            s_nop 1
            v_cndmask_b32 v{S_}, v{S_}, v{S_+j}, vcc
            """)
        if i == 0:
            a("s_waitcnt vmcnt(0)")
            a.ext(plain(nonce_get("NS", 3, 2)))
            a(f"""
            s_mov_b32 s76, s{S_NONCE}
            s_mov_b64 exec, 1
            buffer_store_dword v3, v2, {sr(SRD_WS)}, s3 offen sc1
            s_mov_b64 exec, -1
            """)
            a.ext(stamp(2))
    a(f"""
    buffer_store_dword v{SUM}, v6, {sr(SRD_WS)}, s8 offen sc1
    buffer_store_dword v{SUM-40}, v6, {sr(SRD_WS)}, s12 offen sc1
    s_add_u32 s3, s3, {FG_OFF - FU_OFF}
    s_waitcnt vmcnt(0)
    s_mov_b64 exec, 1
    buffer_store_dword v3, v2, {sr(SRD_WS)}, s3 offen sc1
    s_mov_b64 exec, -1
    s_sub_u32 s3, s3, {FG_OFF}
    s_lshl_b32 s3, s3, 5
    s_add_u32 s3, s3, {FD_OFF}
    """)
    a.ext(stamp(3))
    gemm2_setup(a)
    a(f"s_mov_b32 s{S_NONCE}, s76\ns_waitcnt vmcnt(0)")


def spin(label, loads, checks, sleep=2):
    L = [f"{label}_SPIN:", f"s_sleep {sleep}"]
    L += [("NOCOUNT", x) for x in loads]
    L += ["s_waitcnt vmcnt(0)"]
    L += ["s_sub_u32 s77, s77, 1", "s_cmp_eq_u32 s77, 0", f"s_cbranch_scc1 {label}_OK"]
    L += [f"{label}_CHK:"] + checks
    L += [f"s_cbranch_scc0 {label}_SPIN", f"{label}_OK:"]
    return L


S_NONCE = 23


def nonce_ld(vd, vz):
    return f"global_load_dword v{vd}, v{vz}, s[{S_DBG}:{S_DBG+1}] sc1"


def nonce_get(label, vd, vz, sleep=8):
    L = ["s_mov_b32 s77, 0x100000", f"s_branch {label}_CHK"]
    L += spin(label, [nonce_ld(vd, vz)], [f"v_cmp_ne_u32 vcc, 0, v{vd}", "s_nop 3", "s_cmp_eq_u64 vcc, exec"], sleep)
    L += [f"v_readfirstlane_b32 s{S_NONCE}, v{vd}", "s_nop 3"]
    return L


def plain(lines):
    return [x[1] if isinstance(x, tuple) else x for x in lines]


def gemm2(a0):
    a = Asm()
    NS = 28
    NP = 12
    NR = 16
    DH = 6
    ACC = 192
    WF = 16
    WFR = 128
    HB = 144
    N1 = n1()
    NF = OPT.get("nf", 2)
    PP1 = OPT.get("pp1", 21)
    N2 = OPT.get("n2", 28)

    def acc(t, tt):
        return ACC + 16 * (t + 2 * tt)

    def wload(i):
        sl = i % NR
        return [
            "s_lshl_b32 s14, s11, 14", f"s_add_u32 m0, s8, {sl*2048}", "s_add_u32 s14, s14, s10",
            f"buffer_load_dwordx4 v{VD0}, {sr(SRD_WD)}, s14 offen lds",
            "s_add_u32 s11, s11, 1", "s_cmp_ge_u32 s11, 28", "s_cselect_b32 s11, 0, s11",
            f"buffer_load_dwordx4 v{VD1}, {sr(SRD_WD)}, s14 offen offset:1024 lds",
            ("VMTAG", f"W{i}"),
        ]

    def hload(i):
        sl = i % DH
        return [
            "s_lshl_b32 s13, s12, 10", "s_add_u32 s13, s13, s9",
            f"buffer_load_dwordx4 {v(HB+8*sl,4)}, v{VL16}, {sr(SRD_WS)}, s13 offen sc1",
            "s_add_u32 s13, s13, s22",
            "s_add_u32 s12, s12, 1", "s_cmp_ge_u32 s12, 28", "s_cselect_b32 s12, 0, s12",
            f"buffer_load_dwordx4 {v(HB+8*sl+4,4)}, v{VL16}, {sr(SRD_WS)}, s13 offen sc1",
            ("VMTAG", f"H{i}"),
        ]

    def wfrag(i):
        return WF + 8 * i if i < NP else WFR + 8 * (i & 1)

    def trd(i):
        sl = i % NR
        r = [("VMWAIT", f"W{i}")] if i >= N1 else []
        for t in range(2):
            for h2 in range(2):
                r.append(f"ds_read_b64_tr_b16 {v(wfrag(i)+4*t+2*h2,2)}, v{DA0+t} offset:{sl*2048+h2*1024}")
        return r

    NE = OPT.get("ne", -1)
    a(f"""
    s_setprio 2
    v_mov_b32 v2, 0
    v_mov_b32 v3, s{S_NONCE}
    s_mov_b32 s77, 0x100000
    """)
    pub = f"""
    s_waitcnt vmcnt(0)
    s_mov_b64 exec, 1
    buffer_store_dword v3, v2, {sr(SRD_WS)}, s3 offen sc1
    s_mov_b64 exec, -1
    """
    if NE < 0:
        a(pub)
    a.ext(stamp(5))
    a("s_barrier")
    ph_ld = f"buffer_load_dword v4, v{VPH}, {sr(SRD_WS)}, s15 offen sc1"

    def wl(i):
        a.ext(wload(i))
        if i == PP1:
            a(ph_ld)
            a.tag("P1")
    assert NP <= N1
    first = list(range(NP - max(NE, 0), NP))
    for i in first:
        a.ext(trd(i))
    if NE >= 0:
        a(pub)
    a.ext(stamp(6))
    for i in range(N1, NR):
        wl(i)
    rest = [i for i in range(NP) if i not in first]
    for i in range(NP + 1):
        if i in rest:
            a.ext(trd(i))
        if i >= 1 and NR + i - 1 < N2:
            if i - 1 in rest:
                a(f"s_waitcnt lgkmcnt({4 if i in rest else 0})")
            wl(NR + i - 1)
    a.ext(stamp(7))
    a.wait("P1")
    a("s_branch PH_CHK")
    a.ext(spin("PH", [ph_ld], [f"v_cmp_eq_u32 vcc, s{S_NONCE}, v4", "s_nop 3", "s_cmp_eq_u64 vcc, exec"]))
    a.ext(stamp(8))
    a.ext(bstamp(3, 1))
    for i in range(DH):
        a.ext(hload(i))
    a("s_waitcnt lgkmcnt(0)")

    YR, FL, YT, EG = 80, 2, WFR, 6
    fl_ld = [f"buffer_load_dword v{FL}, v{VFL}, {sr(SRD_WS)}, s16 offen sc1"]
    chk = [f"v_cmp_eq_u32 vcc, s{S_NONCE}, v{FL}", "s_nop 3", "s_cmp_eq_u64 vcc, exec"]

    def yloads():
        return [f"buffer_load_dwordx4 {v(YR,4)}, v{VY}, {sr(SRD_WS)}, s19 offen sc1",
                f"s_add_u32 s13, s19, {8*DP}",
                f"buffer_load_dwordx4 {v(YR+4,4)}, v{VY}, {sr(SRD_WS)}, s13 offen sc1"]

    IF = OPT.get("if", 22)
    IY = OPT.get("iy", 25)
    for i in range(NS):
        sl = i % DH
        a.wait(f"H{i}")
        if i >= NP:
            a("s_waitcnt lgkmcnt(0)")
        hl = hload(i - 1 + DH) if 1 <= i and i - 1 + DH < NS else []
        fill = [(trd(i + 1) if NP <= i + 1 < NS else []) + hl[:3], hl[3:], wload(N2 + i) if N2 + i < NS else [], []]
        k = 0
        for t in range(2):
            for tt in range(2):
                c = "0" if i == 0 else v(acc(t, tt), 16)
                a(f"v_mfma_f32_32x32x16_bf16 {v(acc(t,tt),16)}, {v(wfrag(i)+4*t,4)}, {v(HB+8*sl+4*tt,4)}, {c}")
                a.ext(fill[k])
                k += 1
        if i in (0, 3, 7, 11, 15, 19, 23, 27):
            a.ext(bstamp(3, 2 + (0, 3, 7, 11, 15, 19, 23, 27).index(i)))
        if i == IF:
            a.ext(fl_ld)
            a.tag("F")
        if i == IY:
            a.wait("F")
            a.ext(yloads())
    a.ext(stamp(9))
    a.ext(chk)
    a("s_cbranch_scc1 PY_DONE")
    a.ext(spin("PY", fl_ld, chk))
    a.ext([("NOCOUNT", x) if is_vmem(x) else x for x in yloads()])
    a("PY_DONE:")
    a("s_nop 5")
    for k in range(1, 4):
        for g in range(4):
            a(f"ds_write_b128 v{VW1}, {v(ACC+16*k+4*g,4)} offset:{k*4096+g*1024}")
    X1, Y1 = HB, HB + 16
    OST = {0: "", 1: " sc1", 2: " nt", 3: " sc0 sc1"}[OPT.get("ost", 0)]
    a(f"""
    v_mov_b32 v5, 0xffff0000
    s_waitcnt vmcnt(0)
    ds_write_b128 v{VYW}, {v(YR,4)} offset:16384
    ds_write_b128 v{VYW}, {v(YR+4,4)} offset:17408
    """)
    a("s_waitcnt lgkmcnt(0)")
    a("s_barrier")
    PB = 16
    a(f"ds_read_b32 v{EG}, v{VG}")
    for q in range(4):
        a(f"ds_read_b64_tr_b16 {v(YT+2*q,2)}, v{VYT} offset:{16384+q*512}")
    for k, base in ((1, VR1), (2, VW2), (3, VW3)):
        for g in range(4):
            a(f"ds_read_b128 {v(PB+16*(k-1)+4*g,4)}, v{base} offset:{k*4096+g*1024}")
    a("s_waitcnt lgkmcnt(12)")
    for i in range(8):
        a(f"""
        v_lshlrev_b32 v{Y1+2*i}, 16, v{YT+i}
        v_and_b32 v{Y1+2*i+1}, v5, v{YT+i}
        """)
    a("s_waitcnt lgkmcnt(8)")
    for i in range(0, 16, 2):
        a(f"v_pk_add_f32 {v(ACC+i,2)}, {v(ACC+i,2)}, {v(PB+i,2)}")
    a("s_waitcnt lgkmcnt(0)")
    for i in range(0, 16, 2):
        a(f"v_pk_add_f32 {v(PB+16+i,2)}, {v(PB+16+i,2)}, {v(PB+32+i,2)}")
    for i in range(0, 16, 2):
        a(f"v_pk_add_f32 {v(ACC+i,2)}, {v(ACC+i,2)}, {v(PB+16+i,2)}")
    for i in range(0, 16, 2):
        a(f"v_pk_add_f32 {v(Y1+i,2)}, {v(Y1+i,2)}, {v(ACC+i,2)} neg_lo:[0,1] neg_hi:[0,1]")
    for i in range(0, 16, 2):
        a(f"v_pk_fma_f32 {v(ACC+i,2)}, {v(Y1+i,2)}, {v(EG,2)}, {v(ACC+i,2)} op_sel_hi:[1,0,1]")
    for i in range(8):
        a(f"v_cvt_pk_bf16_f32 v{X1+i}, v{ACC+2*i}, v{ACC+2*i+1}")
    a(f"""
    buffer_store_dwordx4 {v(X1,4)}, v{VEP}, {sr(SRD_OUT)}, 0 offen{OST}
    buffer_store_dwordx4 {v(X1+4,4)}, v{VEP}, {sr(SRD_OUT)}, 0 offen offset:16{OST}
    """)
    a.ext(stamp_end())
    a0.ext(resolve_vm(a.L))


def kwave(gemm_wg):
    sfx = "G" if gemm_wg else "S"
    ra = RA(2, 256)
    pre = Asm()
    main = Asm()
    ph2 = Asm()
    a = pre
    a(f"""
    s_setprio {OPT.get("kprio", 0)}
    s_lshl_b32 s70, s68, 13
    s_add_u32 s70, s70, {KG_BASE}
    """)
    t0 = ra(); t1 = ra(); t2 = ra(); t3 = ra()
    PR = ra(7)
    DV = ra()
    assert PR == K_PR
    if gemm_wg:
        a(f"""
        s_cmp_lg_u32 s69, 0
        s_cbranch_scc1 K{sfx}_NOTAG
        s_memrealtime s[72:73]
        v_mov_b32 v{t0}, 0
        s_waitcnt lgkmcnt(0)
        s_or_b32 s72, s72, 1
        v_mov_b32 v{t1}, s72
        s_mov_b64 exec, 1
        global_store_dword v{t0}, v{t1}, s[{S_DBG}:{S_DBG+1}] sc1
        s_mov_b64 exec, -1
        K{sfx}_NOTAG:
        """)

    WR = ra(8)
    RD = ra(2)
    a(f"""
    v_lshrrev_b32 v{t0}, 1, v0
    v_and_b32 v{t1}, 7, v{t0}
    v_lshlrev_b32 v{t0}, 8, v{t0}
    v_and_b32 v{t2}, 1, v0
    v_lshl_add_u32 v{t0}, v{t2}, 3, v{t0}
    v_add_u32 v{t0}, s70, v{t0}
    """)
    for b in range(8):
        a(f"""
        v_xor_b32 v{t2}, {b}, v{t1}
        v_lshl_add_u32 v{WR+b}, v{t2}, 4, v{t0}
        """)
    a(f"""
    v_and_b32 v{t0}, 15, v0
    v_lshrrev_b32 v{t1}, 4, v0
    """)
    for p in range(2):
        a(f"""
        v_add_u32 v{t2}, {4*p}, v{t1}
        v_xor_b32 v{t3}, v{t2}, v{t0}
        v_lshlrev_b32 v{t3}, 4, v{t3}
        v_lshl_add_u32 v{t3}, v{t2}, 8, v{t3}
        v_add_u32 v{RD+p}, s70, v{t3}
        """)
    TA0 = ra(); TA1 = ra(); TA2 = ra(); TA3 = ra()
    LP = ra(12)
    a(f"""
    v_and_b32 v{t2}, 1, v{t1}
    v_lshrrev_b32 v{t3}, 1, v{t1}
    v_lshlrev_b32 v{TA0}, 5, v{t0}
    v_lshl_add_u32 v{TA0}, v{t2}, 4, v{TA0}
    v_lshl_add_u32 v{TA0}, v{t3}, 9, v{TA0}
    v_lshrrev_b32 v{LP}, 2, v{TA0}
    v_cvt_f32_u32 v{LP}, v{LP}
    v_add_u32 v{TA0}, s70, v{TA0}
    v_add_f32 v{LP+1}, 1.0, v{LP}
    v_add_f32 v{LP+2}, 2.0, v{LP}
    v_add_f32 v{LP+3}, 2.0, v{LP+1}
    v_cmp_gt_u32 vcc, 2, v{t1}
    v_lshlrev_b32 v{TA1}, 4, v{t0}
    v_lshlrev_b32 v{TA2}, 3, v{t0}
    v_cndmask_b32 v{TA1}, v{TA2}, v{TA1}, vcc
    v_lshl_add_u32 v{TA1}, v{t1}, 8, v{TA1}
    v_add_u32 v{TA1}, s70, v{TA1}
    v_add_u32 v{TA1}, 1024, v{TA1}
    v_mov_b32 v{TA2}, 128
    v_cndmask_b32 v{TA2}, v{TA2}, 8, vcc
    v_add_u32 v{TA2}, v{TA2}, v{TA1}
    v_lshlrev_b32 v{TA3}, 2, v{t0}
    v_lshl_add_u32 v{TA3}, v{t1}, 8, v{TA3}
    v_add_u32 v{TA3}, s70, v{TA3}
    """)
    a(f"""
    v_lshlrev_b32 v{t2}, 7, v{t1}
    v_add_u32 v{t2}, 256, v{t2}
    v_lshlrev_b32 v{t3}, 8, v{t1}
    v_cndmask_b32 v{t2}, v{t3}, v{t2}, vcc
    v_lshl_add_u32 v{t2}, v{t0}, 3, v{t2}
    v_cvt_f32_u32 v{LP+4}, v{t2}
    v_mov_b32 v{t2}, 4.0
    v_cndmask_b32 v{t2}, v{t2}, 2.0, vcc
    v_mov_b32 v{t3}, {f32(128.0)}
    v_cndmask_b32 v{t3}, v{t3}, 4.0, vcc
    v_add_f32 v{LP+5}, v{LP+4}, v{t2}
    v_add_f32 v{LP+6}, v{LP+4}, v{t3}
    v_add_f32 v{LP+7}, v{LP+6}, v{t2}
    v_lshlrev_b32 v{t2}, 9, v{t1}
    v_lshl_add_u32 v{t2}, v{t0}, 3, v{t2}
    v_add_u32 v{t2}, 1024, v{t2}
    v_cvt_f32_u32 v{LP+8}, v{t2}
    v_add_f32 v{LP+9}, {f32(128.0)}, v{LP+8}
    v_add_f32 v{LP+10}, {f32(256.0)}, v{LP+8}
    v_add_f32 v{LP+11}, {f32(384.0)}, v{LP+8}
    """)
    EX = ra(10)
    a(f"""
    s_sub_u32 s72, s70, {4*17024}
    v_lshlrev_b32 v{t0}, 3, v0
    v_cvt_f32_u32 v{t1}, v{t0}
    v_cmp_gt_u32 vcc, 16, v0
    v_add_u32 v{EX+8}, s70, v{t0}
    v_lshlrev_b32 v{t0}, 2, v{t0}
    v_add_u32 v{t0}, s70, v{t0}
    v_lshlrev_b32 v{EX+9}, 2, v0
    v_add_u32 v{EX+9}, s70, v{EX+9}
    v_add_u32 v{EX+9}, 2048, v{EX+9}
    """)
    for kk in range(4):
        e0, e1 = EX + 2 * kk, EX + 2 * kk + 1
        a(f"""
        v_add_f32 v{t2}, 1.0, v{t1}
        v_cvt_pk_bf16_f32 v{t3}, v{t1}, v{t2}
        v_add_f32 v{t1}, 2.0, v{t1}
        v_and_b32 v{e0}, 0xffff, v{t3}
        v_lshrrev_b32 v{e1}, 16, v{t3}
        v_lshl_add_u32 v{e0}, v{e0}, 2, s72
        v_lshl_add_u32 v{e1}, v{e1}, 2, s72
        v_add_u32 v{t2}, {8*kk}, v{t0}
        v_add_u32 v{t3}, {8*kk+4}, v{t0}
        v_cndmask_b32 v{e0}, v{e0}, v{t2}, vcc
        v_cndmask_b32 v{e1}, v{e1}, v{t3}, vcc
        """)

    a = main
    a("s_waitcnt vmcnt(0)")
    MASK = ra()
    DT = ra()
    PP = ra(12)
    a(f"""
    v_mov_b32 v{MASK}, 0xffff0000
    v_cmp_eq_u32 vcc, 0, v0
    v_lshlrev_b32 v{DV}, 16, v{DV}
    s_nop 0
    v_cndmask_b32 v{DV}, 0, v{DV}, vcc
    """)
    for i in range(6):
        a(f"v_lshlrev_b32 v{PP+2*i}, 16, v{PR+i}")
        a(f"v_and_b32 v{PP+2*i+1}, v{MASK}, v{PR+i}")
    x = PR + 6
    a(f"""
    v_lshlrev_b32 v{x}, 16, v{x}
    v_mul_f32 v{t0}, {f32(LOG2E_HI)}, v{x}
    s_mov_b32 s72, {f32(LOG2E_HI)}
    v_fma_f32 v{t1}, v{x}, s72, -v{t0}
    v_fmac_f32 v{t1}, {f32(LOG2E_LO)}, v{x}
    v_exp_f32 v{t0}, v{t0}
    v_mul_f32 v{t1}, {f32(LN2)}, v{t1}
    v_fmac_f32 v{t0}, v{t0}, v{t1}
    v_cvt_pk_bf16_f32 v{t0}, v{t0}, v{t0}
    v_lshlrev_b32 v{DT}, 16, v{t0}
    """)
    A2, TH, Br, Bi, Cr, Ci = (PP + 2 * i for i in range(6))
    for m in range(2):
        a(f"""
        v_mul_f32 v{A2+m}, v{DT}, v{A2+m}
        v_mul_f32 v{TH+m}, v{DT}, v{TH+m}
        v_mul_f32 v{Br+m}, v{DT}, v{Br+m}
        v_mul_f32 v{Bi+m}, v{DT}, v{Bi+m}
        v_mul_f32 v{A2+m}, {f32(LOG2E)}, v{A2+m}
        v_mul_f32 v{TH+m}, {f32(INV2PI)}, v{TH+m}
        """)
    W0 = ra(4); W1 = ra(4)
    for m in range(2):
        a(f"""
        v_mul_f32 v{W0+2*m}, v{Cr+m}, v{Br+m}
        v_mul_f32 v{W0+2*m+1}, v{Cr+m}, v{Bi+m}
        v_fma_f32 v{W0+2*m}, -v{Ci+m}, v{Bi+m}, v{W0+2*m}
        v_fmac_f32 v{W0+2*m+1}, v{Ci+m}, v{Br+m}
        v_sub_f32 v{W0+2*m+1}, 0, v{W0+2*m+1}
        """)
    SIG = ra(); WM = ra(); CE = ra()
    a(f"""
    v_max_f32 v{SIG}, v{A2}, v{A2+1}
    v_max3_f32 v{WM}, |v{W0}|, |v{W0+1}|, |v{W0+2}|
    v_max_f32 v{WM}, |v{W0+3}|, v{WM}
    s_nop 1
    """)
    for ctl in ("quad_perm:[1,0,3,2]", "quad_perm:[2,3,0,1]", "row_half_mirror", "row_mirror"):
        a(f"""
        v_max_f32_dpp v{SIG}, v{SIG}, v{SIG} {ctl} row_mask:0xf bank_mask:0xf
        v_max_f32_dpp v{WM}, v{WM}, v{WM} {ctl} row_mask:0xf bank_mask:0xf
        s_nop 0
        """)
    a(f"""
    v_readlane_b32 s72, v{SIG}, 0
    v_readlane_b32 s73, v{SIG}, 16
    v_readlane_b32 s74, v{SIG}, 32
    v_readlane_b32 s75, v{SIG}, 48
    v_readlane_b32 s6, v{WM}, 0
    v_readlane_b32 s7, v{WM}, 16
    v_readlane_b32 s8, v{WM}, 32
    v_readlane_b32 s9, v{WM}, 48
    v_max_f32 v{SIG}, s72, v{SIG}
    v_max_f32 v{SIG}, s73, v{SIG}
    v_max_f32 v{SIG}, s74, v{SIG}
    v_max_f32 v{SIG}, s75, v{SIG}
    v_max_f32 v{WM}, s6, v{WM}
    v_max_f32 v{WM}, s7, v{WM}
    v_max_f32 v{WM}, s8, v{WM}
    v_max_f32 v{WM}, s9, v{WM}
    v_sub_f32 v{A2}, v{A2}, v{SIG}
    v_sub_f32 v{A2+1}, v{A2+1}, v{SIG}
    v_frexp_exp_i32_f32 v{CE}, v{WM}
    v_sub_u32 v{t0}, 14, v{CE}
    v_subrev_u32 v{CE}, 29, v{CE}
    """)
    for i in range(4):
        a(f"v_ldexp_f32 v{W0+i}, v{W0+i}, v{t0}")

    def cexp(l):
        r = ra(6)
        for m in range(2):
            a(f"""
            v_mul_f32 v{t0}, {f32(float(l))}, v{A2+m}
            v_mul_f32 v{t1}, {f32(float(l))}, v{TH+m}
            v_exp_f32 v{t0}, v{t0}
            v_fract_f32 v{t1}, v{t1}
            v_cos_f32 v{t2}, v{t1}
            v_sin_f32 v{t3}, v{t1}
            s_nop 0
            v_mul_f32 v{r+2*m}, v{t0}, v{t2}
            v_mul_f32 v{r+2*m+1}, v{t0}, v{t3}
            v_sub_f32 v{r+4+m}, 0, v{r+2*m+1}
            """)
        return r

    def cmul(d, x_, b, conj=False):
        for m in range(2):
            br, bi, nbi = b + 2 * m, b + 2 * m + 1, b + 4 + m
            if conj:
                bi, nbi = nbi, bi
            a(f"""
            v_mul_f32 v{d+2*m}, v{x_+2*m}, v{br}
            v_mul_f32 v{d+2*m+1}, v{x_+2*m}, v{bi}
            v_fmac_f32 v{d+2*m}, v{x_+2*m+1}, v{nbi}
            v_fmac_f32 v{d+2*m+1}, v{x_+2*m+1}, v{br}
            """)

    def neg(b):
        for m in range(2):
            a(f"v_sub_f32 v{b+4+m}, 0, v{b+2*m+1}")

    def scale(d, x_):
        for i in range(4):
            a(f"v_mul_f32 v{d+i}, {f32(32768.0)}, v{x_+i}")

    VB = [ra(32, 4), ra(32, 4), ra(32, 4), ra(18, 4)]
    CH0 = ra(0, 4)

    def put(batch, row, r):
        h = VB[batch] + 2 * row
        if r is None:
            a(f"v_mov_b32 v{h}, 0x7800\nv_mov_b32 v{h+1}, 0x7800")
        else:
            a(f"""
            v_cvt_pk_f16_f32 v{h}, v{r}, v{r+1}
            v_cvt_pk_f16_f32 v{h+1}, v{r+2}, v{r+3}
            """)

    E8 = cexp(8)
    cur, nxt = W0, W1
    for c in range(16):
        if c < 15:
            cmul(nxt, cur, E8, conj=True)
        put(0, c, cur)
        cur, nxt = nxt, cur
    E1 = cexp(1)
    Q1 = cexp(128)
    Q8 = cexp(1024)
    P = {}
    P[1] = ra(4)
    scale(P[1], E1)
    for j in range(2, 8):
        P[j] = ra(6 if j == 4 else 4)
        cmul(P[j], P[j - 1], E1)
    put(1, 0, None)
    for j in range(1, 8):
        put(1, j, P[j])
    scale(W0, Q1)
    put(1, 8, W0)
    for j in range(1, 8):
        cmul(W0, P[j], Q1)
        put(1, 8 + j, W0)
    Q = {1: Q1, 8: Q8}
    for j in range(2, 8):
        Q[j] = {2: E1, 3: PP + 4}[j] if j < 4 else P[2 * (j - 4) + 1]
        cmul(Q[j], Q[j - 1], Q1)
    neg(P[4]); neg(Q[2]); neg(Q[3])
    for qi, j in enumerate((2, 3)):
        scale(W0, Q[j])
        put(2, 4 * qi, W0)
        for r in range(1, 4):
            cmul(W0, P[2 * r], Q[j])
            put(2, 4 * qi + r, W0)
    for aa in range(4):
        scale(W0, Q[4 + aa])
        put(2, 8 + 2 * aa, W0)
        cmul(W0, Q[4 + aa], P[4])
        put(2, 8 + 2 * aa + 1, W0)
    a(f"v_mov_b32 v{PR}, 0")
    a(nonce_ld(PR + 1, PR))
    QS = E8
    scale(QS, Q8)
    neg(QS)
    put(3, 0, QS)
    for j in range(1, 8):
        cmul(W0, Q[j], QS)
        put(3, j, W0)
    cmul(W0, Q8, QS)
    put(3, 8, W0)
    for i in range(12):
        a(f"v_mul_f32 v{LP+i}, v{SIG}, v{LP+i}")
    for i in range(12):
        a(f"v_exp_f32 v{LP+i}, v{LP+i}")

    a = ph2
    YF = CH0
    AC = CH0 + 32
    assert AC + 12 <= ra.p

    def wr(batch, nrows):
        for row in range(nrows):
            a(f"ds_write_b64 v{WR+(row&7)}, {v(VB[batch]+2*row,2)} offset:{(row>>3)*128}")

    def fetch(F):
        for ks in range(8):
            a(f"ds_read_b128 {v(F+4*ks,4)}, v{RD+(ks&1)} offset:{(ks>>1)*2048}")

    def mfmas(tile, XF):
        for ks in range(8):
            c = "0" if ks == 0 else v(AC + 4 * tile, 4)
            a(f"v_mfma_f32_16x16x32_f16 {v(AC+4*tile,4)}, {v(XF+4*ks,4)}, {v(YF+4*ks,4)}, {c}")

    a("s_waitcnt vmcnt(0)")
    ng = plain(nonce_get(f"NK{sfx}", PR + 1, PR))
    a(f"v_mov_b32 v{t2}, {N_LDS}")
    a(f"ds_write_b32 v{t2}, v{PR+1}")
    wr(0, 16); fetch(YF)
    wr(1, 16); fetch(VB[0])
    wr(2, 16); fetch(VB[1])
    a("s_waitcnt lgkmcnt(15)")
    mf0 = len(a.L)
    wr(3, 9); fetch(VB[2])
    tail = a.L[mf0:]
    del a.L[mf0:]
    m = Asm()
    sv, a = a, m
    mfmas(0, VB[0])
    a = sv
    for i in range(8):
        a.ext(tail[2 * i:2 * i + 2])
        a(m.L[i])
    a.ext(tail[16:])
    a("s_waitcnt lgkmcnt(15)")
    mfmas(1, VB[1])
    a("s_waitcnt lgkmcnt(0)")
    mfmas(2, VB[2])
    a("s_nop 3")
    for i in range(12):
        a(f"v_mul_f32 v{AC+i}, v{AC+i}, v{LP+i}")
    for i in range(12):
        a(f"v_ldexp_f32 v{AC+i}, v{AC+i}, v{CE}")
    a(f"v_add_f32 v{AC}, v{AC}, v{DV}")
    a(f"ds_write_b128 v{TA0}, {v(AC,4)}")
    a(f"ds_write_b64 v{TA1}, {v(AC+4,2)}")
    a(f"ds_write_b64 v{TA2}, {v(AC+6,2)}")
    for r in range(4):
        a(f"ds_write_b32 v{TA3}, v{AC+8+r} offset:{2048+64*r}")
    G0 = VB[0]
    OUT = VB[1]
    for i in range(8):
        a(f"ds_read_b32 v{G0+i}, v{EX+i}")
    a(f"""
    ds_read_b64 {v(G0+8,2)}, v{EX+8} offset:1536
    ds_read_b32 v{G0+10}, v{EX+8} offset:1544
    ds_read2_b32 {v(G0+12,2)}, v{EX+9} offset0:0 offset1:1
    ds_read2_b32 {v(G0+14,2)}, v{EX+9} offset0:64 offset1:65
    v_lshlrev_b32 v{t0}, 4, v0
    v_add_u32 v{t0}, s70, v{t0}
    v_and_b32 v{t1}, 3, v0
    v_lshlrev_b32 v{t1}, 4, v{t1}
    v_add_u32 v{t1}, s70, v{t1}
    v_mov_b32 v{OUT+16}, 0
    v_mov_b32 v{OUT+17}, 0
    v_mov_b32 v{OUT+18}, 0
    v_mov_b32 v{OUT+19}, 0
    s_mov_b32 s72, 0xaaaaaaaa
    s_mov_b32 s73, 0xaaaaaaaa
    ds_write_b128 v{t1}, {v(OUT+16,4)} offset:{KARR}
    s_waitcnt lgkmcnt(0)
    """)
    for k in range(4):
        a(f"v_cvt_pk_bf16_f32 v{OUT+k}, v{G0+2*k}, v{G0+2*k+1}")
    a(f"""
    v_cvt_pk_bf16_f32 v{OUT+4}, v{G0+8}, v{G0+8}
    v_cvt_pk_bf16_f32 v{OUT+5}, v{G0+8}, v{G0+9}
    v_cvt_pk_bf16_f32 v{OUT+6}, v{G0+9}, v{G0+9}
    v_cvt_pk_bf16_f32 v{OUT+7}, v{G0+10}, v{G0+10}
    """)
    for it in (2, 3):
        T0, T1 = G0 + 8 + 2 * it, G0 + 9 + 2 * it
        o = OUT + 4 * it
        a(f"""
        v_cndmask_b32 v{t2}, v{T0}, v{T1}, s[72:73]
        v_cvt_pk_bf16_f32 v{o}, v{T0}, v{T0}
        v_cvt_pk_bf16_f32 v{o+1}, v{T0}, v{T0}
        v_cvt_pk_bf16_f32 v{o+2}, v{t2}, v{T1}
        v_cvt_pk_bf16_f32 v{o+3}, v{T1}, v{T1}
        """)
    a(f"v_mov_b32 v{t2}, 0")
    for it in range(4):
        a(f"ds_write_b128 v{t0}, {v(OUT+4*it,4)} offset:{KARR+64+1024*it}")
    if OPT.get("dbgk"):
        a(f"""
        s_lshl_b32 s72, s69, 12
        s_add_u32 s72, s72, {KX_OFF}
        v_lshlrev_b32 v{t0}, 4, v0
        """)
        for it in range(4):
            a(f"buffer_store_dwordx4 {v(OUT+4*it,4)}, v{t0}, {sr(SRD_WS)}, s72 offen offset:{1024*it}")
    a("s_waitcnt vmcnt(0) lgkmcnt(0)")
    ph2.L[1:1] = ["\n    ".join(ng)]

    out = list(pre.L)
    out.extend(stamp(1))
    kx = OPT.get("kx", 0)
    if kx == 1:
        ph2.L = []
    elif kx == 2:
        ph2.L = [x for x in ph2.L if not x.startswith("v_mfma")]
    elif kx == 3:
        ph2.L = [x for x in ph2.L if not x.startswith("ds_write")]
    elif kx == 4:
        ph2.L = [x for x in ph2.L if not x.startswith("ds_read")]
    elif kx == 5:
        L2 = []
        for x in ph2.L:
            L2.append(x)
            if x.startswith("ds_write_b64"):
                L2.append("s_nop 3")
        ph2.L = L2
    if gemm_wg:
        per = OPT.get("kper", 132)
        first = OPT.get("kfirst", 0)
        p2a = OPT.get("kp2a", 48)
        p2b = OPT.get("kp2b", 100)
        pos = min(first, len(main.L))
        out.extend(main.L[:pos])
        for sidx in range(9):
            out.extend(bstamp(2, 1 + sidx))
            out.append("s_barrier")
            if sidx < 6:
                end = len(main.L) if sidx == 5 else min(pos + per, len(main.L))
                out.extend(main.L[pos:end])
                pos = end
            elif sidx == 6:
                out.extend(ph2.L[:p2a])
            elif sidx == 7:
                out.extend(ph2.L[p2a:p2b])
            else:
                out.extend(ph2.L[p2b:])
        out.extend(stamp(2))
    else:
        ks1 = OPT.get("ks1", 250)
        out.extend(main.L[:ks1])
        out.append("s_barrier")
        out.extend(main.L[ks1:])
        out.extend(ph2.L)
        out.extend(stamp(2))
    out.append("s_mov_b32 s6, s68")
    out.append("s_branch L_CONVB")
    return out


def fu_code(vaddr, vtmp, vdst, sd):
    setup = [f"s_lshr_b32 s16, s{sd}, 7", "s_lshl_b32 s16, s16, 7", f"s_lshr_b32 s17, s{sd}, 3", "s_and_b32 s17, s17, 8",
             "s_add_u32 s16, s16, s17", f"s_add_u32 s16, s16, {FU_OFF}",
             f"v_and_b32 v{vaddr}, 7, v0", f"v_lshlrev_b32 v{vaddr}, 9, v{vaddr}"]
    ld = [f"buffer_load_dwordx2 v[{vdst}:{vdst+1}], v{vaddr}, {sr(SRD_WS)}, s16 offen sc1"]
    chk = [f"v_cmp_eq_u32 vcc, s{S_NONCE}, v{vdst}", f"v_cmp_eq_u32 s[50:51], s{S_NONCE}, v{vdst+1}", "s_nop 3",
           "s_and_b64 vcc, vcc, s[50:51]", "s_cmp_eq_u64 vcc, exec"]
    return setup, ld, chk


def u_dma(vl16, sd):
    L = [f"s_mul_i32 s52, s6, {USZ}", f"s_mul_i32 s53, s{sd}, {DP}", f"s_add_u32 s53, s53, {UT_OFF}"]
    for r in range(4):
        L += [f"s_add_u32 m0, s52, {U_BASE + r*UPITCH + 112}", "s_nop 0",
              f"buffer_load_dwordx4 v{vl16}, {sr(SRD_WS)}, s53 offen sc1 lds", "s_add_u32 s53, s53, 1024"]
    return L


def lwave(gemm_wg):
    sfx = "G" if gemm_wg else "S"
    a = Asm()
    XV, WV, VL, VC = 8, 12, 2, 16
    t0, t1, t2 = 3, 4, 5
    DUM = 24
    ROT = OPT.get("rot", 0)
    FL8 = OPT.get("fl8", 1)
    SW = 12
    a("s_setprio 3")

    def kofs(st):
        if not ROT:
            return []
        return [f"s_add_u32 s18, s{S_PHI}, {st}", "s_and_b32 s18, s18, 7", f"s_mul_i32 s19, s18, {64*3584}",
                "s_lshl_b32 s18, s18, 7"]

    def grp(st, g):
        sl = st % 3
        if g in (1, 5):
            j = 0 if g == 1 else 1
            L = [f"s_add_u32 m0, s{10+j}, {sl*SLOT}", f"s_add_u32 s22, s{8+j}, {'s18' if ROT else st*128}"]
            L += [f"buffer_load_dwordx4 v{XV+i}, {sr(SRD_X)}, s22 offen offset:{1024*i} lds" for i in range(4)]
        else:
            j = 0 if g == 0 else g - 1
            L = [f"s_add_u32 m0, s{72+j}, {sl*SLOT}", f"s_add_u32 s22, s{68+j}, {'s19' if ROT else st*64*3584}"]
            L += [f"buffer_load_dwordx4 v{WV+i}, {sr(SW)}, s22 offen offset:{1024*i} lds" for i in range(4)]
        return L

    def pref(st):
        L = [f"s_add_u32 s22, s68, {st*64*3584}"]
        L += [f"buffer_load_dwordx4 {v(DUM+4*i,4)}, v{WV+i}, {sr(SW)}, s22 offen offset:{1024*i}" for i in range(4)]
        L += [f"s_add_u32 s22, s23, {st*128}"]
        L += [f"buffer_load_dwordx4 {v(DUM+16+4*i,4)}, v{XV+i}, {sr(SRD_X)}, s22 offen offset:{1024*i}" for i in range(2)]
        return L

    fu_setup, fu_ld, fu_chk = fu_code(t1, t2, VC, 7)

    def poll_setup():
        a(f"""
        s_lshl_b32 s7, s2, 1
        s_add_u32 s7, s7, s6
        v_lshlrev_b32 v{VL}, 4, v0
        s_mov_b32 s77, 0x100000
        """)
        a.ext(fu_setup)

    STG = 24
    assert STG + 16 * n1() <= 256

    def wd_setup():
        a(f"""
        v_lshrrev_b32 v20, 3, v0
        v_and_b32 v21, 7, v0
        v_lshrrev_b32 v22, 1, v20
        v_and_b32 v22, 1, v22
        v_lshlrev_b32 v22, 2, v22
        v_xor_b32 v21, v21, v22
        v_lshlrev_b32 v18, 10, v20
        v_lshl_add_u32 v18, v21, 4, v18
        v_add_u32 v19, 8192, v18
        """)
        a(cb64_scalar(17, 3))
        a(f"""
        s_lshl_b32 s17, s17, 7
        s_mul_i32 s3, s6, {3*28*16384}
        s_add_u32 s3, s3, s17
        s_sub_u32 s48, 2, s6
        s_lshl_b32 s49, s48, 15
        v_add_u32 v1, s49, v{VL}
        s_mul_i32 s48, s48, {28*16384}
        s_add_u32 s48, s48, s17
        s_mul_i32 s17, s6, {3*RING2}
        v_add_u32 v7, s17, v{VL}
        """)
        a(rot_scalar(76, 17))
        a("s_mov_b32 s49, s76")

    wpos = [0, 0]
    wwp = [0, 0]

    def wd_ld(g, n):
        sb, ss = ((3, 76), (48, 49))[g]
        for _ in range(n):
            i = wpos[g]
            if i >= n1():
                break
            wpos[g] += 1
            R = STG + 8 * (g * n1() + i)
            a(f"""
            s_lshl_b32 s22, s{ss}, 14
            s_add_u32 s22, s22, s{sb}
            buffer_load_dwordx4 {v(R,4)}, v18, {sr(SRD_WD)}, s22 offen
            s_add_u32 s{ss}, s{ss}, 1
            s_cmp_ge_u32 s{ss}, 28
            s_cselect_b32 s{ss}, 0, s{ss}
            buffer_load_dwordx4 {v(R+4,4)}, v19, {sr(SRD_WD)}, s22 offen
            """)
            a.tag(f"wd{g}_{i}")

    def wd_wr(g, n):
        for i in range(wwp[g], min(n1(), wwp[g] + n)):
            wwp[g] = i + 1
            R = STG + 8 * (g * n1() + i)
            a.wait(f"wd{g}_{i}")
            for k in range(2):
                a(f"ds_write_b128 v{(7, 1)[g]}, {v(R+4*k,4)} offset:{i*2048 + k*1024}")

    def u_load():
        a(f"""
        s_cselect_b32 s19, {0 if OPT.get("forceslow") else 1}, 0
        s_mul_i32 s18, s6, {USZ}
        s_add_u32 s18, s18, {U_BASE}
        v_mov_b32 v20, 0
        v_mov_b32 v21, 0
        v_mov_b32 v22, 0
        v_mov_b32 v23, 0
        v_and_b32 v{t2}, 7, v0
        v_lshrrev_b32 v6, 3, v0
        v_and_b32 v6, 3, v6
        v_min_u32 v{t2}, 6, v{t2}
        v_mul_u32_u24 v6, {UPITCH}, v6
        v_lshl_add_u32 v{t2}, v{t2}, 4, v6
        v_add_u32 v{t2}, s18, v{t2}
        ds_write_b128 v{t2}, v[20:23]
        s_lshl_b32 s18, s6, 2
        s_add_u32 s18, s18, {S_LDS}
        v_mov_b32 v{t2}, s18
        v_mov_b32 v6, s19
        ds_write_b32 v{t2}, v6
        s_cmp_eq_u32 s19, 0
        s_cbranch_scc1 NOU{sfx}
        """)
        a.ext([("NOCOUNT", x) if is_vmem(x) else x for x in u_dma(VL, 7)])
        a(f"NOU{sfx}:")

    if gemm_wg:
        def wgrp(j):
            a(f"""
            s_add_u32 s17, s18, {j}
            s_and_b32 s17, s17, 3
            s_mul_i32 s{68+j}, s17, {16*3584}
            s_add_u32 s{68+j}, s{68+j}, s23
            s_lshl_b32 s{72+j}, s17, 12
            s_add_u32 s{72+j}, s{72+j}, s16
            """)
        a(f"""
        v_lshrrev_b32 v{t0}, 4, v0
        v_and_b32 v{t1}, 15, v0
        s_mov_b32 s18, s68
        s_mov_b32 s19, s69
        v_lshlrev_b32 v{t2}, 2, v{t0}
        s_lshl_b32 s23, s{S_CB}, 8
        v_xor_b32 v{t1}, v{t1}, v{t2}
        s_lshl_b32 s16, s6, 14
        v_mul_u32_u24 v{t0}, 3584, v{t0}
        s_add_u32 s16, s16, 16384
        v_lshl_add_u32 v{WV}, v{t1}, 4, v{t0}
        s_mov_b32 s{SW+2}, {512*1792*2}
        s_mov_b32 s{SW+3}, 0x00020000
        """)
        for i in range(1, 4):
            a(f"v_add_u32 v{WV+i}, {(4*3584-1024)*i}, v{WV}")
        wgrp(0)
        a.ext(bstamp(6, 1))
        a(f"""
        s_cmp_eq_u32 s6, 0
        s_waitcnt lgkmcnt(0)
        s_cselect_b32 s{SW}, s{S_WG}, s{S_WU}
        s_cselect_b32 s{SW+1}, s{S_WG+1}, s{S_WU+1}
        s_and_b32 s{SW+1}, s{SW+1}, 0xffff
        """)
        assert not ROT
        a.ext(bstamp(6, 2))
        a.ext(grp(0, 0))
        wgrp(1)
        a.ext(grp(0, 2))
        wgrp(2)
        a.ext(grp(0, 3))
        wgrp(3)
        a.ext(grp(0, 4))
        a(f"""
        v_lshrrev_b32 v{t0}, 3, v0
        v_and_b32 v{t1}, 7, v0
        v_lshrrev_b32 v{t2}, 1, v{t0}
        v_xor_b32 v{t1}, v{t1}, v{t2}
        v_lshlrev_b32 v{t0}, 10, v{t0}
        """)
        for i in range(4):
            a(f"""
            v_xor_b32 v{t2}, {4*(i&1)}, v{t1}
            v_lshl_add_u32 v{XV+i}, v{t2}, 4, v{t0}
            v_add_u32 v{XV+i}, {7168*i}, v{XV+i}
            """)
        a(f"""
        s_and_b32 s17, s19, 1
        s_lshl_b32 s17, s17, 1
        s_add_u32 s17, s17, s6
        s_lshl_b32 s16, s{S_RB}, 17
        s_lshl_b32 s8, s17, 15
        s_add_u32 s8, s8, s16
        s_lshl_b32 s10, s17, 12
        s_xor_b32 s17, s17, 2
        s_lshl_b32 s9, s17, 15
        s_add_u32 s9, s9, s16
        s_lshl_b32 s11, s17, 12
        s_mov_b32 s{SRD_X}, s{S_U}
        s_and_b32 s{SRD_X+1}, s{S_U+1}, 0xffff
        s_mov_b32 s{SRD_X+2}, {2048*512*2}
        s_mov_b32 s{SRD_X+3}, 0x00020000
        """)
        a.ext(grp(0, 1))
        a.ext(grp(0, 5))
        a.tag("st0")
        a(f"""
        s_lshl_b32 s22, s19, 1
        s_add_u32 s22, s22, s6
        s_and_b32 s22, s22, 7
        s_lshl_b32 s23, s22, 14
        s_add_u32 s23, s23, s16
        """)
        tail = {3: "S5 R5", 4: "S6 R6", 5: "S7 R7"}
        scheds = [
            {-1: "S0 S1 S2 R0 P3 P4", 0: "R1 P5 P6", 1: "R2 P7 S3", 2: "R3 S4 R4"},
            {-1: "S0 S1 S2 R0 R1", 0: "P3 P4 R2", 1: "P5 P6 P7 S3 R3", 2: "S4 R4"},
            {-1: "S0 R0 S1 R1", 0: "S2 R2", 1: "S3 R3", 2: "S4 R4"},
            {-1: "S0 R0 S1", 0: "R1 S2", 1: "R2 S3", 2: "R3 S4 R4"},
            {-1: "S0 R0 S1 S2 P3", 0: "R1 P4 P5", 1: "R2 P6 P7 S3", 2: "R3 S4 R4"},
            {-1: "S0 R0 S1 S2", 0: "R1 R2", 1: "S3 R3", 2: "S4 R4"},
            {-1: "S0 R0 S1 S2", 0: "R1 R2", 1: "S3 R3 P5", 2: "S4 R4 P6 P7"},
            {-1: "S0 R0 S1 S2", 0: "R1 R2 P3", 1: "S3 R3 P4 P5", 2: "S4 R4 P6 P7"},
        ]
        sched = dict(scheds[OPT.get("lsched", 5)])
        sched.update(tail)
        MP = OPT.get("mp", 1)
        if MP >= 0:
            sched[MP] += " M0"

        def issue(k):
            for tok in sched.get(k, "").split():
                st = int(tok[1:])
                if tok[0] == "S":
                    a.ext(kofs(st) + grp(st, 0) + grp(st, 1))
                elif tok[0] == "R":
                    a.ext(kofs(st))
                    for g in (2, 5, 3, 4):
                        a.ext(grp(st, g))
                    a.tag(f"st{st}")
                elif tok[0] == "P":
                    assert not ROT
                    a.ext(pref(st))
                elif tok[0] == "M":
                    a(f"""
                    s_mul_i32 s22, s{S_XCD}, 28
                    s_add_u32 s22, s22, s{S_IDX}
                    s_lshl_b32 s22, s22, 1
                    s_add_u32 s22, s22, s6
                    s_lshl_b32 s22, s22, 12
                    """)
                    for i in range(4):
                        a(f"buffer_load_dwordx4 {v(DUM+4*i,4)}, v{VL}, {sr(SRD_WD)}, s22 offen offset:{1024*i}")
        sched[-1] = sched[-1].replace("S0", "").replace("R0", "")
        issue(-1)
        a.ext(bstamp(6, 4))
        a.ext(stamp(1))
        srd(a, SRD_WS, S_WS, WS_BYTES)
        srd(a, SRD_WD, S_WD, 1792 * 512 * 2)
        poll_setup()
        for sidx in range(9):
            if sidx < 8:
                a.wait(f"st{sidx}")
            a.ext(bstamp(2, 1 + sidx))
            if sidx < 4:
                a.ext(bstamp(6, 5 + sidx))
            a("s_barrier")
            if sidx in (0, 3):
                a.ext(stamp(2 + (0, 3).index(sidx)))
            issue(sidx)
            if sidx == 4:
                wd_setup()
            if sidx == 5:
                wd_ld(0, OPT.get("w5", 0))
            if sidx == 6:
                a(f"s_setprio {OPT.get('lprio', 1)}")
                wd_ld(0, OPT.get("w6", 10))
            if sidx == 7:
                wd_ld(0, 28)
                wd_ld(1, OPT.get("w7", 14))
                a.ext(fu_ld)
                a.tag("fu")
            if sidx == 8:
                a.ext(stamp(4))
                a(f"v_mov_b32 v6, {N_LDS}\nds_read_b32 v6, v6")
                wd_ld(1, 28)
                wd_wr(0, OPT.get("e8", 6))
                a("s_waitcnt vmcnt(0)")
                a.L.append(("VMRESET",))
                a(f"s_waitcnt lgkmcnt(0)\nv_readfirstlane_b32 s{S_NONCE}, v6\ns_nop 3")
                a.ext(fu_chk)
                u_load()
                wd_wr(0, 28)
                wd_wr(1, 28)
        a("s_waitcnt vmcnt(0) lgkmcnt(0)")
        a.ext(stamp(5))
    else:
        a("s_waitcnt lgkmcnt(0)")
        srd(a, SRD_WS, S_WS, WS_BYTES)
        srd(a, SRD_WD, S_WD, 1792 * 512 * 2)
        poll_setup()
        wd_setup()
        a(f"v_mov_b32 v{t0}, 0")
        a("s_barrier")
        thr = OPT.get("sthr", 2)
        if thr:
            for _ in range(thr):
                wd_ld(0, 2)
                a("s_waitcnt vmcnt(0)")
        wd_ld(0, 28)
        wd_ld(1, 28)
        a(nonce_ld(6, t0))
        a.ext(fu_ld)
        wd_wr(0, 28)
        a("s_waitcnt vmcnt(0)")
        a.L.append(("VMRESET",))
        a.ext(stamp(4))
        a.ext(nonce_get(f"NL{sfx}", 6, t0))
        a.ext(fu_chk)
        u_load()
        wd_wr(1, 28)
        a("s_waitcnt vmcnt(0) lgkmcnt(0)")
        a.ext(stamp(5))
    a("s_branch L_CONVA")
    return resolve_vm(a.L)


def conv(a0, partB):
    a = Asm()
    KA, UA, YA = 2, 3, 5
    qs, outq = ([5, 6, 7], [6, 7]) if partB else ([0, 1, 2, 3, 4, 5], [0, 1, 2, 3, 4, 5])
    a(f"""
    s_lshl_b32 s8, s6, 13
    s_add_u32 s8, s8, {KG_BASE + KARR + 32}
    s_mul_i32 s9, s6, {USZ}
    s_add_u32 s9, s9, {U_BASE + 16}
    v_lshrrev_b32 v6, 2, v0
    v_and_b32 v10, 7, v6
    v_and_b32 v6, 3, v6
    v_and_b32 v7, 3, v0
    v_lshrrev_b32 v8, 4, v0
    v_and_b32 v8, 1, v8
    v_lshrrev_b32 v9, 5, v0
    v_mul_u32_u24 v{UA}, {UPITCH}, v7
    v_sub_u32 v10, v10, v9
    v_lshl_add_u32 v{UA}, v10, 4, v{UA}
    v_add_u32 v{UA}, s9, v{UA}
    v_lshlrev_b32 v{KA}, 5, v8
    v_lshl_add_u32 v{KA}, v7, 3, v{KA}
    v_lshl_add_u32 v{KA}, v9, 6, v{KA}
    v_lshlrev_b32 v10, 3, v6
    v_sub_u32 v{KA}, v{KA}, v10
    v_add_u32 v{KA}, s8, v{KA}
    """)
    qmax = max(qs)
    nst = 4 * qmax + 4
    NU = 4
    UBUF = 8
    KT = 24
    ACC = KT + 4 * nst
    TMP = ACC + 16 * len(qs)
    assert TMP + 3 * len(qs) + 1 <= 256

    def acc(q):
        return ACC + 16 * qs.index(q)

    need = {}
    for i in range(nst):
        for q in qs:
            s_ = 4 * q + 3 - i
            if s_ >= 0 and s_ not in need:
                need[s_] = i

    def rd(i):
        L = [f"ds_read_b128 {v(UBUF+4*(i%NU),4)}, v{UA} offset:{32*i}"]
        for s_ in sorted(s for s in need if need[s] == i):
            L += [f"ds_read_b64_tr_b16 {v(KT+4*s_,2)}, v{KA} offset:{128*s_+32}",
                  f"ds_read_b64_tr_b16 {v(KT+4*s_+2,2)}, v{KA} offset:{128*s_}"]
        L.append(("LTAG", f"R{i}"))
        return L

    PF = NU - 1
    a(f"""
    v_and_b32 v4, 7, v0
    v_lshrrev_b32 v{YA}, 3, v0
    v_lshlrev_b32 v{YA}, 4, v{YA}
    v_lshl_add_u32 v{YA}, v4, 7, v{YA}
    v_mov_b32 v6, 0
    v_mov_b32 v7, s{S_NONCE}
    s_mov_b32 s12, 0
    s_mov_b32 s13, 0x80000000
    s_mov_b32 s14, 0
    s_mov_b32 s15, 0xc0000000
    s_mov_b32 s16, 0
    s_mov_b32 s17, 0xe0000000
    s_lshl_b32 s7, s2, 1
    s_add_u32 s7, s7, s6
    s_mul_i32 s18, s7, {DP}
    s_add_u32 s18, s18, {Y_OFF}
    s_lshl_b32 s19, s2, 4
    s_add_u32 s19, s19, s6
    s_lshl_b32 s19, s19, 3
    s_add_u32 s19, s19, {FY_OFF + (4 if partB else 0)}
    """)
    a(f"s_setprio {OPT.get('cprio', 3)}")
    P = "B" if partB else "A"
    a(f"""
    s_lshl_b32 s52, s6, 2
    s_add_u32 s52, s52, {S_LDS}
    v_mov_b32 v4, s52
    """)
    a("s_barrier")
    a.ext(stamp(6))
    a("ds_read_b32 v4, v4")
    a.L.append(("LTAG", "ST"))
    a(f"CV{P}_GO:")
    a.ext(rd(0))
    a.L.append(("LWAIT", "ST"))
    a(f"""
    v_readfirstlane_b32 s52, v4
    s_nop 3
    s_cmp_eq_u32 s52, 0
    s_cbranch_scc1 CV{P}_SLOW
    """)
    a.ext(rd(1))

    def Y(q, g, rho):
        return acc(q) + 4 * g + rho

    dpp = "wave_ror:1 row_mask:0xf bank_mask:0xf"
    ctl = "row_mask:0xf bank_mask:0xf"

    def post(q):
        L = []
        Z = {}
        for g in (3, 2, 1, 0):
            for rho in (1, 2, 3):
                Z[g, rho] = TMP + 3 * qs.index(q) + rho - 1 if g == 3 else Y(q, g, rho)
                if g > 0:
                    prev = f"v{Y(q,g-1,rho)}"
                elif q > 0:
                    prev = f"v{Y(q-1,3,rho)}"
                else:
                    prev = "v6"
                L.append(f"v_cndmask_b32 v{Z[g,rho]}, v{Y(q,g,rho)}, {prev}, s[{10+2*rho}:{11+2*rho}]")
        for g in (3, 2, 1, 0):
            L.append(f"v_add_f32_dpp v{Z[g,2]}, v{Z[g,3]}, v{Z[g,2]} {dpp}")
        for g in (3, 2, 1, 0):
            L.append(f"v_add_f32_dpp v{Z[g,1]}, v{Z[g,2]}, v{Z[g,1]} {dpp}")
        for g in (3, 2, 1, 0):
            L.append(f"v_add_f32_dpp v{Y(q,g,0)}, v{Z[g,1]}, v{Y(q,g,0)} {dpp}")
        return L

    def stage(S_, D_, bit, stride):
        m = {0: 0xaaaaaaaa, 1: 0xcccccccc, 2: 0xf0f0f0f0}[bit]
        up = {0: "quad_perm:[1,0,3,2]", 1: "quad_perm:[2,3,0,1]", 2: "row_ror:12"}[bit]
        dn = {0: "quad_perm:[1,0,3,2]", 1: "quad_perm:[2,3,0,1]", 2: "row_ror:4"}[bit]
        L = [f"s_mov_b32 vcc_lo, {m:#x}", f"s_mov_b32 vcc_hi, {m:#x}"]
        idx = [i for i in range(len(S_)) if not (i // stride) & 1]
        L += [f"v_cndmask_b32_dpp v{D_[i+stride]}, v{S_[i]}, v{S_[i+stride]}, vcc {up} {ctl}" for i in idx]
        L += ["s_not_b64 vcc, vcc"]
        L += [f"v_cndmask_b32_dpp v{D_[i]}, v{S_[i+stride]}, v{S_[i]}, vcc {dn} {ctl}" for i in idx]
        return L

    def xpose(q):
        S0 = [Y(q - 1 + (g >> 2), g & 3, 0) for g in range(8)]
        free = [Y(qq, g, r) for qq in (q - 1, q) for g in range(3) for r in (1, 2, 3)]
        D0 = free[:8]
        S1 = free[8:12]
        D1 = free[12:16]
        D2 = [acc(q - 1) + i for i in range(4)]
        L = stage(S0, D0, 0, 1)
        L += [f"v_cvt_pk_bf16_f32 v{S1[g]}, v{D0[2*g]}, v{D0[2*g+1]}" for g in range(4)]
        L += stage(S1, D1, 1, 1)
        L += stage(D1, D2, 2, 2)
        L.append(f"buffer_store_dwordx4 {v(D2[0],4)}, v{YA}, {sr(SRD_WS)}, s18 offen offset:{(q-1)*512} sc1")
        return L

    pend = []
    FILL = OPT.get("cfill", 4)
    since = {}
    issued = 2
    for i in range(nst):
        a.L.append(("LWAIT", f"R{i}"))
        rl = []
        while issued < nst and issued <= i + (2 if i < 2 else PF):
            rl += rd(issued)
            issued += 1
        act = [q for q in qs if 4 * q + 3 - i >= 0]
        per = -(-len(rl) // len(act))
        for q in act:
            s_ = 4 * q + 3 - i
            c = "0" if i == 0 else v(acc(q), 16)
            a(f"v_mfma_f32_32x32x16_bf16 {v(acc(q),16)}, {v(UBUF+4*(i%NU),4)}, {v(KT+4*s_,4)}, {c}")
            a.ext(rl[:per])
            rl = rl[per:]
            if s_ == 0:
                since[q] = len(a.L)
            for qq in list(since):
                if len([x for x in a.L[since[qq]:] if isinstance(x, str)]) >= 14:
                    del since[qq]
                    if qq in outq:
                        pend += post(qq)
                        if (qq - outq[0]) & 1:
                            pend += xpose(qq)
            a.ext(pend[:FILL])
            pend = pend[FILL:]
    a.ext(stamp(7))
    a.ext(pend)
    a("s_nop 7\ns_nop 3")
    for qq in sorted(since):
        if qq in outq:
            a.ext(post(qq))
            if (qq - outq[0]) & 1:
                a.ext(xpose(qq))
    a.ext(stamp(8))
    a(f"""
    s_waitcnt vmcnt(0)
    s_mov_b64 exec, 1
    buffer_store_dword v7, v6, {sr(SRD_WS)}, s19 offen sc1
    s_mov_b64 exec, -1
    """)
    if partB:
        E = 8
        a(f"""
        s_cmp_lg_u32 s6, 0
        s_cbranch_scc1 CV_NOGATE
        s_lshl_b32 s16, s{S_XCD}, 9
        s_add_u32 s16, s16, {FG_OFF}
        v_lshrrev_b32 v2, 2, v0
        v_and_b32 v3, 3, v0
        v_and_b32 v4, 3, v2
        v_lshlrev_b32 v4, 7, v4
        v_lshl_add_u32 v4, v3, 2, v4
        v_lshlrev_b32 v2, 2, v2
        v_lshl_add_u32 v2, v3, 11, v2
        s_mov_b32 s77, 0x100000
        """)
        a(rb64_scalar(17, 22))
        a(f"s_lshl_b32 s17, s17, 6\ns_add_u32 s17, s17, {GL_OFF}")
        a.ext(plain(spin("PG", [f"buffer_load_dword v5, v4, {sr(SRD_WS)}, s16 offen sc1"],
                         [f"v_cmp_eq_u32 vcc, s{S_NONCE}, v5", "s_nop 3", "s_cmp_eq_u64 vcc, exec"], 1)))
        for g in range(8):
            a(f"buffer_load_dword v{E+g}, v2, {sr(SRD_WS)}, s17 offen sc1")
            if g < 7:
                a("s_add_u32 s17, s17, 8192")
        a(f"""
        s_waitcnt vmcnt(0)
        v_add_f32 v{E}, v{E}, v{E+1}
        v_add_f32 v{E+2}, v{E+2}, v{E+3}
        v_add_f32 v{E+4}, v{E+4}, v{E+5}
        v_add_f32 v{E+6}, v{E+6}, v{E+7}
        v_add_f32 v{E}, v{E}, v{E+2}
        v_add_f32 v{E+4}, v{E+4}, v{E+6}
        v_add_f32 v{E}, v{E}, v{E+4}
        v_cvt_pk_bf16_f32 v{E}, v{E}, v{E}
        v_lshlrev_b32 v{E}, 16, v{E}
        v_mul_f32 v{E}, {f32(-LOG2E)}, v{E}
        v_exp_f32 v{E}, v{E}
        v_lshlrev_b32 v2, 2, v0
        v_add_f32 v{E}, 1.0, v{E}
        v_rcp_f32 v{E}, v{E}
        v_add_u32 v2, {G_LDS}, v2
        v_cvt_pk_bf16_f32 v{E}, v{E}, v{E}
        v_lshlrev_b32 v{E}, 16, v{E}
        ds_write_b32 v2, v{E}
        s_waitcnt lgkmcnt(0)
        CV_NOGATE:
        """)
    a.ext(stamp_end())
    st, ld, chk = fu_code(TMP, TMP + 1, TMP + 2, 7)
    a(f"CV{P}_SLOW:")
    a("s_waitcnt lgkmcnt(0)\ns_mov_b32 s77, 0x100000")
    a.ext(st)
    a.ext(plain(spin(f"PU{P}", ld, chk, 8)))
    a(f"v_lshlrev_b32 v{TMP}, 4, v0")
    a.ext(u_dma(TMP, 7))
    a(f"""
    s_mov_b32 s16, 0
    s_mov_b32 s17, 0xe0000000
    v_mov_b32 v4, 1
    s_waitcnt vmcnt(0)
    s_branch CV{P}_GO
    """)
    a0.ext(resolve_lds(a.L))


HEADER = open("cdna_kernels/" + NAME + ".s.ref").read().split("; Override launch")[0]


def main(path):
    a = Asm()
    prologue(a)
    spare(a)
    a("s_branch L_GEMM2")
    a("L_GEMM1:")
    gemm1(a)
    a("L_GEMM2:")
    gemm2(a)
    a("L_LWAVE_S:")
    a.ext(lwave(False))
    a("L_KWAVE:")
    a(f"s_and_b32 s{S_XCD}, s2, 7\ns_lshr_b32 s{S_IDX}, s2, 3")
    srd(a, SRD_WS, S_WS, WS_BYTES)
    a(f"s_cmp_ge_u32 s{S_IDX}, 28\ns_cbranch_scc1 L_KWAVE_S")
    a.ext(kwave(True))
    a("L_KWAVE_S:")
    a.ext(kwave(False))
    a("L_CONVA:")
    conv(a, False)
    a("L_CONVB:")
    conv(a, True)
    a("L_END:\ns_endpgm")
    body = "\n".join(("" if ln.endswith(":") or ln.startswith(".") else "    ") + ln for ln in a.L)
    kn = NAME + "_kernel"
    txt = HEADER
    if OPT.get("list"):
        txt += f"; @launch kernel={kn} grid=(256,1,1) block=(512,1,1) lds=163840\n"
    else:
        txt += "; @launch grid=(256,1,1) block=(512,1,1) lds=163840\n"
    txt += '.amdgcn_target "amdgcn-amd-amdhsa--gfx950"\n.text\n'
    txt += f".globl {kn}\n.p2align 8\n.type {kn},@function\n{kn}:\n"
    txt += body + "\n"
    txt += f"""
.section .rodata,"a"
.p2align 6
.amdhsa_kernel {kn}
  .amdhsa_next_free_vgpr 256
  .amdhsa_next_free_sgpr 102
  .amdhsa_accum_offset 256
  .amdhsa_group_segment_fixed_size 0
  .amdhsa_kernarg_size 136
  .amdhsa_user_sgpr_count 2
  .amdhsa_user_sgpr_kernarg_segment_ptr 1
  .amdhsa_system_sgpr_workgroup_id_x 1
.end_amdhsa_kernel
"""
    open(path, "w").write(txt)


if __name__ == "__main__":
    for o in list(sys.argv):
        if o.startswith("--opt="):
            k, _, val = o[6:].partition(":")
            OPT[k] = int(val) if val else 1
            sys.argv.remove(o)
    if OPT.get("oldlay"):
        DP = 4096
        UT_OFF, Y_OFF, GL_OFF = 0x800000, 0xC00000, 0xE00000
        FH_OFF, FY_OFF, FU_OFF, FD_OFF = 0xE40000, 0xE60000, 0xE68000, 0xE80000
    if OPT.get("dp"):
        DP = OPT["dp"]
    if "--stamps" in sys.argv:
        STAMPS = True
        sys.argv.remove("--stamps")
    main(sys.argv[1] if len(sys.argv) > 1 else "cdna_kernels/" + NAME + ".s")
```

```python
import sys, struct

NAME = "gated_mix__ssm_conv_s4__swiglu_ffn__prompt"

H_OFF = 0x000000
DP = 4224
UT_OFF = 0x800000
Y_OFF = 0xA80000
KX_OFF = 0xD00000
GL_OFF = 0xF00000
ST_OFF = 0xF20000
FH_OFF = 0xF40000
FY_OFF = 0xF60000
FU_OFF = 0xF68000
FG_OFF = 0xF6A000
FD_OFF = 0xF80000
WS_BYTES = 0x1000000

STAMPS = False
HDL = []
OPT = {}
ST_BASE = 78
NST = 12


def f32(x):
    return "0x%08x" % struct.unpack("<I", struct.pack("<f", x))[0]


LOG2E = 1.4426950408889634
LOG2E_HI = struct.unpack("<f", struct.pack("<f", LOG2E))[0]
LOG2E_LO = LOG2E - LOG2E_HI
LN2 = 0.6931471805599453
INV2PI = 0.15915494309189535


class Asm:
    def __init__(self):
        self.L = []

    def __call__(self, s):
        for line in s.strip().split("\n"):
            line = line.strip()
            if line:
                self.L.append(line)

    def ext(self, lines):
        self.L.extend(lines)

    def tag(self, n):
        self.L.append(("VMTAG", n))

    def wait(self, n):
        self.L.append(("VMWAIT", n))


def v(b, n=1):
    return f"v{b}" if n == 1 else f"v[{b}:{b+n-1}]"


def sr(b):
    return f"s[{b}:{b+3}]"


class RA:
    def __init__(self, start, end):
        self.p = start
        self.end = end

    def __call__(self, n=1, align=1):
        self.p = (self.p + align - 1) // align * align
        r = self.p
        self.p += n
        assert self.p <= self.end, "out of registers"
        return r


def stamp(k, force=False):
    if not STAMPS:
        return []
    assert k < NST
    if OPT.get("dbgbar") and 1 <= k <= 9 and not force:
        return []
    op = "s_memtime" if OPT.get("cyc") else "s_memrealtime"
    return [f"{op} s[{ST_BASE+2*k}:{ST_BASE+2*k+1}]"]


def bstamp(mode, k):
    return stamp(k, True) if OPT.get("dbgbar") == mode else []


def stamp_end():
    if not STAMPS:
        return ["s_endpgm"]
    L = stamp(10) + ["s_waitcnt vmcnt(0)"] + stamp(11)
    L += ["s_waitcnt lgkmcnt(0)", "s_mov_b64 exec, 1", "s_lshl_b32 s74, s2, 3", f"s_add_u32 s74, s74, s{S_WIDX}",
          "s_lshl_b32 s74, s74, 6", f"s_add_u32 s74, s74, {ST_OFF}", "v_mov_b32 v1, 0"]
    for k in range(NST):
        L.append(f"v_mov_b32 v{4+k}, s{ST_BASE+2*k}")
    for k in range(0, NST, 4):
        L.append(f"buffer_store_dwordx4 v[{4+k}:{7+k}], v1, {sr(SRD_WS)}, s74 offen offset:{4*k}")
    if OPT.get("hdbg"):
        lab = f"HD{len(HDL)}"
        HDL.append(lab)
        L += [f"v_not_b32 v20, v4", f"global_atomic_umax v1, v20, s[{S_DBG}:{S_DBG+1}] offset:56",
              f"global_atomic_umax v1, v15, s[{S_DBG}:{S_DBG+1}] offset:60",
              f"s_cmp_lg_u32 s2, {OPT['hdbg']}", f"s_cbranch_scc1 {lab}", f"s_cmp_lg_u32 s{S_WIDX}, 0", f"s_cbranch_scc1 {lab}"]
        words = [1, 2, 3, 4, 5, 6, 7, 9, 10, 11, 12]
        for k in range(1, NST):
            L += [f"v_sub_u32 v20, v{4+k}, v4", f"global_store_dword v1, v20, s[{S_DBG}:{S_DBG+1}] offset:{4*words[k-1]}", "s_nop 1"]
        L += [f"global_store_dword v1, v4, s[{S_DBG}:{S_DBG+1}] offset:52"]
        L.append(f"{lab}:")
    L.append("s_endpgm")
    return L


def is_vmem(line):
    return line.startswith("buffer_") or line.startswith("global_")


def resolve_vm(lines):
    out = []
    count = 0
    tags = {}
    done = -1
    for ln in lines:
        if isinstance(ln, tuple):
            if ln[0] == "VMTAG":
                tags[ln[1]] = count
            elif ln[0] == "VMWAIT":
                if tags[ln[1]] <= done:
                    continue
                n = count - tags[ln[1]]
                assert 0 <= n <= 63, n
                out.append(f"s_waitcnt vmcnt({n})")
                done = tags[ln[1]]
            elif ln[0] == "VMRESET":
                done = count
            elif ln[0] == "NOCOUNT":
                out.append(ln[1])
            else:
                raise ValueError(ln)
        else:
            if is_vmem(ln):
                count += 1
            out.append(ln)
    return out


def resolve_lds(lines):
    out = []
    count = 0
    tags = {}
    for ln in lines:
        if isinstance(ln, tuple):
            if ln[0] == "LTAG":
                tags[ln[1]] = count
            elif ln[0] == "LWAIT":
                out.append(f"s_waitcnt lgkmcnt({min(15, count - tags[ln[1]])})")
            else:
                raise ValueError(ln)
        else:
            if ln.startswith("ds_"):
                count += 1
            out.append(ln)
    return out


SLOT = 49152
KG_BASE = 147456
KARR = 3584
U_BASE = 131072
UPITCH = 1344
USZ = 4 * UPITCH
YB_BASE = U_BASE + 2 * USZ
RING2 = 32768

S_U = 4
S_ARE, S_AIM, S_BRE, S_BIM, S_CRE, S_CIM, S_LDT = 54, 56, 58, 60, 62, 64, 66
S_DS = 20
S_WG, S_WU, S_WD, S_GW = 24, 26, 28, 30
S_OUT, S_DBG, S_WS = 32, 34, 36
S_WIDX, S_XCD, S_IDX, S_RB, S_CB, S_PHI = 38, 39, 40, 41, 42, 43
SRD_X, SRD_WG, SRD_WU, SRD_WS, SRD_WD, SRD_OUT = 44, 48, 52, 56, 60, 64


def srd(a, d, base, nbytes):
    a(f"""
    s_mov_b32 s{d}, s{base}
    s_and_b32 s{d+1}, s{base+1}, 0xffff
    s_mov_b32 s{d+2}, {nbytes}
    s_mov_b32 s{d+3}, 0x00020000
    """)


def mapping(a):
    a(f"""
    s_and_b32 s{S_XCD}, s2, 7
    s_lshr_b32 s{S_IDX}, s2, 3
    """)
    if OPT.get("map", 1) == 0:
        a(f"""
        s_and_b32 s68, s{S_IDX}, 3
        s_lshr_b32 s69, s{S_IDX}, 2
        s_lshr_b32 s{S_RB}, s{S_XCD}, 1
        s_lshl_b32 s{S_RB}, s{S_RB}, 2
        s_add_u32 s{S_RB}, s{S_RB}, s68
        s_and_b32 s{S_CB}, s{S_XCD}, 1
        s_mul_i32 s{S_CB}, s{S_CB}, 7
        s_add_u32 s{S_CB}, s{S_CB}, s69
        s_lshl_b32 s{S_PHI}, s68, 1
        s_add_u32 s{S_PHI}, s{S_PHI}, s69
        s_and_b32 s{S_PHI}, s{S_PHI}, 7
        """)
    else:
        a(f"""
        s_and_b32 s70, s{S_XCD}, 1
        s_lshl_b32 s70, s70, 2
        s_and_b32 s68, s{S_IDX}, 7
        s_lshr_b32 s69, s{S_IDX}, 3
        s_add_u32 s71, s69, s70
        s_add_u32 s72, s68, s70
        s_cmp_ge_u32 s{S_IDX}, 24
        s_cselect_b32 s71, 3, s71
        s_cselect_b32 s68, s72, s68
        s_lshr_b32 s{S_CB}, s{S_XCD}, 1
        s_and_b32 s{S_CB}, s{S_CB}, 1
        s_mul_i32 s{S_CB}, s{S_CB}, 7
        s_add_u32 s{S_CB}, s{S_CB}, s71
        s_lshr_b32 s{S_RB}, s{S_XCD}, 2
        s_lshl_b32 s{S_RB}, s{S_RB}, 3
        s_add_u32 s{S_RB}, s{S_RB}, s68
        s_lshl_b32 s{S_PHI}, s69, 1
        s_add_u32 s{S_PHI}, s{S_PHI}, s68
        s_and_b32 s{S_PHI}, s{S_PHI}, 7
        """)


K_PR = 6


def kparam_loads():
    va, vb = K_PR + 5, K_PR + 7
    L = [f"global_load_dword v{K_PR+i}, v{va}, s[{sb}:{sb+1}]" for i, sb in enumerate((S_ARE, S_AIM, S_BRE, S_BIM, S_CRE, S_CIM))]
    L += [f"global_load_ushort v{K_PR+6}, v{vb}, s[{S_LDT}:{S_LDT+1}]", f"global_load_ushort v{K_PR+7}, v{vb}, s[{S_DS}:{S_DS+1}]"]
    return L


def prologue(a):
    a("""
    s_cmp_ge_u32 s2, 256
    s_cbranch_scc1 L_END
    """)
    if STAMPS:
        a.ext([f"s_mov_b32 s{ST_BASE+2*k}, 0" for k in range(NST)])
    a.ext(stamp(0))
    a(f"""
    s_load_dwordx8 s[24:31], s[0:1], 80
    s_load_dwordx16 s[52:67], s[0:1], 0
    s_load_dwordx2 s[4:5], s[0:1], 0
    s_load_dwordx2 s[36:37], s[0:1], 128
    s_load_dwordx4 s[32:35], s[0:1], 112
    s_load_dwordx2 s[20:21], s[0:1], 64
    v_lshrrev_b32 v1, 6, v0
    v_and_b32 v0, 63, v0
    s_nop 0
    v_readfirstlane_b32 s{S_WIDX}, v1
    s_lshl_b32 s69, s2, 1
    v_lshlrev_b32 v2, 2, v0
    s_nop 1
    s_cmp_lt_u32 s{S_WIDX}, 6
    s_cbranch_scc1 L_NOTK
    s_sub_u32 s68, s{S_WIDX}, 6
    s_add_u32 s69, s69, s68
    s_lshl_b32 s71, s69, 8
    v_add_u32 v2, s71, v2
    s_lshl_b32 s72, s69, 1
    v_mov_b32 v3, s72
    s_waitcnt lgkmcnt(0)
    """)
    a(f"v_mov_b32 v{K_PR+5}, v2\nv_mov_b32 v{K_PR+7}, v3")
    a(f"s_and_b32 s{S_XCD}, s2, 7\ns_lshr_b32 s{S_IDX}, s2, 3")
    a("s_cmp_lt_u32 s2, 224\ns_cbranch_scc1 L_KWAVE")
    a.ext(kparam_loads())
    a("s_branch L_KWAVE_S\nL_NOTK:")
    a(f"""
    s_cmp_ge_u32 s{S_WIDX}, 4
    s_cbranch_scc1 L_ISL
    """)
    a(f"""
    s_getpc_b64 s[70:71]
    L_PC:
    s_sub_u32 s70, s70, L_PC-{NAME}_kernel
    s_subb_u32 s71, s71, 0
    s_lshr_b32 s72, s2, 3
    s_lshl_b32 s72, s72, 2
    s_add_u32 s72, s72, s{S_WIDX}
    s_lshl_b32 s72, s72, 9
    v_and_b32 v2, 7, v0
    v_lshlrev_b32 v2, 6, v2
    v_add_u32 v2, s72, v2
    v_min_u32 v2, L_END-{NAME}_kernel, v2
    global_load_dword v127, v2, s[70:71]
    s_cmp_lt_u32 s2, 224
    s_cbranch_scc1 L_GEMM1
    s_branch L_SPARE
    L_ISL:
    """)
    mapping(a)
    a(f"""
    s_sub_u32 s6, s{S_WIDX}, 4
    s_cmp_ge_u32 s{S_IDX}, 28
    s_cbranch_scc1 L_LWAVE_S
    """)
    a.ext(lwave(True))


def g_srds(a):
    srd(a, SRD_WS, S_WS, WS_BYTES)
    srd(a, SRD_WD, S_WD, 1792 * 512 * 2)
    srd(a, SRD_OUT, S_OUT, 2048 * 512 * 2)


VL16 = 1
XD = 8
(VD0, VD1, DA0, DA1, VEP, VPH, VFL, VG, VY, VYW, VYT, VW1, VW2, VW3, VR1, VR23) = range(112, 128)
YT_BASE = YB_BASE
G_LDS = YB_BASE
N_LDS = YB_BASE + 256
S_LDS = YB_BASE + 272
def n1():
    return OPT.get("n1", 14)


def rot_scalar(dst, tmp):
    m = OPT.get("rmode", 0)
    if m == 1:
        return f"""
        s_lshr_b32 s{dst}, s{S_IDX}, 1
        s_and_b32 s{dst}, s{dst}, 2
        s_mul_i32 s{dst}, s{dst}, 7
        """
    if m == 2:
        return f"""
        s_lshr_b32 s{dst}, s{S_IDX}, 1
        s_and_b32 s{dst}, s{dst}, 2
        s_and_b32 s{tmp}, s{S_IDX}, 1
        s_add_u32 s{dst}, s{dst}, s{tmp}
        s_mul_i32 s{dst}, s{dst}, 7
        """
    return f"""
    s_lshr_b32 s{dst}, s{S_IDX}, 1
    s_and_b32 s{dst}, s{dst}, 2
    s_add_u32 s{dst}, s{dst}, s{S_IDX}
    s_and_b32 s{dst}, s{dst}, 3
    s_mul_i32 s{dst}, s{dst}, 7
    """


def rb64_scalar(dst, tmp):
    return f"""
    s_lshl_b32 s{dst}, s{S_XCD}, 2
    s_and_b32 s{tmp}, s{S_IDX}, 3
    s_add_u32 s{dst}, s{dst}, s{tmp}
    """


def cb64_scalar(dst, tmp):
    return f"""
    s_lshr_b32 s{dst}, s{S_IDX}, 2
    s_lshr_b32 s{tmp}, s{S_WD}, 7
    s_sub_u32 s{dst}, s{dst}, s{tmp}
    s_add_u32 s{dst}, s{dst}, {OPT.get("cbs", 4)}
    s_and_b32 s{dst}, s{dst}, 7
    """


def gemm2_setup(a):
    a(rb64_scalar(6, 13))
    a(cb64_scalar(7, 13))
    a(f"""
    s_lshl_b32 s17, s6, 6
    s_lshr_b32 s23, s{S_WIDX}, 1
    s_lshl_b32 s13, s23, 5
    s_add_u32 s17, s17, s13
    s_lshl_b32 s18, s7, 6
    s_and_b32 s14, s{S_WIDX}, 1
    s_lshl_b32 s13, s14, 5
    s_add_u32 s18, s18, s13
    v_lshrrev_b32 v5, 5, v0
    v_and_b32 v6, 31, v0
    v_add_u32 v6, s17, v6
    v_lshlrev_b32 v7, 4, v5
    v_add_u32 v7, s18, v7
    v_lshlrev_b32 v7, 1, v7
    v_lshl_add_u32 v{VEP}, v6, 10, v7
    s_lshl_b32 s8, s{S_WIDX}, 15
    s_lshl_b32 s9, s6, 1
    s_add_u32 s9, s9, s23
    s_mul_i32 s9, s9, 112
    s_mul_i32 s13, s{S_WIDX}, 28
    s_add_u32 s9, s9, s13
    s_lshl_b32 s9, s9, 10
    s_mul_i32 s22, s23, {224*1024}
    s_sub_u32 s22, {112*1024}, s22
    s_lshl_b32 s10, s13, 14
    s_lshl_b32 s13, s7, 7
    s_add_u32 s10, s10, s13
    """)
    a(rot_scalar(12, 13))
    a(f"""
    s_add_u32 s11, s12, {n1()}
    s_cmp_ge_u32 s11, 28
    s_cselect_b32 s13, 28, 0
    s_sub_u32 s11, s11, s13
    s_lshl_b32 s15, s6, 5
    s_mul_i32 s13, s{S_WIDX}, 7
    s_add_u32 s15, s15, s13
    s_lshl_b32 s15, s15, 7
    s_add_u32 s15, s15, {FH_OFF}
    s_lshl_b32 s13, s7, 2
    s_add_u32 s13, s13, s{S_WIDX}
    s_lshl_b32 s16, s13, 10
    s_add_u32 s16, s16, {FY_OFF}
    s_mul_i32 s19, s13, {16*DP}
    s_lshl_b32 s13, s6, 7
    s_add_u32 s19, s19, s13
    s_add_u32 s19, s19, {Y_OFF}
    v_lshlrev_b32 v{VL16}, 4, v0
    v_lshrrev_b32 v2, 3, v0
    v_and_b32 v3, 7, v0
    v_mul_u32_u24 v{VY}, {DP}, v2
    v_lshl_add_u32 v{VY}, v3, 4, v{VY}
    v_lshrrev_b32 v4, 1, v2
    v_and_b32 v4, 1, v4
    v_lshlrev_b32 v4, 2, v4
    v_xor_b32 v3, v3, v4
    v_lshlrev_b32 v{VD0}, 10, v2
    v_lshl_add_u32 v{VD0}, v3, 4, v{VD0}
    v_add_u32 v{VD1}, {8192-1024}, v{VD0}
    v_lshlrev_b32 v{VYW}, 7, v2
    v_lshl_add_u32 v{VYW}, v3, 4, v{VYW}
    v_add_u32 v{VYW}, s8, v{VYW}
    v_lshrrev_b32 v2, 2, v0
    v_and_b32 v2, 3, v2
    v_and_b32 v3, 3, v0
    v_lshrrev_b32 v4, 4, v0
    v_and_b32 v4, 1, v4
    v_lshl_add_u32 v6, v5, 2, v2
    v_lshlrev_b32 v6, 7, v6
    v_and_b32 v7, 1, v3
    v_lshl_add_u32 v6, v7, 5, v6
    v_lshl_add_u32 v6, v4, 4, v6
    v_lshrrev_b32 v7, 1, v3
    v_lshl_add_u32 v6, v7, 3, v6
    v_add_u32 v6, s8, v6
    v_lshrrev_b32 v7, 1, v2
    v_xor_b32 v7, s14, v7
    v_lshl_add_u32 v{DA0}, v7, 6, v6
    v_xor_b32 v7, 1, v7
    v_lshl_add_u32 v{DA1}, v7, 6, v6
    s_lshl_b32 s13, s14, 1
    v_add_u32 v6, s13, v5
    v_lshlrev_b32 v{VYT}, 15, v6
    v_lshl_add_u32 v{VYT}, v2, 7, v{VYT}
    v_lshrrev_b32 v7, 1, v2
    v_xor_b32 v7, s23, v7
    v_lshl_add_u32 v{VYT}, v7, 6, v{VYT}
    v_lshl_add_u32 v{VYT}, v4, 5, v{VYT}
    v_lshl_add_u32 v{VYT}, v3, 3, v{VYT}
    v_min_u32 v{VPH}, 6, v0
    v_lshlrev_b32 v{VPH}, 7, v{VPH}
    v_lshrrev_b32 v2, 2, v0
    v_and_b32 v2, 7, v2
    v_lshlrev_b32 v{VFL}, 7, v2
    v_lshl_add_u32 v{VFL}, v3, 2, v{VFL}
    v_and_b32 v{VG}, 31, v0
    s_lshl_b32 s13, s23, 5
    v_add_u32 v{VG}, s13, v{VG}
    v_lshlrev_b32 v{VG}, 2, v{VG}
    v_add_u32 v{VG}, {G_LDS}, v{VG}
    v_add_u32 v{VW1}, s8, v{VL16}
    s_xor_b32 s13, s{S_WIDX}, 1
    s_lshl_b32 s13, s13, 15
    v_add_u32 v{VR1}, s13, v{VL16}
    s_xor_b32 s13, s{S_WIDX}, 2
    s_lshl_b32 s13, s13, 15
    v_add_u32 v{VW2}, s13, v{VL16}
    s_xor_b32 s13, s{S_WIDX}, 3
    s_lshl_b32 s13, s13, 15
    v_add_u32 v{VW3}, s13, v{VL16}
    """)


def gemm1(a):
    XA = 16
    WA = 28
    BUFS = [64, 88, 40]
    ACC = 128

    def acc(mat, t, tt):
        return ACC + 16 * (mat * 4 + t * 2 + tt)

    def wf(b, mat, t):
        return BUFS[b] + 4 * (mat * 2 + t)

    def xf(b, tt):
        return BUFS[b] + 16 + 4 * tt

    g2 = Asm()
    a(f"""
    s_lshr_b32 s68, s{S_WIDX}, 1
    s_and_b32 s69, s{S_WIDX}, 1
    v_and_b32 v7, 31, v0
    v_lshrrev_b32 v2, 5, v0
    v_lshrrev_b32 v3, 1, v0
    v_and_b32 v3, 7, v3
    s_lshl_b32 s70, s68, 13
    v_lshlrev_b32 v4, 7, v7
    v_add_u32 v4, s70, v4
    """)
    for ks in range(4):
        a(f"""
        v_add_u32 v5, {2*ks}, v2
        v_xor_b32 v5, v5, v3
        v_lshl_add_u32 v{XA+ks}, v5, 4, v4
        """)
    a(f"""
    v_lshrrev_b32 v7, 2, v0
    v_and_b32 v7, 3, v7
    v_and_b32 v3, 3, v0
    v_lshrrev_b32 v4, 4, v0
    v_and_b32 v4, 1, v4
    v_lshl_add_u32 v5, v2, 3, v7
    v_lshlrev_b32 v5, 8, v5
    v_lshl_add_u32 v5, v4, 5, v5
    v_lshl_add_u32 v5, v3, 3, v5
    s_lshl_b32 s70, s69, 1
    """)
    for t in range(2):
        a(f"""
        s_add_u32 s71, s70, {t}
        v_xor_b32 v6, s71, v7
        v_lshl_add_u32 v{WA+t}, v6, 6, v5
        """)
    for sl in (1, 2):
        for ks in range(4):
            a(f"v_add_u32 v{XA+4*sl+ks}, {sl*SLOT}, v{XA+ks}")
        for t in range(2):
            a(f"v_add_u32 v{WA+2*sl+t}, {sl*SLOT}, v{WA+t}")
    mapping(g2)
    g_srds(g2)
    gemm2_setup(g2)
    g2(f"""
    s_lshr_b32 s68, s{S_WIDX}, 1
    s_and_b32 s69, s{S_WIDX}, 1
    s_lshl_b32 s70, s{S_RB}, 2
    s_lshl_b32 s71, s68, 1
    s_add_u32 s70, s70, s71
    s_mul_i32 s70, s70, 112
    s_lshl_b32 s71, s{S_CB}, 3
    s_add_u32 s70, s70, s71
    s_lshl_b32 s71, s69, 2
    s_add_u32 s70, s70, s71
    s_lshl_b32 s70, s70, 10
    s_add_u32 s71, s70, {112*1024}
    s_lshl_b32 s3, s{S_RB}, 1
    s_add_u32 s3, s3, s68
    s_lshl_b32 s3, s3, 5
    s_lshl_b32 s72, s{S_CB}, 1
    s_add_u32 s3, s3, s72
    s_add_u32 s3, s3, s69
    s_lshl_b32 s3, s3, 7
    s_add_u32 s3, s3, {FH_OFF}
    s_mov_b32 s72, {f32(-LOG2E)}
    s_mov_b32 s73, {f32(-LOG2E)}
    """)

    def reads(n):
        st, ks = n >> 2, n & 3
        sl = st % 3
        b = n % 3
        r = []
        r.append(f"ds_read_b128 {v(xf(b,0),4)}, v{XA+4*sl+ks}")
        for mat in range(2):
            for t in range(2):
                for h2 in range(2):
                    off = 16384 * (1 + mat) + ks * 4096 + h2 * 1024
                    r.append(f"ds_read_b64_tr_b16 {v(wf(b,mat,t)+2*h2,2)}, v{WA+2*sl+t} offset:{off}")
                if mat == 0 and t == 0:
                    r.append(f"ds_read_b128 {v(xf(b,1),4)}, v{XA+4*sl+ks} offset:4096")
        return r

    T = 16

    def epi(p):
        t, tt = p >> 1, p & 1
        G, U = acc(0, t, tt), acc(1, t, tt)
        o = 32 + 8 * p
        L = []
        for h in range(2):
            R = range(8 * h, 8 * h + 8)
            L += [f"v_pk_mul_f32 {v(T+i,2)}, {v(G+i,2)}, s[72:73]" for i in R[::2]]
            for i in R[::2]:
                L += [f"v_exp_f32 v{T+i}, v{T+i}", f"v_exp_f32 v{T+i+1}, v{T+i+1}",
                      f"v_pk_mul_f32 {v(U+i,2)}, {v(G+i,2)}, {v(U+i,2)}"]
            L += [f"v_pk_add_f32 {v(T+i,2)}, {v(T+i,2)}, 1.0 op_sel_hi:[1,0]" for i in R[::2]]
            L += [f"v_rcp_f32 v{T+i}, v{T+i}" for i in R]
            L += [f"v_pk_mul_f32 {v(U+i,2)}, {v(U+i,2)}, {v(T+i,2)}" for i in R[::2]]
            for i in range(4):
                L.append(f"v_cvt_pk_bf16_f32 v{o+4*h+i}, v{U+8*h+2*i}, v{U+8*h+2*i+1}")
            L.append(f"buffer_store_dwordx4 {v(o+4*h,4)}, v{VL16}, {sr(SRD_WS)}, s{70+tt} offen offset:{t*2048+1024*h} sc1")
        return L

    a("s_waitcnt lgkmcnt(0)")
    a("s_barrier")
    a.ext(stamp(1))
    a.ext(bstamp(2, 1))
    a.ext(reads(0))
    a.ext(reads(1))
    extra = []
    XL = OPT.get("xl", 13)
    for n in range(32):
        b = n % 3
        if (n & 3) == 2:
            a("s_waitcnt lgkmcnt(0)")
            a.ext(bstamp(2, 2 + (n >> 2)))
            a("s_barrier")
            if n == 22:
                a.ext(stamp(2))
        elif (n & 3) != 3:
            a("s_waitcnt lgkmcnt(10)")
        rd = reads(n + 2) if n + 2 < 32 else []
        mf = []
        for t in range(2):
            for tt in range(2):
                for mat in range(2):
                    c = "0" if n == 0 else v(acc(mat, t, tt), 16)
                    mf.append(f"v_mfma_f32_32x32x16_bf16 {v(acc(mat,t,tt),16)}, {v(wf(b,mat,t),4)}, {v(xf(b,tt),4)}, {c}")
        if n == 3:
            extra = list(g2.L)
        if n == 30:
            assert not extra
            extra = [f"v_mov_b32 v2, {N_LDS}", "ds_read_b32 v3, v2"]
        for i, m in enumerate(mf):
            a(m)
            a.ext(rd[2 * i:2 * i + 2])
            if i >= 4:
                a.ext(extra[:3])
                extra = extra[3:]
    assert not extra
    a.ext(stamp(3))
    if OPT.get("eprio", 0):
        a(f"s_setprio {OPT['eprio']}")
    a(f"s_waitcnt lgkmcnt(0)\nv_readfirstlane_b32 s{S_NONCE}, v3\ns_nop 5")
    for p in range(4):
        a.ext(epi(p))
    a.ext(stamp(4))


def spare(a):
    R = 16
    O = 80
    GWv = 112
    SUM = 120
    a(f"""
    s_sub_u32 s68, s{S_IDX}, 28
    s_lshl_b32 s3, s{S_XCD}, 2
    s_add_u32 s3, s3, s68
    s_lshl_b32 s3, s3, 5
    s_add_u32 s3, s3, s{S_WIDX}
    s_lshl_b32 s3, s3, 2
    s_add_u32 s3, s3, {FU_OFF}
    s_lshl_b32 s68, s68, 2
    s_add_u32 s68, s68, s{S_WIDX}
    s_lshr_b32 s69, s68, 1
    s_mov_b32 s74, s{S_XCD}
    v_and_b32 v1, 7, v0
    v_lshrrev_b32 v2, 3, v0
    v_lshlrev_b32 v3, 15, v2
    v_lshl_add_u32 v3, v1, 4, v3
    v_mul_u32_u24 v4, {8*DP}, v1
    v_lshl_add_u32 v4, v2, 4, v4
    v_lshlrev_b32 v5, 4, v1
    v_lshlrev_b32 v6, 2, v0
    s_mov_b32 s70, 0x05040100
    s_mov_b32 s71, 0x07060302
    s_lshl_b32 s72, s69, 7
    v_add_u32 v7, s72, v5
    global_load_dwordx4 {v(GWv,4)}, v7, s[{S_GW}:{S_GW+1}]
    """)
    for i in range(2):
        b = 6 + 4 * i
        a(f"""
        s_lshl_b32 s73, s68, 1
        s_add_u32 s73, s73, {i}
        s_and_b32 s73, s73, 3
        s_lshl_b32 s{b}, s74, 18
        s_lshl_b32 s75, s73, 10
        s_add_u32 s{b}, s{b}, s75
        s_add_u32 s{b}, s{b}, s72
        s_mul_i32 s{b+1}, s69, {64*DP}
        s_add_u32 s{b+1}, s{b+1}, s75
        s_lshl_b32 s75, s74, 7
        s_add_u32 s{b+1}, s{b+1}, s75
        s_add_u32 s{b+1}, s{b+1}, {UT_OFF}
        s_lshl_b32 s{b+2}, s74, 8
        s_lshl_b32 s75, s73, 11
        s_add_u32 s{b+2}, s{b+2}, s75
        s_lshl_b32 s75, s69, 13
        s_add_u32 s{b+2}, s{b+2}, s75
        s_add_u32 s{b+2}, s{b+2}, {GL_OFF}
        """)
        for j in range(8):
            a(f"buffer_load_dwordx4 {v(R+32*i+4*j,4)}, v3, {sr(SRD_X)}, s{b} offen")
            if j < 7:
                a(f"s_add_u32 s{b}, s{b}, 4096")
    a("v_mov_b32 v2, 0")
    for i in range(2):
        b = 6 + 4 * i
        a("s_waitcnt vmcnt(8)")
        Ri = R + 32 * i
        for e in range(8):
            for jj in range(4):
                sel = 71 if (e & 1) else 70
                a(f"v_perm_b32 v{O+4*e+jj}, v{Ri+4*(2*jj+1)+(e>>1)}, v{Ri+4*(2*jj)+(e>>1)}, s{sel}")
            a(f"buffer_store_dwordx4 {v(O+4*e,4)}, v4, {sr(SRD_WS)}, s{b+1} offen sc1")
            if e < 7:
                a(f"s_add_u32 s{b+1}, s{b+1}, {DP}")
    a(nonce_ld(3, 2))
    a.ext(stamp(1))
    a("s_barrier")
    for i in range(2):
        Ri = R + 32 * i
        S_ = SUM - 8 * i * 5
        for j in range(8):
            a(f"v_mov_b32 v{S_+j}, 0")
        for q in range(4):
            for j in range(8):
                a(f"v_dot2c_f32_bf16 v{S_+j}, v{Ri+4*j+q}, v{GWv+q}")
        a("s_nop 3")
        for ctl in ("quad_perm:[1,0,3,2]", "quad_perm:[2,3,0,1]", "row_half_mirror"):
            for j in range(8):
                a(f"v_add_f32_dpp v{S_+j}, v{S_+j}, v{S_+j} {ctl} row_mask:0xf bank_mask:0xf")
        for j in range(1, 8):
            a(f"""
            v_cmp_eq_u32 vcc, {j}, v1
            s_nop 1
            v_cndmask_b32 v{S_}, v{S_}, v{S_+j}, vcc
            """)
        if i == 0:
            a("s_waitcnt vmcnt(0)")
            a.ext(plain(nonce_get("NS", 3, 2)))
            a(f"""
            s_mov_b32 s76, s{S_NONCE}
            s_mov_b64 exec, 1
            buffer_store_dword v3, v2, {sr(SRD_WS)}, s3 offen sc1
            s_mov_b64 exec, -1
            """)
            a.ext(stamp(2))
    a(f"""
    buffer_store_dword v{SUM}, v6, {sr(SRD_WS)}, s8 offen sc1
    buffer_store_dword v{SUM-40}, v6, {sr(SRD_WS)}, s12 offen sc1
    s_add_u32 s3, s3, {FG_OFF - FU_OFF}
    s_waitcnt vmcnt(0)
    s_mov_b64 exec, 1
    buffer_store_dword v3, v2, {sr(SRD_WS)}, s3 offen sc1
    s_mov_b64 exec, -1
    s_sub_u32 s3, s3, {FG_OFF}
    s_lshl_b32 s3, s3, 5
    s_add_u32 s3, s3, {FD_OFF}
    """)
    a.ext(stamp(3))
    gemm2_setup(a)
    a(f"s_mov_b32 s{S_NONCE}, s76\ns_waitcnt vmcnt(0)")


def spin(label, loads, checks, sleep=2):
    L = [f"{label}_SPIN:", f"s_sleep {sleep}"]
    L += [("NOCOUNT", x) for x in loads]
    L += ["s_waitcnt vmcnt(0)"]
    L += ["s_sub_u32 s77, s77, 1", "s_cmp_eq_u32 s77, 0", f"s_cbranch_scc1 {label}_OK"]
    L += [f"{label}_CHK:"] + checks
    L += [f"s_cbranch_scc0 {label}_SPIN", f"{label}_OK:"]
    return L


S_NONCE = 23


def nonce_ld(vd, vz):
    return f"global_load_dword v{vd}, v{vz}, s[{S_DBG}:{S_DBG+1}] sc1"


def nonce_get(label, vd, vz, sleep=8):
    L = ["s_mov_b32 s77, 0x100000", f"s_branch {label}_CHK"]
    L += spin(label, [nonce_ld(vd, vz)], [f"v_cmp_ne_u32 vcc, 0, v{vd}", "s_nop 3", "s_cmp_eq_u64 vcc, exec"], sleep)
    L += [f"v_readfirstlane_b32 s{S_NONCE}, v{vd}", "s_nop 3"]
    return L


def plain(lines):
    return [x[1] if isinstance(x, tuple) else x for x in lines]


def gemm2(a0):
    a = Asm()
    NS = 28
    NP = 12
    NR = 16
    DH = 6
    ACC = 192
    WF = 16
    WFR = 128
    HB = 144
    N1 = n1()
    NF = OPT.get("nf", 2)
    PP1 = OPT.get("pp1", 21)
    N2 = OPT.get("n2", 28)

    def acc(t, tt):
        return ACC + 16 * (t + 2 * tt)

    def wload(i):
        sl = i % NR
        return [
            "s_lshl_b32 s14, s11, 14", f"s_add_u32 m0, s8, {sl*2048}", "s_add_u32 s14, s14, s10",
            f"buffer_load_dwordx4 v{VD0}, {sr(SRD_WD)}, s14 offen lds",
            "s_add_u32 s11, s11, 1", "s_cmp_ge_u32 s11, 28", "s_cselect_b32 s11, 0, s11",
            f"buffer_load_dwordx4 v{VD1}, {sr(SRD_WD)}, s14 offen offset:1024 lds",
            ("VMTAG", f"W{i}"),
        ]

    def hload(i):
        sl = i % DH
        return [
            "s_lshl_b32 s13, s12, 10", "s_add_u32 s13, s13, s9",
            f"buffer_load_dwordx4 {v(HB+8*sl,4)}, v{VL16}, {sr(SRD_WS)}, s13 offen sc1",
            "s_add_u32 s13, s13, s22",
            "s_add_u32 s12, s12, 1", "s_cmp_ge_u32 s12, 28", "s_cselect_b32 s12, 0, s12",
            f"buffer_load_dwordx4 {v(HB+8*sl+4,4)}, v{VL16}, {sr(SRD_WS)}, s13 offen sc1",
            ("VMTAG", f"H{i}"),
        ]

    def wfrag(i):
        return WF + 8 * i if i < NP else WFR + 8 * (i & 1)

    def trd(i):
        sl = i % NR
        r = [("VMWAIT", f"W{i}")] if i >= N1 else []
        for t in range(2):
            for h2 in range(2):
                r.append(f"ds_read_b64_tr_b16 {v(wfrag(i)+4*t+2*h2,2)}, v{DA0+t} offset:{sl*2048+h2*1024}")
        return r

    NE = OPT.get("ne", -1)
    a(f"""
    s_setprio 2
    v_mov_b32 v2, 0
    v_mov_b32 v3, s{S_NONCE}
    s_mov_b32 s77, 0x100000
    """)
    pub = f"""
    s_waitcnt vmcnt(0)
    s_mov_b64 exec, 1
    buffer_store_dword v3, v2, {sr(SRD_WS)}, s3 offen sc1
    s_mov_b64 exec, -1
    """
    if NE < 0:
        a(pub)
    a.ext(stamp(5))
    a("s_barrier")
    ph_ld = f"buffer_load_dword v4, v{VPH}, {sr(SRD_WS)}, s15 offen sc1"

    def wl(i):
        a.ext(wload(i))
        if i == PP1:
            a(ph_ld)
            a.tag("P1")
    assert NP <= N1
    first = list(range(NP - max(NE, 0), NP))
    for i in first:
        a.ext(trd(i))
    if NE >= 0:
        a(pub)
    a.ext(stamp(6))
    for i in range(N1, NR):
        wl(i)
    rest = [i for i in range(NP) if i not in first]
    for i in range(NP + 1):
        if i in rest:
            a.ext(trd(i))
        if i >= 1 and NR + i - 1 < N2:
            if i - 1 in rest:
                a(f"s_waitcnt lgkmcnt({4 if i in rest else 0})")
            wl(NR + i - 1)
    a.ext(stamp(7))
    a.wait("P1")
    a("s_branch PH_CHK")
    a.ext(spin("PH", [ph_ld], [f"v_cmp_eq_u32 vcc, s{S_NONCE}, v4", "s_nop 3", "s_cmp_eq_u64 vcc, exec"]))
    a.ext(stamp(8))
    a.ext(bstamp(3, 1))
    for i in range(DH):
        a.ext(hload(i))
    a("s_waitcnt lgkmcnt(0)")

    YR, FL, YT, EG = 80, 2, WFR, 6
    fl_ld = [f"buffer_load_dword v{FL}, v{VFL}, {sr(SRD_WS)}, s16 offen sc1"]
    chk = [f"v_cmp_eq_u32 vcc, s{S_NONCE}, v{FL}", "s_nop 3", "s_cmp_eq_u64 vcc, exec"]

    def yloads():
        return [f"buffer_load_dwordx4 {v(YR,4)}, v{VY}, {sr(SRD_WS)}, s19 offen sc1",
                f"s_add_u32 s13, s19, {8*DP}",
                f"buffer_load_dwordx4 {v(YR+4,4)}, v{VY}, {sr(SRD_WS)}, s13 offen sc1"]

    IF = OPT.get("if", 22)
    IY = OPT.get("iy", 25)
    for i in range(NS):
        sl = i % DH
        a.wait(f"H{i}")
        if i >= NP:
            a("s_waitcnt lgkmcnt(0)")
        hl = hload(i - 1 + DH) if 1 <= i and i - 1 + DH < NS else []
        fill = [(trd(i + 1) if NP <= i + 1 < NS else []) + hl[:3], hl[3:], wload(N2 + i) if N2 + i < NS else [], []]
        k = 0
        for t in range(2):
            for tt in range(2):
                c = "0" if i == 0 else v(acc(t, tt), 16)
                a(f"v_mfma_f32_32x32x16_bf16 {v(acc(t,tt),16)}, {v(wfrag(i)+4*t,4)}, {v(HB+8*sl+4*tt,4)}, {c}")
                a.ext(fill[k])
                k += 1
        if i in (0, 3, 7, 11, 15, 19, 23, 27):
            a.ext(bstamp(3, 2 + (0, 3, 7, 11, 15, 19, 23, 27).index(i)))
        if i == IF:
            a.ext(fl_ld)
            a.tag("F")
        if i == IY:
            a.wait("F")
            a.ext(yloads())
    a.ext(stamp(9))
    a.ext(chk)
    a("s_cbranch_scc1 PY_DONE")
    a.ext(spin("PY", fl_ld, chk))
    a.ext([("NOCOUNT", x) if is_vmem(x) else x for x in yloads()])
    a("PY_DONE:")
    a("s_nop 5")
    for k in range(1, 4):
        for g in range(4):
            a(f"ds_write_b128 v{VW1}, {v(ACC+16*k+4*g,4)} offset:{k*4096+g*1024}")
    X1, Y1 = HB, HB + 16
    OST = {0: "", 1: " sc1", 2: " nt", 3: " sc0 sc1"}[OPT.get("ost", 0)]
    a(f"""
    v_mov_b32 v5, 0xffff0000
    s_waitcnt vmcnt(0)
    ds_write_b128 v{VYW}, {v(YR,4)} offset:16384
    ds_write_b128 v{VYW}, {v(YR+4,4)} offset:17408
    """)
    a("s_waitcnt lgkmcnt(0)")
    a("s_barrier")
    PB = 16
    a(f"ds_read_b32 v{EG}, v{VG}")
    for q in range(4):
        a(f"ds_read_b64_tr_b16 {v(YT+2*q,2)}, v{VYT} offset:{16384+q*512}")
    for k, base in ((1, VR1), (2, VW2), (3, VW3)):
        for g in range(4):
            a(f"ds_read_b128 {v(PB+16*(k-1)+4*g,4)}, v{base} offset:{k*4096+g*1024}")
    a("s_waitcnt lgkmcnt(12)")
    for i in range(8):
        a(f"""
        v_lshlrev_b32 v{Y1+2*i}, 16, v{YT+i}
        v_and_b32 v{Y1+2*i+1}, v5, v{YT+i}
        """)
    a("s_waitcnt lgkmcnt(8)")
    for i in range(0, 16, 2):
        a(f"v_pk_add_f32 {v(ACC+i,2)}, {v(ACC+i,2)}, {v(PB+i,2)}")
    a("s_waitcnt lgkmcnt(0)")
    for i in range(0, 16, 2):
        a(f"v_pk_add_f32 {v(PB+16+i,2)}, {v(PB+16+i,2)}, {v(PB+32+i,2)}")
    for i in range(0, 16, 2):
        a(f"v_pk_add_f32 {v(ACC+i,2)}, {v(ACC+i,2)}, {v(PB+16+i,2)}")
    for i in range(0, 16, 2):
        a(f"v_pk_add_f32 {v(Y1+i,2)}, {v(Y1+i,2)}, {v(ACC+i,2)} neg_lo:[0,1] neg_hi:[0,1]")
    for i in range(0, 16, 2):
        a(f"v_pk_fma_f32 {v(ACC+i,2)}, {v(Y1+i,2)}, {v(EG,2)}, {v(ACC+i,2)} op_sel_hi:[1,0,1]")
    for i in range(8):
        a(f"v_cvt_pk_bf16_f32 v{X1+i}, v{ACC+2*i}, v{ACC+2*i+1}")
    a(f"""
    buffer_store_dwordx4 {v(X1,4)}, v{VEP}, {sr(SRD_OUT)}, 0 offen{OST}
    buffer_store_dwordx4 {v(X1+4,4)}, v{VEP}, {sr(SRD_OUT)}, 0 offen offset:16{OST}
    """)
    a.ext(stamp_end())
    a0.ext(resolve_vm(a.L))


def kwave(gemm_wg):
    sfx = "G" if gemm_wg else "S"
    ra = RA(2, 256)
    pre = Asm()
    main = Asm()
    ph2 = Asm()
    a = pre
    a(f"""
    s_setprio {OPT.get("kprio", 0)}
    s_lshl_b32 s70, s68, 13
    s_add_u32 s70, s70, {KG_BASE}
    """)
    t0 = ra(); t1 = ra(); t2 = ra(); t3 = ra()
    PR = ra(7)
    DV = ra()
    assert PR == K_PR
    if gemm_wg:
        a(f"""
        s_cmp_lg_u32 s69, 0
        s_cbranch_scc1 K{sfx}_NOTAG
        s_memrealtime s[72:73]
        v_mov_b32 v{t0}, 0
        s_waitcnt lgkmcnt(0)
        s_or_b32 s72, s72, 1
        v_mov_b32 v{t1}, s72
        s_mov_b64 exec, 1
        global_store_dword v{t0}, v{t1}, s[{S_DBG}:{S_DBG+1}] sc1
        s_mov_b64 exec, -1
        K{sfx}_NOTAG:
        """)

    WR = ra(8)
    RD = ra(2)
    a(f"""
    v_lshrrev_b32 v{t0}, 1, v0
    v_and_b32 v{t1}, 7, v{t0}
    v_lshlrev_b32 v{t0}, 8, v{t0}
    v_and_b32 v{t2}, 1, v0
    v_lshl_add_u32 v{t0}, v{t2}, 3, v{t0}
    v_add_u32 v{t0}, s70, v{t0}
    """)
    for b in range(8):
        a(f"""
        v_xor_b32 v{t2}, {b}, v{t1}
        v_lshl_add_u32 v{WR+b}, v{t2}, 4, v{t0}
        """)
    a(f"""
    v_and_b32 v{t0}, 15, v0
    v_lshrrev_b32 v{t1}, 4, v0
    """)
    for p in range(2):
        a(f"""
        v_add_u32 v{t2}, {4*p}, v{t1}
        v_xor_b32 v{t3}, v{t2}, v{t0}
        v_lshlrev_b32 v{t3}, 4, v{t3}
        v_lshl_add_u32 v{t3}, v{t2}, 8, v{t3}
        v_add_u32 v{RD+p}, s70, v{t3}
        """)
    TA0 = ra(); TA1 = ra(); TA2 = ra(); TA3 = ra()
    LP = ra(12)
    a(f"""
    v_and_b32 v{t2}, 1, v{t1}
    v_lshrrev_b32 v{t3}, 1, v{t1}
    v_lshlrev_b32 v{TA0}, 5, v{t0}
    v_lshl_add_u32 v{TA0}, v{t2}, 4, v{TA0}
    v_lshl_add_u32 v{TA0}, v{t3}, 9, v{TA0}
    v_lshrrev_b32 v{LP}, 2, v{TA0}
    v_cvt_f32_u32 v{LP}, v{LP}
    v_add_u32 v{TA0}, s70, v{TA0}
    v_add_f32 v{LP+1}, 1.0, v{LP}
    v_add_f32 v{LP+2}, 2.0, v{LP}
    v_add_f32 v{LP+3}, 2.0, v{LP+1}
    v_cmp_gt_u32 vcc, 2, v{t1}
    v_lshlrev_b32 v{TA1}, 4, v{t0}
    v_lshlrev_b32 v{TA2}, 3, v{t0}
    v_cndmask_b32 v{TA1}, v{TA2}, v{TA1}, vcc
    v_lshl_add_u32 v{TA1}, v{t1}, 8, v{TA1}
    v_add_u32 v{TA1}, s70, v{TA1}
    v_add_u32 v{TA1}, 1024, v{TA1}
    v_mov_b32 v{TA2}, 128
    v_cndmask_b32 v{TA2}, v{TA2}, 8, vcc
    v_add_u32 v{TA2}, v{TA2}, v{TA1}
    v_lshlrev_b32 v{TA3}, 2, v{t0}
    v_lshl_add_u32 v{TA3}, v{t1}, 8, v{TA3}
    v_add_u32 v{TA3}, s70, v{TA3}
    """)
    a(f"""
    v_lshlrev_b32 v{t2}, 7, v{t1}
    v_add_u32 v{t2}, 256, v{t2}
    v_lshlrev_b32 v{t3}, 8, v{t1}
    v_cndmask_b32 v{t2}, v{t3}, v{t2}, vcc
    v_lshl_add_u32 v{t2}, v{t0}, 3, v{t2}
    v_cvt_f32_u32 v{LP+4}, v{t2}
    v_mov_b32 v{t2}, 4.0
    v_cndmask_b32 v{t2}, v{t2}, 2.0, vcc
    v_mov_b32 v{t3}, {f32(128.0)}
    v_cndmask_b32 v{t3}, v{t3}, 4.0, vcc
    v_add_f32 v{LP+5}, v{LP+4}, v{t2}
    v_add_f32 v{LP+6}, v{LP+4}, v{t3}
    v_add_f32 v{LP+7}, v{LP+6}, v{t2}
    v_lshlrev_b32 v{t2}, 9, v{t1}
    v_lshl_add_u32 v{t2}, v{t0}, 3, v{t2}
    v_add_u32 v{t2}, 1024, v{t2}
    v_cvt_f32_u32 v{LP+8}, v{t2}
    v_add_f32 v{LP+9}, {f32(128.0)}, v{LP+8}
    v_add_f32 v{LP+10}, {f32(256.0)}, v{LP+8}
    v_add_f32 v{LP+11}, {f32(384.0)}, v{LP+8}
    """)
    EX = ra(10)
    a(f"""
    s_sub_u32 s72, s70, {4*17024}
    v_lshlrev_b32 v{t0}, 3, v0
    v_cvt_f32_u32 v{t1}, v{t0}
    v_cmp_gt_u32 vcc, 16, v0
    v_add_u32 v{EX+8}, s70, v{t0}
    v_lshlrev_b32 v{t0}, 2, v{t0}
    v_add_u32 v{t0}, s70, v{t0}
    v_lshlrev_b32 v{EX+9}, 2, v0
    v_add_u32 v{EX+9}, s70, v{EX+9}
    v_add_u32 v{EX+9}, 2048, v{EX+9}
    """)
    for kk in range(4):
        e0, e1 = EX + 2 * kk, EX + 2 * kk + 1
        a(f"""
        v_add_f32 v{t2}, 1.0, v{t1}
        v_cvt_pk_bf16_f32 v{t3}, v{t1}, v{t2}
        v_add_f32 v{t1}, 2.0, v{t1}
        v_and_b32 v{e0}, 0xffff, v{t3}
        v_lshrrev_b32 v{e1}, 16, v{t3}
        v_lshl_add_u32 v{e0}, v{e0}, 2, s72
        v_lshl_add_u32 v{e1}, v{e1}, 2, s72
        v_add_u32 v{t2}, {8*kk}, v{t0}
        v_add_u32 v{t3}, {8*kk+4}, v{t0}
        v_cndmask_b32 v{e0}, v{e0}, v{t2}, vcc
        v_cndmask_b32 v{e1}, v{e1}, v{t3}, vcc
        """)

    if gemm_wg:
        a.ext(kparam_loads())
    srd(a, SRD_WS, S_WS, WS_BYTES)
    a = main
    a("s_waitcnt vmcnt(0)")
    MASK = ra()
    DT = ra()
    PP = ra(12)
    a(f"""
    v_mov_b32 v{MASK}, 0xffff0000
    v_cmp_eq_u32 vcc, 0, v0
    v_lshlrev_b32 v{DV}, 16, v{DV}
    s_nop 0
    v_cndmask_b32 v{DV}, 0, v{DV}, vcc
    """)
    for i in range(6):
        a(f"v_lshlrev_b32 v{PP+2*i}, 16, v{PR+i}")
        a(f"v_and_b32 v{PP+2*i+1}, v{MASK}, v{PR+i}")
    x = PR + 6
    a(f"""
    v_lshlrev_b32 v{x}, 16, v{x}
    v_mul_f32 v{t0}, {f32(LOG2E_HI)}, v{x}
    s_mov_b32 s72, {f32(LOG2E_HI)}
    v_fma_f32 v{t1}, v{x}, s72, -v{t0}
    v_fmac_f32 v{t1}, {f32(LOG2E_LO)}, v{x}
    v_exp_f32 v{t0}, v{t0}
    v_mul_f32 v{t1}, {f32(LN2)}, v{t1}
    v_fmac_f32 v{t0}, v{t0}, v{t1}
    v_cvt_pk_bf16_f32 v{t0}, v{t0}, v{t0}
    v_lshlrev_b32 v{DT}, 16, v{t0}
    """)
    A2, TH, Br, Bi, Cr, Ci = (PP + 2 * i for i in range(6))
    for m in range(2):
        a(f"""
        v_mul_f32 v{A2+m}, v{DT}, v{A2+m}
        v_mul_f32 v{TH+m}, v{DT}, v{TH+m}
        v_mul_f32 v{Br+m}, v{DT}, v{Br+m}
        v_mul_f32 v{Bi+m}, v{DT}, v{Bi+m}
        v_mul_f32 v{A2+m}, {f32(LOG2E)}, v{A2+m}
        v_mul_f32 v{TH+m}, {f32(INV2PI)}, v{TH+m}
        """)
    W0 = ra(4); W1 = ra(4)
    for m in range(2):
        a(f"""
        v_mul_f32 v{W0+2*m}, v{Cr+m}, v{Br+m}
        v_mul_f32 v{W0+2*m+1}, v{Cr+m}, v{Bi+m}
        v_fma_f32 v{W0+2*m}, -v{Ci+m}, v{Bi+m}, v{W0+2*m}
        v_fmac_f32 v{W0+2*m+1}, v{Ci+m}, v{Br+m}
        v_sub_f32 v{W0+2*m+1}, 0, v{W0+2*m+1}
        """)
    SIG = ra(); WM = ra(); CE = ra()
    a(f"""
    v_max_f32 v{SIG}, v{A2}, v{A2+1}
    v_max3_f32 v{WM}, |v{W0}|, |v{W0+1}|, |v{W0+2}|
    v_max_f32 v{WM}, |v{W0+3}|, v{WM}
    s_nop 1
    """)
    for ctl in ("quad_perm:[1,0,3,2]", "quad_perm:[2,3,0,1]", "row_half_mirror", "row_mirror"):
        a(f"""
        v_max_f32_dpp v{SIG}, v{SIG}, v{SIG} {ctl} row_mask:0xf bank_mask:0xf
        v_max_f32_dpp v{WM}, v{WM}, v{WM} {ctl} row_mask:0xf bank_mask:0xf
        s_nop 0
        """)
    a(f"""
    v_readlane_b32 s72, v{SIG}, 0
    v_readlane_b32 s73, v{SIG}, 16
    v_readlane_b32 s74, v{SIG}, 32
    v_readlane_b32 s75, v{SIG}, 48
    v_readlane_b32 s6, v{WM}, 0
    v_readlane_b32 s7, v{WM}, 16
    v_readlane_b32 s8, v{WM}, 32
    v_readlane_b32 s9, v{WM}, 48
    v_max_f32 v{SIG}, s72, v{SIG}
    v_max_f32 v{SIG}, s73, v{SIG}
    v_max_f32 v{SIG}, s74, v{SIG}
    v_max_f32 v{SIG}, s75, v{SIG}
    v_max_f32 v{WM}, s6, v{WM}
    v_max_f32 v{WM}, s7, v{WM}
    v_max_f32 v{WM}, s8, v{WM}
    v_max_f32 v{WM}, s9, v{WM}
    v_sub_f32 v{A2}, v{A2}, v{SIG}
    v_sub_f32 v{A2+1}, v{A2+1}, v{SIG}
    v_frexp_exp_i32_f32 v{CE}, v{WM}
    v_sub_u32 v{t0}, 14, v{CE}
    v_subrev_u32 v{CE}, 29, v{CE}
    """)
    for i in range(4):
        a(f"v_ldexp_f32 v{W0+i}, v{W0+i}, v{t0}")

    def cexp(l):
        r = ra(6)
        for m in range(2):
            a(f"""
            v_mul_f32 v{t0}, {f32(float(l))}, v{A2+m}
            v_mul_f32 v{t1}, {f32(float(l))}, v{TH+m}
            v_exp_f32 v{t0}, v{t0}
            v_fract_f32 v{t1}, v{t1}
            v_cos_f32 v{t2}, v{t1}
            v_sin_f32 v{t3}, v{t1}
            s_nop 0
            v_mul_f32 v{r+2*m}, v{t0}, v{t2}
            v_mul_f32 v{r+2*m+1}, v{t0}, v{t3}
            v_sub_f32 v{r+4+m}, 0, v{r+2*m+1}
            """)
        return r

    def cmul(d, x_, b, conj=False):
        for m in range(2):
            br, bi, nbi = b + 2 * m, b + 2 * m + 1, b + 4 + m
            if conj:
                bi, nbi = nbi, bi
            a(f"""
            v_mul_f32 v{d+2*m}, v{x_+2*m}, v{br}
            v_mul_f32 v{d+2*m+1}, v{x_+2*m}, v{bi}
            v_fmac_f32 v{d+2*m}, v{x_+2*m+1}, v{nbi}
            v_fmac_f32 v{d+2*m+1}, v{x_+2*m+1}, v{br}
            """)

    def neg(b):
        for m in range(2):
            a(f"v_sub_f32 v{b+4+m}, 0, v{b+2*m+1}")

    def scale(d, x_):
        for i in range(4):
            a(f"v_mul_f32 v{d+i}, {f32(32768.0)}, v{x_+i}")

    VB = [ra(32, 4), ra(32, 4), ra(32, 4), ra(18, 4)]
    CH0 = ra(0, 4)

    def put(batch, row, r):
        h = VB[batch] + 2 * row
        if r is None:
            a(f"v_mov_b32 v{h}, 0x7800\nv_mov_b32 v{h+1}, 0x7800")
        else:
            a(f"""
            v_cvt_pk_f16_f32 v{h}, v{r}, v{r+1}
            v_cvt_pk_f16_f32 v{h+1}, v{r+2}, v{r+3}
            """)

    E8 = cexp(8)
    cur, nxt = W0, W1
    for c in range(16):
        if c < 15:
            cmul(nxt, cur, E8, conj=True)
        put(0, c, cur)
        cur, nxt = nxt, cur
    E1 = cexp(1)
    Q1 = cexp(128)
    Q8 = cexp(1024)
    P = {}
    P[1] = ra(4)
    scale(P[1], E1)
    for j in range(2, 8):
        P[j] = ra(6 if j == 4 else 4)
        cmul(P[j], P[j - 1], E1)
    put(1, 0, None)
    for j in range(1, 8):
        put(1, j, P[j])
    scale(W0, Q1)
    put(1, 8, W0)
    for j in range(1, 8):
        cmul(W0, P[j], Q1)
        put(1, 8 + j, W0)
    Q = {1: Q1, 8: Q8}
    for j in range(2, 8):
        Q[j] = {2: E1, 3: PP + 4}[j] if j < 4 else P[2 * (j - 4) + 1]
        cmul(Q[j], Q[j - 1], Q1)
    neg(P[4]); neg(Q[2]); neg(Q[3])
    for qi, j in enumerate((2, 3)):
        scale(W0, Q[j])
        put(2, 4 * qi, W0)
        for r in range(1, 4):
            cmul(W0, P[2 * r], Q[j])
            put(2, 4 * qi + r, W0)
    for aa in range(4):
        scale(W0, Q[4 + aa])
        put(2, 8 + 2 * aa, W0)
        cmul(W0, Q[4 + aa], P[4])
        put(2, 8 + 2 * aa + 1, W0)
    a(f"v_mov_b32 v{PR}, 0")
    a(nonce_ld(PR + 1, PR))
    QS = E8
    scale(QS, Q8)
    neg(QS)
    put(3, 0, QS)
    for j in range(1, 8):
        cmul(W0, Q[j], QS)
        put(3, j, W0)
    cmul(W0, Q8, QS)
    put(3, 8, W0)
    for i in range(12):
        a(f"v_mul_f32 v{LP+i}, v{SIG}, v{LP+i}")
    for i in range(12):
        a(f"v_exp_f32 v{LP+i}, v{LP+i}")

    a = ph2
    YF = CH0
    AC = CH0 + 32
    assert AC + 12 <= ra.p

    def wr(batch, nrows):
        for row in range(nrows):
            a(f"ds_write_b64 v{WR+(row&7)}, {v(VB[batch]+2*row,2)} offset:{(row>>3)*128}")

    def fetch(F):
        for ks in range(8):
            a(f"ds_read_b128 {v(F+4*ks,4)}, v{RD+(ks&1)} offset:{(ks>>1)*2048}")

    def mfmas(tile, XF):
        for ks in range(8):
            c = "0" if ks == 0 else v(AC + 4 * tile, 4)
            a(f"v_mfma_f32_16x16x32_f16 {v(AC+4*tile,4)}, {v(XF+4*ks,4)}, {v(YF+4*ks,4)}, {c}")

    a("s_waitcnt vmcnt(0)")
    ng = plain(nonce_get(f"NK{sfx}", PR + 1, PR))
    a(f"v_mov_b32 v{t2}, {N_LDS}")
    a(f"ds_write_b32 v{t2}, v{PR+1}")
    wr(0, 16); fetch(YF)
    wr(1, 16); fetch(VB[0])
    wr(2, 16); fetch(VB[1])
    a("s_waitcnt lgkmcnt(15)")
    mf0 = len(a.L)
    wr(3, 9); fetch(VB[2])
    tail = a.L[mf0:]
    del a.L[mf0:]
    m = Asm()
    sv, a = a, m
    mfmas(0, VB[0])
    a = sv
    for i in range(8):
        a.ext(tail[2 * i:2 * i + 2])
        a(m.L[i])
    a.ext(tail[16:])
    a("s_waitcnt lgkmcnt(15)")
    mfmas(1, VB[1])
    a("s_waitcnt lgkmcnt(0)")
    mfmas(2, VB[2])
    a("s_nop 3")
    for i in range(12):
        a(f"v_mul_f32 v{AC+i}, v{AC+i}, v{LP+i}")
    for i in range(12):
        a(f"v_ldexp_f32 v{AC+i}, v{AC+i}, v{CE}")
    a(f"v_add_f32 v{AC}, v{AC}, v{DV}")
    a(f"ds_write_b128 v{TA0}, {v(AC,4)}")
    a(f"ds_write_b64 v{TA1}, {v(AC+4,2)}")
    a(f"ds_write_b64 v{TA2}, {v(AC+6,2)}")
    for r in range(4):
        a(f"ds_write_b32 v{TA3}, v{AC+8+r} offset:{2048+64*r}")
    G0 = VB[0]
    OUT = VB[1]
    for i in range(8):
        a(f"ds_read_b32 v{G0+i}, v{EX+i}")
    a(f"""
    ds_read_b64 {v(G0+8,2)}, v{EX+8} offset:1536
    ds_read_b32 v{G0+10}, v{EX+8} offset:1544
    ds_read2_b32 {v(G0+12,2)}, v{EX+9} offset0:0 offset1:1
    ds_read2_b32 {v(G0+14,2)}, v{EX+9} offset0:64 offset1:65
    v_lshlrev_b32 v{t0}, 4, v0
    v_add_u32 v{t0}, s70, v{t0}
    v_and_b32 v{t1}, 3, v0
    v_lshlrev_b32 v{t1}, 4, v{t1}
    v_add_u32 v{t1}, s70, v{t1}
    v_mov_b32 v{OUT+16}, 0
    v_mov_b32 v{OUT+17}, 0
    v_mov_b32 v{OUT+18}, 0
    v_mov_b32 v{OUT+19}, 0
    s_mov_b32 s72, 0xaaaaaaaa
    s_mov_b32 s73, 0xaaaaaaaa
    ds_write_b128 v{t1}, {v(OUT+16,4)} offset:{KARR}
    s_waitcnt lgkmcnt(0)
    """)
    for k in range(4):
        a(f"v_cvt_pk_bf16_f32 v{OUT+k}, v{G0+2*k}, v{G0+2*k+1}")
    a(f"""
    v_cvt_pk_bf16_f32 v{OUT+4}, v{G0+8}, v{G0+8}
    v_cvt_pk_bf16_f32 v{OUT+5}, v{G0+8}, v{G0+9}
    v_cvt_pk_bf16_f32 v{OUT+6}, v{G0+9}, v{G0+9}
    v_cvt_pk_bf16_f32 v{OUT+7}, v{G0+10}, v{G0+10}
    """)
    for it in (2, 3):
        T0, T1 = G0 + 8 + 2 * it, G0 + 9 + 2 * it
        o = OUT + 4 * it
        a(f"""
        v_cndmask_b32 v{t2}, v{T0}, v{T1}, s[72:73]
        v_cvt_pk_bf16_f32 v{o}, v{T0}, v{T0}
        v_cvt_pk_bf16_f32 v{o+1}, v{T0}, v{T0}
        v_cvt_pk_bf16_f32 v{o+2}, v{t2}, v{T1}
        v_cvt_pk_bf16_f32 v{o+3}, v{T1}, v{T1}
        """)
    a(f"v_mov_b32 v{t2}, 0")
    for it in range(4):
        a(f"ds_write_b128 v{t0}, {v(OUT+4*it,4)} offset:{KARR+64+1024*it}")
    if OPT.get("dbgk"):
        a(f"""
        s_lshl_b32 s72, s69, 12
        s_add_u32 s72, s72, {KX_OFF}
        v_lshlrev_b32 v{t0}, 4, v0
        """)
        for it in range(4):
            a(f"buffer_store_dwordx4 {v(OUT+4*it,4)}, v{t0}, {sr(SRD_WS)}, s72 offen offset:{1024*it}")
    a("s_waitcnt vmcnt(0) lgkmcnt(0)")
    ph2.L[1:1] = ["\n    ".join(ng)]

    out = list(pre.L)
    out.extend(stamp(1))
    kx = OPT.get("kx", 0)
    if kx == 1:
        ph2.L = []
    elif kx == 2:
        ph2.L = [x for x in ph2.L if not x.startswith("v_mfma")]
    elif kx == 3:
        ph2.L = [x for x in ph2.L if not x.startswith("ds_write")]
    elif kx == 4:
        ph2.L = [x for x in ph2.L if not x.startswith("ds_read")]
    elif kx == 5:
        L2 = []
        for x in ph2.L:
            L2.append(x)
            if x.startswith("ds_write_b64"):
                L2.append("s_nop 3")
        ph2.L = L2
    if gemm_wg:
        per = OPT.get("kper", 132)
        first = OPT.get("kfirst", 0)
        p2a = OPT.get("kp2a", 48)
        p2b = OPT.get("kp2b", 100)
        pos = min(first, len(main.L))
        out.extend(main.L[:pos])
        for sidx in range(9):
            out.extend(bstamp(2, 1 + sidx))
            out.append("s_barrier")
            if sidx < 6:
                end = len(main.L) if sidx == 5 else min(pos + per, len(main.L))
                out.extend(main.L[pos:end])
                pos = end
            elif sidx == 6:
                out.extend(ph2.L[:p2a])
            elif sidx == 7:
                out.extend(ph2.L[p2a:p2b])
            else:
                out.extend(ph2.L[p2b:])
        out.extend(stamp(2))
    else:
        ks1 = OPT.get("ks1", 250)
        out.extend(main.L[:ks1])
        out.append("s_barrier")
        out.extend(main.L[ks1:])
        out.extend(ph2.L)
        out.extend(stamp(2))
    out.append("s_mov_b32 s6, s68")
    out.append("s_branch L_CONVB")
    return out


def fu_code(vaddr, vtmp, vdst, sd):
    setup = [f"s_lshr_b32 s16, s{sd}, 7", "s_lshl_b32 s16, s16, 7", f"s_lshr_b32 s17, s{sd}, 3", "s_and_b32 s17, s17, 8",
             "s_add_u32 s16, s16, s17", f"s_add_u32 s16, s16, {FU_OFF}",
             f"v_and_b32 v{vaddr}, 7, v0", f"v_lshlrev_b32 v{vaddr}, 9, v{vaddr}"]
    ld = [f"buffer_load_dwordx2 v[{vdst}:{vdst+1}], v{vaddr}, {sr(SRD_WS)}, s16 offen sc1"]
    chk = [f"v_cmp_eq_u32 vcc, s{S_NONCE}, v{vdst}", f"v_cmp_eq_u32 s[50:51], s{S_NONCE}, v{vdst+1}", "s_nop 3",
           "s_and_b64 vcc, vcc, s[50:51]", "s_cmp_eq_u64 vcc, exec"]
    return setup, ld, chk


def u_dma(vl16, sd):
    L = [f"s_mul_i32 s52, s6, {USZ}", f"s_mul_i32 s53, s{sd}, {DP}", f"s_add_u32 s53, s53, {UT_OFF}"]
    for r in range(4):
        L += [f"s_add_u32 m0, s52, {U_BASE + r*UPITCH + 112}", "s_nop 0",
              f"buffer_load_dwordx4 v{vl16}, {sr(SRD_WS)}, s53 offen sc1 lds", "s_add_u32 s53, s53, 1024"]
    return L


def lwave(gemm_wg):
    sfx = "G" if gemm_wg else "S"
    a = Asm()
    XV, WV, VL, VC = 8, 12, 2, 16
    t0, t1, t2 = 3, 4, 5
    DUM = 24
    ROT = OPT.get("rot", 0)
    FL8 = OPT.get("fl8", 1)
    SW = 12
    a("s_setprio 3")

    def kofs(st):
        if not ROT:
            return []
        return [f"s_add_u32 s18, s{S_PHI}, {st}", "s_and_b32 s18, s18, 7", f"s_mul_i32 s19, s18, {64*3584}",
                "s_lshl_b32 s18, s18, 7"]

    def grp(st, g):
        sl = st % 3
        if g in (1, 5):
            j = 0 if g == 1 else 1
            L = [f"s_add_u32 m0, s{10+j}, {sl*SLOT}", f"s_add_u32 s22, s{8+j}, {'s18' if ROT else st*128}"]
            L += [f"buffer_load_dwordx4 v{XV+i}, {sr(SRD_X)}, s22 offen offset:{1024*i} lds" for i in range(4)]
        else:
            j = 0 if g == 0 else g - 1
            L = [f"s_add_u32 m0, s{72+j}, {sl*SLOT}", f"s_add_u32 s22, s{68+j}, {'s19' if ROT else st*64*3584}"]
            L += [f"buffer_load_dwordx4 v{WV+i}, {sr(SW)}, s22 offen offset:{1024*i} lds" for i in range(4)]
        return L

    def pref(st):
        L = [f"s_add_u32 s22, s68, {st*64*3584}"]
        L += [f"buffer_load_dwordx4 {v(DUM+4*i,4)}, v{WV+i}, {sr(SW)}, s22 offen offset:{1024*i}" for i in range(4)]
        L += [f"s_add_u32 s22, s23, {st*128}"]
        L += [f"buffer_load_dwordx4 {v(DUM+16+4*i,4)}, v{XV+i}, {sr(SRD_X)}, s22 offen offset:{1024*i}" for i in range(2)]
        return L

    fu_setup, fu_ld, fu_chk = fu_code(t1, t2, VC, 7)

    def poll_setup():
        a(f"""
        s_lshl_b32 s7, s2, 1
        s_add_u32 s7, s7, s6
        v_lshlrev_b32 v{VL}, 4, v0
        s_mov_b32 s77, 0x100000
        """)
        a.ext(fu_setup)

    STG = 24
    assert STG + 16 * n1() <= 256

    def wd_setup():
        a(f"""
        v_lshrrev_b32 v20, 3, v0
        v_and_b32 v21, 7, v0
        v_lshrrev_b32 v22, 1, v20
        v_and_b32 v22, 1, v22
        v_lshlrev_b32 v22, 2, v22
        v_xor_b32 v21, v21, v22
        v_lshlrev_b32 v18, 10, v20
        v_lshl_add_u32 v18, v21, 4, v18
        v_add_u32 v19, 8192, v18
        """)
        a(cb64_scalar(17, 3))
        a(f"""
        s_lshl_b32 s17, s17, 7
        s_mul_i32 s3, s6, {3*28*16384}
        s_add_u32 s3, s3, s17
        s_sub_u32 s48, 2, s6
        s_lshl_b32 s49, s48, 15
        v_add_u32 v1, s49, v{VL}
        s_mul_i32 s48, s48, {28*16384}
        s_add_u32 s48, s48, s17
        s_mul_i32 s17, s6, {3*RING2}
        v_add_u32 v7, s17, v{VL}
        """)
        a(rot_scalar(76, 17))
        a("s_mov_b32 s49, s76")

    wpos = [0, 0]
    wwp = [0, 0]

    def wd_ld(g, n):
        sb, ss = ((3, 76), (48, 49))[g]
        for _ in range(n):
            i = wpos[g]
            if i >= n1():
                break
            wpos[g] += 1
            R = STG + 8 * (g * n1() + i)
            a(f"""
            s_lshl_b32 s22, s{ss}, 14
            s_add_u32 s22, s22, s{sb}
            buffer_load_dwordx4 {v(R,4)}, v18, {sr(SRD_WD)}, s22 offen
            s_add_u32 s{ss}, s{ss}, 1
            s_cmp_ge_u32 s{ss}, 28
            s_cselect_b32 s{ss}, 0, s{ss}
            buffer_load_dwordx4 {v(R+4,4)}, v19, {sr(SRD_WD)}, s22 offen
            """)
            a.tag(f"wd{g}_{i}")

    def wd_wr(g, n):
        for i in range(wwp[g], min(n1(), wwp[g] + n)):
            wwp[g] = i + 1
            R = STG + 8 * (g * n1() + i)
            a.wait(f"wd{g}_{i}")
            for k in range(2):
                a(f"ds_write_b128 v{(7, 1)[g]}, {v(R+4*k,4)} offset:{i*2048 + k*1024}")

    def u_load():
        a(f"""
        s_cselect_b32 s19, {0 if OPT.get("forceslow") else 1}, 0
        s_mul_i32 s18, s6, {USZ}
        s_add_u32 s18, s18, {U_BASE}
        v_mov_b32 v20, 0
        v_mov_b32 v21, 0
        v_mov_b32 v22, 0
        v_mov_b32 v23, 0
        v_and_b32 v{t2}, 7, v0
        v_lshrrev_b32 v6, 3, v0
        v_and_b32 v6, 3, v6
        v_min_u32 v{t2}, 6, v{t2}
        v_mul_u32_u24 v6, {UPITCH}, v6
        v_lshl_add_u32 v{t2}, v{t2}, 4, v6
        v_add_u32 v{t2}, s18, v{t2}
        ds_write_b128 v{t2}, v[20:23]
        s_lshl_b32 s18, s6, 2
        s_add_u32 s18, s18, {S_LDS}
        v_mov_b32 v{t2}, s18
        v_mov_b32 v6, s19
        ds_write_b32 v{t2}, v6
        s_cmp_eq_u32 s19, 0
        s_cbranch_scc1 NOU{sfx}
        """)
        a.ext([("NOCOUNT", x) if is_vmem(x) else x for x in u_dma(VL, 7)])
        a(f"NOU{sfx}:")

    if gemm_wg:
        def wgrp(j):
            a(f"""
            s_add_u32 s17, s18, {j}
            s_and_b32 s17, s17, 3
            s_mul_i32 s{68+j}, s17, {16*3584}
            s_add_u32 s{68+j}, s{68+j}, s23
            s_lshl_b32 s{72+j}, s17, 12
            s_add_u32 s{72+j}, s{72+j}, s16
            """)
        a(f"""
        v_lshrrev_b32 v{t0}, 4, v0
        v_and_b32 v{t1}, 15, v0
        s_mov_b32 s18, s68
        s_mov_b32 s19, s69
        v_lshlrev_b32 v{t2}, 2, v{t0}
        s_lshl_b32 s23, s{S_CB}, 8
        v_xor_b32 v{t1}, v{t1}, v{t2}
        s_lshl_b32 s16, s6, 14
        v_mul_u32_u24 v{t0}, 3584, v{t0}
        s_add_u32 s16, s16, 16384
        v_lshl_add_u32 v{WV}, v{t1}, 4, v{t0}
        s_mov_b32 s{SW+2}, {512*1792*2}
        s_mov_b32 s{SW+3}, 0x00020000
        """)
        for i in range(1, 4):
            a(f"v_add_u32 v{WV+i}, {(4*3584-1024)*i}, v{WV}")
        wgrp(0)
        a.ext(bstamp(6, 1))
        a(f"""
        s_cmp_eq_u32 s6, 0
        s_waitcnt lgkmcnt(0)
        s_cselect_b32 s{SW}, s{S_WG}, s{S_WU}
        s_cselect_b32 s{SW+1}, s{S_WG+1}, s{S_WU+1}
        s_and_b32 s{SW+1}, s{SW+1}, 0xffff
        """)
        assert not ROT
        a.ext(bstamp(6, 2))
        a.ext(grp(0, 0))
        wgrp(1)
        a.ext(grp(0, 2))
        wgrp(2)
        a.ext(grp(0, 3))
        wgrp(3)
        a.ext(grp(0, 4))
        a(f"""
        v_lshrrev_b32 v{t0}, 3, v0
        v_and_b32 v{t1}, 7, v0
        v_lshrrev_b32 v{t2}, 1, v{t0}
        v_xor_b32 v{t1}, v{t1}, v{t2}
        v_lshlrev_b32 v{t0}, 10, v{t0}
        """)
        for i in range(4):
            a(f"""
            v_xor_b32 v{t2}, {4*(i&1)}, v{t1}
            v_lshl_add_u32 v{XV+i}, v{t2}, 4, v{t0}
            v_add_u32 v{XV+i}, {7168*i}, v{XV+i}
            """)
        a(f"""
        s_and_b32 s17, s19, 1
        s_lshl_b32 s17, s17, 1
        s_add_u32 s17, s17, s6
        s_lshl_b32 s16, s{S_RB}, 17
        s_lshl_b32 s8, s17, 15
        s_add_u32 s8, s8, s16
        s_lshl_b32 s10, s17, 12
        s_xor_b32 s17, s17, 2
        s_lshl_b32 s9, s17, 15
        s_add_u32 s9, s9, s16
        s_lshl_b32 s11, s17, 12
        s_mov_b32 s{SRD_X}, s{S_U}
        s_and_b32 s{SRD_X+1}, s{S_U+1}, 0xffff
        s_mov_b32 s{SRD_X+2}, {2048*512*2}
        s_mov_b32 s{SRD_X+3}, 0x00020000
        """)
        a.ext(grp(0, 1))
        a.ext(grp(0, 5))
        a.tag("st0")
        a(f"""
        s_lshl_b32 s22, s19, 1
        s_add_u32 s22, s22, s6
        s_and_b32 s22, s22, 7
        s_lshl_b32 s23, s22, 14
        s_add_u32 s23, s23, s16
        """)
        tail = {3: "S5 R5", 4: "S6 R6", 5: "S7 R7"}
        scheds = [
            {-1: "S0 S1 S2 R0 P3 P4", 0: "R1 P5 P6", 1: "R2 P7 S3", 2: "R3 S4 R4"},
            {-1: "S0 S1 S2 R0 R1", 0: "P3 P4 R2", 1: "P5 P6 P7 S3 R3", 2: "S4 R4"},
            {-1: "S0 R0 S1 R1", 0: "S2 R2", 1: "S3 R3", 2: "S4 R4"},
            {-1: "S0 R0 S1", 0: "R1 S2", 1: "R2 S3", 2: "R3 S4 R4"},
            {-1: "S0 R0 S1 S2 P3", 0: "R1 P4 P5", 1: "R2 P6 P7 S3", 2: "R3 S4 R4"},
            {-1: "S0 R0 S1 S2", 0: "R1 R2", 1: "S3 R3", 2: "S4 R4"},
            {-1: "S0 R0 S1 S2", 0: "R1 R2", 1: "S3 R3 P5", 2: "S4 R4 P6 P7"},
            {-1: "S0 R0 S1 S2", 0: "R1 R2 P3", 1: "S3 R3 P4 P5", 2: "S4 R4 P6 P7"},
            {-1: "S0 R0 S1 R1", 0: "S2", 1: "R2 S3", 2: "R3 S4 R4"},
            {-1: "S0 R0 S1 R1", 0: "S2", 1: "R2 S3 R3", 2: "S4 R4"},
            {-1: "S0 R0 S1 S2", 0: "R1", 1: "R2 S3 R3", 2: "S4 R4"},
        ]
        sched = dict(scheds[OPT.get("lsched", 5)])
        sched.update(tail)
        MP = OPT.get("mp", 1)
        if MP >= 0:
            sched[MP] += " M0"

        def issue(k):
            for tok in sched.get(k, "").split():
                st = int(tok[1:])
                if tok[0] == "S":
                    a.ext(kofs(st) + grp(st, 0) + grp(st, 1))
                elif tok[0] == "R":
                    a.ext(kofs(st))
                    for g in (2, 5, 3, 4):
                        a.ext(grp(st, g))
                    a.tag(f"st{st}")
                elif tok[0] == "P":
                    assert not ROT
                    a.ext(pref(st))
                elif tok[0] == "M":
                    a(f"""
                    s_mul_i32 s22, s{S_XCD}, 28
                    s_add_u32 s22, s22, s{S_IDX}
                    s_lshl_b32 s22, s22, 1
                    s_add_u32 s22, s22, s6
                    s_lshl_b32 s22, s22, 12
                    """)
                    for i in range(4):
                        a(f"buffer_load_dwordx4 {v(DUM+4*i,4)}, v{VL}, {sr(SRD_WD)}, s22 offen offset:{1024*i}")
        sched[-1] = sched[-1].replace("S0", "").replace("R0", "")
        issue(-1)
        a.ext(bstamp(6, 4))
        a.ext(stamp(1))
        srd(a, SRD_WS, S_WS, WS_BYTES)
        srd(a, SRD_WD, S_WD, 1792 * 512 * 2)
        poll_setup()
        for sidx in range(9):
            if sidx < 8:
                a.wait(f"st{sidx}")
            a.ext(bstamp(2, 1 + sidx))
            if sidx < 4:
                a.ext(bstamp(6, 5 + sidx))
            a("s_barrier")
            if sidx in (0, 3):
                a.ext(stamp(2 + (0, 3).index(sidx)))
            issue(sidx)
            if sidx == 2:
                wd_setup()
            if sidx == 6:
                a(f"s_setprio {OPT.get('lprio', 1)}")
            if 2 <= sidx <= 7:
                n = OPT.get(f"w{sidx}", {2: 0, 3: 0, 4: 0, 5: 6, 6: 11, 7: 11}[sidx])
                k = min(n, n1() - wpos[0])
                wd_ld(0, k)
                wd_ld(1, n - k)
            if sidx == 7:
                a.ext(fu_ld)
                a.tag("fu")
            if sidx == 8:
                a.ext(stamp(4))
                a(f"v_mov_b32 v6, {N_LDS}\nds_read_b32 v6, v6")
                wd_ld(0, 28)
                wd_ld(1, 28)
                wd_wr(0, OPT.get("e8", 6))
                a("s_waitcnt vmcnt(0)")
                a.L.append(("VMRESET",))
                a(f"s_waitcnt lgkmcnt(0)\nv_readfirstlane_b32 s{S_NONCE}, v6\ns_nop 3")
                a.ext(fu_chk)
                u_load()
                wd_wr(0, 28)
                wd_wr(1, 28)
        a("s_waitcnt vmcnt(0) lgkmcnt(0)")
        a.ext(stamp(5))
    else:
        a("s_waitcnt lgkmcnt(0)")
        srd(a, SRD_WS, S_WS, WS_BYTES)
        srd(a, SRD_WD, S_WD, 1792 * 512 * 2)
        poll_setup()
        wd_setup()
        a(f"v_mov_b32 v{t0}, 0")
        a("s_barrier")
        thr = OPT.get("sthr", 2)
        if thr:
            for _ in range(thr):
                wd_ld(0, 2)
                a("s_waitcnt vmcnt(0)")
        wd_ld(0, 28)
        wd_ld(1, 28)
        a(nonce_ld(6, t0))
        a.ext(fu_ld)
        wd_wr(0, 28)
        a("s_waitcnt vmcnt(0)")
        a.L.append(("VMRESET",))
        a.ext(stamp(4))
        a.ext(nonce_get(f"NL{sfx}", 6, t0))
        a.ext(fu_chk)
        u_load()
        wd_wr(1, 28)
        a("s_waitcnt vmcnt(0) lgkmcnt(0)")
        a.ext(stamp(5))
    a("s_branch L_CONVA")
    return resolve_vm(a.L)


def conv(a0, partB):
    a = Asm()
    KA, UA, YA = 2, 3, 5
    qs, outq = ([5, 6, 7], [6, 7]) if partB else ([0, 1, 2, 3, 4, 5], [0, 1, 2, 3, 4, 5])
    a(f"""
    s_lshl_b32 s8, s6, 13
    s_add_u32 s8, s8, {KG_BASE + KARR + 32}
    s_mul_i32 s9, s6, {USZ}
    s_add_u32 s9, s9, {U_BASE + 16}
    v_lshrrev_b32 v6, 2, v0
    v_and_b32 v10, 7, v6
    v_and_b32 v6, 3, v6
    v_and_b32 v7, 3, v0
    v_lshrrev_b32 v8, 4, v0
    v_and_b32 v8, 1, v8
    v_lshrrev_b32 v9, 5, v0
    v_mul_u32_u24 v{UA}, {UPITCH}, v7
    v_sub_u32 v10, v10, v9
    v_lshl_add_u32 v{UA}, v10, 4, v{UA}
    v_add_u32 v{UA}, s9, v{UA}
    v_lshlrev_b32 v{KA}, 5, v8
    v_lshl_add_u32 v{KA}, v7, 3, v{KA}
    v_lshl_add_u32 v{KA}, v9, 6, v{KA}
    v_lshlrev_b32 v10, 3, v6
    v_sub_u32 v{KA}, v{KA}, v10
    v_add_u32 v{KA}, s8, v{KA}
    """)
    qmax = max(qs)
    nst = 4 * qmax + 4
    NU = 4
    UBUF = 8
    KT = 24
    ACC = KT + 4 * nst
    TMP = ACC + 16 * len(qs)
    assert TMP + 3 * len(qs) + 1 <= 256

    def acc(q):
        return ACC + 16 * qs.index(q)

    need = {}
    for i in range(nst):
        for q in qs:
            s_ = 4 * q + 3 - i
            if s_ >= 0 and s_ not in need:
                need[s_] = i

    def rd(i):
        L = [f"ds_read_b128 {v(UBUF+4*(i%NU),4)}, v{UA} offset:{32*i}"]
        for s_ in sorted(s for s in need if need[s] == i):
            L += [f"ds_read_b64_tr_b16 {v(KT+4*s_,2)}, v{KA} offset:{128*s_+32}",
                  f"ds_read_b64_tr_b16 {v(KT+4*s_+2,2)}, v{KA} offset:{128*s_}"]
        L.append(("LTAG", f"R{i}"))
        return L

    PF = NU - 1
    a(f"""
    v_and_b32 v4, 7, v0
    v_lshrrev_b32 v{YA}, 3, v0
    v_lshlrev_b32 v{YA}, 4, v{YA}
    v_lshl_add_u32 v{YA}, v4, 7, v{YA}
    v_mov_b32 v6, 0
    v_mov_b32 v7, s{S_NONCE}
    s_mov_b32 s12, 0
    s_mov_b32 s13, 0x80000000
    s_mov_b32 s14, 0
    s_mov_b32 s15, 0xc0000000
    s_mov_b32 s16, 0
    s_mov_b32 s17, 0xe0000000
    s_lshl_b32 s7, s2, 1
    s_add_u32 s7, s7, s6
    s_mul_i32 s18, s7, {DP}
    s_add_u32 s18, s18, {Y_OFF}
    s_lshl_b32 s19, s2, 4
    s_add_u32 s19, s19, s6
    s_lshl_b32 s19, s19, 3
    s_add_u32 s19, s19, {FY_OFF + (4 if partB else 0)}
    """)
    a(f"s_setprio {OPT.get('cprio', 3)}")
    P = "B" if partB else "A"
    a(f"""
    s_lshl_b32 s52, s6, 2
    s_add_u32 s52, s52, {S_LDS}
    v_mov_b32 v4, s52
    """)
    a("s_barrier")
    a.ext(stamp(6))
    a("ds_read_b32 v4, v4")
    a.L.append(("LTAG", "ST"))
    a(f"CV{P}_GO:")
    a.ext(rd(0))
    a.L.append(("LWAIT", "ST"))
    a(f"""
    v_readfirstlane_b32 s52, v4
    s_nop 3
    s_cmp_eq_u32 s52, 0
    s_cbranch_scc1 CV{P}_SLOW
    """)
    a.ext(rd(1))

    def Y(q, g, rho):
        return acc(q) + 4 * g + rho

    dpp = "wave_ror:1 row_mask:0xf bank_mask:0xf"
    ctl = "row_mask:0xf bank_mask:0xf"

    def post(q):
        L = []
        Z = {}
        for g in (3, 2, 1, 0):
            for rho in (1, 2, 3):
                Z[g, rho] = TMP + 3 * qs.index(q) + rho - 1 if g == 3 else Y(q, g, rho)
                if g > 0:
                    prev = f"v{Y(q,g-1,rho)}"
                elif q > 0:
                    prev = f"v{Y(q-1,3,rho)}"
                else:
                    prev = "v6"
                L.append(f"v_cndmask_b32 v{Z[g,rho]}, v{Y(q,g,rho)}, {prev}, s[{10+2*rho}:{11+2*rho}]")
        for g in (3, 2, 1, 0):
            L.append(f"v_add_f32_dpp v{Z[g,2]}, v{Z[g,3]}, v{Z[g,2]} {dpp}")
        for g in (3, 2, 1, 0):
            L.append(f"v_add_f32_dpp v{Z[g,1]}, v{Z[g,2]}, v{Z[g,1]} {dpp}")
        for g in (3, 2, 1, 0):
            L.append(f"v_add_f32_dpp v{Y(q,g,0)}, v{Z[g,1]}, v{Y(q,g,0)} {dpp}")
        return L

    def stage(S_, D_, bit, stride):
        m = {0: 0xaaaaaaaa, 1: 0xcccccccc, 2: 0xf0f0f0f0}[bit]
        up = {0: "quad_perm:[1,0,3,2]", 1: "quad_perm:[2,3,0,1]", 2: "row_ror:12"}[bit]
        dn = {0: "quad_perm:[1,0,3,2]", 1: "quad_perm:[2,3,0,1]", 2: "row_ror:4"}[bit]
        L = [f"s_mov_b32 vcc_lo, {m:#x}", f"s_mov_b32 vcc_hi, {m:#x}"]
        idx = [i for i in range(len(S_)) if not (i // stride) & 1]
        L += [f"v_cndmask_b32_dpp v{D_[i+stride]}, v{S_[i]}, v{S_[i+stride]}, vcc {up} {ctl}" for i in idx]
        L += ["s_not_b64 vcc, vcc"]
        L += [f"v_cndmask_b32_dpp v{D_[i]}, v{S_[i+stride]}, v{S_[i]}, vcc {dn} {ctl}" for i in idx]
        return L

    def xpose(q):
        S0 = [Y(q - 1 + (g >> 2), g & 3, 0) for g in range(8)]
        free = [Y(qq, g, r) for qq in (q - 1, q) for g in range(3) for r in (1, 2, 3)]
        D0 = free[:8]
        S1 = free[8:12]
        D1 = free[12:16]
        D2 = [acc(q - 1) + i for i in range(4)]
        L = stage(S0, D0, 0, 1)
        L += [f"v_cvt_pk_bf16_f32 v{S1[g]}, v{D0[2*g]}, v{D0[2*g+1]}" for g in range(4)]
        L += stage(S1, D1, 1, 1)
        L += stage(D1, D2, 2, 2)
        L.append(f"buffer_store_dwordx4 {v(D2[0],4)}, v{YA}, {sr(SRD_WS)}, s18 offen offset:{(q-1)*512} sc1")
        return L

    pend = []
    FILL = OPT.get("cfill", 4)
    since = {}
    issued = 2
    for i in range(nst):
        a.L.append(("LWAIT", f"R{i}"))
        rl = []
        while issued < nst and issued <= i + (2 if i < 2 else PF):
            rl += rd(issued)
            issued += 1
        act = [q for q in qs if 4 * q + 3 - i >= 0]
        per = -(-len(rl) // len(act))
        for q in act:
            s_ = 4 * q + 3 - i
            c = "0" if i == 0 else v(acc(q), 16)
            a(f"v_mfma_f32_32x32x16_bf16 {v(acc(q),16)}, {v(UBUF+4*(i%NU),4)}, {v(KT+4*s_,4)}, {c}")
            a.ext(rl[:per])
            rl = rl[per:]
            if s_ == 0:
                since[q] = len(a.L)
            for qq in list(since):
                if len([x for x in a.L[since[qq]:] if isinstance(x, str)]) >= 14:
                    del since[qq]
                    if qq in outq:
                        pend += post(qq)
                        if (qq - outq[0]) & 1:
                            pend += xpose(qq)
            a.ext(pend[:FILL])
            pend = pend[FILL:]
    a.ext(stamp(7))
    a.ext(pend)
    a("s_nop 7\ns_nop 3")
    for qq in sorted(since):
        if qq in outq:
            a.ext(post(qq))
            if (qq - outq[0]) & 1:
                a.ext(xpose(qq))
    a.ext(stamp(8))
    a(f"""
    s_waitcnt vmcnt(0)
    s_mov_b64 exec, 1
    buffer_store_dword v7, v6, {sr(SRD_WS)}, s19 offen sc1
    s_mov_b64 exec, -1
    """)
    if partB:
        E = 8
        a(f"""
        s_cmp_lg_u32 s6, 0
        s_cbranch_scc1 CV_NOGATE
        s_lshl_b32 s16, s{S_XCD}, 9
        s_add_u32 s16, s16, {FG_OFF}
        v_lshrrev_b32 v2, 2, v0
        v_and_b32 v3, 3, v0
        v_and_b32 v4, 3, v2
        v_lshlrev_b32 v4, 7, v4
        v_lshl_add_u32 v4, v3, 2, v4
        v_lshlrev_b32 v2, 2, v2
        v_lshl_add_u32 v2, v3, 11, v2
        s_mov_b32 s77, 0x100000
        """)
        a(rb64_scalar(17, 22))
        a(f"s_lshl_b32 s17, s17, 6\ns_add_u32 s17, s17, {GL_OFF}")
        a.ext(plain(spin("PG", [f"buffer_load_dword v5, v4, {sr(SRD_WS)}, s16 offen sc1"],
                         [f"v_cmp_eq_u32 vcc, s{S_NONCE}, v5", "s_nop 3", "s_cmp_eq_u64 vcc, exec"], 1)))
        for g in range(8):
            a(f"buffer_load_dword v{E+g}, v2, {sr(SRD_WS)}, s17 offen sc1")
            if g < 7:
                a("s_add_u32 s17, s17, 8192")
        a(f"""
        s_waitcnt vmcnt(0)
        v_add_f32 v{E}, v{E}, v{E+1}
        v_add_f32 v{E+2}, v{E+2}, v{E+3}
        v_add_f32 v{E+4}, v{E+4}, v{E+5}
        v_add_f32 v{E+6}, v{E+6}, v{E+7}
        v_add_f32 v{E}, v{E}, v{E+2}
        v_add_f32 v{E+4}, v{E+4}, v{E+6}
        v_add_f32 v{E}, v{E}, v{E+4}
        v_cvt_pk_bf16_f32 v{E}, v{E}, v{E}
        v_lshlrev_b32 v{E}, 16, v{E}
        v_mul_f32 v{E}, {f32(-LOG2E)}, v{E}
        v_exp_f32 v{E}, v{E}
        v_lshlrev_b32 v2, 2, v0
        v_add_f32 v{E}, 1.0, v{E}
        v_rcp_f32 v{E}, v{E}
        v_add_u32 v2, {G_LDS}, v2
        v_cvt_pk_bf16_f32 v{E}, v{E}, v{E}
        v_lshlrev_b32 v{E}, 16, v{E}
        ds_write_b32 v2, v{E}
        s_waitcnt lgkmcnt(0)
        CV_NOGATE:
        """)
    a.ext(stamp_end())
    st, ld, chk = fu_code(TMP, TMP + 1, TMP + 2, 7)
    a(f"CV{P}_SLOW:")
    a("s_waitcnt lgkmcnt(0)\ns_mov_b32 s77, 0x100000")
    a.ext(st)
    a.ext(plain(spin(f"PU{P}", ld, chk, 8)))
    a(f"v_lshlrev_b32 v{TMP}, 4, v0")
    a.ext(u_dma(TMP, 7))
    a(f"""
    s_mov_b32 s16, 0
    s_mov_b32 s17, 0xe0000000
    v_mov_b32 v4, 1
    s_waitcnt vmcnt(0)
    s_branch CV{P}_GO
    """)
    a0.ext(resolve_lds(a.L))


HEADER = open("cdna_kernels/" + NAME + ".s.ref").read().split("; Override launch")[0]


def main(path):
    a = Asm()
    prologue(a)
    a("L_SPARE:")
    a(f"s_and_b32 s{S_XCD}, s2, 7\ns_lshr_b32 s{S_IDX}, s2, 3\ns_waitcnt lgkmcnt(0)")
    srd(a, SRD_X, S_U, 2048 * 512 * 2)
    g_srds(a)
    spare(a)
    a("s_branch L_GEMM2")
    a("L_GEMM1:")
    gemm1(a)
    a("L_GEMM2:")
    gemm2(a)
    a("L_LWAVE_S:")
    a.ext(lwave(False))
    a("L_KWAVE:")
    a.ext(kwave(True))
    a("L_KWAVE_S:")
    a.ext(kwave(False))
    a("L_CONVA:")
    conv(a, False)
    a("L_CONVB:")
    conv(a, True)
    a("L_END:\ns_endpgm")
    body = "\n".join(("" if ln.endswith(":") or ln.startswith(".") else "    ") + ln for ln in a.L)
    kn = NAME + "_kernel"
    txt = HEADER
    if OPT.get("list"):
        txt += f"; @launch kernel={kn} grid=(256,1,1) block=(512,1,1) lds=163840\n"
    else:
        txt += "; @launch grid=(256,1,1) block=(512,1,1) lds=163840\n"
    txt += '.amdgcn_target "amdgcn-amd-amdhsa--gfx950"\n.text\n'
    txt += f".globl {kn}\n.p2align 8\n.type {kn},@function\n{kn}:\n"
    txt += body + "\n"
    txt += f"""
.section .rodata,"a"
.p2align 6
.amdhsa_kernel {kn}
  .amdhsa_next_free_vgpr 256
  .amdhsa_next_free_sgpr 102
  .amdhsa_accum_offset 256
  .amdhsa_group_segment_fixed_size 0
  .amdhsa_kernarg_size 136
  .amdhsa_user_sgpr_count 2
  .amdhsa_user_sgpr_kernarg_segment_ptr 1
  .amdhsa_system_sgpr_workgroup_id_x 1
.end_amdhsa_kernel
"""
    open(path, "w").write(txt)


if __name__ == "__main__":
    for o in list(sys.argv):
        if o.startswith("--opt="):
            k, _, val = o[6:].partition(":")
            OPT[k] = int(val) if val else 1
            sys.argv.remove(o)
    if OPT.get("oldlay"):
        DP = 4096
        UT_OFF, Y_OFF, GL_OFF = 0x800000, 0xC00000, 0xE00000
        FH_OFF, FY_OFF, FU_OFF, FD_OFF = 0xE40000, 0xE60000, 0xE68000, 0xE80000
    if OPT.get("dp"):
        DP = OPT["dp"]
    if "--stamps" in sys.argv:
        STAMPS = True
        sys.argv.remove("--stamps")
    main(sys.argv[1] if len(sys.argv) > 1 else "cdna_kernels/" + NAME + ".s")
```

```python
import sys, struct

NAME = "gated_mix__ssm_conv_s4__swiglu_ffn__prompt"

H_OFF = 0x000000
DP = 4224
UT_OFF = 0x800000
Y_OFF = 0xA80000
KX_OFF = 0xD00000
GL_OFF = 0xF00000
ST_OFF = 0xF20000
FH_OFF = 0xF40000
FY_OFF = 0xF60000
FU_OFF = 0xF68000
FG_OFF = 0xF6A000
FD_OFF = 0xF80000
WS_BYTES = 0x1000000

STAMPS = False
HDL = []
OPT = {}
ST_BASE = 78
NST = 12


def f32(x):
    return "0x%08x" % struct.unpack("<I", struct.pack("<f", x))[0]


LOG2E = 1.4426950408889634
LOG2E_HI = struct.unpack("<f", struct.pack("<f", LOG2E))[0]
LOG2E_LO = LOG2E - LOG2E_HI
LN2 = 0.6931471805599453
INV2PI = 0.15915494309189535


class Asm:
    def __init__(self):
        self.L = []

    def __call__(self, s):
        for line in s.strip().split("\n"):
            line = line.strip()
            if line:
                self.L.append(line)

    def ext(self, lines):
        self.L.extend(lines)

    def tag(self, n):
        self.L.append(("VMTAG", n))

    def wait(self, n):
        self.L.append(("VMWAIT", n))


def v(b, n=1):
    return f"v{b}" if n == 1 else f"v[{b}:{b+n-1}]"


def sr(b):
    return f"s[{b}:{b+3}]"


class RA:
    def __init__(self, start, end):
        self.p = start
        self.end = end

    def __call__(self, n=1, align=1):
        self.p = (self.p + align - 1) // align * align
        r = self.p
        self.p += n
        assert self.p <= self.end, "out of registers"
        return r


def stamp(k, force=False):
    if not STAMPS:
        return []
    assert k < NST
    if OPT.get("dbgbar") and 1 <= k <= 9 and not force:
        return []
    op = "s_memtime" if OPT.get("cyc") else "s_memrealtime"
    return [f"{op} s[{ST_BASE+2*k}:{ST_BASE+2*k+1}]"]


def bstamp(mode, k):
    return stamp(k, True) if OPT.get("dbgbar") == mode else []


def stamp_end():
    if not STAMPS:
        return ["s_endpgm"]
    L = stamp(10) + ["s_waitcnt vmcnt(0)"] + stamp(11)
    L += ["s_waitcnt lgkmcnt(0)", "s_mov_b64 exec, 1", "s_lshl_b32 s74, s2, 3", f"s_add_u32 s74, s74, s{S_WIDX}",
          "s_lshl_b32 s74, s74, 6", f"s_add_u32 s74, s74, {ST_OFF}", "v_mov_b32 v1, 0"]
    for k in range(NST):
        L.append(f"v_mov_b32 v{4+k}, s{ST_BASE+2*k}")
    for k in range(0, NST, 4):
        L.append(f"buffer_store_dwordx4 v[{4+k}:{7+k}], v1, {sr(SRD_WS)}, s74 offen offset:{4*k}")
    if OPT.get("hdbg"):
        lab = f"HD{len(HDL)}"
        HDL.append(lab)
        L += [f"v_not_b32 v20, v4", f"global_atomic_umax v1, v20, s[{S_DBG}:{S_DBG+1}] offset:56",
              f"global_atomic_umax v1, v15, s[{S_DBG}:{S_DBG+1}] offset:60",
              f"s_cmp_lg_u32 s2, {OPT['hdbg']}", f"s_cbranch_scc1 {lab}", f"s_cmp_lg_u32 s{S_WIDX}, 0", f"s_cbranch_scc1 {lab}"]
        words = [1, 2, 3, 4, 5, 6, 7, 9, 10, 11, 12]
        for k in range(1, NST):
            L += [f"v_sub_u32 v20, v{4+k}, v4", f"global_store_dword v1, v20, s[{S_DBG}:{S_DBG+1}] offset:{4*words[k-1]}", "s_nop 1"]
        L += [f"global_store_dword v1, v4, s[{S_DBG}:{S_DBG+1}] offset:52"]
        L.append(f"{lab}:")
    L.append("s_endpgm")
    return L


def is_vmem(line):
    return line.startswith("buffer_") or line.startswith("global_")


def resolve_vm(lines):
    out = []
    count = 0
    tags = {}
    done = -1
    for ln in lines:
        if isinstance(ln, tuple):
            if ln[0] == "VMTAG":
                tags[ln[1]] = count
            elif ln[0] == "VMWAIT":
                if tags[ln[1]] <= done:
                    continue
                n = count - tags[ln[1]]
                assert 0 <= n <= 63, n
                out.append(f"s_waitcnt vmcnt({n})")
                done = tags[ln[1]]
            elif ln[0] == "VMRESET":
                done = count
            elif ln[0] == "NOCOUNT":
                out.append(ln[1])
            else:
                raise ValueError(ln)
        else:
            if is_vmem(ln):
                count += 1
            out.append(ln)
    return out


def resolve_lds(lines):
    out = []
    count = 0
    tags = {}
    for ln in lines:
        if isinstance(ln, tuple):
            if ln[0] == "LTAG":
                tags[ln[1]] = count
            elif ln[0] == "LWAIT":
                out.append(f"s_waitcnt lgkmcnt({min(15, count - tags[ln[1]])})")
            else:
                raise ValueError(ln)
        else:
            if ln.startswith("ds_"):
                count += 1
            out.append(ln)
    return out


SLOT = 49152
KG_BASE = 147456
KARR = 3584
U_BASE = 131072
UPITCH = 1344
USZ = 4 * UPITCH
YB_BASE = U_BASE + 2 * USZ
RING2 = 32768

S_U = 4
S_ARE, S_AIM, S_BRE, S_BIM, S_CRE, S_CIM, S_LDT = 54, 56, 58, 60, 62, 64, 66
S_DS = 20
S_WG, S_WU, S_WD, S_GW = 24, 26, 28, 30
S_OUT, S_DBG, S_WS = 32, 34, 36
S_WIDX, S_XCD, S_IDX, S_RB, S_CB, S_PHI = 38, 39, 40, 41, 42, 43
SRD_X, SRD_WG, SRD_WU, SRD_WS, SRD_WD, SRD_OUT = 44, 48, 52, 56, 60, 64


def srd(a, d, base, nbytes):
    a(f"""
    s_mov_b32 s{d}, s{base}
    s_and_b32 s{d+1}, s{base+1}, 0xffff
    s_mov_b32 s{d+2}, {nbytes}
    s_mov_b32 s{d+3}, 0x00020000
    """)


def mapping(a):
    a(f"""
    s_and_b32 s{S_XCD}, s2, 7
    s_lshr_b32 s{S_IDX}, s2, 3
    """)
    if OPT.get("map", 1) == 0:
        a(f"""
        s_and_b32 s68, s{S_IDX}, 3
        s_lshr_b32 s69, s{S_IDX}, 2
        s_lshr_b32 s{S_RB}, s{S_XCD}, 1
        s_lshl_b32 s{S_RB}, s{S_RB}, 2
        s_add_u32 s{S_RB}, s{S_RB}, s68
        s_and_b32 s{S_CB}, s{S_XCD}, 1
        s_mul_i32 s{S_CB}, s{S_CB}, 7
        s_add_u32 s{S_CB}, s{S_CB}, s69
        s_lshl_b32 s{S_PHI}, s68, 1
        s_add_u32 s{S_PHI}, s{S_PHI}, s69
        s_and_b32 s{S_PHI}, s{S_PHI}, 7
        """)
    else:
        a(f"""
        s_and_b32 s70, s{S_XCD}, 1
        s_lshl_b32 s70, s70, 2
        s_and_b32 s68, s{S_IDX}, 7
        s_lshr_b32 s69, s{S_IDX}, 3
        s_add_u32 s71, s69, s70
        s_add_u32 s72, s68, s70
        s_cmp_ge_u32 s{S_IDX}, 24
        s_cselect_b32 s71, 3, s71
        s_cselect_b32 s68, s72, s68
        s_lshr_b32 s{S_CB}, s{S_XCD}, 1
        s_and_b32 s{S_CB}, s{S_CB}, 1
        s_mul_i32 s{S_CB}, s{S_CB}, 7
        s_add_u32 s{S_CB}, s{S_CB}, s71
        s_lshr_b32 s{S_RB}, s{S_XCD}, 2
        s_lshl_b32 s{S_RB}, s{S_RB}, 3
        s_add_u32 s{S_RB}, s{S_RB}, s68
        s_lshl_b32 s{S_PHI}, s69, 1
        s_add_u32 s{S_PHI}, s{S_PHI}, s68
        s_and_b32 s{S_PHI}, s{S_PHI}, 7
        """)


K_PR = 6


def kparam_loads():
    va, vb = K_PR + 5, K_PR + 7
    L = [f"global_load_dword v{K_PR+i}, v{va}, s[{sb}:{sb+1}]" for i, sb in enumerate((S_ARE, S_AIM, S_BRE, S_BIM, S_CRE, S_CIM))]
    L += [f"global_load_ushort v{K_PR+6}, v{vb}, s[{S_LDT}:{S_LDT+1}]", f"global_load_ushort v{K_PR+7}, v{vb}, s[{S_DS}:{S_DS+1}]"]
    return L


def prologue(a):
    a("""
    s_cmp_ge_u32 s2, 256
    s_cbranch_scc1 L_END
    """)
    if STAMPS:
        a.ext([f"s_mov_b32 s{ST_BASE+2*k}, 0" for k in range(NST)])
    a.ext(stamp(0))
    a(f"""
    s_load_dwordx8 s[24:31], s[0:1], 80
    s_load_dwordx16 s[52:67], s[0:1], 0
    s_load_dwordx2 s[4:5], s[0:1], 0
    s_load_dwordx2 s[36:37], s[0:1], 128
    s_load_dwordx4 s[32:35], s[0:1], 112
    s_load_dwordx2 s[20:21], s[0:1], 64
    v_lshrrev_b32 v1, 6, v0
    v_and_b32 v0, 63, v0
    s_nop 0
    v_readfirstlane_b32 s{S_WIDX}, v1
    s_lshl_b32 s69, s2, 1
    v_lshlrev_b32 v2, 2, v0
    s_nop 1
    s_cmp_lt_u32 s{S_WIDX}, 6
    s_cbranch_scc1 L_NOTK
    s_sub_u32 s68, s{S_WIDX}, 6
    s_add_u32 s69, s69, s68
    s_lshl_b32 s71, s69, 8
    v_add_u32 v2, s71, v2
    s_lshl_b32 s72, s69, 1
    v_mov_b32 v3, s72
    s_waitcnt lgkmcnt(0)
    """)
    a(f"v_mov_b32 v{K_PR+5}, v2\nv_mov_b32 v{K_PR+7}, v3")
    a(f"s_and_b32 s{S_XCD}, s2, 7\ns_lshr_b32 s{S_IDX}, s2, 3")
    a("s_cmp_lt_u32 s2, 224\ns_cbranch_scc1 L_KWAVE")
    a.ext(kparam_loads())
    a("s_branch L_KWAVE_S\nL_NOTK:")
    a(f"""
    s_cmp_ge_u32 s{S_WIDX}, 4
    s_cbranch_scc1 L_ISL
    """)
    a(f"""
    s_getpc_b64 s[70:71]
    L_PC:
    s_sub_u32 s70, s70, L_PC-{NAME}_kernel
    s_subb_u32 s71, s71, 0
    s_lshr_b32 s72, s2, 3
    s_lshl_b32 s72, s72, 2
    s_add_u32 s72, s72, s{S_WIDX}
    s_lshl_b32 s72, s72, 9
    v_and_b32 v2, 7, v0
    v_lshlrev_b32 v2, 6, v2
    v_add_u32 v2, s72, v2
    v_min_u32 v2, L_END-{NAME}_kernel, v2
    global_load_dword v127, v2, s[70:71]
    s_cmp_lt_u32 s2, 224
    s_cbranch_scc1 L_GEMM1
    s_branch L_SPARE
    L_ISL:
    """)
    mapping(a)
    a(f"""
    s_sub_u32 s6, s{S_WIDX}, 4
    s_cmp_ge_u32 s{S_IDX}, 28
    s_cbranch_scc1 L_LWAVE_S
    """)
    a.ext(lwave(True))


def g_srds(a):
    srd(a, SRD_WS, S_WS, WS_BYTES)
    srd(a, SRD_WD, S_WD, 1792 * 512 * 2)
    srd(a, SRD_OUT, S_OUT, 2048 * 512 * 2)


VL16 = 1
XD = 8
(VD0, VD1, DA0, DA1, VEP, VPH, VFL, VG, VY, VYW, VYT, VW1, VW2, VW3, VR1, VR23) = range(112, 128)
YT_BASE = YB_BASE
G_LDS = YB_BASE
N_LDS = YB_BASE + 256
S_LDS = YB_BASE + 272
def n1():
    return OPT.get("n1", 14)


def rot_scalar(dst, tmp):
    m = OPT.get("rmode", 0)
    if m == 1:
        return f"""
        s_lshr_b32 s{dst}, s{S_IDX}, 1
        s_and_b32 s{dst}, s{dst}, 2
        s_mul_i32 s{dst}, s{dst}, 7
        """
    if m == 2:
        return f"""
        s_lshr_b32 s{dst}, s{S_IDX}, 1
        s_and_b32 s{dst}, s{dst}, 2
        s_and_b32 s{tmp}, s{S_IDX}, 1
        s_add_u32 s{dst}, s{dst}, s{tmp}
        s_mul_i32 s{dst}, s{dst}, 7
        """
    return f"""
    s_lshr_b32 s{dst}, s{S_IDX}, 1
    s_and_b32 s{dst}, s{dst}, 2
    s_add_u32 s{dst}, s{dst}, s{S_IDX}
    s_and_b32 s{dst}, s{dst}, 3
    s_mul_i32 s{dst}, s{dst}, 7
    """


def rb64_scalar(dst, tmp):
    return f"""
    s_lshl_b32 s{dst}, s{S_XCD}, 2
    s_and_b32 s{tmp}, s{S_IDX}, 3
    s_add_u32 s{dst}, s{dst}, s{tmp}
    """


def cb64_scalar(dst, tmp):
    return f"""
    s_lshr_b32 s{dst}, s{S_IDX}, 2
    s_lshr_b32 s{tmp}, s{S_WD}, 7
    s_sub_u32 s{dst}, s{dst}, s{tmp}
    s_add_u32 s{dst}, s{dst}, {OPT.get("cbs", 4)}
    s_and_b32 s{dst}, s{dst}, 7
    """


def gemm2_setup(a):
    a(rb64_scalar(6, 13))
    a(cb64_scalar(7, 13))
    a(f"""
    s_lshl_b32 s17, s6, 6
    s_lshr_b32 s23, s{S_WIDX}, 1
    s_lshl_b32 s13, s23, 5
    s_add_u32 s17, s17, s13
    s_lshl_b32 s18, s7, 6
    s_and_b32 s14, s{S_WIDX}, 1
    s_lshl_b32 s13, s14, 5
    s_add_u32 s18, s18, s13
    v_lshrrev_b32 v5, 5, v0
    v_and_b32 v6, 31, v0
    v_add_u32 v6, s17, v6
    v_lshlrev_b32 v7, 4, v5
    v_add_u32 v7, s18, v7
    v_lshlrev_b32 v7, 1, v7
    v_lshl_add_u32 v{VEP}, v6, 10, v7
    s_lshl_b32 s8, s{S_WIDX}, 15
    s_lshl_b32 s9, s6, 1
    s_add_u32 s9, s9, s23
    s_mul_i32 s9, s9, 112
    s_mul_i32 s13, s{S_WIDX}, 28
    s_add_u32 s9, s9, s13
    s_lshl_b32 s9, s9, 10
    s_mul_i32 s22, s23, {224*1024}
    s_sub_u32 s22, {112*1024}, s22
    s_lshl_b32 s10, s13, 14
    s_lshl_b32 s13, s7, 7
    s_add_u32 s10, s10, s13
    """)
    a(rot_scalar(12, 13))
    a(f"""
    s_add_u32 s11, s12, {n1()}
    s_cmp_ge_u32 s11, 28
    s_cselect_b32 s13, 28, 0
    s_sub_u32 s11, s11, s13
    s_lshl_b32 s15, s6, 5
    s_mul_i32 s13, s{S_WIDX}, 7
    s_add_u32 s15, s15, s13
    s_lshl_b32 s15, s15, 7
    s_add_u32 s15, s15, {FH_OFF}
    s_lshl_b32 s13, s7, 2
    s_add_u32 s13, s13, s{S_WIDX}
    s_lshl_b32 s16, s13, 10
    s_add_u32 s16, s16, {FY_OFF}
    s_mul_i32 s19, s13, {16*DP}
    s_lshl_b32 s13, s6, 7
    s_add_u32 s19, s19, s13
    s_add_u32 s19, s19, {Y_OFF}
    v_lshlrev_b32 v{VL16}, 4, v0
    v_lshrrev_b32 v2, 3, v0
    v_and_b32 v3, 7, v0
    v_mul_u32_u24 v{VY}, {DP}, v2
    v_lshl_add_u32 v{VY}, v3, 4, v{VY}
    v_lshrrev_b32 v4, 1, v2
    v_and_b32 v4, 1, v4
    v_lshlrev_b32 v4, 2, v4
    v_xor_b32 v3, v3, v4
    v_lshlrev_b32 v{VD0}, 10, v2
    v_lshl_add_u32 v{VD0}, v3, 4, v{VD0}
    v_add_u32 v{VD1}, {8192-1024}, v{VD0}
    v_lshlrev_b32 v{VYW}, 7, v2
    v_lshl_add_u32 v{VYW}, v3, 4, v{VYW}
    v_add_u32 v{VYW}, s8, v{VYW}
    v_lshrrev_b32 v2, 2, v0
    v_and_b32 v2, 3, v2
    v_and_b32 v3, 3, v0
    v_lshrrev_b32 v4, 4, v0
    v_and_b32 v4, 1, v4
    v_lshl_add_u32 v6, v5, 2, v2
    v_lshlrev_b32 v6, 7, v6
    v_and_b32 v7, 1, v3
    v_lshl_add_u32 v6, v7, 5, v6
    v_lshl_add_u32 v6, v4, 4, v6
    v_lshrrev_b32 v7, 1, v3
    v_lshl_add_u32 v6, v7, 3, v6
    v_add_u32 v6, s8, v6
    v_lshrrev_b32 v7, 1, v2
    v_xor_b32 v7, s14, v7
    v_lshl_add_u32 v{DA0}, v7, 6, v6
    v_xor_b32 v7, 1, v7
    v_lshl_add_u32 v{DA1}, v7, 6, v6
    s_lshl_b32 s13, s14, 1
    v_add_u32 v6, s13, v5
    v_lshlrev_b32 v{VYT}, 15, v6
    v_lshl_add_u32 v{VYT}, v2, 7, v{VYT}
    v_lshrrev_b32 v7, 1, v2
    v_xor_b32 v7, s23, v7
    v_lshl_add_u32 v{VYT}, v7, 6, v{VYT}
    v_lshl_add_u32 v{VYT}, v4, 5, v{VYT}
    v_lshl_add_u32 v{VYT}, v3, 3, v{VYT}
    v_min_u32 v{VPH}, 6, v0
    v_lshlrev_b32 v{VPH}, 7, v{VPH}
    v_lshrrev_b32 v2, 2, v0
    v_and_b32 v2, 7, v2
    v_lshlrev_b32 v{VFL}, 7, v2
    v_lshl_add_u32 v{VFL}, v3, 2, v{VFL}
    v_and_b32 v{VG}, 31, v0
    s_lshl_b32 s13, s23, 5
    v_add_u32 v{VG}, s13, v{VG}
    v_lshlrev_b32 v{VG}, 2, v{VG}
    v_add_u32 v{VG}, {G_LDS}, v{VG}
    v_add_u32 v{VW1}, s8, v{VL16}
    s_xor_b32 s13, s{S_WIDX}, 1
    s_lshl_b32 s13, s13, 15
    v_add_u32 v{VR1}, s13, v{VL16}
    s_xor_b32 s13, s{S_WIDX}, 2
    s_lshl_b32 s13, s13, 15
    v_add_u32 v{VW2}, s13, v{VL16}
    s_xor_b32 s13, s{S_WIDX}, 3
    s_lshl_b32 s13, s13, 15
    v_add_u32 v{VW3}, s13, v{VL16}
    """)


def gemm1(a):
    XA = 16
    WA = 28
    BUFS = [64, 88, 40]
    ACC = 128

    def acc(mat, t, tt):
        return ACC + 16 * (mat * 4 + t * 2 + tt)

    def wf(b, mat, t):
        return BUFS[b] + 4 * (mat * 2 + t)

    def xf(b, tt):
        return BUFS[b] + 16 + 4 * tt

    g2 = Asm()
    a(f"""
    s_lshr_b32 s68, s{S_WIDX}, 1
    s_and_b32 s69, s{S_WIDX}, 1
    v_and_b32 v7, 31, v0
    v_lshrrev_b32 v2, 5, v0
    v_lshrrev_b32 v3, 1, v0
    v_and_b32 v3, 7, v3
    s_lshl_b32 s70, s68, 13
    v_lshlrev_b32 v4, 7, v7
    v_add_u32 v4, s70, v4
    """)
    for ks in range(4):
        a(f"""
        v_add_u32 v5, {2*ks}, v2
        v_xor_b32 v5, v5, v3
        v_lshl_add_u32 v{XA+ks}, v5, 4, v4
        """)
    a(f"""
    v_lshrrev_b32 v7, 2, v0
    v_and_b32 v7, 3, v7
    v_and_b32 v3, 3, v0
    v_lshrrev_b32 v4, 4, v0
    v_and_b32 v4, 1, v4
    v_lshl_add_u32 v5, v2, 3, v7
    v_lshlrev_b32 v5, 8, v5
    v_lshl_add_u32 v5, v4, 5, v5
    v_lshl_add_u32 v5, v3, 3, v5
    s_lshl_b32 s70, s69, 1
    """)
    for t in range(2):
        a(f"""
        s_add_u32 s71, s70, {t}
        v_xor_b32 v6, s71, v7
        v_lshl_add_u32 v{WA+t}, v6, 6, v5
        """)
    for sl in (1, 2):
        for ks in range(4):
            a(f"v_add_u32 v{XA+4*sl+ks}, {sl*SLOT}, v{XA+ks}")
        for t in range(2):
            a(f"v_add_u32 v{WA+2*sl+t}, {sl*SLOT}, v{WA+t}")
    mapping(g2)
    g_srds(g2)
    gemm2_setup(g2)
    g2(f"""
    s_lshr_b32 s68, s{S_WIDX}, 1
    s_and_b32 s69, s{S_WIDX}, 1
    s_lshl_b32 s70, s{S_RB}, 2
    s_lshl_b32 s71, s68, 1
    s_add_u32 s70, s70, s71
    s_mul_i32 s70, s70, 112
    s_lshl_b32 s71, s{S_CB}, 3
    s_add_u32 s70, s70, s71
    s_lshl_b32 s71, s69, 2
    s_add_u32 s70, s70, s71
    s_lshl_b32 s70, s70, 10
    s_add_u32 s71, s70, {112*1024}
    s_lshl_b32 s3, s{S_RB}, 1
    s_add_u32 s3, s3, s68
    s_lshl_b32 s3, s3, 5
    s_lshl_b32 s72, s{S_CB}, 1
    s_add_u32 s3, s3, s72
    s_add_u32 s3, s3, s69
    s_lshl_b32 s3, s3, 7
    s_add_u32 s3, s3, {FH_OFF}
    s_mov_b32 s72, {f32(-LOG2E)}
    s_mov_b32 s73, {f32(-LOG2E)}
    """)

    def reads(n):
        st, ks = n >> 2, n & 3
        sl = st % 3
        b = n % 3
        r = []
        r.append(f"ds_read_b128 {v(xf(b,0),4)}, v{XA+4*sl+ks}")
        for mat in range(2):
            for t in range(2):
                for h2 in range(2):
                    off = 16384 * (1 + mat) + ks * 4096 + h2 * 1024
                    r.append(f"ds_read_b64_tr_b16 {v(wf(b,mat,t)+2*h2,2)}, v{WA+2*sl+t} offset:{off}")
                if mat == 0 and t == 0:
                    r.append(f"ds_read_b128 {v(xf(b,1),4)}, v{XA+4*sl+ks} offset:4096")
        return r

    T = 16

    def epi(p):
        t, tt = p >> 1, p & 1
        G, U = acc(0, t, tt), acc(1, t, tt)
        o = 32 + 8 * p
        L = []
        for h in range(2):
            R = range(8 * h, 8 * h + 8)
            L += [f"v_pk_mul_f32 {v(T+i,2)}, {v(G+i,2)}, s[72:73]" for i in R[::2]]
            for i in R[::2]:
                L += [f"v_exp_f32 v{T+i}, v{T+i}", f"v_exp_f32 v{T+i+1}, v{T+i+1}",
                      f"v_pk_mul_f32 {v(U+i,2)}, {v(G+i,2)}, {v(U+i,2)}"]
            L += [f"v_pk_add_f32 {v(T+i,2)}, {v(T+i,2)}, 1.0 op_sel_hi:[1,0]" for i in R[::2]]
            L += [f"v_rcp_f32 v{T+i}, v{T+i}" for i in R]
            L += [f"v_pk_mul_f32 {v(U+i,2)}, {v(U+i,2)}, {v(T+i,2)}" for i in R[::2]]
            for i in range(4):
                L.append(f"v_cvt_pk_bf16_f32 v{o+4*h+i}, v{U+8*h+2*i}, v{U+8*h+2*i+1}")
            L.append(f"buffer_store_dwordx4 {v(o+4*h,4)}, v{VL16}, {sr(SRD_WS)}, s{70+tt} offen offset:{t*2048+1024*h} sc1")
        return L

    a("s_waitcnt lgkmcnt(0)")
    a("s_barrier")
    a.ext(stamp(1))
    a.ext(bstamp(2, 1))
    a.ext(reads(0))
    a.ext(reads(1))
    extra = []
    XL = OPT.get("xl", 13)
    for n in range(32):
        b = n % 3
        if (n & 3) == 2:
            a("s_waitcnt lgkmcnt(0)")
            a.ext(bstamp(2, 2 + (n >> 2)))
            a("s_barrier")
            if n == 22:
                a.ext(stamp(2))
        elif (n & 3) != 3:
            a("s_waitcnt lgkmcnt(10)")
        rd = reads(n + 2) if n + 2 < 32 else []
        mf = []
        for t in range(2):
            for tt in range(2):
                for mat in range(2):
                    c = "0" if n == 0 else v(acc(mat, t, tt), 16)
                    mf.append(f"v_mfma_f32_32x32x16_bf16 {v(acc(mat,t,tt),16)}, {v(wf(b,mat,t),4)}, {v(xf(b,tt),4)}, {c}")
        if n == 3:
            extra = list(g2.L)
        if n == 30:
            assert not extra
            extra = [f"v_mov_b32 v2, {N_LDS}", "ds_read_b32 v3, v2"]
        for i, m in enumerate(mf):
            a(m)
            a.ext(rd[2 * i:2 * i + 2])
            if i >= 4:
                a.ext(extra[:3])
                extra = extra[3:]
    assert not extra
    a.ext(stamp(3))
    if OPT.get("eprio", 0):
        a(f"s_setprio {OPT['eprio']}")
    a(f"s_waitcnt lgkmcnt(0)\nv_readfirstlane_b32 s{S_NONCE}, v3\ns_nop 5")
    for p in range(4):
        a.ext(epi(p))
    a.ext(stamp(4))


def spare(a):
    R = 16
    O = 80
    GWv = 112
    SUM = 120
    a(f"""
    s_sub_u32 s68, s{S_IDX}, 28
    s_lshl_b32 s3, s{S_XCD}, 2
    s_add_u32 s3, s3, s68
    s_lshl_b32 s3, s3, 5
    s_add_u32 s3, s3, s{S_WIDX}
    s_lshl_b32 s3, s3, 2
    s_add_u32 s3, s3, {FU_OFF}
    s_lshl_b32 s68, s68, 2
    s_add_u32 s68, s68, s{S_WIDX}
    s_lshr_b32 s69, s68, 1
    s_mov_b32 s74, s{S_XCD}
    v_and_b32 v1, 7, v0
    v_lshrrev_b32 v2, 3, v0
    v_lshlrev_b32 v3, 15, v2
    v_lshl_add_u32 v3, v1, 4, v3
    v_mul_u32_u24 v4, {8*DP}, v1
    v_lshl_add_u32 v4, v2, 4, v4
    v_lshlrev_b32 v5, 4, v1
    v_lshlrev_b32 v6, 2, v0
    s_mov_b32 s70, 0x05040100
    s_mov_b32 s71, 0x07060302
    s_lshl_b32 s72, s69, 7
    v_add_u32 v7, s72, v5
    global_load_dwordx4 {v(GWv,4)}, v7, s[{S_GW}:{S_GW+1}]
    """)
    for i in range(2):
        b = 6 + 4 * i
        a(f"""
        s_lshl_b32 s73, s68, 1
        s_add_u32 s73, s73, {i}
        s_and_b32 s73, s73, 3
        s_lshl_b32 s{b}, s74, 18
        s_lshl_b32 s75, s73, 10
        s_add_u32 s{b}, s{b}, s75
        s_add_u32 s{b}, s{b}, s72
        s_mul_i32 s{b+1}, s69, {64*DP}
        s_add_u32 s{b+1}, s{b+1}, s75
        s_lshl_b32 s75, s74, 7
        s_add_u32 s{b+1}, s{b+1}, s75
        s_add_u32 s{b+1}, s{b+1}, {UT_OFF}
        s_lshl_b32 s{b+2}, s74, 8
        s_lshl_b32 s75, s73, 11
        s_add_u32 s{b+2}, s{b+2}, s75
        s_lshl_b32 s75, s69, 13
        s_add_u32 s{b+2}, s{b+2}, s75
        s_add_u32 s{b+2}, s{b+2}, {GL_OFF}
        """)
        for j in range(8):
            a(f"buffer_load_dwordx4 {v(R+32*i+4*j,4)}, v3, {sr(SRD_X)}, s{b} offen")
            if j < 7:
                a(f"s_add_u32 s{b}, s{b}, 4096")
    a("v_mov_b32 v2, 0")
    for i in range(2):
        b = 6 + 4 * i
        a("s_waitcnt vmcnt(8)")
        Ri = R + 32 * i
        for e in range(8):
            for jj in range(4):
                sel = 71 if (e & 1) else 70
                a(f"v_perm_b32 v{O+4*e+jj}, v{Ri+4*(2*jj+1)+(e>>1)}, v{Ri+4*(2*jj)+(e>>1)}, s{sel}")
            a(f"buffer_store_dwordx4 {v(O+4*e,4)}, v4, {sr(SRD_WS)}, s{b+1} offen sc1")
            if e < 7:
                a(f"s_add_u32 s{b+1}, s{b+1}, {DP}")
    a(nonce_ld(3, 2))
    a.ext(stamp(1))
    a("s_barrier")
    for i in range(2):
        Ri = R + 32 * i
        S_ = SUM - 8 * i * 5
        for j in range(8):
            a(f"v_mov_b32 v{S_+j}, 0")
        for q in range(4):
            for j in range(8):
                a(f"v_dot2c_f32_bf16 v{S_+j}, v{Ri+4*j+q}, v{GWv+q}")
        a("s_nop 3")
        for ctl in ("quad_perm:[1,0,3,2]", "quad_perm:[2,3,0,1]", "row_half_mirror"):
            for j in range(8):
                a(f"v_add_f32_dpp v{S_+j}, v{S_+j}, v{S_+j} {ctl} row_mask:0xf bank_mask:0xf")
        for j in range(1, 8):
            a(f"""
            v_cmp_eq_u32 vcc, {j}, v1
            s_nop 1
            v_cndmask_b32 v{S_}, v{S_}, v{S_+j}, vcc
            """)
        if i == 0:
            a("s_waitcnt vmcnt(0)")
            a.ext(plain(nonce_get("NS", 3, 2)))
            a(f"""
            s_mov_b32 s76, s{S_NONCE}
            s_mov_b64 exec, 1
            buffer_store_dword v3, v2, {sr(SRD_WS)}, s3 offen sc1
            s_mov_b64 exec, -1
            """)
            a.ext(stamp(2))
    a(f"""
    buffer_store_dword v{SUM}, v6, {sr(SRD_WS)}, s8 offen sc1
    buffer_store_dword v{SUM-40}, v6, {sr(SRD_WS)}, s12 offen sc1
    s_add_u32 s3, s3, {FG_OFF - FU_OFF}
    s_waitcnt vmcnt(0)
    s_mov_b64 exec, 1
    buffer_store_dword v3, v2, {sr(SRD_WS)}, s3 offen sc1
    s_mov_b64 exec, -1
    s_sub_u32 s3, s3, {FG_OFF}
    s_lshl_b32 s3, s3, 5
    s_add_u32 s3, s3, {FD_OFF}
    """)
    a.ext(stamp(3))
    gemm2_setup(a)
    a(f"s_mov_b32 s{S_NONCE}, s76\ns_waitcnt vmcnt(0)")


def spin(label, loads, checks, sleep=2):
    L = [f"{label}_SPIN:", f"s_sleep {sleep}"]
    L += [("NOCOUNT", x) for x in loads]
    L += ["s_waitcnt vmcnt(0)"]
    L += ["s_sub_u32 s77, s77, 1", "s_cmp_eq_u32 s77, 0", f"s_cbranch_scc1 {label}_OK"]
    L += [f"{label}_CHK:"] + checks
    L += [f"s_cbranch_scc0 {label}_SPIN", f"{label}_OK:"]
    return L


S_NONCE = 23


def nonce_ld(vd, vz):
    return f"global_load_dword v{vd}, v{vz}, s[{S_DBG}:{S_DBG+1}] sc1"


def nonce_get(label, vd, vz, sleep=8):
    L = ["s_mov_b32 s77, 0x100000", f"s_branch {label}_CHK"]
    L += spin(label, [nonce_ld(vd, vz)], [f"v_cmp_ne_u32 vcc, 0, v{vd}", "s_nop 3", "s_cmp_eq_u64 vcc, exec"], sleep)
    L += [f"v_readfirstlane_b32 s{S_NONCE}, v{vd}", "s_nop 3"]
    return L


def plain(lines):
    return [x[1] if isinstance(x, tuple) else x for x in lines]


def gemm2(a0):
    a = Asm()
    NS = 28
    NP = 12
    NR = 16
    DH = 6
    ACC = 192
    WF = 16
    WFR = 128
    HB = 144
    N1 = n1()
    NF = OPT.get("nf", 2)
    PP1 = OPT.get("pp1", 21)
    N2 = OPT.get("n2", 28)

    def acc(t, tt):
        return ACC + 16 * (t + 2 * tt)

    def wload(i):
        sl = i % NR
        return [
            "s_lshl_b32 s14, s11, 14", f"s_add_u32 m0, s8, {sl*2048}", "s_add_u32 s14, s14, s10",
            f"buffer_load_dwordx4 v{VD0}, {sr(SRD_WD)}, s14 offen lds",
            "s_add_u32 s11, s11, 1", "s_cmp_ge_u32 s11, 28", "s_cselect_b32 s11, 0, s11",
            f"buffer_load_dwordx4 v{VD1}, {sr(SRD_WD)}, s14 offen offset:1024 lds",
            ("VMTAG", f"W{i}"),
        ]

    def hload(i):
        sl = i % DH
        return [
            "s_lshl_b32 s13, s12, 10", "s_add_u32 s13, s13, s9",
            f"buffer_load_dwordx4 {v(HB+8*sl,4)}, v{VL16}, {sr(SRD_WS)}, s13 offen sc1",
            "s_add_u32 s13, s13, s22",
            "s_add_u32 s12, s12, 1", "s_cmp_ge_u32 s12, 28", "s_cselect_b32 s12, 0, s12",
            f"buffer_load_dwordx4 {v(HB+8*sl+4,4)}, v{VL16}, {sr(SRD_WS)}, s13 offen sc1",
            ("VMTAG", f"H{i}"),
        ]

    def wfrag(i):
        return WF + 8 * i if i < NP else WFR + 8 * (i & 1)

    def trd(i):
        sl = i % NR
        r = [("VMWAIT", f"W{i}")] if i >= N1 else []
        for t in range(2):
            for h2 in range(2):
                r.append(f"ds_read_b64_tr_b16 {v(wfrag(i)+4*t+2*h2,2)}, v{DA0+t} offset:{sl*2048+h2*1024}")
        return r

    NE = OPT.get("ne", -1)
    a(f"""
    s_setprio 2
    v_mov_b32 v2, 0
    v_mov_b32 v3, s{S_NONCE}
    s_mov_b32 s77, 0x100000
    """)
    pub = f"""
    s_waitcnt vmcnt(0)
    s_mov_b64 exec, 1
    buffer_store_dword v3, v2, {sr(SRD_WS)}, s3 offen sc1
    s_mov_b64 exec, -1
    """
    if NE < 0:
        a(pub)
    a.ext(stamp(5))
    a("s_barrier")
    ph_ld = f"buffer_load_dword v4, v{VPH}, {sr(SRD_WS)}, s15 offen sc1"

    def wl(i):
        a.ext(wload(i))
        if i == PP1:
            a(ph_ld)
            a.tag("P1")
    assert NP <= N1
    first = list(range(NP - max(NE, 0), NP))
    for i in first:
        a.ext(trd(i))
    if NE >= 0:
        a(pub)
    a.ext(stamp(6))
    for i in range(N1, NR):
        wl(i)
    rest = [i for i in range(NP) if i not in first]
    for i in range(NP + 1):
        if i in rest:
            a.ext(trd(i))
        if i >= 1 and NR + i - 1 < N2:
            if i - 1 in rest:
                a(f"s_waitcnt lgkmcnt({4 if i in rest else 0})")
            wl(NR + i - 1)
    a.ext(stamp(7))
    a.wait("P1")
    a("s_branch PH_CHK")
    a.ext(spin("PH", [ph_ld], [f"v_cmp_eq_u32 vcc, s{S_NONCE}, v4", "s_nop 3", "s_cmp_eq_u64 vcc, exec"]))
    a.ext(stamp(8))
    a.ext(bstamp(3, 1))
    for i in range(DH):
        a.ext(hload(i))
    a("s_waitcnt lgkmcnt(0)")

    YR, FL, YT, EG = 80, 2, WFR, 6
    fl_ld = [f"buffer_load_dword v{FL}, v{VFL}, {sr(SRD_WS)}, s16 offen sc1"]
    chk = [f"v_cmp_eq_u32 vcc, s{S_NONCE}, v{FL}", "s_nop 3", "s_cmp_eq_u64 vcc, exec"]

    def yloads():
        return [f"buffer_load_dwordx4 {v(YR,4)}, v{VY}, {sr(SRD_WS)}, s19 offen sc1",
                f"s_add_u32 s13, s19, {8*DP}",
                f"buffer_load_dwordx4 {v(YR+4,4)}, v{VY}, {sr(SRD_WS)}, s13 offen sc1"]

    IF = OPT.get("if", 22)
    IY = OPT.get("iy", 25)
    for i in range(NS):
        sl = i % DH
        a.wait(f"H{i}")
        if i >= NP:
            a("s_waitcnt lgkmcnt(0)")
        hl = hload(i - 1 + DH) if 1 <= i and i - 1 + DH < NS else []
        fill = [(trd(i + 1) if NP <= i + 1 < NS else []) + hl[:3], hl[3:], wload(N2 + i) if N2 + i < NS else [], []]
        k = 0
        for t in range(2):
            for tt in range(2):
                c = "0" if i == 0 else v(acc(t, tt), 16)
                a(f"v_mfma_f32_32x32x16_bf16 {v(acc(t,tt),16)}, {v(wfrag(i)+4*t,4)}, {v(HB+8*sl+4*tt,4)}, {c}")
                a.ext(fill[k])
                k += 1
        if i in (0, 3, 7, 11, 15, 19, 23, 27):
            a.ext(bstamp(3, 2 + (0, 3, 7, 11, 15, 19, 23, 27).index(i)))
        if i == IF:
            a.ext(fl_ld)
            a.tag("F")
        if i == IY:
            a.wait("F")
            a.ext(yloads())
    a.ext(stamp(9))
    a.ext(chk)
    a("s_cbranch_scc1 PY_DONE")
    a.ext(spin("PY", fl_ld, chk))
    a.ext([("NOCOUNT", x) if is_vmem(x) else x for x in yloads()])
    a("PY_DONE:")
    a("s_nop 5")
    for k in range(1, 4):
        for g in range(4):
            a(f"ds_write_b128 v{VW1}, {v(ACC+16*k+4*g,4)} offset:{k*4096+g*1024}")
    X1, Y1 = HB, HB + 16
    OST = {0: "", 1: " sc1", 2: " nt", 3: " sc0 sc1"}[OPT.get("ost", 0)]
    a(f"""
    v_mov_b32 v5, 0xffff0000
    s_waitcnt vmcnt(0)
    ds_write_b128 v{VYW}, {v(YR,4)} offset:16384
    ds_write_b128 v{VYW}, {v(YR+4,4)} offset:17408
    """)
    a("s_waitcnt lgkmcnt(0)")
    a("s_barrier")
    PB = 16
    a(f"ds_read_b32 v{EG}, v{VG}")
    for q in range(4):
        a(f"ds_read_b64_tr_b16 {v(YT+2*q,2)}, v{VYT} offset:{16384+q*512}")
    for k, base in ((1, VR1), (2, VW2), (3, VW3)):
        for g in range(4):
            a(f"ds_read_b128 {v(PB+16*(k-1)+4*g,4)}, v{base} offset:{k*4096+g*1024}")
    a("s_waitcnt lgkmcnt(12)")
    for i in range(8):
        a(f"""
        v_lshlrev_b32 v{Y1+2*i}, 16, v{YT+i}
        v_and_b32 v{Y1+2*i+1}, v5, v{YT+i}
        """)
    a("s_waitcnt lgkmcnt(8)")
    for i in range(0, 16, 2):
        a(f"v_pk_add_f32 {v(ACC+i,2)}, {v(ACC+i,2)}, {v(PB+i,2)}")
    a("s_waitcnt lgkmcnt(0)")
    for i in range(0, 16, 2):
        a(f"v_pk_add_f32 {v(PB+16+i,2)}, {v(PB+16+i,2)}, {v(PB+32+i,2)}")
    for i in range(0, 16, 2):
        a(f"v_pk_add_f32 {v(ACC+i,2)}, {v(ACC+i,2)}, {v(PB+16+i,2)}")
    for i in range(0, 16, 2):
        a(f"v_pk_add_f32 {v(Y1+i,2)}, {v(Y1+i,2)}, {v(ACC+i,2)} neg_lo:[0,1] neg_hi:[0,1]")
    for i in range(0, 16, 2):
        a(f"v_pk_fma_f32 {v(ACC+i,2)}, {v(Y1+i,2)}, {v(EG,2)}, {v(ACC+i,2)} op_sel_hi:[1,0,1]")
    for i in range(8):
        a(f"v_cvt_pk_bf16_f32 v{X1+i}, v{ACC+2*i}, v{ACC+2*i+1}")
    a(f"""
    buffer_store_dwordx4 {v(X1,4)}, v{VEP}, {sr(SRD_OUT)}, 0 offen{OST}
    buffer_store_dwordx4 {v(X1+4,4)}, v{VEP}, {sr(SRD_OUT)}, 0 offen offset:16{OST}
    """)
    a.ext(stamp_end())
    a0.ext(resolve_vm(a.L))


def kwave(gemm_wg):
    sfx = "G" if gemm_wg else "S"
    ra = RA(2, 256)
    pre = Asm()
    main = Asm()
    ph2 = Asm()
    a = pre
    a(f"""
    s_setprio {OPT.get("kprio", 0)}
    s_lshl_b32 s70, s68, 13
    s_add_u32 s70, s70, {KG_BASE}
    """)
    t0 = ra(); t1 = ra(); t2 = ra(); t3 = ra()
    PR = ra(7)
    DV = ra()
    assert PR == K_PR
    if gemm_wg:
        a(f"""
        s_cmp_lg_u32 s69, 0
        s_cbranch_scc1 K{sfx}_NOTAG
        s_memrealtime s[72:73]
        v_mov_b32 v{t0}, 0
        s_waitcnt lgkmcnt(0)
        s_or_b32 s72, s72, 1
        v_mov_b32 v{t1}, s72
        s_mov_b64 exec, 1
        global_store_dword v{t0}, v{t1}, s[{S_DBG}:{S_DBG+1}] sc1
        s_mov_b64 exec, -1
        K{sfx}_NOTAG:
        """)

    WR = ra(8)
    RD = ra(2)
    a(f"""
    v_lshrrev_b32 v{t0}, 1, v0
    v_and_b32 v{t1}, 7, v{t0}
    v_lshlrev_b32 v{t0}, 8, v{t0}
    v_and_b32 v{t2}, 1, v0
    v_lshl_add_u32 v{t0}, v{t2}, 3, v{t0}
    v_add_u32 v{t0}, s70, v{t0}
    """)
    for b in range(8):
        a(f"""
        v_xor_b32 v{t2}, {b}, v{t1}
        v_lshl_add_u32 v{WR+b}, v{t2}, 4, v{t0}
        """)
    a(f"""
    v_and_b32 v{t0}, 15, v0
    v_lshrrev_b32 v{t1}, 4, v0
    """)
    for p in range(2):
        a(f"""
        v_add_u32 v{t2}, {4*p}, v{t1}
        v_xor_b32 v{t3}, v{t2}, v{t0}
        v_lshlrev_b32 v{t3}, 4, v{t3}
        v_lshl_add_u32 v{t3}, v{t2}, 8, v{t3}
        v_add_u32 v{RD+p}, s70, v{t3}
        """)
    TA0 = ra(); TA1 = ra(); TA2 = ra(); TA3 = ra()
    LP = ra(12)
    a(f"""
    v_and_b32 v{t2}, 1, v{t1}
    v_lshrrev_b32 v{t3}, 1, v{t1}
    v_lshlrev_b32 v{TA0}, 5, v{t0}
    v_lshl_add_u32 v{TA0}, v{t2}, 4, v{TA0}
    v_lshl_add_u32 v{TA0}, v{t3}, 9, v{TA0}
    v_lshrrev_b32 v{LP}, 2, v{TA0}
    v_cvt_f32_u32 v{LP}, v{LP}
    v_add_u32 v{TA0}, s70, v{TA0}
    v_add_f32 v{LP+1}, 1.0, v{LP}
    v_add_f32 v{LP+2}, 2.0, v{LP}
    v_add_f32 v{LP+3}, 2.0, v{LP+1}
    v_cmp_gt_u32 vcc, 2, v{t1}
    v_lshlrev_b32 v{TA1}, 4, v{t0}
    v_lshlrev_b32 v{TA2}, 3, v{t0}
    v_cndmask_b32 v{TA1}, v{TA2}, v{TA1}, vcc
    v_lshl_add_u32 v{TA1}, v{t1}, 8, v{TA1}
    v_add_u32 v{TA1}, s70, v{TA1}
    v_add_u32 v{TA1}, 1024, v{TA1}
    v_mov_b32 v{TA2}, 128
    v_cndmask_b32 v{TA2}, v{TA2}, 8, vcc
    v_add_u32 v{TA2}, v{TA2}, v{TA1}
    v_lshlrev_b32 v{TA3}, 2, v{t0}
    v_lshl_add_u32 v{TA3}, v{t1}, 8, v{TA3}
    v_add_u32 v{TA3}, s70, v{TA3}
    """)
    a(f"""
    v_lshlrev_b32 v{t2}, 7, v{t1}
    v_add_u32 v{t2}, 256, v{t2}
    v_lshlrev_b32 v{t3}, 8, v{t1}
    v_cndmask_b32 v{t2}, v{t3}, v{t2}, vcc
    v_lshl_add_u32 v{t2}, v{t0}, 3, v{t2}
    v_cvt_f32_u32 v{LP+4}, v{t2}
    v_mov_b32 v{t2}, 4.0
    v_cndmask_b32 v{t2}, v{t2}, 2.0, vcc
    v_mov_b32 v{t3}, {f32(128.0)}
    v_cndmask_b32 v{t3}, v{t3}, 4.0, vcc
    v_add_f32 v{LP+5}, v{LP+4}, v{t2}
    v_add_f32 v{LP+6}, v{LP+4}, v{t3}
    v_add_f32 v{LP+7}, v{LP+6}, v{t2}
    v_lshlrev_b32 v{t2}, 9, v{t1}
    v_lshl_add_u32 v{t2}, v{t0}, 3, v{t2}
    v_add_u32 v{t2}, 1024, v{t2}
    v_cvt_f32_u32 v{LP+8}, v{t2}
    v_add_f32 v{LP+9}, {f32(128.0)}, v{LP+8}
    v_add_f32 v{LP+10}, {f32(256.0)}, v{LP+8}
    v_add_f32 v{LP+11}, {f32(384.0)}, v{LP+8}
    """)
    EX = ra(10)
    a(f"""
    s_sub_u32 s72, s70, {4*17024}
    v_lshlrev_b32 v{t0}, 3, v0
    v_cvt_f32_u32 v{t1}, v{t0}
    v_cmp_gt_u32 vcc, 16, v0
    v_add_u32 v{EX+8}, s70, v{t0}
    v_lshlrev_b32 v{t0}, 2, v{t0}
    v_add_u32 v{t0}, s70, v{t0}
    v_lshlrev_b32 v{EX+9}, 2, v0
    v_add_u32 v{EX+9}, s70, v{EX+9}
    v_add_u32 v{EX+9}, 2048, v{EX+9}
    """)
    for kk in range(4):
        e0, e1 = EX + 2 * kk, EX + 2 * kk + 1
        a(f"""
        v_add_f32 v{t2}, 1.0, v{t1}
        v_cvt_pk_bf16_f32 v{t3}, v{t1}, v{t2}
        v_add_f32 v{t1}, 2.0, v{t1}
        v_and_b32 v{e0}, 0xffff, v{t3}
        v_lshrrev_b32 v{e1}, 16, v{t3}
        v_lshl_add_u32 v{e0}, v{e0}, 2, s72
        v_lshl_add_u32 v{e1}, v{e1}, 2, s72
        v_add_u32 v{t2}, {8*kk}, v{t0}
        v_add_u32 v{t3}, {8*kk+4}, v{t0}
        v_cndmask_b32 v{e0}, v{e0}, v{t2}, vcc
        v_cndmask_b32 v{e1}, v{e1}, v{t3}, vcc
        """)

    if gemm_wg:
        a.ext(kparam_loads())
    srd(a, SRD_WS, S_WS, WS_BYTES)
    a = main
    a("s_waitcnt vmcnt(0)")
    MASK = ra()
    DT = ra()
    PP = ra(12)
    a(f"""
    v_mov_b32 v{MASK}, 0xffff0000
    v_cmp_eq_u32 vcc, 0, v0
    v_lshlrev_b32 v{DV}, 16, v{DV}
    s_nop 0
    v_cndmask_b32 v{DV}, 0, v{DV}, vcc
    """)
    for i in range(6):
        a(f"v_lshlrev_b32 v{PP+2*i}, 16, v{PR+i}")
        a(f"v_and_b32 v{PP+2*i+1}, v{MASK}, v{PR+i}")
    x = PR + 6
    a(f"""
    v_lshlrev_b32 v{x}, 16, v{x}
    v_mul_f32 v{t0}, {f32(LOG2E_HI)}, v{x}
    s_mov_b32 s72, {f32(LOG2E_HI)}
    v_fma_f32 v{t1}, v{x}, s72, -v{t0}
    v_fmac_f32 v{t1}, {f32(LOG2E_LO)}, v{x}
    v_exp_f32 v{t0}, v{t0}
    v_mul_f32 v{t1}, {f32(LN2)}, v{t1}
    v_fmac_f32 v{t0}, v{t0}, v{t1}
    v_cvt_pk_bf16_f32 v{t0}, v{t0}, v{t0}
    v_lshlrev_b32 v{DT}, 16, v{t0}
    """)
    A2, TH, Br, Bi, Cr, Ci = (PP + 2 * i for i in range(6))
    for m in range(2):
        a(f"""
        v_mul_f32 v{A2+m}, v{DT}, v{A2+m}
        v_mul_f32 v{TH+m}, v{DT}, v{TH+m}
        v_mul_f32 v{Br+m}, v{DT}, v{Br+m}
        v_mul_f32 v{Bi+m}, v{DT}, v{Bi+m}
        v_mul_f32 v{A2+m}, {f32(LOG2E)}, v{A2+m}
        v_mul_f32 v{TH+m}, {f32(INV2PI)}, v{TH+m}
        """)
    W0 = ra(4); W1 = ra(4)
    for m in range(2):
        a(f"""
        v_mul_f32 v{W0+2*m}, v{Cr+m}, v{Br+m}
        v_mul_f32 v{W0+2*m+1}, v{Cr+m}, v{Bi+m}
        v_fma_f32 v{W0+2*m}, -v{Ci+m}, v{Bi+m}, v{W0+2*m}
        v_fmac_f32 v{W0+2*m+1}, v{Ci+m}, v{Br+m}
        v_sub_f32 v{W0+2*m+1}, 0, v{W0+2*m+1}
        """)
    SIG = ra(); WM = ra(); CE = ra()
    a(f"""
    v_max_f32 v{SIG}, v{A2}, v{A2+1}
    v_max3_f32 v{WM}, |v{W0}|, |v{W0+1}|, |v{W0+2}|
    v_max_f32 v{WM}, |v{W0+3}|, v{WM}
    s_nop 1
    """)
    for ctl in ("quad_perm:[1,0,3,2]", "quad_perm:[2,3,0,1]", "row_half_mirror", "row_mirror"):
        a(f"""
        v_max_f32_dpp v{SIG}, v{SIG}, v{SIG} {ctl} row_mask:0xf bank_mask:0xf
        v_max_f32_dpp v{WM}, v{WM}, v{WM} {ctl} row_mask:0xf bank_mask:0xf
        s_nop 0
        """)
    a(f"""
    v_readlane_b32 s72, v{SIG}, 0
    v_readlane_b32 s73, v{SIG}, 16
    v_readlane_b32 s74, v{SIG}, 32
    v_readlane_b32 s75, v{SIG}, 48
    v_readlane_b32 s6, v{WM}, 0
    v_readlane_b32 s7, v{WM}, 16
    v_readlane_b32 s8, v{WM}, 32
    v_readlane_b32 s9, v{WM}, 48
    v_max_f32 v{SIG}, s72, v{SIG}
    v_max_f32 v{SIG}, s73, v{SIG}
    v_max_f32 v{SIG}, s74, v{SIG}
    v_max_f32 v{SIG}, s75, v{SIG}
    v_max_f32 v{WM}, s6, v{WM}
    v_max_f32 v{WM}, s7, v{WM}
    v_max_f32 v{WM}, s8, v{WM}
    v_max_f32 v{WM}, s9, v{WM}
    v_sub_f32 v{A2}, v{A2}, v{SIG}
    v_sub_f32 v{A2+1}, v{A2+1}, v{SIG}
    v_frexp_exp_i32_f32 v{CE}, v{WM}
    v_sub_u32 v{t0}, 14, v{CE}
    v_subrev_u32 v{CE}, 29, v{CE}
    """)
    for i in range(4):
        a(f"v_ldexp_f32 v{W0+i}, v{W0+i}, v{t0}")

    def cexp(l):
        r = ra(6)
        for m in range(2):
            a(f"""
            v_mul_f32 v{t0}, {f32(float(l))}, v{A2+m}
            v_mul_f32 v{t1}, {f32(float(l))}, v{TH+m}
            v_exp_f32 v{t0}, v{t0}
            v_fract_f32 v{t1}, v{t1}
            v_cos_f32 v{t2}, v{t1}
            v_sin_f32 v{t3}, v{t1}
            s_nop 0
            v_mul_f32 v{r+2*m}, v{t0}, v{t2}
            v_mul_f32 v{r+2*m+1}, v{t0}, v{t3}
            v_sub_f32 v{r+4+m}, 0, v{r+2*m+1}
            """)
        return r

    def cmul(d, x_, b, conj=False):
        for m in range(2):
            br, bi, nbi = b + 2 * m, b + 2 * m + 1, b + 4 + m
            if conj:
                bi, nbi = nbi, bi
            a(f"""
            v_mul_f32 v{d+2*m}, v{x_+2*m}, v{br}
            v_mul_f32 v{d+2*m+1}, v{x_+2*m}, v{bi}
            v_fmac_f32 v{d+2*m}, v{x_+2*m+1}, v{nbi}
            v_fmac_f32 v{d+2*m+1}, v{x_+2*m+1}, v{br}
            """)

    def neg(b):
        for m in range(2):
            a(f"v_sub_f32 v{b+4+m}, 0, v{b+2*m+1}")

    def scale(d, x_):
        for i in range(4):
            a(f"v_mul_f32 v{d+i}, {f32(32768.0)}, v{x_+i}")

    VB = [ra(32, 4), ra(32, 4), ra(32, 4), ra(18, 4)]
    CH0 = ra(0, 4)

    def put(batch, row, r):
        h = VB[batch] + 2 * row
        if r is None:
            a(f"v_mov_b32 v{h}, 0x7800\nv_mov_b32 v{h+1}, 0x7800")
        else:
            a(f"""
            v_cvt_pk_f16_f32 v{h}, v{r}, v{r+1}
            v_cvt_pk_f16_f32 v{h+1}, v{r+2}, v{r+3}
            """)

    E8 = cexp(8)
    cur, nxt = W0, W1
    for c in range(16):
        if c < 15:
            cmul(nxt, cur, E8, conj=True)
        put(0, c, cur)
        cur, nxt = nxt, cur
    E1 = cexp(1)
    Q1 = cexp(128)
    Q8 = cexp(1024)
    P = {}
    P[1] = ra(4)
    scale(P[1], E1)
    for j in range(2, 8):
        P[j] = ra(6 if j == 4 else 4)
        cmul(P[j], P[j - 1], E1)
    put(1, 0, None)
    for j in range(1, 8):
        put(1, j, P[j])
    scale(W0, Q1)
    put(1, 8, W0)
    for j in range(1, 8):
        cmul(W0, P[j], Q1)
        put(1, 8 + j, W0)
    Q = {1: Q1, 8: Q8}
    for j in range(2, 8):
        Q[j] = {2: E1, 3: PP + 4}[j] if j < 4 else P[2 * (j - 4) + 1]
        cmul(Q[j], Q[j - 1], Q1)
    neg(P[4]); neg(Q[2]); neg(Q[3])
    for qi, j in enumerate((2, 3)):
        scale(W0, Q[j])
        put(2, 4 * qi, W0)
        for r in range(1, 4):
            cmul(W0, P[2 * r], Q[j])
            put(2, 4 * qi + r, W0)
    for aa in range(4):
        scale(W0, Q[4 + aa])
        put(2, 8 + 2 * aa, W0)
        cmul(W0, Q[4 + aa], P[4])
        put(2, 8 + 2 * aa + 1, W0)
    a(f"v_mov_b32 v{PR}, 0")
    a(nonce_ld(PR + 1, PR))
    QS = E8
    scale(QS, Q8)
    neg(QS)
    put(3, 0, QS)
    for j in range(1, 8):
        cmul(W0, Q[j], QS)
        put(3, j, W0)
    cmul(W0, Q8, QS)
    put(3, 8, W0)
    for i in range(12):
        a(f"v_mul_f32 v{LP+i}, v{SIG}, v{LP+i}")
    for i in range(12):
        a(f"v_exp_f32 v{LP+i}, v{LP+i}")

    a = ph2
    YF = CH0
    AC = CH0 + 32
    assert AC + 12 <= ra.p

    def wr(batch, nrows):
        for row in range(nrows):
            a(f"ds_write_b64 v{WR+(row&7)}, {v(VB[batch]+2*row,2)} offset:{(row>>3)*128}")

    def fetch(F):
        for ks in range(8):
            a(f"ds_read_b128 {v(F+4*ks,4)}, v{RD+(ks&1)} offset:{(ks>>1)*2048}")

    def mfmas(tile, XF):
        for ks in range(8):
            c = "0" if ks == 0 else v(AC + 4 * tile, 4)
            a(f"v_mfma_f32_16x16x32_f16 {v(AC+4*tile,4)}, {v(XF+4*ks,4)}, {v(YF+4*ks,4)}, {c}")

    a("s_waitcnt vmcnt(0)")
    ng = plain(nonce_get(f"NK{sfx}", PR + 1, PR))
    a(f"v_mov_b32 v{t2}, {N_LDS}")
    a(f"ds_write_b32 v{t2}, v{PR+1}")
    wr(0, 16); fetch(YF)
    wr(1, 16); fetch(VB[0])
    wr(2, 16); fetch(VB[1])
    a("s_waitcnt lgkmcnt(15)")
    mf0 = len(a.L)
    wr(3, 9); fetch(VB[2])
    tail = a.L[mf0:]
    del a.L[mf0:]
    m = Asm()
    sv, a = a, m
    mfmas(0, VB[0])
    a = sv
    for i in range(8):
        a.ext(tail[2 * i:2 * i + 2])
        a(m.L[i])
    a.ext(tail[16:])
    a("s_waitcnt lgkmcnt(15)")
    mfmas(1, VB[1])
    a("s_waitcnt lgkmcnt(0)")
    mfmas(2, VB[2])
    a("s_nop 3")
    for i in range(12):
        a(f"v_mul_f32 v{AC+i}, v{AC+i}, v{LP+i}")
    for i in range(12):
        a(f"v_ldexp_f32 v{AC+i}, v{AC+i}, v{CE}")
    a(f"v_add_f32 v{AC}, v{AC}, v{DV}")
    a(f"ds_write_b128 v{TA0}, {v(AC,4)}")
    a(f"ds_write_b64 v{TA1}, {v(AC+4,2)}")
    a(f"ds_write_b64 v{TA2}, {v(AC+6,2)}")
    for r in range(4):
        a(f"ds_write_b32 v{TA3}, v{AC+8+r} offset:{2048+64*r}")
    G0 = VB[0]
    OUT = VB[1]
    for i in range(8):
        a(f"ds_read_b32 v{G0+i}, v{EX+i}")
    a(f"""
    ds_read_b64 {v(G0+8,2)}, v{EX+8} offset:1536
    ds_read_b32 v{G0+10}, v{EX+8} offset:1544
    ds_read2_b32 {v(G0+12,2)}, v{EX+9} offset0:0 offset1:1
    ds_read2_b32 {v(G0+14,2)}, v{EX+9} offset0:64 offset1:65
    v_lshlrev_b32 v{t0}, 4, v0
    v_add_u32 v{t0}, s70, v{t0}
    v_and_b32 v{t1}, 3, v0
    v_lshlrev_b32 v{t1}, 4, v{t1}
    v_add_u32 v{t1}, s70, v{t1}
    v_mov_b32 v{OUT+16}, 0
    v_mov_b32 v{OUT+17}, 0
    v_mov_b32 v{OUT+18}, 0
    v_mov_b32 v{OUT+19}, 0
    s_mov_b32 s72, 0xaaaaaaaa
    s_mov_b32 s73, 0xaaaaaaaa
    ds_write_b128 v{t1}, {v(OUT+16,4)} offset:{KARR}
    s_waitcnt lgkmcnt(0)
    """)
    for k in range(4):
        a(f"v_cvt_pk_bf16_f32 v{OUT+k}, v{G0+2*k}, v{G0+2*k+1}")
    a(f"""
    v_cvt_pk_bf16_f32 v{OUT+4}, v{G0+8}, v{G0+8}
    v_cvt_pk_bf16_f32 v{OUT+5}, v{G0+8}, v{G0+9}
    v_cvt_pk_bf16_f32 v{OUT+6}, v{G0+9}, v{G0+9}
    v_cvt_pk_bf16_f32 v{OUT+7}, v{G0+10}, v{G0+10}
    """)
    for it in (2, 3):
        T0, T1 = G0 + 8 + 2 * it, G0 + 9 + 2 * it
        o = OUT + 4 * it
        a(f"""
        v_cndmask_b32 v{t2}, v{T0}, v{T1}, s[72:73]
        v_cvt_pk_bf16_f32 v{o}, v{T0}, v{T0}
        v_cvt_pk_bf16_f32 v{o+1}, v{T0}, v{T0}
        v_cvt_pk_bf16_f32 v{o+2}, v{t2}, v{T1}
        v_cvt_pk_bf16_f32 v{o+3}, v{T1}, v{T1}
        """)
    a(f"v_mov_b32 v{t2}, 0")
    for it in range(4):
        a(f"ds_write_b128 v{t0}, {v(OUT+4*it,4)} offset:{KARR+64+1024*it}")
    if OPT.get("dbgk"):
        a(f"""
        s_lshl_b32 s72, s69, 12
        s_add_u32 s72, s72, {KX_OFF}
        v_lshlrev_b32 v{t0}, 4, v0
        """)
        for it in range(4):
            a(f"buffer_store_dwordx4 {v(OUT+4*it,4)}, v{t0}, {sr(SRD_WS)}, s72 offen offset:{1024*it}")
    a("s_waitcnt vmcnt(0) lgkmcnt(0)")
    ph2.L[1:1] = ["\n    ".join(ng)]

    out = list(pre.L)
    out.extend(stamp(1))
    kx = OPT.get("kx", 0)
    if kx == 1:
        ph2.L = []
    elif kx == 2:
        ph2.L = [x for x in ph2.L if not x.startswith("v_mfma")]
    elif kx == 3:
        ph2.L = [x for x in ph2.L if not x.startswith("ds_write")]
    elif kx == 4:
        ph2.L = [x for x in ph2.L if not x.startswith("ds_read")]
    elif kx == 5:
        L2 = []
        for x in ph2.L:
            L2.append(x)
            if x.startswith("ds_write_b64"):
                L2.append("s_nop 3")
        ph2.L = L2
    if gemm_wg:
        per = OPT.get("kper", 132)
        first = OPT.get("kfirst", 0)
        p2a = OPT.get("kp2a", 48)
        p2b = OPT.get("kp2b", 100)
        pos = min(first, len(main.L))
        out.extend(main.L[:pos])
        for sidx in range(9):
            out.extend(bstamp(2, 1 + sidx))
            out.append("s_barrier")
            if sidx < 6:
                end = len(main.L) if sidx == 5 else min(pos + per, len(main.L))
                out.extend(main.L[pos:end])
                pos = end
            elif sidx == 6:
                out.extend(ph2.L[:p2a])
            elif sidx == 7:
                out.extend(ph2.L[p2a:p2b])
            else:
                out.extend(ph2.L[p2b:])
        out.extend(stamp(2))
    else:
        ks1 = OPT.get("ks1", 250)
        out.extend(main.L[:ks1])
        out.append("s_barrier")
        out.extend(main.L[ks1:])
        out.extend(ph2.L)
        out.extend(stamp(2))
    out.append("s_mov_b32 s6, s68")
    out.append("s_branch L_CONVB")
    return out


def fu_code(vaddr, vtmp, vdst, sd):
    setup = [f"s_lshr_b32 s16, s{sd}, 7", "s_lshl_b32 s16, s16, 7", f"s_lshr_b32 s17, s{sd}, 3", "s_and_b32 s17, s17, 8",
             "s_add_u32 s16, s16, s17", f"s_add_u32 s16, s16, {FU_OFF}",
             f"v_and_b32 v{vaddr}, 7, v0", f"v_lshlrev_b32 v{vaddr}, 9, v{vaddr}"]
    ld = [f"buffer_load_dwordx2 v[{vdst}:{vdst+1}], v{vaddr}, {sr(SRD_WS)}, s16 offen sc1"]
    chk = [f"v_cmp_eq_u32 vcc, s{S_NONCE}, v{vdst}", f"v_cmp_eq_u32 s[50:51], s{S_NONCE}, v{vdst+1}", "s_nop 3",
           "s_and_b64 vcc, vcc, s[50:51]", "s_cmp_eq_u64 vcc, exec"]
    return setup, ld, chk


def u_dma(vl16, sd):
    L = [f"s_mul_i32 s52, s6, {USZ}", f"s_mul_i32 s53, s{sd}, {DP}", f"s_add_u32 s53, s53, {UT_OFF}"]
    for r in range(4):
        L += [f"s_add_u32 m0, s52, {U_BASE + r*UPITCH + 112}", "s_nop 0",
              f"buffer_load_dwordx4 v{vl16}, {sr(SRD_WS)}, s53 offen sc1 lds", "s_add_u32 s53, s53, 1024"]
    return L


def lwave(gemm_wg):
    sfx = "G" if gemm_wg else "S"
    a = Asm()
    XV, WV, VL, VC = 8, 12, 2, 16
    t0, t1, t2 = 3, 4, 5
    DUM = 24
    ROT = OPT.get("rot", 0)
    FL8 = OPT.get("fl8", 1)
    SW = 12
    a("s_setprio 3")

    def kofs(st):
        if not ROT:
            return []
        return [f"s_add_u32 s18, s{S_PHI}, {st}", "s_and_b32 s18, s18, 7", f"s_mul_i32 s19, s18, {64*3584}",
                "s_lshl_b32 s18, s18, 7"]

    def grp(st, g):
        sl = st % 3
        if g in (1, 5):
            j = 0 if g == 1 else 1
            L = [f"s_add_u32 m0, s{10+j}, {sl*SLOT}", f"s_add_u32 s22, s{8+j}, {'s18' if ROT else st*128}"]
            L += [f"buffer_load_dwordx4 v{XV+i}, {sr(SRD_X)}, s22 offen offset:{1024*i} lds" for i in range(4)]
        else:
            j = 0 if g == 0 else g - 1
            L = [f"s_add_u32 m0, s{72+j}, {sl*SLOT}", f"s_add_u32 s22, s{68+j}, {'s19' if ROT else st*64*3584}"]
            L += [f"buffer_load_dwordx4 v{WV+i}, {sr(SW)}, s22 offen offset:{1024*i} lds" for i in range(4)]
        return L

    def pref(st):
        L = [f"s_add_u32 s22, s68, {st*64*3584}"]
        L += [f"buffer_load_dwordx4 {v(DUM+4*i,4)}, v{WV+i}, {sr(SW)}, s22 offen offset:{1024*i}" for i in range(4)]
        L += [f"s_add_u32 s22, s23, {st*128}"]
        L += [f"buffer_load_dwordx4 {v(DUM+16+4*i,4)}, v{XV+i}, {sr(SRD_X)}, s22 offen offset:{1024*i}" for i in range(2)]
        return L

    fu_setup, fu_ld, fu_chk = fu_code(t1, t2, VC, 7)

    def poll_setup():
        a(f"""
        s_lshl_b32 s7, s2, 1
        s_add_u32 s7, s7, s6
        v_lshlrev_b32 v{VL}, 4, v0
        s_mov_b32 s77, 0x100000
        """)
        a.ext(fu_setup)

    STG = 24
    assert STG + 16 * n1() <= 256

    def wd_setup():
        a(f"""
        v_lshrrev_b32 v20, 3, v0
        v_and_b32 v21, 7, v0
        v_lshrrev_b32 v22, 1, v20
        v_and_b32 v22, 1, v22
        v_lshlrev_b32 v22, 2, v22
        v_xor_b32 v21, v21, v22
        v_lshlrev_b32 v18, 10, v20
        v_lshl_add_u32 v18, v21, 4, v18
        v_add_u32 v19, 8192, v18
        """)
        a(cb64_scalar(17, 3))
        a(f"""
        s_lshl_b32 s17, s17, 7
        s_mul_i32 s3, s6, {3*28*16384}
        s_add_u32 s3, s3, s17
        s_sub_u32 s48, 2, s6
        s_lshl_b32 s49, s48, 15
        v_add_u32 v1, s49, v{VL}
        s_mul_i32 s48, s48, {28*16384}
        s_add_u32 s48, s48, s17
        s_mul_i32 s17, s6, {3*RING2}
        v_add_u32 v7, s17, v{VL}
        """)
        a(rot_scalar(76, 17))
        a("s_mov_b32 s49, s76")

    wpos = [0, 0]
    wwp = [0, 0]

    def wd_ld(g, n):
        sb, ss = ((3, 76), (48, 49))[g]
        for _ in range(n):
            i = wpos[g]
            if i >= n1():
                break
            wpos[g] += 1
            R = STG + 8 * (g * n1() + i)
            a(f"""
            s_lshl_b32 s22, s{ss}, 14
            s_add_u32 s22, s22, s{sb}
            buffer_load_dwordx4 {v(R,4)}, v18, {sr(SRD_WD)}, s22 offen
            s_add_u32 s{ss}, s{ss}, 1
            s_cmp_ge_u32 s{ss}, 28
            s_cselect_b32 s{ss}, 0, s{ss}
            buffer_load_dwordx4 {v(R+4,4)}, v19, {sr(SRD_WD)}, s22 offen
            """)
            a.tag(f"wd{g}_{i}")

    def wd_wr(g, n):
        for i in range(wwp[g], min(n1(), wwp[g] + n)):
            wwp[g] = i + 1
            R = STG + 8 * (g * n1() + i)
            a.wait(f"wd{g}_{i}")
            for k in range(2):
                a(f"ds_write_b128 v{(7, 1)[g]}, {v(R+4*k,4)} offset:{i*2048 + k*1024}")

    def u_load():
        a(f"""
        s_cselect_b32 s19, {0 if OPT.get("forceslow") else 1}, 0
        s_mul_i32 s18, s6, {USZ}
        s_add_u32 s18, s18, {U_BASE}
        v_mov_b32 v20, 0
        v_mov_b32 v21, 0
        v_mov_b32 v22, 0
        v_mov_b32 v23, 0
        v_and_b32 v{t2}, 7, v0
        v_lshrrev_b32 v6, 3, v0
        v_and_b32 v6, 3, v6
        v_min_u32 v{t2}, 6, v{t2}
        v_mul_u32_u24 v6, {UPITCH}, v6
        v_lshl_add_u32 v{t2}, v{t2}, 4, v6
        v_add_u32 v{t2}, s18, v{t2}
        ds_write_b128 v{t2}, v[20:23]
        s_lshl_b32 s18, s6, 2
        s_add_u32 s18, s18, {S_LDS}
        v_mov_b32 v{t2}, s18
        v_mov_b32 v6, s19
        ds_write_b32 v{t2}, v6
        s_cmp_eq_u32 s19, 0
        s_cbranch_scc1 NOU{sfx}
        """)
        a.ext([("NOCOUNT", x) if is_vmem(x) else x for x in u_dma(VL, 7)])
        a(f"NOU{sfx}:")

    if gemm_wg:
        def wgrp(j):
            a(f"""
            s_add_u32 s17, s18, {j}
            s_and_b32 s17, s17, 3
            s_mul_i32 s{68+j}, s17, {16*3584}
            s_add_u32 s{68+j}, s{68+j}, s23
            s_lshl_b32 s{72+j}, s17, 12
            s_add_u32 s{72+j}, s{72+j}, s16
            """)
        a(f"""
        v_lshrrev_b32 v{t0}, 4, v0
        v_and_b32 v{t1}, 15, v0
        s_mov_b32 s18, s68
        s_mov_b32 s19, s69
        v_lshlrev_b32 v{t2}, 2, v{t0}
        s_lshl_b32 s23, s{S_CB}, 8
        v_xor_b32 v{t1}, v{t1}, v{t2}
        s_lshl_b32 s16, s6, 14
        v_mul_u32_u24 v{t0}, 3584, v{t0}
        s_add_u32 s16, s16, 16384
        v_lshl_add_u32 v{WV}, v{t1}, 4, v{t0}
        s_mov_b32 s{SW+2}, {512*1792*2}
        s_mov_b32 s{SW+3}, 0x00020000
        """)
        for i in range(1, 4):
            a(f"v_add_u32 v{WV+i}, {(4*3584-1024)*i}, v{WV}")
        wgrp(0)
        a.ext(bstamp(6, 1))
        a(f"""
        s_cmp_eq_u32 s6, 0
        s_waitcnt lgkmcnt(0)
        s_cselect_b32 s{SW}, s{S_WG}, s{S_WU}
        s_cselect_b32 s{SW+1}, s{S_WG+1}, s{S_WU+1}
        s_and_b32 s{SW+1}, s{SW+1}, 0xffff
        """)
        assert not ROT
        a.ext(bstamp(6, 2))
        a.ext(grp(0, 0))
        wgrp(1)
        a.ext(grp(0, 2))
        wgrp(2)
        a.ext(grp(0, 3))
        wgrp(3)
        a.ext(grp(0, 4))
        a(f"""
        v_lshrrev_b32 v{t0}, 3, v0
        v_and_b32 v{t1}, 7, v0
        v_lshrrev_b32 v{t2}, 1, v{t0}
        v_xor_b32 v{t1}, v{t1}, v{t2}
        v_lshlrev_b32 v{t0}, 10, v{t0}
        """)
        for i in range(4):
            a(f"""
            v_xor_b32 v{t2}, {4*(i&1)}, v{t1}
            v_lshl_add_u32 v{XV+i}, v{t2}, 4, v{t0}
            v_add_u32 v{XV+i}, {7168*i}, v{XV+i}
            """)
        a(f"""
        s_and_b32 s17, s19, 1
        s_lshl_b32 s17, s17, 1
        s_add_u32 s17, s17, s6
        s_lshl_b32 s16, s{S_RB}, 17
        s_lshl_b32 s8, s17, 15
        s_add_u32 s8, s8, s16
        s_lshl_b32 s10, s17, 12
        s_xor_b32 s17, s17, 2
        s_lshl_b32 s9, s17, 15
        s_add_u32 s9, s9, s16
        s_lshl_b32 s11, s17, 12
        s_mov_b32 s{SRD_X}, s{S_U}
        s_and_b32 s{SRD_X+1}, s{S_U+1}, 0xffff
        s_mov_b32 s{SRD_X+2}, {2048*512*2}
        s_mov_b32 s{SRD_X+3}, 0x00020000
        """)
        a.ext(grp(0, 1))
        a.ext(grp(0, 5))
        a.tag("st0")
        a(f"""
        s_lshl_b32 s22, s19, 1
        s_add_u32 s22, s22, s6
        s_and_b32 s22, s22, 7
        s_lshl_b32 s23, s22, 14
        s_add_u32 s23, s23, s16
        """)
        tail = {3: "S5 R5", 4: "S6 R6", 5: "S7 R7"}
        scheds = [
            {-1: "S0 S1 S2 R0 P3 P4", 0: "R1 P5 P6", 1: "R2 P7 S3", 2: "R3 S4 R4"},
            {-1: "S0 S1 S2 R0 R1", 0: "P3 P4 R2", 1: "P5 P6 P7 S3 R3", 2: "S4 R4"},
            {-1: "S0 R0 S1 R1", 0: "S2 R2", 1: "S3 R3", 2: "S4 R4"},
            {-1: "S0 R0 S1", 0: "R1 S2", 1: "R2 S3", 2: "R3 S4 R4"},
            {-1: "S0 R0 S1 S2 P3", 0: "R1 P4 P5", 1: "R2 P6 P7 S3", 2: "R3 S4 R4"},
            {-1: "S0 R0 S1 S2", 0: "R1 R2", 1: "S3 R3", 2: "S4 R4"},
            {-1: "S0 R0 S1 S2", 0: "R1 R2", 1: "S3 R3 P5", 2: "S4 R4 P6 P7"},
            {-1: "S0 R0 S1 S2", 0: "R1 R2 P3", 1: "S3 R3 P4 P5", 2: "S4 R4 P6 P7"},
            {-1: "S0 R0 S1 R1", 0: "S2", 1: "R2 S3", 2: "R3 S4 R4"},
            {-1: "S0 R0 S1 R1", 0: "S2", 1: "R2 S3 R3", 2: "S4 R4"},
            {-1: "S0 R0 S1 S2", 0: "R1", 1: "R2 S3 R3", 2: "S4 R4"},
        ]
        sched = dict(scheds[OPT.get("lsched", 5)])
        sched.update(tail)
        MP = OPT.get("mp", 1)
        NPF = OPT.get("np", -2)
        if NPF >= -1:
            sched[NPF] += " N0"
        if MP >= 0:
            sched[MP] += " M0"

        def issue(k):
            for tok in sched.get(k, "").split():
                st = int(tok[1:])
                if tok[0] == "S":
                    a.ext(kofs(st) + grp(st, 0) + grp(st, 1))
                elif tok[0] == "R":
                    a.ext(kofs(st))
                    for g in (2, 5, 3, 4):
                        a.ext(grp(st, g))
                    a.tag(f"st{st}")
                elif tok[0] == "P":
                    assert not ROT
                    a.ext(pref(st))
                elif tok[0] == "N":
                    a(f"""
                    s_mul_i32 s22, s{S_XCD}, 28
                    s_add_u32 s22, s22, s{S_IDX}
                    s_mul_i32 s22, s22, 5120
                    s_add_u32 s22, s22, {192*3584}
                    v_lshlrev_b32 v{VL}, 4, v0
                    s_add_u32 s17, s22, 4096
                    """)
                    for i in range(4):
                        a(f"buffer_load_dwordx4 {v(DUM+16+4*i,4)}, v{VL}, {sr(SW)}, s22 offen offset:{1024*i}")
                    a(f"buffer_load_dwordx4 {v(DUM+32,4)}, v{VL}, {sr(SW)}, s17 offen")
                elif tok[0] == "M":
                    a(f"""
                    s_mul_i32 s22, s{S_XCD}, 28
                    s_add_u32 s22, s22, s{S_IDX}
                    s_lshl_b32 s22, s22, 1
                    s_add_u32 s22, s22, s6
                    s_lshl_b32 s22, s22, 12
                    """)
                    for i in range(4):
                        a(f"buffer_load_dwordx4 {v(DUM+4*i,4)}, v{VL}, {sr(SRD_WD)}, s22 offen offset:{1024*i}")
        sched[-1] = sched[-1].replace("S0", "").replace("R0", "")
        issue(-1)
        a.ext(bstamp(6, 4))
        a.ext(stamp(1))
        srd(a, SRD_WS, S_WS, WS_BYTES)
        srd(a, SRD_WD, S_WD, 1792 * 512 * 2)
        poll_setup()
        for sidx in range(9):
            if sidx < 8:
                a.wait(f"st{sidx}")
            a.ext(bstamp(2, 1 + sidx))
            if sidx < 4:
                a.ext(bstamp(6, 5 + sidx))
            a("s_barrier")
            if sidx in (0, 3):
                a.ext(stamp(2 + (0, 3).index(sidx)))
            issue(sidx)
            if sidx == 2:
                wd_setup()
            if sidx == 6:
                a(f"s_setprio {OPT.get('lprio', 1)}")
            if 2 <= sidx <= 7:
                n = OPT.get(f"w{sidx}", {2: 0, 3: 0, 4: 0, 5: 6, 6: 11, 7: 11}[sidx])
                k = min(n, n1() - wpos[0])
                wd_ld(0, k)
                wd_ld(1, n - k)
            if sidx == 7:
                a.ext(fu_ld)
                a.tag("fu")
            if sidx == 8:
                a.ext(stamp(4))
                a(f"v_mov_b32 v6, {N_LDS}\nds_read_b32 v6, v6")
                wd_ld(0, 28)
                wd_ld(1, 28)
                wd_wr(0, OPT.get("e8", 6))
                a("s_waitcnt vmcnt(0)")
                a.L.append(("VMRESET",))
                a(f"s_waitcnt lgkmcnt(0)\nv_readfirstlane_b32 s{S_NONCE}, v6\ns_nop 3")
                a.ext(fu_chk)
                u_load()
                wd_wr(0, 28)
                wd_wr(1, 28)
        a("s_waitcnt vmcnt(0) lgkmcnt(0)")
        a.ext(stamp(5))
    else:
        a("s_waitcnt lgkmcnt(0)")
        srd(a, SRD_WS, S_WS, WS_BYTES)
        srd(a, SRD_WD, S_WD, 1792 * 512 * 2)
        poll_setup()
        wd_setup()
        a(f"v_mov_b32 v{t0}, 0")
        a("s_barrier")
        thr = OPT.get("sthr", 2)
        if thr:
            for _ in range(thr):
                wd_ld(0, 2)
                a("s_waitcnt vmcnt(0)")
        wd_ld(0, 28)
        wd_ld(1, 28)
        a(nonce_ld(6, t0))
        a.ext(fu_ld)
        wd_wr(0, 28)
        a("s_waitcnt vmcnt(0)")
        a.L.append(("VMRESET",))
        a.ext(stamp(4))
        a.ext(nonce_get(f"NL{sfx}", 6, t0))
        a.ext(fu_chk)
        u_load()
        wd_wr(1, 28)
        a("s_waitcnt vmcnt(0) lgkmcnt(0)")
        a.ext(stamp(5))
    a("s_branch L_CONVA")
    return resolve_vm(a.L)


def conv(a0, partB):
    a = Asm()
    KA, UA, YA = 2, 3, 5
    qs, outq = ([5, 6, 7], [6, 7]) if partB else ([0, 1, 2, 3, 4, 5], [0, 1, 2, 3, 4, 5])
    a(f"""
    s_lshl_b32 s8, s6, 13
    s_add_u32 s8, s8, {KG_BASE + KARR + 32}
    s_mul_i32 s9, s6, {USZ}
    s_add_u32 s9, s9, {U_BASE + 16}
    v_lshrrev_b32 v6, 2, v0
    v_and_b32 v10, 7, v6
    v_and_b32 v6, 3, v6
    v_and_b32 v7, 3, v0
    v_lshrrev_b32 v8, 4, v0
    v_and_b32 v8, 1, v8
    v_lshrrev_b32 v9, 5, v0
    v_mul_u32_u24 v{UA}, {UPITCH}, v7
    v_sub_u32 v10, v10, v9
    v_lshl_add_u32 v{UA}, v10, 4, v{UA}
    v_add_u32 v{UA}, s9, v{UA}
    v_lshlrev_b32 v{KA}, 5, v8
    v_lshl_add_u32 v{KA}, v7, 3, v{KA}
    v_lshl_add_u32 v{KA}, v9, 6, v{KA}
    v_lshlrev_b32 v10, 3, v6
    v_sub_u32 v{KA}, v{KA}, v10
    v_add_u32 v{KA}, s8, v{KA}
    """)
    qmax = max(qs)
    nst = 4 * qmax + 4
    NU = 4
    UBUF = 8
    KT = 24
    ACC = KT + 4 * nst
    TMP = ACC + 16 * len(qs)
    assert TMP + 3 * len(qs) + 1 <= 256

    def acc(q):
        return ACC + 16 * qs.index(q)

    need = {}
    for i in range(nst):
        for q in qs:
            s_ = 4 * q + 3 - i
            if s_ >= 0 and s_ not in need:
                need[s_] = i

    def rd(i):
        L = [f"ds_read_b128 {v(UBUF+4*(i%NU),4)}, v{UA} offset:{32*i}"]
        for s_ in sorted(s for s in need if need[s] == i):
            L += [f"ds_read_b64_tr_b16 {v(KT+4*s_,2)}, v{KA} offset:{128*s_+32}",
                  f"ds_read_b64_tr_b16 {v(KT+4*s_+2,2)}, v{KA} offset:{128*s_}"]
        L.append(("LTAG", f"R{i}"))
        return L

    PF = NU - 1
    a(f"""
    v_and_b32 v4, 7, v0
    v_lshrrev_b32 v{YA}, 3, v0
    v_lshlrev_b32 v{YA}, 4, v{YA}
    v_lshl_add_u32 v{YA}, v4, 7, v{YA}
    v_mov_b32 v6, 0
    v_mov_b32 v7, s{S_NONCE}
    s_mov_b32 s12, 0
    s_mov_b32 s13, 0x80000000
    s_mov_b32 s14, 0
    s_mov_b32 s15, 0xc0000000
    s_mov_b32 s16, 0
    s_mov_b32 s17, 0xe0000000
    s_lshl_b32 s7, s2, 1
    s_add_u32 s7, s7, s6
    s_mul_i32 s18, s7, {DP}
    s_add_u32 s18, s18, {Y_OFF}
    s_lshl_b32 s19, s2, 4
    s_add_u32 s19, s19, s6
    s_lshl_b32 s19, s19, 3
    s_add_u32 s19, s19, {FY_OFF + (4 if partB else 0)}
    """)
    a(f"s_setprio {OPT.get('cprio', 3)}")
    P = "B" if partB else "A"
    a(f"""
    s_lshl_b32 s52, s6, 2
    s_add_u32 s52, s52, {S_LDS}
    v_mov_b32 v4, s52
    """)
    a("s_barrier")
    a.ext(stamp(6))
    a("ds_read_b32 v4, v4")
    a.L.append(("LTAG", "ST"))
    a(f"CV{P}_GO:")
    a.ext(rd(0))
    a.L.append(("LWAIT", "ST"))
    a(f"""
    v_readfirstlane_b32 s52, v4
    s_nop 3
    s_cmp_eq_u32 s52, 0
    s_cbranch_scc1 CV{P}_SLOW
    """)
    a.ext(rd(1))

    def Y(q, g, rho):
        return acc(q) + 4 * g + rho

    dpp = "wave_ror:1 row_mask:0xf bank_mask:0xf"
    ctl = "row_mask:0xf bank_mask:0xf"

    def post(q):
        L = []
        Z = {}
        for g in (3, 2, 1, 0):
            for rho in (1, 2, 3):
                Z[g, rho] = TMP + 3 * qs.index(q) + rho - 1 if g == 3 else Y(q, g, rho)
                if g > 0:
                    prev = f"v{Y(q,g-1,rho)}"
                elif q > 0:
                    prev = f"v{Y(q-1,3,rho)}"
                else:
                    prev = "v6"
                L.append(f"v_cndmask_b32 v{Z[g,rho]}, v{Y(q,g,rho)}, {prev}, s[{10+2*rho}:{11+2*rho}]")
        for g in (3, 2, 1, 0):
            L.append(f"v_add_f32_dpp v{Z[g,2]}, v{Z[g,3]}, v{Z[g,2]} {dpp}")
        for g in (3, 2, 1, 0):
            L.append(f"v_add_f32_dpp v{Z[g,1]}, v{Z[g,2]}, v{Z[g,1]} {dpp}")
        for g in (3, 2, 1, 0):
            L.append(f"v_add_f32_dpp v{Y(q,g,0)}, v{Z[g,1]}, v{Y(q,g,0)} {dpp}")
        return L

    def stage(S_, D_, bit, stride):
        m = {0: 0xaaaaaaaa, 1: 0xcccccccc, 2: 0xf0f0f0f0}[bit]
        up = {0: "quad_perm:[1,0,3,2]", 1: "quad_perm:[2,3,0,1]", 2: "row_ror:12"}[bit]
        dn = {0: "quad_perm:[1,0,3,2]", 1: "quad_perm:[2,3,0,1]", 2: "row_ror:4"}[bit]
        L = [f"s_mov_b32 vcc_lo, {m:#x}", f"s_mov_b32 vcc_hi, {m:#x}"]
        idx = [i for i in range(len(S_)) if not (i // stride) & 1]
        L += [f"v_cndmask_b32_dpp v{D_[i+stride]}, v{S_[i]}, v{S_[i+stride]}, vcc {up} {ctl}" for i in idx]
        L += ["s_not_b64 vcc, vcc"]
        L += [f"v_cndmask_b32_dpp v{D_[i]}, v{S_[i+stride]}, v{S_[i]}, vcc {dn} {ctl}" for i in idx]
        return L

    def xpose(q):
        S0 = [Y(q - 1 + (g >> 2), g & 3, 0) for g in range(8)]
        free = [Y(qq, g, r) for qq in (q - 1, q) for g in range(3) for r in (1, 2, 3)]
        D0 = free[:8]
        S1 = free[8:12]
        D1 = free[12:16]
        D2 = [acc(q - 1) + i for i in range(4)]
        L = stage(S0, D0, 0, 1)
        L += [f"v_cvt_pk_bf16_f32 v{S1[g]}, v{D0[2*g]}, v{D0[2*g+1]}" for g in range(4)]
        L += stage(S1, D1, 1, 1)
        L += stage(D1, D2, 2, 2)
        L.append(f"buffer_store_dwordx4 {v(D2[0],4)}, v{YA}, {sr(SRD_WS)}, s18 offen offset:{(q-1)*512} sc1")
        return L

    pend = []
    FILL = OPT.get("cfill", 4)
    since = {}
    issued = 2
    for i in range(nst):
        a.L.append(("LWAIT", f"R{i}"))
        rl = []
        while issued < nst and issued <= i + (2 if i < 2 else PF):
            rl += rd(issued)
            issued += 1
        act = [q for q in qs if 4 * q + 3 - i >= 0]
        per = -(-len(rl) // len(act))
        for q in act:
            s_ = 4 * q + 3 - i
            c = "0" if i == 0 else v(acc(q), 16)
            a(f"v_mfma_f32_32x32x16_bf16 {v(acc(q),16)}, {v(UBUF+4*(i%NU),4)}, {v(KT+4*s_,4)}, {c}")
            a.ext(rl[:per])
            rl = rl[per:]
            if s_ == 0:
                since[q] = len(a.L)
            for qq in list(since):
                if len([x for x in a.L[since[qq]:] if isinstance(x, str)]) >= 14:
                    del since[qq]
                    if qq in outq:
                        pend += post(qq)
                        if (qq - outq[0]) & 1:
                            pend += xpose(qq)
            a.ext(pend[:FILL])
            pend = pend[FILL:]
    a.ext(stamp(7))
    a.ext(pend)
    a("s_nop 7\ns_nop 3")
    for qq in sorted(since):
        if qq in outq:
            a.ext(post(qq))
            if (qq - outq[0]) & 1:
                a.ext(xpose(qq))
    a.ext(stamp(8))
    a(f"""
    s_waitcnt vmcnt(0)
    s_mov_b64 exec, 1
    buffer_store_dword v7, v6, {sr(SRD_WS)}, s19 offen sc1
    s_mov_b64 exec, -1
    """)
    if partB:
        E = 8
        a(f"""
        s_cmp_lg_u32 s6, 0
        s_cbranch_scc1 CV_NOGATE
        s_lshl_b32 s16, s{S_XCD}, 9
        s_add_u32 s16, s16, {FG_OFF}
        v_lshrrev_b32 v2, 2, v0
        v_and_b32 v3, 3, v0
        v_and_b32 v4, 3, v2
        v_lshlrev_b32 v4, 7, v4
        v_lshl_add_u32 v4, v3, 2, v4
        v_lshlrev_b32 v2, 2, v2
        v_lshl_add_u32 v2, v3, 11, v2
        s_mov_b32 s77, 0x100000
        """)
        a(rb64_scalar(17, 22))
        a(f"s_lshl_b32 s17, s17, 6\ns_add_u32 s17, s17, {GL_OFF}")
        a.ext(plain(spin("PG", [f"buffer_load_dword v5, v4, {sr(SRD_WS)}, s16 offen sc1"],
                         [f"v_cmp_eq_u32 vcc, s{S_NONCE}, v5", "s_nop 3", "s_cmp_eq_u64 vcc, exec"], 1)))
        for g in range(8):
            a(f"buffer_load_dword v{E+g}, v2, {sr(SRD_WS)}, s17 offen sc1")
            if g < 7:
                a("s_add_u32 s17, s17, 8192")
        a(f"""
        s_waitcnt vmcnt(0)
        v_add_f32 v{E}, v{E}, v{E+1}
        v_add_f32 v{E+2}, v{E+2}, v{E+3}
        v_add_f32 v{E+4}, v{E+4}, v{E+5}
        v_add_f32 v{E+6}, v{E+6}, v{E+7}
        v_add_f32 v{E}, v{E}, v{E+2}
        v_add_f32 v{E+4}, v{E+4}, v{E+6}
        v_add_f32 v{E}, v{E}, v{E+4}
        v_cvt_pk_bf16_f32 v{E}, v{E}, v{E}
        v_lshlrev_b32 v{E}, 16, v{E}
        v_mul_f32 v{E}, {f32(-LOG2E)}, v{E}
        v_exp_f32 v{E}, v{E}
        v_lshlrev_b32 v2, 2, v0
        v_add_f32 v{E}, 1.0, v{E}
        v_rcp_f32 v{E}, v{E}
        v_add_u32 v2, {G_LDS}, v2
        v_cvt_pk_bf16_f32 v{E}, v{E}, v{E}
        v_lshlrev_b32 v{E}, 16, v{E}
        ds_write_b32 v2, v{E}
        s_waitcnt lgkmcnt(0)
        CV_NOGATE:
        """)
    a.ext(stamp_end())
    st, ld, chk = fu_code(TMP, TMP + 1, TMP + 2, 7)
    a(f"CV{P}_SLOW:")
    a("s_waitcnt lgkmcnt(0)\ns_mov_b32 s77, 0x100000")
    a.ext(st)
    a.ext(plain(spin(f"PU{P}", ld, chk, 8)))
    a(f"v_lshlrev_b32 v{TMP}, 4, v0")
    a.ext(u_dma(TMP, 7))
    a(f"""
    s_mov_b32 s16, 0
    s_mov_b32 s17, 0xe0000000
    v_mov_b32 v4, 1
    s_waitcnt vmcnt(0)
    s_branch CV{P}_GO
    """)
    a0.ext(resolve_lds(a.L))


HEADER = open("cdna_kernels/" + NAME + ".s.ref").read().split("; Override launch")[0]


def main(path):
    a = Asm()
    prologue(a)
    a("L_SPARE:")
    a(f"s_and_b32 s{S_XCD}, s2, 7\ns_lshr_b32 s{S_IDX}, s2, 3\ns_waitcnt lgkmcnt(0)")
    srd(a, SRD_X, S_U, 2048 * 512 * 2)
    g_srds(a)
    spare(a)
    a("s_branch L_GEMM2")
    a("L_GEMM1:")
    gemm1(a)
    a("L_GEMM2:")
    gemm2(a)
    a("L_LWAVE_S:")
    a.ext(lwave(False))
    a("L_KWAVE:")
    a.ext(kwave(True))
    a("L_KWAVE_S:")
    a.ext(kwave(False))
    a("L_CONVA:")
    conv(a, False)
    a("L_CONVB:")
    conv(a, True)
    a("L_END:\ns_endpgm")
    body = "\n".join(("" if ln.endswith(":") or ln.startswith(".") else "    ") + ln for ln in a.L)
    kn = NAME + "_kernel"
    txt = HEADER
    if OPT.get("list"):
        txt += f"; @launch kernel={kn} grid=(256,1,1) block=(512,1,1) lds=163840\n"
    else:
        txt += "; @launch grid=(256,1,1) block=(512,1,1) lds=163840\n"
    txt += '.amdgcn_target "amdgcn-amd-amdhsa--gfx950"\n.text\n'
    txt += f".globl {kn}\n.p2align 8\n.type {kn},@function\n{kn}:\n"
    txt += body + "\n"
    txt += f"""
.section .rodata,"a"
.p2align 6
.amdhsa_kernel {kn}
  .amdhsa_next_free_vgpr 256
  .amdhsa_next_free_sgpr 102
  .amdhsa_accum_offset 256
  .amdhsa_group_segment_fixed_size 0
  .amdhsa_kernarg_size 136
  .amdhsa_user_sgpr_count 2
  .amdhsa_user_sgpr_kernarg_segment_ptr 1
  .amdhsa_system_sgpr_workgroup_id_x 1
.end_amdhsa_kernel
"""
    open(path, "w").write(txt)


if __name__ == "__main__":
    for o in list(sys.argv):
        if o.startswith("--opt="):
            k, _, val = o[6:].partition(":")
            OPT[k] = int(val) if val else 1
            sys.argv.remove(o)
    if OPT.get("oldlay"):
        DP = 4096
        UT_OFF, Y_OFF, GL_OFF = 0x800000, 0xC00000, 0xE00000
        FH_OFF, FY_OFF, FU_OFF, FD_OFF = 0xE40000, 0xE60000, 0xE68000, 0xE80000
    if OPT.get("dp"):
        DP = OPT["dp"]
    if "--stamps" in sys.argv:
        STAMPS = True
        sys.argv.remove("--stamps")
    main(sys.argv[1] if len(sys.argv) > 1 else "cdna_kernels/" + NAME + ".s")
```

```python
import sys, struct

NAME = "gated_mix__ssm_conv_s4__swiglu_ffn__prompt"

H_OFF = 0x000000
DP = 4224
UT_OFF = 0x800000
Y_OFF = 0xA80000
KX_OFF = 0xD00000
GL_OFF = 0xF00000
ST_OFF = 0xF20000
FH_OFF = 0xF40000
FY_OFF = 0xF60000
FU_OFF = 0xF68000
FG_OFF = 0xF6A000
FD_OFF = 0xF80000
WS_BYTES = 0x1000000

STAMPS = False
HDL = []
OPT = {}
ST_BASE = 78
NST = 12


def f32(x):
    return "0x%08x" % struct.unpack("<I", struct.pack("<f", x))[0]


LOG2E = 1.4426950408889634
LOG2E_HI = struct.unpack("<f", struct.pack("<f", LOG2E))[0]
LOG2E_LO = LOG2E - LOG2E_HI
LN2 = 0.6931471805599453
INV2PI = 0.15915494309189535


class Asm:
    def __init__(self):
        self.L = []

    def __call__(self, s):
        for line in s.strip().split("\n"):
            line = line.strip()
            if line:
                self.L.append(line)

    def ext(self, lines):
        self.L.extend(lines)

    def tag(self, n):
        self.L.append(("VMTAG", n))

    def wait(self, n):
        self.L.append(("VMWAIT", n))


def v(b, n=1):
    return f"v{b}" if n == 1 else f"v[{b}:{b+n-1}]"


def sr(b):
    return f"s[{b}:{b+3}]"


class RA:
    def __init__(self, start, end):
        self.p = start
        self.end = end

    def __call__(self, n=1, align=1):
        self.p = (self.p + align - 1) // align * align
        r = self.p
        self.p += n
        assert self.p <= self.end, "out of registers"
        return r


def stamp(k, force=False):
    if not STAMPS:
        return []
    assert k < NST
    if OPT.get("dbgbar") and 1 <= k <= 9 and not force:
        return []
    op = "s_memtime" if OPT.get("cyc") else "s_memrealtime"
    return [f"{op} s[{ST_BASE+2*k}:{ST_BASE+2*k+1}]"]


def bstamp(mode, k):
    return stamp(k, True) if OPT.get("dbgbar") == mode else []


def stamp_end():
    if not STAMPS:
        return ["s_endpgm"]
    L = stamp(10) + ["s_waitcnt vmcnt(0)"] + stamp(11)
    L += ["s_waitcnt lgkmcnt(0)", "s_mov_b64 exec, 1", "s_lshl_b32 s74, s2, 3", f"s_add_u32 s74, s74, s{S_WIDX}",
          "s_lshl_b32 s74, s74, 6", f"s_add_u32 s74, s74, {ST_OFF}", "v_mov_b32 v1, 0"]
    for k in range(NST):
        L.append(f"v_mov_b32 v{4+k}, s{ST_BASE+2*k}")
    for k in range(0, NST, 4):
        L.append(f"buffer_store_dwordx4 v[{4+k}:{7+k}], v1, {sr(SRD_WS)}, s74 offen offset:{4*k}")
    if OPT.get("hdbg"):
        lab = f"HD{len(HDL)}"
        HDL.append(lab)
        L += [f"v_not_b32 v20, v4", f"global_atomic_umax v1, v20, s[{S_DBG}:{S_DBG+1}] offset:56",
              f"global_atomic_umax v1, v15, s[{S_DBG}:{S_DBG+1}] offset:60",
              f"s_cmp_lg_u32 s2, {OPT['hdbg']}", f"s_cbranch_scc1 {lab}", f"s_cmp_lg_u32 s{S_WIDX}, 0", f"s_cbranch_scc1 {lab}"]
        words = [1, 2, 3, 4, 5, 6, 7, 9, 10, 11, 12]
        for k in range(1, NST):
            L += [f"v_sub_u32 v20, v{4+k}, v4", f"global_store_dword v1, v20, s[{S_DBG}:{S_DBG+1}] offset:{4*words[k-1]}", "s_nop 1"]
        L += [f"global_store_dword v1, v4, s[{S_DBG}:{S_DBG+1}] offset:52"]
        L.append(f"{lab}:")
    L.append("s_endpgm")
    return L


def is_vmem(line):
    return line.startswith("buffer_") or line.startswith("global_")


def resolve_vm(lines):
    out = []
    count = 0
    tags = {}
    done = -1
    for ln in lines:
        if isinstance(ln, tuple):
            if ln[0] == "VMTAG":
                tags[ln[1]] = count
            elif ln[0] == "VMWAIT":
                if tags[ln[1]] <= done:
                    continue
                n = count - tags[ln[1]]
                assert 0 <= n <= 63, n
                out.append(f"s_waitcnt vmcnt({n})")
                done = tags[ln[1]]
            elif ln[0] == "VMRESET":
                done = count
            elif ln[0] == "NOCOUNT":
                out.append(ln[1])
            else:
                raise ValueError(ln)
        else:
            if is_vmem(ln):
                count += 1
            out.append(ln)
    return out


def resolve_lds(lines):
    out = []
    count = 0
    tags = {}
    for ln in lines:
        if isinstance(ln, tuple):
            if ln[0] == "LTAG":
                tags[ln[1]] = count
            elif ln[0] == "LWAIT":
                out.append(f"s_waitcnt lgkmcnt({min(15, count - tags[ln[1]])})")
            else:
                raise ValueError(ln)
        else:
            if ln.startswith("ds_"):
                count += 1
            out.append(ln)
    return out


SLOT = 49152
KG_BASE = 147456
KARR = 3584
U_BASE = 131072
UPITCH = 1344
USZ = 4 * UPITCH
YB_BASE = U_BASE + 2 * USZ
RING2 = 32768

S_U = 4
S_ARE, S_AIM, S_BRE, S_BIM, S_CRE, S_CIM, S_LDT = 54, 56, 58, 60, 62, 64, 66
S_DS = 20
S_WG, S_WU, S_WD, S_GW = 24, 26, 28, 30
S_OUT, S_DBG, S_WS = 32, 34, 36
S_WIDX, S_XCD, S_IDX, S_RB, S_CB, S_PHI = 38, 39, 40, 41, 42, 43
SRD_X, SRD_WG, SRD_WU, SRD_WS, SRD_WD, SRD_OUT = 44, 48, 52, 56, 60, 64


def srd(a, d, base, nbytes):
    if base == S_WS and OPT.get("wsoff"):
        a(f"""
        s_add_u32 s{d}, s{base}, {OPT["wsoff"] << 20}
        s_addc_u32 s{d+1}, s{base+1}, 0
        s_and_b32 s{d+1}, s{d+1}, 0xffff
        s_mov_b32 s{d+2}, {nbytes}
        s_mov_b32 s{d+3}, 0x00020000
        """)
        return
    a(f"""
    s_mov_b32 s{d}, s{base}
    s_and_b32 s{d+1}, s{base+1}, 0xffff
    s_mov_b32 s{d+2}, {nbytes}
    s_mov_b32 s{d+3}, 0x00020000
    """)


def mapping(a):
    a(f"""
    s_and_b32 s{S_XCD}, s2, 7
    s_lshr_b32 s{S_IDX}, s2, 3
    """)
    if OPT.get("map", 1) == 0:
        a(f"""
        s_and_b32 s68, s{S_IDX}, 3
        s_lshr_b32 s69, s{S_IDX}, 2
        s_lshr_b32 s{S_RB}, s{S_XCD}, 1
        s_lshl_b32 s{S_RB}, s{S_RB}, 2
        s_add_u32 s{S_RB}, s{S_RB}, s68
        s_and_b32 s{S_CB}, s{S_XCD}, 1
        s_mul_i32 s{S_CB}, s{S_CB}, 7
        s_add_u32 s{S_CB}, s{S_CB}, s69
        s_lshl_b32 s{S_PHI}, s68, 1
        s_add_u32 s{S_PHI}, s{S_PHI}, s69
        s_and_b32 s{S_PHI}, s{S_PHI}, 7
        """)
    else:
        a(f"""
        s_and_b32 s70, s{S_XCD}, 1
        s_lshl_b32 s70, s70, 2
        s_and_b32 s68, s{S_IDX}, 7
        s_lshr_b32 s69, s{S_IDX}, 3
        s_add_u32 s71, s69, s70
        s_add_u32 s72, s68, s70
        s_cmp_ge_u32 s{S_IDX}, 24
        s_cselect_b32 s71, 3, s71
        s_cselect_b32 s68, s72, s68
        s_lshr_b32 s{S_CB}, s{S_XCD}, 1
        s_and_b32 s{S_CB}, s{S_CB}, 1
        s_mul_i32 s{S_CB}, s{S_CB}, 7
        s_add_u32 s{S_CB}, s{S_CB}, s71
        s_lshr_b32 s{S_RB}, s{S_XCD}, 2
        s_lshl_b32 s{S_RB}, s{S_RB}, 3
        s_add_u32 s{S_RB}, s{S_RB}, s68
        s_lshl_b32 s{S_PHI}, s69, 1
        s_add_u32 s{S_PHI}, s{S_PHI}, s68
        s_and_b32 s{S_PHI}, s{S_PHI}, 7
        """)


K_PR = 6


def kparam_loads():
    va, vb = K_PR + 5, K_PR + 7
    L = [f"global_load_dword v{K_PR+i}, v{va}, s[{sb}:{sb+1}]" for i, sb in enumerate((S_ARE, S_AIM, S_BRE, S_BIM, S_CRE, S_CIM))]
    L += [f"global_load_ushort v{K_PR+6}, v{vb}, s[{S_LDT}:{S_LDT+1}]", f"global_load_ushort v{K_PR+7}, v{vb}, s[{S_DS}:{S_DS+1}]"]
    return L


def prologue(a):
    a("""
    s_cmp_ge_u32 s2, 256
    s_cbranch_scc1 L_END
    """)
    if STAMPS:
        a.ext([f"s_mov_b32 s{ST_BASE+2*k}, 0" for k in range(NST)])
    a.ext(stamp(0))
    a(f"""
    s_load_dwordx8 s[24:31], s[0:1], 80
    s_load_dwordx16 s[52:67], s[0:1], 0
    s_load_dwordx2 s[4:5], s[0:1], 0
    s_load_dwordx2 s[36:37], s[0:1], 128
    s_load_dwordx4 s[32:35], s[0:1], 112
    s_load_dwordx2 s[20:21], s[0:1], 64
    v_lshrrev_b32 v1, 6, v0
    v_and_b32 v0, 63, v0
    s_nop 0
    v_readfirstlane_b32 s{S_WIDX}, v1
    s_lshl_b32 s69, s2, 1
    v_lshlrev_b32 v2, 2, v0
    s_nop 1
    s_cmp_lt_u32 s{S_WIDX}, 6
    s_cbranch_scc1 L_NOTK
    s_sub_u32 s68, s{S_WIDX}, 6
    s_add_u32 s69, s69, s68
    s_lshl_b32 s71, s69, 8
    v_add_u32 v2, s71, v2
    s_lshl_b32 s72, s69, 1
    v_mov_b32 v3, s72
    s_waitcnt lgkmcnt(0)
    """)
    a(f"v_mov_b32 v{K_PR+5}, v2\nv_mov_b32 v{K_PR+7}, v3")
    a(f"s_and_b32 s{S_XCD}, s2, 7\ns_lshr_b32 s{S_IDX}, s2, 3")
    a("s_cmp_lt_u32 s2, 224\ns_cbranch_scc1 L_KWAVE")
    a.ext(kparam_loads())
    a("s_branch L_KWAVE_S\nL_NOTK:")
    a(f"""
    s_cmp_ge_u32 s{S_WIDX}, 4
    s_cbranch_scc1 L_ISL
    """)
    a(f"""
    s_getpc_b64 s[70:71]
    L_PC:
    s_sub_u32 s70, s70, L_PC-{NAME}_kernel
    s_subb_u32 s71, s71, 0
    s_lshr_b32 s72, s2, 3
    s_lshl_b32 s72, s72, 2
    s_add_u32 s72, s72, s{S_WIDX}
    s_lshl_b32 s72, s72, 9
    v_and_b32 v2, 7, v0
    v_lshlrev_b32 v2, 6, v2
    v_add_u32 v2, s72, v2
    v_min_u32 v2, L_END-{NAME}_kernel, v2
    global_load_dword v127, v2, s[70:71]
    s_cmp_lt_u32 s2, 224
    s_cbranch_scc1 L_GEMM1
    s_branch L_SPARE
    L_ISL:
    """)
    mapping(a)
    a(f"""
    s_sub_u32 s6, s{S_WIDX}, 4
    s_cmp_ge_u32 s{S_IDX}, 28
    s_cbranch_scc1 L_LWAVE_S
    """)
    a.ext(lwave(True))


def g_srds(a):
    srd(a, SRD_WS, S_WS, WS_BYTES)
    srd(a, SRD_WD, S_WD, 1792 * 512 * 2)
    srd(a, SRD_OUT, S_OUT, 2048 * 512 * 2)


VL16 = 1
XD = 8
(VD0, VD1, DA0, DA1, VEP, VPH, VFL, VG, VY, VYW, VYT, VW1, VW2, VW3, VR1, VR23) = range(112, 128)
YT_BASE = YB_BASE
G_LDS = YB_BASE
N_LDS = YB_BASE + 256
S_LDS = YB_BASE + 272
def n1():
    return OPT.get("n1", 14)


def rot_scalar(dst, tmp):
    m = OPT.get("rmode", 0)
    if m == 1:
        return f"""
        s_lshr_b32 s{dst}, s{S_IDX}, 1
        s_and_b32 s{dst}, s{dst}, 2
        s_mul_i32 s{dst}, s{dst}, 7
        """
    if m == 2:
        return f"""
        s_lshr_b32 s{dst}, s{S_IDX}, 1
        s_and_b32 s{dst}, s{dst}, 2
        s_and_b32 s{tmp}, s{S_IDX}, 1
        s_add_u32 s{dst}, s{dst}, s{tmp}
        s_mul_i32 s{dst}, s{dst}, 7
        """
    return f"""
    s_lshr_b32 s{dst}, s{S_IDX}, 1
    s_and_b32 s{dst}, s{dst}, 2
    s_add_u32 s{dst}, s{dst}, s{S_IDX}
    s_and_b32 s{dst}, s{dst}, 3
    s_mul_i32 s{dst}, s{dst}, 7
    """


def rb64_scalar(dst, tmp):
    return f"""
    s_lshl_b32 s{dst}, s{S_XCD}, 2
    s_and_b32 s{tmp}, s{S_IDX}, 3
    s_add_u32 s{dst}, s{dst}, s{tmp}
    """


def cb64_scalar(dst, tmp):
    return f"""
    s_lshr_b32 s{dst}, s{S_IDX}, 2
    s_lshr_b32 s{tmp}, s{S_WD}, 7
    s_sub_u32 s{dst}, s{dst}, s{tmp}
    s_add_u32 s{dst}, s{dst}, {OPT.get("cbs", 4)}
    s_and_b32 s{dst}, s{dst}, 7
    """


def gemm2_setup(a):
    a(rb64_scalar(6, 13))
    a(cb64_scalar(7, 13))
    a(f"""
    s_lshl_b32 s17, s6, 6
    s_lshr_b32 s23, s{S_WIDX}, 1
    s_lshl_b32 s13, s23, 5
    s_add_u32 s17, s17, s13
    s_lshl_b32 s18, s7, 6
    s_and_b32 s14, s{S_WIDX}, 1
    s_lshl_b32 s13, s14, 5
    s_add_u32 s18, s18, s13
    v_lshrrev_b32 v5, 5, v0
    v_and_b32 v6, 31, v0
    v_add_u32 v6, s17, v6
    v_lshlrev_b32 v7, 4, v5
    v_add_u32 v7, s18, v7
    v_lshlrev_b32 v7, 1, v7
    v_lshl_add_u32 v{VEP}, v6, 10, v7
    s_lshl_b32 s8, s{S_WIDX}, 15
    s_lshl_b32 s9, s6, 1
    s_add_u32 s9, s9, s23
    s_mul_i32 s9, s9, 112
    s_mul_i32 s13, s{S_WIDX}, 28
    s_add_u32 s9, s9, s13
    s_lshl_b32 s9, s9, 10
    s_mul_i32 s22, s23, {224*1024}
    s_sub_u32 s22, {112*1024}, s22
    s_lshl_b32 s10, s13, 14
    s_lshl_b32 s13, s7, 7
    {"s_cmp_ge_u32 s2, 224" if OPT.get("fakecb") else ""}
    {"s_cselect_b32 s12, 128, 0" if OPT.get("fakecb") else ""}
    {"s_xor_b32 s13, s13, s12" if OPT.get("fakecb") else ""}
    s_add_u32 s10, s10, s13
    """)
    a(rot_scalar(12, 13))
    a(f"""
    s_add_u32 s11, s12, {n1()}
    s_cmp_ge_u32 s11, 28
    s_cselect_b32 s13, 28, 0
    s_sub_u32 s11, s11, s13
    s_lshl_b32 s15, s6, 5
    s_mul_i32 s13, s{S_WIDX}, 7
    s_add_u32 s15, s15, s13
    s_lshl_b32 s15, s15, 7
    s_add_u32 s15, s15, {FH_OFF}
    s_lshl_b32 s13, s7, 2
    s_add_u32 s13, s13, s{S_WIDX}
    s_lshl_b32 s16, s13, 10
    s_add_u32 s16, s16, {FY_OFF}
    s_mul_i32 s19, s13, {16*DP}
    s_lshl_b32 s13, s6, 7
    s_add_u32 s19, s19, s13
    s_add_u32 s19, s19, {Y_OFF}
    v_lshlrev_b32 v{VL16}, 4, v0
    v_lshrrev_b32 v2, 3, v0
    v_and_b32 v3, 7, v0
    v_mul_u32_u24 v{VY}, {DP}, v2
    v_lshl_add_u32 v{VY}, v3, 4, v{VY}
    v_lshrrev_b32 v4, 1, v2
    v_and_b32 v4, 1, v4
    v_lshlrev_b32 v4, 2, v4
    v_xor_b32 v3, v3, v4
    v_lshlrev_b32 v{VD0}, 10, v2
    v_lshl_add_u32 v{VD0}, v3, 4, v{VD0}
    v_add_u32 v{VD1}, {8192-1024}, v{VD0}
    v_lshlrev_b32 v{VYW}, 7, v2
    v_lshl_add_u32 v{VYW}, v3, 4, v{VYW}
    v_add_u32 v{VYW}, s8, v{VYW}
    v_lshrrev_b32 v2, 2, v0
    v_and_b32 v2, 3, v2
    v_and_b32 v3, 3, v0
    v_lshrrev_b32 v4, 4, v0
    v_and_b32 v4, 1, v4
    v_lshl_add_u32 v6, v5, 2, v2
    v_lshlrev_b32 v6, 7, v6
    v_and_b32 v7, 1, v3
    v_lshl_add_u32 v6, v7, 5, v6
    v_lshl_add_u32 v6, v4, 4, v6
    v_lshrrev_b32 v7, 1, v3
    v_lshl_add_u32 v6, v7, 3, v6
    v_add_u32 v6, s8, v6
    v_lshrrev_b32 v7, 1, v2
    v_xor_b32 v7, s14, v7
    v_lshl_add_u32 v{DA0}, v7, 6, v6
    v_xor_b32 v7, 1, v7
    v_lshl_add_u32 v{DA1}, v7, 6, v6
    s_lshl_b32 s13, s14, 1
    v_add_u32 v6, s13, v5
    v_lshlrev_b32 v{VYT}, 15, v6
    v_lshl_add_u32 v{VYT}, v2, 7, v{VYT}
    v_lshrrev_b32 v7, 1, v2
    v_xor_b32 v7, s23, v7
    v_lshl_add_u32 v{VYT}, v7, 6, v{VYT}
    v_lshl_add_u32 v{VYT}, v4, 5, v{VYT}
    v_lshl_add_u32 v{VYT}, v3, 3, v{VYT}
    v_min_u32 v{VPH}, 6, v0
    v_lshlrev_b32 v{VPH}, 7, v{VPH}
    v_lshrrev_b32 v2, 2, v0
    v_and_b32 v2, 7, v2
    v_lshlrev_b32 v{VFL}, 7, v2
    v_lshl_add_u32 v{VFL}, v3, 2, v{VFL}
    v_and_b32 v{VG}, 31, v0
    s_lshl_b32 s13, s23, 5
    v_add_u32 v{VG}, s13, v{VG}
    v_lshlrev_b32 v{VG}, 2, v{VG}
    v_add_u32 v{VG}, {G_LDS}, v{VG}
    v_add_u32 v{VW1}, s8, v{VL16}
    s_xor_b32 s13, s{S_WIDX}, 1
    s_lshl_b32 s13, s13, 15
    v_add_u32 v{VR1}, s13, v{VL16}
    s_xor_b32 s13, s{S_WIDX}, 2
    s_lshl_b32 s13, s13, 15
    v_add_u32 v{VW2}, s13, v{VL16}
    s_xor_b32 s13, s{S_WIDX}, 3
    s_lshl_b32 s13, s13, 15
    v_add_u32 v{VW3}, s13, v{VL16}
    """)


def gemm1(a):
    XA = 16
    WA = 28
    BUFS = [64, 88, 40]
    ACC = 128

    def acc(mat, t, tt):
        return ACC + 16 * (mat * 4 + t * 2 + tt)

    def wf(b, mat, t):
        return BUFS[b] + 4 * (mat * 2 + t)

    def xf(b, tt):
        return BUFS[b] + 16 + 4 * tt

    g2 = Asm()
    a(f"""
    s_lshr_b32 s68, s{S_WIDX}, 1
    s_and_b32 s69, s{S_WIDX}, 1
    v_and_b32 v7, 31, v0
    v_lshrrev_b32 v2, 5, v0
    v_lshrrev_b32 v3, 1, v0
    v_and_b32 v3, 7, v3
    s_lshl_b32 s70, s68, 13
    v_lshlrev_b32 v4, 7, v7
    v_add_u32 v4, s70, v4
    """)
    for ks in range(4):
        a(f"""
        v_add_u32 v5, {2*ks}, v2
        v_xor_b32 v5, v5, v3
        v_lshl_add_u32 v{XA+ks}, v5, 4, v4
        """)
    a(f"""
    v_lshrrev_b32 v7, 2, v0
    v_and_b32 v7, 3, v7
    v_and_b32 v3, 3, v0
    v_lshrrev_b32 v4, 4, v0
    v_and_b32 v4, 1, v4
    v_lshl_add_u32 v5, v2, 3, v7
    v_lshlrev_b32 v5, 8, v5
    v_lshl_add_u32 v5, v4, 5, v5
    v_lshl_add_u32 v5, v3, 3, v5
    s_lshl_b32 s70, s69, 1
    """)
    for t in range(2):
        a(f"""
        s_add_u32 s71, s70, {t}
        v_xor_b32 v6, s71, v7
        v_lshl_add_u32 v{WA+t}, v6, 6, v5
        """)
    for sl in (1, 2):
        for ks in range(4):
            a(f"v_add_u32 v{XA+4*sl+ks}, {sl*SLOT}, v{XA+ks}")
        for t in range(2):
            a(f"v_add_u32 v{WA+2*sl+t}, {sl*SLOT}, v{WA+t}")
    mapping(g2)
    g_srds(g2)
    gemm2_setup(g2)
    g2(f"""
    s_lshr_b32 s68, s{S_WIDX}, 1
    s_and_b32 s69, s{S_WIDX}, 1
    s_lshl_b32 s70, s{S_RB}, 2
    s_lshl_b32 s71, s68, 1
    s_add_u32 s70, s70, s71
    s_mul_i32 s70, s70, 112
    s_lshl_b32 s71, s{S_CB}, 3
    s_add_u32 s70, s70, s71
    s_lshl_b32 s71, s69, 2
    s_add_u32 s70, s70, s71
    s_lshl_b32 s70, s70, 10
    s_add_u32 s71, s70, {112*1024}
    s_lshl_b32 s3, s{S_RB}, 1
    s_add_u32 s3, s3, s68
    s_lshl_b32 s3, s3, 5
    s_lshl_b32 s72, s{S_CB}, 1
    s_add_u32 s3, s3, s72
    s_add_u32 s3, s3, s69
    s_lshl_b32 s3, s3, 7
    s_add_u32 s3, s3, {FH_OFF}
    s_mov_b32 s72, {f32(-LOG2E)}
    s_mov_b32 s73, {f32(-LOG2E)}
    """)

    def reads(n):
        st, ks = n >> 2, n & 3
        sl = st % 3
        b = n % 3
        r = []
        r.append(f"ds_read_b128 {v(xf(b,0),4)}, v{XA+4*sl+ks}")
        for mat in range(2):
            for t in range(2):
                for h2 in range(2):
                    off = 16384 * (1 + mat) + ks * 4096 + h2 * 1024
                    r.append(f"ds_read_b64_tr_b16 {v(wf(b,mat,t)+2*h2,2)}, v{WA+2*sl+t} offset:{off}")
                if mat == 0 and t == 0:
                    r.append(f"ds_read_b128 {v(xf(b,1),4)}, v{XA+4*sl+ks} offset:4096")
        return r

    T = 16

    def epi(p):
        t, tt = p >> 1, p & 1
        G, U = acc(0, t, tt), acc(1, t, tt)
        o = 32 + 8 * p
        L = []
        for h in range(2):
            R = range(8 * h, 8 * h + 8)
            L += [f"v_pk_mul_f32 {v(T+i,2)}, {v(G+i,2)}, s[72:73]" for i in R[::2]]
            for i in R[::2]:
                L += [f"v_exp_f32 v{T+i}, v{T+i}", f"v_exp_f32 v{T+i+1}, v{T+i+1}",
                      f"v_pk_mul_f32 {v(U+i,2)}, {v(G+i,2)}, {v(U+i,2)}"]
            L += [f"v_pk_add_f32 {v(T+i,2)}, {v(T+i,2)}, 1.0 op_sel_hi:[1,0]" for i in R[::2]]
            L += [f"v_rcp_f32 v{T+i}, v{T+i}" for i in R]
            L += [f"v_pk_mul_f32 {v(U+i,2)}, {v(U+i,2)}, {v(T+i,2)}" for i in R[::2]]
            for i in range(4):
                L.append(f"v_cvt_pk_bf16_f32 v{o+4*h+i}, v{U+8*h+2*i}, v{U+8*h+2*i+1}")
            L.append(f"buffer_store_dwordx4 {v(o+4*h,4)}, v{VL16}, {sr(SRD_WS)}, s{70+tt} offen offset:{t*2048+1024*h} sc1")
        return L

    a("s_waitcnt lgkmcnt(0)")
    a("s_barrier")
    a.ext(stamp(1))
    a.ext(bstamp(2, 1))
    a.ext(reads(0))
    a.ext(reads(1))
    extra = []
    XL = OPT.get("xl", 13)
    for n in range(32):
        b = n % 3
        if (n & 3) == 2:
            a("s_waitcnt lgkmcnt(0)")
            a.ext(bstamp(2, 2 + (n >> 2)))
            a("s_barrier")
            if n == 22:
                a.ext(stamp(2))
        elif (n & 3) != 3:
            a("s_waitcnt lgkmcnt(10)")
        rd = reads(n + 2) if n + 2 < 32 else []
        mf = []
        for t in range(2):
            for tt in range(2):
                for mat in range(2):
                    c = "0" if n == 0 else v(acc(mat, t, tt), 16)
                    mf.append(f"v_mfma_f32_32x32x16_bf16 {v(acc(mat,t,tt),16)}, {v(wf(b,mat,t),4)}, {v(xf(b,tt),4)}, {c}")
        if n == 3:
            extra = list(g2.L)
        if n == 30:
            assert not extra
            extra = [f"v_mov_b32 v2, {N_LDS}", "ds_read_b32 v3, v2"]
        for i, m in enumerate(mf):
            a(m)
            a.ext(rd[2 * i:2 * i + 2])
            if i >= 4:
                a.ext(extra[:3])
                extra = extra[3:]
    assert not extra
    a.ext(stamp(3))
    if OPT.get("eprio", 0):
        a(f"s_setprio {OPT['eprio']}")
    a(f"s_waitcnt lgkmcnt(0)\nv_readfirstlane_b32 s{S_NONCE}, v3\ns_nop 5")
    for p in range(4):
        a.ext(epi(p))
    a.ext(stamp(4))


def spare(a):
    R = 16
    O = 80
    GWv = 112
    SUM = 120
    a(f"""
    s_sub_u32 s68, s{S_IDX}, 28
    s_lshl_b32 s3, s{S_XCD}, 2
    s_add_u32 s3, s3, s68
    s_lshl_b32 s3, s3, 5
    s_add_u32 s3, s3, s{S_WIDX}
    s_lshl_b32 s3, s3, 2
    s_add_u32 s3, s3, {FU_OFF}
    s_lshl_b32 s68, s68, 2
    s_add_u32 s68, s68, s{S_WIDX}
    s_lshr_b32 s69, s68, 1
    s_mov_b32 s74, s{S_XCD}
    v_and_b32 v1, 7, v0
    v_lshrrev_b32 v2, 3, v0
    v_lshlrev_b32 v3, 15, v2
    v_lshl_add_u32 v3, v1, 4, v3
    v_mul_u32_u24 v4, {8*DP}, v1
    v_lshl_add_u32 v4, v2, 4, v4
    v_lshlrev_b32 v5, 4, v1
    v_lshlrev_b32 v6, 2, v0
    s_mov_b32 s70, 0x05040100
    s_mov_b32 s71, 0x07060302
    s_lshl_b32 s72, s69, 7
    v_add_u32 v7, s72, v5
    global_load_dwordx4 {v(GWv,4)}, v7, s[{S_GW}:{S_GW+1}]
    """)
    for i in range(2):
        b = 6 + 4 * i
        a(f"""
        s_lshl_b32 s73, s68, 1
        s_add_u32 s73, s73, {i}
        s_and_b32 s73, s73, 3
        s_lshl_b32 s{b}, s74, 18
        s_lshl_b32 s75, s73, 10
        s_add_u32 s{b}, s{b}, s75
        s_add_u32 s{b}, s{b}, s72
        s_mul_i32 s{b+1}, s69, {64*DP}
        s_add_u32 s{b+1}, s{b+1}, s75
        s_lshl_b32 s75, s74, 7
        s_add_u32 s{b+1}, s{b+1}, s75
        s_add_u32 s{b+1}, s{b+1}, {UT_OFF}
        s_lshl_b32 s{b+2}, s74, 8
        s_lshl_b32 s75, s73, 11
        s_add_u32 s{b+2}, s{b+2}, s75
        s_lshl_b32 s75, s69, 13
        s_add_u32 s{b+2}, s{b+2}, s75
        s_add_u32 s{b+2}, s{b+2}, {GL_OFF}
        """)
        for j in range(8):
            a(f"buffer_load_dwordx4 {v(R+32*i+4*j,4)}, v3, {sr(SRD_X)}, s{b} offen")
            if j < 7:
                a(f"s_add_u32 s{b}, s{b}, 4096")
    a("v_mov_b32 v2, 0")
    for i in range(2):
        b = 6 + 4 * i
        a("s_waitcnt vmcnt(8)")
        Ri = R + 32 * i
        for e in range(8):
            for jj in range(4):
                sel = 71 if (e & 1) else 70
                a(f"v_perm_b32 v{O+4*e+jj}, v{Ri+4*(2*jj+1)+(e>>1)}, v{Ri+4*(2*jj)+(e>>1)}, s{sel}")
            a(f"buffer_store_dwordx4 {v(O+4*e,4)}, v4, {sr(SRD_WS)}, s{b+1} offen sc1")
            if e < 7:
                a(f"s_add_u32 s{b+1}, s{b+1}, {DP}")
    a(nonce_ld(3, 2))
    a.ext(stamp(1))
    a("s_barrier")
    for i in range(2):
        Ri = R + 32 * i
        S_ = SUM - 8 * i * 5
        for j in range(8):
            a(f"v_mov_b32 v{S_+j}, 0")
        for q in range(4):
            for j in range(8):
                a(f"v_dot2c_f32_bf16 v{S_+j}, v{Ri+4*j+q}, v{GWv+q}")
        a("s_nop 3")
        for ctl in ("quad_perm:[1,0,3,2]", "quad_perm:[2,3,0,1]", "row_half_mirror"):
            for j in range(8):
                a(f"v_add_f32_dpp v{S_+j}, v{S_+j}, v{S_+j} {ctl} row_mask:0xf bank_mask:0xf")
        for j in range(1, 8):
            a(f"""
            v_cmp_eq_u32 vcc, {j}, v1
            s_nop 1
            v_cndmask_b32 v{S_}, v{S_}, v{S_+j}, vcc
            """)
        if i == 0:
            a("s_waitcnt vmcnt(0)")
            a.ext(plain(nonce_get("NS", 3, 2)))
            a(f"""
            s_mov_b32 s76, s{S_NONCE}
            s_mov_b64 exec, 1
            buffer_store_dword v3, v2, {sr(SRD_WS)}, s3 offen sc1
            s_mov_b64 exec, -1
            """)
            a.ext(stamp(2))
    a(f"""
    buffer_store_dword v{SUM}, v6, {sr(SRD_WS)}, s8 offen sc1
    buffer_store_dword v{SUM-40}, v6, {sr(SRD_WS)}, s12 offen sc1
    s_add_u32 s3, s3, {FG_OFF - FU_OFF}
    s_waitcnt vmcnt(0)
    s_mov_b64 exec, 1
    buffer_store_dword v3, v2, {sr(SRD_WS)}, s3 offen sc1
    s_mov_b64 exec, -1
    s_sub_u32 s3, s3, {FG_OFF}
    s_lshl_b32 s3, s3, 5
    s_add_u32 s3, s3, {FD_OFF}
    """)
    a.ext(stamp(3))
    gemm2_setup(a)
    a(f"s_mov_b32 s{S_NONCE}, s76\ns_waitcnt vmcnt(0)")


def spin(label, loads, checks, sleep=2):
    L = [f"{label}_SPIN:", f"s_sleep {sleep}"]
    L += [("NOCOUNT", x) for x in loads]
    L += ["s_waitcnt vmcnt(0)"]
    L += ["s_sub_u32 s77, s77, 1", "s_cmp_eq_u32 s77, 0", f"s_cbranch_scc1 {label}_OK"]
    L += [f"{label}_CHK:"] + checks
    L += [f"s_cbranch_scc0 {label}_SPIN", f"{label}_OK:"]
    return L


S_NONCE = 23


def nonce_ld(vd, vz):
    return f"global_load_dword v{vd}, v{vz}, s[{S_DBG}:{S_DBG+1}] sc1"


def nonce_get(label, vd, vz, sleep=8):
    L = ["s_mov_b32 s77, 0x100000", f"s_branch {label}_CHK"]
    L += spin(label, [nonce_ld(vd, vz)], [f"v_cmp_ne_u32 vcc, 0, v{vd}", "s_nop 3", "s_cmp_eq_u64 vcc, exec"], sleep)
    L += [f"v_readfirstlane_b32 s{S_NONCE}, v{vd}", "s_nop 3"]
    return L


def plain(lines):
    return [x[1] if isinstance(x, tuple) else x for x in lines]


def gemm2(a0):
    a = Asm()
    NS = 28
    NP = 12
    NR = 16
    DH = 6
    ACC = 192
    WF = 16
    WFR = 128
    HB = 144
    N1 = n1()
    NF = OPT.get("nf", 2)
    PP1 = OPT.get("pp1", 21)
    N2 = OPT.get("n2", 28)

    def acc(t, tt):
        return ACC + 16 * (t + 2 * tt)

    def wload(i):
        sl = i % NR
        return [
            "s_lshl_b32 s14, s11, 14", f"s_add_u32 m0, s8, {sl*2048}", "s_add_u32 s14, s14, s10",
            f"buffer_load_dwordx4 v{VD0}, {sr(SRD_WD)}, s14 offen lds",
            "s_add_u32 s11, s11, 1", "s_cmp_ge_u32 s11, 28", "s_cselect_b32 s11, 0, s11",
            f"buffer_load_dwordx4 v{VD1}, {sr(SRD_WD)}, s14 offen offset:1024 lds",
            ("VMTAG", f"W{i}"),
        ]

    def hload(i):
        sl = i % DH
        return [
            "s_lshl_b32 s13, s12, 10", "s_add_u32 s13, s13, s9",
            f"buffer_load_dwordx4 {v(HB+8*sl,4)}, v{VL16}, {sr(SRD_WS)}, s13 offen sc1",
            "s_add_u32 s13, s13, s22",
            "s_add_u32 s12, s12, 1", "s_cmp_ge_u32 s12, 28", "s_cselect_b32 s12, 0, s12",
            f"buffer_load_dwordx4 {v(HB+8*sl+4,4)}, v{VL16}, {sr(SRD_WS)}, s13 offen sc1",
            ("VMTAG", f"H{i}"),
        ]

    def wfrag(i):
        return WF + 8 * i if i < NP else WFR + 8 * (i & 1)

    def trd(i):
        sl = i % NR
        r = [("VMWAIT", f"W{i}")] if i >= N1 else []
        for t in range(2):
            for h2 in range(2):
                r.append(f"ds_read_b64_tr_b16 {v(wfrag(i)+4*t+2*h2,2)}, v{DA0+t} offset:{sl*2048+h2*1024}")
        return r

    NE = OPT.get("ne", -1)
    a(f"""
    s_setprio 2
    v_mov_b32 v2, 0
    v_mov_b32 v3, s{S_NONCE}
    s_mov_b32 s77, 0x100000
    """)
    pub = f"""
    s_waitcnt vmcnt(0)
    s_mov_b64 exec, 1
    buffer_store_dword v3, v2, {sr(SRD_WS)}, s3 offen sc1
    s_mov_b64 exec, -1
    """
    if NE < 0:
        a(pub)
    a.ext(stamp(5))
    a("s_barrier")
    ph_ld = f"buffer_load_dword v4, v{VPH}, {sr(SRD_WS)}, s15 offen sc1"

    def wl(i):
        a.ext(wload(i))
        if i == PP1:
            a(ph_ld)
            a.tag("P1")
    assert NP <= N1
    first = list(range(NP - max(NE, 0), NP))
    for i in first:
        a.ext(trd(i))
    if NE >= 0:
        a(pub)
    a.ext(stamp(6))
    for i in range(N1, NR):
        wl(i)
    rest = [i for i in range(NP) if i not in first]
    for i in range(NP + 1):
        if i in rest:
            a.ext(trd(i))
        if i >= 1 and NR + i - 1 < N2:
            if i - 1 in rest:
                a(f"s_waitcnt lgkmcnt({4 if i in rest else 0})")
            wl(NR + i - 1)
    a.ext(stamp(7))
    a.wait("P1")
    a("s_branch PH_CHK")
    a.ext(spin("PH", [ph_ld], [f"v_cmp_eq_u32 vcc, s{S_NONCE}, v4", "s_nop 3", "s_cmp_eq_u64 vcc, exec"]))
    a.ext(stamp(8))
    a.ext(bstamp(3, 1))
    for i in range(DH):
        a.ext(hload(i))
    a("s_waitcnt lgkmcnt(0)")

    YR, FL, YT, EG = 80, 2, WFR, 6
    fl_ld = [f"buffer_load_dword v{FL}, v{VFL}, {sr(SRD_WS)}, s16 offen sc1"]
    chk = [f"v_cmp_eq_u32 vcc, s{S_NONCE}, v{FL}", "s_nop 3", "s_cmp_eq_u64 vcc, exec"]

    def yloads():
        return [f"buffer_load_dwordx4 {v(YR,4)}, v{VY}, {sr(SRD_WS)}, s19 offen sc1",
                f"s_add_u32 s13, s19, {8*DP}",
                f"buffer_load_dwordx4 {v(YR+4,4)}, v{VY}, {sr(SRD_WS)}, s13 offen sc1"]

    IF = OPT.get("if", 22)
    IY = OPT.get("iy", 25)
    for i in range(NS):
        sl = i % DH
        a.wait(f"H{i}")
        if i >= NP:
            a("s_waitcnt lgkmcnt(0)")
        hl = hload(i - 1 + DH) if 1 <= i and i - 1 + DH < NS else []
        fill = [(trd(i + 1) if NP <= i + 1 < NS else []) + hl[:3], hl[3:], wload(N2 + i) if N2 + i < NS else [], []]
        k = 0
        for t in range(2):
            for tt in range(2):
                c = "0" if i == 0 else v(acc(t, tt), 16)
                a(f"v_mfma_f32_32x32x16_bf16 {v(acc(t,tt),16)}, {v(wfrag(i)+4*t,4)}, {v(HB+8*sl+4*tt,4)}, {c}")
                a.ext(fill[k])
                k += 1
        if i in (0, 3, 7, 11, 15, 19, 23, 27):
            a.ext(bstamp(3, 2 + (0, 3, 7, 11, 15, 19, 23, 27).index(i)))
        if i == IF:
            a.ext(fl_ld)
            a.tag("F")
        if i == IY:
            a.wait("F")
            a.ext(yloads())
    a.ext(stamp(9))
    a.ext(chk)
    a("s_cbranch_scc1 PY_DONE")
    a.ext(spin("PY", fl_ld, chk))
    a.ext([("NOCOUNT", x) if is_vmem(x) else x for x in yloads()])
    a("PY_DONE:")
    a("s_nop 5")
    for k in range(1, 4):
        for g in range(4):
            a(f"ds_write_b128 v{VW1}, {v(ACC+16*k+4*g,4)} offset:{k*4096+g*1024}")
    X1, Y1 = HB, HB + 16
    OST = {0: "", 1: " sc1", 2: " nt", 3: " sc0 sc1"}[OPT.get("ost", 0)]
    a(f"""
    v_mov_b32 v5, 0xffff0000
    s_waitcnt vmcnt(0)
    ds_write_b128 v{VYW}, {v(YR,4)} offset:16384
    ds_write_b128 v{VYW}, {v(YR+4,4)} offset:17408
    """)
    a("s_waitcnt lgkmcnt(0)")
    a("s_barrier")
    PB = 16
    a(f"ds_read_b32 v{EG}, v{VG}")
    for q in range(4):
        a(f"ds_read_b64_tr_b16 {v(YT+2*q,2)}, v{VYT} offset:{16384+q*512}")
    for k, base in ((1, VR1), (2, VW2), (3, VW3)):
        for g in range(4):
            a(f"ds_read_b128 {v(PB+16*(k-1)+4*g,4)}, v{base} offset:{k*4096+g*1024}")
    a("s_waitcnt lgkmcnt(12)")
    for i in range(8):
        a(f"""
        v_lshlrev_b32 v{Y1+2*i}, 16, v{YT+i}
        v_and_b32 v{Y1+2*i+1}, v5, v{YT+i}
        """)
    a("s_waitcnt lgkmcnt(8)")
    for i in range(0, 16, 2):
        a(f"v_pk_add_f32 {v(ACC+i,2)}, {v(ACC+i,2)}, {v(PB+i,2)}")
    a("s_waitcnt lgkmcnt(0)")
    for i in range(0, 16, 2):
        a(f"v_pk_add_f32 {v(PB+16+i,2)}, {v(PB+16+i,2)}, {v(PB+32+i,2)}")
    for i in range(0, 16, 2):
        a(f"v_pk_add_f32 {v(ACC+i,2)}, {v(ACC+i,2)}, {v(PB+16+i,2)}")
    for i in range(0, 16, 2):
        a(f"v_pk_add_f32 {v(Y1+i,2)}, {v(Y1+i,2)}, {v(ACC+i,2)} neg_lo:[0,1] neg_hi:[0,1]")
    for i in range(0, 16, 2):
        a(f"v_pk_fma_f32 {v(ACC+i,2)}, {v(Y1+i,2)}, {v(EG,2)}, {v(ACC+i,2)} op_sel_hi:[1,0,1]")
    for i in range(8):
        a(f"v_cvt_pk_bf16_f32 v{X1+i}, v{ACC+2*i}, v{ACC+2*i+1}")
    a(f"""
    buffer_store_dwordx4 {v(X1,4)}, v{VEP}, {sr(SRD_OUT)}, 0 offen{OST}
    buffer_store_dwordx4 {v(X1+4,4)}, v{VEP}, {sr(SRD_OUT)}, 0 offen offset:16{OST}
    """)
    a.ext(stamp_end())
    a0.ext(resolve_vm(a.L))


def kwave(gemm_wg):
    sfx = "G" if gemm_wg else "S"
    ra = RA(2, 256)
    pre = Asm()
    main = Asm()
    ph2 = Asm()
    a = pre
    a(f"""
    s_setprio {OPT.get("kprio", 0)}
    s_lshl_b32 s70, s68, 13
    s_add_u32 s70, s70, {KG_BASE}
    """)
    t0 = ra(); t1 = ra(); t2 = ra(); t3 = ra()
    PR = ra(7)
    DV = ra()
    assert PR == K_PR
    if gemm_wg:
        a(f"""
        s_cmp_lg_u32 s69, 0
        s_cbranch_scc1 K{sfx}_NOTAG
        s_memrealtime s[72:73]
        v_mov_b32 v{t0}, 0
        s_waitcnt lgkmcnt(0)
        s_or_b32 s72, s72, 1
        v_mov_b32 v{t1}, s72
        s_mov_b64 exec, 1
        global_store_dword v{t0}, v{t1}, s[{S_DBG}:{S_DBG+1}] sc1
        s_mov_b64 exec, -1
        K{sfx}_NOTAG:
        """)

    WR = ra(8)
    RD = ra(2)
    a(f"""
    v_lshrrev_b32 v{t0}, 1, v0
    v_and_b32 v{t1}, 7, v{t0}
    v_lshlrev_b32 v{t0}, 8, v{t0}
    v_and_b32 v{t2}, 1, v0
    v_lshl_add_u32 v{t0}, v{t2}, 3, v{t0}
    v_add_u32 v{t0}, s70, v{t0}
    """)
    for b in range(8):
        a(f"""
        v_xor_b32 v{t2}, {b}, v{t1}
        v_lshl_add_u32 v{WR+b}, v{t2}, 4, v{t0}
        """)
    a(f"""
    v_and_b32 v{t0}, 15, v0
    v_lshrrev_b32 v{t1}, 4, v0
    """)
    for p in range(2):
        a(f"""
        v_add_u32 v{t2}, {4*p}, v{t1}
        v_xor_b32 v{t3}, v{t2}, v{t0}
        v_lshlrev_b32 v{t3}, 4, v{t3}
        v_lshl_add_u32 v{t3}, v{t2}, 8, v{t3}
        v_add_u32 v{RD+p}, s70, v{t3}
        """)
    TA0 = ra(); TA1 = ra(); TA2 = ra(); TA3 = ra()
    LP = ra(12)
    a(f"""
    v_and_b32 v{t2}, 1, v{t1}
    v_lshrrev_b32 v{t3}, 1, v{t1}
    v_lshlrev_b32 v{TA0}, 5, v{t0}
    v_lshl_add_u32 v{TA0}, v{t2}, 4, v{TA0}
    v_lshl_add_u32 v{TA0}, v{t3}, 9, v{TA0}
    v_lshrrev_b32 v{LP}, 2, v{TA0}
    v_cvt_f32_u32 v{LP}, v{LP}
    v_add_u32 v{TA0}, s70, v{TA0}
    v_add_f32 v{LP+1}, 1.0, v{LP}
    v_add_f32 v{LP+2}, 2.0, v{LP}
    v_add_f32 v{LP+3}, 2.0, v{LP+1}
    v_cmp_gt_u32 vcc, 2, v{t1}
    v_lshlrev_b32 v{TA1}, 4, v{t0}
    v_lshlrev_b32 v{TA2}, 3, v{t0}
    v_cndmask_b32 v{TA1}, v{TA2}, v{TA1}, vcc
    v_lshl_add_u32 v{TA1}, v{t1}, 8, v{TA1}
    v_add_u32 v{TA1}, s70, v{TA1}
    v_add_u32 v{TA1}, 1024, v{TA1}
    v_mov_b32 v{TA2}, 128
    v_cndmask_b32 v{TA2}, v{TA2}, 8, vcc
    v_add_u32 v{TA2}, v{TA2}, v{TA1}
    v_lshlrev_b32 v{TA3}, 2, v{t0}
    v_lshl_add_u32 v{TA3}, v{t1}, 8, v{TA3}
    v_add_u32 v{TA3}, s70, v{TA3}
    """)
    a(f"""
    v_lshlrev_b32 v{t2}, 7, v{t1}
    v_add_u32 v{t2}, 256, v{t2}
    v_lshlrev_b32 v{t3}, 8, v{t1}
    v_cndmask_b32 v{t2}, v{t3}, v{t2}, vcc
    v_lshl_add_u32 v{t2}, v{t0}, 3, v{t2}
    v_cvt_f32_u32 v{LP+4}, v{t2}
    v_mov_b32 v{t2}, 4.0
    v_cndmask_b32 v{t2}, v{t2}, 2.0, vcc
    v_mov_b32 v{t3}, {f32(128.0)}
    v_cndmask_b32 v{t3}, v{t3}, 4.0, vcc
    v_add_f32 v{LP+5}, v{LP+4}, v{t2}
    v_add_f32 v{LP+6}, v{LP+4}, v{t3}
    v_add_f32 v{LP+7}, v{LP+6}, v{t2}
    v_lshlrev_b32 v{t2}, 9, v{t1}
    v_lshl_add_u32 v{t2}, v{t0}, 3, v{t2}
    v_add_u32 v{t2}, 1024, v{t2}
    v_cvt_f32_u32 v{LP+8}, v{t2}
    v_add_f32 v{LP+9}, {f32(128.0)}, v{LP+8}
    v_add_f32 v{LP+10}, {f32(256.0)}, v{LP+8}
    v_add_f32 v{LP+11}, {f32(384.0)}, v{LP+8}
    """)
    EX = ra(10)
    a(f"""
    s_sub_u32 s72, s70, {4*17024}
    v_lshlrev_b32 v{t0}, 3, v0
    v_cvt_f32_u32 v{t1}, v{t0}
    v_cmp_gt_u32 vcc, 16, v0
    v_add_u32 v{EX+8}, s70, v{t0}
    v_lshlrev_b32 v{t0}, 2, v{t0}
    v_add_u32 v{t0}, s70, v{t0}
    v_lshlrev_b32 v{EX+9}, 2, v0
    v_add_u32 v{EX+9}, s70, v{EX+9}
    v_add_u32 v{EX+9}, 2048, v{EX+9}
    """)
    for kk in range(4):
        e0, e1 = EX + 2 * kk, EX + 2 * kk + 1
        a(f"""
        v_add_f32 v{t2}, 1.0, v{t1}
        v_cvt_pk_bf16_f32 v{t3}, v{t1}, v{t2}
        v_add_f32 v{t1}, 2.0, v{t1}
        v_and_b32 v{e0}, 0xffff, v{t3}
        v_lshrrev_b32 v{e1}, 16, v{t3}
        v_lshl_add_u32 v{e0}, v{e0}, 2, s72
        v_lshl_add_u32 v{e1}, v{e1}, 2, s72
        v_add_u32 v{t2}, {8*kk}, v{t0}
        v_add_u32 v{t3}, {8*kk+4}, v{t0}
        v_cndmask_b32 v{e0}, v{e0}, v{t2}, vcc
        v_cndmask_b32 v{e1}, v{e1}, v{t3}, vcc
        """)

    if gemm_wg:
        a.ext(kparam_loads())
    srd(a, SRD_WS, S_WS, WS_BYTES)
    a = main
    a("s_waitcnt vmcnt(0)")
    MASK = ra()
    DT = ra()
    PP = ra(12)
    a(f"""
    v_mov_b32 v{MASK}, 0xffff0000
    v_cmp_eq_u32 vcc, 0, v0
    v_lshlrev_b32 v{DV}, 16, v{DV}
    s_nop 0
    v_cndmask_b32 v{DV}, 0, v{DV}, vcc
    """)
    for i in range(6):
        a(f"v_lshlrev_b32 v{PP+2*i}, 16, v{PR+i}")
        a(f"v_and_b32 v{PP+2*i+1}, v{MASK}, v{PR+i}")
    x = PR + 6
    a(f"""
    v_lshlrev_b32 v{x}, 16, v{x}
    v_mul_f32 v{t0}, {f32(LOG2E_HI)}, v{x}
    s_mov_b32 s72, {f32(LOG2E_HI)}
    v_fma_f32 v{t1}, v{x}, s72, -v{t0}
    v_fmac_f32 v{t1}, {f32(LOG2E_LO)}, v{x}
    v_exp_f32 v{t0}, v{t0}
    v_mul_f32 v{t1}, {f32(LN2)}, v{t1}
    v_fmac_f32 v{t0}, v{t0}, v{t1}
    v_cvt_pk_bf16_f32 v{t0}, v{t0}, v{t0}
    v_lshlrev_b32 v{DT}, 16, v{t0}
    """)
    A2, TH, Br, Bi, Cr, Ci = (PP + 2 * i for i in range(6))
    for m in range(2):
        a(f"""
        v_mul_f32 v{A2+m}, v{DT}, v{A2+m}
        v_mul_f32 v{TH+m}, v{DT}, v{TH+m}
        v_mul_f32 v{Br+m}, v{DT}, v{Br+m}
        v_mul_f32 v{Bi+m}, v{DT}, v{Bi+m}
        v_mul_f32 v{A2+m}, {f32(LOG2E)}, v{A2+m}
        v_mul_f32 v{TH+m}, {f32(INV2PI)}, v{TH+m}
        """)
    W0 = ra(4); W1 = ra(4)
    for m in range(2):
        a(f"""
        v_mul_f32 v{W0+2*m}, v{Cr+m}, v{Br+m}
        v_mul_f32 v{W0+2*m+1}, v{Cr+m}, v{Bi+m}
        v_fma_f32 v{W0+2*m}, -v{Ci+m}, v{Bi+m}, v{W0+2*m}
        v_fmac_f32 v{W0+2*m+1}, v{Ci+m}, v{Br+m}
        v_sub_f32 v{W0+2*m+1}, 0, v{W0+2*m+1}
        """)
    SIG = ra(); WM = ra(); CE = ra()
    a(f"""
    v_max_f32 v{SIG}, v{A2}, v{A2+1}
    v_max3_f32 v{WM}, |v{W0}|, |v{W0+1}|, |v{W0+2}|
    v_max_f32 v{WM}, |v{W0+3}|, v{WM}
    s_nop 1
    """)
    for ctl in ("quad_perm:[1,0,3,2]", "quad_perm:[2,3,0,1]", "row_half_mirror", "row_mirror"):
        a(f"""
        v_max_f32_dpp v{SIG}, v{SIG}, v{SIG} {ctl} row_mask:0xf bank_mask:0xf
        v_max_f32_dpp v{WM}, v{WM}, v{WM} {ctl} row_mask:0xf bank_mask:0xf
        s_nop 0
        """)
    a(f"""
    v_readlane_b32 s72, v{SIG}, 0
    v_readlane_b32 s73, v{SIG}, 16
    v_readlane_b32 s74, v{SIG}, 32
    v_readlane_b32 s75, v{SIG}, 48
    v_readlane_b32 s6, v{WM}, 0
    v_readlane_b32 s7, v{WM}, 16
    v_readlane_b32 s8, v{WM}, 32
    v_readlane_b32 s9, v{WM}, 48
    v_max_f32 v{SIG}, s72, v{SIG}
    v_max_f32 v{SIG}, s73, v{SIG}
    v_max_f32 v{SIG}, s74, v{SIG}
    v_max_f32 v{SIG}, s75, v{SIG}
    v_max_f32 v{WM}, s6, v{WM}
    v_max_f32 v{WM}, s7, v{WM}
    v_max_f32 v{WM}, s8, v{WM}
    v_max_f32 v{WM}, s9, v{WM}
    v_sub_f32 v{A2}, v{A2}, v{SIG}
    v_sub_f32 v{A2+1}, v{A2+1}, v{SIG}
    v_frexp_exp_i32_f32 v{CE}, v{WM}
    v_sub_u32 v{t0}, 14, v{CE}
    v_subrev_u32 v{CE}, 29, v{CE}
    """)
    for i in range(4):
        a(f"v_ldexp_f32 v{W0+i}, v{W0+i}, v{t0}")

    def cexp(l):
        r = ra(6)
        for m in range(2):
            a(f"""
            v_mul_f32 v{t0}, {f32(float(l))}, v{A2+m}
            v_mul_f32 v{t1}, {f32(float(l))}, v{TH+m}
            v_exp_f32 v{t0}, v{t0}
            v_fract_f32 v{t1}, v{t1}
            v_cos_f32 v{t2}, v{t1}
            v_sin_f32 v{t3}, v{t1}
            s_nop 0
            v_mul_f32 v{r+2*m}, v{t0}, v{t2}
            v_mul_f32 v{r+2*m+1}, v{t0}, v{t3}
            v_sub_f32 v{r+4+m}, 0, v{r+2*m+1}
            """)
        return r

    def cmul(d, x_, b, conj=False):
        for m in range(2):
            br, bi, nbi = b + 2 * m, b + 2 * m + 1, b + 4 + m
            if conj:
                bi, nbi = nbi, bi
            a(f"""
            v_mul_f32 v{d+2*m}, v{x_+2*m}, v{br}
            v_mul_f32 v{d+2*m+1}, v{x_+2*m}, v{bi}
            v_fmac_f32 v{d+2*m}, v{x_+2*m+1}, v{nbi}
            v_fmac_f32 v{d+2*m+1}, v{x_+2*m+1}, v{br}
            """)

    def neg(b):
        for m in range(2):
            a(f"v_sub_f32 v{b+4+m}, 0, v{b+2*m+1}")

    def scale(d, x_):
        for i in range(4):
            a(f"v_mul_f32 v{d+i}, {f32(32768.0)}, v{x_+i}")

    VB = [ra(32, 4), ra(32, 4), ra(32, 4), ra(18, 4)]
    CH0 = ra(0, 4)

    def put(batch, row, r):
        h = VB[batch] + 2 * row
        if r is None:
            a(f"v_mov_b32 v{h}, 0x7800\nv_mov_b32 v{h+1}, 0x7800")
        else:
            a(f"""
            v_cvt_pk_f16_f32 v{h}, v{r}, v{r+1}
            v_cvt_pk_f16_f32 v{h+1}, v{r+2}, v{r+3}
            """)

    E8 = cexp(8)
    cur, nxt = W0, W1
    for c in range(16):
        if c < 15:
            cmul(nxt, cur, E8, conj=True)
        put(0, c, cur)
        cur, nxt = nxt, cur
    E1 = cexp(1)
    Q1 = cexp(128)
    Q8 = cexp(1024)
    P = {}
    P[1] = ra(4)
    scale(P[1], E1)
    for j in range(2, 8):
        P[j] = ra(6 if j == 4 else 4)
        cmul(P[j], P[j - 1], E1)
    put(1, 0, None)
    for j in range(1, 8):
        put(1, j, P[j])
    scale(W0, Q1)
    put(1, 8, W0)
    for j in range(1, 8):
        cmul(W0, P[j], Q1)
        put(1, 8 + j, W0)
    Q = {1: Q1, 8: Q8}
    for j in range(2, 8):
        Q[j] = {2: E1, 3: PP + 4}[j] if j < 4 else P[2 * (j - 4) + 1]
        cmul(Q[j], Q[j - 1], Q1)
    neg(P[4]); neg(Q[2]); neg(Q[3])
    for qi, j in enumerate((2, 3)):
        scale(W0, Q[j])
        put(2, 4 * qi, W0)
        for r in range(1, 4):
            cmul(W0, P[2 * r], Q[j])
            put(2, 4 * qi + r, W0)
    for aa in range(4):
        scale(W0, Q[4 + aa])
        put(2, 8 + 2 * aa, W0)
        cmul(W0, Q[4 + aa], P[4])
        put(2, 8 + 2 * aa + 1, W0)
    a(f"v_mov_b32 v{PR}, 0")
    a(nonce_ld(PR + 1, PR))
    QS = E8
    scale(QS, Q8)
    neg(QS)
    put(3, 0, QS)
    for j in range(1, 8):
        cmul(W0, Q[j], QS)
        put(3, j, W0)
    cmul(W0, Q8, QS)
    put(3, 8, W0)
    for i in range(12):
        a(f"v_mul_f32 v{LP+i}, v{SIG}, v{LP+i}")
    for i in range(12):
        a(f"v_exp_f32 v{LP+i}, v{LP+i}")

    a = ph2
    YF = CH0
    AC = CH0 + 32
    assert AC + 12 <= ra.p

    def wr(batch, nrows):
        for row in range(nrows):
            a(f"ds_write_b64 v{WR+(row&7)}, {v(VB[batch]+2*row,2)} offset:{(row>>3)*128}")

    def fetch(F):
        for ks in range(8):
            a(f"ds_read_b128 {v(F+4*ks,4)}, v{RD+(ks&1)} offset:{(ks>>1)*2048}")

    def mfmas(tile, XF):
        for ks in range(8):
            c = "0" if ks == 0 else v(AC + 4 * tile, 4)
            a(f"v_mfma_f32_16x16x32_f16 {v(AC+4*tile,4)}, {v(XF+4*ks,4)}, {v(YF+4*ks,4)}, {c}")

    a("s_waitcnt vmcnt(0)")
    ng = plain(nonce_get(f"NK{sfx}", PR + 1, PR))
    a(f"v_mov_b32 v{t2}, {N_LDS}")
    a(f"ds_write_b32 v{t2}, v{PR+1}")
    wr(0, 16); fetch(YF)
    wr(1, 16); fetch(VB[0])
    wr(2, 16); fetch(VB[1])
    a("s_waitcnt lgkmcnt(15)")
    mf0 = len(a.L)
    wr(3, 9); fetch(VB[2])
    tail = a.L[mf0:]
    del a.L[mf0:]
    m = Asm()
    sv, a = a, m
    mfmas(0, VB[0])
    a = sv
    for i in range(8):
        a.ext(tail[2 * i:2 * i + 2])
        a(m.L[i])
    a.ext(tail[16:])
    a("s_waitcnt lgkmcnt(15)")
    mfmas(1, VB[1])
    a("s_waitcnt lgkmcnt(0)")
    mfmas(2, VB[2])
    a("s_nop 3")
    for i in range(12):
        a(f"v_mul_f32 v{AC+i}, v{AC+i}, v{LP+i}")
    for i in range(12):
        a(f"v_ldexp_f32 v{AC+i}, v{AC+i}, v{CE}")
    a(f"v_add_f32 v{AC}, v{AC}, v{DV}")
    a(f"ds_write_b128 v{TA0}, {v(AC,4)}")
    a(f"ds_write_b64 v{TA1}, {v(AC+4,2)}")
    a(f"ds_write_b64 v{TA2}, {v(AC+6,2)}")
    for r in range(4):
        a(f"ds_write_b32 v{TA3}, v{AC+8+r} offset:{2048+64*r}")
    G0 = VB[0]
    OUT = VB[1]
    for i in range(8):
        a(f"ds_read_b32 v{G0+i}, v{EX+i}")
    a(f"""
    ds_read_b64 {v(G0+8,2)}, v{EX+8} offset:1536
    ds_read_b32 v{G0+10}, v{EX+8} offset:1544
    ds_read2_b32 {v(G0+12,2)}, v{EX+9} offset0:0 offset1:1
    ds_read2_b32 {v(G0+14,2)}, v{EX+9} offset0:64 offset1:65
    v_lshlrev_b32 v{t0}, 4, v0
    v_add_u32 v{t0}, s70, v{t0}
    v_and_b32 v{t1}, 3, v0
    v_lshlrev_b32 v{t1}, 4, v{t1}
    v_add_u32 v{t1}, s70, v{t1}
    v_mov_b32 v{OUT+16}, 0
    v_mov_b32 v{OUT+17}, 0
    v_mov_b32 v{OUT+18}, 0
    v_mov_b32 v{OUT+19}, 0
    s_mov_b32 s72, 0xaaaaaaaa
    s_mov_b32 s73, 0xaaaaaaaa
    ds_write_b128 v{t1}, {v(OUT+16,4)} offset:{KARR}
    s_waitcnt lgkmcnt(0)
    """)
    for k in range(4):
        a(f"v_cvt_pk_bf16_f32 v{OUT+k}, v{G0+2*k}, v{G0+2*k+1}")
    a(f"""
    v_cvt_pk_bf16_f32 v{OUT+4}, v{G0+8}, v{G0+8}
    v_cvt_pk_bf16_f32 v{OUT+5}, v{G0+8}, v{G0+9}
    v_cvt_pk_bf16_f32 v{OUT+6}, v{G0+9}, v{G0+9}
    v_cvt_pk_bf16_f32 v{OUT+7}, v{G0+10}, v{G0+10}
    """)
    for it in (2, 3):
        T0, T1 = G0 + 8 + 2 * it, G0 + 9 + 2 * it
        o = OUT + 4 * it
        a(f"""
        v_cndmask_b32 v{t2}, v{T0}, v{T1}, s[72:73]
        v_cvt_pk_bf16_f32 v{o}, v{T0}, v{T0}
        v_cvt_pk_bf16_f32 v{o+1}, v{T0}, v{T0}
        v_cvt_pk_bf16_f32 v{o+2}, v{t2}, v{T1}
        v_cvt_pk_bf16_f32 v{o+3}, v{T1}, v{T1}
        """)
    a(f"v_mov_b32 v{t2}, 0")
    for it in range(4):
        a(f"ds_write_b128 v{t0}, {v(OUT+4*it,4)} offset:{KARR+64+1024*it}")
    if OPT.get("dbgk"):
        a(f"""
        s_lshl_b32 s72, s69, 12
        s_add_u32 s72, s72, {KX_OFF}
        v_lshlrev_b32 v{t0}, 4, v0
        """)
        for it in range(4):
            a(f"buffer_store_dwordx4 {v(OUT+4*it,4)}, v{t0}, {sr(SRD_WS)}, s72 offen offset:{1024*it}")
    a("s_waitcnt vmcnt(0) lgkmcnt(0)")
    ph2.L[1:1] = ["\n    ".join(ng)]

    out = list(pre.L)
    out.extend(stamp(1))
    kx = OPT.get("kx", 0)
    if kx == 1:
        ph2.L = []
    elif kx == 2:
        ph2.L = [x for x in ph2.L if not x.startswith("v_mfma")]
    elif kx == 3:
        ph2.L = [x for x in ph2.L if not x.startswith("ds_write")]
    elif kx == 4:
        ph2.L = [x for x in ph2.L if not x.startswith("ds_read")]
    elif kx == 5:
        L2 = []
        for x in ph2.L:
            L2.append(x)
            if x.startswith("ds_write_b64"):
                L2.append("s_nop 3")
        ph2.L = L2
    if gemm_wg:
        per = OPT.get("kper", 132)
        first = OPT.get("kfirst", 0)
        p2a = OPT.get("kp2a", 48)
        p2b = OPT.get("kp2b", 100)
        pos = min(first, len(main.L))
        out.extend(main.L[:pos])
        for sidx in range(9):
            out.extend(bstamp(2, 1 + sidx))
            out.append("s_barrier")
            if sidx < 6:
                end = len(main.L) if sidx == 5 else min(pos + per, len(main.L))
                out.extend(main.L[pos:end])
                pos = end
            elif sidx == 6:
                out.extend(ph2.L[:p2a])
            elif sidx == 7:
                out.extend(ph2.L[p2a:p2b])
            else:
                out.extend(ph2.L[p2b:])
        out.extend(stamp(2))
    else:
        ks1 = OPT.get("ks1", 250)
        out.extend(main.L[:ks1])
        out.append("s_barrier")
        out.extend(main.L[ks1:])
        out.extend(ph2.L)
        out.extend(stamp(2))
    out.append("s_mov_b32 s6, s68")
    out.append("s_branch L_CONVB")
    return out


def fu_code(vaddr, vtmp, vdst, sd):
    setup = [f"s_lshr_b32 s16, s{sd}, 7", "s_lshl_b32 s16, s16, 7", f"s_lshr_b32 s17, s{sd}, 3", "s_and_b32 s17, s17, 8",
             "s_add_u32 s16, s16, s17", f"s_add_u32 s16, s16, {FU_OFF}",
             f"v_and_b32 v{vaddr}, 7, v0", f"v_lshlrev_b32 v{vaddr}, 9, v{vaddr}"]
    ld = [f"buffer_load_dwordx2 v[{vdst}:{vdst+1}], v{vaddr}, {sr(SRD_WS)}, s16 offen sc1"]
    chk = [f"v_cmp_eq_u32 vcc, s{S_NONCE}, v{vdst}", f"v_cmp_eq_u32 s[50:51], s{S_NONCE}, v{vdst+1}", "s_nop 3",
           "s_and_b64 vcc, vcc, s[50:51]", "s_cmp_eq_u64 vcc, exec"]
    return setup, ld, chk


def u_dma(vl16, sd):
    L = [f"s_mul_i32 s52, s6, {USZ}", f"s_mul_i32 s53, s{sd}, {DP}", f"s_add_u32 s53, s53, {UT_OFF}"]
    for r in range(4):
        L += [f"s_add_u32 m0, s52, {U_BASE + r*UPITCH + 112}", "s_nop 0",
              f"buffer_load_dwordx4 v{vl16}, {sr(SRD_WS)}, s53 offen sc1 lds", "s_add_u32 s53, s53, 1024"]
    return L


def lwave(gemm_wg):
    sfx = "G" if gemm_wg else "S"
    a = Asm()
    XV, WV, VL, VC = 8, 12, 2, 16
    t0, t1, t2 = 3, 4, 5
    DUM = 24
    ROT = OPT.get("rot", 0)
    FL8 = OPT.get("fl8", 1)
    SW = 12
    a("s_setprio 3")

    def kofs(st):
        if not ROT:
            return []
        return [f"s_add_u32 s18, s{S_PHI}, {st}", "s_and_b32 s18, s18, 7", f"s_mul_i32 s19, s18, {64*3584}",
                "s_lshl_b32 s18, s18, 7"]

    def grp(st, g):
        sl = st % 3
        if g in (1, 5):
            j = 0 if g == 1 else 1
            L = [f"s_add_u32 m0, s{10+j}, {sl*SLOT}", f"s_add_u32 s22, s{8+j}, {'s18' if ROT else st*128}"]
            L += [f"buffer_load_dwordx4 v{XV+i}, {sr(SRD_X)}, s22 offen offset:{1024*i} lds" for i in range(4)]
        else:
            j = 0 if g == 0 else g - 1
            L = [f"s_add_u32 m0, s{72+j}, {sl*SLOT}", f"s_add_u32 s22, s{68+j}, {'s19' if ROT else st*64*3584}"]
            L += [f"buffer_load_dwordx4 v{WV+i}, {sr(SW)}, s22 offen offset:{1024*i} lds" for i in range(4)]
        return L

    def pref(st):
        L = [f"s_add_u32 s22, s68, {st*64*3584}"]
        L += [f"buffer_load_dwordx4 {v(DUM+4*i,4)}, v{WV+i}, {sr(SW)}, s22 offen offset:{1024*i}" for i in range(4)]
        L += [f"s_add_u32 s22, s23, {st*128}"]
        L += [f"buffer_load_dwordx4 {v(DUM+16+4*i,4)}, v{XV+i}, {sr(SRD_X)}, s22 offen offset:{1024*i}" for i in range(2)]
        return L

    fu_setup, fu_ld, fu_chk = fu_code(t1, t2, VC, 7)

    def poll_setup():
        a(f"""
        s_lshl_b32 s7, s2, 1
        s_add_u32 s7, s7, s6
        v_lshlrev_b32 v{VL}, 4, v0
        s_mov_b32 s77, 0x100000
        """)
        a.ext(fu_setup)

    STG = 24
    assert STG + 16 * n1() <= 256

    def wd_setup():
        a(f"""
        v_lshrrev_b32 v20, 3, v0
        v_and_b32 v21, 7, v0
        v_lshrrev_b32 v22, 1, v20
        v_and_b32 v22, 1, v22
        v_lshlrev_b32 v22, 2, v22
        v_xor_b32 v21, v21, v22
        v_lshlrev_b32 v18, 10, v20
        v_lshl_add_u32 v18, v21, 4, v18
        v_add_u32 v19, 8192, v18
        """)
        a(cb64_scalar(17, 3))
        if OPT.get("fakecb") and not gemm_wg:
            a("s_xor_b32 s17, s17, 1")
        a(f"""
        s_lshl_b32 s17, s17, 7
        s_mul_i32 s3, s6, {3*28*16384}
        s_add_u32 s3, s3, s17
        s_sub_u32 s48, 2, s6
        s_lshl_b32 s49, s48, 15
        v_add_u32 v1, s49, v{VL}
        s_mul_i32 s48, s48, {28*16384}
        s_add_u32 s48, s48, s17
        s_mul_i32 s17, s6, {3*RING2}
        v_add_u32 v7, s17, v{VL}
        """)
        a(rot_scalar(76, 17))
        a("s_mov_b32 s49, s76")

    wpos = [0, 0]
    wwp = [0, 0]

    def wd_ld(g, n):
        sb, ss = ((3, 76), (48, 49))[g]
        for _ in range(n):
            i = wpos[g]
            if i >= n1():
                break
            wpos[g] += 1
            R = STG + 8 * (g * n1() + i)
            a(f"""
            s_lshl_b32 s22, s{ss}, 14
            s_add_u32 s22, s22, s{sb}
            buffer_load_dwordx4 {v(R,4)}, v18, {sr(SRD_WD)}, s22 offen
            s_add_u32 s{ss}, s{ss}, 1
            s_cmp_ge_u32 s{ss}, 28
            s_cselect_b32 s{ss}, 0, s{ss}
            buffer_load_dwordx4 {v(R+4,4)}, v19, {sr(SRD_WD)}, s22 offen
            """)
            a.tag(f"wd{g}_{i}")

    def wd_wr(g, n):
        for i in range(wwp[g], min(n1(), wwp[g] + n)):
            wwp[g] = i + 1
            R = STG + 8 * (g * n1() + i)
            a.wait(f"wd{g}_{i}")
            for k in range(2):
                a(f"ds_write_b128 v{(7, 1)[g]}, {v(R+4*k,4)} offset:{i*2048 + k*1024}")

    def u_load():
        a(f"""
        s_cselect_b32 s19, {0 if OPT.get("forceslow") else 1}, 0
        s_mul_i32 s18, s6, {USZ}
        s_add_u32 s18, s18, {U_BASE}
        v_mov_b32 v20, 0
        v_mov_b32 v21, 0
        v_mov_b32 v22, 0
        v_mov_b32 v23, 0
        v_and_b32 v{t2}, 7, v0
        v_lshrrev_b32 v6, 3, v0
        v_and_b32 v6, 3, v6
        v_min_u32 v{t2}, 6, v{t2}
        v_mul_u32_u24 v6, {UPITCH}, v6
        v_lshl_add_u32 v{t2}, v{t2}, 4, v6
        v_add_u32 v{t2}, s18, v{t2}
        ds_write_b128 v{t2}, v[20:23]
        s_lshl_b32 s18, s6, 2
        s_add_u32 s18, s18, {S_LDS}
        v_mov_b32 v{t2}, s18
        v_mov_b32 v6, s19
        ds_write_b32 v{t2}, v6
        s_cmp_eq_u32 s19, 0
        s_cbranch_scc1 NOU{sfx}
        """)
        a.ext([("NOCOUNT", x) if is_vmem(x) else x for x in u_dma(VL, 7)])
        a(f"NOU{sfx}:")

    if gemm_wg:
        def wgrp(j):
            a(f"""
            s_add_u32 s17, s18, {j}
            s_and_b32 s17, s17, 3
            s_mul_i32 s{68+j}, s17, {16*3584}
            s_add_u32 s{68+j}, s{68+j}, s23
            s_lshl_b32 s{72+j}, s17, 12
            s_add_u32 s{72+j}, s{72+j}, s16
            """)
        a(f"""
        v_lshrrev_b32 v{t0}, 4, v0
        v_and_b32 v{t1}, 15, v0
        s_mov_b32 s18, s68
        s_mov_b32 s19, s69
        v_lshlrev_b32 v{t2}, 2, v{t0}
        s_lshl_b32 s23, s{S_CB}, 8
        v_xor_b32 v{t1}, v{t1}, v{t2}
        s_lshl_b32 s16, s6, 14
        v_mul_u32_u24 v{t0}, 3584, v{t0}
        s_add_u32 s16, s16, 16384
        v_lshl_add_u32 v{WV}, v{t1}, 4, v{t0}
        s_mov_b32 s{SW+2}, {512*1792*2}
        s_mov_b32 s{SW+3}, 0x00020000
        """)
        for i in range(1, 4):
            a(f"v_add_u32 v{WV+i}, {(4*3584-1024)*i}, v{WV}")
        wgrp(0)
        a.ext(bstamp(6, 1))
        a(f"""
        s_cmp_eq_u32 s6, 0
        s_waitcnt lgkmcnt(0)
        s_cselect_b32 s{SW}, s{S_WG}, s{S_WU}
        s_cselect_b32 s{SW+1}, s{S_WG+1}, s{S_WU+1}
        s_and_b32 s{SW+1}, s{SW+1}, 0xffff
        """)
        assert not ROT
        a.ext(bstamp(6, 2))
        a.ext(grp(0, 0))
        wgrp(1)
        a.ext(grp(0, 2))
        wgrp(2)
        a.ext(grp(0, 3))
        wgrp(3)
        a.ext(grp(0, 4))
        a(f"""
        v_lshrrev_b32 v{t0}, 3, v0
        v_and_b32 v{t1}, 7, v0
        v_lshrrev_b32 v{t2}, 1, v{t0}
        v_xor_b32 v{t1}, v{t1}, v{t2}
        v_lshlrev_b32 v{t0}, 10, v{t0}
        """)
        for i in range(4):
            a(f"""
            v_xor_b32 v{t2}, {4*(i&1)}, v{t1}
            v_lshl_add_u32 v{XV+i}, v{t2}, 4, v{t0}
            v_add_u32 v{XV+i}, {7168*i}, v{XV+i}
            """)
        a(f"""
        s_and_b32 s17, s19, 1
        s_lshl_b32 s17, s17, 1
        s_add_u32 s17, s17, s6
        s_lshl_b32 s16, s{S_RB}, 17
        s_lshl_b32 s8, s17, 15
        s_add_u32 s8, s8, s16
        s_lshl_b32 s10, s17, 12
        s_xor_b32 s17, s17, 2
        s_lshl_b32 s9, s17, 15
        s_add_u32 s9, s9, s16
        s_lshl_b32 s11, s17, 12
        s_mov_b32 s{SRD_X}, s{S_U}
        s_and_b32 s{SRD_X+1}, s{S_U+1}, 0xffff
        s_mov_b32 s{SRD_X+2}, {2048*512*2}
        s_mov_b32 s{SRD_X+3}, 0x00020000
        """)
        a.ext(grp(0, 1))
        a.ext(grp(0, 5))
        a.tag("st0")
        a(f"""
        s_lshl_b32 s22, s19, 1
        s_add_u32 s22, s22, s6
        s_and_b32 s22, s22, 7
        s_lshl_b32 s23, s22, 14
        s_add_u32 s23, s23, s16
        """)
        tail = {3: "S5 R5", 4: "S6 R6", 5: "S7 R7"}
        scheds = [
            {-1: "S0 S1 S2 R0 P3 P4", 0: "R1 P5 P6", 1: "R2 P7 S3", 2: "R3 S4 R4"},
            {-1: "S0 S1 S2 R0 R1", 0: "P3 P4 R2", 1: "P5 P6 P7 S3 R3", 2: "S4 R4"},
            {-1: "S0 R0 S1 R1", 0: "S2 R2", 1: "S3 R3", 2: "S4 R4"},
            {-1: "S0 R0 S1", 0: "R1 S2", 1: "R2 S3", 2: "R3 S4 R4"},
            {-1: "S0 R0 S1 S2 P3", 0: "R1 P4 P5", 1: "R2 P6 P7 S3", 2: "R3 S4 R4"},
            {-1: "S0 R0 S1 S2", 0: "R1 R2", 1: "S3 R3", 2: "S4 R4"},
            {-1: "S0 R0 S1 S2", 0: "R1 R2", 1: "S3 R3 P5", 2: "S4 R4 P6 P7"},
            {-1: "S0 R0 S1 S2", 0: "R1 R2 P3", 1: "S3 R3 P4 P5", 2: "S4 R4 P6 P7"},
            {-1: "S0 R0 S1 R1", 0: "S2", 1: "R2 S3", 2: "R3 S4 R4"},
            {-1: "S0 R0 S1 R1", 0: "S2", 1: "R2 S3 R3", 2: "S4 R4"},
            {-1: "S0 R0 S1 S2", 0: "R1", 1: "R2 S3 R3", 2: "S4 R4"},
        ]
        sched = dict(scheds[OPT.get("lsched", 5)])
        sched.update(tail)
        MP = OPT.get("mp", 1)
        NPF = OPT.get("np", -2)
        if NPF >= -1:
            sched[NPF] += " N0"
        if MP >= 0:
            sched[MP] += " M0"

        def issue(k):
            for tok in sched.get(k, "").split():
                st = int(tok[1:])
                if tok[0] == "S":
                    a.ext(kofs(st) + grp(st, 0) + grp(st, 1))
                elif tok[0] == "R":
                    a.ext(kofs(st))
                    for g in (2, 5, 3, 4):
                        a.ext(grp(st, g))
                    a.tag(f"st{st}")
                elif tok[0] == "P":
                    assert not ROT
                    a.ext(pref(st))
                elif tok[0] == "N":
                    a(f"""
                    s_mul_i32 s22, s{S_XCD}, 28
                    s_add_u32 s22, s22, s{S_IDX}
                    s_mul_i32 s22, s22, 5120
                    s_add_u32 s22, s22, {192*3584}
                    v_lshlrev_b32 v{VL}, 4, v0
                    s_add_u32 s17, s22, 4096
                    """)
                    for i in range(4):
                        a(f"buffer_load_dwordx4 {v(DUM+16+4*i,4)}, v{VL}, {sr(SW)}, s22 offen offset:{1024*i}")
                    a(f"buffer_load_dwordx4 {v(DUM+32,4)}, v{VL}, {sr(SW)}, s17 offen")
                elif tok[0] == "M":
                    a(f"""
                    s_mul_i32 s22, s{S_XCD}, 28
                    s_add_u32 s22, s22, s{S_IDX}
                    s_lshl_b32 s22, s22, 1
                    s_add_u32 s22, s22, s6
                    s_lshl_b32 s22, s22, 12
                    """)
                    for i in range(4):
                        a(f"buffer_load_dwordx4 {v(DUM+4*i,4)}, v{VL}, {sr(SRD_WD)}, s22 offen offset:{1024*i}")
        sched[-1] = sched[-1].replace("S0", "").replace("R0", "")
        issue(-1)
        a.ext(bstamp(6, 4))
        a.ext(stamp(1))
        srd(a, SRD_WS, S_WS, WS_BYTES)
        srd(a, SRD_WD, S_WD, 1792 * 512 * 2)
        poll_setup()
        for sidx in range(9):
            if sidx < 8:
                a.wait(f"st{sidx}")
            a.ext(bstamp(2, 1 + sidx))
            if sidx < 4:
                a.ext(bstamp(6, 5 + sidx))
            a("s_barrier")
            if sidx in (0, 3):
                a.ext(stamp(2 + (0, 3).index(sidx)))
            issue(sidx)
            if sidx == 2:
                wd_setup()
            if sidx == 6:
                a(f"s_setprio {OPT.get('lprio', 1)}")
            if 2 <= sidx <= 7:
                n = OPT.get(f"w{sidx}", {2: 0, 3: 0, 4: 0, 5: 6, 6: 11, 7: 11}[sidx])
                k = min(n, n1() - wpos[0])
                wd_ld(0, k)
                wd_ld(1, n - k)
            if sidx == 7:
                a.ext(fu_ld)
                a.tag("fu")
            if sidx == 8:
                a.ext(stamp(4))
                a(f"v_mov_b32 v6, {N_LDS}\nds_read_b32 v6, v6")
                wd_ld(0, 28)
                wd_ld(1, 28)
                wd_wr(0, OPT.get("e8", 6))
                a("s_waitcnt vmcnt(0)")
                a.L.append(("VMRESET",))
                a(f"s_waitcnt lgkmcnt(0)\nv_readfirstlane_b32 s{S_NONCE}, v6\ns_nop 3")
                a.ext(fu_chk)
                u_load()
                wd_wr(0, 28)
                wd_wr(1, 28)
        a("s_waitcnt vmcnt(0) lgkmcnt(0)")
        a.ext(stamp(5))
    else:
        a("s_waitcnt lgkmcnt(0)")
        srd(a, SRD_WS, S_WS, WS_BYTES)
        srd(a, SRD_WD, S_WD, 1792 * 512 * 2)
        poll_setup()
        wd_setup()
        a(f"v_mov_b32 v{t0}, 0")
        a("s_barrier")
        thr = OPT.get("sthr", 2)
        if thr:
            for _ in range(thr):
                wd_ld(0, 2)
                a("s_waitcnt vmcnt(0)")
        wd_ld(0, 28)
        wd_ld(1, 28)
        a(nonce_ld(6, t0))
        a.ext(fu_ld)
        wd_wr(0, 28)
        a("s_waitcnt vmcnt(0)")
        a.L.append(("VMRESET",))
        a.ext(stamp(4))
        a.ext(nonce_get(f"NL{sfx}", 6, t0))
        a.ext(fu_chk)
        u_load()
        wd_wr(1, 28)
        a("s_waitcnt vmcnt(0) lgkmcnt(0)")
        a.ext(stamp(5))
    a("s_branch L_CONVA")
    return resolve_vm(a.L)


def conv(a0, partB):
    a = Asm()
    KA, UA, YA = 2, 3, 5
    qs, outq = ([5, 6, 7], [6, 7]) if partB else ([0, 1, 2, 3, 4, 5], [0, 1, 2, 3, 4, 5])
    a(f"""
    s_lshl_b32 s8, s6, 13
    s_add_u32 s8, s8, {KG_BASE + KARR + 32}
    s_mul_i32 s9, s6, {USZ}
    s_add_u32 s9, s9, {U_BASE + 16}
    v_lshrrev_b32 v6, 2, v0
    v_and_b32 v10, 7, v6
    v_and_b32 v6, 3, v6
    v_and_b32 v7, 3, v0
    v_lshrrev_b32 v8, 4, v0
    v_and_b32 v8, 1, v8
    v_lshrrev_b32 v9, 5, v0
    v_mul_u32_u24 v{UA}, {UPITCH}, v7
    v_sub_u32 v10, v10, v9
    v_lshl_add_u32 v{UA}, v10, 4, v{UA}
    v_add_u32 v{UA}, s9, v{UA}
    v_lshlrev_b32 v{KA}, 5, v8
    v_lshl_add_u32 v{KA}, v7, 3, v{KA}
    v_lshl_add_u32 v{KA}, v9, 6, v{KA}
    v_lshlrev_b32 v10, 3, v6
    v_sub_u32 v{KA}, v{KA}, v10
    v_add_u32 v{KA}, s8, v{KA}
    """)
    qmax = max(qs)
    nst = 4 * qmax + 4
    NU = 4
    UBUF = 8
    KT = 24
    ACC = KT + 4 * nst
    TMP = ACC + 16 * len(qs)
    assert TMP + 3 * len(qs) + 1 <= 256

    def acc(q):
        return ACC + 16 * qs.index(q)

    need = {}
    for i in range(nst):
        for q in qs:
            s_ = 4 * q + 3 - i
            if s_ >= 0 and s_ not in need:
                need[s_] = i

    def rd(i):
        L = [f"ds_read_b128 {v(UBUF+4*(i%NU),4)}, v{UA} offset:{32*i}"]
        for s_ in sorted(s for s in need if need[s] == i):
            L += [f"ds_read_b64_tr_b16 {v(KT+4*s_,2)}, v{KA} offset:{128*s_+32}",
                  f"ds_read_b64_tr_b16 {v(KT+4*s_+2,2)}, v{KA} offset:{128*s_}"]
        L.append(("LTAG", f"R{i}"))
        return L

    PF = NU - 1
    a(f"""
    v_and_b32 v4, 7, v0
    v_lshrrev_b32 v{YA}, 3, v0
    v_lshlrev_b32 v{YA}, 4, v{YA}
    v_lshl_add_u32 v{YA}, v4, 7, v{YA}
    v_mov_b32 v6, 0
    v_mov_b32 v7, s{S_NONCE}
    s_mov_b32 s12, 0
    s_mov_b32 s13, 0x80000000
    s_mov_b32 s14, 0
    s_mov_b32 s15, 0xc0000000
    s_mov_b32 s16, 0
    s_mov_b32 s17, 0xe0000000
    s_lshl_b32 s7, s2, 1
    s_add_u32 s7, s7, s6
    s_mul_i32 s18, s7, {DP}
    s_add_u32 s18, s18, {Y_OFF}
    s_lshl_b32 s19, s2, 4
    s_add_u32 s19, s19, s6
    s_lshl_b32 s19, s19, 3
    s_add_u32 s19, s19, {FY_OFF + (4 if partB else 0)}
    """)
    a(f"s_setprio {OPT.get('cprio', 3)}")
    P = "B" if partB else "A"
    a(f"""
    s_lshl_b32 s52, s6, 2
    s_add_u32 s52, s52, {S_LDS}
    v_mov_b32 v4, s52
    """)
    a("s_barrier")
    a.ext(stamp(6))
    a("ds_read_b32 v4, v4")
    a.L.append(("LTAG", "ST"))
    a(f"CV{P}_GO:")
    a.ext(rd(0))
    a.L.append(("LWAIT", "ST"))
    a(f"""
    v_readfirstlane_b32 s52, v4
    s_nop 3
    s_cmp_eq_u32 s52, 0
    s_cbranch_scc1 CV{P}_SLOW
    """)
    a.ext(rd(1))

    def Y(q, g, rho):
        return acc(q) + 4 * g + rho

    dpp = "wave_ror:1 row_mask:0xf bank_mask:0xf"
    ctl = "row_mask:0xf bank_mask:0xf"

    def post(q):
        L = []
        Z = {}
        for g in (3, 2, 1, 0):
            for rho in (1, 2, 3):
                Z[g, rho] = TMP + 3 * qs.index(q) + rho - 1 if g == 3 else Y(q, g, rho)
                if g > 0:
                    prev = f"v{Y(q,g-1,rho)}"
                elif q > 0:
                    prev = f"v{Y(q-1,3,rho)}"
                else:
                    prev = "v6"
                L.append(f"v_cndmask_b32 v{Z[g,rho]}, v{Y(q,g,rho)}, {prev}, s[{10+2*rho}:{11+2*rho}]")
        for g in (3, 2, 1, 0):
            L.append(f"v_add_f32_dpp v{Z[g,2]}, v{Z[g,3]}, v{Z[g,2]} {dpp}")
        for g in (3, 2, 1, 0):
            L.append(f"v_add_f32_dpp v{Z[g,1]}, v{Z[g,2]}, v{Z[g,1]} {dpp}")
        for g in (3, 2, 1, 0):
            L.append(f"v_add_f32_dpp v{Y(q,g,0)}, v{Z[g,1]}, v{Y(q,g,0)} {dpp}")
        return L

    def stage(S_, D_, bit, stride):
        m = {0: 0xaaaaaaaa, 1: 0xcccccccc, 2: 0xf0f0f0f0}[bit]
        up = {0: "quad_perm:[1,0,3,2]", 1: "quad_perm:[2,3,0,1]", 2: "row_ror:12"}[bit]
        dn = {0: "quad_perm:[1,0,3,2]", 1: "quad_perm:[2,3,0,1]", 2: "row_ror:4"}[bit]
        L = [f"s_mov_b32 vcc_lo, {m:#x}", f"s_mov_b32 vcc_hi, {m:#x}"]
        idx = [i for i in range(len(S_)) if not (i // stride) & 1]
        L += [f"v_cndmask_b32_dpp v{D_[i+stride]}, v{S_[i]}, v{S_[i+stride]}, vcc {up} {ctl}" for i in idx]
        L += ["s_not_b64 vcc, vcc"]
        L += [f"v_cndmask_b32_dpp v{D_[i]}, v{S_[i+stride]}, v{S_[i]}, vcc {dn} {ctl}" for i in idx]
        return L

    def xpose(q):
        S0 = [Y(q - 1 + (g >> 2), g & 3, 0) for g in range(8)]
        free = [Y(qq, g, r) for qq in (q - 1, q) for g in range(3) for r in (1, 2, 3)]
        D0 = free[:8]
        S1 = free[8:12]
        D1 = free[12:16]
        D2 = [acc(q - 1) + i for i in range(4)]
        L = stage(S0, D0, 0, 1)
        L += [f"v_cvt_pk_bf16_f32 v{S1[g]}, v{D0[2*g]}, v{D0[2*g+1]}" for g in range(4)]
        L += stage(S1, D1, 1, 1)
        L += stage(D1, D2, 2, 2)
        L.append(f"buffer_store_dwordx4 {v(D2[0],4)}, v{YA}, {sr(SRD_WS)}, s18 offen offset:{(q-1)*512} sc1")
        return L

    pend = []
    FILL = OPT.get("cfill", 4)
    since = {}
    issued = 2
    for i in range(nst):
        a.L.append(("LWAIT", f"R{i}"))
        rl = []
        while issued < nst and issued <= i + (2 if i < 2 else PF):
            rl += rd(issued)
            issued += 1
        act = [q for q in qs if 4 * q + 3 - i >= 0]
        per = -(-len(rl) // len(act))
        for q in act:
            s_ = 4 * q + 3 - i
            c = "0" if i == 0 else v(acc(q), 16)
            a(f"v_mfma_f32_32x32x16_bf16 {v(acc(q),16)}, {v(UBUF+4*(i%NU),4)}, {v(KT+4*s_,4)}, {c}")
            a.ext(rl[:per])
            rl = rl[per:]
            if s_ == 0:
                since[q] = len(a.L)
            for qq in list(since):
                if len([x for x in a.L[since[qq]:] if isinstance(x, str)]) >= 14:
                    del since[qq]
                    if qq in outq:
                        pend += post(qq)
                        if (qq - outq[0]) & 1:
                            pend += xpose(qq)
            a.ext(pend[:FILL])
            pend = pend[FILL:]
    a.ext(stamp(7))
    a.ext(pend)
    a("s_nop 7\ns_nop 3")
    for qq in sorted(since):
        if qq in outq:
            a.ext(post(qq))
            if (qq - outq[0]) & 1:
                a.ext(xpose(qq))
    a.ext(stamp(8))
    a(f"""
    s_waitcnt vmcnt(0)
    s_mov_b64 exec, 1
    buffer_store_dword v7, v6, {sr(SRD_WS)}, s19 offen sc1
    s_mov_b64 exec, -1
    """)
    if partB:
        E = 8
        a(f"""
        s_cmp_lg_u32 s6, 0
        s_cbranch_scc1 CV_NOGATE
        s_lshl_b32 s16, s{S_XCD}, 9
        s_add_u32 s16, s16, {FG_OFF}
        v_lshrrev_b32 v2, 2, v0
        v_and_b32 v3, 3, v0
        v_and_b32 v4, 3, v2
        v_lshlrev_b32 v4, 7, v4
        v_lshl_add_u32 v4, v3, 2, v4
        v_lshlrev_b32 v2, 2, v2
        v_lshl_add_u32 v2, v3, 11, v2
        s_mov_b32 s77, 0x100000
        """)
        a(rb64_scalar(17, 22))
        a(f"s_lshl_b32 s17, s17, 6\ns_add_u32 s17, s17, {GL_OFF}")
        a.ext(plain(spin("PG", [f"buffer_load_dword v5, v4, {sr(SRD_WS)}, s16 offen sc1"],
                         [f"v_cmp_eq_u32 vcc, s{S_NONCE}, v5", "s_nop 3", "s_cmp_eq_u64 vcc, exec"], 1)))
        for g in range(8):
            a(f"buffer_load_dword v{E+g}, v2, {sr(SRD_WS)}, s17 offen sc1")
            if g < 7:
                a("s_add_u32 s17, s17, 8192")
        a(f"""
        s_waitcnt vmcnt(0)
        v_add_f32 v{E}, v{E}, v{E+1}
        v_add_f32 v{E+2}, v{E+2}, v{E+3}
        v_add_f32 v{E+4}, v{E+4}, v{E+5}
        v_add_f32 v{E+6}, v{E+6}, v{E+7}
        v_add_f32 v{E}, v{E}, v{E+2}
        v_add_f32 v{E+4}, v{E+4}, v{E+6}
        v_add_f32 v{E}, v{E}, v{E+4}
        v_cvt_pk_bf16_f32 v{E}, v{E}, v{E}
        v_lshlrev_b32 v{E}, 16, v{E}
        v_mul_f32 v{E}, {f32(-LOG2E)}, v{E}
        v_exp_f32 v{E}, v{E}
        v_lshlrev_b32 v2, 2, v0
        v_add_f32 v{E}, 1.0, v{E}
        v_rcp_f32 v{E}, v{E}
        v_add_u32 v2, {G_LDS}, v2
        v_cvt_pk_bf16_f32 v{E}, v{E}, v{E}
        v_lshlrev_b32 v{E}, 16, v{E}
        ds_write_b32 v2, v{E}
        s_waitcnt lgkmcnt(0)
        CV_NOGATE:
        """)
    a.ext(stamp_end())
    st, ld, chk = fu_code(TMP, TMP + 1, TMP + 2, 7)
    a(f"CV{P}_SLOW:")
    a("s_waitcnt lgkmcnt(0)\ns_mov_b32 s77, 0x100000")
    a.ext(st)
    a.ext(plain(spin(f"PU{P}", ld, chk, 8)))
    a(f"v_lshlrev_b32 v{TMP}, 4, v0")
    a.ext(u_dma(TMP, 7))
    a(f"""
    s_mov_b32 s16, 0
    s_mov_b32 s17, 0xe0000000
    v_mov_b32 v4, 1
    s_waitcnt vmcnt(0)
    s_branch CV{P}_GO
    """)
    a0.ext(resolve_lds(a.L))


HEADER = open("cdna_kernels/" + NAME + ".s.ref").read().split("; Override launch")[0]


def main(path):
    a = Asm()
    prologue(a)
    a("L_SPARE:")
    a(f"s_and_b32 s{S_XCD}, s2, 7\ns_lshr_b32 s{S_IDX}, s2, 3\ns_waitcnt lgkmcnt(0)")
    srd(a, SRD_X, S_U, 2048 * 512 * 2)
    g_srds(a)
    spare(a)
    a("s_branch L_GEMM2")
    a("L_GEMM1:")
    gemm1(a)
    a("L_GEMM2:")
    gemm2(a)
    a("L_LWAVE_S:")
    a.ext(lwave(False))
    a("L_KWAVE:")
    a.ext(kwave(True))
    a("L_KWAVE_S:")
    a.ext(kwave(False))
    a("L_CONVA:")
    conv(a, False)
    a("L_CONVB:")
    conv(a, True)
    a("L_END:\ns_endpgm")
    body = "\n".join(("" if ln.endswith(":") or ln.startswith(".") else "    ") + ln for ln in a.L)
    kn = NAME + "_kernel"
    txt = HEADER
    if OPT.get("list"):
        txt += f"; @launch kernel={kn} grid=(256,1,1) block=(512,1,1) lds=163840\n"
    else:
        txt += "; @launch grid=(256,1,1) block=(512,1,1) lds=163840\n"
    txt += '.amdgcn_target "amdgcn-amd-amdhsa--gfx950"\n.text\n'
    txt += f".globl {kn}\n.p2align 8\n.type {kn},@function\n{kn}:\n"
    txt += body + "\n"
    txt += f"""
.section .rodata,"a"
.p2align 6
.amdhsa_kernel {kn}
  .amdhsa_next_free_vgpr 256
  .amdhsa_next_free_sgpr 102
  .amdhsa_accum_offset 256
  .amdhsa_group_segment_fixed_size 0
  .amdhsa_kernarg_size 136
  .amdhsa_user_sgpr_count 2
  .amdhsa_user_sgpr_kernarg_segment_ptr 1
  .amdhsa_system_sgpr_workgroup_id_x 1
.end_amdhsa_kernel
"""
    open(path, "w").write(txt)


if __name__ == "__main__":
    for o in list(sys.argv):
        if o.startswith("--opt="):
            k, _, val = o[6:].partition(":")
            OPT[k] = int(val) if val else 1
            sys.argv.remove(o)
    if OPT.get("oldlay"):
        DP = 4096
        UT_OFF, Y_OFF, GL_OFF = 0x800000, 0xC00000, 0xE00000
        FH_OFF, FY_OFF, FU_OFF, FD_OFF = 0xE40000, 0xE60000, 0xE68000, 0xE80000
    if OPT.get("dp"):
        DP = OPT["dp"]
    if "--stamps" in sys.argv:
        STAMPS = True
        sys.argv.remove("--stamps")
    main(sys.argv[1] if len(sys.argv) > 1 else "cdna_kernels/" + NAME + ".s")
```

```python
import sys, struct

NAME = "gated_mix__ssm_conv_s4__swiglu_ffn__prompt"

H_OFF = 0x000000
DP = 4224
UT_OFF = 0x800000
Y_OFF = 0xA80000
KX_OFF = 0xD00000
GL_OFF = 0xF00000
ST_OFF = 0xF20000
FH_OFF = 0xF40000
FY_OFF = 0xF60000
FU_OFF = 0xF68000
FG_OFF = 0xF6A000
FD_OFF = 0xF80000
WS_BYTES = 0x1000000

STAMPS = False
HDL = []
OPT = {}
ST_BASE = 78
NST = 12


def f32(x):
    return "0x%08x" % struct.unpack("<I", struct.pack("<f", x))[0]


LOG2E = 1.4426950408889634
LOG2E_HI = struct.unpack("<f", struct.pack("<f", LOG2E))[0]
LOG2E_LO = LOG2E - LOG2E_HI
LN2 = 0.6931471805599453
INV2PI = 0.15915494309189535


class Asm:
    def __init__(self):
        self.L = []

    def __call__(self, s):
        for line in s.strip().split("\n"):
            line = line.strip()
            if line:
                self.L.append(line)

    def ext(self, lines):
        self.L.extend(lines)

    def tag(self, n):
        self.L.append(("VMTAG", n))

    def wait(self, n):
        self.L.append(("VMWAIT", n))


def v(b, n=1):
    return f"v{b}" if n == 1 else f"v[{b}:{b+n-1}]"


def sr(b):
    return f"s[{b}:{b+3}]"


class RA:
    def __init__(self, start, end):
        self.p = start
        self.end = end

    def __call__(self, n=1, align=1):
        self.p = (self.p + align - 1) // align * align
        r = self.p
        self.p += n
        assert self.p <= self.end, "out of registers"
        return r


def stamp(k, force=False):
    if not STAMPS:
        return []
    assert k < NST
    if OPT.get("dbgbar") and 1 <= k <= 9 and not force:
        return []
    op = "s_memtime" if OPT.get("cyc") else "s_memrealtime"
    return [f"{op} s[{ST_BASE+2*k}:{ST_BASE+2*k+1}]"]


def bstamp(mode, k):
    return stamp(k, True) if OPT.get("dbgbar") == mode else []


def stamp_end():
    if not STAMPS:
        return ["s_endpgm"]
    L = stamp(10) + ["s_waitcnt vmcnt(0)"] + stamp(11)
    L += ["s_waitcnt lgkmcnt(0)", "s_mov_b64 exec, 1", "s_lshl_b32 s74, s2, 3", f"s_add_u32 s74, s74, s{S_WIDX}",
          "s_lshl_b32 s74, s74, 6", f"s_add_u32 s74, s74, {ST_OFF}", "v_mov_b32 v1, 0"]
    for k in range(NST):
        L.append(f"v_mov_b32 v{4+k}, s{ST_BASE+2*k}")
    for k in range(0, NST, 4):
        L.append(f"buffer_store_dwordx4 v[{4+k}:{7+k}], v1, {sr(SRD_WS)}, s74 offen offset:{4*k}")
    if OPT.get("hdbg"):
        lab = f"HD{len(HDL)}"
        HDL.append(lab)
        L += [f"v_not_b32 v20, v4", f"global_atomic_umax v1, v20, s[{S_DBG}:{S_DBG+1}] offset:56",
              f"global_atomic_umax v1, v15, s[{S_DBG}:{S_DBG+1}] offset:60",
              f"s_cmp_lg_u32 s2, {OPT['hdbg']}", f"s_cbranch_scc1 {lab}", f"s_cmp_lg_u32 s{S_WIDX}, 0", f"s_cbranch_scc1 {lab}"]
        words = [1, 2, 3, 4, 5, 6, 7, 9, 10, 11, 12]
        for k in range(1, NST):
            L += [f"v_sub_u32 v20, v{4+k}, v4", f"global_store_dword v1, v20, s[{S_DBG}:{S_DBG+1}] offset:{4*words[k-1]}", "s_nop 1"]
        L += [f"global_store_dword v1, v4, s[{S_DBG}:{S_DBG+1}] offset:52"]
        L.append(f"{lab}:")
    L.append("s_endpgm")
    return L


def is_vmem(line):
    return line.startswith("buffer_") or line.startswith("global_")


def resolve_vm(lines):
    out = []
    count = 0
    tags = {}
    done = -1
    for ln in lines:
        if isinstance(ln, tuple):
            if ln[0] == "VMTAG":
                tags[ln[1]] = count
            elif ln[0] == "VMWAIT":
                if tags[ln[1]] <= done:
                    continue
                n = count - tags[ln[1]]
                assert 0 <= n <= 63, n
                out.append(f"s_waitcnt vmcnt({n})")
                done = tags[ln[1]]
            elif ln[0] == "VMRESET":
                done = count
            elif ln[0] == "NOCOUNT":
                out.append(ln[1])
            else:
                raise ValueError(ln)
        else:
            if is_vmem(ln):
                count += 1
            out.append(ln)
    return out


def resolve_lds(lines):
    out = []
    count = 0
    tags = {}
    for ln in lines:
        if isinstance(ln, tuple):
            if ln[0] == "LTAG":
                tags[ln[1]] = count
            elif ln[0] == "LWAIT":
                out.append(f"s_waitcnt lgkmcnt({min(15, count - tags[ln[1]])})")
            else:
                raise ValueError(ln)
        else:
            if ln.startswith("ds_"):
                count += 1
            out.append(ln)
    return out


SLOT = 49152
KG_BASE = 147456
KARR = 3584
U_BASE = 131072
UPITCH = 1344
USZ = 4 * UPITCH
YB_BASE = U_BASE + 2 * USZ
RING2 = 32768

S_U = 4
S_ARE, S_AIM, S_BRE, S_BIM, S_CRE, S_CIM, S_LDT = 54, 56, 58, 60, 62, 64, 66
S_DS = 20
S_WG, S_WU, S_WD, S_GW = 24, 26, 28, 30
S_OUT, S_DBG, S_WS = 32, 34, 36
S_WIDX, S_XCD, S_IDX, S_RB, S_CB, S_PHI = 38, 39, 40, 41, 42, 43
SRD_X, SRD_WG, SRD_WU, SRD_WS, SRD_WD, SRD_OUT = 44, 48, 52, 56, 60, 64


def srd(a, d, base, nbytes):
    if base == S_WS and OPT.get("wsoff"):
        a(f"""
        s_add_u32 s{d}, s{base}, {OPT["wsoff"] << 20}
        s_addc_u32 s{d+1}, s{base+1}, 0
        s_and_b32 s{d+1}, s{d+1}, 0xffff
        s_mov_b32 s{d+2}, {nbytes}
        s_mov_b32 s{d+3}, 0x00020000
        """)
        return
    a(f"""
    s_mov_b32 s{d}, s{base}
    s_and_b32 s{d+1}, s{base+1}, 0xffff
    s_mov_b32 s{d+2}, {nbytes}
    s_mov_b32 s{d+3}, 0x00020000
    """)


def mapping(a):
    a(f"""
    s_and_b32 s{S_XCD}, s2, 7
    s_lshr_b32 s{S_IDX}, s2, 3
    """)
    if OPT.get("map", 1) == 0:
        a(f"""
        s_and_b32 s68, s{S_IDX}, 3
        s_lshr_b32 s69, s{S_IDX}, 2
        s_lshr_b32 s{S_RB}, s{S_XCD}, 1
        s_lshl_b32 s{S_RB}, s{S_RB}, 2
        s_add_u32 s{S_RB}, s{S_RB}, s68
        s_and_b32 s{S_CB}, s{S_XCD}, 1
        s_mul_i32 s{S_CB}, s{S_CB}, 7
        s_add_u32 s{S_CB}, s{S_CB}, s69
        s_lshl_b32 s{S_PHI}, s68, 1
        s_add_u32 s{S_PHI}, s{S_PHI}, s69
        s_and_b32 s{S_PHI}, s{S_PHI}, 7
        """)
    else:
        a(f"""
        s_and_b32 s70, s{S_XCD}, 1
        s_lshl_b32 s70, s70, 2
        s_and_b32 s68, s{S_IDX}, 7
        s_lshr_b32 s69, s{S_IDX}, 3
        s_add_u32 s71, s69, s70
        s_add_u32 s72, s68, s70
        s_cmp_ge_u32 s{S_IDX}, 24
        s_cselect_b32 s71, 3, s71
        s_cselect_b32 s68, s72, s68
        s_lshr_b32 s{S_CB}, s{S_XCD}, 1
        s_and_b32 s{S_CB}, s{S_CB}, 1
        s_mul_i32 s{S_CB}, s{S_CB}, 7
        s_add_u32 s{S_CB}, s{S_CB}, s71
        s_lshr_b32 s{S_RB}, s{S_XCD}, 2
        s_lshl_b32 s{S_RB}, s{S_RB}, 3
        s_add_u32 s{S_RB}, s{S_RB}, s68
        s_lshl_b32 s{S_PHI}, s69, 1
        s_add_u32 s{S_PHI}, s{S_PHI}, s68
        s_and_b32 s{S_PHI}, s{S_PHI}, 7
        """)


K_PR = 6


def kparam_loads():
    va, vb = K_PR + 5, K_PR + 7
    L = [f"global_load_dword v{K_PR+i}, v{va}, s[{sb}:{sb+1}]" for i, sb in enumerate((S_ARE, S_AIM, S_BRE, S_BIM, S_CRE, S_CIM))]
    L += [f"global_load_ushort v{K_PR+6}, v{vb}, s[{S_LDT}:{S_LDT+1}]", f"global_load_ushort v{K_PR+7}, v{vb}, s[{S_DS}:{S_DS+1}]"]
    return L


def prologue(a):
    a("""
    s_cmp_ge_u32 s2, 256
    s_cbranch_scc1 L_END
    """)
    if STAMPS:
        a.ext([f"s_mov_b32 s{ST_BASE+2*k}, 0" for k in range(NST)])
    a.ext(stamp(0))
    a(f"""
    s_load_dwordx8 s[24:31], s[0:1], 80
    s_load_dwordx16 s[52:67], s[0:1], 0
    s_load_dwordx2 s[4:5], s[0:1], 0
    s_load_dwordx2 s[36:37], s[0:1], 128
    s_load_dwordx4 s[32:35], s[0:1], 112
    s_load_dwordx2 s[20:21], s[0:1], 64
    v_lshrrev_b32 v1, 6, v0
    v_and_b32 v0, 63, v0
    s_nop 0
    v_readfirstlane_b32 s{S_WIDX}, v1
    s_lshl_b32 s69, s2, 1
    v_lshlrev_b32 v2, 2, v0
    s_nop 1
    s_cmp_lt_u32 s{S_WIDX}, 6
    s_cbranch_scc1 L_NOTK
    s_sub_u32 s68, s{S_WIDX}, 6
    s_add_u32 s69, s69, s68
    s_lshl_b32 s71, s69, 8
    v_add_u32 v2, s71, v2
    s_lshl_b32 s72, s69, 1
    v_mov_b32 v3, s72
    s_waitcnt lgkmcnt(0)
    """)
    a(f"v_mov_b32 v{K_PR+5}, v2\nv_mov_b32 v{K_PR+7}, v3")
    a(f"s_and_b32 s{S_XCD}, s2, 7\ns_lshr_b32 s{S_IDX}, s2, 3")
    a("s_cmp_lt_u32 s2, 224\ns_cbranch_scc1 L_KWAVE")
    a.ext(kparam_loads())
    a("s_branch L_KWAVE_S\nL_NOTK:")
    a(f"""
    s_cmp_ge_u32 s{S_WIDX}, 4
    s_cbranch_scc1 L_ISL
    """)
    a(f"""
    s_getpc_b64 s[70:71]
    L_PC:
    s_sub_u32 s70, s70, L_PC-{NAME}_kernel
    s_subb_u32 s71, s71, 0
    s_lshr_b32 s72, s2, 3
    s_lshl_b32 s72, s72, 2
    s_add_u32 s72, s72, s{S_WIDX}
    s_lshl_b32 s72, s72, 9
    v_and_b32 v2, 7, v0
    v_lshlrev_b32 v2, 6, v2
    v_add_u32 v2, s72, v2
    v_min_u32 v2, L_END-{NAME}_kernel, v2
    global_load_dword v127, v2, s[70:71]
    s_cmp_lt_u32 s2, 224
    s_cbranch_scc1 L_GEMM1
    s_branch L_SPARE
    L_ISL:
    """)
    mapping(a)
    a(f"""
    s_sub_u32 s6, s{S_WIDX}, 4
    s_cmp_ge_u32 s{S_IDX}, 28
    s_cbranch_scc1 L_LWAVE_S
    """)
    a.ext(lwave(True))


def g_srds(a):
    srd(a, SRD_WS, S_WS, WS_BYTES)
    srd(a, SRD_WD, S_WD, 1792 * 512 * 2)
    srd(a, SRD_OUT, S_OUT, 2048 * 512 * 2)


VL16 = 1
XD = 8
(VD0, VD1, DA0, DA1, VEP, VPH, VFL, VG, VY, VYW, VYT, VW1, VW2, VW3, VR1, VR23) = range(112, 128)
YT_BASE = YB_BASE
G_LDS = YB_BASE
N_LDS = YB_BASE + 256
S_LDS = YB_BASE + 272
def n1():
    return OPT.get("n1", 14)


def rot_scalar(dst, tmp):
    m = OPT.get("rmode", 0)
    if m == 1:
        return f"""
        s_lshr_b32 s{dst}, s{S_IDX}, 1
        s_and_b32 s{dst}, s{dst}, 2
        s_mul_i32 s{dst}, s{dst}, 7
        """
    if m == 2:
        return f"""
        s_lshr_b32 s{dst}, s{S_IDX}, 1
        s_and_b32 s{dst}, s{dst}, 2
        s_and_b32 s{tmp}, s{S_IDX}, 1
        s_add_u32 s{dst}, s{dst}, s{tmp}
        s_mul_i32 s{dst}, s{dst}, 7
        """
    return f"""
    s_lshr_b32 s{dst}, s{S_IDX}, 1
    s_and_b32 s{dst}, s{dst}, 2
    s_add_u32 s{dst}, s{dst}, s{S_IDX}
    s_and_b32 s{dst}, s{dst}, 3
    s_mul_i32 s{dst}, s{dst}, 7
    """


def rb64_scalar(dst, tmp):
    return f"""
    s_lshl_b32 s{dst}, s{S_XCD}, 2
    s_and_b32 s{tmp}, s{S_IDX}, 3
    s_add_u32 s{dst}, s{dst}, s{tmp}
    """


def cb64_scalar(dst, tmp):
    return f"""
    s_lshr_b32 s{dst}, s{S_IDX}, 2
    s_lshr_b32 s{tmp}, s{S_WD}, 7
    s_sub_u32 s{dst}, s{dst}, s{tmp}
    s_add_u32 s{dst}, s{dst}, {OPT.get("cbs", 4)}
    s_and_b32 s{dst}, s{dst}, 7
    """


def gemm2_setup(a):
    a(rb64_scalar(6, 13))
    a(cb64_scalar(7, 13))
    a(f"""
    s_lshl_b32 s17, s6, 6
    s_lshr_b32 s23, s{S_WIDX}, 1
    s_lshl_b32 s13, s23, 5
    s_add_u32 s17, s17, s13
    s_lshl_b32 s18, s7, 6
    s_and_b32 s14, s{S_WIDX}, 1
    s_lshl_b32 s13, s14, 5
    s_add_u32 s18, s18, s13
    v_lshrrev_b32 v5, 5, v0
    v_and_b32 v6, 31, v0
    v_add_u32 v6, s17, v6
    v_lshlrev_b32 v7, 4, v5
    v_add_u32 v7, s18, v7
    v_lshlrev_b32 v7, 1, v7
    v_lshl_add_u32 v{VEP}, v6, 10, v7
    s_lshl_b32 s8, s{S_WIDX}, 15
    s_lshl_b32 s9, s6, 1
    s_add_u32 s9, s9, s23
    s_mul_i32 s9, s9, 112
    s_mul_i32 s13, s{S_WIDX}, 28
    s_add_u32 s9, s9, s13
    s_lshl_b32 s9, s9, 10
    s_mul_i32 s22, s23, {224*1024}
    s_sub_u32 s22, {112*1024}, s22
    s_lshl_b32 s10, s13, 14
    s_lshl_b32 s13, s7, 7
    {"s_cmp_ge_u32 s2, 224" if OPT.get("fakecb") else ""}
    {"s_cselect_b32 s12, 128, 0" if OPT.get("fakecb") else ""}
    {"s_xor_b32 s13, s13, s12" if OPT.get("fakecb") else ""}
    s_add_u32 s10, s10, s13
    """)
    a(rot_scalar(12, 13))
    a(f"""
    s_add_u32 s11, s12, {n1()}
    s_cmp_ge_u32 s11, 28
    s_cselect_b32 s13, 28, 0
    s_sub_u32 s11, s11, s13
    s_lshl_b32 s15, s6, 5
    s_mul_i32 s13, s{S_WIDX}, 7
    s_add_u32 s15, s15, s13
    s_lshl_b32 s15, s15, 7
    s_add_u32 s15, s15, {FH_OFF}
    s_lshl_b32 s13, s7, 2
    s_add_u32 s13, s13, s{S_WIDX}
    s_lshl_b32 s16, s13, 10
    s_add_u32 s16, s16, {FY_OFF}
    s_mul_i32 s19, s13, {16*DP}
    s_lshl_b32 s13, s6, 7
    s_add_u32 s19, s19, s13
    s_add_u32 s19, s19, {Y_OFF}
    v_lshlrev_b32 v{VL16}, 4, v0
    v_lshrrev_b32 v2, 3, v0
    v_and_b32 v3, 7, v0
    v_mul_u32_u24 v{VY}, {DP}, v2
    v_lshl_add_u32 v{VY}, v3, 4, v{VY}
    v_lshrrev_b32 v4, 1, v2
    v_and_b32 v4, 1, v4
    v_lshlrev_b32 v4, 2, v4
    v_xor_b32 v3, v3, v4
    v_lshlrev_b32 v{VD0}, 10, v2
    v_lshl_add_u32 v{VD0}, v3, 4, v{VD0}
    v_add_u32 v{VD1}, {8192-1024}, v{VD0}
    v_lshlrev_b32 v{VYW}, 7, v2
    v_lshl_add_u32 v{VYW}, v3, 4, v{VYW}
    v_add_u32 v{VYW}, s8, v{VYW}
    v_lshrrev_b32 v2, 2, v0
    v_and_b32 v2, 3, v2
    v_and_b32 v3, 3, v0
    v_lshrrev_b32 v4, 4, v0
    v_and_b32 v4, 1, v4
    v_lshl_add_u32 v6, v5, 2, v2
    v_lshlrev_b32 v6, 7, v6
    v_and_b32 v7, 1, v3
    v_lshl_add_u32 v6, v7, 5, v6
    v_lshl_add_u32 v6, v4, 4, v6
    v_lshrrev_b32 v7, 1, v3
    v_lshl_add_u32 v6, v7, 3, v6
    v_add_u32 v6, s8, v6
    v_lshrrev_b32 v7, 1, v2
    v_xor_b32 v7, s14, v7
    v_lshl_add_u32 v{DA0}, v7, 6, v6
    v_xor_b32 v7, 1, v7
    v_lshl_add_u32 v{DA1}, v7, 6, v6
    s_lshl_b32 s13, s14, 1
    v_add_u32 v6, s13, v5
    v_lshlrev_b32 v{VYT}, 15, v6
    v_lshl_add_u32 v{VYT}, v2, 7, v{VYT}
    v_lshrrev_b32 v7, 1, v2
    v_xor_b32 v7, s23, v7
    v_lshl_add_u32 v{VYT}, v7, 6, v{VYT}
    v_lshl_add_u32 v{VYT}, v4, 5, v{VYT}
    v_lshl_add_u32 v{VYT}, v3, 3, v{VYT}
    v_min_u32 v{VPH}, 6, v0
    v_lshlrev_b32 v{VPH}, 7, v{VPH}
    v_lshrrev_b32 v2, 2, v0
    v_and_b32 v2, 7, v2
    v_lshlrev_b32 v{VFL}, 7, v2
    v_lshl_add_u32 v{VFL}, v3, 2, v{VFL}
    v_and_b32 v{VG}, 31, v0
    s_lshl_b32 s13, s23, 5
    v_add_u32 v{VG}, s13, v{VG}
    v_lshlrev_b32 v{VG}, 2, v{VG}
    v_add_u32 v{VG}, {G_LDS}, v{VG}
    v_add_u32 v{VW1}, s8, v{VL16}
    s_xor_b32 s13, s{S_WIDX}, 1
    s_lshl_b32 s13, s13, 15
    v_add_u32 v{VR1}, s13, v{VL16}
    s_xor_b32 s13, s{S_WIDX}, 2
    s_lshl_b32 s13, s13, 15
    v_add_u32 v{VW2}, s13, v{VL16}
    s_xor_b32 s13, s{S_WIDX}, 3
    s_lshl_b32 s13, s13, 15
    v_add_u32 v{VW3}, s13, v{VL16}
    """)


def gemm1(a):
    XA = 16
    WA = 28
    BUFS = [64, 88, 40]
    ACC = 128

    def acc(mat, t, tt):
        return ACC + 16 * (mat * 4 + t * 2 + tt)

    def wf(b, mat, t):
        return BUFS[b] + 4 * (mat * 2 + t)

    def xf(b, tt):
        return BUFS[b] + 16 + 4 * tt

    g2 = Asm()
    a(f"""
    s_lshr_b32 s68, s{S_WIDX}, 1
    s_and_b32 s69, s{S_WIDX}, 1
    v_and_b32 v7, 31, v0
    v_lshrrev_b32 v2, 5, v0
    v_lshrrev_b32 v3, 1, v0
    v_and_b32 v3, 7, v3
    s_lshl_b32 s70, s68, 13
    v_lshlrev_b32 v4, 7, v7
    v_add_u32 v4, s70, v4
    """)
    for ks in range(4):
        a(f"""
        v_add_u32 v5, {2*ks}, v2
        v_xor_b32 v5, v5, v3
        v_lshl_add_u32 v{XA+ks}, v5, 4, v4
        """)
    a(f"""
    v_lshrrev_b32 v7, 2, v0
    v_and_b32 v7, 3, v7
    v_and_b32 v3, 3, v0
    v_lshrrev_b32 v4, 4, v0
    v_and_b32 v4, 1, v4
    v_lshl_add_u32 v5, v2, 3, v7
    v_lshlrev_b32 v5, 8, v5
    v_lshl_add_u32 v5, v4, 5, v5
    v_lshl_add_u32 v5, v3, 3, v5
    s_lshl_b32 s70, s69, 1
    """)
    for t in range(2):
        a(f"""
        s_add_u32 s71, s70, {t}
        v_xor_b32 v6, s71, v7
        v_lshl_add_u32 v{WA+t}, v6, 6, v5
        """)
    for sl in (1, 2):
        for ks in range(4):
            a(f"v_add_u32 v{XA+4*sl+ks}, {sl*SLOT}, v{XA+ks}")
        for t in range(2):
            a(f"v_add_u32 v{WA+2*sl+t}, {sl*SLOT}, v{WA+t}")
    mapping(g2)
    g_srds(g2)
    gemm2_setup(g2)
    g2(f"""
    s_lshr_b32 s68, s{S_WIDX}, 1
    s_and_b32 s69, s{S_WIDX}, 1
    s_lshl_b32 s70, s{S_RB}, 2
    s_lshl_b32 s71, s68, 1
    s_add_u32 s70, s70, s71
    s_mul_i32 s70, s70, 112
    s_lshl_b32 s71, s{S_CB}, 3
    s_add_u32 s70, s70, s71
    s_lshl_b32 s71, s69, 2
    s_add_u32 s70, s70, s71
    s_lshl_b32 s70, s70, 10
    s_add_u32 s71, s70, {112*1024}
    s_lshl_b32 s3, s{S_RB}, 1
    s_add_u32 s3, s3, s68
    s_lshl_b32 s3, s3, 5
    s_lshl_b32 s72, s{S_CB}, 1
    s_add_u32 s3, s3, s72
    s_add_u32 s3, s3, s69
    s_lshl_b32 s3, s3, 7
    s_add_u32 s3, s3, {FH_OFF}
    s_mov_b32 s72, {f32(-LOG2E)}
    s_mov_b32 s73, {f32(-LOG2E)}
    """)

    def reads(n):
        st, ks = n >> 2, n & 3
        sl = st % 3
        b = n % 3
        r = []
        r.append(f"ds_read_b128 {v(xf(b,0),4)}, v{XA+4*sl+ks}")
        for mat in range(2):
            for t in range(2):
                for h2 in range(2):
                    off = 16384 * (1 + mat) + ks * 4096 + h2 * 1024
                    r.append(f"ds_read_b64_tr_b16 {v(wf(b,mat,t)+2*h2,2)}, v{WA+2*sl+t} offset:{off}")
                if mat == 0 and t == 0:
                    r.append(f"ds_read_b128 {v(xf(b,1),4)}, v{XA+4*sl+ks} offset:4096")
        return r

    T = 16

    def epi(p):
        t, tt = p >> 1, p & 1
        G, U = acc(0, t, tt), acc(1, t, tt)
        o = 32 + 8 * p
        L = []
        for h in range(2):
            R = range(8 * h, 8 * h + 8)
            L += [f"v_pk_mul_f32 {v(T+i,2)}, {v(G+i,2)}, s[72:73]" for i in R[::2]]
            for i in R[::2]:
                L += [f"v_exp_f32 v{T+i}, v{T+i}", f"v_exp_f32 v{T+i+1}, v{T+i+1}",
                      f"v_pk_mul_f32 {v(U+i,2)}, {v(G+i,2)}, {v(U+i,2)}"]
            L += [f"v_pk_add_f32 {v(T+i,2)}, {v(T+i,2)}, 1.0 op_sel_hi:[1,0]" for i in R[::2]]
            L += [f"v_rcp_f32 v{T+i}, v{T+i}" for i in R]
            L += [f"v_pk_mul_f32 {v(U+i,2)}, {v(U+i,2)}, {v(T+i,2)}" for i in R[::2]]
            for i in range(4):
                L.append(f"v_cvt_pk_bf16_f32 v{o+4*h+i}, v{U+8*h+2*i}, v{U+8*h+2*i+1}")
            L.append(f"buffer_store_dwordx4 {v(o+4*h,4)}, v{VL16}, {sr(SRD_WS)}, s{70+tt} offen offset:{t*2048+1024*h} sc1")
        return L

    a("s_waitcnt lgkmcnt(0)")
    a("s_barrier")
    a.ext(stamp(1))
    a.ext(bstamp(2, 1))
    a.ext(reads(0))
    a.ext(reads(1))
    extra = []
    XL = OPT.get("xl", 13)
    for n in range(32):
        b = n % 3
        if (n & 3) == 2:
            a("s_waitcnt lgkmcnt(0)")
            a.ext(bstamp(2, 2 + (n >> 2)))
            a("s_barrier")
            if n == 22:
                a.ext(stamp(2))
        elif (n & 3) != 3:
            a("s_waitcnt lgkmcnt(10)")
        rd = reads(n + 2) if n + 2 < 32 else []
        mf = []
        for t in range(2):
            for tt in range(2):
                for mat in range(2):
                    c = "0" if n == 0 else v(acc(mat, t, tt), 16)
                    mf.append(f"v_mfma_f32_32x32x16_bf16 {v(acc(mat,t,tt),16)}, {v(wf(b,mat,t),4)}, {v(xf(b,tt),4)}, {c}")
        if n == 3:
            extra = list(g2.L)
        if n == 30:
            assert not extra
            extra = [f"v_mov_b32 v2, {N_LDS}", "ds_read_b32 v3, v2"]
        for i, m in enumerate(mf):
            a(m)
            a.ext(rd[2 * i:2 * i + 2])
            if i >= 4:
                a.ext(extra[:3])
                extra = extra[3:]
    assert not extra
    a.ext(stamp(3))
    if OPT.get("eprio", 0):
        a(f"s_setprio {OPT['eprio']}")
    a(f"s_waitcnt lgkmcnt(0)\nv_readfirstlane_b32 s{S_NONCE}, v3\ns_nop 5")
    for p in range(4):
        a.ext(epi(p))
    a.ext(stamp(4))


def spare(a):
    R = 16
    O = 80
    GWv = 112
    SUM = 120
    a(f"""
    s_sub_u32 s68, s{S_IDX}, 28
    s_lshl_b32 s3, s{S_XCD}, 2
    s_add_u32 s3, s3, s68
    s_lshl_b32 s3, s3, 5
    s_add_u32 s3, s3, s{S_WIDX}
    s_lshl_b32 s3, s3, 2
    s_add_u32 s3, s3, {FU_OFF}
    s_lshl_b32 s68, s68, 2
    s_add_u32 s68, s68, s{S_WIDX}
    s_lshr_b32 s69, s68, 1
    s_mov_b32 s74, s{S_XCD}
    v_and_b32 v1, 7, v0
    v_lshrrev_b32 v2, 3, v0
    v_lshlrev_b32 v3, 15, v2
    v_lshl_add_u32 v3, v1, 4, v3
    v_mul_u32_u24 v4, {8*DP}, v1
    v_lshl_add_u32 v4, v2, 4, v4
    v_lshlrev_b32 v5, 4, v1
    v_lshlrev_b32 v6, 2, v0
    s_mov_b32 s70, 0x05040100
    s_mov_b32 s71, 0x07060302
    s_lshl_b32 s72, s69, 7
    v_add_u32 v7, s72, v5
    global_load_dwordx4 {v(GWv,4)}, v7, s[{S_GW}:{S_GW+1}]
    """)
    for i in range(2):
        b = 6 + 4 * i
        a(f"""
        s_lshl_b32 s73, s68, 1
        s_add_u32 s73, s73, {i}
        s_and_b32 s73, s73, 3
        s_lshl_b32 s{b}, s74, 18
        s_lshl_b32 s75, s73, 10
        s_add_u32 s{b}, s{b}, s75
        s_add_u32 s{b}, s{b}, s72
        s_mul_i32 s{b+1}, s69, {64*DP}
        s_add_u32 s{b+1}, s{b+1}, s75
        s_lshl_b32 s75, s74, 7
        s_add_u32 s{b+1}, s{b+1}, s75
        s_add_u32 s{b+1}, s{b+1}, {UT_OFF}
        s_lshl_b32 s{b+2}, s74, 8
        s_lshl_b32 s75, s73, 11
        s_add_u32 s{b+2}, s{b+2}, s75
        s_lshl_b32 s75, s69, 13
        s_add_u32 s{b+2}, s{b+2}, s75
        s_add_u32 s{b+2}, s{b+2}, {GL_OFF}
        """)
        for j in range(8):
            a(f"buffer_load_dwordx4 {v(R+32*i+4*j,4)}, v3, {sr(SRD_X)}, s{b} offen")
            if j < 7:
                a(f"s_add_u32 s{b}, s{b}, 4096")
    a("v_mov_b32 v2, 0")
    for i in range(2):
        b = 6 + 4 * i
        a("s_waitcnt vmcnt(8)")
        Ri = R + 32 * i
        for e in range(8):
            for jj in range(4):
                sel = 71 if (e & 1) else 70
                a(f"v_perm_b32 v{O+4*e+jj}, v{Ri+4*(2*jj+1)+(e>>1)}, v{Ri+4*(2*jj)+(e>>1)}, s{sel}")
            a(f"buffer_store_dwordx4 {v(O+4*e,4)}, v4, {sr(SRD_WS)}, s{b+1} offen sc1")
            if e < 7:
                a(f"s_add_u32 s{b+1}, s{b+1}, {DP}")
    a(nonce_ld(3, 2))
    a.ext(stamp(1))
    a("s_barrier")
    for i in range(2):
        Ri = R + 32 * i
        S_ = SUM - 8 * i * 5
        for j in range(8):
            a(f"v_mov_b32 v{S_+j}, 0")
        for q in range(4):
            for j in range(8):
                a(f"v_dot2c_f32_bf16 v{S_+j}, v{Ri+4*j+q}, v{GWv+q}")
        a("s_nop 3")
        for ctl in ("quad_perm:[1,0,3,2]", "quad_perm:[2,3,0,1]", "row_half_mirror"):
            for j in range(8):
                a(f"v_add_f32_dpp v{S_+j}, v{S_+j}, v{S_+j} {ctl} row_mask:0xf bank_mask:0xf")
        for j in range(1, 8):
            a(f"""
            v_cmp_eq_u32 vcc, {j}, v1
            s_nop 1
            v_cndmask_b32 v{S_}, v{S_}, v{S_+j}, vcc
            """)
        if i == 0:
            a("s_waitcnt vmcnt(0)")
            a.ext(plain(nonce_get("NS", 3, 2)))
            a(f"""
            s_mov_b32 s76, s{S_NONCE}
            s_mov_b64 exec, 1
            buffer_store_dword v3, v2, {sr(SRD_WS)}, s3 offen sc1
            s_mov_b64 exec, -1
            """)
            a.ext(stamp(2))
    a(f"""
    buffer_store_dword v{SUM}, v6, {sr(SRD_WS)}, s8 offen sc1
    buffer_store_dword v{SUM-40}, v6, {sr(SRD_WS)}, s12 offen sc1
    s_add_u32 s3, s3, {FG_OFF - FU_OFF}
    s_waitcnt vmcnt(0)
    s_mov_b64 exec, 1
    buffer_store_dword v3, v2, {sr(SRD_WS)}, s3 offen sc1
    s_mov_b64 exec, -1
    s_sub_u32 s3, s3, {FG_OFF}
    s_lshl_b32 s3, s3, 5
    s_add_u32 s3, s3, {FD_OFF}
    """)
    a.ext(stamp(3))
    gemm2_setup(a)
    a(f"s_mov_b32 s{S_NONCE}, s76\ns_waitcnt vmcnt(0)")


def spin(label, loads, checks, sleep=2):
    L = [f"{label}_SPIN:", f"s_sleep {sleep}"]
    L += [("NOCOUNT", x) for x in loads]
    L += ["s_waitcnt vmcnt(0)"]
    L += ["s_sub_u32 s77, s77, 1", "s_cmp_eq_u32 s77, 0", f"s_cbranch_scc1 {label}_OK"]
    L += [f"{label}_CHK:"] + checks
    L += [f"s_cbranch_scc0 {label}_SPIN", f"{label}_OK:"]
    return L


S_NONCE = 23


def nonce_ld(vd, vz):
    return f"global_load_dword v{vd}, v{vz}, s[{S_DBG}:{S_DBG+1}] sc1"


def nonce_get(label, vd, vz, sleep=8):
    L = ["s_mov_b32 s77, 0x100000", f"s_branch {label}_CHK"]
    L += spin(label, [nonce_ld(vd, vz)], [f"v_cmp_ne_u32 vcc, 0, v{vd}", "s_nop 3", "s_cmp_eq_u64 vcc, exec"], sleep)
    L += [f"v_readfirstlane_b32 s{S_NONCE}, v{vd}", "s_nop 3"]
    return L


def plain(lines):
    return [x[1] if isinstance(x, tuple) else x for x in lines]


def gemm2(a0):
    a = Asm()
    NS = 28
    NP = 12
    NR = 16
    DH = 6
    ACC = 192
    WF = 16
    WFR = 128
    HB = 144
    N1 = n1()
    NF = OPT.get("nf", 2)
    PP1 = OPT.get("pp1", 21)
    N2 = OPT.get("n2", 28)

    def acc(t, tt):
        return ACC + 16 * (t + 2 * tt)

    def wload(i):
        sl = i % NR
        return [
            "s_lshl_b32 s14, s11, 14", f"s_add_u32 m0, s8, {sl*2048}", "s_add_u32 s14, s14, s10",
            f"buffer_load_dwordx4 v{VD0}, {sr(SRD_WD)}, s14 offen lds",
            "s_add_u32 s11, s11, 1", "s_cmp_ge_u32 s11, 28", "s_cselect_b32 s11, 0, s11",
            f"buffer_load_dwordx4 v{VD1}, {sr(SRD_WD)}, s14 offen offset:1024 lds",
            ("VMTAG", f"W{i}"),
        ]

    def hload(i):
        sl = i % DH
        return [
            "s_lshl_b32 s13, s12, 10", "s_add_u32 s13, s13, s9",
            f"buffer_load_dwordx4 {v(HB+8*sl,4)}, v{VL16}, {sr(SRD_WS)}, s13 offen sc1",
            "s_add_u32 s13, s13, s22",
            "s_add_u32 s12, s12, 1", "s_cmp_ge_u32 s12, 28", "s_cselect_b32 s12, 0, s12",
            f"buffer_load_dwordx4 {v(HB+8*sl+4,4)}, v{VL16}, {sr(SRD_WS)}, s13 offen sc1",
            ("VMTAG", f"H{i}"),
        ]

    TT = OPT.get("tt", 0)

    def wfrag(i):
        if TT and i > NS - TT:
            return WF + 8 * (i - (NS - TT) - 1)
        return WF + 8 * i if i < NP else WFR + 8 * (i & 1)

    def trd(i):
        sl = i % NR
        r = [("VMWAIT", f"W{i}")] if i >= N1 else []
        for t in range(2):
            for h2 in range(2):
                r.append(f"ds_read_b64_tr_b16 {v(wfrag(i)+4*t+2*h2,2)}, v{DA0+t} offset:{sl*2048+h2*1024}")
        return r

    NE = OPT.get("ne", -1)
    a(f"""
    s_setprio 2
    v_mov_b32 v2, 0
    v_mov_b32 v3, s{S_NONCE}
    s_mov_b32 s77, 0x100000
    """)
    pub = f"""
    s_waitcnt vmcnt(0)
    s_mov_b64 exec, 1
    buffer_store_dword v3, v2, {sr(SRD_WS)}, s3 offen sc1
    s_mov_b64 exec, -1
    """
    if NE < 0:
        a(pub)
    a.ext(stamp(5))
    a("s_barrier")
    ph_ld = f"buffer_load_dword v4, v{VPH}, {sr(SRD_WS)}, s15 offen sc1"

    def wl(i):
        a.ext(wload(i))
        if i == PP1:
            a(ph_ld)
            a.tag("P1")
    assert NP <= N1
    first = list(range(NP - max(NE, 0), NP))
    for i in first:
        a.ext(trd(i))
    if NE >= 0:
        a(pub)
    a.ext(stamp(6))
    for i in range(N1, NR):
        wl(i)
    rest = [i for i in range(NP) if i not in first]
    for i in range(NP + 1):
        if i in rest:
            a.ext(trd(i))
        if i >= 1 and NR + i - 1 < N2:
            if i - 1 in rest:
                a(f"s_waitcnt lgkmcnt({4 if i in rest else 0})")
            wl(NR + i - 1)
    a.ext(stamp(7))
    a.wait("P1")
    a("s_branch PH_CHK")
    a.ext(spin("PH", [ph_ld], [f"v_cmp_eq_u32 vcc, s{S_NONCE}, v4", "s_nop 3", "s_cmp_eq_u64 vcc, exec"]))
    a.ext(stamp(8))
    a.ext(bstamp(3, 1))
    for i in range(DH):
        a.ext(hload(i))
    a("s_waitcnt lgkmcnt(0)")

    YR, FL, YT, EG = 80, 2, WFR, 6
    fl_ld = [f"buffer_load_dword v{FL}, v{VFL}, {sr(SRD_WS)}, s16 offen sc1"]
    chk = [f"v_cmp_eq_u32 vcc, s{S_NONCE}, v{FL}", "s_nop 3", "s_cmp_eq_u64 vcc, exec"]

    def yloads():
        return [f"buffer_load_dwordx4 {v(YR,4)}, v{VY}, {sr(SRD_WS)}, s19 offen sc1",
                f"s_add_u32 s13, s19, {8*DP}",
                f"buffer_load_dwordx4 {v(YR+4,4)}, v{VY}, {sr(SRD_WS)}, s13 offen sc1"]

    IF = OPT.get("if", 22)
    IY = OPT.get("iy", 25 if not TT else NS - TT - 1)
    for i in range(NS - TT):
        sl = i % DH
        a.wait(f"H{i}")
        if i >= NP:
            a("s_waitcnt lgkmcnt(0)")
        hl = hload(i - 1 + DH) if 1 <= i and i - 1 + DH < NS else []
        fill = [(trd(i + 1) if NP <= i + 1 < NS else []) + hl[:3], hl[3:], wload(N2 + i) if N2 + i < NS else [], []]
        if TT and i == NS - TT - 1:
            for j in range(NS - TT + 1, NS):
                fill[1 + (j & 1)] = fill[1 + (j & 1)] + trd(j)
        k = 0
        for t in range(2):
            for tt in range(2):
                c = "0" if i == 0 else v(acc(t, tt), 16)
                a(f"v_mfma_f32_32x32x16_bf16 {v(acc(t,tt),16)}, {v(wfrag(i)+4*t,4)}, {v(HB+8*sl+4*tt,4)}, {c}")
                a.ext(fill[k])
                k += 1
        if i in (0, 3, 7, 11, 15, 19, 23, 27):
            a.ext(bstamp(3, 2 + (0, 3, 7, 11, 15, 19, 23, 27).index(i)))
        if i == IF:
            a.ext(fl_ld)
            a.tag("F")
        if i == IY:
            a.wait("F")
            a.ext(yloads())
    def pw(k):
        return [f"ds_write_b128 v{VW1}, {v(ACC+16*k+4*g,4)} offset:{k*4096+g*1024}" for g in range(4)]

    if TT:
        a.wait(f"H{NS-1}")
        a("s_waitcnt lgkmcnt(0)")
        order = (1, 2, 3, 0)
        for n_, k in enumerate(order):
            t, tt = k & 1, k >> 1
            w = pw(order[n_ - 2]) if n_ >= 2 else []
            for m_, i in enumerate(range(NS - TT, NS)):
                a(f"v_mfma_f32_32x32x16_bf16 {v(acc(t,tt),16)}, {v(wfrag(i)+4*t,4)}, {v(HB+8*(i%DH)+4*tt,4)}, {v(acc(t,tt),16)}")
                a.ext(w[2 * m_:2 * m_ + 2])
                if n_ >= 1:
                    a("s_nop 3")
    a.ext(stamp(9))
    a.ext(bstamp(7, 1))
    if TT:
        a.ext(pw(3))
    a.ext(chk)
    a("s_cbranch_scc1 PY_DONE")
    a.ext(spin("PY", fl_ld, chk))
    a.ext([("NOCOUNT", x) if is_vmem(x) else x for x in yloads()])
    a("PY_DONE:")
    a.ext(bstamp(7, 2))
    a("s_nop 5")
    for k in range(1, 4):
        if not TT:
            a.ext(pw(k))
    a.ext(bstamp(7, 3))
    X1, Y1 = HB, HB + 16
    OST = {0: "", 1: " sc1", 2: " nt", 3: " sc0 sc1"}[OPT.get("ost", 0)]
    a(f"""
    v_mov_b32 v5, 0xffff0000
    s_waitcnt vmcnt(0)
    ds_write_b128 v{VYW}, {v(YR,4)} offset:16384
    ds_write_b128 v{VYW}, {v(YR+4,4)} offset:17408
    """)
    a.ext(bstamp(7, 4))
    a("s_waitcnt lgkmcnt(0)")
    a.ext(bstamp(7, 5))
    a("s_barrier")
    a.ext(bstamp(7, 6))
    PB = 16
    a(f"ds_read_b32 v{EG}, v{VG}")
    for q in range(4):
        a(f"ds_read_b64_tr_b16 {v(YT+2*q,2)}, v{VYT} offset:{16384+q*512}")
    for k, base in ((1, VR1), (2, VW2), (3, VW3)):
        for g in range(4):
            a(f"ds_read_b128 {v(PB+16*(k-1)+4*g,4)}, v{base} offset:{k*4096+g*1024}")
    a("s_waitcnt lgkmcnt(12)")
    for i in range(8):
        a(f"""
        v_lshlrev_b32 v{Y1+2*i}, 16, v{YT+i}
        v_and_b32 v{Y1+2*i+1}, v5, v{YT+i}
        """)
    a("s_waitcnt lgkmcnt(8)")
    for i in range(0, 16, 2):
        a(f"v_pk_add_f32 {v(ACC+i,2)}, {v(ACC+i,2)}, {v(PB+i,2)}")
    a("s_waitcnt lgkmcnt(0)")
    a.ext(bstamp(7, 7))
    for i in range(0, 16, 2):
        a(f"v_pk_add_f32 {v(PB+16+i,2)}, {v(PB+16+i,2)}, {v(PB+32+i,2)}")
    for i in range(0, 16, 2):
        a(f"v_pk_add_f32 {v(ACC+i,2)}, {v(ACC+i,2)}, {v(PB+16+i,2)}")
    for i in range(0, 16, 2):
        a(f"v_pk_add_f32 {v(Y1+i,2)}, {v(Y1+i,2)}, {v(ACC+i,2)} neg_lo:[0,1] neg_hi:[0,1]")
    for i in range(0, 16, 2):
        a(f"v_pk_fma_f32 {v(ACC+i,2)}, {v(Y1+i,2)}, {v(EG,2)}, {v(ACC+i,2)} op_sel_hi:[1,0,1]")
    for i in range(8):
        a(f"v_cvt_pk_bf16_f32 v{X1+i}, v{ACC+2*i}, v{ACC+2*i+1}")
    a(f"""
    buffer_store_dwordx4 {v(X1,4)}, v{VEP}, {sr(SRD_OUT)}, 0 offen{OST}
    buffer_store_dwordx4 {v(X1+4,4)}, v{VEP}, {sr(SRD_OUT)}, 0 offen offset:16{OST}
    """)
    a.ext(stamp_end())
    a0.ext(resolve_vm(a.L))


def kwave(gemm_wg):
    sfx = "G" if gemm_wg else "S"
    ra = RA(2, 256)
    pre = Asm()
    main = Asm()
    ph2 = Asm()
    a = pre
    a(f"""
    s_setprio {OPT.get("kprio", 0)}
    s_lshl_b32 s70, s68, 13
    s_add_u32 s70, s70, {KG_BASE}
    """)
    t0 = ra(); t1 = ra(); t2 = ra(); t3 = ra()
    PR = ra(7)
    DV = ra()
    assert PR == K_PR
    if gemm_wg:
        a(f"""
        s_cmp_lg_u32 s69, 0
        s_cbranch_scc1 K{sfx}_NOTAG
        s_memrealtime s[72:73]
        v_mov_b32 v{t0}, 0
        s_waitcnt lgkmcnt(0)
        s_or_b32 s72, s72, 1
        v_mov_b32 v{t1}, s72
        s_mov_b64 exec, 1
        global_store_dword v{t0}, v{t1}, s[{S_DBG}:{S_DBG+1}] sc1
        s_mov_b64 exec, -1
        K{sfx}_NOTAG:
        """)

    WR = ra(8)
    RD = ra(2)
    a(f"""
    v_lshrrev_b32 v{t0}, 1, v0
    v_and_b32 v{t1}, 7, v{t0}
    v_lshlrev_b32 v{t0}, 8, v{t0}
    v_and_b32 v{t2}, 1, v0
    v_lshl_add_u32 v{t0}, v{t2}, 3, v{t0}
    v_add_u32 v{t0}, s70, v{t0}
    """)
    for b in range(8):
        a(f"""
        v_xor_b32 v{t2}, {b}, v{t1}
        v_lshl_add_u32 v{WR+b}, v{t2}, 4, v{t0}
        """)
    a(f"""
    v_and_b32 v{t0}, 15, v0
    v_lshrrev_b32 v{t1}, 4, v0
    """)
    for p in range(2):
        a(f"""
        v_add_u32 v{t2}, {4*p}, v{t1}
        v_xor_b32 v{t3}, v{t2}, v{t0}
        v_lshlrev_b32 v{t3}, 4, v{t3}
        v_lshl_add_u32 v{t3}, v{t2}, 8, v{t3}
        v_add_u32 v{RD+p}, s70, v{t3}
        """)
    TA0 = ra(); TA1 = ra(); TA2 = ra(); TA3 = ra()
    LP = ra(12)
    a(f"""
    v_and_b32 v{t2}, 1, v{t1}
    v_lshrrev_b32 v{t3}, 1, v{t1}
    v_lshlrev_b32 v{TA0}, 5, v{t0}
    v_lshl_add_u32 v{TA0}, v{t2}, 4, v{TA0}
    v_lshl_add_u32 v{TA0}, v{t3}, 9, v{TA0}
    v_lshrrev_b32 v{LP}, 2, v{TA0}
    v_cvt_f32_u32 v{LP}, v{LP}
    v_add_u32 v{TA0}, s70, v{TA0}
    v_add_f32 v{LP+1}, 1.0, v{LP}
    v_add_f32 v{LP+2}, 2.0, v{LP}
    v_add_f32 v{LP+3}, 2.0, v{LP+1}
    v_cmp_gt_u32 vcc, 2, v{t1}
    v_lshlrev_b32 v{TA1}, 4, v{t0}
    v_lshlrev_b32 v{TA2}, 3, v{t0}
    v_cndmask_b32 v{TA1}, v{TA2}, v{TA1}, vcc
    v_lshl_add_u32 v{TA1}, v{t1}, 8, v{TA1}
    v_add_u32 v{TA1}, s70, v{TA1}
    v_add_u32 v{TA1}, 1024, v{TA1}
    v_mov_b32 v{TA2}, 128
    v_cndmask_b32 v{TA2}, v{TA2}, 8, vcc
    v_add_u32 v{TA2}, v{TA2}, v{TA1}
    v_lshlrev_b32 v{TA3}, 2, v{t0}
    v_lshl_add_u32 v{TA3}, v{t1}, 8, v{TA3}
    v_add_u32 v{TA3}, s70, v{TA3}
    """)
    a(f"""
    v_lshlrev_b32 v{t2}, 7, v{t1}
    v_add_u32 v{t2}, 256, v{t2}
    v_lshlrev_b32 v{t3}, 8, v{t1}
    v_cndmask_b32 v{t2}, v{t3}, v{t2}, vcc
    v_lshl_add_u32 v{t2}, v{t0}, 3, v{t2}
    v_cvt_f32_u32 v{LP+4}, v{t2}
    v_mov_b32 v{t2}, 4.0
    v_cndmask_b32 v{t2}, v{t2}, 2.0, vcc
    v_mov_b32 v{t3}, {f32(128.0)}
    v_cndmask_b32 v{t3}, v{t3}, 4.0, vcc
    v_add_f32 v{LP+5}, v{LP+4}, v{t2}
    v_add_f32 v{LP+6}, v{LP+4}, v{t3}
    v_add_f32 v{LP+7}, v{LP+6}, v{t2}
    v_lshlrev_b32 v{t2}, 9, v{t1}
    v_lshl_add_u32 v{t2}, v{t0}, 3, v{t2}
    v_add_u32 v{t2}, 1024, v{t2}
    v_cvt_f32_u32 v{LP+8}, v{t2}
    v_add_f32 v{LP+9}, {f32(128.0)}, v{LP+8}
    v_add_f32 v{LP+10}, {f32(256.0)}, v{LP+8}
    v_add_f32 v{LP+11}, {f32(384.0)}, v{LP+8}
    """)
    EX = ra(10)
    a(f"""
    s_sub_u32 s72, s70, {4*17024}
    v_lshlrev_b32 v{t0}, 3, v0
    v_cvt_f32_u32 v{t1}, v{t0}
    v_cmp_gt_u32 vcc, 16, v0
    v_add_u32 v{EX+8}, s70, v{t0}
    v_lshlrev_b32 v{t0}, 2, v{t0}
    v_add_u32 v{t0}, s70, v{t0}
    v_lshlrev_b32 v{EX+9}, 2, v0
    v_add_u32 v{EX+9}, s70, v{EX+9}
    v_add_u32 v{EX+9}, 2048, v{EX+9}
    """)
    for kk in range(4):
        e0, e1 = EX + 2 * kk, EX + 2 * kk + 1
        a(f"""
        v_add_f32 v{t2}, 1.0, v{t1}
        v_cvt_pk_bf16_f32 v{t3}, v{t1}, v{t2}
        v_add_f32 v{t1}, 2.0, v{t1}
        v_and_b32 v{e0}, 0xffff, v{t3}
        v_lshrrev_b32 v{e1}, 16, v{t3}
        v_lshl_add_u32 v{e0}, v{e0}, 2, s72
        v_lshl_add_u32 v{e1}, v{e1}, 2, s72
        v_add_u32 v{t2}, {8*kk}, v{t0}
        v_add_u32 v{t3}, {8*kk+4}, v{t0}
        v_cndmask_b32 v{e0}, v{e0}, v{t2}, vcc
        v_cndmask_b32 v{e1}, v{e1}, v{t3}, vcc
        """)

    if gemm_wg:
        a.ext(kparam_loads())
    srd(a, SRD_WS, S_WS, WS_BYTES)
    a = main
    a("s_waitcnt vmcnt(0)")
    MASK = ra()
    DT = ra()
    PP = ra(12)
    a(f"""
    v_mov_b32 v{MASK}, 0xffff0000
    v_cmp_eq_u32 vcc, 0, v0
    v_lshlrev_b32 v{DV}, 16, v{DV}
    s_nop 0
    v_cndmask_b32 v{DV}, 0, v{DV}, vcc
    """)
    for i in range(6):
        a(f"v_lshlrev_b32 v{PP+2*i}, 16, v{PR+i}")
        a(f"v_and_b32 v{PP+2*i+1}, v{MASK}, v{PR+i}")
    x = PR + 6
    a(f"""
    v_lshlrev_b32 v{x}, 16, v{x}
    v_mul_f32 v{t0}, {f32(LOG2E_HI)}, v{x}
    s_mov_b32 s72, {f32(LOG2E_HI)}
    v_fma_f32 v{t1}, v{x}, s72, -v{t0}
    v_fmac_f32 v{t1}, {f32(LOG2E_LO)}, v{x}
    v_exp_f32 v{t0}, v{t0}
    v_mul_f32 v{t1}, {f32(LN2)}, v{t1}
    v_fmac_f32 v{t0}, v{t0}, v{t1}
    v_cvt_pk_bf16_f32 v{t0}, v{t0}, v{t0}
    v_lshlrev_b32 v{DT}, 16, v{t0}
    """)
    A2, TH, Br, Bi, Cr, Ci = (PP + 2 * i for i in range(6))
    for m in range(2):
        a(f"""
        v_mul_f32 v{A2+m}, v{DT}, v{A2+m}
        v_mul_f32 v{TH+m}, v{DT}, v{TH+m}
        v_mul_f32 v{Br+m}, v{DT}, v{Br+m}
        v_mul_f32 v{Bi+m}, v{DT}, v{Bi+m}
        v_mul_f32 v{A2+m}, {f32(LOG2E)}, v{A2+m}
        v_mul_f32 v{TH+m}, {f32(INV2PI)}, v{TH+m}
        """)
    W0 = ra(4); W1 = ra(4)
    for m in range(2):
        a(f"""
        v_mul_f32 v{W0+2*m}, v{Cr+m}, v{Br+m}
        v_mul_f32 v{W0+2*m+1}, v{Cr+m}, v{Bi+m}
        v_fma_f32 v{W0+2*m}, -v{Ci+m}, v{Bi+m}, v{W0+2*m}
        v_fmac_f32 v{W0+2*m+1}, v{Ci+m}, v{Br+m}
        v_sub_f32 v{W0+2*m+1}, 0, v{W0+2*m+1}
        """)
    SIG = ra(); WM = ra(); CE = ra()
    a(f"""
    v_max_f32 v{SIG}, v{A2}, v{A2+1}
    v_max3_f32 v{WM}, |v{W0}|, |v{W0+1}|, |v{W0+2}|
    v_max_f32 v{WM}, |v{W0+3}|, v{WM}
    s_nop 1
    """)
    for ctl in ("quad_perm:[1,0,3,2]", "quad_perm:[2,3,0,1]", "row_half_mirror", "row_mirror"):
        a(f"""
        v_max_f32_dpp v{SIG}, v{SIG}, v{SIG} {ctl} row_mask:0xf bank_mask:0xf
        v_max_f32_dpp v{WM}, v{WM}, v{WM} {ctl} row_mask:0xf bank_mask:0xf
        s_nop 0
        """)
    a(f"""
    v_readlane_b32 s72, v{SIG}, 0
    v_readlane_b32 s73, v{SIG}, 16
    v_readlane_b32 s74, v{SIG}, 32
    v_readlane_b32 s75, v{SIG}, 48
    v_readlane_b32 s6, v{WM}, 0
    v_readlane_b32 s7, v{WM}, 16
    v_readlane_b32 s8, v{WM}, 32
    v_readlane_b32 s9, v{WM}, 48
    v_max_f32 v{SIG}, s72, v{SIG}
    v_max_f32 v{SIG}, s73, v{SIG}
    v_max_f32 v{SIG}, s74, v{SIG}
    v_max_f32 v{SIG}, s75, v{SIG}
    v_max_f32 v{WM}, s6, v{WM}
    v_max_f32 v{WM}, s7, v{WM}
    v_max_f32 v{WM}, s8, v{WM}
    v_max_f32 v{WM}, s9, v{WM}
    v_sub_f32 v{A2}, v{A2}, v{SIG}
    v_sub_f32 v{A2+1}, v{A2+1}, v{SIG}
    v_frexp_exp_i32_f32 v{CE}, v{WM}
    v_sub_u32 v{t0}, 14, v{CE}
    v_subrev_u32 v{CE}, 29, v{CE}
    """)
    for i in range(4):
        a(f"v_ldexp_f32 v{W0+i}, v{W0+i}, v{t0}")

    def cexp(l):
        r = ra(6)
        for m in range(2):
            a(f"""
            v_mul_f32 v{t0}, {f32(float(l))}, v{A2+m}
            v_mul_f32 v{t1}, {f32(float(l))}, v{TH+m}
            v_exp_f32 v{t0}, v{t0}
            v_fract_f32 v{t1}, v{t1}
            v_cos_f32 v{t2}, v{t1}
            v_sin_f32 v{t3}, v{t1}
            s_nop 0
            v_mul_f32 v{r+2*m}, v{t0}, v{t2}
            v_mul_f32 v{r+2*m+1}, v{t0}, v{t3}
            v_sub_f32 v{r+4+m}, 0, v{r+2*m+1}
            """)
        return r

    def cmul(d, x_, b, conj=False):
        for m in range(2):
            br, bi, nbi = b + 2 * m, b + 2 * m + 1, b + 4 + m
            if conj:
                bi, nbi = nbi, bi
            a(f"""
            v_mul_f32 v{d+2*m}, v{x_+2*m}, v{br}
            v_mul_f32 v{d+2*m+1}, v{x_+2*m}, v{bi}
            v_fmac_f32 v{d+2*m}, v{x_+2*m+1}, v{nbi}
            v_fmac_f32 v{d+2*m+1}, v{x_+2*m+1}, v{br}
            """)

    def neg(b):
        for m in range(2):
            a(f"v_sub_f32 v{b+4+m}, 0, v{b+2*m+1}")

    def scale(d, x_):
        for i in range(4):
            a(f"v_mul_f32 v{d+i}, {f32(32768.0)}, v{x_+i}")

    VB = [ra(32, 4), ra(32, 4), ra(32, 4), ra(18, 4)]
    CH0 = ra(0, 4)

    def put(batch, row, r):
        h = VB[batch] + 2 * row
        if r is None:
            a(f"v_mov_b32 v{h}, 0x7800\nv_mov_b32 v{h+1}, 0x7800")
        else:
            a(f"""
            v_cvt_pk_f16_f32 v{h}, v{r}, v{r+1}
            v_cvt_pk_f16_f32 v{h+1}, v{r+2}, v{r+3}
            """)

    E8 = cexp(8)
    cur, nxt = W0, W1
    for c in range(16):
        if c < 15:
            cmul(nxt, cur, E8, conj=True)
        put(0, c, cur)
        cur, nxt = nxt, cur
    E1 = cexp(1)
    Q1 = cexp(128)
    Q8 = cexp(1024)
    P = {}
    P[1] = ra(4)
    scale(P[1], E1)
    for j in range(2, 8):
        P[j] = ra(6 if j == 4 else 4)
        cmul(P[j], P[j - 1], E1)
    put(1, 0, None)
    for j in range(1, 8):
        put(1, j, P[j])
    scale(W0, Q1)
    put(1, 8, W0)
    for j in range(1, 8):
        cmul(W0, P[j], Q1)
        put(1, 8 + j, W0)
    Q = {1: Q1, 8: Q8}
    for j in range(2, 8):
        Q[j] = {2: E1, 3: PP + 4}[j] if j < 4 else P[2 * (j - 4) + 1]
        cmul(Q[j], Q[j - 1], Q1)
    neg(P[4]); neg(Q[2]); neg(Q[3])
    for qi, j in enumerate((2, 3)):
        scale(W0, Q[j])
        put(2, 4 * qi, W0)
        for r in range(1, 4):
            cmul(W0, P[2 * r], Q[j])
            put(2, 4 * qi + r, W0)
    for aa in range(4):
        scale(W0, Q[4 + aa])
        put(2, 8 + 2 * aa, W0)
        cmul(W0, Q[4 + aa], P[4])
        put(2, 8 + 2 * aa + 1, W0)
    a(f"v_mov_b32 v{PR}, 0")
    a(nonce_ld(PR + 1, PR))
    QS = E8
    scale(QS, Q8)
    neg(QS)
    put(3, 0, QS)
    for j in range(1, 8):
        cmul(W0, Q[j], QS)
        put(3, j, W0)
    cmul(W0, Q8, QS)
    put(3, 8, W0)
    for i in range(12):
        a(f"v_mul_f32 v{LP+i}, v{SIG}, v{LP+i}")
    for i in range(12):
        a(f"v_exp_f32 v{LP+i}, v{LP+i}")

    a = ph2
    YF = CH0
    AC = CH0 + 32
    assert AC + 12 <= ra.p

    def wr(batch, nrows):
        for row in range(nrows):
            a(f"ds_write_b64 v{WR+(row&7)}, {v(VB[batch]+2*row,2)} offset:{(row>>3)*128}")

    def fetch(F):
        for ks in range(8):
            a(f"ds_read_b128 {v(F+4*ks,4)}, v{RD+(ks&1)} offset:{(ks>>1)*2048}")

    def mfmas(tile, XF):
        for ks in range(8):
            c = "0" if ks == 0 else v(AC + 4 * tile, 4)
            a(f"v_mfma_f32_16x16x32_f16 {v(AC+4*tile,4)}, {v(XF+4*ks,4)}, {v(YF+4*ks,4)}, {c}")

    a("s_waitcnt vmcnt(0)")
    ng = plain(nonce_get(f"NK{sfx}", PR + 1, PR))
    a(f"v_mov_b32 v{t2}, {N_LDS}")
    a(f"ds_write_b32 v{t2}, v{PR+1}")
    wr(0, 16); fetch(YF)
    wr(1, 16); fetch(VB[0])
    wr(2, 16); fetch(VB[1])
    a("s_waitcnt lgkmcnt(15)")
    mf0 = len(a.L)
    wr(3, 9); fetch(VB[2])
    tail = a.L[mf0:]
    del a.L[mf0:]
    m = Asm()
    sv, a = a, m
    mfmas(0, VB[0])
    a = sv
    for i in range(8):
        a.ext(tail[2 * i:2 * i + 2])
        a(m.L[i])
    a.ext(tail[16:])
    a("s_waitcnt lgkmcnt(15)")
    mfmas(1, VB[1])
    a("s_waitcnt lgkmcnt(0)")
    mfmas(2, VB[2])
    a("s_nop 3")
    for i in range(12):
        a(f"v_mul_f32 v{AC+i}, v{AC+i}, v{LP+i}")
    for i in range(12):
        a(f"v_ldexp_f32 v{AC+i}, v{AC+i}, v{CE}")
    a(f"v_add_f32 v{AC}, v{AC}, v{DV}")
    a(f"ds_write_b128 v{TA0}, {v(AC,4)}")
    a(f"ds_write_b64 v{TA1}, {v(AC+4,2)}")
    a(f"ds_write_b64 v{TA2}, {v(AC+6,2)}")
    for r in range(4):
        a(f"ds_write_b32 v{TA3}, v{AC+8+r} offset:{2048+64*r}")
    G0 = VB[0]
    OUT = VB[1]
    for i in range(8):
        a(f"ds_read_b32 v{G0+i}, v{EX+i}")
    a(f"""
    ds_read_b64 {v(G0+8,2)}, v{EX+8} offset:1536
    ds_read_b32 v{G0+10}, v{EX+8} offset:1544
    ds_read2_b32 {v(G0+12,2)}, v{EX+9} offset0:0 offset1:1
    ds_read2_b32 {v(G0+14,2)}, v{EX+9} offset0:64 offset1:65
    v_lshlrev_b32 v{t0}, 4, v0
    v_add_u32 v{t0}, s70, v{t0}
    v_and_b32 v{t1}, 3, v0
    v_lshlrev_b32 v{t1}, 4, v{t1}
    v_add_u32 v{t1}, s70, v{t1}
    v_mov_b32 v{OUT+16}, 0
    v_mov_b32 v{OUT+17}, 0
    v_mov_b32 v{OUT+18}, 0
    v_mov_b32 v{OUT+19}, 0
    s_mov_b32 s72, 0xaaaaaaaa
    s_mov_b32 s73, 0xaaaaaaaa
    ds_write_b128 v{t1}, {v(OUT+16,4)} offset:{KARR}
    s_waitcnt lgkmcnt(0)
    """)
    for k in range(4):
        a(f"v_cvt_pk_bf16_f32 v{OUT+k}, v{G0+2*k}, v{G0+2*k+1}")
    a(f"""
    v_cvt_pk_bf16_f32 v{OUT+4}, v{G0+8}, v{G0+8}
    v_cvt_pk_bf16_f32 v{OUT+5}, v{G0+8}, v{G0+9}
    v_cvt_pk_bf16_f32 v{OUT+6}, v{G0+9}, v{G0+9}
    v_cvt_pk_bf16_f32 v{OUT+7}, v{G0+10}, v{G0+10}
    """)
    for it in (2, 3):
        T0, T1 = G0 + 8 + 2 * it, G0 + 9 + 2 * it
        o = OUT + 4 * it
        a(f"""
        v_cndmask_b32 v{t2}, v{T0}, v{T1}, s[72:73]
        v_cvt_pk_bf16_f32 v{o}, v{T0}, v{T0}
        v_cvt_pk_bf16_f32 v{o+1}, v{T0}, v{T0}
        v_cvt_pk_bf16_f32 v{o+2}, v{t2}, v{T1}
        v_cvt_pk_bf16_f32 v{o+3}, v{T1}, v{T1}
        """)
    a(f"v_mov_b32 v{t2}, 0")
    for it in range(4):
        a(f"ds_write_b128 v{t0}, {v(OUT+4*it,4)} offset:{KARR+64+1024*it}")
    if OPT.get("dbgk"):
        a(f"""
        s_lshl_b32 s72, s69, 12
        s_add_u32 s72, s72, {KX_OFF}
        v_lshlrev_b32 v{t0}, 4, v0
        """)
        for it in range(4):
            a(f"buffer_store_dwordx4 {v(OUT+4*it,4)}, v{t0}, {sr(SRD_WS)}, s72 offen offset:{1024*it}")
    a("s_waitcnt vmcnt(0) lgkmcnt(0)")
    ph2.L[1:1] = ["\n    ".join(ng)]

    out = list(pre.L)
    out.extend(stamp(1))
    kx = OPT.get("kx", 0)
    if kx == 1:
        ph2.L = []
    elif kx == 2:
        ph2.L = [x for x in ph2.L if not x.startswith("v_mfma")]
    elif kx == 3:
        ph2.L = [x for x in ph2.L if not x.startswith("ds_write")]
    elif kx == 4:
        ph2.L = [x for x in ph2.L if not x.startswith("ds_read")]
    elif kx == 5:
        L2 = []
        for x in ph2.L:
            L2.append(x)
            if x.startswith("ds_write_b64"):
                L2.append("s_nop 3")
        ph2.L = L2
    if gemm_wg:
        per = OPT.get("kper", 132)
        first = OPT.get("kfirst", 0)
        p2a = OPT.get("kp2a", 48)
        p2b = OPT.get("kp2b", 100)
        pos = min(first, len(main.L))
        out.extend(main.L[:pos])
        for sidx in range(9):
            out.extend(bstamp(2, 1 + sidx))
            out.append("s_barrier")
            if sidx < 6:
                end = len(main.L) if sidx == 5 else min(pos + per, len(main.L))
                out.extend(main.L[pos:end])
                pos = end
            elif sidx == 6:
                out.extend(ph2.L[:p2a])
            elif sidx == 7:
                out.extend(ph2.L[p2a:p2b])
            else:
                out.extend(ph2.L[p2b:])
        out.extend(stamp(2))
    else:
        ks1 = OPT.get("ks1", 250)
        out.extend(main.L[:ks1])
        out.append("s_barrier")
        out.extend(main.L[ks1:])
        out.extend(ph2.L)
        out.extend(stamp(2))
    out.append("s_mov_b32 s6, s68")
    out.append("s_branch L_CONVB")
    return out


def fu_code(vaddr, vtmp, vdst, sd):
    setup = [f"s_lshr_b32 s16, s{sd}, 7", "s_lshl_b32 s16, s16, 7", f"s_lshr_b32 s17, s{sd}, 3", "s_and_b32 s17, s17, 8",
             "s_add_u32 s16, s16, s17", f"s_add_u32 s16, s16, {FU_OFF}",
             f"v_and_b32 v{vaddr}, 7, v0", f"v_lshlrev_b32 v{vaddr}, 9, v{vaddr}"]
    ld = [f"buffer_load_dwordx2 v[{vdst}:{vdst+1}], v{vaddr}, {sr(SRD_WS)}, s16 offen sc1"]
    chk = [f"v_cmp_eq_u32 vcc, s{S_NONCE}, v{vdst}", f"v_cmp_eq_u32 s[50:51], s{S_NONCE}, v{vdst+1}", "s_nop 3",
           "s_and_b64 vcc, vcc, s[50:51]", "s_cmp_eq_u64 vcc, exec"]
    return setup, ld, chk


def u_dma(vl16, sd):
    L = [f"s_mul_i32 s52, s6, {USZ}", f"s_mul_i32 s53, s{sd}, {DP}", f"s_add_u32 s53, s53, {UT_OFF}"]
    for r in range(4):
        L += [f"s_add_u32 m0, s52, {U_BASE + r*UPITCH + 112}", "s_nop 0",
              f"buffer_load_dwordx4 v{vl16}, {sr(SRD_WS)}, s53 offen sc1 lds", "s_add_u32 s53, s53, 1024"]
    return L


def lwave(gemm_wg):
    sfx = "G" if gemm_wg else "S"
    a = Asm()
    XV, WV, VL, VC = 8, 12, 2, 16
    t0, t1, t2 = 3, 4, 5
    DUM = 24
    ROT = OPT.get("rot", 0)
    FL8 = OPT.get("fl8", 1)
    SW = 12
    a("s_setprio 3")

    def kofs(st):
        if not ROT:
            return []
        return [f"s_add_u32 s18, s{S_PHI}, {st}", "s_and_b32 s18, s18, 7", f"s_mul_i32 s19, s18, {64*3584}",
                "s_lshl_b32 s18, s18, 7"]

    def grp(st, g):
        sl = st % 3
        if g in (1, 5):
            j = 0 if g == 1 else 1
            L = [f"s_add_u32 m0, s{10+j}, {sl*SLOT}", f"s_add_u32 s22, s{8+j}, {'s18' if ROT else st*128}"]
            L += [f"buffer_load_dwordx4 v{XV+i}, {sr(SRD_X)}, s22 offen offset:{1024*i} lds" for i in range(4)]
        else:
            j = 0 if g == 0 else g - 1
            L = [f"s_add_u32 m0, s{72+j}, {sl*SLOT}", f"s_add_u32 s22, s{68+j}, {'s19' if ROT else st*64*3584}"]
            L += [f"buffer_load_dwordx4 v{WV+i}, {sr(SW)}, s22 offen offset:{1024*i} lds" for i in range(4)]
        return L

    def pref(st):
        L = [f"s_add_u32 s22, s68, {st*64*3584}"]
        L += [f"buffer_load_dwordx4 {v(DUM+4*i,4)}, v{WV+i}, {sr(SW)}, s22 offen offset:{1024*i}" for i in range(4)]
        L += [f"s_add_u32 s22, s23, {st*128}"]
        L += [f"buffer_load_dwordx4 {v(DUM+16+4*i,4)}, v{XV+i}, {sr(SRD_X)}, s22 offen offset:{1024*i}" for i in range(2)]
        return L

    fu_setup, fu_ld, fu_chk = fu_code(t1, t2, VC, 7)

    def poll_setup():
        a(f"""
        s_lshl_b32 s7, s2, 1
        s_add_u32 s7, s7, s6
        v_lshlrev_b32 v{VL}, 4, v0
        s_mov_b32 s77, 0x100000
        """)
        a.ext(fu_setup)

    STG = 24
    assert STG + 16 * n1() <= 256

    def wd_setup():
        a(f"""
        v_lshrrev_b32 v20, 3, v0
        v_and_b32 v21, 7, v0
        v_lshrrev_b32 v22, 1, v20
        v_and_b32 v22, 1, v22
        v_lshlrev_b32 v22, 2, v22
        v_xor_b32 v21, v21, v22
        v_lshlrev_b32 v18, 10, v20
        v_lshl_add_u32 v18, v21, 4, v18
        v_add_u32 v19, 8192, v18
        """)
        a(cb64_scalar(17, 3))
        if OPT.get("fakecb") and not gemm_wg:
            a("s_xor_b32 s17, s17, 1")
        a(f"""
        s_lshl_b32 s17, s17, 7
        s_mul_i32 s3, s6, {3*28*16384}
        s_add_u32 s3, s3, s17
        s_sub_u32 s48, 2, s6
        s_lshl_b32 s49, s48, 15
        v_add_u32 v1, s49, v{VL}
        s_mul_i32 s48, s48, {28*16384}
        s_add_u32 s48, s48, s17
        s_mul_i32 s17, s6, {3*RING2}
        v_add_u32 v7, s17, v{VL}
        """)
        a(rot_scalar(76, 17))
        a("s_mov_b32 s49, s76")

    wpos = [0, 0]
    wwp = [0, 0]

    def wd_ld(g, n):
        sb, ss = ((3, 76), (48, 49))[g]
        for _ in range(n):
            i = wpos[g]
            if i >= n1():
                break
            wpos[g] += 1
            R = STG + 8 * (g * n1() + i)
            a(f"""
            s_lshl_b32 s22, s{ss}, 14
            s_add_u32 s22, s22, s{sb}
            buffer_load_dwordx4 {v(R,4)}, v18, {sr(SRD_WD)}, s22 offen
            s_add_u32 s{ss}, s{ss}, 1
            s_cmp_ge_u32 s{ss}, 28
            s_cselect_b32 s{ss}, 0, s{ss}
            buffer_load_dwordx4 {v(R+4,4)}, v19, {sr(SRD_WD)}, s22 offen
            """)
            a.tag(f"wd{g}_{i}")

    def wd_wr(g, n):
        for i in range(wwp[g], min(n1(), wwp[g] + n)):
            wwp[g] = i + 1
            R = STG + 8 * (g * n1() + i)
            a.wait(f"wd{g}_{i}")
            for k in range(2):
                a(f"ds_write_b128 v{(7, 1)[g]}, {v(R+4*k,4)} offset:{i*2048 + k*1024}")

    def u_load():
        a(f"""
        s_cselect_b32 s19, {0 if OPT.get("forceslow") else 1}, 0
        s_mul_i32 s18, s6, {USZ}
        s_add_u32 s18, s18, {U_BASE}
        v_mov_b32 v20, 0
        v_mov_b32 v21, 0
        v_mov_b32 v22, 0
        v_mov_b32 v23, 0
        v_and_b32 v{t2}, 7, v0
        v_lshrrev_b32 v6, 3, v0
        v_and_b32 v6, 3, v6
        v_min_u32 v{t2}, 6, v{t2}
        v_mul_u32_u24 v6, {UPITCH}, v6
        v_lshl_add_u32 v{t2}, v{t2}, 4, v6
        v_add_u32 v{t2}, s18, v{t2}
        ds_write_b128 v{t2}, v[20:23]
        s_lshl_b32 s18, s6, 2
        s_add_u32 s18, s18, {S_LDS}
        v_mov_b32 v{t2}, s18
        v_mov_b32 v6, s19
        ds_write_b32 v{t2}, v6
        s_cmp_eq_u32 s19, 0
        s_cbranch_scc1 NOU{sfx}
        """)
        a.ext([("NOCOUNT", x) if is_vmem(x) else x for x in u_dma(VL, 7)])
        a(f"NOU{sfx}:")

    if gemm_wg:
        def wgrp(j):
            a(f"""
            s_add_u32 s17, s18, {j}
            s_and_b32 s17, s17, 3
            s_mul_i32 s{68+j}, s17, {16*3584}
            s_add_u32 s{68+j}, s{68+j}, s23
            s_lshl_b32 s{72+j}, s17, 12
            s_add_u32 s{72+j}, s{72+j}, s16
            """)
        a(f"""
        v_lshrrev_b32 v{t0}, 4, v0
        v_and_b32 v{t1}, 15, v0
        s_mov_b32 s18, s68
        s_mov_b32 s19, s69
        v_lshlrev_b32 v{t2}, 2, v{t0}
        s_lshl_b32 s23, s{S_CB}, 8
        v_xor_b32 v{t1}, v{t1}, v{t2}
        s_lshl_b32 s16, s6, 14
        v_mul_u32_u24 v{t0}, 3584, v{t0}
        s_add_u32 s16, s16, 16384
        v_lshl_add_u32 v{WV}, v{t1}, 4, v{t0}
        s_mov_b32 s{SW+2}, {512*1792*2}
        s_mov_b32 s{SW+3}, 0x00020000
        """)
        for i in range(1, 4):
            a(f"v_add_u32 v{WV+i}, {(4*3584-1024)*i}, v{WV}")
        wgrp(0)
        a.ext(bstamp(6, 1))
        a(f"""
        s_cmp_eq_u32 s6, 0
        s_waitcnt lgkmcnt(0)
        s_cselect_b32 s{SW}, s{S_WG}, s{S_WU}
        s_cselect_b32 s{SW+1}, s{S_WG+1}, s{S_WU+1}
        s_and_b32 s{SW+1}, s{SW+1}, 0xffff
        """)
        assert not ROT
        a.ext(bstamp(6, 2))
        a.ext(grp(0, 0))
        wgrp(1)
        a.ext(grp(0, 2))
        wgrp(2)
        a.ext(grp(0, 3))
        wgrp(3)
        a.ext(grp(0, 4))
        a(f"""
        v_lshrrev_b32 v{t0}, 3, v0
        v_and_b32 v{t1}, 7, v0
        v_lshrrev_b32 v{t2}, 1, v{t0}
        v_xor_b32 v{t1}, v{t1}, v{t2}
        v_lshlrev_b32 v{t0}, 10, v{t0}
        """)
        for i in range(4):
            a(f"""
            v_xor_b32 v{t2}, {4*(i&1)}, v{t1}
            v_lshl_add_u32 v{XV+i}, v{t2}, 4, v{t0}
            v_add_u32 v{XV+i}, {7168*i}, v{XV+i}
            """)
        a(f"""
        s_and_b32 s17, s19, 1
        s_lshl_b32 s17, s17, 1
        s_add_u32 s17, s17, s6
        s_lshl_b32 s16, s{S_RB}, 17
        s_lshl_b32 s8, s17, 15
        s_add_u32 s8, s8, s16
        s_lshl_b32 s10, s17, 12
        s_xor_b32 s17, s17, 2
        s_lshl_b32 s9, s17, 15
        s_add_u32 s9, s9, s16
        s_lshl_b32 s11, s17, 12
        s_mov_b32 s{SRD_X}, s{S_U}
        s_and_b32 s{SRD_X+1}, s{S_U+1}, 0xffff
        s_mov_b32 s{SRD_X+2}, {2048*512*2}
        s_mov_b32 s{SRD_X+3}, 0x00020000
        """)
        a.ext(grp(0, 1))
        a.ext(grp(0, 5))
        a.tag("st0")
        a(f"""
        s_lshl_b32 s22, s19, 1
        s_add_u32 s22, s22, s6
        s_and_b32 s22, s22, 7
        s_lshl_b32 s23, s22, 14
        s_add_u32 s23, s23, s16
        """)
        tail = {3: "S5 R5", 4: "S6 R6", 5: "S7 R7"}
        scheds = [
            {-1: "S0 S1 S2 R0 P3 P4", 0: "R1 P5 P6", 1: "R2 P7 S3", 2: "R3 S4 R4"},
            {-1: "S0 S1 S2 R0 R1", 0: "P3 P4 R2", 1: "P5 P6 P7 S3 R3", 2: "S4 R4"},
            {-1: "S0 R0 S1 R1", 0: "S2 R2", 1: "S3 R3", 2: "S4 R4"},
            {-1: "S0 R0 S1", 0: "R1 S2", 1: "R2 S3", 2: "R3 S4 R4"},
            {-1: "S0 R0 S1 S2 P3", 0: "R1 P4 P5", 1: "R2 P6 P7 S3", 2: "R3 S4 R4"},
            {-1: "S0 R0 S1 S2", 0: "R1 R2", 1: "S3 R3", 2: "S4 R4"},
            {-1: "S0 R0 S1 S2", 0: "R1 R2", 1: "S3 R3 P5", 2: "S4 R4 P6 P7"},
            {-1: "S0 R0 S1 S2", 0: "R1 R2 P3", 1: "S3 R3 P4 P5", 2: "S4 R4 P6 P7"},
            {-1: "S0 R0 S1 R1", 0: "S2", 1: "R2 S3", 2: "R3 S4 R4"},
            {-1: "S0 R0 S1 R1", 0: "S2", 1: "R2 S3 R3", 2: "S4 R4"},
            {-1: "S0 R0 S1 S2", 0: "R1", 1: "R2 S3 R3", 2: "S4 R4"},
        ]
        sched = dict(scheds[OPT.get("lsched", 5)])
        sched.update(tail)
        MP = OPT.get("mp", 1)
        NPF = OPT.get("np", 0)
        if NPF >= -1:
            sched[NPF] += " N0"
        if MP >= 0:
            sched[MP] += " M0"

        def issue(k):
            for tok in sched.get(k, "").split():
                st = int(tok[1:])
                if tok[0] == "S":
                    a.ext(kofs(st) + grp(st, 0) + grp(st, 1))
                elif tok[0] == "R":
                    a.ext(kofs(st))
                    for g in (2, 5, 3, 4):
                        a.ext(grp(st, g))
                    a.tag(f"st{st}")
                elif tok[0] == "P":
                    assert not ROT
                    a.ext(pref(st))
                elif tok[0] == "N":
                    a(f"""
                    s_mul_i32 s22, s{S_XCD}, 28
                    s_add_u32 s22, s22, s{S_IDX}
                    s_mul_i32 s22, s22, 5120
                    s_add_u32 s22, s22, {192*3584}
                    v_lshlrev_b32 v{VL}, 4, v0
                    s_add_u32 s17, s22, 4096
                    """)
                    for i in range(4):
                        a(f"buffer_load_dwordx4 {v(DUM+16+4*i,4)}, v{VL}, {sr(SW)}, s22 offen offset:{1024*i}")
                    a(f"buffer_load_dwordx4 {v(DUM+32,4)}, v{VL}, {sr(SW)}, s17 offen")
                elif tok[0] == "M":
                    a(f"""
                    s_mul_i32 s22, s{S_XCD}, 28
                    s_add_u32 s22, s22, s{S_IDX}
                    s_lshl_b32 s22, s22, 1
                    s_add_u32 s22, s22, s6
                    s_lshl_b32 s22, s22, 12
                    """)
                    for i in range(4):
                        a(f"buffer_load_dwordx4 {v(DUM+4*i,4)}, v{VL}, {sr(SRD_WD)}, s22 offen offset:{1024*i}")
        sched[-1] = sched[-1].replace("S0", "").replace("R0", "")
        issue(-1)
        a.ext(bstamp(6, 4))
        a.ext(stamp(1))
        srd(a, SRD_WS, S_WS, WS_BYTES)
        srd(a, SRD_WD, S_WD, 1792 * 512 * 2)
        poll_setup()
        for sidx in range(9):
            if sidx < 8:
                a.wait(f"st{sidx}")
            a.ext(bstamp(2, 1 + sidx))
            if sidx < 4:
                a.ext(bstamp(6, 5 + sidx))
            a("s_barrier")
            if sidx in (0, 3):
                a.ext(stamp(2 + (0, 3).index(sidx)))
            issue(sidx)
            if sidx == 2:
                wd_setup()
            if sidx == 6:
                a(f"s_setprio {OPT.get('lprio', 1)}")
            if 2 <= sidx <= 7:
                n = OPT.get(f"w{sidx}", {2: 0, 3: 0, 4: 0, 5: 6, 6: 11, 7: 11}[sidx])
                k = min(n, n1() - wpos[0])
                wd_ld(0, k)
                wd_ld(1, n - k)
            if sidx == 7:
                a.ext(fu_ld)
                a.tag("fu")
            if sidx == 8:
                a.ext(stamp(4))
                a(f"v_mov_b32 v6, {N_LDS}\nds_read_b32 v6, v6")
                wd_ld(0, 28)
                wd_ld(1, 28)
                wd_wr(0, OPT.get("e8", 6))
                a("s_waitcnt vmcnt(0)")
                a.L.append(("VMRESET",))
                a(f"s_waitcnt lgkmcnt(0)\nv_readfirstlane_b32 s{S_NONCE}, v6\ns_nop 3")
                a.ext(fu_chk)
                u_load()
                wd_wr(0, 28)
                wd_wr(1, 28)
        a("s_waitcnt vmcnt(0) lgkmcnt(0)")
        a.ext(stamp(5))
    else:
        a("s_waitcnt lgkmcnt(0)")
        srd(a, SRD_WS, S_WS, WS_BYTES)
        srd(a, SRD_WD, S_WD, 1792 * 512 * 2)
        poll_setup()
        wd_setup()
        a(f"v_mov_b32 v{t0}, 0")
        a("s_barrier")
        thr = OPT.get("sthr", 4)
        if thr:
            for _ in range(thr):
                wd_ld(0, 2)
                a("s_waitcnt vmcnt(0)")
        wd_ld(0, 28)
        wd_ld(1, 28)
        a(nonce_ld(6, t0))
        a.ext(fu_ld)
        wd_wr(0, 28)
        a("s_waitcnt vmcnt(0)")
        a.L.append(("VMRESET",))
        a.ext(stamp(4))
        a.ext(nonce_get(f"NL{sfx}", 6, t0))
        a.ext(fu_chk)
        u_load()
        wd_wr(1, 28)
        a("s_waitcnt vmcnt(0) lgkmcnt(0)")
        a.ext(stamp(5))
    a("s_branch L_CONVA")
    return resolve_vm(a.L)


def conv(a0, partB):
    a = Asm()
    KA, UA, YA = 2, 3, 5
    qs, outq = ([5, 6, 7], [6, 7]) if partB else ([0, 1, 2, 3, 4, 5], [0, 1, 2, 3, 4, 5])
    a(f"""
    s_lshl_b32 s8, s6, 13
    s_add_u32 s8, s8, {KG_BASE + KARR + 32}
    s_mul_i32 s9, s6, {USZ}
    s_add_u32 s9, s9, {U_BASE + 16}
    v_lshrrev_b32 v6, 2, v0
    v_and_b32 v10, 7, v6
    v_and_b32 v6, 3, v6
    v_and_b32 v7, 3, v0
    v_lshrrev_b32 v8, 4, v0
    v_and_b32 v8, 1, v8
    v_lshrrev_b32 v9, 5, v0
    v_mul_u32_u24 v{UA}, {UPITCH}, v7
    v_sub_u32 v10, v10, v9
    v_lshl_add_u32 v{UA}, v10, 4, v{UA}
    v_add_u32 v{UA}, s9, v{UA}
    v_lshlrev_b32 v{KA}, 5, v8
    v_lshl_add_u32 v{KA}, v7, 3, v{KA}
    v_lshl_add_u32 v{KA}, v9, 6, v{KA}
    v_lshlrev_b32 v10, 3, v6
    v_sub_u32 v{KA}, v{KA}, v10
    v_add_u32 v{KA}, s8, v{KA}
    """)
    qmax = max(qs)
    nst = 4 * qmax + 4
    NU = 4
    UBUF = 8
    KT = 24
    ACC = KT + 4 * nst
    TMP = ACC + 16 * len(qs)
    assert TMP + 3 * len(qs) + 1 <= 256

    def acc(q):
        return ACC + 16 * qs.index(q)

    need = {}
    for i in range(nst):
        for q in qs:
            s_ = 4 * q + 3 - i
            if s_ >= 0 and s_ not in need:
                need[s_] = i

    def rd(i):
        L = [f"ds_read_b128 {v(UBUF+4*(i%NU),4)}, v{UA} offset:{32*i}"]
        for s_ in sorted(s for s in need if need[s] == i):
            L += [f"ds_read_b64_tr_b16 {v(KT+4*s_,2)}, v{KA} offset:{128*s_+32}",
                  f"ds_read_b64_tr_b16 {v(KT+4*s_+2,2)}, v{KA} offset:{128*s_}"]
        L.append(("LTAG", f"R{i}"))
        return L

    PF = NU - 1
    a(f"""
    v_and_b32 v4, 7, v0
    v_lshrrev_b32 v{YA}, 3, v0
    v_lshlrev_b32 v{YA}, 4, v{YA}
    v_lshl_add_u32 v{YA}, v4, 7, v{YA}
    v_mov_b32 v6, 0
    v_mov_b32 v7, s{S_NONCE}
    s_mov_b32 s12, 0
    s_mov_b32 s13, 0x80000000
    s_mov_b32 s14, 0
    s_mov_b32 s15, 0xc0000000
    s_mov_b32 s16, 0
    s_mov_b32 s17, 0xe0000000
    s_lshl_b32 s7, s2, 1
    s_add_u32 s7, s7, s6
    s_mul_i32 s18, s7, {DP}
    s_add_u32 s18, s18, {Y_OFF}
    s_lshl_b32 s19, s2, 4
    s_add_u32 s19, s19, s6
    s_lshl_b32 s19, s19, 3
    s_add_u32 s19, s19, {FY_OFF + (4 if partB else 0)}
    """)
    a(f"s_setprio {OPT.get('cprio', 3)}")
    P = "B" if partB else "A"
    a(f"""
    s_lshl_b32 s52, s6, 2
    s_add_u32 s52, s52, {S_LDS}
    v_mov_b32 v4, s52
    """)
    a("s_barrier")
    a.ext(stamp(6))
    a("ds_read_b32 v4, v4")
    a.L.append(("LTAG", "ST"))
    a(f"CV{P}_GO:")
    a.ext(rd(0))
    a.L.append(("LWAIT", "ST"))
    a(f"""
    v_readfirstlane_b32 s52, v4
    s_nop 3
    s_cmp_eq_u32 s52, 0
    s_cbranch_scc1 CV{P}_SLOW
    """)
    a.ext(rd(1))

    def Y(q, g, rho):
        return acc(q) + 4 * g + rho

    dpp = "wave_ror:1 row_mask:0xf bank_mask:0xf"
    ctl = "row_mask:0xf bank_mask:0xf"

    def post(q):
        L = []
        Z = {}
        for g in (3, 2, 1, 0):
            for rho in (1, 2, 3):
                Z[g, rho] = TMP + 3 * qs.index(q) + rho - 1 if g == 3 else Y(q, g, rho)
                if g > 0:
                    prev = f"v{Y(q,g-1,rho)}"
                elif q > 0:
                    prev = f"v{Y(q-1,3,rho)}"
                else:
                    prev = "v6"
                L.append(f"v_cndmask_b32 v{Z[g,rho]}, v{Y(q,g,rho)}, {prev}, s[{10+2*rho}:{11+2*rho}]")
        for g in (3, 2, 1, 0):
            L.append(f"v_add_f32_dpp v{Z[g,2]}, v{Z[g,3]}, v{Z[g,2]} {dpp}")
        for g in (3, 2, 1, 0):
            L.append(f"v_add_f32_dpp v{Z[g,1]}, v{Z[g,2]}, v{Z[g,1]} {dpp}")
        for g in (3, 2, 1, 0):
            L.append(f"v_add_f32_dpp v{Y(q,g,0)}, v{Z[g,1]}, v{Y(q,g,0)} {dpp}")
        return L

    def stage(S_, D_, bit, stride):
        m = {0: 0xaaaaaaaa, 1: 0xcccccccc, 2: 0xf0f0f0f0}[bit]
        up = {0: "quad_perm:[1,0,3,2]", 1: "quad_perm:[2,3,0,1]", 2: "row_ror:12"}[bit]
        dn = {0: "quad_perm:[1,0,3,2]", 1: "quad_perm:[2,3,0,1]", 2: "row_ror:4"}[bit]
        L = [f"s_mov_b32 vcc_lo, {m:#x}", f"s_mov_b32 vcc_hi, {m:#x}"]
        idx = [i for i in range(len(S_)) if not (i // stride) & 1]
        L += [f"v_cndmask_b32_dpp v{D_[i+stride]}, v{S_[i]}, v{S_[i+stride]}, vcc {up} {ctl}" for i in idx]
        L += ["s_not_b64 vcc, vcc"]
        L += [f"v_cndmask_b32_dpp v{D_[i]}, v{S_[i+stride]}, v{S_[i]}, vcc {dn} {ctl}" for i in idx]
        return L

    def xpose(q):
        S0 = [Y(q - 1 + (g >> 2), g & 3, 0) for g in range(8)]
        free = [Y(qq, g, r) for qq in (q - 1, q) for g in range(3) for r in (1, 2, 3)]
        D0 = free[:8]
        S1 = free[8:12]
        D1 = free[12:16]
        D2 = [acc(q - 1) + i for i in range(4)]
        L = stage(S0, D0, 0, 1)
        L += [f"v_cvt_pk_bf16_f32 v{S1[g]}, v{D0[2*g]}, v{D0[2*g+1]}" for g in range(4)]
        L += stage(S1, D1, 1, 1)
        L += stage(D1, D2, 2, 2)
        L.append(f"buffer_store_dwordx4 {v(D2[0],4)}, v{YA}, {sr(SRD_WS)}, s18 offen offset:{(q-1)*512} sc1")
        return L

    pend = []
    FILL = OPT.get("cfill", 4)
    since = {}
    issued = 2
    for i in range(nst):
        a.L.append(("LWAIT", f"R{i}"))
        rl = []
        while issued < nst and issued <= i + (2 if i < 2 else PF):
            rl += rd(issued)
            issued += 1
        act = [q for q in qs if 4 * q + 3 - i >= 0]
        per = -(-len(rl) // len(act))
        for q in act:
            s_ = 4 * q + 3 - i
            c = "0" if i == 0 else v(acc(q), 16)
            a(f"v_mfma_f32_32x32x16_bf16 {v(acc(q),16)}, {v(UBUF+4*(i%NU),4)}, {v(KT+4*s_,4)}, {c}")
            a.ext(rl[:per])
            rl = rl[per:]
            if s_ == 0:
                since[q] = len(a.L)
            for qq in list(since):
                if len([x for x in a.L[since[qq]:] if isinstance(x, str)]) >= 14:
                    del since[qq]
                    if qq in outq:
                        pend += post(qq)
                        if (qq - outq[0]) & 1:
                            pend += xpose(qq)
            a.ext(pend[:FILL])
            pend = pend[FILL:]
    a.ext(stamp(7))
    a.ext(pend)
    a("s_nop 7\ns_nop 3")
    for qq in sorted(since):
        if qq in outq:
            a.ext(post(qq))
            if (qq - outq[0]) & 1:
                a.ext(xpose(qq))
    a.ext(stamp(8))
    a(f"""
    s_waitcnt vmcnt(0)
    s_mov_b64 exec, 1
    buffer_store_dword v7, v6, {sr(SRD_WS)}, s19 offen sc1
    s_mov_b64 exec, -1
    """)
    if partB:
        E = 8
        a(f"""
        s_cmp_lg_u32 s6, 0
        s_cbranch_scc1 CV_NOGATE
        s_lshl_b32 s16, s{S_XCD}, 9
        s_add_u32 s16, s16, {FG_OFF}
        v_lshrrev_b32 v2, 2, v0
        v_and_b32 v3, 3, v0
        v_and_b32 v4, 3, v2
        v_lshlrev_b32 v4, 7, v4
        v_lshl_add_u32 v4, v3, 2, v4
        v_lshlrev_b32 v2, 2, v2
        v_lshl_add_u32 v2, v3, 11, v2
        s_mov_b32 s77, 0x100000
        """)
        a(rb64_scalar(17, 22))
        a(f"s_lshl_b32 s17, s17, 6\ns_add_u32 s17, s17, {GL_OFF}")
        a.ext(plain(spin("PG", [f"buffer_load_dword v5, v4, {sr(SRD_WS)}, s16 offen sc1"],
                         [f"v_cmp_eq_u32 vcc, s{S_NONCE}, v5", "s_nop 3", "s_cmp_eq_u64 vcc, exec"], 1)))
        for g in range(8):
            a(f"buffer_load_dword v{E+g}, v2, {sr(SRD_WS)}, s17 offen sc1")
            if g < 7:
                a("s_add_u32 s17, s17, 8192")
        a(f"""
        s_waitcnt vmcnt(0)
        v_add_f32 v{E}, v{E}, v{E+1}
        v_add_f32 v{E+2}, v{E+2}, v{E+3}
        v_add_f32 v{E+4}, v{E+4}, v{E+5}
        v_add_f32 v{E+6}, v{E+6}, v{E+7}
        v_add_f32 v{E}, v{E}, v{E+2}
        v_add_f32 v{E+4}, v{E+4}, v{E+6}
        v_add_f32 v{E}, v{E}, v{E+4}
        v_cvt_pk_bf16_f32 v{E}, v{E}, v{E}
        v_lshlrev_b32 v{E}, 16, v{E}
        v_mul_f32 v{E}, {f32(-LOG2E)}, v{E}
        v_exp_f32 v{E}, v{E}
        v_lshlrev_b32 v2, 2, v0
        v_add_f32 v{E}, 1.0, v{E}
        v_rcp_f32 v{E}, v{E}
        v_add_u32 v2, {G_LDS}, v2
        v_cvt_pk_bf16_f32 v{E}, v{E}, v{E}
        v_lshlrev_b32 v{E}, 16, v{E}
        ds_write_b32 v2, v{E}
        s_waitcnt lgkmcnt(0)
        CV_NOGATE:
        """)
    a.ext(stamp_end())
    st, ld, chk = fu_code(TMP, TMP + 1, TMP + 2, 7)
    a(f"CV{P}_SLOW:")
    a("s_waitcnt lgkmcnt(0)\ns_mov_b32 s77, 0x100000")
    a.ext(st)
    a.ext(plain(spin(f"PU{P}", ld, chk, 8)))
    a(f"v_lshlrev_b32 v{TMP}, 4, v0")
    a.ext(u_dma(TMP, 7))
    a(f"""
    s_mov_b32 s16, 0
    s_mov_b32 s17, 0xe0000000
    v_mov_b32 v4, 1
    s_waitcnt vmcnt(0)
    s_branch CV{P}_GO
    """)
    a0.ext(resolve_lds(a.L))


HEADER = open("cdna_kernels/" + NAME + ".s.ref").read().split("; Override launch")[0]


DOC = """;
"""


def main(path):
    a = Asm()
    prologue(a)
    a("L_SPARE:")
    a(f"s_and_b32 s{S_XCD}, s2, 7\ns_lshr_b32 s{S_IDX}, s2, 3\ns_waitcnt lgkmcnt(0)")
    srd(a, SRD_X, S_U, 2048 * 512 * 2)
    g_srds(a)
    spare(a)
    a("s_branch L_GEMM2")
    a("L_GEMM1:")
    gemm1(a)
    a("L_GEMM2:")
    gemm2(a)
    a("L_LWAVE_S:")
    a.ext(lwave(False))
    a("L_KWAVE:")
    a.ext(kwave(True))
    a("L_KWAVE_S:")
    a.ext(kwave(False))
    a("L_CONVA:")
    conv(a, False)
    a("L_CONVB:")
    conv(a, True)
    a("L_END:\ns_endpgm")
    body = "\n".join(("" if ln.endswith(":") or ln.startswith(".") else "    ") + ln for ln in a.L)
    kn = NAME + "_kernel"
    txt = HEADER
    if OPT.get("list"):
        txt += f"; @launch kernel={kn} grid=(256,1,1) block=(512,1,1) lds=163840\n"
    else:
        txt += "; @launch grid=(256,1,1) block=(512,1,1) lds=163840\n"
    txt += DOC
    txt += '.amdgcn_target "amdgcn-amd-amdhsa--gfx950"\n.text\n'
    txt += f".globl {kn}\n.p2align 8\n.type {kn},@function\n{kn}:\n"
    txt += body + "\n"
    txt += f"""
.section .rodata,"a"
.p2align 6
.amdhsa_kernel {kn}
  .amdhsa_next_free_vgpr 256
  .amdhsa_next_free_sgpr 102
  .amdhsa_accum_offset 256
  .amdhsa_group_segment_fixed_size 0
  .amdhsa_kernarg_size 136
  .amdhsa_user_sgpr_count 2
  .amdhsa_user_sgpr_kernarg_segment_ptr 1
  .amdhsa_system_sgpr_workgroup_id_x 1
.end_amdhsa_kernel
"""
    open(path, "w").write(txt)


if __name__ == "__main__":
    for o in list(sys.argv):
        if o.startswith("--opt="):
            k, _, val = o[6:].partition(":")
            OPT[k] = int(val) if val else 1
            sys.argv.remove(o)
    if OPT.get("oldlay"):
        DP = 4096
        UT_OFF, Y_OFF, GL_OFF = 0x800000, 0xC00000, 0xE00000
        FH_OFF, FY_OFF, FU_OFF, FD_OFF = 0xE40000, 0xE60000, 0xE68000, 0xE80000
    if OPT.get("dp"):
        DP = OPT["dp"]
    if "--stamps" in sys.argv:
        STAMPS = True
        sys.argv.remove("--stamps")
    main(sys.argv[1] if len(sys.argv) > 1 else "cdna_kernels/" + NAME + ".s")
```

```python
import sys, struct

NAME = "gated_mix__ssm_conv_s4__swiglu_ffn__prompt"

H_OFF = 0x000000
DP = 4224
UT_OFF = 0x800000
Y_OFF = 0xA80000
KX_OFF = 0xD00000
GL_OFF = 0xF00000
ST_OFF = 0xF20000
FH_OFF = 0xF40000
FY_OFF = 0xF60000
FU_OFF = 0xF68000
FG_OFF = 0xF6A000
FD_OFF = 0xF80000
WS_BYTES = 0x1000000

STAMPS = False
HDL = []
OPT = {}
ST_BASE = 78
NST = 12


def f32(x):
    return "0x%08x" % struct.unpack("<I", struct.pack("<f", x))[0]


LOG2E = 1.4426950408889634
LOG2E_HI = struct.unpack("<f", struct.pack("<f", LOG2E))[0]
LOG2E_LO = LOG2E - LOG2E_HI
LN2 = 0.6931471805599453
INV2PI = 0.15915494309189535


class Asm:
    def __init__(self):
        self.L = []

    def __call__(self, s):
        for line in s.strip().split("\n"):
            line = line.strip()
            if line:
                self.L.append(line)

    def ext(self, lines):
        self.L.extend(lines)

    def tag(self, n):
        self.L.append(("VMTAG", n))

    def wait(self, n):
        self.L.append(("VMWAIT", n))


def v(b, n=1):
    return f"v{b}" if n == 1 else f"v[{b}:{b+n-1}]"


def sr(b):
    return f"s[{b}:{b+3}]"


class RA:
    def __init__(self, start, end):
        self.p = start
        self.end = end

    def __call__(self, n=1, align=1):
        self.p = (self.p + align - 1) // align * align
        r = self.p
        self.p += n
        assert self.p <= self.end, "out of registers"
        return r


def stamp(k, force=False):
    if not STAMPS:
        return []
    assert k < NST
    if OPT.get("dbgbar") and 1 <= k <= 9 and not force:
        return []
    op = "s_memtime" if OPT.get("cyc") else "s_memrealtime"
    return [f"{op} s[{ST_BASE+2*k}:{ST_BASE+2*k+1}]"]


def bstamp(mode, k):
    return stamp(k, True) if OPT.get("dbgbar") == mode else []


def stamp_end():
    if not STAMPS:
        return ["s_endpgm"]
    L = stamp(10) + ["s_waitcnt vmcnt(0)"] + stamp(11)
    L += ["s_waitcnt lgkmcnt(0)", "s_mov_b64 exec, 1", "s_lshl_b32 s74, s2, 3", f"s_add_u32 s74, s74, s{S_WIDX}",
          "s_lshl_b32 s74, s74, 6", f"s_add_u32 s74, s74, {ST_OFF}", "v_mov_b32 v1, 0"]
    for k in range(NST):
        L.append(f"v_mov_b32 v{4+k}, s{ST_BASE+2*k}")
    for k in range(0, NST, 4):
        L.append(f"buffer_store_dwordx4 v[{4+k}:{7+k}], v1, {sr(SRD_WS)}, s74 offen offset:{4*k}")
    if OPT.get("hdbg"):
        lab = f"HD{len(HDL)}"
        HDL.append(lab)
        L += [f"v_not_b32 v20, v4", f"global_atomic_umax v1, v20, s[{S_DBG}:{S_DBG+1}] offset:56",
              f"global_atomic_umax v1, v15, s[{S_DBG}:{S_DBG+1}] offset:60",
              f"s_cmp_lg_u32 s2, {OPT['hdbg']}", f"s_cbranch_scc1 {lab}", f"s_cmp_lg_u32 s{S_WIDX}, 0", f"s_cbranch_scc1 {lab}"]
        words = [1, 2, 3, 4, 5, 6, 7, 9, 10, 11, 12]
        for k in range(1, NST):
            L += [f"v_sub_u32 v20, v{4+k}, v4", f"global_store_dword v1, v20, s[{S_DBG}:{S_DBG+1}] offset:{4*words[k-1]}", "s_nop 1"]
        L += [f"global_store_dword v1, v4, s[{S_DBG}:{S_DBG+1}] offset:52"]
        L.append(f"{lab}:")
    L.append("s_endpgm")
    return L


def is_vmem(line):
    return line.startswith("buffer_") or line.startswith("global_")


def resolve_vm(lines):
    out = []
    count = 0
    tags = {}
    done = -1
    for ln in lines:
        if isinstance(ln, tuple):
            if ln[0] == "VMTAG":
                tags[ln[1]] = count
            elif ln[0] == "VMWAIT":
                if tags[ln[1]] <= done:
                    continue
                n = count - tags[ln[1]]
                assert 0 <= n <= 63, n
                out.append(f"s_waitcnt vmcnt({n})")
                done = tags[ln[1]]
            elif ln[0] == "VMRESET":
                done = count
            elif ln[0] == "NOCOUNT":
                out.append(ln[1])
            else:
                raise ValueError(ln)
        else:
            if is_vmem(ln):
                count += 1
            out.append(ln)
    return out


def resolve_lds(lines):
    out = []
    count = 0
    tags = {}
    for ln in lines:
        if isinstance(ln, tuple):
            if ln[0] == "LTAG":
                tags[ln[1]] = count
            elif ln[0] == "LWAIT":
                out.append(f"s_waitcnt lgkmcnt({min(15, count - tags[ln[1]])})")
            elif ln[0] == "LCOUNT":
                pass
            else:
                raise ValueError(ln)
        else:
            if ln.startswith("ds_"):
                count += 1
            out.append(ln)
    return out


SLOT = 49152
KG_BASE = 147456
KARR = 3584
U_BASE = 131072
UPITCH = 1344
USZ = 4 * UPITCH
YB_BASE = U_BASE + 2 * USZ
RING2 = 32768

S_U = 4
S_ARE, S_AIM, S_BRE, S_BIM, S_CRE, S_CIM, S_LDT = 54, 56, 58, 60, 62, 64, 66
S_DS = 20
S_WG, S_WU, S_WD, S_GW = 24, 26, 28, 30
S_OUT, S_DBG, S_WS = 32, 34, 36
S_WIDX, S_XCD, S_IDX, S_RB, S_CB, S_PHI = 38, 39, 40, 41, 42, 43
SRD_X, SRD_WG, SRD_WU, SRD_WS, SRD_WD, SRD_OUT = 44, 48, 52, 56, 60, 64


def srd(a, d, base, nbytes):
    if base == S_WS and OPT.get("wsoff"):
        a(f"""
        s_add_u32 s{d}, s{base}, {OPT["wsoff"] << 20}
        s_addc_u32 s{d+1}, s{base+1}, 0
        s_and_b32 s{d+1}, s{d+1}, 0xffff
        s_mov_b32 s{d+2}, {nbytes}
        s_mov_b32 s{d+3}, 0x00020000
        """)
        return
    a(f"""
    s_mov_b32 s{d}, s{base}
    s_and_b32 s{d+1}, s{base+1}, 0xffff
    s_mov_b32 s{d+2}, {nbytes}
    s_mov_b32 s{d+3}, 0x00020000
    """)


def mapping(a):
    a(f"""
    s_and_b32 s{S_XCD}, s2, 7
    s_lshr_b32 s{S_IDX}, s2, 3
    """)
    if OPT.get("map", 1) == 0:
        a(f"""
        s_and_b32 s68, s{S_IDX}, 3
        s_lshr_b32 s69, s{S_IDX}, 2
        s_lshr_b32 s{S_RB}, s{S_XCD}, 1
        s_lshl_b32 s{S_RB}, s{S_RB}, 2
        s_add_u32 s{S_RB}, s{S_RB}, s68
        s_and_b32 s{S_CB}, s{S_XCD}, 1
        s_mul_i32 s{S_CB}, s{S_CB}, 7
        s_add_u32 s{S_CB}, s{S_CB}, s69
        s_lshl_b32 s{S_PHI}, s68, 1
        s_add_u32 s{S_PHI}, s{S_PHI}, s69
        s_and_b32 s{S_PHI}, s{S_PHI}, 7
        """)
    else:
        a(f"""
        s_and_b32 s70, s{S_XCD}, 1
        s_lshl_b32 s70, s70, 2
        s_and_b32 s68, s{S_IDX}, 7
        s_lshr_b32 s69, s{S_IDX}, 3
        s_add_u32 s71, s69, s70
        s_add_u32 s72, s68, s70
        s_cmp_ge_u32 s{S_IDX}, 24
        s_cselect_b32 s71, 3, s71
        s_cselect_b32 s68, s72, s68
        s_lshr_b32 s{S_CB}, s{S_XCD}, 1
        s_and_b32 s{S_CB}, s{S_CB}, 1
        s_mul_i32 s{S_CB}, s{S_CB}, 7
        s_add_u32 s{S_CB}, s{S_CB}, s71
        s_lshr_b32 s{S_RB}, s{S_XCD}, 2
        s_lshl_b32 s{S_RB}, s{S_RB}, 3
        s_add_u32 s{S_RB}, s{S_RB}, s68
        s_lshl_b32 s{S_PHI}, s69, 1
        s_add_u32 s{S_PHI}, s{S_PHI}, s68
        s_and_b32 s{S_PHI}, s{S_PHI}, 7
        """)


K_PR = 6


def kparam_loads():
    va, vb = K_PR + 5, K_PR + 7
    L = [f"global_load_dword v{K_PR+i}, v{va}, s[{sb}:{sb+1}]" for i, sb in enumerate((S_ARE, S_AIM, S_BRE, S_BIM, S_CRE, S_CIM))]
    L += [f"global_load_ushort v{K_PR+6}, v{vb}, s[{S_LDT}:{S_LDT+1}]", f"global_load_ushort v{K_PR+7}, v{vb}, s[{S_DS}:{S_DS+1}]"]
    return L


def prologue(a):
    a("""
    s_cmp_ge_u32 s2, 256
    s_cbranch_scc1 L_END
    """)
    if STAMPS:
        a.ext([f"s_mov_b32 s{ST_BASE+2*k}, 0" for k in range(NST)])
    a.ext(stamp(0))
    a(f"""
    s_load_dwordx8 s[24:31], s[0:1], 80
    s_load_dwordx16 s[52:67], s[0:1], 0
    s_load_dwordx2 s[4:5], s[0:1], 0
    s_load_dwordx2 s[36:37], s[0:1], 128
    s_load_dwordx4 s[32:35], s[0:1], 112
    s_load_dwordx2 s[20:21], s[0:1], 64
    v_lshrrev_b32 v1, 6, v0
    v_and_b32 v0, 63, v0
    s_nop 0
    v_readfirstlane_b32 s{S_WIDX}, v1
    s_lshl_b32 s69, s2, 1
    v_lshlrev_b32 v2, 2, v0
    s_nop 1
    s_cmp_lt_u32 s{S_WIDX}, 6
    s_cbranch_scc1 L_NOTK
    s_sub_u32 s68, s{S_WIDX}, 6
    s_add_u32 s69, s69, s68
    s_lshl_b32 s71, s69, 8
    v_add_u32 v2, s71, v2
    s_lshl_b32 s72, s69, 1
    v_mov_b32 v3, s72
    s_waitcnt lgkmcnt(0)
    """)
    a(f"v_mov_b32 v{K_PR+5}, v2\nv_mov_b32 v{K_PR+7}, v3")
    a(f"s_and_b32 s{S_XCD}, s2, 7\ns_lshr_b32 s{S_IDX}, s2, 3")
    a("s_cmp_lt_u32 s2, 224\ns_cbranch_scc1 L_KWAVE")
    a.ext(kparam_loads())
    a("s_branch L_KWAVE_S\nL_NOTK:")
    a(f"""
    s_cmp_ge_u32 s{S_WIDX}, 4
    s_cbranch_scc1 L_ISL
    """)
    a(f"""
    s_getpc_b64 s[70:71]
    L_PC:
    s_sub_u32 s70, s70, L_PC-{NAME}_kernel
    s_subb_u32 s71, s71, 0
    s_lshr_b32 s72, s2, 3
    s_lshl_b32 s72, s72, 2
    s_add_u32 s72, s72, s{S_WIDX}
    s_lshl_b32 s72, s72, 9
    v_and_b32 v2, 7, v0
    v_lshlrev_b32 v2, 6, v2
    v_add_u32 v2, s72, v2
    v_min_u32 v2, L_END-{NAME}_kernel, v2
    global_load_dword v127, v2, s[70:71]
    s_cmp_lt_u32 s2, 224
    s_cbranch_scc1 L_GEMM1
    s_branch L_SPARE
    L_ISL:
    """)
    mapping(a)
    a(f"""
    s_sub_u32 s6, s{S_WIDX}, 4
    s_cmp_ge_u32 s{S_IDX}, 28
    s_cbranch_scc1 L_LWAVE_S
    """)
    a.ext(lwave(True))


def g_srds(a):
    srd(a, SRD_WS, S_WS, WS_BYTES)
    srd(a, SRD_WD, S_WD, 1792 * 512 * 2)
    srd(a, SRD_OUT, S_OUT, 2048 * 512 * 2)


VL16 = 1
XD = 8
(VD0, VD1, DA0, DA1, VEP, VPH, VFL, VG, VY, VYW, VYT, VW1, VW2, VW3, VR1, VR23) = range(112, 128)
YT_BASE = YB_BASE
G_LDS = YB_BASE
N_LDS = YB_BASE + 256
X_LDS = YB_BASE + 512
S_LDS = YB_BASE + 272
def n1():
    return OPT.get("n1", 14)


def n1x():
    return n1() + OPT.get("nx", 0)


def rot_scalar(dst, tmp):
    m = OPT.get("rmode", 0)
    if m == 1:
        return f"""
        s_lshr_b32 s{dst}, s{S_IDX}, 1
        s_and_b32 s{dst}, s{dst}, 2
        s_mul_i32 s{dst}, s{dst}, 7
        """
    if m == 2:
        return f"""
        s_lshr_b32 s{dst}, s{S_IDX}, 1
        s_and_b32 s{dst}, s{dst}, 2
        s_and_b32 s{tmp}, s{S_IDX}, 1
        s_add_u32 s{dst}, s{dst}, s{tmp}
        s_mul_i32 s{dst}, s{dst}, 7
        """
    return f"""
    s_lshr_b32 s{dst}, s{S_IDX}, 1
    s_and_b32 s{dst}, s{dst}, 2
    s_add_u32 s{dst}, s{dst}, s{S_IDX}
    s_and_b32 s{dst}, s{dst}, 3
    s_mul_i32 s{dst}, s{dst}, 7
    """


def rb64_scalar(dst, tmp):
    return f"""
    s_lshl_b32 s{dst}, s{S_XCD}, 2
    s_and_b32 s{tmp}, s{S_IDX}, 3
    s_add_u32 s{dst}, s{dst}, s{tmp}
    """


def cb64_scalar(dst, tmp):
    return f"""
    s_lshr_b32 s{dst}, s{S_IDX}, 2
    s_lshr_b32 s{tmp}, s{S_WD}, 7
    s_sub_u32 s{dst}, s{dst}, s{tmp}
    s_add_u32 s{dst}, s{dst}, {OPT.get("cbs", 4)}
    s_and_b32 s{dst}, s{dst}, 7
    """


def gemm2_setup(a):
    a(rb64_scalar(6, 13))
    a(cb64_scalar(7, 13))
    a(f"""
    s_lshl_b32 s17, s6, 6
    s_lshr_b32 s23, s{S_WIDX}, 1
    s_lshl_b32 s13, s23, 5
    s_add_u32 s17, s17, s13
    s_lshl_b32 s18, s7, 6
    s_and_b32 s14, s{S_WIDX}, 1
    s_lshl_b32 s13, s14, 5
    s_add_u32 s18, s18, s13
    v_lshrrev_b32 v5, 5, v0
    v_and_b32 v6, 31, v0
    v_add_u32 v6, s17, v6
    v_lshlrev_b32 v7, 4, v5
    v_add_u32 v7, s18, v7
    v_lshlrev_b32 v7, 1, v7
    v_lshl_add_u32 v{VEP}, v6, 10, v7
    s_lshl_b32 s8, s{S_WIDX}, 15
    s_lshl_b32 s9, s6, 1
    s_add_u32 s9, s9, s23
    s_mul_i32 s9, s9, 112
    s_mul_i32 s13, s{S_WIDX}, 28
    s_add_u32 s9, s9, s13
    s_lshl_b32 s9, s9, 10
    s_mul_i32 s22, s23, {224*1024}
    s_sub_u32 s22, {112*1024}, s22
    s_lshl_b32 s10, s13, 14
    s_lshl_b32 s13, s7, 7
    {"s_cmp_ge_u32 s2, 224" if OPT.get("fakecb") else ""}
    {"s_cselect_b32 s12, 128, 0" if OPT.get("fakecb") else ""}
    {"s_xor_b32 s13, s13, s12" if OPT.get("fakecb") else ""}
    s_add_u32 s10, s10, s13
    """)
    a(rot_scalar(12, 13))
    a(f"""
    s_add_u32 s11, s12, {n1x()}
    s_cmp_ge_u32 s11, 28
    s_cselect_b32 s13, 28, 0
    s_sub_u32 s11, s11, s13
    s_lshl_b32 s15, s6, 5
    s_mul_i32 s13, s{S_WIDX}, 7
    s_add_u32 s15, s15, s13
    s_lshl_b32 s15, s15, 7
    s_add_u32 s15, s15, {FH_OFF}
    s_lshl_b32 s13, s7, 2
    s_add_u32 s13, s13, s{S_WIDX}
    s_lshl_b32 s16, s13, 10
    s_add_u32 s16, s16, {FY_OFF}
    s_mul_i32 s19, s13, {16*DP}
    s_lshl_b32 s13, s6, 7
    s_add_u32 s19, s19, s13
    s_add_u32 s19, s19, {Y_OFF}
    v_lshlrev_b32 v{VL16}, 4, v0
    v_lshrrev_b32 v2, 3, v0
    v_and_b32 v3, 7, v0
    v_mul_u32_u24 v{VY}, {DP}, v2
    v_lshl_add_u32 v{VY}, v3, 4, v{VY}
    v_lshrrev_b32 v4, 1, v2
    v_and_b32 v4, 1, v4
    v_lshlrev_b32 v4, 2, v4
    v_xor_b32 v3, v3, v4
    v_lshlrev_b32 v{VD0}, 10, v2
    v_lshl_add_u32 v{VD0}, v3, 4, v{VD0}
    v_add_u32 v{VD1}, {8192-1024}, v{VD0}
    v_lshlrev_b32 v{VYW}, 7, v2
    v_lshl_add_u32 v{VYW}, v3, 4, v{VYW}
    v_add_u32 v{VYW}, s8, v{VYW}
    v_lshrrev_b32 v2, 2, v0
    v_and_b32 v2, 3, v2
    v_and_b32 v3, 3, v0
    v_lshrrev_b32 v4, 4, v0
    v_and_b32 v4, 1, v4
    v_lshl_add_u32 v6, v5, 2, v2
    v_lshlrev_b32 v6, 7, v6
    v_and_b32 v7, 1, v3
    v_lshl_add_u32 v6, v7, 5, v6
    v_lshl_add_u32 v6, v4, 4, v6
    v_lshrrev_b32 v7, 1, v3
    v_lshl_add_u32 v6, v7, 3, v6
    v_add_u32 v6, s8, v6
    v_lshrrev_b32 v7, 1, v2
    v_xor_b32 v7, s14, v7
    v_lshl_add_u32 v{DA0}, v7, 6, v6
    v_xor_b32 v7, 1, v7
    v_lshl_add_u32 v{DA1}, v7, 6, v6
    s_lshl_b32 s13, s14, 1
    v_add_u32 v6, s13, v5
    v_lshlrev_b32 v{VYT}, 15, v6
    v_lshl_add_u32 v{VYT}, v2, 7, v{VYT}
    v_lshrrev_b32 v7, 1, v2
    v_xor_b32 v7, s23, v7
    v_lshl_add_u32 v{VYT}, v7, 6, v{VYT}
    v_lshl_add_u32 v{VYT}, v4, 5, v{VYT}
    v_lshl_add_u32 v{VYT}, v3, 3, v{VYT}
    v_min_u32 v{VPH}, 6, v0
    v_lshlrev_b32 v{VPH}, 7, v{VPH}
    v_lshrrev_b32 v2, 2, v0
    v_and_b32 v2, 7, v2
    v_lshlrev_b32 v{VFL}, 7, v2
    v_lshl_add_u32 v{VFL}, v3, 2, v{VFL}
    v_and_b32 v{VG}, 31, v0
    s_lshl_b32 s13, s23, 5
    v_add_u32 v{VG}, s13, v{VG}
    v_lshlrev_b32 v{VG}, 2, v{VG}
    v_add_u32 v{VG}, {G_LDS}, v{VG}
    v_add_u32 v{VW1}, s8, v{VL16}
    s_xor_b32 s13, s{S_WIDX}, 1
    s_lshl_b32 s13, s13, 15
    v_add_u32 v{VR1}, s13, v{VL16}
    s_xor_b32 s13, s{S_WIDX}, 2
    s_lshl_b32 s13, s13, 15
    v_add_u32 v{VW2}, s13, v{VL16}
    s_xor_b32 s13, s{S_WIDX}, 3
    s_lshl_b32 s13, s13, 15
    v_add_u32 v{VW3}, s13, v{VL16}
    """)


def gemm1(a):
    XA = 16
    WA = 28
    BUFS = [64, 88, 40]
    ACC = 128

    def acc(mat, t, tt):
        return ACC + 16 * (mat * 4 + t * 2 + tt)

    def wf(b, mat, t):
        return BUFS[b] + 4 * (mat * 2 + t)

    def xf(b, tt):
        return BUFS[b] + 16 + 4 * tt

    g2 = Asm()
    a(f"""
    s_lshr_b32 s68, s{S_WIDX}, 1
    s_and_b32 s69, s{S_WIDX}, 1
    v_and_b32 v7, 31, v0
    v_lshrrev_b32 v2, 5, v0
    v_lshrrev_b32 v3, 1, v0
    v_and_b32 v3, 7, v3
    s_lshl_b32 s70, s68, 13
    v_lshlrev_b32 v4, 7, v7
    v_add_u32 v4, s70, v4
    """)
    for ks in range(4):
        a(f"""
        v_add_u32 v5, {2*ks}, v2
        v_xor_b32 v5, v5, v3
        v_lshl_add_u32 v{XA+ks}, v5, 4, v4
        """)
    a(f"""
    v_lshrrev_b32 v7, 2, v0
    v_and_b32 v7, 3, v7
    v_and_b32 v3, 3, v0
    v_lshrrev_b32 v4, 4, v0
    v_and_b32 v4, 1, v4
    v_lshl_add_u32 v5, v2, 3, v7
    v_lshlrev_b32 v5, 8, v5
    v_lshl_add_u32 v5, v4, 5, v5
    v_lshl_add_u32 v5, v3, 3, v5
    s_lshl_b32 s70, s69, 1
    """)
    for t in range(2):
        a(f"""
        s_add_u32 s71, s70, {t}
        v_xor_b32 v6, s71, v7
        v_lshl_add_u32 v{WA+t}, v6, 6, v5
        """)
    for sl in (1, 2):
        for ks in range(4):
            a(f"v_add_u32 v{XA+4*sl+ks}, {sl*SLOT}, v{XA+ks}")
        for t in range(2):
            a(f"v_add_u32 v{WA+2*sl+t}, {sl*SLOT}, v{WA+t}")
    mapping(g2)
    g_srds(g2)
    gemm2_setup(g2)
    g2(f"""
    s_lshr_b32 s68, s{S_WIDX}, 1
    s_and_b32 s69, s{S_WIDX}, 1
    s_lshl_b32 s70, s{S_RB}, 2
    s_lshl_b32 s71, s68, 1
    s_add_u32 s70, s70, s71
    s_mul_i32 s70, s70, 112
    s_lshl_b32 s71, s{S_CB}, 3
    s_add_u32 s70, s70, s71
    s_lshl_b32 s71, s69, 2
    s_add_u32 s70, s70, s71
    s_lshl_b32 s70, s70, 10
    s_add_u32 s71, s70, {112*1024}
    s_lshl_b32 s3, s{S_RB}, 1
    s_add_u32 s3, s3, s68
    s_lshl_b32 s3, s3, 5
    s_lshl_b32 s72, s{S_CB}, 1
    s_add_u32 s3, s3, s72
    s_add_u32 s3, s3, s69
    s_lshl_b32 s3, s3, 7
    s_add_u32 s3, s3, {FH_OFF}
    s_mov_b32 s72, {f32(-LOG2E)}
    s_mov_b32 s73, {f32(-LOG2E)}
    """)

    def reads(n):
        st, ks = n >> 2, n & 3
        sl = st % 3
        b = n % 3
        r = []
        r.append(f"ds_read_b128 {v(xf(b,0),4)}, v{XA+4*sl+ks}")
        for mat in range(2):
            for t in range(2):
                for h2 in range(2):
                    off = 16384 * (1 + mat) + ks * 4096 + h2 * 1024
                    r.append(f"ds_read_b64_tr_b16 {v(wf(b,mat,t)+2*h2,2)}, v{WA+2*sl+t} offset:{off}")
                if mat == 0 and t == 0:
                    r.append(f"ds_read_b128 {v(xf(b,1),4)}, v{XA+4*sl+ks} offset:4096")
        return r

    T = 16

    def epi(p):
        t, tt = p >> 1, p & 1
        G, U = acc(0, t, tt), acc(1, t, tt)
        o = 32 + 8 * p
        L = []
        for h in range(2):
            R = range(8 * h, 8 * h + 8)
            L += [f"v_pk_mul_f32 {v(T+i,2)}, {v(G+i,2)}, s[72:73]" for i in R[::2]]
            for i in R[::2]:
                L += [f"v_exp_f32 v{T+i}, v{T+i}", f"v_exp_f32 v{T+i+1}, v{T+i+1}",
                      f"v_pk_mul_f32 {v(U+i,2)}, {v(G+i,2)}, {v(U+i,2)}"]
            L += [f"v_pk_add_f32 {v(T+i,2)}, {v(T+i,2)}, 1.0 op_sel_hi:[1,0]" for i in R[::2]]
            L += [f"v_rcp_f32 v{T+i}, v{T+i}" for i in R]
            L += [f"v_pk_mul_f32 {v(U+i,2)}, {v(U+i,2)}, {v(T+i,2)}" for i in R[::2]]
            for i in range(4):
                L.append(f"v_cvt_pk_bf16_f32 v{o+4*h+i}, v{U+8*h+2*i}, v{U+8*h+2*i+1}")
            L.append(f"buffer_store_dwordx4 {v(o+4*h,4)}, v{VL16}, {sr(SRD_WS)}, s{70+tt} offen offset:{t*2048+1024*h} sc1")
        return L

    a("s_waitcnt lgkmcnt(0)")
    a("s_barrier")
    a.ext(stamp(1))
    a.ext(bstamp(2, 1))
    a.ext(reads(0))
    a.ext(reads(1))
    extra = []
    XL = OPT.get("xl", 13)
    for n in range(32):
        b = n % 3
        if (n & 3) == 2:
            a("s_waitcnt lgkmcnt(0)")
            a.ext(bstamp(2, 2 + (n >> 2)))
            a("s_barrier")
            if OPT.get("gap") == n:
                for _ in range(OPT.get("gapn", 20)):
                    a("s_nop 15")
            if n == 22:
                a.ext(stamp(2))
        elif (n & 3) != 3:
            a("s_waitcnt lgkmcnt(10)")
        rd = reads(n + 2) if n + 2 < 32 else []
        mf = []
        for t in range(2):
            for tt in range(2):
                for mat in range(2):
                    c = "0" if n == 0 else v(acc(mat, t, tt), 16)
                    mf.append(f"v_mfma_f32_32x32x16_bf16 {v(acc(mat,t,tt),16)}, {v(wf(b,mat,t),4)}, {v(xf(b,tt),4)}, {c}")
        if n == 3:
            extra = list(g2.L)
        if n == 30:
            assert not extra
            extra = [f"v_mov_b32 v2, {N_LDS}", "ds_read_b32 v3, v2"]
        for i, m in enumerate(mf):
            a(m)
            a.ext(rd[2 * i:2 * i + 2])
            if i >= 4:
                a.ext(extra[:3])
                extra = extra[3:]
    assert not extra
    a.ext(stamp(3))
    if OPT.get("eprio", 0):
        a(f"s_setprio {OPT['eprio']}")
    a(f"s_waitcnt lgkmcnt(0)\nv_readfirstlane_b32 s{S_NONCE}, v3\ns_nop 5")
    for p in range(4):
        a.ext(epi(p))
    a.ext(stamp(4))


def spare(a):
    R = 16
    O = 80
    GWv = 112
    SUM = 120
    a(f"""
    s_sub_u32 s68, s{S_IDX}, 28
    s_lshl_b32 s3, s{S_XCD}, 2
    s_add_u32 s3, s3, s68
    s_lshl_b32 s3, s3, 5
    s_add_u32 s3, s3, s{S_WIDX}
    s_lshl_b32 s3, s3, 2
    s_add_u32 s3, s3, {FU_OFF}
    s_lshl_b32 s68, s68, 2
    s_add_u32 s68, s68, s{S_WIDX}
    s_lshr_b32 s69, s68, 1
    s_mov_b32 s74, s{S_XCD}
    v_and_b32 v1, 7, v0
    v_lshrrev_b32 v2, 3, v0
    v_lshlrev_b32 v3, 15, v2
    v_lshl_add_u32 v3, v1, 4, v3
    v_mul_u32_u24 v4, {8*DP}, v1
    v_lshl_add_u32 v4, v2, 4, v4
    v_lshlrev_b32 v5, 4, v1
    v_lshlrev_b32 v6, 2, v0
    s_mov_b32 s70, 0x05040100
    s_mov_b32 s71, 0x07060302
    s_lshl_b32 s72, s69, 7
    v_add_u32 v7, s72, v5
    global_load_dwordx4 {v(GWv,4)}, v7, s[{S_GW}:{S_GW+1}]
    """)
    for i in range(2):
        b = 6 + 4 * i
        a(f"""
        s_lshl_b32 s73, s68, 1
        s_add_u32 s73, s73, {i}
        s_and_b32 s73, s73, 3
        s_lshl_b32 s{b}, s74, 18
        s_lshl_b32 s75, s73, 10
        s_add_u32 s{b}, s{b}, s75
        s_add_u32 s{b}, s{b}, s72
        s_mul_i32 s{b+1}, s69, {64*DP}
        s_add_u32 s{b+1}, s{b+1}, s75
        s_lshl_b32 s75, s74, 7
        s_add_u32 s{b+1}, s{b+1}, s75
        s_add_u32 s{b+1}, s{b+1}, {UT_OFF}
        s_lshl_b32 s{b+2}, s74, 8
        s_lshl_b32 s75, s73, 11
        s_add_u32 s{b+2}, s{b+2}, s75
        s_lshl_b32 s75, s69, 13
        s_add_u32 s{b+2}, s{b+2}, s75
        s_add_u32 s{b+2}, s{b+2}, {GL_OFF}
        """)
        for j in range(8):
            a(f"buffer_load_dwordx4 {v(R+32*i+4*j,4)}, v3, {sr(SRD_X)}, s{b} offen")
            if j < 7:
                a(f"s_add_u32 s{b}, s{b}, 4096")
    a("v_mov_b32 v2, 0")
    for i in range(2):
        b = 6 + 4 * i
        a("s_waitcnt vmcnt(8)")
        Ri = R + 32 * i
        for e in range(8):
            for jj in range(4):
                sel = 71 if (e & 1) else 70
                a(f"v_perm_b32 v{O+4*e+jj}, v{Ri+4*(2*jj+1)+(e>>1)}, v{Ri+4*(2*jj)+(e>>1)}, s{sel}")
            a(f"buffer_store_dwordx4 {v(O+4*e,4)}, v4, {sr(SRD_WS)}, s{b+1} offen sc1")
            if e < 7:
                a(f"s_add_u32 s{b+1}, s{b+1}, {DP}")
    a(nonce_ld(3, 2))
    a.ext(stamp(1))
    a("s_barrier")
    for i in range(2):
        Ri = R + 32 * i
        S_ = SUM - 8 * i * 5
        for j in range(8):
            a(f"v_mov_b32 v{S_+j}, 0")
        for q in range(4):
            for j in range(8):
                a(f"v_dot2c_f32_bf16 v{S_+j}, v{Ri+4*j+q}, v{GWv+q}")
        a("s_nop 3")
        for ctl in ("quad_perm:[1,0,3,2]", "quad_perm:[2,3,0,1]", "row_half_mirror"):
            for j in range(8):
                a(f"v_add_f32_dpp v{S_+j}, v{S_+j}, v{S_+j} {ctl} row_mask:0xf bank_mask:0xf")
        for j in range(1, 8):
            a(f"""
            v_cmp_eq_u32 vcc, {j}, v1
            s_nop 1
            v_cndmask_b32 v{S_}, v{S_}, v{S_+j}, vcc
            """)
        if i == 0:
            a("s_waitcnt vmcnt(0)")
            a.ext(plain(nonce_get("NS", 3, 2)))
            a(f"""
            s_mov_b32 s76, s{S_NONCE}
            s_mov_b64 exec, 1
            buffer_store_dword v3, v2, {sr(SRD_WS)}, s3 offen sc1
            s_mov_b64 exec, -1
            """)
            a.ext(stamp(2))
    a(f"""
    buffer_store_dword v{SUM}, v6, {sr(SRD_WS)}, s8 offen sc1
    buffer_store_dword v{SUM-40}, v6, {sr(SRD_WS)}, s12 offen sc1
    s_add_u32 s3, s3, {FG_OFF - FU_OFF}
    s_waitcnt vmcnt(0)
    s_mov_b64 exec, 1
    buffer_store_dword v3, v2, {sr(SRD_WS)}, s3 offen sc1
    s_mov_b64 exec, -1
    s_sub_u32 s3, s3, {FG_OFF}
    s_lshl_b32 s3, s3, 5
    s_add_u32 s3, s3, {FD_OFF}
    """)
    a.ext(stamp(3))
    gemm2_setup(a)
    a(f"s_mov_b32 s{S_NONCE}, s76\ns_waitcnt vmcnt(0)")


def spin(label, loads, checks, sleep=2):
    L = [f"{label}_SPIN:", f"s_sleep {sleep}"]
    L += [("NOCOUNT", x) for x in loads]
    L += ["s_waitcnt vmcnt(0)"]
    L += ["s_sub_u32 s77, s77, 1", "s_cmp_eq_u32 s77, 0", f"s_cbranch_scc1 {label}_OK"]
    L += [f"{label}_CHK:"] + checks
    L += [f"s_cbranch_scc0 {label}_SPIN", f"{label}_OK:"]
    return L


S_NONCE = 23


def nonce_ld(vd, vz):
    return f"global_load_dword v{vd}, v{vz}, s[{S_DBG}:{S_DBG+1}] sc1"


def nonce_get(label, vd, vz, sleep=8):
    L = ["s_mov_b32 s77, 0x100000", f"s_branch {label}_CHK"]
    L += spin(label, [nonce_ld(vd, vz)], [f"v_cmp_ne_u32 vcc, 0, v{vd}", "s_nop 3", "s_cmp_eq_u64 vcc, exec"], sleep)
    L += [f"v_readfirstlane_b32 s{S_NONCE}, v{vd}", "s_nop 3"]
    return L


def plain(lines):
    return [x[1] if isinstance(x, tuple) else x for x in lines]


def gemm2(a0):
    a = Asm()
    NS = 28
    NP = 12
    NR = 16
    DH = OPT.get('dh', 6)
    ACC = 192
    WF = 16
    WFR = 128
    HB = 144
    N1 = n1x()
    PP1 = OPT.get("pp1", 21)
    N2 = OPT.get("n2", 28)

    def acc(t, tt):
        return ACC + 16 * (t + 2 * tt)

    def wload(i):
        sl = i % NR
        return [
            "s_lshl_b32 s14, s11, 14", f"s_add_u32 m0, s8, {sl*2048}", "s_add_u32 s14, s14, s10",
            f"buffer_load_dwordx4 v{VD0}, {sr(SRD_WD)}, s14 offen lds",
            "s_add_u32 s11, s11, 1", "s_cmp_ge_u32 s11, 28", "s_cselect_b32 s11, 0, s11",
            f"buffer_load_dwordx4 v{VD1}, {sr(SRD_WD)}, s14 offen offset:1024 lds",
            ("VMTAG", f"W{i}"),
        ]

    def hb(i):
        sl = i % DH
        return HB + 8 * sl if sl < 6 else 8

    def hload(i):
        sl = i % DH
        return [
            "s_lshl_b32 s13, s12, 10", "s_add_u32 s13, s13, s9",
            f"buffer_load_dwordx4 {v(hb(i),4)}, v{VL16}, {sr(SRD_WS)}, s13 offen sc1",
            "s_add_u32 s13, s13, s22",
            "s_add_u32 s12, s12, 1", "s_cmp_ge_u32 s12, 28", "s_cselect_b32 s12, 0, s12",
            f"buffer_load_dwordx4 {v(hb(i)+4,4)}, v{VL16}, {sr(SRD_WS)}, s13 offen sc1",
            ("VMTAG", f"H{i}"),
        ]

    TT = OPT.get("tt", 0)

    def wfrag(i):
        if TT and i > NS - TT:
            return WF + 8 * (i - (NS - TT) - 1)
        return WF + 8 * i if i < NP else WFR + 8 * (i & 1)

    def trd(i):
        sl = i % NR
        r = [("VMWAIT", f"W{i}")] if i >= N1 else []
        for t in range(2):
            for h2 in range(2):
                r.append(f"ds_read_b64_tr_b16 {v(wfrag(i)+4*t+2*h2,2)}, v{DA0+t} offset:{sl*2048+h2*1024}")
        return r

    NF = OPT.get("nf", 0)
    a(f"""
    s_setprio 2
    v_mov_b32 v2, 0
    v_mov_b32 v3, s{S_NONCE}
    s_mov_b32 s77, 0x100000
    """)
    a.tag("hst")

    def pub():
        a.wait("hst")
        a(f"""
        s_mov_b64 exec, 1
        buffer_store_dword v3, v2, {sr(SRD_WS)}, s3 offen sc1
        s_mov_b64 exec, -1
        """)
    if NF == 0:
        pub()
    a.ext(stamp(5))
    a("s_barrier")
    if NF == 0:
        a.ext(stamp(6))
    ph_ld = f"buffer_load_dword v4, v{VPH}, {sr(SRD_WS)}, s15 offen sc1"

    def wl(i):
        a.ext(wload(i))
        if i == N1 + NF - 1:
            pub()
            a.ext(stamp(6))
        if i == PP1:
            a(ph_ld)
            a.tag("P1")
    assert NP <= N1
    for i in range(N1, NR):
        wl(i)
    for i in range(NP + 1):
        if i < NP:
            a.ext(trd(i))
        if i >= 1 and NR + i - 1 < N2:
            a(f"s_waitcnt lgkmcnt({4 if i < NP else 0})")
            wl(NR + i - 1)
    a.ext(stamp(7))
    a.wait("P1")
    a("s_branch PH_CHK")
    a.ext(spin("PH", [ph_ld], [f"v_cmp_eq_u32 vcc, s{S_NONCE}, v4", "s_nop 3", "s_cmp_eq_u64 vcc, exec"]))
    a.ext(stamp(8))
    a.ext(bstamp(3, 1))
    for i in range(DH):
        a.ext(hload(i))
    a("s_waitcnt lgkmcnt(0)")

    YR, FL, YT, EG = 80, 2, WFR, 6
    fl_ld = [f"buffer_load_dword v{FL}, v{VFL}, {sr(SRD_WS)}, s16 offen sc1"]
    chk = [f"v_cmp_eq_u32 vcc, s{S_NONCE}, v{FL}", "s_nop 3", "s_cmp_eq_u64 vcc, exec"]

    def yloads():
        return [f"buffer_load_dwordx4 {v(YR,4)}, v{VY}, {sr(SRD_WS)}, s19 offen sc1",
                f"s_add_u32 s13, s19, {8*DP}",
                f"buffer_load_dwordx4 {v(YR+4,4)}, v{VY}, {sr(SRD_WS)}, s13 offen sc1"]

    IF = OPT.get("if", 22)
    IY = OPT.get("iy", 25 if not TT else NS - TT - 1)
    for i in range(NS - TT):
        sl = i % DH
        a.wait(f"H{i}")
        if i >= NP:
            a("s_waitcnt lgkmcnt(0)")
        hl = hload(i - 1 + DH) if 1 <= i and i - 1 + DH < NS else []
        fill = [(trd(i + 1) if NP <= i + 1 < NS else []) + hl[:3], hl[3:], wload(N2 + i) if N2 + i < NS else [], []]
        if TT and i == NS - TT - 1:
            for j in range(NS - TT + 1, NS):
                fill[1 + (j & 1)] = fill[1 + (j & 1)] + trd(j)
        k = 0
        for t in range(2):
            for tt in range(2):
                c = "0" if i == 0 else v(acc(t, tt), 16)
                a(f"v_mfma_f32_32x32x16_bf16 {v(acc(t,tt),16)}, {v(wfrag(i)+4*t,4)}, {v(hb(i)+4*tt,4)}, {c}")
                a.ext(fill[k])
                k += 1
        if i in (0, 3, 7, 11, 15, 19, 23, 27):
            a.ext(bstamp(3, 2 + (0, 3, 7, 11, 15, 19, 23, 27).index(i)))
        if i == IF:
            a.ext(fl_ld)
            a.tag("F")
        if i == IY:
            a.wait("F")
            a.ext(yloads())
    def pw(k):
        return [f"ds_write_b128 v{VW1}, {v(ACC+16*k+4*g,4)} offset:{k*4096+g*1024}" for g in range(4)]

    if TT:
        a.wait(f"H{NS-1}")
        a("s_waitcnt lgkmcnt(0)")
        order = (1, 2, 3, 0)
        for n_, k in enumerate(order):
            t, tt = k & 1, k >> 1
            w = pw(order[n_ - 2]) if n_ >= 2 else []
            for m_, i in enumerate(range(NS - TT, NS)):
                a(f"v_mfma_f32_32x32x16_bf16 {v(acc(t,tt),16)}, {v(wfrag(i)+4*t,4)}, {v(hb(i)+4*tt,4)}, {v(acc(t,tt),16)}")
                a.ext(w[2 * m_:2 * m_ + 2])
                if n_ >= 1:
                    a("s_nop 3")
    a.ext(stamp(9))
    a.ext(bstamp(7, 1))
    if TT:
        a.ext(pw(3))
    a.ext(chk)
    a("s_cbranch_scc1 PY_DONE")
    a.ext(spin("PY", fl_ld, chk))
    a.ext([("NOCOUNT", x) if is_vmem(x) else x for x in yloads()])
    a("PY_DONE:")
    a.ext(bstamp(7, 2))
    a("s_nop 5")
    for k in range(1, 4):
        if not TT:
            a.ext(pw(k))
    a.ext(bstamp(7, 3))
    X1, Y1 = HB, HB + 16
    OST = {0: "", 1: " sc1", 2: " nt", 3: " sc0 sc1"}[OPT.get("ost", 0)]
    a(f"""
    v_mov_b32 v5, 0xffff0000
    s_waitcnt vmcnt(0)
    ds_write_b128 v{VYW}, {v(YR,4)} offset:16384
    ds_write_b128 v{VYW}, {v(YR+4,4)} offset:17408
    """)
    a.ext(bstamp(7, 4))
    a("s_waitcnt lgkmcnt(0)")
    a.ext(bstamp(7, 5))
    a("s_barrier")
    a.ext(bstamp(7, 6))
    PB = 16
    a(f"ds_read_b32 v{EG}, v{VG}")
    for q in range(4):
        a(f"ds_read_b64_tr_b16 {v(YT+2*q,2)}, v{VYT} offset:{16384+q*512}")
    for k, base in ((1, VR1), (2, VW2), (3, VW3)):
        for g in range(4):
            a(f"ds_read_b128 {v(PB+16*(k-1)+4*g,4)}, v{base} offset:{k*4096+g*1024}")
    a("s_waitcnt lgkmcnt(12)")
    for i in range(8):
        a(f"""
        v_lshlrev_b32 v{Y1+2*i}, 16, v{YT+i}
        v_and_b32 v{Y1+2*i+1}, v5, v{YT+i}
        """)
    a("s_waitcnt lgkmcnt(8)")
    for i in range(0, 16, 2):
        a(f"v_pk_add_f32 {v(ACC+i,2)}, {v(ACC+i,2)}, {v(PB+i,2)}")
    a("s_waitcnt lgkmcnt(0)")
    a.ext(bstamp(7, 7))
    for i in range(0, 16, 2):
        a(f"v_pk_add_f32 {v(PB+16+i,2)}, {v(PB+16+i,2)}, {v(PB+32+i,2)}")
    for i in range(0, 16, 2):
        a(f"v_pk_add_f32 {v(ACC+i,2)}, {v(ACC+i,2)}, {v(PB+16+i,2)}")
    for i in range(0, 16, 2):
        a(f"v_pk_add_f32 {v(Y1+i,2)}, {v(Y1+i,2)}, {v(ACC+i,2)} neg_lo:[0,1] neg_hi:[0,1]")
    for i in range(0, 16, 2):
        a(f"v_pk_fma_f32 {v(ACC+i,2)}, {v(Y1+i,2)}, {v(EG,2)}, {v(ACC+i,2)} op_sel_hi:[1,0,1]")
    for i in range(8):
        a(f"v_cvt_pk_bf16_f32 v{X1+i}, v{ACC+2*i}, v{ACC+2*i+1}")
    a(f"""
    buffer_store_dwordx4 {v(X1,4)}, v{VEP}, {sr(SRD_OUT)}, 0 offen{OST}
    buffer_store_dwordx4 {v(X1+4,4)}, v{VEP}, {sr(SRD_OUT)}, 0 offen offset:16{OST}
    """)
    a.ext(stamp_end())
    a0.ext(resolve_vm(a.L))


def kwave(gemm_wg):
    sfx = "G" if gemm_wg else "S"
    ra = RA(2, 256)
    pre = Asm()
    main = Asm()
    ph2 = Asm()
    a = pre
    a(f"""
    s_setprio {OPT.get("kprio", 0)}
    s_lshl_b32 s70, s68, 13
    s_add_u32 s70, s70, {KG_BASE}
    """)
    t0 = ra(); t1 = ra(); t2 = ra(); t3 = ra()
    PR = ra(7)
    DV = ra()
    assert PR == K_PR
    if gemm_wg:
        a(f"""
        s_cmp_lg_u32 s69, 0
        s_cbranch_scc1 K{sfx}_NOTAG
        s_memrealtime s[72:73]
        v_mov_b32 v{t0}, 0
        s_waitcnt lgkmcnt(0)
        s_or_b32 s72, s72, 1
        v_mov_b32 v{t1}, s72
        s_mov_b64 exec, 1
        global_store_dword v{t0}, v{t1}, s[{S_DBG}:{S_DBG+1}] sc1
        s_mov_b64 exec, -1
        K{sfx}_NOTAG:
        """)

    WR = ra(8)
    RD = ra(2)
    a(f"""
    v_lshrrev_b32 v{t0}, 1, v0
    v_and_b32 v{t1}, 7, v{t0}
    v_lshlrev_b32 v{t0}, 8, v{t0}
    v_and_b32 v{t2}, 1, v0
    v_lshl_add_u32 v{t0}, v{t2}, 3, v{t0}
    v_add_u32 v{t0}, s70, v{t0}
    """)
    for b in range(8):
        a(f"""
        v_xor_b32 v{t2}, {b}, v{t1}
        v_lshl_add_u32 v{WR+b}, v{t2}, 4, v{t0}
        """)
    a(f"""
    v_and_b32 v{t0}, 15, v0
    v_lshrrev_b32 v{t1}, 4, v0
    """)
    for p in range(2):
        a(f"""
        v_add_u32 v{t2}, {4*p}, v{t1}
        v_xor_b32 v{t3}, v{t2}, v{t0}
        v_lshlrev_b32 v{t3}, 4, v{t3}
        v_lshl_add_u32 v{t3}, v{t2}, 8, v{t3}
        v_add_u32 v{RD+p}, s70, v{t3}
        """)
    TA0 = ra(); TA1 = ra(); TA2 = ra(); TA3 = ra()
    LP = ra(12)
    a(f"""
    v_and_b32 v{t2}, 1, v{t1}
    v_lshrrev_b32 v{t3}, 1, v{t1}
    v_lshlrev_b32 v{TA0}, 5, v{t0}
    v_lshl_add_u32 v{TA0}, v{t2}, 4, v{TA0}
    v_lshl_add_u32 v{TA0}, v{t3}, 9, v{TA0}
    v_lshrrev_b32 v{LP}, 2, v{TA0}
    v_cvt_f32_u32 v{LP}, v{LP}
    v_add_u32 v{TA0}, s70, v{TA0}
    v_add_f32 v{LP+1}, 1.0, v{LP}
    v_add_f32 v{LP+2}, 2.0, v{LP}
    v_add_f32 v{LP+3}, 2.0, v{LP+1}
    v_cmp_gt_u32 vcc, 2, v{t1}
    v_lshlrev_b32 v{TA1}, 4, v{t0}
    v_lshlrev_b32 v{TA2}, 3, v{t0}
    v_cndmask_b32 v{TA1}, v{TA2}, v{TA1}, vcc
    v_lshl_add_u32 v{TA1}, v{t1}, 8, v{TA1}
    v_add_u32 v{TA1}, s70, v{TA1}
    v_add_u32 v{TA1}, 1024, v{TA1}
    v_mov_b32 v{TA2}, 128
    v_cndmask_b32 v{TA2}, v{TA2}, 8, vcc
    v_add_u32 v{TA2}, v{TA2}, v{TA1}
    v_lshlrev_b32 v{TA3}, 2, v{t0}
    v_lshl_add_u32 v{TA3}, v{t1}, 8, v{TA3}
    v_add_u32 v{TA3}, s70, v{TA3}
    """)
    a(f"""
    v_lshlrev_b32 v{t2}, 7, v{t1}
    v_add_u32 v{t2}, 256, v{t2}
    v_lshlrev_b32 v{t3}, 8, v{t1}
    v_cndmask_b32 v{t2}, v{t3}, v{t2}, vcc
    v_lshl_add_u32 v{t2}, v{t0}, 3, v{t2}
    v_cvt_f32_u32 v{LP+4}, v{t2}
    v_mov_b32 v{t2}, 4.0
    v_cndmask_b32 v{t2}, v{t2}, 2.0, vcc
    v_mov_b32 v{t3}, {f32(128.0)}
    v_cndmask_b32 v{t3}, v{t3}, 4.0, vcc
    v_add_f32 v{LP+5}, v{LP+4}, v{t2}
    v_add_f32 v{LP+6}, v{LP+4}, v{t3}
    v_add_f32 v{LP+7}, v{LP+6}, v{t2}
    v_lshlrev_b32 v{t2}, 9, v{t1}
    v_lshl_add_u32 v{t2}, v{t0}, 3, v{t2}
    v_add_u32 v{t2}, 1024, v{t2}
    v_cvt_f32_u32 v{LP+8}, v{t2}
    v_add_f32 v{LP+9}, {f32(128.0)}, v{LP+8}
    v_add_f32 v{LP+10}, {f32(256.0)}, v{LP+8}
    v_add_f32 v{LP+11}, {f32(384.0)}, v{LP+8}
    """)
    EX = ra(10)
    a(f"""
    s_sub_u32 s72, s70, {4*17024}
    v_lshlrev_b32 v{t0}, 3, v0
    v_cvt_f32_u32 v{t1}, v{t0}
    v_cmp_gt_u32 vcc, 16, v0
    v_add_u32 v{EX+8}, s70, v{t0}
    v_lshlrev_b32 v{t0}, 2, v{t0}
    v_add_u32 v{t0}, s70, v{t0}
    v_lshlrev_b32 v{EX+9}, 2, v0
    v_add_u32 v{EX+9}, s70, v{EX+9}
    v_add_u32 v{EX+9}, 2048, v{EX+9}
    """)
    for kk in range(4):
        e0, e1 = EX + 2 * kk, EX + 2 * kk + 1
        a(f"""
        v_add_f32 v{t2}, 1.0, v{t1}
        v_cvt_pk_bf16_f32 v{t3}, v{t1}, v{t2}
        v_add_f32 v{t1}, 2.0, v{t1}
        v_and_b32 v{e0}, 0xffff, v{t3}
        v_lshrrev_b32 v{e1}, 16, v{t3}
        v_lshl_add_u32 v{e0}, v{e0}, 2, s72
        v_lshl_add_u32 v{e1}, v{e1}, 2, s72
        v_add_u32 v{t2}, {8*kk}, v{t0}
        v_add_u32 v{t3}, {8*kk+4}, v{t0}
        v_cndmask_b32 v{e0}, v{e0}, v{t2}, vcc
        v_cndmask_b32 v{e1}, v{e1}, v{t3}, vcc
        """)

    if gemm_wg:
        a.ext(kparam_loads())
    srd(a, SRD_WS, S_WS, WS_BYTES)
    a = main
    a("s_waitcnt vmcnt(0)")
    MASK = ra()
    DT = ra()
    PP = ra(12)
    a(f"""
    v_mov_b32 v{MASK}, 0xffff0000
    v_cmp_eq_u32 vcc, 0, v0
    v_lshlrev_b32 v{DV}, 16, v{DV}
    s_nop 0
    v_cndmask_b32 v{DV}, 0, v{DV}, vcc
    """)
    for i in range(6):
        a(f"v_lshlrev_b32 v{PP+2*i}, 16, v{PR+i}")
        a(f"v_and_b32 v{PP+2*i+1}, v{MASK}, v{PR+i}")
    if OPT.get("tagp") == 1:
        a(f"v_mov_b32 v{PR}, 0")
        a(nonce_ld(PR + 1, PR))
    x = PR + 6
    a(f"""
    v_lshlrev_b32 v{x}, 16, v{x}
    v_mul_f32 v{t0}, {f32(LOG2E_HI)}, v{x}
    s_mov_b32 s72, {f32(LOG2E_HI)}
    v_fma_f32 v{t1}, v{x}, s72, -v{t0}
    v_fmac_f32 v{t1}, {f32(LOG2E_LO)}, v{x}
    v_exp_f32 v{t0}, v{t0}
    v_mul_f32 v{t1}, {f32(LN2)}, v{t1}
    v_fmac_f32 v{t0}, v{t0}, v{t1}
    v_cvt_pk_bf16_f32 v{t0}, v{t0}, v{t0}
    v_lshlrev_b32 v{DT}, 16, v{t0}
    """)
    A2, TH, Br, Bi, Cr, Ci = (PP + 2 * i for i in range(6))
    for m in range(2):
        a(f"""
        v_mul_f32 v{A2+m}, v{DT}, v{A2+m}
        v_mul_f32 v{TH+m}, v{DT}, v{TH+m}
        v_mul_f32 v{Br+m}, v{DT}, v{Br+m}
        v_mul_f32 v{Bi+m}, v{DT}, v{Bi+m}
        v_mul_f32 v{A2+m}, {f32(LOG2E)}, v{A2+m}
        v_mul_f32 v{TH+m}, {f32(INV2PI)}, v{TH+m}
        """)
    W0 = ra(4); W1 = ra(4)
    for m in range(2):
        a(f"""
        v_mul_f32 v{W0+2*m}, v{Cr+m}, v{Br+m}
        v_mul_f32 v{W0+2*m+1}, v{Cr+m}, v{Bi+m}
        v_fma_f32 v{W0+2*m}, -v{Ci+m}, v{Bi+m}, v{W0+2*m}
        v_fmac_f32 v{W0+2*m+1}, v{Ci+m}, v{Br+m}
        v_sub_f32 v{W0+2*m+1}, 0, v{W0+2*m+1}
        """)
    SIG = ra(); WM = ra(); CE = ra()
    a(f"""
    v_max_f32 v{SIG}, v{A2}, v{A2+1}
    v_max3_f32 v{WM}, |v{W0}|, |v{W0+1}|, |v{W0+2}|
    v_max_f32 v{WM}, |v{W0+3}|, v{WM}
    s_nop 1
    """)
    for ctl in ("quad_perm:[1,0,3,2]", "quad_perm:[2,3,0,1]", "row_half_mirror", "row_mirror"):
        a(f"""
        v_max_f32_dpp v{SIG}, v{SIG}, v{SIG} {ctl} row_mask:0xf bank_mask:0xf
        v_max_f32_dpp v{WM}, v{WM}, v{WM} {ctl} row_mask:0xf bank_mask:0xf
        s_nop 0
        """)
    a(f"""
    v_readlane_b32 s72, v{SIG}, 0
    v_readlane_b32 s73, v{SIG}, 16
    v_readlane_b32 s74, v{SIG}, 32
    v_readlane_b32 s75, v{SIG}, 48
    v_readlane_b32 s6, v{WM}, 0
    v_readlane_b32 s7, v{WM}, 16
    v_readlane_b32 s8, v{WM}, 32
    v_readlane_b32 s9, v{WM}, 48
    v_max_f32 v{SIG}, s72, v{SIG}
    v_max_f32 v{SIG}, s73, v{SIG}
    v_max_f32 v{SIG}, s74, v{SIG}
    v_max_f32 v{SIG}, s75, v{SIG}
    v_max_f32 v{WM}, s6, v{WM}
    v_max_f32 v{WM}, s7, v{WM}
    v_max_f32 v{WM}, s8, v{WM}
    v_max_f32 v{WM}, s9, v{WM}
    v_sub_f32 v{A2}, v{A2}, v{SIG}
    v_sub_f32 v{A2+1}, v{A2+1}, v{SIG}
    v_frexp_exp_i32_f32 v{CE}, v{WM}
    v_sub_u32 v{t0}, 14, v{CE}
    v_subrev_u32 v{CE}, 29, v{CE}
    """)
    for i in range(4):
        a(f"v_ldexp_f32 v{W0+i}, v{W0+i}, v{t0}")

    def cexp(l):
        r = ra(6)
        for m in range(2):
            a(f"""
            v_mul_f32 v{t0}, {f32(float(l))}, v{A2+m}
            v_mul_f32 v{t1}, {f32(float(l))}, v{TH+m}
            v_exp_f32 v{t0}, v{t0}
            v_fract_f32 v{t1}, v{t1}
            v_cos_f32 v{t2}, v{t1}
            v_sin_f32 v{t3}, v{t1}
            s_nop 0
            v_mul_f32 v{r+2*m}, v{t0}, v{t2}
            v_mul_f32 v{r+2*m+1}, v{t0}, v{t3}
            v_sub_f32 v{r+4+m}, 0, v{r+2*m+1}
            """)
        return r

    def cmul(d, x_, b, conj=False):
        for m in range(2):
            br, bi, nbi = b + 2 * m, b + 2 * m + 1, b + 4 + m
            if conj:
                bi, nbi = nbi, bi
            a(f"""
            v_mul_f32 v{d+2*m}, v{x_+2*m}, v{br}
            v_mul_f32 v{d+2*m+1}, v{x_+2*m}, v{bi}
            v_fmac_f32 v{d+2*m}, v{x_+2*m+1}, v{nbi}
            v_fmac_f32 v{d+2*m+1}, v{x_+2*m+1}, v{br}
            """)

    def neg(b):
        for m in range(2):
            a(f"v_sub_f32 v{b+4+m}, 0, v{b+2*m+1}")

    def scale(d, x_):
        for i in range(4):
            a(f"v_mul_f32 v{d+i}, {f32(32768.0)}, v{x_+i}")

    VB = [ra(32, 4), ra(32, 4), ra(32, 4), ra(18, 4)]
    CH0 = ra(0, 4)

    def put(batch, row, r):
        h = VB[batch] + 2 * row
        if r is None:
            a(f"v_mov_b32 v{h}, 0x7800\nv_mov_b32 v{h+1}, 0x7800")
        else:
            a(f"""
            v_cvt_pk_f16_f32 v{h}, v{r}, v{r+1}
            v_cvt_pk_f16_f32 v{h+1}, v{r+2}, v{r+3}
            """)

    E8 = cexp(8)
    cur, nxt = W0, W1
    for c in range(16):
        if c < 15:
            cmul(nxt, cur, E8, conj=True)
        put(0, c, cur)
        cur, nxt = nxt, cur
    if OPT.get("tagp") == 3:
        a(f"v_mov_b32 v{PR}, 0")
        a(nonce_ld(PR + 1, PR))
    E1 = cexp(1)
    Q1 = cexp(128)
    Q8 = cexp(1024)
    P = {}
    P[1] = ra(4)
    scale(P[1], E1)
    for j in range(2, 8):
        P[j] = ra(6 if j == 4 else 4)
        cmul(P[j], P[j - 1], E1)
    put(1, 0, None)
    for j in range(1, 8):
        put(1, j, P[j])
    scale(W0, Q1)
    put(1, 8, W0)
    for j in range(1, 8):
        cmul(W0, P[j], Q1)
        put(1, 8 + j, W0)
    Q = {1: Q1, 8: Q8}
    for j in range(2, 8):
        Q[j] = {2: E1, 3: PP + 4}[j] if j < 4 else P[2 * (j - 4) + 1]
        cmul(Q[j], Q[j - 1], Q1)
    neg(P[4]); neg(Q[2]); neg(Q[3])
    for qi, j in enumerate((2, 3)):
        scale(W0, Q[j])
        put(2, 4 * qi, W0)
        for r in range(1, 4):
            cmul(W0, P[2 * r], Q[j])
            put(2, 4 * qi + r, W0)
    for aa in range(4):
        scale(W0, Q[4 + aa])
        put(2, 8 + 2 * aa, W0)
        cmul(W0, Q[4 + aa], P[4])
        put(2, 8 + 2 * aa + 1, W0)
    if OPT.get("tagp", 0) == 0:
        a(f"v_mov_b32 v{PR}, 0")
        a(nonce_ld(PR + 1, PR))
    elif OPT.get("tagp") == 2:
        a(f"v_mov_b32 v{PR}, 0")
        a(nonce_ld(PR + 1, PR).replace(" sc1", ""))
    QS = E8
    scale(QS, Q8)
    neg(QS)
    put(3, 0, QS)
    for j in range(1, 8):
        cmul(W0, Q[j], QS)
        put(3, j, W0)
    cmul(W0, Q8, QS)
    put(3, 8, W0)
    for i in range(12):
        a(f"v_mul_f32 v{LP+i}, v{SIG}, v{LP+i}")
    for i in range(12):
        a(f"v_exp_f32 v{LP+i}, v{LP+i}")

    a = ph2
    YF = CH0
    AC = CH0 + 32
    assert AC + 12 <= ra.p

    def wr(batch, nrows):
        for row in range(nrows):
            a(f"ds_write_b64 v{WR+(row&7)}, {v(VB[batch]+2*row,2)} offset:{(row>>3)*128}")

    def fetch(F):
        for ks in range(8):
            a(f"ds_read_b128 {v(F+4*ks,4)}, v{RD+(ks&1)} offset:{(ks>>1)*2048}")

    def mfmas(tile, XF):
        for ks in range(8):
            c = "0" if ks == 0 else v(AC + 4 * tile, 4)
            a(f"v_mfma_f32_16x16x32_f16 {v(AC+4*tile,4)}, {v(XF+4*ks,4)}, {v(YF+4*ks,4)}, {c}")

    a("s_waitcnt vmcnt(0)")
    ng = plain(nonce_get(f"NK{sfx}", PR + 1, PR))
    a(f"v_mov_b32 v{t2}, {N_LDS}")
    a(f"ds_write_b32 v{t2}, v{PR+1}")
    wr(0, 16); fetch(YF)
    wr(1, 16); fetch(VB[0])
    wr(2, 16); fetch(VB[1])
    a("s_waitcnt lgkmcnt(15)")
    mf0 = len(a.L)
    wr(3, 9); fetch(VB[2])
    tail = a.L[mf0:]
    del a.L[mf0:]
    m = Asm()
    sv, a = a, m
    mfmas(0, VB[0])
    a = sv
    for i in range(8):
        a.ext(tail[2 * i:2 * i + 2])
        a(m.L[i])
    a.ext(tail[16:])
    a("s_waitcnt lgkmcnt(15)")
    mfmas(1, VB[1])
    a("s_waitcnt lgkmcnt(0)")
    mfmas(2, VB[2])
    a("s_nop 3")
    for i in range(12):
        a(f"v_mul_f32 v{AC+i}, v{AC+i}, v{LP+i}")
    for i in range(12):
        a(f"v_ldexp_f32 v{AC+i}, v{AC+i}, v{CE}")
    a(f"v_add_f32 v{AC}, v{AC}, v{DV}")
    a(f"ds_write_b128 v{TA0}, {v(AC,4)}")
    a(f"ds_write_b64 v{TA1}, {v(AC+4,2)}")
    a(f"ds_write_b64 v{TA2}, {v(AC+6,2)}")
    for r in range(4):
        a(f"ds_write_b32 v{TA3}, v{AC+8+r} offset:{2048+64*r}")
    G0 = VB[0]
    OUT = VB[1]
    for i in range(8):
        a(f"ds_read_b32 v{G0+i}, v{EX+i}")
    a(f"""
    ds_read_b64 {v(G0+8,2)}, v{EX+8} offset:1536
    ds_read_b32 v{G0+10}, v{EX+8} offset:1544
    ds_read2_b32 {v(G0+12,2)}, v{EX+9} offset0:0 offset1:1
    ds_read2_b32 {v(G0+14,2)}, v{EX+9} offset0:64 offset1:65
    v_lshlrev_b32 v{t0}, 4, v0
    v_add_u32 v{t0}, s70, v{t0}
    v_and_b32 v{t1}, 3, v0
    v_lshlrev_b32 v{t1}, 4, v{t1}
    v_add_u32 v{t1}, s70, v{t1}
    v_mov_b32 v{OUT+16}, 0
    v_mov_b32 v{OUT+17}, 0
    v_mov_b32 v{OUT+18}, 0
    v_mov_b32 v{OUT+19}, 0
    s_mov_b32 s72, 0xaaaaaaaa
    s_mov_b32 s73, 0xaaaaaaaa
    ds_write_b128 v{t1}, {v(OUT+16,4)} offset:{KARR}
    s_waitcnt lgkmcnt(0)
    """)
    for k in range(4):
        a(f"v_cvt_pk_bf16_f32 v{OUT+k}, v{G0+2*k}, v{G0+2*k+1}")
    a(f"""
    v_cvt_pk_bf16_f32 v{OUT+4}, v{G0+8}, v{G0+8}
    v_cvt_pk_bf16_f32 v{OUT+5}, v{G0+8}, v{G0+9}
    v_cvt_pk_bf16_f32 v{OUT+6}, v{G0+9}, v{G0+9}
    v_cvt_pk_bf16_f32 v{OUT+7}, v{G0+10}, v{G0+10}
    """)
    for it in (2, 3):
        T0, T1 = G0 + 8 + 2 * it, G0 + 9 + 2 * it
        o = OUT + 4 * it
        a(f"""
        v_cndmask_b32 v{t2}, v{T0}, v{T1}, s[72:73]
        v_cvt_pk_bf16_f32 v{o}, v{T0}, v{T0}
        v_cvt_pk_bf16_f32 v{o+1}, v{T0}, v{T0}
        v_cvt_pk_bf16_f32 v{o+2}, v{t2}, v{T1}
        v_cvt_pk_bf16_f32 v{o+3}, v{T1}, v{T1}
        """)
    a(f"v_mov_b32 v{t2}, 0")
    for it in range(4):
        a(f"ds_write_b128 v{t0}, {v(OUT+4*it,4)} offset:{KARR+64+1024*it}")
    if OPT.get("dbgk"):
        a(f"""
        s_lshl_b32 s72, s69, 12
        s_add_u32 s72, s72, {KX_OFF}
        v_lshlrev_b32 v{t0}, 4, v0
        """)
        for it in range(4):
            a(f"buffer_store_dwordx4 {v(OUT+4*it,4)}, v{t0}, {sr(SRD_WS)}, s72 offen offset:{1024*it}")
    a("s_waitcnt vmcnt(0) lgkmcnt(0)")
    ph2.L[1:1] = ["\n    ".join(ng)]

    out = list(pre.L)
    out.extend(stamp(1))
    kx = OPT.get("kx", 0)
    if kx == 9:
        main.L = [x for x in main.L if not x.startswith(("v_mul_f32", "v_fmac", "v_cvt_pk_f16"))]
    if kx == 1:
        ph2.L = []
    elif kx == 2:
        ph2.L = [x for x in ph2.L if not x.startswith("v_mfma")]
    elif kx == 3:
        ph2.L = [x for x in ph2.L if not x.startswith("ds_write")]
    elif kx == 4:
        ph2.L = [x for x in ph2.L if not x.startswith("ds_read")]
    elif kx == 5:
        L2 = []
        for x in ph2.L:
            L2.append(x)
            if x.startswith("ds_write_b64"):
                L2.append("s_nop 3")
        ph2.L = L2
    if gemm_wg:
        per = OPT.get("kper", 132)
        first = OPT.get("kfirst", 0)
        p2a = OPT.get("kp2a", 48)
        p2b = OPT.get("kp2b", 100)
        pos = min(first, len(main.L))
        out.extend(main.L[:pos])
        for sidx in range(9):
            out.extend(bstamp(2, 1 + sidx))
            out.append("s_barrier")
            if sidx < 6:
                end = len(main.L) if sidx == 5 else min(pos + per, len(main.L))
                out.extend(main.L[pos:end])
                pos = end
            elif sidx == 6:
                out.extend(ph2.L[:p2a])
            elif sidx == 7:
                out.extend(ph2.L[p2a:p2b])
            else:
                out.extend(ph2.L[p2b:])
        out.extend(stamp(2))
    else:
        ks1 = OPT.get("ks1", 250)
        out.extend(main.L[:ks1])
        out.append("s_barrier")
        out.extend(main.L[ks1:])
        out.extend(ph2.L)
        out.extend(stamp(2))
    out.append("s_mov_b32 s6, s68")
    out.append("s_branch L_CONVB")
    return out


def fu_code(vaddr, vtmp, vdst, sd):
    setup = [f"s_lshr_b32 s16, s{sd}, 7", "s_lshl_b32 s16, s16, 7", f"s_lshr_b32 s17, s{sd}, 3", "s_and_b32 s17, s17, 8",
             "s_add_u32 s16, s16, s17", f"s_add_u32 s16, s16, {FU_OFF}",
             f"v_and_b32 v{vaddr}, 7, v0", f"v_lshlrev_b32 v{vaddr}, 9, v{vaddr}"]
    ld = [f"buffer_load_dwordx2 v[{vdst}:{vdst+1}], v{vaddr}, {sr(SRD_WS)}, s16 offen sc1"]
    chk = [f"v_cmp_eq_u32 vcc, s{S_NONCE}, v{vdst}", f"v_cmp_eq_u32 s[50:51], s{S_NONCE}, v{vdst+1}", "s_nop 3",
           "s_and_b64 vcc, vcc, s[50:51]", "s_cmp_eq_u64 vcc, exec"]
    return setup, ld, chk


def u_dma(vl16, sd):
    L = [f"s_mul_i32 s52, s6, {USZ}", f"s_mul_i32 s53, s{sd}, {DP}", f"s_add_u32 s53, s53, {UT_OFF}"]
    for r in range(4):
        L += [f"s_add_u32 m0, s52, {U_BASE + r*UPITCH + 112}", "s_nop 0",
              f"buffer_load_dwordx4 v{vl16}, {sr(SRD_WS)}, s53 offen sc1 lds", "s_add_u32 s53, s53, 1024"]
    return L


def lwave(gemm_wg):
    sfx = "G" if gemm_wg else "S"
    a = Asm()
    XV, WV, VL, VC = 8, 12, 2, 16
    t0, t1, t2 = 3, 4, 5
    DUM = 24
    ROT = OPT.get("rot", 0)
    FL8 = OPT.get("fl8", 1)
    SW = 12
    a("s_setprio 3")

    def kofs(st):
        if not ROT:
            return []
        return [f"s_add_u32 s18, s{S_PHI}, {st}", "s_and_b32 s18, s18, 7", f"s_mul_i32 s19, s18, {64*3584}",
                "s_lshl_b32 s18, s18, 7"]

    def grp(st, g):
        sl = st % 3
        if g in (1, 5):
            j = 0 if g == 1 else 1
            L = [f"s_add_u32 m0, s{10+j}, {sl*SLOT}", f"s_add_u32 s22, s{8+j}, {'s18' if ROT else st*128}"]
            L += [f"buffer_load_dwordx4 v{XV+i}, {sr(SRD_X)}, s22 offen offset:{1024*i} lds" for i in range(4)]
        else:
            j = 0 if g == 0 else g - 1
            L = [f"s_add_u32 m0, s{72+j}, {sl*SLOT}", f"s_add_u32 s22, s{68+j}, {'s19' if ROT else st*64*3584}"]
            L += [f"buffer_load_dwordx4 v{WV+i}, {sr(SW)}, s22 offen offset:{1024*i} lds" for i in range(4)]
        return L

    def pref(st):
        L = [f"s_add_u32 s22, s68, {st*64*3584}"]
        L += [f"buffer_load_dwordx4 {v(DUM+4*i,4)}, v{WV+i}, {sr(SW)}, s22 offen offset:{1024*i}" for i in range(4)]
        L += [f"s_add_u32 s22, s23, {st*128}"]
        L += [f"buffer_load_dwordx4 {v(DUM+16+4*i,4)}, v{XV+i}, {sr(SRD_X)}, s22 offen offset:{1024*i}" for i in range(2)]
        return L

    fu_setup, fu_ld, fu_chk = fu_code(t1, t2, VC, 7)

    def poll_setup():
        a(f"""
        s_lshl_b32 s7, s2, 1
        s_add_u32 s7, s7, s6
        v_lshlrev_b32 v{VL}, 4, v0
        s_mov_b32 s77, 0x100000
        v_mov_b32 v20, 0
        v_mov_b32 v21, 0
        v_mov_b32 v22, 0
        v_mov_b32 v23, 0
        """)
        a.ext(fu_setup)

    STG = 24
    assert STG + 16 * n1() <= 256

    def wd_setup():
        a(f"""
        v_lshrrev_b32 v20, 3, v0
        v_and_b32 v21, 7, v0
        v_lshrrev_b32 v22, 1, v20
        v_and_b32 v22, 1, v22
        v_lshlrev_b32 v22, 2, v22
        v_xor_b32 v21, v21, v22
        v_lshlrev_b32 v18, 10, v20
        v_lshl_add_u32 v18, v21, 4, v18
        v_add_u32 v19, 8192, v18
        """)
        a(cb64_scalar(17, 3))
        if OPT.get("fakecb") and not gemm_wg:
            a("s_xor_b32 s17, s17, 1")
        a(f"""
        s_lshl_b32 s17, s17, 7
        s_mul_i32 s3, s6, {3*28*16384}
        s_add_u32 s3, s3, s17
        s_sub_u32 s48, 2, s6
        s_lshl_b32 s49, s48, 15
        v_add_u32 v1, s49, v{VL}
        s_mul_i32 s48, s48, {28*16384}
        s_add_u32 s48, s48, s17
        s_mul_i32 s17, s6, {3*RING2}
        v_add_u32 v7, s17, v{VL}
        """)
        a(rot_scalar(76, 17))
        a("s_mov_b32 s49, s76")

    wpos = [0, 0]
    wwp = [0, 0]

    def wd_ld(g, n):
        sb, ss = ((3, 76), (48, 49))[g]
        for _ in range(n):
            i = wpos[g]
            if i >= n1():
                break
            wpos[g] += 1
            R = STG + 8 * (g * n1() + i)
            a(f"""
            s_lshl_b32 s22, s{ss}, 14
            s_add_u32 s22, s22, s{sb}
            buffer_load_dwordx4 {v(R,4)}, v18, {sr(SRD_WD)}, s22 offen
            s_add_u32 s{ss}, s{ss}, 1
            s_cmp_ge_u32 s{ss}, 28
            s_cselect_b32 s{ss}, 0, s{ss}
            buffer_load_dwordx4 {v(R+4,4)}, v19, {sr(SRD_WD)}, s22 offen
            """)
            a.tag(f"wd{g}_{i}")

    def wd_wr(g, n):
        for i in range(wwp[g], min(n1(), wwp[g] + n)):
            wwp[g] = i + 1
            R = STG + 8 * (g * n1() + i)
            a.wait(f"wd{g}_{i}")
            for k in range(2):
                a(f"ds_write_b128 v{(7, 1)[g]}, {v(R+4*k,4)} offset:{i*2048 + k*1024}")

    def wd_dma():
        a("s_waitcnt lgkmcnt(0)")
        for g in range(2):
            sb, ss = ((3, 76), (48, 49))[g]
            if g == 0:
                a(f"s_mul_i32 s17, s6, {3*RING2}")
            else:
                a("s_sub_u32 s17, 2, s6\ns_lshl_b32 s17, s17, 15")
            for i in range(n1(), n1x()):
                a(f"""
                s_lshl_b32 s22, s{ss}, 14
                s_add_u32 m0, s17, {i*2048}
                s_add_u32 s22, s22, s{sb}
                buffer_load_dwordx4 v18, {sr(SRD_WD)}, s22 offen lds
                s_add_u32 m0, s17, {i*2048+1024}
                s_add_u32 s{ss}, s{ss}, 1
                s_cmp_ge_u32 s{ss}, 28
                s_cselect_b32 s{ss}, 0, s{ss}
                buffer_load_dwordx4 v19, {sr(SRD_WD)}, s22 offen lds
                """)

    def u_load():
        a(f"""
        s_cselect_b32 s19, {0 if OPT.get("forceslow") else 1}, 0
        s_mul_i32 s18, s6, {USZ}
        s_add_u32 s18, s18, {U_BASE}
        v_mov_b32 v20, 0
        v_mov_b32 v21, 0
        v_mov_b32 v22, 0
        v_mov_b32 v23, 0
        v_and_b32 v{t2}, 7, v0
        v_lshrrev_b32 v6, 3, v0
        v_and_b32 v6, 3, v6
        v_min_u32 v{t2}, 6, v{t2}
        v_mul_u32_u24 v6, {UPITCH}, v6
        v_lshl_add_u32 v{t2}, v{t2}, 4, v6
        v_add_u32 v{t2}, s18, v{t2}
        ds_write_b128 v{t2}, v[20:23]
        s_lshl_b32 s18, s6, 2
        s_add_u32 s18, s18, {S_LDS}
        v_mov_b32 v{t2}, s18
        v_mov_b32 v6, s19
        ds_write_b32 v{t2}, v6
        s_cmp_eq_u32 s19, 0
        s_cbranch_scc1 NOU{sfx}
        """)
        a.ext([("NOCOUNT", x) if is_vmem(x) else x for x in u_dma(VL, 7)])
        a(f"NOU{sfx}:")

    if gemm_wg:
        def wgrp(j):
            a(f"""
            s_add_u32 s17, s18, {j}
            s_and_b32 s17, s17, 3
            s_mul_i32 s{68+j}, s17, {16*3584}
            s_add_u32 s{68+j}, s{68+j}, s23
            s_lshl_b32 s{72+j}, s17, 12
            s_add_u32 s{72+j}, s{72+j}, s16
            """)
        a(f"""
        v_lshrrev_b32 v{t0}, 4, v0
        v_and_b32 v{t1}, 15, v0
        s_mov_b32 s18, s68
        s_mov_b32 s19, s69
        v_lshlrev_b32 v{t2}, 2, v{t0}
        s_lshl_b32 s23, s{S_CB}, 8
        v_xor_b32 v{t1}, v{t1}, v{t2}
        s_lshl_b32 s16, s6, 14
        v_mul_u32_u24 v{t0}, 3584, v{t0}
        s_add_u32 s16, s16, 16384
        v_lshl_add_u32 v{WV}, v{t1}, 4, v{t0}
        s_mov_b32 s{SW+2}, {512*1792*2}
        s_mov_b32 s{SW+3}, 0x00020000
        """)
        for i in range(1, 4):
            a(f"v_add_u32 v{WV+i}, {(4*3584-1024)*i}, v{WV}")
        wgrp(0)
        a.ext(bstamp(6, 1))
        a(f"""
        s_cmp_eq_u32 s6, 0
        s_waitcnt lgkmcnt(0)
        s_cselect_b32 s{SW}, s{S_WG}, s{S_WU}
        s_cselect_b32 s{SW+1}, s{S_WG+1}, s{S_WU+1}
        s_and_b32 s{SW+1}, s{SW+1}, 0xffff
        """)
        assert not ROT
        a.ext(bstamp(6, 2))
        a.ext(grp(0, 0))
        wgrp(1)
        a.ext(grp(0, 2))
        wgrp(2)
        a.ext(grp(0, 3))
        wgrp(3)
        a.ext(grp(0, 4))
        a(f"""
        v_lshrrev_b32 v{t0}, 3, v0
        v_and_b32 v{t1}, 7, v0
        v_lshrrev_b32 v{t2}, 1, v{t0}
        v_xor_b32 v{t1}, v{t1}, v{t2}
        v_lshlrev_b32 v{t0}, 10, v{t0}
        """)
        for i in range(4):
            a(f"""
            v_xor_b32 v{t2}, {4*(i&1)}, v{t1}
            v_lshl_add_u32 v{XV+i}, v{t2}, 4, v{t0}
            v_add_u32 v{XV+i}, {7168*i}, v{XV+i}
            """)
        a(f"""
        s_and_b32 s17, s19, 1
        s_lshl_b32 s17, s17, 1
        s_add_u32 s17, s17, s6
        s_lshl_b32 s16, s{S_RB}, 17
        s_lshl_b32 s8, s17, 15
        s_add_u32 s8, s8, s16
        s_lshl_b32 s10, s17, 12
        s_xor_b32 s17, s17, 2
        s_lshl_b32 s9, s17, 15
        s_add_u32 s9, s9, s16
        s_lshl_b32 s11, s17, 12
        s_mov_b32 s{SRD_X}, s{S_U}
        s_and_b32 s{SRD_X+1}, s{S_U+1}, 0xffff
        s_mov_b32 s{SRD_X+2}, {2048*512*2}
        s_mov_b32 s{SRD_X+3}, 0x00020000
        """)
        a.ext(grp(0, 1))
        a.ext(grp(0, 5))
        a.tag("st0")
        a(f"""
        s_lshl_b32 s22, s19, 1
        s_add_u32 s22, s22, s6
        s_and_b32 s22, s22, 7
        s_lshl_b32 s23, s22, 14
        s_add_u32 s23, s23, s16
        """)
        tail = {3: "S5 R5", 4: "S6 R6", 5: "S7 R7"}
        scheds = [
            {-1: "S0 S1 S2 R0 P3 P4", 0: "R1 P5 P6", 1: "R2 P7 S3", 2: "R3 S4 R4"},
            {-1: "S0 S1 S2 R0 R1", 0: "P3 P4 R2", 1: "P5 P6 P7 S3 R3", 2: "S4 R4"},
            {-1: "S0 R0 S1 R1", 0: "S2 R2", 1: "S3 R3", 2: "S4 R4"},
            {-1: "S0 R0 S1", 0: "R1 S2", 1: "R2 S3", 2: "R3 S4 R4"},
            {-1: "S0 R0 S1 S2 P3", 0: "R1 P4 P5", 1: "R2 P6 P7 S3", 2: "R3 S4 R4"},
            {-1: "S0 R0 S1 S2", 0: "R1 R2", 1: "S3 R3", 2: "S4 R4"},
            {-1: "S0 R0 S1 S2", 0: "R1 R2", 1: "S3 R3 P5", 2: "S4 R4 P6 P7"},
            {-1: "S0 R0 S1 S2", 0: "R1 R2 P3", 1: "S3 R3 P4 P5", 2: "S4 R4 P6 P7"},
            {-1: "S0 R0 S1 R1", 0: "S2", 1: "R2 S3", 2: "R3 S4 R4"},
            {-1: "S0 R0 S1 R1", 0: "S2", 1: "R2 S3 R3", 2: "S4 R4"},
            {-1: "S0 R0 S1 S2", 0: "R1", 1: "R2 S3 R3", 2: "S4 R4"},
        ]
        sched = dict(scheds[OPT.get("lsched", 5)])
        sched.update(tail)
        MP = OPT.get("mp", 1)
        if "zp" in OPT:
            sched[OPT["zp"]] += " Z0"
        if "yp" in OPT:
            sched[OPT["yp"]] += " Y0"
        NPF = OPT.get("np", 0)
        if NPF >= -1:
            sched[NPF] += " N0"
        if MP >= 0:
            sched[MP] += " M0"

        def issue(k):
            for tok in sched.get(k, "").split():
                st = int(tok[1:])
                if tok[0] == "S":
                    a.ext(kofs(st) + grp(st, 0) + grp(st, 1))
                elif tok[0] == "R":
                    a.ext(kofs(st))
                    for g in (2, 5, 3, 4):
                        a.ext(grp(st, g))
                    a.tag(f"st{st}")
                elif tok[0] == "P":
                    assert not ROT
                    a.ext(pref(st))
                elif tok[0] in "ZY":
                    a(f"""
                    s_lshl_b32 s22, s{S_RB}, 1
                    s_add_u32 s22, s22, s6
                    s_mul_i32 s22, s22, 224
                    s_lshl_b32 s17, s{S_CB}, 3
                    s_add_u32 s22, s22, s17
                    s_lshl_b32 s22, s22, 10
                    """)
                    for tt in range(2):
                        for hh in range(2):
                            for i in range(4):
                                if tok[0] == "Z":
                                    a(f"buffer_store_dwordx4 v[20:23], v{VL}, {sr(SRD_WS)}, s22 offen offset:{1024*i} sc1")
                                else:
                                    a(f"buffer_load_dwordx4 {v(DUM+4*i,4)}, v{VL}, {sr(SRD_WS)}, s22 offen offset:{1024*i} sc1")
                            a(f"s_add_u32 s22, s22, {4096 if hh == 0 else 112*1024 - 4096}")
                elif tok[0] == "N":
                    a(f"""
                    s_mul_i32 s22, s{S_XCD}, 28
                    s_add_u32 s22, s22, s{S_IDX}
                    s_mul_i32 s22, s22, 5120
                    s_add_u32 s22, s22, {192*3584}
                    v_lshlrev_b32 v{VL}, 4, v0
                    s_add_u32 s17, s22, 4096
                    """)
                    for i in range(4):
                        a(f"buffer_load_dwordx4 {v(DUM+16+4*i,4)}, v{VL}, {sr(SW)}, s22 offen offset:{1024*i}")
                    a(f"buffer_load_dwordx4 {v(DUM+32,4)}, v{VL}, {sr(SW)}, s17 offen")
                elif tok[0] == "M":
                    a(f"""
                    s_mul_i32 s22, s{S_XCD}, 28
                    s_add_u32 s22, s22, s{S_IDX}
                    s_lshl_b32 s22, s22, 1
                    s_add_u32 s22, s22, s6
                    s_lshl_b32 s22, s22, 12
                    """)
                    for i in range(4):
                        a(f"buffer_load_dwordx4 {v(DUM+4*i,4)}, v{VL}, {sr(SRD_WD)}, s22 offen offset:{1024*i}")
        sched[-1] = sched[-1].replace("S0", "").replace("R0", "")
        issue(-1)
        a.ext(bstamp(6, 4))
        a.ext(stamp(1))
        srd(a, SRD_WS, S_WS, WS_BYTES)
        srd(a, SRD_WD, S_WD, 1792 * 512 * 2)
        poll_setup()
        for sidx in range(9):
            if sidx < 8:
                a.wait(f"st{sidx}")
            a.ext(bstamp(2, 1 + sidx))
            if sidx < 4:
                a.ext(bstamp(6, 5 + sidx))
            a("s_barrier")
            if sidx in (0, 3):
                a.ext(stamp(2 + (0, 3).index(sidx)))
            issue(sidx)
            if sidx == 2:
                wd_setup()
            if sidx == 6:
                a(f"s_setprio {OPT.get('lprio', 1)}")
            if 2 <= sidx <= 7:
                n = OPT.get(f"w{sidx}", {2: 0, 3: 0, 4: 0, 5: 6, 6: 11, 7: 11}[sidx])
                k = min(n, n1() - wpos[0])
                wd_ld(0, k)
                wd_ld(1, n - k)
            if sidx == 7:
                a.ext(fu_ld)
                a.tag("fu")
            if sidx == 8:
                a.ext(stamp(4))
                a(f"v_mov_b32 v6, {N_LDS}\nds_read_b32 v6, v6")
                wd_ld(0, 28)
                wd_ld(1, 28)
                wd_wr(0, OPT.get("e8", 6))
                a("s_waitcnt vmcnt(0)")
                a.L.append(("VMRESET",))
                a(f"s_waitcnt lgkmcnt(0)\nv_readfirstlane_b32 s{S_NONCE}, v6\ns_nop 3")
                a.ext(fu_chk)
                u_load()
                wd_wr(0, 28)
                wd_wr(1, 28)
                wd_dma()
        a("s_waitcnt vmcnt(0) lgkmcnt(0)")
        a.ext(stamp(5))
    else:
        a("s_waitcnt lgkmcnt(0)")
        srd(a, SRD_WS, S_WS, WS_BYTES)
        srd(a, SRD_WD, S_WD, 1792 * 512 * 2)
        poll_setup()
        wd_setup()
        a(f"v_mov_b32 v{t0}, 0")
        a("s_barrier")
        thr = OPT.get("sthr", 4)
        if thr:
            for _ in range(thr):
                wd_ld(0, 2)
                a("s_waitcnt vmcnt(0)")
        wd_ld(0, 28)
        wd_ld(1, 28)
        a(nonce_ld(6, t0))
        a.ext(fu_ld)
        wd_wr(0, 28)
        a("s_waitcnt vmcnt(0)")
        a.L.append(("VMRESET",))
        a.ext(stamp(4))
        a.ext(nonce_get(f"NL{sfx}", 6, t0))
        a.ext(fu_chk)
        u_load()
        wd_wr(1, 28)
        wd_dma()
        a("s_waitcnt vmcnt(0) lgkmcnt(0)")
        a.ext(stamp(5))
    a("s_branch L_CONVA")
    return resolve_vm(a.L)


def conv(a0, partB):
    a = Asm()
    KA, UA, YA = 2, 3, 5
    BAL = OPT.get("bal", 0)
    if BAL:
        qs = outq = [2, 3, 4, 5] if partB else [0, 1, 6, 7]
        qsend, qrecv = (5, 2) if partB else (1, 6)
    else:
        qs, outq = ([5, 6, 7], [6, 7]) if partB else ([0, 1, 2, 3, 4, 5], [0, 1, 2, 3, 4, 5])
        qsend = qrecv = None
    a(f"""
    s_lshl_b32 s8, s6, 13
    s_add_u32 s8, s8, {KG_BASE + KARR + 32}
    s_mul_i32 s9, s6, {USZ}
    s_add_u32 s9, s9, {U_BASE + 16}
    v_lshrrev_b32 v6, 2, v0
    v_and_b32 v10, 7, v6
    v_and_b32 v6, 3, v6
    v_and_b32 v7, 3, v0
    v_lshrrev_b32 v8, 4, v0
    v_and_b32 v8, 1, v8
    v_lshrrev_b32 v9, 5, v0
    v_mul_u32_u24 v{UA}, {UPITCH}, v7
    v_sub_u32 v10, v10, v9
    v_lshl_add_u32 v{UA}, v10, 4, v{UA}
    v_add_u32 v{UA}, s9, v{UA}
    v_lshlrev_b32 v{KA}, 5, v8
    v_lshl_add_u32 v{KA}, v7, 3, v{KA}
    v_lshl_add_u32 v{KA}, v9, 6, v{KA}
    v_lshlrev_b32 v10, 3, v6
    v_sub_u32 v{KA}, v{KA}, v10
    v_add_u32 v{KA}, s8, v{KA}
    """)
    qmax = max(qs)
    nst = 4 * qmax + 4
    NU = 4
    UBUF = 8
    KT = 24
    ACC = KT + 4 * nst
    TMP = ACC + 16 * len(qs)
    assert TMP + 3 * len(qs) + 1 <= 256
    XR = TMP + 12
    XS_A, XR_A, XF = XR + 4, XR + 5, XR + 6

    def acc(q):
        return ACC + 16 * qs.index(q)

    need = {}
    for i in range(nst):
        for q in qs:
            s_ = 4 * q + 3 - i
            if s_ >= 0 and s_ not in need:
                need[s_] = i

    def rd(i):
        L = [f"ds_read_b128 {v(UBUF+4*(i%NU),4)}, v{UA} offset:{32*i}"]
        for s_ in sorted(s for s in need if need[s] == i):
            L += [f"ds_read_b64_tr_b16 {v(KT+4*s_,2)}, v{KA} offset:{128*s_+32}",
                  f"ds_read_b64_tr_b16 {v(KT+4*s_+2,2)}, v{KA} offset:{128*s_}"]
        L.append(("LTAG", f"R{i}"))
        return L

    PF = NU - 1
    a(f"""
    v_and_b32 v4, 7, v0
    v_lshrrev_b32 v{YA}, 3, v0
    v_lshlrev_b32 v{YA}, 4, v{YA}
    v_lshl_add_u32 v{YA}, v4, 7, v{YA}
    v_mov_b32 v6, 0
    v_mov_b32 v7, s{S_NONCE}
    s_mov_b32 s12, 0
    s_mov_b32 s13, 0x80000000
    s_mov_b32 s14, 0
    s_mov_b32 s15, 0xc0000000
    s_mov_b32 s16, 0
    s_mov_b32 s17, 0xe0000000
    s_lshl_b32 s7, s2, 1
    s_add_u32 s7, s7, s6
    s_mul_i32 s18, s7, {DP}
    s_add_u32 s18, s18, {Y_OFF}
    s_lshl_b32 s19, s2, 4
    s_add_u32 s19, s19, s6
    s_lshl_b32 s19, s19, 3
    s_add_u32 s19, s19, {FY_OFF + (4 if partB else 0)}
    """)
    a(f"s_setprio {OPT.get('cprio', 3)}")
    P = "B" if partB else "A"
    if BAL:
        a(f"""
        s_lshl_b32 s52, s6, 8
        v_max_u32 v{XS_A}, 60, v0
        v_lshlrev_b32 v{XS_A}, 4, v{XS_A}
        s_add_u32 s52, s52, {X_LDS - 960}
        v_add_u32 v{XS_A}, s52, v{XS_A}
        v_add_u32 v{XR_A}, {0 if partB else 128}, v{XS_A}
        v_add_u32 v{XS_A}, {128 if partB else 0}, v{XS_A}
        """)
    a(f"""
    s_lshl_b32 s52, s6, 2
    s_add_u32 s52, s52, {S_LDS}
    v_mov_b32 v4, s52
    """)
    a("s_barrier")
    a.ext(stamp(6))
    a("ds_read_b32 v4, v4")
    a.L.append(("LTAG", "ST"))
    a(f"CV{P}_GO:")
    a.ext(rd(0))
    a.L.append(("LWAIT", "ST"))
    a(f"""
    v_readfirstlane_b32 s52, v4
    s_nop 3
    s_cmp_eq_u32 s52, 0
    s_cbranch_scc1 CV{P}_SLOW
    """)
    a.ext(rd(1))

    def Y(q, g, rho):
        return acc(q) + 4 * g + rho

    dpp = "wave_ror:1 row_mask:0xf bank_mask:0xf"
    ctl = "row_mask:0xf bank_mask:0xf"

    def post(q):
        L = []
        Z = {}
        for g in (3, 2, 1, 0):
            for rho in (1, 2, 3):
                Z[g, rho] = TMP + 3 * qs.index(q) + rho - 1 if g == 3 else Y(q, g, rho)
                if g > 0:
                    prev = f"v{Y(q,g-1,rho)}"
                elif q == qrecv:
                    prev = f"v{XR+rho}"
                elif q > 0:
                    prev = f"v{Y(q-1,3,rho)}"
                else:
                    prev = "v6"
                L.append(f"v_cndmask_b32 v{Z[g,rho]}, v{Y(q,g,rho)}, {prev}, s[{10+2*rho}:{11+2*rho}]")
        for g in (3, 2, 1, 0):
            L.append(f"v_add_f32_dpp v{Z[g,2]}, v{Z[g,3]}, v{Z[g,2]} {dpp}")
        for g in (3, 2, 1, 0):
            L.append(f"v_add_f32_dpp v{Z[g,1]}, v{Z[g,2]}, v{Z[g,1]} {dpp}")
        for g in (3, 2, 1, 0):
            L.append(f"v_add_f32_dpp v{Y(q,g,0)}, v{Z[g,1]}, v{Y(q,g,0)} {dpp}")
        return L

    def stage(S_, D_, bit, stride):
        m = {0: 0xaaaaaaaa, 1: 0xcccccccc, 2: 0xf0f0f0f0}[bit]
        up = {0: "quad_perm:[1,0,3,2]", 1: "quad_perm:[2,3,0,1]", 2: "row_ror:12"}[bit]
        dn = {0: "quad_perm:[1,0,3,2]", 1: "quad_perm:[2,3,0,1]", 2: "row_ror:4"}[bit]
        L = [f"s_mov_b32 vcc_lo, {m:#x}", f"s_mov_b32 vcc_hi, {m:#x}"]
        idx = [i for i in range(len(S_)) if not (i // stride) & 1]
        L += [f"v_cndmask_b32_dpp v{D_[i+stride]}, v{S_[i]}, v{S_[i+stride]}, vcc {up} {ctl}" for i in idx]
        L += ["s_not_b64 vcc, vcc"]
        L += [f"v_cndmask_b32_dpp v{D_[i]}, v{S_[i+stride]}, v{S_[i]}, vcc {dn} {ctl}" for i in idx]
        return L

    def xpose(q):
        S0 = [Y(q - 1 + (g >> 2), g & 3, 0) for g in range(8)]
        free = [Y(qq, g, r) for qq in (q - 1, q) for g in range(3) for r in (1, 2, 3)]
        D0 = free[:8]
        S1 = free[8:12]
        D1 = free[12:16]
        D2 = [acc(q - 1) + i for i in range(4)]
        L = stage(S0, D0, 0, 1)
        L += [f"v_cvt_pk_bf16_f32 v{S1[g]}, v{D0[2*g]}, v{D0[2*g+1]}" for g in range(4)]
        L += stage(S1, D1, 1, 1)
        L += stage(D1, D2, 2, 2)
        L.append(f"buffer_store_dwordx4 {v(D2[0],4)}, v{YA}, {sr(SRD_WS)}, s18 offen offset:{(q-1)*512} sc1")
        return L

    def send(q):
        return ["\n    ".join(["s_mov_b32 exec_lo, 0", "s_mov_b32 exec_hi, 0xf0000000",
                               f"ds_write_b128 v{XS_A}, {v(Y(q,3,0),4)}", f"ds_write_b32 v{XS_A}, v7 offset:64",
                               "s_mov_b64 exec, -1"]), ("LCOUNT", 2)]

    xrd = [f"ds_read_b32 v{XF}, v{XR_A} offset:64", f"ds_read_b128 {v(XR,4)}, v{XR_A}"]

    def recv():
        L = ["s_mov_b32 s77, 0x1000000", f"XW{P}_TRY:"] + xrd + ["s_waitcnt lgkmcnt(0)", "s_sub_u32 s77, s77, 1",
             f"v_cmp_eq_u32 vcc, s{S_NONCE}, v{XF}", "s_cmp_eq_u32 s77, 0", f"s_cbranch_scc1 XW{P}_OK", "s_nop 1",
             "s_cmp_eq_u64 vcc, exec", f"s_cbranch_scc0 XW{P}_TRY", f"XW{P}_OK:"]
        return ["\n    ".join(L), ("LCOUNT", 2)]

    def finish(qq):
        L = []
        if qq == qsend:
            L += send(qq)
        if qq not in outq:
            return L
        if qq == qrecv:
            L += recv()
        L += post(qq)
        if outq.index(qq) & 1:
            L += xpose(qq)
        return L

    pend = []
    FILL = OPT.get("cfill", 4)
    since = {}
    issued = 2
    for i in range(nst):
        a.L.append(("LWAIT", f"R{i}"))
        rl = []
        while issued < nst and issued <= i + (2 if i < 2 else PF):
            rl += rd(issued)
            issued += 1
        act = [q for q in qs if 4 * q + 3 - i >= 0]
        per = -(-len(rl) // len(act))
        for q in act:
            s_ = 4 * q + 3 - i
            c = "0" if i == 0 else v(acc(q), 16)
            a(f"v_mfma_f32_32x32x16_bf16 {v(acc(q),16)}, {v(UBUF+4*(i%NU),4)}, {v(KT+4*s_,4)}, {c}")
            a.ext(rl[:per])
            rl = rl[per:]
            if s_ == 0:
                since[q] = len(a.L)
            for qq in list(since):
                if len([x for x in a.L[since[qq]:] if isinstance(x, str)]) >= 14:
                    if BAL and qq == 6:
                        continue
                    del since[qq]
                    pend += finish(qq)
            a.ext(pend[:FILL])
            pend = pend[FILL:]
    a.ext(stamp(7))
    a.ext(pend)
    a("s_nop 7\ns_nop 3")
    if BAL and not partB:
        a.ext(post(7))
        a.ext(recv())
        a.ext(post(6))
        a.ext(xpose(7))
    else:
        for qq in sorted(since):
            a.ext(finish(qq))
    a.ext(stamp(8))
    a(f"""
    s_waitcnt vmcnt(0)
    s_mov_b64 exec, 1
    buffer_store_dword v7, v6, {sr(SRD_WS)}, s19 offen sc1
    s_mov_b64 exec, -1
    """)
    if partB:
        E = 8
        a(f"""
        s_cmp_lg_u32 s6, 0
        s_cbranch_scc1 CV_NOGATE
        s_lshl_b32 s16, s{S_XCD}, 9
        s_add_u32 s16, s16, {FG_OFF}
        v_lshrrev_b32 v2, 2, v0
        v_and_b32 v3, 3, v0
        v_and_b32 v4, 3, v2
        v_lshlrev_b32 v4, 7, v4
        v_lshl_add_u32 v4, v3, 2, v4
        v_lshlrev_b32 v2, 2, v2
        v_lshl_add_u32 v2, v3, 11, v2
        s_mov_b32 s77, 0x100000
        """)
        a(rb64_scalar(17, 22))
        a(f"s_lshl_b32 s17, s17, 6\ns_add_u32 s17, s17, {GL_OFF}")
        a.ext(plain(spin("PG", [f"buffer_load_dword v5, v4, {sr(SRD_WS)}, s16 offen sc1"],
                         [f"v_cmp_eq_u32 vcc, s{S_NONCE}, v5", "s_nop 3", "s_cmp_eq_u64 vcc, exec"], 1)))
        for g in range(8):
            a(f"buffer_load_dword v{E+g}, v2, {sr(SRD_WS)}, s17 offen sc1")
            if g < 7:
                a("s_add_u32 s17, s17, 8192")
        a(f"""
        s_waitcnt vmcnt(0)
        v_add_f32 v{E}, v{E}, v{E+1}
        v_add_f32 v{E+2}, v{E+2}, v{E+3}
        v_add_f32 v{E+4}, v{E+4}, v{E+5}
        v_add_f32 v{E+6}, v{E+6}, v{E+7}
        v_add_f32 v{E}, v{E}, v{E+2}
        v_add_f32 v{E+4}, v{E+4}, v{E+6}
        v_add_f32 v{E}, v{E}, v{E+4}
        v_cvt_pk_bf16_f32 v{E}, v{E}, v{E}
        v_lshlrev_b32 v{E}, 16, v{E}
        v_mul_f32 v{E}, {f32(-LOG2E)}, v{E}
        v_exp_f32 v{E}, v{E}
        v_lshlrev_b32 v2, 2, v0
        v_add_f32 v{E}, 1.0, v{E}
        v_rcp_f32 v{E}, v{E}
        v_add_u32 v2, {G_LDS}, v2
        v_cvt_pk_bf16_f32 v{E}, v{E}, v{E}
        v_lshlrev_b32 v{E}, 16, v{E}
        ds_write_b32 v2, v{E}
        s_waitcnt lgkmcnt(0)
        CV_NOGATE:
        """)
    a.ext(stamp_end())
    st, ld, chk = fu_code(TMP, TMP + 1, TMP + 2, 7)
    a(f"CV{P}_SLOW:")
    a("s_waitcnt lgkmcnt(0)\ns_mov_b32 s77, 0x100000")
    a.ext(st)
    a.ext(plain(spin(f"PU{P}", ld, chk, 8)))
    a(f"v_lshlrev_b32 v{TMP}, 4, v0")
    a.ext(u_dma(TMP, 7))
    a(f"""
    s_mov_b32 s16, 0
    s_mov_b32 s17, 0xe0000000
    v_mov_b32 v4, 1
    s_waitcnt vmcnt(0)
    s_branch CV{P}_GO
    """)
    a0.ext(resolve_lds(a.L))


HEADER = open("cdna_kernels/" + NAME + ".s.ref").read().split("; Override launch")[0]


DOC = """;
"""


def main(path):
    a = Asm()
    prologue(a)
    a("L_SPARE:")
    a(f"s_and_b32 s{S_XCD}, s2, 7\ns_lshr_b32 s{S_IDX}, s2, 3\ns_waitcnt lgkmcnt(0)")
    srd(a, SRD_X, S_U, 2048 * 512 * 2)
    g_srds(a)
    spare(a)
    a("s_branch L_GEMM2")
    a("L_GEMM1:")
    gemm1(a)
    a("L_GEMM2:")
    gemm2(a)
    a("L_LWAVE_S:")
    a.ext(lwave(False))
    a("L_KWAVE:")
    a.ext(kwave(True))
    a("L_KWAVE_S:")
    a.ext(kwave(False))
    a("L_CONVA:")
    conv(a, False)
    a("L_CONVB:")
    conv(a, True)
    a("L_END:\ns_endpgm")
    body = "\n".join(("" if ln.endswith(":") or ln.startswith(".") else "    ") + ln for ln in a.L)
    kn = NAME + "_kernel"
    txt = HEADER
    if OPT.get("list"):
        txt += f"; @launch kernel={kn} grid=(256,1,1) block=(512,1,1) lds=163840\n"
    else:
        txt += "; @launch grid=(256,1,1) block=(512,1,1) lds=163840\n"
    txt += DOC
    txt += '.amdgcn_target "amdgcn-amd-amdhsa--gfx950"\n.text\n'
    txt += f".globl {kn}\n.p2align 8\n.type {kn},@function\n{kn}:\n"
    txt += body + "\n"
    txt += f"""
.section .rodata,"a"
.p2align 6
.amdhsa_kernel {kn}
  .amdhsa_next_free_vgpr 256
  .amdhsa_next_free_sgpr 102
  .amdhsa_accum_offset 256
  .amdhsa_group_segment_fixed_size 0
  .amdhsa_kernarg_size 136
  .amdhsa_user_sgpr_count 2
  .amdhsa_user_sgpr_kernarg_segment_ptr 1
  .amdhsa_system_sgpr_workgroup_id_x 1
.end_amdhsa_kernel
"""
    open(path, "w").write(txt)


if __name__ == "__main__":
    for o in list(sys.argv):
        if o.startswith("--opt="):
            k, _, val = o[6:].partition(":")
            OPT[k] = int(val) if val else 1
            sys.argv.remove(o)
    if OPT.get("oldlay"):
        DP = 4096
        UT_OFF, Y_OFF, GL_OFF = 0x800000, 0xC00000, 0xE00000
        FH_OFF, FY_OFF, FU_OFF, FD_OFF = 0xE40000, 0xE60000, 0xE68000, 0xE80000
    if OPT.get("dp"):
        DP = OPT["dp"]
    if "--stamps" in sys.argv:
        STAMPS = True
        sys.argv.remove("--stamps")
    main(sys.argv[1] if len(sys.argv) > 1 else "cdna_kernels/" + NAME + ".s")
```

```python
import sys, struct

NAME = "gated_mix__ssm_conv_s4__swiglu_ffn__prompt"

H_OFF = 0x000000
DP = 4224
UT_OFF = 0x800000
Y_OFF = 0xA80000
KX_OFF = 0xD00000
GL_OFF = 0xF00000
ST_OFF = 0xF20000
FH_OFF = 0xF40000
FY_OFF = 0xF60000
FU_OFF = 0xF68000
FG_OFF = 0xF6A000
FD_OFF = 0xF80000
WS_BYTES = 0x1000000

STAMPS = False
HDL = []
OPT = {}
ST_BASE = 78
NST = 12


def f32(x):
    return "0x%08x" % struct.unpack("<I", struct.pack("<f", x))[0]


LOG2E = 1.4426950408889634
LOG2E_HI = struct.unpack("<f", struct.pack("<f", LOG2E))[0]
LOG2E_LO = LOG2E - LOG2E_HI
LN2 = 0.6931471805599453
INV2PI = 0.15915494309189535


class Asm:
    def __init__(self):
        self.L = []

    def __call__(self, s):
        for line in s.strip().split("\n"):
            line = line.strip()
            if line:
                self.L.append(line)

    def ext(self, lines):
        self.L.extend(lines)

    def tag(self, n):
        self.L.append(("VMTAG", n))

    def wait(self, n):
        self.L.append(("VMWAIT", n))


def v(b, n=1):
    return f"v{b}" if n == 1 else f"v[{b}:{b+n-1}]"


def sr(b):
    return f"s[{b}:{b+3}]"


class RA:
    def __init__(self, start, end):
        self.p = start
        self.end = end

    def __call__(self, n=1, align=1):
        self.p = (self.p + align - 1) // align * align
        r = self.p
        self.p += n
        assert self.p <= self.end, "out of registers"
        return r


def stamp(k, force=False):
    if not STAMPS:
        return []
    assert k < NST
    if OPT.get("dbgbar") and 1 <= k <= 9 and not force:
        return []
    op = "s_memtime" if OPT.get("cyc") else "s_memrealtime"
    return [f"{op} s[{ST_BASE+2*k}:{ST_BASE+2*k+1}]"]


def bstamp(mode, k):
    return stamp(k, True) if OPT.get("dbgbar") == mode else []


def stamp_end():
    if not STAMPS:
        return ["s_endpgm"]
    L = stamp(10) + ["s_waitcnt vmcnt(0)"] + stamp(11)
    L += ["s_waitcnt lgkmcnt(0)", "s_mov_b64 exec, 1", "s_lshl_b32 s74, s2, 3", f"s_add_u32 s74, s74, s{S_WIDX}",
          "s_lshl_b32 s74, s74, 6", f"s_add_u32 s74, s74, {ST_OFF}", "v_mov_b32 v1, 0"]
    for k in range(NST):
        L.append(f"v_mov_b32 v{4+k}, s{ST_BASE+2*k}")
    for k in range(0, NST, 4):
        L.append(f"buffer_store_dwordx4 v[{4+k}:{7+k}], v1, {sr(SRD_WS)}, s74 offen offset:{4*k}")
    if OPT.get("hdbg"):
        lab = f"HD{len(HDL)}"
        HDL.append(lab)
        L += [f"v_not_b32 v20, v4", f"global_atomic_umax v1, v20, s[{S_DBG}:{S_DBG+1}] offset:56",
              f"global_atomic_umax v1, v15, s[{S_DBG}:{S_DBG+1}] offset:60",
              f"s_cmp_lg_u32 s2, {OPT['hdbg']}", f"s_cbranch_scc1 {lab}", f"s_cmp_lg_u32 s{S_WIDX}, 0", f"s_cbranch_scc1 {lab}"]
        words = [1, 2, 3, 4, 5, 6, 7, 9, 10, 11, 12]
        for k in range(1, NST):
            L += [f"v_sub_u32 v20, v{4+k}, v4", f"global_store_dword v1, v20, s[{S_DBG}:{S_DBG+1}] offset:{4*words[k-1]}", "s_nop 1"]
        L += [f"global_store_dword v1, v4, s[{S_DBG}:{S_DBG+1}] offset:52"]
        L.append(f"{lab}:")
    L.append("s_endpgm")
    return L


def is_vmem(line):
    return line.startswith("buffer_") or line.startswith("global_")


def resolve_vm(lines):
    out = []
    count = 0
    tags = {}
    done = -1
    for ln in lines:
        if isinstance(ln, tuple):
            if ln[0] == "VMTAG":
                tags[ln[1]] = count
            elif ln[0] == "VMWAIT":
                if tags[ln[1]] <= done:
                    continue
                n = count - tags[ln[1]]
                assert 0 <= n <= 63, n
                out.append(f"s_waitcnt vmcnt({n})")
                done = tags[ln[1]]
            elif ln[0] == "VMRESET":
                done = count
            elif ln[0] == "NOCOUNT":
                out.append(ln[1])
            else:
                raise ValueError(ln)
        else:
            if is_vmem(ln):
                count += 1
            out.append(ln)
    return out


def resolve_lds(lines):
    out = []
    count = 0
    tags = {}
    for ln in lines:
        if isinstance(ln, tuple):
            if ln[0] == "LTAG":
                tags[ln[1]] = count
            elif ln[0] == "LWAIT":
                out.append(f"s_waitcnt lgkmcnt({min(15, count - tags[ln[1]])})")
            elif ln[0] == "LCOUNT":
                pass
            else:
                raise ValueError(ln)
        else:
            if ln.startswith("ds_"):
                count += 1
            out.append(ln)
    return out


SLOT = 49152
KG_BASE = 147456
KARR = 3584
U_BASE = 131072
UPITCH = 1344
USZ = 4 * UPITCH
YB_BASE = U_BASE + 2 * USZ
RING2 = 32768

S_U = 4
S_ARE, S_AIM, S_BRE, S_BIM, S_CRE, S_CIM, S_LDT = 54, 56, 58, 60, 62, 64, 66
S_DS = 20
S_WG, S_WU, S_WD, S_GW = 24, 26, 28, 30
S_OUT, S_DBG, S_WS = 32, 34, 36
S_WIDX, S_XCD, S_IDX, S_RB, S_CB, S_PHI = 38, 39, 40, 41, 42, 43
SRD_X, SRD_WG, SRD_WU, SRD_WS, SRD_WD, SRD_OUT = 44, 48, 52, 56, 60, 64


def srd(a, d, base, nbytes):
    if base == S_WS and OPT.get("wsoff"):
        a(f"""
        s_add_u32 s{d}, s{base}, {OPT["wsoff"] << 20}
        s_addc_u32 s{d+1}, s{base+1}, 0
        s_and_b32 s{d+1}, s{d+1}, 0xffff
        s_mov_b32 s{d+2}, {nbytes}
        s_mov_b32 s{d+3}, 0x00020000
        """)
        return
    a(f"""
    s_mov_b32 s{d}, s{base}
    s_and_b32 s{d+1}, s{base+1}, 0xffff
    s_mov_b32 s{d+2}, {nbytes}
    s_mov_b32 s{d+3}, 0x00020000
    """)


def mapping(a):
    a(f"""
    s_and_b32 s{S_XCD}, s2, 7
    s_lshr_b32 s{S_IDX}, s2, 3
    """)
    if OPT.get("map", 1) == 0:
        a(f"""
        s_and_b32 s68, s{S_IDX}, 3
        s_lshr_b32 s69, s{S_IDX}, 2
        s_lshr_b32 s{S_RB}, s{S_XCD}, 1
        s_lshl_b32 s{S_RB}, s{S_RB}, 2
        s_add_u32 s{S_RB}, s{S_RB}, s68
        s_and_b32 s{S_CB}, s{S_XCD}, 1
        s_mul_i32 s{S_CB}, s{S_CB}, 7
        s_add_u32 s{S_CB}, s{S_CB}, s69
        s_lshl_b32 s{S_PHI}, s68, 1
        s_add_u32 s{S_PHI}, s{S_PHI}, s69
        s_and_b32 s{S_PHI}, s{S_PHI}, 7
        """)
    else:
        a(f"""
        s_and_b32 s70, s{S_XCD}, 1
        s_lshl_b32 s70, s70, 2
        s_and_b32 s68, s{S_IDX}, 7
        s_lshr_b32 s69, s{S_IDX}, 3
        s_add_u32 s71, s69, s70
        s_add_u32 s72, s68, s70
        s_cmp_ge_u32 s{S_IDX}, 24
        s_cselect_b32 s71, 3, s71
        s_cselect_b32 s68, s72, s68
        s_lshr_b32 s{S_CB}, s{S_XCD}, 1
        s_and_b32 s{S_CB}, s{S_CB}, 1
        s_mul_i32 s{S_CB}, s{S_CB}, 7
        s_add_u32 s{S_CB}, s{S_CB}, s71
        s_lshr_b32 s{S_RB}, s{S_XCD}, 2
        s_lshl_b32 s{S_RB}, s{S_RB}, 3
        s_add_u32 s{S_RB}, s{S_RB}, s68
        s_lshl_b32 s{S_PHI}, s69, 1
        s_add_u32 s{S_PHI}, s{S_PHI}, s68
        s_and_b32 s{S_PHI}, s{S_PHI}, 7
        """)


K_PR = 6


def kparam_loads():
    va, vb = K_PR + 5, K_PR + 7
    L = [f"global_load_dword v{K_PR+i}, v{va}, s[{sb}:{sb+1}]" for i, sb in enumerate((S_ARE, S_AIM, S_BRE, S_BIM, S_CRE, S_CIM))]
    L += [f"global_load_ushort v{K_PR+6}, v{vb}, s[{S_LDT}:{S_LDT+1}]", f"global_load_ushort v{K_PR+7}, v{vb}, s[{S_DS}:{S_DS+1}]"]
    return L


def prologue(a):
    a("""
    s_cmp_ge_u32 s2, 256
    s_cbranch_scc1 L_END
    """)
    if STAMPS:
        a.ext([f"s_mov_b32 s{ST_BASE+2*k}, 0" for k in range(NST)])
    a.ext(stamp(0))
    a(f"""
    s_load_dwordx8 s[24:31], s[0:1], 80
    s_load_dwordx16 s[52:67], s[0:1], 0
    s_load_dwordx2 s[4:5], s[0:1], 0
    s_load_dwordx2 s[36:37], s[0:1], 128
    s_load_dwordx4 s[32:35], s[0:1], 112
    s_load_dwordx2 s[20:21], s[0:1], 64
    v_lshrrev_b32 v1, 6, v0
    v_and_b32 v0, 63, v0
    s_nop 0
    v_readfirstlane_b32 s{S_WIDX}, v1
    s_lshl_b32 s69, s2, 1
    v_lshlrev_b32 v2, 2, v0
    s_nop 1
    s_cmp_lt_u32 s{S_WIDX}, 6
    s_cbranch_scc1 L_NOTK
    s_sub_u32 s68, s{S_WIDX}, 6
    s_add_u32 s69, s69, s68
    s_lshl_b32 s71, s69, 8
    v_add_u32 v2, s71, v2
    s_lshl_b32 s72, s69, 1
    v_mov_b32 v3, s72
    s_waitcnt lgkmcnt(0)
    """)
    a(f"v_mov_b32 v{K_PR+5}, v2\nv_mov_b32 v{K_PR+7}, v3")
    a(f"s_and_b32 s{S_XCD}, s2, 7\ns_lshr_b32 s{S_IDX}, s2, 3")
    a("s_cmp_lt_u32 s2, 224\ns_cbranch_scc1 L_KWAVE")
    a.ext(kparam_loads())
    a("s_branch L_KWAVE_S\nL_NOTK:")
    a(f"""
    s_cmp_ge_u32 s{S_WIDX}, 4
    s_cbranch_scc1 L_ISL
    """)
    a(f"""
    s_getpc_b64 s[70:71]
    L_PC:
    s_sub_u32 s70, s70, L_PC-{NAME}_kernel
    s_subb_u32 s71, s71, 0
    s_lshr_b32 s72, s2, 3
    s_lshl_b32 s72, s72, 2
    s_add_u32 s72, s72, s{S_WIDX}
    s_lshl_b32 s72, s72, 9
    v_and_b32 v2, 7, v0
    v_lshlrev_b32 v2, 6, v2
    v_add_u32 v2, s72, v2
    v_min_u32 v2, L_END-{NAME}_kernel, v2
    global_load_dword v127, v2, s[70:71]
    s_cmp_lt_u32 s2, 224
    s_cbranch_scc1 L_GEMM1
    s_branch L_SPARE
    L_ISL:
    """)
    mapping(a)
    a(f"""
    s_sub_u32 s6, s{S_WIDX}, 4
    s_cmp_ge_u32 s{S_IDX}, 28
    s_cbranch_scc1 L_LWAVE_S
    """)
    a.ext(lwave(True))


def g_srds(a):
    srd(a, SRD_WS, S_WS, WS_BYTES)
    srd(a, SRD_WD, S_WD, 1792 * 512 * 2)
    srd(a, SRD_OUT, S_OUT, 2048 * 512 * 2)


VL16 = 1
XD = 8
(VD0, VD1, DA0, DA1, VEP, VPH, VFL, VG, VY, VYW, VYT, VW1, VW2, VW3, VR1, VR23) = range(112, 128)
YT_BASE = YB_BASE
G_LDS = YB_BASE
N_LDS = YB_BASE + 256
X_LDS = YB_BASE + 512
S_LDS = YB_BASE + 272
def n1():
    return OPT.get("n1", 14)


def n1x():
    return n1() + OPT.get("nx", 0)


def rot_scalar(dst, tmp):
    m = OPT.get("rmode", 0)
    if m == 1:
        return f"""
        s_lshr_b32 s{dst}, s{S_IDX}, 1
        s_and_b32 s{dst}, s{dst}, 2
        s_mul_i32 s{dst}, s{dst}, 7
        """
    if m == 2:
        return f"""
        s_lshr_b32 s{dst}, s{S_IDX}, 1
        s_and_b32 s{dst}, s{dst}, 2
        s_and_b32 s{tmp}, s{S_IDX}, 1
        s_add_u32 s{dst}, s{dst}, s{tmp}
        s_mul_i32 s{dst}, s{dst}, 7
        """
    return f"""
    s_lshr_b32 s{dst}, s{S_IDX}, 1
    s_and_b32 s{dst}, s{dst}, 2
    s_add_u32 s{dst}, s{dst}, s{S_IDX}
    s_and_b32 s{dst}, s{dst}, 3
    s_mul_i32 s{dst}, s{dst}, 7
    """


def rb64_scalar(dst, tmp):
    return f"""
    s_lshl_b32 s{dst}, s{S_XCD}, 2
    s_and_b32 s{tmp}, s{S_IDX}, 3
    s_add_u32 s{dst}, s{dst}, s{tmp}
    """


def cb64_scalar(dst, tmp):
    return f"""
    s_lshr_b32 s{dst}, s{S_IDX}, 2
    s_lshr_b32 s{tmp}, s{S_WD}, 7
    s_sub_u32 s{dst}, s{dst}, s{tmp}
    s_add_u32 s{dst}, s{dst}, {OPT.get("cbs", 4)}
    s_and_b32 s{dst}, s{dst}, 7
    """


def gemm2_setup(a):
    a(rb64_scalar(6, 13))
    a(cb64_scalar(7, 13))
    a(f"""
    s_lshl_b32 s17, s6, 6
    s_lshr_b32 s23, s{S_WIDX}, 1
    s_lshl_b32 s13, s23, 5
    s_add_u32 s17, s17, s13
    s_lshl_b32 s18, s7, 6
    s_and_b32 s14, s{S_WIDX}, 1
    s_lshl_b32 s13, s14, 5
    s_add_u32 s18, s18, s13
    v_lshrrev_b32 v5, 5, v0
    v_and_b32 v6, 31, v0
    v_add_u32 v6, s17, v6
    v_lshlrev_b32 v7, 4, v5
    v_add_u32 v7, s18, v7
    v_lshlrev_b32 v7, 1, v7
    v_lshl_add_u32 v{VEP}, v6, 10, v7
    s_lshl_b32 s8, s{S_WIDX}, 15
    s_lshl_b32 s9, s6, 1
    s_add_u32 s9, s9, s23
    s_mul_i32 s9, s9, 112
    s_mul_i32 s13, s{S_WIDX}, 28
    s_add_u32 s9, s9, s13
    s_lshl_b32 s9, s9, 10
    s_mul_i32 s22, s23, {224*1024}
    s_sub_u32 s22, {112*1024}, s22
    s_lshl_b32 s10, s13, 14
    s_lshl_b32 s13, s7, 7
    {"s_cmp_ge_u32 s2, 224" if OPT.get("fakecb") else ""}
    {"s_cselect_b32 s12, 128, 0" if OPT.get("fakecb") else ""}
    {"s_xor_b32 s13, s13, s12" if OPT.get("fakecb") else ""}
    s_add_u32 s10, s10, s13
    """)
    a(rot_scalar(12, 13))
    a(f"""
    s_add_u32 s11, s12, {n1x()}
    s_cmp_ge_u32 s11, 28
    s_cselect_b32 s13, 28, 0
    s_sub_u32 s11, s11, s13
    s_lshl_b32 s15, s6, 5
    s_mul_i32 s13, s{S_WIDX}, 7
    s_add_u32 s15, s15, s13
    s_lshl_b32 s15, s15, 7
    s_add_u32 s15, s15, {FH_OFF}
    s_lshl_b32 s13, s7, 2
    s_add_u32 s13, s13, s{S_WIDX}
    s_lshl_b32 s16, s13, 10
    s_add_u32 s16, s16, {FY_OFF}
    s_mul_i32 s19, s13, {16*DP}
    s_lshl_b32 s13, s6, 7
    s_add_u32 s19, s19, s13
    s_add_u32 s19, s19, {Y_OFF}
    v_lshlrev_b32 v{VL16}, 4, v0
    v_lshrrev_b32 v2, 3, v0
    v_and_b32 v3, 7, v0
    v_mul_u32_u24 v{VY}, {DP}, v2
    v_lshl_add_u32 v{VY}, v3, 4, v{VY}
    v_lshrrev_b32 v4, 1, v2
    v_and_b32 v4, 1, v4
    v_lshlrev_b32 v4, 2, v4
    v_xor_b32 v3, v3, v4
    v_lshlrev_b32 v{VD0}, 10, v2
    v_lshl_add_u32 v{VD0}, v3, 4, v{VD0}
    v_add_u32 v{VD1}, {8192-1024}, v{VD0}
    v_lshlrev_b32 v{VYW}, 7, v2
    v_lshl_add_u32 v{VYW}, v3, 4, v{VYW}
    v_add_u32 v{VYW}, s8, v{VYW}
    v_lshrrev_b32 v2, 2, v0
    v_and_b32 v2, 3, v2
    v_and_b32 v3, 3, v0
    v_lshrrev_b32 v4, 4, v0
    v_and_b32 v4, 1, v4
    v_lshl_add_u32 v6, v5, 2, v2
    v_lshlrev_b32 v6, 7, v6
    v_and_b32 v7, 1, v3
    v_lshl_add_u32 v6, v7, 5, v6
    v_lshl_add_u32 v6, v4, 4, v6
    v_lshrrev_b32 v7, 1, v3
    v_lshl_add_u32 v6, v7, 3, v6
    v_add_u32 v6, s8, v6
    v_lshrrev_b32 v7, 1, v2
    v_xor_b32 v7, s14, v7
    v_lshl_add_u32 v{DA0}, v7, 6, v6
    v_xor_b32 v7, 1, v7
    v_lshl_add_u32 v{DA1}, v7, 6, v6
    s_lshl_b32 s13, s14, 1
    v_add_u32 v6, s13, v5
    v_lshlrev_b32 v{VYT}, 15, v6
    v_lshl_add_u32 v{VYT}, v2, 7, v{VYT}
    v_lshrrev_b32 v7, 1, v2
    v_xor_b32 v7, s23, v7
    v_lshl_add_u32 v{VYT}, v7, 6, v{VYT}
    v_lshl_add_u32 v{VYT}, v4, 5, v{VYT}
    v_lshl_add_u32 v{VYT}, v3, 3, v{VYT}
    v_min_u32 v{VPH}, 6, v0
    v_lshlrev_b32 v{VPH}, 7, v{VPH}
    v_lshrrev_b32 v2, 2, v0
    v_and_b32 v2, 7, v2
    v_lshlrev_b32 v{VFL}, 7, v2
    v_lshl_add_u32 v{VFL}, v3, 2, v{VFL}
    v_and_b32 v{VG}, 31, v0
    s_lshl_b32 s13, s23, 5
    v_add_u32 v{VG}, s13, v{VG}
    v_lshlrev_b32 v{VG}, 2, v{VG}
    v_add_u32 v{VG}, {G_LDS}, v{VG}
    v_add_u32 v{VW1}, s8, v{VL16}
    s_xor_b32 s13, s{S_WIDX}, 1
    s_lshl_b32 s13, s13, 15
    v_add_u32 v{VR1}, s13, v{VL16}
    s_xor_b32 s13, s{S_WIDX}, 2
    s_lshl_b32 s13, s13, 15
    v_add_u32 v{VW2}, s13, v{VL16}
    s_xor_b32 s13, s{S_WIDX}, 3
    s_lshl_b32 s13, s13, 15
    v_add_u32 v{VW3}, s13, v{VL16}
    """)


def gemm1(a):
    XA = 16
    WA = 28
    BUFS = [64, 88, 40]
    ACC = 128

    def acc(mat, t, tt):
        return ACC + 16 * (mat * 4 + t * 2 + tt)

    def wf(b, mat, t):
        return BUFS[b] + 4 * (mat * 2 + t)

    def xf(b, tt):
        return BUFS[b] + 16 + 4 * tt

    g2 = Asm()
    a(f"""
    s_lshr_b32 s68, s{S_WIDX}, 1
    s_and_b32 s69, s{S_WIDX}, 1
    v_and_b32 v7, 31, v0
    v_lshrrev_b32 v2, 5, v0
    v_lshrrev_b32 v3, 1, v0
    v_and_b32 v3, 7, v3
    s_lshl_b32 s70, s68, 13
    v_lshlrev_b32 v4, 7, v7
    v_add_u32 v4, s70, v4
    """)
    for ks in range(4):
        a(f"""
        v_add_u32 v5, {2*ks}, v2
        v_xor_b32 v5, v5, v3
        v_lshl_add_u32 v{XA+ks}, v5, 4, v4
        """)
    a(f"""
    v_lshrrev_b32 v7, 2, v0
    v_and_b32 v7, 3, v7
    v_and_b32 v3, 3, v0
    v_lshrrev_b32 v4, 4, v0
    v_and_b32 v4, 1, v4
    v_lshl_add_u32 v5, v2, 3, v7
    v_lshlrev_b32 v5, 8, v5
    v_lshl_add_u32 v5, v4, 5, v5
    v_lshl_add_u32 v5, v3, 3, v5
    s_lshl_b32 s70, s69, 1
    """)
    for t in range(2):
        a(f"""
        s_add_u32 s71, s70, {t}
        v_xor_b32 v6, s71, v7
        v_lshl_add_u32 v{WA+t}, v6, 6, v5
        """)
    for sl in (1, 2):
        for ks in range(4):
            a(f"v_add_u32 v{XA+4*sl+ks}, {sl*SLOT}, v{XA+ks}")
        for t in range(2):
            a(f"v_add_u32 v{WA+2*sl+t}, {sl*SLOT}, v{WA+t}")
    mapping(g2)
    g_srds(g2)
    gemm2_setup(g2)
    g2(f"""
    s_lshr_b32 s68, s{S_WIDX}, 1
    s_and_b32 s69, s{S_WIDX}, 1
    s_lshl_b32 s70, s{S_RB}, 2
    s_lshl_b32 s71, s68, 1
    s_add_u32 s70, s70, s71
    s_mul_i32 s70, s70, 112
    s_lshl_b32 s71, s{S_CB}, 3
    s_add_u32 s70, s70, s71
    s_lshl_b32 s71, s69, 2
    s_add_u32 s70, s70, s71
    s_lshl_b32 s70, s70, 10
    s_add_u32 s71, s70, {112*1024}
    s_lshl_b32 s3, s{S_RB}, 1
    s_add_u32 s3, s3, s68
    s_lshl_b32 s3, s3, 5
    s_lshl_b32 s72, s{S_CB}, 1
    s_add_u32 s3, s3, s72
    s_add_u32 s3, s3, s69
    s_lshl_b32 s3, s3, 7
    s_add_u32 s3, s3, {FH_OFF}
    s_mov_b32 s72, {f32(-LOG2E)}
    s_mov_b32 s73, {f32(-LOG2E)}
    """)

    def reads(n):
        st, ks = n >> 2, n & 3
        sl = st % 3
        b = n % 3
        r = []
        r.append(f"ds_read_b128 {v(xf(b,0),4)}, v{XA+4*sl+ks}")
        for mat in range(2):
            for t in range(2):
                for h2 in range(2):
                    off = 16384 * (1 + mat) + ks * 4096 + h2 * 1024
                    r.append(f"ds_read_b64_tr_b16 {v(wf(b,mat,t)+2*h2,2)}, v{WA+2*sl+t} offset:{off}")
                if mat == 0 and t == 0:
                    r.append(f"ds_read_b128 {v(xf(b,1),4)}, v{XA+4*sl+ks} offset:4096")
        return r

    T = 16

    def epi(p):
        t, tt = p >> 1, p & 1
        G, U = acc(0, t, tt), acc(1, t, tt)
        o = 32 + 8 * p
        L = []
        for h in range(2):
            R = range(8 * h, 8 * h + 8)
            L += [f"v_pk_mul_f32 {v(T+i,2)}, {v(G+i,2)}, s[72:73]" for i in R[::2]]
            for i in R[::2]:
                L += [f"v_exp_f32 v{T+i}, v{T+i}", f"v_exp_f32 v{T+i+1}, v{T+i+1}",
                      f"v_pk_mul_f32 {v(U+i,2)}, {v(G+i,2)}, {v(U+i,2)}"]
            L += [f"v_pk_add_f32 {v(T+i,2)}, {v(T+i,2)}, 1.0 op_sel_hi:[1,0]" for i in R[::2]]
            L += [f"v_rcp_f32 v{T+i}, v{T+i}" for i in R]
            L += [f"v_pk_mul_f32 {v(U+i,2)}, {v(U+i,2)}, {v(T+i,2)}" for i in R[::2]]
            for i in range(4):
                L.append(f"v_cvt_pk_bf16_f32 v{o+4*h+i}, v{U+8*h+2*i}, v{U+8*h+2*i+1}")
            L.append(f"buffer_store_dwordx4 {v(o+4*h,4)}, v{VL16}, {sr(SRD_WS)}, s{70+tt} offen offset:{t*2048+1024*h} sc1")
        return L

    a("s_waitcnt lgkmcnt(0)")
    a("s_barrier")
    a.ext(stamp(1))
    a.ext(bstamp(2, 1))
    a.ext(reads(0))
    a.ext(reads(1))
    extra = []
    XL = OPT.get("xl", 13)
    for n in range(32):
        b = n % 3
        if (n & 3) == 2:
            a("s_waitcnt lgkmcnt(0)")
            a.ext(bstamp(2, 2 + (n >> 2)))
            a("s_barrier")
            if OPT.get("gap") == n:
                for _ in range(OPT.get("gapn", 20)):
                    a("s_nop 15")
            if n == 22:
                a.ext(stamp(2))
        elif (n & 3) != 3:
            a("s_waitcnt lgkmcnt(10)")
        rd = reads(n + 2) if n + 2 < 32 else []
        mf = []
        for t in range(2):
            for tt in range(2):
                for mat in range(2):
                    c = "0" if n == 0 else v(acc(mat, t, tt), 16)
                    mf.append(f"v_mfma_f32_32x32x16_bf16 {v(acc(mat,t,tt),16)}, {v(wf(b,mat,t),4)}, {v(xf(b,tt),4)}, {c}")
        if "blk2" in OPT:
            cut = next(i for i in range(len(g2.L) // 2, len(g2.L)) if g2.L[i].startswith("v_") and g2.L[i - 1].startswith("v_"))
            if n == OPT["blk"]:
                a.ext(g2.L[:cut])
            if n == OPT["blk2"]:
                a.ext(g2.L[cut:])
        elif "blk" in OPT:
            if n == OPT["blk"]:
                a.ext(g2.L)
        elif n == 3:
            extra = list(g2.L)
        if n == 30:
            assert not extra
            extra = [f"v_mov_b32 v2, {N_LDS}", "ds_read_b32 v3, v2"]
        for i, m in enumerate(mf):
            a(m)
            a.ext(rd[2 * i:2 * i + 2])
            if i >= 4:
                a.ext(extra[:3])
                extra = extra[3:]
    assert not extra
    a.ext(stamp(3))
    if OPT.get("eprio", 0):
        a(f"s_setprio {OPT['eprio']}")
    a(f"s_waitcnt lgkmcnt(0)\nv_readfirstlane_b32 s{S_NONCE}, v3\ns_nop 5")
    for p in range(4):
        a.ext(epi(p))
    a.ext(stamp(4))


def spare(a):
    R = 16
    O = 80
    GWv = 112
    SUM = 120
    a(f"""
    s_sub_u32 s68, s{S_IDX}, 28
    s_lshl_b32 s3, s{S_XCD}, 2
    s_add_u32 s3, s3, s68
    s_lshl_b32 s3, s3, 5
    s_add_u32 s3, s3, s{S_WIDX}
    s_lshl_b32 s3, s3, 2
    s_add_u32 s3, s3, {FU_OFF}
    s_lshl_b32 s68, s68, 2
    s_add_u32 s68, s68, s{S_WIDX}
    s_lshr_b32 s69, s68, 1
    s_mov_b32 s74, s{S_XCD}
    v_and_b32 v1, 7, v0
    v_lshrrev_b32 v2, 3, v0
    v_lshlrev_b32 v3, 15, v2
    v_lshl_add_u32 v3, v1, 4, v3
    v_mul_u32_u24 v4, {8*DP}, v1
    v_lshl_add_u32 v4, v2, 4, v4
    v_lshlrev_b32 v5, 4, v1
    v_lshlrev_b32 v6, 2, v0
    s_mov_b32 s70, 0x05040100
    s_mov_b32 s71, 0x07060302
    s_lshl_b32 s72, s69, 7
    v_add_u32 v7, s72, v5
    global_load_dwordx4 {v(GWv,4)}, v7, s[{S_GW}:{S_GW+1}]
    """)
    for i in range(2):
        b = 6 + 4 * i
        a(f"""
        s_lshl_b32 s73, s68, 1
        s_add_u32 s73, s73, {i}
        s_and_b32 s73, s73, 3
        s_lshl_b32 s{b}, s74, 18
        s_lshl_b32 s75, s73, 10
        s_add_u32 s{b}, s{b}, s75
        s_add_u32 s{b}, s{b}, s72
        s_mul_i32 s{b+1}, s69, {64*DP}
        s_add_u32 s{b+1}, s{b+1}, s75
        s_lshl_b32 s75, s74, 7
        s_add_u32 s{b+1}, s{b+1}, s75
        s_add_u32 s{b+1}, s{b+1}, {UT_OFF}
        s_lshl_b32 s{b+2}, s74, 8
        s_lshl_b32 s75, s73, 11
        s_add_u32 s{b+2}, s{b+2}, s75
        s_lshl_b32 s75, s69, 13
        s_add_u32 s{b+2}, s{b+2}, s75
        s_add_u32 s{b+2}, s{b+2}, {GL_OFF}
        """)
        for j in range(8):
            a(f"buffer_load_dwordx4 {v(R+32*i+4*j,4)}, v3, {sr(SRD_X)}, s{b} offen")
            if j < 7:
                a(f"s_add_u32 s{b}, s{b}, 4096")
    a("v_mov_b32 v2, 0")
    for i in range(2):
        b = 6 + 4 * i
        a("s_waitcnt vmcnt(8)")
        Ri = R + 32 * i
        for e in range(8):
            for jj in range(4):
                sel = 71 if (e & 1) else 70
                a(f"v_perm_b32 v{O+4*e+jj}, v{Ri+4*(2*jj+1)+(e>>1)}, v{Ri+4*(2*jj)+(e>>1)}, s{sel}")
            a(f"buffer_store_dwordx4 {v(O+4*e,4)}, v4, {sr(SRD_WS)}, s{b+1} offen sc1")
            if e < 7:
                a(f"s_add_u32 s{b+1}, s{b+1}, {DP}")
    a(nonce_ld(3, 2))
    a.ext(stamp(1))
    a("s_barrier")
    for i in range(2):
        Ri = R + 32 * i
        S_ = SUM - 8 * i * 5
        for j in range(8):
            a(f"v_mov_b32 v{S_+j}, 0")
        for q in range(4):
            for j in range(8):
                a(f"v_dot2c_f32_bf16 v{S_+j}, v{Ri+4*j+q}, v{GWv+q}")
        a("s_nop 3")
        for ctl in ("quad_perm:[1,0,3,2]", "quad_perm:[2,3,0,1]", "row_half_mirror"):
            for j in range(8):
                a(f"v_add_f32_dpp v{S_+j}, v{S_+j}, v{S_+j} {ctl} row_mask:0xf bank_mask:0xf")
        for j in range(1, 8):
            a(f"""
            v_cmp_eq_u32 vcc, {j}, v1
            s_nop 1
            v_cndmask_b32 v{S_}, v{S_}, v{S_+j}, vcc
            """)
        if i == 0:
            a("s_waitcnt vmcnt(0)")
            a.ext(plain(nonce_get("NS", 3, 2)))
            a(f"""
            s_mov_b32 s76, s{S_NONCE}
            s_mov_b64 exec, 1
            buffer_store_dword v3, v2, {sr(SRD_WS)}, s3 offen sc1
            s_mov_b64 exec, -1
            """)
            a.ext(stamp(2))
    a(f"""
    buffer_store_dword v{SUM}, v6, {sr(SRD_WS)}, s8 offen sc1
    buffer_store_dword v{SUM-40}, v6, {sr(SRD_WS)}, s12 offen sc1
    s_add_u32 s3, s3, {FG_OFF - FU_OFF}
    s_waitcnt vmcnt(0)
    s_mov_b64 exec, 1
    buffer_store_dword v3, v2, {sr(SRD_WS)}, s3 offen sc1
    s_mov_b64 exec, -1
    s_sub_u32 s3, s3, {FG_OFF}
    s_lshl_b32 s3, s3, 5
    s_add_u32 s3, s3, {FD_OFF}
    """)
    a.ext(stamp(3))
    gemm2_setup(a)
    a(f"s_mov_b32 s{S_NONCE}, s76\ns_waitcnt vmcnt(0)")


def spin(label, loads, checks, sleep=2):
    L = [f"{label}_SPIN:", f"s_sleep {sleep}"]
    L += [("NOCOUNT", x) for x in loads]
    L += ["s_waitcnt vmcnt(0)"]
    L += ["s_sub_u32 s77, s77, 1", "s_cmp_eq_u32 s77, 0", f"s_cbranch_scc1 {label}_OK"]
    L += [f"{label}_CHK:"] + checks
    L += [f"s_cbranch_scc0 {label}_SPIN", f"{label}_OK:"]
    return L


S_NONCE = 23


def nonce_ld(vd, vz):
    return f"global_load_dword v{vd}, v{vz}, s[{S_DBG}:{S_DBG+1}] sc1"


def nonce_get(label, vd, vz, sleep=8):
    L = ["s_mov_b32 s77, 0x100000", f"s_branch {label}_CHK"]
    L += spin(label, [nonce_ld(vd, vz)], [f"v_cmp_ne_u32 vcc, 0, v{vd}", "s_nop 3", "s_cmp_eq_u64 vcc, exec"], sleep)
    L += [f"v_readfirstlane_b32 s{S_NONCE}, v{vd}", "s_nop 3"]
    return L


def plain(lines):
    return [x[1] if isinstance(x, tuple) else x for x in lines]


def gemm2(a0):
    a = Asm()
    NS = 28
    NP = 12
    NR = 16
    DH = OPT.get('dh', 6)
    ACC = 192
    WF = 16
    WFR = 128
    HB = 144
    N1 = n1x()
    PP1 = OPT.get("pp1", 21)
    N2 = OPT.get("n2", 28)

    def acc(t, tt):
        return ACC + 16 * (t + 2 * tt)

    def wload(i):
        sl = i % NR
        return [
            "s_lshl_b32 s14, s11, 14", f"s_add_u32 m0, s8, {sl*2048}", "s_add_u32 s14, s14, s10",
            f"buffer_load_dwordx4 v{VD0}, {sr(SRD_WD)}, s14 offen lds",
            "s_add_u32 s11, s11, 1", "s_cmp_ge_u32 s11, 28", "s_cselect_b32 s11, 0, s11",
            f"buffer_load_dwordx4 v{VD1}, {sr(SRD_WD)}, s14 offen offset:1024 lds",
            ("VMTAG", f"W{i}"),
        ]

    def hb(i):
        sl = i % DH
        return HB + 8 * sl if sl < 6 else 8

    def hload(i):
        sl = i % DH
        return [
            "s_lshl_b32 s13, s12, 10", "s_add_u32 s13, s13, s9",
            f"buffer_load_dwordx4 {v(hb(i),4)}, v{VL16}, {sr(SRD_WS)}, s13 offen sc1",
            "s_add_u32 s13, s13, s22",
            "s_add_u32 s12, s12, 1", "s_cmp_ge_u32 s12, 28", "s_cselect_b32 s12, 0, s12",
            f"buffer_load_dwordx4 {v(hb(i)+4,4)}, v{VL16}, {sr(SRD_WS)}, s13 offen sc1",
            ("VMTAG", f"H{i}"),
        ]

    TT = OPT.get("tt", 0)

    def wfrag(i):
        if TT and i > NS - TT:
            return WF + 8 * (i - (NS - TT) - 1)
        return WF + 8 * i if i < NP else WFR + 8 * (i & 1)

    def trd(i):
        sl = i % NR
        r = [("VMWAIT", f"W{i}")] if i >= N1 else []
        for t in range(2):
            for h2 in range(2):
                r.append(f"ds_read_b64_tr_b16 {v(wfrag(i)+4*t+2*h2,2)}, v{DA0+t} offset:{sl*2048+h2*1024}")
        return r

    NF = OPT.get("nf", 0)
    a(f"""
    s_setprio 2
    v_mov_b32 v2, 0
    v_mov_b32 v3, s{S_NONCE}
    s_mov_b32 s77, 0x100000
    """)
    a.tag("hst")

    def pub():
        a.wait("hst")
        a(f"""
        s_mov_b64 exec, 1
        buffer_store_dword v3, v2, {sr(SRD_WS)}, s3 offen sc1
        s_mov_b64 exec, -1
        """)
    if NF == 0:
        pub()
    a.ext(stamp(5))
    a("s_barrier")
    if NF == 0:
        a.ext(stamp(6))
    ph_ld = f"buffer_load_dword v4, v{VPH}, {sr(SRD_WS)}, s15 offen sc1"

    def wl(i):
        a.ext(wload(i))
        if i == N1 + NF - 1:
            pub()
            a.ext(stamp(6))
        if i == PP1:
            a(ph_ld)
            a.tag("P1")
    assert NP <= N1
    for i in range(N1, NR):
        wl(i)
    for i in range(NP + 1):
        if i < NP:
            a.ext(trd(i))
        if i >= 1 and NR + i - 1 < N2:
            a(f"s_waitcnt lgkmcnt({4 if i < NP else 0})")
            wl(NR + i - 1)
    a.ext(stamp(7))
    a.wait("P1")
    a("s_branch PH_CHK")
    a.ext(spin("PH", [ph_ld], [f"v_cmp_eq_u32 vcc, s{S_NONCE}, v4", "s_nop 3", "s_cmp_eq_u64 vcc, exec"]))
    a.ext(stamp(8))
    a.ext(bstamp(3, 1))
    for i in range(DH):
        a.ext(hload(i))
    a("s_waitcnt lgkmcnt(0)")

    YR, FL, YT, EG = 80, 2, WFR, 6
    fl_ld = [f"buffer_load_dword v{FL}, v{VFL}, {sr(SRD_WS)}, s16 offen sc1"]
    chk = [f"v_cmp_eq_u32 vcc, s{S_NONCE}, v{FL}", "s_nop 3", "s_cmp_eq_u64 vcc, exec"]

    def yloads():
        return [f"buffer_load_dwordx4 {v(YR,4)}, v{VY}, {sr(SRD_WS)}, s19 offen sc1",
                f"s_add_u32 s13, s19, {8*DP}",
                f"buffer_load_dwordx4 {v(YR+4,4)}, v{VY}, {sr(SRD_WS)}, s13 offen sc1"]

    IF = OPT.get("if", 22)
    IY = OPT.get("iy", 25 if not TT else NS - TT - 1)
    for i in range(NS - TT):
        sl = i % DH
        a.wait(f"H{i}")
        if i >= NP:
            a("s_waitcnt lgkmcnt(0)")
        hl = hload(i - 1 + DH) if 1 <= i and i - 1 + DH < NS else []
        fill = [(trd(i + 1) if NP <= i + 1 < NS else []) + hl[:3], hl[3:], wload(N2 + i) if N2 + i < NS else [], []]
        if TT and i == NS - TT - 1:
            for j in range(NS - TT + 1, NS):
                fill[1 + (j & 1)] = fill[1 + (j & 1)] + trd(j)
        k = 0
        for t in range(2):
            for tt in range(2):
                c = "0" if i == 0 else v(acc(t, tt), 16)
                a(f"v_mfma_f32_32x32x16_bf16 {v(acc(t,tt),16)}, {v(wfrag(i)+4*t,4)}, {v(hb(i)+4*tt,4)}, {c}")
                a.ext(fill[k])
                k += 1
        if i in (0, 3, 7, 11, 15, 19, 23, 27):
            a.ext(bstamp(3, 2 + (0, 3, 7, 11, 15, 19, 23, 27).index(i)))
        if i == IF:
            a.ext(fl_ld)
            a.tag("F")
        if i == IY:
            a.wait("F")
            a.ext(yloads())
    def pw(k):
        return [f"ds_write_b128 v{VW1}, {v(ACC+16*k+4*g,4)} offset:{k*4096+g*1024}" for g in range(4)]

    if TT:
        a.wait(f"H{NS-1}")
        a("s_waitcnt lgkmcnt(0)")
        order = (1, 2, 3, 0)
        for n_, k in enumerate(order):
            t, tt = k & 1, k >> 1
            w = pw(order[n_ - 2]) if n_ >= 2 else []
            for m_, i in enumerate(range(NS - TT, NS)):
                a(f"v_mfma_f32_32x32x16_bf16 {v(acc(t,tt),16)}, {v(wfrag(i)+4*t,4)}, {v(hb(i)+4*tt,4)}, {v(acc(t,tt),16)}")
                a.ext(w[2 * m_:2 * m_ + 2])
                if n_ >= 1:
                    a("s_nop 3")
    a.ext(stamp(9))
    a.ext(bstamp(7, 1))
    if TT:
        a.ext(pw(3))
    a.ext(chk)
    a("s_cbranch_scc1 PY_DONE")
    a.ext(spin("PY", fl_ld, chk))
    a.ext([("NOCOUNT", x) if is_vmem(x) else x for x in yloads()])
    a("PY_DONE:")
    a.ext(bstamp(7, 2))
    a("s_nop 5")
    for k in range(1, 4):
        if not TT:
            a.ext(pw(k))
    a.ext(bstamp(7, 3))
    X1, Y1 = HB, HB + 16
    OST = {0: "", 1: " sc1", 2: " nt", 3: " sc0 sc1"}[OPT.get("ost", 0)]
    a(f"""
    v_mov_b32 v5, 0xffff0000
    s_waitcnt vmcnt(0)
    ds_write_b128 v{VYW}, {v(YR,4)} offset:16384
    ds_write_b128 v{VYW}, {v(YR+4,4)} offset:17408
    """)
    a.ext(bstamp(7, 4))
    a("s_waitcnt lgkmcnt(0)")
    a.ext(bstamp(7, 5))
    a("s_barrier")
    a.ext(bstamp(7, 6))
    PB = 16
    a(f"ds_read_b32 v{EG}, v{VG}")
    for q in range(4):
        a(f"ds_read_b64_tr_b16 {v(YT+2*q,2)}, v{VYT} offset:{16384+q*512}")
    for k, base in ((1, VR1), (2, VW2), (3, VW3)):
        for g in range(4):
            a(f"ds_read_b128 {v(PB+16*(k-1)+4*g,4)}, v{base} offset:{k*4096+g*1024}")
    a("s_waitcnt lgkmcnt(12)")
    for i in range(8):
        a(f"""
        v_lshlrev_b32 v{Y1+2*i}, 16, v{YT+i}
        v_and_b32 v{Y1+2*i+1}, v5, v{YT+i}
        """)
    a("s_waitcnt lgkmcnt(8)")
    for i in range(0, 16, 2):
        a(f"v_pk_add_f32 {v(ACC+i,2)}, {v(ACC+i,2)}, {v(PB+i,2)}")
    a("s_waitcnt lgkmcnt(0)")
    a.ext(bstamp(7, 7))
    for i in range(0, 16, 2):
        a(f"v_pk_add_f32 {v(PB+16+i,2)}, {v(PB+16+i,2)}, {v(PB+32+i,2)}")
    for i in range(0, 16, 2):
        a(f"v_pk_add_f32 {v(ACC+i,2)}, {v(ACC+i,2)}, {v(PB+16+i,2)}")
    for i in range(0, 16, 2):
        a(f"v_pk_add_f32 {v(Y1+i,2)}, {v(Y1+i,2)}, {v(ACC+i,2)} neg_lo:[0,1] neg_hi:[0,1]")
    for i in range(0, 16, 2):
        a(f"v_pk_fma_f32 {v(ACC+i,2)}, {v(Y1+i,2)}, {v(EG,2)}, {v(ACC+i,2)} op_sel_hi:[1,0,1]")
    for i in range(8):
        a(f"v_cvt_pk_bf16_f32 v{X1+i}, v{ACC+2*i}, v{ACC+2*i+1}")
    a(f"""
    buffer_store_dwordx4 {v(X1,4)}, v{VEP}, {sr(SRD_OUT)}, 0 offen{OST}
    buffer_store_dwordx4 {v(X1+4,4)}, v{VEP}, {sr(SRD_OUT)}, 0 offen offset:16{OST}
    """)
    a.ext(stamp_end())
    a0.ext(resolve_vm(a.L))


def kwave(gemm_wg):
    sfx = "G" if gemm_wg else "S"
    ra = RA(2, 256)
    pre = Asm()
    main = Asm()
    ph2 = Asm()
    a = pre
    a(f"""
    s_setprio {OPT.get("kprio", 0)}
    s_lshl_b32 s70, s68, 13
    s_add_u32 s70, s70, {KG_BASE}
    """)
    t0 = ra(); t1 = ra(); t2 = ra(); t3 = ra()
    PR = ra(7)
    DV = ra()
    assert PR == K_PR
    if gemm_wg:
        a(f"""
        s_cmp_lg_u32 s69, 0
        s_cbranch_scc1 K{sfx}_NOTAG
        s_memrealtime s[72:73]
        v_mov_b32 v{t0}, 0
        s_waitcnt lgkmcnt(0)
        s_or_b32 s72, s72, 1
        v_mov_b32 v{t1}, s72
        s_mov_b64 exec, 1
        global_store_dword v{t0}, v{t1}, s[{S_DBG}:{S_DBG+1}] sc1
        s_mov_b64 exec, -1
        K{sfx}_NOTAG:
        """)

    WR = ra(8)
    RD = ra(2)
    a(f"""
    v_lshrrev_b32 v{t0}, 1, v0
    v_and_b32 v{t1}, 7, v{t0}
    v_lshlrev_b32 v{t0}, 8, v{t0}
    v_and_b32 v{t2}, 1, v0
    v_lshl_add_u32 v{t0}, v{t2}, 3, v{t0}
    v_add_u32 v{t0}, s70, v{t0}
    """)
    for b in range(8):
        a(f"""
        v_xor_b32 v{t2}, {b}, v{t1}
        v_lshl_add_u32 v{WR+b}, v{t2}, 4, v{t0}
        """)
    a(f"""
    v_and_b32 v{t0}, 15, v0
    v_lshrrev_b32 v{t1}, 4, v0
    """)
    for p in range(2):
        a(f"""
        v_add_u32 v{t2}, {4*p}, v{t1}
        v_xor_b32 v{t3}, v{t2}, v{t0}
        v_lshlrev_b32 v{t3}, 4, v{t3}
        v_lshl_add_u32 v{t3}, v{t2}, 8, v{t3}
        v_add_u32 v{RD+p}, s70, v{t3}
        """)
    TA0 = ra(); TA1 = ra(); TA2 = ra(); TA3 = ra()
    LP = ra(12)
    a(f"""
    v_and_b32 v{t2}, 1, v{t1}
    v_lshrrev_b32 v{t3}, 1, v{t1}
    v_lshlrev_b32 v{TA0}, 5, v{t0}
    v_lshl_add_u32 v{TA0}, v{t2}, 4, v{TA0}
    v_lshl_add_u32 v{TA0}, v{t3}, 9, v{TA0}
    v_lshrrev_b32 v{LP}, 2, v{TA0}
    v_cvt_f32_u32 v{LP}, v{LP}
    v_add_u32 v{TA0}, s70, v{TA0}
    v_add_f32 v{LP+1}, 1.0, v{LP}
    v_add_f32 v{LP+2}, 2.0, v{LP}
    v_add_f32 v{LP+3}, 2.0, v{LP+1}
    v_cmp_gt_u32 vcc, 2, v{t1}
    v_lshlrev_b32 v{TA1}, 4, v{t0}
    v_lshlrev_b32 v{TA2}, 3, v{t0}
    v_cndmask_b32 v{TA1}, v{TA2}, v{TA1}, vcc
    v_lshl_add_u32 v{TA1}, v{t1}, 8, v{TA1}
    v_add_u32 v{TA1}, s70, v{TA1}
    v_add_u32 v{TA1}, 1024, v{TA1}
    v_mov_b32 v{TA2}, 128
    v_cndmask_b32 v{TA2}, v{TA2}, 8, vcc
    v_add_u32 v{TA2}, v{TA2}, v{TA1}
    v_lshlrev_b32 v{TA3}, 2, v{t0}
    v_lshl_add_u32 v{TA3}, v{t1}, 8, v{TA3}
    v_add_u32 v{TA3}, s70, v{TA3}
    """)
    a(f"""
    v_lshlrev_b32 v{t2}, 7, v{t1}
    v_add_u32 v{t2}, 256, v{t2}
    v_lshlrev_b32 v{t3}, 8, v{t1}
    v_cndmask_b32 v{t2}, v{t3}, v{t2}, vcc
    v_lshl_add_u32 v{t2}, v{t0}, 3, v{t2}
    v_cvt_f32_u32 v{LP+4}, v{t2}
    v_mov_b32 v{t2}, 4.0
    v_cndmask_b32 v{t2}, v{t2}, 2.0, vcc
    v_mov_b32 v{t3}, {f32(128.0)}
    v_cndmask_b32 v{t3}, v{t3}, 4.0, vcc
    v_add_f32 v{LP+5}, v{LP+4}, v{t2}
    v_add_f32 v{LP+6}, v{LP+4}, v{t3}
    v_add_f32 v{LP+7}, v{LP+6}, v{t2}
    v_lshlrev_b32 v{t2}, 9, v{t1}
    v_lshl_add_u32 v{t2}, v{t0}, 3, v{t2}
    v_add_u32 v{t2}, 1024, v{t2}
    v_cvt_f32_u32 v{LP+8}, v{t2}
    v_add_f32 v{LP+9}, {f32(128.0)}, v{LP+8}
    v_add_f32 v{LP+10}, {f32(256.0)}, v{LP+8}
    v_add_f32 v{LP+11}, {f32(384.0)}, v{LP+8}
    """)
    EX = ra(10)
    a(f"""
    s_sub_u32 s72, s70, {4*17024}
    v_lshlrev_b32 v{t0}, 3, v0
    v_cvt_f32_u32 v{t1}, v{t0}
    v_cmp_gt_u32 vcc, 16, v0
    v_add_u32 v{EX+8}, s70, v{t0}
    v_lshlrev_b32 v{t0}, 2, v{t0}
    v_add_u32 v{t0}, s70, v{t0}
    v_lshlrev_b32 v{EX+9}, 2, v0
    v_add_u32 v{EX+9}, s70, v{EX+9}
    v_add_u32 v{EX+9}, 2048, v{EX+9}
    """)
    for kk in range(4):
        e0, e1 = EX + 2 * kk, EX + 2 * kk + 1
        a(f"""
        v_add_f32 v{t2}, 1.0, v{t1}
        v_cvt_pk_bf16_f32 v{t3}, v{t1}, v{t2}
        v_add_f32 v{t1}, 2.0, v{t1}
        v_and_b32 v{e0}, 0xffff, v{t3}
        v_lshrrev_b32 v{e1}, 16, v{t3}
        v_lshl_add_u32 v{e0}, v{e0}, 2, s72
        v_lshl_add_u32 v{e1}, v{e1}, 2, s72
        v_add_u32 v{t2}, {8*kk}, v{t0}
        v_add_u32 v{t3}, {8*kk+4}, v{t0}
        v_cndmask_b32 v{e0}, v{e0}, v{t2}, vcc
        v_cndmask_b32 v{e1}, v{e1}, v{t3}, vcc
        """)

    if gemm_wg:
        a.ext(kparam_loads())
    srd(a, SRD_WS, S_WS, WS_BYTES)
    a = main
    a("s_waitcnt vmcnt(0)")
    MASK = ra()
    DT = ra()
    PP = ra(12)
    a(f"""
    v_mov_b32 v{MASK}, 0xffff0000
    v_cmp_eq_u32 vcc, 0, v0
    v_lshlrev_b32 v{DV}, 16, v{DV}
    s_nop 0
    v_cndmask_b32 v{DV}, 0, v{DV}, vcc
    """)
    for i in range(6):
        a(f"v_lshlrev_b32 v{PP+2*i}, 16, v{PR+i}")
        a(f"v_and_b32 v{PP+2*i+1}, v{MASK}, v{PR+i}")
    if OPT.get("tagp") == 1:
        a(f"v_mov_b32 v{PR}, 0")
        a(nonce_ld(PR + 1, PR))
    x = PR + 6
    a(f"""
    v_lshlrev_b32 v{x}, 16, v{x}
    v_mul_f32 v{t0}, {f32(LOG2E_HI)}, v{x}
    s_mov_b32 s72, {f32(LOG2E_HI)}
    v_fma_f32 v{t1}, v{x}, s72, -v{t0}
    v_fmac_f32 v{t1}, {f32(LOG2E_LO)}, v{x}
    v_exp_f32 v{t0}, v{t0}
    v_mul_f32 v{t1}, {f32(LN2)}, v{t1}
    v_fmac_f32 v{t0}, v{t0}, v{t1}
    v_cvt_pk_bf16_f32 v{t0}, v{t0}, v{t0}
    v_lshlrev_b32 v{DT}, 16, v{t0}
    """)
    A2, TH, Br, Bi, Cr, Ci = (PP + 2 * i for i in range(6))
    for m in range(2):
        a(f"""
        v_mul_f32 v{A2+m}, v{DT}, v{A2+m}
        v_mul_f32 v{TH+m}, v{DT}, v{TH+m}
        v_mul_f32 v{Br+m}, v{DT}, v{Br+m}
        v_mul_f32 v{Bi+m}, v{DT}, v{Bi+m}
        v_mul_f32 v{A2+m}, {f32(LOG2E)}, v{A2+m}
        v_mul_f32 v{TH+m}, {f32(INV2PI)}, v{TH+m}
        """)
    W0 = ra(4); W1 = ra(4)
    for m in range(2):
        a(f"""
        v_mul_f32 v{W0+2*m}, v{Cr+m}, v{Br+m}
        v_mul_f32 v{W0+2*m+1}, v{Cr+m}, v{Bi+m}
        v_fma_f32 v{W0+2*m}, -v{Ci+m}, v{Bi+m}, v{W0+2*m}
        v_fmac_f32 v{W0+2*m+1}, v{Ci+m}, v{Br+m}
        v_sub_f32 v{W0+2*m+1}, 0, v{W0+2*m+1}
        """)
    SIG = ra(); WM = ra(); CE = ra()
    a(f"""
    v_max_f32 v{SIG}, v{A2}, v{A2+1}
    v_max3_f32 v{WM}, |v{W0}|, |v{W0+1}|, |v{W0+2}|
    v_max_f32 v{WM}, |v{W0+3}|, v{WM}
    s_nop 1
    """)
    for ctl in ("quad_perm:[1,0,3,2]", "quad_perm:[2,3,0,1]", "row_half_mirror", "row_mirror"):
        a(f"""
        v_max_f32_dpp v{SIG}, v{SIG}, v{SIG} {ctl} row_mask:0xf bank_mask:0xf
        v_max_f32_dpp v{WM}, v{WM}, v{WM} {ctl} row_mask:0xf bank_mask:0xf
        s_nop 0
        """)
    a(f"""
    v_readlane_b32 s72, v{SIG}, 0
    v_readlane_b32 s73, v{SIG}, 16
    v_readlane_b32 s74, v{SIG}, 32
    v_readlane_b32 s75, v{SIG}, 48
    v_readlane_b32 s6, v{WM}, 0
    v_readlane_b32 s7, v{WM}, 16
    v_readlane_b32 s8, v{WM}, 32
    v_readlane_b32 s9, v{WM}, 48
    v_max_f32 v{SIG}, s72, v{SIG}
    v_max_f32 v{SIG}, s73, v{SIG}
    v_max_f32 v{SIG}, s74, v{SIG}
    v_max_f32 v{SIG}, s75, v{SIG}
    v_max_f32 v{WM}, s6, v{WM}
    v_max_f32 v{WM}, s7, v{WM}
    v_max_f32 v{WM}, s8, v{WM}
    v_max_f32 v{WM}, s9, v{WM}
    v_sub_f32 v{A2}, v{A2}, v{SIG}
    v_sub_f32 v{A2+1}, v{A2+1}, v{SIG}
    v_frexp_exp_i32_f32 v{CE}, v{WM}
    v_sub_u32 v{t0}, 14, v{CE}
    v_subrev_u32 v{CE}, 29, v{CE}
    """)
    for i in range(4):
        a(f"v_ldexp_f32 v{W0+i}, v{W0+i}, v{t0}")

    def cexp(l):
        r = ra(6)
        for m in range(2):
            a(f"""
            v_mul_f32 v{t0}, {f32(float(l))}, v{A2+m}
            v_mul_f32 v{t1}, {f32(float(l))}, v{TH+m}
            v_exp_f32 v{t0}, v{t0}
            v_fract_f32 v{t1}, v{t1}
            v_cos_f32 v{t2}, v{t1}
            v_sin_f32 v{t3}, v{t1}
            s_nop 0
            v_mul_f32 v{r+2*m}, v{t0}, v{t2}
            v_mul_f32 v{r+2*m+1}, v{t0}, v{t3}
            v_sub_f32 v{r+4+m}, 0, v{r+2*m+1}
            """)
        return r

    def cmul(d, x_, b, conj=False):
        for m in range(2):
            br, bi, nbi = b + 2 * m, b + 2 * m + 1, b + 4 + m
            if conj:
                bi, nbi = nbi, bi
            a(f"""
            v_mul_f32 v{d+2*m}, v{x_+2*m}, v{br}
            v_mul_f32 v{d+2*m+1}, v{x_+2*m}, v{bi}
            v_fmac_f32 v{d+2*m}, v{x_+2*m+1}, v{nbi}
            v_fmac_f32 v{d+2*m+1}, v{x_+2*m+1}, v{br}
            """)

    def neg(b):
        for m in range(2):
            a(f"v_sub_f32 v{b+4+m}, 0, v{b+2*m+1}")

    def scale(d, x_):
        for i in range(4):
            a(f"v_mul_f32 v{d+i}, {f32(32768.0)}, v{x_+i}")

    VB = [ra(32, 4), ra(32, 4), ra(32, 4), ra(18, 4)]
    CH0 = ra(0, 4)

    def put(batch, row, r):
        h = VB[batch] + 2 * row
        if r is None:
            a(f"v_mov_b32 v{h}, 0x7800\nv_mov_b32 v{h+1}, 0x7800")
        else:
            a(f"""
            v_cvt_pk_f16_f32 v{h}, v{r}, v{r+1}
            v_cvt_pk_f16_f32 v{h+1}, v{r+2}, v{r+3}
            """)

    E8 = cexp(8)
    cur, nxt = W0, W1
    for c in range(16):
        if c < 15:
            cmul(nxt, cur, E8, conj=True)
        put(0, c, cur)
        cur, nxt = nxt, cur
    if OPT.get("tagp") == 3:
        a(f"v_mov_b32 v{PR}, 0")
        a(nonce_ld(PR + 1, PR))
    E1 = cexp(1)
    Q1 = cexp(128)
    Q8 = cexp(1024)
    P = {}
    P[1] = ra(4)
    scale(P[1], E1)
    for j in range(2, 8):
        P[j] = ra(6 if j == 4 else 4)
        cmul(P[j], P[j - 1], E1)
    put(1, 0, None)
    for j in range(1, 8):
        put(1, j, P[j])
    scale(W0, Q1)
    put(1, 8, W0)
    for j in range(1, 8):
        cmul(W0, P[j], Q1)
        put(1, 8 + j, W0)
    Q = {1: Q1, 8: Q8}
    for j in range(2, 8):
        Q[j] = {2: E1, 3: PP + 4}[j] if j < 4 else P[2 * (j - 4) + 1]
        cmul(Q[j], Q[j - 1], Q1)
    neg(P[4]); neg(Q[2]); neg(Q[3])
    for qi, j in enumerate((2, 3)):
        scale(W0, Q[j])
        put(2, 4 * qi, W0)
        for r in range(1, 4):
            cmul(W0, P[2 * r], Q[j])
            put(2, 4 * qi + r, W0)
    for aa in range(4):
        scale(W0, Q[4 + aa])
        put(2, 8 + 2 * aa, W0)
        cmul(W0, Q[4 + aa], P[4])
        put(2, 8 + 2 * aa + 1, W0)
    if OPT.get("tagp", 0) == 0:
        a(f"v_mov_b32 v{PR}, 0")
        a(nonce_ld(PR + 1, PR))
    elif OPT.get("tagp") == 2:
        a(f"v_mov_b32 v{PR}, 0")
        a(nonce_ld(PR + 1, PR).replace(" sc1", ""))
    QS = E8
    scale(QS, Q8)
    neg(QS)
    put(3, 0, QS)
    for j in range(1, 8):
        cmul(W0, Q[j], QS)
        put(3, j, W0)
    cmul(W0, Q8, QS)
    put(3, 8, W0)
    for i in range(12):
        a(f"v_mul_f32 v{LP+i}, v{SIG}, v{LP+i}")
    for i in range(12):
        a(f"v_exp_f32 v{LP+i}, v{LP+i}")

    a = ph2
    YF = CH0
    AC = CH0 + 32
    assert AC + 12 <= ra.p

    def wr(batch, nrows):
        for row in range(nrows):
            a(f"ds_write_b64 v{WR+(row&7)}, {v(VB[batch]+2*row,2)} offset:{(row>>3)*128}")

    def fetch(F):
        for ks in range(8):
            a(f"ds_read_b128 {v(F+4*ks,4)}, v{RD+(ks&1)} offset:{(ks>>1)*2048}")

    def mfmas(tile, XF):
        for ks in range(8):
            c = "0" if ks == 0 else v(AC + 4 * tile, 4)
            a(f"v_mfma_f32_16x16x32_f16 {v(AC+4*tile,4)}, {v(XF+4*ks,4)}, {v(YF+4*ks,4)}, {c}")

    a("s_waitcnt vmcnt(0)")
    ng = plain(nonce_get(f"NK{sfx}", PR + 1, PR))
    a(f"v_mov_b32 v{t2}, {N_LDS}")
    a(f"ds_write_b32 v{t2}, v{PR+1}")
    wr(0, 16); fetch(YF)
    wr(1, 16); fetch(VB[0])
    wr(2, 16); fetch(VB[1])
    a("s_waitcnt lgkmcnt(15)")
    mf0 = len(a.L)
    wr(3, 9); fetch(VB[2])
    tail = a.L[mf0:]
    del a.L[mf0:]
    m = Asm()
    sv, a = a, m
    mfmas(0, VB[0])
    a = sv
    for i in range(8):
        a.ext(tail[2 * i:2 * i + 2])
        a(m.L[i])
    a.ext(tail[16:])
    a("s_waitcnt lgkmcnt(15)")
    mfmas(1, VB[1])
    a("s_waitcnt lgkmcnt(0)")
    mfmas(2, VB[2])
    a("s_nop 3")
    for i in range(12):
        a(f"v_mul_f32 v{AC+i}, v{AC+i}, v{LP+i}")
    for i in range(12):
        a(f"v_ldexp_f32 v{AC+i}, v{AC+i}, v{CE}")
    a(f"v_add_f32 v{AC}, v{AC}, v{DV}")
    a(f"ds_write_b128 v{TA0}, {v(AC,4)}")
    a(f"ds_write_b64 v{TA1}, {v(AC+4,2)}")
    a(f"ds_write_b64 v{TA2}, {v(AC+6,2)}")
    for r in range(4):
        a(f"ds_write_b32 v{TA3}, v{AC+8+r} offset:{2048+64*r}")
    G0 = VB[0]
    OUT = VB[1]
    for i in range(8):
        a(f"ds_read_b32 v{G0+i}, v{EX+i}")
    a(f"""
    ds_read_b64 {v(G0+8,2)}, v{EX+8} offset:1536
    ds_read_b32 v{G0+10}, v{EX+8} offset:1544
    ds_read2_b32 {v(G0+12,2)}, v{EX+9} offset0:0 offset1:1
    ds_read2_b32 {v(G0+14,2)}, v{EX+9} offset0:64 offset1:65
    v_lshlrev_b32 v{t0}, 4, v0
    v_add_u32 v{t0}, s70, v{t0}
    v_and_b32 v{t1}, 3, v0
    v_lshlrev_b32 v{t1}, 4, v{t1}
    v_add_u32 v{t1}, s70, v{t1}
    v_mov_b32 v{OUT+16}, 0
    v_mov_b32 v{OUT+17}, 0
    v_mov_b32 v{OUT+18}, 0
    v_mov_b32 v{OUT+19}, 0
    s_mov_b32 s72, 0xaaaaaaaa
    s_mov_b32 s73, 0xaaaaaaaa
    ds_write_b128 v{t1}, {v(OUT+16,4)} offset:{KARR}
    s_waitcnt lgkmcnt(0)
    """)
    for k in range(4):
        a(f"v_cvt_pk_bf16_f32 v{OUT+k}, v{G0+2*k}, v{G0+2*k+1}")
    a(f"""
    v_cvt_pk_bf16_f32 v{OUT+4}, v{G0+8}, v{G0+8}
    v_cvt_pk_bf16_f32 v{OUT+5}, v{G0+8}, v{G0+9}
    v_cvt_pk_bf16_f32 v{OUT+6}, v{G0+9}, v{G0+9}
    v_cvt_pk_bf16_f32 v{OUT+7}, v{G0+10}, v{G0+10}
    """)
    for it in (2, 3):
        T0, T1 = G0 + 8 + 2 * it, G0 + 9 + 2 * it
        o = OUT + 4 * it
        a(f"""
        v_cndmask_b32 v{t2}, v{T0}, v{T1}, s[72:73]
        v_cvt_pk_bf16_f32 v{o}, v{T0}, v{T0}
        v_cvt_pk_bf16_f32 v{o+1}, v{T0}, v{T0}
        v_cvt_pk_bf16_f32 v{o+2}, v{t2}, v{T1}
        v_cvt_pk_bf16_f32 v{o+3}, v{T1}, v{T1}
        """)
    a(f"v_mov_b32 v{t2}, 0")
    for it in range(4):
        a(f"ds_write_b128 v{t0}, {v(OUT+4*it,4)} offset:{KARR+64+1024*it}")
    if OPT.get("dbgk"):
        a(f"""
        s_lshl_b32 s72, s69, 12
        s_add_u32 s72, s72, {KX_OFF}
        v_lshlrev_b32 v{t0}, 4, v0
        """)
        for it in range(4):
            a(f"buffer_store_dwordx4 {v(OUT+4*it,4)}, v{t0}, {sr(SRD_WS)}, s72 offen offset:{1024*it}")
    a("s_waitcnt vmcnt(0) lgkmcnt(0)")
    ph2.L[1:1] = ["\n    ".join(ng)]

    out = list(pre.L)
    out.extend(stamp(1))
    kx = OPT.get("kx", 0)
    if kx == 9:
        main.L = [x for x in main.L if not x.startswith(("v_mul_f32", "v_fmac", "v_cvt_pk_f16"))]
    if kx == 1:
        ph2.L = []
    elif kx == 2:
        ph2.L = [x for x in ph2.L if not x.startswith("v_mfma")]
    elif kx == 3:
        ph2.L = [x for x in ph2.L if not x.startswith("ds_write")]
    elif kx == 4:
        ph2.L = [x for x in ph2.L if not x.startswith("ds_read")]
    elif kx == 5:
        L2 = []
        for x in ph2.L:
            L2.append(x)
            if x.startswith("ds_write_b64"):
                L2.append("s_nop 3")
        ph2.L = L2
    if gemm_wg:
        per = OPT.get("kper", 132)
        first = OPT.get("kfirst", 0)
        p2a = OPT.get("kp2a", 48)
        p2b = OPT.get("kp2b", 100)
        pos = min(first, len(main.L))
        out.extend(main.L[:pos])
        for sidx in range(9):
            out.extend(bstamp(2, 1 + sidx))
            out.append("s_barrier")
            if sidx < 6:
                end = len(main.L) if sidx == 5 else min(pos + per, len(main.L))
                out.extend(main.L[pos:end])
                pos = end
            elif sidx == 6:
                out.extend(ph2.L[:p2a])
            elif sidx == 7:
                out.extend(ph2.L[p2a:p2b])
            else:
                out.extend(ph2.L[p2b:])
        out.extend(stamp(2))
    else:
        ks1 = OPT.get("ks1", 250)
        out.extend(main.L[:ks1])
        out.append("s_barrier")
        out.extend(main.L[ks1:])
        out.extend(ph2.L)
        out.extend(stamp(2))
    out.append("s_mov_b32 s6, s68")
    out.append("s_branch L_CONVB")
    return out


def fu_code(vaddr, vtmp, vdst, sd):
    setup = [f"s_lshr_b32 s16, s{sd}, 7", "s_lshl_b32 s16, s16, 7", f"s_lshr_b32 s17, s{sd}, 3", "s_and_b32 s17, s17, 8",
             "s_add_u32 s16, s16, s17", f"s_add_u32 s16, s16, {FU_OFF}",
             f"v_and_b32 v{vaddr}, 7, v0", f"v_lshlrev_b32 v{vaddr}, 9, v{vaddr}"]
    ld = [f"buffer_load_dwordx2 v[{vdst}:{vdst+1}], v{vaddr}, {sr(SRD_WS)}, s16 offen sc1"]
    chk = [f"v_cmp_eq_u32 vcc, s{S_NONCE}, v{vdst}", f"v_cmp_eq_u32 s[50:51], s{S_NONCE}, v{vdst+1}", "s_nop 3",
           "s_and_b64 vcc, vcc, s[50:51]", "s_cmp_eq_u64 vcc, exec"]
    return setup, ld, chk


def u_dma(vl16, sd):
    L = [f"s_mul_i32 s52, s6, {USZ}", f"s_mul_i32 s53, s{sd}, {DP}", f"s_add_u32 s53, s53, {UT_OFF}"]
    for r in range(4):
        L += [f"s_add_u32 m0, s52, {U_BASE + r*UPITCH + 112}", "s_nop 0",
              f"buffer_load_dwordx4 v{vl16}, {sr(SRD_WS)}, s53 offen sc1 lds", "s_add_u32 s53, s53, 1024"]
    return L


def lwave(gemm_wg):
    sfx = "G" if gemm_wg else "S"
    a = Asm()
    XV, WV, VL, VC = 8, 12, 2, 16
    t0, t1, t2 = 3, 4, 5
    DUM = 24
    ROT = OPT.get("rot", 0)
    FL8 = OPT.get("fl8", 1)
    SW = 12
    a("s_setprio 3")

    def kofs(st):
        if not ROT:
            return []
        return [f"s_add_u32 s18, s{S_PHI}, {st}", "s_and_b32 s18, s18, 7", f"s_mul_i32 s19, s18, {64*3584}",
                "s_lshl_b32 s18, s18, 7"]

    def grp(st, g):
        sl = st % 3
        if g in (1, 5):
            j = 0 if g == 1 else 1
            L = [f"s_add_u32 m0, s{10+j}, {sl*SLOT}", f"s_add_u32 s22, s{8+j}, {'s18' if ROT else st*128}"]
            L += [f"buffer_load_dwordx4 v{XV+i}, {sr(SRD_X)}, s22 offen offset:{1024*i} lds" for i in range(4)]
        else:
            j = 0 if g == 0 else g - 1
            L = [f"s_add_u32 m0, s{72+j}, {sl*SLOT}", f"s_add_u32 s22, s{68+j}, {'s19' if ROT else st*64*3584}"]
            L += [f"buffer_load_dwordx4 v{WV+i}, {sr(SW)}, s22 offen offset:{1024*i} lds" for i in range(4)]
        return L

    def pref(st):
        L = [f"s_add_u32 s22, s68, {st*64*3584}"]
        L += [f"buffer_load_dwordx4 {v(DUM+4*i,4)}, v{WV+i}, {sr(SW)}, s22 offen offset:{1024*i}" for i in range(4)]
        L += [f"s_add_u32 s22, s23, {st*128}"]
        L += [f"buffer_load_dwordx4 {v(DUM+16+4*i,4)}, v{XV+i}, {sr(SRD_X)}, s22 offen offset:{1024*i}" for i in range(2)]
        return L

    fu_setup, fu_ld, fu_chk = fu_code(t1, t2, VC, 7)

    def poll_setup():
        a(f"""
        s_lshl_b32 s7, s2, 1
        s_add_u32 s7, s7, s6
        v_lshlrev_b32 v{VL}, 4, v0
        s_mov_b32 s77, 0x100000
        v_mov_b32 v20, 0
        v_mov_b32 v21, 0
        v_mov_b32 v22, 0
        v_mov_b32 v23, 0
        """)
        a.ext(fu_setup)

    STG = 24
    assert STG + 16 * n1() <= 256

    def wd_setup():
        a(f"""
        v_lshrrev_b32 v20, 3, v0
        v_and_b32 v21, 7, v0
        v_lshrrev_b32 v22, 1, v20
        v_and_b32 v22, 1, v22
        v_lshlrev_b32 v22, 2, v22
        v_xor_b32 v21, v21, v22
        v_lshlrev_b32 v18, 10, v20
        v_lshl_add_u32 v18, v21, 4, v18
        v_add_u32 v19, 8192, v18
        """)
        a(cb64_scalar(17, 3))
        if OPT.get("fakecb") and not gemm_wg:
            a("s_xor_b32 s17, s17, 1")
        a(f"""
        s_lshl_b32 s17, s17, 7
        s_mul_i32 s3, s6, {3*28*16384}
        s_add_u32 s3, s3, s17
        s_sub_u32 s48, 2, s6
        s_lshl_b32 s49, s48, 15
        v_add_u32 v1, s49, v{VL}
        s_mul_i32 s48, s48, {28*16384}
        s_add_u32 s48, s48, s17
        s_mul_i32 s17, s6, {3*RING2}
        v_add_u32 v7, s17, v{VL}
        """)
        a(rot_scalar(76, 17))
        a("s_mov_b32 s49, s76")

    wpos = [0, 0]
    cur_sidx = [0]
    wwp = [0, 0]

    def wd_ld(g, n):
        sb, ss = ((3, 76), (48, 49))[g]
        for _ in range(n):
            i = wpos[g]
            if i >= n1():
                break
            wpos[g] += 1
            R = STG + 8 * (g * n1() + i)
            a(f"""
            s_lshl_b32 s22, s{ss}, 14
            s_add_u32 s22, s22, s{sb}
            buffer_load_dwordx4 {v(R,4)}, v18, {sr(SRD_WD)}, s22 offen
            s_add_u32 s{ss}, s{ss}, 1
            s_cmp_ge_u32 s{ss}, 28
            s_cselect_b32 s{ss}, 0, s{ss}
            buffer_load_dwordx4 {v(R+4,4)}, v19, {sr(SRD_WD)}, s22 offen
            """)
            a.tag(f"wd{g}_{i}")
            if gemm_wg and OPT.get("lthr") and cur_sidx[0] >= 6:
                a(f"s_waitcnt vmcnt({OPT['lthr']})")

    def wd_wr(g, n):
        for i in range(wwp[g], min(n1(), wwp[g] + n)):
            wwp[g] = i + 1
            R = STG + 8 * (g * n1() + i)
            a.wait(f"wd{g}_{i}")
            for k in range(2):
                a(f"ds_write_b128 v{(7, 1)[g]}, {v(R+4*k,4)} offset:{i*2048 + k*1024}")

    def wd_dma():
        a("s_waitcnt lgkmcnt(0)")
        for g in range(2):
            sb, ss = ((3, 76), (48, 49))[g]
            if g == 0:
                a(f"s_mul_i32 s17, s6, {3*RING2}")
            else:
                a("s_sub_u32 s17, 2, s6\ns_lshl_b32 s17, s17, 15")
            for i in range(n1(), n1x()):
                a(f"""
                s_lshl_b32 s22, s{ss}, 14
                s_add_u32 m0, s17, {i*2048}
                s_add_u32 s22, s22, s{sb}
                buffer_load_dwordx4 v18, {sr(SRD_WD)}, s22 offen lds
                s_add_u32 m0, s17, {i*2048+1024}
                s_add_u32 s{ss}, s{ss}, 1
                s_cmp_ge_u32 s{ss}, 28
                s_cselect_b32 s{ss}, 0, s{ss}
                buffer_load_dwordx4 v19, {sr(SRD_WD)}, s22 offen lds
                """)

    def u_load():
        a(f"""
        s_cselect_b32 s19, {0 if OPT.get("forceslow") else 1}, 0
        s_mul_i32 s18, s6, {USZ}
        s_add_u32 s18, s18, {U_BASE}
        v_mov_b32 v20, 0
        v_mov_b32 v21, 0
        v_mov_b32 v22, 0
        v_mov_b32 v23, 0
        v_and_b32 v{t2}, 7, v0
        v_lshrrev_b32 v6, 3, v0
        v_and_b32 v6, 3, v6
        v_min_u32 v{t2}, 6, v{t2}
        v_mul_u32_u24 v6, {UPITCH}, v6
        v_lshl_add_u32 v{t2}, v{t2}, 4, v6
        v_add_u32 v{t2}, s18, v{t2}
        ds_write_b128 v{t2}, v[20:23]
        s_lshl_b32 s18, s6, 2
        s_add_u32 s18, s18, {S_LDS}
        v_mov_b32 v{t2}, s18
        v_mov_b32 v6, s19
        ds_write_b32 v{t2}, v6
        s_cmp_eq_u32 s19, 0
        s_cbranch_scc1 NOU{sfx}
        """)
        a.ext([("NOCOUNT", x) if is_vmem(x) else x for x in u_dma(VL, 7)])
        a(f"NOU{sfx}:")

    if gemm_wg:
        def wgrp(j):
            a(f"""
            s_add_u32 s17, s18, {j}
            s_and_b32 s17, s17, 3
            s_mul_i32 s{68+j}, s17, {16*3584}
            s_add_u32 s{68+j}, s{68+j}, s23
            s_lshl_b32 s{72+j}, s17, 12
            s_add_u32 s{72+j}, s{72+j}, s16
            """)
        a(f"""
        v_lshrrev_b32 v{t0}, 4, v0
        v_and_b32 v{t1}, 15, v0
        s_mov_b32 s18, s68
        s_mov_b32 s19, s69
        v_lshlrev_b32 v{t2}, 2, v{t0}
        s_lshl_b32 s23, s{S_CB}, 8
        v_xor_b32 v{t1}, v{t1}, v{t2}
        s_lshl_b32 s16, s6, 14
        v_mul_u32_u24 v{t0}, 3584, v{t0}
        s_add_u32 s16, s16, 16384
        v_lshl_add_u32 v{WV}, v{t1}, 4, v{t0}
        s_mov_b32 s{SW+2}, {512*1792*2}
        s_mov_b32 s{SW+3}, 0x00020000
        """)
        for i in range(1, 4):
            a(f"v_add_u32 v{WV+i}, {(4*3584-1024)*i}, v{WV}")
        wgrp(0)
        a.ext(bstamp(6, 1))
        a(f"""
        s_cmp_eq_u32 s6, 0
        s_waitcnt lgkmcnt(0)
        s_cselect_b32 s{SW}, s{S_WG}, s{S_WU}
        s_cselect_b32 s{SW+1}, s{S_WG+1}, s{S_WU+1}
        s_and_b32 s{SW+1}, s{SW+1}, 0xffff
        """)
        assert not ROT
        a.ext(bstamp(6, 2))
        a.ext(grp(0, 0))
        wgrp(1)
        a.ext(grp(0, 2))
        wgrp(2)
        a.ext(grp(0, 3))
        wgrp(3)
        a.ext(grp(0, 4))
        a(f"""
        v_lshrrev_b32 v{t0}, 3, v0
        v_and_b32 v{t1}, 7, v0
        v_lshrrev_b32 v{t2}, 1, v{t0}
        v_xor_b32 v{t1}, v{t1}, v{t2}
        v_lshlrev_b32 v{t0}, 10, v{t0}
        """)
        for i in range(4):
            a(f"""
            v_xor_b32 v{t2}, {4*(i&1)}, v{t1}
            v_lshl_add_u32 v{XV+i}, v{t2}, 4, v{t0}
            v_add_u32 v{XV+i}, {7168*i}, v{XV+i}
            """)
        a(f"""
        s_and_b32 s17, s19, 1
        s_lshl_b32 s17, s17, 1
        s_add_u32 s17, s17, s6
        s_lshl_b32 s16, s{S_RB}, 17
        s_lshl_b32 s8, s17, 15
        s_add_u32 s8, s8, s16
        s_lshl_b32 s10, s17, 12
        s_xor_b32 s17, s17, 2
        s_lshl_b32 s9, s17, 15
        s_add_u32 s9, s9, s16
        s_lshl_b32 s11, s17, 12
        s_mov_b32 s{SRD_X}, s{S_U}
        s_and_b32 s{SRD_X+1}, s{S_U+1}, 0xffff
        s_mov_b32 s{SRD_X+2}, {2048*512*2}
        s_mov_b32 s{SRD_X+3}, 0x00020000
        """)
        a.ext(grp(0, 1))
        a.ext(grp(0, 5))
        a.tag("st0")
        a(f"""
        s_lshl_b32 s22, s19, 1
        s_add_u32 s22, s22, s6
        s_and_b32 s22, s22, 7
        s_lshl_b32 s23, s22, 14
        s_add_u32 s23, s23, s16
        """)
        tail = {3: "S5 R5", 4: "S6 R6", 5: "S7 R7"}
        scheds = [
            {-1: "S0 S1 S2 R0 P3 P4", 0: "R1 P5 P6", 1: "R2 P7 S3", 2: "R3 S4 R4"},
            {-1: "S0 S1 S2 R0 R1", 0: "P3 P4 R2", 1: "P5 P6 P7 S3 R3", 2: "S4 R4"},
            {-1: "S0 R0 S1 R1", 0: "S2 R2", 1: "S3 R3", 2: "S4 R4"},
            {-1: "S0 R0 S1", 0: "R1 S2", 1: "R2 S3", 2: "R3 S4 R4"},
            {-1: "S0 R0 S1 S2 P3", 0: "R1 P4 P5", 1: "R2 P6 P7 S3", 2: "R3 S4 R4"},
            {-1: "S0 R0 S1 S2", 0: "R1 R2", 1: "S3 R3", 2: "S4 R4"},
            {-1: "S0 R0 S1 S2", 0: "R1 R2", 1: "S3 R3 P5", 2: "S4 R4 P6 P7"},
            {-1: "S0 R0 S1 S2", 0: "R1 R2 P3", 1: "S3 R3 P4 P5", 2: "S4 R4 P6 P7"},
            {-1: "S0 R0 S1 R1", 0: "S2", 1: "R2 S3", 2: "R3 S4 R4"},
            {-1: "S0 R0 S1 R1", 0: "S2", 1: "R2 S3 R3", 2: "S4 R4"},
            {-1: "S0 R0 S1 S2", 0: "R1", 1: "R2 S3 R3", 2: "S4 R4"},
        ]
        sched = dict(scheds[OPT.get("lsched", 5)])
        sched.update(tail)
        MP = OPT.get("mp", 1)
        if "zp" in OPT:
            sched[OPT["zp"]] += " Z0"
        if "yp" in OPT:
            sched[OPT["yp"]] += " Y0"
        NPF = OPT.get("np", 0)
        if NPF >= -1:
            sched[NPF] += " N0"
        if MP >= 0:
            sched[MP] += " M0"

        def issue(k):
            for tok in sched.get(k, "").split():
                st = int(tok[1:])
                if tok[0] == "S":
                    a.ext(kofs(st) + grp(st, 0) + grp(st, 1))
                elif tok[0] == "R":
                    a.ext(kofs(st))
                    for g in (2, 5, 3, 4):
                        a.ext(grp(st, g))
                    a.tag(f"st{st}")
                elif tok[0] == "P":
                    assert not ROT
                    a.ext(pref(st))
                elif tok[0] in "ZY":
                    a(f"""
                    s_lshl_b32 s22, s{S_RB}, 1
                    s_add_u32 s22, s22, s6
                    s_mul_i32 s22, s22, 224
                    s_lshl_b32 s17, s{S_CB}, 3
                    s_add_u32 s22, s22, s17
                    s_lshl_b32 s22, s22, 10
                    """)
                    for tt in range(2):
                        for hh in range(2):
                            for i in range(4):
                                if tok[0] == "Z":
                                    a(f"buffer_store_dwordx4 v[20:23], v{VL}, {sr(SRD_WS)}, s22 offen offset:{1024*i} sc1")
                                else:
                                    a(f"buffer_load_dwordx4 {v(DUM+4*i,4)}, v{VL}, {sr(SRD_WS)}, s22 offen offset:{1024*i} sc1")
                            a(f"s_add_u32 s22, s22, {4096 if hh == 0 else 112*1024 - 4096}")
                elif tok[0] == "N":
                    a(f"""
                    s_mul_i32 s22, s{S_XCD}, 28
                    s_add_u32 s22, s22, s{S_IDX}
                    s_mul_i32 s22, s22, 5120
                    s_add_u32 s22, s22, {192*3584}
                    v_lshlrev_b32 v{VL}, 4, v0
                    s_add_u32 s17, s22, 4096
                    """)
                    for i in range(4):
                        a(f"buffer_load_dwordx4 {v(DUM+16+4*i,4)}, v{VL}, {sr(SW)}, s22 offen offset:{1024*i}")
                    a(f"buffer_load_dwordx4 {v(DUM+32,4)}, v{VL}, {sr(SW)}, s17 offen")
                elif tok[0] == "M":
                    a(f"""
                    s_mul_i32 s22, s{S_XCD}, 28
                    s_add_u32 s22, s22, s{S_IDX}
                    s_lshl_b32 s22, s22, 1
                    s_add_u32 s22, s22, s6
                    s_lshl_b32 s22, s22, 12
                    """)
                    for i in range(4):
                        a(f"buffer_load_dwordx4 {v(DUM+4*i,4)}, v{VL}, {sr(SRD_WD)}, s22 offen offset:{1024*i}")
        sched[-1] = sched[-1].replace("S0", "").replace("R0", "")
        issue(-1)
        a.ext(bstamp(6, 4))
        a.ext(stamp(1))
        srd(a, SRD_WS, S_WS, WS_BYTES)
        srd(a, SRD_WD, S_WD, 1792 * 512 * 2)
        poll_setup()
        for sidx in range(9):
            if sidx < 8:
                a.wait(f"st{sidx}")
            a.ext(bstamp(2, 1 + sidx))
            if sidx < 4:
                a.ext(bstamp(6, 5 + sidx))
            a("s_barrier")
            if sidx in (0, 3):
                a.ext(stamp(2 + (0, 3).index(sidx)))
            issue(sidx)
            cur_sidx[0] = sidx
            if sidx == 2:
                wd_setup()
            if sidx == 6:
                a(f"s_setprio {OPT.get('lprio', 1)}")
            if 2 <= sidx <= 7:
                n = OPT.get(f"w{sidx}", {2: 0, 3: 0, 4: 0, 5: 6, 6: 11, 7: 11}[sidx])
                k = min(n, n1() - wpos[0])
                wd_ld(0, k)
                wd_ld(1, n - k)
            if sidx == 7:
                a.ext(fu_ld)
                a.tag("fu")
            if sidx == 8:
                a.ext(stamp(4))
                a(f"v_mov_b32 v6, {N_LDS}\nds_read_b32 v6, v6")
                wd_ld(0, 28)
                wd_ld(1, 28)
                wd_wr(0, OPT.get("e8", 6))
                a("s_waitcnt vmcnt(0)")
                a.L.append(("VMRESET",))
                a(f"s_waitcnt lgkmcnt(0)\nv_readfirstlane_b32 s{S_NONCE}, v6\ns_nop 3")
                a.ext(fu_chk)
                u_load()
                wd_wr(0, 28)
                wd_wr(1, 28)
                wd_dma()
        a("s_waitcnt vmcnt(0) lgkmcnt(0)")
        a.ext(stamp(5))
    else:
        a("s_waitcnt lgkmcnt(0)")
        srd(a, SRD_WS, S_WS, WS_BYTES)
        srd(a, SRD_WD, S_WD, 1792 * 512 * 2)
        poll_setup()
        wd_setup()
        a(f"v_mov_b32 v{t0}, 0")
        a("s_barrier")
        thr = OPT.get("sthr", 4)
        if thr:
            for _ in range(thr):
                wd_ld(0, 2)
                a("s_waitcnt vmcnt(0)")
        wd_ld(0, 28)
        wd_ld(1, 28)
        a(nonce_ld(6, t0))
        a.ext(fu_ld)
        wd_wr(0, 28)
        a("s_waitcnt vmcnt(0)")
        a.L.append(("VMRESET",))
        a.ext(stamp(4))
        a.ext(nonce_get(f"NL{sfx}", 6, t0))
        a.ext(fu_chk)
        u_load()
        wd_wr(1, 28)
        wd_dma()
        a("s_waitcnt vmcnt(0) lgkmcnt(0)")
        a.ext(stamp(5))
    a("s_branch L_CONVA")
    return resolve_vm(a.L)


def conv(a0, partB):
    a = Asm()
    KA, UA, YA = 2, 3, 5
    BAL = OPT.get("bal", 0)
    if BAL:
        qs = outq = [2, 3, 4, 5] if partB else [0, 1, 6, 7]
        qsend, qrecv = (5, 2) if partB else (1, 6)
    else:
        qs, outq = ([5, 6, 7], [6, 7]) if partB else ([0, 1, 2, 3, 4, 5], [0, 1, 2, 3, 4, 5])
        qsend = qrecv = None
    a(f"""
    s_lshl_b32 s8, s6, 13
    s_add_u32 s8, s8, {KG_BASE + KARR + 32}
    s_mul_i32 s9, s6, {USZ}
    s_add_u32 s9, s9, {U_BASE + 16}
    v_lshrrev_b32 v6, 2, v0
    v_and_b32 v10, 7, v6
    v_and_b32 v6, 3, v6
    v_and_b32 v7, 3, v0
    v_lshrrev_b32 v8, 4, v0
    v_and_b32 v8, 1, v8
    v_lshrrev_b32 v9, 5, v0
    v_mul_u32_u24 v{UA}, {UPITCH}, v7
    v_sub_u32 v10, v10, v9
    v_lshl_add_u32 v{UA}, v10, 4, v{UA}
    v_add_u32 v{UA}, s9, v{UA}
    v_lshlrev_b32 v{KA}, 5, v8
    v_lshl_add_u32 v{KA}, v7, 3, v{KA}
    v_lshl_add_u32 v{KA}, v9, 6, v{KA}
    v_lshlrev_b32 v10, 3, v6
    v_sub_u32 v{KA}, v{KA}, v10
    v_add_u32 v{KA}, s8, v{KA}
    """)
    qmax = max(qs)
    nst = 4 * qmax + 4
    NU = 4
    UBUF = 8
    KT = 24
    ACC = KT + 4 * nst
    TMP = ACC + 16 * len(qs)
    assert TMP + 3 * len(qs) + 1 <= 256
    XR = TMP + 12
    XS_A, XR_A, XF = XR + 4, XR + 5, XR + 6

    def acc(q):
        return ACC + 16 * qs.index(q)

    need = {}
    for i in range(nst):
        for q in qs:
            s_ = 4 * q + 3 - i
            if s_ >= 0 and s_ not in need:
                need[s_] = i

    def rd(i):
        L = [f"ds_read_b128 {v(UBUF+4*(i%NU),4)}, v{UA} offset:{32*i}"]
        for s_ in sorted(s for s in need if need[s] == i):
            L += [f"ds_read_b64_tr_b16 {v(KT+4*s_,2)}, v{KA} offset:{128*s_+32}",
                  f"ds_read_b64_tr_b16 {v(KT+4*s_+2,2)}, v{KA} offset:{128*s_}"]
        L.append(("LTAG", f"R{i}"))
        return L

    PF = NU - 1
    a(f"""
    v_and_b32 v4, 7, v0
    v_lshrrev_b32 v{YA}, 3, v0
    v_lshlrev_b32 v{YA}, 4, v{YA}
    v_lshl_add_u32 v{YA}, v4, 7, v{YA}
    v_mov_b32 v6, 0
    v_mov_b32 v7, s{S_NONCE}
    s_mov_b32 s12, 0
    s_mov_b32 s13, 0x80000000
    s_mov_b32 s14, 0
    s_mov_b32 s15, 0xc0000000
    s_mov_b32 s16, 0
    s_mov_b32 s17, 0xe0000000
    s_lshl_b32 s7, s2, 1
    s_add_u32 s7, s7, s6
    s_mul_i32 s18, s7, {DP}
    s_add_u32 s18, s18, {Y_OFF}
    s_lshl_b32 s19, s2, 4
    s_add_u32 s19, s19, s6
    s_lshl_b32 s19, s19, 3
    s_add_u32 s19, s19, {FY_OFF + (4 if partB else 0)}
    """)
    a(f"s_setprio {OPT.get('cprio', 3)}")
    P = "B" if partB else "A"
    if BAL:
        a(f"""
        s_lshl_b32 s52, s6, 8
        v_max_u32 v{XS_A}, 60, v0
        v_lshlrev_b32 v{XS_A}, 4, v{XS_A}
        s_add_u32 s52, s52, {X_LDS - 960}
        v_add_u32 v{XS_A}, s52, v{XS_A}
        v_add_u32 v{XR_A}, {0 if partB else 128}, v{XS_A}
        v_add_u32 v{XS_A}, {128 if partB else 0}, v{XS_A}
        """)
    a(f"""
    s_lshl_b32 s52, s6, 2
    s_add_u32 s52, s52, {S_LDS}
    v_mov_b32 v4, s52
    """)
    a("s_barrier")
    a.ext(stamp(6))
    a("ds_read_b32 v4, v4")
    a.L.append(("LTAG", "ST"))
    a(f"CV{P}_GO:")
    a.ext(rd(0))
    a.L.append(("LWAIT", "ST"))
    a(f"""
    v_readfirstlane_b32 s52, v4
    s_nop 3
    s_cmp_eq_u32 s52, 0
    s_cbranch_scc1 CV{P}_SLOW
    """)
    a.ext(rd(1))

    def Y(q, g, rho):
        return acc(q) + 4 * g + rho

    dpp = "wave_ror:1 row_mask:0xf bank_mask:0xf"
    ctl = "row_mask:0xf bank_mask:0xf"

    def post(q):
        L = []
        Z = {}
        for g in (3, 2, 1, 0):
            for rho in (1, 2, 3):
                Z[g, rho] = TMP + 3 * qs.index(q) + rho - 1 if g == 3 else Y(q, g, rho)
                if g > 0:
                    prev = f"v{Y(q,g-1,rho)}"
                elif q == qrecv:
                    prev = f"v{XR+rho}"
                elif q > 0:
                    prev = f"v{Y(q-1,3,rho)}"
                else:
                    prev = "v6"
                L.append(f"v_cndmask_b32 v{Z[g,rho]}, v{Y(q,g,rho)}, {prev}, s[{10+2*rho}:{11+2*rho}]")
        for g in (3, 2, 1, 0):
            L.append(f"v_add_f32_dpp v{Z[g,2]}, v{Z[g,3]}, v{Z[g,2]} {dpp}")
        for g in (3, 2, 1, 0):
            L.append(f"v_add_f32_dpp v{Z[g,1]}, v{Z[g,2]}, v{Z[g,1]} {dpp}")
        for g in (3, 2, 1, 0):
            L.append(f"v_add_f32_dpp v{Y(q,g,0)}, v{Z[g,1]}, v{Y(q,g,0)} {dpp}")
        return L

    def stage(S_, D_, bit, stride):
        m = {0: 0xaaaaaaaa, 1: 0xcccccccc, 2: 0xf0f0f0f0}[bit]
        up = {0: "quad_perm:[1,0,3,2]", 1: "quad_perm:[2,3,0,1]", 2: "row_ror:12"}[bit]
        dn = {0: "quad_perm:[1,0,3,2]", 1: "quad_perm:[2,3,0,1]", 2: "row_ror:4"}[bit]
        L = [f"s_mov_b32 vcc_lo, {m:#x}", f"s_mov_b32 vcc_hi, {m:#x}"]
        idx = [i for i in range(len(S_)) if not (i // stride) & 1]
        L += [f"v_cndmask_b32_dpp v{D_[i+stride]}, v{S_[i]}, v{S_[i+stride]}, vcc {up} {ctl}" for i in idx]
        L += ["s_not_b64 vcc, vcc"]
        L += [f"v_cndmask_b32_dpp v{D_[i]}, v{S_[i+stride]}, v{S_[i]}, vcc {dn} {ctl}" for i in idx]
        return L

    def xpose(q):
        S0 = [Y(q - 1 + (g >> 2), g & 3, 0) for g in range(8)]
        free = [Y(qq, g, r) for qq in (q - 1, q) for g in range(3) for r in (1, 2, 3)]
        D0 = free[:8]
        S1 = free[8:12]
        D1 = free[12:16]
        D2 = [acc(q - 1) + i for i in range(4)]
        L = stage(S0, D0, 0, 1)
        L += [f"v_cvt_pk_bf16_f32 v{S1[g]}, v{D0[2*g]}, v{D0[2*g+1]}" for g in range(4)]
        L += stage(S1, D1, 1, 1)
        L += stage(D1, D2, 2, 2)
        L.append(f"buffer_store_dwordx4 {v(D2[0],4)}, v{YA}, {sr(SRD_WS)}, s18 offen offset:{(q-1)*512} sc1")
        return L

    def send(q):
        return ["\n    ".join(["s_mov_b32 exec_lo, 0", "s_mov_b32 exec_hi, 0xf0000000",
                               f"ds_write_b128 v{XS_A}, {v(Y(q,3,0),4)}", f"ds_write_b32 v{XS_A}, v7 offset:64",
                               "s_mov_b64 exec, -1"]), ("LCOUNT", 2)]

    xrd = [f"ds_read_b32 v{XF}, v{XR_A} offset:64", f"ds_read_b128 {v(XR,4)}, v{XR_A}"]

    def recv():
        L = ["s_mov_b32 s77, 0x1000000", f"XW{P}_TRY:"] + xrd + ["s_waitcnt lgkmcnt(0)", "s_sub_u32 s77, s77, 1",
             f"v_cmp_eq_u32 vcc, s{S_NONCE}, v{XF}", "s_cmp_eq_u32 s77, 0", f"s_cbranch_scc1 XW{P}_OK", "s_nop 1",
             "s_cmp_eq_u64 vcc, exec", f"s_cbranch_scc0 XW{P}_TRY", f"XW{P}_OK:"]
        return ["\n    ".join(L), ("LCOUNT", 2)]

    def finish(qq):
        L = []
        if qq == qsend:
            L += send(qq)
        if qq not in outq:
            return L
        if qq == qrecv:
            L += recv()
        L += post(qq)
        if outq.index(qq) & 1:
            L += xpose(qq)
        return L

    pend = []
    FILL = OPT.get("cfill", 4)
    since = {}
    issued = 2
    for i in range(nst):
        a.L.append(("LWAIT", f"R{i}"))
        rl = []
        while issued < nst and issued <= i + (2 if i < 2 else PF):
            rl += rd(issued)
            issued += 1
        act = [q for q in qs if 4 * q + 3 - i >= 0]
        per = -(-len(rl) // len(act))
        for q in act:
            s_ = 4 * q + 3 - i
            c = "0" if i == 0 else v(acc(q), 16)
            a(f"v_mfma_f32_32x32x16_bf16 {v(acc(q),16)}, {v(UBUF+4*(i%NU),4)}, {v(KT+4*s_,4)}, {c}")
            a.ext(rl[:per])
            rl = rl[per:]
            if s_ == 0:
                since[q] = len(a.L)
            for qq in list(since):
                if len([x for x in a.L[since[qq]:] if isinstance(x, str)]) >= 14:
                    if BAL and qq == 6:
                        continue
                    del since[qq]
                    pend += finish(qq)
            a.ext(pend[:FILL])
            pend = pend[FILL:]
    a.ext(stamp(7))
    a.ext(pend)
    a("s_nop 7\ns_nop 3")
    if BAL and not partB:
        a.ext(post(7))
        a.ext(recv())
        a.ext(post(6))
        a.ext(xpose(7))
    else:
        for qq in sorted(since):
            a.ext(finish(qq))
    a.ext(stamp(8))
    a(f"""
    s_waitcnt vmcnt(0)
    s_mov_b64 exec, 1
    buffer_store_dword v7, v6, {sr(SRD_WS)}, s19 offen sc1
    s_mov_b64 exec, -1
    """)
    if partB:
        E = 8
        a(f"""
        s_cmp_lg_u32 s6, 0
        s_cbranch_scc1 CV_NOGATE
        s_lshl_b32 s16, s{S_XCD}, 9
        s_add_u32 s16, s16, {FG_OFF}
        v_lshrrev_b32 v2, 2, v0
        v_and_b32 v3, 3, v0
        v_and_b32 v4, 3, v2
        v_lshlrev_b32 v4, 7, v4
        v_lshl_add_u32 v4, v3, 2, v4
        v_lshlrev_b32 v2, 2, v2
        v_lshl_add_u32 v2, v3, 11, v2
        s_mov_b32 s77, 0x100000
        """)
        a(rb64_scalar(17, 22))
        a(f"s_lshl_b32 s17, s17, 6\ns_add_u32 s17, s17, {GL_OFF}")
        a.ext(plain(spin("PG", [f"buffer_load_dword v5, v4, {sr(SRD_WS)}, s16 offen sc1"],
                         [f"v_cmp_eq_u32 vcc, s{S_NONCE}, v5", "s_nop 3", "s_cmp_eq_u64 vcc, exec"], 1)))
        for g in range(8):
            a(f"buffer_load_dword v{E+g}, v2, {sr(SRD_WS)}, s17 offen sc1")
            if g < 7:
                a("s_add_u32 s17, s17, 8192")
        a(f"""
        s_waitcnt vmcnt(0)
        v_add_f32 v{E}, v{E}, v{E+1}
        v_add_f32 v{E+2}, v{E+2}, v{E+3}
        v_add_f32 v{E+4}, v{E+4}, v{E+5}
        v_add_f32 v{E+6}, v{E+6}, v{E+7}
        v_add_f32 v{E}, v{E}, v{E+2}
        v_add_f32 v{E+4}, v{E+4}, v{E+6}
        v_add_f32 v{E}, v{E}, v{E+4}
        v_cvt_pk_bf16_f32 v{E}, v{E}, v{E}
        v_lshlrev_b32 v{E}, 16, v{E}
        v_mul_f32 v{E}, {f32(-LOG2E)}, v{E}
        v_exp_f32 v{E}, v{E}
        v_lshlrev_b32 v2, 2, v0
        v_add_f32 v{E}, 1.0, v{E}
        v_rcp_f32 v{E}, v{E}
        v_add_u32 v2, {G_LDS}, v2
        v_cvt_pk_bf16_f32 v{E}, v{E}, v{E}
        v_lshlrev_b32 v{E}, 16, v{E}
        ds_write_b32 v2, v{E}
        s_waitcnt lgkmcnt(0)
        CV_NOGATE:
        """)
    a.ext(stamp_end())
    st, ld, chk = fu_code(TMP, TMP + 1, TMP + 2, 7)
    a(f"CV{P}_SLOW:")
    a("s_waitcnt lgkmcnt(0)\ns_mov_b32 s77, 0x100000")
    a.ext(st)
    a.ext(plain(spin(f"PU{P}", ld, chk, 8)))
    a(f"v_lshlrev_b32 v{TMP}, 4, v0")
    a.ext(u_dma(TMP, 7))
    a(f"""
    s_mov_b32 s16, 0
    s_mov_b32 s17, 0xe0000000
    v_mov_b32 v4, 1
    s_waitcnt vmcnt(0)
    s_branch CV{P}_GO
    """)
    a0.ext(resolve_lds(a.L))


HEADER = open("cdna_kernels/" + NAME + ".s.ref").read().split("; Override launch")[0]


DOC = """;
"""


def main(path):
    a = Asm()
    prologue(a)
    a("L_SPARE:")
    a(f"s_and_b32 s{S_XCD}, s2, 7\ns_lshr_b32 s{S_IDX}, s2, 3\ns_waitcnt lgkmcnt(0)")
    srd(a, SRD_X, S_U, 2048 * 512 * 2)
    g_srds(a)
    spare(a)
    a("s_branch L_GEMM2")
    a("L_GEMM1:")
    gemm1(a)
    a("L_GEMM2:")
    gemm2(a)
    a("L_LWAVE_S:")
    a.ext(lwave(False))
    a("L_KWAVE:")
    a.ext(kwave(True))
    a("L_KWAVE_S:")
    a.ext(kwave(False))
    a("L_CONVA:")
    conv(a, False)
    a("L_CONVB:")
    conv(a, True)
    a("L_END:\ns_endpgm")
    body = "\n".join(("" if ln.endswith(":") or ln.startswith(".") else "    ") + ln for ln in a.L)
    kn = NAME + "_kernel"
    txt = HEADER
    if OPT.get("list"):
        txt += f"; @launch kernel={kn} grid=(256,1,1) block=(512,1,1) lds=163840\n"
    else:
        txt += "; @launch grid=(256,1,1) block=(512,1,1) lds=163840\n"
    txt += DOC
    txt += '.amdgcn_target "amdgcn-amd-amdhsa--gfx950"\n.text\n'
    txt += f".globl {kn}\n.p2align 8\n.type {kn},@function\n{kn}:\n"
    txt += body + "\n"
    txt += f"""
.section .rodata,"a"
.p2align 6
.amdhsa_kernel {kn}
  .amdhsa_next_free_vgpr 256
  .amdhsa_next_free_sgpr 102
  .amdhsa_accum_offset 256
  .amdhsa_group_segment_fixed_size 0
  .amdhsa_kernarg_size 136
  .amdhsa_user_sgpr_count 2
  .amdhsa_user_sgpr_kernarg_segment_ptr 1
  .amdhsa_system_sgpr_workgroup_id_x 1
.end_amdhsa_kernel
"""
    open(path, "w").write(txt)


if __name__ == "__main__":
    for o in list(sys.argv):
        if o.startswith("--opt="):
            k, _, val = o[6:].partition(":")
            OPT[k] = int(val) if val else 1
            sys.argv.remove(o)
    if OPT.get("oldlay"):
        DP = 4096
        UT_OFF, Y_OFF, GL_OFF = 0x800000, 0xC00000, 0xE00000
        FH_OFF, FY_OFF, FU_OFF, FD_OFF = 0xE40000, 0xE60000, 0xE68000, 0xE80000
    if OPT.get("dp"):
        DP = OPT["dp"]
    if "--stamps" in sys.argv:
        STAMPS = True
        sys.argv.remove("--stamps")
    main(sys.argv[1] if len(sys.argv) > 1 else "cdna_kernels/" + NAME + ".s")
```

```python
import sys, struct

NAME = "gated_mix__ssm_conv_s4__swiglu_ffn__prompt"

H_OFF = 0x000000
DP = 4224
UT_OFF = 0x800000
Y_OFF = 0xA80000
KX_OFF = 0xD00000
GL_OFF = 0xF00000
ST_OFF = 0xF20000
FH_OFF = 0xF40000
FY_OFF = 0xF60000
FU_OFF = 0xF68000
FG_OFF = 0xF6A000
FD_OFF = 0xF80000
WS_BYTES = 0x1000000

STAMPS = False
HDL = []
OPT = {}
ST_BASE = 78
NST = 12


def f32(x):
    return "0x%08x" % struct.unpack("<I", struct.pack("<f", x))[0]


LOG2E = 1.4426950408889634
LOG2E_HI = struct.unpack("<f", struct.pack("<f", LOG2E))[0]
LOG2E_LO = LOG2E - LOG2E_HI
LN2 = 0.6931471805599453
INV2PI = 0.15915494309189535


class Asm:
    def __init__(self):
        self.L = []

    def __call__(self, s):
        for line in s.strip().split("\n"):
            line = line.strip()
            if line:
                self.L.append(line)

    def ext(self, lines):
        self.L.extend(lines)

    def tag(self, n):
        self.L.append(("VMTAG", n))

    def wait(self, n):
        self.L.append(("VMWAIT", n))


def v(b, n=1):
    return f"v{b}" if n == 1 else f"v[{b}:{b+n-1}]"


def sr(b):
    return f"s[{b}:{b+3}]"


class RA:
    def __init__(self, start, end):
        self.p = start
        self.end = end

    def __call__(self, n=1, align=1):
        self.p = (self.p + align - 1) // align * align
        r = self.p
        self.p += n
        assert self.p <= self.end, "out of registers"
        return r


def stamp(k, force=False):
    if not STAMPS:
        return []
    assert k < NST
    if OPT.get("dbgbar") and 1 <= k <= 9 and not force:
        return []
    op = "s_memtime" if OPT.get("cyc") else "s_memrealtime"
    return [f"{op} s[{ST_BASE+2*k}:{ST_BASE+2*k+1}]"]


def bstamp(mode, k):
    return stamp(k, True) if OPT.get("dbgbar") == mode else []


def stamp_end():
    if not STAMPS:
        return ["s_endpgm"]
    L = stamp(10) + ["s_waitcnt vmcnt(0)"] + stamp(11)
    L += ["s_waitcnt lgkmcnt(0)", "s_mov_b64 exec, 1", "s_lshl_b32 s74, s2, 3", f"s_add_u32 s74, s74, s{S_WIDX}",
          "s_lshl_b32 s74, s74, 6", f"s_add_u32 s74, s74, {ST_OFF}", "v_mov_b32 v1, 0"]
    for k in range(NST):
        L.append(f"v_mov_b32 v{4+k}, s{ST_BASE+2*k}")
    for k in range(0, NST, 4):
        L.append(f"buffer_store_dwordx4 v[{4+k}:{7+k}], v1, {sr(SRD_WS)}, s74 offen offset:{4*k}")
    if OPT.get("hdbg"):
        lab = f"HD{len(HDL)}"
        HDL.append(lab)
        L += [f"v_not_b32 v20, v4", f"global_atomic_umax v1, v20, s[{S_DBG}:{S_DBG+1}] offset:56",
              f"global_atomic_umax v1, v15, s[{S_DBG}:{S_DBG+1}] offset:60",
              f"s_cmp_lg_u32 s2, {OPT['hdbg']}", f"s_cbranch_scc1 {lab}", f"s_cmp_lg_u32 s{S_WIDX}, 0", f"s_cbranch_scc1 {lab}"]
        words = [1, 2, 3, 4, 5, 6, 7, 9, 10, 11, 12]
        for k in range(1, NST):
            L += [f"v_sub_u32 v20, v{4+k}, v4", f"global_store_dword v1, v20, s[{S_DBG}:{S_DBG+1}] offset:{4*words[k-1]}", "s_nop 1"]
        L += [f"global_store_dword v1, v4, s[{S_DBG}:{S_DBG+1}] offset:52"]
        L.append(f"{lab}:")
    L.append("s_endpgm")
    return L


def is_vmem(line):
    return line.startswith("buffer_") or line.startswith("global_")


def resolve_vm(lines):
    out = []
    count = 0
    tags = {}
    done = -1
    for ln in lines:
        if isinstance(ln, tuple):
            if ln[0] == "VMTAG":
                tags[ln[1]] = count
            elif ln[0] == "VMWAIT":
                if tags[ln[1]] <= done:
                    continue
                n = count - tags[ln[1]]
                assert 0 <= n <= 63, n
                out.append(f"s_waitcnt vmcnt({n})")
                done = tags[ln[1]]
            elif ln[0] == "VMRESET":
                done = count
            elif ln[0] == "NOCOUNT":
                out.append(ln[1])
            else:
                raise ValueError(ln)
        else:
            if is_vmem(ln):
                count += 1
            out.append(ln)
    return out


def resolve_lds(lines):
    out = []
    count = 0
    tags = {}
    done = -1
    for ln in lines:
        if isinstance(ln, tuple):
            if ln[0] == "LTAG":
                tags[ln[1]] = count
            elif ln[0] == "LWAIT":
                if tags[ln[1]] <= done:
                    continue
                n = min(14, count - tags[ln[1]])
                out.append(f"s_waitcnt lgkmcnt({n})")
                done = count - n
            elif ln[0] == "LRESET":
                done = count
            elif ln[0] == "LCOUNT":
                pass
            else:
                raise ValueError(ln)
        else:
            if ln.startswith("ds_"):
                count += 1
            out.append(ln)
    return out


SLOT = 49152
KG_BASE = 147456
KARR = 3584
U_BASE = 131072
UPITCH = 1344
USZ = 4 * UPITCH
YB_BASE = U_BASE + 2 * USZ
RING2 = 32768

S_U = 4
S_ARE, S_AIM, S_BRE, S_BIM, S_CRE, S_CIM, S_LDT = 54, 56, 58, 60, 62, 64, 66
S_DS = 20
S_WG, S_WU, S_WD, S_GW = 24, 26, 28, 30
S_OUT, S_DBG, S_WS = 32, 34, 36
S_WIDX, S_XCD, S_IDX, S_RB, S_CB, S_PHI = 38, 39, 40, 41, 42, 43
SRD_X, SRD_WG, SRD_WU, SRD_WS, SRD_WD, SRD_OUT = 44, 48, 52, 56, 60, 64


def srd(a, d, base, nbytes):
    if base == S_WS and OPT.get("wsoff"):
        a(f"""
        s_add_u32 s{d}, s{base}, {OPT["wsoff"] << 20}
        s_addc_u32 s{d+1}, s{base+1}, 0
        s_and_b32 s{d+1}, s{d+1}, 0xffff
        s_mov_b32 s{d+2}, {nbytes}
        s_mov_b32 s{d+3}, 0x00020000
        """)
        return
    a(f"""
    s_mov_b32 s{d}, s{base}
    s_and_b32 s{d+1}, s{base+1}, 0xffff
    s_mov_b32 s{d+2}, {nbytes}
    s_mov_b32 s{d+3}, 0x00020000
    """)


def mapping(a):
    a(f"""
    s_and_b32 s{S_XCD}, s2, 7
    s_lshr_b32 s{S_IDX}, s2, 3
    """)
    if OPT.get("map", 1) == 0:
        a(f"""
        s_and_b32 s68, s{S_IDX}, 3
        s_lshr_b32 s69, s{S_IDX}, 2
        s_lshr_b32 s{S_RB}, s{S_XCD}, 1
        s_lshl_b32 s{S_RB}, s{S_RB}, 2
        s_add_u32 s{S_RB}, s{S_RB}, s68
        s_and_b32 s{S_CB}, s{S_XCD}, 1
        s_mul_i32 s{S_CB}, s{S_CB}, 7
        s_add_u32 s{S_CB}, s{S_CB}, s69
        s_lshl_b32 s{S_PHI}, s68, 1
        s_add_u32 s{S_PHI}, s{S_PHI}, s69
        s_and_b32 s{S_PHI}, s{S_PHI}, 7
        """)
    else:
        a(f"""
        s_and_b32 s70, s{S_XCD}, 1
        s_lshl_b32 s70, s70, 2
        s_and_b32 s68, s{S_IDX}, 7
        s_lshr_b32 s69, s{S_IDX}, 3
        s_add_u32 s71, s69, s70
        s_add_u32 s72, s68, s70
        s_cmp_ge_u32 s{S_IDX}, 24
        s_cselect_b32 s71, 3, s71
        s_cselect_b32 s68, s72, s68
        s_lshr_b32 s{S_CB}, s{S_XCD}, 1
        s_and_b32 s{S_CB}, s{S_CB}, 1
        s_mul_i32 s{S_CB}, s{S_CB}, 7
        s_add_u32 s{S_CB}, s{S_CB}, s71
        s_lshr_b32 s{S_RB}, s{S_XCD}, 2
        s_lshl_b32 s{S_RB}, s{S_RB}, 3
        s_add_u32 s{S_RB}, s{S_RB}, s68
        s_lshl_b32 s{S_PHI}, s69, 1
        s_add_u32 s{S_PHI}, s{S_PHI}, s68
        s_and_b32 s{S_PHI}, s{S_PHI}, 7
        """)


K_PR = 6


def kparam_loads():
    va, vb = K_PR + 5, K_PR + 7
    L = [f"global_load_dword v{K_PR+i}, v{va}, s[{sb}:{sb+1}]" for i, sb in enumerate((S_ARE, S_AIM, S_BRE, S_BIM, S_CRE, S_CIM))]
    L += [f"global_load_ushort v{K_PR+6}, v{vb}, s[{S_LDT}:{S_LDT+1}]", f"global_load_ushort v{K_PR+7}, v{vb}, s[{S_DS}:{S_DS+1}]"]
    return L


def prologue(a):
    a("""
    s_cmp_ge_u32 s2, 256
    s_cbranch_scc1 L_END
    """)
    if STAMPS:
        a.ext([f"s_mov_b32 s{ST_BASE+2*k}, 0" for k in range(NST)])
    a.ext(stamp(0))
    a(f"""
    s_load_dwordx8 s[24:31], s[0:1], 80
    s_load_dwordx16 s[52:67], s[0:1], 0
    s_load_dwordx2 s[4:5], s[0:1], 0
    s_load_dwordx2 s[36:37], s[0:1], 128
    s_load_dwordx4 s[32:35], s[0:1], 112
    s_load_dwordx2 s[20:21], s[0:1], 64
    v_lshrrev_b32 v1, 6, v0
    v_and_b32 v0, 63, v0
    s_nop 0
    v_readfirstlane_b32 s{S_WIDX}, v1
    s_lshl_b32 s69, s2, 1
    v_lshlrev_b32 v2, 2, v0
    s_nop 1
    s_cmp_lt_u32 s{S_WIDX}, 6
    s_cbranch_scc1 L_NOTK
    s_sub_u32 s68, s{S_WIDX}, 6
    s_add_u32 s69, s69, s68
    s_lshl_b32 s71, s69, 8
    v_add_u32 v2, s71, v2
    s_lshl_b32 s72, s69, 1
    v_mov_b32 v3, s72
    s_waitcnt lgkmcnt(0)
    """)
    a(f"v_mov_b32 v{K_PR+5}, v2\nv_mov_b32 v{K_PR+7}, v3")
    a(f"s_and_b32 s{S_XCD}, s2, 7\ns_lshr_b32 s{S_IDX}, s2, 3")
    a("s_cmp_lt_u32 s2, 224\ns_cbranch_scc1 L_KWAVE")
    a.ext(kparam_loads())
    a("s_branch L_KWAVE_S\nL_NOTK:")
    a(f"""
    s_cmp_ge_u32 s{S_WIDX}, 4
    s_cbranch_scc1 L_ISL
    """)
    a(f"""
    s_getpc_b64 s[70:71]
    L_PC:
    s_sub_u32 s70, s70, L_PC-{NAME}_kernel
    s_subb_u32 s71, s71, 0
    s_lshr_b32 s72, s2, 3
    s_lshl_b32 s72, s72, 2
    s_add_u32 s72, s72, s{S_WIDX}
    s_lshl_b32 s72, s72, 9
    v_and_b32 v2, 7, v0
    v_lshlrev_b32 v2, 6, v2
    v_add_u32 v2, s72, v2
    v_min_u32 v2, L_END-{NAME}_kernel, v2
    global_load_dword v127, v2, s[70:71]
    s_cmp_lt_u32 s2, 224
    s_cbranch_scc1 L_GEMM1
    s_branch L_SPARE
    L_ISL:
    """)
    mapping(a)
    a(f"""
    s_sub_u32 s6, s{S_WIDX}, 4
    s_cmp_ge_u32 s{S_IDX}, 28
    s_cbranch_scc1 L_LWAVE_S
    """)
    a.ext(lwave(True))


def g_srds(a):
    srd(a, SRD_WS, S_WS, WS_BYTES)
    srd(a, SRD_WD, S_WD, 1792 * 512 * 2)
    srd(a, SRD_OUT, S_OUT, 2048 * 512 * 2)


VL16 = 1
XD = 8
(VD0, VD1, DA0, DA1, VEP, VPH, VFL, VG, VY, VYW, VYT, VW1, VW2, VW3, VR1, VR23) = range(112, 128)
YT_BASE = YB_BASE
G_LDS = YB_BASE
N_LDS = YB_BASE + 256
X_LDS = YB_BASE + 512
S_LDS = YB_BASE + 272
def M16():
    return OPT.get("m16", 1)


def wd_step_off(dst, step, tmp):
    if not M16():
        return [f"s_lshl_b32 s{dst}, s{step}, 14"]
    return [f"s_and_b32 s{tmp}, s{step}, 1", f"s_lshl_b32 s{dst}, s{step}, 14", f"s_lshl_b32 s{tmp}, s{tmp}, 13",
            f"s_sub_u32 s{dst}, s{dst}, s{tmp}"]


def wd_second():
    return 16384 if M16() else 8192


def n1():
    return OPT.get("n1", 14)


def n1x():
    return n1()


def rot_scalar(dst, tmp):
    m = OPT.get("rmode", 0)
    if m == 1:
        return f"""
        s_lshr_b32 s{dst}, s{S_IDX}, 1
        s_and_b32 s{dst}, s{dst}, 2
        s_mul_i32 s{dst}, s{dst}, 7
        """
    if m == 2:
        return f"""
        s_lshr_b32 s{dst}, s{S_IDX}, 1
        s_and_b32 s{dst}, s{dst}, 2
        s_and_b32 s{tmp}, s{S_IDX}, 1
        s_add_u32 s{dst}, s{dst}, s{tmp}
        s_mul_i32 s{dst}, s{dst}, 7
        """
    return f"""
    s_lshr_b32 s{dst}, s{S_IDX}, 1
    s_and_b32 s{dst}, s{dst}, 2
    s_add_u32 s{dst}, s{dst}, s{S_IDX}
    s_and_b32 s{dst}, s{dst}, 3
    s_mul_i32 s{dst}, s{dst}, 7
    """


def rb64_scalar(dst, tmp):
    return f"""
    s_lshl_b32 s{dst}, s{S_XCD}, 2
    s_and_b32 s{tmp}, s{S_IDX}, 3
    s_add_u32 s{dst}, s{dst}, s{tmp}
    """


def cb64_scalar(dst, tmp):
    return f"""
    s_lshr_b32 s{dst}, s{S_IDX}, 2
    s_lshr_b32 s{tmp}, s{S_WD}, 7
    s_sub_u32 s{dst}, s{dst}, s{tmp}
    s_add_u32 s{dst}, s{dst}, {OPT.get("cbs", 4)}
    s_and_b32 s{dst}, s{dst}, 7
    """


def gemm2_setup(a):
    a(rb64_scalar(6, 13))
    a(cb64_scalar(7, 13))
    a(f"""
    s_lshl_b32 s17, s6, 6
    s_lshr_b32 s23, s{S_WIDX}, 1
    s_lshl_b32 s13, s23, 5
    s_add_u32 s17, s17, s13
    s_lshl_b32 s18, s7, 6
    s_and_b32 s14, s{S_WIDX}, 1
    s_lshl_b32 s13, s14, 5
    s_add_u32 s18, s18, s13
    v_lshrrev_b32 v5, 5, v0
    v_and_b32 v6, 31, v0
    v_add_u32 v6, s17, v6
    v_lshlrev_b32 v7, 4, v5
    v_add_u32 v7, s18, v7
    v_lshlrev_b32 v7, 1, v7
    v_lshl_add_u32 v{VEP}, v6, 10, v7
    s_lshl_b32 s8, s{S_WIDX}, 15
    s_lshl_b32 s9, s6, 1
    s_add_u32 s9, s9, s23
    s_mul_i32 s9, s9, 112
    s_mul_i32 s13, s{S_WIDX}, 28
    s_add_u32 s9, s9, s13
    s_lshl_b32 s9, s9, 10
    s_mul_i32 s22, s23, {224*1024}
    s_sub_u32 s22, {112*1024}, s22
    s_lshl_b32 s10, s13, 14
    s_lshl_b32 s13, s7, 7
    {"s_cmp_ge_u32 s2, 224" if OPT.get("fakecb") else ""}
    {"s_cselect_b32 s12, 128, 0" if OPT.get("fakecb") else ""}
    {"s_xor_b32 s13, s13, s12" if OPT.get("fakecb") else ""}
    s_add_u32 s10, s10, s13
    """)
    a(rot_scalar(12, 13))
    a(f"""
    s_add_u32 s11, s12, {n1x()}
    s_cmp_ge_u32 s11, 28
    s_cselect_b32 s13, 28, 0
    s_sub_u32 s11, s11, s13
    s_lshl_b32 s15, s6, 5
    s_mul_i32 s13, s{S_WIDX}, 7
    s_add_u32 s15, s15, s13
    s_lshl_b32 s15, s15, 7
    s_add_u32 s15, s15, {FH_OFF}
    s_lshl_b32 s13, s7, 2
    s_add_u32 s13, s13, s{S_WIDX}
    s_lshl_b32 s16, s13, 10
    s_add_u32 s16, s16, {FY_OFF}
    s_mul_i32 s19, s13, {16*DP}
    s_lshl_b32 s13, s6, 7
    s_add_u32 s19, s19, s13
    s_add_u32 s19, s19, {Y_OFF}
    v_lshlrev_b32 v{VL16}, 4, v0
    v_lshrrev_b32 v2, 3, v0
    v_and_b32 v3, 7, v0
    v_mul_u32_u24 v{VY}, {DP}, v2
    v_lshl_add_u32 v{VY}, v3, 4, v{VY}
    v_lshrrev_b32 v4, 1, v2
    v_and_b32 v4, 1, v4
    v_lshlrev_b32 v4, 2, v4
    v_xor_b32 v3, v3, v4
    v_lshlrev_b32 v{VD0}, 10, v2
    v_lshl_add_u32 v{VD0}, v3, 4, v{VD0}
    v_add_u32 v{VD1}, {wd_second()-1024}, v{VD0}
    v_lshlrev_b32 v{VYW}, 7, v2
    v_lshl_add_u32 v{VYW}, v3, 4, v{VYW}
    v_add_u32 v{VYW}, s8, v{VYW}
    v_lshrrev_b32 v2, 2, v0
    v_and_b32 v2, 3, v2
    v_and_b32 v3, 3, v0
    v_lshrrev_b32 v4, 4, v0
    v_and_b32 v4, 1, v4
    v_lshl_add_u32 v6, v5, 2, v2
    v_lshlrev_b32 v6, 7, v6
    v_and_b32 v7, 1, v3
    v_lshl_add_u32 v6, v7, 5, v6
    v_lshl_add_u32 v6, v4, 4, v6
    v_lshrrev_b32 v7, 1, v3
    v_lshl_add_u32 v6, v7, 3, v6
    v_add_u32 v6, s8, v6
    v_lshrrev_b32 v7, 1, v2
    v_xor_b32 v7, s14, v7
    v_lshl_add_u32 v{DA0}, v7, 6, v6
    v_xor_b32 v7, 1, v7
    v_lshl_add_u32 v{DA1}, v7, 6, v6
    s_lshl_b32 s13, s14, 1
    v_add_u32 v6, s13, v5
    v_lshlrev_b32 v{VYT}, 15, v6
    v_lshl_add_u32 v{VYT}, v2, 7, v{VYT}
    v_lshrrev_b32 v7, 1, v2
    v_xor_b32 v7, s23, v7
    v_lshl_add_u32 v{VYT}, v7, 6, v{VYT}
    v_lshl_add_u32 v{VYT}, v4, 5, v{VYT}
    v_lshl_add_u32 v{VYT}, v3, 3, v{VYT}
    v_min_u32 v{VPH}, 6, v0
    v_lshlrev_b32 v{VPH}, 7, v{VPH}
    v_lshrrev_b32 v2, 2, v0
    v_and_b32 v2, 7, v2
    v_lshlrev_b32 v{VFL}, 7, v2
    v_lshl_add_u32 v{VFL}, v3, 2, v{VFL}
    v_and_b32 v{VG}, 31, v0
    s_lshl_b32 s13, s23, 5
    v_add_u32 v{VG}, s13, v{VG}
    v_lshlrev_b32 v{VG}, 2, v{VG}
    v_add_u32 v{VG}, {G_LDS}, v{VG}
    v_add_u32 v{VW1}, s8, v{VL16}
    s_xor_b32 s13, s{S_WIDX}, 1
    s_lshl_b32 s13, s13, 15
    v_add_u32 v{VR1}, s13, v{VL16}
    s_xor_b32 s13, s{S_WIDX}, 2
    s_lshl_b32 s13, s13, 15
    v_add_u32 v{VW2}, s13, v{VL16}
    s_xor_b32 s13, s{S_WIDX}, 3
    s_lshl_b32 s13, s13, 15
    v_add_u32 v{VW3}, s13, v{VL16}
    """)


def gemm1(a):
    XA = 16
    WA = 28
    BUFS = [64, 88, 40]
    ACC = 128

    def acc(mat, t, tt):
        return ACC + 16 * (mat * 4 + t * 2 + tt)

    def wf(b, mat, t):
        return BUFS[b] + 4 * (mat * 2 + t)

    def xf(b, tt):
        return BUFS[b] + 16 + 4 * tt

    g2 = Asm()
    a(f"""
    s_lshr_b32 s68, s{S_WIDX}, 1
    s_and_b32 s69, s{S_WIDX}, 1
    v_and_b32 v7, 31, v0
    v_lshrrev_b32 v2, 5, v0
    v_lshrrev_b32 v3, 1, v0
    v_and_b32 v3, 7, v3
    s_lshl_b32 s70, s68, 13
    v_lshlrev_b32 v4, 7, v7
    v_add_u32 v4, s70, v4
    """)
    for ks in range(4):
        a(f"""
        v_add_u32 v5, {2*ks}, v2
        v_xor_b32 v5, v5, v3
        v_lshl_add_u32 v{XA+ks}, v5, 4, v4
        """)
    a(f"""
    v_lshrrev_b32 v7, 2, v0
    v_and_b32 v7, 3, v7
    v_and_b32 v3, 3, v0
    v_lshrrev_b32 v4, 4, v0
    v_and_b32 v4, 1, v4
    v_lshl_add_u32 v5, v2, 3, v7
    v_lshlrev_b32 v5, 8, v5
    v_lshl_add_u32 v5, v4, 5, v5
    v_lshl_add_u32 v5, v3, 3, v5
    s_lshl_b32 s70, s69, 1
    """)
    for t in range(2):
        a(f"""
        s_add_u32 s71, s70, {t}
        v_xor_b32 v6, s71, v7
        v_lshl_add_u32 v{WA+t}, v6, 6, v5
        """)
    for sl in (1, 2):
        for ks in range(4):
            a(f"v_add_u32 v{XA+4*sl+ks}, {sl*SLOT}, v{XA+ks}")
        for t in range(2):
            a(f"v_add_u32 v{WA+2*sl+t}, {sl*SLOT}, v{WA+t}")
    mapping(g2)
    g_srds(g2)
    gemm2_setup(g2)
    g2(f"""
    s_lshr_b32 s68, s{S_WIDX}, 1
    s_and_b32 s69, s{S_WIDX}, 1
    s_lshl_b32 s70, s{S_RB}, 2
    s_lshl_b32 s71, s68, 1
    s_add_u32 s70, s70, s71
    s_mul_i32 s70, s70, 112
    s_lshl_b32 s71, s{S_CB}, 3
    s_add_u32 s70, s70, s71
    s_lshl_b32 s71, s69, 2
    s_add_u32 s70, s70, s71
    s_lshl_b32 s70, s70, 10
    s_add_u32 s71, s70, {112*1024}
    s_lshl_b32 s3, s{S_RB}, 1
    s_add_u32 s3, s3, s68
    s_lshl_b32 s3, s3, 5
    s_lshl_b32 s72, s{S_CB}, 1
    s_add_u32 s3, s3, s72
    s_add_u32 s3, s3, s69
    s_lshl_b32 s3, s3, 7
    s_add_u32 s3, s3, {FH_OFF}
    s_mov_b32 s72, {f32(-LOG2E)}
    s_mov_b32 s73, {f32(-LOG2E)}
    """)

    def reads(n):
        st, ks = n >> 2, n & 3
        sl = st % 3
        b = n % 3
        r = []
        r.append(f"ds_read_b128 {v(xf(b,0),4)}, v{XA+4*sl+ks}")
        for mat in range(2):
            for t in range(2):
                for h2 in range(2):
                    off = 16384 * (1 + mat) + ks * 4096 + h2 * 1024
                    r.append(f"ds_read_b64_tr_b16 {v(wf(b,mat,t)+2*h2,2)}, v{WA+2*sl+t} offset:{off}")
                if mat == 0 and t == 0:
                    r.append(f"ds_read_b128 {v(xf(b,1),4)}, v{XA+4*sl+ks} offset:4096")
        return r

    T = 16

    def epi(p):
        t, tt = p >> 1, p & 1
        G, U = acc(0, t, tt), acc(1, t, tt)
        o = 32 + 8 * p
        L = []
        for h in range(2):
            R = range(8 * h, 8 * h + 8)
            L += [f"v_pk_mul_f32 {v(T+i,2)}, {v(G+i,2)}, s[72:73]" for i in R[::2]]
            for i in R[::2]:
                L += [f"v_exp_f32 v{T+i}, v{T+i}", f"v_exp_f32 v{T+i+1}, v{T+i+1}",
                      f"v_pk_mul_f32 {v(U+i,2)}, {v(G+i,2)}, {v(U+i,2)}"]
            L += [f"v_pk_add_f32 {v(T+i,2)}, {v(T+i,2)}, 1.0 op_sel_hi:[1,0]" for i in R[::2]]
            L += [f"v_rcp_f32 v{T+i}, v{T+i}" for i in R]
            L += [f"v_pk_mul_f32 {v(U+i,2)}, {v(U+i,2)}, {v(T+i,2)}" for i in R[::2]]
            for i in range(4):
                L.append(f"v_cvt_pk_bf16_f32 v{o+4*h+i}, v{U+8*h+2*i}, v{U+8*h+2*i+1}")
            L.append(f"buffer_store_dwordx4 {v(o+4*h,4)}, v{VL16}, {sr(SRD_WS)}, s{70+tt} offen offset:{t*2048+1024*h} sc1")
        return L

    a("s_waitcnt lgkmcnt(0)")
    a("s_barrier")
    a.ext(stamp(1))
    a.ext(bstamp(2, 1))
    a.ext(reads(0))
    a.ext(reads(1))
    extra = []
    XL = OPT.get("xl", 13)
    for n in range(32):
        b = n % 3
        if (n & 3) == 2:
            a("s_waitcnt lgkmcnt(0)")
            a.ext(bstamp(2, 2 + (n >> 2)))
            a("s_barrier")
            if OPT.get("gap") == n:
                for _ in range(OPT.get("gapn", 20)):
                    a("s_nop 15")
            if n == 22:
                a.ext(stamp(2))
        elif (n & 3) != 3:
            a("s_waitcnt lgkmcnt(10)")
        rd = reads(n + 2) if n + 2 < 32 else []
        mf = []
        for t in range(2):
            for tt in range(2):
                for mat in range(2):
                    c = "0" if n == 0 else v(acc(mat, t, tt), 16)
                    mf.append(f"v_mfma_f32_32x32x16_bf16 {v(acc(mat,t,tt),16)}, {v(wf(b,mat,t),4)}, {v(xf(b,tt),4)}, {c}")
        if "blk2" in OPT:
            cut = next(i for i in range(len(g2.L) // 2, len(g2.L)) if g2.L[i].startswith("v_") and g2.L[i - 1].startswith("v_"))
            if n == OPT["blk"]:
                a.ext(g2.L[:cut])
            if n == OPT["blk2"]:
                a.ext(g2.L[cut:])
        elif "blk" in OPT:
            if n == OPT["blk"]:
                a.ext(g2.L)
        elif n == 3:
            extra = list(g2.L)
        if n == 30:
            assert not extra
            extra = [f"v_mov_b32 v2, {N_LDS}", "ds_read_b32 v3, v2"]
        for i, m in enumerate(mf):
            a(m)
            a.ext(rd[2 * i:2 * i + 2])
            if i >= 4:
                a.ext(extra[:3])
                extra = extra[3:]
    assert not extra
    a.ext(stamp(3))
    if OPT.get("eprio", 0):
        a(f"s_setprio {OPT['eprio']}")
    a(f"s_waitcnt lgkmcnt(0)\nv_readfirstlane_b32 s{S_NONCE}, v3\ns_nop 5")
    for p in range(4):
        a.ext(epi(p))
    a.ext(stamp(4))


def gemm1_16(a0):
    a = Asm()
    XA = 16
    WA = 22
    XB = 40
    WB = 72
    NWB = 10
    ACC = 128
    VH = 34

    def acc(mat, T, tt):
        return ACC + 4 * ((mat * 4 + T) * 4 + tt)

    g2 = Asm()
    a(f"""
    s_lshr_b32 s68, s{S_WIDX}, 1
    s_and_b32 s69, s{S_WIDX}, 1
    v_and_b32 v7, 15, v0
    v_lshrrev_b32 v2, 4, v0
    v_lshrrev_b32 v3, 1, v7
    s_lshl_b32 s70, s68, 13
    v_lshlrev_b32 v4, 7, v7
    v_add_u32 v4, s70, v4
    v_lshlrev_b32 v{VH}, 9, v2
    v_lshl_add_u32 v{VH}, v7, 4, v{VH}
    """)
    for ks in range(2):
        a(f"""
        v_add_u32 v5, {4*ks}, v2
        v_xor_b32 v5, v5, v3
        v_lshl_add_u32 v{XA+ks}, v5, 4, v4
        """)
    a(f"""
    v_lshrrev_b32 v7, 2, v0
    v_and_b32 v7, 3, v7
    v_and_b32 v3, 3, v0
    v_lshl_add_u32 v5, v2, 3, v7
    v_lshlrev_b32 v5, 8, v5
    v_lshl_add_u32 v5, v3, 3, v5
    v_and_b32 v4, 1, v2
    v_lshl_add_u32 v4, v7, 1, v4
    s_lshl_b32 s70, s69, 2
    """)
    for T in range(4):
        a(f"""
        s_add_u32 s71, s70, {T}
        v_xor_b32 v6, s71, v4
        v_lshl_add_u32 v{WA+T}, v6, 5, v5
        """)
    for sl in (1, 2):
        for ks in range(2):
            a(f"v_add_u32 v{XA+2*sl+ks}, {sl*SLOT}, v{XA+ks}")
        for T in range(4):
            a(f"v_add_u32 v{WA+4*sl+T}, {sl*SLOT}, v{WA+T}")
    mapping(g2)
    g_srds(g2)
    gemm2_setup(g2)
    g2(f"""
    s_lshr_b32 s68, s{S_WIDX}, 1
    s_and_b32 s69, s{S_WIDX}, 1
    s_lshl_b32 s70, s{S_RB}, 2
    s_lshl_b32 s71, s68, 1
    s_add_u32 s70, s70, s71
    s_mul_i32 s70, s70, 112
    s_lshl_b32 s71, s{S_CB}, 3
    s_add_u32 s70, s70, s71
    s_lshl_b32 s71, s69, 2
    s_add_u32 s70, s70, s71
    s_lshl_b32 s70, s70, 10
    s_add_u32 s71, s70, {112*1024}
    s_lshl_b32 s3, s{S_RB}, 1
    s_add_u32 s3, s3, s68
    s_lshl_b32 s3, s3, 5
    s_lshl_b32 s72, s{S_CB}, 1
    s_add_u32 s3, s3, s72
    s_add_u32 s3, s3, s69
    s_lshl_b32 s3, s3, 7
    s_add_u32 s3, s3, {FH_OFF}
    s_mov_b32 s72, {f32(-LOG2E)}
    s_mov_b32 s73, {f32(-LOG2E)}
    """)

    def wtile(u):
        return u >> 4, (u >> 3) & 1, u & 1, (u >> 1) & 3

    def wrd(u):
        st, ks, mat, T = wtile(u)
        b = WB + 4 * (u % NWB)
        r = [f"ds_read_b64_tr_b16 {v(b+2*h2,2)}, v{WA+4*(st%3)+T} offset:{16384*(1+mat)+ks*8192+h2*1024}" for h2 in range(2)]
        return r + [("LTAG", f"W{u}")]

    def xrd(n, tt):
        st, ks = n >> 1, n & 1
        return [f"ds_read_b128 {v(XB+16*(n&1)+4*tt,4)}, v{XA+2*(st%3)+ks} offset:{2048*tt}", ("LTAG", f"X{n}_{tt}")]

    T_ = 16

    def epi(tt, jp):
        L = []
        o = 40 + 4 * (2 * tt + jp)
        prs = [(acc(0, 2*jp + (i >> 1), tt) + 2 * (i & 1), acc(1, 2*jp + (i >> 1), tt) + 2 * (i & 1), T_ + 8 * (jp & 1) + 2 * i) for i in range(4)]
        L += [f"v_pk_mul_f32 {v(t,2)}, {v(g,2)}, s[72:73]" for g, u, t in prs]
        for g, u, t in prs:
            L += [f"v_exp_f32 v{t}, v{t}", f"v_exp_f32 v{t+1}, v{t+1}", f"v_pk_mul_f32 {v(u,2)}, {v(g,2)}, {v(u,2)}"]
        L += [f"v_pk_add_f32 {v(t,2)}, {v(t,2)}, 1.0 op_sel_hi:[1,0]" for g, u, t in prs]
        for g, u, t in prs:
            L += [f"v_rcp_f32 v{t}, v{t}", f"v_rcp_f32 v{t+1}, v{t+1}"]
        L += [f"v_pk_mul_f32 {v(u,2)}, {v(u,2)}, {v(t,2)}" for g, u, t in prs]
        L += [f"v_cvt_pk_bf16_f32 v{o+i}, v{u}, v{u+1}" for i, (g, u, t) in enumerate(prs)]
        L.append(f"buffer_store_dwordx4 {v(o,4)}, v{VH}, {sr(SRD_WS)}, s{70+(tt>>1)} offen offset:{jp*2048+(tt&1)*256} sc1")
        return L

    a("s_waitcnt lgkmcnt(0)")
    a("s_barrier")
    a.ext(stamp(1))
    a.ext(bstamp(2, 1))
    a.ext(xrd(0, 0) + wrd(0) + xrd(0, 1) + xrd(0, 2) + xrd(0, 3))
    for u in range(1, 8):
        a.ext(wrd(u))
    extra = []
    blks = {}
    if "blk" in OPT:
        if "blk2" in OPT:
            cut = next(i for i in range(len(g2.L) // 2, len(g2.L)) if g2.L[i].startswith("v_") and g2.L[i - 1].startswith("v_"))
            blks = {4 * OPT["blk"]: g2.L[:cut], 4 * OPT["blk2"]: g2.L[cut:]}
        else:
            blks = {4 * OPT["blk"]: list(g2.L)}
    pre_b = {}
    if "blkb" in OPT:
        cut = next(i for i in range(len(g2.L) // 2, len(g2.L)) if g2.L[i].startswith("v_") and g2.L[i - 1].startswith("v_"))
        blks = {-1: []}
        if "blkb2" in OPT:
            pre_b = {OPT["blkb"]: g2.L[:cut], OPT["blkb2"]: g2.L[cut:]}
        elif "blk2" in OPT:
            pre_b = {OPT["blkb"]: g2.L[:cut]}
            blks = {4 * OPT["blk2"]: g2.L[cut:]}
        else:
            pre_b = {OPT["blkb"]: list(g2.L)}
    for u in range(128):
        st, ks, mat, T = wtile(u)
        t = u & 15
        n = u >> 3
        if t == 10:
            a.ext(pre_b.get(st, []))
            a("s_waitcnt lgkmcnt(0)")
            a.L.append(("LRESET",))
            a.ext(bstamp(2, 2 + st))
            a("s_barrier")
            if st == 5:
                a.ext(stamp(2))
        if u in blks:
            a.ext(blks[u])
        if not blks and u == 12:
            extra = list(g2.L)
        if u == 122:
            assert not extra
            extra = [f"v_mov_b32 v2, {N_LDS}", "ds_read_b32 v3, v2"]
        rl = []
        if t < 8:
            rl += wrd(u + 8)
            if t < 4:
                rl += xrd(n + 1, t)
        elif t >= 10 and st < 7:
            base = (st + 1) * 16
            for w in {10: (0,), 11: (1,), 12: (2, 3), 13: (4, 5), 14: (6,), 15: (7,)}[t]:
                rl += wrd(base + w)
            if t < 12:
                rl += xrd(n + 1, 2 * (t - 10)) + xrd(n + 1, 2 * (t - 10) + 1)
        a.L.append(("LWAIT", f"W{u}"))
        items = [[], [], [], []]
        k = 0
        for x in rl:
            items[min(k, 3)].append(x)
            if isinstance(x, str):
                k += 1
        for tt in range(4):
            if (u & 7) == 0:
                a.L.append(("LWAIT", f"X{n}_{tt}"))
            c = "0" if n == 0 else v(acc(mat, T, tt), 4)
            a(f"v_mfma_f32_16x16x32_bf16 {v(acc(mat,T,tt),4)}, {v(WB+4*(u%NWB),4)}, {v(XB+16*(n&1)+4*tt,4)}, {c}")
            a.ext(items[tt])
            if not any(isinstance(x, str) for x in items[tt]):
                a.ext(extra[:2])
                extra = extra[2:]
    assert not extra
    a.ext(stamp(3))
    a(f"s_waitcnt lgkmcnt(0)\nv_readfirstlane_b32 s{S_NONCE}, v3\ns_nop 5")
    for jp in range(2):
        for tt in range(4):
            a.ext(epi(tt, jp))
    a.ext(stamp(4))
    a0.ext(resolve_lds(a.L))


def spare(a):
    R = 16
    O = 80
    GWv = 112
    SUM = 120
    a(f"""
    s_sub_u32 s68, s{S_IDX}, 28
    s_lshl_b32 s3, s{S_XCD}, 2
    s_add_u32 s3, s3, s68
    s_lshl_b32 s3, s3, 5
    s_add_u32 s3, s3, s{S_WIDX}
    s_lshl_b32 s3, s3, 2
    s_add_u32 s3, s3, {FU_OFF}
    s_lshl_b32 s68, s68, 2
    s_add_u32 s68, s68, s{S_WIDX}
    s_lshr_b32 s69, s68, 1
    s_mov_b32 s74, s{S_XCD}
    v_and_b32 v1, 7, v0
    v_lshrrev_b32 v2, 3, v0
    v_lshlrev_b32 v3, 15, v2
    v_lshl_add_u32 v3, v1, 4, v3
    v_mul_u32_u24 v4, {8*DP}, v1
    v_lshl_add_u32 v4, v2, 4, v4
    v_lshlrev_b32 v5, 4, v1
    v_lshlrev_b32 v6, 2, v0
    s_mov_b32 s70, 0x05040100
    s_mov_b32 s71, 0x07060302
    s_lshl_b32 s72, s69, 7
    v_add_u32 v7, s72, v5
    global_load_dwordx4 {v(GWv,4)}, v7, s[{S_GW}:{S_GW+1}]
    """)
    for i in range(2):
        b = 6 + 4 * i
        a(f"""
        s_lshl_b32 s73, s68, 1
        s_add_u32 s73, s73, {i}
        s_and_b32 s73, s73, 3
        s_lshl_b32 s{b}, s74, 18
        s_lshl_b32 s75, s73, 10
        s_add_u32 s{b}, s{b}, s75
        s_add_u32 s{b}, s{b}, s72
        s_mul_i32 s{b+1}, s69, {64*DP}
        s_add_u32 s{b+1}, s{b+1}, s75
        s_lshl_b32 s75, s74, 7
        s_add_u32 s{b+1}, s{b+1}, s75
        s_add_u32 s{b+1}, s{b+1}, {UT_OFF}
        s_lshl_b32 s{b+2}, s74, 8
        s_lshl_b32 s75, s73, 11
        s_add_u32 s{b+2}, s{b+2}, s75
        s_lshl_b32 s75, s69, 13
        s_add_u32 s{b+2}, s{b+2}, s75
        s_add_u32 s{b+2}, s{b+2}, {GL_OFF}
        """)
        for j in range(8):
            a(f"buffer_load_dwordx4 {v(R+32*i+4*j,4)}, v3, {sr(SRD_X)}, s{b} offen")
            if j < 7:
                a(f"s_add_u32 s{b}, s{b}, 4096")
    a("v_mov_b32 v2, 0")
    for i in range(2):
        b = 6 + 4 * i
        a("s_waitcnt vmcnt(8)")
        Ri = R + 32 * i
        for e in range(8):
            for jj in range(4):
                sel = 71 if (e & 1) else 70
                a(f"v_perm_b32 v{O+4*e+jj}, v{Ri+4*(2*jj+1)+(e>>1)}, v{Ri+4*(2*jj)+(e>>1)}, s{sel}")
            a(f"buffer_store_dwordx4 {v(O+4*e,4)}, v4, {sr(SRD_WS)}, s{b+1} offen sc1")
            if e < 7:
                a(f"s_add_u32 s{b+1}, s{b+1}, {DP}")
    a(nonce_ld(3, 2))
    a.ext(stamp(1))
    a("s_barrier")
    for i in range(2):
        Ri = R + 32 * i
        S_ = SUM - 8 * i * 5
        for j in range(8):
            a(f"v_mov_b32 v{S_+j}, 0")
        for q in range(4):
            for j in range(8):
                a(f"v_dot2c_f32_bf16 v{S_+j}, v{Ri+4*j+q}, v{GWv+q}")
        a("s_nop 3")
        for ctl in ("quad_perm:[1,0,3,2]", "quad_perm:[2,3,0,1]", "row_half_mirror"):
            for j in range(8):
                a(f"v_add_f32_dpp v{S_+j}, v{S_+j}, v{S_+j} {ctl} row_mask:0xf bank_mask:0xf")
        for j in range(1, 8):
            a(f"""
            v_cmp_eq_u32 vcc, {j}, v1
            s_nop 1
            v_cndmask_b32 v{S_}, v{S_}, v{S_+j}, vcc
            """)
        if i == 0:
            a("s_waitcnt vmcnt(0)")
            a.ext(plain(nonce_get("NS", 3, 2)))
            a(f"""
            s_mov_b32 s76, s{S_NONCE}
            s_mov_b64 exec, 1
            buffer_store_dword v3, v2, {sr(SRD_WS)}, s3 offen sc1
            s_mov_b64 exec, -1
            """)
            a.ext(stamp(2))
    a(f"""
    buffer_store_dword v{SUM}, v6, {sr(SRD_WS)}, s8 offen sc1
    buffer_store_dword v{SUM-40}, v6, {sr(SRD_WS)}, s12 offen sc1
    s_add_u32 s3, s3, {FG_OFF - FU_OFF}
    s_waitcnt vmcnt(0)
    s_mov_b64 exec, 1
    buffer_store_dword v3, v2, {sr(SRD_WS)}, s3 offen sc1
    s_mov_b64 exec, -1
    s_sub_u32 s3, s3, {FG_OFF}
    s_lshl_b32 s3, s3, 5
    s_add_u32 s3, s3, {FD_OFF}
    """)
    a.ext(stamp(3))
    gemm2_setup(a)
    a(f"s_mov_b32 s{S_NONCE}, s76\ns_waitcnt vmcnt(0)")


def spin(label, loads, checks, sleep=2):
    L = [f"{label}_SPIN:", f"s_sleep {sleep}"]
    L += [("NOCOUNT", x) for x in loads]
    L += ["s_waitcnt vmcnt(0)"]
    L += ["s_sub_u32 s77, s77, 1", "s_cmp_eq_u32 s77, 0", f"s_cbranch_scc1 {label}_OK"]
    L += [f"{label}_CHK:"] + checks
    L += [f"s_cbranch_scc0 {label}_SPIN", f"{label}_OK:"]
    return L


S_NONCE = 23


def nonce_ld(vd, vz):
    return f"global_load_dword v{vd}, v{vz}, s[{S_DBG}:{S_DBG+1}] sc1"


def nonce_get(label, vd, vz, sleep=8):
    L = ["s_mov_b32 s77, 0x100000", f"s_branch {label}_CHK"]
    L += spin(label, [nonce_ld(vd, vz)], [f"v_cmp_ne_u32 vcc, 0, v{vd}", "s_nop 3", "s_cmp_eq_u64 vcc, exec"], sleep)
    L += [f"v_readfirstlane_b32 s{S_NONCE}, v{vd}", "s_nop 3"]
    return L


def plain(lines):
    return [x[1] if isinstance(x, tuple) else x for x in lines]


def gemm2(a0):
    a = Asm()
    NS = 28
    NP = 12
    NR = 16
    DH = OPT.get('dh', 6)
    ACC = 192
    WF = 16
    WFR = 128
    HB = 144
    N1 = n1x()
    PP1 = OPT.get("pp1", 21)
    N2 = OPT.get("n2", 28)

    def acc(t, tt):
        return ACC + 16 * (t + 2 * tt)

    def wload(i):
        sl = i % NR
        return [
            *wd_step_off(14, 11, 74), f"s_add_u32 m0, s8, {sl*2048}", "s_add_u32 s14, s14, s10",
            f"buffer_load_dwordx4 v{VD0}, {sr(SRD_WD)}, s14 offen lds",
            "s_add_u32 s11, s11, 1", "s_cmp_ge_u32 s11, 28", "s_cselect_b32 s11, 0, s11",
            f"buffer_load_dwordx4 v{VD1}, {sr(SRD_WD)}, s14 offen offset:1024 lds",
            ("VMTAG", f"W{i}"),
        ]

    def hb(i):
        sl = i % DH
        return HB + 8 * sl if sl < 6 else 8

    def hload(i):
        sl = i % DH
        return [
            "s_lshl_b32 s13, s12, 10", "s_add_u32 s13, s13, s9",
            f"buffer_load_dwordx4 {v(hb(i),4)}, v{VL16}, {sr(SRD_WS)}, s13 offen sc1",
            "s_add_u32 s13, s13, s22",
            "s_add_u32 s12, s12, 1", "s_cmp_ge_u32 s12, 28", "s_cselect_b32 s12, 0, s12",
            f"buffer_load_dwordx4 {v(hb(i)+4,4)}, v{VL16}, {sr(SRD_WS)}, s13 offen sc1",
            ("VMTAG", f"H{i}"),
        ]

    TT = OPT.get("tt", 0)

    def wfrag(i):
        if TT and i > NS - TT:
            return WF + 8 * (i - (NS - TT) - 1)
        return WF + 8 * i if i < NP else WFR + 8 * (i & 1)

    def trd(i):
        sl = i % NR
        r = [("VMWAIT", f"W{i}")] if i >= N1 else []
        for t in range(2):
            for h2 in range(2):
                r.append(f"ds_read_b64_tr_b16 {v(wfrag(i)+4*t+2*h2,2)}, v{DA0+t} offset:{sl*2048+h2*1024}")
        return r

    NF = OPT.get("nf", 0)
    a(f"""
    s_setprio 2
    v_mov_b32 v2, 0
    v_mov_b32 v3, s{S_NONCE}
    s_mov_b32 s77, 0x100000
    """)
    a.tag("hst")

    def pub():
        a.wait("hst")
        a(f"""
        s_mov_b64 exec, 1
        buffer_store_dword v3, v2, {sr(SRD_WS)}, s3 offen sc1
        s_mov_b64 exec, -1
        """)
    if NF == 0:
        pub()
    a.ext(stamp(5))
    a("s_barrier")
    if NF == 0:
        a.ext(stamp(6))
    ph_ld = f"buffer_load_dword v4, v{VPH}, {sr(SRD_WS)}, s15 offen sc1"

    def wl(i):
        a.ext(wload(i))
        if i == N1 + NF - 1:
            pub()
            a.ext(stamp(6))
        if i == PP1:
            a(ph_ld)
            a.tag("P1")
    assert NP <= N1
    for i in range(N1, NR):
        wl(i)
    for i in range(NP + 1):
        if i < NP:
            a.ext(trd(i))
        if i >= 1 and NR + i - 1 < N2:
            a(f"s_waitcnt lgkmcnt({4 if i < NP else 0})")
            wl(NR + i - 1)
    a.ext(stamp(7))
    a.wait("P1")
    a("s_branch PH_CHK")
    a.ext(spin("PH", [ph_ld], [f"v_cmp_eq_u32 vcc, s{S_NONCE}, v4", "s_nop 3", "s_cmp_eq_u64 vcc, exec"]))
    a.ext(stamp(8))
    a.ext(bstamp(3, 1))
    for i in range(DH):
        a.ext(hload(i))
    a("s_waitcnt lgkmcnt(0)")

    YR, FL, YT, EG = 80, 2, WFR, 6
    fl_ld = [f"buffer_load_dword v{FL}, v{VFL}, {sr(SRD_WS)}, s16 offen sc1"]
    chk = [f"v_cmp_eq_u32 vcc, s{S_NONCE}, v{FL}", "s_nop 3", "s_cmp_eq_u64 vcc, exec"]

    def yloads():
        return [f"buffer_load_dwordx4 {v(YR,4)}, v{VY}, {sr(SRD_WS)}, s19 offen sc1",
                f"s_add_u32 s13, s19, {8*DP}",
                f"buffer_load_dwordx4 {v(YR+4,4)}, v{VY}, {sr(SRD_WS)}, s13 offen sc1"]

    IF = OPT.get("if", 22)
    IY = OPT.get("iy", 25 if not TT else NS - TT - 1)
    for i in range(NS - TT):
        sl = i % DH
        a.wait(f"H{i}")
        if i >= NP:
            a("s_waitcnt lgkmcnt(0)")
        hl = hload(i - 1 + DH) if 1 <= i and i - 1 + DH < NS else []
        fill = [(trd(i + 1) if NP <= i + 1 < NS else []) + hl[:3], hl[3:], wload(N2 + i) if N2 + i < NS else [], []]
        if TT and i == NS - TT - 1:
            for j in range(NS - TT + 1, NS):
                fill[1 + (j & 1)] = fill[1 + (j & 1)] + trd(j)
        k = 0
        for t in range(2):
            for tt in range(2):
                c = "0" if i == 0 else v(acc(t, tt), 16)
                a(f"v_mfma_f32_32x32x16_bf16 {v(acc(t,tt),16)}, {v(wfrag(i)+4*t,4)}, {v(hb(i)+4*tt,4)}, {c}")
                a.ext(fill[k])
                k += 1
        if i in (0, 3, 7, 11, 15, 19, 23, 27):
            a.ext(bstamp(3, 2 + (0, 3, 7, 11, 15, 19, 23, 27).index(i)))
        if i == IF:
            a.ext(fl_ld)
            a.tag("F")
        if i == IY:
            a.wait("F")
            a.ext(yloads())
    def pw(k):
        return [f"ds_write_b128 v{VW1}, {v(ACC+16*k+4*g,4)} offset:{k*4096+g*1024}" for g in range(4)]

    if TT:
        a.wait(f"H{NS-1}")
        a("s_waitcnt lgkmcnt(0)")
        order = (1, 2, 3, 0)
        for n_, k in enumerate(order):
            t, tt = k & 1, k >> 1
            w = pw(order[n_ - 2]) if n_ >= 2 else []
            for m_, i in enumerate(range(NS - TT, NS)):
                a(f"v_mfma_f32_32x32x16_bf16 {v(acc(t,tt),16)}, {v(wfrag(i)+4*t,4)}, {v(hb(i)+4*tt,4)}, {v(acc(t,tt),16)}")
                a.ext(w[2 * m_:2 * m_ + 2])
                if n_ >= 1:
                    a("s_nop 3")
    a.ext(stamp(9))
    a.ext(bstamp(7, 1))
    if TT:
        a.ext(pw(3))
    a.ext(chk)
    a("s_cbranch_scc1 PY_DONE")
    a.ext(spin("PY", fl_ld, chk))
    a.ext([("NOCOUNT", x) if is_vmem(x) else x for x in yloads()])
    a("PY_DONE:")
    a.ext(bstamp(7, 2))
    a("s_nop 5")
    for k in range(1, 4):
        if not TT:
            a.ext(pw(k))
    a.ext(bstamp(7, 3))
    X1, Y1 = HB, HB + 16
    OST = {0: "", 1: " sc1", 2: " nt", 3: " sc0 sc1"}[OPT.get("ost", 0)]
    a(f"""
    v_mov_b32 v5, 0xffff0000
    s_waitcnt vmcnt(0)
    ds_write_b128 v{VYW}, {v(YR,4)} offset:16384
    ds_write_b128 v{VYW}, {v(YR+4,4)} offset:17408
    """)
    a.ext(bstamp(7, 4))
    a("s_waitcnt lgkmcnt(0)")
    a.ext(bstamp(7, 5))
    a("s_barrier")
    a.ext(bstamp(7, 6))
    PB = 16
    a(f"ds_read_b32 v{EG}, v{VG}")
    for q in range(4):
        a(f"ds_read_b64_tr_b16 {v(YT+2*q,2)}, v{VYT} offset:{16384+q*512}")
    for k, base in ((1, VR1), (2, VW2), (3, VW3)):
        for g in range(4):
            a(f"ds_read_b128 {v(PB+16*(k-1)+4*g,4)}, v{base} offset:{k*4096+g*1024}")
    a("s_waitcnt lgkmcnt(12)")
    for i in range(8):
        a(f"""
        v_lshlrev_b32 v{Y1+2*i}, 16, v{YT+i}
        v_and_b32 v{Y1+2*i+1}, v5, v{YT+i}
        """)
    a("s_waitcnt lgkmcnt(8)")
    for i in range(0, 16, 2):
        a(f"v_pk_add_f32 {v(ACC+i,2)}, {v(ACC+i,2)}, {v(PB+i,2)}")
    a("s_waitcnt lgkmcnt(0)")
    a.ext(bstamp(7, 7))
    for i in range(0, 16, 2):
        a(f"v_pk_add_f32 {v(PB+16+i,2)}, {v(PB+16+i,2)}, {v(PB+32+i,2)}")
    for i in range(0, 16, 2):
        a(f"v_pk_add_f32 {v(ACC+i,2)}, {v(ACC+i,2)}, {v(PB+16+i,2)}")
    for i in range(0, 16, 2):
        a(f"v_pk_add_f32 {v(Y1+i,2)}, {v(Y1+i,2)}, {v(ACC+i,2)} neg_lo:[0,1] neg_hi:[0,1]")
    for i in range(0, 16, 2):
        a(f"v_pk_fma_f32 {v(ACC+i,2)}, {v(Y1+i,2)}, {v(EG,2)}, {v(ACC+i,2)} op_sel_hi:[1,0,1]")
    for i in range(8):
        a(f"v_cvt_pk_bf16_f32 v{X1+i}, v{ACC+2*i}, v{ACC+2*i+1}")
    a(f"""
    buffer_store_dwordx4 {v(X1,4)}, v{VEP}, {sr(SRD_OUT)}, 0 offen{OST}
    buffer_store_dwordx4 {v(X1+4,4)}, v{VEP}, {sr(SRD_OUT)}, 0 offen offset:16{OST}
    """)
    a.ext(stamp_end())
    a0.ext(resolve_vm(a.L))


def kwave(gemm_wg):
    sfx = "G" if gemm_wg else "S"
    ra = RA(2, 256)
    pre = Asm()
    main = Asm()
    ph2 = Asm()
    a = pre
    a(f"""
    s_setprio {OPT.get("kprio", 0)}
    s_lshl_b32 s70, s68, 13
    s_add_u32 s70, s70, {KG_BASE}
    """)
    t0 = ra(); t1 = ra(); t2 = ra(); t3 = ra()
    PR = ra(7)
    DV = ra()
    assert PR == K_PR
    if gemm_wg:
        a(f"""
        s_cmp_lg_u32 s69, 0
        s_cbranch_scc1 K{sfx}_NOTAG
        s_memrealtime s[72:73]
        v_mov_b32 v{t0}, 0
        s_waitcnt lgkmcnt(0)
        s_or_b32 s72, s72, 1
        v_mov_b32 v{t1}, s72
        s_mov_b64 exec, 1
        global_store_dword v{t0}, v{t1}, s[{S_DBG}:{S_DBG+1}] sc1
        s_mov_b64 exec, -1
        K{sfx}_NOTAG:
        """)

    WR = ra(8)
    RD = ra(2)
    a(f"""
    v_lshrrev_b32 v{t0}, 1, v0
    v_and_b32 v{t1}, 7, v{t0}
    v_lshlrev_b32 v{t0}, 8, v{t0}
    v_and_b32 v{t2}, 1, v0
    v_lshl_add_u32 v{t0}, v{t2}, 3, v{t0}
    v_add_u32 v{t0}, s70, v{t0}
    """)
    for b in range(8):
        a(f"""
        v_xor_b32 v{t2}, {b}, v{t1}
        v_lshl_add_u32 v{WR+b}, v{t2}, 4, v{t0}
        """)
    a(f"""
    v_and_b32 v{t0}, 15, v0
    v_lshrrev_b32 v{t1}, 4, v0
    """)
    for p in range(2):
        a(f"""
        v_add_u32 v{t2}, {4*p}, v{t1}
        v_xor_b32 v{t3}, v{t2}, v{t0}
        v_lshlrev_b32 v{t3}, 4, v{t3}
        v_lshl_add_u32 v{t3}, v{t2}, 8, v{t3}
        v_add_u32 v{RD+p}, s70, v{t3}
        """)
    TA0 = ra(); TA1 = ra(); TA2 = ra(); TA3 = ra()
    LP = ra(12)
    a(f"""
    v_and_b32 v{t2}, 1, v{t1}
    v_lshrrev_b32 v{t3}, 1, v{t1}
    v_lshlrev_b32 v{TA0}, 5, v{t0}
    v_lshl_add_u32 v{TA0}, v{t2}, 4, v{TA0}
    v_lshl_add_u32 v{TA0}, v{t3}, 9, v{TA0}
    v_lshrrev_b32 v{LP}, 2, v{TA0}
    v_cvt_f32_u32 v{LP}, v{LP}
    v_add_u32 v{TA0}, s70, v{TA0}
    v_add_f32 v{LP+1}, 1.0, v{LP}
    v_add_f32 v{LP+2}, 2.0, v{LP}
    v_add_f32 v{LP+3}, 2.0, v{LP+1}
    v_cmp_gt_u32 vcc, 2, v{t1}
    v_lshlrev_b32 v{TA1}, 4, v{t0}
    v_lshlrev_b32 v{TA2}, 3, v{t0}
    v_cndmask_b32 v{TA1}, v{TA2}, v{TA1}, vcc
    v_lshl_add_u32 v{TA1}, v{t1}, 8, v{TA1}
    v_add_u32 v{TA1}, s70, v{TA1}
    v_add_u32 v{TA1}, 1024, v{TA1}
    v_mov_b32 v{TA2}, 128
    v_cndmask_b32 v{TA2}, v{TA2}, 8, vcc
    v_add_u32 v{TA2}, v{TA2}, v{TA1}
    v_lshlrev_b32 v{TA3}, 2, v{t0}
    v_lshl_add_u32 v{TA3}, v{t1}, 8, v{TA3}
    v_add_u32 v{TA3}, s70, v{TA3}
    """)
    a(f"""
    v_lshlrev_b32 v{t2}, 7, v{t1}
    v_add_u32 v{t2}, 256, v{t2}
    v_lshlrev_b32 v{t3}, 8, v{t1}
    v_cndmask_b32 v{t2}, v{t3}, v{t2}, vcc
    v_lshl_add_u32 v{t2}, v{t0}, 3, v{t2}
    v_cvt_f32_u32 v{LP+4}, v{t2}
    v_mov_b32 v{t2}, 4.0
    v_cndmask_b32 v{t2}, v{t2}, 2.0, vcc
    v_mov_b32 v{t3}, {f32(128.0)}
    v_cndmask_b32 v{t3}, v{t3}, 4.0, vcc
    v_add_f32 v{LP+5}, v{LP+4}, v{t2}
    v_add_f32 v{LP+6}, v{LP+4}, v{t3}
    v_add_f32 v{LP+7}, v{LP+6}, v{t2}
    v_lshlrev_b32 v{t2}, 9, v{t1}
    v_lshl_add_u32 v{t2}, v{t0}, 3, v{t2}
    v_add_u32 v{t2}, 1024, v{t2}
    v_cvt_f32_u32 v{LP+8}, v{t2}
    v_add_f32 v{LP+9}, {f32(128.0)}, v{LP+8}
    v_add_f32 v{LP+10}, {f32(256.0)}, v{LP+8}
    v_add_f32 v{LP+11}, {f32(384.0)}, v{LP+8}
    """)
    EX = ra(10)
    a(f"""
    s_sub_u32 s72, s70, {4*17024}
    v_lshlrev_b32 v{t0}, 3, v0
    v_cvt_f32_u32 v{t1}, v{t0}
    v_cmp_gt_u32 vcc, 16, v0
    v_add_u32 v{EX+8}, s70, v{t0}
    v_lshlrev_b32 v{t0}, 2, v{t0}
    v_add_u32 v{t0}, s70, v{t0}
    v_lshlrev_b32 v{EX+9}, 2, v0
    v_add_u32 v{EX+9}, s70, v{EX+9}
    v_add_u32 v{EX+9}, 2048, v{EX+9}
    """)
    for kk in range(4):
        e0, e1 = EX + 2 * kk, EX + 2 * kk + 1
        a(f"""
        v_add_f32 v{t2}, 1.0, v{t1}
        v_cvt_pk_bf16_f32 v{t3}, v{t1}, v{t2}
        v_add_f32 v{t1}, 2.0, v{t1}
        v_and_b32 v{e0}, 0xffff, v{t3}
        v_lshrrev_b32 v{e1}, 16, v{t3}
        v_lshl_add_u32 v{e0}, v{e0}, 2, s72
        v_lshl_add_u32 v{e1}, v{e1}, 2, s72
        v_add_u32 v{t2}, {8*kk}, v{t0}
        v_add_u32 v{t3}, {8*kk+4}, v{t0}
        v_cndmask_b32 v{e0}, v{e0}, v{t2}, vcc
        v_cndmask_b32 v{e1}, v{e1}, v{t3}, vcc
        """)

    if gemm_wg:
        a.ext(kparam_loads())
    srd(a, SRD_WS, S_WS, WS_BYTES)
    a = main
    a("s_waitcnt vmcnt(0)")
    MASK = ra()
    DT = ra()
    PP = ra(12)
    a(f"""
    v_mov_b32 v{MASK}, 0xffff0000
    v_cmp_eq_u32 vcc, 0, v0
    v_lshlrev_b32 v{DV}, 16, v{DV}
    s_nop 0
    v_cndmask_b32 v{DV}, 0, v{DV}, vcc
    """)
    for i in range(6):
        a(f"v_lshlrev_b32 v{PP+2*i}, 16, v{PR+i}")
        a(f"v_and_b32 v{PP+2*i+1}, v{MASK}, v{PR+i}")
    if OPT.get("tagp") == 1:
        a(f"v_mov_b32 v{PR}, 0")
        a(nonce_ld(PR + 1, PR))
    x = PR + 6
    a(f"""
    v_lshlrev_b32 v{x}, 16, v{x}
    v_mul_f32 v{t0}, {f32(LOG2E_HI)}, v{x}
    s_mov_b32 s72, {f32(LOG2E_HI)}
    v_fma_f32 v{t1}, v{x}, s72, -v{t0}
    v_fmac_f32 v{t1}, {f32(LOG2E_LO)}, v{x}
    v_exp_f32 v{t0}, v{t0}
    v_mul_f32 v{t1}, {f32(LN2)}, v{t1}
    v_fmac_f32 v{t0}, v{t0}, v{t1}
    v_cvt_pk_bf16_f32 v{t0}, v{t0}, v{t0}
    v_lshlrev_b32 v{DT}, 16, v{t0}
    """)
    A2, TH, Br, Bi, Cr, Ci = (PP + 2 * i for i in range(6))
    for m in range(2):
        a(f"""
        v_mul_f32 v{A2+m}, v{DT}, v{A2+m}
        v_mul_f32 v{TH+m}, v{DT}, v{TH+m}
        v_mul_f32 v{Br+m}, v{DT}, v{Br+m}
        v_mul_f32 v{Bi+m}, v{DT}, v{Bi+m}
        v_mul_f32 v{A2+m}, {f32(LOG2E)}, v{A2+m}
        v_mul_f32 v{TH+m}, {f32(INV2PI)}, v{TH+m}
        """)
    W0 = ra(4); W1 = ra(4)
    for m in range(2):
        a(f"""
        v_mul_f32 v{W0+2*m}, v{Cr+m}, v{Br+m}
        v_mul_f32 v{W0+2*m+1}, v{Cr+m}, v{Bi+m}
        v_fma_f32 v{W0+2*m}, -v{Ci+m}, v{Bi+m}, v{W0+2*m}
        v_fmac_f32 v{W0+2*m+1}, v{Ci+m}, v{Br+m}
        v_sub_f32 v{W0+2*m+1}, 0, v{W0+2*m+1}
        """)
    SIG = ra(); WM = ra(); CE = ra()
    a(f"""
    v_max_f32 v{SIG}, v{A2}, v{A2+1}
    v_max3_f32 v{WM}, |v{W0}|, |v{W0+1}|, |v{W0+2}|
    v_max_f32 v{WM}, |v{W0+3}|, v{WM}
    s_nop 1
    """)
    for ctl in ("quad_perm:[1,0,3,2]", "quad_perm:[2,3,0,1]", "row_half_mirror", "row_mirror"):
        a(f"""
        v_max_f32_dpp v{SIG}, v{SIG}, v{SIG} {ctl} row_mask:0xf bank_mask:0xf
        v_max_f32_dpp v{WM}, v{WM}, v{WM} {ctl} row_mask:0xf bank_mask:0xf
        s_nop 0
        """)
    a(f"""
    v_readlane_b32 s72, v{SIG}, 0
    v_readlane_b32 s73, v{SIG}, 16
    v_readlane_b32 s74, v{SIG}, 32
    v_readlane_b32 s75, v{SIG}, 48
    v_readlane_b32 s6, v{WM}, 0
    v_readlane_b32 s7, v{WM}, 16
    v_readlane_b32 s8, v{WM}, 32
    v_readlane_b32 s9, v{WM}, 48
    v_max_f32 v{SIG}, s72, v{SIG}
    v_max_f32 v{SIG}, s73, v{SIG}
    v_max_f32 v{SIG}, s74, v{SIG}
    v_max_f32 v{SIG}, s75, v{SIG}
    v_max_f32 v{WM}, s6, v{WM}
    v_max_f32 v{WM}, s7, v{WM}
    v_max_f32 v{WM}, s8, v{WM}
    v_max_f32 v{WM}, s9, v{WM}
    v_sub_f32 v{A2}, v{A2}, v{SIG}
    v_sub_f32 v{A2+1}, v{A2+1}, v{SIG}
    v_frexp_exp_i32_f32 v{CE}, v{WM}
    v_sub_u32 v{t0}, 14, v{CE}
    v_subrev_u32 v{CE}, 29, v{CE}
    """)
    for i in range(4):
        a(f"v_ldexp_f32 v{W0+i}, v{W0+i}, v{t0}")

    def cexp(l):
        r = ra(6)
        for m in range(2):
            a(f"""
            v_mul_f32 v{t0}, {f32(float(l))}, v{A2+m}
            v_mul_f32 v{t1}, {f32(float(l))}, v{TH+m}
            v_exp_f32 v{t0}, v{t0}
            v_fract_f32 v{t1}, v{t1}
            v_cos_f32 v{t2}, v{t1}
            v_sin_f32 v{t3}, v{t1}
            s_nop 0
            v_mul_f32 v{r+2*m}, v{t0}, v{t2}
            v_mul_f32 v{r+2*m+1}, v{t0}, v{t3}
            v_sub_f32 v{r+4+m}, 0, v{r+2*m+1}
            """)
        return r

    def cmul(d, x_, b, conj=False):
        for m in range(2):
            br, bi, nbi = b + 2 * m, b + 2 * m + 1, b + 4 + m
            if conj:
                bi, nbi = nbi, bi
            a(f"""
            v_mul_f32 v{d+2*m}, v{x_+2*m}, v{br}
            v_mul_f32 v{d+2*m+1}, v{x_+2*m}, v{bi}
            v_fmac_f32 v{d+2*m}, v{x_+2*m+1}, v{nbi}
            v_fmac_f32 v{d+2*m+1}, v{x_+2*m+1}, v{br}
            """)

    def neg(b):
        for m in range(2):
            a(f"v_sub_f32 v{b+4+m}, 0, v{b+2*m+1}")

    def scale(d, x_):
        for i in range(4):
            a(f"v_mul_f32 v{d+i}, {f32(32768.0)}, v{x_+i}")

    VB = [ra(32, 4), ra(32, 4), ra(32, 4), ra(18, 4)]
    CH0 = ra(0, 4)

    def put(batch, row, r):
        h = VB[batch] + 2 * row
        if r is None:
            a(f"v_mov_b32 v{h}, 0x7800\nv_mov_b32 v{h+1}, 0x7800")
        else:
            a(f"""
            v_cvt_pk_f16_f32 v{h}, v{r}, v{r+1}
            v_cvt_pk_f16_f32 v{h+1}, v{r+2}, v{r+3}
            """)

    E8 = cexp(8)
    cur, nxt = W0, W1
    for c in range(16):
        if c < 15:
            cmul(nxt, cur, E8, conj=True)
        put(0, c, cur)
        cur, nxt = nxt, cur
    if OPT.get("tagp") == 3:
        a(f"v_mov_b32 v{PR}, 0")
        a(nonce_ld(PR + 1, PR))
    E1 = cexp(1)
    Q1 = cexp(128)
    Q8 = cexp(1024)
    P = {}
    P[1] = ra(4)
    scale(P[1], E1)
    for j in range(2, 8):
        P[j] = ra(6 if j == 4 else 4)
        cmul(P[j], P[j - 1], E1)
    put(1, 0, None)
    for j in range(1, 8):
        put(1, j, P[j])
    scale(W0, Q1)
    put(1, 8, W0)
    for j in range(1, 8):
        cmul(W0, P[j], Q1)
        put(1, 8 + j, W0)
    Q = {1: Q1, 8: Q8}
    for j in range(2, 8):
        Q[j] = {2: E1, 3: PP + 4}[j] if j < 4 else P[2 * (j - 4) + 1]
        cmul(Q[j], Q[j - 1], Q1)
    neg(P[4]); neg(Q[2]); neg(Q[3])
    for qi, j in enumerate((2, 3)):
        scale(W0, Q[j])
        put(2, 4 * qi, W0)
        for r in range(1, 4):
            cmul(W0, P[2 * r], Q[j])
            put(2, 4 * qi + r, W0)
    for aa in range(4):
        scale(W0, Q[4 + aa])
        put(2, 8 + 2 * aa, W0)
        cmul(W0, Q[4 + aa], P[4])
        put(2, 8 + 2 * aa + 1, W0)
    if OPT.get("tagp", 0) == 0:
        a(f"v_mov_b32 v{PR}, 0")
        a(nonce_ld(PR + 1, PR))
    elif OPT.get("tagp") == 2:
        a(f"v_mov_b32 v{PR}, 0")
        a(nonce_ld(PR + 1, PR).replace(" sc1", ""))
    QS = E8
    scale(QS, Q8)
    neg(QS)
    put(3, 0, QS)
    for j in range(1, 8):
        cmul(W0, Q[j], QS)
        put(3, j, W0)
    cmul(W0, Q8, QS)
    put(3, 8, W0)
    for i in range(12):
        a(f"v_mul_f32 v{LP+i}, v{SIG}, v{LP+i}")
    for i in range(12):
        a(f"v_exp_f32 v{LP+i}, v{LP+i}")

    a = ph2
    YF = CH0
    AC = CH0 + 32
    assert AC + 12 <= ra.p

    def wr(batch, nrows):
        for row in range(nrows):
            a(f"ds_write_b64 v{WR+(row&7)}, {v(VB[batch]+2*row,2)} offset:{(row>>3)*128}")

    def fetch(F):
        for ks in range(8):
            a(f"ds_read_b128 {v(F+4*ks,4)}, v{RD+(ks&1)} offset:{(ks>>1)*2048}")

    def mfmas(tile, XF):
        for ks in range(8):
            c = "0" if ks == 0 else v(AC + 4 * tile, 4)
            a(f"v_mfma_f32_16x16x32_f16 {v(AC+4*tile,4)}, {v(XF+4*ks,4)}, {v(YF+4*ks,4)}, {c}")

    a("s_waitcnt vmcnt(0)")
    ng = plain(nonce_get(f"NK{sfx}", PR + 1, PR))
    a(f"v_mov_b32 v{t2}, {N_LDS}")
    a(f"ds_write_b32 v{t2}, v{PR+1}")
    wr(0, 16); fetch(YF)
    wr(1, 16); fetch(VB[0])
    wr(2, 16); fetch(VB[1])
    a("s_waitcnt lgkmcnt(14)")
    mf0 = len(a.L)
    wr(3, 9); fetch(VB[2])
    tail = a.L[mf0:]
    del a.L[mf0:]
    m = Asm()
    sv, a = a, m
    mfmas(0, VB[0])
    a = sv
    for i in range(8):
        a.ext(tail[2 * i:2 * i + 2])
        a(m.L[i])
    a.ext(tail[16:])
    a("s_waitcnt lgkmcnt(14)")
    mfmas(1, VB[1])
    a("s_waitcnt lgkmcnt(0)")
    mfmas(2, VB[2])
    a("s_nop 3")
    for i in range(12):
        a(f"v_mul_f32 v{AC+i}, v{AC+i}, v{LP+i}")
    for i in range(12):
        a(f"v_ldexp_f32 v{AC+i}, v{AC+i}, v{CE}")
    a(f"v_add_f32 v{AC}, v{AC}, v{DV}")
    a(f"ds_write_b128 v{TA0}, {v(AC,4)}")
    a(f"ds_write_b64 v{TA1}, {v(AC+4,2)}")
    a(f"ds_write_b64 v{TA2}, {v(AC+6,2)}")
    for r in range(4):
        a(f"ds_write_b32 v{TA3}, v{AC+8+r} offset:{2048+64*r}")
    G0 = VB[0]
    OUT = VB[1]
    for i in range(8):
        a(f"ds_read_b32 v{G0+i}, v{EX+i}")
    a(f"""
    ds_read_b64 {v(G0+8,2)}, v{EX+8} offset:1536
    ds_read_b32 v{G0+10}, v{EX+8} offset:1544
    ds_read2_b32 {v(G0+12,2)}, v{EX+9} offset0:0 offset1:1
    ds_read2_b32 {v(G0+14,2)}, v{EX+9} offset0:64 offset1:65
    v_lshlrev_b32 v{t0}, 4, v0
    v_add_u32 v{t0}, s70, v{t0}
    v_and_b32 v{t1}, 3, v0
    v_lshlrev_b32 v{t1}, 4, v{t1}
    v_add_u32 v{t1}, s70, v{t1}
    v_mov_b32 v{OUT+16}, 0
    v_mov_b32 v{OUT+17}, 0
    v_mov_b32 v{OUT+18}, 0
    v_mov_b32 v{OUT+19}, 0
    s_mov_b32 s72, 0xaaaaaaaa
    s_mov_b32 s73, 0xaaaaaaaa
    ds_write_b128 v{t1}, {v(OUT+16,4)} offset:{KARR}
    s_waitcnt lgkmcnt(0)
    """)
    for k in range(4):
        a(f"v_cvt_pk_bf16_f32 v{OUT+k}, v{G0+2*k}, v{G0+2*k+1}")
    a(f"""
    v_cvt_pk_bf16_f32 v{OUT+4}, v{G0+8}, v{G0+8}
    v_cvt_pk_bf16_f32 v{OUT+5}, v{G0+8}, v{G0+9}
    v_cvt_pk_bf16_f32 v{OUT+6}, v{G0+9}, v{G0+9}
    v_cvt_pk_bf16_f32 v{OUT+7}, v{G0+10}, v{G0+10}
    """)
    for it in (2, 3):
        T0, T1 = G0 + 8 + 2 * it, G0 + 9 + 2 * it
        o = OUT + 4 * it
        a(f"""
        v_cndmask_b32 v{t2}, v{T0}, v{T1}, s[72:73]
        v_cvt_pk_bf16_f32 v{o}, v{T0}, v{T0}
        v_cvt_pk_bf16_f32 v{o+1}, v{T0}, v{T0}
        v_cvt_pk_bf16_f32 v{o+2}, v{t2}, v{T1}
        v_cvt_pk_bf16_f32 v{o+3}, v{T1}, v{T1}
        """)
    a(f"v_mov_b32 v{t2}, 0")
    for it in range(4):
        a(f"ds_write_b128 v{t0}, {v(OUT+4*it,4)} offset:{KARR+64+1024*it}")
    if OPT.get("dbgk"):
        a(f"""
        s_lshl_b32 s72, s69, 12
        s_add_u32 s72, s72, {KX_OFF}
        v_lshlrev_b32 v{t0}, 4, v0
        """)
        for it in range(4):
            a(f"buffer_store_dwordx4 {v(OUT+4*it,4)}, v{t0}, {sr(SRD_WS)}, s72 offen offset:{1024*it}")
    a("s_waitcnt vmcnt(0) lgkmcnt(0)")
    ph2.L[1:1] = ["\n    ".join(ng)]

    out = list(pre.L)
    out.extend(stamp(1))
    kx = OPT.get("kx", 0)
    if kx == 9:
        main.L = [x for x in main.L if not x.startswith(("v_mul_f32", "v_fmac", "v_cvt_pk_f16"))]
    if kx == 1:
        ph2.L = []
    elif kx == 2:
        ph2.L = [x for x in ph2.L if not x.startswith("v_mfma")]
    elif kx == 3:
        ph2.L = [x for x in ph2.L if not x.startswith("ds_write")]
    elif kx == 4:
        ph2.L = [x for x in ph2.L if not x.startswith("ds_read")]
    elif kx == 5:
        L2 = []
        for x in ph2.L:
            L2.append(x)
            if x.startswith("ds_write_b64"):
                L2.append("s_nop 3")
        ph2.L = L2
    if gemm_wg:
        per = OPT.get("kper", 132)
        first = OPT.get("kfirst", 0)
        p2a = OPT.get("kp2a", 48)
        p2b = OPT.get("kp2b", 100)
        kw_ = {0: [1.0, 1.35, 1.1, 1.0, 1.0, 1.0, 0.0], 1: [0.9, 1.4, 1.15, 1.0, 1.0, 1.0, 0.0], 2: [1.0, 1.3, 1.1, 1.0, 1.0, 1.0, 0.3],
               3: [1.1, 1.45, 1.2, 1.0, 1.0, 1.0, 0.0], 4: [1.0, 1.0, 1.0, 1.0, 1.0, 0.8, 0.0]}[OPT.get("kw", 3)]
        cost = [2.0 if x.startswith(("v_exp", "v_sin", "v_cos", "v_rcp")) else 1.0 for x in main.L]
        tot = sum(cost)
        cuts, accum, j = [], 0.0, 0
        run = 0.0
        for w_ in kw_:
            accum += w_ / sum(kw_) * tot
            while j < len(cost) and run + cost[j] <= accum + 1e-6:
                run += cost[j]
                j += 1
            cuts.append(j)
        cuts[-1] = len(main.L)
        if kw_[-1] == 0:
            cuts[-2] = len(main.L)
        pos = 0
        for sidx in range(9):
            out.extend(bstamp(2, 1 + sidx))
            out.append("s_barrier")
            if sidx < 7:
                out.extend(main.L[pos:cuts[sidx]])
                pos = cuts[sidx]
            if sidx < 6:
                pass
            elif sidx == 6:
                out.extend(ph2.L[:p2a])
            elif sidx == 7:
                out.extend(ph2.L[p2a:p2b])
            else:
                out.extend(ph2.L[p2b:])
        out.extend(stamp(2))
    else:
        ks1 = OPT.get("ks1", 250)
        out.extend(main.L[:ks1])
        out.append("s_barrier")
        out.extend(main.L[ks1:])
        out.extend(ph2.L)
        out.extend(stamp(2))
    out.append("s_mov_b32 s6, s68")
    out.append("s_branch L_CONVB")
    return out


def fu_code(vaddr, vtmp, vdst, sd):
    setup = [f"s_lshr_b32 s16, s{sd}, 7", "s_lshl_b32 s16, s16, 7", f"s_lshr_b32 s17, s{sd}, 3", "s_and_b32 s17, s17, 8",
             "s_add_u32 s16, s16, s17", f"s_add_u32 s16, s16, {FU_OFF}",
             f"v_and_b32 v{vaddr}, 7, v0", f"v_lshlrev_b32 v{vaddr}, 9, v{vaddr}"]
    ld = [f"buffer_load_dwordx2 v[{vdst}:{vdst+1}], v{vaddr}, {sr(SRD_WS)}, s16 offen sc1"]
    chk = [f"v_cmp_eq_u32 vcc, s{S_NONCE}, v{vdst}", f"v_cmp_eq_u32 s[50:51], s{S_NONCE}, v{vdst+1}", "s_nop 3",
           "s_and_b64 vcc, vcc, s[50:51]", "s_cmp_eq_u64 vcc, exec"]
    return setup, ld, chk


def u_dma(vl16, sd):
    L = [f"s_mul_i32 s52, s6, {USZ}", f"s_mul_i32 s53, s{sd}, {DP}", f"s_add_u32 s53, s53, {UT_OFF}"]
    for r in range(4):
        L += [f"s_add_u32 m0, s52, {U_BASE + r*UPITCH + 112}", "s_nop 0",
              f"buffer_load_dwordx4 v{vl16}, {sr(SRD_WS)}, s53 offen sc1 lds", "s_add_u32 s53, s53, 1024"]
    return L


def lwave(gemm_wg):
    sfx = "G" if gemm_wg else "S"
    a = Asm()
    XV, WV, VL, VC = 8, 12, 2, 16
    t0, t1, t2 = 3, 4, 5
    DUM = 24
    ROT = OPT.get("rot", 0)
    FL8 = OPT.get("fl8", 1)
    SW = 12
    a("s_setprio 3")

    def kofs(st):
        if not ROT:
            return []
        return [f"s_add_u32 s18, s{S_PHI}, {st}", "s_and_b32 s18, s18, 7", f"s_mul_i32 s19, s18, {64*3584}",
                "s_lshl_b32 s18, s18, 7"]

    def grp(st, g):
        sl = st % 3
        if g in (1, 5):
            j = 0 if g == 1 else 1
            L = [f"s_add_u32 m0, s{10+j}, {sl*SLOT}", f"s_add_u32 s22, s{8+j}, {'s18' if ROT else st*128}"]
            L += [f"buffer_load_dwordx4 v{XV+i}, {sr(SRD_X)}, s22 offen offset:{1024*i} lds" for i in range(4)]
        else:
            j = 0 if g == 0 else g - 1
            L = [f"s_add_u32 m0, s{72+j}, {sl*SLOT}", f"s_add_u32 s22, s{68+j}, {'s19' if ROT else st*64*3584}"]
            L += [f"buffer_load_dwordx4 v{WV+i}, {sr(SW)}, s22 offen offset:{1024*i} lds" for i in range(4)]
        return L

    def pref(st):
        L = [f"s_add_u32 s22, s68, {st*64*3584}"]
        L += [f"buffer_load_dwordx4 {v(DUM+4*i,4)}, v{WV+i}, {sr(SW)}, s22 offen offset:{1024*i}" for i in range(4)]
        L += [f"s_add_u32 s22, s23, {st*128}"]
        L += [f"buffer_load_dwordx4 {v(DUM+16+4*i,4)}, v{XV+i}, {sr(SRD_X)}, s22 offen offset:{1024*i}" for i in range(2)]
        return L

    fu_setup, fu_ld, fu_chk = fu_code(t1, t2, VC, 7)

    def poll_setup():
        a(f"""
        s_lshl_b32 s7, s2, 1
        s_add_u32 s7, s7, s6
        v_lshlrev_b32 v{VL}, 4, v0
        s_mov_b32 s77, 0x100000
        v_mov_b32 v20, 0
        v_mov_b32 v21, 0
        v_mov_b32 v22, 0
        v_mov_b32 v23, 0
        """)
        a.ext(fu_setup)

    STG = 24
    assert STG + 16 * n1() <= 256

    def wd_setup():
        a(f"""
        v_lshrrev_b32 v20, 3, v0
        v_and_b32 v21, 7, v0
        v_lshrrev_b32 v22, 1, v20
        v_and_b32 v22, 1, v22
        v_lshlrev_b32 v22, 2, v22
        v_xor_b32 v21, v21, v22
        v_lshlrev_b32 v18, 10, v20
        v_lshl_add_u32 v18, v21, 4, v18
        v_add_u32 v19, {wd_second()}, v18
        """)
        a(cb64_scalar(17, 3))
        if OPT.get("fakecb") and not gemm_wg:
            a("s_xor_b32 s17, s17, 1")
        a(f"""
        s_lshl_b32 s17, s17, 7
        s_mul_i32 s3, s6, {3*28*16384}
        s_add_u32 s3, s3, s17
        s_sub_u32 s48, 2, s6
        s_lshl_b32 s49, s48, 15
        v_add_u32 v1, s49, v{VL}
        s_mul_i32 s48, s48, {28*16384}
        s_add_u32 s48, s48, s17
        s_mul_i32 s17, s6, {3*RING2}
        v_add_u32 v7, s17, v{VL}
        """)
        a(rot_scalar(76, 17))
        a("s_mov_b32 s49, s76")

    wpos = [0, 0]
    cur_sidx = [0]
    wwp = [0, 0]

    def wd_ld(g, n):
        sb, ss = ((3, 76), (48, 49))[g]
        for _ in range(n):
            i = wpos[g]
            if i >= n1():
                break
            wpos[g] += 1
            R = STG + 8 * (g * n1() + i)
            a.ext(wd_step_off(22, ss, 17))
            a(f"""
            s_add_u32 s22, s22, s{sb}
            buffer_load_dwordx4 {v(R,4)}, v18, {sr(SRD_WD)}, s22 offen
            s_add_u32 s{ss}, s{ss}, 1
            s_cmp_ge_u32 s{ss}, 28
            s_cselect_b32 s{ss}, 0, s{ss}
            buffer_load_dwordx4 {v(R+4,4)}, v19, {sr(SRD_WD)}, s22 offen
            """)
            a.tag(f"wd{g}_{i}")
            if gemm_wg and OPT.get("lthr") and cur_sidx[0] >= 6:
                a(f"s_waitcnt vmcnt({OPT['lthr']})")

    def wd_wr(g, n):
        for i in range(wwp[g], min(n1(), wwp[g] + n)):
            wwp[g] = i + 1
            R = STG + 8 * (g * n1() + i)
            a.wait(f"wd{g}_{i}")
            for k in range(2):
                a(f"ds_write_b128 v{(7, 1)[g]}, {v(R+4*k,4)} offset:{i*2048 + k*1024}")

    def u_load():
        a(f"""
        s_cselect_b32 s19, {0 if OPT.get("forceslow") else 1}, 0
        s_mul_i32 s18, s6, {USZ}
        s_add_u32 s18, s18, {U_BASE}
        v_mov_b32 v20, 0
        v_mov_b32 v21, 0
        v_mov_b32 v22, 0
        v_mov_b32 v23, 0
        v_and_b32 v{t2}, 7, v0
        v_lshrrev_b32 v6, 3, v0
        v_and_b32 v6, 3, v6
        v_min_u32 v{t2}, 6, v{t2}
        v_mul_u32_u24 v6, {UPITCH}, v6
        v_lshl_add_u32 v{t2}, v{t2}, 4, v6
        v_add_u32 v{t2}, s18, v{t2}
        ds_write_b128 v{t2}, v[20:23]
        s_lshl_b32 s18, s6, 2
        s_add_u32 s18, s18, {S_LDS}
        v_mov_b32 v{t2}, s18
        v_mov_b32 v6, s19
        ds_write_b32 v{t2}, v6
        s_cmp_eq_u32 s19, 0
        s_cbranch_scc1 NOU{sfx}
        """)
        a.ext([("NOCOUNT", x) if is_vmem(x) else x for x in u_dma(VL, 7)])
        a(f"NOU{sfx}:")

    if gemm_wg:
        def wgrp(j):
            a(f"""
            s_add_u32 s17, s18, {j}
            s_and_b32 s17, s17, 3
            s_mul_i32 s{68+j}, s17, {16*3584}
            s_add_u32 s{68+j}, s{68+j}, s23
            s_lshl_b32 s{72+j}, s17, 12
            s_add_u32 s{72+j}, s{72+j}, s16
            """)
        a(f"""
        v_lshrrev_b32 v{t0}, 4, v0
        v_and_b32 v{t1}, 15, v0
        s_mov_b32 s18, s68
        s_mov_b32 s19, s69
        v_lshlrev_b32 v{t2}, 2, v{t0}
        s_lshl_b32 s23, s{S_CB}, 8
        v_xor_b32 v{t1}, v{t1}, v{t2}
        s_lshl_b32 s16, s6, 14
        v_mul_u32_u24 v{t0}, 3584, v{t0}
        s_add_u32 s16, s16, 16384
        v_lshl_add_u32 v{WV}, v{t1}, 4, v{t0}
        s_mov_b32 s{SW+2}, {512*1792*2}
        s_mov_b32 s{SW+3}, 0x00020000
        """)
        if M16():
            a(f"""
            v_xor_b32 v{t1}, 2, v{t1}
            v_add_u32 v{WV+1}, {4*3584-1024}, v{WV}
            v_lshl_add_u32 v{WV+2}, v{t1}, 4, v{t0}
            v_add_u32 v{WV+3}, {(4*3584-1024)*3}, v{WV+2}
            v_add_u32 v{WV+2}, {(4*3584-1024)*2}, v{WV+2}
            """)
        else:
            for i in range(1, 4):
                a(f"v_add_u32 v{WV+i}, {(4*3584-1024)*i}, v{WV}")
        wgrp(0)
        a.ext(bstamp(6, 1))
        a(f"""
        s_cmp_eq_u32 s6, 0
        s_waitcnt lgkmcnt(0)
        s_cselect_b32 s{SW}, s{S_WG}, s{S_WU}
        s_cselect_b32 s{SW+1}, s{S_WG+1}, s{S_WU+1}
        s_and_b32 s{SW+1}, s{SW+1}, 0xffff
        """)
        assert not ROT
        a.ext(bstamp(6, 2))
        a.ext(grp(0, 0))
        wgrp(1)
        a.ext(grp(0, 2))
        wgrp(2)
        a.ext(grp(0, 3))
        wgrp(3)
        a.ext(grp(0, 4))
        a(f"""
        v_lshrrev_b32 v{t0}, 3, v0
        v_and_b32 v{t1}, 7, v0
        v_lshrrev_b32 v{t2}, 1, v{t0}
        v_xor_b32 v{t1}, v{t1}, v{t2}
        v_lshlrev_b32 v{t0}, 10, v{t0}
        """)
        for i in range(4):
            a(f"""
            v_xor_b32 v{t2}, {4*(i&1)}, v{t1}
            v_lshl_add_u32 v{XV+i}, v{t2}, 4, v{t0}
            v_add_u32 v{XV+i}, {7168*i}, v{XV+i}
            """)
        a(f"""
        s_and_b32 s17, s19, 1
        s_lshl_b32 s17, s17, 1
        s_add_u32 s17, s17, s6
        s_lshl_b32 s16, s{S_RB}, 17
        s_lshl_b32 s8, s17, 15
        s_add_u32 s8, s8, s16
        s_lshl_b32 s10, s17, 12
        s_xor_b32 s17, s17, 2
        s_lshl_b32 s9, s17, 15
        s_add_u32 s9, s9, s16
        s_lshl_b32 s11, s17, 12
        s_mov_b32 s{SRD_X}, s{S_U}
        s_and_b32 s{SRD_X+1}, s{S_U+1}, 0xffff
        s_mov_b32 s{SRD_X+2}, {2048*512*2}
        s_mov_b32 s{SRD_X+3}, 0x00020000
        """)
        a.ext(grp(0, 1))
        a.ext(grp(0, 5))
        a.tag("st0")
        a(f"""
        s_lshl_b32 s22, s19, 1
        s_add_u32 s22, s22, s6
        s_and_b32 s22, s22, 7
        s_lshl_b32 s23, s22, 14
        s_add_u32 s23, s23, s16
        """)
        tail = {3: "S5 R5", 4: "S6 R6", 5: "S7 R7"}
        scheds = [
            {-1: "S0 S1 S2 R0 P3 P4", 0: "R1 P5 P6", 1: "R2 P7 S3", 2: "R3 S4 R4"},
            {-1: "S0 S1 S2 R0 R1", 0: "P3 P4 R2", 1: "P5 P6 P7 S3 R3", 2: "S4 R4"},
            {-1: "S0 R0 S1 R1", 0: "S2 R2", 1: "S3 R3", 2: "S4 R4"},
            {-1: "S0 R0 S1", 0: "R1 S2", 1: "R2 S3", 2: "R3 S4 R4"},
            {-1: "S0 R0 S1 S2 P3", 0: "R1 P4 P5", 1: "R2 P6 P7 S3", 2: "R3 S4 R4"},
            {-1: "S0 R0 S1 S2", 0: "R1 R2", 1: "S3 R3", 2: "S4 R4"},
            {-1: "S0 R0 S1 S2", 0: "R1 R2", 1: "S3 R3 P5", 2: "S4 R4 P6 P7"},
            {-1: "S0 R0 S1 S2", 0: "R1 R2 P3", 1: "S3 R3 P4 P5", 2: "S4 R4 P6 P7"},
            {-1: "S0 R0 S1 R1", 0: "S2", 1: "R2 S3", 2: "R3 S4 R4"},
            {-1: "S0 R0 S1 R1", 0: "S2", 1: "R2 S3 R3", 2: "S4 R4"},
            {-1: "S0 R0 S1 S2", 0: "R1", 1: "R2 S3 R3", 2: "S4 R4"},
        ]
        sched = dict(scheds[OPT.get("lsched", 5)])
        sched.update(tail)
        MP = OPT.get("mp", 1)
        if "zp" in OPT:
            sched[OPT["zp"]] += " Z0"
        if "yp" in OPT:
            sched[OPT["yp"]] += " Y0"
        NPF = OPT.get("np", 0)
        if NPF >= -1:
            sched[NPF] += " N0"
        if MP >= 0:
            sched[MP] += " M0"

        def issue(k):
            for tok in sched.get(k, "").split():
                st = int(tok[1:])
                if tok[0] == "S":
                    a.ext(kofs(st) + grp(st, 0) + grp(st, 1))
                elif tok[0] == "R":
                    a.ext(kofs(st))
                    for g in (2, 5, 3, 4):
                        a.ext(grp(st, g))
                    a.tag(f"st{st}")
                elif tok[0] == "P":
                    assert not ROT
                    a.ext(pref(st))
                elif tok[0] in "ZY":
                    a(f"""
                    s_lshl_b32 s22, s{S_RB}, 1
                    s_add_u32 s22, s22, s6
                    s_mul_i32 s22, s22, 224
                    s_lshl_b32 s17, s{S_CB}, 3
                    s_add_u32 s22, s22, s17
                    s_lshl_b32 s22, s22, 10
                    """)
                    for tt in range(2):
                        for hh in range(2):
                            for i in range(4):
                                if tok[0] == "Z":
                                    a(f"buffer_store_dwordx4 v[20:23], v{VL}, {sr(SRD_WS)}, s22 offen offset:{1024*i} sc1")
                                else:
                                    a(f"buffer_load_dwordx4 {v(DUM+4*i,4)}, v{VL}, {sr(SRD_WS)}, s22 offen offset:{1024*i} sc1")
                            a(f"s_add_u32 s22, s22, {4096 if hh == 0 else 112*1024 - 4096}")
                elif tok[0] == "N":
                    a(f"""
                    s_mul_i32 s22, s{S_XCD}, 28
                    s_add_u32 s22, s22, s{S_IDX}
                    s_mul_i32 s22, s22, 5120
                    s_add_u32 s22, s22, {192*3584}
                    v_lshlrev_b32 v{VL}, 4, v0
                    s_add_u32 s17, s22, 4096
                    """)
                    for i in range(4):
                        a(f"buffer_load_dwordx4 {v(DUM+16+4*i,4)}, v{VL}, {sr(SW)}, s22 offen offset:{1024*i}")
                    a(f"buffer_load_dwordx4 {v(DUM+32,4)}, v{VL}, {sr(SW)}, s17 offen")
                elif tok[0] == "M":
                    a(f"""
                    s_mul_i32 s22, s{S_XCD}, 28
                    s_add_u32 s22, s22, s{S_IDX}
                    s_lshl_b32 s22, s22, 1
                    s_add_u32 s22, s22, s6
                    s_lshl_b32 s22, s22, 12
                    """)
                    for i in range(4):
                        a(f"buffer_load_dwordx4 {v(DUM+4*i,4)}, v{VL}, {sr(SRD_WD)}, s22 offen offset:{1024*i}")
        sched[-1] = sched[-1].replace("S0", "").replace("R0", "")
        issue(-1)
        a.ext(bstamp(6, 4))
        a.ext(stamp(1))
        srd(a, SRD_WS, S_WS, WS_BYTES)
        srd(a, SRD_WD, S_WD, 1792 * 512 * 2)
        poll_setup()
        for sidx in range(9):
            if sidx < 8:
                a.wait(f"st{sidx}")
            a.ext(bstamp(2, 1 + sidx))
            if sidx < 4:
                a.ext(bstamp(6, 5 + sidx))
            a("s_barrier")
            if sidx in (0, 3):
                a.ext(stamp(2 + (0, 3).index(sidx)))
            issue(sidx)
            cur_sidx[0] = sidx
            if sidx == 2:
                wd_setup()
            if sidx == 6:
                a(f"s_setprio {OPT.get('lprio', 1)}")
            if 2 <= sidx <= 7:
                n = OPT.get(f"w{sidx}", {2: 0, 3: 0, 4: 0, 5: 6, 6: 11, 7: 11}[sidx])
                k = min(n, n1() - wpos[0])
                wd_ld(0, k)
                wd_ld(1, n - k)
            if sidx == 7:
                a.ext(fu_ld)
                a.tag("fu")
            if sidx == 8:
                a.ext(stamp(4))
                a(f"v_mov_b32 v6, {N_LDS}\nds_read_b32 v6, v6")
                wd_ld(0, 28)
                wd_ld(1, 28)
                wd_wr(0, OPT.get("e8", 6))
                a("s_waitcnt vmcnt(0)")
                a.L.append(("VMRESET",))
                a(f"s_waitcnt lgkmcnt(0)\nv_readfirstlane_b32 s{S_NONCE}, v6\ns_nop 3")
                a.ext(fu_chk)
                u_load()
                wd_wr(0, 28)
                wd_wr(1, 28)
        a("s_waitcnt vmcnt(0) lgkmcnt(0)")
        a.ext(stamp(5))
    else:
        a("s_waitcnt lgkmcnt(0)")
        srd(a, SRD_WS, S_WS, WS_BYTES)
        srd(a, SRD_WD, S_WD, 1792 * 512 * 2)
        poll_setup()
        wd_setup()
        a(f"v_mov_b32 v{t0}, 0")
        a("s_barrier")
        thr = OPT.get("sthr", 4)
        if thr:
            for _ in range(thr):
                wd_ld(0, 2)
                a("s_waitcnt vmcnt(0)")
        wd_ld(0, 28)
        wd_ld(1, 28)
        a(nonce_ld(6, t0))
        a.ext(fu_ld)
        wd_wr(0, 28)
        a("s_waitcnt vmcnt(0)")
        a.L.append(("VMRESET",))
        a.ext(stamp(4))
        a.ext(nonce_get(f"NL{sfx}", 6, t0))
        a.ext(fu_chk)
        u_load()
        wd_wr(1, 28)
        a("s_waitcnt vmcnt(0) lgkmcnt(0)")
        a.ext(stamp(5))
    a("s_branch L_CONVA")
    return resolve_vm(a.L)


def conv(a0, partB):
    a = Asm()
    KA, UA, YA = 2, 3, 5
    BAL = OPT.get("bal", 0)
    if BAL:
        qs = outq = [2, 3, 4, 5] if partB else [0, 1, 6, 7]
        qsend, qrecv = (5, 2) if partB else (1, 6)
    else:
        qs, outq = ([5, 6, 7], [6, 7]) if partB else ([0, 1, 2, 3, 4, 5], [0, 1, 2, 3, 4, 5])
        qsend = qrecv = None
    a(f"""
    s_lshl_b32 s8, s6, 13
    s_add_u32 s8, s8, {KG_BASE + KARR + 32}
    s_mul_i32 s9, s6, {USZ}
    s_add_u32 s9, s9, {U_BASE + 16}
    v_lshrrev_b32 v6, 2, v0
    v_and_b32 v10, 7, v6
    v_and_b32 v6, 3, v6
    v_and_b32 v7, 3, v0
    v_lshrrev_b32 v8, 4, v0
    v_and_b32 v8, 1, v8
    v_lshrrev_b32 v9, 5, v0
    v_mul_u32_u24 v{UA}, {UPITCH}, v7
    v_sub_u32 v10, v10, v9
    v_lshl_add_u32 v{UA}, v10, 4, v{UA}
    v_add_u32 v{UA}, s9, v{UA}
    v_lshlrev_b32 v{KA}, 5, v8
    v_lshl_add_u32 v{KA}, v7, 3, v{KA}
    v_lshl_add_u32 v{KA}, v9, 6, v{KA}
    v_lshlrev_b32 v10, 3, v6
    v_sub_u32 v{KA}, v{KA}, v10
    v_add_u32 v{KA}, s8, v{KA}
    """)
    qmax = max(qs)
    nst = 4 * qmax + 4
    NU = 4
    UBUF = 8
    KT = 24
    ACC = KT + 4 * nst
    TMP = ACC + 16 * len(qs)
    assert TMP + 3 * len(qs) + 1 <= 256
    XR = TMP + 12
    XS_A, XR_A, XF = XR + 4, XR + 5, XR + 6

    def acc(q):
        return ACC + 16 * qs.index(q)

    need = {}
    for i in range(nst):
        for q in qs:
            s_ = 4 * q + 3 - i
            if s_ >= 0 and s_ not in need:
                need[s_] = i

    def rd(i):
        L = [f"ds_read_b128 {v(UBUF+4*(i%NU),4)}, v{UA} offset:{32*i}"]
        for s_ in sorted(s for s in need if need[s] == i):
            L += [f"ds_read_b64_tr_b16 {v(KT+4*s_,2)}, v{KA} offset:{128*s_+32}",
                  f"ds_read_b64_tr_b16 {v(KT+4*s_+2,2)}, v{KA} offset:{128*s_}"]
        L.append(("LTAG", f"R{i}"))
        return L

    PF = NU - 1
    a(f"""
    v_and_b32 v4, 7, v0
    v_lshrrev_b32 v{YA}, 3, v0
    v_lshlrev_b32 v{YA}, 4, v{YA}
    v_lshl_add_u32 v{YA}, v4, 7, v{YA}
    v_mov_b32 v6, 0
    v_mov_b32 v7, s{S_NONCE}
    s_mov_b32 s12, 0
    s_mov_b32 s13, 0x80000000
    s_mov_b32 s14, 0
    s_mov_b32 s15, 0xc0000000
    s_mov_b32 s16, 0
    s_mov_b32 s17, 0xe0000000
    s_lshl_b32 s7, s2, 1
    s_add_u32 s7, s7, s6
    s_mul_i32 s18, s7, {DP}
    s_add_u32 s18, s18, {Y_OFF}
    s_lshl_b32 s19, s2, 4
    s_add_u32 s19, s19, s6
    s_lshl_b32 s19, s19, 3
    s_add_u32 s19, s19, {FY_OFF + (4 if partB else 0)}
    """)
    a(f"s_setprio {OPT.get('cprio', 3)}")
    P = "B" if partB else "A"
    if BAL:
        a(f"""
        s_lshl_b32 s52, s6, 8
        v_max_u32 v{XS_A}, 60, v0
        v_lshlrev_b32 v{XS_A}, 4, v{XS_A}
        s_add_u32 s52, s52, {X_LDS - 960}
        v_add_u32 v{XS_A}, s52, v{XS_A}
        v_add_u32 v{XR_A}, {0 if partB else 128}, v{XS_A}
        v_add_u32 v{XS_A}, {128 if partB else 0}, v{XS_A}
        """)
    a(f"""
    s_lshl_b32 s52, s6, 2
    s_add_u32 s52, s52, {S_LDS}
    v_mov_b32 v4, s52
    """)
    a("s_barrier")
    a.ext(stamp(6))
    a("ds_read_b32 v4, v4")
    a.L.append(("LTAG", "ST"))
    a(f"CV{P}_GO:")
    a.ext(rd(0))
    a.L.append(("LWAIT", "ST"))
    a(f"""
    v_readfirstlane_b32 s52, v4
    s_nop 3
    s_cmp_eq_u32 s52, 0
    s_cbranch_scc1 CV{P}_SLOW
    """)
    a.ext(rd(1))

    def Y(q, g, rho):
        return acc(q) + 4 * g + rho

    dpp = "wave_ror:1 row_mask:0xf bank_mask:0xf"
    ctl = "row_mask:0xf bank_mask:0xf"

    def post(q):
        L = []
        Z = {}
        for g in (3, 2, 1, 0):
            for rho in (1, 2, 3):
                Z[g, rho] = TMP + 3 * qs.index(q) + rho - 1 if g == 3 else Y(q, g, rho)
                if g > 0:
                    prev = f"v{Y(q,g-1,rho)}"
                elif q == qrecv:
                    prev = f"v{XR+rho}"
                elif q > 0:
                    prev = f"v{Y(q-1,3,rho)}"
                else:
                    prev = "v6"
                L.append(f"v_cndmask_b32 v{Z[g,rho]}, v{Y(q,g,rho)}, {prev}, s[{10+2*rho}:{11+2*rho}]")
        for g in (3, 2, 1, 0):
            L.append(f"v_add_f32_dpp v{Z[g,2]}, v{Z[g,3]}, v{Z[g,2]} {dpp}")
        for g in (3, 2, 1, 0):
            L.append(f"v_add_f32_dpp v{Z[g,1]}, v{Z[g,2]}, v{Z[g,1]} {dpp}")
        for g in (3, 2, 1, 0):
            L.append(f"v_add_f32_dpp v{Y(q,g,0)}, v{Z[g,1]}, v{Y(q,g,0)} {dpp}")
        return L

    def stage(S_, D_, bit, stride):
        m = {0: 0xaaaaaaaa, 1: 0xcccccccc, 2: 0xf0f0f0f0}[bit]
        up = {0: "quad_perm:[1,0,3,2]", 1: "quad_perm:[2,3,0,1]", 2: "row_ror:12"}[bit]
        dn = {0: "quad_perm:[1,0,3,2]", 1: "quad_perm:[2,3,0,1]", 2: "row_ror:4"}[bit]
        L = [f"s_mov_b32 vcc_lo, {m:#x}", f"s_mov_b32 vcc_hi, {m:#x}"]
        idx = [i for i in range(len(S_)) if not (i // stride) & 1]
        L += [f"v_cndmask_b32_dpp v{D_[i+stride]}, v{S_[i]}, v{S_[i+stride]}, vcc {up} {ctl}" for i in idx]
        L += ["s_not_b64 vcc, vcc"]
        L += [f"v_cndmask_b32_dpp v{D_[i]}, v{S_[i+stride]}, v{S_[i]}, vcc {dn} {ctl}" for i in idx]
        return L

    def xpose(q):
        S0 = [Y(q - 1 + (g >> 2), g & 3, 0) for g in range(8)]
        free = [Y(qq, g, r) for qq in (q - 1, q) for g in range(3) for r in (1, 2, 3)]
        D0 = free[:8]
        S1 = free[8:12]
        D1 = free[12:16]
        D2 = [acc(q - 1) + i for i in range(4)]
        L = stage(S0, D0, 0, 1)
        L += [f"v_cvt_pk_bf16_f32 v{S1[g]}, v{D0[2*g]}, v{D0[2*g+1]}" for g in range(4)]
        L += stage(S1, D1, 1, 1)
        L += stage(D1, D2, 2, 2)
        L.append(f"buffer_store_dwordx4 {v(D2[0],4)}, v{YA}, {sr(SRD_WS)}, s18 offen offset:{(q-1)*512} sc1")
        return L

    def send(q):
        return ["\n    ".join(["s_mov_b32 exec_lo, 0", "s_mov_b32 exec_hi, 0xf0000000",
                               f"ds_write_b128 v{XS_A}, {v(Y(q,3,0),4)}", f"ds_write_b32 v{XS_A}, v7 offset:64",
                               "s_mov_b64 exec, -1"]), ("LCOUNT", 2)]

    xrd = [f"ds_read_b32 v{XF}, v{XR_A} offset:64", f"ds_read_b128 {v(XR,4)}, v{XR_A}"]

    def recv():
        L = ["s_mov_b32 s77, 0x1000000", f"XW{P}_TRY:"] + xrd + ["s_waitcnt lgkmcnt(0)", "s_sub_u32 s77, s77, 1",
             f"v_cmp_eq_u32 vcc, s{S_NONCE}, v{XF}", "s_cmp_eq_u32 s77, 0", f"s_cbranch_scc1 XW{P}_OK", "s_nop 1",
             "s_cmp_eq_u64 vcc, exec", f"s_cbranch_scc0 XW{P}_TRY", f"XW{P}_OK:"]
        return ["\n    ".join(L), ("LCOUNT", 2)]

    def finish(qq):
        L = []
        if qq == qsend:
            L += send(qq)
        if qq not in outq:
            return L
        if qq == qrecv:
            L += recv()
        L += post(qq)
        if outq.index(qq) & 1:
            L += xpose(qq)
        return L

    pend = []
    FILL = OPT.get("cfill", 4)
    since = {}
    issued = 2
    for i in range(nst):
        a.L.append(("LWAIT", f"R{i}"))
        rl = []
        while issued < nst and issued <= i + (2 if i < 2 else PF):
            rl += rd(issued)
            issued += 1
        act = [q for q in qs if 4 * q + 3 - i >= 0]
        per = -(-len(rl) // len(act))
        for q in act:
            s_ = 4 * q + 3 - i
            c = "0" if i == 0 else v(acc(q), 16)
            a(f"v_mfma_f32_32x32x16_bf16 {v(acc(q),16)}, {v(UBUF+4*(i%NU),4)}, {v(KT+4*s_,4)}, {c}")
            a.ext(rl[:per])
            rl = rl[per:]
            if s_ == 0:
                since[q] = len(a.L)
            for qq in list(since):
                if len([x for x in a.L[since[qq]:] if isinstance(x, str)]) >= 14:
                    if BAL and qq == 6:
                        continue
                    del since[qq]
                    pend += finish(qq)
            a.ext(pend[:FILL])
            pend = pend[FILL:]
    a.ext(stamp(7))
    a.ext(pend)
    a("s_nop 7\ns_nop 3")
    if BAL and not partB:
        a.ext(post(7))
        a.ext(recv())
        a.ext(post(6))
        a.ext(xpose(7))
    else:
        for qq in sorted(since):
            a.ext(finish(qq))
    a.ext(stamp(8))
    a(f"""
    s_waitcnt vmcnt(0)
    s_mov_b64 exec, 1
    buffer_store_dword v7, v6, {sr(SRD_WS)}, s19 offen sc1
    s_mov_b64 exec, -1
    """)
    if partB:
        E = 8
        a(f"""
        s_cmp_lg_u32 s6, 0
        s_cbranch_scc1 CV_NOGATE
        s_lshl_b32 s16, s{S_XCD}, 9
        s_add_u32 s16, s16, {FG_OFF}
        v_lshrrev_b32 v2, 2, v0
        v_and_b32 v3, 3, v0
        v_and_b32 v4, 3, v2
        v_lshlrev_b32 v4, 7, v4
        v_lshl_add_u32 v4, v3, 2, v4
        v_lshlrev_b32 v2, 2, v2
        v_lshl_add_u32 v2, v3, 11, v2
        s_mov_b32 s77, 0x100000
        """)
        a(rb64_scalar(17, 22))
        a(f"s_lshl_b32 s17, s17, 6\ns_add_u32 s17, s17, {GL_OFF}")
        a.ext(plain(spin("PG", [f"buffer_load_dword v5, v4, {sr(SRD_WS)}, s16 offen sc1"],
                         [f"v_cmp_eq_u32 vcc, s{S_NONCE}, v5", "s_nop 3", "s_cmp_eq_u64 vcc, exec"], 1)))
        for g in range(8):
            a(f"buffer_load_dword v{E+g}, v2, {sr(SRD_WS)}, s17 offen sc1")
            if g < 7:
                a("s_add_u32 s17, s17, 8192")
        a(f"""
        s_waitcnt vmcnt(0)
        v_add_f32 v{E}, v{E}, v{E+1}
        v_add_f32 v{E+2}, v{E+2}, v{E+3}
        v_add_f32 v{E+4}, v{E+4}, v{E+5}
        v_add_f32 v{E+6}, v{E+6}, v{E+7}
        v_add_f32 v{E}, v{E}, v{E+2}
        v_add_f32 v{E+4}, v{E+4}, v{E+6}
        v_add_f32 v{E}, v{E}, v{E+4}
        v_cvt_pk_bf16_f32 v{E}, v{E}, v{E}
        v_lshlrev_b32 v{E}, 16, v{E}
        v_mul_f32 v{E}, {f32(-LOG2E)}, v{E}
        v_exp_f32 v{E}, v{E}
        v_lshlrev_b32 v2, 2, v0
        v_add_f32 v{E}, 1.0, v{E}
        v_rcp_f32 v{E}, v{E}
        v_add_u32 v2, {G_LDS}, v2
        v_cvt_pk_bf16_f32 v{E}, v{E}, v{E}
        v_lshlrev_b32 v{E}, 16, v{E}
        ds_write_b32 v2, v{E}
        s_waitcnt lgkmcnt(0)
        CV_NOGATE:
        """)
    a.ext(stamp_end())
    st, ld, chk = fu_code(TMP, TMP + 1, TMP + 2, 7)
    a(f"CV{P}_SLOW:")
    a("s_waitcnt lgkmcnt(0)\ns_mov_b32 s77, 0x100000")
    a.ext(st)
    a.ext(plain(spin(f"PU{P}", ld, chk, 8)))
    a(f"v_lshlrev_b32 v{TMP}, 4, v0")
    a.ext(u_dma(TMP, 7))
    a(f"""
    s_mov_b32 s16, 0
    s_mov_b32 s17, 0xe0000000
    v_mov_b32 v4, 1
    s_waitcnt vmcnt(0)
    s_branch CV{P}_GO
    """)
    a0.ext(resolve_lds(a.L))


HEADER = open("cdna_kernels/" + NAME + ".s.ref").read().split("; Override launch")[0]


DOC = """;
"""


def main(path):
    a = Asm()
    prologue(a)
    a("L_SPARE:")
    a(f"s_and_b32 s{S_XCD}, s2, 7\ns_lshr_b32 s{S_IDX}, s2, 3\ns_waitcnt lgkmcnt(0)")
    srd(a, SRD_X, S_U, 2048 * 512 * 2)
    g_srds(a)
    spare(a)
    a("s_branch L_GEMM2")
    a("L_GEMM1:")
    if M16():
        gemm1_16(a)
    else:
        gemm1(a)
    a("L_GEMM2:")
    gemm2(a)
    a("L_LWAVE_S:")
    a.ext(lwave(False))
    a("L_KWAVE:")
    a.ext(kwave(True))
    a("L_KWAVE_S:")
    a.ext(kwave(False))
    a("L_CONVA:")
    conv(a, False)
    a("L_CONVB:")
    conv(a, True)
    a("L_END:\ns_endpgm")
    body = "\n".join(("" if ln.endswith(":") or ln.startswith(".") else "    ") + ln for ln in a.L)
    kn = NAME + "_kernel"
    txt = HEADER
    if OPT.get("list"):
        txt += f"; @launch kernel={kn} grid=(256,1,1) block=(512,1,1) lds=163840\n"
    else:
        txt += "; @launch grid=(256,1,1) block=(512,1,1) lds=163840\n"
    txt += DOC
    txt += '.amdgcn_target "amdgcn-amd-amdhsa--gfx950"\n.text\n'
    txt += f".globl {kn}\n.p2align 8\n.type {kn},@function\n{kn}:\n"
    txt += body + "\n"
    txt += f"""
.section .rodata,"a"
.p2align 6
.amdhsa_kernel {kn}
  .amdhsa_next_free_vgpr 256
  .amdhsa_next_free_sgpr 102
  .amdhsa_accum_offset 256
  .amdhsa_group_segment_fixed_size 0
  .amdhsa_kernarg_size 136
  .amdhsa_user_sgpr_count 2
  .amdhsa_user_sgpr_kernarg_segment_ptr 1
  .amdhsa_system_sgpr_workgroup_id_x 1
.end_amdhsa_kernel
"""
    open(path, "w").write(txt)


if __name__ == "__main__":
    for o in list(sys.argv):
        if o.startswith("--opt="):
            k, _, val = o[6:].partition(":")
            OPT[k] = int(val) if val else 1
            sys.argv.remove(o)
    if not any(k in OPT for k in ("blk", "blkb", "noblk")):
        OPT["blk"], OPT["blk2"] = 8, 14
    if OPT.get("oldlay"):
        DP = 4096
        UT_OFF, Y_OFF, GL_OFF = 0x800000, 0xC00000, 0xE00000
        FH_OFF, FY_OFF, FU_OFF, FD_OFF = 0xE40000, 0xE60000, 0xE68000, 0xE80000
    if OPT.get("dp"):
        DP = OPT["dp"]
    if "--stamps" in sys.argv:
        STAMPS = True
        sys.argv.remove("--stamps")
    main(sys.argv[1] if len(sys.argv) > 1 else "cdna_kernels/" + NAME + ".s")
```
